```python
import torch

def _softmax(x, axis=-1):
    return torch.softmax(x, dim=axis)
def _gelu(x):
    return torch.nn.functional.gelu(x, approximate="tanh")
def _silu(x):
    return torch.nn.functional.silu(x)
def _sigmoid(x):
    return torch.sigmoid(x)
def _layernorm(x, axis=-1, eps=1e-5):
    m = x.mean(dim=axis, keepdim=True)
    v = x.var(dim=axis, keepdim=True, unbiased=False)
    return (x - m) / torch.sqrt(v + eps)
def _scatter_add(tgt, idx, src, axis=0):
    return tgt.clone().index_add_(axis, idx, src)
def _segment_sum(src, seg, n):
    out = torch.zeros((n,) + src.shape[1:], dtype=src.dtype)
    return out.index_add_(0, seg, src)
def _pad(x, pw):
    flat = tuple(v for pair in reversed(pw) for v in pair)
    return torch.nn.functional.pad(x, flat)

kernel_name = 'recurrent_scan__ssm_conv_s4d__geglu_ffn__prompt'

def setup_inputs():

    _w = (lambda a: (lambda t: t.to(torch.bfloat16) if t.is_floating_point() else t)(torch.as_tensor(a)))
    def _A_setup():
        Bsz, L, D, N = 1, 2048, 640, 128
        return {
            "u": _w((lambda *s: torch.randn(*s, dtype=torch.bfloat16) * 0.05)(Bsz, L, D)),
            "log_A_real": _w((lambda *s: torch.randn(*s, dtype=torch.bfloat16) * 3.2)(D, N) * 0.5),
            "A_imag": _w((lambda *s: torch.randn(*s, dtype=torch.bfloat16) * 0.05)(D, N) * 3.14),
            "C_real": _w((lambda *s: torch.randn(*s, dtype=torch.bfloat16) * 0.1)(D, N) / N ** 0.5),
            "C_imag": _w((lambda *s: torch.randn(*s, dtype=torch.bfloat16) * 0.1)(D, N) / N ** 0.5),
            "log_dt": _w((lambda *s: torch.randn(*s, dtype=torch.bfloat16) * 0.05)(D) * 0.5 - 4.0),
            "D_skip": _w((lambda *s: torch.randn(*s, dtype=torch.bfloat16) * 0.05)(D)),
        }
    _A_in = _A_setup()

    def _B_setup():
        B, S, D, F = 1, 2048, 640, 1728
        return {
            "x": _w((lambda *s: torch.randn(*s, dtype=torch.bfloat16) * 0.05)(B, S, D)),
            "w_gate": _w((lambda *s: torch.randn(*s, dtype=torch.bfloat16) * 0.05)(D, F)),
            "w_up": _w((lambda *s: torch.randn(*s, dtype=torch.bfloat16) * 0.05)(D, F)),
            "w_down": _w((lambda *s: torch.randn(*s, dtype=torch.bfloat16) * 0.05)(F, D)),
        }
    _B_in = _B_setup()

    return {
        "A_u": _A_in["u"],
        "A_log_A_real": _A_in["log_A_real"],
        "A_A_imag": _A_in["A_imag"],
        "A_C_real": _A_in["C_real"],
        "A_C_imag": _A_in["C_imag"],
        "A_log_dt": _A_in["log_dt"],
        "A_D_skip": _A_in["D_skip"],
        "B_x": _B_in["x"],
        "B_w_gate": _B_in["w_gate"],
        "B_w_up": _B_in["w_up"],
        "B_w_down": _B_in["w_down"],
    }

def reference(A_u, A_log_A_real, A_A_imag, A_C_real, A_C_imag, A_log_dt, A_D_skip, B_x, B_w_gate, B_w_up, B_w_down):
    def _A_ref(u, log_A_real, A_imag, C_real, C_imag, log_dt, D_skip):
        L = u.shape[1]
        dt = torch.exp(log_dt)
        A = -torch.exp(log_A_real) + 1j * A_imag
        C = (C_real + 1j * C_imag) * dt[:, None]
        pos = (lambda x, dt: x.to(dt))(torch.arange(L), log_dt.dtype)
        P = torch.exp((A * dt[:, None])[:, :, None] * pos[None, None, :])
        K = 2.0 * torch.einsum("dn,dnl->dl", C, P).real
        L2 = 2 * L
        u_t = (lambda x, *d: x.permute(*d))(u, 0, 2, 1)
        Kf = (lambda x, *a, **k: torch.fft.rfft(x.float(), *a, **k))(K, L2)
        Uf = (lambda x, *a, **k: torch.fft.rfft(x.float(), *a, **k))(u_t, L2)
        y = (lambda x, *a, **k: torch.fft.irfft(x, *a, **k).to(torch.bfloat16))(Uf * Kf[None, :, :], L2)[:, :, :L]
        y = (lambda x, *d: x.permute(*d))(y, 0, 2, 1)
        return y + u * D_skip[None, None, :]

    def _B_ref(x, w_gate, w_up, w_down):
        return (_gelu(x @ w_gate) * (x @ w_up)) @ w_down

    x = A_u
    xn = _layernorm(x, axis=-1)
    s = _A_ref(xn, A_log_A_real, A_A_imag, A_C_real, A_C_imag, A_log_dt, A_D_skip)
    g = _silu(_B_ref(xn, B_w_gate, B_w_up, B_w_down))
    return x + s * g
```

```python
import sys, struct, math

KNAME = "recurrent_scan__ssm_conv_s4d__geglu_ffn__prompt_kernel"

EPOCH = 0x0
LNF = 0x1000
HF = 0x1400
SF = 0x1800
WF = 0x2000
TSB = 0x2800
STATS = 0x4000
XNT = 0x10000
ST = 0x290000
WDP = 0x510000
HB = 0x730000
WS_END = 0xDF0000
TS_BASE = 0xE00000

SLOT = 49152
MISC = 147456
LNP = 1344
CSB = MISC + 10752
XYP = 544
XYC = 64 * XYP
XYB = 0
PB = 0
UBASE = 69632
UC = 4608
RB = UBASE + 2 * UC
RCS = 4160
RC = 4 * RCS
TB = RB + 2 * RC
TC = 2624
YSB = TB + 2 * TC
SOB = 16384
EXB = 0
XTB = 118784
STB = XTB + 12288
WPK = 0
LDS_TOTAL = 163840

def f2u(x):
    return struct.unpack("<I", struct.pack("<f", x))[0]

LOG2E = 1.4426950408889634
C0 = -2.0 * math.sqrt(2.0 / math.pi) * LOG2E
C1 = C0 * 0.044715


class G:
    def __init__(self):
        self.L = []
        self.vm = []
        self.lg = []
        self.nlab = 0
        self.slow = []

    def e(self, s):
        for ln in s.split("\n"):
            self.L.append("    " + ln)

    def lab(self, name):
        self.L.append(name + ":")

    def newlab(self, p="L"):
        self.nlab += 1
        return f"{p}_{self.nlab}"

    def vmem(self, s, tag=None):
        self.e(s)
        self.vm.append(tag)

    def lds(self, s, tag=None):
        self.e(s)
        self.lg.append(tag)

    def _n(self, q, tag):
        idx = max(i for i, t in enumerate(q) if t == tag)
        return idx, len(q) - idx - 1

    def wvm(self, tag):
        if tag not in self.vm:
            return
        idx, n = self._n(self.vm, tag)
        self.e(f"s_waitcnt vmcnt({min(n, 63)})")
        self.vm = self.vm[idx + 1:]

    def wlg(self, tag):
        if tag not in self.lg:
            return
        idx, n = self._n(self.lg, tag)
        self.e(f"s_waitcnt lgkmcnt({min(n, 15)})")
        self.lg = self.lg[idx + 1:]

    def wvm0(self):
        self.e("s_waitcnt vmcnt(0)")
        self.vm = []

    def wlg0(self):
        self.e("s_waitcnt lgkmcnt(0)")
        self.lg = []

    def wall(self):
        self.e("s_waitcnt vmcnt(0) lgkmcnt(0)")
        self.vm = []
        self.lg = []

    def nop(self, n):
        while n > 0:
            k = min(n, 16)
            self.e(f"s_nop {k - 1}")
            n -= k

    def do(self, item):
        if callable(item):
            item()
        elif isinstance(item, tuple):
            kind = item[0]
            if kind == "vm":
                self.vmem(item[1], item[2])
            elif kind == "lds":
                self.lds(item[1], item[2])
            elif kind == "wvm":
                self.wvm(item[1])
            elif kind == "wlg":
                self.wlg(item[1])
            else:
                raise ValueError(kind)
        else:
            self.e(item)


def vr(a, n):
    return f"v[{a}:{a + n - 1}]"


def ar(a, n):
    return f"a[{a}:{a + n - 1}]"


SX, SWG, SWU, SWS, SOUT, SWD = "s[4:7]", "s[8:11]", "s[12:15]", "s[16:19]", "s[20:23]", "s[24:27]"
P_LAR, P_AIM, P_CRE, P_CIM, P_LDT, P_DSK = "s[28:29]", "s[30:31]", "s[32:33]", "s[34:35]", "s[36:37]", "s[38:39]"
sW, sTAG, sM, sFT, sISG1, sCP, sRND, sSP = "s40", "s41", "s42", "s43", "s44", "s45", "s46", "s47"
sXCD, sQ = "s48", "s49"
sXM0, sWM0, sXS, sWSO = "s50", "s51", "s52", "s53"
sT0, sT1, sT2, sT3, sT4, sT5 = "s54", "s55", "s56", "s57", "s58", "s59"
sONES, sCNT = "s60", "s61"
sRHO, sC = "s62", "s63"
sHS0, sHS1 = "s64", "s65"
sG2 = 66
sLT, sDT = "s82", "s83"
sEX = 84
sTS = 88
sEXEC = "s[94:95]"
sK0, sK1 = "s96", "s97"

vLANE, vL16 = 0, 1
vT = 2
vXO = 16
vWO = 24
vBA = 26
vAA = 34
vCS = 38
vHO = 40
vPAR = 42
vSTA = 48
vU = 56
vAF = 64
vBF = 96
vFL = 112
vEP = 120
vACC = 128


def gen(diag=False, stop_after=None):
    g = G()
    e = g.e
    ts_idx = [0]

    def stamp(name=None):
        if not diag:
            return
        i = ts_idx[0]
        ts_idx[0] += 1
        e("s_memrealtime s[92:93]")
        e("s_waitcnt lgkmcnt(0)")
        g.lg = []
        e("v_mov_b32 v15, s92")
        g.vmem(f"buffer_store_dword v15, v{vEP + 7}, s[{sTS}:{sTS + 3}], 0 offen offset:{4 * i}", "ts")

    def red(op, v, t, full):
        for dpp in ("quad_perm:[1,0,3,2]", "quad_perm:[2,3,0,1]", "row_half_mirror", "row_mirror"):
            g.nop(2)
            e(f"{op} v{v}, v{v}, v{v} {dpp}")
        e(f"v_mov_b32 v{t}, v{v}")
        g.nop(2)
        e(f"v_permlane16_swap_b32 v{v}, v{t}")
        g.nop(1)
        e(f"{op} v{v}, v{v}, v{t}")
        if full:
            e(f"v_mov_b32 v{t}, v{v}")
            g.nop(2)
            e(f"v_permlane32_swap_b32 v{v}, v{t}")
            g.nop(1)
            e(f"{op} v{v}, v{v}, v{t}")

    def bf16round(v):
        e(f"v_cvt_pk_bf16_f32 v{v}, v{v}, v{v}")
        e(f"v_lshlrev_b32 v{v}, 16, v{v}")

    def poll_block(addr_v, n4, tmp):
        lp = g.newlab("Lpoll")
        dn = g.newlab("Lpd")
        e(f"s_mov_b32 {sCNT}, 0x4000")
        g.lab(lp)
        if n4:
            e(f"buffer_load_dwordx4 {vr(tmp, 4)}, v{addr_v}, {SWS}, 0 offen sc1")
            e("s_waitcnt vmcnt(0)")
            check4(tmp)
        else:
            e(f"buffer_load_dword v{tmp}, v{addr_v}, {SWS}, 0 offen sc1")
            e("s_waitcnt vmcnt(0)")
            e(f"v_cmp_ne_u32 vcc, {sTAG}, v{tmp}")
        e(f"s_cbranch_vccz {dn}")
        e("s_sleep 2")
        e(f"s_sub_u32 {sCNT}, {sCNT}, 1")
        e(f"s_cbranch_scc0 {lp}")
        g.lab(dn)
        g.vm = []

    def check4(tmp):
        e(f"v_xor_b32 v{tmp}, {sTAG}, v{tmp}")
        e(f"v_xor_b32 v{tmp + 1}, {sTAG}, v{tmp + 1}")
        e(f"v_xor_b32 v{tmp + 2}, {sTAG}, v{tmp + 2}")
        e(f"v_xor_b32 v{tmp + 3}, {sTAG}, v{tmp + 3}")
        e(f"v_or3_b32 v{tmp}, v{tmp}, v{tmp + 1}, v{tmp + 2}")
        e(f"v_or_b32 v{tmp}, v{tmp}, v{tmp + 3}")
        e(f"v_cmp_ne_u32 vcc, 0, v{tmp}")

    def flag_store(soff_reg_or_imm):
        e(f"v_mov_b32 v{vT}, {sTAG}")
        e(f"v_mov_b32 v{vT + 1}, 0")
        e(f"s_mov_b64 {sEXEC}, exec")
        e("s_mov_b64 exec, 1")
        g.vmem(f"buffer_store_dword v{vT}, v{vT + 1}, {SWS}, {soff_reg_or_imm} offen sc1", "flag")
        e(f"s_mov_b64 exec, {sEXEC}")

    e("s_cmp_ge_u32 s2, 256")
    e("s_cbranch_scc1 L_end")
    e("s_load_dwordx2 s[4:5], s[0:1], 0")
    e("s_load_dwordx2 s[16:17], s[0:1], 104")
    e("s_load_dwordx2 s[8:9], s[0:1], 64")
    e("s_load_dwordx2 s[12:13], s[0:1], 72")
    e("s_load_dwordx4 s[28:31], s[0:1], 8")
    e("s_load_dwordx4 s[32:35], s[0:1], 24")
    e("s_load_dwordx4 s[36:39], s[0:1], 40")
    e("s_load_dwordx2 s[20:21], s[0:1], 88")
    e("s_load_dwordx2 s[24:25], s[0:1], 80")
    e("v_lshrrev_b32 v2, 6, v0")
    e("v_and_b32 v0, 63, v0")
    e(f"v_readfirstlane_b32 {sW}, v2")
    e("v_lshlrev_b32 v1, 4, v0")
    e("s_mov_b32 s6, 2621440\ns_mov_b32 s7, 0x20000")
    e("s_mov_b32 s10, 2211840\ns_mov_b32 s11, 0x20000")
    e("s_mov_b32 s14, 2211840\ns_mov_b32 s15, 0x20000")
    e(f"s_mov_b32 s18, {WS_END}\ns_mov_b32 s19, 0x20000")
    e("s_mov_b32 s22, 2621440\ns_mov_b32 s23, 0x20000")
    e("s_mov_b32 s26, 2211840\ns_mov_b32 s27, 0x20000")
    e(f"s_and_b32 {sXCD}, s2, 7")
    e(f"s_lshr_b32 {sQ}, s2, 3")
    e(f"s_and_b32 {sT0}, {sXCD}, 1")
    e(f"s_lshr_b32 {sT1}, {sXCD}, 1")
    e(f"s_and_b32 {sT2}, {sQ}, 3")
    e(f"s_lshr_b32 {sT3}, {sQ}, 2")
    e(f"s_lshl_b32 {sM}, {sT0}, 2")
    e(f"s_add_u32 {sM}, {sM}, {sT2}")
    e(f"s_mul_i32 {sFT}, {sT1}, 7")
    e(f"s_add_u32 {sFT}, {sFT}, {sT3}")
    e(f"s_cmp_lt_u32 {sT3}, 7")
    e(f"s_cselect_b32 {sISG1}, 1, 0")
    e(f"s_cmp_lt_u32 {sFT}, 27")
    e(f"s_cselect_b32 {sISG1}, {sISG1}, 0")
    e(f"s_lshl_b32 {sT4}, {sXCD}, 2")
    e(f"s_add_u32 {sT4}, {sT4}, {sQ}")
    e(f"s_sub_u32 {sT4}, {sT4}, 28")
    e(f"s_lshl_b32 {sT5}, {sXCD}, 3")
    e(f"s_add_u32 {sT5}, {sT5}, {sQ}")
    e(f"s_sub_u32 {sT5}, {sT5}, 48")
    e(f"s_cmp_lt_u32 {sXCD}, 6")
    e(f"s_cselect_b32 {sSP}, {sT4}, {sT5}")
    e(f"s_mul_i32 {sT4}, {sM}, 27")
    e(f"s_add_u32 {sT4}, {sT4}, {sFT}")
    e(f"s_add_u32 {sT5}, {sSP}, 216")
    e(f"s_cmp_lg_u32 {sISG1}, 0")
    e(f"s_cselect_b32 {sCP}, {sT4}, {sT5}")
    e(f"s_cmp_lt_u32 {sSP}, 24")
    e(f"s_cselect_b32 {sRND}, 3, 2")
    e(f"s_cmp_lg_u32 {sISG1}, 0")
    e(f"s_cselect_b32 {sRND}, 1, {sRND}")
    e(f"s_and_b32 {sRHO}, {sW}, 1")
    e(f"s_lshr_b32 {sC}, {sW}, 1")
    e(f"s_lshl_b32 {sLT}, {sXCD}, 2")
    e(f"s_add_u32 {sLT}, {sLT}, {sT2}")
    e(f"s_mov_b32 {sDT}, {sT3}")
    e("v_lshrrev_b32 v2, 5, v0")
    e("v_mul_u32_u24 v2, 1280, v2")
    e("v_and_b32 v3, 31, v0")
    e("v_lshl_add_u32 v2, v3, 3, v2")
    e(f"s_lshl_b32 {sT0}, s2, 2")
    e(f"s_add_u32 {sT0}, {sT0}, {sW}")
    e(f"s_mul_i32 {sT0}, {sT0}, 2560")
    e("v_lshrrev_b32 v4, 3, v0")
    e("v_and_b32 v5, 7, v0")
    e("v_lshrrev_b32 v6, 4, v0")
    e("v_mul_u32_u24 v7, 1280, v4")
    e("v_xor_b32 v8, v5, v6")
    e("v_xor_b32 v9, 4, v8")
    e(f"v_lshl_add_u32 v{vXO}, v8, 4, v7")
    e(f"v_lshl_add_u32 v{vXO + 1}, v9, 4, v7")
    e(f"v_add_u32 v{vXO + 1}, {8 * 1280}, v{vXO + 1}")
    for i in range(2, 8):
        e(f"v_add_u32 v{vXO + i}, {16 * 1280}, v{vXO + i - 2}")
    e("v_mul_u32_u24 v7, 3456, v4")
    e("v_and_b32 v8, 1, v6")
    e("v_lshlrev_b32 v8, 2, v8")
    e("v_xor_b32 v8, v5, v8")
    e(f"v_lshl_add_u32 v{vWO}, v8, 4, v7")
    e(f"v_add_u32 v{vWO + 1}, {8 * 3456}, v{vWO}")
    e(f"s_lshl_b32 {sXM0}, {sW}, 13")
    e(f"s_add_u32 {sXM0}, {sXM0}, 16384")
    e(f"s_lshl_b32 {sWM0}, {sW}, 11")
    e(f"s_lshl_b32 {sXS}, {sM}, 2")
    e(f"s_add_u32 {sXS}, {sXS}, {sW}")
    e(f"s_mul_i32 {sXS}, {sXS}, {64 * 1280}")
    e(f"s_mul_i32 {sWSO}, {sW}, {16 * 3456}")
    e(f"s_lshl_b32 {sT1}, {sFT}, 7")
    e(f"s_add_u32 {sWSO}, {sWSO}, {sT1}")
    e(f"v_mov_b32 v{vEP + 1}, 0")
    e("s_waitcnt lgkmcnt(0)")
    if diag:
        e(f"s_mov_b32 s{sTS}, s16\ns_mov_b32 s{sTS + 1}, s17\ns_mov_b32 s{sTS + 2}, 0x1000000\ns_mov_b32 s{sTS + 3}, 0x20000")
        e(f"s_lshl_b32 {sT1}, s2, 2\ns_add_u32 {sT1}, {sT1}, {sW}\ns_lshl_b32 {sT1}, {sT1}, 7\ns_add_u32 {sT1}, {sT1}, {TS_BASE}")
        e(f"v_mov_b32 v{vEP + 7}, {sT1}\nv_mov_b32 v15, 0x7fffff00\nv_cmp_ne_u32 vcc, 0, v0\ns_nop 1\nv_cndmask_b32 v{vEP + 7}, v{vEP + 7}, v15, vcc")
    stamp("start")
    LX = 128
    for q in range(5):
        g.vmem(f"buffer_load_dwordx2 {vr(LX + 2 * q, 2)}, v2, {SX}, {sT0} offen offset:{256 * q}", "ln")
    g.vmem(f"buffer_load_dword v{vEP}, v{vEP + 1}, {SWS}, 0 offen sc1", "epoch")

    def dma_items(stage):
        sb = (stage % 3) * SLOT
        out = []
        for mat in range(2):
            for half in range(2):
                out.append((f"s_add_u32 m0, {sWM0}, {sb + mat * 8192 + half * 1024}",
                            ("vm", f"buffer_load_dwordx4 v{vWO + half}, {SWG if mat == 0 else SWU}, {sWSO} offen lds", ("dma", stage))))
        for i in range(8):
            out.append((f"s_add_u32 m0, {sXM0}, {sb + i * 1024}",
                        ("vm", f"buffer_load_dwordx4 v{vXO + i}, {SX}, {sXS} offen lds", ("dma", stage))))
        return out

    adv = [f"s_add_u32 {sXS}, {sXS}, 128", f"s_add_u32 {sWSO}, {sWSO}, {64 * 3456}"]

    def param_loads():
        e(f"s_lshl_b32 {sT1}, {sCP}, 1")
        e(f"s_add_u32 {sT1}, {sT1}, {sC}")
        e(f"s_lshl_b32 {sT1}, {sT1}, 8")
        e(f"v_lshl_add_u32 v{vT + 1}, v0, 2, {sT1}")
        e(f"s_lshl_b32 {sT1}, {sCP}, 2")
        e(f"v_mov_b32 v{vT + 2}, {sT1}")
        for k, p in enumerate((P_LAR, P_AIM, P_CRE, P_CIM)):
            g.vmem(f"global_load_dword v{vPAR + k}, v{vT + 1}, {p}", "par")
        g.vmem(f"global_load_dword v{vPAR + 4}, v{vT + 2}, {P_LDT}", "par")
        g.vmem(f"global_load_dword v{vPAR + 5}, v{vT + 2}, {P_DSK}", "par")

    e(f"s_cmp_eq_u32 {sISG1}, 0")
    e("s_cbranch_scc1 L_nodma")
    vm_before = list(g.vm)
    for st in range(3):
        for (m0s, d) in dma_items(st):
            e(m0s)
            e("s_nop 0")
            g.do(d)
        for a in adv:
            e(a)
    e(f"s_lshr_b32 {sT1}, {sQ}, 2")
    e(f"s_lshl_b32 {sT1}, {sT1}, 7")
    e(f"s_add_u32 {sT1}, {sT1}, {sXS}")
    e("v_mul_u32_u24 v4, 1280, v0")
    g.vmem(f"buffer_load_dword v{vEP + 2}, v4, {SX}, {sT1} offen", "touch")
    e(f"s_and_b32 {sT1}, {sQ}, 3")
    e(f"s_mul_i32 {sT1}, {sT1}, 112")
    e(f"s_mul_i32 {sT2}, {sC}, 56")
    e(f"s_add_u32 {sT1}, {sT1}, {sT2}")
    e(f"s_add_u32 {sT1}, {sT1}, 192")
    e(f"s_mul_i32 {sT1}, {sT1}, 3456")
    e(f"s_lshl_b32 {sT2}, {sFT}, 7")
    e(f"s_add_u32 {sT1}, {sT1}, {sT2}")
    e("v_mul_u32_u24 v4, 3456, v0")
    e(f"s_cmp_eq_u32 {sRHO}, 0")
    e("s_cbranch_scc1 L_tg")
    e(f"buffer_load_dword v{vEP + 3}, v4, {SWU}, {sT1} offen")
    e("s_branch L_tu")
    g.lab("L_tg")
    e(f"buffer_load_dword v{vEP + 3}, v4, {SWG}, {sT1} offen")
    g.lab("L_tu")
    g.vm.append("touch")
    g.lab("L_nodma")
    param_loads()
    vm_g1 = list(g.vm)

    n_g1 = len(vm_g1) - 6
    n_sp = 6
    e(f"s_cmp_eq_u32 {sISG1}, 0")
    e("s_cbranch_scc1 L_lnw_sp")
    e(f"s_waitcnt vmcnt({min(n_g1, 63)})")
    e("s_branch L_lnw_done")
    g.lab("L_lnw_sp")
    e(f"s_waitcnt vmcnt({n_sp})")
    g.lab("L_lnw_done")
    g.vm = vm_g1[6:]
    stamp("ln_data")
    F = 140
    for q in range(10):
        e(f"v_lshlrev_b32 v{F + 2 * q}, 16, v{LX + q}")
        e(f"v_and_b32 v{F + 2 * q + 1}, 0xffff0000, v{LX + q}")
    e(f"v_readfirstlane_b32 {sTAG}, v{vEP}")
    S = 160
    e(f"v_pk_add_f32 {vr(S, 2)}, {vr(F, 2)}, {vr(F + 2, 2)}")
    e(f"v_pk_add_f32 {vr(S + 2, 2)}, {vr(F + 4, 2)}, {vr(F + 6, 2)}")
    for q in range(4, 10, 2):
        e(f"v_pk_add_f32 {vr(S, 2)}, {vr(S, 2)}, {vr(F + 2 * q, 2)}")
        e(f"v_pk_add_f32 {vr(S + 2, 2)}, {vr(S + 2, 2)}, {vr(F + 2 * q + 2, 2)}")
    e(f"v_pk_add_f32 {vr(S, 2)}, {vr(S, 2)}, {vr(S + 2, 2)}")
    e(f"s_mul_i32 {sTAG}, {sTAG}, 1664525")
    e(f"s_add_u32 {sTAG}, {sTAG}, 1013904223")
    e(f"v_add_f32 v{S}, v{S}, v{S + 1}")
    red("v_add_f32", S, S + 1, False)
    e(f"v_mul_f32 v{S}, {hex(f2u(1.0 / 640))}, v{S}")
    Dv = 164
    for q in range(10):
        e(f"v_pk_add_f32 {vr(Dv + 2 * q, 2)}, {vr(F + 2 * q, 2)}, {vr(S, 2)} op_sel_hi:[1,0] neg_lo:[0,1] neg_hi:[0,1]")
    e(f"v_pk_mul_f32 {vr(S + 2, 2)}, {vr(Dv, 2)}, {vr(Dv, 2)}")
    for q in range(1, 10):
        e(f"v_pk_fma_f32 {vr(S + 2, 2)}, {vr(Dv + 2 * q, 2)}, {vr(Dv + 2 * q, 2)}, {vr(S + 2, 2)}")
    e(f"v_add_f32 v{S + 2}, v{S + 2}, v{S + 3}")
    red("v_add_f32", S + 2, S + 3, False)
    e(f"v_mul_f32 v{S + 2}, {hex(f2u(1.0 / 640))}, v{S + 2}")
    bf16round(S + 2)
    e(f"v_add_f32 v{S + 2}, {hex(f2u(1e-5))}, v{S + 2}")
    bf16round(S + 2)
    e(f"v_sqrt_f32 v{S + 2}, v{S + 2}")
    bf16round(S)
    bf16round(S + 2)
    e(f"v_rcp_f32 v{S + 3}, v{S + 2}")
    SO = 184
    e(f"v_sub_f32 v{SO}, 0, v{S}")
    e(f"v_mul_f32 v{SO + 3}, v{S + 2}, v{S + 2}")
    e(f"v_mul_f32 v{S + 1}, v{S + 3}, v{S + 3}")
    e(f"v_mul_f32 v{SO + 2}, {hex(f2u(C0))}, v{S + 3}")
    e(f"v_mul_f32 v{S + 1}, v{S + 1}, v{S + 3}")
    e(f"v_mul_f32 v{S + 2}, v{SO}, v{S + 3}")
    e(f"v_mul_f32 v{SO + 1}, {hex(f2u(C1))}, v{S + 1}")
    UO = 188
    for q in range(10):
        e(f"v_pk_fma_f32 {vr(Dv + 2 * q, 2)}, {vr(F + 2 * q, 2)}, {vr(S + 2, 2)}, {vr(S + 2, 2)} op_sel:[0,1,0] op_sel_hi:[1,1,0]")
    for q in range(10):
        e(f"v_cvt_pk_f16_f32 v{UO + q}, v{Dv + 2 * q}, v{Dv + 2 * q + 1}")
    e("v_lshrrev_b32 v2, 5, v0")
    e(f"v_mul_u32_u24 v2, {LNP}, v2")
    e("v_and_b32 v3, 31, v0")
    e("v_lshl_add_u32 v2, v3, 3, v2")
    e(f"s_mul_i32 {sT1}, {sW}, {2 * LNP}")
    e(f"s_add_u32 {sT1}, {sT1}, {MISC}")
    e(f"v_add_u32 v2, {sT1}, v2")
    for q in range(5):
        g.lds(f"ds_write_b64 v2, {vr(UO + 2 * q, 2)} offset:{256 * q}", "lnw")
    e("v_lshrrev_b32 v4, 1, v0")
    e("v_mov_b32 v5, 0x7fffff00")
    e("v_cmp_ne_u32 vcc, 0, v3")
    e(f"s_lshl_b32 {sT1}, s2, 2")
    e(f"s_add_u32 {sT1}, {sT1}, {sW}")
    e("v_cndmask_b32 v4, v4, v5, vcc")
    e(f"s_lshl_b32 {sT1}, {sT1}, 5")
    e(f"s_add_u32 {sT1}, {sT1}, {STATS}")
    g.vmem(f"buffer_store_dwordx4 {vr(SO, 4)}, v4, {SWS}, {sT1} offen sc1", "lnst")
    e("v_bfe_u32 v2, v0, 2, 2")
    e(f"v_mul_u32_u24 v2, {LNP}, v2")
    e("v_lshrrev_b32 v3, 4, v0")
    e("v_lshl_add_u32 v2, v3, 5, v2")
    e("v_and_b32 v3, 3, v0")
    e("v_lshl_add_u32 v2, v3, 3, v2")
    e(f"s_lshl_b32 {sT1}, {sW}, 7")
    e(f"s_add_u32 {sT1}, {sT1}, {MISC}")
    e(f"v_add_u32 v2, {sT1}, v2")
    g.wlg0()
    e("s_barrier")
    TR = 200
    for j in range(3):
        for h in range(2):
            g.lds(f"ds_read_b64_tr_b16 {vr(TR + 4 * j + 2 * h, 2)}, v2 offset:{512 * j + 4 * LNP * h}", ("lntr", j))
    e(f"s_mul_i32 {sT1}, s2, 10240")
    e(f"s_lshl_b32 {sT2}, {sW}, 10")
    e(f"s_add_u32 {sT1}, {sT1}, {sT2}")
    e(f"s_add_u32 {sT1}, {sT1}, {XNT}")
    e(f"s_add_u32 {sT2}, {sT1}, 4096")
    e(f"s_add_u32 {sT3}, {sT1}, 8192")
    e(f"s_cmp_lt_u32 {sW}, 2")
    e(f"s_cselect_b32 {sT3}, {sT3}, 0x7fffff00")
    for j, so in enumerate((sT1, sT2, sT3)):
        g.wlg(("lntr", j))
        g.vmem(f"buffer_store_dwordx4 {vr(TR + 4 * j, 4)}, v1, {SWS}, {so} offen sc1", "lnst")
    stamp("ln_done")
    e(f"s_cmp_eq_u32 {sISG1}, 0")
    e("s_cbranch_scc1 L_spare")

    e("v_and_b32 v2, 31, v0")
    e("v_lshrrev_b32 v3, 5, v0")
    e("v_bfe_u32 v4, v0, 1, 3")
    e("v_xor_b32 v4, v4, v3")
    e(f"v_lshl_add_u32 v2, v2, 7, {sXM0}")
    for ks in range(4):
        e(f"v_xor_b32 v5, {2 * ks}, v4")
        e(f"v_lshl_add_u32 v{vBA + ks}, v5, 4, v2")
        e(f"v_add_u32 v{vBA + 4 + ks}, {2 * SLOT}, v{vBA + ks}")
    e("v_lshrrev_b32 v2, 5, v0")
    e("v_bfe_u32 v3, v0, 2, 2")
    e("v_lshl_add_u32 v2, v2, 3, v3")
    e("v_lshlrev_b32 v2, 7, v2")
    e("v_bfe_u32 v4, v0, 4, 1")
    e("v_lshl_add_u32 v2, v4, 5, v2")
    e("v_and_b32 v4, 3, v0")
    e("v_lshl_add_u32 v2, v4, 3, v2")
    e("v_lshrrev_b32 v3, 1, v3")
    e(f"v_xor_b32 v3, {sRHO}, v3")
    e(f"v_lshl_add_u32 v{vAA}, v3, 6, v2")
    e(f"v_xor_b32 v{vAA + 1}, 64, v{vAA}")
    e(f"v_add_u32 v{vAA + 2}, {2 * SLOT}, v{vAA}")
    e(f"v_add_u32 v{vAA + 3}, {2 * SLOT}, v{vAA + 1}")
    e(f"v_mov_b32 v{vCS}, 0")
    e(f"v_mov_b32 v{vCS + 1}, 0")
    e(f"s_mov_b32 {sONES}, 0x3f803f80")

    def frag_reads(k):
        stage, ks = divmod(k, 4)
        sl = stage % 3
        bset = 4 if sl == 2 else 0
        aset = 2 if sl == 2 else 0
        so = 0 if sl == 2 else sl * SLOT
        A = vAF + 16 * (k & 1)
        B = vBF + 8 * (k & 1)
        def bread(b):
            return ("lds", f"ds_read_b128 {vr(B + 4 * b, 4)}, v{vBA + bset + ks} offset:{so + 4096 * b}", ("B", k, b))
        def aread(t, h):
            mat, ap = divmod(t, 2)
            return ("lds", f"ds_read_b64_tr_b16 {vr(A + 4 * t + 2 * h, 2)}, v{vAA + aset + ap} offset:{so + mat * 8192 + ks * 2048 + h * 512}", ("A", k, t))
        return [bread(0), aread(0, 0), aread(0, 1), bread(1), aread(1, 0), aread(1, 1), aread(2, 0), aread(2, 1), aread(3, 0), aread(3, 1)]

    g.wvm(("dma", 0))
    e("s_barrier")
    stamp("g1_start")
    for it in frag_reads(0):
        g.do(it)

    pending = []

    def wd_load(phi):
        dst = ar(4 * phi, 4) if phi < 64 else vr(vWDV + 4 * (phi - 64), 4)
        st = phi // 5
        j = phi % 5
        return dst, st, j

    for k in range(40):
        stage, ks = divmod(k, 4)
        gaps = [[] for _ in range(8)]
        pre = []
        A = vAF + 16 * (k & 1)
        B = vBF + 8 * (k & 1)
        if ks == 3 and stage < 9:
            def bar(stage=stage):
                g.wlg0()
                if stage == 1:
                    g.wvm("lnst")
                g.wvm(("dma", stage + 1))
                e("s_barrier")
            pre.append(bar)
            if stage == 1:
                def lnflag():
                    lb = g.newlab("Lnf")
                    e(f"s_cmp_lg_u32 {sW}, 0")
                    e(f"s_cbranch_scc1 {lb}")
                    e(f"s_lshl_b32 {sT1}, s2, 2")
                    e(f"s_add_u32 {sT1}, {sT1}, {LNF}")
                    n = len(g.vm)
                    flag_store(sT1)
                    g.vm = g.vm[:n]
                    g.lab(lb)
                pre.append(lnflag)
            if stage + 3 <= 9:
                for (m0s, d) in dma_items(stage + 3):
                    pending.append([m0s, d])
                pending.append([adv[0], adv[1]])
        if k + 1 < 40:
            rd = frag_reads(k + 1)
            for i, it in enumerate(rd):
                gaps[i // 2].append(it)
        dots = [f"v_dot2c_f32_bf16 v{vCS}, {sONES}, v{A + i}" for i in range(4)] + \
               [f"v_dot2c_f32_bf16 v{vCS + 1}, {sONES}, v{A + 8 + i}" for i in range(4)]
        if k < 39:
            gaps[2] += dots[0:2]
            gaps[3] += dots[2:4]
            gaps[5] += dots[4:6]
            gaps[6] += dots[6:8]
        gi = 0
        while pending and gi < 7:
            grp = pending.pop(0)
            gaps[gi].append(grp[0])
            gaps[gi + 1].insert(0, grp[1])
            gi += 1
        if k == 32:
            def polls():
                e(f"v_add_u32 v{vFL + 5}, {LNF}, v1")
                e(f"v_min_u32 v{vFL + 6}, 53, v0")
                e(f"v_lshlrev_b32 v{vFL + 6}, 2, v{vFL + 6}")
                e(f"v_add_u32 v{vFL + 6}, {WF}, v{vFL + 6}")
                g.vmem(f"buffer_load_dwordx4 {vr(vFL, 4)}, v{vFL + 5}, {SWS}, 0 offen sc1", "poll")
                g.vmem(f"buffer_load_dword v{vFL + 4}, v{vFL + 6}, {SWS}, 0 offen sc1", "poll")
            gaps[5].append(polls)
        if k == 34:
            def chk():
                g.wvm("poll")
                sl = g.newlab("Lslow")
                bk = g.newlab("Lback")
                e(f"v_xor_b32 v{vFL + 4}, {sTAG}, v{vFL + 4}")
                e(f"v_xor_b32 v{vFL}, {sTAG}, v{vFL}")
                e(f"v_xor_b32 v{vFL + 1}, {sTAG}, v{vFL + 1}")
                e(f"v_xor_b32 v{vFL + 2}, {sTAG}, v{vFL + 2}")
                e(f"v_xor_b32 v{vFL + 3}, {sTAG}, v{vFL + 3}")
                e(f"v_or3_b32 v{vFL}, v{vFL}, v{vFL + 1}, v{vFL + 2}")
                e(f"v_or3_b32 v{vFL}, v{vFL}, v{vFL + 3}, v{vFL + 4}")
                e(f"v_cmp_ne_u32 vcc, 0, v{vFL}")
                e(f"s_cbranch_vccnz {sl}")
                g.lab(bk)
                g.slow.append((sl, bk, [(vFL + 5, True), (vFL + 6, False)]))
            gaps[4].append(chk)
        if k == 35:
            def statld():
                e("v_and_b32 v2, 31, v0")
                e("v_lshlrev_b32 v2, 4, v2")
                e(f"s_lshl_b32 {sT1}, {sM}, 2")
                e(f"s_add_u32 {sT1}, {sT1}, {sW}")
                e(f"s_lshl_b32 {sT1}, {sT1}, 10")
                e(f"s_add_u32 {sT1}, {sT1}, {STATS}")
                g.vmem(f"buffer_load_dwordx4 {vr(vSTA, 4)}, v2, {SWS}, {sT1} offen sc1", "stats")
                g.vmem(f"buffer_load_dwordx4 {vr(vSTA + 4, 4)}, v2, {SWS}, {sT1} offen offset:512 sc1", "stats")
            gaps[1].append(statld)
            def hoff():
                e("v_bfe_u32 v3, v0, 4, 1")
                e(f"v_mul_u32_u24 v3, {54 * 1024}, v3")
                e("v_lshrrev_b32 v4, 5, v0")
                e("v_lshl_add_u32 v3, v4, 8, v3")
                e("v_and_b32 v4, 15, v0")
                e("v_lshl_add_u32 v3, v4, 4, v3")
                e(f"s_lshl_b32 {sT2}, {sRHO}, 10")
                e(f"v_add_u32 v{vHO}, {sT2}, v3")
                e(f"s_xor_b32 {sT2}, {sT2}, 1024")
                e(f"v_add_u32 v{vHO + 1}, {sT2}, v3")
                e(f"s_lshl_b32 {sHS0}, {sM}, 2")
                e(f"s_add_u32 {sHS0}, {sHS0}, {sW}")
                e(f"s_mul_i32 {sHS0}, {sHS0}, {4 * 54}")
                e(f"s_lshl_b32 {sT2}, {sFT}, 1")
                e(f"s_add_u32 {sHS0}, {sHS0}, {sT2}")
                e(f"s_lshl_b32 {sHS0}, {sHS0}, 10")
                e(f"s_add_u32 {sHS0}, {sHS0}, {HB}")
                e(f"s_add_u32 {sHS1}, {sHS0}, {2 * 54 * 1024}")
            gaps[4].append(hoff)
            def csaddr():
                e(f"v_and_b32 v{vFL + 5}, 31, v0")
                e(f"v_lshlrev_b32 v{vFL + 5}, 2, v{vFL + 5}")
                e(f"s_lshl_b32 {sT2}, {sRHO}, 7")
                e(f"s_add_u32 {sT2}, {sT2}, {CSB}")
                e(f"v_add_u32 v{vFL + 5}, {sT2}, v{vFL + 5}")
                e(f"v_lshrrev_b32 v{vFL + 6}, 5, v0")
                e(f"v_lshl_add_u32 v{vFL + 6}, v{vFL + 6}, 4, {sT2}")
                e(f"v_xor_b32 v{vFL + 7}, 128, v{vFL + 6}")
            gaps[6].append(csaddr)
        if k == 39:
            gaps[0] = [("wlg", ("A", k, 2))] + dots
            def fin():
                e(f"v_mov_b32 v2, v{vCS}")
                e(f"v_mov_b32 v3, v{vCS + 1}")
                g.nop(2)
                e(f"v_permlane32_swap_b32 v{vCS}, v2")
                e(f"v_permlane32_swap_b32 v{vCS + 1}, v3")
                g.nop(1)
                e(f"v_add_f32 v{vCS}, v{vCS}, v2")
                e(f"v_add_f32 v{vCS + 1}, v{vCS + 1}, v3")
                g.lds(f"ds_write_b32 v{vFL + 5}, v{vCS}", "csw")
                g.lds(f"ds_write_b32 v{vFL + 5}, v{vCS + 1} offset:256", "csw")
            gaps[1].append("s_nop 2")
            gaps[2].append(fin)
            def csbar():
                g.wlg0()
                e("s_barrier")
            gaps[4].append(csbar)
            for j in range(4):
                gaps[5].append(("lds", f"ds_read_b128 {vr(64 + 4 * j, 4)}, v{vFL + 6} offset:{32 * j}", "cs0"))
            for j in range(4):
                dst = (4 + 4 * j) if j < 2 else (96 + 4 * (j - 2))
                gaps[6].append(("lds", f"ds_read_b128 {vr(dst, 4)}, v{vFL + 6} offset:{256 + 32 * j}", "cs0"))
        for it in pre:
            g.do(it)
        for i in range(8):
            t, b = divmod(i, 2)
            g.wlg(("A", k, t))
            g.wlg(("B", k, b))
            D = vACC + 16 * (2 * t + b)
            Cs = "0" if k == 0 else vr(D, 16)
            e(f"v_mfma_f32_32x32x16_bf16 {vr(D, 16)}, {vr(A + 4 * t, 4)}, {vr(B + 4 * b, 4)}, {Cs}")
            for it in gaps[i]:
                g.do(it)
    assert not pending
    stamp("g1_loop_end")

    def csu0(i):
        return (4 + i) if i < 8 else (96 + i - 8)
    def csu1(i):
        return (104 + i) if i < 8 else (56 + i - 8)
    TT = 12
    tmps = [12, 14, 24, 26]
    OUT = 120
    HO0, HO1 = 16, 20
    g.wvm("stats")
    first = True
    for ap in range(2):
        for b in range(2):
            Gt = vACC + 16 * (2 * ap + b)
            Ut = vACC + 16 * (2 * (2 + ap) + b)
            st = vSTA + 4 * b
            if ap == 0 and b == 0:
                g.wlg("cs0")
                g.nop(4)
            if ap == 0 and b == 1:
                for j in range(4):
                    g.lds(f"ds_read_b128 {vr(80 + 4 * j, 4)}, v{vFL + 7} offset:{32 * j}", "cs1")
                for j in range(4):
                    dst = (104 + 4 * j) if j < 2 else (56 + 4 * (j - 2))
                    g.lds(f"ds_read_b128 {vr(dst, 4)}, v{vFL + 7} offset:{256 + 32 * j}", "cs1")
            if ap == 1 and b == 0:
                g.wlg("cs1")
            csg = (lambda i: 64 + i) if ap == 0 else (lambda i: 80 + i)
            csu = csu0 if ap == 0 else csu1
            for c in range(2):
                O = HO0 if c == 0 else HO1
                ps = range(4 * c, 4 * c + 4)
                for p in ps:
                    e(f"v_pk_fma_f32 {vr(Gt + 2 * p, 2)}, {vr(csg(2 * p), 2)}, {vr(st, 2)}, {vr(Gt + 2 * p, 2)} op_sel_hi:[1,0,1]")
                for p in ps:
                    t = tmps[p % 4]
                    e(f"v_pk_mul_f32 {vr(t, 2)}, {vr(Gt + 2 * p, 2)}, {vr(Gt + 2 * p, 2)}")
                for p in ps:
                    t = tmps[p % 4]
                    e(f"v_pk_fma_f32 {vr(t, 2)}, {vr(t, 2)}, {vr(st, 2)}, {vr(st + 2, 2)} op_sel:[0,1,0] op_sel_hi:[1,1,0]")
                for p in ps:
                    t = tmps[p % 4]
                    e(f"v_pk_mul_f32 {vr(t, 2)}, {vr(t, 2)}, {vr(Gt + 2 * p, 2)}")
                for p in ps:
                    t = tmps[p % 4]
                    e(f"v_exp_f32 v{t}, v{t}")
                    e(f"v_exp_f32 v{t + 1}, v{t + 1}")
                for p in ps:
                    e(f"v_pk_fma_f32 {vr(Ut + 2 * p, 2)}, {vr(csu(2 * p), 2)}, {vr(st, 2)}, {vr(Ut + 2 * p, 2)} op_sel_hi:[1,0,1]")
                for p in ps:
                    t = tmps[p % 4]
                    e(f"v_pk_fma_f32 {vr(t, 2)}, {vr(t, 2)}, {vr(st + 2, 2)}, {vr(st + 2, 2)} op_sel:[0,1,1] op_sel_hi:[1,1,1]")
                for p in ps:
                    t = tmps[p % 4]
                    e(f"v_rcp_f32 v{t}, v{t}")
                    e(f"v_rcp_f32 v{t + 1}, v{t + 1}")
                for p in ps:
                    e(f"v_pk_mul_f32 {vr(Gt + 2 * p, 2)}, {vr(Gt + 2 * p, 2)}, {vr(Ut + 2 * p, 2)}")
                for p in ps:
                    t = tmps[p % 4]
                    e(f"v_pk_mul_f32 {vr(Gt + 2 * p, 2)}, {vr(Gt + 2 * p, 2)}, {vr(t, 2)}")
                for p in ps:
                    e(f"v_cvt_pk_bf16_f32 v{O + p - 4 * c}, v{Gt + 2 * p}, v{Gt + 2 * p + 1}")
                g.vmem(f"buffer_store_dwordx4 {vr(O, 4)}, v{vHO + ap}, {SWS}, {sHS0 if b == 0 else sHS1} offen offset:{512 * c} sc1", "hst")
    stamp("g1_epi_end")
    e("s_branch L_round")

    g.lab("L_spare")
    g.vm = ["par"] * 6 + ["lnst"] * 4
    g.lg = []
    e(f"s_mov_b32 {sK0}, {sSP}")
    e(f"s_mov_b32 {sK1}, 0")
    WV = 128
    e(f"s_mul_i32 {sT1}, {sW}, 640")
    e(f"s_mov_b32 {sT2}, {0x100000000 // 80 + 1}")
    for i in range(10):
        e(f"v_add_u32 v2, {sT1}, v0")
        if i:
            e(f"v_add_u32 v2, {64 * i}, v2")
        e(f"v_mul_hi_u32 v3, v2, {sT2}")
        e("v_mul_u32_u24 v4, 80, v3")
        e("v_sub_u32 v4, v2, v4")
        e("v_and_b32 v5, 7, v3")
        e("v_lshlrev_b32 v5, 1, v5")
        e("v_xor_b32 v4, v4, v5")
        e("v_mul_u32_u24 v3, 1280, v3")
        e(f"v_lshl_add_u32 v{WV + i}, v4, 4, v3")
    e("v_lshrrev_b32 v2, 5, v0")
    e("v_lshlrev_b32 v2, 4, v2")
    e("v_bfe_u32 v3, v0, 4, 1")
    e("v_lshl_add_u32 v2, v3, 2, v2")
    e("v_bfe_u32 v3, v0, 2, 2")
    e("v_add_u32 v2, v2, v3")
    e("v_and_b32 v3, 7, v2")
    e("v_lshlrev_b32 v3, 1, v3")
    e("v_mul_u32_u24 v2, 1280, v2")
    e("v_and_b32 v4, 1, v0")
    e("v_lshl_add_u32 v2, v4, 3, v2")
    e("v_bfe_u32 v4, v0, 1, 1")
    RV = 140
    e(f"s_mul_i32 {sT1}, {sW}, 20")
    for i in range(10):
        e(f"v_add_u32 v5, {sT1}, v4")
        if i:
            e(f"v_add_u32 v5, {2 * i}, v5")
        e("v_xor_b32 v5, v5, v3")
        e(f"v_lshl_add_u32 v{RV + i}, v5, 4, v2")
    g.lab("L_pack")
    e(f"s_mul_i32 {sT1}, {sK0}, 40960")
    e(f"s_mul_i32 {sT2}, {sW}, 10240")
    for i in range(10):
        e(f"s_add_u32 m0, {sT2}, {WPK + 1024 * i}")
        e("s_nop 0")
        e(f"buffer_load_dwordx4 v{WV + i}, {SWD}, {sT1} offen lds")
    g.wall()
    e("s_barrier")
    e(f"s_or_b32 {sT1}, {sK1}, {sW}")
    e(f"s_cmp_lg_u32 {sT1}, 0")
    e("s_cbranch_scc1 L_nolnf")
    e(f"s_lshl_b32 {sT1}, s2, 2")
    e(f"s_add_u32 {sT1}, {sT1}, {LNF}")
    flag_store(sT1)
    g.lab("L_nolnf")
    PD = 152
    for i in range(10):
        for h in range(2):
            g.lds(f"ds_read_b64_tr_b16 {vr(PD + 4 * i + 2 * h, 2)}, v{RV + i} offset:{WPK + 8 * 1280 * h}", ("pk", i))
    e(f"s_mul_i32 {sT1}, {sW}, {2 * 54}")
    e(f"s_add_u32 {sT1}, {sT1}, {sK0}")
    e(f"s_mul_i32 {sT1}, {sT1}, 5120")
    e(f"s_add_u32 {sT1}, {sT1}, {WDP}")
    for i in range(10):
        g.wlg(("pk", i))
        off = (i // 5) * 54 * 5120 + (i % 5) * 1024
        e(f"s_add_u32 {sT2}, {sT1}, {off}")
        g.vmem(f"buffer_store_dwordx4 {vr(PD + 4 * i, 4)}, v1, {SWS}, {sT2} offen sc1", "pks")
    g.wall()
    e("s_barrier")
    e(f"s_cmp_lg_u32 {sW}, 0")
    e("s_cbranch_scc1 L_nowf")
    e(f"s_lshl_b32 {sT1}, {sK0}, 2")
    e(f"s_add_u32 {sT1}, {sT1}, {WF}")
    flag_store(sT1)
    g.lab("L_nowf")
    e(f"s_cmp_lg_u32 {sK1}, 0")
    e("s_cbranch_scc1 L_packdone")
    e(f"s_cmp_lt_u32 {sSP}, 26")
    e("s_cbranch_scc1 L_packdone")
    e(f"s_add_u32 {sK0}, {sSP}, 14")
    e(f"s_mov_b32 {sK1}, 1")
    e("s_branch L_pack")
    g.lab("L_packdone")
    e(f"s_mov_b32 {sK1}, 0")
    stamp("pack_done")

    g.lab("L_round")
    g.vm = ["x"] * 40
    g.lg = []
    KA = 128
    e(f"s_lshl_b32 {sT1}, {sC}, 4")
    e(f"v_lshrrev_b32 v{KA}, {sT1}, v{vPAR + 4}")
    e(f"v_lshlrev_b32 v{KA}, 16, v{KA}")
    e(f"v_mul_f32 v{KA}, {hex(f2u(LOG2E))}, v{KA}")
    e(f"v_exp_f32 v{KA}, v{KA}")
    e(f"v_lshrrev_b32 v{vEP + 4}, {sT1}, v{vPAR + 5}")
    e(f"v_lshlrev_b32 v{vEP + 4}, 16, v{vEP + 4}")
    bf16round(KA)
    e(f"v_lshlrev_b32 v{KA + 2}, 16, v{vPAR}")
    e(f"v_and_b32 v{KA + 3}, 0xffff0000, v{vPAR}")
    e(f"v_mul_f32 v{KA + 2}, {hex(f2u(LOG2E))}, v{KA + 2}")
    e(f"v_mul_f32 v{KA + 3}, {hex(f2u(LOG2E))}, v{KA + 3}")
    e(f"v_exp_f32 v{KA + 2}, v{KA + 2}")
    e(f"v_exp_f32 v{KA + 3}, v{KA + 3}")
    e(f"v_lshlrev_b32 v{KA + 4}, 16, v{vPAR + 1}")
    e(f"v_and_b32 v{KA + 5}, 0xffff0000, v{vPAR + 1}")
    e(f"v_cvt_pk_bf16_f32 v{KA + 1}, v{KA + 2}, v{KA + 3}")
    e(f"v_lshlrev_b32 v{KA + 2}, 16, v{KA + 1}")
    e(f"v_and_b32 v{KA + 3}, 0xffff0000, v{KA + 1}")
    for m in range(2):
        e(f"v_mul_f32 v{KA + 2 + m}, v{KA + 2 + m}, v{KA}")
        e(f"v_mul_f32 v{KA + 4 + m}, v{KA + 4 + m}, v{KA}")
    for m in range(2):
        e(f"v_mul_f32 v{KA + 2 + m}, {hex(f2u(-LOG2E))}, v{KA + 2 + m}")
        e(f"v_mul_f32 v{KA + 4 + m}, {hex(f2u(1.0 / (2 * math.pi)))}, v{KA + 4 + m}")
    SIG, OMG = KA + 2, KA + 4

    def cexp(dst, p, t):
        for m in range(2):
            e(f"v_mul_f32 v{t + m}, {hex(f2u(float(p)))}, v{SIG + m}")
            e(f"v_mul_f32 v{t + 2 + m}, {hex(f2u(float(p)))}, v{OMG + m}")
        for m in range(2):
            e(f"v_fract_f32 v{t + 2 + m}, v{t + 2 + m}")
        for m in range(2):
            e(f"v_exp_f32 v{t + m}, v{t + m}")
            e(f"v_cos_f32 v{dst + 2 * m}, v{t + 2 + m}")
            e(f"v_sin_f32 v{dst + 2 * m + 1}, v{t + 2 + m}")
        e("s_nop 0")
        for m in range(2):
            e(f"v_pk_mul_f32 {vr(dst + 2 * m, 2)}, {vr(dst + 2 * m, 2)}, {vr(t, 2)} op_sel:[0,{m}] op_sel_hi:[1,{m}]")

    def cmul(dst, P, Q, t):
        for m in range(2):
            e(f"v_pk_mul_f32 {vr(t + 2 * m, 2)}, {vr(P + 2 * m, 2)}, {vr(Q + 2 * m, 2)} op_sel_hi:[0,1]")
        for m in range(2):
            e(f"v_pk_fma_f32 {vr(dst + 2 * m, 2)}, {vr(P + 2 * m, 2)}, {vr(Q + 2 * m, 2)}, {vr(t + 2 * m, 2)} op_sel:[1,1,0] op_sel_hi:[1,0,1] neg_lo:[0,1,0]")

    WA = KA + 6
    e(f"s_mul_i32 {sT1}, {sC}, {XYC}")
    e(f"v_lshl_add_u32 v{WA}, v0, 3, {sT1}")
    cnt = [0]

    def put(src, row, neg):
        o = 144 + 2 * (cnt[0] % 4)
        cnt[0] += 1
        ng = "-" if neg else ""
        e(f"v_cvt_pk_f16_f32 v{o}, v{src}, {ng}v{src + 1}")
        e(f"v_cvt_pk_f16_f32 v{o + 1}, v{src + 2}, {ng}v{src + 3}")
        g.lds(f"ds_write_b64 v{WA}, {vr(o, 2)} offset:{XYB + row * XYP}", "xy")

    e(f"s_cmp_lg_u32 {sRHO}, 0")
    e("s_cbranch_scc1 L_role1")
    W8, YA, YB_, TM = 152, 156, 160, 136
    cexp(W8, 8, TM)
    e(f"v_mov_b32 v{144}, 0x3c00")
    e(f"v_mov_b32 v{145}, 0x3c00")
    g.lds(f"ds_write_b64 v{WA}, {vr(144, 2)} offset:{XYB + 32 * XYP}", "xy")
    cnt[0] = 1
    put(W8, 33, False)
    cur = W8
    for j in range(2, 32):
        nxt = YA if cur != YA else YB_
        cmul(nxt, cur, W8, TM)
        put(nxt, 32 + j, False)
        cur = nxt
    e("s_branch L_kbar")
    g.lab("L_role1")
    CC = 152
    e(f"v_lshlrev_b32 v{CC}, 16, v{vPAR + 2}")
    e(f"v_lshlrev_b32 v{CC + 1}, 16, v{vPAR + 3}")
    e(f"v_and_b32 v{CC + 2}, 0xffff0000, v{vPAR + 2}")
    e(f"v_and_b32 v{CC + 3}, 0xffff0000, v{vPAR + 3}")
    MX = 136
    e(f"v_max_f32 v{MX}, |v{CC}|, |v{CC + 1}|")
    e(f"v_max3_f32 v{MX}, |v{CC + 2}|, |v{CC + 3}|, v{MX}")
    red("v_max_f32", MX, MX + 1, True)
    e(f"v_frexp_exp_i32_f32 v{MX}, v{MX}")
    e(f"v_add_f32 v{KA}, v{KA}, v{KA}")
    e(f"v_ldexp_f32 v{KA}, v{KA}, v{MX}")
    e(f"v_sub_u32 v{MX}, 0, v{MX}")
    for i in range(4):
        e(f"v_ldexp_f32 v{CC + i}, v{CC + i}, v{MX}")
    e(f"s_lshl_b32 {sT1}, {sC}, 2")
    e(f"s_add_u32 {sT1}, {sT1}, {YSB}")
    e(f"v_mov_b32 v{MX + 1}, {sT1}")
    g.lds(f"ds_write_b32 v{MX + 1}, v{KA}", "xy")
    Z, Q, Q4 = 156, 160, 164
    cexp(Z, 1, TM)
    cexp(Q, 256, TM)
    cexp(Q4, 1024, TM)
    X = [168 + 4 * i for i in range(8)]
    X[0] = CC
    cnt[0] = 0
    put(CC, 0, True)
    for s in range(1, 8):
        cmul(X[s], X[s - 1], Z, TM)
        put(X[s], s, True)
    R8 = [200 + 4 * i for i in range(4)]
    for s in range(4):
        cmul(R8[s], X[2 * s], Q, TM)
        put(R8[s], 8 + s, True)
    R12 = [216, 220]
    for s in range(2):
        cmul(R12[s], R8[2 * s], Q, TM)
        put(R12[s], 12 + s, True)
    for s in range(2):
        cmul(X[1 + 2 * s], R12[s], Q, TM)
        put(X[1 + 2 * s], 14 + s, True)
    cmul(R8[0], CC, Q4, TM)
    put(R8[0], 16, True)
    cmul(R8[2], R8[0], Q4, TM)
    put(R8[2], 20, True)
    cmul(R8[1], R8[0], Q, TM)
    put(R8[1], 17, True)
    cmul(R8[3], R8[1], Q, TM)
    put(R8[3], 18, True)
    cmul(R8[1], R8[3], Q, TM)
    put(R8[1], 19, True)
    g.lab("L_kbar")
    SC = 168
    GA = 176
    e("v_lshrrev_b32 v2, 4, v0")
    e(f"s_lshl_b32 {sT1}, {sRHO}, 2")
    e(f"v_add_u32 v2, {sT1}, v2")
    e("v_and_b32 v3, 15, v0")
    e(f"s_mul_i32 {sT2}, {sC}, {TC}")
    e(f"s_add_u32 {sT2}, {sT2}, {TB + 4}")
    DUM = 645
    e("v_mov_b32 v4, 8")
    e("v_cmp_eq_u32 vcc, 2, v2\ns_nop 1\nv_cndmask_b32 v4, v4, 4, vcc")
    e("v_cmp_eq_u32 vcc, 3, v2\ns_nop 1\nv_cndmask_b32 v4, v4, 2, vcc")
    e("v_cmp_eq_u32 vcc, 4, v2\ns_nop 1\nv_cndmask_b32 v4, v4, 1, vcc")
    e("v_cmp_lt_u32 vcc, 4, v2\ns_nop 1\nv_cndmask_b32 v4, v4, 0, vcc")
    e("v_mul_u32_u24 v5, v4, v3")
    e("v_lshlrev_b32 v6, 4, v4")
    for i in range(4):
        e(f"v_lshl_add_u32 v7, v2, 2, {i}")
        for tv, val in ((2, 256 + i), (3, 384 + 64 * (i >> 1) + (i & 1)), (4, 512 + 32 * i)):
            e(f"v_mov_b32 v8, {val}")
            e(f"v_cmp_eq_u32 vcc, {tv}, v2\ns_nop 1\nv_cndmask_b32 v7, v7, v8, vcc")
        e(f"v_mov_b32 v8, {DUM}")
        e("v_cmp_lt_u32 vcc, 4, v2\ns_nop 1\nv_cndmask_b32 v7, v7, v8, vcc")
        e("v_add_u32 v7, v7, v5")
        e("v_add_u32 v9, v7, v6")
        if i == 0:
            e("v_lshl_add_u32 v10, v2, 4, v3")
            e("v_mov_b32 v8, 640")
            e("v_cmp_eq_u32 vcc, 80, v10\ns_nop 1\nv_cndmask_b32 v7, v7, v8, vcc")
        e(f"v_lshl_add_u32 v{SC + i}, v7, 2, {sT2}")
        e(f"v_lshl_add_u32 v{SC + 4 + i}, v9, 2, {sT2}")
    e(f"s_lshl_b32 {sT1}, {sRHO}, 10")
    e(f"s_sub_u32 {sT1}, 2047, {sT1}")
    e("v_lshlrev_b32 v2, 3, v0")
    e(f"v_sub_u32 v2, {sT1}, v2")
    for ch in range(2):
        for k in range(11):
            e(f"v_subrev_u32 v3, {512 * ch + k}, v2")
            e("v_cvt_f32_i32 v4, v3")
            e("v_max_i32 v3, -1, v3")
            e("v_cvt_pk_bf16_f32 v4, v4, 0")
            e("v_cmp_gt_i32 vcc, 0x100, v3")
            e("v_subrev_u32 v4, 0x4280, v4")
            e("s_nop 0")
            e("v_cndmask_b32 v3, v4, v3, vcc")
            e(f"v_lshl_add_u32 v{GA + 11 * ch + k}, v3, 2, {sT2}")
    e("v_mov_b32 v4, 0\nv_mov_b32 v5, 0\nv_mov_b32 v6, 0\nv_mov_b32 v7, 0")
    e(f"s_mul_i32 {sT1}, {sC}, {UC}")
    e(f"s_lshl_b32 {sT3}, {sRHO}, 8")
    e(f"s_add_u32 {sT1}, {sT1}, {sT3}")
    e(f"s_add_u32 {sT1}, {sT1}, {UBASE}")
    e(f"v_add_u32 v2, {sT1}, v1")
    e(f"s_mul_i32 {sT1}, {sC}, {RC}")
    e(f"s_mul_i32 {sT3}, {sRHO}, {2 * RCS}")
    e(f"s_add_u32 {sT1}, {sT1}, {sT3}")
    e(f"s_add_u32 {sT1}, {sT1}, {RB + 4096}")
    e("v_bfe_u32 v3, v0, 1, 1")
    e(f"v_mul_u32_u24 v3, {RCS}, v3")
    e("v_and_b32 v8, 1, v0")
    e("v_lshl_add_u32 v3, v8, 4, v3")
    e(f"v_add_u32 v3, {sT1}, v3")
    e("v_cmp_lt_u32 vcc, 15, v0\ns_nop 1\nv_cndmask_b32 v2, v2, v3, vcc")
    g.lds(f"ds_write_b128 v2, {vr(4, 4)}", "z")
    e(f"v_mov_b32 v3, {sT2}")
    e(f"v_add_u32 v3, -4, v3")
    g.lds("ds_write_b32 v3, v4", "z")
    g.wall()
    e("s_barrier")
    stamp("kbar")
    e(f"s_lshl_b32 {sT1}, {sW}, 1")
    e(f"s_xor_b32 {sT3}, {sISG1}, 1")
    e(f"s_or_b32 {sT1}, {sT1}, {sT3}")
    e(f"s_cmp_lg_u32 {sT1}, 0")
    e("s_cbranch_scc1 L_nohf")
    e(f"s_lshl_b32 {sT1}, {sM}, 5")
    e(f"s_add_u32 {sT1}, {sT1}, {sFT}")
    e(f"s_lshl_b32 {sT1}, {sT1}, 2")
    e(f"s_add_u32 {sT1}, {sT1}, {HF}")
    flag_store(sT1)
    g.lab("L_nohf")
    g.vm = []
    e(f"s_or_b32 {sT1}, {sISG1}, {sK1}")
    e(f"s_cmp_lg_u32 {sT1}, 0")
    e("s_cbranch_scc1 L_lnok")
    e(f"v_add_u32 v{vFL + 5}, {LNF}, v1")
    poll_block(vFL + 5, True, vFL)
    e(f"s_mov_b32 {sK1}, 1")
    g.lab("L_lnok")
    e(f"s_or_b32 {sT1}, s2, {sW}")
    e(f"s_cmp_lg_u32 {sT1}, 0")
    e("s_cbranch_scc1 L_noep")
    e(f"s_mov_b32 {sT1}, {EPOCH}")
    flag_store(sT1)
    g.lab("L_noep")
    g.vm = []
    e("v_lshrrev_b32 v2, 1, v0")
    e("v_mul_u32_u24 v2, 10240, v2")
    e("v_and_b32 v3, 1, v0")
    e("v_lshl_add_u32 v2, v3, 4, v2")
    e(f"s_mul_i32 {sT1}, {sW}, {64 * 10240}")
    e(f"s_lshl_b32 {sT3}, {sCP}, 5")
    e(f"s_add_u32 {sT1}, {sT1}, {sT3}")
    e(f"s_add_u32 {sT1}, {sT1}, {XNT}")
    e(f"s_add_u32 {sT3}, {sT1}, {32 * 10240}")
    g.vmem(f"buffer_load_dwordx4 {vr(vU, 4)}, v2, {SWS}, {sT1} offen sc1", "u")
    g.vmem(f"buffer_load_dwordx4 {vr(vU + 4, 4)}, v2, {SWS}, {sT3} offen sc1", "u")
    e(f"s_cmp_lg_u32 {sRND}, 1")
    e("s_cbranch_scc1 L_nowd")
    e(f"s_cmp_lg_u32 {sISG1}, 0")
    e("s_cbranch_scc1 L_wfok")
    e(f"v_min_u32 v{vFL + 6}, 53, v0")
    e(f"v_lshlrev_b32 v{vFL + 6}, 2, v{vFL + 6}")
    e(f"v_add_u32 v{vFL + 6}, {WF}, v{vFL + 6}")
    poll_block(vFL + 6, False, vFL)
    g.lab("L_wfok")
    e(f"s_mul_i32 {sT1}, {sW}, 14")
    e(f"s_cmp_eq_u32 {sW}, 3")
    e(f"s_cselect_b32 {sT3}, 1, 0")
    e(f"s_sub_u32 {sT1}, {sT1}, {sT3}")
    e(f"s_mul_i32 {sT3}, {sDT}, 54")
    e(f"s_add_u32 {sT3}, {sT3}, {sT1}")
    e(f"s_mul_i32 {sT3}, {sT3}, 5120")
    e(f"s_add_u32 {sT3}, {sT3}, {WDP}")
    vWDV = 232
    for phi in range(70):
        dst = ar(4 * phi, 4) if phi < 64 else vr(vWDV + 4 * (phi - 64), 4)
        if phi == 65:
            e(f"s_cmp_lt_u32 {sW}, 2")
            e(f"s_cselect_b32 {sT3}, {sT3}, 0x7fff0000")
        if phi % 4 == 0 or phi == 65:
            e(f"s_add_u32 {sT4}, {sT3}, {(phi // 4) * 4096}")
        e(f"buffer_load_dwordx4 {dst}, v1, {SWS}, {sT4} offen offset:{(phi % 4) * 1024} sc1")
    g.lab("L_nowd")
    e("v_and_b32 v2, 15, v0")
    e(f"v_mul_u32_u24 v2, {XYP}, v2")
    e("v_lshrrev_b32 v3, 4, v0")
    e("v_lshl_add_u32 v2, v3, 4, v2")
    e(f"s_mul_i32 {sT1}, {sC}, {XYC}")
    e(f"v_add_u32 v3, {sT1}, v2")
    e(f"s_mul_i32 {sT3}, {sRHO}, {16 * XYP}")
    e(f"s_add_u32 {sT1}, {sT1}, {sT3}")
    e(f"v_add_u32 v2, {sT1}, v2")
    KF = 64
    for ks in range(8):
        g.lds(f"ds_read_b128 {vr(KF + 4 * ks, 4)}, v2 offset:{XYB + 64 * ks}", ("ka", ks))
        g.lds(f"ds_read_b128 {vr(128 + 4 * ks, 4)}, v3 offset:{XYB + 32 * XYP + 64 * ks}", ("kb0", ks))
        g.lds(f"ds_read_b128 {vr(200 + 4 * ks, 4)}, v3 offset:{XYB + 48 * XYP + 64 * ks}", ("kb1", ks))
    e(f"s_lshl_b32 {sT1}, {sC}, 2")
    e(f"s_add_u32 {sT1}, {sT1}, {YSB}")
    e(f"v_mov_b32 v4, {sT1}")
    g.lds(f"ds_read_b32 v{vEP + 5}, v4", "ysc")
    KD = 96
    for ks in range(8):
        g.wlg(("kb0", ks))
        e(f"v_mfma_f32_16x16x32_f16 {vr(KD, 4)}, {vr(KF + 4 * ks, 4)}, {vr(128 + 4 * ks, 4)}, {'0' if ks == 0 else vr(KD, 4)}")
        g.wlg(("kb1", ks))
        e(f"v_mfma_f32_16x16x32_f16 {vr(KD + 4, 4)}, {vr(KF + 4 * ks, 4)}, {vr(200 + 4 * ks, 4)}, {'0' if ks == 0 else vr(KD + 4, 4)}")
    g.nop(8)
    for i in range(8):
        g.lds(f"ds_write_b32 v{SC + i}, v{KD + i}", "tw")
    g.wlg0()
    e("s_barrier")
    EG = 128
    for ch in range(2):
        for k in range(11):
            g.lds(f"ds_read_b32 v{EG + 12 * ch + k}, v{GA + 11 * ch + k}", ("eg", ch))
    e(f"s_mul_i32 {sT1}, {sC}, {RC}")
    e(f"s_lshl_b32 {sT3}, {sRHO}, 11")
    e(f"s_add_u32 {sT1}, {sT1}, {sT3}")
    e(f"s_add_u32 {sT1}, {sT1}, {RB}")
    e(f"v_add_u32 v2, {sT1}, v1")
    EO = 64
    for ch in range(2):
        g.wlg(("eg", ch))
        for s in range(4):
            o = EO + 16 * ch + 4 * s
            for j in range(4):
                e(f"v_cvt_pk_f16_f32 v{o + j}, v{EG + 12 * ch + s + 2 * j}, v{EG + 12 * ch + s + 2 * j + 1}")
            g.lds(f"ds_write_b128 v2, {vr(o, 4)} offset:{s * RCS + 1024 * ch}", "rw")
    e("v_and_b32 v3, 1, v0")
    e(f"v_mul_u32_u24 v3, {UC}, v3")
    e("v_lshrrev_b32 v4, 1, v0")
    e("v_lshl_add_u32 v3, v4, 4, v3")
    e(f"s_lshl_b32 {sT1}, {sW}, 10")
    e(f"s_add_u32 {sT1}, {sT1}, {UBASE + 512}")
    e(f"v_add_u32 v3, {sT1}, v3")
    e(f"s_cmp_lg_u32 {sRND}, 1")
    e("s_cbranch_scc1 L_uw0")
    e("s_waitcnt vmcnt(63)")
    e("s_branch L_uw1")
    g.lab("L_uw0")
    e("s_waitcnt vmcnt(0)")
    g.lab("L_uw1")
    g.vm = []
    g.lds(f"ds_write_b128 v3, {vr(vU, 4)}", "uw")
    g.lds(f"ds_write_b128 v3, {vr(vU + 4, 4)} offset:512", "uw")
    e(f"s_mov_b32 {sHS0}, {sCP}")
    e(f"s_add_u32 {sCP}, {sCP}, 40")
    e(f"s_min_u32 {sCP}, {sCP}, 319")
    e(f"s_cmp_eq_u32 {sRND}, 1")
    e("s_cbranch_scc1 L_nopar")
    param_loads()
    g.lab("L_nopar")
    g.vm = []
    e("v_and_b32 v4, 15, v0")
    e("v_lshrrev_b32 v5, 4, v0")
    e("v_sub_u32 v6, 3, v4")
    e("v_and_b32 v6, 3, v6")
    e(f"v_mul_u32_u24 v6, {RCS}, v6")
    e("v_lshl_add_u32 v6, v5, 4, v6")
    e("v_and_b32 v7, 12, v4")
    e("v_lshlrev_b32 v7, 1, v7")
    e("v_sub_u32 v6, v6, v7")
    e(f"s_mul_i32 {sT1}, {sC}, {RC}")
    e(f"s_lshl_b32 {sT3}, {sRHO}, 8")
    e(f"s_sub_u32 {sT1}, {sT1}, {sT3}")
    e(f"s_add_u32 {sT1}, {sT1}, {RB + 24 + 256}")
    e(f"v_add_u32 v2, {sT1}, v6")
    e("v_lshlrev_b32 v7, 5, v4")
    e("v_lshl_add_u32 v7, v5, 4, v7")
    e(f"s_mul_i32 {sT1}, {sC}, {UC}")
    e(f"s_sub_u32 {sT1}, {sT1}, {sT3}")
    e(f"s_add_u32 {sT1}, {sT1}, {UBASE + 32 + 256}")
    e(f"v_add_u32 v3, {sT1}, v7")
    g.wlg0()
    e("s_barrier")
    stamp("conv_start")
    CACC = 96
    CACC = 64
    FB = [128, 160]
    GB = [192, 4]
    Greg = [[192 + 4 * i for i in range(8)], [96, 100, 104, 108, 112, 116, 8, 12]]
    def cls_reads(dl):
        bf = dl & 1
        out = []
        for s in range(8):
            out.append(("lds", f"ds_read_b128 {vr(Greg[bf][s], 4)}, v3 offset:{512 * s + 64 * (3 - dl)}", ("G", dl, s)))
            off = 64 * (59 - dl - 8 * s)
            out.append(("lds", f"ds_read_b64 {vr(FB[bf] + 4 * s, 2)}, v2 offset:{off}", ("F", dl, s)))
            out.append(("lds", f"ds_read_b64 {vr(FB[bf] + 4 * s + 2, 2)}, v2 offset:{off + 8}", ("F", dl, s)))
        return out
    for it in cls_reads(0):
        g.do(it)
    for dl in range(4):
        bf = dl & 1
        nxt = cls_reads(dl + 1) if dl < 3 else []
        order = sorted([(s, gg) for s in range(8) for gg in range(8) if s + gg < 8], key=lambda x: (max(x), x[0] + x[1]))
        seen = set()
        for mi, (s, gg) in enumerate(order):
            t = s + gg
            g.wlg(("G", dl, gg))
            g.wlg(("F", dl, s))
            Cs = "0" if (dl == 0 and t not in seen) else vr(CACC + 4 * t, 4)
            seen.add(t)
            e(f"v_mfma_f32_16x16x32_f16 {vr(CACC + 4 * t, 4)}, {vr(FB[bf] + 4 * s, 4)}, {vr(Greg[bf][gg], 4)}, {Cs}")
            if mi >= 10 and nxt:
                g.do(nxt.pop(0))
        while nxt:
            g.do(nxt.pop(0))
    stamp("conv_end")
    g.nop(8)
    e(f"s_cmp_lg_u32 {sRHO}, 0")
    e("s_cbranch_scc1 L_noswap")
    for i in range(16):
        e(f"v_swap_b32 v{CACC + i}, v{CACC + 16 + i}")
    g.lab("L_noswap")
    e(f"s_lshl_b32 {sT1}, {sW}, 12")
    e(f"v_add_u32 v4, {sT1}, v1")
    e(f"s_xor_b32 {sT1}, {sT1}, 4096")
    e(f"v_add_u32 v5, {sT1}, v1")
    for tt in range(4):
        g.lds(f"ds_write_b128 v4, {vr(CACC + 4 * tt, 4)} offset:{PB + 1024 * tt}", "pw")
    e("v_and_b32 v6, 15, v0")
    e("v_lshlrev_b32 v6, 5, v6")
    e("v_lshrrev_b32 v7, 4, v0")
    e("v_lshl_add_u32 v6, v7, 3, v6")
    e(f"s_mul_i32 {sT1}, {sC}, {UC}")
    e(f"s_lshl_b32 {sT3}, {sRHO}, 11")
    e(f"s_add_u32 {sT1}, {sT1}, {sT3}")
    e(f"s_add_u32 {sT1}, {sT1}, {UBASE + 512}")
    e(f"v_add_u32 v7, {sT1}, v6")
    for tt in range(4):
        g.lds(f"ds_read_b64 {vr(128 + 2 * tt, 2)}, v7 offset:{512 * tt}", "us")
    g.wlg0()
    e("s_barrier")
    for tt in range(4):
        g.lds(f"ds_read_b128 {vr(144 + 4 * tt, 4)}, v5 offset:{PB + 1024 * tt}", ("pr", tt))
    for tt in range(4):
        for i in range(4):
            src = 128 + 2 * tt + (i >> 1)
            e(f"v_fma_mix_f32 v{160 + 4 * tt + i}, v{src}, v{vEP + 4}, 0 op_sel:[{i & 1},0,0] op_sel_hi:[1,0,0]")
    e(f"s_lshl_b32 {sT1}, {sW}, 11")
    e(f"s_add_u32 {sT1}, {sT1}, {SOB}")
    e(f"v_add_u32 v6, {sT1}, v6")
    e(f"v_add_u32 v7, {sT1}, v1")
    for tt in range(4):
        g.wlg(("pr", tt))
        for h in range(2):
            e(f"v_pk_add_f32 {vr(144 + 4 * tt + 2 * h, 2)}, {vr(144 + 4 * tt + 2 * h, 2)}, {vr(CACC + 16 + 4 * tt + 2 * h, 2)}")
        for i in range(4):
            e(f"v_fma_f32 v{144 + 4 * tt + i}, v{144 + 4 * tt + i}, v{vEP + 5}, v{160 + 4 * tt + i}")
        for h in range(2):
            e(f"v_cvt_pk_bf16_f32 v{128 + 2 * tt + h}, v{144 + 4 * tt + 2 * h}, v{144 + 4 * tt + 2 * h + 1}")
        g.lds(f"ds_write_b64 v6, {vr(128 + 2 * tt, 2)} offset:{512 * tt}", "sw")
    g.wlg0()
    for j in range(2):
        g.lds(f"ds_read_b128 {vr(136 + 4 * j, 4)}, v7 offset:{1024 * j}", ("sr", j))
    e(f"s_lshl_b32 {sT1}, {sHS0}, 1")
    e(f"s_add_u32 {sT1}, {sT1}, {sC}")
    e(f"s_lshl_b32 {sT1}, {sT1}, 12")
    e(f"s_lshl_b32 {sT3}, {sRHO}, 11")
    e(f"s_add_u32 {sT1}, {sT1}, {sT3}")
    e(f"s_add_u32 {sT1}, {sT1}, {ST}")
    for j in range(2):
        g.wlg(("sr", j))
        g.vmem(f"buffer_store_dwordx4 {vr(136 + 4 * j, 4)}, v1, {SWS}, {sT1} offen offset:{1024 * j} sc1", "sst")
    e(f"v_min_u32 v{vFL + 5}, 26, v0")
    e(f"s_lshl_b32 {sT1}, {sXCD}, 7")
    e(f"s_add_u32 {sT1}, {sT1}, {HF}")
    e(f"v_lshl_add_u32 v{vFL + 5}, v{vFL + 5}, 2, {sT1}")
    e(f"s_cmp_lg_u32 {sRND}, 1")
    e("s_cbranch_scc1 L_nohp")
    poll_block(vFL + 5, False, vFL)
    g.lab("L_nohp")
    g.wall()
    e("s_barrier")
    e(f"s_cmp_lg_u32 {sW}, 0")
    e("s_cbranch_scc1 L_nosf")
    e(f"s_mul_i32 {sT1}, {sHS0}, 1639")
    e(f"s_lshr_b32 {sT1}, {sT1}, 16")
    e(f"s_mul_i32 {sT3}, {sT1}, 24")
    e(f"s_add_u32 {sT1}, {sT3}, {sHS0}")
    e(f"s_lshl_b32 {sT1}, {sT1}, 2")
    e(f"s_add_u32 {sT1}, {sT1}, {SF}")
    flag_store(sT1)
    g.lab("L_nosf")
    g.vm = []
    e(f"s_sub_u32 {sRND}, {sRND}, 1")
    e(f"s_cmp_lg_u32 {sRND}, 0")
    e("s_cbranch_scc1 L_round")
    stamp("g2_start")

    NB = 24
    HR = 128
    AC = [64, 84]
    e(f"s_mul_i32 {sT1}, {sW}, 14")
    e(f"s_cmp_eq_u32 {sW}, 3")
    e(f"s_cselect_b32 {sT3}, 1, 0")
    e(f"s_sub_u32 {sT1}, {sT1}, {sT3}")
    for k in range(4):
        e(f"s_add_u32 {sT2}, {sW}, {k + 1}")
        e(f"s_and_b32 {sT2}, {sT2}, 3")
        if k < 3:
            e(f"s_mul_i32 s{sEX + k}, {sT2}, 15360")
            e(f"s_add_u32 s{sEX + k}, s{sEX + k}, {EXB + 5120 * k}")
        e(f"s_lshl_b32 {sT3}, {sLT}, 2")
        e(f"s_add_u32 {sT2}, {sT2}, {sT3}")
        e(f"s_mul_i32 {sT2}, {sT2}, 54")
        e(f"s_add_u32 {sT2}, {sT2}, {sT1}")
        e(f"s_lshl_b32 {sT2}, {sT2}, 10")
        e(f"s_add_u32 s{sG2 + 4 * k}, {sT2}, {HB}")
        for q in range(1, 4):
            e(f"s_add_u32 s{sG2 + 4 * k + q}, s{sG2 + 4 * k}, {4096 * q}")

    def hload(i):
        k, st = divmod(i, 14)
        r = HR + 4 * (i % NB)
        if st == 13:
            def f():
                e(f"s_cmp_lt_u32 {sW}, 2")
                e(f"s_cselect_b32 {sT4}, s{sG2 + 4 * k + 3}, 0x7fff0000")
                g.vmem(f"buffer_load_dwordx4 {vr(r, 4)}, v1, {SWS}, {sT4} offen offset:1024 sc1", ("h", i))
            return f
        return ("vm", f"buffer_load_dwordx4 {vr(r, 4)}, v1, {SWS}, s{sG2 + 4 * k + st // 4} offen offset:{(st % 4) * 1024} sc1", ("h", i))
    for i in range(NB):
        g.do(hload(i))
    e(f"s_mov_b32 {sT2}, {0x100000000 // 10 + 1}")
    for kk in range(3):
        e(f"v_add_u32 v2, {64 * kk}, v0")
        e(f"v_mul_hi_u32 v3, v2, {sT2}")
        e("v_mul_u32_u24 v4, 10, v3")
        e("v_sub_u32 v4, v2, v4")
        e("v_mul_u32_u24 v3, 1280, v3")
        e(f"v_lshl_add_u32 v{16 + kk}, v4, 4, v3")
    e("v_mov_b32 v4, 0x7fffff00")
    e("v_cmp_lt_u32 vcc, 31, v0\ns_nop 1")
    e("v_cndmask_b32 v19, v18, v4, vcc")
    sXO = sHS1
    e(f"s_lshl_b32 {sXO}, {sLT}, 2")
    e(f"s_add_u32 {sXO}, {sXO}, {sW}")
    e(f"s_mul_i32 {sXO}, {sXO}, {16 * 1280}")
    e(f"s_mul_i32 {sT2}, {sDT}, 160")
    e(f"s_add_u32 {sXO}, {sXO}, {sT2}")
    e(f"s_mul_i32 {sXM0}, {sW}, 3072")
    e(f"s_add_u32 {sXM0}, {sXM0}, {XTB}")
    for kk in range(3):
        e(f"s_add_u32 m0, {sXM0}, {1024 * kk}")
        e("s_nop 0")
        g.vmem(f"buffer_load_dwordx4 v{16 + kk}, {SX}, {sXO} offen lds", "xt")
    e(f"v_min_u32 v{vFL + 5}, 39, v0")
    e(f"s_lshl_b32 {sT2}, {sDT}, 8")
    e(f"s_add_u32 {sT2}, {sT2}, {SF}")
    e(f"v_lshl_add_u32 v{vFL + 5}, v{vFL + 5}, 2, {sT2}")
    e("v_lshrrev_b32 v20, 3, v0")
    e("v_lshlrev_b32 v20, 12, v20")
    e("v_and_b32 v2, 7, v0")
    e("v_lshl_add_u32 v20, v2, 4, v20")
    for k in range(3):
        e(f"v_add_u32 v{21 + k}, s{sEX + k}, v1")
    for i in range(56):
        k, st = divmod(i, 14)
        A0 = AC[k & 1]
        g.wvm(("h", i))
        r = HR + 4 * (i % NB)
        extra = [[] for _ in range(5)]
        if st == 1 and k >= 1:
            pa = AC[(k - 1) & 1]
            for j in range(5):
                extra[j].append(("lds", f"ds_write_b128 v{21 + k - 1}, {vr(pa + 4 * j, 4)} offset:{1024 * j}", "exw"))
        if i == 40:
            extra[0].append(("vm", f"buffer_load_dword v{vFL}, v{vFL + 5}, {SWS}, 0 offen sc1", "sfp"))
        if i == 48:
            def sfchk():
                g.wvm("sfp")
                sl = g.newlab("Lslow")
                bk = g.newlab("Lback")
                e(f"v_cmp_ne_u32 vcc, {sTAG}, v{vFL}")
                e(f"s_cbranch_vccnz {sl}")
                g.lab(bk)
                g.slow.append((sl, bk, [(vFL + 5, False)]))
                e(f"s_mul_i32 {sT1}, {sDT}, 80")
                e(f"s_lshl_b32 {sT2}, {sW}, 3")
                e(f"s_add_u32 {sT1}, {sT1}, {sT2}")
                e(f"s_lshl_b32 {sT1}, {sT1}, 12")
                e(f"s_lshl_b32 {sT2}, {sLT}, 7")
                e(f"s_add_u32 {sT1}, {sT1}, {sT2}")
                e(f"s_add_u32 {sT1}, {sT1}, {ST}")
                e(f"s_lshl_b32 {sT2}, {sW}, 10")
                e(f"s_add_u32 {sT2}, {sT2}, {STB}")
                for j in range(3):
                    if j == 2:
                        e(f"s_cmp_lt_u32 {sW}, 2")
                        e(f"s_cselect_b32 {sT1}, {sT1}, 0x7fff0000")
                    e(f"s_add_u32 m0, {sT2}, {4096 * j}")
                    e(f"s_add_u32 {sT3}, {sT1}, {32 * 4096 * j}")
                    g.vmem(f"buffer_load_dwordx4 v20, {SWS}, {sT3} offen sc1 lds", "stl")
            extra[0].append(sfchk)
        for j in range(5):
            phi = st * 5 + j
            src = ar(4 * phi, 4) if phi < 64 else vr(vWDV + 4 * (phi - 64), 4)
            Cs = "0" if st == 0 else vr(A0 + 4 * j, 4)
            e(f"v_mfma_f32_16x16x32_bf16 {vr(A0 + 4 * j, 4)}, {src}, {vr(r, 4)}, {Cs}")
            for it in extra[j]:
                g.do(it)
        if i + NB < 56:
            g.do(hload(i + NB))
    stamp("g2_loop_end")
    g.wall()
    e("s_barrier")
    A0 = AC[1]
    e(f"s_mul_i32 {sT1}, {sW}, 15360")
    e(f"v_add_u32 v2, {sT1}, v1")
    for q in range(15):
        g.lds(f"ds_read_b128 {vr(128 + 4 * q, 4)}, v2 offset:{EXB + 1024 * q}", ("exr", q))
    e("v_lshrrev_b32 v3, 2, v0")
    e("v_lshlrev_b32 v3, 7, v3")
    e("v_and_b32 v4, 3, v0")
    e("v_lshl_add_u32 v3, v4, 3, v3")
    e(f"s_lshl_b32 {sT1}, {sW}, 5")
    e(f"s_add_u32 {sT1}, {sT1}, {STB}")
    e(f"v_add_u32 v3, {sT1}, v3")
    e("v_and_b32 v4, 15, v0")
    e("v_mul_u32_u24 v4, 160, v4")
    e("v_lshrrev_b32 v5, 4, v0")
    e("v_lshl_add_u32 v4, v5, 3, v4")
    e(f"v_add_u32 v4, {sXM0}, v4")
    for j in range(5):
        g.lds(f"ds_read_b64_tr_b16 {vr(192 + 2 * j, 2)}, v3 offset:{2048 * j}", ("s", j))
        g.lds(f"ds_read_b64 {vr(202 + 2 * j, 2)}, v4 offset:{32 * j}", ("x", j))
    for k in range(3):
        for j in range(5):
            g.wlg(("exr", 5 * k + j))
            for h in range(2):
                e(f"v_pk_add_f32 {vr(A0 + 4 * j + 2 * h, 2)}, {vr(A0 + 4 * j + 2 * h, 2)}, {vr(128 + 4 * (5 * k + j) + 2 * h, 2)}")
    e(f"s_mov_b32 {sT2}, {hex(f2u(-LOG2E))}")
    e(f"s_mov_b32 {sT3}, {hex(f2u(-LOG2E))}")
    E_ = 128
    for p in range(10):
        e(f"v_pk_mul_f32 {vr(E_ + 2 * p, 2)}, {vr(A0 + 2 * p, 2)}, s[56:57]")
    for p in range(20):
        e(f"v_exp_f32 v{E_ + p}, v{E_ + p}")
    g.wlg0()
    SU, XU = 152, 172
    for p in range(10):
        e(f"v_lshlrev_b32 v{SU + 2 * p}, 16, v{192 + p}")
        e(f"v_and_b32 v{SU + 2 * p + 1}, 0xffff0000, v{192 + p}")
    for p in range(10):
        e(f"v_pk_add_f32 {vr(E_ + 2 * p, 2)}, {vr(E_ + 2 * p, 2)}, 1.0 op_sel_hi:[1,0]")
    for p in range(20):
        e(f"v_rcp_f32 v{E_ + p}, v{E_ + p}")
    for p in range(10):
        e(f"v_pk_mul_f32 {vr(A0 + 2 * p, 2)}, {vr(A0 + 2 * p, 2)}, {vr(SU + 2 * p, 2)}")
    for p in range(10):
        e(f"v_lshlrev_b32 v{XU + 2 * p}, 16, v{202 + p}")
        e(f"v_and_b32 v{XU + 2 * p + 1}, 0xffff0000, v{202 + p}")
    for p in range(10):
        e(f"v_pk_fma_f32 {vr(A0 + 2 * p, 2)}, {vr(A0 + 2 * p, 2)}, {vr(E_ + 2 * p, 2)}, {vr(XU + 2 * p, 2)}")
    for p in range(10):
        e(f"v_cvt_pk_bf16_f32 v{192 + p}, v{A0 + 2 * p}, v{A0 + 2 * p + 1}")
    for j in range(5):
        g.lds(f"ds_write_b64 v4, {vr(192 + 2 * j, 2)} offset:{32 * j}", "ow")
    e(f"v_add_u32 v3, {sXM0}, v1")
    g.wlg0()
    for kk in range(3):
        g.lds(f"ds_read_b128 {vr(128 + 4 * kk, 4)}, v3 offset:{1024 * kk}", ("or", kk))
    for kk in range(3):
        g.wlg(("or", kk))
        g.vmem(f"buffer_store_dwordx4 {vr(128 + 4 * kk, 4)}, v{(16, 17, 19)[kk]}, {SOUT}, {sXO} offen", "out")
    if diag:
        g.wvm0()
    stamp("end")
    g.lab("L_end")
    e("s_endpgm")
    for (sl, bk, lst) in g.slow:
        g.lab(sl)
        for (av, n4) in lst:
            poll_block(av, n4, vFL)
        e(f"s_branch {bk}")

    hdr = [f"; @launch grid=(256,1,1) block=(256,1,1) lds={LDS_TOTAL}",
           '.amdgcn_target "amdgcn-amd-amdhsa--gfx950"', ".text", f".globl {KNAME}", ".p2align 8",
           f".type {KNAME},@function", f"{KNAME}:"]
    ftr = ['.section .rodata,"a"', ".p2align 6", f".amdhsa_kernel {KNAME}",
           "  .amdhsa_next_free_vgpr 512", "  .amdhsa_next_free_sgpr 102", "  .amdhsa_accum_offset 256",
           "  .amdhsa_group_segment_fixed_size 0", "  .amdhsa_kernarg_size 112", "  .amdhsa_user_sgpr_count 2",
           "  .amdhsa_user_sgpr_kernarg_segment_ptr 1", "  .amdhsa_system_sgpr_workgroup_id_x 1",
           "  .amdhsa_float_denorm_mode_32 3",
           ".end_amdhsa_kernel"]
    return "\n".join(hdr + g.L + ftr) + "\n"


if __name__ == "__main__":
    diag = "--diag" in sys.argv
    out = [a for a in sys.argv[1:] if not a.startswith("--")]
    s = gen(diag=diag)
    path = out[0] if out else "recurrent_scan__ssm_conv_s4d__geglu_ffn__prompt.s"
    open(path, "w").write(s)
    print("wrote", path, len(s), "bytes", s.count("\n"), "lines")
```

```python
import sys, struct, math

KNAME = "recurrent_scan__ssm_conv_s4d__geglu_ffn__prompt_kernel"

EPOCH = 0x0
LNF = 0x1000
HF = 0x1400
SF = 0x1800
WF = 0x2000
TSB = 0x2800
STATS = 0x4000
XNT = 0x10000
ST = 0x290000
WDP = 0x510000
HB = 0x730000
WS_END = 0xDF0000
TS_BASE = 0xE00000

SLOT = 49152
MISC = 147456
LNP = 1344
CSB = MISC + 10752
XYP = 544
XYC = 64 * XYP
XYB = 0
PB = 0
UBASE = 69632
UC = 4608
RB = UBASE + 2 * UC
RCS = 4160
RC = 4 * RCS
TB = RB + 2 * RC
TC = 2624
YSB = TB + 2 * TC
SOB = 16384
EXB = 0
XTB = 118784
STB = XTB + 12288
WPK = 0
LDS_TOTAL = 163840

def f2u(x):
    return struct.unpack("<I", struct.pack("<f", x))[0]

LOG2E = 1.4426950408889634
C0 = -2.0 * math.sqrt(2.0 / math.pi) * LOG2E
C1 = C0 * 0.044715


class G:
    def __init__(self):
        self.L = []
        self.vm = []
        self.lg = []
        self.nlab = 0
        self.slow = []

    def e(self, s):
        for ln in s.split("\n"):
            self.L.append("    " + ln)

    def lab(self, name):
        self.L.append(name + ":")

    def newlab(self, p="L"):
        self.nlab += 1
        return f"{p}_{self.nlab}"

    def vmem(self, s, tag=None):
        self.e(s)
        self.vm.append(tag)

    def lds(self, s, tag=None):
        self.e(s)
        self.lg.append(tag)

    def _n(self, q, tag):
        idx = max(i for i, t in enumerate(q) if t == tag)
        return idx, len(q) - idx - 1

    def wvm(self, tag):
        if tag not in self.vm:
            return
        idx, n = self._n(self.vm, tag)
        self.e(f"s_waitcnt vmcnt({min(n, 63)})")
        self.vm = self.vm[idx + 1:]

    def wlg(self, tag):
        if tag not in self.lg:
            return
        idx, n = self._n(self.lg, tag)
        self.e(f"s_waitcnt lgkmcnt({min(n, 15)})")
        self.lg = self.lg[idx + 1:]

    def wvm0(self):
        self.e("s_waitcnt vmcnt(0)")
        self.vm = []

    def wlg0(self):
        self.e("s_waitcnt lgkmcnt(0)")
        self.lg = []

    def wall(self):
        self.e("s_waitcnt vmcnt(0) lgkmcnt(0)")
        self.vm = []
        self.lg = []

    def nop(self, n):
        while n > 0:
            k = min(n, 16)
            self.e(f"s_nop {k - 1}")
            n -= k

    def do(self, item):
        if callable(item):
            item()
        elif isinstance(item, tuple):
            kind = item[0]
            if kind == "vm":
                self.vmem(item[1], item[2])
            elif kind == "lds":
                self.lds(item[1], item[2])
            elif kind == "wvm":
                self.wvm(item[1])
            elif kind == "wlg":
                self.wlg(item[1])
            else:
                raise ValueError(kind)
        else:
            self.e(item)


def vr(a, n):
    return f"v[{a}:{a + n - 1}]"


def ar(a, n):
    return f"a[{a}:{a + n - 1}]"


SX, SWG, SWU, SWS, SOUT, SWD = "s[4:7]", "s[8:11]", "s[12:15]", "s[16:19]", "s[20:23]", "s[24:27]"
P_LAR, P_AIM, P_CRE, P_CIM, P_LDT, P_DSK = "s[28:29]", "s[30:31]", "s[32:33]", "s[34:35]", "s[36:37]", "s[38:39]"
sW, sTAG, sM, sFT, sISG1, sCP, sRND, sSP = "s40", "s41", "s42", "s43", "s44", "s45", "s46", "s47"
sXCD, sQ = "s48", "s49"
sXM0, sWM0, sXS, sWSO = "s50", "s51", "s52", "s53"
sT0, sT1, sT2, sT3, sT4, sT5 = "s54", "s55", "s56", "s57", "s58", "s59"
sONES, sCNT = "s60", "s61"
sRHO, sC = "s62", "s63"
sHS0, sHS1 = "s64", "s65"
sG2 = 66
sLT, sDT = "s82", "s83"
sEX = 84
sTS = 88
sEXEC = "s[94:95]"
sK0, sK1 = "s96", "s97"

vLANE, vL16 = 0, 1
vT = 2
vXO = 16
vWO = 24
vBA = 26
vAA = 34
vCS = 38
vHO = 40
vPAR = 42
vSTA = 48
vU = 56
vAF = 64
vBF = 96
vFL = 112
vEP = 120
vACC = 128


def gen(diag=False, dbgts=False):
    g = G()
    e = g.e
    ts_idx = [0]

    def stamp(name=None):
        if dbgts:
            i = ts_idx[0]
            ts_idx[0] += 1
            e("s_memrealtime s[92:93]")
            e("s_waitcnt lgkmcnt(0)")
            g.lg = []
            if i == 0:
                e("s_not_b32 s93, s92")
                e("v_mov_b32 v15, s93")
                g.vmem(f"buffer_atomic_umax v15, v{vEP + 7}, s[{sTS}:{sTS + 3}], 0 offen offset:60", "ts")
            e("v_mov_b32 v15, s92")
            g.vmem(f"buffer_atomic_umax v15, v{vEP + 7}, s[{sTS}:{sTS + 3}], 0 offen offset:{4 * i}", "ts")
            return
        if not diag:
            return
        i = ts_idx[0]
        ts_idx[0] += 1
        e("s_memrealtime s[92:93]")
        e("s_waitcnt lgkmcnt(0)")
        g.lg = []
        e("v_mov_b32 v15, s92")
        g.vmem(f"buffer_store_dword v15, v{vEP + 7}, s[{sTS}:{sTS + 3}], 0 offen offset:{4 * i}", "ts")

    def red(op, v, t, full):
        for dpp in ("quad_perm:[1,0,3,2]", "quad_perm:[2,3,0,1]", "row_half_mirror", "row_mirror"):
            g.nop(2)
            e(f"{op} v{v}, v{v}, v{v} {dpp}")
        e(f"v_mov_b32 v{t}, v{v}")
        g.nop(2)
        e(f"v_permlane16_swap_b32 v{v}, v{t}")
        g.nop(1)
        e(f"{op} v{v}, v{v}, v{t}")
        if full:
            e(f"v_mov_b32 v{t}, v{v}")
            g.nop(2)
            e(f"v_permlane32_swap_b32 v{v}, v{t}")
            g.nop(1)
            e(f"{op} v{v}, v{v}, v{t}")

    def bf16round(v):
        e(f"v_cvt_pk_bf16_f32 v{v}, v{v}, v{v}")
        e(f"v_lshlrev_b32 v{v}, 16, v{v}")

    def poll_block(addr_v, n4, tmp):
        lp = g.newlab("Lpoll")
        dn = g.newlab("Lpd")
        e(f"s_mov_b32 {sCNT}, 0x4000")
        g.lab(lp)
        if n4:
            e(f"buffer_load_dwordx4 {vr(tmp, 4)}, v{addr_v}, {SWS}, 0 offen sc1")
            e("s_waitcnt vmcnt(0)")
            check4(tmp)
        else:
            e(f"buffer_load_dword v{tmp}, v{addr_v}, {SWS}, 0 offen sc1")
            e("s_waitcnt vmcnt(0)")
            e(f"v_cmp_ne_u32 vcc, {sTAG}, v{tmp}")
        e(f"s_cbranch_vccz {dn}")
        e("s_sleep 2")
        e(f"s_sub_u32 {sCNT}, {sCNT}, 1")
        e(f"s_cbranch_scc0 {lp}")
        g.lab(dn)
        g.vm = []

    def check4(tmp):
        e(f"v_xor_b32 v{tmp}, {sTAG}, v{tmp}")
        e(f"v_xor_b32 v{tmp + 1}, {sTAG}, v{tmp + 1}")
        e(f"v_xor_b32 v{tmp + 2}, {sTAG}, v{tmp + 2}")
        e(f"v_xor_b32 v{tmp + 3}, {sTAG}, v{tmp + 3}")
        e(f"v_or3_b32 v{tmp}, v{tmp}, v{tmp + 1}, v{tmp + 2}")
        e(f"v_or_b32 v{tmp}, v{tmp}, v{tmp + 3}")
        e(f"v_cmp_ne_u32 vcc, 0, v{tmp}")

    def flag_store(soff_reg_or_imm):
        e(f"v_mov_b32 v{vT}, {sTAG}")
        e(f"v_mov_b32 v{vT + 1}, 0")
        e(f"s_mov_b64 {sEXEC}, exec")
        e("s_mov_b64 exec, 1")
        g.vmem(f"buffer_store_dword v{vT}, v{vT + 1}, {SWS}, {soff_reg_or_imm} offen sc1", "flag")
        e(f"s_mov_b64 exec, {sEXEC}")

    e("s_cmp_ge_u32 s2, 256")
    e("s_cbranch_scc1 L_end")
    e("s_load_dwordx2 s[4:5], s[0:1], 0")
    e("s_load_dwordx2 s[16:17], s[0:1], 104")
    e("s_load_dwordx2 s[8:9], s[0:1], 64")
    e("s_load_dwordx2 s[12:13], s[0:1], 72")
    e("s_load_dwordx4 s[28:31], s[0:1], 8")
    e("s_load_dwordx4 s[32:35], s[0:1], 24")
    e("s_load_dwordx4 s[36:39], s[0:1], 40")
    e("s_load_dwordx2 s[20:21], s[0:1], 88")
    e("s_load_dwordx2 s[24:25], s[0:1], 80")
    if dbgts:
        e(f"s_load_dwordx2 s[{sTS}:{sTS + 1}], s[0:1], 96")
    e("v_lshrrev_b32 v2, 6, v0")
    e("v_and_b32 v0, 63, v0")
    e(f"v_readfirstlane_b32 {sW}, v2")
    e("v_lshlrev_b32 v1, 4, v0")
    e("s_mov_b32 s6, 2621440\ns_mov_b32 s7, 0x20000")
    e("s_mov_b32 s10, 2211840\ns_mov_b32 s11, 0x20000")
    e("s_mov_b32 s14, 2211840\ns_mov_b32 s15, 0x20000")
    e(f"s_mov_b32 s18, {WS_END}\ns_mov_b32 s19, 0x20000")
    e("s_mov_b32 s22, 2621440\ns_mov_b32 s23, 0x20000")
    e("s_mov_b32 s26, 2211840\ns_mov_b32 s27, 0x20000")
    e(f"s_and_b32 {sXCD}, s2, 7")
    e(f"s_lshr_b32 {sQ}, s2, 3")
    e(f"s_and_b32 {sT0}, {sXCD}, 1")
    e(f"s_lshr_b32 {sT1}, {sXCD}, 1")
    e(f"s_and_b32 {sT2}, {sQ}, 3")
    e(f"s_lshr_b32 {sT3}, {sQ}, 2")
    e(f"s_lshl_b32 {sM}, {sT0}, 2")
    e(f"s_add_u32 {sM}, {sM}, {sT2}")
    e(f"s_mul_i32 {sFT}, {sT1}, 7")
    e(f"s_add_u32 {sFT}, {sFT}, {sT3}")
    e(f"s_cmp_lt_u32 {sT3}, 7")
    e(f"s_cselect_b32 {sISG1}, 1, 0")
    e(f"s_cmp_lt_u32 {sFT}, 27")
    e(f"s_cselect_b32 {sISG1}, {sISG1}, 0")
    e(f"s_lshl_b32 {sT4}, {sXCD}, 2")
    e(f"s_add_u32 {sT4}, {sT4}, {sQ}")
    e(f"s_sub_u32 {sT4}, {sT4}, 28")
    e(f"s_lshl_b32 {sT5}, {sXCD}, 3")
    e(f"s_add_u32 {sT5}, {sT5}, {sQ}")
    e(f"s_sub_u32 {sT5}, {sT5}, 48")
    e(f"s_cmp_lt_u32 {sXCD}, 6")
    e(f"s_cselect_b32 {sSP}, {sT4}, {sT5}")
    e(f"s_mul_i32 {sT4}, {sM}, 27")
    e(f"s_add_u32 {sT4}, {sT4}, {sFT}")
    e(f"s_add_u32 {sT5}, {sSP}, 216")
    e(f"s_cmp_lg_u32 {sISG1}, 0")
    e(f"s_cselect_b32 {sCP}, {sT4}, {sT5}")
    e(f"s_cmp_lt_u32 {sSP}, 24")
    e(f"s_cselect_b32 {sRND}, 3, 2")
    e(f"s_cmp_lg_u32 {sISG1}, 0")
    e(f"s_cselect_b32 {sRND}, 1, {sRND}")
    e(f"s_and_b32 {sRHO}, {sW}, 1")
    e(f"s_lshr_b32 {sC}, {sW}, 1")
    e(f"s_lshl_b32 {sLT}, {sXCD}, 2")
    e(f"s_add_u32 {sLT}, {sLT}, {sT2}")
    e(f"s_mov_b32 {sDT}, {sT3}")
    e("v_lshrrev_b32 v2, 5, v0")
    e("v_mul_u32_u24 v2, 1280, v2")
    e("v_and_b32 v3, 31, v0")
    e("v_lshl_add_u32 v2, v3, 3, v2")
    e(f"s_lshl_b32 {sT0}, s2, 2")
    e(f"s_add_u32 {sT0}, {sT0}, {sW}")
    e(f"s_mul_i32 {sT0}, {sT0}, 2560")
    e("v_lshrrev_b32 v4, 3, v0")
    e("v_and_b32 v5, 7, v0")
    e("v_lshrrev_b32 v6, 4, v0")
    e("v_mul_u32_u24 v7, 1280, v4")
    e("v_xor_b32 v8, v5, v6")
    e("v_xor_b32 v9, 4, v8")
    e(f"v_lshl_add_u32 v{vXO}, v8, 4, v7")
    e(f"v_lshl_add_u32 v{vXO + 1}, v9, 4, v7")
    e(f"v_add_u32 v{vXO + 1}, {8 * 1280}, v{vXO + 1}")
    for i in range(2, 8):
        e(f"v_add_u32 v{vXO + i}, {16 * 1280}, v{vXO + i - 2}")
    e("v_mul_u32_u24 v7, 3456, v4")
    e("v_and_b32 v8, 1, v6")
    e("v_lshlrev_b32 v8, 2, v8")
    e("v_xor_b32 v8, v5, v8")
    e(f"v_lshl_add_u32 v{vWO}, v8, 4, v7")
    e(f"v_add_u32 v{vWO + 1}, {8 * 3456}, v{vWO}")
    e(f"s_lshl_b32 {sXM0}, {sW}, 13")
    e(f"s_add_u32 {sXM0}, {sXM0}, 16384")
    e(f"s_lshl_b32 {sWM0}, {sW}, 11")
    e(f"s_lshl_b32 {sXS}, {sM}, 2")
    e(f"s_add_u32 {sXS}, {sXS}, {sW}")
    e(f"s_mul_i32 {sXS}, {sXS}, {64 * 1280}")
    e(f"s_mul_i32 {sWSO}, {sW}, {16 * 3456}")
    e(f"s_lshl_b32 {sT1}, {sFT}, 7")
    e(f"s_add_u32 {sWSO}, {sWSO}, {sT1}")
    e(f"v_mov_b32 v{vEP + 1}, 0")
    e("s_waitcnt lgkmcnt(0)")
    if diag:
        e(f"s_mov_b32 s{sTS}, s16\ns_mov_b32 s{sTS + 1}, s17\ns_mov_b32 s{sTS + 2}, 0x1000000\ns_mov_b32 s{sTS + 3}, 0x20000")
        e(f"s_lshl_b32 {sT1}, s2, 2\ns_add_u32 {sT1}, {sT1}, {sW}\ns_lshl_b32 {sT1}, {sT1}, 7\ns_add_u32 {sT1}, {sT1}, {TS_BASE}")
        e(f"v_mov_b32 v{vEP + 7}, {sT1}\nv_mov_b32 v15, 0x7fffff00\nv_cmp_ne_u32 vcc, 0, v0\ns_nop 1\nv_cndmask_b32 v{vEP + 7}, v{vEP + 7}, v15, vcc")
    if dbgts:
        e(f"s_mov_b32 s{sTS + 2}, 256\ns_mov_b32 s{sTS + 3}, 0x20000")
        e(f"v_mov_b32 v{vEP + 7}, 0\nv_mov_b32 v15, 0x7fffff00\nv_add_u32 v14, {sW}, v0\nv_cmp_ne_u32 vcc, 0, v14\ns_nop 1\nv_cndmask_b32 v{vEP + 7}, v{vEP + 7}, v15, vcc")
    stamp("start")
    LX = 128
    for q in range(5):
        g.vmem(f"buffer_load_dwordx2 {vr(LX + 2 * q, 2)}, v2, {SX}, {sT0} offen offset:{256 * q}", "ln")
    g.vmem(f"buffer_load_dword v{vEP}, v{vEP + 1}, {SWS}, 0 offen sc1", "epoch")

    def dma_items(stage):
        sb = (stage % 3) * SLOT
        out = []
        for mat in range(2):
            for half in range(2):
                out.append((f"s_add_u32 m0, {sWM0}, {sb + mat * 8192 + half * 1024}",
                            ("vm", f"buffer_load_dwordx4 v{vWO + half}, {SWG if mat == 0 else SWU}, {sWSO} offen lds", ("dma", stage))))
        for i in range(8):
            out.append((f"s_add_u32 m0, {sXM0}, {sb + i * 1024}",
                        ("vm", f"buffer_load_dwordx4 v{vXO + i}, {SX}, {sXS} offen lds", ("dma", stage))))
        return out

    adv = [f"s_add_u32 {sXS}, {sXS}, 128", f"s_add_u32 {sWSO}, {sWSO}, {64 * 3456}"]

    def param_loads():
        e(f"s_lshl_b32 {sT1}, {sCP}, 1")
        e(f"s_add_u32 {sT1}, {sT1}, {sC}")
        e(f"s_lshl_b32 {sT1}, {sT1}, 8")
        e(f"v_lshl_add_u32 v{vT + 1}, v0, 2, {sT1}")
        e(f"s_lshl_b32 {sT1}, {sCP}, 2")
        e(f"v_mov_b32 v{vT + 2}, {sT1}")
        for k, p in enumerate((P_LAR, P_AIM, P_CRE, P_CIM)):
            g.vmem(f"global_load_dword v{vPAR + k}, v{vT + 1}, {p}", "par")
        g.vmem(f"global_load_dword v{vPAR + 4}, v{vT + 2}, {P_LDT}", "par")
        g.vmem(f"global_load_dword v{vPAR + 5}, v{vT + 2}, {P_DSK}", "par")

    e(f"s_cmp_eq_u32 {sISG1}, 0")
    e("s_cbranch_scc1 L_nodma")
    vm_before = list(g.vm)
    for st in range(3):
        for (m0s, d) in dma_items(st):
            e(m0s)
            e("s_nop 0")
            g.do(d)
        for a in adv:
            e(a)
    e(f"s_lshr_b32 {sT1}, {sQ}, 2")
    e(f"s_lshl_b32 {sT1}, {sT1}, 7")
    e(f"s_add_u32 {sT1}, {sT1}, {sXS}")
    e("v_mul_u32_u24 v4, 1280, v0")
    g.vmem(f"buffer_load_dword v{vEP + 2}, v4, {SX}, {sT1} offen", "touch")
    e(f"s_and_b32 {sT1}, {sQ}, 3")
    e(f"s_mul_i32 {sT1}, {sT1}, 112")
    e(f"s_mul_i32 {sT2}, {sC}, 56")
    e(f"s_add_u32 {sT1}, {sT1}, {sT2}")
    e(f"s_add_u32 {sT1}, {sT1}, 192")
    e(f"s_mul_i32 {sT1}, {sT1}, 3456")
    e(f"s_lshl_b32 {sT2}, {sFT}, 7")
    e(f"s_add_u32 {sT1}, {sT1}, {sT2}")
    e("v_mul_u32_u24 v4, 3456, v0")
    e(f"s_cmp_eq_u32 {sRHO}, 0")
    e("s_cbranch_scc1 L_tg")
    e(f"buffer_load_dword v{vEP + 3}, v4, {SWU}, {sT1} offen")
    e("s_branch L_tu")
    g.lab("L_tg")
    e(f"buffer_load_dword v{vEP + 3}, v4, {SWG}, {sT1} offen")
    g.lab("L_tu")
    g.vm.append("touch")
    g.lab("L_nodma")
    param_loads()
    vm_g1 = list(g.vm)

    n_g1 = len(vm_g1) - 6
    n_sp = 6
    e(f"s_cmp_eq_u32 {sISG1}, 0")
    e("s_cbranch_scc1 L_lnw_sp")
    e(f"s_waitcnt vmcnt({min(n_g1, 63)})")
    e("s_branch L_lnw_done")
    g.lab("L_lnw_sp")
    e(f"s_waitcnt vmcnt({n_sp})")
    g.lab("L_lnw_done")
    g.vm = vm_g1[6:]
    stamp("ln_data")
    F = 140
    for q in range(10):
        e(f"v_lshlrev_b32 v{F + 2 * q}, 16, v{LX + q}")
        e(f"v_and_b32 v{F + 2 * q + 1}, 0xffff0000, v{LX + q}")
    e(f"v_readfirstlane_b32 {sTAG}, v{vEP}")
    S = 160
    e(f"v_pk_add_f32 {vr(S, 2)}, {vr(F, 2)}, {vr(F + 2, 2)}")
    e(f"v_pk_add_f32 {vr(S + 2, 2)}, {vr(F + 4, 2)}, {vr(F + 6, 2)}")
    for q in range(4, 10, 2):
        e(f"v_pk_add_f32 {vr(S, 2)}, {vr(S, 2)}, {vr(F + 2 * q, 2)}")
        e(f"v_pk_add_f32 {vr(S + 2, 2)}, {vr(S + 2, 2)}, {vr(F + 2 * q + 2, 2)}")
    e(f"v_pk_add_f32 {vr(S, 2)}, {vr(S, 2)}, {vr(S + 2, 2)}")
    e(f"s_mul_i32 {sTAG}, {sTAG}, 1664525")
    e(f"s_add_u32 {sTAG}, {sTAG}, 1013904223")
    e(f"v_add_f32 v{S}, v{S}, v{S + 1}")
    red("v_add_f32", S, S + 1, False)
    e(f"v_mul_f32 v{S}, {hex(f2u(1.0 / 640))}, v{S}")
    Dv = 164
    for q in range(10):
        e(f"v_pk_add_f32 {vr(Dv + 2 * q, 2)}, {vr(F + 2 * q, 2)}, {vr(S, 2)} op_sel_hi:[1,0] neg_lo:[0,1] neg_hi:[0,1]")
    e(f"v_pk_mul_f32 {vr(S + 2, 2)}, {vr(Dv, 2)}, {vr(Dv, 2)}")
    for q in range(1, 10):
        e(f"v_pk_fma_f32 {vr(S + 2, 2)}, {vr(Dv + 2 * q, 2)}, {vr(Dv + 2 * q, 2)}, {vr(S + 2, 2)}")
    e(f"v_add_f32 v{S + 2}, v{S + 2}, v{S + 3}")
    red("v_add_f32", S + 2, S + 3, False)
    e(f"v_mul_f32 v{S + 2}, {hex(f2u(1.0 / 640))}, v{S + 2}")
    bf16round(S + 2)
    e(f"v_add_f32 v{S + 2}, {hex(f2u(1e-5))}, v{S + 2}")
    bf16round(S + 2)
    e(f"v_sqrt_f32 v{S + 2}, v{S + 2}")
    bf16round(S)
    bf16round(S + 2)
    e(f"v_rcp_f32 v{S + 3}, v{S + 2}")
    SO = 184
    e(f"v_sub_f32 v{SO}, 0, v{S}")
    e(f"v_mul_f32 v{SO + 3}, v{S + 2}, v{S + 2}")
    e(f"v_mul_f32 v{S + 1}, v{S + 3}, v{S + 3}")
    e(f"v_mul_f32 v{SO + 2}, {hex(f2u(C0))}, v{S + 3}")
    e(f"v_mul_f32 v{S + 1}, v{S + 1}, v{S + 3}")
    e(f"v_mul_f32 v{S + 2}, v{SO}, v{S + 3}")
    e(f"v_mul_f32 v{SO + 1}, {hex(f2u(C1))}, v{S + 1}")
    UO = 188
    for q in range(10):
        e(f"v_pk_fma_f32 {vr(Dv + 2 * q, 2)}, {vr(F + 2 * q, 2)}, {vr(S + 2, 2)}, {vr(S + 2, 2)} op_sel:[0,1,0] op_sel_hi:[1,1,0]")
    for q in range(10):
        e(f"v_cvt_pk_f16_f32 v{UO + q}, v{Dv + 2 * q}, v{Dv + 2 * q + 1}")
    e("v_lshrrev_b32 v2, 5, v0")
    e(f"v_mul_u32_u24 v2, {LNP}, v2")
    e("v_and_b32 v3, 31, v0")
    e("v_lshl_add_u32 v2, v3, 3, v2")
    e(f"s_mul_i32 {sT1}, {sW}, {2 * LNP}")
    e(f"s_add_u32 {sT1}, {sT1}, {MISC}")
    e(f"v_add_u32 v2, {sT1}, v2")
    for q in range(5):
        g.lds(f"ds_write_b64 v2, {vr(UO + 2 * q, 2)} offset:{256 * q}", "lnw")
    e("v_lshrrev_b32 v4, 1, v0")
    e("v_mov_b32 v5, 0x7fffff00")
    e("v_cmp_ne_u32 vcc, 0, v3")
    e(f"s_lshl_b32 {sT1}, s2, 2")
    e(f"s_add_u32 {sT1}, {sT1}, {sW}")
    e("v_cndmask_b32 v4, v4, v5, vcc")
    e(f"s_lshl_b32 {sT1}, {sT1}, 5")
    e(f"s_add_u32 {sT1}, {sT1}, {STATS}")
    g.vmem(f"buffer_store_dwordx4 {vr(SO, 4)}, v4, {SWS}, {sT1} offen sc1", "lnst")
    e("v_bfe_u32 v2, v0, 2, 2")
    e(f"v_mul_u32_u24 v2, {LNP}, v2")
    e("v_lshrrev_b32 v3, 4, v0")
    e("v_lshl_add_u32 v2, v3, 5, v2")
    e("v_and_b32 v3, 3, v0")
    e("v_lshl_add_u32 v2, v3, 3, v2")
    e(f"s_lshl_b32 {sT1}, {sW}, 7")
    e(f"s_add_u32 {sT1}, {sT1}, {MISC}")
    e(f"v_add_u32 v2, {sT1}, v2")
    g.wlg0()
    e("s_barrier")
    TR = 200
    for j in range(3):
        for h in range(2):
            g.lds(f"ds_read_b64_tr_b16 {vr(TR + 4 * j + 2 * h, 2)}, v2 offset:{512 * j + 4 * LNP * h}", ("lntr", j))
    e(f"s_mul_i32 {sT1}, s2, 10240")
    e(f"s_lshl_b32 {sT2}, {sW}, 10")
    e(f"s_add_u32 {sT1}, {sT1}, {sT2}")
    e(f"s_add_u32 {sT1}, {sT1}, {XNT}")
    e(f"s_add_u32 {sT2}, {sT1}, 4096")
    e(f"s_add_u32 {sT3}, {sT1}, 8192")
    e(f"s_cmp_lt_u32 {sW}, 2")
    e(f"s_cselect_b32 {sT3}, {sT3}, 0x7fffff00")
    for j, so in enumerate((sT1, sT2, sT3)):
        g.wlg(("lntr", j))
        g.vmem(f"buffer_store_dwordx4 {vr(TR + 4 * j, 4)}, v1, {SWS}, {so} offen sc1", "lnst")
    stamp("ln_done")
    e(f"s_cmp_eq_u32 {sISG1}, 0")
    e("s_cbranch_scc1 L_spare")

    e("v_and_b32 v2, 31, v0")
    e("v_lshrrev_b32 v3, 5, v0")
    e("v_bfe_u32 v4, v0, 1, 3")
    e("v_xor_b32 v4, v4, v3")
    e(f"v_lshl_add_u32 v2, v2, 7, {sXM0}")
    for ks in range(4):
        e(f"v_xor_b32 v5, {2 * ks}, v4")
        e(f"v_lshl_add_u32 v{vBA + ks}, v5, 4, v2")
        e(f"v_add_u32 v{vBA + 4 + ks}, {2 * SLOT}, v{vBA + ks}")
    e("v_lshrrev_b32 v2, 5, v0")
    e("v_bfe_u32 v3, v0, 2, 2")
    e("v_lshl_add_u32 v2, v2, 3, v3")
    e("v_lshlrev_b32 v2, 7, v2")
    e("v_bfe_u32 v4, v0, 4, 1")
    e("v_lshl_add_u32 v2, v4, 5, v2")
    e("v_and_b32 v4, 3, v0")
    e("v_lshl_add_u32 v2, v4, 3, v2")
    e("v_lshrrev_b32 v3, 1, v3")
    e(f"v_xor_b32 v3, {sRHO}, v3")
    e(f"v_lshl_add_u32 v{vAA}, v3, 6, v2")
    e(f"v_xor_b32 v{vAA + 1}, 64, v{vAA}")
    e(f"v_add_u32 v{vAA + 2}, {2 * SLOT}, v{vAA}")
    e(f"v_add_u32 v{vAA + 3}, {2 * SLOT}, v{vAA + 1}")
    e(f"v_mov_b32 v{vCS}, 0")
    e(f"v_mov_b32 v{vCS + 1}, 0")
    e(f"s_mov_b32 {sONES}, 0x3f803f80")

    def frag_reads(k):
        stage, ks = divmod(k, 4)
        sl = stage % 3
        bset = 4 if sl == 2 else 0
        aset = 2 if sl == 2 else 0
        so = 0 if sl == 2 else sl * SLOT
        A = vAF + 16 * (k & 1)
        B = vBF + 8 * (k & 1)
        def bread(b):
            return ("lds", f"ds_read_b128 {vr(B + 4 * b, 4)}, v{vBA + bset + ks} offset:{so + 4096 * b}", ("B", k, b))
        def aread(t, h):
            mat, ap = divmod(t, 2)
            return ("lds", f"ds_read_b64_tr_b16 {vr(A + 4 * t + 2 * h, 2)}, v{vAA + aset + ap} offset:{so + mat * 8192 + ks * 2048 + h * 512}", ("A", k, t))
        return [bread(0), aread(0, 0), aread(0, 1), bread(1), aread(1, 0), aread(1, 1), aread(2, 0), aread(2, 1), aread(3, 0), aread(3, 1)]

    g.wvm(("dma", 0))
    e("s_barrier")
    stamp("g1_start")
    if diag:
        e("s_memtime s[100:101]")
    for it in frag_reads(0):
        g.do(it)

    pending = []

    def wd_load(phi):
        dst = ar(4 * phi, 4) if phi < 64 else vr(vWDV + 4 * (phi - 64), 4)
        st = phi // 5
        j = phi % 5
        return dst, st, j

    for k in range(40):
        stage, ks = divmod(k, 4)
        gaps = [[] for _ in range(8)]
        pre = []
        A = vAF + 16 * (k & 1)
        B = vBF + 8 * (k & 1)
        if ks == 3 and stage < 9:
            def bar(stage=stage):
                g.wlg0()
                if stage == 1:
                    g.wvm("lnst")
                if diag and stage < 8:
                    e(f"s_memtime s[{66 + 2 * stage}:{67 + 2 * stage}]")
                g.wvm(("dma", stage + 1))
                e("s_barrier")
            pre.append(bar)
            if stage == 1:
                def lnflag():
                    lb = g.newlab("Lnf")
                    e(f"s_cmp_lg_u32 {sW}, 0")
                    e(f"s_cbranch_scc1 {lb}")
                    e(f"s_lshl_b32 {sT1}, s2, 2")
                    e(f"s_add_u32 {sT1}, {sT1}, {LNF}")
                    n = len(g.vm)
                    flag_store(sT1)
                    g.vm = g.vm[:n]
                    g.lab(lb)
                pre.append(lnflag)
            if stage + 3 <= 9:
                for (m0s, d) in dma_items(stage + 3):
                    pending.append([m0s, d])
                pending.append([adv[0], adv[1]])
        if k + 1 < 40:
            rd = frag_reads(k + 1)
            for i, it in enumerate(rd):
                gaps[i // 2].append(it)
        dots = [f"v_dot2c_f32_bf16 v{vCS}, {sONES}, v{A + i}" for i in range(4)] + \
               [f"v_dot2c_f32_bf16 v{vCS + 1}, {sONES}, v{A + 8 + i}" for i in range(4)]
        if k < 39:
            gaps[2] += dots[0:2]
            gaps[3] += dots[2:4]
            gaps[5] += dots[4:6]
            gaps[6] += dots[6:8]
        gi = 0
        while pending and gi < 7:
            grp = pending.pop(0)
            gaps[gi].append(grp[0])
            gaps[gi + 1].insert(0, grp[1])
            gi += 1
        if k == 32:
            def polls():
                e(f"v_add_u32 v{vFL + 5}, {LNF}, v1")
                e(f"v_min_u32 v{vFL + 6}, 53, v0")
                e(f"v_lshlrev_b32 v{vFL + 6}, 2, v{vFL + 6}")
                e(f"v_add_u32 v{vFL + 6}, {WF}, v{vFL + 6}")
                g.vmem(f"buffer_load_dwordx4 {vr(vFL, 4)}, v{vFL + 5}, {SWS}, 0 offen sc1", "poll")
                g.vmem(f"buffer_load_dword v{vFL + 4}, v{vFL + 6}, {SWS}, 0 offen sc1", "poll")
            gaps[5].append(polls)
        if k == 34:
            def chk():
                g.wvm("poll")
                sl = g.newlab("Lslow")
                bk = g.newlab("Lback")
                e(f"v_xor_b32 v{vFL + 4}, {sTAG}, v{vFL + 4}")
                e(f"v_xor_b32 v{vFL}, {sTAG}, v{vFL}")
                e(f"v_xor_b32 v{vFL + 1}, {sTAG}, v{vFL + 1}")
                e(f"v_xor_b32 v{vFL + 2}, {sTAG}, v{vFL + 2}")
                e(f"v_xor_b32 v{vFL + 3}, {sTAG}, v{vFL + 3}")
                e(f"v_or3_b32 v{vFL}, v{vFL}, v{vFL + 1}, v{vFL + 2}")
                e(f"v_or3_b32 v{vFL}, v{vFL}, v{vFL + 3}, v{vFL + 4}")
                e(f"v_cmp_ne_u32 vcc, 0, v{vFL}")
                e(f"s_cbranch_vccnz {sl}")
                g.lab(bk)
                g.slow.append((sl, bk, [(vFL + 5, True), (vFL + 6, False)]))
            gaps[4].append(chk)
        if k == 35:
            def statld():
                e("v_and_b32 v2, 31, v0")
                e("v_lshlrev_b32 v2, 4, v2")
                e(f"s_lshl_b32 {sT1}, {sM}, 2")
                e(f"s_add_u32 {sT1}, {sT1}, {sW}")
                e(f"s_lshl_b32 {sT1}, {sT1}, 10")
                e(f"s_add_u32 {sT1}, {sT1}, {STATS}")
                g.vmem(f"buffer_load_dwordx4 {vr(vSTA, 4)}, v2, {SWS}, {sT1} offen sc1", "stats")
                g.vmem(f"buffer_load_dwordx4 {vr(vSTA + 4, 4)}, v2, {SWS}, {sT1} offen offset:512 sc1", "stats")
            gaps[1].append(statld)
            def hoff():
                e("v_bfe_u32 v3, v0, 4, 1")
                e(f"v_mul_u32_u24 v3, {54 * 1024}, v3")
                e("v_lshrrev_b32 v4, 5, v0")
                e("v_lshl_add_u32 v3, v4, 8, v3")
                e("v_and_b32 v4, 15, v0")
                e("v_lshl_add_u32 v3, v4, 4, v3")
                e(f"s_lshl_b32 {sT2}, {sRHO}, 10")
                e(f"v_add_u32 v{vHO}, {sT2}, v3")
                e(f"s_xor_b32 {sT2}, {sT2}, 1024")
                e(f"v_add_u32 v{vHO + 1}, {sT2}, v3")
                e(f"s_lshl_b32 {sHS0}, {sM}, 2")
                e(f"s_add_u32 {sHS0}, {sHS0}, {sW}")
                e(f"s_mul_i32 {sHS0}, {sHS0}, {4 * 54}")
                e(f"s_lshl_b32 {sT2}, {sFT}, 1")
                e(f"s_add_u32 {sHS0}, {sHS0}, {sT2}")
                e(f"s_lshl_b32 {sHS0}, {sHS0}, 10")
                e(f"s_add_u32 {sHS0}, {sHS0}, {HB}")
                e(f"s_add_u32 {sHS1}, {sHS0}, {2 * 54 * 1024}")
            gaps[4].append(hoff)
            def csaddr():
                e(f"v_and_b32 v{vFL + 5}, 31, v0")
                e(f"v_lshlrev_b32 v{vFL + 5}, 2, v{vFL + 5}")
                e(f"s_lshl_b32 {sT2}, {sRHO}, 7")
                e(f"s_add_u32 {sT2}, {sT2}, {CSB}")
                e(f"v_add_u32 v{vFL + 5}, {sT2}, v{vFL + 5}")
                e(f"v_lshrrev_b32 v{vFL + 6}, 5, v0")
                e(f"v_lshl_add_u32 v{vFL + 6}, v{vFL + 6}, 4, {sT2}")
                e(f"v_xor_b32 v{vFL + 7}, 128, v{vFL + 6}")
            gaps[6].append(csaddr)
        if k == 39:
            gaps[0] = [("wlg", ("A", k, 2))] + dots
            def fin():
                e(f"v_mov_b32 v2, v{vCS}")
                e(f"v_mov_b32 v3, v{vCS + 1}")
                g.nop(2)
                e(f"v_permlane32_swap_b32 v{vCS}, v2")
                e(f"v_permlane32_swap_b32 v{vCS + 1}, v3")
                g.nop(1)
                e(f"v_add_f32 v{vCS}, v{vCS}, v2")
                e(f"v_add_f32 v{vCS + 1}, v{vCS + 1}, v3")
                g.lds(f"ds_write_b32 v{vFL + 5}, v{vCS}", "csw")
                g.lds(f"ds_write_b32 v{vFL + 5}, v{vCS + 1} offset:256", "csw")
            gaps[1].append("s_nop 2")
            gaps[2].append(fin)
            def csbar():
                g.wlg0()
                e("s_barrier")
            gaps[4].append(csbar)
            for j in range(4):
                gaps[5].append(("lds", f"ds_read_b128 {vr(64 + 4 * j, 4)}, v{vFL + 6} offset:{32 * j}", "cs0"))
            for j in range(4):
                dst = (4 + 4 * j) if j < 2 else (96 + 4 * (j - 2))
                gaps[6].append(("lds", f"ds_read_b128 {vr(dst, 4)}, v{vFL + 6} offset:{256 + 32 * j}", "cs0"))
        for it in pre:
            g.do(it)
        for i in range(8):
            t, b = divmod(i, 2)
            g.wlg(("A", k, t))
            g.wlg(("B", k, b))
            D = vACC + 16 * (2 * t + b)
            Cs = "0" if k == 0 else vr(D, 16)
            e(f"v_mfma_f32_32x32x16_bf16 {vr(D, 16)}, {vr(A + 4 * t, 4)}, {vr(B + 4 * b, 4)}, {Cs}")
            for it in gaps[i]:
                g.do(it)
    assert not pending
    if diag:
        e("s_memtime s[98:99]")
        e("s_waitcnt lgkmcnt(0)")
        g.lg = []
        for i in range(8):
            e(f"v_mov_b32 v15, s{66 + 2 * i}")
            g.vmem(f"buffer_store_dword v15, v{vEP + 7}, s[{sTS}:{sTS + 3}], 0 offen offset:{64 + 4 * (i + 1)}", "ts")
        e("v_mov_b32 v15, s100")
        g.vmem(f"buffer_store_dword v15, v{vEP + 7}, s[{sTS}:{sTS + 3}], 0 offen offset:64", "ts")
        e("v_mov_b32 v15, s98")
        g.vmem(f"buffer_store_dword v15, v{vEP + 7}, s[{sTS}:{sTS + 3}], 0 offen offset:100", "ts")
    stamp("g1_loop_end")

    def csu0(i):
        return (4 + i) if i < 8 else (96 + i - 8)
    def csu1(i):
        return (104 + i) if i < 8 else (56 + i - 8)
    TT = 12
    tmps = [12, 14, 24, 26]
    OUT = 120
    HO0, HO1 = 16, 20
    g.wvm("stats")
    first = True
    for ap in range(2):
        for b in range(2):
            Gt = vACC + 16 * (2 * ap + b)
            Ut = vACC + 16 * (2 * (2 + ap) + b)
            st = vSTA + 4 * b
            if ap == 0 and b == 0:
                g.wlg("cs0")
                g.nop(4)
            if ap == 0 and b == 1:
                for j in range(4):
                    g.lds(f"ds_read_b128 {vr(80 + 4 * j, 4)}, v{vFL + 7} offset:{32 * j}", "cs1")
                for j in range(4):
                    dst = (104 + 4 * j) if j < 2 else (56 + 4 * (j - 2))
                    g.lds(f"ds_read_b128 {vr(dst, 4)}, v{vFL + 7} offset:{256 + 32 * j}", "cs1")
            if ap == 1 and b == 0:
                g.wlg("cs1")
            csg = (lambda i: 64 + i) if ap == 0 else (lambda i: 80 + i)
            csu = csu0 if ap == 0 else csu1
            for c in range(2):
                O = HO0 if c == 0 else HO1
                ps = range(4 * c, 4 * c + 4)
                for p in ps:
                    e(f"v_pk_fma_f32 {vr(Gt + 2 * p, 2)}, {vr(csg(2 * p), 2)}, {vr(st, 2)}, {vr(Gt + 2 * p, 2)} op_sel_hi:[1,0,1]")
                for p in ps:
                    t = tmps[p % 4]
                    e(f"v_pk_mul_f32 {vr(t, 2)}, {vr(Gt + 2 * p, 2)}, {vr(Gt + 2 * p, 2)}")
                for p in ps:
                    t = tmps[p % 4]
                    e(f"v_pk_fma_f32 {vr(t, 2)}, {vr(t, 2)}, {vr(st, 2)}, {vr(st + 2, 2)} op_sel:[0,1,0] op_sel_hi:[1,1,0]")
                for p in ps:
                    t = tmps[p % 4]
                    e(f"v_pk_mul_f32 {vr(t, 2)}, {vr(t, 2)}, {vr(Gt + 2 * p, 2)}")
                for p in ps:
                    t = tmps[p % 4]
                    e(f"v_exp_f32 v{t}, v{t}")
                    e(f"v_exp_f32 v{t + 1}, v{t + 1}")
                for p in ps:
                    e(f"v_pk_fma_f32 {vr(Ut + 2 * p, 2)}, {vr(csu(2 * p), 2)}, {vr(st, 2)}, {vr(Ut + 2 * p, 2)} op_sel_hi:[1,0,1]")
                for p in ps:
                    t = tmps[p % 4]
                    e(f"v_pk_fma_f32 {vr(t, 2)}, {vr(t, 2)}, {vr(st + 2, 2)}, {vr(st + 2, 2)} op_sel:[0,1,1] op_sel_hi:[1,1,1]")
                for p in ps:
                    t = tmps[p % 4]
                    e(f"v_rcp_f32 v{t}, v{t}")
                    e(f"v_rcp_f32 v{t + 1}, v{t + 1}")
                for p in ps:
                    e(f"v_pk_mul_f32 {vr(Gt + 2 * p, 2)}, {vr(Gt + 2 * p, 2)}, {vr(Ut + 2 * p, 2)}")
                for p in ps:
                    t = tmps[p % 4]
                    e(f"v_pk_mul_f32 {vr(Gt + 2 * p, 2)}, {vr(Gt + 2 * p, 2)}, {vr(t, 2)}")
                for p in ps:
                    e(f"v_cvt_pk_bf16_f32 v{O + p - 4 * c}, v{Gt + 2 * p}, v{Gt + 2 * p + 1}")
                g.vmem(f"buffer_store_dwordx4 {vr(O, 4)}, v{vHO + ap}, {SWS}, {sHS0 if b == 0 else sHS1} offen offset:{512 * c} sc1", "hst")
    stamp("g1_epi_end")
    e("s_branch L_round")

    g.lab("L_spare")
    g.vm = ["par"] * 6 + ["lnst"] * 4
    g.lg = []
    e(f"s_mov_b32 {sK0}, {sSP}")
    e(f"s_mov_b32 {sK1}, 0")
    WV = 128
    e(f"s_mul_i32 {sT1}, {sW}, 640")
    e(f"s_mov_b32 {sT2}, {0x100000000 // 80 + 1}")
    for i in range(10):
        e(f"v_add_u32 v2, {sT1}, v0")
        if i:
            e(f"v_add_u32 v2, {64 * i}, v2")
        e(f"v_mul_hi_u32 v3, v2, {sT2}")
        e("v_mul_u32_u24 v4, 80, v3")
        e("v_sub_u32 v4, v2, v4")
        e("v_and_b32 v5, 7, v3")
        e("v_lshlrev_b32 v5, 1, v5")
        e("v_xor_b32 v4, v4, v5")
        e("v_mul_u32_u24 v3, 1280, v3")
        e(f"v_lshl_add_u32 v{WV + i}, v4, 4, v3")
    e("v_lshrrev_b32 v2, 5, v0")
    e("v_lshlrev_b32 v2, 4, v2")
    e("v_bfe_u32 v3, v0, 4, 1")
    e("v_lshl_add_u32 v2, v3, 2, v2")
    e("v_bfe_u32 v3, v0, 2, 2")
    e("v_add_u32 v2, v2, v3")
    e("v_and_b32 v3, 7, v2")
    e("v_lshlrev_b32 v3, 1, v3")
    e("v_mul_u32_u24 v2, 1280, v2")
    e("v_and_b32 v4, 1, v0")
    e("v_lshl_add_u32 v2, v4, 3, v2")
    e("v_bfe_u32 v4, v0, 1, 1")
    RV = 140
    e(f"s_mul_i32 {sT1}, {sW}, 20")
    for i in range(10):
        e(f"v_add_u32 v5, {sT1}, v4")
        if i:
            e(f"v_add_u32 v5, {2 * i}, v5")
        e("v_xor_b32 v5, v5, v3")
        e(f"v_lshl_add_u32 v{RV + i}, v5, 4, v2")
    g.lab("L_pack")
    e(f"s_mul_i32 {sT1}, {sK0}, 40960")
    e(f"s_mul_i32 {sT2}, {sW}, 10240")
    for i in range(10):
        e(f"s_add_u32 m0, {sT2}, {WPK + 1024 * i}")
        e("s_nop 0")
        e(f"buffer_load_dwordx4 v{WV + i}, {SWD}, {sT1} offen lds")
    g.wall()
    e("s_barrier")
    e(f"s_or_b32 {sT1}, {sK1}, {sW}")
    e(f"s_cmp_lg_u32 {sT1}, 0")
    e("s_cbranch_scc1 L_nolnf")
    e(f"s_lshl_b32 {sT1}, s2, 2")
    e(f"s_add_u32 {sT1}, {sT1}, {LNF}")
    flag_store(sT1)
    g.lab("L_nolnf")
    PD = 152
    for i in range(10):
        for h in range(2):
            g.lds(f"ds_read_b64_tr_b16 {vr(PD + 4 * i + 2 * h, 2)}, v{RV + i} offset:{WPK + 8 * 1280 * h}", ("pk", i))
    e(f"s_mul_i32 {sT1}, {sW}, {2 * 54}")
    e(f"s_add_u32 {sT1}, {sT1}, {sK0}")
    e(f"s_mul_i32 {sT1}, {sT1}, 5120")
    e(f"s_add_u32 {sT1}, {sT1}, {WDP}")
    for i in range(10):
        g.wlg(("pk", i))
        off = (i // 5) * 54 * 5120 + (i % 5) * 1024
        e(f"s_add_u32 {sT2}, {sT1}, {off}")
        g.vmem(f"buffer_store_dwordx4 {vr(PD + 4 * i, 4)}, v1, {SWS}, {sT2} offen sc1", "pks")
    g.wall()
    e("s_barrier")
    e(f"s_cmp_lg_u32 {sW}, 0")
    e("s_cbranch_scc1 L_nowf")
    e(f"s_lshl_b32 {sT1}, {sK0}, 2")
    e(f"s_add_u32 {sT1}, {sT1}, {WF}")
    flag_store(sT1)
    g.lab("L_nowf")
    e(f"s_cmp_lg_u32 {sK1}, 0")
    e("s_cbranch_scc1 L_packdone")
    e(f"s_cmp_lt_u32 {sSP}, 26")
    e("s_cbranch_scc1 L_packdone")
    e(f"s_add_u32 {sK0}, {sSP}, 14")
    e(f"s_mov_b32 {sK1}, 1")
    e("s_branch L_pack")
    g.lab("L_packdone")
    e(f"s_mov_b32 {sK1}, 0")
    stamp("pack_done")

    g.lab("L_round")
    g.vm = ["x"] * 40
    g.lg = []
    KA = 128
    e(f"s_lshl_b32 {sT1}, {sC}, 4")
    e(f"v_lshrrev_b32 v{KA}, {sT1}, v{vPAR + 4}")
    e(f"v_lshlrev_b32 v{KA}, 16, v{KA}")
    e(f"v_mul_f32 v{KA}, {hex(f2u(LOG2E))}, v{KA}")
    e(f"v_exp_f32 v{KA}, v{KA}")
    e(f"v_lshrrev_b32 v{vEP + 4}, {sT1}, v{vPAR + 5}")
    e(f"v_lshlrev_b32 v{vEP + 4}, 16, v{vEP + 4}")
    bf16round(KA)
    e(f"v_lshlrev_b32 v{KA + 2}, 16, v{vPAR}")
    e(f"v_and_b32 v{KA + 3}, 0xffff0000, v{vPAR}")
    e(f"v_mul_f32 v{KA + 2}, {hex(f2u(LOG2E))}, v{KA + 2}")
    e(f"v_mul_f32 v{KA + 3}, {hex(f2u(LOG2E))}, v{KA + 3}")
    e(f"v_exp_f32 v{KA + 2}, v{KA + 2}")
    e(f"v_exp_f32 v{KA + 3}, v{KA + 3}")
    e(f"v_lshlrev_b32 v{KA + 4}, 16, v{vPAR + 1}")
    e(f"v_and_b32 v{KA + 5}, 0xffff0000, v{vPAR + 1}")
    e(f"v_cvt_pk_bf16_f32 v{KA + 1}, v{KA + 2}, v{KA + 3}")
    e(f"v_lshlrev_b32 v{KA + 2}, 16, v{KA + 1}")
    e(f"v_and_b32 v{KA + 3}, 0xffff0000, v{KA + 1}")
    for m in range(2):
        e(f"v_mul_f32 v{KA + 2 + m}, v{KA + 2 + m}, v{KA}")
        e(f"v_mul_f32 v{KA + 4 + m}, v{KA + 4 + m}, v{KA}")
    for m in range(2):
        e(f"v_mul_f32 v{KA + 2 + m}, {hex(f2u(-LOG2E))}, v{KA + 2 + m}")
        e(f"v_mul_f32 v{KA + 4 + m}, {hex(f2u(1.0 / (2 * math.pi)))}, v{KA + 4 + m}")
    SIG, OMG = KA + 2, KA + 4

    def cexp(dst, p, t):
        for m in range(2):
            e(f"v_mul_f32 v{t + m}, {hex(f2u(float(p)))}, v{SIG + m}")
            e(f"v_mul_f32 v{t + 2 + m}, {hex(f2u(float(p)))}, v{OMG + m}")
        for m in range(2):
            e(f"v_fract_f32 v{t + 2 + m}, v{t + 2 + m}")
        for m in range(2):
            e(f"v_exp_f32 v{t + m}, v{t + m}")
            e(f"v_cos_f32 v{dst + 2 * m}, v{t + 2 + m}")
            e(f"v_sin_f32 v{dst + 2 * m + 1}, v{t + 2 + m}")
        e("s_nop 0")
        for m in range(2):
            e(f"v_pk_mul_f32 {vr(dst + 2 * m, 2)}, {vr(dst + 2 * m, 2)}, {vr(t, 2)} op_sel:[0,{m}] op_sel_hi:[1,{m}]")

    def cmul(dst, P, Q, t):
        for m in range(2):
            e(f"v_pk_mul_f32 {vr(t + 2 * m, 2)}, {vr(P + 2 * m, 2)}, {vr(Q + 2 * m, 2)} op_sel_hi:[0,1]")
        for m in range(2):
            e(f"v_pk_fma_f32 {vr(dst + 2 * m, 2)}, {vr(P + 2 * m, 2)}, {vr(Q + 2 * m, 2)}, {vr(t + 2 * m, 2)} op_sel:[1,1,0] op_sel_hi:[1,0,1] neg_lo:[0,1,0]")

    WA = KA + 6
    e(f"s_mul_i32 {sT1}, {sC}, {XYC}")
    e(f"v_lshl_add_u32 v{WA}, v0, 3, {sT1}")
    cnt = [0]

    def put(src, row, neg):
        o = 144 + 2 * (cnt[0] % 4)
        cnt[0] += 1
        ng = "-" if neg else ""
        e(f"v_cvt_pk_f16_f32 v{o}, v{src}, {ng}v{src + 1}")
        e(f"v_cvt_pk_f16_f32 v{o + 1}, v{src + 2}, {ng}v{src + 3}")
        g.lds(f"ds_write_b64 v{WA}, {vr(o, 2)} offset:{XYB + row * XYP}", "xy")

    e(f"s_cmp_lg_u32 {sRHO}, 0")
    e("s_cbranch_scc1 L_role1")
    W8, YA, YB_, TM = 152, 156, 160, 136
    cexp(W8, 8, TM)
    e(f"v_mov_b32 v{144}, 0x3c00")
    e(f"v_mov_b32 v{145}, 0x3c00")
    g.lds(f"ds_write_b64 v{WA}, {vr(144, 2)} offset:{XYB + 32 * XYP}", "xy")
    cnt[0] = 1
    put(W8, 33, False)
    cur = W8
    for j in range(2, 32):
        nxt = YA if cur != YA else YB_
        cmul(nxt, cur, W8, TM)
        put(nxt, 32 + j, False)
        cur = nxt
    e("s_branch L_kbar")
    g.lab("L_role1")
    CC = 152
    e(f"v_lshlrev_b32 v{CC}, 16, v{vPAR + 2}")
    e(f"v_lshlrev_b32 v{CC + 1}, 16, v{vPAR + 3}")
    e(f"v_and_b32 v{CC + 2}, 0xffff0000, v{vPAR + 2}")
    e(f"v_and_b32 v{CC + 3}, 0xffff0000, v{vPAR + 3}")
    MX = 136
    e(f"v_max_f32 v{MX}, |v{CC}|, |v{CC + 1}|")
    e(f"v_max3_f32 v{MX}, |v{CC + 2}|, |v{CC + 3}|, v{MX}")
    red("v_max_f32", MX, MX + 1, True)
    e(f"v_frexp_exp_i32_f32 v{MX}, v{MX}")
    e(f"v_add_f32 v{KA}, v{KA}, v{KA}")
    e(f"v_ldexp_f32 v{KA}, v{KA}, v{MX}")
    e(f"v_sub_u32 v{MX}, 0, v{MX}")
    for i in range(4):
        e(f"v_ldexp_f32 v{CC + i}, v{CC + i}, v{MX}")
    e(f"s_lshl_b32 {sT1}, {sC}, 2")
    e(f"s_add_u32 {sT1}, {sT1}, {YSB}")
    e(f"v_mov_b32 v{MX + 1}, {sT1}")
    g.lds(f"ds_write_b32 v{MX + 1}, v{KA}", "xy")
    Z, Q, Q4 = 156, 160, 164
    cexp(Z, 1, TM)
    cexp(Q, 256, TM)
    cexp(Q4, 1024, TM)
    X = [168 + 4 * i for i in range(8)]
    X[0] = CC
    cnt[0] = 0
    put(CC, 0, True)
    for s in range(1, 8):
        cmul(X[s], X[s - 1], Z, TM)
        put(X[s], s, True)
    R8 = [200 + 4 * i for i in range(4)]
    for s in range(4):
        cmul(R8[s], X[2 * s], Q, TM)
        put(R8[s], 8 + s, True)
    R12 = [216, 220]
    for s in range(2):
        cmul(R12[s], R8[2 * s], Q, TM)
        put(R12[s], 12 + s, True)
    for s in range(2):
        cmul(X[1 + 2 * s], R12[s], Q, TM)
        put(X[1 + 2 * s], 14 + s, True)
    cmul(R8[0], CC, Q4, TM)
    put(R8[0], 16, True)
    cmul(R8[2], R8[0], Q4, TM)
    put(R8[2], 20, True)
    cmul(R8[1], R8[0], Q, TM)
    put(R8[1], 17, True)
    cmul(R8[3], R8[1], Q, TM)
    put(R8[3], 18, True)
    cmul(R8[1], R8[3], Q, TM)
    put(R8[1], 19, True)
    g.lab("L_kbar")
    SC = 168
    GA = 176
    e("v_lshrrev_b32 v2, 4, v0")
    e(f"s_lshl_b32 {sT1}, {sRHO}, 2")
    e(f"v_add_u32 v2, {sT1}, v2")
    e("v_and_b32 v3, 15, v0")
    e(f"s_mul_i32 {sT2}, {sC}, {TC}")
    e(f"s_add_u32 {sT2}, {sT2}, {TB + 4}")
    DUM = 645
    e("v_mov_b32 v4, 8")
    e("v_cmp_eq_u32 vcc, 2, v2\ns_nop 1\nv_cndmask_b32 v4, v4, 4, vcc")
    e("v_cmp_eq_u32 vcc, 3, v2\ns_nop 1\nv_cndmask_b32 v4, v4, 2, vcc")
    e("v_cmp_eq_u32 vcc, 4, v2\ns_nop 1\nv_cndmask_b32 v4, v4, 1, vcc")
    e("v_cmp_lt_u32 vcc, 4, v2\ns_nop 1\nv_cndmask_b32 v4, v4, 0, vcc")
    e("v_mul_u32_u24 v5, v4, v3")
    e("v_lshlrev_b32 v6, 4, v4")
    for i in range(4):
        e(f"v_lshl_add_u32 v7, v2, 2, {i}")
        for tv, val in ((2, 256 + i), (3, 384 + 64 * (i >> 1) + (i & 1)), (4, 512 + 32 * i)):
            e(f"v_mov_b32 v8, {val}")
            e(f"v_cmp_eq_u32 vcc, {tv}, v2\ns_nop 1\nv_cndmask_b32 v7, v7, v8, vcc")
        e(f"v_mov_b32 v8, {DUM}")
        e("v_cmp_lt_u32 vcc, 4, v2\ns_nop 1\nv_cndmask_b32 v7, v7, v8, vcc")
        e("v_add_u32 v7, v7, v5")
        e("v_add_u32 v9, v7, v6")
        if i == 0:
            e("v_lshl_add_u32 v10, v2, 4, v3")
            e("v_mov_b32 v8, 640")
            e("v_cmp_eq_u32 vcc, 80, v10\ns_nop 1\nv_cndmask_b32 v7, v7, v8, vcc")
        e(f"v_lshl_add_u32 v{SC + i}, v7, 2, {sT2}")
        e(f"v_lshl_add_u32 v{SC + 4 + i}, v9, 2, {sT2}")
    e(f"s_lshl_b32 {sT1}, {sRHO}, 10")
    e(f"s_sub_u32 {sT1}, 2047, {sT1}")
    e("v_lshlrev_b32 v2, 3, v0")
    e(f"v_sub_u32 v2, {sT1}, v2")
    for ch in range(2):
        for k in range(11):
            e(f"v_subrev_u32 v3, {512 * ch + k}, v2")
            e("v_cvt_f32_i32 v4, v3")
            e("v_max_i32 v3, -1, v3")
            e("v_cvt_pk_bf16_f32 v4, v4, 0")
            e("v_cmp_gt_i32 vcc, 0x100, v3")
            e("v_subrev_u32 v4, 0x4280, v4")
            e("s_nop 0")
            e("v_cndmask_b32 v3, v4, v3, vcc")
            e(f"v_lshl_add_u32 v{GA + 11 * ch + k}, v3, 2, {sT2}")
    e("v_mov_b32 v4, 0\nv_mov_b32 v5, 0\nv_mov_b32 v6, 0\nv_mov_b32 v7, 0")
    e(f"s_mul_i32 {sT1}, {sC}, {UC}")
    e(f"s_lshl_b32 {sT3}, {sRHO}, 8")
    e(f"s_add_u32 {sT1}, {sT1}, {sT3}")
    e(f"s_add_u32 {sT1}, {sT1}, {UBASE}")
    e(f"v_add_u32 v2, {sT1}, v1")
    e(f"s_mul_i32 {sT1}, {sC}, {RC}")
    e(f"s_mul_i32 {sT3}, {sRHO}, {2 * RCS}")
    e(f"s_add_u32 {sT1}, {sT1}, {sT3}")
    e(f"s_add_u32 {sT1}, {sT1}, {RB + 4096}")
    e("v_bfe_u32 v3, v0, 1, 1")
    e(f"v_mul_u32_u24 v3, {RCS}, v3")
    e("v_and_b32 v8, 1, v0")
    e("v_lshl_add_u32 v3, v8, 4, v3")
    e(f"v_add_u32 v3, {sT1}, v3")
    e("v_cmp_lt_u32 vcc, 15, v0\ns_nop 1\nv_cndmask_b32 v2, v2, v3, vcc")
    g.lds(f"ds_write_b128 v2, {vr(4, 4)}", "z")
    e(f"v_mov_b32 v3, {sT2}")
    e(f"v_add_u32 v3, -4, v3")
    g.lds("ds_write_b32 v3, v4", "z")
    g.wall()
    e("s_barrier")
    stamp("kbar")
    e(f"s_lshl_b32 {sT1}, {sW}, 1")
    e(f"s_xor_b32 {sT3}, {sISG1}, 1")
    e(f"s_or_b32 {sT1}, {sT1}, {sT3}")
    e(f"s_cmp_lg_u32 {sT1}, 0")
    e("s_cbranch_scc1 L_nohf")
    e(f"s_lshl_b32 {sT1}, {sM}, 5")
    e(f"s_add_u32 {sT1}, {sT1}, {sFT}")
    e(f"s_lshl_b32 {sT1}, {sT1}, 2")
    e(f"s_add_u32 {sT1}, {sT1}, {HF}")
    flag_store(sT1)
    g.lab("L_nohf")
    g.vm = []
    e(f"s_or_b32 {sT1}, {sISG1}, {sK1}")
    e(f"s_cmp_lg_u32 {sT1}, 0")
    e("s_cbranch_scc1 L_lnok")
    e(f"v_add_u32 v{vFL + 5}, {LNF}, v1")
    poll_block(vFL + 5, True, vFL)
    e(f"s_mov_b32 {sK1}, 1")
    g.lab("L_lnok")
    e(f"s_or_b32 {sT1}, s2, {sW}")
    e(f"s_cmp_lg_u32 {sT1}, 0")
    e("s_cbranch_scc1 L_noep")
    e(f"s_mov_b32 {sT1}, {EPOCH}")
    flag_store(sT1)
    g.lab("L_noep")
    g.vm = []
    e("v_lshrrev_b32 v2, 1, v0")
    e("v_mul_u32_u24 v2, 10240, v2")
    e("v_and_b32 v3, 1, v0")
    e("v_lshl_add_u32 v2, v3, 4, v2")
    e(f"s_mul_i32 {sT1}, {sW}, {64 * 10240}")
    e(f"s_lshl_b32 {sT3}, {sCP}, 5")
    e(f"s_add_u32 {sT1}, {sT1}, {sT3}")
    e(f"s_add_u32 {sT1}, {sT1}, {XNT}")
    e(f"s_add_u32 {sT3}, {sT1}, {32 * 10240}")
    g.vmem(f"buffer_load_dwordx4 {vr(vU, 4)}, v2, {SWS}, {sT1} offen sc1", "u")
    g.vmem(f"buffer_load_dwordx4 {vr(vU + 4, 4)}, v2, {SWS}, {sT3} offen sc1", "u")
    e(f"s_cmp_lg_u32 {sRND}, 1")
    e("s_cbranch_scc1 L_nowd")
    e(f"s_cmp_lg_u32 {sISG1}, 0")
    e("s_cbranch_scc1 L_wfok")
    e(f"v_min_u32 v{vFL + 6}, 53, v0")
    e(f"v_lshlrev_b32 v{vFL + 6}, 2, v{vFL + 6}")
    e(f"v_add_u32 v{vFL + 6}, {WF}, v{vFL + 6}")
    poll_block(vFL + 6, False, vFL)
    g.lab("L_wfok")
    e(f"s_mul_i32 {sT1}, {sW}, 14")
    e(f"s_cmp_eq_u32 {sW}, 3")
    e(f"s_cselect_b32 {sT3}, 1, 0")
    e(f"s_sub_u32 {sT1}, {sT1}, {sT3}")
    e(f"s_mul_i32 {sT3}, {sDT}, 54")
    e(f"s_add_u32 {sT3}, {sT3}, {sT1}")
    e(f"s_mul_i32 {sT3}, {sT3}, 5120")
    e(f"s_add_u32 {sT3}, {sT3}, {WDP}")
    vWDV = 232
    for phi in range(70):
        dst = ar(4 * phi, 4) if phi < 64 else vr(vWDV + 4 * (phi - 64), 4)
        if phi == 65:
            e(f"s_cmp_lt_u32 {sW}, 2")
            e(f"s_cselect_b32 {sT3}, {sT3}, 0x7fff0000")
        if phi % 4 == 0 or phi == 65:
            e(f"s_add_u32 {sT4}, {sT3}, {(phi // 4) * 4096}")
        e(f"buffer_load_dwordx4 {dst}, v1, {SWS}, {sT4} offen offset:{(phi % 4) * 1024} sc1")
    g.lab("L_nowd")
    e("v_and_b32 v2, 15, v0")
    e(f"v_mul_u32_u24 v2, {XYP}, v2")
    e("v_lshrrev_b32 v3, 4, v0")
    e("v_lshl_add_u32 v2, v3, 4, v2")
    e(f"s_mul_i32 {sT1}, {sC}, {XYC}")
    e(f"v_add_u32 v3, {sT1}, v2")
    e(f"s_mul_i32 {sT3}, {sRHO}, {16 * XYP}")
    e(f"s_add_u32 {sT1}, {sT1}, {sT3}")
    e(f"v_add_u32 v2, {sT1}, v2")
    KF = 64
    for ks in range(8):
        g.lds(f"ds_read_b128 {vr(KF + 4 * ks, 4)}, v2 offset:{XYB + 64 * ks}", ("ka", ks))
        g.lds(f"ds_read_b128 {vr(128 + 4 * ks, 4)}, v3 offset:{XYB + 32 * XYP + 64 * ks}", ("kb0", ks))
        g.lds(f"ds_read_b128 {vr(200 + 4 * ks, 4)}, v3 offset:{XYB + 48 * XYP + 64 * ks}", ("kb1", ks))
    e(f"s_lshl_b32 {sT1}, {sC}, 2")
    e(f"s_add_u32 {sT1}, {sT1}, {YSB}")
    e(f"v_mov_b32 v4, {sT1}")
    g.lds(f"ds_read_b32 v{vEP + 5}, v4", "ysc")
    KD = 96
    for ks in range(8):
        g.wlg(("kb0", ks))
        e(f"v_mfma_f32_16x16x32_f16 {vr(KD, 4)}, {vr(KF + 4 * ks, 4)}, {vr(128 + 4 * ks, 4)}, {'0' if ks == 0 else vr(KD, 4)}")
        g.wlg(("kb1", ks))
        e(f"v_mfma_f32_16x16x32_f16 {vr(KD + 4, 4)}, {vr(KF + 4 * ks, 4)}, {vr(200 + 4 * ks, 4)}, {'0' if ks == 0 else vr(KD + 4, 4)}")
    g.nop(8)
    for i in range(8):
        g.lds(f"ds_write_b32 v{SC + i}, v{KD + i}", "tw")
    g.wlg0()
    e("s_barrier")
    EG = 128
    for ch in range(2):
        for k in range(11):
            g.lds(f"ds_read_b32 v{EG + 12 * ch + k}, v{GA + 11 * ch + k}", ("eg", ch))
    e(f"s_mul_i32 {sT1}, {sC}, {RC}")
    e(f"s_lshl_b32 {sT3}, {sRHO}, 11")
    e(f"s_add_u32 {sT1}, {sT1}, {sT3}")
    e(f"s_add_u32 {sT1}, {sT1}, {RB}")
    e(f"v_add_u32 v2, {sT1}, v1")
    EO = 64
    for ch in range(2):
        g.wlg(("eg", ch))
        for s in range(4):
            o = EO + 16 * ch + 4 * s
            for j in range(4):
                e(f"v_cvt_pk_f16_f32 v{o + j}, v{EG + 12 * ch + s + 2 * j}, v{EG + 12 * ch + s + 2 * j + 1}")
            g.lds(f"ds_write_b128 v2, {vr(o, 4)} offset:{s * RCS + 1024 * ch}", "rw")
    e("v_and_b32 v3, 1, v0")
    e(f"v_mul_u32_u24 v3, {UC}, v3")
    e("v_lshrrev_b32 v4, 1, v0")
    e("v_lshl_add_u32 v3, v4, 4, v3")
    e(f"s_lshl_b32 {sT1}, {sW}, 10")
    e(f"s_add_u32 {sT1}, {sT1}, {UBASE + 512}")
    e(f"v_add_u32 v3, {sT1}, v3")
    e(f"s_cmp_lg_u32 {sRND}, 1")
    e("s_cbranch_scc1 L_uw0")
    e("s_waitcnt vmcnt(63)")
    e("s_branch L_uw1")
    g.lab("L_uw0")
    e("s_waitcnt vmcnt(0)")
    g.lab("L_uw1")
    g.vm = []
    g.lds(f"ds_write_b128 v3, {vr(vU, 4)}", "uw")
    g.lds(f"ds_write_b128 v3, {vr(vU + 4, 4)} offset:512", "uw")
    e(f"s_mov_b32 {sHS0}, {sCP}")
    e(f"s_add_u32 {sCP}, {sCP}, 40")
    e(f"s_min_u32 {sCP}, {sCP}, 319")
    e(f"s_cmp_eq_u32 {sRND}, 1")
    e("s_cbranch_scc1 L_nopar")
    param_loads()
    g.lab("L_nopar")
    g.vm = []
    e("v_and_b32 v4, 15, v0")
    e("v_lshrrev_b32 v5, 4, v0")
    e("v_sub_u32 v6, 3, v4")
    e("v_and_b32 v6, 3, v6")
    e(f"v_mul_u32_u24 v6, {RCS}, v6")
    e("v_lshl_add_u32 v6, v5, 4, v6")
    e("v_and_b32 v7, 12, v4")
    e("v_lshlrev_b32 v7, 1, v7")
    e("v_sub_u32 v6, v6, v7")
    e(f"s_mul_i32 {sT1}, {sC}, {RC}")
    e(f"s_lshl_b32 {sT3}, {sRHO}, 8")
    e(f"s_sub_u32 {sT1}, {sT1}, {sT3}")
    e(f"s_add_u32 {sT1}, {sT1}, {RB + 24 + 256}")
    e(f"v_add_u32 v2, {sT1}, v6")
    e("v_lshlrev_b32 v7, 5, v4")
    e("v_lshl_add_u32 v7, v5, 4, v7")
    e(f"s_mul_i32 {sT1}, {sC}, {UC}")
    e(f"s_sub_u32 {sT1}, {sT1}, {sT3}")
    e(f"s_add_u32 {sT1}, {sT1}, {UBASE + 32 + 256}")
    e(f"v_add_u32 v3, {sT1}, v7")
    g.wlg0()
    e("s_barrier")
    stamp("conv_start")
    CACC = 96
    CACC = 64
    FB = [128, 160]
    GB = [192, 4]
    Greg = [[192 + 4 * i for i in range(8)], [96, 100, 104, 108, 112, 116, 8, 12]]
    def cls_reads(dl):
        bf = dl & 1
        out = []
        for s in range(8):
            out.append(("lds", f"ds_read_b128 {vr(Greg[bf][s], 4)}, v3 offset:{512 * s + 64 * (3 - dl)}", ("G", dl, s)))
            off = 64 * (59 - dl - 8 * s)
            out.append(("lds", f"ds_read_b64 {vr(FB[bf] + 4 * s, 2)}, v2 offset:{off}", ("F", dl, s)))
            out.append(("lds", f"ds_read_b64 {vr(FB[bf] + 4 * s + 2, 2)}, v2 offset:{off + 8}", ("F", dl, s)))
        return out
    for it in cls_reads(0):
        g.do(it)
    for dl in range(4):
        bf = dl & 1
        nxt = cls_reads(dl + 1) if dl < 3 else []
        order = sorted([(s, gg) for s in range(8) for gg in range(8) if s + gg < 8], key=lambda x: (max(x), x[0] + x[1]))
        seen = set()
        for mi, (s, gg) in enumerate(order):
            t = s + gg
            g.wlg(("G", dl, gg))
            g.wlg(("F", dl, s))
            Cs = "0" if (dl == 0 and t not in seen) else vr(CACC + 4 * t, 4)
            seen.add(t)
            e(f"v_mfma_f32_16x16x32_f16 {vr(CACC + 4 * t, 4)}, {vr(FB[bf] + 4 * s, 4)}, {vr(Greg[bf][gg], 4)}, {Cs}")
            if mi >= 10 and nxt:
                g.do(nxt.pop(0))
        while nxt:
            g.do(nxt.pop(0))
    stamp("conv_end")
    g.nop(8)
    e(f"s_cmp_lg_u32 {sRHO}, 0")
    e("s_cbranch_scc1 L_noswap")
    for i in range(16):
        e(f"v_swap_b32 v{CACC + i}, v{CACC + 16 + i}")
    g.lab("L_noswap")
    e(f"s_lshl_b32 {sT1}, {sW}, 12")
    e(f"v_add_u32 v4, {sT1}, v1")
    e(f"s_xor_b32 {sT1}, {sT1}, 4096")
    e(f"v_add_u32 v5, {sT1}, v1")
    for tt in range(4):
        g.lds(f"ds_write_b128 v4, {vr(CACC + 4 * tt, 4)} offset:{PB + 1024 * tt}", "pw")
    e("v_and_b32 v6, 15, v0")
    e("v_lshlrev_b32 v6, 5, v6")
    e("v_lshrrev_b32 v7, 4, v0")
    e("v_lshl_add_u32 v6, v7, 3, v6")
    e(f"s_mul_i32 {sT1}, {sC}, {UC}")
    e(f"s_lshl_b32 {sT3}, {sRHO}, 11")
    e(f"s_add_u32 {sT1}, {sT1}, {sT3}")
    e(f"s_add_u32 {sT1}, {sT1}, {UBASE + 512}")
    e(f"v_add_u32 v7, {sT1}, v6")
    for tt in range(4):
        g.lds(f"ds_read_b64 {vr(128 + 2 * tt, 2)}, v7 offset:{512 * tt}", "us")
    g.wlg0()
    e("s_barrier")
    for tt in range(4):
        g.lds(f"ds_read_b128 {vr(144 + 4 * tt, 4)}, v5 offset:{PB + 1024 * tt}", ("pr", tt))
    for tt in range(4):
        for i in range(4):
            src = 128 + 2 * tt + (i >> 1)
            e(f"v_fma_mix_f32 v{160 + 4 * tt + i}, v{src}, v{vEP + 4}, 0 op_sel:[{i & 1},0,0] op_sel_hi:[1,0,0]")
    e(f"s_lshl_b32 {sT1}, {sW}, 11")
    e(f"s_add_u32 {sT1}, {sT1}, {SOB}")
    e(f"v_add_u32 v6, {sT1}, v6")
    e(f"v_add_u32 v7, {sT1}, v1")
    for tt in range(4):
        g.wlg(("pr", tt))
        for h in range(2):
            e(f"v_pk_add_f32 {vr(144 + 4 * tt + 2 * h, 2)}, {vr(144 + 4 * tt + 2 * h, 2)}, {vr(CACC + 16 + 4 * tt + 2 * h, 2)}")
        for i in range(4):
            e(f"v_fma_f32 v{144 + 4 * tt + i}, v{144 + 4 * tt + i}, v{vEP + 5}, v{160 + 4 * tt + i}")
        for h in range(2):
            e(f"v_cvt_pk_bf16_f32 v{128 + 2 * tt + h}, v{144 + 4 * tt + 2 * h}, v{144 + 4 * tt + 2 * h + 1}")
        g.lds(f"ds_write_b64 v6, {vr(128 + 2 * tt, 2)} offset:{512 * tt}", "sw")
    g.wlg0()
    for j in range(2):
        g.lds(f"ds_read_b128 {vr(136 + 4 * j, 4)}, v7 offset:{1024 * j}", ("sr", j))
    e(f"s_lshl_b32 {sT1}, {sHS0}, 1")
    e(f"s_add_u32 {sT1}, {sT1}, {sC}")
    e(f"s_lshl_b32 {sT1}, {sT1}, 12")
    e(f"s_lshl_b32 {sT3}, {sRHO}, 11")
    e(f"s_add_u32 {sT1}, {sT1}, {sT3}")
    e(f"s_add_u32 {sT1}, {sT1}, {ST}")
    for j in range(2):
        g.wlg(("sr", j))
        g.vmem(f"buffer_store_dwordx4 {vr(136 + 4 * j, 4)}, v1, {SWS}, {sT1} offen offset:{1024 * j} sc1", "sst")
    e(f"v_min_u32 v{vFL + 5}, 26, v0")
    e(f"s_lshl_b32 {sT1}, {sXCD}, 7")
    e(f"s_add_u32 {sT1}, {sT1}, {HF}")
    e(f"v_lshl_add_u32 v{vFL + 5}, v{vFL + 5}, 2, {sT1}")
    e(f"s_cmp_lg_u32 {sRND}, 1")
    e("s_cbranch_scc1 L_nohp")
    poll_block(vFL + 5, False, vFL)
    g.lab("L_nohp")
    g.wall()
    e("s_barrier")
    e(f"s_cmp_lg_u32 {sW}, 0")
    e("s_cbranch_scc1 L_nosf")
    e(f"s_mul_i32 {sT1}, {sHS0}, 1639")
    e(f"s_lshr_b32 {sT1}, {sT1}, 16")
    e(f"s_mul_i32 {sT3}, {sT1}, 24")
    e(f"s_add_u32 {sT1}, {sT3}, {sHS0}")
    e(f"s_lshl_b32 {sT1}, {sT1}, 2")
    e(f"s_add_u32 {sT1}, {sT1}, {SF}")
    flag_store(sT1)
    g.lab("L_nosf")
    g.vm = []
    e(f"s_sub_u32 {sRND}, {sRND}, 1")
    e(f"s_cmp_lg_u32 {sRND}, 0")
    e("s_cbranch_scc1 L_round")
    stamp("g2_start")

    NB = 24
    HR = 128
    AC = [64, 84]
    e(f"s_mul_i32 {sT1}, {sW}, 14")
    e(f"s_cmp_eq_u32 {sW}, 3")
    e(f"s_cselect_b32 {sT3}, 1, 0")
    e(f"s_sub_u32 {sT1}, {sT1}, {sT3}")
    for k in range(4):
        e(f"s_add_u32 {sT2}, {sW}, {k + 1}")
        e(f"s_and_b32 {sT2}, {sT2}, 3")
        if k < 3:
            e(f"s_mul_i32 s{sEX + k}, {sT2}, 15360")
            e(f"s_add_u32 s{sEX + k}, s{sEX + k}, {EXB + 5120 * k}")
        e(f"s_lshl_b32 {sT3}, {sLT}, 2")
        e(f"s_add_u32 {sT2}, {sT2}, {sT3}")
        e(f"s_mul_i32 {sT2}, {sT2}, 54")
        e(f"s_add_u32 {sT2}, {sT2}, {sT1}")
        e(f"s_lshl_b32 {sT2}, {sT2}, 10")
        e(f"s_add_u32 s{sG2 + 4 * k}, {sT2}, {HB}")
        for q in range(1, 4):
            e(f"s_add_u32 s{sG2 + 4 * k + q}, s{sG2 + 4 * k}, {4096 * q}")

    def hload(i):
        k, st = divmod(i, 14)
        r = HR + 4 * (i % NB)
        if st == 13:
            def f():
                e(f"s_cmp_lt_u32 {sW}, 2")
                e(f"s_cselect_b32 {sT4}, s{sG2 + 4 * k + 3}, 0x7fff0000")
                g.vmem(f"buffer_load_dwordx4 {vr(r, 4)}, v1, {SWS}, {sT4} offen offset:1024 sc1", ("h", i))
            return f
        return ("vm", f"buffer_load_dwordx4 {vr(r, 4)}, v1, {SWS}, s{sG2 + 4 * k + st // 4} offen offset:{(st % 4) * 1024} sc1", ("h", i))
    for i in range(NB):
        g.do(hload(i))
    e(f"s_mov_b32 {sT2}, {0x100000000 // 10 + 1}")
    for kk in range(3):
        e(f"v_add_u32 v2, {64 * kk}, v0")
        e(f"v_mul_hi_u32 v3, v2, {sT2}")
        e("v_mul_u32_u24 v4, 10, v3")
        e("v_sub_u32 v4, v2, v4")
        e("v_mul_u32_u24 v3, 1280, v3")
        e(f"v_lshl_add_u32 v{16 + kk}, v4, 4, v3")
    e("v_mov_b32 v4, 0x7fffff00")
    e("v_cmp_lt_u32 vcc, 31, v0\ns_nop 1")
    e("v_cndmask_b32 v19, v18, v4, vcc")
    sXO = sHS1
    e(f"s_lshl_b32 {sXO}, {sLT}, 2")
    e(f"s_add_u32 {sXO}, {sXO}, {sW}")
    e(f"s_mul_i32 {sXO}, {sXO}, {16 * 1280}")
    e(f"s_mul_i32 {sT2}, {sDT}, 160")
    e(f"s_add_u32 {sXO}, {sXO}, {sT2}")
    e(f"s_mul_i32 {sXM0}, {sW}, 3072")
    e(f"s_add_u32 {sXM0}, {sXM0}, {XTB}")
    for kk in range(3):
        e(f"s_add_u32 m0, {sXM0}, {1024 * kk}")
        e("s_nop 0")
        g.vmem(f"buffer_load_dwordx4 v{16 + kk}, {SX}, {sXO} offen lds", "xt")
    e(f"v_min_u32 v{vFL + 5}, 39, v0")
    e(f"s_lshl_b32 {sT2}, {sDT}, 8")
    e(f"s_add_u32 {sT2}, {sT2}, {SF}")
    e(f"v_lshl_add_u32 v{vFL + 5}, v{vFL + 5}, 2, {sT2}")
    e("v_lshrrev_b32 v20, 3, v0")
    e("v_lshlrev_b32 v20, 12, v20")
    e("v_and_b32 v2, 7, v0")
    e("v_lshl_add_u32 v20, v2, 4, v20")
    for k in range(3):
        e(f"v_add_u32 v{21 + k}, s{sEX + k}, v1")
    for i in range(56):
        k, st = divmod(i, 14)
        A0 = AC[k & 1]
        g.wvm(("h", i))
        r = HR + 4 * (i % NB)
        extra = [[] for _ in range(5)]
        if st == 1 and k >= 1:
            pa = AC[(k - 1) & 1]
            for j in range(5):
                extra[j].append(("lds", f"ds_write_b128 v{21 + k - 1}, {vr(pa + 4 * j, 4)} offset:{1024 * j}", "exw"))
        if i == 40:
            extra[0].append(("vm", f"buffer_load_dword v{vFL}, v{vFL + 5}, {SWS}, 0 offen sc1", "sfp"))
        if i == 48:
            def sfchk():
                g.wvm("sfp")
                sl = g.newlab("Lslow")
                bk = g.newlab("Lback")
                e(f"v_cmp_ne_u32 vcc, {sTAG}, v{vFL}")
                e(f"s_cbranch_vccnz {sl}")
                g.lab(bk)
                g.slow.append((sl, bk, [(vFL + 5, False)]))
                e(f"s_mul_i32 {sT1}, {sDT}, 80")
                e(f"s_lshl_b32 {sT2}, {sW}, 3")
                e(f"s_add_u32 {sT1}, {sT1}, {sT2}")
                e(f"s_lshl_b32 {sT1}, {sT1}, 12")
                e(f"s_lshl_b32 {sT2}, {sLT}, 7")
                e(f"s_add_u32 {sT1}, {sT1}, {sT2}")
                e(f"s_add_u32 {sT1}, {sT1}, {ST}")
                e(f"s_lshl_b32 {sT2}, {sW}, 10")
                e(f"s_add_u32 {sT2}, {sT2}, {STB}")
                for j in range(3):
                    if j == 2:
                        e(f"s_cmp_lt_u32 {sW}, 2")
                        e(f"s_cselect_b32 {sT1}, {sT1}, 0x7fff0000")
                    e(f"s_add_u32 m0, {sT2}, {4096 * j}")
                    e(f"s_add_u32 {sT3}, {sT1}, {32 * 4096 * j}")
                    g.vmem(f"buffer_load_dwordx4 v20, {SWS}, {sT3} offen sc1 lds", "stl")
            extra[0].append(sfchk)
        for j in range(5):
            phi = st * 5 + j
            src = ar(4 * phi, 4) if phi < 64 else vr(vWDV + 4 * (phi - 64), 4)
            Cs = "0" if st == 0 else vr(A0 + 4 * j, 4)
            e(f"v_mfma_f32_16x16x32_bf16 {vr(A0 + 4 * j, 4)}, {src}, {vr(r, 4)}, {Cs}")
            for it in extra[j]:
                g.do(it)
        if i + NB < 56:
            g.do(hload(i + NB))
    stamp("g2_loop_end")
    g.wall()
    e("s_barrier")
    A0 = AC[1]
    e(f"s_mul_i32 {sT1}, {sW}, 15360")
    e(f"v_add_u32 v2, {sT1}, v1")
    for q in range(15):
        g.lds(f"ds_read_b128 {vr(128 + 4 * q, 4)}, v2 offset:{EXB + 1024 * q}", ("exr", q))
    e("v_lshrrev_b32 v3, 2, v0")
    e("v_lshlrev_b32 v3, 7, v3")
    e("v_and_b32 v4, 3, v0")
    e("v_lshl_add_u32 v3, v4, 3, v3")
    e(f"s_lshl_b32 {sT1}, {sW}, 5")
    e(f"s_add_u32 {sT1}, {sT1}, {STB}")
    e(f"v_add_u32 v3, {sT1}, v3")
    e("v_and_b32 v4, 15, v0")
    e("v_mul_u32_u24 v4, 160, v4")
    e("v_lshrrev_b32 v5, 4, v0")
    e("v_lshl_add_u32 v4, v5, 3, v4")
    e(f"v_add_u32 v4, {sXM0}, v4")
    for j in range(5):
        g.lds(f"ds_read_b64_tr_b16 {vr(192 + 2 * j, 2)}, v3 offset:{2048 * j}", ("s", j))
        g.lds(f"ds_read_b64 {vr(202 + 2 * j, 2)}, v4 offset:{32 * j}", ("x", j))
    for k in range(3):
        for j in range(5):
            g.wlg(("exr", 5 * k + j))
            for h in range(2):
                e(f"v_pk_add_f32 {vr(A0 + 4 * j + 2 * h, 2)}, {vr(A0 + 4 * j + 2 * h, 2)}, {vr(128 + 4 * (5 * k + j) + 2 * h, 2)}")
    e(f"s_mov_b32 {sT2}, {hex(f2u(-LOG2E))}")
    e(f"s_mov_b32 {sT3}, {hex(f2u(-LOG2E))}")
    E_ = 128
    for p in range(10):
        e(f"v_pk_mul_f32 {vr(E_ + 2 * p, 2)}, {vr(A0 + 2 * p, 2)}, s[56:57]")
    for p in range(20):
        e(f"v_exp_f32 v{E_ + p}, v{E_ + p}")
    g.wlg0()
    SU, XU = 152, 172
    for p in range(10):
        e(f"v_lshlrev_b32 v{SU + 2 * p}, 16, v{192 + p}")
        e(f"v_and_b32 v{SU + 2 * p + 1}, 0xffff0000, v{192 + p}")
    for p in range(10):
        e(f"v_pk_add_f32 {vr(E_ + 2 * p, 2)}, {vr(E_ + 2 * p, 2)}, 1.0 op_sel_hi:[1,0]")
    for p in range(20):
        e(f"v_rcp_f32 v{E_ + p}, v{E_ + p}")
    for p in range(10):
        e(f"v_pk_mul_f32 {vr(A0 + 2 * p, 2)}, {vr(A0 + 2 * p, 2)}, {vr(SU + 2 * p, 2)}")
    for p in range(10):
        e(f"v_lshlrev_b32 v{XU + 2 * p}, 16, v{202 + p}")
        e(f"v_and_b32 v{XU + 2 * p + 1}, 0xffff0000, v{202 + p}")
    for p in range(10):
        e(f"v_pk_fma_f32 {vr(A0 + 2 * p, 2)}, {vr(A0 + 2 * p, 2)}, {vr(E_ + 2 * p, 2)}, {vr(XU + 2 * p, 2)}")
    for p in range(10):
        e(f"v_cvt_pk_bf16_f32 v{192 + p}, v{A0 + 2 * p}, v{A0 + 2 * p + 1}")
    for j in range(5):
        g.lds(f"ds_write_b64 v4, {vr(192 + 2 * j, 2)} offset:{32 * j}", "ow")
    e(f"v_add_u32 v3, {sXM0}, v1")
    g.wlg0()
    for kk in range(3):
        g.lds(f"ds_read_b128 {vr(128 + 4 * kk, 4)}, v3 offset:{1024 * kk}", ("or", kk))
    for kk in range(3):
        g.wlg(("or", kk))
        g.vmem(f"buffer_store_dwordx4 {vr(128 + 4 * kk, 4)}, v{(16, 17, 19)[kk]}, {SOUT}, {sXO} offen", "out")
    if diag or dbgts:
        g.wvm0()
    stamp("end")
    g.lab("L_end")
    e("s_endpgm")
    for (sl, bk, lst) in g.slow:
        g.lab(sl)
        for (av, n4) in lst:
            poll_block(av, n4, vFL)
        e(f"s_branch {bk}")

    hdr = [f"; @launch grid=(256,1,1) block=(256,1,1) lds={LDS_TOTAL}",
           '.amdgcn_target "amdgcn-amd-amdhsa--gfx950"', ".text", f".globl {KNAME}", ".p2align 8",
           f".type {KNAME},@function", f"{KNAME}:"]
    ftr = ['.section .rodata,"a"', ".p2align 6", f".amdhsa_kernel {KNAME}",
           "  .amdhsa_next_free_vgpr 512", "  .amdhsa_next_free_sgpr 102", "  .amdhsa_accum_offset 256",
           "  .amdhsa_group_segment_fixed_size 0", "  .amdhsa_kernarg_size 112", "  .amdhsa_user_sgpr_count 2",
           "  .amdhsa_user_sgpr_kernarg_segment_ptr 1", "  .amdhsa_system_sgpr_workgroup_id_x 1",
           "  .amdhsa_float_denorm_mode_32 3",
           ".end_amdhsa_kernel"]
    return "\n".join(hdr + g.L + ftr) + "\n"


if __name__ == "__main__":
    diag = "--diag" in sys.argv
    out = [a for a in sys.argv[1:] if not a.startswith("--")]
    s = gen(diag=diag, dbgts="--dbgts" in sys.argv)
    path = out[0] if out else "recurrent_scan__ssm_conv_s4d__geglu_ffn__prompt.s"
    open(path, "w").write(s)
    print("wrote", path, len(s), "bytes", s.count("\n"), "lines")
```

```python
import sys, struct, math

KNAME = "recurrent_scan__ssm_conv_s4d__geglu_ffn__prompt_kernel"

EPOCH = 0x0
LNF = 0x1000
HF = 0x1400
SF = 0x2400
WF = 0x4400
STATS = 0x8000
XNT = 0x10000
ST = 0x290000
WDP = 0x510000
HB = 0x730000
CSP = 0xDF0000
WS_END = 0xE26000
TS_BASE = 0xE40000

SLOT = 49152
MISC = 147456
LNP = 1344
CSB = MISC + 10752 + 5120
XYP = 544
XYC = 64 * XYP
XYB = 0
PB = 0
UBASE = 69632
UC = 4608
RB = UBASE + 2 * UC
RCS = 4160
RC = 4 * RCS
TC = 2624
TB = MISC
YSO = 650 * 4
SOB = 16384
EXB = 24576
XTB = 112128
STB = XTB + 12288
LDS_TOTAL = 163840
OOB = 0x7fff0000

def f2u(x):
    return struct.unpack("<I", struct.pack("<f", x))[0]

LOG2E = 1.4426950408889634
C0 = -2.0 * math.sqrt(2.0 / math.pi) * LOG2E
C1 = C0 * 0.044715


class G:
    def __init__(self):
        self.L = []
        self.vm = []
        self.lg = []
        self.nlab = 0
        self.slow = []
        self.skip = set()
        self.pst = []
        self.sfree = [92, 100, 90, 88]

    def flush_stamps(self):
        for (sr, lane) in self.pst:
            self.e(f"v_writelane_b32 v127, s{sr}, {lane}")
            self.sfree.append(sr)
        self.pst = []

    def e(self, s):
        for ln in s.split("\n"):
            self.L.append("    " + ln)

    def lab(self, name):
        self.L.append(name + ":")

    def newlab(self, p="L"):
        self.nlab += 1
        return f"{p}_{self.nlab}"

    def vmem(self, s, tag=None):
        if tag in self.skip:
            return
        self.e(s)
        self.vm.append(tag)

    def lds(self, s, tag=None):
        self.e(s)
        self.lg.append(tag)

    def _n(self, q, tag):
        idx = max(i for i, t in enumerate(q) if t == tag)
        return idx, len(q) - idx - 1

    def wvm(self, tag):
        if tag not in self.vm:
            return
        idx, n = self._n(self.vm, tag)
        self.e(f"s_waitcnt vmcnt({min(n, 63)})")
        self.vm = self.vm[idx + 1:]

    def wlg(self, tag):
        if tag not in self.lg:
            return
        idx, n = self._n(self.lg, tag)
        self.e(f"s_waitcnt lgkmcnt({min(n, 15)})")
        self.lg = self.lg[idx + 1:]

    def wvm0(self):
        self.e("s_waitcnt vmcnt(0)")
        self.vm = []

    def wlg0(self):
        self.e("s_waitcnt lgkmcnt(0)")
        self.lg = []
        self.flush_stamps()

    def wall(self):
        self.e("s_waitcnt vmcnt(0) lgkmcnt(0)")
        self.vm = []
        self.lg = []
        self.flush_stamps()

    def nop(self, n):
        while n > 0:
            k = min(n, 16)
            self.e(f"s_nop {k - 1}")
            n -= k

    def do(self, item):
        if callable(item):
            item()
        elif isinstance(item, tuple):
            kind = item[0]
            if kind == "vm":
                self.vmem(item[1], item[2])
            elif kind == "lds":
                self.lds(item[1], item[2])
            elif kind == "wvm":
                self.wvm(item[1])
            elif kind == "wlg":
                self.wlg(item[1])
            else:
                raise ValueError(kind)
        else:
            self.e(item)


def vr(a, n):
    return f"v[{a}:{a + n - 1}]"


def ar(a, n):
    return f"a[{a}:{a + n - 1}]"


SX, SWG, SWU, SWS, SOUT, SWD = "s[4:7]", "s[8:11]", "s[12:15]", "s[16:19]", "s[20:23]", "s[24:27]"
P_LAR, P_AIM, P_CRE, P_CIM, P_LDT, P_DSK = "s[28:29]", "s[30:31]", "s[32:33]", "s[34:35]", "s[36:37]", "s[38:39]"
sW, sTAG, sM, sFT, sISG1, sCP, sRND, sSP = "s40", "s41", "s42", "s43", "s44", "s45", "s46", "s47"
sXCD, sQ = "s48", "s49"
sXM0, sWM0, sXS, sWSO = "s50", "s51", "s52", "s53"
sT0, sT1, sT2, sT3, sT4, sT5 = "s54", "s55", "s56", "s57", "s58", "s59"
sMASK, sCNT = "s60", "s61"
sRHO, sC = "s62", "s63"
sHS0, sHS1 = "s64", "s65"
sG2 = 66
STW = "s[96:99]"
sF0, sF1, sF2 = "s0", "s1", "s3"
sLT, sDT = "s82", "s83"
sWDS = "s84"
sPEND, sXO = "s85", "s86"
sKR = "s87"
sXT, sSTO = "s94", "s95"
sK0, sK1 = "s96", "s97"

vT = 2
vXO = 16
vWO = 24
vBA = 26
vAA = 34
vCS = 42
vHO = 44
vTO = 46
vSTA = 48
vU = 56
vAF = 64
vBF = 96
vPAR = 112
vFA = 118
vEP = 120
vFL = 122
vACC = 128
SC = 16
GA = 24
AST = 224
AS2 = 192
PKB = MISC
vWDV = 232


def gen(diag=False, opt=None):
    opt = opt or {}
    TOUCH = opt.get("touch", 0)
    P1 = opt.get("p1", 32)
    KCHK = opt.get("kchk", 29)
    g = G()
    e = g.e
    if opt.get('nolnst'):
        g.skip.add('lnst')
    ts_names = []
    vTAG, vL0 = vEP, vEP + 1

    def stamp(name, cyc=False, flush=False):
        if not diag:
            return
        if name not in ts_names:
            ts_names.append(name)
        i = ts_names.index(name)
        if not g.sfree:
            g.wlg0()
        sr = g.sfree.pop(0)
        e(f"{'s_memtime' if cyc else 's_memrealtime'} s[{sr}:{sr + 1}]")
        g.pst.append((sr, i))
        if flush:
            g.wlg0()

    def interleave(fn, units, every):
        n0 = len(g.L)
        fn()
        body = g.L[n0:]
        del g.L[n0:]
        cnt = 0
        for ln in body:
            g.L.append(ln)
            cnt += 1
            if units and cnt >= every:
                u = units[0]
                if isinstance(u, tuple) and u[0] == "m0":
                    e(u[1])
                    units.pop(0)
                    cnt = every - 1
                else:
                    g.do(u)
                    units.pop(0)
                    cnt = 0 if isinstance(u, tuple) else every - 1

    def align():
        e(".p2align 3")

    def red(op, v, t, full):
        for dpp in ("quad_perm:[1,0,3,2]", "quad_perm:[2,3,0,1]", "row_half_mirror", "row_mirror"):
            g.nop(2)
            e(f"{op} v{v}, v{v}, v{v} {dpp}")
        e(f"v_mov_b32 v{t}, v{v}")
        g.nop(2)
        e(f"v_permlane16_swap_b32 v{v}, v{t}")
        g.nop(1)
        e(f"{op} v{v}, v{v}, v{t}")
        if full:
            e(f"v_mov_b32 v{t}, v{v}")
            g.nop(2)
            e(f"v_permlane32_swap_b32 v{v}, v{t}")
            g.nop(1)
            e(f"{op} v{v}, v{v}, v{t}")

    def bf16round(v):
        e(f"v_cvt_pk_bf16_f32 v{v}, v{v}, v{v}")
        e(f"v_lshlrev_b32 v{v}, 16, v{v}")

    def check4(tmp):
        return [f"v_xor_b32 v{tmp}, v{vTAG}, v{tmp}", f"v_xor_b32 v{tmp + 1}, v{vTAG}, v{tmp + 1}",
                f"v_xor_b32 v{tmp + 2}, v{vTAG}, v{tmp + 2}", f"v_xor_b32 v{tmp + 3}, v{vTAG}, v{tmp + 3}",
                f"v_or3_b32 v{tmp}, v{tmp}, v{tmp + 1}, v{tmp + 2}", f"v_or_b32 v{tmp}, v{tmp}, v{tmp + 3}",
                f"v_cmp_ne_u32 vcc, 0, v{tmp}"]

    def poll_block(addr_v, n4, sleep=6):
        lp = g.newlab("Lpoll")
        dn = g.newlab("Lpd")
        tmp = vFL
        e(f"s_mov_b32 {sCNT}, 0x4000")
        g.lab(lp)
        if n4:
            e(f"buffer_load_dwordx4 {vr(tmp, 4)}, v{addr_v}, {SWS}, 0 offen sc1")
            e("s_waitcnt vmcnt(0)")
            for x in check4(tmp):
                e(x)
        else:
            e(f"buffer_load_dword v{tmp}, v{addr_v}, {SWS}, 0 offen sc1")
            e("s_waitcnt vmcnt(0)")
            e(f"v_cmp_ne_u32 vcc, v{vTAG}, v{tmp}")
        e(f"s_cbranch_vccz {dn}")
        e(f"s_sleep {sleep}")
        e(f"s_sub_u32 {sCNT}, {sCNT}, 1")
        e(f"s_cbranch_scc0 {lp}")
        g.lab(dn)

    def flag_store(soff):
        e(f"buffer_store_dword v{vTAG}, v{vL0}, {SWS}, {soff} offen sc1")

    def wd_load(phi):
        dst = ar(4 * phi, 4) if phi < 64 else vr(vWDV + 4 * (phi - 64), 4)
        pre = []
        if phi >= 65:
            if phi == 65 or phi == 68:
                pre.append(f"s_add_u32 {sT5}, {sWDS}, {(phi // 4) * 4096}")
                pre.append(f"s_cmp_lt_u32 {sW}, 2\ns_cselect_b32 {sT5}, {sT5}, {OOB}")
        elif phi % 4 == 0:
            pre.append(f"s_add_u32 {sT5}, {sWDS}, {(phi // 4) * 4096}")
        return pre + [("vm", f"buffer_load_dwordx4 {dst}, v1, {SWS}, {sT5} offen offset:{(phi % 4) * 1024} sc1", ("wd", phi))]

    def u_loads(cpreg, va):
        return [f"v_accvgpr_read_b32 v{va}, a{AS2 + 23}",
                f"s_mul_i32 {sF0}, {sW}, {64 * 10240}",
                f"s_lshl_b32 {sF1}, {cpreg}, 5",
                f"s_add_u32 {sF0}, {sF0}, {sF1}",
                f"s_add_u32 {sF0}, {sF0}, {XNT}",
                f"s_add_u32 {sF1}, {sF0}, {32 * 10240}",
                ("vm", f"buffer_load_dwordx4 {vr(vU, 4)}, v{va}, {SWS}, {sF0} offen sc1", "u"),
                ("vm", f"buffer_load_dwordx4 {vr(vU + 4, 4)}, v{va}, {SWS}, {sF1} offen sc1", "u")]

    def table_code():
        def put(i, src):
            e(f"v_lshl_add_u32 v{src}, v{src}, 2, {sF2}")
            e(f"v_accvgpr_write_b32 a{AST + i}, v{src}")
        e(f"s_mul_i32 {sF2}, {sC}, {TC}")
        e(f"s_add_u32 {sF2}, {sF2}, {TB + 4}")
        e("v_lshrrev_b32 v4, 4, v0")
        e(f"s_lshl_b32 {sF1}, {sRHO}, 2")
        e(f"v_add_u32 v4, {sF1}, v4")
        e("v_and_b32 v5, 15, v0")
        DUM = 645
        e("v_cmp_eq_u32 s[54:55], 2, v4")
        e("v_cmp_eq_u32 s[56:57], 3, v4")
        e("v_cmp_eq_u32 s[58:59], 4, v4")
        e("v_cmp_lt_u32 vcc, 4, v4")
        e("v_mov_b32 v6, 8")
        e("v_cndmask_b32 v6, v6, 4, s[54:55]")
        e("v_cndmask_b32 v6, v6, 2, s[56:57]")
        e("v_cndmask_b32 v6, v6, 1, s[58:59]")
        e("v_cndmask_b32 v6, v6, 0, vcc")
        e("v_mul_u32_u24 v7, v6, v5")
        e("v_lshlrev_b32 v8, 4, v6")
        for i in range(4):
            e(f"v_lshl_add_u32 v9, v4, 2, {i}")
            for sreg, val in (("s[54:55]", 256 + i), ("s[56:57]", 384 + 64 * (i >> 1) + (i & 1)), ("s[58:59]", 512 + 32 * i), ("vcc", DUM)):
                e(f"v_mov_b32 v10, {val}")
                e(f"v_cndmask_b32 v9, v9, v10, {sreg}")
            e("v_add_u32 v9, v9, v7")
            e("v_add_u32 v11, v9, v8")
            if i == 0:
                e("v_lshl_add_u32 v6, v4, 4, v5")
                e("v_mov_b32 v10, 80")
                e("v_cmp_eq_u32 s[60:61], v10, v6")
                e("v_mov_b32 v10, 640")
                e("s_nop 0")
                e("v_cndmask_b32 v9, v9, v10, s[60:61]")
            put(i, 9)
            put(4 + i, 11)
        e(f"s_lshl_b32 {sF1}, {sRHO}, 10")
        e(f"s_sub_u32 {sF1}, 2047, {sF1}")
        e("v_lshlrev_b32 v4, 3, v0")
        e(f"v_sub_u32 v4, {sF1}, v4")
        e(f"s_movk_i32 {sF1}, 128")
        for ch in range(2):
            for k in range(11):
                e(f"v_subrev_u32 v5, {512 * ch + k}, v4")
                e("v_max_i32 v6, 0, v5")
                e("v_cvt_f32_u32 v6, v6")
                e(f"v_med3_i32 v5, v5, -1, {sF1}")
                e("v_cvt_pk_bf16_f32 v6, v6, 0")
                e("v_subrev_u32 v6, 0x4280, v6")
                e("v_max_i32 v5, v5, v6")
                put(8 + 11 * ch + k, 5)

    def addr_items():
        it = []
        A = it.append
        def st(i, r):
            A(f"v_accvgpr_write_b32 a{AS2 + i}, v{r}")
        A(f"v_add_u32 v{vFA}, {LNF}, v1")
        A(f"s_mul_i32 {sF0}, {sC}, {XYC}")
        A(f"v_lshl_add_u32 v2, v0, 3, {sF0}")
        st(0, 2)
        A("v_and_b32 v12, 15, v0")
        A("v_lshrrev_b32 v13, 4, v0")
        A(f"v_mul_u32_u24 v2, {XYP}, v12")
        A("v_lshl_add_u32 v2, v13, 4, v2")
        A(f"v_add_u32 v3, {sF0}, v2")
        st(2, 3)
        A(f"s_mul_i32 {sF1}, {sRHO}, {16 * XYP}")
        A(f"v_add_u32 v3, {sF1}, v3")
        st(1, 3)
        A(f"s_mul_i32 {sF0}, {sC}, {UC}")
        A(f"s_lshl_b32 {sF1}, {sRHO}, 8")
        A(f"s_add_u32 {sF2}, {sF0}, {sF1}")
        A(f"s_add_u32 {sF2}, {sF2}, {UBASE}")
        A(f"v_add_u32 v2, {sF2}, v1")
        A(f"s_sub_u32 {sF2}, {sF0}, {sF1}")
        A(f"s_add_u32 {sF2}, {sF2}, {UBASE + 32 + 256}")
        A("v_lshlrev_b32 v14, 5, v12")
        A("v_lshl_add_u32 v3, v13, 4, v14")
        A(f"v_add_u32 v3, {sF2}, v3")
        st(8, 3)
        A("v_lshl_add_u32 v14, v13, 3, v14")
        A(f"s_lshl_b32 {sF2}, {sRHO}, 11")
        A(f"s_add_u32 {sF2}, {sF2}, {sF0}")
        A(f"s_add_u32 {sF2}, {sF2}, {UBASE + 512}")
        A(f"v_add_u32 v3, {sF2}, v14")
        st(11, 3)
        A(f"s_lshl_b32 {sF2}, {sW}, 11")
        A(f"s_add_u32 {sF2}, {sF2}, {SOB}")
        A(f"v_add_u32 v3, {sF2}, v14")
        st(12, 3)
        A(f"v_add_u32 v3, {sF2}, v1")
        st(13, 3)
        A(f"s_mul_i32 {sF0}, {sC}, {RC}")
        A(f"s_mul_i32 {sF2}, {sRHO}, {2 * RCS}")
        A(f"s_add_u32 {sF2}, {sF2}, {sF0}")
        A(f"s_add_u32 {sF2}, {sF2}, {RB + 4096}")
        A("v_bfe_u32 v3, v0, 1, 1")
        A(f"v_mul_u32_u24 v3, {RCS}, v3")
        A("v_and_b32 v15, 1, v0")
        A("v_lshl_add_u32 v3, v15, 4, v3")
        A(f"v_add_u32 v3, {sF2}, v3")
        A("v_cmp_lt_u32 vcc, 15, v0\ns_nop 1\nv_cndmask_b32 v2, v2, v3, vcc")
        st(3, 2)
        A(f"s_lshl_b32 {sF2}, {sRHO}, 11")
        A(f"s_add_u32 {sF2}, {sF2}, {sF0}")
        A(f"s_add_u32 {sF2}, {sF2}, {RB}")
        A(f"v_add_u32 v2, {sF2}, v1")
        st(4, 2)
        A("v_sub_u32 v2, 3, v12")
        A("v_and_b32 v2, 3, v2")
        A(f"v_mul_u32_u24 v2, {RCS}, v2")
        A("v_lshl_add_u32 v2, v13, 4, v2")
        A("v_and_b32 v3, 12, v12")
        A("v_lshlrev_b32 v3, 1, v3")
        A("v_sub_u32 v2, v2, v3")
        A(f"s_sub_u32 {sF2}, {sF0}, {sF1}")
        A(f"s_add_u32 {sF2}, {sF2}, {RB + 24 + 256}")
        A(f"v_add_u32 v2, {sF2}, v2")
        st(7, 2)
        A(f"v_mul_u32_u24 v2, {UC}, v15")
        A("v_lshrrev_b32 v3, 1, v0")
        A("v_lshl_add_u32 v2, v3, 4, v2")
        A(f"s_lshl_b32 {sF2}, {sW}, 10")
        A(f"s_add_u32 {sF2}, {sF2}, {UBASE + 512}")
        A(f"v_add_u32 v2, {sF2}, v2")
        st(5, 2)
        A("v_mul_u32_u24 v3, 10240, v3")
        A("v_lshl_add_u32 v3, v15, 4, v3")
        st(23, 3)
        A(f"s_mul_i32 {sF2}, {sC}, {TC}")
        A(f"s_add_u32 {sF2}, {sF2}, {TB}")
        A(f"v_mov_b32 v2, {sF2}")
        st(6, 2)
        A(f"s_lshl_b32 {sF2}, {sW}, 12")
        A(f"v_add_u32 v2, {sF2}, v1")
        st(9, 2)
        A("v_xor_b32 v2, 0x1000, v2")
        st(10, 2)
        A(f"s_mul_i32 {sF0}, {sW}, 14")
        A(f"s_cmp_eq_u32 {sW}, 3\ns_cselect_b32 {sF1}, 1, 0")
        A(f"s_sub_u32 {sF0}, {sF0}, {sF1}")
        A(f"s_mul_i32 {sF1}, {sDT}, 54")
        A(f"s_add_u32 {sF1}, {sF0}, {sF1}")
        A(f"s_mul_i32 {sF1}, {sF1}, 5120")
        A(f"s_add_u32 {sWDS}, {sF1}, {WDP}")
        for k in range(4):
            A(f"s_add_u32 {sF1}, {sW}, {k + 1}")
            A(f"s_and_b32 {sF1}, {sF1}, 3")
            if k < 3:
                A(f"s_mul_i32 {sF2}, {sF1}, 15360")
                A(f"s_add_u32 {sF2}, {sF2}, {EXB + 5120 * k}")
                A(f"v_add_u32 v2, {sF2}, v1")
                st(14 + k, 2)
            A(f"s_lshl_b32 {sF2}, {sLT}, 2")
            A(f"s_add_u32 {sF1}, {sF1}, {sF2}")
            A(f"s_mul_i32 {sF1}, {sF1}, 54")
            A(f"s_add_u32 {sF1}, {sF1}, {sF0}")
            A(f"s_lshl_b32 {sF1}, {sF1}, 10")
            A(f"s_add_u32 s{sG2 + 4 * k}, {sF1}, {HB}")
            for q in range(1, 4):
                A(f"s_add_u32 s{sG2 + 4 * k + q}, s{sG2 + 4 * k}, {4096 * q}")
        A(f"s_mov_b32 {sF0}, {0x100000000 // 10 + 1}")
        for kk in range(3):
            A(f"v_add_u32 v2, {64 * kk}, v0")
            A(f"v_mul_hi_u32 v3, v2, {sF0}")
            A("v_mul_u32_u24 v12, 10, v3")
            A("v_sub_u32 v12, v2, v12")
            A("v_mul_u32_u24 v3, 1280, v3")
            A("v_lshl_add_u32 v2, v12, 4, v3")
            st(17 + kk, 2)
        A(f"v_mov_b32 v3, {OOB}")
        A("v_cmp_lt_u32 vcc, 31, v0\ns_nop 1\nv_cndmask_b32 v2, v2, v3, vcc")
        st(20, 2)
        A(f"s_lshl_b32 {sXO}, {sLT}, 2")
        A(f"s_add_u32 {sXO}, {sXO}, {sW}")
        A(f"s_mul_i32 {sXO}, {sXO}, {16 * 1280}")
        A(f"s_mul_i32 {sF0}, {sDT}, 160")
        A(f"s_add_u32 {sXO}, {sXO}, {sF0}")
        A(f"s_mul_i32 {sXT}, {sW}, 3072")
        A(f"s_add_u32 {sXT}, {sXT}, {XTB}")
        A(f"s_mul_i32 {sSTO}, {sDT}, 80")
        A(f"s_lshl_b32 {sF0}, {sW}, 3")
        A(f"s_add_u32 {sSTO}, {sSTO}, {sF0}")
        A(f"s_lshl_b32 {sSTO}, {sSTO}, 12")
        A(f"s_lshl_b32 {sF0}, {sLT}, 7")
        A(f"s_add_u32 {sSTO}, {sSTO}, {sF0}")
        A(f"s_add_u32 {sSTO}, {sSTO}, {ST}")
        A(f"s_add_u32 {sF0}, {sF0}, {HF}")
        A("v_min_u32 v2, 26, v0")
        A(f"v_lshl_add_u32 v2, v2, 2, {sF0}")
        st(21, 2)
        A(f"s_lshl_b32 {sF0}, {sDT}, 10")
        A(f"s_add_u32 {sF0}, {sF0}, {SF}")
        A("v_min_u32 v2, 39, v0")
        A(f"v_lshl_add_u32 v2, v2, 4, {sF0}")
        st(22, 2)
        return it

    e("s_cmp_ge_u32 s2, 256")
    e("s_cbranch_scc1 L_end")
    e("s_load_dwordx2 s[4:5], s[0:1], 0")
    e("s_load_dwordx2 s[16:17], s[0:1], 104")
    e("s_load_dwordx2 s[8:9], s[0:1], 64")
    e("s_load_dwordx2 s[12:13], s[0:1], 72")
    e("s_load_dwordx2 s[24:25], s[0:1], 80")
    e("s_load_dwordx4 s[28:31], s[0:1], 8")
    e("s_load_dwordx4 s[32:35], s[0:1], 24")
    e("s_load_dwordx4 s[36:39], s[0:1], 40")
    e("s_load_dwordx2 s[20:21], s[0:1], 88")
    e("v_lshrrev_b32 v2, 6, v0")
    e("v_and_b32 v0, 63, v0")
    e(f"v_readfirstlane_b32 {sW}, v2")
    e("v_lshlrev_b32 v1, 4, v0")
    e("s_mov_b32 s6, 2621440\ns_mov_b32 s7, 0x20000")
    e("s_mov_b32 s10, 2211840\ns_mov_b32 s11, 0x20000")
    e("s_mov_b32 s14, 2211840\ns_mov_b32 s15, 0x20000")
    e(f"s_mov_b32 s18, {WS_END}\ns_mov_b32 s19, 0x20000")
    e("s_mov_b32 s22, 2621440\ns_mov_b32 s23, 0x20000")
    e("s_mov_b32 s26, 2211840\ns_mov_b32 s27, 0x20000")
    e(f"s_and_b32 {sXCD}, s2, 7")
    e(f"s_lshr_b32 {sQ}, s2, 3")
    e(f"s_and_b32 {sT0}, {sXCD}, 1")
    e(f"s_lshr_b32 {sT1}, {sXCD}, 1")
    e(f"s_and_b32 {sT2}, {sQ}, 3")
    e(f"s_lshr_b32 {sT3}, {sQ}, 2")
    e(f"s_lshl_b32 {sM}, {sT0}, 2")
    e(f"s_add_u32 {sM}, {sM}, {sT2}")
    e(f"s_mul_i32 {sFT}, {sT1}, 7")
    e(f"s_add_u32 {sFT}, {sFT}, {sT3}")
    e(f"s_cmp_lt_u32 {sT3}, 7")
    e(f"s_cselect_b32 {sISG1}, 1, 0")
    e(f"s_cmp_lt_u32 {sFT}, 27")
    e(f"s_cselect_b32 {sISG1}, {sISG1}, 0")
    e(f"s_lshl_b32 {sT4}, {sXCD}, 2")
    e(f"s_add_u32 {sT4}, {sT4}, {sQ}")
    e(f"s_sub_u32 {sT4}, {sT4}, 28")
    e(f"s_lshl_b32 {sT5}, {sXCD}, 3")
    e(f"s_add_u32 {sT5}, {sT5}, {sQ}")
    e(f"s_sub_u32 {sT5}, {sT5}, 48")
    e(f"s_cmp_lt_u32 {sXCD}, 6")
    e(f"s_cselect_b32 {sSP}, {sT4}, {sT5}")
    e(f"s_mul_i32 {sT4}, {sM}, 27")
    e(f"s_add_u32 {sT4}, {sT4}, {sFT}")
    e(f"s_add_u32 {sT5}, {sSP}, 216")
    e(f"s_cmp_lg_u32 {sISG1}, 0")
    e(f"s_cselect_b32 {sCP}, {sT4}, {sT5}")
    e(f"s_cmp_lt_u32 {sSP}, 24")
    e(f"s_cselect_b32 {sRND}, 3, 2")
    e(f"s_cmp_lg_u32 {sISG1}, 0")
    e(f"s_cselect_b32 {sRND}, 1, {sRND}")
    e(f"s_and_b32 {sRHO}, {sW}, 1")
    e(f"s_lshr_b32 {sC}, {sW}, 1")
    e(f"s_lshl_b32 {sLT}, {sXCD}, 2")
    e(f"s_add_u32 {sLT}, {sLT}, {sT2}")
    e(f"s_mov_b32 {sDT}, {sT3}")
    e("v_lshrrev_b32 v2, 5, v0")
    e("v_mul_u32_u24 v2, 1280, v2")
    e("v_and_b32 v3, 31, v0")
    e("v_lshl_add_u32 v2, v3, 3, v2")
    e(f"s_lshl_b32 {sT0}, s2, 2")
    e(f"s_add_u32 {sT0}, {sT0}, {sW}")
    e(f"s_mul_i32 {sT0}, {sT0}, 2560")
    e(f"v_mov_b32 v{vL0}, {OOB}")
    e(f"v_writelane_b32 v{vL0}, 0, 0")
    e("v_lshlrev_b32 v10, 21, v0")
    e("v_lshrrev_b32 v4, 3, v0")
    e("v_and_b32 v5, 7, v0")
    e("v_lshrrev_b32 v6, 4, v0")
    e("v_mul_u32_u24 v7, 1280, v4")
    e("v_xor_b32 v8, v5, v6")
    e("v_xor_b32 v9, 4, v8")
    e(f"v_lshl_add_u32 v{vXO}, v8, 4, v7")
    e(f"v_lshl_add_u32 v{vXO + 1}, v9, 4, v7")
    e(f"v_add_u32 v{vXO + 1}, {8 * 1280 - 1024}, v{vXO + 1}")
    for i in range(2, 8):
        d = 16 * 1280 - 1024 * ((i & 3) - ((i - 2) & 3))
        e(f"v_add_u32 v{vXO + i}, {d}, v{vXO + i - 2}")
    e("v_mul_u32_u24 v7, 3456, v4")
    e("v_and_b32 v8, 1, v6")
    e("v_lshlrev_b32 v8, 2, v8")
    e("v_xor_b32 v8, v5, v8")
    e(f"v_lshl_add_u32 v{vWO}, v8, 4, v7")
    e(f"v_add_u32 v{vWO + 1}, {8 * 3456 - 1024}, v{vWO}")
    e(f"s_lshl_b32 {sXM0}, {sW}, 13")
    e(f"s_add_u32 {sXM0}, {sXM0}, 16384")
    e(f"s_lshl_b32 {sWM0}, {sW}, 11")
    e(f"s_lshl_b32 {sXS}, {sM}, 2")
    e(f"s_add_u32 {sXS}, {sXS}, {sW}")
    e(f"s_mul_i32 {sXS}, {sXS}, {64 * 1280}")
    e(f"s_mul_i32 {sWSO}, {sW}, {16 * 3456}")
    e(f"s_lshl_b32 {sT1}, {sFT}, 7")
    e(f"s_add_u32 {sWSO}, {sWSO}, {sT1}")
    if diag:
        e("v_mov_b32 v127, 0")
    e("v_mul_u32_u24 v116, 17280, v4")
    e("v_lshl_add_u32 v116, v5, 4, v116")
    e(f"s_lshl_b32 {sHS0}, {sM}, 1")
    e(f"s_add_u32 {sHS0}, {sHS0}, {sRHO}")
    e(f"s_mul_i32 {sHS0}, {sHS0}, {40 * 3456}")
    e(f"s_add_u32 {sHS0}, {sHS0}, {sT1}")
    e("s_mov_b32 s98, 2211840\ns_mov_b32 s99, 0x20000")
    e("s_waitcnt lgkmcnt(0)")
    e(f"s_cmp_eq_u32 {sC}, 0")
    e("s_cselect_b32 s96, s8, s12")
    e("s_cselect_b32 s97, s9, s13")
    stamp("start")
    LX = 128
    for q in range(5):
        g.vmem(f"buffer_load_dwordx2 {vr(LX + 2 * q, 2)}, v2, {SX}, {sT0} offen offset:{256 * q}", "ln")
    g.vmem(f"buffer_load_dword v{vTAG}, v{vL0}, {SWS}, 0 offen sc1", "ln")

    def dma_units(stage):
        sb = (stage % 3) * SLOT
        out = []
        for mat in range(2):
            out.append(("m0", f"s_add_u32 m0, {sWM0}, {sb + mat * 8192}"))
            for half in range(2):
                o = f" offset:{1024 * half}" if half else ""
                out.append(("vm", f"buffer_load_dwordx4 v{vWO + half}, {SWG if mat == 0 else SWU}, {sWSO} offen{o} lds", ("dma", stage)))
        for i in range(8):
            if i % 4 == 0:
                out.append(("m0", f"s_add_u32 m0, {sXM0}, {sb + i * 1024}"))
            o = f" offset:{1024 * (i & 3)}" if i & 3 else ""
            out.append(("vm", f"buffer_load_dwordx4 v{vXO + i}, {SX}, {sXS} offen{o} lds", ("dma", stage)))
        out.append(f"s_add_u32 {sXS}, {sXS}, 128")
        out.append(f"s_add_u32 {sWSO}, {sWSO}, {64 * 3456}")
        return out

    def dma_block(stage):
        for u in dma_units(stage):
            if isinstance(u, tuple) and u[0] == "m0":
                e(u[1])
                e("s_nop 0")
            else:
                g.do(u)

    APAR = 160
    def param_units(rnd):
        out = [f"s_add_u32 {sT2}, {sCP}, {40 * rnd}", f"s_min_u32 {sT2}, {sT2}, 319",
               f"s_lshl_b32 {sT1}, {sT2}, 1", f"s_add_u32 {sT1}, {sT1}, {sC}", f"s_lshl_b32 {sT1}, {sT1}, 8",
               f"v_lshl_add_u32 v12, v0, 2, {sT1}", f"s_lshl_b32 {sT1}, {sT2}, 2", f"v_mov_b32 v13, {sT1}"]
        for k, p in enumerate((P_LAR, P_AIM, P_CRE, P_CIM)):
            out.append(("vm", f"global_load_dword a{APAR + 8 * rnd + k}, v12, {p}", "par"))
        out.append(("vm", f"global_load_dword a{APAR + 8 * rnd + 4}, v13, {P_LDT}", "par"))
        out.append(("vm", f"global_load_dword a{APAR + 8 * rnd + 5}, v13, {P_DSK}", "par"))
        return out

    n0 = len(g.vm)
    g.vmem(f"buffer_load_dword v{vFL}, v10, {SWS}, 0 offen", "tlb")
    g.vmem(f"buffer_load_dword v{vFL + 1}, v10, {SOUT}, 0 offen", "tlb")
    e(f"s_cmp_eq_u32 {sISG1}, 0")
    e("s_cbranch_scc1 L_sp_tab")
    u0 = dma_units(0)
    interleave(table_code, u0, opt.get("pe0", 8))
    assert not u0
    for it in param_units(0):
        g.do(it)
    e(f"s_waitcnt vmcnt({len(g.vm) - n0})")
    e("s_branch L_lnw_done")
    g.lab("L_sp_tab")
    vm_g1 = list(g.vm)
    for r3 in range(3):
        for it in param_units(r3):
            g.do(it)
    table_code()
    e("s_waitcnt vmcnt(20)")
    g.lab("L_lnw_done")
    g.vm = vm_g1[n0:]
    stamp("ln_data")
    F, S, Dv, SO, UO = 140, 160, 164, 184, 188
    def ln_code():
        for q in range(10):
            e(f"v_lshlrev_b32 v{F + 2 * q}, 16, v{LX + q}")
            e(f"v_and_b32 v{F + 2 * q + 1}, 0xffff0000, v{LX + q}")
        e(f"v_readfirstlane_b32 {sTAG}, v{vTAG}")
        e(f"v_pk_add_f32 {vr(S, 2)}, {vr(F, 2)}, {vr(F + 2, 2)}")
        e(f"v_pk_add_f32 {vr(S + 2, 2)}, {vr(F + 4, 2)}, {vr(F + 6, 2)}")
        for q in range(4, 10, 2):
            e(f"v_pk_add_f32 {vr(S, 2)}, {vr(S, 2)}, {vr(F + 2 * q, 2)}")
            e(f"v_pk_add_f32 {vr(S + 2, 2)}, {vr(S + 2, 2)}, {vr(F + 2 * q + 2, 2)}")
        e(f"v_pk_add_f32 {vr(S, 2)}, {vr(S, 2)}, {vr(S + 2, 2)}")
        e(f"s_mul_i32 {sTAG}, {sTAG}, 1664525")
        e(f"s_add_u32 {sTAG}, {sTAG}, 1013904223")
        e(f"v_add_f32 v{S}, v{S}, v{S + 1}")
        red("v_add_f32", S, S + 1, False)
        e(f"v_mul_f32 v{S}, {hex(f2u(1.0 / 640))}, v{S}")
        e(f"v_mov_b32 v{vTAG}, {sTAG}")
        for q in range(10):
            e(f"v_pk_add_f32 {vr(Dv + 2 * q, 2)}, {vr(F + 2 * q, 2)}, {vr(S, 2)} op_sel_hi:[1,0] neg_lo:[0,1] neg_hi:[0,1]")
        e(f"v_pk_mul_f32 {vr(S + 2, 2)}, {vr(Dv, 2)}, {vr(Dv, 2)}")
        e(f"v_pk_mul_f32 {vr(S + 24, 2)}, {vr(Dv + 2, 2)}, {vr(Dv + 2, 2)}")
        for q in range(2, 10):
            r = S + 2 if q % 2 == 0 else S + 24
            e(f"v_pk_fma_f32 {vr(r, 2)}, {vr(Dv + 2 * q, 2)}, {vr(Dv + 2 * q, 2)}, {vr(r, 2)}")
        e(f"v_pk_add_f32 {vr(S + 2, 2)}, {vr(S + 2, 2)}, {vr(S + 24, 2)}")
        e(f"v_add_f32 v{S + 2}, v{S + 2}, v{S + 3}")
        red("v_add_f32", S + 2, S + 3, False)
        e(f"v_mul_f32 v{S + 2}, {hex(f2u(1.0 / 640))}, v{S + 2}")
        bf16round(S + 2)
        e(f"v_add_f32 v{S + 2}, {hex(f2u(1e-5))}, v{S + 2}")
        bf16round(S + 2)
        e(f"v_sqrt_f32 v{S + 2}, v{S + 2}")
        bf16round(S)
        bf16round(S + 2)
        e(f"v_rcp_f32 v{S + 3}, v{S + 2}")
        e(f"v_sub_f32 v{SO}, 0, v{S}")
        e(f"v_mul_f32 v{SO + 3}, v{S + 2}, v{S + 2}")
        e(f"v_mul_f32 v{S + 1}, v{S + 3}, v{S + 3}")
        e(f"v_mul_f32 v{SO + 2}, {hex(f2u(C0))}, v{S + 3}")
        e(f"v_mul_f32 v{S + 1}, v{S + 1}, v{S + 3}")
        e(f"v_mul_f32 v{S + 2}, v{SO}, v{S + 3}")
        e(f"v_mul_f32 v{SO + 1}, {hex(f2u(C1))}, v{S + 1}")
        for q in range(10):
            e(f"v_pk_fma_f32 {vr(Dv + 2 * q, 2)}, {vr(F + 2 * q, 2)}, {vr(S + 2, 2)}, {vr(S + 2, 2)} op_sel:[0,1,0] op_sel_hi:[1,1,0]")
        for q in range(10):
            e(f"v_cvt_pk_f16_f32 v{UO + q}, v{Dv + 2 * q}, v{Dv + 2 * q + 1}")
        e("v_lshrrev_b32 v2, 5, v0")
        e(f"v_mul_u32_u24 v2, {LNP}, v2")
        e("v_and_b32 v3, 31, v0")
        e("v_lshl_add_u32 v2, v3, 3, v2")
        e(f"s_mul_i32 {sT1}, {sW}, {2 * LNP}")
        e(f"s_add_u32 {sT1}, {sT1}, {MISC}")
        e(f"v_add_u32 v2, {sT1}, v2")
        for q in range(5):
            g.lds(f"ds_write_b64 v2, {vr(UO + 2 * q, 2)} offset:{256 * q}", "lnw")
        e("v_lshrrev_b32 v4, 1, v0")
        e(f"v_mov_b32 v5, {OOB}")
        e("v_cmp_ne_u32 vcc, 0, v3")
        e(f"s_lshl_b32 {sT1}, s2, 2")
        e(f"s_add_u32 {sT1}, {sT1}, {sW}")
        e("v_cndmask_b32 v4, v4, v5, vcc")
        e(f"s_lshl_b32 {sT1}, {sT1}, 5")
        e(f"s_add_u32 {sT1}, {sT1}, {STATS}")
        e("v_bfe_u32 v6, v0, 2, 2")
        e(f"v_mul_u32_u24 v2, {LNP}, v6")
        e("v_lshrrev_b32 v3, 4, v0")
        e("v_lshl_add_u32 v2, v3, 5, v2")
        e("v_and_b32 v7, 3, v0")
        e("v_lshl_add_u32 v2, v7, 3, v2")
        e(f"s_lshl_b32 {sT2}, {sW}, 7")
        e(f"s_add_u32 {sT2}, {sT2}, {MISC}")
        e(f"v_add_u32 v2, {sT2}, v2")

    e(f"s_cmp_eq_u32 {sISG1}, 0")
    e("s_cbranch_scc1 L_sp_ln")
    u1 = dma_units(1)
    CSR = [56, 60, 112, 52, 116]
    for j5 in range(5):
        if j5 in (1, 3):
            pass
        o = (j5 % 2) * 3456
        if j5 in (2, 4):
            u1.append(f"s_add_u32 {sHS0}, {sHS0}, {2 * 3456}")
        u1.append(("vm", f"buffer_load_dwordx4 {vr(CSR[j5], 4)}, v116, {STW}, {sHS0} offen offset:{o}", ("csl", j5)))
    lg0 = list(g.lg)
    interleave(ln_code, u1, opt.get("pe1", 8))
    assert not u1, len(u1)
    e("s_branch L_ln_done")
    g.lab("L_sp_ln")
    g.lg = lg0
    ln_code()
    g.lab("L_ln_done")
    g.vmem(f"buffer_store_dwordx4 {vr(SO, 4)}, v4, {SWS}, {sT1} offen sc1", "lnst")
    g.wlg0()
    e("s_barrier")
    TR = 200
    for j in range(3):
        for h in range(2):
            g.lds(f"ds_read_b64_tr_b16 {vr(TR + 4 * j + 2 * h, 2)}, v2 offset:{512 * j + 4 * LNP * h}", ("lntr", j))
    e(f"s_mul_i32 {sT1}, s2, 10240")
    e(f"s_lshl_b32 {sT2}, {sW}, 10")
    e(f"s_add_u32 {sT1}, {sT1}, {sT2}")
    e(f"s_add_u32 {sT1}, {sT1}, {XNT}")
    e(f"s_add_u32 {sT2}, {sT1}, 4096")
    e(f"s_add_u32 {sT3}, {sT1}, 8192")
    e(f"s_cmp_lt_u32 {sW}, 2")
    e(f"s_cselect_b32 {sT3}, {sT3}, {OOB}")
    for j, so in enumerate((sT1, sT2, sT3)):
        g.wlg(("lntr", j))
        g.vmem(f"buffer_store_dwordx4 {vr(TR + 4 * j, 4)}, v1, {SWS}, {so} offen sc1", "lnst")
    stamp("ln_done", flush=True)
    e(f"s_cmp_eq_u32 {sISG1}, 0")
    e("s_cbranch_scc1 L_spare")

    e("v_and_b32 v2, 31, v0")
    e("v_lshrrev_b32 v3, 5, v0")
    e("v_bfe_u32 v4, v0, 1, 3")
    e("v_xor_b32 v4, v4, v3")
    e(f"v_lshl_add_u32 v2, v2, 7, {sXM0}")
    for ks in range(4):
        e(f"v_xor_b32 v5, {2 * ks}, v4")
        e(f"v_lshl_add_u32 v{vBA + ks}, v5, 4, v2")
        e(f"v_add_u32 v{vBA + 4 + ks}, {2 * SLOT}, v{vBA + ks}")
    e("v_lshl_add_u32 v2, v3, 3, v6")
    e("v_lshlrev_b32 v2, 7, v2")
    e("v_bfe_u32 v4, v0, 4, 1")
    e("v_lshl_add_u32 v2, v4, 5, v2")
    e("v_lshl_add_u32 v2, v7, 3, v2")
    e("v_lshrrev_b32 v3, 1, v6")
    e(f"v_xor_b32 v3, {sRHO}, v3")
    e(f"s_lshl_b32 {sT1}, {sC}, 13")
    e("v_lshl_add_u32 v2, v3, 6, v2")
    e(f"v_add_u32 v{vAA}, {sT1}, v2")
    e(f"v_xor_b32 v{vAA + 1}, 64, v{vAA}")
    e(f"v_xor_b32 v{vAA + 2}, 0x2000, v{vAA}")
    e(f"v_xor_b32 v{vAA + 3}, 0x2000, v{vAA + 1}")
    for i in range(4):
        e(f"v_add_u32 v{vAA + 4 + i}, {2 * SLOT}, v{vAA + i}")
    e(f"s_mov_b32 {sMASK}, 0xffff0000")

    def touch_setup():
        return [f"s_lshr_b32 {sF0}, {sQ}, 2", f"s_mul_i32 {sF0}, {sF0}, 10", f"v_add_u32 v2, {sF0}, v0",
                "v_min_u32 v2, 63, v2", "v_mul_u32_u24 v2, 1280, v2", f"v_mov_b32 v3, {OOB}",
                f"v_cmp_lt_u32 vcc, 9, v0\ns_nop 1\nv_cndmask_b32 v{vTO}, v2, v3, vcc",
                f"s_and_b32 {sF0}, {sQ}, 3", f"s_lshl_b32 {sF0}, {sF0}, 1", f"s_add_u32 {sF0}, {sF0}, {sRHO}",
                f"s_lshl_b32 {sF0}, {sF0}, 3", f"s_lshl_b32 {sF1}, {sW}, 4", f"s_sub_u32 {sF0}, {sF0}, {sF1}",
                f"s_add_u32 {sF0}, {sF0}, 64", f"v_add_u32 v2, {sF0}, v0", "v_mul_u32_u24 v2, 3456, v2",
                f"v_cmp_lt_u32 vcc, 7, v0\ns_nop 1\nv_cndmask_b32 v{vTO + 1}, v2, v3, vcc",
                ]

    def touch_units(ahead):
        return [f"s_add_u32 {sT4}, {sXS}, {128 * ahead}",
                ("vm", f"buffer_load_dword v{vFL + 4}, v{vTO}, {SX}, {sT4} offen", "touch"),
                f"s_add_u32 {sT4}, {sWSO}, {64 * 3456 * (ahead - 1)}" if ahead >= 1 else f"s_sub_u32 {sT4}, {sWSO}, {64 * 3456}",
                ("vm", f"buffer_load_dword v{vFL + 4}, v{vTO + 1}, {STW}, {sT4} offen", "touch")]

    def frag_reads(k):
        stage, ks = divmod(k, 4)
        sl = stage % 3
        st4 = 4 if sl == 2 else 0
        so = 0 if sl == 2 else sl * SLOT
        A = vAF + 16 * (k & 1)
        B = vBF + 8 * (k & 1)
        def bread(b):
            return ("lds", f"ds_read_b128 {vr(B + 4 * b, 4)}, v{vBA + st4 + ks} offset:{so + 4096 * b}", ("B", k, b))
        def aread(t, h):
            return ("lds", f"ds_read_b64_tr_b16 {vr(A + 4 * t + 2 * h, 2)}, v{vAA + st4 + t} offset:{so + ks * 2048 + h * 512}", ("A", k, t))
        return [bread(0), aread(0, 0), aread(0, 1), bread(1), aread(1, 0), aread(1, 1), aread(2, 0), aread(2, 1), aread(3, 0), aread(3, 1)]

    g.wvm(("dma", 0))
    e("s_barrier")
    stamp("g1_start")
    stamp("c_g1s", cyc=True)
    for it in frag_reads(0):
        g.do(it)

    PACE = opt.get("pace", 2)
    NG = 320
    gaps = [[] for _ in range(NG)]
    head = [[] for _ in range(NG)]
    pre = {}
    vq_big = []

    sq = []
    def add_group(units, earliest, small=False):
        vq = sq if small else vq_big
        prel = []
        for u in units:
            if isinstance(u, tuple) and u[0] == "m0":
                prel.append(u[1])
            elif isinstance(u, tuple) or callable(u):
                vq.append([earliest, prel, u, []])
                prel = []
            else:
                prel.append(u)
        if prel:
            vq[-1][3] += prel

    def Bgap(s):
        return 32 * s - 8

    PKV = 48
    pk_fill = [f"s_mov_b32 {sF0}, {0x100000000 // 20 + 1}", f"s_lshl_b32 {sF1}, {sW}, 6"]
    for i3 in range(3):
        pk_fill += [f"v_add_u32 v2, {sF1}, v0"] + ([f"v_add_u32 v2, {256 * i3}, v2"] if i3 else []) + [
            f"v_mul_hi_u32 v3, v2, {sF0}", "v_mul_u32_u24 v12, 20, v3", "v_sub_u32 v12, v2, v12",
            "v_mul_u32_u24 v3, 1280, v3", f"v_lshl_add_u32 v{PKV + i3}, v12, 4, v3"]
    pk_fill += [f"s_lshr_b32 {sHS0}, {sCP}, 2", f"s_and_b32 {sHS1}, {sCP}, 3",
                f"s_mul_i32 {sT2}, {sHS0}, 40960", f"s_mul_i32 {sF0}, {sHS1}, 320", f"s_add_u32 {sT2}, {sT2}, {sF0}",
                f"s_lshl_b32 {sT3}, {sW}, 10"]
    pk_fill2 = ["v_lshrrev_b32 v2, 5, v0", "v_bfe_u32 v3, v0, 2, 2", "v_lshl_add_u32 v2, v2, 4, v3", "v_bfe_u32 v3, v0, 4, 1",
                "v_lshl_add_u32 v2, v3, 2, v2", "v_mul_u32_u24 v2, 320, v2", "v_and_b32 v3, 3, v0", "v_lshl_add_u32 v2, v3, 3, v2",
                f"s_lshl_b32 {sF0}, {sW}, 5", f"s_add_u32 {sF0}, {sF0}, {PKB}", f"v_add_u32 v{PKV + 3}, {sF0}, v2"]
    PDR = [56, 60, 8]
    pk_dma = []
    for i3 in range(3):
        if i3 == 2:
            pk_dma.append(f"s_cmp_lt_u32 {sW}, 2\ns_cselect_b32 {sT2}, {sT2}, {OOB}")
        pk_dma += [("m0", f"s_add_u32 m0, {sT3}, {PKB + 4096 * i3}"),
                   ("vm", f"buffer_load_dwordx4 v{PKV + i3}, {SWD}, {sT2} offen lds", "pkd")]
    pk_st = []
    for i3 in range(3):
        pk_st += [f"s_mul_i32 {sT2}, {sHS1}, 10\ns_add_u32 {sT2}, {sT2}, {sW}\ns_add_u32 {sT2}, {sT2}, {4 * i3}",
                  f"s_mul_i32 {sT3}, {sT2}, 13108\ns_lshr_b32 {sT3}, {sT3}, 16\ns_mul_i32 {sT3}, {sT3}, 265\ns_add_u32 {sT2}, {sT2}, {sT3}",
                  f"s_mul_i32 {sT3}, {sHS0}, 5\ns_add_u32 {sT2}, {sT2}, {sT3}\ns_lshl_b32 {sT2}, {sT2}, 10\ns_add_u32 {sT2}, {sT2}, {WDP}"]
        if i3 == 2:
            pk_st.append(f"s_cmp_lt_u32 {sW}, 2\ns_cselect_b32 {sT2}, {sT2}, {OOB}")
        pk_st.append(("vm", f"buffer_store_dwordx4 {vr(PDR[i3], 4)}, v1, {SWS}, {sT2} offen sc1", "pks"))
    lnflag = [f"s_lshl_b32 {sT1}, s2, 2\ns_add_u32 {sT1}, {sT1}, {LNF}\ns_cmp_eq_u32 {sW}, 0\ns_cselect_b32 {sT1}, {sT1}, {OOB}",
              lambda: flag_store(sT1)]
    wfflag = [f"s_lshl_b32 {sT1}, {sHS1}, 6\ns_add_u32 {sT1}, {sT1}, {sHS0}\ns_lshl_b32 {sT1}, {sT1}, 2\ns_add_u32 {sT1}, {sT1}, {WF}",
              f"s_cmp_eq_u32 {sW}, 0\ns_cselect_b32 {sT1}, {sT1}, {OOB}", lambda: flag_store(sT1)]

    add_group(dma_units(2), opt.get("d2", 8))
    add_group(pk_dma, 20)
    for st_ in range(1, 8):
        add_group(dma_units(st_ + 2), Bgap(st_) + (opt.get("d5", 12) if st_ == 3 else 0))
        if st_ == 2:
            add_group(pk_st, Bgap(2) + 8)
    G0 = 8 * KCHK + 4
    for phi in range(P1):
        add_group(wd_load(phi), G0)
    vsched = []
    occ = set()
    def place(q, pace):
        last = -pace
        for (ear, prel, vmi, post) in q:
            gq = max(ear, last + pace)
            while gq in occ:
                gq += 1
            assert gq < NG - 1, gq
            occ.add(gq)
            gaps[gq - 1] += prel
            head[gq].append(vmi)
            gaps[gq] = post + gaps[gq]
            last = gq
            vsched.append((gq, vmi[2] if isinstance(vmi, tuple) else "flag"))
    place(vq_big, PACE)
    def gap_of(tag):
        return max(gq for gq, t in vsched if t == tag)
    for st_ in range(1, 8):
        ge = gap_of(("dma", st_ + 2)) + 2
        if st_ == 2:
            add_group([f"s_lshl_b32 {sT1}, {sFT}, 1\ns_add_u32 {sT1}, {sT1}, {sC}\ns_lshl_b32 {sT1}, {sT1}, 3\ns_add_u32 {sT1}, {sT1}, {sM}",
                       f"s_lshl_b32 {sT1}, {sT1}, 1\ns_add_u32 {sT1}, {sT1}, {sRHO}\ns_lshl_b32 {sT1}, {sT1}, 8\ns_add_u32 {sT1}, {sT1}, {CSP}",
                       ("vm", f"buffer_store_dwordx2 {vr(4, 2)}, v6, {SWS}, {sT1} offen sc1", "pks")], gap_of("pks") + 1, True)
            add_group(lnflag, gap_of("pks") + 1, True)
        if st_ == 4:
            add_group(wfflag, ge - 1, True)
        if st_ == 5:
            add_group([("vm", f"buffer_load_dwordx4 {vr(vFL, 4)}, v{vFA}, {SWS}, 0 offen sc1", "poll"),
                       ("vm", f"buffer_load_dword v{PKV}, v{vFA + 1}, {SWS}, 0 offen sc1", "poll")], 8 * KCHK - 22, True)
        if TOUCH and st_ + TOUCH <= 9:
            if st_ == 1:
                for a in range(0, TOUCH - 3):
                    add_group(touch_units(a), ge, True)
            add_group(touch_units(TOUCH - 3), ge, True)
        if st_ == 6 and opt.get('wtouch'):
            for t3 in range(3):
                add_group([f"s_and_b32 {sT4}, {sLT}, 3\ns_mul_i32 {sT4}, {sT4}, {140 * 128}\ns_add_u32 {sT4}, {sT4}, {sWDS}" if t3 == 0 else f"s_add_u32 {sT4}, {sT4}, {48 * 128}",
                           ("vm", f"buffer_load_dword v{vFL + 4}, v{PKV + 1}, {SWS}, {sT4} offen sc1", "wtouch")], 8 * KCHK + 4 + 4 * t3, True)
    add_group([f"s_lshl_b32 {sT1}, {sFT}, 1\ns_add_u32 {sT1}, {sT1}, {sC}\ns_lshl_b32 {sT1}, {sT1}, 5\ns_add_u32 {sT1}, {sT1}, {sRHO}",
               f"s_lshl_b32 {sT1}, {sT1}, 7\ns_add_u32 {sT1}, {sT1}, {CSP}",
               ("vm", f"buffer_load_dwordx4 {vr(4, 4)}, v{vCS}, {SWS}, {sT1} offen sc1", "csp"),
               ("vm", f"buffer_load_dwordx4 {vr(8, 4)}, v{vCS}, {SWS}, {sT1} offen offset:2048 sc1", "csp")], G0, True)
    add_group([f"s_lshl_b32 {sT1}, {sM}, 2\ns_add_u32 {sT1}, {sT1}, {sW}\ns_lshl_b32 {sT1}, {sT1}, 10\ns_add_u32 {sT1}, {sT1}, {STATS}",
               ("vm", f"buffer_load_dwordx4 {vr(vSTA, 4)}, v15, {SWS}, {sT1} offen sc1", "stats"),
               ("vm", f"buffer_load_dwordx4 {vr(vSTA + 4, 4)}, v15, {SWS}, {sT1} offen offset:512 sc1", "stats")], G0, True)
    add_group(u_loads(sCP, 3), G0, True)
    place(sq, 1)
    vsched.sort()
    if opt.get("v"):
        print(vsched)
    assert all(gap_of(("dma", st_)) < Bgap(st_) - 20 for st_ in range(2, 10))
    assert gap_of("pkd") < Bgap(2) and gap_of("pks") < Bgap(4) - 16 and gap_of("poll") < 8 * KCHK - 6

    for i3 in range(3):
        for h in range(2):
            gaps[Bgap(2) + 5 + i3].append(("lds", f"ds_read_b64_tr_b16 {vr(PDR[i3] + 2 * h, 2)}, v{PKV + 3} offset:{128 * i3 + 8 * 320 * h}", "pk"))
    c4 = check4(vFL)
    gaps[8 * KCHK] += [("wvm", "poll")] + c4[0:2]
    gaps[8 * KCHK + 1] += c4[2:5]
    def chk():
        sl = g.newlab("Lslow")
        bk = g.newlab("Lback")
        e(f"v_xor_b32 v{PKV}, v{vTAG}, v{PKV}")
        e(f"v_or3_b32 v{vFL}, v{vFL}, v{vFL + 3}, v{PKV}")
        e(c4[6])
        e(f"s_cbranch_vccnz {sl}")
        g.lab(bk)
        g.slow.append((sl, bk, [(vFA, True), (vFA + 1, False)]))
    gaps[8 * KCHK + 2].insert(0, chk)

    CA = [4, 5, 6, 7, 42, 43, 44, 45]
    csum = []
    for j5 in range(5):
        csum.append(("wvm", ("csl", j5)))
        for d in range(4):
            r = CSR[j5] + d
            if j5 == 0:
                csum += [f"v_lshlrev_b32 v{CA[2 * d]}, 16, v{r}", f"v_and_b32 v{CA[2 * d + 1]}, {sMASK}, v{r}"]
            else:
                csum += [f"v_lshlrev_b32 v8, 16, v{r}", f"v_and_b32 v9, {sMASK}, v{r}",
                         f"v_add_f32 v{CA[2 * d]}, v{CA[2 * d]}, v8", f"v_add_f32 v{CA[2 * d + 1]}, v{CA[2 * d + 1]}, v9"]
    csum += ["s_nop 1"]
    csum += [f"v_permlane32_swap_b32 v{CA[c]}, v{CA[c + 4]}" for c in range(4)]
    csum += [f"v_add_f32 v{CA[c]}, v{CA[c]}, v{CA[c + 4]}" for c in range(4)]
    csum += ["s_nop 1"]
    csum += [f"v_permlane16_swap_b32 v{CA[c]}, v{CA[c + 2]}" for c in range(2)]
    csum += ["s_nop 0"]
    csum += [f"v_add_f32 v{CA[c]}, v{CA[c]}, v{CA[c + 2]}" for c in range(2)]
    csum += ["v_and_b32 v6, 7, v0", "v_lshlrev_b32 v6, 5, v6"]
    csum += [f"v_add_f32 v{CA[c]}, v{CA[c]}, v{CA[c]} row_ror:8" for c in range(2)]
    csum += ["v_lshrrev_b32 v7, 4, v0", "v_lshl_add_u32 v6, v7, 3, v6", f"v_mov_b32 v7, {OOB}",
             "v_and_b32 v8, 8, v0", "v_cmp_ne_u32 vcc, 0, v8\ns_nop 1\nv_cndmask_b32 v6, v6, v7, vcc"]
    fillq = pk_fill + (touch_setup() if TOUCH else []) + pk_fill2[:11]
    n_a = len(fillq)
    fillq += csum
    n_csum = len(fillq)
    n_early = len(pk_fill)
    fillq += pk_fill2[11:]
    n_early2 = len(fillq)
    fillq += [f"v_min_u32 v2, 53, v0", f"s_lshr_b32 {sF0}, {sDT}, 1", f"s_lshl_b32 {sF0}, {sF0}, 8",
              f"s_add_u32 {sF0}, {sF0}, {WF}", f"v_lshl_add_u32 v2, v2, 2, {sF0}",
              "v_and_b32 v3, 7, v0", "v_mul_u32_u24 v3, 27, v3", f"v_add_u32 v3, {sFT}, v3", "v_and_b32 v12, 3, v3",
              "v_lshrrev_b32 v3, 2, v3", "v_lshl_add_u32 v3, v12, 6, v3", "v_lshlrev_b32 v3, 2, v3", f"v_add_u32 v3, {WF}, v3",
              f"v_cmp_lt_u32 vcc, 55, v0\ns_nop 1\nv_cndmask_b32 v{vFA + 1}, v2, v3, vcc"]
    ai = addr_items()
    iw = max(i for i, x in enumerate(ai) if sWDS + "," in x)
    i0 = min(i for i, x in enumerate(ai) if f"{sF0}, {sW}, 14" in x)
    fillq += [ai[0]] + ai[i0:iw + 1] + [f"v_min_u32 v2, 47, v0", f"v_lshlrev_b32 v{PKV + 1}, 7, v2"]
    n_mid = len(fillq)
    fillq += ai[1:i0] + ai[i0:i0 + 3] + ai[iw + 1:]
    fillq += ["v_bfe_u32 v2, v0, 4, 1", f"v_mul_u32_u24 v2, {54 * 1024}, v2", "v_lshrrev_b32 v3, 5, v0",
              "v_lshl_add_u32 v2, v3, 8, v2", "v_and_b32 v12, 15, v0", "v_lshl_add_u32 v2, v12, 4, v2",
              f"s_lshl_b32 {sF0}, {sRHO}, 10", f"v_add_u32 v{vHO}, {sF0}, v2", f"s_xor_b32 {sF0}, {sF0}, 1024",
              f"v_add_u32 v{vHO + 1}, {sF0}, v2", f"s_lshl_b32 {sF0}, {sRHO}, 7", f"s_add_u32 {sF0}, {sF0}, {CSB}",
              f"v_lshl_add_u32 v13, v3, 4, {sF0}", "v_xor_b32 v14, 128, v13",
              "v_and_b32 v2, 7, v0", "v_lshlrev_b32 v12, 4, v2", "v_lshl_add_u32 v12, v3, 3, v12", "v_bfe_u32 v3, v0, 4, 1",
              "v_lshl_add_u32 v12, v3, 2, v12", f"s_lshl_b32 {sF0}, {sW}, 7", f"s_add_u32 {sF0}, {sF0}, {CSB}",
              f"v_add_u32 v12, {sF0}, v12", "v_lshrrev_b32 v3, 3, v0", "v_lshlrev_b32 v3, 8, v3", f"v_lshl_add_u32 v{vCS}, v2, 4, v3",
              "v_and_b32 v15, 31, v0", "v_lshlrev_b32 v15, 4, v15"]
    tail_fill = [f"s_lshl_b32 {sHS0}, {sM}, 2", f"s_add_u32 {sHS0}, {sHS0}, {sW}", f"s_lshl_b32 {sPEND}, {sHS0}, 5",
                 f"s_mul_i32 {sHS0}, {sHS0}, {4 * 54}", f"s_lshl_b32 {sT2}, {sFT}, 1", f"s_add_u32 {sHS0}, {sHS0}, {sT2}",
                 f"s_lshl_b32 {sHS0}, {sHS0}, 10", f"s_add_u32 {sHS0}, {sHS0}, {HB}", f"s_add_u32 {sHS1}, {sHS0}, {2 * 54 * 1024}",
                 f"s_add_u32 {sPEND}, {sPEND}, {sFT}", f"s_lshl_b32 {sPEND}, {sPEND}, 2", f"s_add_u32 {sPEND}, {sPEND}, {HF}"]
    cs_fill = [("wvm", "csp")] + [f"v_add_f32 v{4 + c}, v{4 + c}, v{8 + c}" for c in range(4)] + ["s_nop 0",
               "v_permlane32_swap_b32 v4, v6", "v_permlane32_swap_b32 v5, v7", "s_nop 0", "v_add_f32 v4, v4, v6", "v_add_f32 v5, v5, v7",
               "s_nop 1", "v_permlane16_swap_b32 v4, v5", "s_nop 0", "v_add_f32 v4, v4, v5", "s_nop 1",
               "v_add_f32 v4, v4, v4 row_ror:8", ("lds", "ds_write_b32 v12, v4", "csw")]
    nf_total = len(fillq)

    def cost(it):
        if isinstance(it, str):
            return it.count("\n") + 1
        return 1
    CAP = opt.get("cap", 4)
    for k in range(40):
        stage, ks = divmod(k, 4)
        A = vAF + 16 * (k & 1)
        B = vBF + 8 * (k & 1)
        gk = [head[8 * k + i] + gaps[8 * k + i] for i in range(8)]
        body = [[] for _ in range(8)]
        if k + 1 < 40:
            for i, it in enumerate(frag_reads(k + 1)):
                body[i // 2].append(it)
        if k == 39:
            for j in range(4):
                body[2 + j // 2].append(("lds", f"ds_read_b128 {vr(64 + 4 * j, 4)}, v13 offset:{32 * j}", "cs0"))
            for j in range(4):
                dst = (4 + 4 * j) if j < 2 else (96 + 4 * (j - 2))
                body[4 + j // 2].append(("lds", f"ds_read_b128 {vr(dst, 4)}, v13 offset:{256 + 32 * j}", "cs0"))
        else:
            load = [sum(map(cost, gk[i])) + len(body[i]) + (1 if i in (3, 7) else 0) for i in range(8)]
            q = fillq if fillq else tail_fill
            if k == KCHK:
                q = []
            if k in (33, 34) and cs_fill:
                q = cs_fill
            cap = CAP + (1 if k < 10 else 0)
            for i in range(8):
                while q and load[i] + cost(q[0]) <= cap + (2 if cost(q[0]) > 1 else 0):
                    it = q.pop(0)
                    body[i].append(it)
                    load[i] += cost(it)
            if k == 2:
                assert nf_total - len(fillq) >= n_early, (nf_total - len(fillq), n_early)
            if k == 5:
                assert nf_total - len(fillq) >= n_a
            if k == 6:
                assert nf_total - len(fillq) >= n_a + 30
            if k == 9:
                assert nf_total - len(fillq) >= n_csum
            if k == 13:
                assert nf_total - len(fillq) >= n_early2
            if k == KCHK - 4:
                assert nf_total - len(fillq) >= n_mid
            if 8 * k + 8 > gap_of("stats") - 4:
                assert not fillq, (k, len(fillq))
            if k < 17:
                assert len(tail_fill) == 12
        if ks == 3 and stage < 9:
            stamp(f"c_w{stage + 1}", cyc=True)
            g.wlg0()
            if stage == 1:
                g.wvm("lnst")
                g.wvm("pkd")
            if stage == 3:
                g.wvm("pks")
            g.wvm(("dma", stage + 1))
            e("s_barrier")
            stamp(f"c_b{stage + 1}", cyc=True)
        for i in range(8):
            t, b = divmod(i, 2)
            if k == 0:
                g.wlg(("A", k, t))
                g.wlg(("B", k, b))
            elif i == 0:
                g.wlg(("A", k, 1))
            elif i == 4:
                g.wlg(("A", k, 3))
            D = vACC + 16 * (2 * t + b)
            Cs = "0" if k == 0 else vr(D, 16)
            e(f"v_mfma_f32_32x32x16_bf16 {vr(D, 16)}, {vr(A + 4 * t, 4)}, {vr(B + 4 * b, 4)}, {Cs}")
            for it in head[8 * k + i]:
                if isinstance(it, tuple) and it[2] == "pks":
                    g.wlg("pk")
                g.do(it)
            for it in body[i] + gaps[8 * k + i]:
                g.do(it)
    assert not tail_fill and not cs_fill
    stamp("c_g1e", cyc=True)
    stamp("g1_loop_end", flush=True)

    def csu0(i):
        return (4 + i) if i < 8 else (96 + i - 8)
    def csu1(i):
        return (104 + i) if i < 8 else (28 + i - 8)
    tmps = [24, 26, 36, 38]
    g.wvm("stats")
    g.wlg("cs0")
    e(f"s_cmp_lg_u32 {sC}, 0")
    e("s_cbranch_scc1 L_epiB")
    vm_save, lg_save = list(g.vm), list(g.lg)
    for variant in range(2):
        if variant == 1:
            align()
            g.lab("L_epiB")
            g.vm, g.lg = list(vm_save), list(lg_save)
        align()
        for ap in range(2):
            for b in range(2):
                gs, us = (ap, 2 + ap) if variant == 0 else (2 + ap, ap)
                Gt = vACC + 16 * (2 * gs + b)
                Ut = vACC + 16 * (2 * us + b)
                st = vSTA + 4 * b
                if ap == 0 and b == 1:
                    for j in range(4):
                        g.lds(f"ds_read_b128 {vr(80 + 4 * j, 4)}, v14 offset:{32 * j}", "cs1")
                    for j in range(4):
                        dst = (104 + 4 * j) if j < 2 else (28 + 4 * (j - 2))
                        g.lds(f"ds_read_b128 {vr(dst, 4)}, v14 offset:{256 + 32 * j}", "cs1")
                if ap == 1 and b == 0:
                    g.wlg("cs1")
                    align()
                csg = (lambda i: 64 + i) if ap == 0 else (lambda i: 80 + i)
                csu = csu0 if ap == 0 else csu1
                for c in range(2):
                    O = 16 if c == 0 else 20
                    ps = range(4 * c, 4 * c + 4)
                    for p in ps:
                        e(f"v_pk_fma_f32 {vr(Gt + 2 * p, 2)}, {vr(csg(2 * p), 2)}, {vr(st, 2)}, {vr(Gt + 2 * p, 2)} op_sel_hi:[1,0,1]")
                    for p in ps:
                        e(f"v_pk_mul_f32 {vr(tmps[p % 4], 2)}, {vr(Gt + 2 * p, 2)}, {vr(Gt + 2 * p, 2)}")
                    for p in ps:
                        t = tmps[p % 4]
                        e(f"v_pk_fma_f32 {vr(t, 2)}, {vr(t, 2)}, {vr(st, 2)}, {vr(st + 2, 2)} op_sel:[0,1,0] op_sel_hi:[1,1,0]")
                    for p in ps:
                        t = tmps[p % 4]
                        e(f"v_pk_mul_f32 {vr(t, 2)}, {vr(t, 2)}, {vr(Gt + 2 * p, 2)}")
                    for p in ps:
                        t = tmps[p % 4]
                        e(f"v_exp_f32 v{t}, v{t}")
                        e(f"v_exp_f32 v{t + 1}, v{t + 1}")
                    for p in ps:
                        e(f"v_pk_fma_f32 {vr(Ut + 2 * p, 2)}, {vr(csu(2 * p), 2)}, {vr(st, 2)}, {vr(Ut + 2 * p, 2)} op_sel_hi:[1,0,1]")
                    for p in ps:
                        t = tmps[p % 4]
                        e(f"v_pk_fma_f32 {vr(t, 2)}, {vr(t, 2)}, {vr(st + 2, 2)}, {vr(st + 2, 2)} op_sel:[0,1,1] op_sel_hi:[1,1,1]")
                    for p in ps:
                        t = tmps[p % 4]
                        e(f"v_rcp_f32 v{t}, v{t}")
                        e(f"v_rcp_f32 v{t + 1}, v{t + 1}")
                    for p in ps:
                        e(f"v_pk_mul_f32 {vr(Gt + 2 * p, 2)}, {vr(Gt + 2 * p, 2)}, {vr(Ut + 2 * p, 2)}")
                    for p in ps:
                        e(f"v_pk_mul_f32 {vr(Gt + 2 * p, 2)}, {vr(Gt + 2 * p, 2)}, {vr(tmps[p % 4], 2)}")
                    for p in ps:
                        e(f"v_cvt_pk_bf16_f32 v{O + p - 4 * c}, v{Gt + 2 * p}, v{Gt + 2 * p + 1}")
                    g.vmem(f"buffer_store_dwordx4 {vr(O, 4)}, v{vHO + ap}, {SWS}, {sHS0 if b == 0 else sHS1} offen offset:{512 * c} sc1", "hst")
        if variant == 0:
            e("s_branch L_epi_done")
    g.lab("L_epi_done")
    stamp("c_epe", cyc=True)
    stamp("g1_epi_end", flush=True)
    e(f"s_mov_b32 {sK1}, 1")
    e(f"s_mov_b32 {sMASK}, {OOB}")
    e("s_branch L_rb1")

    g.lab("L_spare")
    g.vm = []
    g.lg = []
    for it in addr_items():
        g.do(it)
    e("v_min_u32 v2, 53, v0")
    e(f"s_lshr_b32 {sF0}, {sDT}, 1")
    e(f"s_lshl_b32 {sF0}, {sF0}, 8")
    e(f"s_add_u32 {sF0}, {sF0}, {WF}")
    e(f"v_lshl_add_u32 v{vFA + 1}, v2, 2, {sF0}")
    e(f"s_mov_b32 {sK1}, {sRND}")
    e(f"s_lshl_b32 {sMASK}, s2, 2")
    e(f"s_add_u32 {sMASK}, {sMASK}, {LNF}")
    e(f"s_cmp_eq_u32 {sW}, 0")
    e(f"s_cselect_b32 {sMASK}, {sMASK}, {OOB}")
    e(f"s_mov_b32 {sPEND}, {OOB}")
    e("s_waitcnt vmcnt(4)")
    e("s_barrier")
    stamp("sp_ready", flush=True)

    g.lab("L_rb1")
    e(f"s_mov_b32 {sKR}, 0")
    for i in range(30):
        e(f"v_accvgpr_read_b32 v{SC + i}, a{AST + i}")
    AK = 46
    for i in range(8):
        e(f"v_accvgpr_read_b32 v{AK + i}, a{AS2 + 1 + i}")
    vKA_A, vKA_B, vZ, vRW, vUW, vYS, vFB, vGB = range(AK, AK + 8)

    g.lab("L_kgen")
    g.vm = []
    g.lg = []
    KA = 128
    WA = KA + 6
    for k6 in (4, 5, 0, 1, 2, 3):
        e(f"v_accvgpr_read_b32 v{vPAR + k6}, a{APAR + k6}")
    e(f"v_accvgpr_read_b32 v{WA}, a{AS2}")
    e(f"s_lshl_b32 {sT1}, {sC}, 4")
    e(f"v_lshrrev_b32 v{KA}, {sT1}, v{vPAR + 4}")
    e(f"v_lshlrev_b32 v{KA}, 16, v{KA}")
    e(f"v_mul_f32 v{KA}, {hex(f2u(LOG2E))}, v{KA}")
    e(f"v_exp_f32 v{KA}, v{KA}")
    e(f"v_lshrrev_b32 v{KA + 7}, {sT1}, v{vPAR + 5}")
    e(f"v_lshlrev_b32 v{KA + 7}, 16, v{KA + 7}")
    bf16round(KA)
    e(f"v_lshlrev_b32 v{KA + 2}, 16, v{vPAR}")
    e(f"v_and_b32 v{KA + 3}, 0xffff0000, v{vPAR}")
    e(f"v_mul_f32 v{KA + 2}, {hex(f2u(LOG2E))}, v{KA + 2}")
    e(f"v_mul_f32 v{KA + 3}, {hex(f2u(LOG2E))}, v{KA + 3}")
    e(f"v_exp_f32 v{KA + 2}, v{KA + 2}")
    e(f"v_exp_f32 v{KA + 3}, v{KA + 3}")
    e(f"v_lshlrev_b32 v{KA + 4}, 16, v{vPAR + 1}")
    e(f"v_and_b32 v{KA + 5}, 0xffff0000, v{vPAR + 1}")
    e(f"v_cvt_pk_bf16_f32 v{KA + 1}, v{KA + 2}, v{KA + 3}")
    CC = 152
    e(f"v_lshlrev_b32 v{CC}, 16, v{vPAR + 2}")
    e(f"v_lshlrev_b32 v{CC + 1}, 16, v{vPAR + 3}")
    e(f"v_and_b32 v{CC + 2}, 0xffff0000, v{vPAR + 2}")
    e(f"v_and_b32 v{CC + 3}, 0xffff0000, v{vPAR + 3}")
    e(f"v_lshlrev_b32 v{KA + 2}, 16, v{KA + 1}")
    e(f"v_and_b32 v{KA + 3}, 0xffff0000, v{KA + 1}")
    for m in range(2):
        e(f"v_mul_f32 v{KA + 2 + m}, v{KA + 2 + m}, v{KA}")
        e(f"v_mul_f32 v{KA + 4 + m}, v{KA + 4 + m}, v{KA}")
    for m in range(2):
        e(f"v_mul_f32 v{KA + 2 + m}, {hex(f2u(-LOG2E))}, v{KA + 2 + m}")
        e(f"v_mul_f32 v{KA + 4 + m}, {hex(f2u(1.0 / (2 * math.pi)))}, v{KA + 4 + m}")
    SIG, OMG = KA + 2, KA + 4

    def cexp(dst, p, t):
        for m in range(2):
            e(f"v_mul_f32 v{t + m}, {hex(f2u(float(p)))}, v{SIG + m}")
            e(f"v_mul_f32 v{t + 2 + m}, {hex(f2u(float(p)))}, v{OMG + m}")
        for m in range(2):
            e(f"v_fract_f32 v{t + 2 + m}, v{t + 2 + m}")
        for m in range(2):
            e(f"v_exp_f32 v{t + m}, v{t + m}")
            e(f"v_cos_f32 v{dst + 2 * m}, v{t + 2 + m}")
            e(f"v_sin_f32 v{dst + 2 * m + 1}, v{t + 2 + m}")
        e("s_nop 0")
        align()
        for m in range(2):
            e(f"v_pk_mul_f32 {vr(dst + 2 * m, 2)}, {vr(dst + 2 * m, 2)}, {vr(t, 2)} op_sel:[0,{m}] op_sel_hi:[1,{m}]")

    def cmul(dst, P, Q, t):
        for m in range(2):
            e(f"v_pk_mul_f32 {vr(t + 2 * m, 2)}, {vr(P + 2 * m, 2)}, {vr(Q + 2 * m, 2)} op_sel_hi:[0,1]")
        for m in range(2):
            e(f"v_pk_fma_f32 {vr(dst + 2 * m, 2)}, {vr(P + 2 * m, 2)}, {vr(Q + 2 * m, 2)}, {vr(t + 2 * m, 2)} op_sel:[1,1,0] op_sel_hi:[1,0,1] neg_lo:[0,1,0]")

    prow = [0]

    def put(src, row, neg, lastrow=False):
        o = 144 + 2 * (row % 4)
        ng = "-" if neg else ""
        if src is not None:
            e(f"v_cvt_pk_f16_f32 v{o}, v{src}, {ng}v{src + 1}")
            e(f"v_cvt_pk_f16_f32 v{o + 1}, v{src + 2}, {ng}v{src + 3}")
        if row % 2 == 1:
            o0 = ((row - 1) % 4) * 68
            g.lds(f"ds_write2_b64 v{WA}, {vr(o - 2, 2)}, {vr(o, 2)} offset0:{o0} offset1:{o0 + 68}", "xy")
            if row % 4 == 3:
                e(f"v_add_u32 v{WA}, {4 * XYP}, v{WA}")
        elif lastrow:
            g.lds(f"ds_write_b64 v{WA}, {vr(o, 2)} offset:{(row % 4) * XYP}", "xy")

    e(f"s_cmp_lg_u32 {sRHO}, 0")
    e("s_cbranch_scc1 L_role1")
    W8, YA, YB_, TM = 152, 156, 160, 136
    e(f"v_add_u32 v{WA}, {32 * XYP}, v{WA}")
    cexp(W8, 8, TM)
    e("v_mov_b32 v144, 0x3c00")
    e("v_mov_b32 v145, 0x3c00")
    put(W8, 33, False)
    cur = W8
    for j in range(2, 32):
        nxt = YA if cur != YA else YB_
        cmul(nxt, cur, W8, TM)
        put(nxt, 32 + j, False)
        cur = nxt
    e("s_branch L_kbar")
    align()
    g.lab("L_role1")
    MX = 136
    e(f"v_max_f32 v{MX}, |v{CC}|, |v{CC + 1}|")
    e(f"v_max3_f32 v{MX}, |v{CC + 2}|, |v{CC + 3}|, v{MX}")
    red("v_max_f32", MX, MX + 1, True)
    e(f"v_frexp_exp_i32_f32 v{MX}, v{MX}")
    e(f"v_add_f32 v{KA}, v{KA}, v{KA}")
    e(f"v_ldexp_f32 v{MX + 2}, v{KA}, v{MX}")
    e(f"v_mov_b32 v{MX + 3}, v{KA + 7}")
    e(f"v_sub_u32 v{MX}, 0, v{MX}")
    for i in range(4):
        e(f"v_ldexp_f32 v{CC + i}, v{CC + i}, v{MX}")
    e(f"v_add_u32 v{MX + 1}, {sKR}, v{vYS}")
    e(f"v_mov_b32 v{MX}, 0")
    g.lds(f"ds_write_b64 v{MX + 1}, {vr(MX + 2, 2)} offset:{YSO}", "xy")
    g.lds(f"ds_write_b32 v{MX + 1}, v{MX}", "xy")
    Z, Q, Q4 = 156, 160, 164
    cexp(Z, 1, TM)
    cexp(Q, 256, TM)
    cexp(Q4, 1024, TM)
    X = [168 + 4 * i for i in range(8)]
    X[0] = CC
    put(CC, 0, True)
    for s in range(1, 8):
        cmul(X[s], X[s - 1], Z, TM)
        put(X[s], s, True)
    R8 = [200 + 4 * i for i in range(4)]
    for s in range(4):
        cmul(R8[s], X[2 * s], Q, TM)
        put(R8[s], 8 + s, True)
    R12 = [216, 220]
    for s in range(2):
        cmul(R12[s], R8[2 * s], Q, TM)
        put(R12[s], 12 + s, True)
    for s in range(2):
        cmul(X[1 + 2 * s], R12[s], Q, TM)
        put(X[1 + 2 * s], 14 + s, True)
    cmul(R8[0], CC, Q4, TM)
    put(R8[0], 16, True)
    cmul(R8[1], R8[0], Q, TM)
    put(R8[1], 17, True)
    cmul(R8[3], R8[1], Q, TM)
    put(R8[3], 18, True)
    cmul(R8[1], R8[3], Q, TM)
    put(R8[1], 19, True)
    cmul(R8[2], R8[0], Q4, TM)
    put(R8[2], 20, True, lastrow=True)
    g.lab("L_kbar")
    e("v_mov_b32 v4, 0\nv_mov_b32 v5, 0\nv_mov_b32 v6, 0\nv_mov_b32 v7, 0")
    g.lds(f"ds_write_b128 v{vZ}, {vr(4, 4)}", "z")
    stamp("c_kve", cyc=True)
    stamp("kvalu_end")
    e("s_waitcnt vmcnt(0)")
    flag_store(sPEND)
    g.wlg0()
    e("s_barrier")
    flag_store(sMASK)
    e(f"s_mov_b32 {sMASK}, {OOB}")
    stamp("kbar", flush=True)
    KF = 64
    for ks in range(8):
        g.lds(f"ds_read_b128 {vr(KF + 4 * ks, 4)}, v{vKA_A} offset:{XYB + 64 * ks}", ("ka", ks))
        g.lds(f"ds_read_b128 {vr(128 + 4 * ks, 4)}, v{vKA_B} offset:{XYB + 32 * XYP + 64 * ks}", ("kb0", ks))
        g.lds(f"ds_read_b128 {vr(160 + 4 * ks, 4)}, v{vKA_B} offset:{XYB + 48 * XYP + 64 * ks}", ("kb1", ks))
    KD = 96
    for ks in range(8):
        g.wlg(("kb1", ks))
        e(f"v_mfma_f32_16x16x32_f16 {vr(KD, 4)}, {vr(KF + 4 * ks, 4)}, {vr(128 + 4 * ks, 4)}, {'0' if ks == 0 else vr(KD, 4)}")
        e(f"v_mfma_f32_16x16x32_f16 {vr(KD + 4, 4)}, {vr(KF + 4 * ks, 4)}, {vr(160 + 4 * ks, 4)}, {'0' if ks == 0 else vr(KD + 4, 4)}")
    e(f"s_sub_u32 {sK1}, {sK1}, 1")
    g.nop(6)
    for i in range(8):
        g.lds(f"ds_write_b32 v{SC + i}, v{KD + i}", "tw")
    e(f"s_cmp_eq_u32 {sK1}, 0")
    e("s_cbranch_scc1 L_kdone")
    e(f"s_add_u32 {sKR}, {sKR}, {2 * TC}")
    for i in range(8):
        e(f"v_add_u32 v{SC + i}, {2 * TC}, v{SC + i}")
    for i in range(6):
        e(f"v_accvgpr_mov_b32 a{APAR + i}, a{APAR + 8 + i}")
        e(f"v_accvgpr_mov_b32 a{APAR + 8 + i}, a{APAR + 16 + i}")
    e("s_waitcnt lgkmcnt(0)")
    e("s_barrier")
    e("s_branch L_kgen")
    g.lab("L_kdone")
    e(f"s_cmp_lg_u32 {sISG1}, 0")
    e("s_cbranch_scc1 L_conv_last")
    e(f"s_cmp_lg_u32 {sW}, 0")
    e("s_cbranch_scc1 L_sp_polled")
    poll_block(vFA, True, sleep=16)
    g.lab("L_sp_polled")
    e("s_barrier")
    e(f"s_mov_b32 {sK0}, {OOB}")
    for it in u_loads(sCP, 2):
        g.do(it)

    Greg = [[224 + 4 * i for i in range(8)], [192 + 4 * i for i in range(8)]]
    FB = [128, 160]
    CACC = 64
    HRING = [16 + 4 * i for i in range(12)] + [104 + 4 * i for i in range(3)] + [128 + 4 * i for i in range(26)]
    NE = opt.get("ne", 8)
    P2 = opt.get("p2", 40)
    NB = len(HRING)
    YS, DK = 100, 101

    def hload(i):
        k, st = divmod(i, 14)
        r = HRING[i % NB]
        if st == 13:
            return [f"s_cmp_lt_u32 {sW}, 2\ns_cselect_b32 {sT4}, s{sG2 + 4 * k + 3}, {OOB}",
                    ("vm", f"buffer_load_dwordx4 {vr(r, 4)}, v1, {SWS}, {sT4} offen offset:1024 sc1", ("h", i))]
        return [("vm", f"buffer_load_dwordx4 {vr(r, 4)}, v1, {SWS}, s{sG2 + 4 * k + st // 4} offen offset:{(st % 4) * 1024} sc1", ("h", i))]

    def conv(last):
        tag = "L" if last else "E"
        g.lab("L_conv_last" if last else "L_conv_early")
        g.vm = ["u", "u"]
        g.lg = ["tw"]
        def wd_e(phi):
            its = wd_load(phi)
            if len(its) > 1:
                its.insert(1, f"s_or_b32 {sT5}, {sT5}, {sK0}")
            return its
        if last:
            wq = [[f"s_add_u32 m0, {sXT}, {1024 * kk}", "s_nop 0",
                   ("vm", f"buffer_load_dwordx4 v{12 + kk}, {SX}, {sXO} offen lds", ("xt", 0))] for kk in range(3)]
            wq += [wd_load(phi) for phi in range(P1, 70)]
            for i7 in range(7):
                e(f"v_accvgpr_read_b32 v{9 + i7}, a{AS2 + 14 + i7}")
        else:
            wq = [wd_e(phi) for phi in range(0, P1)]
            g.vmem(f"buffer_load_dword v{vFL}, v{vFA + 1}, {SWS}, 0 offen sc1", "wfp")
        def wdl(n=1):
            for _ in range(n):
                if wq:
                    for it in wq.pop(0):
                        g.do(it)
        g.wlg0()
        e("s_barrier")
        EG = 128
        for ch in range(2):
            for k in range(11):
                g.lds(f"ds_read_b32 v{EG + 12 * ch + k}, v{GA + 11 * ch + k}", ("eg", ch))
        g.lds(f"ds_read_b64 {vr(YS, 2)}, v{vYS} offset:{YSO}", "ysc")
        if last:
            wdl(2)
        g.wvm("u")
        g.lds(f"ds_write_b128 v{vUW}, {vr(vU, 4)}", "uw")
        g.lds(f"ds_write_b128 v{vUW}, {vr(vU + 4, 4)} offset:512", "uw")
        if last:
            e(f"s_or_b32 {sT1}, s2, {sW}")
            e(f"s_cmp_eq_u32 {sT1}, 0")
            e(f"s_cselect_b32 {sT1}, {EPOCH}, {OOB}")
            flag_store(sT1)
        EO = 64
        for ch in range(2):
            g.wlg(("eg", ch))
            align()
            for s in range(4):
                o = EO + 16 * ch + 4 * s
                for j in range(4):
                    e(f"v_cvt_pk_f16_f32 v{o + j}, v{EG + 12 * ch + s + 2 * j}, v{EG + 12 * ch + s + 2 * j + 1}")
                g.lds(f"ds_write_b128 v{vRW}, {vr(o, 4)} offset:{s * RCS + 1024 * ch}", "rw")
                if last and s % 2 == 1:
                    wdl()
        if last:
            wdl()
        else:
            g.wvm("wfp")
            e(f"v_cmp_ne_u32 vcc, v{vTAG}, v{vFL}")
            e("s_nop 0")
            e("s_cmp_eq_u64 vcc, 0")
            e(f"s_cselect_b32 {sK0}, 0, {OOB}")
        extra = [f"v_accvgpr_read_b32 v{4 + i}, a{AS2 + 9 + i}" for i in range(5)]
        extra += [f"s_lshl_b32 {sT1}, {sCP}, 1", f"s_add_u32 {sT1}, {sT1}, {sC}", f"s_lshl_b32 {sT1}, {sT1}, 12",
                  f"s_lshl_b32 {sT3}, {sRHO}, 11", f"s_add_u32 {sT1}, {sT1}, {sT3}", f"s_add_u32 {sHS0}, {sT1}, {ST}",
                  f"s_mul_i32 {sT2}, {sCP}, 1639", f"s_lshr_b32 {sT2}, {sT2}, 16", f"s_mul_i32 {sT2}, {sT2}, 24",
                  f"s_add_u32 {sT2}, {sT2}, {sCP}", f"s_lshl_b32 {sT2}, {sT2}, 2", f"s_add_u32 {sT2}, {sT2}, {sW}",
                  f"s_lshl_b32 {sT2}, {sT2}, 2", f"s_add_u32 {sPEND}, {sT2}, {SF}"]
        if last:
            extra += [f"v_accvgpr_read_b32 v{vFA + i}, a{AS2 + 21 + i}" for i in range(2)]
            extra += ["v_min_u32 v3, 53, v0", "v_lshlrev_b32 v3, 7, v3",
                      f"s_lshl_b32 {sT0}, {sDT}, 2", f"s_add_u32 {sT0}, {sT0}, {sW}", f"s_mul_i32 {sT0}, {sT0}, {54 * 128}",
                      f"s_mul_i32 {sHS1}, {sLT}, {4 * 54 * 1024}", f"s_add_u32 {sHS1}, {sHS1}, {sT0}", f"s_add_u32 {sHS1}, {sHS1}, {HB}"]
        g.wlg0()
        e("s_barrier")
        stamp("c_cs" + tag, cyc=True)
        stamp("conv_start" + tag)

        def cls_reads(dl):
            bf = dl & 1
            out = []
            for s in range(8):
                out.append(("lds", f"ds_read_b128 {vr(Greg[bf][s], 4)}, v{vGB} offset:{512 * s + 64 * (3 - dl)}", ("G", dl, s)))
                off = 64 * (59 - dl - 8 * s)
                out.append(("lds", f"ds_read_b64 {vr(FB[bf] + 4 * s, 2)}, v{vFB} offset:{off}", ("F", dl, s)))
                out.append(("lds", f"ds_read_b64 {vr(FB[bf] + 4 * s + 2, 2)}, v{vFB} offset:{off + 8}", ("F", dl, s)))
            return out
        for it in cls_reads(0):
            g.do(it)
        order = sorted([(s, gg) for s in range(8) for gg in range(8) if s + gg < 8], key=lambda x: (max(x), x[0] + x[1]))
        seen = set()
        hq = []
        US, UD = 2, 96
        for dl in range(4):
            bf = dl & 1
            nxt = cls_reads(dl + 1) if dl < 3 else []
            if dl == 3:
                nxt = [("lds", f"ds_read_b64 {vr(128 + 2 * tt, 2)}, v6 offset:{512 * tt}", "us") for tt in range(4)]
                nxt += [None] * 6 + [("wlg", "us")]
                for tt in range(4):
                    for i in range(4):
                        src = 128 + 2 * tt + (i >> 1)
                        nxt.append(f"v_fma_mix_f32 v{136 + 4 * tt + i}, v{src}, v{DK}, 0 op_sel:[{i & 1},0,0] op_sel_hi:[1,0,0]")
            if dl > 0:
                g.wlg(("F", dl, 7))
            for mi, (s, gg) in enumerate(order):
                t = s + gg
                if dl == 0:
                    g.wlg(("G", dl, gg))
                    g.wlg(("F", dl, s))
                Cs = "0" if t not in seen else vr(CACC + 4 * t, 4)
                seen.add(t)
                e(f"v_mfma_f32_16x16x32_f16 {vr(CACC + 4 * t, 4)}, {vr(FB[bf] + 4 * s, 4)}, {vr(Greg[bf][gg], 4)}, {Cs}")
                start = 8 if dl == 0 else 1
                if mi >= start and nxt:
                    it = nxt.pop(0)
                    if it is not None:
                        g.do(it)
                elif extra:
                    g.do(extra.pop(0))
                if mi % 2 == 1 and extra and mi >= start:
                    g.do(extra.pop(0))
                mc = 36 * dl + mi
                if mc % 4 == 2:
                    nphi = wq[0][-1][2][1] if wq else 0
                    if last and mc == opt.get("hfp", 98):
                        assert not extra
                        g.vmem(f"buffer_load_dword v{vFL}, v{vFA}, {SWS}, 0 offen sc1", "hfp")
                    elif wq and not (last and extra and nphi >= 48) and not (nphi >= 64 and dl < 3):
                        wdl()
            assert not nxt, len(nxt)
        assert not wq and not extra, (len(wq), len(extra))
        if last:
            g.wvm("hfp")
            e(f"v_cmp_ne_u32 vcc, v{vTAG}, v{vFL}")
            e("s_nop 0")
            e("s_cmp_eq_u64 vcc, 0")
            e(f"s_cselect_b32 {sK1}, 1, 0")
            e(f"s_cselect_b32 {sT0}, 0, {OOB}")
            hq.append([f"s_or_b32 {sT4}, {sHS1}, {sT0}", ("vm", f"buffer_load_dword v{vFL + 4}, v3, {SWS}, {sT4} offen sc1", "ht")])
            for i in range(NE):
                pre_ = [f"s_or_b32 {sT4}, s{sG2 + i // 4}, {sT0}"] if i % 4 == 0 else []
                hq.append(pre_ + [("vm", f"buffer_load_dwordx4 {vr(HRING[i], 4)}, v1, {SWS}, {sT4} offen offset:{(i % 4) * 1024} sc1", ("he", i))])
        def hl(n=1):
            for _ in range(n):
                if hq:
                    for it in hq.pop(0):
                        g.do(it)
        hl(2)
        stamp("c_ce" + tag, cyc=True)
        stamp("conv_end" + tag)
        lr1 = g.newlab("Lfin1")
        lfd = g.newlab("Lfind")
        e(f"s_cmp_lg_u32 {sRHO}, 0")
        e(f"s_cbranch_scc1 {lr1}")
        lg_save, pst_save, sf_save = list(g.lg), list(g.pst), list(g.sfree)
        for rho in range(2):
            if rho == 1:
                g.lab(lr1)
                g.lg, g.pst, g.sfree = list(lg_save), list(pst_save), list(sf_save)
            own = CACC + 16 * rho
            oth = CACC + 16 * (1 - rho)
            g.nop(6)
            for tt in range(4):
                g.lds(f"ds_write_b128 v4, {vr(oth + 4 * tt, 4)} offset:{PB + 1024 * tt}", "pw")
            align()
            for tt in range(4):
                for i in range(4):
                    e(f"v_fma_f32 v{136 + 4 * tt + i}, v{own + 4 * tt + i}, v{YS}, v{136 + 4 * tt + i}")
            if rho == 0:
                e(f"s_branch {lfd}")
        g.lab(lfd)
        hl(1)
        g.wlg0()
        e("s_barrier")
        for tt in range(4):
            g.lds(f"ds_read_b128 {vr(152 + 4 * tt, 4)}, v5 offset:{PB + 1024 * tt}", ("pr", tt))
        hl(2)
        for tt in range(4):
            g.wlg(("pr", tt))
            for i in range(4):
                e(f"v_fmac_f32 v{136 + 4 * tt + i}, v{152 + 4 * tt + i}, v{YS}")
            for h in range(2):
                e(f"v_cvt_pk_bf16_f32 v{128 + 2 * tt + h}, v{136 + 4 * tt + 2 * h}, v{136 + 4 * tt + 2 * h + 1}")
            g.lds(f"ds_write_b64 v7, {vr(128 + 2 * tt, 2)} offset:{512 * tt}", "sw")
            if tt == 1:
                hl(1)
        hl(1)
        g.wlg0()
        for j in range(2):
            g.lds(f"ds_read_b128 {vr(88 + 4 * j, 4)}, v8 offset:{1024 * j}", ("sr", j))
        hl(2)
        assert not hq
        if not last:
            e(f"s_add_u32 {sCP}, {sCP}, 40")
            for i in range(22):
                e(f"v_add_u32 v{GA + i}, {2 * TC}, v{GA + i}")
            e(f"v_add_u32 v{vYS}, {2 * TC}, v{vYS}")
        for j in range(2):
            g.wlg(("sr", j))
            g.vmem(f"buffer_store_dwordx4 {vr(88 + 4 * j, 4)}, v1, {SWS}, {sHS0} offen offset:{1024 * j} sc1", "sst")
        if not last:
            for it in u_loads(sCP, 2):
                g.do(it)
            g.wvm("sst")
            flag_store(sPEND)
            e(f"s_sub_u32 {sRND}, {sRND}, 1")
            e(f"s_cmp_lg_u32 {sRND}, 1")
            e("s_cbranch_scc1 L_conv_early")
            e(f"s_cmp_eq_u32 {sK0}, 0")
            e("s_cbranch_scc1 L_conv_last")
            poll_block(vFA + 1, False, sleep=10)
            for phi in range(P1):
                for it in wd_load(phi):
                    e(it[1] if isinstance(it, tuple) else it)

    conv(False)
    conv(True)

    e(f"s_cmp_lg_u32 {sK1}, 0")
    e("s_cbranch_scc1 L_hready")
    poll_block(vFA, False)
    e(f"buffer_load_dword v{vFL + 4}, v3, {SWS}, {sHS1} offen sc1")
    for i in range(NE):
        for it in hload(i):
            e(it[1] if isinstance(it, tuple) else it)
    g.lab("L_hready")
    stamp("c_g2s", cyc=True)
    stamp("g2_start")
    g.vm = [("h", i) for i in range(NE)]
    AC = [64, 84]
    lateq = [hload(i) for i in range(NE, NB)]
    fq = ["v_lshrrev_b32 v8, 3, v0", "v_lshlrev_b32 v8, 12, v8", "v_and_b32 v2, 7, v0", "v_lshl_add_u32 v8, v2, 4, v8",
          f"s_mul_i32 {sT1}, {sW}, 15360", f"v_add_u32 v2, {sT1}, v1",
          "v_lshrrev_b32 v3, 2, v0", "v_lshlrev_b32 v3, 7, v3", "v_and_b32 v4, 3, v0", "v_lshl_add_u32 v3, v4, 3, v3",
          f"s_lshl_b32 {sT1}, {sW}, 5", f"s_add_u32 {sT1}, {sT1}, {STB}", f"v_add_u32 v3, {sT1}, v3",
          "v_and_b32 v4, 15, v0", "v_mul_u32_u24 v4, 160, v4", "v_lshrrev_b32 v5, 4, v0", "v_lshl_add_u32 v4, v5, 3, v4",
          f"v_add_u32 v4, {sXT}, v4", f"v_add_u32 v5, {sXT}, v1",
          f"s_lshl_b32 {sT2}, {sW}, 10", f"s_add_u32 {sHS1}, {sT2}, {STB}"]
    XR, XU = 16, 28
    SFP = opt.get("sfp", 38)
    for i in range(56):
        k, st = divmod(i, 14)
        A0 = AC[k & 1]
        g.wvm(("h", i))
        r = HRING[i % NB]
        extra = [[] for _ in range(5)]
        if st == 1 and k >= 1:
            pa = AC[(k - 1) & 1]
            for j in range(5):
                extra[j].append(("lds", f"ds_write_b128 v{9 + k - 1}, {vr(pa + 4 * j, 4)} offset:{1024 * j}", "exw"))
        for j in ((i % 4,) if i % 4 else (0, 4)):
            if lateq:
                extra[j] += lateq.pop(0)
        if i == NE:
            def sflag():
                n = sum(1 for t in g.vm if t[0] == "h" and t[1] >= NE)
                e(f"s_waitcnt vmcnt({n})")
                flag_store(sPEND)
            extra[1].append(sflag)
        if 22 <= i < 30:
            for j in (1, 3, 4):
                if fq:
                    extra[j].append(fq.pop(0))
        if i == SFP:
            extra[0].append(("vm", f"buffer_load_dwordx4 {vr(vFL, 4)}, v{vFA + 1}, {SWS}, 0 offen sc1", ("sfp",)))
        if i == SFP + 6:
            c4 = check4(vFL)
            extra[0] += [("wvm", ("sfp",))] + c4[0:2]
            extra[1] += c4[2:4]
            extra[2] += c4[4:6]
            def sfchk():
                sl = g.newlab("Lslow")
                bk = g.newlab("Lback")
                e(c4[6])
                e(f"s_cbranch_vccnz {sl}")
                g.lab(bk)
                g.slow.append((sl, bk, [(vFA + 1, True)]))
            extra[3].append(sfchk)
        if i == SFP + 7:
            extra[0] += [f"s_mov_b32 m0, {sHS1}"]
            extra[1] += [("vm", f"buffer_load_dwordx4 v8, {SWS}, {sSTO} offen sc1 lds", ("stl",)), f"s_add_u32 m0, {sHS1}, 4096"]
            extra[2] += [f"s_add_u32 {sT3}, {sSTO}, {32 * 4096}"]
            extra[3] += [("vm", f"buffer_load_dwordx4 v8, {SWS}, {sT3} offen sc1 lds", ("stl",)), f"s_add_u32 m0, {sHS1}, 8192"]
            extra[4] += [f"s_add_u32 {sT3}, {sSTO}, {64 * 4096}", f"s_cmp_lt_u32 {sW}, 2\ns_cselect_b32 {sT3}, {sT3}, {OOB}"]
        if i == SFP + 8:
            extra[0] += [("vm", f"buffer_load_dwordx4 v8, {SWS}, {sT3} offen sc1 lds", ("stl",))]
        for j in range(5):
            phi = st * 5 + j
            src = ar(4 * phi, 4) if phi < 64 else vr(vWDV + 4 * (phi - 64), 4)
            Cs = "0" if st == 0 else vr(A0 + 4 * j, 4)
            e(f"v_mfma_f32_16x16x32_bf16 {vr(A0 + 4 * j, 4)}, {src}, {vr(r, 4)}, {Cs}")
            for it in extra[j]:
                g.do(it)
        if i + NB < 56:
            lateq.append(hload(i + NB))
    assert not lateq and not fq
    stamp("c_g2e", cyc=True)
    stamp("g2_loop_end")
    g.wall()
    e("s_barrier")
    A0 = AC[1]
    for q in range(15):
        g.lds(f"ds_read_b128 {vr(128 + 4 * q, 4)}, v2 offset:{EXB + 1024 * q}", ("exr", q))
    for j in range(5):
        g.lds(f"ds_read_b64_tr_b16 {vr(192 + 2 * j, 2)}, v3 offset:{2048 * j}", ("s", j))
        g.lds(f"ds_read_b64 {vr(202 + 2 * j, 2)}, v4 offset:{32 * j}", ("x", j))
    e(f"s_mov_b32 {sT2}, {hex(f2u(-LOG2E))}")
    e(f"s_mov_b32 {sT3}, {hex(f2u(-LOG2E))}")
    e(f"s_mov_b32 {sMASK}, 0xffff0000")
    for k in range(3):
        for j in range(5):
            if j in (0, 3):
                g.wlg(("exr", 5 * k + (2 if j == 0 else 4)))
            for h in range(2):
                e(f"v_pk_add_f32 {vr(A0 + 4 * j + 2 * h, 2)}, {vr(A0 + 4 * j + 2 * h, 2)}, {vr(128 + 4 * (5 * k + j) + 2 * h, 2)}")
    E_ = 128
    align()
    for p in range(10):
        e(f"v_pk_mul_f32 {vr(E_ + 2 * p, 2)}, {vr(A0 + 2 * p, 2)}, s[56:57]")
    for p in range(20):
        e(f"v_exp_f32 v{E_ + p}, v{E_ + p}")
    g.wlg0()
    SU, XU = 152, 172
    for p in range(10):
        e(f"v_lshlrev_b32 v{SU + 2 * p}, 16, v{192 + p}")
        e(f"v_and_b32 v{SU + 2 * p + 1}, {sMASK}, v{192 + p}")
    align()
    for p in range(10):
        e(f"v_pk_add_f32 {vr(E_ + 2 * p, 2)}, {vr(E_ + 2 * p, 2)}, 1.0 op_sel_hi:[1,0]")
    for p in range(20):
        e(f"v_rcp_f32 v{E_ + p}, v{E_ + p}")
    for p in range(10):
        e(f"v_pk_mul_f32 {vr(A0 + 2 * p, 2)}, {vr(A0 + 2 * p, 2)}, {vr(SU + 2 * p, 2)}")
    for p in range(10):
        e(f"v_lshlrev_b32 v{XU + 2 * p}, 16, v{202 + p}")
        e(f"v_and_b32 v{XU + 2 * p + 1}, {sMASK}, v{202 + p}")
    for p in range(10):
        e(f"v_pk_fma_f32 {vr(A0 + 2 * p, 2)}, {vr(A0 + 2 * p, 2)}, {vr(E_ + 2 * p, 2)}, {vr(XU + 2 * p, 2)}")
    for p in range(10):
        e(f"v_cvt_pk_bf16_f32 v{192 + p}, v{A0 + 2 * p}, v{A0 + 2 * p + 1}")
    for j in range(5):
        g.lds(f"ds_write_b64 v4, {vr(192 + 2 * j, 2)} offset:{32 * j}", "ow")
    g.wlg0()
    for kk in range(3):
        g.lds(f"ds_read_b128 {vr(128 + 4 * kk, 4)}, v5 offset:{1024 * kk}", ("or", kk))
    osc = opt.get("outsc", "")
    for kk in range(3):
        g.wlg(("or", kk))
        g.vmem(f"buffer_store_dwordx4 {vr(128 + 4 * kk, 4)}, v{(12, 13, 15)[kk]}, {SOUT}, {sXO} offen{osc}", "out")
    if diag:
        g.wvm0()
        stamp("end", flush=True)
        e(f"s_mov_b32 s88, s16\ns_mov_b32 s89, s17\ns_mov_b32 s90, 0x1000000\ns_mov_b32 s91, 0x20000")
        e(f"s_lshl_b32 {sT1}, s2, 2\ns_add_u32 {sT1}, {sT1}, {sW}\ns_lshl_b32 {sT1}, {sT1}, 8\ns_add_u32 {sT1}, {sT1}, {TS_BASE}")
        e("v_lshlrev_b32 v2, 2, v0")
        e(f"buffer_store_dword v127, v2, s[88:91], {sT1} offen")
    g.lab("L_end")
    e("s_endpgm")
    for (sl, bk, lst) in g.slow:
        g.lab(sl)
        for (av, n4) in lst:
            poll_block(av, n4)
        e(f"s_branch {bk}")

    hdr = [f"; @launch grid=(256,1,1) block=(256,1,1) lds={LDS_TOTAL}",
           '.amdgcn_target "amdgcn-amd-amdhsa--gfx950"', ".text", f".globl {KNAME}", ".p2align 8",
           f".type {KNAME},@function", f"{KNAME}:"]
    ftr = ['.section .rodata,"a"', ".p2align 6", f".amdhsa_kernel {KNAME}",
           "  .amdhsa_next_free_vgpr 512", "  .amdhsa_next_free_sgpr 102", "  .amdhsa_accum_offset 256",
           "  .amdhsa_group_segment_fixed_size 0", "  .amdhsa_kernarg_size 112", "  .amdhsa_user_sgpr_count 2",
           "  .amdhsa_user_sgpr_kernarg_segment_ptr 1", "  .amdhsa_system_sgpr_workgroup_id_x 1",
           "  .amdhsa_float_denorm_mode_32 3",
           ".end_amdhsa_kernel"]
    txt = "\n".join(hdr + g.L + ftr) + "\n"
    if diag:
        txt = txt + "; STAMPS " + ",".join(ts_names) + "\n"
    return txt


if __name__ == "__main__":
    diag = "--diag" in sys.argv
    opt = {}
    for a in sys.argv[1:]:
        if a.startswith("--") and "=" in a:
            k, v = a[2:].split("=")
            opt[k] = int(v) if v.lstrip("-").isdigit() else v.replace("_", " ")
    out = [a for a in sys.argv[1:] if not a.startswith("--")]
    s = gen(diag=diag, opt=opt)
    path = out[0] if out else "recurrent_scan__ssm_conv_s4d__geglu_ffn__prompt.s"
    open(path, "w").write(s)
    print("wrote", path, len(s), "bytes", s.count("\n"), "lines")
```

```python
import sys, struct, math

KNAME = "recurrent_scan__ssm_conv_s4d__geglu_ffn__prompt_kernel"

EPOCH = 0x0
LNF = 0x1000
HF = 0x1400
SF = 0x2400
WF = 0x4400
STATS = 0x8000
XNT = 0x10000
ST = 0x290000
WDP = 0x510000
HB = 0x730000
CSP = 0xDF0000
WS_END = 0xE26000
TS_BASE = 0xE40000

SLOT = 49152
MISC = 147456
LNP = 1344
CSB = MISC + 10752 + 5120
XYP = 544
XYC = 64 * XYP
XYB = 0
PB = 0
UBASE = 69632
UC = 4608
RB = UBASE + 2 * UC
RCS = 4160
RC = 4 * RCS
TC = 2624
TB = MISC
YSO = 650 * 4
SOB = 16384
EXB = 24576
XTB = 112128
STB = XTB + 12288
LDS_TOTAL = 163840
OOB = 0x7fff0000

def f2u(x):
    return struct.unpack("<I", struct.pack("<f", x))[0]

LOG2E = 1.4426950408889634
C0 = -2.0 * math.sqrt(2.0 / math.pi) * LOG2E
C1 = C0 * 0.044715


class G:
    def __init__(self):
        self.L = []
        self.vm = []
        self.lg = []
        self.nlab = 0
        self.slow = []
        self.skip = set()
        self.pst = []
        self.sfree = [92, 100]

    def flush_stamps(self):
        for (sr, lane) in self.pst:
            self.e(f"v_writelane_b32 v127, s{sr}, {lane}")
            self.sfree.append(sr)
        self.pst = []

    def e(self, s):
        for ln in s.split("\n"):
            self.L.append("    " + ln)

    def lab(self, name):
        self.L.append(name + ":")

    def newlab(self, p="L"):
        self.nlab += 1
        return f"{p}_{self.nlab}"

    def vmem(self, s, tag=None):
        if tag in self.skip:
            return
        self.e(s)
        self.vm.append(tag)

    def lds(self, s, tag=None):
        self.e(s)
        self.lg.append(tag)

    def _n(self, q, tag):
        idx = max(i for i, t in enumerate(q) if t == tag)
        return idx, len(q) - idx - 1

    def wvm(self, tag):
        if tag not in self.vm:
            return
        idx, n = self._n(self.vm, tag)
        self.e(f"s_waitcnt vmcnt({min(n, 63)})")
        self.vm = self.vm[idx + 1:]

    def wlg(self, tag):
        if tag not in self.lg:
            return
        idx, n = self._n(self.lg, tag)
        self.e(f"s_waitcnt lgkmcnt({min(n, 15)})")
        self.lg = self.lg[idx + 1:]

    def wvm0(self):
        self.e("s_waitcnt vmcnt(0)")
        self.vm = []

    def wlg0(self):
        self.e("s_waitcnt lgkmcnt(0)")
        self.lg = []
        self.flush_stamps()

    def wall(self):
        self.e("s_waitcnt vmcnt(0) lgkmcnt(0)")
        self.vm = []
        self.lg = []
        self.flush_stamps()

    def nop(self, n):
        while n > 0:
            k = min(n, 16)
            self.e(f"s_nop {k - 1}")
            n -= k

    def do(self, item):
        if callable(item):
            item()
        elif isinstance(item, tuple):
            kind = item[0]
            if kind == "vm":
                self.vmem(item[1], item[2])
            elif kind == "lds":
                self.lds(item[1], item[2])
            elif kind == "wvm":
                self.wvm(item[1])
            elif kind == "wlg":
                self.wlg(item[1])
            else:
                raise ValueError(kind)
        else:
            self.e(item)


def vr(a, n):
    return f"v[{a}:{a + n - 1}]"


def ar(a, n):
    return f"a[{a}:{a + n - 1}]"


SX, SWG, SWU, SWS, SOUT, SWD = "s[4:7]", "s[8:11]", "s[12:15]", "s[16:19]", "s[20:23]", "s[24:27]"
P_LAR, P_AIM, P_CRE, P_CIM, P_LDT, P_DSK = "s[28:29]", "s[30:31]", "s[32:33]", "s[34:35]", "s[36:37]", "s[38:39]"
sW, sTAG, sM, sFT, sISG1, sCP, sRND, sSP = "s40", "s41", "s42", "s43", "s44", "s45", "s46", "s47"
sXCD, sQ = "s48", "s49"
sXM0, sWM0, sXS, sWSO = "s50", "s51", "s52", "s53"
sT0, sT1, sT2, sT3, sT4, sT5 = "s54", "s55", "s56", "s57", "s58", "s59"
sMASK, sCNT = "s60", "s61"
sRHO, sC = "s62", "s63"
sHS0, sHS1 = "s64", "s65"
sG2 = 66
STW = "s[96:99]"
sF0, sF1, sF2 = "s0", "s1", "s3"
sLT, sDT = "s82", "s83"
sWDS = "s84"
sPEND, sXO = "s85", "s86"
sKR = "s87"
sXT, sSTO = "s94", "s95"
sK0, sK1 = "s96", "s97"

vT = 2
vXO = 16
vWO = 24
vBA = 26
vAA = 34
vCS = 42
vHO = 44
vTO = 46
vSTA = 48
vU = 56
vAF = 64
vBF = 96
vPAR = 112
vFA = 118
vEP = 120
vFL = 122
vACC = 128
SC = 16
GA = 24
AST = 224
AS2 = 192
PKB = MISC
vWDV = 232


def gen(diag=False, opt=None):
    opt = opt or {}
    TOUCH = opt.get("touch", 0)
    P1 = opt.get("p1", 32)
    KCHK = opt.get("kchk", 29)
    g = G()
    e = g.e
    if opt.get('nolnst'):
        g.skip.add('lnst')
    ts_names = []
    vTAG, vL0 = vEP, vEP + 1

    def stamp(name, cyc=False, flush=False):
        if not diag:
            return
        if name not in ts_names:
            ts_names.append(name)
        i = ts_names.index(name)
        if not g.sfree:
            g.wlg0()
        sr = g.sfree.pop(0)
        e(f"{'s_memtime' if cyc else 's_memrealtime'} s[{sr}:{sr + 1}]")
        g.pst.append((sr, i))
        if flush:
            g.wlg0()

    def interleave(fn, units, every):
        n0 = len(g.L)
        fn()
        body = g.L[n0:]
        del g.L[n0:]
        cnt = 0
        for ln in body:
            g.L.append(ln)
            cnt += 1
            if units and cnt >= every:
                u = units[0]
                if isinstance(u, tuple) and u[0] == "m0":
                    e(u[1])
                    units.pop(0)
                    cnt = every - 1
                else:
                    g.do(u)
                    units.pop(0)
                    cnt = 0 if isinstance(u, tuple) else every - 1

    def align():
        e(".p2align 3")

    def red(op, v, t, full):
        for dpp in ("quad_perm:[1,0,3,2]", "quad_perm:[2,3,0,1]", "row_half_mirror", "row_mirror"):
            g.nop(2)
            e(f"{op} v{v}, v{v}, v{v} {dpp}")
        e(f"v_mov_b32 v{t}, v{v}")
        g.nop(2)
        e(f"v_permlane16_swap_b32 v{v}, v{t}")
        g.nop(1)
        e(f"{op} v{v}, v{v}, v{t}")
        if full:
            e(f"v_mov_b32 v{t}, v{v}")
            g.nop(2)
            e(f"v_permlane32_swap_b32 v{v}, v{t}")
            g.nop(1)
            e(f"{op} v{v}, v{v}, v{t}")

    def bf16round(v):
        e(f"v_cvt_pk_bf16_f32 v{v}, v{v}, v{v}")
        e(f"v_lshlrev_b32 v{v}, 16, v{v}")

    def check4(tmp):
        return [f"v_xor_b32 v{tmp}, v{vTAG}, v{tmp}", f"v_xor_b32 v{tmp + 1}, v{vTAG}, v{tmp + 1}",
                f"v_xor_b32 v{tmp + 2}, v{vTAG}, v{tmp + 2}", f"v_xor_b32 v{tmp + 3}, v{vTAG}, v{tmp + 3}",
                f"v_or3_b32 v{tmp}, v{tmp}, v{tmp + 1}, v{tmp + 2}", f"v_or_b32 v{tmp}, v{tmp}, v{tmp + 3}",
                f"v_cmp_ne_u32 vcc, 0, v{tmp}"]

    def poll_block(addr_v, n4, sleep=6):
        lp = g.newlab("Lpoll")
        dn = g.newlab("Lpd")
        tmp = vFL
        e(f"s_mov_b32 {sCNT}, 0x4000")
        g.lab(lp)
        if n4:
            e(f"buffer_load_dwordx4 {vr(tmp, 4)}, v{addr_v}, {SWS}, 0 offen sc1")
            e("s_waitcnt vmcnt(0)")
            for x in check4(tmp):
                e(x)
        else:
            e(f"buffer_load_dword v{tmp}, v{addr_v}, {SWS}, 0 offen sc1")
            e("s_waitcnt vmcnt(0)")
            e(f"v_cmp_ne_u32 vcc, v{vTAG}, v{tmp}")
        e(f"s_cbranch_vccz {dn}")
        e(f"s_sleep {sleep}")
        e(f"s_sub_u32 {sCNT}, {sCNT}, 1")
        e(f"s_cbranch_scc0 {lp}")
        g.lab(dn)

    def flag_store(soff):
        e(f"buffer_store_dword v{vTAG}, v{vL0}, {SWS}, {soff} offen sc1")

    def wd_load(phi):
        dst = ar(4 * phi, 4) if phi < 64 else vr(vWDV + 4 * (phi - 64), 4)
        pre = []
        if phi >= 65:
            if phi == 65 or phi == 68:
                pre.append(f"s_add_u32 {sT5}, {sWDS}, {(phi // 4) * 4096}")
                pre.append(f"s_cmp_lt_u32 {sW}, 2\ns_cselect_b32 {sT5}, {sT5}, {OOB}")
        elif phi % 4 == 0:
            pre.append(f"s_add_u32 {sT5}, {sWDS}, {(phi // 4) * 4096}")
        return pre + [("vm", f"buffer_load_dwordx4 {dst}, v1, {SWS}, {sT5} offen offset:{(phi % 4) * 1024} sc1", ("wd", phi))]

    def u_loads(cpreg, va):
        return [f"v_accvgpr_read_b32 v{va}, a{AS2 + 23}",
                f"s_mul_i32 {sF0}, {sW}, {64 * 10240}",
                f"s_lshl_b32 {sF1}, {cpreg}, 5",
                f"s_add_u32 {sF0}, {sF0}, {sF1}",
                f"s_add_u32 {sF0}, {sF0}, {XNT}",
                f"s_add_u32 {sF1}, {sF0}, {32 * 10240}",
                ("vm", f"buffer_load_dwordx4 {vr(vU, 4)}, v{va}, {SWS}, {sF0} offen sc1", "u"),
                ("vm", f"buffer_load_dwordx4 {vr(vU + 4, 4)}, v{va}, {SWS}, {sF1} offen sc1", "u")]

    def table_code():
        def put(i, src):
            e(f"v_lshl_add_u32 v{src}, v{src}, 2, {sF2}")
            e(f"v_accvgpr_write_b32 a{AST + i}, v{src}")
        e(f"s_mul_i32 {sF2}, {sC}, {TC}")
        e(f"s_add_u32 {sF2}, {sF2}, {TB + 4}")
        e("v_lshrrev_b32 v4, 4, v0")
        e(f"s_lshl_b32 {sF1}, {sRHO}, 2")
        e(f"v_add_u32 v4, {sF1}, v4")
        e("v_and_b32 v5, 15, v0")
        DUM = 645
        e("v_cmp_eq_u32 s[54:55], 2, v4")
        e("v_cmp_eq_u32 s[56:57], 3, v4")
        e("v_cmp_eq_u32 s[58:59], 4, v4")
        e("v_cmp_lt_u32 vcc, 4, v4")
        e("v_mov_b32 v6, 8")
        e("v_cndmask_b32 v6, v6, 4, s[54:55]")
        e("v_cndmask_b32 v6, v6, 2, s[56:57]")
        e("v_cndmask_b32 v6, v6, 1, s[58:59]")
        e("v_cndmask_b32 v6, v6, 0, vcc")
        e("v_mul_u32_u24 v7, v6, v5")
        e("v_lshlrev_b32 v8, 4, v6")
        for i in range(4):
            e(f"v_lshl_add_u32 v9, v4, 2, {i}")
            for sreg, val in (("s[54:55]", 256 + i), ("s[56:57]", 384 + 64 * (i >> 1) + (i & 1)), ("s[58:59]", 512 + 32 * i), ("vcc", DUM)):
                e(f"v_mov_b32 v10, {val}")
                e(f"v_cndmask_b32 v9, v9, v10, {sreg}")
            e("v_add_u32 v9, v9, v7")
            e("v_add_u32 v11, v9, v8")
            if i == 0:
                e("v_lshl_add_u32 v6, v4, 4, v5")
                e("v_mov_b32 v10, 80")
                e("v_cmp_eq_u32 s[60:61], v10, v6")
                e("v_mov_b32 v10, 640")
                e("s_nop 0")
                e("v_cndmask_b32 v9, v9, v10, s[60:61]")
            put(i, 9)
            put(4 + i, 11)
        e(f"s_lshl_b32 {sF1}, {sRHO}, 10")
        e(f"s_sub_u32 {sF1}, 2047, {sF1}")
        e("v_lshlrev_b32 v4, 3, v0")
        e(f"v_sub_u32 v4, {sF1}, v4")
        e(f"s_movk_i32 {sF1}, 128")
        for ch in range(2):
            for k in range(11):
                e(f"v_subrev_u32 v5, {512 * ch + k}, v4")
                e("v_max_i32 v6, 0, v5")
                e("v_cvt_f32_u32 v6, v6")
                e(f"v_med3_i32 v5, v5, -1, {sF1}")
                e("v_cvt_pk_bf16_f32 v6, v6, 0")
                e("v_subrev_u32 v6, 0x4280, v6")
                e("v_max_i32 v5, v5, v6")
                put(8 + 11 * ch + k, 5)

    def addr_items():
        it = []
        A = it.append
        def st(i, r):
            A(f"v_accvgpr_write_b32 a{AS2 + i}, v{r}")
        A(f"v_add_u32 v{vFA}, {LNF}, v1")
        A(f"s_mul_i32 {sF0}, {sC}, {XYC}")
        A(f"v_lshl_add_u32 v2, v0, 3, {sF0}")
        st(0, 2)
        A("v_and_b32 v12, 15, v0")
        A("v_lshrrev_b32 v13, 4, v0")
        A(f"v_mul_u32_u24 v2, {XYP}, v12")
        A("v_lshl_add_u32 v2, v13, 4, v2")
        A(f"v_add_u32 v3, {sF0}, v2")
        st(2, 3)
        A(f"s_mul_i32 {sF1}, {sRHO}, {16 * XYP}")
        A(f"v_add_u32 v3, {sF1}, v3")
        st(1, 3)
        A(f"s_mul_i32 {sF0}, {sC}, {UC}")
        A(f"s_lshl_b32 {sF1}, {sRHO}, 8")
        A(f"s_add_u32 {sF2}, {sF0}, {sF1}")
        A(f"s_add_u32 {sF2}, {sF2}, {UBASE}")
        A(f"v_add_u32 v2, {sF2}, v1")
        A(f"s_sub_u32 {sF2}, {sF0}, {sF1}")
        A(f"s_add_u32 {sF2}, {sF2}, {UBASE + 32 + 256}")
        A("v_lshlrev_b32 v14, 5, v12")
        A("v_lshl_add_u32 v3, v13, 4, v14")
        A(f"v_add_u32 v3, {sF2}, v3")
        st(8, 3)
        A("v_lshl_add_u32 v14, v13, 3, v14")
        A(f"s_lshl_b32 {sF2}, {sRHO}, 11")
        A(f"s_add_u32 {sF2}, {sF2}, {sF0}")
        A(f"s_add_u32 {sF2}, {sF2}, {UBASE + 512}")
        A(f"v_add_u32 v3, {sF2}, v14")
        st(11, 3)
        A(f"s_lshl_b32 {sF2}, {sW}, 11")
        A(f"s_add_u32 {sF2}, {sF2}, {SOB}")
        A(f"v_add_u32 v3, {sF2}, v14")
        st(12, 3)
        A(f"v_add_u32 v3, {sF2}, v1")
        st(13, 3)
        A(f"s_mul_i32 {sF0}, {sC}, {RC}")
        A(f"s_mul_i32 {sF2}, {sRHO}, {2 * RCS}")
        A(f"s_add_u32 {sF2}, {sF2}, {sF0}")
        A(f"s_add_u32 {sF2}, {sF2}, {RB + 4096}")
        A("v_bfe_u32 v3, v0, 1, 1")
        A(f"v_mul_u32_u24 v3, {RCS}, v3")
        A("v_and_b32 v15, 1, v0")
        A("v_lshl_add_u32 v3, v15, 4, v3")
        A(f"v_add_u32 v3, {sF2}, v3")
        A("v_cmp_lt_u32 vcc, 15, v0\ns_nop 1\nv_cndmask_b32 v2, v2, v3, vcc")
        st(3, 2)
        A(f"s_lshl_b32 {sF2}, {sRHO}, 11")
        A(f"s_add_u32 {sF2}, {sF2}, {sF0}")
        A(f"s_add_u32 {sF2}, {sF2}, {RB}")
        A(f"v_add_u32 v2, {sF2}, v1")
        st(4, 2)
        A("v_sub_u32 v2, 3, v12")
        A("v_and_b32 v2, 3, v2")
        A(f"v_mul_u32_u24 v2, {RCS}, v2")
        A("v_lshl_add_u32 v2, v13, 4, v2")
        A("v_and_b32 v3, 12, v12")
        A("v_lshlrev_b32 v3, 1, v3")
        A("v_sub_u32 v2, v2, v3")
        A(f"s_sub_u32 {sF2}, {sF0}, {sF1}")
        A(f"s_add_u32 {sF2}, {sF2}, {RB + 24 + 256}")
        A(f"v_add_u32 v2, {sF2}, v2")
        st(7, 2)
        A(f"v_mul_u32_u24 v2, {UC}, v15")
        A("v_lshrrev_b32 v3, 1, v0")
        A("v_lshl_add_u32 v2, v3, 4, v2")
        A(f"s_lshl_b32 {sF2}, {sW}, 10")
        A(f"s_add_u32 {sF2}, {sF2}, {UBASE + 512}")
        A(f"v_add_u32 v2, {sF2}, v2")
        st(5, 2)
        A("v_mul_u32_u24 v3, 10240, v3")
        A("v_lshl_add_u32 v3, v15, 4, v3")
        st(23, 3)
        A(f"s_mul_i32 {sF2}, {sC}, {TC}")
        A(f"s_add_u32 {sF2}, {sF2}, {TB}")
        A(f"v_mov_b32 v2, {sF2}")
        st(6, 2)
        A(f"s_lshl_b32 {sF2}, {sW}, 12")
        A(f"v_add_u32 v2, {sF2}, v1")
        st(9, 2)
        A("v_xor_b32 v2, 0x1000, v2")
        st(10, 2)
        A(f"s_mul_i32 {sF0}, {sW}, 14")
        A(f"s_cmp_eq_u32 {sW}, 3\ns_cselect_b32 {sF1}, 1, 0")
        A(f"s_sub_u32 {sF0}, {sF0}, {sF1}")
        A(f"s_mul_i32 {sF1}, {sDT}, 54")
        A(f"s_add_u32 {sF1}, {sF0}, {sF1}")
        A(f"s_mul_i32 {sF1}, {sF1}, 5120")
        A(f"s_add_u32 {sWDS}, {sF1}, {WDP}")
        for k in range(4):
            A(f"s_add_u32 {sF1}, {sW}, {k + 1}")
            A(f"s_and_b32 {sF1}, {sF1}, 3")
            if k < 3:
                A(f"s_mul_i32 {sF2}, {sF1}, 15360")
                A(f"s_add_u32 {sF2}, {sF2}, {EXB + 5120 * k}")
                A(f"v_add_u32 v2, {sF2}, v1")
                st(14 + k, 2)
            A(f"s_lshl_b32 {sF2}, {sLT}, 2")
            A(f"s_add_u32 {sF1}, {sF1}, {sF2}")
            A(f"s_mul_i32 {sF1}, {sF1}, 54")
            A(f"s_add_u32 {sF1}, {sF1}, {sF0}")
            A(f"s_lshl_b32 {sF1}, {sF1}, 10")
            A(f"s_add_u32 s{sG2 + 4 * k}, {sF1}, {HB}")
            for q in range(1, 4):
                A(f"s_add_u32 s{sG2 + 4 * k + q}, s{sG2 + 4 * k}, {4096 * q}")
        A(f"s_mov_b32 {sF0}, {0x100000000 // 10 + 1}")
        for kk in range(3):
            A(f"v_add_u32 v2, {64 * kk}, v0")
            A(f"v_mul_hi_u32 v3, v2, {sF0}")
            A("v_mul_u32_u24 v12, 10, v3")
            A("v_sub_u32 v12, v2, v12")
            A("v_mul_u32_u24 v3, 1280, v3")
            A("v_lshl_add_u32 v2, v12, 4, v3")
            st(17 + kk, 2)
        A(f"v_mov_b32 v3, {OOB}")
        A("v_cmp_lt_u32 vcc, 31, v0\ns_nop 1\nv_cndmask_b32 v2, v2, v3, vcc")
        st(20, 2)
        A(f"s_lshl_b32 {sXO}, {sLT}, 2")
        A(f"s_add_u32 {sXO}, {sXO}, {sW}")
        A(f"s_mul_i32 {sXO}, {sXO}, {16 * 1280}")
        A(f"s_mul_i32 {sF0}, {sDT}, 160")
        A(f"s_add_u32 {sXO}, {sXO}, {sF0}")
        A(f"s_mul_i32 {sXT}, {sW}, 3072")
        A(f"s_add_u32 {sXT}, {sXT}, {XTB}")
        A(f"s_mul_i32 {sSTO}, {sDT}, 80")
        A(f"s_lshl_b32 {sF0}, {sW}, 3")
        A(f"s_add_u32 {sSTO}, {sSTO}, {sF0}")
        A(f"s_lshl_b32 {sSTO}, {sSTO}, 12")
        A(f"s_lshl_b32 {sF0}, {sLT}, 7")
        A(f"s_add_u32 {sSTO}, {sSTO}, {sF0}")
        A(f"s_add_u32 {sSTO}, {sSTO}, {ST}")
        A(f"s_add_u32 {sF0}, {sF0}, {HF}")
        A("v_min_u32 v2, 26, v0")
        A(f"v_lshl_add_u32 v2, v2, 2, {sF0}")
        st(21, 2)
        A(f"s_lshl_b32 {sF0}, {sDT}, 10")
        A(f"s_add_u32 {sF0}, {sF0}, {SF}")
        A("v_min_u32 v2, 39, v0")
        A(f"v_lshl_add_u32 v2, v2, 4, {sF0}")
        st(22, 2)
        return it

    e("s_cmp_ge_u32 s2, 256")
    e("s_cbranch_scc1 L_end")
    e("s_load_dwordx2 s[4:5], s[0:1], 0")
    e("s_load_dwordx2 s[16:17], s[0:1], 104")
    e("s_load_dwordx2 s[8:9], s[0:1], 64")
    e("s_load_dwordx2 s[12:13], s[0:1], 72")
    e("s_load_dwordx2 s[24:25], s[0:1], 80")
    e("s_load_dwordx4 s[28:31], s[0:1], 8")
    e("s_load_dwordx4 s[32:35], s[0:1], 24")
    e("s_load_dwordx4 s[36:39], s[0:1], 40")
    e("s_load_dwordx2 s[20:21], s[0:1], 88")
    e("v_lshrrev_b32 v2, 6, v0")
    e("v_and_b32 v0, 63, v0")
    e(f"v_readfirstlane_b32 {sW}, v2")
    e("v_lshlrev_b32 v1, 4, v0")
    e("s_mov_b32 s6, 2621440\ns_mov_b32 s7, 0x20000")
    e("s_mov_b32 s10, 2211840\ns_mov_b32 s11, 0x20000")
    e("s_mov_b32 s14, 2211840\ns_mov_b32 s15, 0x20000")
    e(f"s_mov_b32 s18, {WS_END}\ns_mov_b32 s19, 0x20000")
    e("s_mov_b32 s22, 2621440\ns_mov_b32 s23, 0x20000")
    e("s_mov_b32 s26, 2211840\ns_mov_b32 s27, 0x20000")
    e(f"s_and_b32 {sXCD}, s2, 7")
    e(f"s_lshr_b32 {sQ}, s2, 3")
    e(f"s_and_b32 {sT0}, {sXCD}, 1")
    e(f"s_lshr_b32 {sT1}, {sXCD}, 1")
    e(f"s_and_b32 {sT2}, {sQ}, 3")
    e(f"s_lshr_b32 {sT3}, {sQ}, 2")
    e(f"s_lshl_b32 {sM}, {sT0}, 2")
    e(f"s_add_u32 {sM}, {sM}, {sT2}")
    e(f"s_mul_i32 {sFT}, {sT1}, 7")
    e(f"s_add_u32 {sFT}, {sFT}, {sT3}")
    e(f"s_cmp_lt_u32 {sT3}, 7")
    e(f"s_cselect_b32 {sISG1}, 1, 0")
    e(f"s_cmp_lt_u32 {sFT}, 27")
    e(f"s_cselect_b32 {sISG1}, {sISG1}, 0")
    e(f"s_lshl_b32 {sT4}, {sXCD}, 2")
    e(f"s_add_u32 {sT4}, {sT4}, {sQ}")
    e(f"s_sub_u32 {sT4}, {sT4}, 28")
    e(f"s_lshl_b32 {sT5}, {sXCD}, 3")
    e(f"s_add_u32 {sT5}, {sT5}, {sQ}")
    e(f"s_sub_u32 {sT5}, {sT5}, 48")
    e(f"s_cmp_lt_u32 {sXCD}, 6")
    e(f"s_cselect_b32 {sSP}, {sT4}, {sT5}")
    e(f"s_mul_i32 {sT4}, {sM}, 27")
    e(f"s_add_u32 {sT4}, {sT4}, {sFT}")
    e(f"s_add_u32 {sT5}, {sSP}, 216")
    e(f"s_cmp_lg_u32 {sISG1}, 0")
    e(f"s_cselect_b32 {sCP}, {sT4}, {sT5}")
    e(f"s_cmp_lt_u32 {sSP}, 24")
    e(f"s_cselect_b32 {sRND}, 3, 2")
    e(f"s_cmp_lg_u32 {sISG1}, 0")
    e(f"s_cselect_b32 {sRND}, 1, {sRND}")
    e(f"s_and_b32 {sRHO}, {sW}, 1")
    e(f"s_lshr_b32 {sC}, {sW}, 1")
    e(f"s_lshl_b32 {sLT}, {sXCD}, 2")
    e(f"s_add_u32 {sLT}, {sLT}, {sT2}")
    e(f"s_mov_b32 {sDT}, {sT3}")
    e("v_lshrrev_b32 v2, 5, v0")
    e("v_mul_u32_u24 v2, 1280, v2")
    e("v_and_b32 v3, 31, v0")
    e("v_lshl_add_u32 v2, v3, 3, v2")
    e(f"s_lshl_b32 {sT0}, s2, 2")
    e(f"s_add_u32 {sT0}, {sT0}, {sW}")
    e(f"s_mul_i32 {sT0}, {sT0}, 2560")
    e(f"v_mov_b32 v{vL0}, {OOB}")
    e(f"v_writelane_b32 v{vL0}, 0, 0")
    e("v_lshlrev_b32 v10, 21, v0")
    e("v_lshrrev_b32 v4, 3, v0")
    e("v_and_b32 v5, 7, v0")
    e("v_lshrrev_b32 v6, 4, v0")
    e("v_mul_u32_u24 v7, 1280, v4")
    e("v_xor_b32 v8, v5, v6")
    e("v_xor_b32 v9, 4, v8")
    e(f"v_lshl_add_u32 v{vXO}, v8, 4, v7")
    e(f"v_lshl_add_u32 v{vXO + 1}, v9, 4, v7")
    e(f"v_add_u32 v{vXO + 1}, {8 * 1280 - 1024}, v{vXO + 1}")
    for i in range(2, 8):
        d = 16 * 1280 - 1024 * ((i & 3) - ((i - 2) & 3))
        e(f"v_add_u32 v{vXO + i}, {d}, v{vXO + i - 2}")
    e("v_mul_u32_u24 v7, 3456, v4")
    e("v_and_b32 v8, 1, v6")
    e("v_lshlrev_b32 v8, 2, v8")
    e("v_xor_b32 v8, v5, v8")
    e(f"v_lshl_add_u32 v{vWO}, v8, 4, v7")
    e(f"v_add_u32 v{vWO + 1}, {8 * 3456 - 1024}, v{vWO}")
    e(f"s_lshl_b32 {sXM0}, {sW}, 13")
    e(f"s_add_u32 {sXM0}, {sXM0}, 16384")
    e(f"s_lshl_b32 {sWM0}, {sW}, 11")
    e(f"s_lshl_b32 {sXS}, {sM}, 2")
    e(f"s_add_u32 {sXS}, {sXS}, {sW}")
    e(f"s_mul_i32 {sXS}, {sXS}, {64 * 1280}")
    e(f"s_mul_i32 {sWSO}, {sW}, {16 * 3456}")
    e(f"s_lshl_b32 {sT1}, {sFT}, 7")
    e(f"s_add_u32 {sWSO}, {sWSO}, {sT1}")
    if diag:
        e("v_mov_b32 v127, 0")
    e("v_mul_u32_u24 v116, 17280, v4")
    e("v_lshl_add_u32 v116, v5, 4, v116")
    e(f"s_lshl_b32 {sHS0}, {sM}, 1")
    e(f"s_add_u32 {sHS0}, {sHS0}, {sRHO}")
    e(f"s_mul_i32 {sHS0}, {sHS0}, {40 * 3456}")
    e(f"s_add_u32 {sHS0}, {sHS0}, {sT1}")
    e("s_mov_b32 s98, 2211840\ns_mov_b32 s99, 0x20000")
    e("s_waitcnt lgkmcnt(0)")
    e(f"s_cmp_eq_u32 {sC}, 0")
    e("s_cselect_b32 s96, s8, s12")
    e("s_cselect_b32 s97, s9, s13")
    stamp("start")
    LX = 128
    for q in range(5):
        g.vmem(f"buffer_load_dwordx2 {vr(LX + 2 * q, 2)}, v2, {SX}, {sT0} offen offset:{256 * q}", "ln")
    g.vmem(f"buffer_load_dword v{vTAG}, v{vL0}, {SWS}, 0 offen sc1", "ln")

    def dma_units(stage):
        sb = (stage % 3) * SLOT
        out = []
        for mat in range(2):
            out.append(("m0", f"s_add_u32 m0, {sWM0}, {sb + mat * 8192}"))
            for half in range(2):
                o = f" offset:{1024 * half}" if half else ""
                out.append(("vm", f"buffer_load_dwordx4 v{vWO + half}, {SWG if mat == 0 else SWU}, {sWSO} offen{o} lds", ("dma", stage)))
        for i in range(8):
            if i % 4 == 0:
                out.append(("m0", f"s_add_u32 m0, {sXM0}, {sb + i * 1024}"))
            o = f" offset:{1024 * (i & 3)}" if i & 3 else ""
            out.append(("vm", f"buffer_load_dwordx4 v{vXO + i}, {SX}, {sXS} offen{o} lds", ("dma", stage)))
        out.append(f"s_add_u32 {sXS}, {sXS}, 128")
        out.append(f"s_add_u32 {sWSO}, {sWSO}, {64 * 3456}")
        return out

    def dma_block(stage):
        for u in dma_units(stage):
            if isinstance(u, tuple) and u[0] == "m0":
                e(u[1])
                e("s_nop 0")
            else:
                g.do(u)

    APAR = 160
    def param_units(rnd):
        out = [f"s_add_u32 {sT2}, {sCP}, {40 * rnd}", f"s_min_u32 {sT2}, {sT2}, 319",
               f"s_lshl_b32 {sT1}, {sT2}, 1", f"s_add_u32 {sT1}, {sT1}, {sC}", f"s_lshl_b32 {sT1}, {sT1}, 8",
               f"v_lshl_add_u32 v12, v0, 2, {sT1}", f"s_lshl_b32 {sT1}, {sT2}, 2", f"v_mov_b32 v13, {sT1}"]
        for k, p in enumerate((P_LAR, P_AIM, P_CRE, P_CIM)):
            out.append(("vm", f"global_load_dword a{APAR + 8 * rnd + k}, v12, {p}", "par"))
        out.append(("vm", f"global_load_dword a{APAR + 8 * rnd + 4}, v13, {P_LDT}", "par"))
        out.append(("vm", f"global_load_dword a{APAR + 8 * rnd + 5}, v13, {P_DSK}", "par"))
        return out

    n0 = len(g.vm)
    if opt.get("cpf", 1):
        e("s_getpc_b64 s[88:89]")
        g.lab("L_pc")
        e("s_mov_b32 s90, L_codeend - L_pc")
        e("s_mov_b32 s91, 0x20000")
        e(f"s_lshl_b32 {sT1}, {sQ}, 2")
        e(f"s_add_u32 {sT1}, {sT1}, {sW}")
        e(f"s_lshl_b32 {sT1}, {sT1}, 9")
        e("v_lshlrev_b32 v11, 7, v0")
        e(f"v_mov_b32 v12, {OOB}")
        e("v_cmp_lt_u32 vcc, 3, v0")
        e("s_nop 1")
        e("v_cndmask_b32 v11, v11, v12, vcc")
        g.vmem(f"buffer_load_dword v{vFL + 2}, v11, s[88:91], {sT1} offen", "tlb")
    g.vmem(f"buffer_load_dword v{vFL}, v10, {SWS}, 0 offen", "tlb")
    g.vmem(f"buffer_load_dword v{vFL + 1}, v10, {SOUT}, 0 offen", "tlb")
    e(f"s_cmp_eq_u32 {sISG1}, 0")
    e("s_cbranch_scc1 L_sp_tab")
    u0 = dma_units(0)
    interleave(table_code, u0, opt.get("pe0", 8))
    assert not u0
    for it in param_units(0):
        g.do(it)
    e(f"s_waitcnt vmcnt({len(g.vm) - n0})")
    e("s_branch L_lnw_done")
    g.lab("L_sp_tab")
    vm_g1 = list(g.vm)
    for r3 in range(3):
        for it in param_units(r3):
            g.do(it)
    table_code()
    e(f"s_waitcnt vmcnt({20 + (1 if opt.get('cpf', 1) else 0)})")
    g.lab("L_lnw_done")
    g.vm = vm_g1[n0:]
    g.sfree += [88, 90]
    stamp("ln_data")
    F, S, Dv, SO, UO = 140, 160, 164, 184, 188
    def ln_code():
        for q in range(10):
            e(f"v_lshlrev_b32 v{F + 2 * q}, 16, v{LX + q}")
            e(f"v_and_b32 v{F + 2 * q + 1}, 0xffff0000, v{LX + q}")
        e(f"v_readfirstlane_b32 {sTAG}, v{vTAG}")
        e(f"v_pk_add_f32 {vr(S, 2)}, {vr(F, 2)}, {vr(F + 2, 2)}")
        e(f"v_pk_add_f32 {vr(S + 2, 2)}, {vr(F + 4, 2)}, {vr(F + 6, 2)}")
        for q in range(4, 10, 2):
            e(f"v_pk_add_f32 {vr(S, 2)}, {vr(S, 2)}, {vr(F + 2 * q, 2)}")
            e(f"v_pk_add_f32 {vr(S + 2, 2)}, {vr(S + 2, 2)}, {vr(F + 2 * q + 2, 2)}")
        e(f"v_pk_add_f32 {vr(S, 2)}, {vr(S, 2)}, {vr(S + 2, 2)}")
        e(f"s_mul_i32 {sTAG}, {sTAG}, 1664525")
        e(f"s_add_u32 {sTAG}, {sTAG}, 1013904223")
        e(f"v_add_f32 v{S}, v{S}, v{S + 1}")
        red("v_add_f32", S, S + 1, False)
        e(f"v_mul_f32 v{S}, {hex(f2u(1.0 / 640))}, v{S}")
        e(f"v_mov_b32 v{vTAG}, {sTAG}")
        for q in range(10):
            e(f"v_pk_add_f32 {vr(Dv + 2 * q, 2)}, {vr(F + 2 * q, 2)}, {vr(S, 2)} op_sel_hi:[1,0] neg_lo:[0,1] neg_hi:[0,1]")
        e(f"v_pk_mul_f32 {vr(S + 2, 2)}, {vr(Dv, 2)}, {vr(Dv, 2)}")
        e(f"v_pk_mul_f32 {vr(S + 24, 2)}, {vr(Dv + 2, 2)}, {vr(Dv + 2, 2)}")
        for q in range(2, 10):
            r = S + 2 if q % 2 == 0 else S + 24
            e(f"v_pk_fma_f32 {vr(r, 2)}, {vr(Dv + 2 * q, 2)}, {vr(Dv + 2 * q, 2)}, {vr(r, 2)}")
        e(f"v_pk_add_f32 {vr(S + 2, 2)}, {vr(S + 2, 2)}, {vr(S + 24, 2)}")
        e(f"v_add_f32 v{S + 2}, v{S + 2}, v{S + 3}")
        red("v_add_f32", S + 2, S + 3, False)
        e(f"v_mul_f32 v{S + 2}, {hex(f2u(1.0 / 640))}, v{S + 2}")
        bf16round(S + 2)
        e(f"v_add_f32 v{S + 2}, {hex(f2u(1e-5))}, v{S + 2}")
        bf16round(S + 2)
        e(f"v_sqrt_f32 v{S + 2}, v{S + 2}")
        bf16round(S)
        bf16round(S + 2)
        e(f"v_rcp_f32 v{S + 3}, v{S + 2}")
        e(f"v_sub_f32 v{SO}, 0, v{S}")
        e(f"v_mul_f32 v{SO + 3}, v{S + 2}, v{S + 2}")
        e(f"v_mul_f32 v{S + 1}, v{S + 3}, v{S + 3}")
        e(f"v_mul_f32 v{SO + 2}, {hex(f2u(C0))}, v{S + 3}")
        e(f"v_mul_f32 v{S + 1}, v{S + 1}, v{S + 3}")
        e(f"v_mul_f32 v{S + 2}, v{SO}, v{S + 3}")
        e(f"v_mul_f32 v{SO + 1}, {hex(f2u(C1))}, v{S + 1}")
        for q in range(10):
            e(f"v_pk_fma_f32 {vr(Dv + 2 * q, 2)}, {vr(F + 2 * q, 2)}, {vr(S + 2, 2)}, {vr(S + 2, 2)} op_sel:[0,1,0] op_sel_hi:[1,1,0]")
        for q in range(10):
            e(f"v_cvt_pk_f16_f32 v{UO + q}, v{Dv + 2 * q}, v{Dv + 2 * q + 1}")
        e("v_lshrrev_b32 v2, 5, v0")
        e(f"v_mul_u32_u24 v2, {LNP}, v2")
        e("v_and_b32 v3, 31, v0")
        e("v_lshl_add_u32 v2, v3, 3, v2")
        e(f"s_mul_i32 {sT1}, {sW}, {2 * LNP}")
        e(f"s_add_u32 {sT1}, {sT1}, {MISC}")
        e(f"v_add_u32 v2, {sT1}, v2")
        for q in range(5):
            g.lds(f"ds_write_b64 v2, {vr(UO + 2 * q, 2)} offset:{256 * q}", "lnw")
        e("v_lshrrev_b32 v4, 1, v0")
        e(f"v_mov_b32 v5, {OOB}")
        e("v_cmp_ne_u32 vcc, 0, v3")
        e(f"s_lshl_b32 {sT1}, s2, 2")
        e(f"s_add_u32 {sT1}, {sT1}, {sW}")
        e("v_cndmask_b32 v4, v4, v5, vcc")
        e(f"s_lshl_b32 {sT1}, {sT1}, 5")
        e(f"s_add_u32 {sT1}, {sT1}, {STATS}")
        e("v_bfe_u32 v6, v0, 2, 2")
        e(f"v_mul_u32_u24 v2, {LNP}, v6")
        e("v_lshrrev_b32 v3, 4, v0")
        e("v_lshl_add_u32 v2, v3, 5, v2")
        e("v_and_b32 v7, 3, v0")
        e("v_lshl_add_u32 v2, v7, 3, v2")
        e(f"s_lshl_b32 {sT2}, {sW}, 7")
        e(f"s_add_u32 {sT2}, {sT2}, {MISC}")
        e(f"v_add_u32 v2, {sT2}, v2")

    e(f"s_cmp_eq_u32 {sISG1}, 0")
    e("s_cbranch_scc1 L_sp_ln")
    u1 = dma_units(1)
    CSR = [56, 60, 112, 52, 116]
    for j5 in range(5):
        if j5 in (1, 3):
            pass
        o = (j5 % 2) * 3456
        if j5 in (2, 4):
            u1.append(f"s_add_u32 {sHS0}, {sHS0}, {2 * 3456}")
        u1.append(("vm", f"buffer_load_dwordx4 {vr(CSR[j5], 4)}, v116, {STW}, {sHS0} offen offset:{o}", ("csl", j5)))
    lg0 = list(g.lg)
    interleave(ln_code, u1, opt.get("pe1", 8))
    assert not u1, len(u1)
    e("s_branch L_ln_done")
    g.lab("L_sp_ln")
    g.lg = lg0
    ln_code()
    g.lab("L_ln_done")
    g.vmem(f"buffer_store_dwordx4 {vr(SO, 4)}, v4, {SWS}, {sT1} offen sc1", "lnst")
    g.wlg0()
    e("s_barrier")
    TR = 200
    for j in range(3):
        for h in range(2):
            g.lds(f"ds_read_b64_tr_b16 {vr(TR + 4 * j + 2 * h, 2)}, v2 offset:{512 * j + 4 * LNP * h}", ("lntr", j))
    e(f"s_mul_i32 {sT1}, s2, 10240")
    e(f"s_lshl_b32 {sT2}, {sW}, 10")
    e(f"s_add_u32 {sT1}, {sT1}, {sT2}")
    e(f"s_add_u32 {sT1}, {sT1}, {XNT}")
    e(f"s_add_u32 {sT2}, {sT1}, 4096")
    e(f"s_add_u32 {sT3}, {sT1}, 8192")
    e(f"s_cmp_lt_u32 {sW}, 2")
    e(f"s_cselect_b32 {sT3}, {sT3}, {OOB}")
    for j, so in enumerate((sT1, sT2, sT3)):
        g.wlg(("lntr", j))
        g.vmem(f"buffer_store_dwordx4 {vr(TR + 4 * j, 4)}, v1, {SWS}, {so} offen sc1", "lnst")
    stamp("ln_done", flush=True)
    e(f"s_cmp_eq_u32 {sISG1}, 0")
    e("s_cbranch_scc1 L_spare")

    e("v_and_b32 v2, 31, v0")
    e("v_lshrrev_b32 v3, 5, v0")
    e("v_bfe_u32 v4, v0, 1, 3")
    e("v_xor_b32 v4, v4, v3")
    e(f"v_lshl_add_u32 v2, v2, 7, {sXM0}")
    for ks in range(4):
        e(f"v_xor_b32 v5, {2 * ks}, v4")
        e(f"v_lshl_add_u32 v{vBA + ks}, v5, 4, v2")
        e(f"v_add_u32 v{vBA + 4 + ks}, {2 * SLOT}, v{vBA + ks}")
    e("v_lshl_add_u32 v2, v3, 3, v6")
    e("v_lshlrev_b32 v2, 7, v2")
    e("v_bfe_u32 v4, v0, 4, 1")
    e("v_lshl_add_u32 v2, v4, 5, v2")
    e("v_lshl_add_u32 v2, v7, 3, v2")
    e("v_lshrrev_b32 v3, 1, v6")
    e(f"v_xor_b32 v3, {sRHO}, v3")
    e(f"s_lshl_b32 {sT1}, {sC}, 13")
    e("v_lshl_add_u32 v2, v3, 6, v2")
    e(f"v_add_u32 v{vAA}, {sT1}, v2")
    e(f"v_xor_b32 v{vAA + 1}, 64, v{vAA}")
    e(f"v_xor_b32 v{vAA + 2}, 0x2000, v{vAA}")
    e(f"v_xor_b32 v{vAA + 3}, 0x2000, v{vAA + 1}")
    for i in range(4):
        e(f"v_add_u32 v{vAA + 4 + i}, {2 * SLOT}, v{vAA + i}")
    e(f"s_mov_b32 {sMASK}, 0xffff0000")

    def touch_setup():
        return [f"s_lshr_b32 {sF0}, {sQ}, 2", f"s_mul_i32 {sF0}, {sF0}, 10", f"v_add_u32 v2, {sF0}, v0",
                "v_min_u32 v2, 63, v2", "v_mul_u32_u24 v2, 1280, v2", f"v_mov_b32 v3, {OOB}",
                f"v_cmp_lt_u32 vcc, 9, v0\ns_nop 1\nv_cndmask_b32 v{vTO}, v2, v3, vcc",
                f"s_and_b32 {sF0}, {sQ}, 3", f"s_lshl_b32 {sF0}, {sF0}, 1", f"s_add_u32 {sF0}, {sF0}, {sRHO}",
                f"s_lshl_b32 {sF0}, {sF0}, 3", f"s_lshl_b32 {sF1}, {sW}, 4", f"s_sub_u32 {sF0}, {sF0}, {sF1}",
                f"s_add_u32 {sF0}, {sF0}, 64", f"v_add_u32 v2, {sF0}, v0", "v_mul_u32_u24 v2, 3456, v2",
                f"v_cmp_lt_u32 vcc, 7, v0\ns_nop 1\nv_cndmask_b32 v{vTO + 1}, v2, v3, vcc",
                ]

    def touch_units(ahead):
        return [f"s_add_u32 {sT4}, {sXS}, {128 * ahead}",
                ("vm", f"buffer_load_dword v{vFL + 4}, v{vTO}, {SX}, {sT4} offen", "touch"),
                f"s_add_u32 {sT4}, {sWSO}, {64 * 3456 * (ahead - 1)}" if ahead >= 1 else f"s_sub_u32 {sT4}, {sWSO}, {64 * 3456}",
                ("vm", f"buffer_load_dword v{vFL + 4}, v{vTO + 1}, {STW}, {sT4} offen", "touch")]

    def frag_reads(k):
        stage, ks = divmod(k, 4)
        sl = stage % 3
        st4 = 4 if sl == 2 else 0
        so = 0 if sl == 2 else sl * SLOT
        A = vAF + 16 * (k & 1)
        B = vBF + 8 * (k & 1)
        def bread(b):
            return ("lds", f"ds_read_b128 {vr(B + 4 * b, 4)}, v{vBA + st4 + ks} offset:{so + 4096 * b}", ("B", k, b))
        def aread(t, h):
            return ("lds", f"ds_read_b64_tr_b16 {vr(A + 4 * t + 2 * h, 2)}, v{vAA + st4 + t} offset:{so + ks * 2048 + h * 512}", ("A", k, t))
        return [bread(0), aread(0, 0), aread(0, 1), bread(1), aread(1, 0), aread(1, 1), aread(2, 0), aread(2, 1), aread(3, 0), aread(3, 1)]

    g.wvm(("dma", 0))
    e("s_barrier")
    stamp("g1_start")
    stamp("c_g1s", cyc=True)
    for it in frag_reads(0):
        g.do(it)

    PACE = opt.get("pace", 2)
    NG = 320
    gaps = [[] for _ in range(NG)]
    head = [[] for _ in range(NG)]
    pre = {}
    vq_big = []

    sq = []
    def add_group(units, earliest, small=False):
        vq = sq if small else vq_big
        prel = []
        for u in units:
            if isinstance(u, tuple) and u[0] == "m0":
                prel.append(u[1])
            elif isinstance(u, tuple) or callable(u):
                vq.append([earliest, prel, u, []])
                prel = []
            else:
                prel.append(u)
        if prel:
            vq[-1][3] += prel

    def Bgap(s):
        return 32 * s - 8

    PKV = 48
    pk_fill = [f"s_mov_b32 {sF0}, {0x100000000 // 20 + 1}", f"s_lshl_b32 {sF1}, {sW}, 6"]
    for i3 in range(3):
        pk_fill += [f"v_add_u32 v2, {sF1}, v0"] + ([f"v_add_u32 v2, {256 * i3}, v2"] if i3 else []) + [
            f"v_mul_hi_u32 v3, v2, {sF0}", "v_mul_u32_u24 v12, 20, v3", "v_sub_u32 v12, v2, v12",
            "v_mul_u32_u24 v3, 1280, v3", f"v_lshl_add_u32 v{PKV + i3}, v12, 4, v3"]
    pk_fill += [f"s_lshr_b32 {sHS0}, {sCP}, 2", f"s_and_b32 {sHS1}, {sCP}, 3",
                f"s_mul_i32 {sT2}, {sHS0}, 40960", f"s_mul_i32 {sF0}, {sHS1}, 320", f"s_add_u32 {sT2}, {sT2}, {sF0}",
                f"s_lshl_b32 {sT3}, {sW}, 10"]
    pk_fill2 = ["v_lshrrev_b32 v2, 5, v0", "v_bfe_u32 v3, v0, 2, 2", "v_lshl_add_u32 v2, v2, 4, v3", "v_bfe_u32 v3, v0, 4, 1",
                "v_lshl_add_u32 v2, v3, 2, v2", "v_mul_u32_u24 v2, 320, v2", "v_and_b32 v3, 3, v0", "v_lshl_add_u32 v2, v3, 3, v2",
                f"s_lshl_b32 {sF0}, {sW}, 5", f"s_add_u32 {sF0}, {sF0}, {PKB}", f"v_add_u32 v{PKV + 3}, {sF0}, v2"]
    PDR = [56, 60, 8]
    pk_dma = []
    for i3 in range(3):
        if i3 == 2:
            pk_dma.append(f"s_cmp_lt_u32 {sW}, 2\ns_cselect_b32 {sT2}, {sT2}, {OOB}")
        pk_dma += [("m0", f"s_add_u32 m0, {sT3}, {PKB + 4096 * i3}"),
                   ("vm", f"buffer_load_dwordx4 v{PKV + i3}, {SWD}, {sT2} offen lds", "pkd")]
    pk_st = []
    for i3 in range(3):
        pk_st += [f"s_mul_i32 {sT2}, {sHS1}, 10\ns_add_u32 {sT2}, {sT2}, {sW}\ns_add_u32 {sT2}, {sT2}, {4 * i3}",
                  f"s_mul_i32 {sT3}, {sT2}, 13108\ns_lshr_b32 {sT3}, {sT3}, 16\ns_mul_i32 {sT3}, {sT3}, 265\ns_add_u32 {sT2}, {sT2}, {sT3}",
                  f"s_mul_i32 {sT3}, {sHS0}, 5\ns_add_u32 {sT2}, {sT2}, {sT3}\ns_lshl_b32 {sT2}, {sT2}, 10\ns_add_u32 {sT2}, {sT2}, {WDP}"]
        if i3 == 2:
            pk_st.append(f"s_cmp_lt_u32 {sW}, 2\ns_cselect_b32 {sT2}, {sT2}, {OOB}")
        pk_st.append(("vm", f"buffer_store_dwordx4 {vr(PDR[i3], 4)}, v1, {SWS}, {sT2} offen sc1", "pks"))
    lnflag = [f"s_lshl_b32 {sT1}, s2, 2\ns_add_u32 {sT1}, {sT1}, {LNF}\ns_cmp_eq_u32 {sW}, 0\ns_cselect_b32 {sT1}, {sT1}, {OOB}",
              lambda: flag_store(sT1)]
    wfflag = [f"s_lshl_b32 {sT1}, {sHS1}, 6\ns_add_u32 {sT1}, {sT1}, {sHS0}\ns_lshl_b32 {sT1}, {sT1}, 2\ns_add_u32 {sT1}, {sT1}, {WF}",
              f"s_cmp_eq_u32 {sW}, 0\ns_cselect_b32 {sT1}, {sT1}, {OOB}", lambda: flag_store(sT1)]

    add_group(dma_units(2), opt.get("d2", 8))
    add_group(pk_dma, 20)
    for st_ in range(1, 8):
        add_group(dma_units(st_ + 2), Bgap(st_) + (opt.get("d5", 12) if st_ == 3 else 0))
        if st_ == 2:
            add_group(pk_st, Bgap(2) + 8)
    G0 = 8 * KCHK + 4
    for phi in range(P1):
        add_group(wd_load(phi), G0)
    vsched = []
    occ = set()
    def place(q, pace):
        last = -pace
        for (ear, prel, vmi, post) in q:
            gq = max(ear, last + pace)
            while gq in occ:
                gq += 1
            assert gq < NG - 1, gq
            occ.add(gq)
            gaps[gq - 1] += prel
            head[gq].append(vmi)
            gaps[gq] = post + gaps[gq]
            last = gq
            vsched.append((gq, vmi[2] if isinstance(vmi, tuple) else "flag"))
    place(vq_big, PACE)
    def gap_of(tag):
        return max(gq for gq, t in vsched if t == tag)
    for st_ in range(1, 8):
        ge = gap_of(("dma", st_ + 2)) + 2
        if st_ == 2:
            add_group([f"s_lshl_b32 {sT1}, {sFT}, 1\ns_add_u32 {sT1}, {sT1}, {sC}\ns_lshl_b32 {sT1}, {sT1}, 3\ns_add_u32 {sT1}, {sT1}, {sM}",
                       f"s_lshl_b32 {sT1}, {sT1}, 1\ns_add_u32 {sT1}, {sT1}, {sRHO}\ns_lshl_b32 {sT1}, {sT1}, 8\ns_add_u32 {sT1}, {sT1}, {CSP}",
                       ("vm", f"buffer_store_dwordx2 {vr(4, 2)}, v6, {SWS}, {sT1} offen sc1", "pks")], gap_of("pks") + 1, True)
            add_group(lnflag, gap_of("pks") + 1, True)
        if st_ == 4:
            add_group(wfflag, ge - 1, True)
        if st_ == 5:
            add_group([("vm", f"buffer_load_dwordx4 {vr(vFL, 4)}, v{vFA}, {SWS}, 0 offen sc1", "poll"),
                       ("vm", f"buffer_load_dword v{PKV}, v{vFA + 1}, {SWS}, 0 offen sc1", "poll")], 8 * KCHK - 22, True)
        if TOUCH and st_ + TOUCH <= 9:
            if st_ == 1:
                for a in range(0, TOUCH - 3):
                    add_group(touch_units(a), ge, True)
            add_group(touch_units(TOUCH - 3), ge, True)
        if st_ == 6 and opt.get('wtouch'):
            for t3 in range(3):
                add_group([f"s_and_b32 {sT4}, {sLT}, 3\ns_mul_i32 {sT4}, {sT4}, {140 * 128}\ns_add_u32 {sT4}, {sT4}, {sWDS}" if t3 == 0 else f"s_add_u32 {sT4}, {sT4}, {48 * 128}",
                           ("vm", f"buffer_load_dword v{vFL + 4}, v{PKV + 1}, {SWS}, {sT4} offen sc1", "wtouch")], 8 * KCHK + 4 + 4 * t3, True)
    add_group([f"s_lshl_b32 {sT1}, {sFT}, 1\ns_add_u32 {sT1}, {sT1}, {sC}\ns_lshl_b32 {sT1}, {sT1}, 5\ns_add_u32 {sT1}, {sT1}, {sRHO}",
               f"s_lshl_b32 {sT1}, {sT1}, 7\ns_add_u32 {sT1}, {sT1}, {CSP}",
               ("vm", f"buffer_load_dwordx4 {vr(4, 4)}, v{vCS}, {SWS}, {sT1} offen sc1", "csp"),
               ("vm", f"buffer_load_dwordx4 {vr(8, 4)}, v{vCS}, {SWS}, {sT1} offen offset:2048 sc1", "csp")], G0, True)
    add_group([f"s_lshl_b32 {sT1}, {sM}, 2\ns_add_u32 {sT1}, {sT1}, {sW}\ns_lshl_b32 {sT1}, {sT1}, 10\ns_add_u32 {sT1}, {sT1}, {STATS}",
               ("vm", f"buffer_load_dwordx4 {vr(vSTA, 4)}, v15, {SWS}, {sT1} offen sc1", "stats"),
               ("vm", f"buffer_load_dwordx4 {vr(vSTA + 4, 4)}, v15, {SWS}, {sT1} offen offset:512 sc1", "stats")], G0, True)
    add_group(u_loads(sCP, 3), G0, True)
    place(sq, 1)
    vsched.sort()
    if opt.get("v"):
        print(vsched)
    assert all(gap_of(("dma", st_)) < Bgap(st_) - 20 for st_ in range(2, 10))
    assert gap_of("pkd") < Bgap(2) and gap_of("pks") < Bgap(4) - 16 and gap_of("poll") < 8 * KCHK - 6

    for i3 in range(3):
        for h in range(2):
            gaps[Bgap(2) + 5 + i3].append(("lds", f"ds_read_b64_tr_b16 {vr(PDR[i3] + 2 * h, 2)}, v{PKV + 3} offset:{128 * i3 + 8 * 320 * h}", "pk"))
    c4 = check4(vFL)
    gaps[8 * KCHK] += [("wvm", "poll")] + c4[0:2]
    gaps[8 * KCHK + 1] += c4[2:5]
    def chk():
        sl = g.newlab("Lslow")
        bk = g.newlab("Lback")
        e(f"v_xor_b32 v{PKV}, v{vTAG}, v{PKV}")
        e(f"v_or3_b32 v{vFL}, v{vFL}, v{vFL + 3}, v{PKV}")
        e(c4[6])
        e(f"s_cbranch_vccnz {sl}")
        g.lab(bk)
        g.slow.append((sl, bk, [(vFA, True), (vFA + 1, False)]))
    gaps[8 * KCHK + 2].insert(0, chk)

    CA = [4, 5, 6, 7, 42, 43, 44, 45]
    csum = []
    for j5 in range(5):
        csum.append(("wvm", ("csl", j5)))
        for d in range(4):
            r = CSR[j5] + d
            if j5 == 0:
                csum += [f"v_lshlrev_b32 v{CA[2 * d]}, 16, v{r}", f"v_and_b32 v{CA[2 * d + 1]}, {sMASK}, v{r}"]
            else:
                csum += [f"v_lshlrev_b32 v8, 16, v{r}", f"v_and_b32 v9, {sMASK}, v{r}",
                         f"v_add_f32 v{CA[2 * d]}, v{CA[2 * d]}, v8", f"v_add_f32 v{CA[2 * d + 1]}, v{CA[2 * d + 1]}, v9"]
    csum += ["s_nop 1"]
    csum += [f"v_permlane32_swap_b32 v{CA[c]}, v{CA[c + 4]}" for c in range(4)]
    csum += [f"v_add_f32 v{CA[c]}, v{CA[c]}, v{CA[c + 4]}" for c in range(4)]
    csum += ["s_nop 1"]
    csum += [f"v_permlane16_swap_b32 v{CA[c]}, v{CA[c + 2]}" for c in range(2)]
    csum += ["s_nop 0"]
    csum += [f"v_add_f32 v{CA[c]}, v{CA[c]}, v{CA[c + 2]}" for c in range(2)]
    csum += ["v_and_b32 v6, 7, v0", "v_lshlrev_b32 v6, 5, v6"]
    csum += [f"v_add_f32 v{CA[c]}, v{CA[c]}, v{CA[c]} row_ror:8" for c in range(2)]
    csum += ["v_lshrrev_b32 v7, 4, v0", "v_lshl_add_u32 v6, v7, 3, v6", f"v_mov_b32 v7, {OOB}",
             "v_and_b32 v8, 8, v0", "v_cmp_ne_u32 vcc, 0, v8\ns_nop 1\nv_cndmask_b32 v6, v6, v7, vcc"]
    fillq = pk_fill + (touch_setup() if TOUCH else []) + pk_fill2[:11]
    n_a = len(fillq)
    fillq += csum
    n_csum = len(fillq)
    n_early = len(pk_fill)
    fillq += pk_fill2[11:]
    n_early2 = len(fillq)
    fillq += [f"v_min_u32 v2, 53, v0", f"s_lshr_b32 {sF0}, {sDT}, 1", f"s_lshl_b32 {sF0}, {sF0}, 8",
              f"s_add_u32 {sF0}, {sF0}, {WF}", f"v_lshl_add_u32 v2, v2, 2, {sF0}",
              "v_and_b32 v3, 7, v0", "v_mul_u32_u24 v3, 27, v3", f"v_add_u32 v3, {sFT}, v3", "v_and_b32 v12, 3, v3",
              "v_lshrrev_b32 v3, 2, v3", "v_lshl_add_u32 v3, v12, 6, v3", "v_lshlrev_b32 v3, 2, v3", f"v_add_u32 v3, {WF}, v3",
              f"v_cmp_lt_u32 vcc, 55, v0\ns_nop 1\nv_cndmask_b32 v{vFA + 1}, v2, v3, vcc"]
    ai = addr_items()
    iw = max(i for i, x in enumerate(ai) if sWDS + "," in x)
    i0 = min(i for i, x in enumerate(ai) if f"{sF0}, {sW}, 14" in x)
    fillq += [ai[0]] + ai[i0:iw + 1] + [f"v_min_u32 v2, 47, v0", f"v_lshlrev_b32 v{PKV + 1}, 7, v2"]
    n_mid = len(fillq)
    fillq += ai[1:i0] + ai[i0:i0 + 3] + ai[iw + 1:]
    fillq += ["v_bfe_u32 v2, v0, 4, 1", f"v_mul_u32_u24 v2, {54 * 1024}, v2", "v_lshrrev_b32 v3, 5, v0",
              "v_lshl_add_u32 v2, v3, 8, v2", "v_and_b32 v12, 15, v0", "v_lshl_add_u32 v2, v12, 4, v2",
              f"s_lshl_b32 {sF0}, {sRHO}, 10", f"v_add_u32 v{vHO}, {sF0}, v2", f"s_xor_b32 {sF0}, {sF0}, 1024",
              f"v_add_u32 v{vHO + 1}, {sF0}, v2", f"s_lshl_b32 {sF0}, {sRHO}, 7", f"s_add_u32 {sF0}, {sF0}, {CSB}",
              f"v_lshl_add_u32 v13, v3, 4, {sF0}", "v_xor_b32 v14, 128, v13",
              "v_and_b32 v2, 7, v0", "v_lshlrev_b32 v12, 4, v2", "v_lshl_add_u32 v12, v3, 3, v12", "v_bfe_u32 v3, v0, 4, 1",
              "v_lshl_add_u32 v12, v3, 2, v12", f"s_lshl_b32 {sF0}, {sW}, 7", f"s_add_u32 {sF0}, {sF0}, {CSB}",
              f"v_add_u32 v12, {sF0}, v12", "v_lshrrev_b32 v3, 3, v0", "v_lshlrev_b32 v3, 8, v3", f"v_lshl_add_u32 v{vCS}, v2, 4, v3",
              "v_and_b32 v15, 31, v0", "v_lshlrev_b32 v15, 4, v15"]
    tail_fill = [f"s_lshl_b32 {sHS0}, {sM}, 2", f"s_add_u32 {sHS0}, {sHS0}, {sW}", f"s_lshl_b32 {sPEND}, {sHS0}, 5",
                 f"s_mul_i32 {sHS0}, {sHS0}, {4 * 54}", f"s_lshl_b32 {sT2}, {sFT}, 1", f"s_add_u32 {sHS0}, {sHS0}, {sT2}",
                 f"s_lshl_b32 {sHS0}, {sHS0}, 10", f"s_add_u32 {sHS0}, {sHS0}, {HB}", f"s_add_u32 {sHS1}, {sHS0}, {2 * 54 * 1024}",
                 f"s_add_u32 {sPEND}, {sPEND}, {sFT}", f"s_lshl_b32 {sPEND}, {sPEND}, 2", f"s_add_u32 {sPEND}, {sPEND}, {HF}"]
    cs_fill = [("wvm", "csp")] + [f"v_add_f32 v{4 + c}, v{4 + c}, v{8 + c}" for c in range(4)] + ["s_nop 0",
               "v_permlane32_swap_b32 v4, v6", "v_permlane32_swap_b32 v5, v7", "s_nop 0", "v_add_f32 v4, v4, v6", "v_add_f32 v5, v5, v7",
               "s_nop 1", "v_permlane16_swap_b32 v4, v5", "s_nop 0", "v_add_f32 v4, v4, v5", "s_nop 1",
               "v_add_f32 v4, v4, v4 row_ror:8", ("lds", "ds_write_b32 v12, v4", "csw")]
    nf_total = len(fillq)

    def cost(it):
        if isinstance(it, str):
            return it.count("\n") + 1
        return 1
    CAP = opt.get("cap", 4)
    for k in range(40):
        stage, ks = divmod(k, 4)
        A = vAF + 16 * (k & 1)
        B = vBF + 8 * (k & 1)
        gk = [head[8 * k + i] + gaps[8 * k + i] for i in range(8)]
        body = [[] for _ in range(8)]
        if k + 1 < 40:
            for i, it in enumerate(frag_reads(k + 1)):
                body[i // 2].append(it)
        if k == 39:
            for j in range(4):
                body[2 + j // 2].append(("lds", f"ds_read_b128 {vr(64 + 4 * j, 4)}, v13 offset:{32 * j}", "cs0"))
            for j in range(4):
                dst = (4 + 4 * j) if j < 2 else (96 + 4 * (j - 2))
                body[4 + j // 2].append(("lds", f"ds_read_b128 {vr(dst, 4)}, v13 offset:{256 + 32 * j}", "cs0"))
        else:
            load = [sum(map(cost, gk[i])) + len(body[i]) + (1 if i in (3, 7) else 0) for i in range(8)]
            q = fillq if fillq else tail_fill
            if k == KCHK:
                q = []
            if k in (33, 34) and cs_fill:
                q = cs_fill
            cap = CAP + (1 if k < 10 else 0)
            for i in range(8):
                while q and load[i] + cost(q[0]) <= cap + (2 if cost(q[0]) > 1 else 0):
                    it = q.pop(0)
                    body[i].append(it)
                    load[i] += cost(it)
            if k == 2:
                assert nf_total - len(fillq) >= n_early, (nf_total - len(fillq), n_early)
            if k == 5:
                assert nf_total - len(fillq) >= n_a
            if k == 6:
                assert nf_total - len(fillq) >= n_a + 30
            if k == 9:
                assert nf_total - len(fillq) >= n_csum
            if k == 13:
                assert nf_total - len(fillq) >= n_early2
            if k == KCHK - 4:
                assert nf_total - len(fillq) >= n_mid
            if 8 * k + 8 > gap_of("stats") - 4:
                assert not fillq, (k, len(fillq))
            if k < 17:
                assert len(tail_fill) == 12
        if ks == 3 and stage < 9:
            stamp(f"c_w{stage + 1}", cyc=True)
            g.wlg0()
            if stage == 1:
                g.wvm("lnst")
                g.wvm("pkd")
            if stage == 3:
                g.wvm("pks")
            g.wvm(("dma", stage + 1))
            e("s_barrier")
            stamp(f"c_b{stage + 1}", cyc=True)
        for i in range(8):
            t, b = divmod(i, 2)
            if k == 0:
                g.wlg(("A", k, t))
                g.wlg(("B", k, b))
            elif i == 0:
                g.wlg(("A", k, 1))
            elif i == 4:
                g.wlg(("A", k, 3))
            D = vACC + 16 * (2 * t + b)
            Cs = "0" if k == 0 else vr(D, 16)
            e(f"v_mfma_f32_32x32x16_bf16 {vr(D, 16)}, {vr(A + 4 * t, 4)}, {vr(B + 4 * b, 4)}, {Cs}")
            for it in head[8 * k + i]:
                if isinstance(it, tuple) and it[2] == "pks":
                    g.wlg("pk")
                g.do(it)
            for it in body[i] + gaps[8 * k + i]:
                g.do(it)
    assert not tail_fill and not cs_fill
    stamp("c_g1e", cyc=True)
    stamp("g1_loop_end", flush=True)

    def csu0(i):
        return (4 + i) if i < 8 else (96 + i - 8)
    def csu1(i):
        return (104 + i) if i < 8 else (28 + i - 8)
    tmps = [24, 26, 36, 38]
    g.wvm("stats")
    g.wlg("cs0")
    e(f"s_cmp_lg_u32 {sC}, 0")
    e("s_cbranch_scc1 L_epiB")
    vm_save, lg_save = list(g.vm), list(g.lg)
    for variant in range(2):
        if variant == 1:
            align()
            g.lab("L_epiB")
            g.vm, g.lg = list(vm_save), list(lg_save)
        align()
        for ap in range(2):
            for b in range(2):
                gs, us = (ap, 2 + ap) if variant == 0 else (2 + ap, ap)
                Gt = vACC + 16 * (2 * gs + b)
                Ut = vACC + 16 * (2 * us + b)
                st = vSTA + 4 * b
                if ap == 0 and b == 1:
                    for j in range(4):
                        g.lds(f"ds_read_b128 {vr(80 + 4 * j, 4)}, v14 offset:{32 * j}", "cs1")
                    for j in range(4):
                        dst = (104 + 4 * j) if j < 2 else (28 + 4 * (j - 2))
                        g.lds(f"ds_read_b128 {vr(dst, 4)}, v14 offset:{256 + 32 * j}", "cs1")
                if ap == 1 and b == 0:
                    g.wlg("cs1")
                    align()
                csg = (lambda i: 64 + i) if ap == 0 else (lambda i: 80 + i)
                csu = csu0 if ap == 0 else csu1
                for c in range(2):
                    O = 16 if c == 0 else 20
                    ps = range(4 * c, 4 * c + 4)
                    for p in ps:
                        e(f"v_pk_fma_f32 {vr(Gt + 2 * p, 2)}, {vr(csg(2 * p), 2)}, {vr(st, 2)}, {vr(Gt + 2 * p, 2)} op_sel_hi:[1,0,1]")
                    for p in ps:
                        e(f"v_pk_mul_f32 {vr(tmps[p % 4], 2)}, {vr(Gt + 2 * p, 2)}, {vr(Gt + 2 * p, 2)}")
                    for p in ps:
                        t = tmps[p % 4]
                        e(f"v_pk_fma_f32 {vr(t, 2)}, {vr(t, 2)}, {vr(st, 2)}, {vr(st + 2, 2)} op_sel:[0,1,0] op_sel_hi:[1,1,0]")
                    for p in ps:
                        t = tmps[p % 4]
                        e(f"v_pk_mul_f32 {vr(t, 2)}, {vr(t, 2)}, {vr(Gt + 2 * p, 2)}")
                    for p in ps:
                        t = tmps[p % 4]
                        e(f"v_exp_f32 v{t}, v{t}")
                        e(f"v_exp_f32 v{t + 1}, v{t + 1}")
                    for p in ps:
                        e(f"v_pk_fma_f32 {vr(Ut + 2 * p, 2)}, {vr(csu(2 * p), 2)}, {vr(st, 2)}, {vr(Ut + 2 * p, 2)} op_sel_hi:[1,0,1]")
                    for p in ps:
                        t = tmps[p % 4]
                        e(f"v_pk_fma_f32 {vr(t, 2)}, {vr(t, 2)}, {vr(st + 2, 2)}, {vr(st + 2, 2)} op_sel:[0,1,1] op_sel_hi:[1,1,1]")
                    for p in ps:
                        t = tmps[p % 4]
                        e(f"v_rcp_f32 v{t}, v{t}")
                        e(f"v_rcp_f32 v{t + 1}, v{t + 1}")
                    for p in ps:
                        e(f"v_pk_mul_f32 {vr(Gt + 2 * p, 2)}, {vr(Gt + 2 * p, 2)}, {vr(Ut + 2 * p, 2)}")
                    for p in ps:
                        e(f"v_pk_mul_f32 {vr(Gt + 2 * p, 2)}, {vr(Gt + 2 * p, 2)}, {vr(tmps[p % 4], 2)}")
                    for p in ps:
                        e(f"v_cvt_pk_bf16_f32 v{O + p - 4 * c}, v{Gt + 2 * p}, v{Gt + 2 * p + 1}")
                    g.vmem(f"buffer_store_dwordx4 {vr(O, 4)}, v{vHO + ap}, {SWS}, {sHS0 if b == 0 else sHS1} offen offset:{512 * c} sc1", "hst")
        if variant == 0:
            e("s_branch L_epi_done")
    g.lab("L_epi_done")
    stamp("c_epe", cyc=True)
    stamp("g1_epi_end", flush=True)
    e(f"s_mov_b32 {sK1}, 1")
    e(f"s_mov_b32 {sMASK}, {OOB}")
    e("s_branch L_rb1")

    g.lab("L_spare")
    g.vm = []
    g.lg = []
    for it in addr_items():
        g.do(it)
    e("v_min_u32 v2, 53, v0")
    e(f"s_lshr_b32 {sF0}, {sDT}, 1")
    e(f"s_lshl_b32 {sF0}, {sF0}, 8")
    e(f"s_add_u32 {sF0}, {sF0}, {WF}")
    e(f"v_lshl_add_u32 v{vFA + 1}, v2, 2, {sF0}")
    e(f"s_mov_b32 {sK1}, {sRND}")
    e(f"s_lshl_b32 {sMASK}, s2, 2")
    e(f"s_add_u32 {sMASK}, {sMASK}, {LNF}")
    e(f"s_cmp_eq_u32 {sW}, 0")
    e(f"s_cselect_b32 {sMASK}, {sMASK}, {OOB}")
    e(f"s_mov_b32 {sPEND}, {OOB}")
    e("s_waitcnt vmcnt(4)")
    e("s_barrier")
    stamp("sp_ready", flush=True)

    g.lab("L_rb1")
    e(f"s_mov_b32 {sKR}, 0")
    for i in range(30):
        e(f"v_accvgpr_read_b32 v{SC + i}, a{AST + i}")
    AK = 46
    for i in range(8):
        e(f"v_accvgpr_read_b32 v{AK + i}, a{AS2 + 1 + i}")
    vKA_A, vKA_B, vZ, vRW, vUW, vYS, vFB, vGB = range(AK, AK + 8)

    g.lab("L_kgen")
    g.vm = []
    g.lg = []
    KA = 128
    WA = KA + 6
    for k6 in (4, 5, 0, 1, 2, 3):
        e(f"v_accvgpr_read_b32 v{vPAR + k6}, a{APAR + k6}")
    e(f"v_accvgpr_read_b32 v{WA}, a{AS2}")
    e(f"s_lshl_b32 {sT1}, {sC}, 4")
    e(f"v_lshrrev_b32 v{KA}, {sT1}, v{vPAR + 4}")
    e(f"v_lshlrev_b32 v{KA}, 16, v{KA}")
    e(f"v_mul_f32 v{KA}, {hex(f2u(LOG2E))}, v{KA}")
    e(f"v_exp_f32 v{KA}, v{KA}")
    e(f"v_lshrrev_b32 v{KA + 7}, {sT1}, v{vPAR + 5}")
    e(f"v_lshlrev_b32 v{KA + 7}, 16, v{KA + 7}")
    bf16round(KA)
    e(f"v_lshlrev_b32 v{KA + 2}, 16, v{vPAR}")
    e(f"v_and_b32 v{KA + 3}, 0xffff0000, v{vPAR}")
    e(f"v_mul_f32 v{KA + 2}, {hex(f2u(LOG2E))}, v{KA + 2}")
    e(f"v_mul_f32 v{KA + 3}, {hex(f2u(LOG2E))}, v{KA + 3}")
    e(f"v_exp_f32 v{KA + 2}, v{KA + 2}")
    e(f"v_exp_f32 v{KA + 3}, v{KA + 3}")
    e(f"v_lshlrev_b32 v{KA + 4}, 16, v{vPAR + 1}")
    e(f"v_and_b32 v{KA + 5}, 0xffff0000, v{vPAR + 1}")
    e(f"v_cvt_pk_bf16_f32 v{KA + 1}, v{KA + 2}, v{KA + 3}")
    CC = 152
    e(f"v_lshlrev_b32 v{CC}, 16, v{vPAR + 2}")
    e(f"v_lshlrev_b32 v{CC + 1}, 16, v{vPAR + 3}")
    e(f"v_and_b32 v{CC + 2}, 0xffff0000, v{vPAR + 2}")
    e(f"v_and_b32 v{CC + 3}, 0xffff0000, v{vPAR + 3}")
    e(f"v_lshlrev_b32 v{KA + 2}, 16, v{KA + 1}")
    e(f"v_and_b32 v{KA + 3}, 0xffff0000, v{KA + 1}")
    for m in range(2):
        e(f"v_mul_f32 v{KA + 2 + m}, v{KA + 2 + m}, v{KA}")
        e(f"v_mul_f32 v{KA + 4 + m}, v{KA + 4 + m}, v{KA}")
    for m in range(2):
        e(f"v_mul_f32 v{KA + 2 + m}, {hex(f2u(-LOG2E))}, v{KA + 2 + m}")
        e(f"v_mul_f32 v{KA + 4 + m}, {hex(f2u(1.0 / (2 * math.pi)))}, v{KA + 4 + m}")
    SIG, OMG = KA + 2, KA + 4

    def cexp(dst, p, t):
        for m in range(2):
            e(f"v_mul_f32 v{t + m}, {hex(f2u(float(p)))}, v{SIG + m}")
            e(f"v_mul_f32 v{t + 2 + m}, {hex(f2u(float(p)))}, v{OMG + m}")
        for m in range(2):
            e(f"v_fract_f32 v{t + 2 + m}, v{t + 2 + m}")
        for m in range(2):
            e(f"v_exp_f32 v{t + m}, v{t + m}")
            e(f"v_cos_f32 v{dst + 2 * m}, v{t + 2 + m}")
            e(f"v_sin_f32 v{dst + 2 * m + 1}, v{t + 2 + m}")
        e("s_nop 0")
        align()
        for m in range(2):
            e(f"v_pk_mul_f32 {vr(dst + 2 * m, 2)}, {vr(dst + 2 * m, 2)}, {vr(t, 2)} op_sel:[0,{m}] op_sel_hi:[1,{m}]")

    def cmul(dst, P, Q, t):
        for m in range(2):
            e(f"v_pk_mul_f32 {vr(t + 2 * m, 2)}, {vr(P + 2 * m, 2)}, {vr(Q + 2 * m, 2)} op_sel_hi:[0,1]")
        for m in range(2):
            e(f"v_pk_fma_f32 {vr(dst + 2 * m, 2)}, {vr(P + 2 * m, 2)}, {vr(Q + 2 * m, 2)}, {vr(t + 2 * m, 2)} op_sel:[1,1,0] op_sel_hi:[1,0,1] neg_lo:[0,1,0]")

    prow = [0]

    def put(src, row, neg, lastrow=False):
        o = 144 + 2 * (row % 4)
        ng = "-" if neg else ""
        if src is not None:
            e(f"v_cvt_pk_f16_f32 v{o}, v{src}, {ng}v{src + 1}")
            e(f"v_cvt_pk_f16_f32 v{o + 1}, v{src + 2}, {ng}v{src + 3}")
        if row % 2 == 1:
            o0 = ((row - 1) % 4) * 68
            g.lds(f"ds_write2_b64 v{WA}, {vr(o - 2, 2)}, {vr(o, 2)} offset0:{o0} offset1:{o0 + 68}", "xy")
            if row % 4 == 3:
                e(f"v_add_u32 v{WA}, {4 * XYP}, v{WA}")
        elif lastrow:
            g.lds(f"ds_write_b64 v{WA}, {vr(o, 2)} offset:{(row % 4) * XYP}", "xy")

    e(f"s_cmp_lg_u32 {sRHO}, 0")
    e("s_cbranch_scc1 L_role1")
    W8, YA, YB_, TM = 152, 156, 160, 136
    e(f"v_add_u32 v{WA}, {32 * XYP}, v{WA}")
    cexp(W8, 8, TM)
    e("v_mov_b32 v144, 0x3c00")
    e("v_mov_b32 v145, 0x3c00")
    put(W8, 33, False)
    cur = W8
    for j in range(2, 32):
        nxt = YA if cur != YA else YB_
        cmul(nxt, cur, W8, TM)
        put(nxt, 32 + j, False)
        cur = nxt
    e("s_branch L_kbar")
    align()
    g.lab("L_role1")
    MX = 136
    e(f"v_max_f32 v{MX}, |v{CC}|, |v{CC + 1}|")
    e(f"v_max3_f32 v{MX}, |v{CC + 2}|, |v{CC + 3}|, v{MX}")
    red("v_max_f32", MX, MX + 1, True)
    e(f"v_frexp_exp_i32_f32 v{MX}, v{MX}")
    e(f"v_add_f32 v{KA}, v{KA}, v{KA}")
    e(f"v_ldexp_f32 v{MX + 2}, v{KA}, v{MX}")
    e(f"v_mov_b32 v{MX + 3}, v{KA + 7}")
    e(f"v_sub_u32 v{MX}, 0, v{MX}")
    for i in range(4):
        e(f"v_ldexp_f32 v{CC + i}, v{CC + i}, v{MX}")
    e(f"v_add_u32 v{MX + 1}, {sKR}, v{vYS}")
    e(f"v_mov_b32 v{MX}, 0")
    g.lds(f"ds_write_b64 v{MX + 1}, {vr(MX + 2, 2)} offset:{YSO}", "xy")
    g.lds(f"ds_write_b32 v{MX + 1}, v{MX}", "xy")
    Z, Q, Q4 = 156, 160, 164
    cexp(Z, 1, TM)
    cexp(Q, 256, TM)
    cexp(Q4, 1024, TM)
    X = [168 + 4 * i for i in range(8)]
    X[0] = CC
    put(CC, 0, True)
    for s in range(1, 8):
        cmul(X[s], X[s - 1], Z, TM)
        put(X[s], s, True)
    R8 = [200 + 4 * i for i in range(4)]
    for s in range(4):
        cmul(R8[s], X[2 * s], Q, TM)
        put(R8[s], 8 + s, True)
    R12 = [216, 220]
    for s in range(2):
        cmul(R12[s], R8[2 * s], Q, TM)
        put(R12[s], 12 + s, True)
    for s in range(2):
        cmul(X[1 + 2 * s], R12[s], Q, TM)
        put(X[1 + 2 * s], 14 + s, True)
    cmul(R8[0], CC, Q4, TM)
    put(R8[0], 16, True)
    cmul(R8[1], R8[0], Q, TM)
    put(R8[1], 17, True)
    cmul(R8[3], R8[1], Q, TM)
    put(R8[3], 18, True)
    cmul(R8[1], R8[3], Q, TM)
    put(R8[1], 19, True)
    cmul(R8[2], R8[0], Q4, TM)
    put(R8[2], 20, True, lastrow=True)
    g.lab("L_kbar")
    e("v_mov_b32 v4, 0\nv_mov_b32 v5, 0\nv_mov_b32 v6, 0\nv_mov_b32 v7, 0")
    g.lds(f"ds_write_b128 v{vZ}, {vr(4, 4)}", "z")
    stamp("c_kve", cyc=True)
    stamp("kvalu_end")
    e("s_waitcnt vmcnt(0)")
    flag_store(sPEND)
    g.wlg0()
    e("s_barrier")
    flag_store(sMASK)
    e(f"s_mov_b32 {sMASK}, {OOB}")
    stamp("kbar", flush=True)
    KF = 64
    for ks in range(8):
        g.lds(f"ds_read_b128 {vr(KF + 4 * ks, 4)}, v{vKA_A} offset:{XYB + 64 * ks}", ("ka", ks))
        g.lds(f"ds_read_b128 {vr(128 + 4 * ks, 4)}, v{vKA_B} offset:{XYB + 32 * XYP + 64 * ks}", ("kb0", ks))
        g.lds(f"ds_read_b128 {vr(160 + 4 * ks, 4)}, v{vKA_B} offset:{XYB + 48 * XYP + 64 * ks}", ("kb1", ks))
    KD = 96
    for ks in range(8):
        g.wlg(("kb1", ks))
        e(f"v_mfma_f32_16x16x32_f16 {vr(KD, 4)}, {vr(KF + 4 * ks, 4)}, {vr(128 + 4 * ks, 4)}, {'0' if ks == 0 else vr(KD, 4)}")
        e(f"v_mfma_f32_16x16x32_f16 {vr(KD + 4, 4)}, {vr(KF + 4 * ks, 4)}, {vr(160 + 4 * ks, 4)}, {'0' if ks == 0 else vr(KD + 4, 4)}")
    e(f"s_sub_u32 {sK1}, {sK1}, 1")
    g.nop(6)
    for i in range(8):
        g.lds(f"ds_write_b32 v{SC + i}, v{KD + i}", "tw")
    e(f"s_cmp_eq_u32 {sK1}, 0")
    e("s_cbranch_scc1 L_kdone")
    e(f"s_add_u32 {sKR}, {sKR}, {2 * TC}")
    for i in range(8):
        e(f"v_add_u32 v{SC + i}, {2 * TC}, v{SC + i}")
    for i in range(6):
        e(f"v_accvgpr_mov_b32 a{APAR + i}, a{APAR + 8 + i}")
        e(f"v_accvgpr_mov_b32 a{APAR + 8 + i}, a{APAR + 16 + i}")
    e("s_waitcnt lgkmcnt(0)")
    e("s_barrier")
    e("s_branch L_kgen")
    g.lab("L_kdone")
    e(f"s_cmp_lg_u32 {sISG1}, 0")
    e("s_cbranch_scc1 L_conv_last")
    e(f"s_cmp_lg_u32 {sW}, 0")
    e("s_cbranch_scc1 L_sp_polled")
    poll_block(vFA, True, sleep=16)
    g.lab("L_sp_polled")
    e("s_barrier")
    e(f"s_mov_b32 {sK0}, {OOB}")
    for it in u_loads(sCP, 2):
        g.do(it)

    Greg = [[224 + 4 * i for i in range(8)], [192 + 4 * i for i in range(8)]]
    FB = [128, 160]
    CACC = 64
    HRING = [16 + 4 * i for i in range(12)] + [104 + 4 * i for i in range(3)] + [128 + 4 * i for i in range(26)]
    NE = opt.get("ne", 8)
    P2 = opt.get("p2", 40)
    NB = len(HRING)
    YS, DK = 100, 101

    def hload(i):
        k, st = divmod(i, 14)
        r = HRING[i % NB]
        if st == 13:
            return [f"s_cmp_lt_u32 {sW}, 2\ns_cselect_b32 {sT4}, s{sG2 + 4 * k + 3}, {OOB}",
                    ("vm", f"buffer_load_dwordx4 {vr(r, 4)}, v1, {SWS}, {sT4} offen offset:1024 sc1", ("h", i))]
        return [("vm", f"buffer_load_dwordx4 {vr(r, 4)}, v1, {SWS}, s{sG2 + 4 * k + st // 4} offen offset:{(st % 4) * 1024} sc1", ("h", i))]

    def conv(last):
        tag = "L" if last else "E"
        g.lab("L_conv_last" if last else "L_conv_early")
        g.vm = ["u", "u"]
        g.lg = ["tw"]
        def wd_e(phi):
            its = wd_load(phi)
            if len(its) > 1:
                its.insert(1, f"s_or_b32 {sT5}, {sT5}, {sK0}")
            return its
        if last:
            wq = [[f"s_add_u32 m0, {sXT}, {1024 * kk}", "s_nop 0",
                   ("vm", f"buffer_load_dwordx4 v{12 + kk}, {SX}, {sXO} offen lds", ("xt", 0))] for kk in range(3)]
            wq += [wd_load(phi) for phi in range(P1, 70)]
            for i7 in range(7):
                e(f"v_accvgpr_read_b32 v{9 + i7}, a{AS2 + 14 + i7}")
        else:
            wq = [wd_e(phi) for phi in range(0, P1)]
            g.vmem(f"buffer_load_dword v{vFL}, v{vFA + 1}, {SWS}, 0 offen sc1", "wfp")
        def wdl(n=1):
            for _ in range(n):
                if wq:
                    for it in wq.pop(0):
                        g.do(it)
        g.wlg0()
        e("s_barrier")
        EG = 128
        for ch in range(2):
            for k in range(11):
                g.lds(f"ds_read_b32 v{EG + 12 * ch + k}, v{GA + 11 * ch + k}", ("eg", ch))
        g.lds(f"ds_read_b64 {vr(YS, 2)}, v{vYS} offset:{YSO}", "ysc")
        if last:
            wdl(2)
        g.wvm("u")
        g.lds(f"ds_write_b128 v{vUW}, {vr(vU, 4)}", "uw")
        g.lds(f"ds_write_b128 v{vUW}, {vr(vU + 4, 4)} offset:512", "uw")
        if last:
            e(f"s_or_b32 {sT1}, s2, {sW}")
            e(f"s_cmp_eq_u32 {sT1}, 0")
            e(f"s_cselect_b32 {sT1}, {EPOCH}, {OOB}")
            flag_store(sT1)
        EO = 64
        for ch in range(2):
            g.wlg(("eg", ch))
            align()
            for s in range(4):
                o = EO + 16 * ch + 4 * s
                for j in range(4):
                    e(f"v_cvt_pk_f16_f32 v{o + j}, v{EG + 12 * ch + s + 2 * j}, v{EG + 12 * ch + s + 2 * j + 1}")
                g.lds(f"ds_write_b128 v{vRW}, {vr(o, 4)} offset:{s * RCS + 1024 * ch}", "rw")
                if last and s % 2 == 1:
                    wdl()
        if last:
            wdl()
        else:
            g.wvm("wfp")
            e(f"v_cmp_ne_u32 vcc, v{vTAG}, v{vFL}")
            e("s_nop 0")
            e("s_cmp_eq_u64 vcc, 0")
            e(f"s_cselect_b32 {sK0}, 0, {OOB}")
        extra = [f"v_accvgpr_read_b32 v{4 + i}, a{AS2 + 9 + i}" for i in range(5)]
        extra += [f"s_lshl_b32 {sT1}, {sCP}, 1", f"s_add_u32 {sT1}, {sT1}, {sC}", f"s_lshl_b32 {sT1}, {sT1}, 12",
                  f"s_lshl_b32 {sT3}, {sRHO}, 11", f"s_add_u32 {sT1}, {sT1}, {sT3}", f"s_add_u32 {sHS0}, {sT1}, {ST}",
                  f"s_mul_i32 {sT2}, {sCP}, 1639", f"s_lshr_b32 {sT2}, {sT2}, 16", f"s_mul_i32 {sT2}, {sT2}, 24",
                  f"s_add_u32 {sT2}, {sT2}, {sCP}", f"s_lshl_b32 {sT2}, {sT2}, 2", f"s_add_u32 {sT2}, {sT2}, {sW}",
                  f"s_lshl_b32 {sT2}, {sT2}, 2", f"s_add_u32 {sPEND}, {sT2}, {SF}"]
        if last:
            extra += [f"v_accvgpr_read_b32 v{vFA + i}, a{AS2 + 21 + i}" for i in range(2)]
            extra += ["v_min_u32 v3, 53, v0", "v_lshlrev_b32 v3, 7, v3",
                      f"s_lshl_b32 {sT0}, {sDT}, 2", f"s_add_u32 {sT0}, {sT0}, {sW}", f"s_mul_i32 {sT0}, {sT0}, {54 * 128}",
                      f"s_mul_i32 {sHS1}, {sLT}, {4 * 54 * 1024}", f"s_add_u32 {sHS1}, {sHS1}, {sT0}", f"s_add_u32 {sHS1}, {sHS1}, {HB}"]
        g.wlg0()
        e("s_barrier")
        stamp("c_cs" + tag, cyc=True)
        stamp("conv_start" + tag)

        def cls_reads(dl):
            bf = dl & 1
            out = []
            for s in range(8):
                out.append(("lds", f"ds_read_b128 {vr(Greg[bf][s], 4)}, v{vGB} offset:{512 * s + 64 * (3 - dl)}", ("G", dl, s)))
                off = 64 * (59 - dl - 8 * s)
                out.append(("lds", f"ds_read_b64 {vr(FB[bf] + 4 * s, 2)}, v{vFB} offset:{off}", ("F", dl, s)))
                out.append(("lds", f"ds_read_b64 {vr(FB[bf] + 4 * s + 2, 2)}, v{vFB} offset:{off + 8}", ("F", dl, s)))
            return out
        for it in cls_reads(0):
            g.do(it)
        order = sorted([(s, gg) for s in range(8) for gg in range(8) if s + gg < 8], key=lambda x: (max(x), x[0] + x[1]))
        seen = set()
        hq = []
        US, UD = 2, 96
        for dl in range(4):
            bf = dl & 1
            nxt = cls_reads(dl + 1) if dl < 3 else []
            if dl == 3:
                nxt = [("lds", f"ds_read_b64 {vr(128 + 2 * tt, 2)}, v6 offset:{512 * tt}", "us") for tt in range(4)]
                nxt += [None] * 6 + [("wlg", "us")]
                for tt in range(4):
                    for i in range(4):
                        src = 128 + 2 * tt + (i >> 1)
                        nxt.append(f"v_fma_mix_f32 v{136 + 4 * tt + i}, v{src}, v{DK}, 0 op_sel:[{i & 1},0,0] op_sel_hi:[1,0,0]")
            if dl > 0:
                g.wlg(("F", dl, 7))
            for mi, (s, gg) in enumerate(order):
                t = s + gg
                if dl == 0:
                    g.wlg(("G", dl, gg))
                    g.wlg(("F", dl, s))
                Cs = "0" if t not in seen else vr(CACC + 4 * t, 4)
                seen.add(t)
                e(f"v_mfma_f32_16x16x32_f16 {vr(CACC + 4 * t, 4)}, {vr(FB[bf] + 4 * s, 4)}, {vr(Greg[bf][gg], 4)}, {Cs}")
                start = 8 if dl == 0 else 1
                if mi >= start and nxt:
                    it = nxt.pop(0)
                    if it is not None:
                        g.do(it)
                elif extra:
                    g.do(extra.pop(0))
                if mi % 2 == 1 and extra and mi >= start:
                    g.do(extra.pop(0))
                mc = 36 * dl + mi
                if mc % 4 == 2:
                    nphi = wq[0][-1][2][1] if wq else 0
                    if last and mc == opt.get("hfp", 98):
                        assert not extra
                        g.vmem(f"buffer_load_dword v{vFL}, v{vFA}, {SWS}, 0 offen sc1", "hfp")
                    elif wq and not (last and extra and nphi >= 48) and not (nphi >= 64 and dl < 3):
                        wdl()
            assert not nxt, len(nxt)
        assert not wq and not extra, (len(wq), len(extra))
        if last:
            g.wvm("hfp")
            e(f"v_cmp_ne_u32 vcc, v{vTAG}, v{vFL}")
            e("s_nop 0")
            e("s_cmp_eq_u64 vcc, 0")
            e(f"s_cselect_b32 {sK1}, 1, 0")
            e(f"s_cselect_b32 {sT0}, 0, {OOB}")
            hq.append([f"s_or_b32 {sT4}, {sHS1}, {sT0}", ("vm", f"buffer_load_dword v{vFL + 4}, v3, {SWS}, {sT4} offen sc1", "ht")])
            for i in range(NE):
                pre_ = [f"s_or_b32 {sT4}, s{sG2 + i // 4}, {sT0}"] if i % 4 == 0 else []
                hq.append(pre_ + [("vm", f"buffer_load_dwordx4 {vr(HRING[i], 4)}, v1, {SWS}, {sT4} offen offset:{(i % 4) * 1024} sc1", ("he", i))])
        def hl(n=1):
            for _ in range(n):
                if hq:
                    for it in hq.pop(0):
                        g.do(it)
        hl(2)
        stamp("c_ce" + tag, cyc=True)
        stamp("conv_end" + tag)
        lr1 = g.newlab("Lfin1")
        lfd = g.newlab("Lfind")
        e(f"s_cmp_lg_u32 {sRHO}, 0")
        e(f"s_cbranch_scc1 {lr1}")
        lg_save, pst_save, sf_save = list(g.lg), list(g.pst), list(g.sfree)
        for rho in range(2):
            if rho == 1:
                g.lab(lr1)
                g.lg, g.pst, g.sfree = list(lg_save), list(pst_save), list(sf_save)
            own = CACC + 16 * rho
            oth = CACC + 16 * (1 - rho)
            g.nop(6)
            for tt in range(4):
                g.lds(f"ds_write_b128 v4, {vr(oth + 4 * tt, 4)} offset:{PB + 1024 * tt}", "pw")
            align()
            for tt in range(4):
                for i in range(4):
                    e(f"v_fma_f32 v{136 + 4 * tt + i}, v{own + 4 * tt + i}, v{YS}, v{136 + 4 * tt + i}")
            if rho == 0:
                e(f"s_branch {lfd}")
        g.lab(lfd)
        hl(1)
        g.wlg0()
        e("s_barrier")
        for tt in range(4):
            g.lds(f"ds_read_b128 {vr(152 + 4 * tt, 4)}, v5 offset:{PB + 1024 * tt}", ("pr", tt))
        hl(2)
        for tt in range(4):
            g.wlg(("pr", tt))
            for i in range(4):
                e(f"v_fmac_f32 v{136 + 4 * tt + i}, v{152 + 4 * tt + i}, v{YS}")
            for h in range(2):
                e(f"v_cvt_pk_bf16_f32 v{128 + 2 * tt + h}, v{136 + 4 * tt + 2 * h}, v{136 + 4 * tt + 2 * h + 1}")
            g.lds(f"ds_write_b64 v7, {vr(128 + 2 * tt, 2)} offset:{512 * tt}", "sw")
            if tt == 1:
                hl(1)
        hl(1)
        g.wlg0()
        for j in range(2):
            g.lds(f"ds_read_b128 {vr(88 + 4 * j, 4)}, v8 offset:{1024 * j}", ("sr", j))
        hl(2)
        assert not hq
        if not last:
            e(f"s_add_u32 {sCP}, {sCP}, 40")
            for i in range(22):
                e(f"v_add_u32 v{GA + i}, {2 * TC}, v{GA + i}")
            e(f"v_add_u32 v{vYS}, {2 * TC}, v{vYS}")
        for j in range(2):
            g.wlg(("sr", j))
            g.vmem(f"buffer_store_dwordx4 {vr(88 + 4 * j, 4)}, v1, {SWS}, {sHS0} offen offset:{1024 * j} sc1", "sst")
        if not last:
            for it in u_loads(sCP, 2):
                g.do(it)
            g.wvm("sst")
            flag_store(sPEND)
            e(f"s_sub_u32 {sRND}, {sRND}, 1")
            e(f"s_cmp_lg_u32 {sRND}, 1")
            e("s_cbranch_scc1 L_conv_early")
            e(f"s_cmp_eq_u32 {sK0}, 0")
            e("s_cbranch_scc1 L_conv_last")
            poll_block(vFA + 1, False, sleep=10)
            for phi in range(P1):
                for it in wd_load(phi):
                    e(it[1] if isinstance(it, tuple) else it)

    conv(False)
    conv(True)

    e(f"s_cmp_lg_u32 {sK1}, 0")
    e("s_cbranch_scc1 L_hready")
    poll_block(vFA, False)
    e(f"buffer_load_dword v{vFL + 4}, v3, {SWS}, {sHS1} offen sc1")
    for i in range(NE):
        for it in hload(i):
            e(it[1] if isinstance(it, tuple) else it)
    g.lab("L_hready")
    stamp("c_g2s", cyc=True)
    stamp("g2_start")
    g.vm = [("h", i) for i in range(NE)]
    AC = [64, 84]
    lateq = [hload(i) for i in range(NE, NB)]
    fq = ["v_lshrrev_b32 v8, 3, v0", "v_lshlrev_b32 v8, 12, v8", "v_and_b32 v2, 7, v0", "v_lshl_add_u32 v8, v2, 4, v8",
          f"s_mul_i32 {sT1}, {sW}, 15360", f"v_add_u32 v2, {sT1}, v1",
          "v_lshrrev_b32 v3, 2, v0", "v_lshlrev_b32 v3, 7, v3", "v_and_b32 v4, 3, v0", "v_lshl_add_u32 v3, v4, 3, v3",
          f"s_lshl_b32 {sT1}, {sW}, 5", f"s_add_u32 {sT1}, {sT1}, {STB}", f"v_add_u32 v3, {sT1}, v3",
          "v_and_b32 v4, 15, v0", "v_mul_u32_u24 v4, 160, v4", "v_lshrrev_b32 v5, 4, v0", "v_lshl_add_u32 v4, v5, 3, v4",
          f"v_add_u32 v4, {sXT}, v4", f"v_add_u32 v5, {sXT}, v1",
          f"s_lshl_b32 {sT2}, {sW}, 10", f"s_add_u32 {sHS1}, {sT2}, {STB}"]
    XR, XU = 16, 28
    SFP = opt.get("sfp", 38)
    for i in range(56):
        k, st = divmod(i, 14)
        A0 = AC[k & 1]
        g.wvm(("h", i))
        r = HRING[i % NB]
        extra = [[] for _ in range(5)]
        if st == 1 and k >= 1:
            pa = AC[(k - 1) & 1]
            for j in range(5):
                extra[j].append(("lds", f"ds_write_b128 v{9 + k - 1}, {vr(pa + 4 * j, 4)} offset:{1024 * j}", "exw"))
        for j in ((i % 4,) if i % 4 else (0, 4)):
            if lateq:
                extra[j] += lateq.pop(0)
        if i == NE:
            def sflag():
                n = sum(1 for t in g.vm if t[0] == "h" and t[1] >= NE)
                e(f"s_waitcnt vmcnt({n})")
                flag_store(sPEND)
            extra[1].append(sflag)
        if 22 <= i < 30:
            for j in (1, 3, 4):
                if fq:
                    extra[j].append(fq.pop(0))
        if i == SFP:
            extra[0].append(("vm", f"buffer_load_dwordx4 {vr(vFL, 4)}, v{vFA + 1}, {SWS}, 0 offen sc1", ("sfp",)))
        if i == SFP + 6:
            c4 = check4(vFL)
            extra[0] += [("wvm", ("sfp",))] + c4[0:2]
            extra[1] += c4[2:4]
            extra[2] += c4[4:6]
            def sfchk():
                sl = g.newlab("Lslow")
                bk = g.newlab("Lback")
                e(c4[6])
                e(f"s_cbranch_vccnz {sl}")
                g.lab(bk)
                g.slow.append((sl, bk, [(vFA + 1, True)]))
            extra[3].append(sfchk)
        if i == SFP + 7:
            extra[0] += [f"s_mov_b32 m0, {sHS1}"]
            extra[1] += [("vm", f"buffer_load_dwordx4 v8, {SWS}, {sSTO} offen sc1 lds", ("stl",)), f"s_add_u32 m0, {sHS1}, 4096"]
            extra[2] += [f"s_add_u32 {sT3}, {sSTO}, {32 * 4096}"]
            extra[3] += [("vm", f"buffer_load_dwordx4 v8, {SWS}, {sT3} offen sc1 lds", ("stl",)), f"s_add_u32 m0, {sHS1}, 8192"]
            extra[4] += [f"s_add_u32 {sT3}, {sSTO}, {64 * 4096}", f"s_cmp_lt_u32 {sW}, 2\ns_cselect_b32 {sT3}, {sT3}, {OOB}"]
        if i == SFP + 8:
            extra[0] += [("vm", f"buffer_load_dwordx4 v8, {SWS}, {sT3} offen sc1 lds", ("stl",))]
        for j in range(5):
            phi = st * 5 + j
            src = ar(4 * phi, 4) if phi < 64 else vr(vWDV + 4 * (phi - 64), 4)
            Cs = "0" if st == 0 else vr(A0 + 4 * j, 4)
            e(f"v_mfma_f32_16x16x32_bf16 {vr(A0 + 4 * j, 4)}, {src}, {vr(r, 4)}, {Cs}")
            for it in extra[j]:
                g.do(it)
        if i + NB < 56:
            lateq.append(hload(i + NB))
    assert not lateq and not fq
    stamp("c_g2e", cyc=True)
    stamp("g2_loop_end")
    g.wall()
    e("s_barrier")
    A0 = AC[1]
    for q in range(15):
        g.lds(f"ds_read_b128 {vr(128 + 4 * q, 4)}, v2 offset:{EXB + 1024 * q}", ("exr", q))
    for j in range(5):
        g.lds(f"ds_read_b64_tr_b16 {vr(192 + 2 * j, 2)}, v3 offset:{2048 * j}", ("s", j))
        g.lds(f"ds_read_b64 {vr(202 + 2 * j, 2)}, v4 offset:{32 * j}", ("x", j))
    e(f"s_mov_b32 {sT2}, {hex(f2u(-LOG2E))}")
    e(f"s_mov_b32 {sT3}, {hex(f2u(-LOG2E))}")
    e(f"s_mov_b32 {sMASK}, 0xffff0000")
    for k in range(3):
        for j in range(5):
            if j in (0, 3):
                g.wlg(("exr", 5 * k + (2 if j == 0 else 4)))
            for h in range(2):
                e(f"v_pk_add_f32 {vr(A0 + 4 * j + 2 * h, 2)}, {vr(A0 + 4 * j + 2 * h, 2)}, {vr(128 + 4 * (5 * k + j) + 2 * h, 2)}")
    E_ = 128
    align()
    for p in range(10):
        e(f"v_pk_mul_f32 {vr(E_ + 2 * p, 2)}, {vr(A0 + 2 * p, 2)}, s[56:57]")
    for p in range(20):
        e(f"v_exp_f32 v{E_ + p}, v{E_ + p}")
    g.wlg0()
    SU, XU = 152, 172
    for p in range(10):
        e(f"v_lshlrev_b32 v{SU + 2 * p}, 16, v{192 + p}")
        e(f"v_and_b32 v{SU + 2 * p + 1}, {sMASK}, v{192 + p}")
    align()
    for p in range(10):
        e(f"v_pk_add_f32 {vr(E_ + 2 * p, 2)}, {vr(E_ + 2 * p, 2)}, 1.0 op_sel_hi:[1,0]")
    for p in range(20):
        e(f"v_rcp_f32 v{E_ + p}, v{E_ + p}")
    for p in range(10):
        e(f"v_pk_mul_f32 {vr(A0 + 2 * p, 2)}, {vr(A0 + 2 * p, 2)}, {vr(SU + 2 * p, 2)}")
    for p in range(10):
        e(f"v_lshlrev_b32 v{XU + 2 * p}, 16, v{202 + p}")
        e(f"v_and_b32 v{XU + 2 * p + 1}, {sMASK}, v{202 + p}")
    for p in range(10):
        e(f"v_pk_fma_f32 {vr(A0 + 2 * p, 2)}, {vr(A0 + 2 * p, 2)}, {vr(E_ + 2 * p, 2)}, {vr(XU + 2 * p, 2)}")
    for p in range(10):
        e(f"v_cvt_pk_bf16_f32 v{192 + p}, v{A0 + 2 * p}, v{A0 + 2 * p + 1}")
    for j in range(5):
        g.lds(f"ds_write_b64 v4, {vr(192 + 2 * j, 2)} offset:{32 * j}", "ow")
    g.wlg0()
    for kk in range(3):
        g.lds(f"ds_read_b128 {vr(128 + 4 * kk, 4)}, v5 offset:{1024 * kk}", ("or", kk))
    osc = opt.get("outsc", "")
    for kk in range(3):
        g.wlg(("or", kk))
        g.vmem(f"buffer_store_dwordx4 {vr(128 + 4 * kk, 4)}, v{(12, 13, 15)[kk]}, {SOUT}, {sXO} offen{osc}", "out")
    if diag:
        g.wvm0()
        stamp("end", flush=True)
        e(f"s_mov_b32 s88, s16\ns_mov_b32 s89, s17\ns_mov_b32 s90, 0x1000000\ns_mov_b32 s91, 0x20000")
        e(f"s_lshl_b32 {sT1}, s2, 2\ns_add_u32 {sT1}, {sT1}, {sW}\ns_lshl_b32 {sT1}, {sT1}, 8\ns_add_u32 {sT1}, {sT1}, {TS_BASE}")
        e("v_lshlrev_b32 v2, 2, v0")
        e(f"buffer_store_dword v127, v2, s[88:91], {sT1} offen")
    g.lab("L_end")
    e("s_endpgm")
    for (sl, bk, lst) in g.slow:
        g.lab(sl)
        for (av, n4) in lst:
            poll_block(av, n4)
        e(f"s_branch {bk}")
    g.lab("L_codeend")

    hdr = [f"; @launch grid=(256,1,1) block=(256,1,1) lds={LDS_TOTAL}",
           '.amdgcn_target "amdgcn-amd-amdhsa--gfx950"', ".text", f".globl {KNAME}", ".p2align 8",
           f".type {KNAME},@function", f"{KNAME}:"]
    ftr = ['.section .rodata,"a"', ".p2align 6", f".amdhsa_kernel {KNAME}",
           "  .amdhsa_next_free_vgpr 512", "  .amdhsa_next_free_sgpr 102", "  .amdhsa_accum_offset 256",
           "  .amdhsa_group_segment_fixed_size 0", "  .amdhsa_kernarg_size 112", "  .amdhsa_user_sgpr_count 2",
           "  .amdhsa_user_sgpr_kernarg_segment_ptr 1", "  .amdhsa_system_sgpr_workgroup_id_x 1",
           "  .amdhsa_float_denorm_mode_32 3",
           ".end_amdhsa_kernel"]
    txt = "\n".join(hdr + g.L + ftr) + "\n"
    if diag:
        txt = txt + "; STAMPS " + ",".join(ts_names) + "\n"
    return txt


if __name__ == "__main__":
    diag = "--diag" in sys.argv
    opt = {}
    for a in sys.argv[1:]:
        if a.startswith("--") and "=" in a:
            k, v = a[2:].split("=")
            opt[k] = int(v) if v.lstrip("-").isdigit() else v.replace("_", " ")
    out = [a for a in sys.argv[1:] if not a.startswith("--")]
    s = gen(diag=diag, opt=opt)
    path = out[0] if out else "recurrent_scan__ssm_conv_s4d__geglu_ffn__prompt.s"
    open(path, "w").write(s)
    print("wrote", path, len(s), "bytes", s.count("\n"), "lines")
```

```python
import sys, struct, math

KNAME = "recurrent_scan__ssm_conv_s4d__geglu_ffn__prompt_kernel"

EPOCH = 0x0
LNF = 0x1000
HF = 0x1400
SF = 0x2400
WF = 0x4400
STATS = 0x8000
XNT = 0x10000
ST = 0x290000
WDP = 0x510000
HB = 0x730000
CSP = 0xDF0000
WS_END = 0xE26000
TS_BASE = 0xE40000

SLOT = 49152
MISC = 147456
LNP = 1344
CSB = MISC + 10752 + 5120
XYP = 544
XYC = 64 * XYP
XYB = 0
PB = 0
UBASE = 69632
UC = 4608
RB = UBASE + 2 * UC
RCS = 4160
RC = 4 * RCS
TC = 2624
TB = MISC
YSO = 650 * 4
SOB = 16384
EXB = 24576
XTB = 112128
STB = XTB + 12288
LDS_TOTAL = 163840
OOB = 0x7fff0000

def f2u(x):
    return struct.unpack("<I", struct.pack("<f", x))[0]

LOG2E = 1.4426950408889634
C0 = -2.0 * math.sqrt(2.0 / math.pi) * LOG2E
C1 = C0 * 0.044715


class G:
    def __init__(self):
        self.L = []
        self.vm = []
        self.lg = []
        self.nlab = 0
        self.slow = []
        self.skip = set()
        self.pst = []
        self.sfree = [92, 100]

    def flush_stamps(self):
        for (sr, lane) in self.pst:
            self.e(f"v_writelane_b32 v127, s{sr}, {lane}")
            self.sfree.append(sr)
        self.pst = []

    def e(self, s):
        for ln in s.split("\n"):
            self.L.append("    " + ln)

    def lab(self, name):
        self.L.append(name + ":")

    def newlab(self, p="L"):
        self.nlab += 1
        return f"{p}_{self.nlab}"

    def vmem(self, s, tag=None):
        if tag in self.skip:
            return
        self.e(s)
        self.vm.append(tag)

    def lds(self, s, tag=None):
        self.e(s)
        self.lg.append(tag)

    def _n(self, q, tag):
        idx = max(i for i, t in enumerate(q) if t == tag)
        return idx, len(q) - idx - 1

    def wvm(self, tag):
        if tag not in self.vm:
            return
        idx, n = self._n(self.vm, tag)
        self.e(f"s_waitcnt vmcnt({min(n, 63)})")
        self.vm = self.vm[idx + 1:]

    def wlg(self, tag):
        if tag not in self.lg:
            return
        idx, n = self._n(self.lg, tag)
        self.e(f"s_waitcnt lgkmcnt({min(n, 15)})")
        self.lg = self.lg[idx + 1:]

    def wvm0(self):
        self.e("s_waitcnt vmcnt(0)")
        self.vm = []

    def wlg0(self):
        self.e("s_waitcnt lgkmcnt(0)")
        self.lg = []
        self.flush_stamps()

    def wall(self):
        self.e("s_waitcnt vmcnt(0) lgkmcnt(0)")
        self.vm = []
        self.lg = []
        self.flush_stamps()

    def nop(self, n):
        while n > 0:
            k = min(n, 16)
            self.e(f"s_nop {k - 1}")
            n -= k

    def do(self, item):
        if callable(item):
            item()
        elif isinstance(item, tuple):
            kind = item[0]
            if kind == "vm":
                self.vmem(item[1], item[2])
            elif kind == "lds":
                self.lds(item[1], item[2])
            elif kind == "wvm":
                self.wvm(item[1])
            elif kind == "wlg":
                self.wlg(item[1])
            else:
                raise ValueError(kind)
        else:
            self.e(item)


def vr(a, n):
    return f"v[{a}:{a + n - 1}]"


def ar(a, n):
    return f"a[{a}:{a + n - 1}]"


SX, SWG, SWU, SWS, SOUT, SWD = "s[4:7]", "s[8:11]", "s[12:15]", "s[16:19]", "s[20:23]", "s[24:27]"
P_LAR, P_AIM, P_CRE, P_CIM, P_LDT, P_DSK = "s[28:29]", "s[30:31]", "s[32:33]", "s[34:35]", "s[36:37]", "s[38:39]"
sW, sTAG, sM, sFT, sISG1, sCP, sRND, sSP = "s40", "s41", "s42", "s43", "s44", "s45", "s46", "s47"
sXCD, sQ = "s48", "s49"
sXM0, sWM0, sXS, sWSO = "s50", "s51", "s52", "s53"
sT0, sT1, sT2, sT3, sT4, sT5 = "s54", "s55", "s56", "s57", "s58", "s59"
sMASK, sCNT = "s60", "s61"
sRHO, sC = "s62", "s63"
sHS0, sHS1 = "s64", "s65"
sG2 = 66
STW = "s[96:99]"
sF0, sF1, sF2 = "s0", "s1", "s3"
sLT, sDT = "s82", "s83"
sWDS = "s84"
sPEND, sXO = "s85", "s86"
sKR = "s87"
sXT, sSTO = "s94", "s95"
sK0, sK1 = "s96", "s97"

vT = 2
vXO = 16
vWO = 24
vBA = 26
vAA = 34
vCS = 42
vHO = 44
vTO = 46
vSTA = 48
vU = 56
vAF = 64
vBF = 96
vPAR = 112
vFA = 118
vEP = 120
vFL = 122
vACC = 128
SC = 16
GA = 24
AST = 224
AS2 = 192
PKB = MISC
vWDV = 232


def gen(diag=False, opt=None):
    opt = opt or {}
    TOUCH = opt.get("touch", 0)
    P1 = opt.get("p1", 32)
    KCHK = opt.get("kchk", 29)
    g = G()
    e = g.e
    if opt.get('nolnst'):
        g.skip.add('lnst')
    ts_names = []
    vTAG, vL0 = vEP, vEP + 1

    def stamp(name, cyc=False, flush=False):
        if not diag:
            return
        if name not in ts_names:
            ts_names.append(name)
        i = ts_names.index(name)
        if not g.sfree:
            g.wlg0()
        sr = g.sfree.pop(0)
        e(f"{'s_memtime' if cyc else 's_memrealtime'} s[{sr}:{sr + 1}]")
        g.pst.append((sr, i))
        if flush:
            g.wlg0()

    def interleave(fn, units, every):
        n0 = len(g.L)
        fn()
        body = g.L[n0:]
        del g.L[n0:]
        cnt = 0
        for ln in body:
            g.L.append(ln)
            cnt += 1
            if units and cnt >= every:
                u = units[0]
                if isinstance(u, tuple) and u[0] == "m0":
                    e(u[1])
                    units.pop(0)
                    cnt = every - 1
                else:
                    g.do(u)
                    units.pop(0)
                    cnt = 0 if isinstance(u, tuple) else every - 1

    def align():
        e(".p2align 3")

    def red(op, v, t, full):
        for dpp in ("quad_perm:[1,0,3,2]", "quad_perm:[2,3,0,1]", "row_half_mirror", "row_mirror"):
            g.nop(2)
            e(f"{op} v{v}, v{v}, v{v} {dpp}")
        e(f"v_mov_b32 v{t}, v{v}")
        g.nop(2)
        e(f"v_permlane16_swap_b32 v{v}, v{t}")
        g.nop(1)
        e(f"{op} v{v}, v{v}, v{t}")
        if full:
            e(f"v_mov_b32 v{t}, v{v}")
            g.nop(2)
            e(f"v_permlane32_swap_b32 v{v}, v{t}")
            g.nop(1)
            e(f"{op} v{v}, v{v}, v{t}")

    def bf16round(v):
        e(f"v_cvt_pk_bf16_f32 v{v}, v{v}, v{v}")
        e(f"v_lshlrev_b32 v{v}, 16, v{v}")

    def check4(tmp):
        return [f"v_xor_b32 v{tmp}, v{vTAG}, v{tmp}", f"v_xor_b32 v{tmp + 1}, v{vTAG}, v{tmp + 1}",
                f"v_xor_b32 v{tmp + 2}, v{vTAG}, v{tmp + 2}", f"v_xor_b32 v{tmp + 3}, v{vTAG}, v{tmp + 3}",
                f"v_or3_b32 v{tmp}, v{tmp}, v{tmp + 1}, v{tmp + 2}", f"v_or_b32 v{tmp}, v{tmp}, v{tmp + 3}",
                f"v_cmp_ne_u32 vcc, 0, v{tmp}"]

    def poll_block(addr_v, n4, sleep=6):
        lp = g.newlab("Lpoll")
        dn = g.newlab("Lpd")
        tmp = vFL
        e(f"s_mov_b32 {sCNT}, 0x4000")
        g.lab(lp)
        if n4:
            e(f"buffer_load_dwordx4 {vr(tmp, 4)}, v{addr_v}, {SWS}, 0 offen sc1")
            e("s_waitcnt vmcnt(0)")
            for x in check4(tmp):
                e(x)
        else:
            e(f"buffer_load_dword v{tmp}, v{addr_v}, {SWS}, 0 offen sc1")
            e("s_waitcnt vmcnt(0)")
            e(f"v_cmp_ne_u32 vcc, v{vTAG}, v{tmp}")
        e(f"s_cbranch_vccz {dn}")
        e(f"s_sleep {sleep}")
        e(f"s_sub_u32 {sCNT}, {sCNT}, 1")
        e(f"s_cbranch_scc0 {lp}")
        g.lab(dn)

    def flag_store(soff):
        e(f"buffer_store_dword v{vTAG}, v{vL0}, {SWS}, {soff} offen sc1")

    def wd_load(phi):
        dst = ar(4 * phi, 4) if phi < 64 else vr(vWDV + 4 * (phi - 64), 4)
        pre = []
        if phi >= 65:
            if phi == 65 or phi == 68:
                pre.append(f"s_add_u32 {sT5}, {sWDS}, {(phi // 4) * 4096}")
                pre.append(f"s_cmp_lt_u32 {sW}, 2\ns_cselect_b32 {sT5}, {sT5}, {OOB}")
        elif phi % 4 == 0:
            pre.append(f"s_add_u32 {sT5}, {sWDS}, {(phi // 4) * 4096}")
        return pre + [("vm", f"buffer_load_dwordx4 {dst}, v1, {SWS}, {sT5} offen offset:{(phi % 4) * 1024} sc1", ("wd", phi))]

    def u_loads(cpreg, va):
        return [f"v_accvgpr_read_b32 v{va}, a{AS2 + 23}",
                f"s_mul_i32 {sF0}, {sW}, {64 * 10240}",
                f"s_lshl_b32 {sF1}, {cpreg}, 5",
                f"s_add_u32 {sF0}, {sF0}, {sF1}",
                f"s_add_u32 {sF0}, {sF0}, {XNT}",
                f"s_add_u32 {sF1}, {sF0}, {32 * 10240}",
                ("vm", f"buffer_load_dwordx4 {vr(vU, 4)}, v{va}, {SWS}, {sF0} offen sc1", "u"),
                ("vm", f"buffer_load_dwordx4 {vr(vU + 4, 4)}, v{va}, {SWS}, {sF1} offen sc1", "u")]

    def table_code():
        def put(i, src):
            e(f"v_lshl_add_u32 v{src}, v{src}, 2, {sF2}")
            e(f"v_accvgpr_write_b32 a{AST + i}, v{src}")
        e(f"s_mul_i32 {sF2}, {sC}, {TC}")
        e(f"s_add_u32 {sF2}, {sF2}, {TB + 4}")
        e("v_lshrrev_b32 v4, 4, v0")
        e(f"s_lshl_b32 {sF1}, {sRHO}, 2")
        e(f"v_add_u32 v4, {sF1}, v4")
        e("v_and_b32 v5, 15, v0")
        DUM = 645
        e("v_cmp_eq_u32 s[54:55], 2, v4")
        e("v_cmp_eq_u32 s[56:57], 3, v4")
        e("v_cmp_eq_u32 s[58:59], 4, v4")
        e("v_cmp_lt_u32 vcc, 4, v4")
        e("v_mov_b32 v6, 8")
        e("v_cndmask_b32 v6, v6, 4, s[54:55]")
        e("v_cndmask_b32 v6, v6, 2, s[56:57]")
        e("v_cndmask_b32 v6, v6, 1, s[58:59]")
        e("v_cndmask_b32 v6, v6, 0, vcc")
        e("v_mul_u32_u24 v7, v6, v5")
        e("v_lshlrev_b32 v8, 4, v6")
        for i in range(4):
            e(f"v_lshl_add_u32 v9, v4, 2, {i}")
            for sreg, val in (("s[54:55]", 256 + i), ("s[56:57]", 384 + 64 * (i >> 1) + (i & 1)), ("s[58:59]", 512 + 32 * i), ("vcc", DUM)):
                e(f"v_mov_b32 v10, {val}")
                e(f"v_cndmask_b32 v9, v9, v10, {sreg}")
            e("v_add_u32 v9, v9, v7")
            e("v_add_u32 v11, v9, v8")
            if i == 0:
                e("v_lshl_add_u32 v6, v4, 4, v5")
                e("v_mov_b32 v10, 80")
                e("v_cmp_eq_u32 s[60:61], v10, v6")
                e("v_mov_b32 v10, 640")
                e("s_nop 0")
                e("v_cndmask_b32 v9, v9, v10, s[60:61]")
            put(i, 9)
            put(4 + i, 11)
        e(f"s_lshl_b32 {sF1}, {sRHO}, 10")
        e(f"s_sub_u32 {sF1}, 2047, {sF1}")
        e("v_lshlrev_b32 v4, 3, v0")
        e(f"v_sub_u32 v4, {sF1}, v4")
        e(f"s_movk_i32 {sF1}, 128")
        for ch in range(2):
            for k in range(11):
                e(f"v_subrev_u32 v5, {512 * ch + k}, v4")
                e("v_max_i32 v6, 0, v5")
                e("v_cvt_f32_u32 v6, v6")
                e(f"v_med3_i32 v5, v5, -1, {sF1}")
                e("v_cvt_pk_bf16_f32 v6, v6, 0")
                e("v_subrev_u32 v6, 0x4280, v6")
                e("v_max_i32 v5, v5, v6")
                put(8 + 11 * ch + k, 5)

    def addr_items():
        it = []
        A = it.append
        def st(i, r):
            A(f"v_accvgpr_write_b32 a{AS2 + i}, v{r}")
        A(f"v_add_u32 v{vFA}, {LNF}, v1")
        A(f"s_mul_i32 {sF0}, {sC}, {XYC}")
        A(f"v_lshl_add_u32 v2, v0, 3, {sF0}")
        st(0, 2)
        A("v_and_b32 v12, 15, v0")
        A("v_lshrrev_b32 v13, 4, v0")
        A(f"v_mul_u32_u24 v2, {XYP}, v12")
        A("v_lshl_add_u32 v2, v13, 4, v2")
        A(f"v_add_u32 v3, {sF0}, v2")
        st(2, 3)
        A(f"s_mul_i32 {sF1}, {sRHO}, {16 * XYP}")
        A(f"v_add_u32 v3, {sF1}, v3")
        st(1, 3)
        A(f"s_mul_i32 {sF0}, {sC}, {UC}")
        A(f"s_lshl_b32 {sF1}, {sRHO}, 8")
        A(f"s_add_u32 {sF2}, {sF0}, {sF1}")
        A(f"s_add_u32 {sF2}, {sF2}, {UBASE}")
        A(f"v_add_u32 v2, {sF2}, v1")
        A(f"s_sub_u32 {sF2}, {sF0}, {sF1}")
        A(f"s_add_u32 {sF2}, {sF2}, {UBASE + 32 + 256}")
        A("v_lshlrev_b32 v14, 5, v12")
        A("v_lshl_add_u32 v3, v13, 4, v14")
        A(f"v_add_u32 v3, {sF2}, v3")
        st(8, 3)
        A("v_lshl_add_u32 v14, v13, 3, v14")
        A(f"s_lshl_b32 {sF2}, {sRHO}, 11")
        A(f"s_add_u32 {sF2}, {sF2}, {sF0}")
        A(f"s_add_u32 {sF2}, {sF2}, {UBASE + 512}")
        A(f"v_add_u32 v3, {sF2}, v14")
        st(11, 3)
        A(f"s_lshl_b32 {sF2}, {sW}, 11")
        A(f"s_add_u32 {sF2}, {sF2}, {SOB}")
        A(f"v_add_u32 v3, {sF2}, v14")
        st(12, 3)
        A(f"v_add_u32 v3, {sF2}, v1")
        st(13, 3)
        A(f"s_mul_i32 {sF0}, {sC}, {RC}")
        A(f"s_mul_i32 {sF2}, {sRHO}, {2 * RCS}")
        A(f"s_add_u32 {sF2}, {sF2}, {sF0}")
        A(f"s_add_u32 {sF2}, {sF2}, {RB + 4096}")
        A("v_bfe_u32 v3, v0, 1, 1")
        A(f"v_mul_u32_u24 v3, {RCS}, v3")
        A("v_and_b32 v15, 1, v0")
        A("v_lshl_add_u32 v3, v15, 4, v3")
        A(f"v_add_u32 v3, {sF2}, v3")
        A("v_cmp_lt_u32 vcc, 15, v0\ns_nop 1\nv_cndmask_b32 v2, v2, v3, vcc")
        st(3, 2)
        A(f"s_lshl_b32 {sF2}, {sRHO}, 11")
        A(f"s_add_u32 {sF2}, {sF2}, {sF0}")
        A(f"s_add_u32 {sF2}, {sF2}, {RB}")
        A(f"v_add_u32 v2, {sF2}, v1")
        st(4, 2)
        A("v_sub_u32 v2, 3, v12")
        A("v_and_b32 v2, 3, v2")
        A(f"v_mul_u32_u24 v2, {RCS}, v2")
        A("v_lshl_add_u32 v2, v13, 4, v2")
        A("v_and_b32 v3, 12, v12")
        A("v_lshlrev_b32 v3, 1, v3")
        A("v_sub_u32 v2, v2, v3")
        A(f"s_sub_u32 {sF2}, {sF0}, {sF1}")
        A(f"s_add_u32 {sF2}, {sF2}, {RB + 24 + 256}")
        A(f"v_add_u32 v2, {sF2}, v2")
        st(7, 2)
        A(f"v_mul_u32_u24 v2, {UC}, v15")
        A("v_lshrrev_b32 v3, 1, v0")
        A("v_lshl_add_u32 v2, v3, 4, v2")
        A(f"s_lshl_b32 {sF2}, {sW}, 10")
        A(f"s_add_u32 {sF2}, {sF2}, {UBASE + 512}")
        A(f"v_add_u32 v2, {sF2}, v2")
        st(5, 2)
        A("v_mul_u32_u24 v3, 10240, v3")
        A("v_lshl_add_u32 v3, v15, 4, v3")
        st(23, 3)
        A(f"s_mul_i32 {sF2}, {sC}, {TC}")
        A(f"s_add_u32 {sF2}, {sF2}, {TB}")
        A(f"v_mov_b32 v2, {sF2}")
        st(6, 2)
        A(f"s_lshl_b32 {sF2}, {sW}, 12")
        A(f"v_add_u32 v2, {sF2}, v1")
        st(9, 2)
        A("v_xor_b32 v2, 0x1000, v2")
        st(10, 2)
        A(f"s_mul_i32 {sF0}, {sW}, 14")
        A(f"s_cmp_eq_u32 {sW}, 3\ns_cselect_b32 {sF1}, 1, 0")
        A(f"s_sub_u32 {sF0}, {sF0}, {sF1}")
        A(f"s_mul_i32 {sF1}, {sDT}, 54")
        A(f"s_add_u32 {sF1}, {sF0}, {sF1}")
        A(f"s_mul_i32 {sF1}, {sF1}, 5120")
        A(f"s_add_u32 {sWDS}, {sF1}, {WDP}")
        for k in range(4):
            A(f"s_add_u32 {sF1}, {sW}, {k + 1}")
            A(f"s_and_b32 {sF1}, {sF1}, 3")
            if k < 3:
                A(f"s_mul_i32 {sF2}, {sF1}, 15360")
                A(f"s_add_u32 {sF2}, {sF2}, {EXB + 5120 * k}")
                A(f"v_add_u32 v2, {sF2}, v1")
                st(14 + k, 2)
            A(f"s_lshl_b32 {sF2}, {sLT}, 2")
            A(f"s_add_u32 {sF1}, {sF1}, {sF2}")
            A(f"s_mul_i32 {sF1}, {sF1}, 54")
            A(f"s_add_u32 {sF1}, {sF1}, {sF0}")
            A(f"s_lshl_b32 {sF1}, {sF1}, 10")
            A(f"s_add_u32 s{sG2 + 4 * k}, {sF1}, {HB}")
            for q in range(1, 4):
                A(f"s_add_u32 s{sG2 + 4 * k + q}, s{sG2 + 4 * k}, {4096 * q}")
        A(f"s_mov_b32 {sF0}, {0x100000000 // 10 + 1}")
        for kk in range(3):
            A(f"v_add_u32 v2, {64 * kk}, v0")
            A(f"v_mul_hi_u32 v3, v2, {sF0}")
            A("v_mul_u32_u24 v12, 10, v3")
            A("v_sub_u32 v12, v2, v12")
            A("v_mul_u32_u24 v3, 1280, v3")
            A("v_lshl_add_u32 v2, v12, 4, v3")
            st(17 + kk, 2)
        A(f"v_mov_b32 v3, {OOB}")
        A("v_cmp_lt_u32 vcc, 31, v0\ns_nop 1\nv_cndmask_b32 v2, v2, v3, vcc")
        st(20, 2)
        A(f"s_lshl_b32 {sXO}, {sLT}, 2")
        A(f"s_add_u32 {sXO}, {sXO}, {sW}")
        A(f"s_mul_i32 {sXO}, {sXO}, {16 * 1280}")
        A(f"s_mul_i32 {sF0}, {sDT}, 160")
        A(f"s_add_u32 {sXO}, {sXO}, {sF0}")
        A(f"s_mul_i32 {sXT}, {sW}, 3072")
        A(f"s_add_u32 {sXT}, {sXT}, {XTB}")
        A(f"s_mul_i32 {sSTO}, {sDT}, 80")
        A(f"s_lshl_b32 {sF0}, {sW}, 3")
        A(f"s_add_u32 {sSTO}, {sSTO}, {sF0}")
        A(f"s_lshl_b32 {sSTO}, {sSTO}, 12")
        A(f"s_lshl_b32 {sF0}, {sLT}, 7")
        A(f"s_add_u32 {sSTO}, {sSTO}, {sF0}")
        A(f"s_add_u32 {sSTO}, {sSTO}, {ST}")
        A(f"s_add_u32 {sF0}, {sF0}, {HF}")
        A("v_min_u32 v2, 26, v0")
        A(f"v_lshl_add_u32 v2, v2, 2, {sF0}")
        st(21, 2)
        A(f"s_lshl_b32 {sF0}, {sDT}, 10")
        A(f"s_add_u32 {sF0}, {sF0}, {SF}")
        A("v_min_u32 v2, 39, v0")
        A(f"v_lshl_add_u32 v2, v2, 4, {sF0}")
        st(22, 2)
        return it

    e("s_cmp_ge_u32 s2, 256")
    e("s_cbranch_scc1 L_end")
    if diag:
        e("s_memrealtime s[92:93]")
    e("s_getpc_b64 s[88:89]")
    g.lab("L_pc")
    e("s_load_dwordx2 s[4:5], s[0:1], 0")
    e("s_load_dwordx2 s[16:17], s[0:1], 104")
    e("s_load_dwordx2 s[8:9], s[0:1], 64")
    e("s_load_dwordx2 s[12:13], s[0:1], 72")
    NSP = opt.get("nsp", 12)
    for i in range(NSP):
        e(f"s_load_dword s{66 + i}, s[88:89], {256 + 128 * i}")
    e("v_lshrrev_b32 v2, 6, v0")
    e("v_and_b32 v3, 15, v0")
    e("s_mov_b32 s90, L_codeend - L_pc")
    e("s_mov_b32 s91, 0x20000")
    e("v_lshl_add_u32 v3, v2, 4, v3")
    e(f"v_readfirstlane_b32 {sW}, v2")
    e("v_lshlrev_b32 v3, 7, v3")
    if opt.get("cpf0", 1):
        e(f"buffer_load_dword v{vFL + 3}, v3, s[88:91], 0 offen offset:{min(256 + 128 * NSP, 4000)}")
        g.vm.append("cpf")
    e("v_and_b32 v0, 63, v0")
    e("s_mov_b32 s6, 2621440\ns_mov_b32 s7, 0x20000")
    e("v_lshrrev_b32 v2, 5, v0")
    e("v_and_b32 v3, 31, v0")
    e("v_mul_u32_u24 v2, 1280, v2")
    e(f"s_lshl_b32 {sT0}, s2, 2")
    e(f"s_add_u32 {sT0}, {sT0}, {sW}")
    e("v_lshl_add_u32 v2, v3, 3, v2")
    e(f"s_mul_i32 {sT0}, {sT0}, 2560")
    e(f"s_and_b32 {sXCD}, s2, 7")
    e(f"s_lshr_b32 {sQ}, s2, 3")
    e(f"s_and_b32 {sM}, s2, 1")
    e(f"s_lshr_b32 {sT1}, {sXCD}, 1")
    e(f"s_and_b32 {sT2}, {sQ}, 3")
    e(f"s_lshr_b32 {sDT}, {sQ}, 2")
    e(f"s_lshl_b32 {sM}, {sM}, 2")
    e(f"s_add_u32 {sM}, {sM}, {sT2}")
    e(f"s_mul_i32 {sFT}, {sT1}, 7")
    e(f"s_add_u32 {sFT}, {sFT}, {sDT}")
    e("v_lshrrev_b32 v4, 3, v0")
    e("v_and_b32 v5, 7, v0")
    e("v_lshrrev_b32 v6, 4, v0")
    e("v_mul_u32_u24 v7, 1280, v4")
    e("v_xor_b32 v8, v5, v6")
    e("v_xor_b32 v9, 4, v8")
    e(f"v_lshl_add_u32 v{vXO}, v8, 4, v7")
    e(f"v_lshl_add_u32 v{vXO + 1}, v9, 4, v7")
    e("v_mul_u32_u24 v7, 3456, v4")
    e("v_and_b32 v8, 1, v6")
    e(f"v_add_u32 v{vXO + 1}, {8 * 1280 - 1024}, v{vXO + 1}")
    e("v_lshlrev_b32 v8, 2, v8")
    e("v_xor_b32 v8, v5, v8")
    e(f"v_lshl_add_u32 v{vWO}, v8, 4, v7")
    e(f"s_lshl_b32 {sWM0}, {sW}, 11")
    e(f"s_mul_i32 {sWSO}, {sW}, {16 * 3456}")
    e(f"s_lshl_b32 {sT1}, {sFT}, 7")
    e(f"s_add_u32 {sWSO}, {sWSO}, {sT1}")
    e(f"v_add_u32 v{vWO + 1}, {8 * 3456 - 1024}, v{vWO}")
    e("s_mov_b32 s10, 2211840\ns_mov_b32 s11, 0x20000")
    e("s_mov_b32 s14, s10\ns_mov_b32 s15, 0x20000")
    e(f"s_cmp_lt_u32 {sDT}, 7")
    e(f"s_cselect_b32 {sT3}, {sFT}, 27")
    e(f"s_lshl_b32 {sXS}, {sM}, 2")
    e(f"s_add_u32 {sXS}, {sXS}, {sW}")
    e(f"s_mul_i32 {sXS}, {sXS}, {64 * 1280}")
    e(f"s_lshl_b32 {sXM0}, {sW}, 13")
    e(f"s_add_u32 {sXM0}, {sXM0}, 16384")
    e(f"s_cmp_lt_u32 {sT3}, 27")
    e(f"s_cselect_b32 {sISG1}, 1, 0")
    e("s_waitcnt lgkmcnt(0)")
    if diag:
        e("v_mov_b32 v127, 0")
        e("v_writelane_b32 v127, s92, 60")
    stamp("start")
    if opt.get("pt", 0):
        e("v_mov_b32 v12, s4\nv_mov_b32 v13, s5")
        e("s_add_u32 s68, s4, 0x200000\ns_addc_u32 s69, s5, 0")
        for ln, lo in ((1, 68), (2, 8), (3, 12), (4, 16)):
            e(f"v_writelane_b32 v12, s{lo}, {ln}\nv_writelane_b32 v13, s{lo + 1}, {ln}")
        g.vmem(f"global_load_dword v{vFL + 4}, v[12:13], off", "cpf")
    if diag:
        e("s_memrealtime s[100:101]\ns_waitcnt lgkmcnt(0)\nv_writelane_b32 v127, s100, 55")
    LX = 128
    for q in range(5):
        g.vmem(f"buffer_load_dwordx2 {vr(LX + 2 * q, 2)}, v2, {SX}, {sT0} offen offset:{256 * q}", "ln")

    if diag:
        e("s_memrealtime s[100:101]\ns_waitcnt lgkmcnt(0)\nv_writelane_b32 v127, s100, 56")

    def rest_setup():
        e("s_load_dwordx2 s[24:25], s[0:1], 80")
        e("s_load_dwordx4 s[28:31], s[0:1], 8")
        e("s_load_dwordx4 s[32:35], s[0:1], 24")
        e("s_load_dwordx4 s[36:39], s[0:1], 40")
        e("s_load_dwordx2 s[20:21], s[0:1], 88")
        e("v_lshlrev_b32 v1, 4, v0")
        e(f"s_mov_b32 s18, {WS_END}\ns_mov_b32 s19, 0x20000")
        e(f"v_mov_b32 v{vL0}, {OOB}")
        e(f"v_writelane_b32 v{vL0}, 0, 0")
        e("s_mov_b32 s22, 2621440\ns_mov_b32 s23, 0x20000")
        e("s_mov_b32 s26, 2211840\ns_mov_b32 s27, 0x20000")
        e(f"s_lshl_b32 {sT4}, {sXCD}, 2")
        e(f"s_and_b32 {sT2}, {sQ}, 3")
        e(f"s_add_u32 {sLT}, {sT4}, {sT2}")
        e(f"s_add_u32 {sT4}, {sT4}, {sQ}")
        e(f"s_sub_u32 {sT4}, {sT4}, 28")
        e(f"s_lshl_b32 {sT5}, {sXCD}, 3")
        e(f"s_add_u32 {sT5}, {sT5}, {sQ}")
        e(f"s_sub_u32 {sT5}, {sT5}, 48")
        e(f"s_cmp_lt_u32 {sXCD}, 6\ns_cselect_b32 {sSP}, {sT4}, {sT5}")
        e(f"s_mul_i32 {sT4}, {sM}, 27")
        e(f"s_add_u32 {sT4}, {sT4}, {sFT}")
        e(f"s_add_u32 {sT5}, {sSP}, 216")
        e(f"s_cmp_lg_u32 {sISG1}, 0\ns_cselect_b32 {sCP}, {sT4}, {sT5}")
        e(f"s_cmp_lt_u32 {sSP}, 24\ns_cselect_b32 {sRND}, 3, 2")
        e(f"s_and_b32 {sRHO}, {sW}, 1")
        e(f"s_lshr_b32 {sC}, {sW}, 1")
        e("v_lshlrev_b32 v10, 21, v0")
        e(f"v_mov_b32 v{vFA}, v1")
        e(f"v_mov_b32 v{vFA + 1}, v1")
        e("v_mul_u32_u24 v116, 17280, v4")
        e("v_lshl_add_u32 v116, v5, 4, v116")
        e(f"s_lshl_b32 {sHS0}, {sM}, 1")
        e(f"s_add_u32 {sHS0}, {sHS0}, {sRHO}")
        e(f"s_mul_i32 {sHS0}, {sHS0}, {40 * 3456}")
        e(f"s_lshl_b32 {sT1}, {sFT}, 7")
        e(f"s_add_u32 {sHS0}, {sHS0}, {sT1}")
        e("s_mov_b32 s98, 2211840\ns_mov_b32 s99, 0x20000")
        e(f"s_cmp_eq_u32 {sC}, 0\ns_cselect_b32 s96, s8, s12\ns_cselect_b32 s97, s9, s13")
        e(f"s_lshl_b32 {sT1}, {sQ}, 2")
        e(f"s_add_u32 {sT1}, {sT1}, {sW}")
        e(f"s_mul_i32 {sT1}, {sT1}, 384")
        e(f"s_add_u32 {sT1}, {sT1}, {8192 + min(256 + 128 * NSP, 4000)}")
        e("v_min_u32 v11, 2, v0")
        e("v_lshlrev_b32 v11, 7, v11")

    def rest_loads():
        g.vmem(f"buffer_load_dword v{vTAG}, v{vL0}, {SWS}, 0 offen sc1", "ep")
        g.vmem(f"buffer_load_dword v{vFL + 2}, v11, s[88:91], {sT1} offen", "tlb")
        g.vmem(f"buffer_load_dword v{vFL}, v10, {SWS}, 0 offen", "tlb")
        e("s_waitcnt lgkmcnt(0)")
        g.vmem(f"buffer_load_dword v{vFL + 1}, v10, {SOUT}, 0 offen", "tlb")

    def dma_units(stage):
        sb = (stage % 3) * SLOT
        out = []
        for mat in range(2):
            out.append(("m0", f"s_add_u32 m0, {sWM0}, {sb + mat * 8192}"))
            for half in range(2):
                o = f" offset:{1024 * half}" if half else ""
                out.append(("vm", f"buffer_load_dwordx4 v{vWO + half}, {SWG if mat == 0 else SWU}, {sWSO} offen{o} lds", ("dma", stage)))
        for i in range(8):
            if i % 4 == 0:
                out.append(("m0", f"s_add_u32 m0, {sXM0}, {sb + i * 1024}"))
            o = f" offset:{1024 * (i & 3)}" if i & 3 else ""
            out.append(("vm", f"buffer_load_dwordx4 v{vXO + i}, {SX}, {sXS} offen{o} lds", ("dma", stage)))
        out.append(f"s_add_u32 {sXS}, {sXS}, 128")
        out.append(f"s_add_u32 {sWSO}, {sWSO}, {64 * 3456}")
        return out

    def dma_block(stage):
        for u in dma_units(stage):
            if isinstance(u, tuple) and u[0] == "m0":
                e(u[1])
                e("s_nop 0")
            else:
                g.do(u)

    APAR = 160
    def param_units(rnd):
        out = [f"s_add_u32 {sT2}, {sCP}, {40 * rnd}", f"s_min_u32 {sT2}, {sT2}, 319",
               f"s_lshl_b32 {sT1}, {sT2}, 1", f"s_add_u32 {sT1}, {sT1}, {sC}", f"s_lshl_b32 {sT1}, {sT1}, 8",
               f"v_lshl_add_u32 v12, v0, 2, {sT1}", f"s_lshl_b32 {sT1}, {sT2}, 2", f"v_mov_b32 v13, {sT1}"]
        for k, p in enumerate((P_LAR, P_AIM, P_CRE, P_CIM)):
            out.append(("vm", f"global_load_dword a{APAR + 8 * rnd + k}, v12, {p}", "par"))
        out.append(("vm", f"global_load_dword a{APAR + 8 * rnd + 4}, v13, {P_LDT}", "par"))
        out.append(("vm", f"global_load_dword a{APAR + 8 * rnd + 5}, v13, {P_DSK}", "par"))
        return out

    CSR = [56, 60, 112, 52, 116]
    def csl_units():
        out = []
        for j5 in range(5):
            if j5 in (2, 4):
                out.append(f"s_add_u32 {sHS0}, {sHS0}, {2 * 3456}")
            out.append(("vm", f"buffer_load_dwordx4 {vr(CSR[j5], 4)}, v116, {STW}, {sHS0} offen offset:{(j5 % 2) * 3456}", ("csl", j5)))
        return out
    CSE = opt.get("cse", 0)
    e(f"s_cmp_eq_u32 {sISG1}, 0")
    e("s_cbranch_scc1 L_sp_tab")
    vm0 = list(g.vm)
    u0 = dma_units(0)
    NF = opt.get("nf", 7)
    cnt_ = 0
    for ix, u in enumerate(u0):
        if isinstance(u, tuple) and u[0] == "vm":
            cnt_ += 1
            if cnt_ == NF:
                break
    u0, u0b = u0[:ix + 1], u0[ix + 1:]
    def g1_early():
        for i in range(2, 8):
            d = 16 * 1280 - 1024 * ((i & 3) - ((i - 2) & 3))
            e(f"v_add_u32 v{vXO + i}, {d}, v{vXO + i - 2}")
        rest_setup()
    interleave(g1_early, u0, opt.get("pe0", 2))
    assert not u0
    if diag:
        e("s_memrealtime s[100:101]\ns_waitcnt lgkmcnt(0)\nv_writelane_b32 v127, s100, 57")
    e(f"s_mov_b32 {sRND}, 1")
    e(f"s_mov_b32 {sKR}, {sT1}")
    table_code()
    if diag:
        e("s_memrealtime s[100:101]\ns_waitcnt lgkmcnt(0)\nv_writelane_b32 v127, s100, 58")
    for u in u0b:
        if isinstance(u, tuple) and u[0] == "m0":
            e(u[1])
            e("s_nop 0")
        else:
            g.do(u)
    e(f"s_mov_b32 {sT1}, {sKR}")
    e("v_lshlrev_b32 v10, 21, v0")
    e("v_min_u32 v11, 2, v0")
    e("v_lshlrev_b32 v11, 7, v11")
    rest_loads()
    if diag:
        e("s_memrealtime s[100:101]\ns_waitcnt lgkmcnt(0)\nv_writelane_b32 v127, s100, 61")
    g.wvm("ln")
    e("s_branch L_lnw_done")
    g.lab("L_sp_tab")
    vm_g1 = list(g.vm)
    g.vm = vm0
    rest_setup()
    rest_loads()
    for r3 in range(3):
        for it in param_units(r3):
            g.do(it)
    table_code()
    for it in addr_items():
        g.do(it)
    e("v_min_u32 v2, 53, v0")
    e(f"s_lshr_b32 {sF0}, {sDT}, 1")
    e(f"s_lshl_b32 {sF0}, {sF0}, 8")
    e(f"s_add_u32 {sF0}, {sF0}, {WF}")
    e(f"v_lshl_add_u32 v{vFA + 1}, v2, 2, {sF0}")
    g.wvm("ep")
    g.lab("L_lnw_done")
    g.vm = vm_g1
    g.sfree += [88, 90]
    stamp("ln_data")
    F, S, Dv, SO, UO = 140, 160, 164, 184, 188
    def ln_code():
        for q in range(10):
            e(f"v_lshlrev_b32 v{F + 2 * q}, 16, v{LX + q}")
            e(f"v_and_b32 v{F + 2 * q + 1}, 0xffff0000, v{LX + q}")
        e(f"v_pk_add_f32 {vr(S, 2)}, {vr(F, 2)}, {vr(F + 2, 2)}")
        e(f"v_pk_add_f32 {vr(S + 2, 2)}, {vr(F + 4, 2)}, {vr(F + 6, 2)}")
        for q in range(4, 10, 2):
            e(f"v_pk_add_f32 {vr(S, 2)}, {vr(S, 2)}, {vr(F + 2 * q, 2)}")
            e(f"v_pk_add_f32 {vr(S + 2, 2)}, {vr(S + 2, 2)}, {vr(F + 2 * q + 2, 2)}")
        e(f"v_pk_add_f32 {vr(S, 2)}, {vr(S, 2)}, {vr(S + 2, 2)}")
        e(f"v_add_f32 v{S}, v{S}, v{S + 1}")
        red("v_add_f32", S, S + 1, False)
        e(f"v_mul_f32 v{S}, {hex(f2u(1.0 / 640))}, v{S}")
        for q in range(10):
            e(f"v_pk_add_f32 {vr(Dv + 2 * q, 2)}, {vr(F + 2 * q, 2)}, {vr(S, 2)} op_sel_hi:[1,0] neg_lo:[0,1] neg_hi:[0,1]")
        e(f"v_pk_mul_f32 {vr(S + 2, 2)}, {vr(Dv, 2)}, {vr(Dv, 2)}")
        e(f"v_pk_mul_f32 {vr(S + 24, 2)}, {vr(Dv + 2, 2)}, {vr(Dv + 2, 2)}")
        for q in range(2, 10):
            r = S + 2 if q % 2 == 0 else S + 24
            e(f"v_pk_fma_f32 {vr(r, 2)}, {vr(Dv + 2 * q, 2)}, {vr(Dv + 2 * q, 2)}, {vr(r, 2)}")
        e(f"v_pk_add_f32 {vr(S + 2, 2)}, {vr(S + 2, 2)}, {vr(S + 24, 2)}")
        e(f"v_add_f32 v{S + 2}, v{S + 2}, v{S + 3}")
        red("v_add_f32", S + 2, S + 3, False)
        e(f"v_mul_f32 v{S + 2}, {hex(f2u(1.0 / 640))}, v{S + 2}")
        bf16round(S + 2)
        e(f"v_add_f32 v{S + 2}, {hex(f2u(1e-5))}, v{S + 2}")
        bf16round(S + 2)
        e(f"v_sqrt_f32 v{S + 2}, v{S + 2}")
        bf16round(S)
        bf16round(S + 2)
        e(f"v_rcp_f32 v{S + 3}, v{S + 2}")
        e(f"v_sub_f32 v{SO}, 0, v{S}")
        e(f"v_mul_f32 v{SO + 3}, v{S + 2}, v{S + 2}")
        e(f"v_mul_f32 v{S + 1}, v{S + 3}, v{S + 3}")
        e(f"v_mul_f32 v{SO + 2}, {hex(f2u(C0))}, v{S + 3}")
        e(f"v_mul_f32 v{S + 1}, v{S + 1}, v{S + 3}")
        e(f"v_mul_f32 v{S + 2}, v{SO}, v{S + 3}")
        e(f"v_mul_f32 v{SO + 1}, {hex(f2u(C1))}, v{S + 1}")
        for q in range(10):
            e(f"v_pk_fma_f32 {vr(Dv + 2 * q, 2)}, {vr(F + 2 * q, 2)}, {vr(S + 2, 2)}, {vr(S + 2, 2)} op_sel:[0,1,0] op_sel_hi:[1,1,0]")
        for q in range(10):
            e(f"v_cvt_pk_f16_f32 v{UO + q}, v{Dv + 2 * q}, v{Dv + 2 * q + 1}")
        e("v_lshrrev_b32 v2, 5, v0")
        e(f"v_mul_u32_u24 v2, {LNP}, v2")
        e("v_and_b32 v3, 31, v0")
        e("v_lshl_add_u32 v2, v3, 3, v2")
        e(f"s_mul_i32 {sT1}, {sW}, {2 * LNP}")
        e(f"s_add_u32 {sT1}, {sT1}, {MISC}")
        e(f"v_add_u32 v2, {sT1}, v2")
        for q in range(5):
            g.lds(f"ds_write_b64 v2, {vr(UO + 2 * q, 2)} offset:{256 * q}", "lnw")
        e("v_lshrrev_b32 v4, 1, v0")
        e(f"v_mov_b32 v5, {OOB}")
        e("v_cmp_ne_u32 vcc, 0, v3")
        e(f"s_lshl_b32 {sT1}, s2, 2")
        e(f"s_add_u32 {sT1}, {sT1}, {sW}")
        e("v_cndmask_b32 v4, v4, v5, vcc")
        e(f"s_lshl_b32 {sT1}, {sT1}, 5")
        e(f"s_add_u32 {sT1}, {sT1}, {STATS}")
        e("v_bfe_u32 v6, v0, 2, 2")
        e(f"v_mul_u32_u24 v2, {LNP}, v6")
        e("v_lshrrev_b32 v3, 4, v0")
        e("v_lshl_add_u32 v2, v3, 5, v2")
        e("v_and_b32 v7, 3, v0")
        e("v_lshl_add_u32 v2, v7, 3, v2")
        e(f"s_lshl_b32 {sT2}, {sW}, 7")
        e(f"s_add_u32 {sT2}, {sT2}, {MISC}")
        e(f"v_add_u32 v2, {sT2}, v2")

    e(f"s_cmp_eq_u32 {sISG1}, 0")
    e("s_cbranch_scc1 L_sp_ln")
    u1 = param_units(0) + dma_units(1)
    if not CSE:
        u1 += csl_units()
    lg0 = list(g.lg)
    interleave(ln_code, u1, opt.get("pe1", 6))
    for u in u1:
        assert not (isinstance(u, tuple) and u[0] == "m0")
        g.do(u)
    e("s_branch L_ln_done")
    g.lab("L_sp_ln")
    g.lg = lg0
    ln_code()
    g.lab("L_ln_done")
    g.vmem(f"buffer_store_dwordx4 {vr(SO, 4)}, v4, {SWS}, {sT1} offen sc1", "lnst")
    g.wlg0()
    e("s_barrier")
    TR = 200
    for j in range(3):
        for h in range(2):
            g.lds(f"ds_read_b64_tr_b16 {vr(TR + 4 * j + 2 * h, 2)}, v2 offset:{512 * j + 4 * LNP * h}", ("lntr", j))
    e(f"s_mul_i32 {sT1}, s2, 10240")
    e(f"s_lshl_b32 {sT2}, {sW}, 10")
    e(f"s_add_u32 {sT1}, {sT1}, {sT2}")
    e(f"s_add_u32 {sT1}, {sT1}, {XNT}")
    e(f"s_add_u32 {sT2}, {sT1}, 4096")
    e(f"s_add_u32 {sT3}, {sT1}, 8192")
    e(f"s_cmp_lt_u32 {sW}, 2")
    e(f"s_cselect_b32 {sT3}, {sT3}, {OOB}")
    for j, so in enumerate((sT1, sT2, sT3)):
        g.wlg(("lntr", j))
        g.vmem(f"buffer_store_dwordx4 {vr(TR + 4 * j, 4)}, v1, {SWS}, {so} offen sc1", "lnst")
    stamp("ln_done", flush=True)
    e(f"s_cmp_eq_u32 {sISG1}, 0")
    e("s_cbranch_scc1 L_spare")

    e("v_and_b32 v2, 31, v0")
    e("v_lshrrev_b32 v3, 5, v0")
    e("v_bfe_u32 v4, v0, 1, 3")
    e("v_xor_b32 v4, v4, v3")
    e(f"v_lshl_add_u32 v2, v2, 7, {sXM0}")
    for ks in range(4):
        e(f"v_xor_b32 v5, {2 * ks}, v4")
        e(f"v_lshl_add_u32 v{vBA + ks}, v5, 4, v2")
        e(f"v_add_u32 v{vBA + 4 + ks}, {2 * SLOT}, v{vBA + ks}")
    e("v_lshl_add_u32 v2, v3, 3, v6")
    e("v_lshlrev_b32 v2, 7, v2")
    e("v_bfe_u32 v4, v0, 4, 1")
    e("v_lshl_add_u32 v2, v4, 5, v2")
    e("v_lshl_add_u32 v2, v7, 3, v2")
    e("v_lshrrev_b32 v3, 1, v6")
    e(f"v_xor_b32 v3, {sRHO}, v3")
    e(f"s_lshl_b32 {sT1}, {sC}, 13")
    e("v_lshl_add_u32 v2, v3, 6, v2")
    e(f"v_add_u32 v{vAA}, {sT1}, v2")
    e(f"v_xor_b32 v{vAA + 1}, 64, v{vAA}")
    e(f"v_xor_b32 v{vAA + 2}, 0x2000, v{vAA}")
    e(f"v_xor_b32 v{vAA + 3}, 0x2000, v{vAA + 1}")
    for i in range(4):
        e(f"v_add_u32 v{vAA + 4 + i}, {2 * SLOT}, v{vAA + i}")
    e(f"s_mov_b32 {sMASK}, 0xffff0000")

    def touch_setup():
        return [f"s_lshr_b32 {sF0}, {sQ}, 2", f"s_mul_i32 {sF0}, {sF0}, 10", f"v_add_u32 v2, {sF0}, v0",
                "v_min_u32 v2, 63, v2", "v_mul_u32_u24 v2, 1280, v2", f"v_mov_b32 v3, {OOB}",
                f"v_cmp_lt_u32 vcc, 9, v0\ns_nop 1\nv_cndmask_b32 v{vTO}, v2, v3, vcc",
                f"s_and_b32 {sF0}, {sQ}, 3", f"s_lshl_b32 {sF0}, {sF0}, 1", f"s_add_u32 {sF0}, {sF0}, {sRHO}",
                f"s_lshl_b32 {sF0}, {sF0}, 3", f"s_lshl_b32 {sF1}, {sW}, 4", f"s_sub_u32 {sF0}, {sF0}, {sF1}",
                f"s_add_u32 {sF0}, {sF0}, 64", f"v_add_u32 v2, {sF0}, v0", "v_mul_u32_u24 v2, 3456, v2",
                f"v_cmp_lt_u32 vcc, 7, v0\ns_nop 1\nv_cndmask_b32 v{vTO + 1}, v2, v3, vcc",
                ]

    def touch_units(ahead):
        return [f"s_add_u32 {sT4}, {sXS}, {128 * ahead}",
                ("vm", f"buffer_load_dword v{vFL + 4}, v{vTO}, {SX}, {sT4} offen", "touch"),
                f"s_add_u32 {sT4}, {sWSO}, {64 * 3456 * (ahead - 1)}" if ahead >= 1 else f"s_sub_u32 {sT4}, {sWSO}, {64 * 3456}",
                ("vm", f"buffer_load_dword v{vFL + 4}, v{vTO + 1}, {STW}, {sT4} offen", "touch")]

    def frag_reads(k):
        stage, ks = divmod(k, 4)
        sl = stage % 3
        st4 = 4 if sl == 2 else 0
        so = 0 if sl == 2 else sl * SLOT
        A = vAF + 16 * (k & 1)
        B = vBF + 8 * (k & 1)
        def bread(b):
            return ("lds", f"ds_read_b128 {vr(B + 4 * b, 4)}, v{vBA + st4 + ks} offset:{so + 4096 * b}", ("B", k, b))
        def aread(t, h):
            return ("lds", f"ds_read_b64_tr_b16 {vr(A + 4 * t + 2 * h, 2)}, v{vAA + st4 + t} offset:{so + ks * 2048 + h * 512}", ("A", k, t))
        return [bread(0), aread(0, 0), aread(0, 1), bread(1), aread(1, 0), aread(1, 1), aread(2, 0), aread(2, 1), aread(3, 0), aread(3, 1)]

    g.wvm("ep")
    e(f"v_readfirstlane_b32 {sTAG}, v{vTAG}")
    e("s_nop 3")
    e(f"s_mul_i32 {sTAG}, {sTAG}, 1664525")
    e(f"s_add_u32 {sTAG}, {sTAG}, 1013904223")
    e(f"v_mov_b32 v{vTAG}, {sTAG}")
    e("s_barrier")
    stamp("g1_start")
    stamp("c_g1s", cyc=True)
    for it in frag_reads(0):
        g.do(it)

    PACE = opt.get("pace", 2)
    NG = 320
    gaps = [[] for _ in range(NG)]
    head = [[] for _ in range(NG)]
    pre = {}
    vq_big = []

    sq = []
    def add_group(units, earliest, small=False):
        vq = sq if small else vq_big
        prel = []
        for u in units:
            if isinstance(u, tuple) and u[0] == "m0":
                prel.append(u[1])
            elif isinstance(u, tuple) or callable(u):
                vq.append([earliest, prel, u, []])
                prel = []
            else:
                prel.append(u)
        if prel:
            vq[-1][3] += prel

    def Bgap(s):
        return 32 * s - 8

    PKV = 48
    pk_fill = [f"s_mov_b32 {sF0}, {0x100000000 // 20 + 1}", f"s_lshl_b32 {sF1}, {sW}, 6"]
    for i3 in range(3):
        pk_fill += [f"v_add_u32 v2, {sF1}, v0"] + ([f"v_add_u32 v2, {256 * i3}, v2"] if i3 else []) + [
            f"v_mul_hi_u32 v3, v2, {sF0}", "v_mul_u32_u24 v12, 20, v3", "v_sub_u32 v12, v2, v12",
            "v_mul_u32_u24 v3, 1280, v3", f"v_lshl_add_u32 v{PKV + i3}, v12, 4, v3"]
    pk_fill += [f"s_lshr_b32 {sHS0}, {sCP}, 2", f"s_and_b32 {sHS1}, {sCP}, 3",
                f"s_mul_i32 {sT2}, {sHS0}, 40960", f"s_mul_i32 {sF0}, {sHS1}, 320", f"s_add_u32 {sT2}, {sT2}, {sF0}",
                f"s_lshl_b32 {sT3}, {sW}, 10"]
    pk_fill2 = ["v_lshrrev_b32 v2, 5, v0", "v_bfe_u32 v3, v0, 2, 2", "v_lshl_add_u32 v2, v2, 4, v3", "v_bfe_u32 v3, v0, 4, 1",
                "v_lshl_add_u32 v2, v3, 2, v2", "v_mul_u32_u24 v2, 320, v2", "v_and_b32 v3, 3, v0", "v_lshl_add_u32 v2, v3, 3, v2",
                f"s_lshl_b32 {sF0}, {sW}, 5", f"s_add_u32 {sF0}, {sF0}, {PKB}", f"v_add_u32 v{PKV + 3}, {sF0}, v2"]
    PDR = [56, 60, 8]
    pk_dma = []
    for i3 in range(3):
        if i3 == 2:
            pk_dma.append(f"s_cmp_lt_u32 {sW}, 2\ns_cselect_b32 {sT2}, {sT2}, {OOB}")
        pk_dma += [("m0", f"s_add_u32 m0, {sT3}, {PKB + 4096 * i3}"),
                   ("vm", f"buffer_load_dwordx4 v{PKV + i3}, {SWD}, {sT2} offen lds", "pkd")]
    pk_st = []
    for i3 in range(3):
        pk_st += [f"s_mul_i32 {sT2}, {sHS1}, 10\ns_add_u32 {sT2}, {sT2}, {sW}\ns_add_u32 {sT2}, {sT2}, {4 * i3}",
                  f"s_mul_i32 {sT3}, {sT2}, 13108\ns_lshr_b32 {sT3}, {sT3}, 16\ns_mul_i32 {sT3}, {sT3}, 265\ns_add_u32 {sT2}, {sT2}, {sT3}",
                  f"s_mul_i32 {sT3}, {sHS0}, 5\ns_add_u32 {sT2}, {sT2}, {sT3}\ns_lshl_b32 {sT2}, {sT2}, 10\ns_add_u32 {sT2}, {sT2}, {WDP}"]
        if i3 == 2:
            pk_st.append(f"s_cmp_lt_u32 {sW}, 2\ns_cselect_b32 {sT2}, {sT2}, {OOB}")
        pk_st.append(("vm", f"buffer_store_dwordx4 {vr(PDR[i3], 4)}, v1, {SWS}, {sT2} offen sc1", "pks"))
    lnflag = [f"s_lshl_b32 {sT1}, s2, 2\ns_add_u32 {sT1}, {sT1}, {LNF}\ns_cmp_eq_u32 {sW}, 0\ns_cselect_b32 {sT1}, {sT1}, {OOB}",
              lambda: flag_store(sT1)]
    wfflag = [f"s_lshl_b32 {sT1}, {sHS1}, 6\ns_add_u32 {sT1}, {sT1}, {sHS0}\ns_lshl_b32 {sT1}, {sT1}, 2\ns_add_u32 {sT1}, {sT1}, {WF}",
              f"s_cmp_eq_u32 {sW}, 0\ns_cselect_b32 {sT1}, {sT1}, {OOB}", lambda: flag_store(sT1)]

    add_group(dma_units(2), opt.get("d2", 4))
    add_group(pk_dma, 20)
    for st_ in range(1, 8):
        if st_ == 2:
            add_group(pk_st, Bgap(2) + 6)
        add_group(dma_units(st_ + 2), Bgap(st_) + {1: opt.get("d3", 18), 2: opt.get("d4", 26), 3: opt.get("d5", 0), 4: opt.get("d6", 20)}.get(st_, 0))
    G0 = 8 * KCHK + 4
    for phi in range(P1):
        add_group(wd_load(phi), G0)
    vsched = []
    occ = set()
    def place(q, pace):
        last = -pace
        for (ear, prel, vmi, post) in q:
            gq = max(ear, last + pace)
            while gq in occ:
                gq += 1
            assert gq < NG - 1, gq
            occ.add(gq)
            gaps[gq - 1] += prel
            head[gq].append(vmi)
            gaps[gq] = post + gaps[gq]
            last = gq
            vsched.append((gq, vmi[2] if isinstance(vmi, tuple) else "flag"))
    place(vq_big, PACE)
    def gap_of(tag):
        return max(gq for gq, t in vsched if t == tag)
    for st_ in range(1, 8):
        ge = gap_of(("dma", st_ + 2)) + 2
        if st_ == 1:
            add_group(lnflag, gap_of("pkd") + 1, True)
        if st_ == 2:
            add_group([f"s_lshl_b32 {sT1}, {sFT}, 1\ns_add_u32 {sT1}, {sT1}, {sC}\ns_lshl_b32 {sT1}, {sT1}, 3\ns_add_u32 {sT1}, {sT1}, {sM}",
                       f"s_lshl_b32 {sT1}, {sT1}, 1\ns_add_u32 {sT1}, {sT1}, {sRHO}\ns_lshl_b32 {sT1}, {sT1}, 8\ns_add_u32 {sT1}, {sT1}, {CSP}",
                       ("vm", f"buffer_store_dwordx2 {vr(4, 2)}, v6, {SWS}, {sT1} offen sc1", "pks")], gap_of("pks") + 1, True)
        if st_ == 4:
            add_group(wfflag, gap_of(("dma", 5)) + 1, True)
        if st_ == 5:
            add_group([("vm", f"buffer_load_dwordx4 {vr(vFL, 4)}, v{vFA}, {SWS}, 0 offen sc1", "poll"),
                       ("vm", f"buffer_load_dword v{PKV}, v{vFA + 1}, {SWS}, 0 offen sc1", "poll")], 8 * KCHK - 22, True)
        if TOUCH and st_ + TOUCH <= 9:
            if st_ == 1:
                for a in range(0, TOUCH - 3):
                    add_group(touch_units(a), ge, True)
            add_group(touch_units(TOUCH - 3), ge, True)
        if st_ == 6 and opt.get('wtouch'):
            for t3 in range(3):
                add_group([f"s_and_b32 {sT4}, {sLT}, 3\ns_mul_i32 {sT4}, {sT4}, {140 * 128}\ns_add_u32 {sT4}, {sT4}, {sWDS}" if t3 == 0 else f"s_add_u32 {sT4}, {sT4}, {48 * 128}",
                           ("vm", f"buffer_load_dword v{vFL + 4}, v{PKV + 1}, {SWS}, {sT4} offen sc1", "wtouch")], 8 * KCHK + 4 + 4 * t3, True)
    add_group([f"s_lshl_b32 {sT1}, {sFT}, 1\ns_add_u32 {sT1}, {sT1}, {sC}\ns_lshl_b32 {sT1}, {sT1}, 5\ns_add_u32 {sT1}, {sT1}, {sRHO}",
               f"s_lshl_b32 {sT1}, {sT1}, 7\ns_add_u32 {sT1}, {sT1}, {CSP}",
               ("vm", f"buffer_load_dwordx4 {vr(4, 4)}, v{vCS}, {SWS}, {sT1} offen sc1", "csp"),
               ("vm", f"buffer_load_dwordx4 {vr(8, 4)}, v{vCS}, {SWS}, {sT1} offen offset:2048 sc1", "csp")], G0, True)
    add_group([f"s_lshl_b32 {sT1}, {sM}, 2\ns_add_u32 {sT1}, {sT1}, {sW}\ns_lshl_b32 {sT1}, {sT1}, 10\ns_add_u32 {sT1}, {sT1}, {STATS}",
               ("vm", f"buffer_load_dwordx4 {vr(vSTA, 4)}, v15, {SWS}, {sT1} offen sc1", "stats"),
               ("vm", f"buffer_load_dwordx4 {vr(vSTA + 4, 4)}, v15, {SWS}, {sT1} offen offset:512 sc1", "stats")], G0, True)
    add_group(u_loads(sCP, 3), G0, True)
    place(sq, 1)
    vsched.sort()
    if opt.get("v"):
        print(vsched)
    assert all(gap_of(("dma", st_)) < Bgap(st_) - 12 for st_ in range(2, 10))
    assert gap_of("pkd") < Bgap(2) and gap_of("pks") < Bgap(4) - 16 and gap_of("poll") < 8 * KCHK - 6

    for i3 in range(3):
        for h in range(2):
            gaps[Bgap(2) + 1 + i3].append(("lds", f"ds_read_b64_tr_b16 {vr(PDR[i3] + 2 * h, 2)}, v{PKV + 3} offset:{128 * i3 + 8 * 320 * h}", "pk"))
    c4 = check4(vFL)
    gaps[8 * KCHK] += [("wvm", "poll")] + c4[0:2]
    gaps[8 * KCHK + 1] += c4[2:5]
    def chk():
        sl = g.newlab("Lslow")
        bk = g.newlab("Lback")
        e(f"v_xor_b32 v{PKV}, v{vTAG}, v{PKV}")
        e(f"v_or3_b32 v{vFL}, v{vFL}, v{vFL + 3}, v{PKV}")
        e(c4[6])
        e(f"s_cbranch_vccnz {sl}")
        g.lab(bk)
        g.slow.append((sl, bk, [(vFA, True), (vFA + 1, False)]))
    gaps[8 * KCHK + 2].insert(0, chk)

    CA = [4, 5, 6, 7, 42, 43, 44, 45]
    csum = []
    for j5 in range(5):
        csum.append(("wvm", ("csl", j5)))
        for d in range(4):
            r = CSR[j5] + d
            if j5 == 0:
                csum += [f"v_lshlrev_b32 v{CA[2 * d]}, 16, v{r}", f"v_and_b32 v{CA[2 * d + 1]}, {sMASK}, v{r}"]
            else:
                csum += [f"v_lshlrev_b32 v8, 16, v{r}", f"v_and_b32 v9, {sMASK}, v{r}",
                         f"v_add_f32 v{CA[2 * d]}, v{CA[2 * d]}, v8", f"v_add_f32 v{CA[2 * d + 1]}, v{CA[2 * d + 1]}, v9"]
    csum += ["s_nop 1"]
    csum += [f"v_permlane32_swap_b32 v{CA[c]}, v{CA[c + 4]}" for c in range(4)]
    csum += [f"v_add_f32 v{CA[c]}, v{CA[c]}, v{CA[c + 4]}" for c in range(4)]
    csum += ["s_nop 1"]
    csum += [f"v_permlane16_swap_b32 v{CA[c]}, v{CA[c + 2]}" for c in range(2)]
    csum += ["s_nop 0"]
    csum += [f"v_add_f32 v{CA[c]}, v{CA[c]}, v{CA[c + 2]}" for c in range(2)]
    csum += ["v_and_b32 v6, 7, v0", "v_lshlrev_b32 v6, 5, v6"]
    csum += [f"v_add_f32 v{CA[c]}, v{CA[c]}, v{CA[c]} row_ror:8" for c in range(2)]
    csum += ["v_lshrrev_b32 v7, 4, v0", "v_lshl_add_u32 v6, v7, 3, v6", f"v_mov_b32 v7, {OOB}",
             "v_and_b32 v8, 8, v0", "v_cmp_ne_u32 vcc, 0, v8\ns_nop 1\nv_cndmask_b32 v6, v6, v7, vcc"]
    fillq = pk_fill + (touch_setup() if TOUCH else []) + pk_fill2[:11]
    n_a = len(fillq)
    fillq += csum
    n_csum = len(fillq)
    n_early = len(pk_fill)
    fillq += pk_fill2[11:]
    n_early2 = len(fillq)
    fillq += [f"v_min_u32 v2, 53, v0", f"s_lshr_b32 {sF0}, {sDT}, 1", f"s_lshl_b32 {sF0}, {sF0}, 8",
              f"s_add_u32 {sF0}, {sF0}, {WF}", f"v_lshl_add_u32 v2, v2, 2, {sF0}",
              "v_and_b32 v3, 7, v0", "v_mul_u32_u24 v3, 27, v3", f"v_add_u32 v3, {sFT}, v3", "v_and_b32 v12, 3, v3",
              "v_lshrrev_b32 v3, 2, v3", "v_lshl_add_u32 v3, v12, 6, v3", "v_lshlrev_b32 v3, 2, v3", f"v_add_u32 v3, {WF}, v3",
              f"v_cmp_lt_u32 vcc, 55, v0\ns_nop 1\nv_cndmask_b32 v{vFA + 1}, v2, v3, vcc"]
    ai = addr_items()
    iw = max(i for i, x in enumerate(ai) if sWDS + "," in x)
    i0 = min(i for i, x in enumerate(ai) if f"{sF0}, {sW}, 14" in x)
    fillq += [ai[0]] + ai[i0:iw + 1] + [f"v_min_u32 v2, 47, v0", f"v_lshlrev_b32 v{PKV + 1}, 7, v2"]
    n_mid = len(fillq)
    fillq += ai[1:i0] + ai[i0:i0 + 3] + ai[iw + 1:]
    fillq += ["v_bfe_u32 v2, v0, 4, 1", f"v_mul_u32_u24 v2, {54 * 1024}, v2", "v_lshrrev_b32 v3, 5, v0",
              "v_lshl_add_u32 v2, v3, 8, v2", "v_and_b32 v12, 15, v0", "v_lshl_add_u32 v2, v12, 4, v2",
              f"s_lshl_b32 {sF0}, {sRHO}, 10", f"v_add_u32 v{vHO}, {sF0}, v2", f"s_xor_b32 {sF0}, {sF0}, 1024",
              f"v_add_u32 v{vHO + 1}, {sF0}, v2", f"s_lshl_b32 {sF0}, {sRHO}, 7", f"s_add_u32 {sF0}, {sF0}, {CSB}",
              f"v_lshl_add_u32 v13, v3, 4, {sF0}", "v_xor_b32 v14, 128, v13",
              "v_and_b32 v2, 7, v0", "v_lshlrev_b32 v12, 4, v2", "v_lshl_add_u32 v12, v3, 3, v12", "v_bfe_u32 v3, v0, 4, 1",
              "v_lshl_add_u32 v12, v3, 2, v12", f"s_lshl_b32 {sF0}, {sW}, 7", f"s_add_u32 {sF0}, {sF0}, {CSB}",
              f"v_add_u32 v12, {sF0}, v12", "v_lshrrev_b32 v3, 3, v0", "v_lshlrev_b32 v3, 8, v3", f"v_lshl_add_u32 v{vCS}, v2, 4, v3",
              "v_and_b32 v15, 31, v0", "v_lshlrev_b32 v15, 4, v15"]
    tail_fill = [f"s_lshl_b32 {sHS0}, {sM}, 2", f"s_add_u32 {sHS0}, {sHS0}, {sW}", f"s_lshl_b32 {sPEND}, {sHS0}, 5",
                 f"s_mul_i32 {sHS0}, {sHS0}, {4 * 54}", f"s_lshl_b32 {sT2}, {sFT}, 1", f"s_add_u32 {sHS0}, {sHS0}, {sT2}",
                 f"s_lshl_b32 {sHS0}, {sHS0}, 10", f"s_add_u32 {sHS0}, {sHS0}, {HB}", f"s_add_u32 {sHS1}, {sHS0}, {2 * 54 * 1024}",
                 f"s_add_u32 {sPEND}, {sPEND}, {sFT}", f"s_lshl_b32 {sPEND}, {sPEND}, 2", f"s_add_u32 {sPEND}, {sPEND}, {HF}"]
    cs_fill = [("wvm", "csp")] + [f"v_add_f32 v{4 + c}, v{4 + c}, v{8 + c}" for c in range(4)] + ["s_nop 0",
               "v_permlane32_swap_b32 v4, v6", "v_permlane32_swap_b32 v5, v7", "s_nop 0", "v_add_f32 v4, v4, v6", "v_add_f32 v5, v5, v7",
               "s_nop 1", "v_permlane16_swap_b32 v4, v5", "s_nop 0", "v_add_f32 v4, v4, v5", "s_nop 1",
               "v_add_f32 v4, v4, v4 row_ror:8", ("lds", "ds_write_b32 v12, v4", "csw")]
    nf_total = len(fillq)

    def cost(it):
        if isinstance(it, str):
            return it.count("\n") + 1
        return 1
    CAP = opt.get("cap", 4)
    for k in range(40):
        stage, ks = divmod(k, 4)
        A = vAF + 16 * (k & 1)
        B = vBF + 8 * (k & 1)
        gk = [head[8 * k + i] + gaps[8 * k + i] for i in range(8)]
        body = [[] for _ in range(8)]
        if k + 1 < 40:
            for i, it in enumerate(frag_reads(k + 1)):
                body[i // 2].append(it)
        if k == 39:
            for j in range(4):
                body[2 + j // 2].append(("lds", f"ds_read_b128 {vr(64 + 4 * j, 4)}, v13 offset:{32 * j}", "cs0"))
            for j in range(4):
                dst = (4 + 4 * j) if j < 2 else (96 + 4 * (j - 2))
                body[4 + j // 2].append(("lds", f"ds_read_b128 {vr(dst, 4)}, v13 offset:{256 + 32 * j}", "cs0"))
        else:
            load = [sum(map(cost, gk[i])) + len(body[i]) + (1 if i in (3, 7) else 0) for i in range(8)]
            q = fillq if fillq else tail_fill
            if k == KCHK:
                q = []
            if k in (33, 34) and cs_fill:
                q = cs_fill
            cap = CAP + (1 if k < 8 else 0)
            for i in range(8):
                while q and load[i] + cost(q[0]) <= cap + (2 if cost(q[0]) > 1 else 0):
                    it = q.pop(0)
                    body[i].append(it)
                    load[i] += cost(it)
            if k == 2:
                assert nf_total - len(fillq) >= n_early, (nf_total - len(fillq), n_early)
            if k == 5:
                assert nf_total - len(fillq) >= n_a
            if k == 6:
                assert nf_total - len(fillq) >= n_a + 30
            if 8 * k + 8 >= gap_of("pks") - 1:
                assert nf_total - len(fillq) >= n_csum, (nf_total - len(fillq), n_csum)
            if k == 13:
                assert nf_total - len(fillq) >= n_early2
            if k == KCHK - 4:
                assert nf_total - len(fillq) >= n_mid
            if 8 * k + 8 > gap_of("stats") - 4:
                assert not fillq, (k, len(fillq))
            if k < 18:
                assert len(tail_fill) == 12
        if ks == 3 and stage < 9:
            stamp(f"c_w{stage + 1}", cyc=True)
            g.wlg0()
            if stage == 0:
                g.wvm("lnst")
            if stage == 1:
                g.wvm("pkd")
            if stage == 3:
                g.wvm("pks")
            g.wvm(("dma", stage + 1))
            e("s_barrier")
            stamp(f"c_b{stage + 1}", cyc=True)
        for i in range(8):
            t, b = divmod(i, 2)
            if k == 0:
                g.wlg(("A", k, t))
                g.wlg(("B", k, b))
            elif i == 0:
                g.wlg(("A", k, 1))
            elif i == 4:
                g.wlg(("A", k, 3))
            D = vACC + 16 * (2 * t + b)
            Cs = "0" if k == 0 else vr(D, 16)
            e(f"v_mfma_f32_32x32x16_bf16 {vr(D, 16)}, {vr(A + 4 * t, 4)}, {vr(B + 4 * b, 4)}, {Cs}")
            for it in head[8 * k + i]:
                if isinstance(it, tuple) and it[2] == "pks":
                    g.wlg("pk")
                g.do(it)
            for it in body[i] + gaps[8 * k + i]:
                g.do(it)
    assert not tail_fill and not cs_fill
    stamp("c_g1e", cyc=True)
    stamp("g1_loop_end", flush=True)

    def csu0(i):
        return (4 + i) if i < 8 else (96 + i - 8)
    def csu1(i):
        return (104 + i) if i < 8 else (28 + i - 8)
    tmps = [24, 26, 36, 38]
    g.wvm("stats")
    g.wlg("cs0")
    e(f"s_cmp_lg_u32 {sC}, 0")
    e("s_cbranch_scc1 L_epiB")
    vm_save, lg_save = list(g.vm), list(g.lg)
    for variant in range(2):
        if variant == 1:
            align()
            g.lab("L_epiB")
            g.vm, g.lg = list(vm_save), list(lg_save)
        align()
        for ap in range(2):
            for b in range(2):
                gs, us = (ap, 2 + ap) if variant == 0 else (2 + ap, ap)
                Gt = vACC + 16 * (2 * gs + b)
                Ut = vACC + 16 * (2 * us + b)
                st = vSTA + 4 * b
                if ap == 0 and b == 1:
                    for j in range(4):
                        g.lds(f"ds_read_b128 {vr(80 + 4 * j, 4)}, v14 offset:{32 * j}", "cs1")
                    for j in range(4):
                        dst = (104 + 4 * j) if j < 2 else (28 + 4 * (j - 2))
                        g.lds(f"ds_read_b128 {vr(dst, 4)}, v14 offset:{256 + 32 * j}", "cs1")
                if ap == 1 and b == 0:
                    g.wlg("cs1")
                    align()
                csg = (lambda i: 64 + i) if ap == 0 else (lambda i: 80 + i)
                csu = csu0 if ap == 0 else csu1
                for c in range(2):
                    O = 16 if c == 0 else 20
                    ps = range(4 * c, 4 * c + 4)
                    for p in ps:
                        e(f"v_pk_fma_f32 {vr(Gt + 2 * p, 2)}, {vr(csg(2 * p), 2)}, {vr(st, 2)}, {vr(Gt + 2 * p, 2)} op_sel_hi:[1,0,1]")
                    for p in ps:
                        e(f"v_pk_mul_f32 {vr(tmps[p % 4], 2)}, {vr(Gt + 2 * p, 2)}, {vr(Gt + 2 * p, 2)}")
                    for p in ps:
                        t = tmps[p % 4]
                        e(f"v_pk_fma_f32 {vr(t, 2)}, {vr(t, 2)}, {vr(st, 2)}, {vr(st + 2, 2)} op_sel:[0,1,0] op_sel_hi:[1,1,0]")
                    for p in ps:
                        t = tmps[p % 4]
                        e(f"v_pk_mul_f32 {vr(t, 2)}, {vr(t, 2)}, {vr(Gt + 2 * p, 2)}")
                    for p in ps:
                        t = tmps[p % 4]
                        e(f"v_exp_f32 v{t}, v{t}")
                        e(f"v_exp_f32 v{t + 1}, v{t + 1}")
                    for p in ps:
                        e(f"v_pk_fma_f32 {vr(Ut + 2 * p, 2)}, {vr(csu(2 * p), 2)}, {vr(st, 2)}, {vr(Ut + 2 * p, 2)} op_sel_hi:[1,0,1]")
                    for p in ps:
                        t = tmps[p % 4]
                        e(f"v_pk_fma_f32 {vr(t, 2)}, {vr(t, 2)}, {vr(st + 2, 2)}, {vr(st + 2, 2)} op_sel:[0,1,1] op_sel_hi:[1,1,1]")
                    for p in ps:
                        t = tmps[p % 4]
                        e(f"v_rcp_f32 v{t}, v{t}")
                        e(f"v_rcp_f32 v{t + 1}, v{t + 1}")
                    for p in ps:
                        e(f"v_pk_mul_f32 {vr(Gt + 2 * p, 2)}, {vr(Gt + 2 * p, 2)}, {vr(Ut + 2 * p, 2)}")
                    for p in ps:
                        e(f"v_pk_mul_f32 {vr(Gt + 2 * p, 2)}, {vr(Gt + 2 * p, 2)}, {vr(tmps[p % 4], 2)}")
                    for p in ps:
                        e(f"v_cvt_pk_bf16_f32 v{O + p - 4 * c}, v{Gt + 2 * p}, v{Gt + 2 * p + 1}")
                    g.vmem(f"buffer_store_dwordx4 {vr(O, 4)}, v{vHO + ap}, {SWS}, {sHS0 if b == 0 else sHS1} offen offset:{512 * c} sc1", "hst")
        if variant == 0:
            e("s_branch L_epi_done")
    g.lab("L_epi_done")
    stamp("c_epe", cyc=True)
    stamp("g1_epi_end", flush=True)
    e(f"s_mov_b32 {sK1}, 1")
    e(f"s_mov_b32 {sMASK}, {OOB}")
    e("s_branch L_rb1")

    g.lab("L_spare")
    g.vm = []
    g.lg = []
    e(f"v_readfirstlane_b32 {sTAG}, v{vTAG}")
    e("s_nop 3")
    e(f"s_mul_i32 {sTAG}, {sTAG}, 1664525")
    e(f"s_add_u32 {sTAG}, {sTAG}, 1013904223")
    e(f"v_mov_b32 v{vTAG}, {sTAG}")
    e(f"s_mov_b32 {sK1}, {sRND}")
    e(f"s_lshl_b32 {sMASK}, s2, 2")
    e(f"s_add_u32 {sMASK}, {sMASK}, {LNF}")
    e(f"s_cmp_eq_u32 {sW}, 0")
    e(f"s_cselect_b32 {sMASK}, {sMASK}, {OOB}")
    e(f"s_mov_b32 {sPEND}, {OOB}")
    e("s_waitcnt vmcnt(4)")
    e("s_barrier")
    stamp("sp_ready", flush=True)

    g.lab("L_rb1")
    e(f"s_mov_b32 {sKR}, 0")
    for i in range(30):
        e(f"v_accvgpr_read_b32 v{SC + i}, a{AST + i}")
    AK = 46
    for i in range(8):
        e(f"v_accvgpr_read_b32 v{AK + i}, a{AS2 + 1 + i}")
    vKA_A, vKA_B, vZ, vRW, vUW, vYS, vFB, vGB = range(AK, AK + 8)

    g.lab("L_kgen")
    g.vm = []
    g.lg = []
    KA = 128
    WA = KA + 6
    for k6 in (4, 5, 0, 1, 2, 3):
        e(f"v_accvgpr_read_b32 v{vPAR + k6}, a{APAR + k6}")
    e(f"v_accvgpr_read_b32 v{WA}, a{AS2}")
    e(f"s_lshl_b32 {sT1}, {sC}, 4")
    e(f"v_lshrrev_b32 v{KA}, {sT1}, v{vPAR + 4}")
    e(f"v_lshlrev_b32 v{KA}, 16, v{KA}")
    e(f"v_mul_f32 v{KA}, {hex(f2u(LOG2E))}, v{KA}")
    e(f"v_exp_f32 v{KA}, v{KA}")
    e(f"v_lshrrev_b32 v{KA + 7}, {sT1}, v{vPAR + 5}")
    e(f"v_lshlrev_b32 v{KA + 7}, 16, v{KA + 7}")
    bf16round(KA)
    e(f"v_lshlrev_b32 v{KA + 2}, 16, v{vPAR}")
    e(f"v_and_b32 v{KA + 3}, 0xffff0000, v{vPAR}")
    e(f"v_mul_f32 v{KA + 2}, {hex(f2u(LOG2E))}, v{KA + 2}")
    e(f"v_mul_f32 v{KA + 3}, {hex(f2u(LOG2E))}, v{KA + 3}")
    e(f"v_exp_f32 v{KA + 2}, v{KA + 2}")
    e(f"v_exp_f32 v{KA + 3}, v{KA + 3}")
    e(f"v_lshlrev_b32 v{KA + 4}, 16, v{vPAR + 1}")
    e(f"v_and_b32 v{KA + 5}, 0xffff0000, v{vPAR + 1}")
    e(f"v_cvt_pk_bf16_f32 v{KA + 1}, v{KA + 2}, v{KA + 3}")
    CC = 152
    e(f"v_lshlrev_b32 v{CC}, 16, v{vPAR + 2}")
    e(f"v_lshlrev_b32 v{CC + 1}, 16, v{vPAR + 3}")
    e(f"v_and_b32 v{CC + 2}, 0xffff0000, v{vPAR + 2}")
    e(f"v_and_b32 v{CC + 3}, 0xffff0000, v{vPAR + 3}")
    e(f"v_lshlrev_b32 v{KA + 2}, 16, v{KA + 1}")
    e(f"v_and_b32 v{KA + 3}, 0xffff0000, v{KA + 1}")
    for m in range(2):
        e(f"v_mul_f32 v{KA + 2 + m}, v{KA + 2 + m}, v{KA}")
        e(f"v_mul_f32 v{KA + 4 + m}, v{KA + 4 + m}, v{KA}")
    for m in range(2):
        e(f"v_mul_f32 v{KA + 2 + m}, {hex(f2u(-LOG2E))}, v{KA + 2 + m}")
        e(f"v_mul_f32 v{KA + 4 + m}, {hex(f2u(1.0 / (2 * math.pi)))}, v{KA + 4 + m}")
    SIG, OMG = KA + 2, KA + 4

    def cexp(dst, p, t):
        for m in range(2):
            e(f"v_mul_f32 v{t + m}, {hex(f2u(float(p)))}, v{SIG + m}")
            e(f"v_mul_f32 v{t + 2 + m}, {hex(f2u(float(p)))}, v{OMG + m}")
        for m in range(2):
            e(f"v_fract_f32 v{t + 2 + m}, v{t + 2 + m}")
        for m in range(2):
            e(f"v_exp_f32 v{t + m}, v{t + m}")
            e(f"v_cos_f32 v{dst + 2 * m}, v{t + 2 + m}")
            e(f"v_sin_f32 v{dst + 2 * m + 1}, v{t + 2 + m}")
        e("s_nop 0")
        align()
        for m in range(2):
            e(f"v_pk_mul_f32 {vr(dst + 2 * m, 2)}, {vr(dst + 2 * m, 2)}, {vr(t, 2)} op_sel:[0,{m}] op_sel_hi:[1,{m}]")

    def cmul(dst, P, Q, t):
        for m in range(2):
            e(f"v_pk_mul_f32 {vr(t + 2 * m, 2)}, {vr(P + 2 * m, 2)}, {vr(Q + 2 * m, 2)} op_sel_hi:[0,1]")
        for m in range(2):
            e(f"v_pk_fma_f32 {vr(dst + 2 * m, 2)}, {vr(P + 2 * m, 2)}, {vr(Q + 2 * m, 2)}, {vr(t + 2 * m, 2)} op_sel:[1,1,0] op_sel_hi:[1,0,1] neg_lo:[0,1,0]")

    prow = [0]

    def put(src, row, neg, lastrow=False):
        o = 144 + 2 * (row % 4)
        ng = "-" if neg else ""
        if src is not None:
            e(f"v_cvt_pk_f16_f32 v{o}, v{src}, {ng}v{src + 1}")
            e(f"v_cvt_pk_f16_f32 v{o + 1}, v{src + 2}, {ng}v{src + 3}")
        if row % 2 == 1:
            o0 = ((row - 1) % 4) * 68
            g.lds(f"ds_write2_b64 v{WA}, {vr(o - 2, 2)}, {vr(o, 2)} offset0:{o0} offset1:{o0 + 68}", "xy")
            if row % 4 == 3:
                e(f"v_add_u32 v{WA}, {4 * XYP}, v{WA}")
        elif lastrow:
            g.lds(f"ds_write_b64 v{WA}, {vr(o, 2)} offset:{(row % 4) * XYP}", "xy")

    e(f"s_cmp_lg_u32 {sRHO}, 0")
    e("s_cbranch_scc1 L_role1")
    W8, YA, YB_, TM = 152, 156, 160, 136
    e(f"v_add_u32 v{WA}, {32 * XYP}, v{WA}")
    cexp(W8, 8, TM)
    e("v_mov_b32 v144, 0x3c00")
    e("v_mov_b32 v145, 0x3c00")
    put(W8, 33, False)
    cur = W8
    for j in range(2, 32):
        nxt = YA if cur != YA else YB_
        cmul(nxt, cur, W8, TM)
        put(nxt, 32 + j, False)
        cur = nxt
    e("s_branch L_kbar")
    align()
    g.lab("L_role1")
    MX = 136
    e(f"v_max_f32 v{MX}, |v{CC}|, |v{CC + 1}|")
    e(f"v_max3_f32 v{MX}, |v{CC + 2}|, |v{CC + 3}|, v{MX}")
    red("v_max_f32", MX, MX + 1, True)
    e(f"v_frexp_exp_i32_f32 v{MX}, v{MX}")
    e(f"v_add_f32 v{KA}, v{KA}, v{KA}")
    e(f"v_ldexp_f32 v{MX + 2}, v{KA}, v{MX}")
    e(f"v_mov_b32 v{MX + 3}, v{KA + 7}")
    e(f"v_sub_u32 v{MX}, 0, v{MX}")
    for i in range(4):
        e(f"v_ldexp_f32 v{CC + i}, v{CC + i}, v{MX}")
    e(f"v_add_u32 v{MX + 1}, {sKR}, v{vYS}")
    e(f"v_mov_b32 v{MX}, 0")
    g.lds(f"ds_write_b64 v{MX + 1}, {vr(MX + 2, 2)} offset:{YSO}", "xy")
    g.lds(f"ds_write_b32 v{MX + 1}, v{MX}", "xy")
    Z, Q, Q4 = 156, 160, 164
    cexp(Z, 1, TM)
    cexp(Q, 256, TM)
    cexp(Q4, 1024, TM)
    X = [168 + 4 * i for i in range(8)]
    X[0] = CC
    put(CC, 0, True)
    for s in range(1, 8):
        cmul(X[s], X[s - 1], Z, TM)
        put(X[s], s, True)
    R8 = [200 + 4 * i for i in range(4)]
    for s in range(4):
        cmul(R8[s], X[2 * s], Q, TM)
        put(R8[s], 8 + s, True)
    R12 = [216, 220]
    for s in range(2):
        cmul(R12[s], R8[2 * s], Q, TM)
        put(R12[s], 12 + s, True)
    for s in range(2):
        cmul(X[1 + 2 * s], R12[s], Q, TM)
        put(X[1 + 2 * s], 14 + s, True)
    cmul(R8[0], CC, Q4, TM)
    put(R8[0], 16, True)
    cmul(R8[1], R8[0], Q, TM)
    put(R8[1], 17, True)
    cmul(R8[3], R8[1], Q, TM)
    put(R8[3], 18, True)
    cmul(R8[1], R8[3], Q, TM)
    put(R8[1], 19, True)
    cmul(R8[2], R8[0], Q4, TM)
    put(R8[2], 20, True, lastrow=True)
    g.lab("L_kbar")
    e("v_mov_b32 v4, 0\nv_mov_b32 v5, 0\nv_mov_b32 v6, 0\nv_mov_b32 v7, 0")
    g.lds(f"ds_write_b128 v{vZ}, {vr(4, 4)}", "z")
    stamp("c_kve", cyc=True)
    stamp("kvalu_end")
    e("s_waitcnt vmcnt(0)")
    flag_store(sPEND)
    g.wlg0()
    e("s_barrier")
    flag_store(sMASK)
    e(f"s_mov_b32 {sMASK}, {OOB}")
    stamp("kbar", flush=True)
    KF = 64
    for ks in range(8):
        g.lds(f"ds_read_b128 {vr(KF + 4 * ks, 4)}, v{vKA_A} offset:{XYB + 64 * ks}", ("ka", ks))
        g.lds(f"ds_read_b128 {vr(128 + 4 * ks, 4)}, v{vKA_B} offset:{XYB + 32 * XYP + 64 * ks}", ("kb0", ks))
        g.lds(f"ds_read_b128 {vr(160 + 4 * ks, 4)}, v{vKA_B} offset:{XYB + 48 * XYP + 64 * ks}", ("kb1", ks))
    KD = 96
    for ks in range(8):
        g.wlg(("kb1", ks))
        e(f"v_mfma_f32_16x16x32_f16 {vr(KD, 4)}, {vr(KF + 4 * ks, 4)}, {vr(128 + 4 * ks, 4)}, {'0' if ks == 0 else vr(KD, 4)}")
        e(f"v_mfma_f32_16x16x32_f16 {vr(KD + 4, 4)}, {vr(KF + 4 * ks, 4)}, {vr(160 + 4 * ks, 4)}, {'0' if ks == 0 else vr(KD + 4, 4)}")
    e(f"s_sub_u32 {sK1}, {sK1}, 1")
    g.nop(6)
    for i in range(8):
        g.lds(f"ds_write_b32 v{SC + i}, v{KD + i}", "tw")
    e(f"s_cmp_eq_u32 {sK1}, 0")
    e("s_cbranch_scc1 L_kdone")
    e(f"s_add_u32 {sKR}, {sKR}, {2 * TC}")
    for i in range(8):
        e(f"v_add_u32 v{SC + i}, {2 * TC}, v{SC + i}")
    for i in range(6):
        e(f"v_accvgpr_mov_b32 a{APAR + i}, a{APAR + 8 + i}")
        e(f"v_accvgpr_mov_b32 a{APAR + 8 + i}, a{APAR + 16 + i}")
    e("s_waitcnt lgkmcnt(0)")
    e("s_barrier")
    e("s_branch L_kgen")
    g.lab("L_kdone")
    e(f"s_cmp_lg_u32 {sISG1}, 0")
    e("s_cbranch_scc1 L_conv_last")
    e(f"s_cmp_lg_u32 {sW}, 0")
    e("s_cbranch_scc1 L_sp_polled")
    poll_block(vFA, True, sleep=16)
    g.lab("L_sp_polled")
    e("s_barrier")
    stamp("sp_lnf", flush=True)
    e(f"s_mov_b32 {sK0}, {OOB}")
    for it in u_loads(sCP, 2):
        g.do(it)

    Greg = [[224 + 4 * i for i in range(8)], [192 + 4 * i for i in range(8)]]
    FB = [128, 160]
    CACC = 64
    HRING = [16 + 4 * i for i in range(12)] + [104 + 4 * i for i in range(3)] + [128 + 4 * i for i in range(26)]
    NE = opt.get("ne", 8)
    P2 = opt.get("p2", 40)
    NB = len(HRING)
    YS, DK = 100, 101

    def hload(i):
        k, st = divmod(i, 14)
        r = HRING[i % NB]
        if st == 13:
            return [f"s_cmp_lt_u32 {sW}, 2\ns_cselect_b32 {sT4}, s{sG2 + 4 * k + 3}, {OOB}",
                    ("vm", f"buffer_load_dwordx4 {vr(r, 4)}, v1, {SWS}, {sT4} offen offset:1024 sc1", ("h", i))]
        return [("vm", f"buffer_load_dwordx4 {vr(r, 4)}, v1, {SWS}, s{sG2 + 4 * k + st // 4} offen offset:{(st % 4) * 1024} sc1", ("h", i))]

    def conv(last):
        tag = "L" if last else "E"
        g.lab("L_conv_last" if last else "L_conv_early")
        g.vm = ["u", "u"]
        g.lg = ["tw"]
        def wd_e(phi):
            its = wd_load(phi)
            if len(its) > 1:
                its.insert(1, f"s_or_b32 {sT5}, {sT5}, {sK0}")
            return its
        if last:
            wq = [[f"s_add_u32 m0, {sXT}, {1024 * kk}", "s_nop 0",
                   ("vm", f"buffer_load_dwordx4 v{12 + kk}, {SX}, {sXO} offen lds", ("xt", 0))] for kk in range(3)]
            wq += [wd_load(phi) for phi in range(P1, 70)]
            for i7 in range(7):
                e(f"v_accvgpr_read_b32 v{9 + i7}, a{AS2 + 14 + i7}")
        else:
            wq = [wd_e(phi) for phi in range(0, P1)]
            g.vmem(f"buffer_load_dword v{vFL}, v{vFA + 1}, {SWS}, 0 offen sc1", "wfp")
        def wdl(n=1):
            for _ in range(n):
                if wq:
                    for it in wq.pop(0):
                        g.do(it)
        g.wlg0()
        e("s_barrier")
        EG = 128
        for ch in range(2):
            for k in range(11):
                g.lds(f"ds_read_b32 v{EG + 12 * ch + k}, v{GA + 11 * ch + k}", ("eg", ch))
        g.lds(f"ds_read_b64 {vr(YS, 2)}, v{vYS} offset:{YSO}", "ysc")
        if last:
            wdl(2)
        g.wvm("u")
        flag_store(sMASK)
        g.lds(f"ds_write_b128 v{vUW}, {vr(vU, 4)}", "uw")
        g.lds(f"ds_write_b128 v{vUW}, {vr(vU + 4, 4)} offset:512", "uw")
        if last:
            e(f"s_or_b32 {sT1}, s2, {sW}")
            e(f"s_cmp_eq_u32 {sT1}, 0")
            e(f"s_cselect_b32 {sT1}, {EPOCH}, {OOB}")
            flag_store(sT1)
        EO = 64
        for ch in range(2):
            g.wlg(("eg", ch))
            align()
            for s in range(4):
                o = EO + 16 * ch + 4 * s
                for j in range(4):
                    e(f"v_cvt_pk_f16_f32 v{o + j}, v{EG + 12 * ch + s + 2 * j}, v{EG + 12 * ch + s + 2 * j + 1}")
                g.lds(f"ds_write_b128 v{vRW}, {vr(o, 4)} offset:{s * RCS + 1024 * ch}", "rw")
                if last and s % 2 == 1:
                    wdl()
        if last:
            wdl()
        else:
            g.wvm("wfp")
            e(f"v_cmp_ne_u32 vcc, v{vTAG}, v{vFL}")
            e("s_nop 0")
            e("s_cmp_eq_u64 vcc, 0")
            e(f"s_cselect_b32 {sK0}, 0, {OOB}")
        extra = [f"v_accvgpr_read_b32 v{4 + i}, a{AS2 + 9 + i}" for i in range(5)]
        extra += [f"s_lshl_b32 {sT1}, {sCP}, 1", f"s_add_u32 {sT1}, {sT1}, {sC}", f"s_lshl_b32 {sT1}, {sT1}, 12",
                  f"s_lshl_b32 {sT3}, {sRHO}, 11", f"s_add_u32 {sT1}, {sT1}, {sT3}", f"s_add_u32 {sHS0}, {sT1}, {ST}",
                  f"s_mul_i32 {sT2}, {sCP}, 1639", f"s_lshr_b32 {sT2}, {sT2}, 16", f"s_mul_i32 {sT2}, {sT2}, 24",
                  f"s_add_u32 {sT2}, {sT2}, {sCP}", f"s_lshl_b32 {sT2}, {sT2}, 2", f"s_add_u32 {sT2}, {sT2}, {sW}",
                  f"s_lshl_b32 {sT2}, {sT2}, 2", f"s_add_u32 {sPEND}, {sT2}, {SF}"]
        if last:
            extra += [f"v_accvgpr_read_b32 v{vFA + i}, a{AS2 + 21 + i}" for i in range(2)]
            extra += ["v_min_u32 v3, 53, v0", "v_lshlrev_b32 v3, 7, v3",
                      f"s_lshl_b32 {sT0}, {sDT}, 2", f"s_add_u32 {sT0}, {sT0}, {sW}", f"s_mul_i32 {sT0}, {sT0}, {54 * 128}",
                      f"s_mul_i32 {sHS1}, {sLT}, {4 * 54 * 1024}", f"s_add_u32 {sHS1}, {sHS1}, {sT0}", f"s_add_u32 {sHS1}, {sHS1}, {HB}"]
        g.wlg0()
        e("s_barrier")
        stamp("c_cs" + tag, cyc=True)
        stamp("conv_start" + tag)

        def cls_reads(dl):
            bf = dl & 1
            out = []
            for s in range(8):
                out.append(("lds", f"ds_read_b128 {vr(Greg[bf][s], 4)}, v{vGB} offset:{512 * s + 64 * (3 - dl)}", ("G", dl, s)))
                off = 64 * (59 - dl - 8 * s)
                out.append(("lds", f"ds_read_b64 {vr(FB[bf] + 4 * s, 2)}, v{vFB} offset:{off}", ("F", dl, s)))
                out.append(("lds", f"ds_read_b64 {vr(FB[bf] + 4 * s + 2, 2)}, v{vFB} offset:{off + 8}", ("F", dl, s)))
            return out
        for it in cls_reads(0):
            g.do(it)
        order = sorted([(s, gg) for s in range(8) for gg in range(8) if s + gg < 8], key=lambda x: (max(x), x[0] + x[1]))
        seen = set()
        hq = []
        US, UD = 2, 96
        for dl in range(4):
            bf = dl & 1
            nxt = cls_reads(dl + 1) if dl < 3 else []
            if dl == 3:
                nxt = [("lds", f"ds_read_b64 {vr(128 + 2 * tt, 2)}, v6 offset:{512 * tt}", "us") for tt in range(4)]
                nxt += [None] * 6 + [("wlg", "us")]
                for tt in range(4):
                    for i in range(4):
                        src = 128 + 2 * tt + (i >> 1)
                        nxt.append(f"v_fma_mix_f32 v{136 + 4 * tt + i}, v{src}, v{DK}, 0 op_sel:[{i & 1},0,0] op_sel_hi:[1,0,0]")
            if dl > 0:
                g.wlg(("F", dl, 7))
            for mi, (s, gg) in enumerate(order):
                t = s + gg
                if dl == 0:
                    g.wlg(("G", dl, gg))
                    g.wlg(("F", dl, s))
                Cs = "0" if t not in seen else vr(CACC + 4 * t, 4)
                seen.add(t)
                e(f"v_mfma_f32_16x16x32_f16 {vr(CACC + 4 * t, 4)}, {vr(FB[bf] + 4 * s, 4)}, {vr(Greg[bf][gg], 4)}, {Cs}")
                start = 8 if dl == 0 else 1
                if mi >= start and nxt:
                    it = nxt.pop(0)
                    if it is not None:
                        g.do(it)
                elif extra:
                    g.do(extra.pop(0))
                if mi % 2 == 1 and extra and mi >= start:
                    g.do(extra.pop(0))
                mc = 36 * dl + mi
                if mc % 4 == 2:
                    nphi = wq[0][-1][2][1] if wq else 0
                    if last and mc == opt.get("hfp", 98):
                        assert not extra
                        g.vmem(f"buffer_load_dword v{vFL}, v{vFA}, {SWS}, 0 offen sc1", "hfp")
                    elif wq and not (last and extra and nphi >= 48) and not (nphi >= 64 and dl < 3):
                        wdl()
            assert not nxt, len(nxt)
        assert not wq and not extra, (len(wq), len(extra))
        if last:
            g.wvm("hfp")
            e(f"v_cmp_ne_u32 vcc, v{vTAG}, v{vFL}")
            e("s_nop 0")
            e("s_cmp_eq_u64 vcc, 0")
            e(f"s_cselect_b32 {sK1}, 1, 0")
            e(f"s_cselect_b32 {sT0}, 0, {OOB}")
            hq.append([f"s_or_b32 {sT4}, {sHS1}, {sT0}", ("vm", f"buffer_load_dword v{vFL + 4}, v3, {SWS}, {sT4} offen sc1", "ht")])
            for i in range(NE):
                pre_ = [f"s_or_b32 {sT4}, s{sG2 + i // 4}, {sT0}"] if i % 4 == 0 else []
                hq.append(pre_ + [("vm", f"buffer_load_dwordx4 {vr(HRING[i], 4)}, v1, {SWS}, {sT4} offen offset:{(i % 4) * 1024} sc1", ("he", i))])
        def hl(n=1):
            for _ in range(n):
                if hq:
                    for it in hq.pop(0):
                        g.do(it)
        hl(2)
        stamp("c_ce" + tag, cyc=True)
        stamp("conv_end" + tag)
        lr1 = g.newlab("Lfin1")
        lfd = g.newlab("Lfind")
        e(f"s_cmp_lg_u32 {sRHO}, 0")
        e(f"s_cbranch_scc1 {lr1}")
        lg_save, pst_save, sf_save = list(g.lg), list(g.pst), list(g.sfree)
        for rho in range(2):
            if rho == 1:
                g.lab(lr1)
                g.lg, g.pst, g.sfree = list(lg_save), list(pst_save), list(sf_save)
            own = CACC + 16 * rho
            oth = CACC + 16 * (1 - rho)
            g.nop(6)
            for tt in range(4):
                g.lds(f"ds_write_b128 v4, {vr(oth + 4 * tt, 4)} offset:{PB + 1024 * tt}", "pw")
            align()
            for tt in range(4):
                for i in range(4):
                    e(f"v_fma_f32 v{136 + 4 * tt + i}, v{own + 4 * tt + i}, v{YS}, v{136 + 4 * tt + i}")
            if rho == 0:
                e(f"s_branch {lfd}")
        g.lab(lfd)
        hl(1)
        g.wlg0()
        e("s_barrier")
        for tt in range(4):
            g.lds(f"ds_read_b128 {vr(152 + 4 * tt, 4)}, v5 offset:{PB + 1024 * tt}", ("pr", tt))
        hl(2)
        for tt in range(4):
            g.wlg(("pr", tt))
            for i in range(4):
                e(f"v_fmac_f32 v{136 + 4 * tt + i}, v{152 + 4 * tt + i}, v{YS}")
            for h in range(2):
                e(f"v_cvt_pk_bf16_f32 v{128 + 2 * tt + h}, v{136 + 4 * tt + 2 * h}, v{136 + 4 * tt + 2 * h + 1}")
            g.lds(f"ds_write_b64 v7, {vr(128 + 2 * tt, 2)} offset:{512 * tt}", "sw")
            if tt == 1:
                hl(1)
        hl(1)
        g.wlg0()
        for j in range(2):
            g.lds(f"ds_read_b128 {vr(88 + 4 * j, 4)}, v8 offset:{1024 * j}", ("sr", j))
        hl(2)
        assert not hq
        if not last:
            e(f"s_add_u32 {sCP}, {sCP}, 40")
            for i in range(22):
                e(f"v_add_u32 v{GA + i}, {2 * TC}, v{GA + i}")
            e(f"v_add_u32 v{vYS}, {2 * TC}, v{vYS}")
        for j in range(2):
            g.wlg(("sr", j))
            g.vmem(f"buffer_store_dwordx4 {vr(88 + 4 * j, 4)}, v1, {SWS}, {sHS0} offen offset:{1024 * j} sc1", "sst")
        if not last:
            for it in u_loads(sCP, 2):
                g.do(it)
            e(f"s_mov_b32 {sMASK}, {sPEND}")
            e(f"s_sub_u32 {sRND}, {sRND}, 1")
            e(f"s_cmp_lg_u32 {sRND}, 1")
            e("s_cbranch_scc1 L_conv_early")
            e(f"s_cmp_eq_u32 {sK0}, 0")
            e("s_cbranch_scc1 L_conv_last")
            poll_block(vFA + 1, False, sleep=10)
            for phi in range(P1):
                for it in wd_load(phi):
                    e(it[1] if isinstance(it, tuple) else it)

    conv(False)
    conv(True)

    e(f"s_cmp_lg_u32 {sK1}, 0")
    e("s_cbranch_scc1 L_hready")
    poll_block(vFA, False)
    e(f"buffer_load_dword v{vFL + 4}, v3, {SWS}, {sHS1} offen sc1")
    for i in range(NE):
        for it in hload(i):
            e(it[1] if isinstance(it, tuple) else it)
    g.lab("L_hready")
    stamp("c_g2s", cyc=True)
    stamp("g2_start")
    g.vm = [("h", i) for i in range(NE)]
    AC = [64, 84]
    lateq = [hload(i) for i in range(NE, NB)]
    fq = ["v_lshrrev_b32 v8, 3, v0", "v_lshlrev_b32 v8, 12, v8", "v_and_b32 v2, 7, v0", "v_lshl_add_u32 v8, v2, 4, v8",
          f"s_mul_i32 {sT1}, {sW}, 15360", f"v_add_u32 v2, {sT1}, v1",
          "v_lshrrev_b32 v3, 2, v0", "v_lshlrev_b32 v3, 7, v3", "v_and_b32 v4, 3, v0", "v_lshl_add_u32 v3, v4, 3, v3",
          f"s_lshl_b32 {sT1}, {sW}, 5", f"s_add_u32 {sT1}, {sT1}, {STB}", f"v_add_u32 v3, {sT1}, v3",
          "v_and_b32 v4, 15, v0", "v_mul_u32_u24 v4, 160, v4", "v_lshrrev_b32 v5, 4, v0", "v_lshl_add_u32 v4, v5, 3, v4",
          f"v_add_u32 v4, {sXT}, v4", f"v_add_u32 v5, {sXT}, v1",
          f"s_lshl_b32 {sT2}, {sW}, 10", f"s_add_u32 {sHS1}, {sT2}, {STB}"]
    XR, XU = 16, 28
    SFP = opt.get("sfp", 38)
    for i in range(56):
        k, st = divmod(i, 14)
        A0 = AC[k & 1]
        g.wvm(("h", i))
        r = HRING[i % NB]
        extra = [[] for _ in range(5)]
        if st == 1 and k >= 1:
            pa = AC[(k - 1) & 1]
            for j in range(5):
                extra[j].append(("lds", f"ds_write_b128 v{9 + k - 1}, {vr(pa + 4 * j, 4)} offset:{1024 * j}", "exw"))
        for j in ((i % 4,) if i % 4 else (0, 4)):
            if lateq:
                extra[j] += lateq.pop(0)
        if i == NE:
            def sflag():
                n = sum(1 for t in g.vm if t[0] == "h" and t[1] >= NE)
                e(f"s_waitcnt vmcnt({n})")
                flag_store(sPEND)
            extra[1].append(sflag)
        if 22 <= i < 30:
            for j in (1, 3, 4):
                if fq:
                    extra[j].append(fq.pop(0))
        if i == SFP:
            extra[0].append(("vm", f"buffer_load_dwordx4 {vr(vFL, 4)}, v{vFA + 1}, {SWS}, 0 offen sc1", ("sfp",)))
        if i == SFP + 6:
            c4 = check4(vFL)
            extra[0] += [("wvm", ("sfp",))] + c4[0:2]
            extra[1] += c4[2:4]
            extra[2] += c4[4:6]
            def sfchk():
                sl = g.newlab("Lslow")
                bk = g.newlab("Lback")
                e(c4[6])
                e(f"s_cbranch_vccnz {sl}")
                g.lab(bk)
                g.slow.append((sl, bk, [(vFA + 1, True)]))
            extra[3].append(sfchk)
        if i == SFP + 7:
            extra[0] += [f"s_mov_b32 m0, {sHS1}"]
            extra[1] += [("vm", f"buffer_load_dwordx4 v8, {SWS}, {sSTO} offen sc1 lds", ("stl",)), f"s_add_u32 m0, {sHS1}, 4096"]
            extra[2] += [f"s_add_u32 {sT3}, {sSTO}, {32 * 4096}"]
            extra[3] += [("vm", f"buffer_load_dwordx4 v8, {SWS}, {sT3} offen sc1 lds", ("stl",)), f"s_add_u32 m0, {sHS1}, 8192"]
            extra[4] += [f"s_add_u32 {sT3}, {sSTO}, {64 * 4096}", f"s_cmp_lt_u32 {sW}, 2\ns_cselect_b32 {sT3}, {sT3}, {OOB}"]
        if i == SFP + 8:
            extra[0] += [("vm", f"buffer_load_dwordx4 v8, {SWS}, {sT3} offen sc1 lds", ("stl",))]
        for j in range(5):
            phi = st * 5 + j
            src = ar(4 * phi, 4) if phi < 64 else vr(vWDV + 4 * (phi - 64), 4)
            Cs = "0" if st == 0 else vr(A0 + 4 * j, 4)
            e(f"v_mfma_f32_16x16x32_bf16 {vr(A0 + 4 * j, 4)}, {src}, {vr(r, 4)}, {Cs}")
            for it in extra[j]:
                g.do(it)
        if i + NB < 56:
            lateq.append(hload(i + NB))
    assert not lateq and not fq
    stamp("c_g2e", cyc=True)
    stamp("g2_loop_end")
    g.wall()
    e("s_barrier")
    A0 = AC[1]
    for q in range(15):
        g.lds(f"ds_read_b128 {vr(128 + 4 * q, 4)}, v2 offset:{EXB + 1024 * q}", ("exr", q))
    for j in range(5):
        g.lds(f"ds_read_b64_tr_b16 {vr(192 + 2 * j, 2)}, v3 offset:{2048 * j}", ("s", j))
        g.lds(f"ds_read_b64 {vr(202 + 2 * j, 2)}, v4 offset:{32 * j}", ("x", j))
    e(f"s_mov_b32 {sT2}, {hex(f2u(-LOG2E))}")
    e(f"s_mov_b32 {sT3}, {hex(f2u(-LOG2E))}")
    e(f"s_mov_b32 {sMASK}, 0xffff0000")
    for k in range(3):
        for j in range(5):
            if j in (0, 3):
                g.wlg(("exr", 5 * k + (2 if j == 0 else 4)))
            for h in range(2):
                e(f"v_pk_add_f32 {vr(A0 + 4 * j + 2 * h, 2)}, {vr(A0 + 4 * j + 2 * h, 2)}, {vr(128 + 4 * (5 * k + j) + 2 * h, 2)}")
    E_ = 128
    align()
    for p in range(10):
        e(f"v_pk_mul_f32 {vr(E_ + 2 * p, 2)}, {vr(A0 + 2 * p, 2)}, s[56:57]")
    for p in range(20):
        e(f"v_exp_f32 v{E_ + p}, v{E_ + p}")
    g.wlg0()
    SU, XU = 152, 172
    for p in range(10):
        e(f"v_lshlrev_b32 v{SU + 2 * p}, 16, v{192 + p}")
        e(f"v_and_b32 v{SU + 2 * p + 1}, {sMASK}, v{192 + p}")
    align()
    for p in range(10):
        e(f"v_pk_add_f32 {vr(E_ + 2 * p, 2)}, {vr(E_ + 2 * p, 2)}, 1.0 op_sel_hi:[1,0]")
    for p in range(20):
        e(f"v_rcp_f32 v{E_ + p}, v{E_ + p}")
    for p in range(10):
        e(f"v_pk_mul_f32 {vr(A0 + 2 * p, 2)}, {vr(A0 + 2 * p, 2)}, {vr(SU + 2 * p, 2)}")
    for p in range(10):
        e(f"v_lshlrev_b32 v{XU + 2 * p}, 16, v{202 + p}")
        e(f"v_and_b32 v{XU + 2 * p + 1}, {sMASK}, v{202 + p}")
    for p in range(10):
        e(f"v_pk_fma_f32 {vr(A0 + 2 * p, 2)}, {vr(A0 + 2 * p, 2)}, {vr(E_ + 2 * p, 2)}, {vr(XU + 2 * p, 2)}")
    for p in range(10):
        e(f"v_cvt_pk_bf16_f32 v{192 + p}, v{A0 + 2 * p}, v{A0 + 2 * p + 1}")
    for j in range(5):
        g.lds(f"ds_write_b64 v4, {vr(192 + 2 * j, 2)} offset:{32 * j}", "ow")
    g.wlg0()
    for kk in range(3):
        g.lds(f"ds_read_b128 {vr(128 + 4 * kk, 4)}, v5 offset:{1024 * kk}", ("or", kk))
    osc = opt.get("outsc", "")
    for kk in range(3):
        g.wlg(("or", kk))
        g.vmem(f"buffer_store_dwordx4 {vr(128 + 4 * kk, 4)}, v{(12, 13, 15)[kk]}, {SOUT}, {sXO} offen{osc}", "out")
    if diag:
        g.wvm0()
        stamp("end", flush=True)
        e(f"s_mov_b32 s88, s16\ns_mov_b32 s89, s17\ns_mov_b32 s90, 0x1000000\ns_mov_b32 s91, 0x20000")
        e(f"s_lshl_b32 {sT1}, s2, 2\ns_add_u32 {sT1}, {sT1}, {sW}\ns_lshl_b32 {sT1}, {sT1}, 8\ns_add_u32 {sT1}, {sT1}, {TS_BASE}")
        e("v_lshlrev_b32 v2, 2, v0")
        e(f"buffer_store_dword v127, v2, s[88:91], {sT1} offen")
    g.lab("L_end")
    e("s_endpgm")
    for (sl, bk, lst) in g.slow:
        g.lab(sl)
        g.sfree = [88, 90]
        g.pst = []
        if diag:
            e("s_waitcnt lgkmcnt(0)")
        for pi, (av, n4) in enumerate(lst):
            stamp(f"slow{sl[-2:]}_{pi}", flush=True)
            poll_block(av, n4)
        stamp(f"slow{sl[-2:]}_x", flush=True)
        e(f"s_branch {bk}")
    g.lab("L_codeend")

    hdr = [f"; @launch grid=(256,1,1) block=(256,1,1) lds={LDS_TOTAL}",
           '.amdgcn_target "amdgcn-amd-amdhsa--gfx950"', ".text", f".globl {KNAME}", ".p2align 8",
           f".type {KNAME},@function", f"{KNAME}:"]
    ftr = ['.section .rodata,"a"', ".p2align 6", f".amdhsa_kernel {KNAME}",
           "  .amdhsa_next_free_vgpr 512", "  .amdhsa_next_free_sgpr 102", "  .amdhsa_accum_offset 256",
           "  .amdhsa_group_segment_fixed_size 0", "  .amdhsa_kernarg_size 112", "  .amdhsa_user_sgpr_count 2",
           "  .amdhsa_user_sgpr_kernarg_segment_ptr 1", "  .amdhsa_system_sgpr_workgroup_id_x 1",
           "  .amdhsa_float_denorm_mode_32 3",
           ".end_amdhsa_kernel"]
    txt = "\n".join(hdr + g.L + ftr) + "\n"
    if diag:
        txt = txt + "; STAMPS " + ",".join(ts_names) + "\n"
    return txt


if __name__ == "__main__":
    diag = "--diag" in sys.argv
    opt = {}
    for a in sys.argv[1:]:
        if a.startswith("--") and "=" in a:
            k, v = a[2:].split("=")
            opt[k] = int(v) if v.lstrip("-").isdigit() else v.replace("_", " ")
    out = [a for a in sys.argv[1:] if not a.startswith("--")]
    s = gen(diag=diag, opt=opt)
    path = out[0] if out else "recurrent_scan__ssm_conv_s4d__geglu_ffn__prompt.s"
    open(path, "w").write(s)
    print("wrote", path, len(s), "bytes", s.count("\n"), "lines")
```

```python
import sys, struct, math

KNAME = "recurrent_scan__ssm_conv_s4d__geglu_ffn__prompt_kernel"

EPOCH = 0x0
LNF = 0x1000
WF = 0x4400
STATS = 0x8000
XNT = 0x10000
ST = 0x290000
WDP = 0x510000
HB = 0x730000
CSP = 0xDF0000
HF = 0xE26000
SF = 0xE46000
WS_END = 0xE50000
TS_BASE = 0xE60000

SLOT = 49152
MISC = 147456
LNP = 1344
CSB = MISC + 10752 + 5120
XYP = 544
YR0 = 21
XYC = 53 * XYP
XYB_SP, XYB_G1 = 0, 2 * SLOT
LNB = 2 * SLOT
TB_G1 = 157696
PB = 0
UBASE = 69632
UC = 4608
RB = UBASE + 2 * UC
RCS = 4160
RC = 4 * RCS
TC = 2624
TB = MISC
YSO = 650 * 4
SOB = 16384
EXB = 24576
XTB = 112128
STB = XTB + 12288
LDS_TOTAL = 163840
OOB = 0x7fff0000

def f2u(x):
    return struct.unpack("<I", struct.pack("<f", x))[0]

LOG2E = 1.4426950408889634
C0 = -2.0 * math.sqrt(2.0 / math.pi) * LOG2E
C1 = C0 * 0.044715


class G:
    def __init__(self):
        self.L = []
        self.vm = []
        self.lg = []
        self.nlab = 0
        self.slow = []
        self.skip = set()
        self.pst = []
        self.sfree = [92, 100]

    def flush_stamps(self):
        for (sr, lane) in self.pst:
            self.e(f"v_writelane_b32 v127, s{sr}, {lane}")
            self.sfree.append(sr)
        self.pst = []

    def e(self, s):
        for ln in s.split("\n"):
            self.L.append("    " + ln)

    def lab(self, name):
        self.L.append(name + ":")

    def newlab(self, p="L"):
        self.nlab += 1
        return f"{p}_{self.nlab}"

    def vmem(self, s, tag=None):
        if tag in self.skip:
            return
        self.e(s)
        self.vm.append(tag)

    def lds(self, s, tag=None):
        self.e(s)
        self.lg.append(tag)

    def _n(self, q, tag):
        idx = max(i for i, t in enumerate(q) if t == tag)
        return idx, sum(1 for t in q[idx + 1:] if t != "OPT")

    def wvm(self, tag):
        if tag not in self.vm:
            return
        idx, n = self._n(self.vm, tag)
        self.e(f"s_waitcnt vmcnt({min(n, 63)})")
        self.vm = self.vm[idx + 1:]

    def wlg(self, tag):
        if tag not in self.lg:
            return
        idx, n = self._n(self.lg, tag)
        self.e(f"s_waitcnt lgkmcnt({min(n, 15)})")
        self.lg = self.lg[idx + 1:]

    def wvm0(self):
        self.e("s_waitcnt vmcnt(0)")
        self.vm = []

    def wlg0(self):
        self.e("s_waitcnt lgkmcnt(0)")
        self.lg = []
        self.flush_stamps()

    def wall(self):
        self.e("s_waitcnt vmcnt(0) lgkmcnt(0)")
        self.vm = []
        self.lg = []
        self.flush_stamps()

    def nop(self, n):
        while n > 0:
            k = min(n, 16)
            self.e(f"s_nop {k - 1}")
            n -= k

    def do(self, item):
        if callable(item):
            item()
        elif isinstance(item, tuple):
            kind = item[0]
            if kind == "vm":
                self.vmem(item[1], item[2])
            elif kind == "lds":
                self.lds(item[1], item[2])
            elif kind == "wvm":
                self.wvm(item[1])
            elif kind == "wlg":
                self.wlg(item[1])
            else:
                raise ValueError(kind)
        else:
            self.e(item)


def vr(a, n):
    return f"v[{a}:{a + n - 1}]"


def ar(a, n):
    return f"a[{a}:{a + n - 1}]"


SX, SWG, SWU, SWS, SOUT, SWD = "s[4:7]", "s[8:11]", "s[12:15]", "s[16:19]", "s[20:23]", "s[24:27]"
P_LAR, P_AIM, P_CRE, P_CIM, P_LDT, P_DSK = "s[28:29]", "s[30:31]", "s[32:33]", "s[34:35]", "s[36:37]", "s[38:39]"
sW, sTAG, sM, sFT, sISG1, sCP, sRND, sSP = "s40", "s41", "s42", "s43", "s44", "s45", "s46", "s47"
sXCD, sQ = "s48", "s49"
sXM0, sWM0, sXS, sWSO = "s50", "s51", "s52", "s53"
sT0, sT1, sT2, sT3, sT4, sT5 = "s54", "s55", "s56", "s57", "s58", "s59"
sMASK, sCNT = "s60", "s61"
sRHO, sC = "s62", "s63"
sHS0, sHS1 = "s64", "s65"
sG2 = 66
STW = "s[96:99]"
sF0, sF1, sF2 = "s0", "s1", "s3"
sLT, sDT = "s82", "s83"
sWDS = "s84"
sPEND, sXO = "s85", "s86"
sKR = "s87"
sXT, sSTO = "s94", "s95"
sK0, sK1 = "s96", "s97"

vT = 2
vXO = 16
vWO = 24
vBA = 26
vAA = 34
vCS = 42
vHO = 44
vTO = 46
vSTA = 48
vU = 56
vAF = 64
vBF = 96
vPAR = 112
vFA = 118
vEP = 120
vFL = 122
vACC = 128
SC = 56
GA = 24
AST = 224
AS2 = 192
PKB = MISC
vWDV = 232


def gen(diag=False, opt=None):
    opt = opt or {}
    TOUCH = opt.get("touch", 0)
    P1 = opt.get("p1", 32)
    KCHK = opt.get("kchk", 29)
    g = G()
    e = g.e
    if opt.get('nolnst'):
        g.skip.add('lnst')
    ts_names = []
    vTAG, vL0 = vEP, vEP + 1

    def stamp(name, cyc=False, flush=False):
        if not diag:
            return
        if name not in ts_names:
            ts_names.append(name)
        i = ts_names.index(name)
        if not g.sfree:
            g.wlg0()
        sr = g.sfree.pop(0)
        e(f"{'s_memtime' if cyc else 's_memrealtime'} s[{sr}:{sr + 1}]")
        g.pst.append((sr, i))
        if flush:
            g.wlg0()

    def interleave(fn, units, every):
        n0 = len(g.L)
        fn()
        body = g.L[n0:]
        del g.L[n0:]
        cnt = 0
        for bi, ln in enumerate(body):
            g.L.append(ln)
            cnt += 1
            nxt_ = body[bi + 1].strip() if bi + 1 < len(body) else ""
            if nxt_.startswith(("s_cselect", "s_addc", "s_cbranch")):
                continue
            if units and cnt >= every:
                u = units[0]
                if isinstance(u, tuple) and u[0] == "m0":
                    e(u[1])
                    units.pop(0)
                    cnt = every - 1
                else:
                    g.do(u)
                    units.pop(0)
                    cnt = 0 if isinstance(u, tuple) else every - 1

    def align():
        e(".p2align 3")

    def red(op, v, t, full):
        for dpp in ("quad_perm:[1,0,3,2]", "quad_perm:[2,3,0,1]", "row_half_mirror", "row_mirror"):
            g.nop(2)
            e(f"{op} v{v}, v{v}, v{v} {dpp}")
        e(f"v_mov_b32 v{t}, v{v}")
        g.nop(2)
        e(f"v_permlane16_swap_b32 v{v}, v{t}")
        g.nop(1)
        e(f"{op} v{v}, v{v}, v{t}")
        if full:
            e(f"v_mov_b32 v{t}, v{v}")
            g.nop(2)
            e(f"v_permlane32_swap_b32 v{v}, v{t}")
            g.nop(1)
            e(f"{op} v{v}, v{v}, v{t}")

    def bf16round(v):
        e(f"v_cvt_pk_bf16_f32 v{v}, v{v}, v{v}")
        e(f"v_lshlrev_b32 v{v}, 16, v{v}")

    def check4(tmp):
        return [f"v_xor_b32 v{tmp}, v{vTAG}, v{tmp}", f"v_xor_b32 v{tmp + 1}, v{vTAG}, v{tmp + 1}",
                f"v_xor_b32 v{tmp + 2}, v{vTAG}, v{tmp + 2}", f"v_xor_b32 v{tmp + 3}, v{vTAG}, v{tmp + 3}",
                f"v_or3_b32 v{tmp}, v{tmp}, v{tmp + 1}, v{tmp + 2}", f"v_or_b32 v{tmp}, v{tmp}, v{tmp + 3}",
                f"v_cmp_ne_u32 vcc, 0, v{tmp}"]

    def poll_block(addr_v, n4, sleep=opt.get('sleep', 8)):
        lp = g.newlab("Lpoll")
        dn = g.newlab("Lpd")
        tmp = vFL
        e(f"s_mov_b32 {sCNT}, 0x4000")
        g.lab(lp)
        if n4:
            e(f"buffer_load_dwordx4 {vr(tmp, 4)}, v{addr_v}, {SWS}, 0 offen sc1")
            e("s_waitcnt vmcnt(0)")
            for x in check4(tmp):
                e(x)
        else:
            e(f"buffer_load_dword v{tmp}, v{addr_v}, {SWS}, 0 offen sc1")
            e("s_waitcnt vmcnt(0)")
            e(f"v_cmp_ne_u32 vcc, v{vTAG}, v{tmp}")
        e(f"s_cbranch_vccz {dn}")
        e(f"s_sleep {sleep}")
        e(f"s_sub_u32 {sCNT}, {sCNT}, 1")
        e(f"s_cbranch_scc0 {lp}")
        g.lab(dn)

    def flag_store(soff):
        e(f"buffer_store_dword v{vTAG}, v{vL0}, {SWS}, {soff} offen sc1")

    def wd_load(phi):
        dst = ar(4 * phi, 4) if phi < 64 else vr(vWDV + 4 * (phi - 64), 4)
        pre = []
        if phi >= 65:
            if phi == 65 or phi == 68:
                pre.append(f"s_add_u32 {sT5}, {sWDS}, {(phi // 4) * 4096}")
                pre.append(f"s_cmp_lt_u32 {sW}, 2\ns_cselect_b32 {sT5}, {sT5}, {OOB}")
        elif phi % 4 == 0:
            pre.append(f"s_add_u32 {sT5}, {sWDS}, {(phi // 4) * 4096}")
        return pre + [("vm", f"buffer_load_dwordx4 {dst}, v1, {SWS}, {sT5} offen offset:{(phi % 4) * 1024} sc1", ("wd", phi))]

    def u_loads(cpreg, va):
        return [f"v_accvgpr_read_b32 v{va}, a{AS2 + 23}",
                f"s_mul_i32 {sF0}, {sW}, {64 * 10240}",
                f"s_lshl_b32 {sF1}, {cpreg}, 5",
                f"s_add_u32 {sF0}, {sF0}, {sF1}",
                f"s_add_u32 {sF0}, {sF0}, {XNT}",
                f"s_add_u32 {sF1}, {sF0}, {32 * 10240}",
                ("vm", f"buffer_load_dwordx4 {vr(vU, 4)}, v{va}, {SWS}, {sF0} offen sc1", "u"),
                ("vm", f"buffer_load_dwordx4 {vr(vU + 4, 4)}, v{va}, {SWS}, {sF1} offen sc1", "u")]

    def table_code(TB):
        def put(i, src):
            e(f"v_lshl_add_u32 v{src}, v{src}, 2, {sF2}")
            e(f"v_accvgpr_write_b32 a{AST + i}, v{src}")
        e(f"s_mul_i32 {sF2}, {sC}, {TC}")
        e(f"s_add_u32 {sF2}, {sF2}, {TB + 4}")
        e("v_lshrrev_b32 v4, 4, v0")
        e(f"s_lshl_b32 {sF1}, {sRHO}, 2")
        e(f"v_add_u32 v4, {sF1}, v4")
        e("v_and_b32 v5, 15, v0")
        DUM = 645
        e("v_cmp_eq_u32 s[54:55], 2, v4")
        e("v_cmp_eq_u32 s[56:57], 3, v4")
        e("v_cmp_eq_u32 s[58:59], 4, v4")
        e("v_cmp_lt_u32 vcc, 4, v4")
        e("v_mov_b32 v6, 8")
        e("v_cndmask_b32 v6, v6, 4, s[54:55]")
        e("v_cndmask_b32 v6, v6, 2, s[56:57]")
        e("v_cndmask_b32 v6, v6, 1, s[58:59]")
        e("v_cndmask_b32 v6, v6, 0, vcc")
        e("v_mul_u32_u24 v7, v6, v5")
        e("v_lshlrev_b32 v8, 4, v6")
        for i in range(4):
            e(f"v_lshl_add_u32 v9, v4, 2, {i}")
            for sreg, val in (("s[54:55]", 256 + i), ("s[56:57]", 384 + 64 * (i >> 1) + (i & 1)), ("s[58:59]", 512 + 32 * i), ("vcc", DUM)):
                e(f"v_mov_b32 v10, {val}")
                e(f"v_cndmask_b32 v9, v9, v10, {sreg}")
            e("v_add_u32 v9, v9, v7")
            e("v_add_u32 v11, v9, v8")
            if i == 0:
                e("v_lshl_add_u32 v6, v4, 4, v5")
                e("v_mov_b32 v10, 80")
                e("v_cmp_eq_u32 s[60:61], v10, v6")
                e("v_mov_b32 v10, 640")
                e("s_nop 0")
                e("v_cndmask_b32 v9, v9, v10, s[60:61]")
            put(i, 9)
            put(4 + i, 11)

    def gather_items(TB):
        it = [f"s_mul_i32 {sF2}, {sC}, {TC}", f"s_add_u32 {sF2}, {sF2}, {TB + 4}",
              f"s_lshl_b32 {sF1}, {sRHO}, 10", f"s_sub_u32 {sF1}, 2047, {sF1}", "v_lshlrev_b32 v12, 3, v0",
              f"v_sub_u32 v12, {sF1}, v12", f"s_movk_i32 {sF1}, 128"]
        for ch in range(2):
            for k in range(11):
                it += [f"v_subrev_u32 v2, {512 * ch + k}, v12", "v_max_i32 v3, 0, v2", "v_cvt_f32_u32 v3, v3",
                       f"v_med3_i32 v2, v2, -1, {sF1}", "v_cvt_pk_bf16_f32 v3, v3, 0", "v_subrev_u32 v3, 0x4280, v3",
                       "v_max_i32 v2, v2, v3", f"v_lshl_add_u32 v2, v2, 2, {sF2}",
                       f"v_accvgpr_write_b32 a{AST + 8 + 11 * ch + k}, v2"]
        return it

    def addr_items(XYB, TB):
        it = []
        A = it.append
        def st(i, r):
            A(f"v_accvgpr_write_b32 a{AS2 + i}, v{r}")
        A(f"s_mul_i32 {sF0}, {sC}, {XYC}")
        A(f"s_add_u32 {sF0}, {sF0}, {XYB}")
        A(f"v_lshl_add_u32 v2, v0, 3, {sF0}")
        st(0, 2)
        A("v_and_b32 v12, 15, v0")
        A("v_lshrrev_b32 v13, 4, v0")
        A(f"v_mul_u32_u24 v2, {XYP}, v12")
        A("v_lshl_add_u32 v2, v13, 4, v2")
        A(f"v_add_u32 v3, {sF0}, v2")
        st(2, 3)
        A(f"s_mul_i32 {sF1}, {sRHO}, {16 * XYP}")
        A(f"v_add_u32 v3, {sF1}, v3")
        st(1, 3)
        A(f"s_mul_i32 {sF2}, {sC}, {TC}")
        A(f"s_add_u32 {sF2}, {sF2}, {TB}")
        A(f"v_mov_b32 v2, {sF2}")
        st(6, 2)
        A("EARLY_END")
        A("v_and_b32 v12, 15, v0")
        A("v_lshrrev_b32 v13, 4, v0")
        A(f"s_mul_i32 {sF0}, {sC}, {UC}")
        A(f"s_lshl_b32 {sF1}, {sRHO}, 8")
        A(f"s_add_u32 {sF2}, {sF0}, {sF1}")
        A(f"s_add_u32 {sF2}, {sF2}, {UBASE}")
        A(f"v_add_u32 v2, {sF2}, v1")
        A(f"s_sub_u32 {sF2}, {sF0}, {sF1}")
        A(f"s_add_u32 {sF2}, {sF2}, {UBASE + 32 + 256}")
        A("v_lshlrev_b32 v14, 5, v12")
        A("v_lshl_add_u32 v3, v13, 4, v14")
        A(f"v_add_u32 v3, {sF2}, v3")
        st(8, 3)
        A("v_lshl_add_u32 v14, v13, 3, v14")
        A(f"s_lshl_b32 {sF2}, {sRHO}, 11")
        A(f"s_add_u32 {sF2}, {sF2}, {sF0}")
        A(f"s_add_u32 {sF2}, {sF2}, {UBASE + 512}")
        A(f"v_add_u32 v3, {sF2}, v14")
        st(11, 3)
        A(f"s_lshl_b32 {sF2}, {sW}, 11")
        A(f"s_add_u32 {sF2}, {sF2}, {SOB}")
        A(f"v_add_u32 v3, {sF2}, v14")
        st(12, 3)
        A(f"v_add_u32 v3, {sF2}, v1")
        st(13, 3)
        A(f"s_mul_i32 {sF0}, {sC}, {RC}")
        A(f"s_mul_i32 {sF2}, {sRHO}, {2 * RCS}")
        A(f"s_add_u32 {sF2}, {sF2}, {sF0}")
        A(f"s_add_u32 {sF2}, {sF2}, {RB + 4096}")
        A("v_bfe_u32 v3, v0, 1, 1")
        A(f"v_mul_u32_u24 v3, {RCS}, v3")
        A("v_and_b32 v15, 1, v0")
        A("v_lshl_add_u32 v3, v15, 4, v3")
        A(f"v_add_u32 v3, {sF2}, v3")
        A("v_cmp_lt_u32 vcc, 15, v0\ns_nop 1\nv_cndmask_b32 v2, v2, v3, vcc")
        st(3, 2)
        A(f"s_lshl_b32 {sF2}, {sRHO}, 11")
        A(f"s_add_u32 {sF2}, {sF2}, {sF0}")
        A(f"s_add_u32 {sF2}, {sF2}, {RB}")
        A(f"v_add_u32 v2, {sF2}, v1")
        st(4, 2)
        A("v_sub_u32 v2, 3, v12")
        A("v_and_b32 v2, 3, v2")
        A(f"v_mul_u32_u24 v2, {RCS}, v2")
        A("v_lshl_add_u32 v2, v13, 4, v2")
        A("v_and_b32 v3, 12, v12")
        A("v_lshlrev_b32 v3, 1, v3")
        A("v_sub_u32 v2, v2, v3")
        A(f"s_sub_u32 {sF2}, {sF0}, {sF1}")
        A(f"s_add_u32 {sF2}, {sF2}, {RB + 24 + 256}")
        A(f"v_add_u32 v2, {sF2}, v2")
        st(7, 2)
        A(f"v_mul_u32_u24 v2, {UC}, v15")
        A("v_lshrrev_b32 v3, 1, v0")
        A("v_lshl_add_u32 v2, v3, 4, v2")
        A(f"s_lshl_b32 {sF2}, {sW}, 10")
        A(f"s_add_u32 {sF2}, {sF2}, {UBASE + 512}")
        A(f"v_add_u32 v2, {sF2}, v2")
        st(5, 2)
        A("v_mul_u32_u24 v3, 10240, v3")
        A("v_lshl_add_u32 v3, v15, 4, v3")
        st(23, 3)
        A(f"s_lshl_b32 {sF2}, {sW}, 12")
        A(f"v_add_u32 v2, {sF2}, v1")
        st(9, 2)
        A("v_xor_b32 v2, 0x1000, v2")
        st(10, 2)
        A(f"s_mul_i32 {sF0}, {sW}, 14")
        A(f"s_cmp_eq_u32 {sW}, 3\ns_cselect_b32 {sF1}, 1, 0")
        A(f"s_sub_u32 {sF0}, {sF0}, {sF1}")
        A(f"s_mul_i32 {sF1}, {sDT}, 54")
        A(f"s_add_u32 {sF1}, {sF0}, {sF1}")
        A(f"s_mul_i32 {sF1}, {sF1}, 5120")
        A(f"s_add_u32 {sWDS}, {sF1}, {WDP}")
        for k in range(4):
            A(f"s_add_u32 {sF1}, {sW}, {k + 1}")
            A(f"s_and_b32 {sF1}, {sF1}, 3")
            if k < 3:
                A(f"s_mul_i32 {sF2}, {sF1}, 15360")
                A(f"s_add_u32 {sF2}, {sF2}, {EXB + 5120 * k}")
                A(f"v_add_u32 v2, {sF2}, v1")
                st(14 + k, 2)
            A(f"s_lshl_b32 {sF2}, {sLT}, 2")
            A(f"s_add_u32 {sF1}, {sF1}, {sF2}")
            A(f"s_mul_i32 {sF1}, {sF1}, 54")
            A(f"s_add_u32 {sF1}, {sF1}, {sF0}")
            A(f"s_lshl_b32 {sF1}, {sF1}, 10")
            A(f"s_add_u32 s{sG2 + 4 * k}, {sF1}, {HB}")
            for q in range(1, 4):
                A(f"s_add_u32 s{sG2 + 4 * k + q}, s{sG2 + 4 * k}, {4096 * q}")
        A(f"s_mov_b32 {sF0}, {0x100000000 // 10 + 1}")
        for kk in range(3):
            A(f"v_add_u32 v2, {64 * kk}, v0")
            A(f"v_mul_hi_u32 v3, v2, {sF0}")
            A("v_mul_u32_u24 v12, 10, v3")
            A("v_sub_u32 v12, v2, v12")
            A("v_mul_u32_u24 v3, 1280, v3")
            A("v_lshl_add_u32 v2, v12, 4, v3")
            st(17 + kk, 2)
        A(f"v_mov_b32 v3, {OOB}")
        A("v_cmp_lt_u32 vcc, 31, v0\ns_nop 1\nv_cndmask_b32 v2, v2, v3, vcc")
        st(20, 2)
        A(f"s_lshl_b32 {sXO}, {sLT}, 2")
        A(f"s_add_u32 {sXO}, {sXO}, {sW}")
        A(f"s_mul_i32 {sXO}, {sXO}, {16 * 1280}")
        A(f"s_mul_i32 {sF0}, {sDT}, 160")
        A(f"s_add_u32 {sXO}, {sXO}, {sF0}")
        A(f"s_mul_i32 {sXT}, {sW}, 3072")
        A(f"s_add_u32 {sXT}, {sXT}, {XTB}")
        A(f"s_mul_i32 {sSTO}, {sDT}, 80")
        A(f"s_lshl_b32 {sF0}, {sW}, 3")
        A(f"s_add_u32 {sSTO}, {sSTO}, {sF0}")
        A(f"s_lshl_b32 {sSTO}, {sSTO}, 12")
        A(f"s_lshl_b32 {sF0}, {sLT}, 7")
        A(f"s_add_u32 {sSTO}, {sSTO}, {sF0}")
        A(f"s_add_u32 {sSTO}, {sSTO}, {ST}")
        A(f"s_lshl_b32 {sF0}, {sLT}, 12")
        A(f"s_add_u32 {sF0}, {sF0}, {HF}")
        A("v_min_u32 v2, 26, v0")
        A(f"v_lshl_add_u32 v2, v2, 7, {sF0}")
        st(21, 2)
        A(f"s_mul_i32 {sF0}, {sDT}, {40 * 128}")
        A(f"s_add_u32 {sF0}, {sF0}, {SF}")
        A("v_min_u32 v2, 39, v0")
        A(f"v_lshl_add_u32 v2, v2, 7, {sF0}")
        st(22, 2)
        k_ = it.index("EARLY_END")
        return it[:k_], it[k_ + 1:]

    e("s_cmp_ge_u32 s2, 256")
    e("s_cbranch_scc1 L_end")
    if diag:
        e("s_memrealtime s[92:93]")
    e("s_getpc_b64 s[88:89]")
    g.lab("L_pc")
    e("s_load_dwordx2 s[4:5], s[0:1], 0")
    e("s_load_dwordx2 s[16:17], s[0:1], 104")
    e("s_load_dwordx2 s[8:9], s[0:1], 64")
    e("s_load_dwordx2 s[12:13], s[0:1], 72")
    e("s_load_dwordx4 s[28:31], s[0:1], 8")
    e("s_load_dwordx4 s[32:35], s[0:1], 24")
    e("s_load_dwordx4 s[36:39], s[0:1], 40")
    NSP = opt.get("nsp", 0)
    for i in range(NSP):
        e(f"s_load_dword s{66 + i}, s[88:89], {256 + 128 * i}")
    e("v_lshrrev_b32 v2, 6, v0")
    e("v_and_b32 v3, 15, v0")
    e("s_mov_b32 s90, L_codeend - L_pc")
    e("s_mov_b32 s91, 0x20000")
    e("v_lshl_add_u32 v3, v2, 4, v3")
    e(f"v_readfirstlane_b32 {sW}, v2")
    e("v_lshlrev_b32 v3, 7, v3")
    if opt.get("cpf0", 1):
        e(f"buffer_load_dword v{vFL + 3}, v3, s[88:91], 0 offen offset:{min(256 + 128 * NSP, 4000)}")
        g.vm.append("cpf")
    e("v_and_b32 v0, 63, v0")
    e("s_mov_b32 s6, 2621440\ns_mov_b32 s7, 0x20000")
    e("v_lshrrev_b32 v2, 5, v0")
    e("v_and_b32 v3, 31, v0")
    e("v_mul_u32_u24 v2, 1280, v2")
    e(f"s_lshl_b32 {sT0}, s2, 2")
    e(f"s_add_u32 {sT0}, {sT0}, {sW}")
    e("v_lshl_add_u32 v2, v3, 3, v2")
    e(f"s_mul_i32 {sT0}, {sT0}, 2560")
    e(f"s_and_b32 {sXCD}, s2, 7")
    e(f"s_lshr_b32 {sQ}, s2, 3")
    e(f"s_and_b32 {sM}, s2, 1")
    e(f"s_lshr_b32 {sT1}, {sXCD}, 1")
    e(f"s_and_b32 {sT2}, {sQ}, 3")
    e(f"s_lshr_b32 {sDT}, {sQ}, 2")
    e(f"s_lshl_b32 {sM}, {sM}, 2")
    e(f"s_add_u32 {sM}, {sM}, {sT2}")
    e(f"s_mul_i32 {sFT}, {sT1}, 7")
    e(f"s_add_u32 {sFT}, {sFT}, {sDT}")
    e("v_lshrrev_b32 v4, 3, v0")
    e("v_and_b32 v5, 7, v0")
    e("v_lshrrev_b32 v6, 4, v0")
    e("v_mul_u32_u24 v7, 1280, v4")
    e("v_xor_b32 v8, v5, v6")
    e("v_xor_b32 v9, 4, v8")
    e(f"v_lshl_add_u32 v{vXO}, v8, 4, v7")
    e(f"v_lshl_add_u32 v{vXO + 1}, v9, 4, v7")
    e("v_mul_u32_u24 v7, 3456, v4")
    e("v_and_b32 v8, 1, v6")
    e(f"v_add_u32 v{vXO + 1}, {8 * 1280 - 1024}, v{vXO + 1}")
    e("v_lshlrev_b32 v8, 2, v8")
    e("v_xor_b32 v8, v5, v8")
    e(f"v_lshl_add_u32 v{vWO}, v8, 4, v7")
    e(f"s_lshl_b32 {sWM0}, {sW}, 11")
    e(f"s_mul_i32 {sWSO}, {sW}, {16 * 3456}")
    e(f"s_lshl_b32 {sT1}, {sFT}, 7")
    e(f"s_add_u32 {sWSO}, {sWSO}, {sT1}")
    e(f"v_add_u32 v{vWO + 1}, {8 * 3456 - 1024}, v{vWO}")
    e("s_mov_b32 s10, 2211840\ns_mov_b32 s11, 0x20000")
    e("s_mov_b32 s14, s10\ns_mov_b32 s15, 0x20000")
    e(f"s_cmp_lt_u32 {sDT}, 7")
    e(f"s_cselect_b32 {sT3}, {sFT}, 27")
    e(f"s_lshl_b32 {sXS}, {sM}, 2")
    e(f"s_add_u32 {sXS}, {sXS}, {sW}")
    e(f"s_mul_i32 {sXS}, {sXS}, {64 * 1280}")
    e(f"s_lshl_b32 {sXM0}, {sW}, 13")
    e(f"s_add_u32 {sXM0}, {sXM0}, 16384")
    e(f"s_cmp_lt_u32 {sT3}, 27")
    e(f"s_cselect_b32 {sISG1}, 1, 0")
    e(f"s_mul_i32 {sCP}, {sM}, 27")
    e(f"s_add_u32 {sCP}, {sCP}, {sFT}")
    e(f"s_min_u32 {sCP}, {sCP}, 319")
    e(f"s_lshr_b32 {sC}, {sW}, 1")
    e(f"s_lshl_b32 {sT1}, {sCP}, 1")
    e(f"s_add_u32 {sT1}, {sT1}, {sC}")
    e(f"s_lshl_b32 {sT1}, {sT1}, 8")
    e(f"v_lshl_add_u32 v12, v0, 2, {sT1}")
    e(f"s_lshl_b32 {sT1}, {sCP}, 2")
    e(f"v_mov_b32 v13, {sT1}")
    e("s_waitcnt lgkmcnt(0)")
    e(f"s_cmp_eq_u32 {sISG1}, 0")
    e("s_cbranch_scc1 L_spare")
    if diag:
        e("v_mov_b32 v127, 0")
        e("v_writelane_b32 v127, s92, 60")
    stamp("start")
    if opt.get("pt", 0):
        e("v_mov_b32 v12, s4\nv_mov_b32 v13, s5")
        e("s_add_u32 s68, s4, 0x200000\ns_addc_u32 s69, s5, 0")
        for ln, lo in ((1, 68), (2, 8), (3, 12), (4, 16)):
            e(f"v_writelane_b32 v12, s{lo}, {ln}\nv_writelane_b32 v13, s{lo + 1}, {ln}")
        g.vmem(f"global_load_dword v{vFL + 4}, v[12:13], off", "cpf")
    if diag:
        e("s_memrealtime s[100:101]\ns_waitcnt lgkmcnt(0)\nv_writelane_b32 v127, s100, 55")
    APAR = 160
    for k, p in enumerate((P_LAR, P_AIM, P_CRE, P_CIM)):
        g.vmem(f"global_load_dword a{APAR + k}, v12, {p}", "par")
    g.vmem(f"global_load_dword a{APAR + 4}, v13, {P_LDT}", "par")
    g.vmem(f"global_load_dword a{APAR + 5}, v13, {P_DSK}", "par")
    LX = 232
    for q in range(5):
        g.vmem(f"buffer_load_dwordx2 {vr(LX + 2 * q, 2)}, v2, {SX}, {sT0} offen offset:{256 * q}", "ln")

    if diag:
        e("s_memrealtime s[100:101]\ns_waitcnt lgkmcnt(0)\nv_writelane_b32 v127, s100, 56")

    def rest_setup():
        e("s_load_dwordx2 s[24:25], s[0:1], 80")
        e("s_load_dwordx2 s[20:21], s[0:1], 88")
        e("v_lshlrev_b32 v1, 4, v0")
        e(f"s_mov_b32 s18, {WS_END}\ns_mov_b32 s19, 0x20000")
        e(f"v_mov_b32 v{vL0}, {OOB}")
        e(f"v_writelane_b32 v{vL0}, 0, 0")
        e("s_mov_b32 s22, 2621440\ns_mov_b32 s23, 0x20000")
        e("s_mov_b32 s26, 2211840\ns_mov_b32 s27, 0x20000")
        e(f"s_lshl_b32 {sT4}, {sXCD}, 2")
        e(f"s_and_b32 {sT2}, {sQ}, 3")
        e(f"s_add_u32 {sLT}, {sT4}, {sT2}")
        e(f"s_add_u32 {sT4}, {sT4}, {sQ}")
        e(f"s_sub_u32 {sT4}, {sT4}, 28")
        e(f"s_lshl_b32 {sT5}, {sXCD}, 3")
        e(f"s_add_u32 {sT5}, {sT5}, {sQ}")
        e(f"s_sub_u32 {sT5}, {sT5}, 48")
        e(f"s_cmp_lt_u32 {sXCD}, 6\ns_cselect_b32 {sSP}, {sT4}, {sT5}")
        e(f"s_mul_i32 {sT4}, {sM}, 27")
        e(f"s_add_u32 {sT4}, {sT4}, {sFT}")
        e(f"s_add_u32 {sT5}, {sSP}, 216")
        e(f"s_cmp_lg_u32 {sISG1}, 0\ns_cselect_b32 {sCP}, {sT4}, {sT5}")
        e(f"s_cmp_lt_u32 {sSP}, 24\ns_cselect_b32 {sRND}, 3, 2")
        e(f"s_and_b32 {sRHO}, {sW}, 1")
        e(f"s_lshr_b32 {sC}, {sW}, 1")
        e("v_lshlrev_b32 v10, 21, v0")
        e(f"v_mov_b32 v{vFA}, v1")
        e(f"v_mov_b32 v{vFA + 1}, v1")
        e("v_mul_u32_u24 v54, 17280, v4")
        e("v_lshl_add_u32 v54, v5, 4, v54")
        e(f"s_lshl_b32 {sHS0}, {sM}, 1")
        e(f"s_add_u32 {sHS0}, {sHS0}, {sRHO}")
        e(f"s_mul_i32 {sHS0}, {sHS0}, {40 * 3456}")
        e(f"s_lshl_b32 {sT1}, {sFT}, 7")
        e(f"s_add_u32 {sHS0}, {sHS0}, {sT1}")
        e("s_mov_b32 s98, 2211840\ns_mov_b32 s99, 0x20000")
        e(f"s_cmp_eq_u32 {sC}, 0\ns_cselect_b32 s96, s8, s12\ns_cselect_b32 s97, s9, s13")
        e(f"s_lshl_b32 {sT1}, {sQ}, 2")
        e(f"s_add_u32 {sT1}, {sT1}, {sW}")
        e(f"s_mul_i32 {sT1}, {sT1}, 384")
        e(f"s_add_u32 {sT1}, {sT1}, {8192 + min(256 + 128 * NSP, 4000)}")
        e("v_min_u32 v11, 2, v0")
        e("v_lshlrev_b32 v11, 7, v11")

    def rest_loads():
        g.vmem(f"buffer_load_dword v{vTAG}, v{vL0}, {SWS}, 0 offen sc1", "ep")
        g.vmem(f"buffer_load_dword v{vFL + 2}, v11, s[88:91], {sT1} offen", "tlb")
        g.vmem(f"buffer_load_dword v{vFL}, v10, {SWS}, 0 offen", "tlb")
        e("s_waitcnt lgkmcnt(0)")
        g.vmem(f"buffer_load_dword v{vFL + 1}, v10, {SOUT}, 0 offen", "tlb")

    def dma_units(stage):
        sb = (stage % 3) * SLOT
        out = []
        for mat in range(2):
            out.append(("m0", f"s_add_u32 m0, {sWM0}, {sb + mat * 8192}"))
            for half in range(2):
                o = f" offset:{1024 * half}" if half else ""
                out.append(("vm", f"buffer_load_dwordx4 v{vWO + half}, {SWG if mat == 0 else SWU}, {sWSO} offen{o} lds", ("dma", stage)))
        for i in range(8):
            if i % 4 == 0:
                out.append(("m0", f"s_add_u32 m0, {sXM0}, {sb + i * 1024}"))
            o = f" offset:{1024 * (i & 3)}" if i & 3 else ""
            out.append(("vm", f"buffer_load_dwordx4 v{vXO + i}, {SX}, {sXS} offen{o} lds", ("dma", stage)))
        out.append(f"s_add_u32 {sXS}, {sXS}, 128")
        out.append(f"s_add_u32 {sWSO}, {sWSO}, {64 * 3456}")
        return out

    def dma_block(stage):
        for u in dma_units(stage):
            if isinstance(u, tuple) and u[0] == "m0":
                e(u[1])
                e("s_nop 0")
            else:
                g.do(u)

    APAR = 160
    def param_units(rnd):
        out = [f"s_add_u32 {sT2}, {sCP}, {40 * rnd}", f"s_min_u32 {sT2}, {sT2}, 319",
               f"s_lshl_b32 {sT1}, {sT2}, 1", f"s_add_u32 {sT1}, {sT1}, {sC}", f"s_lshl_b32 {sT1}, {sT1}, 8",
               f"v_lshl_add_u32 v12, v0, 2, {sT1}", f"s_lshl_b32 {sT1}, {sT2}, 2", f"v_mov_b32 v13, {sT1}"]
        for k, p in enumerate((P_LAR, P_AIM, P_CRE, P_CIM)):
            out.append(("vm", f"global_load_dword a{APAR + 8 * rnd + k}, v12, {p}", "par"))
        out.append(("vm", f"global_load_dword a{APAR + 8 * rnd + 4}, v13, {P_LDT}", "par"))
        out.append(("vm", f"global_load_dword a{APAR + 8 * rnd + 5}, v13, {P_DSK}", "par"))
        return out

    CSR = [56, 60, 112, 116, 52]
    def csl_units():
        out = []
        for j5 in range(5):
            if j5 in (2, 4):
                out.append(f"s_add_u32 {sHS0}, {sHS0}, {2 * 3456}")
            out.append(("vm", f"buffer_load_dwordx4 {vr(CSR[j5], 4)}, v54, {STW}, {sHS0} offen offset:{(j5 % 2) * 3456}", ("csl", j5)))
        return out
    def emit_units(us):
        for u in us:
            if isinstance(u, tuple) and u[0] == "m0":
                e(u[1])
                e("s_nop 0")
            else:
                g.do(u)

    def split_units(us, n):
        c = 0
        for ix, u in enumerate(us):
            if isinstance(u, tuple) and u[0] == "vm":
                c += 1
                if c == n:
                    return us[:ix + 1], us[ix + 1:]
        return us, []

    def run_items(items):
        for it in items:
            g.do(it)

    F, S, Dv, SO, UO = 140, 160, 164, 184, 188
    def ln_code(bar=False):
        for q in range(10):
            e(f"v_lshlrev_b32 v{F + 2 * q}, 16, v{LX + q}")
            e(f"v_and_b32 v{F + 2 * q + 1}, 0xffff0000, v{LX + q}")
        e(f"v_pk_add_f32 {vr(S, 2)}, {vr(F, 2)}, {vr(F + 2, 2)}")
        e(f"v_pk_add_f32 {vr(S + 2, 2)}, {vr(F + 4, 2)}, {vr(F + 6, 2)}")
        for q in range(4, 10, 2):
            e(f"v_pk_add_f32 {vr(S, 2)}, {vr(S, 2)}, {vr(F + 2 * q, 2)}")
            e(f"v_pk_add_f32 {vr(S + 2, 2)}, {vr(S + 2, 2)}, {vr(F + 2 * q + 2, 2)}")
        e(f"v_pk_add_f32 {vr(S, 2)}, {vr(S, 2)}, {vr(S + 2, 2)}")
        e(f"v_add_f32 v{S}, v{S}, v{S + 1}")
        red("v_add_f32", S, S + 1, False)
        e(f"v_mul_f32 v{S}, {hex(f2u(1.0 / 640))}, v{S}")
        for q in range(10):
            e(f"v_pk_add_f32 {vr(Dv + 2 * q, 2)}, {vr(F + 2 * q, 2)}, {vr(S, 2)} op_sel_hi:[1,0] neg_lo:[0,1] neg_hi:[0,1]")
        e(f"v_pk_mul_f32 {vr(S + 2, 2)}, {vr(Dv, 2)}, {vr(Dv, 2)}")
        e(f"v_pk_mul_f32 {vr(S + 24, 2)}, {vr(Dv + 2, 2)}, {vr(Dv + 2, 2)}")
        for q in range(2, 10):
            r = S + 2 if q % 2 == 0 else S + 24
            e(f"v_pk_fma_f32 {vr(r, 2)}, {vr(Dv + 2 * q, 2)}, {vr(Dv + 2 * q, 2)}, {vr(r, 2)}")
        e(f"v_pk_add_f32 {vr(S + 2, 2)}, {vr(S + 2, 2)}, {vr(S + 24, 2)}")
        e(f"v_add_f32 v{S + 2}, v{S + 2}, v{S + 3}")
        red("v_add_f32", S + 2, S + 3, False)
        e(f"v_mul_f32 v{S + 2}, {hex(f2u(1.0 / 640))}, v{S + 2}")
        bf16round(S + 2)
        e(f"v_add_f32 v{S + 2}, {hex(f2u(1e-5))}, v{S + 2}")
        bf16round(S + 2)
        e(f"v_sqrt_f32 v{S + 2}, v{S + 2}")
        bf16round(S)
        bf16round(S + 2)
        e(f"v_rcp_f32 v{S + 3}, v{S + 2}")
        e(f"v_sub_f32 v{SO}, 0, v{S}")
        e(f"v_mul_f32 v{SO + 3}, v{S + 2}, v{S + 2}")
        e(f"v_mul_f32 v{S + 1}, v{S + 3}, v{S + 3}")
        e(f"v_mul_f32 v{SO + 2}, {hex(f2u(C0))}, v{S + 3}")
        e(f"v_mul_f32 v{S + 1}, v{S + 1}, v{S + 3}")
        e(f"v_mul_f32 v{S + 2}, v{SO}, v{S + 3}")
        e(f"v_mul_f32 v{SO + 1}, {hex(f2u(C1))}, v{S + 1}")
        for q in range(10):
            e(f"v_pk_fma_f32 {vr(Dv + 2 * q, 2)}, {vr(F + 2 * q, 2)}, {vr(S + 2, 2)}, {vr(S + 2, 2)} op_sel:[0,1,0] op_sel_hi:[1,1,0]")
        for q in range(10):
            e(f"v_cvt_pk_f16_f32 v{UO + q}, v{Dv + 2 * q}, v{Dv + 2 * q + 1}")
        e("v_lshrrev_b32 v2, 5, v0")
        e(f"v_mul_u32_u24 v2, {LNP}, v2")
        e("v_and_b32 v3, 31, v0")
        e("v_lshl_add_u32 v2, v3, 3, v2")
        e(f"s_mul_i32 {sT1}, {sW}, {2 * LNP}")
        e(f"s_add_u32 {sT1}, {sT1}, {LNB}")
        e(f"v_add_u32 v2, {sT1}, v2")
        if bar:
            e("s_barrier")
        for q in range(5):
            g.lds(f"ds_write_b64 v2, {vr(UO + 2 * q, 2)} offset:{256 * q}", "lnw")
        e("v_lshrrev_b32 v4, 1, v0")
        e(f"v_mov_b32 v5, {OOB}")
        e("v_cmp_ne_u32 vcc, 0, v3")
        e(f"s_lshl_b32 {sT1}, s2, 2")
        e(f"s_add_u32 {sT1}, {sT1}, {sW}")
        e("v_cndmask_b32 v4, v4, v5, vcc")
        e(f"s_lshl_b32 {sT1}, {sT1}, 5")
        e(f"s_add_u32 {sT1}, {sT1}, {STATS}")
        e("v_bfe_u32 v6, v0, 2, 2")
        e(f"v_mul_u32_u24 v2, {LNP}, v6")
        e("v_lshrrev_b32 v3, 4, v0")
        e("v_lshl_add_u32 v2, v3, 5, v2")
        e("v_and_b32 v7, 3, v0")
        e("v_lshl_add_u32 v2, v7, 3, v2")
        e(f"s_lshl_b32 {sT2}, {sW}, 7")
        e(f"s_add_u32 {sT2}, {sT2}, {LNB}")
        e(f"v_add_u32 v2, {sT2}, v2")

    def ln_tail():
        g.vmem(f"buffer_store_dwordx4 {vr(SO, 4)}, v4, {SWS}, {sT1} offen sc1", "lnst")
        g.wlg0()
        e("s_barrier")
        TR = 200
        for j in range(3):
            for h in range(2):
                g.lds(f"ds_read_b64_tr_b16 {vr(TR + 4 * j + 2 * h, 2)}, v2 offset:{512 * j + 4 * LNP * h}", ("lntr", j))
        e(f"s_mul_i32 {sT1}, s2, 10240")
        e(f"s_lshl_b32 {sT2}, {sW}, 10")
        e(f"s_add_u32 {sT1}, {sT1}, {sT2}")
        e(f"s_add_u32 {sT1}, {sT1}, {XNT}")
        e(f"s_add_u32 {sT2}, {sT1}, 4096")
        e(f"s_add_u32 {sT3}, {sT1}, 8192")
        e(f"s_cmp_lt_u32 {sW}, 2")
        e(f"s_cselect_b32 {sT3}, {sT3}, {OOB}")
        for j, so in enumerate((sT1, sT2, sT3)):
            g.wlg(("lntr", j))
            g.vmem(f"buffer_store_dwordx4 {vr(TR + 4 * j, 4)}, v1, {SWS}, {so} offen sc1", "lnst")

    AK = 46
    vKA_A, vKA_B, vZ, vRW, vUW, vYS, vFB, vGB = range(AK, AK + 8)
    KA, CC, TM = 128, 152, 136
    WA = KA + 6
    SIG, OMG = KA + 2, KA + 4

    def cexp(dst, p, t):
        for m in range(2):
            e(f"v_mul_f32 v{t + m}, {hex(f2u(float(p)))}, v{SIG + m}")
            e(f"v_mul_f32 v{t + 2 + m}, {hex(f2u(float(p)))}, v{OMG + m}")
        for m in range(2):
            e(f"v_fract_f32 v{t + 2 + m}, v{t + 2 + m}")
        for m in range(2):
            e(f"v_exp_f32 v{t + m}, v{t + m}")
            e(f"v_cos_f32 v{dst + 2 * m}, v{t + 2 + m}")
            e(f"v_sin_f32 v{dst + 2 * m + 1}, v{t + 2 + m}")
        e("s_nop 0")
        align()
        for m in range(2):
            e(f"v_pk_mul_f32 {vr(dst + 2 * m, 2)}, {vr(dst + 2 * m, 2)}, {vr(t, 2)} op_sel:[0,{m}] op_sel_hi:[1,{m}]")

    def cmul(dst, P, Q, t):
        for m in range(2):
            e(f"v_pk_mul_f32 {vr(t + 2 * m, 2)}, {vr(P + 2 * m, 2)}, {vr(Q + 2 * m, 2)} op_sel_hi:[0,1]")
        for m in range(2):
            e(f"v_pk_fma_f32 {vr(dst + 2 * m, 2)}, {vr(P + 2 * m, 2)}, {vr(Q + 2 * m, 2)}, {vr(t + 2 * m, 2)} op_sel:[1,1,0] op_sel_hi:[1,0,1] neg_lo:[0,1,0]")

    prow = [0]

    def put(src, row, neg, lastrow=False):
        o = 144 + 2 * (row % 4)
        ng = "-" if neg else ""
        if src is not None:
            e(f"v_cvt_pk_f16_f32 v{o}, v{src}, {ng}v{src + 1}")
            e(f"v_cvt_pk_f16_f32 v{o + 1}, v{src + 2}, {ng}v{src + 3}")
        if row % 2 == 1:
            o0 = ((row - 1) % 4) * 68
            g.lds(f"ds_write2_b64 v{WA}, {vr(o - 2, 2)}, {vr(o, 2)} offset0:{o0} offset1:{o0 + 68}", "xy")
            if row % 4 == 3:
                e(f"v_add_u32 v{WA}, {4 * XYP}, v{WA}")
        elif lastrow:
            g.lds(f"ds_write_b64 v{WA}, {vr(o, 2)} offset:{(row % 4) * XYP}", "xy")


    def rb1():
        e(f"s_mov_b32 {sKR}, 0")
        for i in range(8):
            e(f"v_accvgpr_read_b32 v{SC + i}, a{AST + i}")
        for i in (0, 1, 5):
            e(f"v_accvgpr_read_b32 v{AK + i}, a{AS2 + 1 + i}")

    def tag_code():
        e(f"v_readfirstlane_b32 {sTAG}, v{vTAG}")
        e("s_nop 3")
        e(f"s_mul_i32 {sTAG}, {sTAG}, 1664525")
        e(f"s_add_u32 {sTAG}, {sTAG}, 1013904223")
        e(f"v_mov_b32 v{vTAG}, {sTAG}")

    def k_setup():
        for k6 in (4, 5, 0, 1, 2, 3):
            e(f"v_accvgpr_read_b32 v{vPAR + k6}, a{APAR + k6}")
        e(f"v_accvgpr_read_b32 v{WA}, a{AS2}")
        e(f"s_lshl_b32 {sT1}, {sC}, 4")
        e(f"v_lshrrev_b32 v{KA}, {sT1}, v{vPAR + 4}")
        e(f"v_lshlrev_b32 v{KA}, 16, v{KA}")
        e(f"v_mul_f32 v{KA}, {hex(f2u(LOG2E))}, v{KA}")
        e(f"v_exp_f32 v{KA}, v{KA}")
        e(f"v_lshrrev_b32 v{KA + 7}, {sT1}, v{vPAR + 5}")
        e(f"v_lshlrev_b32 v{KA + 7}, 16, v{KA + 7}")
        bf16round(KA)
        e(f"v_lshlrev_b32 v{KA + 2}, 16, v{vPAR}")
        e(f"v_and_b32 v{KA + 3}, 0xffff0000, v{vPAR}")
        e(f"v_mul_f32 v{KA + 2}, {hex(f2u(LOG2E))}, v{KA + 2}")
        e(f"v_mul_f32 v{KA + 3}, {hex(f2u(LOG2E))}, v{KA + 3}")
        e(f"v_exp_f32 v{KA + 2}, v{KA + 2}")
        e(f"v_exp_f32 v{KA + 3}, v{KA + 3}")
        e(f"v_lshlrev_b32 v{KA + 4}, 16, v{vPAR + 1}")
        e(f"v_and_b32 v{KA + 5}, 0xffff0000, v{vPAR + 1}")
        e(f"v_cvt_pk_bf16_f32 v{KA + 1}, v{KA + 2}, v{KA + 3}")
        e(f"v_lshlrev_b32 v{CC}, 16, v{vPAR + 2}")
        e(f"v_lshlrev_b32 v{CC + 1}, 16, v{vPAR + 3}")
        e(f"v_and_b32 v{CC + 2}, 0xffff0000, v{vPAR + 2}")
        e(f"v_and_b32 v{CC + 3}, 0xffff0000, v{vPAR + 3}")
        e(f"v_lshlrev_b32 v{KA + 2}, 16, v{KA + 1}")
        e(f"v_and_b32 v{KA + 3}, 0xffff0000, v{KA + 1}")
        for m in range(2):
            e(f"v_mul_f32 v{KA + 2 + m}, v{KA + 2 + m}, v{KA}")
            e(f"v_mul_f32 v{KA + 4 + m}, v{KA + 4 + m}, v{KA}")
        for m in range(2):
            e(f"v_mul_f32 v{KA + 2 + m}, {hex(f2u(-LOG2E))}, v{KA + 2 + m}")
            e(f"v_mul_f32 v{KA + 4 + m}, {hex(f2u(1.0 / (2 * math.pi)))}, v{KA + 4 + m}")

    def k_role0():
        W8, W16, T2 = 152, 156, 140
        ch = [[160, 164], [168, 172]]
        e(f"v_add_u32 v{WA}, {YR0 * XYP}, v{WA}")
        cexp(W8, 8, TM)
        e("v_mov_b32 v144, 0x3c00")
        e("v_mov_b32 v145, 0x3c00")
        cmul(W16, W8, W8, TM)
        put(W8, 33, False)
        cur = [W16, W8]
        for j in range(2, 32, 2):
            n0 = cur[0] if j == 2 else ch[0][(j // 2) & 1]
            n1 = ch[1][(j // 2) & 1]
            for m in range(2):
                if j > 2:
                    e(f"v_pk_mul_f32 {vr(TM + 2 * m, 2)}, {vr(cur[0] + 2 * m, 2)}, {vr(W16 + 2 * m, 2)} op_sel_hi:[0,1]")
                e(f"v_pk_mul_f32 {vr(T2 + 2 * m, 2)}, {vr(cur[1] + 2 * m, 2)}, {vr(W16 + 2 * m, 2)} op_sel_hi:[0,1]")
            for m in range(2):
                if j > 2:
                    e(f"v_pk_fma_f32 {vr(n0 + 2 * m, 2)}, {vr(cur[0] + 2 * m, 2)}, {vr(W16 + 2 * m, 2)}, {vr(TM + 2 * m, 2)} op_sel:[1,1,0] op_sel_hi:[1,0,1] neg_lo:[0,1,0]")
                e(f"v_pk_fma_f32 {vr(n1 + 2 * m, 2)}, {vr(cur[1] + 2 * m, 2)}, {vr(W16 + 2 * m, 2)}, {vr(T2 + 2 * m, 2)} op_sel:[1,1,0] op_sel_hi:[1,0,1] neg_lo:[0,1,0]")
            put(n0, 32 + j, False)
            put(n1, 33 + j, False)
            cur = [n0, n1]

    def k_role1():
        MX = 136
        e(f"v_max_f32 v{MX}, |v{CC}|, |v{CC + 1}|")
        e(f"v_max3_f32 v{MX}, |v{CC + 2}|, |v{CC + 3}|, v{MX}")
        red("v_max_f32", MX, MX + 1, True)
        e(f"v_frexp_exp_i32_f32 v{MX}, v{MX}")
        e(f"v_add_f32 v{KA}, v{KA}, v{KA}")
        e(f"v_ldexp_f32 v{MX + 2}, v{KA}, v{MX}")
        e(f"v_mov_b32 v{MX + 3}, v{KA + 7}")
        e(f"v_sub_u32 v{MX}, 0, v{MX}")
        for i in range(4):
            e(f"v_ldexp_f32 v{CC + i}, v{CC + i}, v{MX}")
        e(f"v_add_u32 v{MX + 1}, {sKR}, v{vYS}")
        e(f"v_mov_b32 v{MX}, 0")
        g.lds(f"ds_write_b64 v{MX + 1}, {vr(MX + 2, 2)} offset:{YSO}", "xy")
        g.lds(f"ds_write_b32 v{MX + 1}, v{MX}", "xy")
        Z, Q, Q4 = 156, 160, 164
        cexp(Z, 1, TM)
        cexp(Q, 256, TM)
        cexp(Q4, 1024, TM)
        X = [168 + 4 * i for i in range(8)]
        X[0] = CC
        put(CC, 0, True)
        for s in range(1, 8):
            cmul(X[s], X[s - 1], Z, TM)
            put(X[s], s, True)
        R8 = [200 + 4 * i for i in range(4)]
        for s in range(4):
            cmul(R8[s], X[2 * s], Q, TM)
            put(R8[s], 8 + s, True)
        R12 = [216, 220]
        for s in range(2):
            cmul(R12[s], R8[2 * s], Q, TM)
            put(R12[s], 12 + s, True)
        for s in range(2):
            cmul(X[1 + 2 * s], R12[s], Q, TM)
            put(X[1 + 2 * s], 14 + s, True)
        cmul(R8[0], CC, Q4, TM)
        put(R8[0], 16, True)
        cmul(R8[1], R8[0], Q, TM)
        put(R8[1], 17, True)
        cmul(R8[3], R8[1], Q, TM)
        put(R8[3], 18, True)
        cmul(R8[1], R8[3], Q, TM)
        put(R8[1], 19, True)
        cmul(R8[2], R8[0], Q4, TM)
        put(R8[2], 20, True, lastrow=True)

    def kgen(sfx, units, every):
        k_setup()
        e(f"s_cmp_lg_u32 {sRHO}, 0")
        e(f"s_cbranch_scc1 L_role1{sfx}")
        vm_s, lg_s = list(g.vm), list(g.lg)
        us = list(units)
        interleave(k_role0, us, every)
        emit_units(us)
        e(f"s_branch L_kbar{sfx}")
        align()
        g.lab(f"L_role1{sfx}")
        g.vm, g.lg = vm_s, lg_s
        us = list(units)
        interleave(k_role1, us, every)
        emit_units(us)
        g.lab(f"L_kbar{sfx}")
        stamp("kvalu_end")

    def kgen_mfma():
        KF = 64
        for ks in range(8):
            g.lds(f"ds_read_b128 {vr(KF + 4 * ks, 4)}, v{vKA_A} offset:{64 * ks}", ("ka", ks))
            g.lds(f"ds_read_b128 {vr(128 + 4 * ks, 4)}, v{vKA_B} offset:{YR0 * XYP + 64 * ks}", ("kb0", ks))
            g.lds(f"ds_read_b128 {vr(160 + 4 * ks, 4)}, v{vKA_B} offset:{(YR0 + 16) * XYP + 64 * ks}", ("kb1", ks))
        KD = 96
        for ks in range(8):
            g.wlg(("kb1", ks))
            e(f"v_mfma_f32_16x16x32_f16 {vr(KD, 4)}, {vr(KF + 4 * ks, 4)}, {vr(128 + 4 * ks, 4)}, {'0' if ks == 0 else vr(KD, 4)}")
            e(f"v_mfma_f32_16x16x32_f16 {vr(KD + 4, 4)}, {vr(KF + 4 * ks, 4)}, {vr(160 + 4 * ks, 4)}, {'0' if ks == 0 else vr(KD + 4, 4)}")
        g.nop(7)
        for i in range(8):
            g.lds(f"ds_write_b32 v{SC + i}, v{KD + i}", "tw")

    vm0 = ["cpf"]
    u0, u0b = split_units(dma_units(0), opt.get("nf", 4))
    def g1_early():
        for i in range(2, 8):
            d = 16 * 1280 - 1024 * ((i & 3) - ((i - 2) & 3))
            e(f"v_add_u32 v{vXO + i}, {d}, v{vXO + i - 2}")
        rest_setup()
    interleave(g1_early, u0, opt.get("pe0", 2))
    assert not u0
    e(f"s_mov_b32 {sRND}, 1")
    rest_loads()
    aE, aL = addr_items(XYB_G1, TB_G1)
    table_code(TB_G1)
    run_items(aE)
    rb1()
    if diag:
        e("s_memrealtime s[100:101]\ns_waitcnt lgkmcnt(0)\nv_writelane_b32 v127, s100, 58")
    g.sfree += [88, 90]
    g.wvm("par")
    stamp("par_data")
    kgen("g", u0b + dma_units(1), opt.get("pek", 12))
    g.wlg0()
    e("s_barrier")
    kgen_mfma()
    g.wvm("ep")
    tag_code()
    stamp("kdone")
    uA = csl_units()
    interleave(lambda: ln_code(bar=True), uA, opt.get("pe1", 24))
    emit_units(uA)
    ln_tail()
    stamp("ln_done")
    e("v_and_b32 v2, 31, v0")
    e("v_lshrrev_b32 v3, 5, v0")
    e("v_bfe_u32 v4, v0, 1, 3")
    e("v_xor_b32 v4, v4, v3")
    e(f"v_lshl_add_u32 v2, v2, 7, {sXM0}")
    for ks in range(4):
        e(f"v_xor_b32 v5, {2 * ks}, v4")
        e(f"v_lshl_add_u32 v{vBA + ks}, v5, 4, v2")
        e(f"v_add_u32 v{vBA + 4 + ks}, {2 * SLOT}, v{vBA + ks}")
    e("v_bfe_u32 v6, v0, 2, 2")
    e("v_and_b32 v7, 3, v0")
    e("v_lshl_add_u32 v2, v3, 3, v6")
    e("v_lshlrev_b32 v2, 7, v2")
    e("v_bfe_u32 v4, v0, 4, 1")
    e("v_lshl_add_u32 v2, v4, 5, v2")
    e("v_lshl_add_u32 v2, v7, 3, v2")
    e("v_lshrrev_b32 v3, 1, v6")
    e(f"v_xor_b32 v3, {sRHO}, v3")
    e(f"s_lshl_b32 {sT1}, {sC}, 13")
    e("v_lshl_add_u32 v2, v3, 6, v2")
    e(f"v_add_u32 v{vAA}, {sT1}, v2")
    e(f"v_xor_b32 v{vAA + 1}, 64, v{vAA}")
    e(f"v_xor_b32 v{vAA + 2}, 0x2000, v{vAA}")
    e(f"v_xor_b32 v{vAA + 3}, 0x2000, v{vAA + 1}")
    for i in range(4):
        e(f"v_add_u32 v{vAA + 4 + i}, {2 * SLOT}, v{vAA + i}")

    def touch_setup():
        return [f"s_lshr_b32 {sF0}, {sQ}, 2", f"s_mul_i32 {sF0}, {sF0}, 10", f"v_add_u32 v2, {sF0}, v0",
                "v_min_u32 v2, 63, v2", "v_mul_u32_u24 v2, 1280, v2", f"v_mov_b32 v3, {OOB}",
                f"v_cmp_lt_u32 vcc, 9, v0\ns_nop 1\nv_cndmask_b32 v{vTO}, v2, v3, vcc",
                f"s_and_b32 {sF0}, {sQ}, 3", f"s_lshl_b32 {sF0}, {sF0}, 1", f"s_add_u32 {sF0}, {sF0}, {sRHO}",
                f"s_lshl_b32 {sF0}, {sF0}, 3", f"s_lshl_b32 {sF1}, {sW}, 4", f"s_sub_u32 {sF0}, {sF0}, {sF1}",
                f"s_add_u32 {sF0}, {sF0}, 64", f"v_add_u32 v2, {sF0}, v0", "v_mul_u32_u24 v2, 3456, v2",
                f"v_cmp_lt_u32 vcc, 7, v0\ns_nop 1\nv_cndmask_b32 v{vTO + 1}, v2, v3, vcc",
                ]

    def touch_units(ahead):
        return [f"s_add_u32 {sT4}, {sXS}, {128 * ahead}",
                ("vm", f"buffer_load_dword v{vFL + 4}, v{vTO}, {SX}, {sT4} offen", "touch"),
                f"s_add_u32 {sT4}, {sWSO}, {64 * 3456 * (ahead - 1)}" if ahead >= 1 else f"s_sub_u32 {sT4}, {sWSO}, {64 * 3456}",
                ("vm", f"buffer_load_dword v{vFL + 4}, v{vTO + 1}, {STW}, {sT4} offen", "touch")]

    def frag_reads(k):
        stage, ks = divmod(k, 4)
        sl = stage % 3
        st4 = 4 if sl == 2 else 0
        so = 0 if sl == 2 else sl * SLOT
        A = vAF + 16 * (k & 1)
        B = vBF + 8 * (k & 1)
        def bread(b):
            return ("lds", f"ds_read_b128 {vr(B + 4 * b, 4)}, v{vBA + st4 + ks} offset:{so + 4096 * b}", ("B", k, b))
        def aread(t, h):
            return ("lds", f"ds_read_b64_tr_b16 {vr(A + 4 * t + 2 * h, 2)}, v{vAA + st4 + t} offset:{so + ks * 2048 + h * 512}", ("A", k, t))
        return [bread(0), aread(0, 0), aread(0, 1), bread(1), aread(1, 0), aread(1, 1), aread(2, 0), aread(2, 1), aread(3, 0), aread(3, 1)]

    e(f"s_mov_b32 {sMASK}, 0xffff0000")
    g.wvm(("dma", 0))
    g.wlg0()
    e("s_barrier")
    stamp("g1_start")
    stamp("c_g1s", cyc=True)
    for it in frag_reads(0):
        g.do(it)

    PACE = opt.get("pace", 2)
    NG = 320
    gaps = [[] for _ in range(NG)]
    head = [[] for _ in range(NG)]
    pre = {}
    vq_big = []

    sq = []
    def add_group(units, earliest, small=False, pace=None):
        vq = sq if small else vq_big
        prel = []
        for u in units:
            if isinstance(u, tuple) and u[0] == "m0":
                prel.append(u[1])
            elif isinstance(u, tuple) or callable(u):
                vq.append([earliest, prel, u, [], pace])
                prel = []
            else:
                prel.append(u)
        if prel:
            vq[-1][3] += prel

    def Bgap(s):
        return 32 * s - 8

    PKV = 48
    pk_fill = [f"s_mov_b32 {sF0}, {0x100000000 // 20 + 1}", f"s_lshl_b32 {sF1}, {sW}, 6"]
    for i3 in range(3):
        pk_fill += [f"v_add_u32 v2, {sF1}, v0"] + ([f"v_add_u32 v2, {256 * i3}, v2"] if i3 else []) + [
            f"v_mul_hi_u32 v3, v2, {sF0}", "v_mul_u32_u24 v12, 20, v3", "v_sub_u32 v12, v2, v12",
            "v_mul_u32_u24 v3, 1280, v3", f"v_lshl_add_u32 v{PKV + i3}, v12, 4, v3"]
    pk_fill += [f"s_lshr_b32 {sHS0}, {sCP}, 2", f"s_and_b32 {sHS1}, {sCP}, 3",
                f"s_mul_i32 {sT2}, {sHS0}, 40960", f"s_mul_i32 {sF0}, {sHS1}, 320", f"s_add_u32 {sT2}, {sT2}, {sF0}",
                f"s_lshl_b32 {sT3}, {sW}, 10"]
    pk_fill2 = ["v_lshrrev_b32 v2, 5, v0", "v_bfe_u32 v3, v0, 2, 2", "v_lshl_add_u32 v2, v2, 4, v3", "v_bfe_u32 v3, v0, 4, 1",
                "v_lshl_add_u32 v2, v3, 2, v2", "v_mul_u32_u24 v2, 320, v2", "v_and_b32 v3, 3, v0", "v_lshl_add_u32 v2, v3, 3, v2",
                f"s_lshl_b32 {sF0}, {sW}, 5", f"s_add_u32 {sF0}, {sF0}, {PKB}", f"v_add_u32 v{PKV + 3}, {sF0}, v2"]
    PDR = [56, 60, 8]
    pk_dma = []
    for i3 in range(3):
        pk_dma.append(("m0", f"s_add_u32 m0, {sT3}, {PKB + 4096 * i3}"))
        if i3 == 2:
            pk_dma.append(lambda: e(f"s_cmp_lt_u32 {sW}, 2\ns_cbranch_scc0 L_nopk3\nbuffer_load_dwordx4 v{PKV + 2}, {SWD}, {sT2} offen lds\nL_nopk3:") or g.vm.append("OPT"))
        else:
            pk_dma.append(("vm", f"buffer_load_dwordx4 v{PKV + i3}, {SWD}, {sT2} offen lds", "pkd"))
    pk_st = []
    for i3 in range(3):
        pk_st += [f"s_mul_i32 {sT2}, {sHS1}, 10\ns_add_u32 {sT2}, {sT2}, {sW}\ns_add_u32 {sT2}, {sT2}, {4 * i3}",
                  f"s_mul_i32 {sT3}, {sT2}, 13108\ns_lshr_b32 {sT3}, {sT3}, 16\ns_mul_i32 {sT3}, {sT3}, 265\ns_add_u32 {sT2}, {sT2}, {sT3}",
                  f"s_mul_i32 {sT3}, {sHS0}, 5\ns_add_u32 {sT2}, {sT2}, {sT3}\ns_lshl_b32 {sT2}, {sT2}, 10\ns_add_u32 {sT2}, {sT2}, {WDP}"]
        if i3 == 2:
            pk_st.append(f"s_cmp_lt_u32 {sW}, 2\ns_cselect_b32 {sT2}, {sT2}, {OOB}")
        pk_st.append(("vm", f"buffer_store_dwordx4 {vr(PDR[i3], 4)}, v1, {SWS}, {sT2} offen sc1", "pks"))
    lnflag = [f"s_lshl_b32 {sT1}, s2, 2\ns_add_u32 {sT1}, {sT1}, {LNF}\ns_cmp_eq_u32 {sW}, 0\ns_cselect_b32 {sT1}, {sT1}, {OOB}",
              lambda: flag_store(sT1)]
    wfflag = [f"s_lshl_b32 {sT1}, {sHS1}, 6\ns_add_u32 {sT1}, {sT1}, {sHS0}\ns_lshl_b32 {sT1}, {sT1}, 2\ns_add_u32 {sT1}, {sT1}, {WF}",
              f"s_cmp_eq_u32 {sW}, 0\ns_cselect_b32 {sT1}, {sT1}, {OOB}", lambda: flag_store(sT1)]

    add_group(dma_units(2), opt.get("d2", 4))
    add_group(pk_dma, 20)
    for st_ in range(1, 8):
        if st_ == 2:
            add_group(pk_st, Bgap(2) + 6)
        add_group(dma_units(st_ + 2), Bgap(st_) + {1: opt.get("d3", 18), 2: opt.get("d4", 26), 3: opt.get("d5", 0), 4: opt.get("d6", 20)}.get(st_, 0))
    G0 = 8 * KCHK + 4
    for phi in range(P1):
        add_group(wd_load(phi), G0)
    vsched = []
    occ = set()
    def place(q, pace):
        last = -pace
        for (ear, prel, vmi, post, pc) in q:
            gq = max(ear, last + (pc or pace))
            while gq in occ:
                gq += 1
            assert gq < NG - 1, gq
            occ.add(gq)
            gaps[gq - 1] += prel
            head[gq].append(vmi)
            gaps[gq] = post + gaps[gq]
            last = gq
            vsched.append((gq, vmi[2] if isinstance(vmi, tuple) else "flag"))
    place(vq_big, PACE)
    def gap_of(tag):
        return max(gq for gq, t in vsched if t == tag)
    for st_ in range(1, 8):
        ge = gap_of(("dma", st_ + 2)) + 2
        if st_ == 1:
            add_group(lnflag, gap_of("pkd") + 3, True)
        if st_ == 2:
            add_group([f"s_lshl_b32 {sT1}, {sFT}, 1\ns_add_u32 {sT1}, {sT1}, {sC}\ns_lshl_b32 {sT1}, {sT1}, 3\ns_add_u32 {sT1}, {sT1}, {sM}",
                       f"s_lshl_b32 {sT1}, {sT1}, 1\ns_add_u32 {sT1}, {sT1}, {sRHO}\ns_lshl_b32 {sT1}, {sT1}, 8\ns_add_u32 {sT1}, {sT1}, {CSP}",
                       ("vm", f"buffer_store_dwordx2 {vr(4, 2)}, v6, {SWS}, {sT1} offen sc1", "pks")], gap_of("pks") + 1, True)
        if st_ == 4:
            add_group(wfflag, gap_of(("dma", 5)) + 1, True)
        if st_ == 5:
            add_group([("vm", f"buffer_load_dwordx4 {vr(vFL, 4)}, v{vFA}, {SWS}, 0 offen sc1", "poll"),
                       ("vm", f"buffer_load_dword v{PKV}, v{vFA + 1}, {SWS}, 0 offen sc1", "poll")], 8 * KCHK - 22, True)
        if TOUCH and st_ + TOUCH <= 9:
            if st_ == 1:
                for a in range(0, TOUCH - 3):
                    add_group(touch_units(a), ge, True)
            add_group(touch_units(TOUCH - 3), ge, True)
        if st_ == 6 and opt.get('wtouch'):
            for t3 in range(3):
                add_group([f"s_and_b32 {sT4}, {sLT}, 3\ns_mul_i32 {sT4}, {sT4}, {140 * 128}\ns_add_u32 {sT4}, {sT4}, {sWDS}" if t3 == 0 else f"s_add_u32 {sT4}, {sT4}, {48 * 128}",
                           ("vm", f"buffer_load_dword v{vFL + 4}, v{PKV + 1}, {SWS}, {sT4} offen sc1", "wtouch")], 8 * KCHK + 4 + 4 * t3, True)
    add_group([f"s_lshl_b32 {sT1}, {sFT}, 1\ns_add_u32 {sT1}, {sT1}, {sC}\ns_lshl_b32 {sT1}, {sT1}, 5\ns_add_u32 {sT1}, {sT1}, {sRHO}",
               f"s_lshl_b32 {sT1}, {sT1}, 7\ns_add_u32 {sT1}, {sT1}, {CSP}",
               ("vm", f"buffer_load_dwordx4 {vr(4, 4)}, v{vCS}, {SWS}, {sT1} offen sc1", "csp"),
               ("vm", f"buffer_load_dwordx4 {vr(8, 4)}, v{vCS}, {SWS}, {sT1} offen offset:2048 sc1", "csp")], G0, True)
    add_group([f"s_lshl_b32 {sT1}, {sM}, 2\ns_add_u32 {sT1}, {sT1}, {sW}\ns_lshl_b32 {sT1}, {sT1}, 10\ns_add_u32 {sT1}, {sT1}, {STATS}",
               ("vm", f"buffer_load_dwordx4 {vr(vSTA, 4)}, v15, {SWS}, {sT1} offen sc1", "stats"),
               ("vm", f"buffer_load_dwordx4 {vr(vSTA + 4, 4)}, v15, {SWS}, {sT1} offen offset:512 sc1", "stats")], G0, True)
    add_group(u_loads(sCP, 3), G0, True)
    place(sq, 1)
    vsched.sort()
    if opt.get("v"):
        print(vsched)
    assert all(gap_of(("dma", st_)) < Bgap(st_) - 12 for st_ in range(2, 10))
    assert gap_of("pkd") < Bgap(2) and gap_of("pks") < Bgap(4) - 16 and gap_of("poll") < 8 * KCHK - 6

    for i3 in range(3):
        for h in range(2):
            gaps[Bgap(2) + 1 + i3].append(("lds", f"ds_read_b64_tr_b16 {vr(PDR[i3] + 2 * h, 2)}, v{PKV + 3} offset:{128 * i3 + 8 * 320 * h}", "pk"))
    c4 = check4(vFL)
    gaps[8 * KCHK] += [("wvm", "poll")] + c4[0:2]
    gaps[8 * KCHK + 1] += c4[2:5]
    def chk():
        sl = g.newlab("Lslow")
        bk = g.newlab("Lback")
        e(f"v_xor_b32 v{PKV}, v{vTAG}, v{PKV}")
        e(f"v_or3_b32 v{vFL}, v{vFL}, v{vFL + 3}, v{PKV}")
        e(c4[6])
        e(f"s_cbranch_vccnz {sl}")
        g.lab(bk)
        g.slow.append((sl, bk, [(vFA, True), (vFA + 1, False)]))
    gaps[8 * KCHK + 2].insert(0, chk)

    CA = [4, 5, 6, 7, 42, 43, 44, 45]
    csum = []
    for j5 in range(5):
        csum.append(("wvm", ("csl", j5)))
        for d in range(4):
            r = CSR[j5] + d
            if j5 == 0:
                csum += [f"v_lshlrev_b32 v{CA[2 * d]}, 16, v{r}", f"v_and_b32 v{CA[2 * d + 1]}, {sMASK}, v{r}"]
            else:
                csum += [f"v_lshlrev_b32 v8, 16, v{r}", f"v_and_b32 v9, {sMASK}, v{r}",
                         f"v_add_f32 v{CA[2 * d]}, v{CA[2 * d]}, v8", f"v_add_f32 v{CA[2 * d + 1]}, v{CA[2 * d + 1]}, v9"]
    csum += ["s_nop 1"]
    csum += [f"v_permlane32_swap_b32 v{CA[c]}, v{CA[c + 4]}" for c in range(4)]
    csum += [f"v_add_f32 v{CA[c]}, v{CA[c]}, v{CA[c + 4]}" for c in range(4)]
    csum += ["s_nop 1"]
    csum += [f"v_permlane16_swap_b32 v{CA[c]}, v{CA[c + 2]}" for c in range(2)]
    csum += ["s_nop 0"]
    csum += [f"v_add_f32 v{CA[c]}, v{CA[c]}, v{CA[c + 2]}" for c in range(2)]
    csum += ["v_and_b32 v6, 7, v0", "v_lshlrev_b32 v6, 5, v6"]
    csum += [f"v_add_f32 v{CA[c]}, v{CA[c]}, v{CA[c]} row_ror:8" for c in range(2)]
    csum += ["v_lshrrev_b32 v7, 4, v0", "v_lshl_add_u32 v6, v7, 3, v6", f"v_mov_b32 v7, {OOB}",
             "v_and_b32 v8, 8, v0", "v_cmp_ne_u32 vcc, 0, v8\ns_nop 1\nv_cndmask_b32 v6, v6, v7, vcc"]
    fillq = pk_fill + (touch_setup() if TOUCH else []) + pk_fill2[:11]
    n_a = len(fillq)
    fillq += csum
    n_csum = len(fillq)
    n_early = len(pk_fill)
    fillq += pk_fill2[11:]
    n_early2 = len(fillq)
    fillq += [f"v_min_u32 v2, 53, v0", f"s_lshr_b32 {sF0}, {sDT}, 1", f"s_lshl_b32 {sF0}, {sF0}, 8",
              f"s_add_u32 {sF0}, {sF0}, {WF}", f"v_lshl_add_u32 v2, v2, 2, {sF0}",
              "v_and_b32 v3, 7, v0", "v_mul_u32_u24 v3, 27, v3", f"v_add_u32 v3, {sFT}, v3", "v_and_b32 v12, 3, v3",
              "v_lshrrev_b32 v3, 2, v3", "v_lshl_add_u32 v3, v12, 6, v3", "v_lshlrev_b32 v3, 2, v3", f"v_add_u32 v3, {WF}, v3",
              f"v_cmp_lt_u32 vcc, 55, v0\ns_nop 1\nv_cndmask_b32 v{vFA + 1}, v2, v3, vcc"]
    iw = max(i for i, x in enumerate(aL) if sWDS + "," in x)
    i0 = min(i for i, x in enumerate(aL) if f"{sF0}, {sW}, 14" in x)
    iu = max(i for i, x in enumerate(aL) if f"a{AS2 + 23}," in x)
    fillq += [f"v_add_u32 v{vFA}, {LNF}, v1"] + aL[i0:iw + 1] + ["v_lshrrev_b32 v3, 1, v0", "v_and_b32 v2, 1, v0", "v_mul_u32_u24 v3, 10240, v3", "v_lshl_add_u32 v3, v2, 4, v3",
                              f"v_accvgpr_write_b32 a{AS2 + 23}, v3"]
    n_mid = len(fillq)
    late_fill = aL[:i0] + aL[i0:i0 + 3] + aL[iw + 1:] + gather_items(TB_G1)
    late_fill = [x.replace("v12", "v10").replace("v13", "v11").replace("v14", "v46").replace("v15", "v47") for x in late_fill]
    fillq += ["v_bfe_u32 v2, v0, 4, 1", f"v_mul_u32_u24 v2, {54 * 1024}, v2", "v_lshrrev_b32 v3, 5, v0",
              "v_lshl_add_u32 v2, v3, 8, v2", "v_and_b32 v12, 15, v0", "v_lshl_add_u32 v2, v12, 4, v2",
              f"s_lshl_b32 {sF0}, {sRHO}, 10", f"v_add_u32 v{vHO}, {sF0}, v2", f"s_xor_b32 {sF0}, {sF0}, 1024",
              f"v_add_u32 v{vHO + 1}, {sF0}, v2", f"s_lshl_b32 {sF0}, {sRHO}, 7", f"s_add_u32 {sF0}, {sF0}, {CSB}",
              f"v_lshl_add_u32 v13, v3, 4, {sF0}", "v_xor_b32 v14, 128, v13",
              "v_and_b32 v2, 7, v0", "v_lshlrev_b32 v12, 4, v2", "v_lshl_add_u32 v12, v3, 3, v12", "v_bfe_u32 v3, v0, 4, 1",
              "v_lshl_add_u32 v12, v3, 2, v12", f"s_lshl_b32 {sF0}, {sW}, 7", f"s_add_u32 {sF0}, {sF0}, {CSB}",
              f"v_add_u32 v12, {sF0}, v12", "v_lshrrev_b32 v3, 3, v0", "v_lshlrev_b32 v3, 8, v3", f"v_lshl_add_u32 v{vCS}, v2, 4, v3",
              "v_and_b32 v15, 31, v0", "v_lshlrev_b32 v15, 4, v15"]
    tail_fill = [f"s_lshl_b32 {sHS0}, {sM}, 2", f"s_add_u32 {sHS0}, {sHS0}, {sW}", f"s_lshl_b32 {sPEND}, {sHS0}, 5",
                 f"s_mul_i32 {sHS0}, {sHS0}, {4 * 54}", f"s_lshl_b32 {sT2}, {sFT}, 1", f"s_add_u32 {sHS0}, {sHS0}, {sT2}",
                 f"s_lshl_b32 {sHS0}, {sHS0}, 10", f"s_add_u32 {sHS0}, {sHS0}, {HB}", f"s_add_u32 {sHS1}, {sHS0}, {2 * 54 * 1024}",
                 f"s_add_u32 {sPEND}, {sPEND}, {sFT}", f"s_lshl_b32 {sPEND}, {sPEND}, 7", f"s_add_u32 {sPEND}, {sPEND}, {HF}"]
    cs_fill = [("wvm", "csp")] + [f"v_add_f32 v{4 + c}, v{4 + c}, v{8 + c}" for c in range(4)] + ["s_nop 0",
               "v_permlane32_swap_b32 v4, v6", "v_permlane32_swap_b32 v5, v7", "s_nop 0", "v_add_f32 v4, v4, v6", "v_add_f32 v5, v5, v7",
               "s_nop 1", "v_permlane16_swap_b32 v4, v5", "s_nop 0", "v_add_f32 v4, v4, v5", "s_nop 1",
               "v_add_f32 v4, v4, v4 row_ror:8", ("lds", "ds_write_b32 v12, v4", "csw")]
    nf_total = len(fillq)

    def cost(it):
        if isinstance(it, str):
            return it.count("\n") + 1
        return 1
    CAP = opt.get("cap", 4)
    for k in range(40):
        stage, ks = divmod(k, 4)
        A = vAF + 16 * (k & 1)
        B = vBF + 8 * (k & 1)
        gk = [head[8 * k + i] + gaps[8 * k + i] for i in range(8)]
        body = [[] for _ in range(8)]
        if k + 1 < 40:
            for i, it in enumerate(frag_reads(k + 1)):
                body[i // 2].append(it)
        if k == 39:
            for j in range(4):
                body[2 + j // 2].append(("lds", f"ds_read_b128 {vr(64 + 4 * j, 4)}, v13 offset:{32 * j}", "cs0"))
            for j in range(4):
                dst = (4 + 4 * j) if j < 2 else (96 + 4 * (j - 2))
                body[4 + j // 2].append(("lds", f"ds_read_b128 {vr(dst, 4)}, v13 offset:{256 + 32 * j}", "cs0"))
        else:
            load = [sum(map(cost, gk[i])) + len(body[i]) + (1 if i in (3, 7) else 0) for i in range(8)]
            q = fillq if fillq else (tail_fill if (k >= 18 and tail_fill) else late_fill)
            if k == KCHK or (q is late_fill and (k < 10 or 29 <= k <= 34)):
                q = []
            if k == 29:
                assert not late_fill, len(late_fill)
            if k in (33, 34) and cs_fill:
                q = cs_fill
            cap = CAP + (1 if k < 9 else opt.get('capx', 1))
            for i in range(8):
                while q and load[i] + cost(q[0]) <= cap + (2 if cost(q[0]) > 1 else 0):
                    it = q.pop(0)
                    body[i].append(it)
                    load[i] += cost(it)
            if k == 2:
                assert nf_total - len(fillq) >= n_early, (nf_total - len(fillq), n_early)
            if k == 5:
                assert nf_total - len(fillq) >= n_a
            if k == 6:
                assert nf_total - len(fillq) >= n_a + 30
            if 8 * k + 8 >= gap_of("pks") - 1:
                assert nf_total - len(fillq) >= n_csum, (nf_total - len(fillq), n_csum)
            if k == 13:
                assert nf_total - len(fillq) >= n_early2
            if k == KCHK - 4:
                assert nf_total - len(fillq) >= n_mid
            if 8 * k + 8 > gap_of("stats") - 4:
                assert not fillq, (k, len(fillq))
        if ks == 3 and stage < 9:
            stamp(f"c_w{stage + 1}", cyc=True)
            g.wlg0()
            if stage == 0:
                g.wvm("lnst")
            if stage == 1:
                g.wvm("OPT")
            if stage == 3:
                g.wvm("pks")
            g.wvm(("dma", stage + 1))
            e("s_barrier")
            stamp(f"c_b{stage + 1}", cyc=True)
        for i in range(8):
            t, b = divmod(i, 2)
            if k == 0:
                g.wlg(("A", k, t))
                g.wlg(("B", k, b))
            elif i == 0:
                g.wlg(("A", k, 1))
            elif i == 4:
                g.wlg(("A", k, 3))
            D = vACC + 16 * (2 * t + b)
            Cs = "0" if k == 0 else vr(D, 16)
            e(f"v_mfma_f32_32x32x16_bf16 {vr(D, 16)}, {vr(A + 4 * t, 4)}, {vr(B + 4 * b, 4)}, {Cs}")
            for it in head[8 * k + i]:
                if isinstance(it, tuple) and it[2] == "pks":
                    g.wlg("pk")
                g.do(it)
            for it in body[i] + gaps[8 * k + i]:
                g.do(it)
    assert not tail_fill and not cs_fill and not late_fill, len(late_fill)
    stamp("c_g1e", cyc=True)
    stamp("g1_loop_end", flush=True)

    def csu0(i):
        return (4 + i) if i < 8 else (96 + i - 8)
    def csu1(i):
        return (104 + i) if i < 8 else (28 + i - 8)
    tmps = [24, 26, 36, 38]
    g.wvm("stats")
    g.wlg("cs0")
    e(f"s_cmp_lg_u32 {sC}, 0")
    e("s_cbranch_scc1 L_epiB")
    vm_save, lg_save = list(g.vm), list(g.lg)
    for variant in range(2):
        if variant == 1:
            align()
            g.lab("L_epiB")
            g.vm, g.lg = list(vm_save), list(lg_save)
        align()
        for ap in range(2):
            for b in range(2):
                gs, us = (ap, 2 + ap) if variant == 0 else (2 + ap, ap)
                Gt = vACC + 16 * (2 * gs + b)
                Ut = vACC + 16 * (2 * us + b)
                st = vSTA + 4 * b
                if ap == 0 and b == 1:
                    for j in range(4):
                        g.lds(f"ds_read_b128 {vr(80 + 4 * j, 4)}, v14 offset:{32 * j}", "cs1")
                    for j in range(4):
                        dst = (104 + 4 * j) if j < 2 else (28 + 4 * (j - 2))
                        g.lds(f"ds_read_b128 {vr(dst, 4)}, v14 offset:{256 + 32 * j}", "cs1")
                if ap == 1 and b == 0:
                    g.wlg("cs1")
                    align()
                csg = (lambda i: 64 + i) if ap == 0 else (lambda i: 80 + i)
                csu = csu0 if ap == 0 else csu1
                for c in range(2):
                    O = 16 if c == 0 else 20
                    ps = range(4 * c, 4 * c + 4)
                    for p in ps:
                        e(f"v_pk_fma_f32 {vr(Gt + 2 * p, 2)}, {vr(csg(2 * p), 2)}, {vr(st, 2)}, {vr(Gt + 2 * p, 2)} op_sel_hi:[1,0,1]")
                    for p in ps:
                        e(f"v_pk_mul_f32 {vr(tmps[p % 4], 2)}, {vr(Gt + 2 * p, 2)}, {vr(Gt + 2 * p, 2)}")
                    for p in ps:
                        t = tmps[p % 4]
                        e(f"v_pk_fma_f32 {vr(t, 2)}, {vr(t, 2)}, {vr(st, 2)}, {vr(st + 2, 2)} op_sel:[0,1,0] op_sel_hi:[1,1,0]")
                    for p in ps:
                        t = tmps[p % 4]
                        e(f"v_pk_mul_f32 {vr(t, 2)}, {vr(t, 2)}, {vr(Gt + 2 * p, 2)}")
                    for p in ps:
                        t = tmps[p % 4]
                        e(f"v_exp_f32 v{t}, v{t}")
                        e(f"v_exp_f32 v{t + 1}, v{t + 1}")
                    for p in ps:
                        e(f"v_pk_fma_f32 {vr(Ut + 2 * p, 2)}, {vr(csu(2 * p), 2)}, {vr(st, 2)}, {vr(Ut + 2 * p, 2)} op_sel_hi:[1,0,1]")
                    for p in ps:
                        t = tmps[p % 4]
                        e(f"v_pk_fma_f32 {vr(t, 2)}, {vr(t, 2)}, {vr(st + 2, 2)}, {vr(st + 2, 2)} op_sel:[0,1,1] op_sel_hi:[1,1,1]")
                    for p in ps:
                        t = tmps[p % 4]
                        e(f"v_rcp_f32 v{t}, v{t}")
                        e(f"v_rcp_f32 v{t + 1}, v{t + 1}")
                    for p in ps:
                        e(f"v_pk_mul_f32 {vr(Gt + 2 * p, 2)}, {vr(Gt + 2 * p, 2)}, {vr(Ut + 2 * p, 2)}")
                    for p in ps:
                        e(f"v_pk_mul_f32 {vr(Gt + 2 * p, 2)}, {vr(Gt + 2 * p, 2)}, {vr(tmps[p % 4], 2)}")
                    for p in ps:
                        e(f"v_cvt_pk_bf16_f32 v{O + p - 4 * c}, v{Gt + 2 * p}, v{Gt + 2 * p + 1}")
                    g.vmem(f"buffer_store_dwordx4 {vr(O, 4)}, v{vHO + ap}, {SWS}, {sHS0 if b == 0 else sHS1} offen offset:{512 * c} sc1", "hst")
        if variant == 0:
            e("s_branch L_epi_done")
    g.lab("L_epi_done")
    stamp("c_epe", cyc=True)
    stamp("g1_epi_end", flush=True)
    e(f"s_mov_b32 {sMASK}, {sPEND}")

    def rb2():
        for i in range(22):
            e(f"v_accvgpr_read_b32 v{GA + i}, a{AST + 8 + i}")
        for i in range(2, 8):
            e(f"v_accvgpr_read_b32 v{AK + i}, a{AS2 + 1 + i}")
        e("v_mov_b32 v4, 0\nv_mov_b32 v5, 0\nv_mov_b32 v6, 0\nv_mov_b32 v7, 0")
        e(f"ds_write_b128 v{vZ}, {vr(4, 4)}")
    rb2()

    Greg = [[224 + 4 * i for i in range(8)], [192 + 4 * i for i in range(8)]]
    FB = [128, 160]
    CACC = 64
    HRING = [16 + 4 * i for i in range(12)] + [104 + 4 * i for i in range(3)] + [128 + 4 * i for i in range(26)]
    NE = opt.get("ne", 8)
    P2 = opt.get("p2", 40)
    NB = len(HRING)
    YS, DK = 100, 101

    def hload(i):
        k, st = divmod(i, 14)
        r = HRING[i % NB]
        if st == 13:
            return [f"s_cmp_lt_u32 {sW}, 2\ns_cselect_b32 {sT4}, s{sG2 + 4 * k + 3}, {OOB}",
                    ("vm", f"buffer_load_dwordx4 {vr(r, 4)}, v1, {SWS}, {sT4} offen offset:1024 sc1", ("h", i))]
        return [("vm", f"buffer_load_dwordx4 {vr(r, 4)}, v1, {SWS}, s{sG2 + 4 * k + st // 4} offen offset:{(st % 4) * 1024} sc1", ("h", i))]

    def conv(last):
        tag = "L" if last else "E"
        g.lab("L_conv_last" if last else "L_conv_early")
        g.vm = ["u", "u"]
        g.lg = []
        def wd_e(phi):
            its = wd_load(phi)
            if len(its) > 1:
                its.insert(1, f"s_or_b32 {sT5}, {sT5}, {sK0}")
            return its
        if last:
            wq = [[f"s_add_u32 m0, {sXT}, {1024 * kk}", "s_nop 0",
                   ("vm", f"buffer_load_dwordx4 v{12 + kk}, {SX}, {sXO} offen lds", ("xt", 0))] for kk in range(3)]
            wq += [wd_load(phi) for phi in range(P1, 70)]
            for i7 in range(7):
                e(f"v_accvgpr_read_b32 v{9 + i7}, a{AS2 + 14 + i7}")
        else:
            wq = [wd_e(phi) for phi in range(0, P1)]
            g.vmem(f"buffer_load_dword v{vFL}, v{vFA + 1}, {SWS}, 0 offen sc1", "wfp")
        def wdl(n=1):
            for _ in range(n):
                if wq:
                    for it in wq.pop(0):
                        g.do(it)
        EG = 128
        for ch in range(2):
            for k in range(11):
                g.lds(f"ds_read_b32 v{EG + 12 * ch + k}, v{GA + 11 * ch + k}", ("eg", ch))
        g.lds(f"ds_read_b64 {vr(YS, 2)}, v{vYS} offset:{YSO}", "ysc")
        if last:
            wdl(2)
        g.wvm("u")
        g.lds(f"ds_write_b128 v{vUW}, {vr(vU, 4)}", "uw")
        g.lds(f"ds_write_b128 v{vUW}, {vr(vU + 4, 4)} offset:512", "uw")
        if last:
            e(f"s_or_b32 {sT1}, s2, {sW}")
            e(f"s_cmp_eq_u32 {sT1}, 0")
            e(f"s_cselect_b32 {sT1}, {EPOCH}, {OOB}")
            flag_store(sT1)
        EO = 64
        for ch in range(2):
            g.wlg(("eg", ch))
            align()
            for s in range(4):
                o = EO + 16 * ch + 4 * s
                for j in range(4):
                    e(f"v_cvt_pk_f16_f32 v{o + j}, v{EG + 12 * ch + s + 2 * j}, v{EG + 12 * ch + s + 2 * j + 1}")
                g.lds(f"ds_write_b128 v{vRW}, {vr(o, 4)} offset:{s * RCS + 1024 * ch}", "rw")
                if last and s % 2 == 1:
                    wdl()
        e(f"s_waitcnt vmcnt({len(g.vm) if last else 0})")
        flag_store(sMASK)
        if last:
            wdl()
        else:
            e(f"v_cmp_ne_u32 vcc, v{vTAG}, v{vFL}")
            e("s_nop 0")
            e("s_cmp_eq_u64 vcc, 0")
            e(f"s_cselect_b32 {sK0}, 0, {OOB}")
        extra = [f"v_accvgpr_read_b32 v{4 + i}, a{AS2 + 9 + i}" for i in range(5)]
        extra += [f"s_lshl_b32 {sT1}, {sCP}, 1", f"s_add_u32 {sT1}, {sT1}, {sC}", f"s_lshl_b32 {sT1}, {sT1}, 12",
                  f"s_lshl_b32 {sT3}, {sRHO}, 11", f"s_add_u32 {sT1}, {sT1}, {sT3}", f"s_add_u32 {sHS0}, {sT1}, {ST}",
                  f"s_lshl_b32 {sT2}, {sCP}, 5", f"s_add_u32 {sT2}, {sT2}, {sW}",
                  f"s_lshl_b32 {sT2}, {sT2}, 2", f"s_add_u32 {sPEND}, {sT2}, {SF}"]
        if last:
            extra += [f"v_accvgpr_read_b32 v{vFA + i}, a{AS2 + 21 + i}" for i in range(2)]
            extra += ["v_min_u32 v3, 53, v0", "v_lshlrev_b32 v3, 7, v3",
                      f"s_lshl_b32 {sT0}, {sDT}, 2", f"s_add_u32 {sT0}, {sT0}, {sW}", f"s_mul_i32 {sT0}, {sT0}, {54 * 128}",
                      f"s_mul_i32 {sHS1}, {sLT}, {4 * 54 * 1024}", f"s_add_u32 {sHS1}, {sHS1}, {sT0}", f"s_add_u32 {sHS1}, {sHS1}, {HB}"]
        g.wlg0()
        e("s_barrier")
        stamp("c_cs" + tag, cyc=True)
        stamp("conv_start" + tag)

        def cls_reads(dl):
            bf = dl & 1
            out = []
            for s in range(8):
                out.append(("lds", f"ds_read_b128 {vr(Greg[bf][s], 4)}, v{vGB} offset:{512 * s + 64 * (3 - dl)}", ("G", dl, s)))
                off = 64 * (59 - dl - 8 * s)
                out.append(("lds", f"ds_read_b64 {vr(FB[bf] + 4 * s, 2)}, v{vFB} offset:{off}", ("F", dl, s)))
                out.append(("lds", f"ds_read_b64 {vr(FB[bf] + 4 * s + 2, 2)}, v{vFB} offset:{off + 8}", ("F", dl, s)))
            return out
        for it in cls_reads(0):
            g.do(it)
        order = sorted([(s, gg) for s in range(8) for gg in range(8) if s + gg < 8], key=lambda x: (max(x), x[0] + x[1]))
        seen = set()
        hq = []
        US, UD = 2, 96
        for dl in range(4):
            bf = dl & 1
            nxt = cls_reads(dl + 1) if dl < 3 else []
            if dl == 3:
                nxt = [("lds", f"ds_read_b64 {vr(128 + 2 * tt, 2)}, v6 offset:{512 * tt}", "us") for tt in range(4)]
                nxt += [None] * 6 + [("wlg", "us")]
                for tt in range(4):
                    for i in range(4):
                        src = 128 + 2 * tt + (i >> 1)
                        nxt.append(f"v_fma_mix_f32 v{136 + 4 * tt + i}, v{src}, v{DK}, 0 op_sel:[{i & 1},0,0] op_sel_hi:[1,0,0]")
            if dl > 0:
                g.wlg(("F", dl, 7))
            for mi, (s, gg) in enumerate(order):
                t = s + gg
                if dl == 0:
                    g.wlg(("G", dl, gg))
                    g.wlg(("F", dl, s))
                Cs = "0" if t not in seen else vr(CACC + 4 * t, 4)
                seen.add(t)
                e(f"v_mfma_f32_16x16x32_f16 {vr(CACC + 4 * t, 4)}, {vr(FB[bf] + 4 * s, 4)}, {vr(Greg[bf][gg], 4)}, {Cs}")
                start = 8 if dl == 0 else 1
                if mi >= start and nxt:
                    it = nxt.pop(0)
                    if it is not None:
                        g.do(it)
                elif extra:
                    g.do(extra.pop(0))
                if mi % 2 == 1 and extra and mi >= start:
                    g.do(extra.pop(0))
                mc = 36 * dl + mi
                if mc % 4 == 2:
                    nphi = wq[0][-1][2][1] if wq else 0
                    if last and mc == opt.get("hfp", 98):
                        assert not extra
                        g.vmem(f"buffer_load_dword v{vFL}, v{vFA}, {SWS}, 0 offen sc1", "hfp")
                    elif wq and not (last and extra and nphi >= 48) and not (nphi >= 64 and dl < 3):
                        wdl()
            assert not nxt, len(nxt)
        while wq and not last:
            wdl()
        assert not wq and not extra, (len(wq), len(extra))
        if last:
            g.wvm("hfp")
            e(f"v_cmp_ne_u32 vcc, v{vTAG}, v{vFL}")
            e("s_nop 0")
            e("s_cmp_eq_u64 vcc, 0")
            e(f"s_cselect_b32 {sK1}, 1, 0")
            e(f"s_cselect_b32 {sT0}, 0, {OOB}")
            hq.append([f"s_or_b32 {sT4}, {sHS1}, {sT0}", ("vm", f"buffer_load_dword v{vFL + 4}, v3, {SWS}, {sT4} offen sc1", "ht")])
            for i in range(NE):
                pre_ = [f"s_or_b32 {sT4}, s{sG2 + i // 4}, {sT0}"] if i % 4 == 0 else []
                hq.append(pre_ + [("vm", f"buffer_load_dwordx4 {vr(HRING[i], 4)}, v1, {SWS}, {sT4} offen offset:{(i % 4) * 1024} sc1", ("he", i))])
        def hl(n=1):
            for _ in range(n):
                if hq:
                    for it in hq.pop(0):
                        g.do(it)
        hl(2)
        stamp("c_ce" + tag, cyc=True)
        stamp("conv_end" + tag)
        lr1 = g.newlab("Lfin1")
        lfd = g.newlab("Lfind")
        e(f"s_cmp_lg_u32 {sRHO}, 0")
        e(f"s_cbranch_scc1 {lr1}")
        lg_save, pst_save, sf_save = list(g.lg), list(g.pst), list(g.sfree)
        for rho in range(2):
            if rho == 1:
                g.lab(lr1)
                g.lg, g.pst, g.sfree = list(lg_save), list(pst_save), list(sf_save)
            own = CACC + 16 * rho
            oth = CACC + 16 * (1 - rho)
            g.nop(6)
            for tt in range(4):
                g.lds(f"ds_write_b128 v4, {vr(oth + 4 * tt, 4)} offset:{PB + 1024 * tt}", "pw")
            align()
            for tt in range(4):
                for i in range(4):
                    e(f"v_fma_f32 v{136 + 4 * tt + i}, v{own + 4 * tt + i}, v{YS}, v{136 + 4 * tt + i}")
            if rho == 0:
                e(f"s_branch {lfd}")
        g.lab(lfd)
        hl(1)
        g.wlg0()
        e("s_barrier")
        for tt in range(4):
            g.lds(f"ds_read_b128 {vr(152 + 4 * tt, 4)}, v5 offset:{PB + 1024 * tt}", ("pr", tt))
        hl(2)
        for tt in range(4):
            g.wlg(("pr", tt))
            for i in range(4):
                e(f"v_fmac_f32 v{136 + 4 * tt + i}, v{152 + 4 * tt + i}, v{YS}")
            for h in range(2):
                e(f"v_cvt_pk_bf16_f32 v{128 + 2 * tt + h}, v{136 + 4 * tt + 2 * h}, v{136 + 4 * tt + 2 * h + 1}")
            g.lds(f"ds_write_b64 v7, {vr(128 + 2 * tt, 2)} offset:{512 * tt}", "sw")
            if tt == 1:
                hl(1)
        hl(1)
        g.wlg0()
        for j in range(2):
            g.lds(f"ds_read_b128 {vr(88 + 4 * j, 4)}, v8 offset:{1024 * j}", ("sr", j))
        hl(2)
        assert not hq
        if not last:
            e(f"s_add_u32 {sCP}, {sCP}, 40")
            for i in range(22):
                e(f"v_add_u32 v{GA + i}, {2 * TC}, v{GA + i}")
            e(f"v_add_u32 v{vYS}, {2 * TC}, v{vYS}")
        for j in range(2):
            g.wlg(("sr", j))
            g.vmem(f"buffer_store_dwordx4 {vr(88 + 4 * j, 4)}, v1, {SWS}, {sHS0} offen offset:{1024 * j} sc1", "sst")
        if not last:
            for it in u_loads(sCP, 2):
                g.do(it)
            e(f"s_mov_b32 {sMASK}, {sPEND}")
            e(f"s_sub_u32 {sRND}, {sRND}, 1")
            e(f"s_cmp_lg_u32 {sRND}, 1")
            e("s_cbranch_scc1 L_conv_early")

    conv(True)

    e(f"s_cmp_lg_u32 {sK1}, 0")
    e("s_cbranch_scc1 L_hready")
    poll_block(vFA, False)
    e(f"buffer_load_dword v{vFL + 4}, v3, {SWS}, {sHS1} offen sc1")
    for i in range(NE):
        for it in hload(i):
            e(it[1] if isinstance(it, tuple) else it)
    g.lab("L_hready")
    stamp("c_g2s", cyc=True)
    stamp("g2_start")
    g.vm = [("h", i) for i in range(NE)]
    AC = [64, 84]
    lateq = [hload(i) for i in range(NE, NB)]
    fq = ["v_lshrrev_b32 v8, 3, v0", "v_lshlrev_b32 v8, 12, v8", "v_and_b32 v2, 7, v0", "v_lshl_add_u32 v8, v2, 4, v8",
          f"s_mul_i32 {sT1}, {sW}, 15360", f"v_add_u32 v2, {sT1}, v1",
          "v_lshrrev_b32 v3, 2, v0", "v_lshlrev_b32 v3, 7, v3", "v_and_b32 v4, 3, v0", "v_lshl_add_u32 v3, v4, 3, v3",
          f"s_lshl_b32 {sT1}, {sW}, 5", f"s_add_u32 {sT1}, {sT1}, {STB}", f"v_add_u32 v3, {sT1}, v3",
          "v_and_b32 v4, 15, v0", "v_mul_u32_u24 v4, 160, v4", "v_lshrrev_b32 v5, 4, v0", "v_lshl_add_u32 v4, v5, 3, v4",
          f"v_add_u32 v4, {sXT}, v4", f"v_add_u32 v5, {sXT}, v1",
          f"s_lshl_b32 {sT2}, {sW}, 10", f"s_add_u32 {sHS1}, {sT2}, {STB}"]
    XR, XU = 16, 28
    SFP = opt.get("sfp", 38)
    for i in range(56):
        k, st = divmod(i, 14)
        A0 = AC[k & 1]
        g.wvm(("h", i))
        r = HRING[i % NB]
        extra = [[] for _ in range(5)]
        if st == 1 and k >= 1:
            pa = AC[(k - 1) & 1]
            for j in range(5):
                extra[j].append(("lds", f"ds_write_b128 v{9 + k - 1}, {vr(pa + 4 * j, 4)} offset:{1024 * j}", "exw"))
        for j in ((i % 4,) if i % 4 else (0, 4)):
            if lateq:
                extra[j] += lateq.pop(0)
        if i == NE:
            def sflag():
                n = sum(1 for t in g.vm if t[0] == "h" and t[1] >= NE)
                e(f"s_waitcnt vmcnt({n})")
                flag_store(sPEND)
            extra[1].append(sflag)
        if 22 <= i < 30:
            for j in (1, 3, 4):
                if fq:
                    extra[j].append(fq.pop(0))
        if i == SFP:
            extra[0].append(("vm", f"buffer_load_dwordx4 {vr(vFL, 4)}, v{vFA + 1}, {SWS}, 0 offen sc1", ("sfp",)))
        if i == SFP + 6:
            c4 = check4(vFL)
            extra[0] += [("wvm", ("sfp",))] + c4[0:2]
            extra[1] += c4[2:4]
            extra[2] += c4[4:6]
            def sfchk():
                sl = g.newlab("Lslow")
                bk = g.newlab("Lback")
                e(c4[6])
                e(f"s_cbranch_vccnz {sl}")
                g.lab(bk)
                g.slow.append((sl, bk, [(vFA + 1, True)]))
            extra[3].append(sfchk)
        if i == SFP + 7:
            extra[0] += [f"s_mov_b32 m0, {sHS1}"]
            extra[1] += [("vm", f"buffer_load_dwordx4 v8, {SWS}, {sSTO} offen sc1 lds", ("stl",)), f"s_add_u32 m0, {sHS1}, 4096"]
            extra[2] += [f"s_add_u32 {sT3}, {sSTO}, {32 * 4096}"]
            extra[3] += [("vm", f"buffer_load_dwordx4 v8, {SWS}, {sT3} offen sc1 lds", ("stl",)), f"s_add_u32 m0, {sHS1}, 8192"]
            extra[4] += [f"s_add_u32 {sT3}, {sSTO}, {64 * 4096}", f"s_cmp_lt_u32 {sW}, 2\ns_cselect_b32 {sT3}, {sT3}, {OOB}"]
        if i == SFP + 8:
            extra[0] += [("vm", f"buffer_load_dwordx4 v8, {SWS}, {sT3} offen sc1 lds", ("stl",))]
        for j in range(5):
            phi = st * 5 + j
            src = ar(4 * phi, 4) if phi < 64 else vr(vWDV + 4 * (phi - 64), 4)
            Cs = "0" if st == 0 else vr(A0 + 4 * j, 4)
            e(f"v_mfma_f32_16x16x32_bf16 {vr(A0 + 4 * j, 4)}, {src}, {vr(r, 4)}, {Cs}")
            for it in extra[j]:
                g.do(it)
        if i + NB < 56:
            lateq.append(hload(i + NB))
    assert not lateq and not fq
    stamp("c_g2e", cyc=True)
    stamp("g2_loop_end")
    g.wall()
    e("s_barrier")
    A0 = AC[1]
    for q in range(15):
        g.lds(f"ds_read_b128 {vr(128 + 4 * q, 4)}, v2 offset:{EXB + 1024 * q}", ("exr", q))
    for j in range(5):
        g.lds(f"ds_read_b64_tr_b16 {vr(192 + 2 * j, 2)}, v3 offset:{2048 * j}", ("s", j))
        g.lds(f"ds_read_b64 {vr(202 + 2 * j, 2)}, v4 offset:{32 * j}", ("x", j))
    e(f"s_mov_b32 {sT2}, {hex(f2u(-LOG2E))}")
    e(f"s_mov_b32 {sT3}, {hex(f2u(-LOG2E))}")
    e(f"s_mov_b32 {sMASK}, 0xffff0000")
    for k in range(3):
        for j in range(5):
            if j in (0, 3):
                g.wlg(("exr", 5 * k + (2 if j == 0 else 4)))
            for h in range(2):
                e(f"v_pk_add_f32 {vr(A0 + 4 * j + 2 * h, 2)}, {vr(A0 + 4 * j + 2 * h, 2)}, {vr(128 + 4 * (5 * k + j) + 2 * h, 2)}")
    E_ = 128
    align()
    for p in range(10):
        e(f"v_pk_mul_f32 {vr(E_ + 2 * p, 2)}, {vr(A0 + 2 * p, 2)}, s[56:57]")
    for p in range(20):
        e(f"v_exp_f32 v{E_ + p}, v{E_ + p}")
    g.wlg0()
    SU, XU = 152, 172
    for p in range(10):
        e(f"v_lshlrev_b32 v{SU + 2 * p}, 16, v{192 + p}")
        e(f"v_and_b32 v{SU + 2 * p + 1}, {sMASK}, v{192 + p}")
    align()
    for p in range(10):
        e(f"v_pk_add_f32 {vr(E_ + 2 * p, 2)}, {vr(E_ + 2 * p, 2)}, 1.0 op_sel_hi:[1,0]")
    for p in range(20):
        e(f"v_rcp_f32 v{E_ + p}, v{E_ + p}")
    for p in range(10):
        e(f"v_pk_mul_f32 {vr(A0 + 2 * p, 2)}, {vr(A0 + 2 * p, 2)}, {vr(SU + 2 * p, 2)}")
    for p in range(10):
        e(f"v_lshlrev_b32 v{XU + 2 * p}, 16, v{202 + p}")
        e(f"v_and_b32 v{XU + 2 * p + 1}, {sMASK}, v{202 + p}")
    for p in range(10):
        e(f"v_pk_fma_f32 {vr(A0 + 2 * p, 2)}, {vr(A0 + 2 * p, 2)}, {vr(E_ + 2 * p, 2)}, {vr(XU + 2 * p, 2)}")
    for p in range(10):
        e(f"v_cvt_pk_bf16_f32 v{192 + p}, v{A0 + 2 * p}, v{A0 + 2 * p + 1}")
    for j in range(5):
        g.lds(f"ds_write_b64 v4, {vr(192 + 2 * j, 2)} offset:{32 * j}", "ow")
    g.wlg0()
    for kk in range(3):
        g.lds(f"ds_read_b128 {vr(128 + 4 * kk, 4)}, v5 offset:{1024 * kk}", ("or", kk))
    osc = opt.get("outsc", "")
    for kk in range(3):
        g.wlg(("or", kk))
        g.vmem(f"buffer_store_dwordx4 {vr(128 + 4 * kk, 4)}, v{(12, 13, 15)[kk]}, {SOUT}, {sXO} offen{osc}", "out")
    if diag:
        g.wvm0()
        stamp("end", flush=True)
        e(f"s_mov_b32 s88, s16\ns_mov_b32 s89, s17\ns_mov_b32 s90, 0x1000000\ns_mov_b32 s91, 0x20000")
        e(f"s_lshl_b32 {sT1}, s2, 2\ns_add_u32 {sT1}, {sT1}, {sW}\ns_lshl_b32 {sT1}, {sT1}, 8\ns_add_u32 {sT1}, {sT1}, {TS_BASE}")
        e("v_lshlrev_b32 v2, 2, v0")
        e(f"buffer_store_dword v127, v2, s[88:91], {sT1} offen")
    g.lab("L_end")
    e("s_endpgm")
    e(".p2align 6")
    g.lab("L_spare")
    g.vm = vm0
    g.lg = []
    g.pst = []
    g.sfree = [92, 100]
    if diag:
        e("v_mov_b32 v127, 0")
        e("v_writelane_b32 v127, s92, 60")
    for q in range(5):
        g.vmem(f"buffer_load_dwordx2 {vr(LX + 2 * q, 2)}, v2, {SX}, {sT0} offen offset:{256 * q}", "ln")
    e("s_add_u32 s66, s88, L_spare - L_pc + 256")
    e("s_addc_u32 s67, s89, 0")
    e("s_mov_b32 s68, s66\ns_mov_b32 s69, s67\ns_mov_b32 s70, 0x2000\ns_mov_b32 s71, 0x20000")
    e("v_and_b32 v10, 15, v0")
    e(f"s_lshl_b32 {sT1}, {sW}, 11")
    e("v_lshlrev_b32 v10, 7, v10")
    g.vmem(f"buffer_load_dword v{vFL + 4}, v10, s[68:71], {sT1} offen", "cpf")
    rest_setup()
    rest_loads()
    for r3 in range(3):
        run_items(param_units(r3))
    table_code(TB)
    aE, aL2 = addr_items(XYB_SP, TB)
    run_items(aE + aL2 + gather_items(TB))
    g.wvm("ln")
    stamp("ln_data")
    ln_code()
    ln_tail()
    stamp("ln_done", flush=True)
    e(f"s_lshl_b32 {sMASK}, s2, 2")
    e(f"s_add_u32 {sMASK}, {sMASK}, {LNF}")
    e(f"s_cmp_eq_u32 {sW}, 0")
    e(f"s_cselect_b32 {sMASK}, {sMASK}, {OOB}")
    e(f"v_add_u32 v{vFA}, {LNF}, v1")
    e("v_min_u32 v2, 53, v0")
    e(f"s_lshr_b32 {sF0}, {sDT}, 1")
    e(f"s_lshl_b32 {sF0}, {sF0}, 8")
    e(f"s_add_u32 {sF0}, {sF0}, {WF}")
    e(f"v_lshl_add_u32 v{vFA + 1}, v2, 2, {sF0}")
    e(f"s_mov_b32 {sK1}, {sRND}")
    rb1()
    g.wvm("par")
    tag_code()
    g.lab("L_kgen")
    g.vm = []
    kgen("s", [], 1)
    g.wall()
    e("s_barrier")
    flag_store(sMASK)
    e(f"s_mov_b32 {sMASK}, {OOB}")
    kgen_mfma()
    e(f"s_sub_u32 {sK1}, {sK1}, 1")
    e(f"s_cmp_eq_u32 {sK1}, 0")
    e("s_cbranch_scc1 L_kdone")
    e(f"s_add_u32 {sKR}, {sKR}, {2 * TC}")
    for i in range(8):
        e(f"v_add_u32 v{SC + i}, {2 * TC}, v{SC + i}")
    for i in range(6):
        e(f"v_accvgpr_mov_b32 a{APAR + i}, a{APAR + 8 + i}")
        e(f"v_accvgpr_mov_b32 a{APAR + 8 + i}, a{APAR + 16 + i}")
    e("s_waitcnt lgkmcnt(0)")
    e("s_barrier")
    e("s_branch L_kgen")
    g.lab("L_kdone")
    stamp("kdone", flush=True)
    e(f"s_cmp_lg_u32 {sW}, 0")
    e("s_cbranch_scc1 L_sp_polled")
    poll_block(vFA, True, sleep=16)
    g.lab("L_sp_polled")
    e("s_waitcnt lgkmcnt(0)")
    e("s_barrier")
    stamp("sp_lnf", flush=True)
    run_items(u_loads(sCP, 2))
    rb2()
    conv(False)
    e(f"s_cmp_eq_u32 {sK0}, 0")
    e("s_cbranch_scc1 L_conv_last")
    poll_block(vFA + 1, False, sleep=10)
    for phi in range(P1):
        for it in wd_load(phi):
            e(it[1] if isinstance(it, tuple) else it)
    e("s_branch L_conv_last")
    for (sl, bk, lst) in g.slow:
        g.lab(sl)
        g.sfree = [88, 90]
        g.pst = []
        if diag:
            e("s_waitcnt lgkmcnt(0)")
        for pi, (av, n4) in enumerate(lst):
            stamp(f"slow{sl[-2:]}_{pi}", flush=True)
            poll_block(av, n4)
        stamp(f"slow{sl[-2:]}_x", flush=True)
        e(f"s_branch {bk}")
    g.lab("L_codeend")

    hdr = [f"; @launch grid=(256,1,1) block=(256,1,1) lds={LDS_TOTAL}",
           '.amdgcn_target "amdgcn-amd-amdhsa--gfx950"', ".text", f".globl {KNAME}", ".p2align 8",
           f".type {KNAME},@function", f"{KNAME}:"]
    ftr = ['.section .rodata,"a"', ".p2align 6", f".amdhsa_kernel {KNAME}",
           "  .amdhsa_next_free_vgpr 512", "  .amdhsa_next_free_sgpr 102", "  .amdhsa_accum_offset 256",
           "  .amdhsa_group_segment_fixed_size 0", "  .amdhsa_kernarg_size 112", "  .amdhsa_user_sgpr_count 2",
           "  .amdhsa_user_sgpr_kernarg_segment_ptr 1", "  .amdhsa_system_sgpr_workgroup_id_x 1",
           "  .amdhsa_float_denorm_mode_32 3",
           ".end_amdhsa_kernel"]
    txt = "\n".join(hdr + g.L + ftr) + "\n"
    if diag:
        txt = txt + "; STAMPS " + ",".join(ts_names) + "\n"
    return txt


if __name__ == "__main__":
    diag = "--diag" in sys.argv
    opt = {}
    for a in sys.argv[1:]:
        if a.startswith("--") and "=" in a:
            k, v = a[2:].split("=")
            opt[k] = int(v) if v.lstrip("-").isdigit() else v.replace("_", " ")
    out = [a for a in sys.argv[1:] if not a.startswith("--")]
    s = gen(diag=diag, opt=opt)
    path = out[0] if out else "recurrent_scan__ssm_conv_s4d__geglu_ffn__prompt.s"
    open(path, "w").write(s)
    print("wrote", path, len(s), "bytes", s.count("\n"), "lines")
```

```python
import sys, struct, math

KNAME = "recurrent_scan__ssm_conv_s4d__geglu_ffn__prompt_kernel"

EPOCH = 0x0
LNF = 0x1000
WF = 0x4400
STATS = 0x8000
XNT = 0x10000
ST = 0x290000
WDP = 0x510000
HB = 0x730000
CSP = 0xDF0000
HF = 0xE26000
SF = 0xE46000
WS_END = 0xE50000
TS_BASE = 0xE60000

SLOT = 49152
MISC = 147456
LNP = 1344
CSB = MISC + 10752 + 5120
XYP = 544
YR0 = 21
XYC = 53 * XYP
XYB_SP, XYB_G1 = 0, 2 * SLOT
LNB = 2 * SLOT
TB_G1 = 157696
PB = 0
UBASE = 69632
UC = 4608
RB = UBASE + 2 * UC
RCS = 4160
RC = 4 * RCS
TC = 2624
TB = MISC
YSO = 650 * 4
SOB = 16384
EXB = 24576
XTB = 112128
STB = XTB + 12288
LDS_TOTAL = 163840
OOB = 0x7fff0000

def f2u(x):
    return struct.unpack("<I", struct.pack("<f", x))[0]

LOG2E = 1.4426950408889634
C0 = -2.0 * math.sqrt(2.0 / math.pi) * LOG2E
C1 = C0 * 0.044715


class G:
    def __init__(self):
        self.L = []
        self.vm = []
        self.lg = []
        self.nlab = 0
        self.slow = []
        self.skip = set()
        self.pst = []
        self.sfree = [92, 100]

    def flush_stamps(self):
        for (sr, lane) in self.pst:
            self.e(f"v_writelane_b32 v127, s{sr}, {lane}")
            self.sfree.append(sr)
        self.pst = []

    def e(self, s):
        for ln in s.split("\n"):
            self.L.append("    " + ln)

    def lab(self, name):
        self.L.append(name + ":")

    def newlab(self, p="L"):
        self.nlab += 1
        return f"{p}_{self.nlab}"

    def vmem(self, s, tag=None):
        if tag in self.skip:
            return
        self.e(s)
        self.vm.append(tag)

    def lds(self, s, tag=None):
        self.e(s)
        self.lg.append(tag)

    def _n(self, q, tag):
        idx = max(i for i, t in enumerate(q) if t == tag)
        return idx, sum(1 for t in q[idx + 1:] if t != "OPT")

    def wvm(self, tag):
        if tag not in self.vm:
            return
        idx, n = self._n(self.vm, tag)
        self.e(f"s_waitcnt vmcnt({min(n, 63)})")
        self.vm = self.vm[idx + 1:]

    def wlg(self, tag):
        if tag not in self.lg:
            return
        idx, n = self._n(self.lg, tag)
        self.e(f"s_waitcnt lgkmcnt({min(n, 15)})")
        self.lg = self.lg[idx + 1:]

    def wvm0(self):
        self.e("s_waitcnt vmcnt(0)")
        self.vm = []

    def wlg0(self):
        self.e("s_waitcnt lgkmcnt(0)")
        self.lg = []
        self.flush_stamps()

    def wall(self):
        self.e("s_waitcnt vmcnt(0) lgkmcnt(0)")
        self.vm = []
        self.lg = []
        self.flush_stamps()

    def nop(self, n):
        while n > 0:
            k = min(n, 16)
            self.e(f"s_nop {k - 1}")
            n -= k

    def do(self, item):
        if callable(item):
            item()
        elif isinstance(item, tuple):
            kind = item[0]
            if kind == "vm":
                self.vmem(item[1], item[2])
            elif kind == "lds":
                self.lds(item[1], item[2])
            elif kind == "wvm":
                self.wvm(item[1])
            elif kind == "wlg":
                self.wlg(item[1])
            else:
                raise ValueError(kind)
        else:
            self.e(item)


def vr(a, n):
    return f"v[{a}:{a + n - 1}]"


def ar(a, n):
    return f"a[{a}:{a + n - 1}]"


SX, SWG, SWU, SWS, SOUT, SWD = "s[4:7]", "s[8:11]", "s[12:15]", "s[16:19]", "s[20:23]", "s[24:27]"
P_LAR, P_AIM, P_CRE, P_CIM, P_LDT, P_DSK = "s[28:29]", "s[30:31]", "s[32:33]", "s[34:35]", "s[36:37]", "s[38:39]"
sW, sTAG, sM, sFT, sISG1, sCP, sRND, sSP = "s40", "s41", "s42", "s43", "s44", "s45", "s46", "s47"
sXCD, sQ = "s48", "s49"
sXM0, sWM0, sXS, sWSO = "s50", "s51", "s52", "s53"
sT0, sT1, sT2, sT3, sT4, sT5 = "s54", "s55", "s56", "s57", "s58", "s59"
sMASK, sCNT = "s60", "s61"
sRHO, sC = "s62", "s63"
sHS0, sHS1 = "s64", "s65"
sG2 = 66
STW = "s[96:99]"
sF0, sF1, sF2 = "s0", "s1", "s3"
sLT, sDT = "s82", "s83"
sWDS = "s84"
sPEND, sXO = "s85", "s86"
sKR = "s87"
sXT, sSTO = "s94", "s95"
sK0, sK1 = "s96", "s97"

vT = 2
vXO = 16
vWO = 24
vBA = 26
vAA = 34
vCS = 42
vHO = 44
vTO = 46
vSTA = 48
vU = 56
vAF = 64
vBF = 96
vPAR = 112
vFA = 118
vEP = 120
vFL = 122
vACC = 128
SC = 56
GA = 24
AST = 224
AS2 = 192
PKB = MISC
vWDV = 232


def gen(diag=False, opt=None):
    opt = opt or {}
    TOUCH = opt.get("touch", 0)
    P1 = opt.get("p1", 32)
    KCHK = opt.get("kchk", 29)
    g = G()
    e = g.e
    if opt.get('nolnst'):
        g.skip.add('lnst')
    ts_names = []
    vTAG, vL0 = vEP, vEP + 1

    def stamp(name, cyc=False, flush=False):
        if not diag:
            return
        if name not in ts_names:
            ts_names.append(name)
        i = ts_names.index(name)
        if not g.sfree:
            g.wlg0()
        sr = g.sfree.pop(0)
        e(f"{'s_memtime' if cyc else 's_memrealtime'} s[{sr}:{sr + 1}]")
        g.pst.append((sr, i))
        if flush:
            g.wlg0()

    def interleave(fn, units, every):
        n0 = len(g.L)
        fn()
        body = g.L[n0:]
        del g.L[n0:]
        cnt = 0
        for bi, ln in enumerate(body):
            g.L.append(ln)
            cnt += 1
            nxt_ = body[bi + 1].strip() if bi + 1 < len(body) else ""
            if nxt_.startswith(("s_cselect", "s_addc", "s_cbranch")):
                continue
            if units and cnt >= every:
                u = units[0]
                if isinstance(u, tuple) and u[0] == "m0":
                    e(u[1])
                    units.pop(0)
                    cnt = every - 1
                else:
                    g.do(u)
                    units.pop(0)
                    cnt = 0 if isinstance(u, tuple) else every - 1

    def align():
        e(".p2align 3")

    def red(op, v, t, full):
        for dpp in ("quad_perm:[1,0,3,2]", "quad_perm:[2,3,0,1]", "row_half_mirror", "row_mirror"):
            g.nop(2)
            e(f"{op} v{v}, v{v}, v{v} {dpp}")
        e(f"v_mov_b32 v{t}, v{v}")
        g.nop(2)
        e(f"v_permlane16_swap_b32 v{v}, v{t}")
        g.nop(1)
        e(f"{op} v{v}, v{v}, v{t}")
        if full:
            e(f"v_mov_b32 v{t}, v{v}")
            g.nop(2)
            e(f"v_permlane32_swap_b32 v{v}, v{t}")
            g.nop(1)
            e(f"{op} v{v}, v{v}, v{t}")

    def bf16round(v):
        e(f"v_cvt_pk_bf16_f32 v{v}, v{v}, v{v}")
        e(f"v_lshlrev_b32 v{v}, 16, v{v}")

    def check4(tmp):
        return [f"v_xor_b32 v{tmp}, v{vTAG}, v{tmp}", f"v_xor_b32 v{tmp + 1}, v{vTAG}, v{tmp + 1}",
                f"v_xor_b32 v{tmp + 2}, v{vTAG}, v{tmp + 2}", f"v_xor_b32 v{tmp + 3}, v{vTAG}, v{tmp + 3}",
                f"v_or3_b32 v{tmp}, v{tmp}, v{tmp + 1}, v{tmp + 2}", f"v_or_b32 v{tmp}, v{tmp}, v{tmp + 3}",
                f"v_cmp_ne_u32 vcc, 0, v{tmp}"]

    def poll_block(addr_v, n4, sleep=opt.get('sleep', 8)):
        lp = g.newlab("Lpoll")
        dn = g.newlab("Lpd")
        tmp = vFL
        e(f"s_mov_b32 {sCNT}, 0x4000")
        g.lab(lp)
        if n4:
            e(f"buffer_load_dwordx4 {vr(tmp, 4)}, v{addr_v}, {SWS}, 0 offen sc1")
            e("s_waitcnt vmcnt(0)")
            for x in check4(tmp):
                e(x)
        else:
            e(f"buffer_load_dword v{tmp}, v{addr_v}, {SWS}, 0 offen sc1")
            e("s_waitcnt vmcnt(0)")
            e(f"v_cmp_ne_u32 vcc, v{vTAG}, v{tmp}")
        e(f"s_cbranch_vccz {dn}")
        e(f"s_sleep {sleep}")
        e(f"s_sub_u32 {sCNT}, {sCNT}, 1")
        e(f"s_cbranch_scc0 {lp}")
        g.lab(dn)

    def flag_store(soff):
        e(f"buffer_store_dword v{vTAG}, v{vL0}, {SWS}, {soff} offen sc1")

    def wd_load(phi):
        dst = ar(4 * phi, 4) if phi < 64 else vr(vWDV + 4 * (phi - 64), 4)
        pre = []
        if phi >= 65:
            if phi == 65 or phi == 68:
                pre.append(f"s_add_u32 {sT5}, {sWDS}, {(phi // 4) * 4096}")
                pre.append(f"s_cmp_lt_u32 {sW}, 2\ns_cselect_b32 {sT5}, {sT5}, {OOB}")
        elif phi % 4 == 0:
            pre.append(f"s_add_u32 {sT5}, {sWDS}, {(phi // 4) * 4096}")
        return pre + [("vm", f"buffer_load_dwordx4 {dst}, v1, {SWS}, {sT5} offen offset:{(phi % 4) * 1024} sc1", ("wd", phi))]

    def u_loads(cpreg, va):
        return [f"v_accvgpr_read_b32 v{va}, a{AS2 + 23}",
                f"s_mul_i32 {sF0}, {sW}, {64 * 10240}",
                f"s_lshl_b32 {sF1}, {cpreg}, 5",
                f"s_add_u32 {sF0}, {sF0}, {sF1}",
                f"s_add_u32 {sF0}, {sF0}, {XNT}",
                f"s_add_u32 {sF1}, {sF0}, {32 * 10240}",
                ("vm", f"buffer_load_dwordx4 {vr(vU, 4)}, v{va}, {SWS}, {sF0} offen sc1", "u"),
                ("vm", f"buffer_load_dwordx4 {vr(vU + 4, 4)}, v{va}, {SWS}, {sF1} offen sc1", "u")]

    def table_code(TB):
        def put(i, src):
            e(f"v_lshl_add_u32 v{src}, v{src}, 2, {sF2}")
            e(f"v_accvgpr_write_b32 a{AST + i}, v{src}")
        e(f"s_mul_i32 {sF2}, {sC}, {TC}")
        e(f"s_add_u32 {sF2}, {sF2}, {TB + 4}")
        e("v_lshrrev_b32 v4, 4, v0")
        e(f"s_lshl_b32 {sF1}, {sRHO}, 2")
        e(f"v_add_u32 v4, {sF1}, v4")
        e("v_and_b32 v5, 15, v0")
        DUM = 645
        e("v_cmp_eq_u32 s[54:55], 2, v4")
        e("v_cmp_eq_u32 s[56:57], 3, v4")
        e("v_cmp_eq_u32 s[58:59], 4, v4")
        e("v_cmp_lt_u32 vcc, 4, v4")
        e("v_mov_b32 v6, 8")
        e("v_cndmask_b32 v6, v6, 4, s[54:55]")
        e("v_cndmask_b32 v6, v6, 2, s[56:57]")
        e("v_cndmask_b32 v6, v6, 1, s[58:59]")
        e("v_cndmask_b32 v6, v6, 0, vcc")
        e("v_mul_u32_u24 v7, v6, v5")
        e("v_lshlrev_b32 v8, 4, v6")
        for i in range(4):
            e(f"v_lshl_add_u32 v9, v4, 2, {i}")
            for sreg, val in (("s[54:55]", 256 + i), ("s[56:57]", 384 + 64 * (i >> 1) + (i & 1)), ("s[58:59]", 512 + 32 * i), ("vcc", DUM)):
                e(f"v_mov_b32 v10, {val}")
                e(f"v_cndmask_b32 v9, v9, v10, {sreg}")
            e("v_add_u32 v9, v9, v7")
            e("v_add_u32 v11, v9, v8")
            if i == 0:
                e("v_lshl_add_u32 v6, v4, 4, v5")
                e("v_mov_b32 v10, 80")
                e("v_cmp_eq_u32 s[60:61], v10, v6")
                e("v_mov_b32 v10, 640")
                e("s_nop 0")
                e("v_cndmask_b32 v9, v9, v10, s[60:61]")
            put(i, 9)
            put(4 + i, 11)

    def gather_items(TB):
        it = [f"s_mul_i32 {sF2}, {sC}, {TC}", f"s_add_u32 {sF2}, {sF2}, {TB + 4}",
              f"s_lshl_b32 {sF1}, {sRHO}, 10", f"s_sub_u32 {sF1}, 2047, {sF1}", "v_lshlrev_b32 v12, 3, v0",
              f"v_sub_u32 v12, {sF1}, v12", f"s_movk_i32 {sF1}, 128"]
        for ch in range(2):
            for k in range(11):
                it += [f"v_subrev_u32 v2, {512 * ch + k}, v12", "v_max_i32 v3, 0, v2", "v_cvt_f32_u32 v3, v3",
                       f"v_med3_i32 v2, v2, -1, {sF1}", "v_cvt_pk_bf16_f32 v3, v3, 0", "v_subrev_u32 v3, 0x4280, v3",
                       "v_max_i32 v2, v2, v3", f"v_lshl_add_u32 v2, v2, 2, {sF2}",
                       f"v_accvgpr_write_b32 a{AST + 8 + 11 * ch + k}, v2"]
        return it

    def addr_items(XYB, TB):
        it = []
        A = it.append
        def st(i, r):
            A(f"v_accvgpr_write_b32 a{AS2 + i}, v{r}")
        A(f"s_mul_i32 {sF0}, {sC}, {XYC}")
        A(f"s_add_u32 {sF0}, {sF0}, {XYB}")
        A(f"v_lshl_add_u32 v2, v0, 3, {sF0}")
        st(0, 2)
        A("v_and_b32 v12, 15, v0")
        A("v_lshrrev_b32 v13, 4, v0")
        A(f"v_mul_u32_u24 v2, {XYP}, v12")
        A("v_lshl_add_u32 v2, v13, 4, v2")
        A(f"v_add_u32 v3, {sF0}, v2")
        st(2, 3)
        A(f"s_mul_i32 {sF1}, {sRHO}, {16 * XYP}")
        A(f"v_add_u32 v3, {sF1}, v3")
        st(1, 3)
        A(f"s_mul_i32 {sF2}, {sC}, {TC}")
        A(f"s_add_u32 {sF2}, {sF2}, {TB}")
        A(f"v_mov_b32 v2, {sF2}")
        st(6, 2)
        A("EARLY_END")
        A("v_and_b32 v12, 15, v0")
        A("v_lshrrev_b32 v13, 4, v0")
        A(f"s_mul_i32 {sF0}, {sC}, {UC}")
        A(f"s_lshl_b32 {sF1}, {sRHO}, 8")
        A(f"s_add_u32 {sF2}, {sF0}, {sF1}")
        A(f"s_add_u32 {sF2}, {sF2}, {UBASE}")
        A(f"v_add_u32 v2, {sF2}, v1")
        A(f"s_sub_u32 {sF2}, {sF0}, {sF1}")
        A(f"s_add_u32 {sF2}, {sF2}, {UBASE + 32 + 256}")
        A("v_lshlrev_b32 v14, 5, v12")
        A("v_lshl_add_u32 v3, v13, 4, v14")
        A(f"v_add_u32 v3, {sF2}, v3")
        st(8, 3)
        A("v_lshl_add_u32 v14, v13, 3, v14")
        A(f"s_lshl_b32 {sF2}, {sRHO}, 11")
        A(f"s_add_u32 {sF2}, {sF2}, {sF0}")
        A(f"s_add_u32 {sF2}, {sF2}, {UBASE + 512}")
        A(f"v_add_u32 v3, {sF2}, v14")
        st(11, 3)
        A(f"s_lshl_b32 {sF2}, {sW}, 11")
        A(f"s_add_u32 {sF2}, {sF2}, {SOB}")
        A(f"v_add_u32 v3, {sF2}, v14")
        st(12, 3)
        A(f"v_add_u32 v3, {sF2}, v1")
        st(13, 3)
        A(f"s_mul_i32 {sF0}, {sC}, {RC}")
        A(f"s_mul_i32 {sF2}, {sRHO}, {2 * RCS}")
        A(f"s_add_u32 {sF2}, {sF2}, {sF0}")
        A(f"s_add_u32 {sF2}, {sF2}, {RB + 4096}")
        A("v_bfe_u32 v3, v0, 1, 1")
        A(f"v_mul_u32_u24 v3, {RCS}, v3")
        A("v_and_b32 v15, 1, v0")
        A("v_lshl_add_u32 v3, v15, 4, v3")
        A(f"v_add_u32 v3, {sF2}, v3")
        A("v_cmp_lt_u32 vcc, 15, v0\ns_nop 1\nv_cndmask_b32 v2, v2, v3, vcc")
        st(3, 2)
        A(f"s_lshl_b32 {sF2}, {sRHO}, 11")
        A(f"s_add_u32 {sF2}, {sF2}, {sF0}")
        A(f"s_add_u32 {sF2}, {sF2}, {RB}")
        A(f"v_add_u32 v2, {sF2}, v1")
        st(4, 2)
        A("v_sub_u32 v2, 3, v12")
        A("v_and_b32 v2, 3, v2")
        A(f"v_mul_u32_u24 v2, {RCS}, v2")
        A("v_lshl_add_u32 v2, v13, 4, v2")
        A("v_and_b32 v3, 12, v12")
        A("v_lshlrev_b32 v3, 1, v3")
        A("v_sub_u32 v2, v2, v3")
        A(f"s_sub_u32 {sF2}, {sF0}, {sF1}")
        A(f"s_add_u32 {sF2}, {sF2}, {RB + 24 + 256}")
        A(f"v_add_u32 v2, {sF2}, v2")
        st(7, 2)
        A(f"v_mul_u32_u24 v2, {UC}, v15")
        A("v_lshrrev_b32 v3, 1, v0")
        A("v_lshl_add_u32 v2, v3, 4, v2")
        A(f"s_lshl_b32 {sF2}, {sW}, 10")
        A(f"s_add_u32 {sF2}, {sF2}, {UBASE + 512}")
        A(f"v_add_u32 v2, {sF2}, v2")
        st(5, 2)
        A("v_mul_u32_u24 v3, 10240, v3")
        A("v_lshl_add_u32 v3, v15, 4, v3")
        st(23, 3)
        A(f"s_lshl_b32 {sF2}, {sW}, 12")
        A(f"v_add_u32 v2, {sF2}, v1")
        st(9, 2)
        A("v_xor_b32 v2, 0x1000, v2")
        st(10, 2)
        A(f"s_mul_i32 {sF0}, {sW}, 14")
        A(f"s_cmp_eq_u32 {sW}, 3\ns_cselect_b32 {sF1}, 1, 0")
        A(f"s_sub_u32 {sF0}, {sF0}, {sF1}")
        A(f"s_mul_i32 {sF1}, {sDT}, 54")
        A(f"s_add_u32 {sF1}, {sF0}, {sF1}")
        A(f"s_mul_i32 {sF1}, {sF1}, 5120")
        A(f"s_add_u32 {sWDS}, {sF1}, {WDP}")
        for k in range(4):
            A(f"s_add_u32 {sF1}, {sW}, {k + 1}")
            A(f"s_and_b32 {sF1}, {sF1}, 3")
            if k < 3:
                A(f"s_mul_i32 {sF2}, {sF1}, 15360")
                A(f"s_add_u32 {sF2}, {sF2}, {EXB + 5120 * k}")
                A(f"v_add_u32 v2, {sF2}, v1")
                st(14 + k, 2)
            A(f"s_lshl_b32 {sF2}, {sLT}, 2")
            A(f"s_add_u32 {sF1}, {sF1}, {sF2}")
            A(f"s_mul_i32 {sF1}, {sF1}, 54")
            A(f"s_add_u32 {sF1}, {sF1}, {sF0}")
            A(f"s_lshl_b32 {sF1}, {sF1}, 10")
            A(f"s_add_u32 s{sG2 + 4 * k}, {sF1}, {HB}")
            for q in range(1, 4):
                A(f"s_add_u32 s{sG2 + 4 * k + q}, s{sG2 + 4 * k}, {4096 * q}")
        A(f"s_mov_b32 {sF0}, {0x100000000 // 10 + 1}")
        for kk in range(3):
            A(f"v_add_u32 v2, {64 * kk}, v0")
            A(f"v_mul_hi_u32 v3, v2, {sF0}")
            A("v_mul_u32_u24 v12, 10, v3")
            A("v_sub_u32 v12, v2, v12")
            A("v_mul_u32_u24 v3, 1280, v3")
            A("v_lshl_add_u32 v2, v12, 4, v3")
            st(17 + kk, 2)
        A(f"v_mov_b32 v3, {OOB}")
        A("v_cmp_lt_u32 vcc, 31, v0\ns_nop 1\nv_cndmask_b32 v2, v2, v3, vcc")
        st(20, 2)
        A(f"s_lshl_b32 {sXO}, {sLT}, 2")
        A(f"s_add_u32 {sXO}, {sXO}, {sW}")
        A(f"s_mul_i32 {sXO}, {sXO}, {16 * 1280}")
        A(f"s_mul_i32 {sF0}, {sDT}, 160")
        A(f"s_add_u32 {sXO}, {sXO}, {sF0}")
        A(f"s_mul_i32 {sXT}, {sW}, 3072")
        A(f"s_add_u32 {sXT}, {sXT}, {XTB}")
        A(f"s_mul_i32 {sSTO}, {sDT}, 80")
        A(f"s_lshl_b32 {sF0}, {sW}, 3")
        A(f"s_add_u32 {sSTO}, {sSTO}, {sF0}")
        A(f"s_lshl_b32 {sSTO}, {sSTO}, 12")
        A(f"s_lshl_b32 {sF0}, {sLT}, 7")
        A(f"s_add_u32 {sSTO}, {sSTO}, {sF0}")
        A(f"s_add_u32 {sSTO}, {sSTO}, {ST}")
        A(f"s_lshl_b32 {sF0}, {sLT}, 12")
        A(f"s_add_u32 {sF0}, {sF0}, {HF}")
        A("v_min_u32 v2, 26, v0")
        A(f"v_lshl_add_u32 v2, v2, 7, {sF0}")
        st(21, 2)
        A(f"s_mul_i32 {sF0}, {sDT}, {40 * 128}")
        A(f"s_add_u32 {sF0}, {sF0}, {SF}")
        A("v_min_u32 v2, 39, v0")
        A(f"v_lshl_add_u32 v2, v2, 7, {sF0}")
        st(22, 2)
        k_ = it.index("EARLY_END")
        return it[:k_], it[k_ + 1:]

    e("s_cmp_ge_u32 s2, 256")
    e("s_cbranch_scc1 L_end")
    if diag:
        e("s_memrealtime s[92:93]")
    e("s_getpc_b64 s[88:89]")
    g.lab("L_pc")
    e("s_load_dwordx2 s[4:5], s[0:1], 0")
    e("s_load_dwordx2 s[16:17], s[0:1], 104")
    e("s_load_dwordx2 s[8:9], s[0:1], 64")
    e("s_load_dwordx2 s[12:13], s[0:1], 72")
    e("s_load_dwordx4 s[28:31], s[0:1], 8")
    e("s_load_dwordx4 s[32:35], s[0:1], 24")
    e("s_load_dwordx4 s[36:39], s[0:1], 40")
    NSP = opt.get("nsp", 0)
    for i in range(NSP):
        e(f"s_load_dword s{66 + i}, s[88:89], {256 + 128 * i}")
    e("v_lshrrev_b32 v2, 6, v0")
    e("v_and_b32 v3, 15, v0")
    e("s_mov_b32 s90, L_codeend - L_pc")
    e("s_mov_b32 s91, 0x20000")
    e("v_lshl_add_u32 v3, v2, 4, v3")
    e(f"v_readfirstlane_b32 {sW}, v2")
    e("v_lshlrev_b32 v3, 7, v3")
    if opt.get("cpf0", 1):
        e(f"buffer_load_dword v{vFL + 3}, v3, s[88:91], 0 offen offset:{min(256 + 128 * NSP, 4000)}")
        g.vm.append("cpf")
    e("v_and_b32 v0, 63, v0")
    e("s_mov_b32 s6, 2621440\ns_mov_b32 s7, 0x20000")
    e("v_lshrrev_b32 v2, 5, v0")
    e("v_and_b32 v3, 31, v0")
    e("v_mul_u32_u24 v2, 1280, v2")
    e(f"s_lshl_b32 {sT0}, s2, 2")
    e(f"s_add_u32 {sT0}, {sT0}, {sW}")
    e("v_lshl_add_u32 v2, v3, 3, v2")
    e(f"s_mul_i32 {sT0}, {sT0}, 2560")
    e(f"s_and_b32 {sXCD}, s2, 7")
    e(f"s_lshr_b32 {sQ}, s2, 3")
    e(f"s_and_b32 {sM}, s2, 1")
    e(f"s_lshr_b32 {sT1}, {sXCD}, 1")
    e(f"s_and_b32 {sT2}, {sQ}, 3")
    e(f"s_lshr_b32 {sDT}, {sQ}, 2")
    e(f"s_lshl_b32 {sM}, {sM}, 2")
    e(f"s_add_u32 {sM}, {sM}, {sT2}")
    e(f"s_mul_i32 {sFT}, {sT1}, 7")
    e(f"s_add_u32 {sFT}, {sFT}, {sDT}")
    e("v_lshrrev_b32 v4, 3, v0")
    e("v_and_b32 v5, 7, v0")
    e("v_lshrrev_b32 v6, 4, v0")
    e("v_mul_u32_u24 v7, 1280, v4")
    e("v_xor_b32 v8, v5, v6")
    e("v_xor_b32 v9, 4, v8")
    e(f"v_lshl_add_u32 v{vXO}, v8, 4, v7")
    e(f"v_lshl_add_u32 v{vXO + 1}, v9, 4, v7")
    e("v_mul_u32_u24 v7, 3456, v4")
    e("v_and_b32 v8, 1, v6")
    e(f"v_add_u32 v{vXO + 1}, {8 * 1280 - 1024}, v{vXO + 1}")
    e("v_lshlrev_b32 v8, 2, v8")
    e("v_xor_b32 v8, v5, v8")
    e(f"v_lshl_add_u32 v{vWO}, v8, 4, v7")
    e(f"s_lshl_b32 {sWM0}, {sW}, 11")
    e(f"s_mul_i32 {sWSO}, {sW}, {16 * 3456}")
    e(f"s_lshl_b32 {sT1}, {sFT}, 7")
    e(f"s_add_u32 {sWSO}, {sWSO}, {sT1}")
    e(f"v_add_u32 v{vWO + 1}, {8 * 3456 - 1024}, v{vWO}")
    e("s_mov_b32 s10, 2211840\ns_mov_b32 s11, 0x20000")
    e("s_mov_b32 s14, s10\ns_mov_b32 s15, 0x20000")
    e(f"s_cmp_lt_u32 {sDT}, 7")
    e(f"s_cselect_b32 {sT3}, {sFT}, 27")
    e(f"s_lshl_b32 {sXS}, {sM}, 2")
    e(f"s_add_u32 {sXS}, {sXS}, {sW}")
    e(f"s_mul_i32 {sXS}, {sXS}, {64 * 1280}")
    e(f"s_lshl_b32 {sXM0}, {sW}, 13")
    e(f"s_add_u32 {sXM0}, {sXM0}, 16384")
    e(f"s_cmp_lt_u32 {sT3}, 27")
    e(f"s_cselect_b32 {sISG1}, 1, 0")
    e(f"s_mul_i32 {sCP}, {sM}, 27")
    e(f"s_add_u32 {sCP}, {sCP}, {sFT}")
    e(f"s_min_u32 {sCP}, {sCP}, 319")
    e(f"s_lshr_b32 {sC}, {sW}, 1")
    e(f"s_lshl_b32 {sT1}, {sCP}, 1")
    e(f"s_add_u32 {sT1}, {sT1}, {sC}")
    e(f"s_lshl_b32 {sT1}, {sT1}, 8")
    e(f"v_lshl_add_u32 v12, v0, 2, {sT1}")
    e(f"s_lshl_b32 {sT1}, {sCP}, 2")
    e(f"v_mov_b32 v13, {sT1}")
    e("s_waitcnt lgkmcnt(0)")
    e(f"s_cmp_eq_u32 {sISG1}, 0")
    e("s_cbranch_scc1 L_spare")
    if diag:
        e("v_mov_b32 v127, 0")
        e("v_writelane_b32 v127, s92, 60")
    stamp("start")
    if opt.get("pt", 0):
        e("v_mov_b32 v12, s4\nv_mov_b32 v13, s5")
        e("s_add_u32 s68, s4, 0x200000\ns_addc_u32 s69, s5, 0")
        for ln, lo in ((1, 68), (2, 8), (3, 12), (4, 16)):
            e(f"v_writelane_b32 v12, s{lo}, {ln}\nv_writelane_b32 v13, s{lo + 1}, {ln}")
        g.vmem(f"global_load_dword v{vFL + 4}, v[12:13], off", "cpf")
    if diag:
        e("s_memrealtime s[100:101]\ns_waitcnt lgkmcnt(0)\nv_writelane_b32 v127, s100, 55")
    APAR = 160
    for k, p in enumerate((P_LAR, P_AIM, P_CRE, P_CIM)):
        g.vmem(f"global_load_dword a{APAR + k}, v12, {p}", "par")
    g.vmem(f"global_load_dword a{APAR + 4}, v13, {P_LDT}", "par")
    g.vmem(f"global_load_dword a{APAR + 5}, v13, {P_DSK}", "par")
    LX = 232
    for q in range(5):
        g.vmem(f"buffer_load_dwordx2 {vr(LX + 2 * q, 2)}, v2, {SX}, {sT0} offen offset:{256 * q}", "ln")

    if diag:
        e("s_memrealtime s[100:101]\ns_waitcnt lgkmcnt(0)\nv_writelane_b32 v127, s100, 56")

    def rest_setup():
        e("s_load_dwordx2 s[24:25], s[0:1], 80")
        e("s_load_dwordx2 s[20:21], s[0:1], 88")
        e("v_lshlrev_b32 v1, 4, v0")
        e(f"s_mov_b32 s18, {WS_END}\ns_mov_b32 s19, 0x20000")
        e(f"v_mov_b32 v{vL0}, {OOB}")
        e(f"v_writelane_b32 v{vL0}, 0, 0")
        e("s_mov_b32 s22, 2621440\ns_mov_b32 s23, 0x20000")
        e("s_mov_b32 s26, 2211840\ns_mov_b32 s27, 0x20000")
        e(f"s_lshl_b32 {sT4}, {sXCD}, 2")
        e(f"s_and_b32 {sT2}, {sQ}, 3")
        e(f"s_add_u32 {sLT}, {sT4}, {sT2}")
        e(f"s_add_u32 {sT4}, {sT4}, {sQ}")
        e(f"s_sub_u32 {sT4}, {sT4}, 28")
        e(f"s_lshl_b32 {sT5}, {sXCD}, 3")
        e(f"s_add_u32 {sT5}, {sT5}, {sQ}")
        e(f"s_sub_u32 {sT5}, {sT5}, 48")
        e(f"s_cmp_lt_u32 {sXCD}, 6\ns_cselect_b32 {sSP}, {sT4}, {sT5}")
        e(f"s_mul_i32 {sT4}, {sM}, 27")
        e(f"s_add_u32 {sT4}, {sT4}, {sFT}")
        e(f"s_add_u32 {sT5}, {sSP}, 216")
        e(f"s_cmp_lg_u32 {sISG1}, 0\ns_cselect_b32 {sCP}, {sT4}, {sT5}")
        e(f"s_cmp_lt_u32 {sSP}, 24\ns_cselect_b32 {sRND}, 3, 2")
        e(f"s_and_b32 {sRHO}, {sW}, 1")
        e(f"s_lshr_b32 {sC}, {sW}, 1")
        e("v_lshlrev_b32 v10, 21, v0")
        e(f"v_mov_b32 v{vFA}, v1")
        e(f"v_mov_b32 v{vFA + 1}, v1")
        e("v_mul_u32_u24 v54, 17280, v4")
        e("v_lshl_add_u32 v54, v5, 4, v54")
        e(f"s_lshl_b32 {sHS0}, {sM}, 1")
        e(f"s_add_u32 {sHS0}, {sHS0}, {sRHO}")
        e(f"s_mul_i32 {sHS0}, {sHS0}, {40 * 3456}")
        e(f"s_lshl_b32 {sT1}, {sFT}, 7")
        e(f"s_add_u32 {sHS0}, {sHS0}, {sT1}")
        e("s_mov_b32 s98, 2211840\ns_mov_b32 s99, 0x20000")
        e(f"s_cmp_eq_u32 {sC}, 0\ns_cselect_b32 s96, s8, s12\ns_cselect_b32 s97, s9, s13")
        e(f"s_lshl_b32 {sT1}, {sQ}, 2")
        e(f"s_add_u32 {sT1}, {sT1}, {sW}")
        e(f"s_mul_i32 {sT1}, {sT1}, 384")
        e(f"s_add_u32 {sT1}, {sT1}, {8192 + min(256 + 128 * NSP, 4000)}")
        e("v_min_u32 v11, 2, v0")
        e("v_lshlrev_b32 v11, 7, v11")

    def rest_loads():
        g.vmem(f"buffer_load_dword v{vTAG}, v{vL0}, {SWS}, 0 offen sc1", "ep")
        g.vmem(f"buffer_load_dword v{vFL + 2}, v11, s[88:91], {sT1} offen", "tlb")
        g.vmem(f"buffer_load_dword v{vFL}, v10, {SWS}, 0 offen", "tlb")
        e("s_waitcnt lgkmcnt(0)")
        g.vmem(f"buffer_load_dword v{vFL + 1}, v10, {SOUT}, 0 offen", "tlb")

    def dma_units(stage):
        sb = (stage % 3) * SLOT
        out = []
        for mat in range(2):
            out.append(("m0", f"s_add_u32 m0, {sWM0}, {sb + mat * 8192}"))
            for half in range(2):
                o = f" offset:{1024 * half}" if half else ""
                out.append(("vm", f"buffer_load_dwordx4 v{vWO + half}, {SWG if mat == 0 else SWU}, {sWSO} offen{o} lds", ("dma", stage)))
        for i in range(8):
            if i % 4 == 0:
                out.append(("m0", f"s_add_u32 m0, {sXM0}, {sb + i * 1024}"))
            o = f" offset:{1024 * (i & 3)}" if i & 3 else ""
            out.append(("vm", f"buffer_load_dwordx4 v{vXO + i}, {SX}, {sXS} offen{o} lds", ("dma", stage)))
        out.append(f"s_add_u32 {sXS}, {sXS}, 128")
        out.append(f"s_add_u32 {sWSO}, {sWSO}, {64 * 3456}")
        return out

    def dma_block(stage):
        for u in dma_units(stage):
            if isinstance(u, tuple) and u[0] == "m0":
                e(u[1])
                e("s_nop 0")
            else:
                g.do(u)

    APAR = 160
    def param_units(rnd):
        out = [f"s_add_u32 {sT2}, {sCP}, {40 * rnd}", f"s_min_u32 {sT2}, {sT2}, 319",
               f"s_lshl_b32 {sT1}, {sT2}, 1", f"s_add_u32 {sT1}, {sT1}, {sC}", f"s_lshl_b32 {sT1}, {sT1}, 8",
               f"v_lshl_add_u32 v12, v0, 2, {sT1}", f"s_lshl_b32 {sT1}, {sT2}, 2", f"v_mov_b32 v13, {sT1}"]
        for k, p in enumerate((P_LAR, P_AIM, P_CRE, P_CIM)):
            out.append(("vm", f"global_load_dword a{APAR + 8 * rnd + k}, v12, {p}", "par"))
        out.append(("vm", f"global_load_dword a{APAR + 8 * rnd + 4}, v13, {P_LDT}", "par"))
        out.append(("vm", f"global_load_dword a{APAR + 8 * rnd + 5}, v13, {P_DSK}", "par"))
        return out

    CSR = [56, 60, 112, 116, 52]
    def csl_units():
        out = []
        for j5 in range(5):
            if j5 in (2, 4):
                out.append(f"s_add_u32 {sHS0}, {sHS0}, {2 * 3456}")
            out.append(("vm", f"buffer_load_dwordx4 {vr(CSR[j5], 4)}, v54, {STW}, {sHS0} offen offset:{(j5 % 2) * 3456}", ("csl", j5)))
        return out
    def emit_units(us):
        for u in us:
            if isinstance(u, tuple) and u[0] == "m0":
                e(u[1])
                e("s_nop 0")
            else:
                g.do(u)

    def split_units(us, n):
        c = 0
        for ix, u in enumerate(us):
            if isinstance(u, tuple) and u[0] == "vm":
                c += 1
                if c == n:
                    return us[:ix + 1], us[ix + 1:]
        return us, []

    def run_items(items):
        for it in items:
            g.do(it)

    F, S, Dv, SO, UO = 140, 160, 164, 184, 188
    def ln_code(bar=False):
        for q in range(10):
            e(f"v_lshlrev_b32 v{F + 2 * q}, 16, v{LX + q}")
            e(f"v_and_b32 v{F + 2 * q + 1}, 0xffff0000, v{LX + q}")
        e(f"v_pk_add_f32 {vr(S, 2)}, {vr(F, 2)}, {vr(F + 2, 2)}")
        e(f"v_pk_add_f32 {vr(S + 2, 2)}, {vr(F + 4, 2)}, {vr(F + 6, 2)}")
        for q in range(4, 10, 2):
            e(f"v_pk_add_f32 {vr(S, 2)}, {vr(S, 2)}, {vr(F + 2 * q, 2)}")
            e(f"v_pk_add_f32 {vr(S + 2, 2)}, {vr(S + 2, 2)}, {vr(F + 2 * q + 2, 2)}")
        e(f"v_pk_add_f32 {vr(S, 2)}, {vr(S, 2)}, {vr(S + 2, 2)}")
        e(f"v_add_f32 v{S}, v{S}, v{S + 1}")
        red("v_add_f32", S, S + 1, False)
        e(f"v_mul_f32 v{S}, {hex(f2u(1.0 / 640))}, v{S}")
        for q in range(10):
            e(f"v_pk_add_f32 {vr(Dv + 2 * q, 2)}, {vr(F + 2 * q, 2)}, {vr(S, 2)} op_sel_hi:[1,0] neg_lo:[0,1] neg_hi:[0,1]")
        e(f"v_pk_mul_f32 {vr(S + 2, 2)}, {vr(Dv, 2)}, {vr(Dv, 2)}")
        e(f"v_pk_mul_f32 {vr(S + 24, 2)}, {vr(Dv + 2, 2)}, {vr(Dv + 2, 2)}")
        for q in range(2, 10):
            r = S + 2 if q % 2 == 0 else S + 24
            e(f"v_pk_fma_f32 {vr(r, 2)}, {vr(Dv + 2 * q, 2)}, {vr(Dv + 2 * q, 2)}, {vr(r, 2)}")
        e(f"v_pk_add_f32 {vr(S + 2, 2)}, {vr(S + 2, 2)}, {vr(S + 24, 2)}")
        e(f"v_add_f32 v{S + 2}, v{S + 2}, v{S + 3}")
        red("v_add_f32", S + 2, S + 3, False)
        e(f"v_mul_f32 v{S + 2}, {hex(f2u(1.0 / 640))}, v{S + 2}")
        bf16round(S + 2)
        e(f"v_add_f32 v{S + 2}, {hex(f2u(1e-5))}, v{S + 2}")
        bf16round(S + 2)
        e(f"v_sqrt_f32 v{S + 2}, v{S + 2}")
        bf16round(S)
        bf16round(S + 2)
        e(f"v_rcp_f32 v{S + 3}, v{S + 2}")
        e(f"v_sub_f32 v{SO}, 0, v{S}")
        e(f"v_mul_f32 v{SO + 3}, v{S + 2}, v{S + 2}")
        e(f"v_mul_f32 v{S + 1}, v{S + 3}, v{S + 3}")
        e(f"v_mul_f32 v{SO + 2}, {hex(f2u(C0))}, v{S + 3}")
        e(f"v_mul_f32 v{S + 1}, v{S + 1}, v{S + 3}")
        e(f"v_mul_f32 v{S + 2}, v{SO}, v{S + 3}")
        e(f"v_mul_f32 v{SO + 1}, {hex(f2u(C1))}, v{S + 1}")
        for q in range(10):
            e(f"v_pk_fma_f32 {vr(Dv + 2 * q, 2)}, {vr(F + 2 * q, 2)}, {vr(S + 2, 2)}, {vr(S + 2, 2)} op_sel:[0,1,0] op_sel_hi:[1,1,0]")
        for q in range(10):
            e(f"v_cvt_pk_f16_f32 v{UO + q}, v{Dv + 2 * q}, v{Dv + 2 * q + 1}")
        e("v_lshrrev_b32 v2, 5, v0")
        e(f"v_mul_u32_u24 v2, {LNP}, v2")
        e("v_and_b32 v3, 31, v0")
        e("v_lshl_add_u32 v2, v3, 3, v2")
        e(f"s_mul_i32 {sT1}, {sW}, {2 * LNP}")
        e(f"s_add_u32 {sT1}, {sT1}, {LNB}")
        e(f"v_add_u32 v2, {sT1}, v2")
        if bar:
            e("s_barrier")
        for q in range(5):
            g.lds(f"ds_write_b64 v2, {vr(UO + 2 * q, 2)} offset:{256 * q}", "lnw")
        e("v_lshrrev_b32 v4, 1, v0")
        e(f"v_mov_b32 v5, {OOB}")
        e("v_cmp_ne_u32 vcc, 0, v3")
        e(f"s_lshl_b32 {sT1}, s2, 2")
        e(f"s_add_u32 {sT1}, {sT1}, {sW}")
        e("v_cndmask_b32 v4, v4, v5, vcc")
        e(f"s_lshl_b32 {sT1}, {sT1}, 5")
        e(f"s_add_u32 {sT1}, {sT1}, {STATS}")
        e("v_bfe_u32 v6, v0, 2, 2")
        e(f"v_mul_u32_u24 v2, {LNP}, v6")
        e("v_lshrrev_b32 v3, 4, v0")
        e("v_lshl_add_u32 v2, v3, 5, v2")
        e("v_and_b32 v7, 3, v0")
        e("v_lshl_add_u32 v2, v7, 3, v2")
        e(f"s_lshl_b32 {sT2}, {sW}, 7")
        e(f"s_add_u32 {sT2}, {sT2}, {LNB}")
        e(f"v_add_u32 v2, {sT2}, v2")

    def ln_tail():
        g.vmem(f"buffer_store_dwordx4 {vr(SO, 4)}, v4, {SWS}, {sT1} offen sc1", "lnst")
        g.wlg0()
        e("s_barrier")
        TR = 200
        for j in range(3):
            for h in range(2):
                g.lds(f"ds_read_b64_tr_b16 {vr(TR + 4 * j + 2 * h, 2)}, v2 offset:{512 * j + 4 * LNP * h}", ("lntr", j))
        e(f"s_mul_i32 {sT1}, s2, 10240")
        e(f"s_lshl_b32 {sT2}, {sW}, 10")
        e(f"s_add_u32 {sT1}, {sT1}, {sT2}")
        e(f"s_add_u32 {sT1}, {sT1}, {XNT}")
        e(f"s_add_u32 {sT2}, {sT1}, 4096")
        e(f"s_add_u32 {sT3}, {sT1}, 8192")
        e(f"s_cmp_lt_u32 {sW}, 2")
        e(f"s_cselect_b32 {sT3}, {sT3}, {OOB}")
        for j, so in enumerate((sT1, sT2, sT3)):
            g.wlg(("lntr", j))
            g.vmem(f"buffer_store_dwordx4 {vr(TR + 4 * j, 4)}, v1, {SWS}, {so} offen sc1", "lnst")

    AK = 46
    vKA_A, vKA_B, vZ, vRW, vUW, vYS, vFB, vGB = range(AK, AK + 8)
    KA, CC, TM = 128, 152, 136
    WA = KA + 6
    SIG, OMG = KA + 2, KA + 4

    def cexp(dst, p, t):
        for m in range(2):
            e(f"v_mul_f32 v{t + m}, {hex(f2u(float(p)))}, v{SIG + m}")
            e(f"v_mul_f32 v{t + 2 + m}, {hex(f2u(float(p)))}, v{OMG + m}")
        for m in range(2):
            e(f"v_fract_f32 v{t + 2 + m}, v{t + 2 + m}")
        for m in range(2):
            e(f"v_exp_f32 v{t + m}, v{t + m}")
            e(f"v_cos_f32 v{dst + 2 * m}, v{t + 2 + m}")
            e(f"v_sin_f32 v{dst + 2 * m + 1}, v{t + 2 + m}")
        e("s_nop 0")
        align()
        for m in range(2):
            e(f"v_pk_mul_f32 {vr(dst + 2 * m, 2)}, {vr(dst + 2 * m, 2)}, {vr(t, 2)} op_sel:[0,{m}] op_sel_hi:[1,{m}]")

    def cmul(dst, P, Q, t):
        for m in range(2):
            e(f"v_pk_mul_f32 {vr(t + 2 * m, 2)}, {vr(P + 2 * m, 2)}, {vr(Q + 2 * m, 2)} op_sel_hi:[0,1]")
        for m in range(2):
            e(f"v_pk_fma_f32 {vr(dst + 2 * m, 2)}, {vr(P + 2 * m, 2)}, {vr(Q + 2 * m, 2)}, {vr(t + 2 * m, 2)} op_sel:[1,1,0] op_sel_hi:[1,0,1] neg_lo:[0,1,0]")

    prow = [0]

    def put(src, row, neg, lastrow=False):
        o = 144 + 2 * (row % 4)
        ng = "-" if neg else ""
        if src is not None:
            e(f"v_cvt_pk_f16_f32 v{o}, v{src}, {ng}v{src + 1}")
            e(f"v_cvt_pk_f16_f32 v{o + 1}, v{src + 2}, {ng}v{src + 3}")
        if row % 2 == 1:
            o0 = ((row - 1) % 4) * 68
            g.lds(f"ds_write2_b64 v{WA}, {vr(o - 2, 2)}, {vr(o, 2)} offset0:{o0} offset1:{o0 + 68}", "xy")
            if row % 4 == 3:
                e(f"v_add_u32 v{WA}, {4 * XYP}, v{WA}")
        elif lastrow:
            g.lds(f"ds_write_b64 v{WA}, {vr(o, 2)} offset:{(row % 4) * XYP}", "xy")


    def rb1():
        e(f"s_mov_b32 {sKR}, 0")
        for i in range(8):
            e(f"v_accvgpr_read_b32 v{SC + i}, a{AST + i}")
        for i in (0, 1, 5):
            e(f"v_accvgpr_read_b32 v{AK + i}, a{AS2 + 1 + i}")

    def tag_code():
        e(f"v_readfirstlane_b32 {sTAG}, v{vTAG}")
        e("s_nop 3")
        e(f"s_mul_i32 {sTAG}, {sTAG}, 1664525")
        e(f"s_add_u32 {sTAG}, {sTAG}, 1013904223")
        e(f"v_mov_b32 v{vTAG}, {sTAG}")

    def k_setup():
        for k6 in (4, 5, 0, 1, 2, 3):
            e(f"v_accvgpr_read_b32 v{vPAR + k6}, a{APAR + k6}")
        e(f"v_accvgpr_read_b32 v{WA}, a{AS2}")
        e(f"s_lshl_b32 {sT1}, {sC}, 4")
        e(f"v_lshrrev_b32 v{KA}, {sT1}, v{vPAR + 4}")
        e(f"v_lshlrev_b32 v{KA}, 16, v{KA}")
        e(f"v_mul_f32 v{KA}, {hex(f2u(LOG2E))}, v{KA}")
        e(f"v_exp_f32 v{KA}, v{KA}")
        e(f"v_lshrrev_b32 v{KA + 7}, {sT1}, v{vPAR + 5}")
        e(f"v_lshlrev_b32 v{KA + 7}, 16, v{KA + 7}")
        bf16round(KA)
        e(f"v_lshlrev_b32 v{KA + 2}, 16, v{vPAR}")
        e(f"v_and_b32 v{KA + 3}, 0xffff0000, v{vPAR}")
        e(f"v_mul_f32 v{KA + 2}, {hex(f2u(LOG2E))}, v{KA + 2}")
        e(f"v_mul_f32 v{KA + 3}, {hex(f2u(LOG2E))}, v{KA + 3}")
        e(f"v_exp_f32 v{KA + 2}, v{KA + 2}")
        e(f"v_exp_f32 v{KA + 3}, v{KA + 3}")
        e(f"v_lshlrev_b32 v{KA + 4}, 16, v{vPAR + 1}")
        e(f"v_and_b32 v{KA + 5}, 0xffff0000, v{vPAR + 1}")
        e(f"v_cvt_pk_bf16_f32 v{KA + 1}, v{KA + 2}, v{KA + 3}")
        e(f"v_lshlrev_b32 v{CC}, 16, v{vPAR + 2}")
        e(f"v_lshlrev_b32 v{CC + 1}, 16, v{vPAR + 3}")
        e(f"v_and_b32 v{CC + 2}, 0xffff0000, v{vPAR + 2}")
        e(f"v_and_b32 v{CC + 3}, 0xffff0000, v{vPAR + 3}")
        e(f"v_lshlrev_b32 v{KA + 2}, 16, v{KA + 1}")
        e(f"v_and_b32 v{KA + 3}, 0xffff0000, v{KA + 1}")
        for m in range(2):
            e(f"v_mul_f32 v{KA + 2 + m}, v{KA + 2 + m}, v{KA}")
            e(f"v_mul_f32 v{KA + 4 + m}, v{KA + 4 + m}, v{KA}")
        for m in range(2):
            e(f"v_mul_f32 v{KA + 2 + m}, {hex(f2u(-LOG2E))}, v{KA + 2 + m}")
            e(f"v_mul_f32 v{KA + 4 + m}, {hex(f2u(1.0 / (2 * math.pi)))}, v{KA + 4 + m}")

    def k_role0():
        W8, W16, T2 = 152, 156, 140
        ch = [[160, 164], [168, 172]]
        e(f"v_add_u32 v{WA}, {YR0 * XYP}, v{WA}")
        cexp(W8, 8, TM)
        e("v_mov_b32 v144, 0x3c00")
        e("v_mov_b32 v145, 0x3c00")
        cmul(W16, W8, W8, TM)
        put(W8, 33, False)
        cur = [W16, W8]
        for j in range(2, 32, 2):
            n0 = cur[0] if j == 2 else ch[0][(j // 2) & 1]
            n1 = ch[1][(j // 2) & 1]
            for m in range(2):
                if j > 2:
                    e(f"v_pk_mul_f32 {vr(TM + 2 * m, 2)}, {vr(cur[0] + 2 * m, 2)}, {vr(W16 + 2 * m, 2)} op_sel_hi:[0,1]")
                e(f"v_pk_mul_f32 {vr(T2 + 2 * m, 2)}, {vr(cur[1] + 2 * m, 2)}, {vr(W16 + 2 * m, 2)} op_sel_hi:[0,1]")
            for m in range(2):
                if j > 2:
                    e(f"v_pk_fma_f32 {vr(n0 + 2 * m, 2)}, {vr(cur[0] + 2 * m, 2)}, {vr(W16 + 2 * m, 2)}, {vr(TM + 2 * m, 2)} op_sel:[1,1,0] op_sel_hi:[1,0,1] neg_lo:[0,1,0]")
                e(f"v_pk_fma_f32 {vr(n1 + 2 * m, 2)}, {vr(cur[1] + 2 * m, 2)}, {vr(W16 + 2 * m, 2)}, {vr(T2 + 2 * m, 2)} op_sel:[1,1,0] op_sel_hi:[1,0,1] neg_lo:[0,1,0]")
            put(n0, 32 + j, False)
            put(n1, 33 + j, False)
            cur = [n0, n1]

    def k_role1():
        MX = 136
        e(f"v_max_f32 v{MX}, |v{CC}|, |v{CC + 1}|")
        e(f"v_max3_f32 v{MX}, |v{CC + 2}|, |v{CC + 3}|, v{MX}")
        red("v_max_f32", MX, MX + 1, True)
        e(f"v_frexp_exp_i32_f32 v{MX}, v{MX}")
        e(f"v_add_f32 v{KA}, v{KA}, v{KA}")
        e(f"v_ldexp_f32 v{MX + 2}, v{KA}, v{MX}")
        e(f"v_mov_b32 v{MX + 3}, v{KA + 7}")
        e(f"v_sub_u32 v{MX}, 0, v{MX}")
        for i in range(4):
            e(f"v_ldexp_f32 v{CC + i}, v{CC + i}, v{MX}")
        e(f"v_add_u32 v{MX + 1}, {sKR}, v{vYS}")
        e(f"v_mov_b32 v{MX}, 0")
        g.lds(f"ds_write_b64 v{MX + 1}, {vr(MX + 2, 2)} offset:{YSO}", "xy")
        g.lds(f"ds_write_b32 v{MX + 1}, v{MX}", "xy")
        Z, Q, Q4 = 156, 160, 164
        cexp(Z, 1, TM)
        cexp(Q, 256, TM)
        cexp(Q4, 1024, TM)
        X = [168 + 4 * i for i in range(8)]
        X[0] = CC
        put(CC, 0, True)
        for s in range(1, 8):
            cmul(X[s], X[s - 1], Z, TM)
            put(X[s], s, True)
        R8 = [200 + 4 * i for i in range(4)]
        for s in range(4):
            cmul(R8[s], X[2 * s], Q, TM)
            put(R8[s], 8 + s, True)
        R12 = [216, 220]
        for s in range(2):
            cmul(R12[s], R8[2 * s], Q, TM)
            put(R12[s], 12 + s, True)
        for s in range(2):
            cmul(X[1 + 2 * s], R12[s], Q, TM)
            put(X[1 + 2 * s], 14 + s, True)
        cmul(R8[0], CC, Q4, TM)
        put(R8[0], 16, True)
        cmul(R8[1], R8[0], Q, TM)
        put(R8[1], 17, True)
        cmul(R8[3], R8[1], Q, TM)
        put(R8[3], 18, True)
        cmul(R8[1], R8[3], Q, TM)
        put(R8[1], 19, True)
        cmul(R8[2], R8[0], Q4, TM)
        put(R8[2], 20, True, lastrow=True)

    def kgen(sfx, units, every):
        k_setup()
        e(f"s_cmp_lg_u32 {sRHO}, 0")
        e(f"s_cbranch_scc1 L_role1{sfx}")
        vm_s, lg_s = list(g.vm), list(g.lg)
        us = list(units)
        interleave(k_role0, us, every)
        emit_units(us)
        e(f"s_branch L_kbar{sfx}")
        align()
        g.lab(f"L_role1{sfx}")
        g.vm, g.lg = vm_s, lg_s
        us = list(units)
        interleave(k_role1, us, every)
        emit_units(us)
        g.lab(f"L_kbar{sfx}")
        stamp("kvalu_end")

    def kgen_mfma():
        KF = 64
        for ks in range(8):
            g.lds(f"ds_read_b128 {vr(KF + 4 * ks, 4)}, v{vKA_A} offset:{64 * ks}", ("ka", ks))
            g.lds(f"ds_read_b128 {vr(128 + 4 * ks, 4)}, v{vKA_B} offset:{YR0 * XYP + 64 * ks}", ("kb0", ks))
            g.lds(f"ds_read_b128 {vr(160 + 4 * ks, 4)}, v{vKA_B} offset:{(YR0 + 16) * XYP + 64 * ks}", ("kb1", ks))
        KD = 96
        for ks in range(8):
            g.wlg(("kb1", ks))
            e(f"v_mfma_f32_16x16x32_f16 {vr(KD, 4)}, {vr(KF + 4 * ks, 4)}, {vr(128 + 4 * ks, 4)}, {'0' if ks == 0 else vr(KD, 4)}")
            e(f"v_mfma_f32_16x16x32_f16 {vr(KD + 4, 4)}, {vr(KF + 4 * ks, 4)}, {vr(160 + 4 * ks, 4)}, {'0' if ks == 0 else vr(KD + 4, 4)}")
        g.nop(7)
        for i in range(8):
            g.lds(f"ds_write_b32 v{SC + i}, v{KD + i}", "tw")

    vm0 = ["cpf"]
    u0, u0b = split_units(dma_units(0), opt.get("nf", 4))
    def g1_early():
        for i in range(2, 8):
            d = 16 * 1280 - 1024 * ((i & 3) - ((i - 2) & 3))
            e(f"v_add_u32 v{vXO + i}, {d}, v{vXO + i - 2}")
        rest_setup()
    interleave(g1_early, u0, opt.get("pe0", 2))
    assert not u0
    e(f"s_mov_b32 {sRND}, 1")
    rest_loads()
    aE, aL = addr_items(XYB_G1, TB_G1)
    table_code(TB_G1)
    run_items(aE)
    rb1()
    if diag:
        e("s_memrealtime s[100:101]\ns_waitcnt lgkmcnt(0)\nv_writelane_b32 v127, s100, 58")
    g.sfree += [88, 90]
    g.wvm("par")
    stamp("par_data")
    kgen("g", u0b + dma_units(1), opt.get("pek", 12))
    g.wlg0()
    e("s_barrier")
    kgen_mfma()
    g.wvm("ep")
    tag_code()
    stamp("kdone")
    uA = csl_units()
    interleave(lambda: ln_code(bar=True), uA, opt.get("pe1", 24))
    emit_units(uA)
    ln_tail()
    stamp("ln_done")
    e("v_and_b32 v2, 31, v0")
    e("v_lshrrev_b32 v3, 5, v0")
    e("v_bfe_u32 v4, v0, 1, 3")
    e("v_xor_b32 v4, v4, v3")
    e(f"v_lshl_add_u32 v2, v2, 7, {sXM0}")
    for ks in range(4):
        e(f"v_xor_b32 v5, {2 * ks}, v4")
        e(f"v_lshl_add_u32 v{vBA + ks}, v5, 4, v2")
        e(f"v_add_u32 v{vBA + 4 + ks}, {2 * SLOT}, v{vBA + ks}")
    e("v_bfe_u32 v6, v0, 2, 2")
    e("v_and_b32 v7, 3, v0")
    e("v_lshl_add_u32 v2, v3, 3, v6")
    e("v_lshlrev_b32 v2, 7, v2")
    e("v_bfe_u32 v4, v0, 4, 1")
    e("v_lshl_add_u32 v2, v4, 5, v2")
    e("v_lshl_add_u32 v2, v7, 3, v2")
    e("v_lshrrev_b32 v3, 1, v6")
    e(f"v_xor_b32 v3, {sRHO}, v3")
    e(f"s_lshl_b32 {sT1}, {sC}, 13")
    e("v_lshl_add_u32 v2, v3, 6, v2")
    e(f"v_add_u32 v{vAA}, {sT1}, v2")
    e(f"v_xor_b32 v{vAA + 1}, 64, v{vAA}")
    e(f"v_xor_b32 v{vAA + 2}, 0x2000, v{vAA}")
    e(f"v_xor_b32 v{vAA + 3}, 0x2000, v{vAA + 1}")
    for i in range(4):
        e(f"v_add_u32 v{vAA + 4 + i}, {2 * SLOT}, v{vAA + i}")

    def touch_setup():
        return [f"s_lshr_b32 {sF0}, {sQ}, 2", f"s_mul_i32 {sF0}, {sF0}, 10", f"v_add_u32 v2, {sF0}, v0",
                "v_min_u32 v2, 63, v2", "v_mul_u32_u24 v2, 1280, v2", f"v_mov_b32 v3, {OOB}",
                f"v_cmp_lt_u32 vcc, 9, v0\ns_nop 1\nv_cndmask_b32 v{vTO}, v2, v3, vcc",
                f"s_and_b32 {sF0}, {sQ}, 3", f"s_lshl_b32 {sF0}, {sF0}, 1", f"s_add_u32 {sF0}, {sF0}, {sRHO}",
                f"s_lshl_b32 {sF0}, {sF0}, 3", f"s_lshl_b32 {sF1}, {sW}, 4", f"s_sub_u32 {sF0}, {sF0}, {sF1}",
                f"s_add_u32 {sF0}, {sF0}, 64", f"v_add_u32 v2, {sF0}, v0", "v_mul_u32_u24 v2, 3456, v2",
                f"v_cmp_lt_u32 vcc, 7, v0\ns_nop 1\nv_cndmask_b32 v{vTO + 1}, v2, v3, vcc",
                ]

    def touch_units(ahead):
        return [f"s_add_u32 {sT4}, {sXS}, {128 * ahead}",
                ("vm", f"buffer_load_dword v{vFL + 4}, v{vTO}, {SX}, {sT4} offen", "touch"),
                f"s_add_u32 {sT4}, {sWSO}, {64 * 3456 * (ahead - 1)}" if ahead >= 1 else f"s_sub_u32 {sT4}, {sWSO}, {64 * 3456}",
                ("vm", f"buffer_load_dword v{vFL + 4}, v{vTO + 1}, {STW}, {sT4} offen", "touch")]

    def frag_reads(k):
        stage, ks = divmod(k, 4)
        sl = stage % 3
        st4 = 4 if sl == 2 else 0
        so = 0 if sl == 2 else sl * SLOT
        A = vAF + 16 * (k & 1)
        B = vBF + 8 * (k & 1)
        def bread(b):
            return ("lds", f"ds_read_b128 {vr(B + 4 * b, 4)}, v{vBA + st4 + ks} offset:{so + 4096 * b}", ("B", k, b))
        def aread(t, h):
            return ("lds", f"ds_read_b64_tr_b16 {vr(A + 4 * t + 2 * h, 2)}, v{vAA + st4 + t} offset:{so + ks * 2048 + h * 512}", ("A", k, t))
        return [bread(0), aread(0, 0), aread(0, 1), bread(1), aread(1, 0), aread(1, 1), aread(2, 0), aread(2, 1), aread(3, 0), aread(3, 1)]

    e(f"s_mov_b32 {sMASK}, 0xffff0000")
    g.wvm(("dma", 0))
    g.wlg0()
    e("s_barrier")
    stamp("g1_start")
    stamp("c_g1s", cyc=True)
    for it in frag_reads(0):
        g.do(it)

    PACE = opt.get("pace", 2)
    NG = 320
    gaps = [[] for _ in range(NG)]
    head = [[] for _ in range(NG)]
    pre = {}
    vq_big = []

    sq = []
    def add_group(units, earliest, small=False, pace=None):
        vq = sq if small else vq_big
        prel = []
        for u in units:
            if isinstance(u, tuple) and u[0] == "m0":
                prel.append(u[1])
            elif isinstance(u, tuple) or callable(u):
                vq.append([earliest, prel, u, [], pace])
                prel = []
            else:
                prel.append(u)
        if prel:
            vq[-1][3] += prel

    def Bgap(s):
        return 32 * s - 8

    PKV = 48
    pk_fill = [f"s_mov_b32 {sF0}, {0x100000000 // 20 + 1}", f"s_lshl_b32 {sF1}, {sW}, 6"]
    for i3 in range(3):
        pk_fill += [f"v_add_u32 v2, {sF1}, v0"] + ([f"v_add_u32 v2, {256 * i3}, v2"] if i3 else []) + [
            f"v_mul_hi_u32 v3, v2, {sF0}", "v_mul_u32_u24 v12, 20, v3", "v_sub_u32 v12, v2, v12",
            "v_mul_u32_u24 v3, 1280, v3", f"v_lshl_add_u32 v{PKV + i3}, v12, 4, v3"]
    pk_fill += [f"s_lshr_b32 {sHS0}, {sCP}, 2", f"s_and_b32 {sHS1}, {sCP}, 3",
                f"s_mul_i32 {sT2}, {sHS0}, 40960", f"s_mul_i32 {sF0}, {sHS1}, 320", f"s_add_u32 {sT2}, {sT2}, {sF0}",
                f"s_lshl_b32 {sT3}, {sW}, 10"]
    pk_fill2 = ["v_lshrrev_b32 v2, 5, v0", "v_bfe_u32 v3, v0, 2, 2", "v_lshl_add_u32 v2, v2, 4, v3", "v_bfe_u32 v3, v0, 4, 1",
                "v_lshl_add_u32 v2, v3, 2, v2", "v_mul_u32_u24 v2, 320, v2", "v_and_b32 v3, 3, v0", "v_lshl_add_u32 v2, v3, 3, v2",
                f"s_lshl_b32 {sF0}, {sW}, 5", f"s_add_u32 {sF0}, {sF0}, {PKB}", f"v_add_u32 v{PKV + 3}, {sF0}, v2"]
    PDR = [56, 60, 8]
    pk_dma = []
    for i3 in range(3):
        pk_dma.append(("m0", f"s_add_u32 m0, {sT3}, {PKB + 4096 * i3}"))
        if i3 == 2:
            pk_dma.append(lambda: e(f"s_cmp_lt_u32 {sW}, 2\ns_cbranch_scc0 L_nopk3\nbuffer_load_dwordx4 v{PKV + 2}, {SWD}, {sT2} offen lds\nL_nopk3:") or g.vm.append("OPT"))
        else:
            pk_dma.append(("vm", f"buffer_load_dwordx4 v{PKV + i3}, {SWD}, {sT2} offen lds", "pkd"))
    pk_st = []
    for i3 in range(3):
        pk_st += [f"s_mul_i32 {sT2}, {sHS1}, 10\ns_add_u32 {sT2}, {sT2}, {sW}\ns_add_u32 {sT2}, {sT2}, {4 * i3}",
                  f"s_mul_i32 {sT3}, {sT2}, 13108\ns_lshr_b32 {sT3}, {sT3}, 16\ns_mul_i32 {sT3}, {sT3}, 265\ns_add_u32 {sT2}, {sT2}, {sT3}",
                  f"s_mul_i32 {sT3}, {sHS0}, 5\ns_add_u32 {sT2}, {sT2}, {sT3}\ns_lshl_b32 {sT2}, {sT2}, 10\ns_add_u32 {sT2}, {sT2}, {WDP}"]
        if i3 == 2:
            pk_st.append(f"s_cmp_lt_u32 {sW}, 2\ns_cselect_b32 {sT2}, {sT2}, {OOB}")
        pk_st.append(("vm", f"buffer_store_dwordx4 {vr(PDR[i3], 4)}, v1, {SWS}, {sT2} offen sc1", "pks"))
    lnflag = [f"s_lshl_b32 {sT1}, s2, 2\ns_add_u32 {sT1}, {sT1}, {LNF}\ns_cmp_eq_u32 {sW}, 0\ns_cselect_b32 {sT1}, {sT1}, {OOB}",
              lambda: flag_store(sT1)]
    wfflag = [f"s_lshl_b32 {sT1}, {sHS1}, 6\ns_add_u32 {sT1}, {sT1}, {sHS0}\ns_lshl_b32 {sT1}, {sT1}, 2\ns_add_u32 {sT1}, {sT1}, {WF}",
              f"s_cmp_eq_u32 {sW}, 0\ns_cselect_b32 {sT1}, {sT1}, {OOB}", lambda: flag_store(sT1)]

    add_group(dma_units(2), opt.get("d2", 4))
    add_group(pk_dma, 20)
    for st_ in range(1, 8):
        if st_ == 2:
            add_group(pk_st, Bgap(2) + 6)
        add_group(dma_units(st_ + 2), Bgap(st_) + {1: opt.get("d3", 18), 2: opt.get("d4", 26), 3: opt.get("d5", 0), 4: opt.get("d6", 20)}.get(st_, 0))
    G0 = 8 * KCHK + 4
    for phi in range(P1):
        add_group(wd_load(phi), G0)
    for kk in range(3):
        add_group([f"v_accvgpr_read_b32 v{112 + kk}, a{AS2 + 17 + kk}", ("m0", f"s_add_u32 m0, {sXT}, {1024 * kk}"),
                   ("vm", f"buffer_load_dwordx4 v{112 + kk}, {SX}, {sXO} offen lds", "xt")], Bgap(9) + 1)
    vsched = []
    occ = set()
    def place(q, pace):
        last = -pace
        for (ear, prel, vmi, post, pc) in q:
            gq = max(ear, last + (pc or pace))
            while gq in occ:
                gq += 1
            assert gq < NG - 1, gq
            occ.add(gq)
            gaps[gq - 1] += prel
            head[gq].append(vmi)
            gaps[gq] = post + gaps[gq]
            last = gq
            vsched.append((gq, vmi[2] if isinstance(vmi, tuple) else "flag"))
    place(vq_big, PACE)
    def gap_of(tag):
        return max(gq for gq, t in vsched if t == tag)
    for st_ in range(1, 8):
        ge = gap_of(("dma", st_ + 2)) + 2
        if st_ == 1:
            add_group(lnflag, gap_of("pkd") + 3, True)
        if st_ == 2:
            add_group([f"s_lshl_b32 {sT1}, {sFT}, 1\ns_add_u32 {sT1}, {sT1}, {sC}\ns_lshl_b32 {sT1}, {sT1}, 3\ns_add_u32 {sT1}, {sT1}, {sM}",
                       f"s_lshl_b32 {sT1}, {sT1}, 1\ns_add_u32 {sT1}, {sT1}, {sRHO}\ns_lshl_b32 {sT1}, {sT1}, 8\ns_add_u32 {sT1}, {sT1}, {CSP}",
                       ("vm", f"buffer_store_dwordx2 {vr(4, 2)}, v6, {SWS}, {sT1} offen sc1", "pks")], gap_of("pks") + 1, True)
        if st_ == 4:
            add_group(wfflag, gap_of(("dma", 5)) + 1, True)
        if st_ == 5:
            add_group([("vm", f"buffer_load_dwordx4 {vr(vFL, 4)}, v{vFA}, {SWS}, 0 offen sc1", "poll"),
                       ("vm", f"buffer_load_dword v{PKV}, v{vFA + 1}, {SWS}, 0 offen sc1", "poll")], 8 * KCHK - 22, True)
        if TOUCH and st_ + TOUCH <= 9:
            if st_ == 1:
                for a in range(0, TOUCH - 3):
                    add_group(touch_units(a), ge, True)
            add_group(touch_units(TOUCH - 3), ge, True)
        if st_ == 6 and opt.get('wtouch'):
            for t3 in range(3):
                add_group([f"s_and_b32 {sT4}, {sLT}, 3\ns_mul_i32 {sT4}, {sT4}, {140 * 128}\ns_add_u32 {sT4}, {sT4}, {sWDS}" if t3 == 0 else f"s_add_u32 {sT4}, {sT4}, {48 * 128}",
                           ("vm", f"buffer_load_dword v{vFL + 4}, v{PKV + 1}, {SWS}, {sT4} offen sc1", "wtouch")], 8 * KCHK + 4 + 4 * t3, True)
    add_group([f"s_lshl_b32 {sT1}, {sFT}, 1\ns_add_u32 {sT1}, {sT1}, {sC}\ns_lshl_b32 {sT1}, {sT1}, 5\ns_add_u32 {sT1}, {sT1}, {sRHO}",
               f"s_lshl_b32 {sT1}, {sT1}, 7\ns_add_u32 {sT1}, {sT1}, {CSP}",
               ("vm", f"buffer_load_dwordx4 {vr(4, 4)}, v{vCS}, {SWS}, {sT1} offen sc1", "csp"),
               ("vm", f"buffer_load_dwordx4 {vr(8, 4)}, v{vCS}, {SWS}, {sT1} offen offset:2048 sc1", "csp")], G0, True)
    add_group([f"s_lshl_b32 {sT1}, {sM}, 2\ns_add_u32 {sT1}, {sT1}, {sW}\ns_lshl_b32 {sT1}, {sT1}, 10\ns_add_u32 {sT1}, {sT1}, {STATS}",
               ("vm", f"buffer_load_dwordx4 {vr(vSTA, 4)}, v15, {SWS}, {sT1} offen sc1", "stats"),
               ("vm", f"buffer_load_dwordx4 {vr(vSTA + 4, 4)}, v15, {SWS}, {sT1} offen offset:512 sc1", "stats")], G0, True)
    add_group(u_loads(sCP, 3), G0, True)
    place(sq, 1)
    vsched.sort()
    if opt.get("v"):
        print(vsched)
    assert all(gap_of(("dma", st_)) < Bgap(st_) - 12 for st_ in range(2, 10))
    assert gap_of("pkd") < Bgap(2) and gap_of("pks") < Bgap(4) - 16 and gap_of("poll") < 8 * KCHK - 6

    for i3 in range(3):
        for h in range(2):
            gaps[Bgap(2) + 1 + i3].append(("lds", f"ds_read_b64_tr_b16 {vr(PDR[i3] + 2 * h, 2)}, v{PKV + 3} offset:{128 * i3 + 8 * 320 * h}", "pk"))
    c4 = check4(vFL)
    gaps[8 * KCHK] += [("wvm", "poll")] + c4[0:2]
    gaps[8 * KCHK + 1] += c4[2:5]
    def chk():
        sl = g.newlab("Lslow")
        bk = g.newlab("Lback")
        e(f"v_xor_b32 v{PKV}, v{vTAG}, v{PKV}")
        e(f"v_or3_b32 v{vFL}, v{vFL}, v{vFL + 3}, v{PKV}")
        e(c4[6])
        e(f"s_cbranch_vccnz {sl}")
        g.lab(bk)
        g.slow.append((sl, bk, [(vFA, True), (vFA + 1, False)]))
    gaps[8 * KCHK + 2].insert(0, chk)

    CA = [4, 5, 6, 7, 42, 43, 44, 45]
    csum = []
    for j5 in range(5):
        csum.append(("wvm", ("csl", j5)))
        for d in range(4):
            r = CSR[j5] + d
            if j5 == 0:
                csum += [f"v_lshlrev_b32 v{CA[2 * d]}, 16, v{r}", f"v_and_b32 v{CA[2 * d + 1]}, {sMASK}, v{r}"]
            else:
                csum += [f"v_lshlrev_b32 v8, 16, v{r}", f"v_and_b32 v9, {sMASK}, v{r}",
                         f"v_add_f32 v{CA[2 * d]}, v{CA[2 * d]}, v8", f"v_add_f32 v{CA[2 * d + 1]}, v{CA[2 * d + 1]}, v9"]
    csum += ["s_nop 1"]
    csum += [f"v_permlane32_swap_b32 v{CA[c]}, v{CA[c + 4]}" for c in range(4)]
    csum += [f"v_add_f32 v{CA[c]}, v{CA[c]}, v{CA[c + 4]}" for c in range(4)]
    csum += ["s_nop 1"]
    csum += [f"v_permlane16_swap_b32 v{CA[c]}, v{CA[c + 2]}" for c in range(2)]
    csum += ["s_nop 0"]
    csum += [f"v_add_f32 v{CA[c]}, v{CA[c]}, v{CA[c + 2]}" for c in range(2)]
    csum += ["v_and_b32 v6, 7, v0", "v_lshlrev_b32 v6, 5, v6"]
    csum += [f"v_add_f32 v{CA[c]}, v{CA[c]}, v{CA[c]} row_ror:8" for c in range(2)]
    csum += ["v_lshrrev_b32 v7, 4, v0", "v_lshl_add_u32 v6, v7, 3, v6", f"v_mov_b32 v7, {OOB}",
             "v_and_b32 v8, 8, v0", "v_cmp_ne_u32 vcc, 0, v8\ns_nop 1\nv_cndmask_b32 v6, v6, v7, vcc"]
    fillq = pk_fill + (touch_setup() if TOUCH else []) + pk_fill2[:11]
    n_a = len(fillq)
    fillq += csum
    n_csum = len(fillq)
    n_early = len(pk_fill)
    fillq += pk_fill2[11:]
    n_early2 = len(fillq)
    fillq += [f"v_min_u32 v2, 53, v0", f"s_lshr_b32 {sF0}, {sDT}, 1", f"s_lshl_b32 {sF0}, {sF0}, 8",
              f"s_add_u32 {sF0}, {sF0}, {WF}", f"v_lshl_add_u32 v2, v2, 2, {sF0}",
              "v_and_b32 v3, 7, v0", "v_mul_u32_u24 v3, 27, v3", f"v_add_u32 v3, {sFT}, v3", "v_and_b32 v12, 3, v3",
              "v_lshrrev_b32 v3, 2, v3", "v_lshl_add_u32 v3, v12, 6, v3", "v_lshlrev_b32 v3, 2, v3", f"v_add_u32 v3, {WF}, v3",
              f"v_cmp_lt_u32 vcc, 55, v0\ns_nop 1\nv_cndmask_b32 v{vFA + 1}, v2, v3, vcc"]
    iw = max(i for i, x in enumerate(aL) if sWDS + "," in x)
    i0 = min(i for i, x in enumerate(aL) if f"{sF0}, {sW}, 14" in x)
    iu = max(i for i, x in enumerate(aL) if f"a{AS2 + 23}," in x)
    fillq += [f"v_add_u32 v{vFA}, {LNF}, v1"] + aL[i0:iw + 1] + ["v_lshrrev_b32 v3, 1, v0", "v_and_b32 v2, 1, v0", "v_mul_u32_u24 v3, 10240, v3", "v_lshl_add_u32 v3, v2, 4, v3",
                              f"v_accvgpr_write_b32 a{AS2 + 23}, v3"]
    n_mid = len(fillq)
    late_fill = aL[:i0] + aL[i0:i0 + 3] + aL[iw + 1:] + gather_items(TB_G1)
    late_fill = [x.replace("v12", "v10").replace("v13", "v11").replace("v14", "v46").replace("v15", "v47") for x in late_fill]
    fillq += ["v_bfe_u32 v2, v0, 4, 1", f"v_mul_u32_u24 v2, {54 * 1024}, v2", "v_lshrrev_b32 v3, 5, v0",
              "v_lshl_add_u32 v2, v3, 8, v2", "v_and_b32 v12, 15, v0", "v_lshl_add_u32 v2, v12, 4, v2",
              f"s_lshl_b32 {sF0}, {sRHO}, 10", f"v_add_u32 v{vHO}, {sF0}, v2", f"s_xor_b32 {sF0}, {sF0}, 1024",
              f"v_add_u32 v{vHO + 1}, {sF0}, v2", f"s_lshl_b32 {sF0}, {sRHO}, 7", f"s_add_u32 {sF0}, {sF0}, {CSB}",
              f"v_lshl_add_u32 v13, v3, 4, {sF0}", "v_xor_b32 v14, 128, v13",
              "v_and_b32 v2, 7, v0", "v_lshlrev_b32 v12, 4, v2", "v_lshl_add_u32 v12, v3, 3, v12", "v_bfe_u32 v3, v0, 4, 1",
              "v_lshl_add_u32 v12, v3, 2, v12", f"s_lshl_b32 {sF0}, {sW}, 7", f"s_add_u32 {sF0}, {sF0}, {CSB}",
              f"v_add_u32 v12, {sF0}, v12", "v_lshrrev_b32 v3, 3, v0", "v_lshlrev_b32 v3, 8, v3", f"v_lshl_add_u32 v{vCS}, v2, 4, v3",
              "v_and_b32 v15, 31, v0", "v_lshlrev_b32 v15, 4, v15"]
    tail_fill = [f"s_lshl_b32 {sHS0}, {sM}, 2", f"s_add_u32 {sHS0}, {sHS0}, {sW}", f"s_lshl_b32 {sPEND}, {sHS0}, 5",
                 f"s_mul_i32 {sHS0}, {sHS0}, {4 * 54}", f"s_lshl_b32 {sT2}, {sFT}, 1", f"s_add_u32 {sHS0}, {sHS0}, {sT2}",
                 f"s_lshl_b32 {sHS0}, {sHS0}, 10", f"s_add_u32 {sHS0}, {sHS0}, {HB}", f"s_add_u32 {sHS1}, {sHS0}, {2 * 54 * 1024}",
                 f"s_add_u32 {sPEND}, {sPEND}, {sFT}", f"s_lshl_b32 {sPEND}, {sPEND}, 7", f"s_add_u32 {sPEND}, {sPEND}, {HF}"]
    cs_fill = [("wvm", "csp")] + [f"v_add_f32 v{4 + c}, v{4 + c}, v{8 + c}" for c in range(4)] + ["s_nop 0",
               "v_permlane32_swap_b32 v4, v6", "v_permlane32_swap_b32 v5, v7", "s_nop 0", "v_add_f32 v4, v4, v6", "v_add_f32 v5, v5, v7",
               "s_nop 1", "v_permlane16_swap_b32 v4, v5", "s_nop 0", "v_add_f32 v4, v4, v5", "s_nop 1",
               "v_add_f32 v4, v4, v4 row_ror:8", ("lds", "ds_write_b32 v12, v4", "csw")]
    EV = list(range(16, 26)) + [46]
    ex_fill = [f"v_accvgpr_read_b32 v2, a{AS2 + 3}", "v_mov_b32 v4, 0", "v_mov_b32 v5, 0", "v_mov_b32 v6, 0", "v_mov_b32 v7, 0",
               f"v_accvgpr_read_b32 v3, a{AS2 + 5}", ("lds", f"ds_write_b128 v2, {vr(4, 4)}", "z"),
               f"v_accvgpr_read_b32 v47, a{AS2 + 4}"]
    for ch in range(2):
        ex_fill += [f"v_accvgpr_read_b32 v{EV[k]}, a{AST + 8 + 11 * ch + k}" for k in range(11)]
        ex_fill += [("lds", f"ds_read_b32 v{EV[k]}, v{EV[k]}", ("eg", ch)) for k in range(11)]
        if ch == 0:
            ex_fill += [("wvm", "u"), ("lds", f"ds_write_b128 v3, {vr(vU, 4)}", "uw"), ("lds", f"ds_write_b128 v3, {vr(vU + 4, 4)} offset:512", "uw")]
        else:
            ex_fill += [("gapskip",), ("gapskip",)]
        ex_fill += [("wlg", ("eg", ch))]
        for s4 in range(4):
            o = 8 if s4 % 2 == 0 else 4
            ex_fill += [f"v_cvt_pk_f16_f32 v{o + j}, v{EV[s4 + 2 * j]}, v{EV[s4 + 2 * j + 1]}" for j in range(4)]
            ex_fill += [("lds", f"ds_write_b128 v47, {vr(o, 4)} offset:{s4 * RCS + 1024 * ch}", "rw")]
    nf_total = len(fillq)

    def cost(it):
        if isinstance(it, str):
            return it.count("\n") + 1
        return 1
    CAP = opt.get("cap", 4)
    for k in range(40):
        stage, ks = divmod(k, 4)
        A = vAF + 16 * (k & 1)
        B = vBF + 8 * (k & 1)
        gk = [head[8 * k + i] + gaps[8 * k + i] for i in range(8)]
        body = [[] for _ in range(8)]
        if k + 1 < 40:
            for i, it in enumerate(frag_reads(k + 1)):
                body[i // 2].append(it)
        if k == 39:
            for j in range(4):
                body[2 + j // 2].append(("lds", f"ds_read_b128 {vr(64 + 4 * j, 4)}, v13 offset:{32 * j}", "cs0"))
            for j in range(4):
                dst = (4 + 4 * j) if j < 2 else (96 + 4 * (j - 2))
                body[4 + j // 2].append(("lds", f"ds_read_b128 {vr(dst, 4)}, v13 offset:{256 + 32 * j}", "cs0"))
        else:
            load = [sum(map(cost, gk[i])) + len(body[i]) + (1 if i in (3, 7) else 0) for i in range(8)]
            q = fillq if fillq else (tail_fill if (k >= 18 and tail_fill) else late_fill)
            if k == KCHK or (q is late_fill and (k < 10 or 29 <= k <= 34)):
                q = []
            if k == 29:
                assert not late_fill, len(late_fill)
            if k in (33, 34) and cs_fill:
                q = cs_fill
            if k >= 35:
                q = ex_fill
            cap = CAP + (1 if k < 9 else opt.get('capx', 1)) + (1 if k >= 35 else 0)
            for i in range(8):
                while q and load[i] + cost(q[0]) <= cap + (2 if cost(q[0]) > 1 else 0):
                    it = q.pop(0)
                    if it == ("gapskip",):
                        break
                    body[i].append(it)
                    load[i] += cost(it)
            if k == 2:
                assert nf_total - len(fillq) >= n_early, (nf_total - len(fillq), n_early)
            if k == 5:
                assert nf_total - len(fillq) >= n_a
            if k == 6:
                assert nf_total - len(fillq) >= n_a + 30
            if 8 * k + 8 >= gap_of("pks") - 1:
                assert nf_total - len(fillq) >= n_csum, (nf_total - len(fillq), n_csum)
            if k == 13:
                assert nf_total - len(fillq) >= n_early2
            if k == KCHK - 4:
                assert nf_total - len(fillq) >= n_mid
            if 8 * k + 8 > gap_of("stats") - 4:
                assert not fillq, (k, len(fillq))
        if ks == 3 and stage < 9:
            stamp(f"c_w{stage + 1}", cyc=True)
            g.wlg0()
            if stage == 0:
                g.wvm("lnst")
            if stage == 1:
                g.wvm("OPT")
            if stage == 3:
                g.wvm("pks")
            g.wvm(("dma", stage + 1))
            e("s_barrier")
            stamp(f"c_b{stage + 1}", cyc=True)
        for i in range(8):
            t, b = divmod(i, 2)
            if k == 0:
                g.wlg(("A", k, t))
                g.wlg(("B", k, b))
            elif i == 0:
                g.wlg(("A", k, 1))
            elif i == 4:
                g.wlg(("A", k, 3))
            D = vACC + 16 * (2 * t + b)
            Cs = "0" if k == 0 else vr(D, 16)
            e(f"v_mfma_f32_32x32x16_bf16 {vr(D, 16)}, {vr(A + 4 * t, 4)}, {vr(B + 4 * b, 4)}, {Cs}")
            for it in head[8 * k + i]:
                if isinstance(it, tuple) and it[2] == "pks":
                    g.wlg("pk")
                g.do(it)
            for it in body[i] + gaps[8 * k + i]:
                g.do(it)
    assert not tail_fill and not cs_fill and not late_fill and not ex_fill, len(ex_fill)
    stamp("c_g1e", cyc=True)
    stamp("g1_loop_end", flush=True)

    def csu0(i):
        return (4 + i) if i < 8 else (96 + i - 8)
    def csu1(i):
        return (104 + i) if i < 8 else (28 + i - 8)
    tmps = [24, 26, 36, 38]
    g.wvm("stats")
    g.wlg("cs0")
    e(f"s_cmp_lg_u32 {sC}, 0")
    e("s_cbranch_scc1 L_epiB")
    vm_save, lg_save = list(g.vm), list(g.lg)
    for variant in range(2):
        if variant == 1:
            align()
            g.lab("L_epiB")
            g.vm, g.lg = list(vm_save), list(lg_save)
        align()
        for ap in range(2):
            for b in range(2):
                gs, us = (ap, 2 + ap) if variant == 0 else (2 + ap, ap)
                Gt = vACC + 16 * (2 * gs + b)
                Ut = vACC + 16 * (2 * us + b)
                st = vSTA + 4 * b
                if ap == 0 and b == 1:
                    for j in range(4):
                        g.lds(f"ds_read_b128 {vr(80 + 4 * j, 4)}, v14 offset:{32 * j}", "cs1")
                    for j in range(4):
                        dst = (104 + 4 * j) if j < 2 else (28 + 4 * (j - 2))
                        g.lds(f"ds_read_b128 {vr(dst, 4)}, v14 offset:{256 + 32 * j}", "cs1")
                if ap == 1 and b == 0:
                    g.wlg("cs1")
                    align()
                csg = (lambda i: 64 + i) if ap == 0 else (lambda i: 80 + i)
                csu = csu0 if ap == 0 else csu1
                for c in range(2):
                    O = 16 if c == 0 else 20
                    ps = range(4 * c, 4 * c + 4)
                    for p in ps:
                        e(f"v_pk_fma_f32 {vr(Gt + 2 * p, 2)}, {vr(csg(2 * p), 2)}, {vr(st, 2)}, {vr(Gt + 2 * p, 2)} op_sel_hi:[1,0,1]")
                    for p in ps:
                        e(f"v_pk_mul_f32 {vr(tmps[p % 4], 2)}, {vr(Gt + 2 * p, 2)}, {vr(Gt + 2 * p, 2)}")
                    for p in ps:
                        t = tmps[p % 4]
                        e(f"v_pk_fma_f32 {vr(t, 2)}, {vr(t, 2)}, {vr(st, 2)}, {vr(st + 2, 2)} op_sel:[0,1,0] op_sel_hi:[1,1,0]")
                    for p in ps:
                        t = tmps[p % 4]
                        e(f"v_pk_mul_f32 {vr(t, 2)}, {vr(t, 2)}, {vr(Gt + 2 * p, 2)}")
                    for p in ps:
                        t = tmps[p % 4]
                        e(f"v_exp_f32 v{t}, v{t}")
                        e(f"v_exp_f32 v{t + 1}, v{t + 1}")
                    for p in ps:
                        e(f"v_pk_fma_f32 {vr(Ut + 2 * p, 2)}, {vr(csu(2 * p), 2)}, {vr(st, 2)}, {vr(Ut + 2 * p, 2)} op_sel_hi:[1,0,1]")
                    for p in ps:
                        t = tmps[p % 4]
                        e(f"v_pk_fma_f32 {vr(t, 2)}, {vr(t, 2)}, {vr(st + 2, 2)}, {vr(st + 2, 2)} op_sel:[0,1,1] op_sel_hi:[1,1,1]")
                    for p in ps:
                        t = tmps[p % 4]
                        e(f"v_rcp_f32 v{t}, v{t}")
                        e(f"v_rcp_f32 v{t + 1}, v{t + 1}")
                    for p in ps:
                        e(f"v_pk_mul_f32 {vr(Gt + 2 * p, 2)}, {vr(Gt + 2 * p, 2)}, {vr(Ut + 2 * p, 2)}")
                    for p in ps:
                        e(f"v_pk_mul_f32 {vr(Gt + 2 * p, 2)}, {vr(Gt + 2 * p, 2)}, {vr(tmps[p % 4], 2)}")
                    for p in ps:
                        e(f"v_cvt_pk_bf16_f32 v{O + p - 4 * c}, v{Gt + 2 * p}, v{Gt + 2 * p + 1}")
                    g.vmem(f"buffer_store_dwordx4 {vr(O, 4)}, v{vHO + ap}, {SWS}, {sHS0 if b == 0 else sHS1} offen offset:{512 * c} sc1", "hst")
        if variant == 0:
            e("s_branch L_epi_done")
    g.lab("L_epi_done")
    stamp("c_epe", cyc=True)
    stamp("g1_epi_end", flush=True)
    e(f"s_mov_b32 {sMASK}, {sPEND}")

    def rb2():
        for i in range(22):
            e(f"v_accvgpr_read_b32 v{GA + i}, a{AST + 8 + i}")
        for i in range(2, 8):
            e(f"v_accvgpr_read_b32 v{AK + i}, a{AS2 + 1 + i}")
        e("v_mov_b32 v4, 0\nv_mov_b32 v5, 0\nv_mov_b32 v6, 0\nv_mov_b32 v7, 0")
        e(f"ds_write_b128 v{vZ}, {vr(4, 4)}")
    for i in (5, 6, 7):
        e(f"v_accvgpr_read_b32 v{AK + i}, a{AS2 + 1 + i}")

    Greg = [[224 + 4 * i for i in range(8)], [192 + 4 * i for i in range(8)]]
    FB = [128, 160]
    CACC = 64
    HRING = [16 + 4 * i for i in range(12)] + [104 + 4 * i for i in range(3)] + [128 + 4 * i for i in range(26)]
    NE = opt.get("ne", 8)
    P2 = opt.get("p2", 40)
    NB = len(HRING)
    YS, DK = 100, 101

    def hload(i):
        k, st = divmod(i, 14)
        r = HRING[i % NB]
        if st == 13:
            return [f"s_cmp_lt_u32 {sW}, 2\ns_cselect_b32 {sT4}, s{sG2 + 4 * k + 3}, {OOB}",
                    ("vm", f"buffer_load_dwordx4 {vr(r, 4)}, v1, {SWS}, {sT4} offen offset:1024 sc1", ("h", i))]
        return [("vm", f"buffer_load_dwordx4 {vr(r, 4)}, v1, {SWS}, s{sG2 + 4 * k + st // 4} offen offset:{(st % 4) * 1024} sc1", ("h", i))]

    def expand():
        EG = 128
        for ch in range(2):
            for k in range(11):
                g.lds(f"ds_read_b32 v{EG + 12 * ch + k}, v{GA + 11 * ch + k}", ("eg", ch))
        g.wvm("u")
        g.lds(f"ds_write_b128 v{vUW}, {vr(vU, 4)}", "uw")
        g.lds(f"ds_write_b128 v{vUW}, {vr(vU + 4, 4)} offset:512", "uw")
        EO = 64
        for ch in range(2):
            g.wlg(("eg", ch))
            align()
            for s in range(4):
                o = EO + 16 * ch + 4 * s
                for j in range(4):
                    e(f"v_cvt_pk_f16_f32 v{o + j}, v{EG + 12 * ch + s + 2 * j}, v{EG + 12 * ch + s + 2 * j + 1}")
                g.lds(f"ds_write_b128 v{vRW}, {vr(o, 4)} offset:{s * RCS + 1024 * ch}", "rw")

    def conv(last):
        tag = "L" if last else "E"
        def wd_e(phi):
            its = wd_load(phi)
            if len(its) > 1:
                its.insert(1, f"s_or_b32 {sT5}, {sT5}, {sK0}")
            return its
        if last:
            g.lab("L_conv_core")
            g.vm = []
            g.lg = []
            wq = [wd_load(phi) for phi in range(P1, 70 if opt.get('w6') else 64)]
        else:
            g.lab("L_conv_early")
            g.vm = ["u", "u"]
            g.lg = []
            wq = [wd_e(phi) for phi in range(0, P1)]
            g.vmem(f"buffer_load_dword v{vFL}, v{vFA + 1}, {SWS}, 0 offen sc1", "wfp")
            expand()
            e("s_waitcnt vmcnt(0)")
            g.vm = []
            flag_store(sMASK)
            e(f"v_cmp_ne_u32 vcc, v{vTAG}, v{vFL}")
            e("s_nop 0")
            e("s_cmp_eq_u64 vcc, 0")
            e(f"s_cselect_b32 {sK0}, 0, {OOB}")
        g.lds(f"ds_read_b64 {vr(YS, 2)}, v{vYS} offset:{YSO}", "ysc")
        def wdl(n=1):
            for _ in range(n):
                if wq:
                    for it in wq.pop(0):
                        g.do(it)
        extra = [f"v_accvgpr_read_b32 v{4 + i}, a{AS2 + 9 + i}" for i in range(5)]
        extra += [f"s_lshl_b32 {sT1}, {sCP}, 1", f"s_add_u32 {sT1}, {sT1}, {sC}", f"s_lshl_b32 {sT1}, {sT1}, 12",
                  f"s_lshl_b32 {sT3}, {sRHO}, 11", f"s_add_u32 {sT1}, {sT1}, {sT3}", f"s_add_u32 {sHS0}, {sT1}, {ST}",
                  f"s_lshl_b32 {sT2}, {sCP}, 5", f"s_add_u32 {sT2}, {sT2}, {sW}",
                  f"s_lshl_b32 {sT2}, {sT2}, 2", f"s_add_u32 {sPEND}, {sT2}, {SF}"]
        if last:
            extra += [f"v_accvgpr_read_b32 v{9 + i7}, a{AS2 + 14 + i7}" for i7 in range(7)]
            extra += [f"v_accvgpr_read_b32 v{vFA + i}, a{AS2 + 21 + i}" for i in range(2)]
            extra += ["v_min_u32 v3, 53, v0", "v_lshlrev_b32 v3, 7, v3",
                      f"s_lshl_b32 {sT0}, {sDT}, 2", f"s_add_u32 {sT0}, {sT0}, {sW}", f"s_mul_i32 {sT0}, {sT0}, {54 * 128}",
                      f"s_mul_i32 {sHS1}, {sLT}, {4 * 54 * 1024}", f"s_add_u32 {sHS1}, {sHS1}, {sT0}", f"s_add_u32 {sHS1}, {sHS1}, {HB}"]
        g.wlg0()
        e("s_barrier")
        stamp("c_cs" + tag, cyc=True)
        stamp("conv_start" + tag)

        def cls_reads(dl):
            bf = dl & 1
            out = []
            for s in range(8):
                out.append(("lds", f"ds_read_b128 {vr(Greg[bf][s], 4)}, v{vGB} offset:{512 * s + 64 * (3 - dl)}", ("G", dl, s)))
                off = 64 * (59 - dl - 8 * s)
                out.append(("lds", f"ds_read_b64 {vr(FB[bf] + 4 * s, 2)}, v{vFB} offset:{off}", ("F", dl, s)))
                out.append(("lds", f"ds_read_b64 {vr(FB[bf] + 4 * s + 2, 2)}, v{vFB} offset:{off + 8}", ("F", dl, s)))
            return out
        for it in cls_reads(0):
            g.do(it)
        order = sorted([(s, gg) for s in range(8) for gg in range(8) if s + gg < 8], key=lambda x: (max(x), x[0] + x[1]))
        seen = set()
        hq = []
        US, UD = 2, 96
        for dl in range(4):
            bf = dl & 1
            nxt = cls_reads(dl + 1) if dl < 3 else []
            if dl == 3:
                nxt = [("lds", f"ds_read_b64 {vr(128 + 2 * tt, 2)}, v6 offset:{512 * tt}", "us") for tt in range(4)]
                nxt += [None] * 6 + [("wlg", "us")]
                for tt in range(4):
                    for i in range(4):
                        src = 128 + 2 * tt + (i >> 1)
                        nxt.append(f"v_fma_mix_f32 v{136 + 4 * tt + i}, v{src}, v{DK}, 0 op_sel:[{i & 1},0,0] op_sel_hi:[1,0,0]")
            if dl > 0:
                g.wlg(("F", dl, 7))
            for mi, (s, gg) in enumerate(order):
                t = s + gg
                if dl == 0:
                    g.wlg(("G", dl, gg))
                    g.wlg(("F", dl, s))
                Cs = "0" if t not in seen else vr(CACC + 4 * t, 4)
                seen.add(t)
                e(f"v_mfma_f32_16x16x32_f16 {vr(CACC + 4 * t, 4)}, {vr(FB[bf] + 4 * s, 4)}, {vr(Greg[bf][gg], 4)}, {Cs}")
                start = 8 if dl == 0 else 1
                if mi >= start and nxt:
                    it = nxt.pop(0)
                    if it is not None:
                        g.do(it)
                elif extra:
                    g.do(extra.pop(0))
                if mi % 2 == 1 and extra and mi >= start:
                    g.do(extra.pop(0))
                mc = 36 * dl + mi
                if mc % 4 == 2:
                    nphi = wq[0][-1][2][1] if wq else 0
                    if last and mc == opt.get("hfp", 130):
                        assert not extra
                        g.vmem(f"buffer_load_dword v{vFL}, v{vFA}, {SWS}, 0 offen sc1", "hfp")
                    elif last and mc == opt.get("hfl", 38):
                        e(f"s_waitcnt vmcnt({len(g.vm)})")
                        flag_store(sMASK)
                        e(f"s_or_b32 {sCNT}, s2, {sW}")
                        e(f"s_cmp_eq_u32 {sCNT}, 0")
                        e(f"s_cselect_b32 {sCNT}, {EPOCH}, {OOB}")
                        flag_store(sCNT)
                    elif wq and not (last and extra and nphi >= 48) and not (nphi >= 64 and dl < 3):
                        wdl()
            assert not nxt, len(nxt)
        while wq and not last:
            wdl()
        assert not wq and not extra, (len(wq), len(extra))
        def hl(n=1):
            for _ in range(n):
                if hq:
                    for it in hq.pop(0):
                        g.do(it)
        stamp("c_ce" + tag, cyc=True)
        stamp("conv_end" + tag)
        lr1 = g.newlab("Lfin1")
        lfd = g.newlab("Lfind")
        e(f"s_cmp_lg_u32 {sRHO}, 0")
        e(f"s_cbranch_scc1 {lr1}")
        lg_save, pst_save, sf_save = list(g.lg), list(g.pst), list(g.sfree)
        for rho in range(2):
            if rho == 1:
                g.lab(lr1)
                g.lg, g.pst, g.sfree = list(lg_save), list(pst_save), list(sf_save)
            own = CACC + 16 * rho
            oth = CACC + 16 * (1 - rho)
            g.nop(6)
            for tt in range(4):
                g.lds(f"ds_write_b128 v4, {vr(oth + 4 * tt, 4)} offset:{PB + 1024 * tt}", "pw")
            align()
            for tt in range(4):
                for i in range(4):
                    e(f"v_fma_f32 v{136 + 4 * tt + i}, v{own + 4 * tt + i}, v{YS}, v{136 + 4 * tt + i}")
            if rho == 0:
                e(f"s_branch {lfd}")
        g.lab(lfd)
        g.wlg0()
        e("s_barrier")
        for tt in range(4):
            g.lds(f"ds_read_b128 {vr(152 + 4 * tt, 4)}, v5 offset:{PB + 1024 * tt}", ("pr", tt))
        if last:
            g.wvm("hfp")
            e(f"v_cmp_ne_u32 vcc, v{vTAG}, v{vFL}")
            e("s_nop 0")
            e("s_cmp_eq_u64 vcc, 0")
            e(f"s_cselect_b32 {sK1}, 1, 0")
            e(f"s_cselect_b32 {sT0}, 0, {OOB}")
            hq.append([f"s_or_b32 {sT4}, {sHS1}, {sT0}", ("vm", f"buffer_load_dword v{vFL + 4}, v3, {SWS}, {sT4} offen sc1", "ht")])
            for i in range(NE):
                pre_ = [f"s_or_b32 {sT4}, s{sG2 + i // 4}, {sT0}"] if i % 4 == 0 else []
                hq.append(pre_ + [("vm", f"buffer_load_dwordx4 {vr(HRING[i], 4)}, v1, {SWS}, {sT4} offen offset:{(i % 4) * 1024} sc1", ("he", i))])
        hl(2)
        for tt in range(4):
            g.wlg(("pr", tt))
            for i in range(4):
                e(f"v_fmac_f32 v{136 + 4 * tt + i}, v{152 + 4 * tt + i}, v{YS}")
            for h in range(2):
                e(f"v_cvt_pk_bf16_f32 v{128 + 2 * tt + h}, v{136 + 4 * tt + 2 * h}, v{136 + 4 * tt + 2 * h + 1}")
            g.lds(f"ds_write_b64 v7, {vr(128 + 2 * tt, 2)} offset:{512 * tt}", "sw")
            hl(1)
        hl(1)
        g.wlg0()
        for j in range(2):
            g.lds(f"ds_read_b128 {vr(88 + 4 * j, 4)}, v8 offset:{1024 * j}", ("sr", j))
        hl(2)
        assert not hq
        if not last:
            e(f"s_add_u32 {sCP}, {sCP}, 40")
            for i in range(22):
                e(f"v_add_u32 v{GA + i}, {2 * TC}, v{GA + i}")
            e(f"v_add_u32 v{vYS}, {2 * TC}, v{vYS}")
        for j in range(2):
            g.wlg(("sr", j))
            g.vmem(f"buffer_store_dwordx4 {vr(88 + 4 * j, 4)}, v1, {SWS}, {sHS0} offen offset:{1024 * j} sc1", "sst")
        if not last:
            for it in u_loads(sCP, 2):
                g.do(it)
            e(f"s_mov_b32 {sMASK}, {sPEND}")
            e(f"s_sub_u32 {sRND}, {sRND}, 1")
            e(f"s_cmp_lg_u32 {sRND}, 1")
            e("s_cbranch_scc1 L_conv_early")

    conv(True)

    e(f"s_cmp_lg_u32 {sK1}, 0")
    e("s_cbranch_scc1 L_hready")
    poll_block(vFA, False)
    e(f"buffer_load_dword v{vFL + 4}, v3, {SWS}, {sHS1} offen sc1")
    for i in range(NE):
        for it in hload(i):
            e(it[1] if isinstance(it, tuple) else it)
    g.lab("L_hready")
    stamp("c_g2s", cyc=True)
    stamp("g2_start")
    g.vm = [("h", i) for i in range(NE)]
    AC = [64, 84]
    lateq = sum([[wd_load(64 + i), hload(NE + i)] for i in range(6)], []) + [hload(i) for i in range(NE + 6, NB)]
    if opt.get('w6'):
        lateq = [hload(i) for i in range(NE, NB)]
    fq = ["v_lshrrev_b32 v8, 3, v0", "v_lshlrev_b32 v8, 12, v8", "v_and_b32 v2, 7, v0", "v_lshl_add_u32 v8, v2, 4, v8",
          f"s_mul_i32 {sT1}, {sW}, 15360", f"v_add_u32 v2, {sT1}, v1",
          "v_lshrrev_b32 v3, 2, v0", "v_lshlrev_b32 v3, 7, v3", "v_and_b32 v4, 3, v0", "v_lshl_add_u32 v3, v4, 3, v3",
          f"s_lshl_b32 {sT1}, {sW}, 5", f"s_add_u32 {sT1}, {sT1}, {STB}", f"v_add_u32 v3, {sT1}, v3",
          "v_and_b32 v4, 15, v0", "v_mul_u32_u24 v4, 160, v4", "v_lshrrev_b32 v5, 4, v0", "v_lshl_add_u32 v4, v5, 3, v4",
          f"v_add_u32 v4, {sXT}, v4", f"v_add_u32 v5, {sXT}, v1",
          f"s_lshl_b32 {sT2}, {sW}, 10", f"s_add_u32 {sHS1}, {sT2}, {STB}"]
    XR, XU = 16, 28
    SFP = opt.get("sfp", 38)
    for i in range(56):
        k, st = divmod(i, 14)
        A0 = AC[k & 1]
        g.wvm(("h", i))
        if st >= 12 and k == 0:
            g.wvm(("wd", 69 if st == 13 else 64))
        r = HRING[i % NB]
        extra = [[] for _ in range(5)]
        if st == 1 and k >= 1:
            pa = AC[(k - 1) & 1]
            for j in range(5):
                extra[j].append(("lds", f"ds_write_b128 v{9 + k - 1}, {vr(pa + 4 * j, 4)} offset:{1024 * j}", "exw"))
        for j in ((i % 4,) if i % 4 else (0, 4)):
            if lateq:
                extra[j] += lateq.pop(0)
        if i == NE:
            def sflag():
                n = sum(1 for t in g.vm if t[0] == "wd" or (t[0] == "h" and t[1] >= NE))
                e(f"s_waitcnt vmcnt({n})")
                flag_store(sPEND)
            extra[1].append(sflag)
        if 22 <= i < 30:
            for j in (1, 3, 4):
                if fq:
                    extra[j].append(fq.pop(0))
        if i == SFP:
            extra[0].append(("vm", f"buffer_load_dwordx4 {vr(vFL, 4)}, v{vFA + 1}, {SWS}, 0 offen sc1", ("sfp",)))
        if i == SFP + 6:
            c4 = check4(vFL)
            extra[0] += [("wvm", ("sfp",))] + c4[0:2]
            extra[1] += c4[2:4]
            extra[2] += c4[4:6]
            def sfchk():
                sl = g.newlab("Lslow")
                bk = g.newlab("Lback")
                e(c4[6])
                e(f"s_cbranch_vccnz {sl}")
                g.lab(bk)
                g.slow.append((sl, bk, [(vFA + 1, True)]))
            extra[3].append(sfchk)
        if i == SFP + 7:
            extra[0] += [f"s_mov_b32 m0, {sHS1}"]
            extra[1] += [("vm", f"buffer_load_dwordx4 v8, {SWS}, {sSTO} offen sc1 lds", ("stl",)), f"s_add_u32 m0, {sHS1}, 4096"]
            extra[2] += [f"s_add_u32 {sT3}, {sSTO}, {32 * 4096}"]
            extra[3] += [("vm", f"buffer_load_dwordx4 v8, {SWS}, {sT3} offen sc1 lds", ("stl",)), f"s_add_u32 m0, {sHS1}, 8192"]
            extra[4] += [f"s_add_u32 {sT3}, {sSTO}, {64 * 4096}", f"s_cmp_lt_u32 {sW}, 2\ns_cselect_b32 {sT3}, {sT3}, {OOB}"]
        if i == SFP + 8:
            extra[0] += [("vm", f"buffer_load_dwordx4 v8, {SWS}, {sT3} offen sc1 lds", ("stl",))]
        for j in range(5):
            phi = st * 5 + j
            src = ar(4 * phi, 4) if phi < 64 else vr(vWDV + 4 * (phi - 64), 4)
            Cs = "0" if st == 0 else vr(A0 + 4 * j, 4)
            e(f"v_mfma_f32_16x16x32_bf16 {vr(A0 + 4 * j, 4)}, {src}, {vr(r, 4)}, {Cs}")
            for it in extra[j]:
                g.do(it)
        if i + NB < 56:
            lateq.append(hload(i + NB))
    assert not lateq and not fq
    stamp("c_g2e", cyc=True)
    stamp("g2_loop_end")
    g.wall()
    e("s_barrier")
    A0 = AC[1]
    for q in range(15):
        g.lds(f"ds_read_b128 {vr(128 + 4 * q, 4)}, v2 offset:{EXB + 1024 * q}", ("exr", q))
    for j in range(5):
        g.lds(f"ds_read_b64_tr_b16 {vr(192 + 2 * j, 2)}, v3 offset:{2048 * j}", ("s", j))
        g.lds(f"ds_read_b64 {vr(202 + 2 * j, 2)}, v4 offset:{32 * j}", ("x", j))
    e(f"s_mov_b32 {sT2}, {hex(f2u(-LOG2E))}")
    e(f"s_mov_b32 {sT3}, {hex(f2u(-LOG2E))}")
    e(f"s_mov_b32 {sMASK}, 0xffff0000")
    for k in range(3):
        for j in range(5):
            if j in (0, 3):
                g.wlg(("exr", 5 * k + (2 if j == 0 else 4)))
            for h in range(2):
                e(f"v_pk_add_f32 {vr(A0 + 4 * j + 2 * h, 2)}, {vr(A0 + 4 * j + 2 * h, 2)}, {vr(128 + 4 * (5 * k + j) + 2 * h, 2)}")
    E_ = 128
    align()
    for p in range(10):
        e(f"v_pk_mul_f32 {vr(E_ + 2 * p, 2)}, {vr(A0 + 2 * p, 2)}, s[56:57]")
    for p in range(20):
        e(f"v_exp_f32 v{E_ + p}, v{E_ + p}")
    g.wlg0()
    SU, XU = 152, 172
    for p in range(10):
        e(f"v_lshlrev_b32 v{SU + 2 * p}, 16, v{192 + p}")
        e(f"v_and_b32 v{SU + 2 * p + 1}, {sMASK}, v{192 + p}")
    align()
    for p in range(10):
        e(f"v_pk_add_f32 {vr(E_ + 2 * p, 2)}, {vr(E_ + 2 * p, 2)}, 1.0 op_sel_hi:[1,0]")
    for p in range(20):
        e(f"v_rcp_f32 v{E_ + p}, v{E_ + p}")
    for p in range(10):
        e(f"v_pk_mul_f32 {vr(A0 + 2 * p, 2)}, {vr(A0 + 2 * p, 2)}, {vr(SU + 2 * p, 2)}")
    for p in range(10):
        e(f"v_lshlrev_b32 v{XU + 2 * p}, 16, v{202 + p}")
        e(f"v_and_b32 v{XU + 2 * p + 1}, {sMASK}, v{202 + p}")
    for p in range(10):
        e(f"v_pk_fma_f32 {vr(A0 + 2 * p, 2)}, {vr(A0 + 2 * p, 2)}, {vr(E_ + 2 * p, 2)}, {vr(XU + 2 * p, 2)}")
    for p in range(10):
        e(f"v_cvt_pk_bf16_f32 v{192 + p}, v{A0 + 2 * p}, v{A0 + 2 * p + 1}")
    for j in range(5):
        g.lds(f"ds_write_b64 v4, {vr(192 + 2 * j, 2)} offset:{32 * j}", "ow")
    g.wlg0()
    for kk in range(3):
        g.lds(f"ds_read_b128 {vr(128 + 4 * kk, 4)}, v5 offset:{1024 * kk}", ("or", kk))
    osc = opt.get("outsc", "")
    for kk in range(3):
        g.wlg(("or", kk))
        g.vmem(f"buffer_store_dwordx4 {vr(128 + 4 * kk, 4)}, v{(12, 13, 15)[kk]}, {SOUT}, {sXO} offen{osc}", "out")
    if diag:
        g.wvm0()
        stamp("end", flush=True)
        e(f"s_mov_b32 s88, s16\ns_mov_b32 s89, s17\ns_mov_b32 s90, 0x1000000\ns_mov_b32 s91, 0x20000")
        e(f"s_lshl_b32 {sT1}, s2, 2\ns_add_u32 {sT1}, {sT1}, {sW}\ns_lshl_b32 {sT1}, {sT1}, 8\ns_add_u32 {sT1}, {sT1}, {TS_BASE}")
        e("v_lshlrev_b32 v2, 2, v0")
        e(f"buffer_store_dword v127, v2, s[88:91], {sT1} offen")
    g.lab("L_end")
    e("s_endpgm")
    e(".p2align 6")
    g.lab("L_spare")
    g.vm = vm0
    g.lg = []
    g.pst = []
    g.sfree = [92, 100]
    if diag:
        e("v_mov_b32 v127, 0")
        e("v_writelane_b32 v127, s92, 60")
    for q in range(5):
        g.vmem(f"buffer_load_dwordx2 {vr(LX + 2 * q, 2)}, v2, {SX}, {sT0} offen offset:{256 * q}", "ln")
    e("s_add_u32 s66, s88, L_spare - L_pc + 256")
    e("s_addc_u32 s67, s89, 0")
    e("s_mov_b32 s68, s66\ns_mov_b32 s69, s67\ns_mov_b32 s70, 0x2000\ns_mov_b32 s71, 0x20000")
    e("v_and_b32 v10, 15, v0")
    e(f"s_lshl_b32 {sT1}, {sW}, 11")
    e("v_lshlrev_b32 v10, 7, v10")
    g.vmem(f"buffer_load_dword v{vFL + 4}, v10, s[68:71], {sT1} offen", "cpf")
    rest_setup()
    rest_loads()
    for r3 in range(3):
        run_items(param_units(r3))
    table_code(TB)
    aE, aL2 = addr_items(XYB_SP, TB)
    run_items(aE + aL2 + gather_items(TB))
    g.wvm("ln")
    stamp("ln_data")
    ln_code()
    ln_tail()
    stamp("ln_done", flush=True)
    e(f"s_lshl_b32 {sMASK}, s2, 2")
    e(f"s_add_u32 {sMASK}, {sMASK}, {LNF}")
    e(f"s_cmp_eq_u32 {sW}, 0")
    e(f"s_cselect_b32 {sMASK}, {sMASK}, {OOB}")
    e(f"v_add_u32 v{vFA}, {LNF}, v1")
    e("v_min_u32 v2, 53, v0")
    e(f"s_lshr_b32 {sF0}, {sDT}, 1")
    e(f"s_lshl_b32 {sF0}, {sF0}, 8")
    e(f"s_add_u32 {sF0}, {sF0}, {WF}")
    e(f"v_lshl_add_u32 v{vFA + 1}, v2, 2, {sF0}")
    e(f"s_mov_b32 {sK1}, {sRND}")
    rb1()
    g.wvm("par")
    tag_code()
    g.lab("L_kgen")
    g.vm = []
    kgen("s", [], 1)
    g.wall()
    e("s_barrier")
    flag_store(sMASK)
    e(f"s_mov_b32 {sMASK}, {OOB}")
    kgen_mfma()
    e(f"s_sub_u32 {sK1}, {sK1}, 1")
    e(f"s_cmp_eq_u32 {sK1}, 0")
    e("s_cbranch_scc1 L_kdone")
    e(f"s_add_u32 {sKR}, {sKR}, {2 * TC}")
    for i in range(8):
        e(f"v_add_u32 v{SC + i}, {2 * TC}, v{SC + i}")
    for i in range(6):
        e(f"v_accvgpr_mov_b32 a{APAR + i}, a{APAR + 8 + i}")
        e(f"v_accvgpr_mov_b32 a{APAR + 8 + i}, a{APAR + 16 + i}")
    e("s_waitcnt lgkmcnt(0)")
    e("s_barrier")
    e("s_branch L_kgen")
    g.lab("L_kdone")
    stamp("kdone", flush=True)
    e(f"s_cmp_lg_u32 {sW}, 0")
    e("s_cbranch_scc1 L_sp_polled")
    poll_block(vFA, True, sleep=16)
    g.lab("L_sp_polled")
    e("s_waitcnt lgkmcnt(0)")
    e("s_barrier")
    stamp("sp_lnf", flush=True)
    run_items(u_loads(sCP, 2))
    rb2()
    conv(False)
    e(f"s_cmp_eq_u32 {sK0}, 0")
    e("s_cbranch_scc1 L_sp_last")
    poll_block(vFA + 1, False, sleep=10)
    for phi in range(P1):
        for it in wd_load(phi):
            e(it[1] if isinstance(it, tuple) else it)
    g.lab("L_sp_last")
    g.vm = ["u", "u"]
    g.lg = []
    for kk in range(3):
        e(f"v_accvgpr_read_b32 v{112 + kk}, a{AS2 + 17 + kk}")
        e(f"s_add_u32 m0, {sXT}, {1024 * kk}")
        e("s_nop 0")
        g.vmem(f"buffer_load_dwordx4 v{112 + kk}, {SX}, {sXO} offen lds", "xt")
    expand()
    e("s_branch L_conv_core")
    for (sl, bk, lst) in g.slow:
        g.lab(sl)
        g.sfree = [88, 90]
        g.pst = []
        if diag:
            e("s_waitcnt lgkmcnt(0)")
        for pi, (av, n4) in enumerate(lst):
            stamp(f"slow{sl[-2:]}_{pi}", flush=True)
            poll_block(av, n4)
        stamp(f"slow{sl[-2:]}_x", flush=True)
        e(f"s_branch {bk}")
    g.lab("L_codeend")

    hdr = [f"; @launch grid=(256,1,1) block=(256,1,1) lds={LDS_TOTAL}",
           '.amdgcn_target "amdgcn-amd-amdhsa--gfx950"', ".text", f".globl {KNAME}", ".p2align 8",
           f".type {KNAME},@function", f"{KNAME}:"]
    ftr = ['.section .rodata,"a"', ".p2align 6", f".amdhsa_kernel {KNAME}",
           "  .amdhsa_next_free_vgpr 512", "  .amdhsa_next_free_sgpr 102", "  .amdhsa_accum_offset 256",
           "  .amdhsa_group_segment_fixed_size 0", "  .amdhsa_kernarg_size 112", "  .amdhsa_user_sgpr_count 2",
           "  .amdhsa_user_sgpr_kernarg_segment_ptr 1", "  .amdhsa_system_sgpr_workgroup_id_x 1",
           "  .amdhsa_float_denorm_mode_32 3",
           ".end_amdhsa_kernel"]
    txt = "\n".join(hdr + g.L + ftr) + "\n"
    if diag:
        txt = txt + "; STAMPS " + ",".join(ts_names) + "\n"
    return txt


if __name__ == "__main__":
    diag = "--diag" in sys.argv
    opt = {}
    for a in sys.argv[1:]:
        if a.startswith("--") and "=" in a:
            k, v = a[2:].split("=")
            opt[k] = int(v) if v.lstrip("-").isdigit() else v.replace("_", " ")
    out = [a for a in sys.argv[1:] if not a.startswith("--")]
    s = gen(diag=diag, opt=opt)
    path = out[0] if out else "recurrent_scan__ssm_conv_s4d__geglu_ffn__prompt.s"
    open(path, "w").write(s)
    print("wrote", path, len(s), "bytes", s.count("\n"), "lines")
```

```python
import sys, struct, math

KNAME = "recurrent_scan__ssm_conv_s4d__geglu_ffn__prompt_kernel"

EPOCH = 0x0
LNF = 0x1000
WF = 0x4400
STATS = 0x8000
XNT = 0x10000
ST = 0x290000
WDP = 0x510000
HB = 0x730000
CSP = 0xDF0000
HF = 0xE26000
SF = 0xE46000
WS_END = 0xE50000
TS_BASE = 0xE60000

SLOT = 49152
MISC = 147456
LNP = 1344
CSB = MISC + 10752 + 5120
XYP = 544
YR0 = 21
XYC = 53 * XYP
XYB_SP, XYB_G1 = 0, 2 * SLOT
LNB = 2 * SLOT
TB_G1 = 157696
PB = 0
UBASE = 69632
UC = 4608
RB = UBASE + 2 * UC
RCS = 4160
RC = 4 * RCS
TC = 2624
TB = MISC
YSO = 650 * 4
SOB = 16384
EXB = 24576
XTB = 112128
STB = XTB + 12288
LDS_TOTAL = 163840
OOB = 0x7fff0000

def f2u(x):
    return struct.unpack("<I", struct.pack("<f", x))[0]

LOG2E = 1.4426950408889634
C0 = -2.0 * math.sqrt(2.0 / math.pi) * LOG2E
C1 = C0 * 0.044715


class G:
    def __init__(self):
        self.L = []
        self.vm = []
        self.lg = []
        self.nlab = 0
        self.slow = []
        self.skip = set()
        self.pst = []
        self.sfree = [92, 100]

    def flush_stamps(self):
        for (sr, lane) in self.pst:
            self.e(f"v_writelane_b32 v127, s{sr}, {lane}")
            self.sfree.append(sr)
        self.pst = []

    def e(self, s):
        for ln in s.split("\n"):
            self.L.append("    " + ln)

    def lab(self, name):
        self.L.append(name + ":")

    def newlab(self, p="L"):
        self.nlab += 1
        return f"{p}_{self.nlab}"

    def vmem(self, s, tag=None):
        if tag in self.skip:
            return
        self.e(s)
        self.vm.append(tag)

    def lds(self, s, tag=None):
        self.e(s)
        self.lg.append(tag)

    def _n(self, q, tag):
        idx = max(i for i, t in enumerate(q) if t == tag)
        return idx, sum(1 for t in q[idx + 1:] if t != "OPT")

    def wvm(self, tag):
        if tag not in self.vm:
            return
        idx, n = self._n(self.vm, tag)
        self.e(f"s_waitcnt vmcnt({min(n, 63)})")
        self.vm = self.vm[idx + 1:]

    def wlg(self, tag):
        if tag not in self.lg:
            return
        idx, n = self._n(self.lg, tag)
        self.e(f"s_waitcnt lgkmcnt({min(n, 15)})")
        self.lg = self.lg[idx + 1:]

    def wvm0(self):
        self.e("s_waitcnt vmcnt(0)")
        self.vm = []

    def wlg0(self):
        self.e("s_waitcnt lgkmcnt(0)")
        self.lg = []
        self.flush_stamps()

    def wall(self):
        self.e("s_waitcnt vmcnt(0) lgkmcnt(0)")
        self.vm = []
        self.lg = []
        self.flush_stamps()

    def nop(self, n):
        while n > 0:
            k = min(n, 16)
            self.e(f"s_nop {k - 1}")
            n -= k

    def do(self, item):
        if callable(item):
            item()
        elif isinstance(item, tuple):
            kind = item[0]
            if kind == "vm":
                self.vmem(item[1], item[2])
            elif kind == "lds":
                self.lds(item[1], item[2])
            elif kind == "wvm":
                self.wvm(item[1])
            elif kind == "wlg":
                self.wlg(item[1])
            else:
                raise ValueError(kind)
        else:
            self.e(item)


def vr(a, n):
    return f"v[{a}:{a + n - 1}]"


def ar(a, n):
    return f"a[{a}:{a + n - 1}]"


SX, SWG, SWU, SWS, SOUT, SWD = "s[4:7]", "s[8:11]", "s[12:15]", "s[16:19]", "s[20:23]", "s[24:27]"
P_LAR, P_AIM, P_CRE, P_CIM, P_LDT, P_DSK = "s[28:29]", "s[30:31]", "s[32:33]", "s[34:35]", "s[36:37]", "s[38:39]"
sW, sTAG, sM, sFT, sISG1, sCP, sRND, sSP = "s40", "s41", "s42", "s43", "s44", "s45", "s46", "s47"
sXCD, sQ = "s48", "s49"
sXM0, sWM0, sXS, sWSO = "s50", "s51", "s52", "s53"
sT0, sT1, sT2, sT3, sT4, sT5 = "s54", "s55", "s56", "s57", "s58", "s59"
sMASK, sCNT = "s60", "s61"
sRHO, sC = "s62", "s63"
sHS0, sHS1 = "s64", "s65"
sG2 = 66
STW = "s[96:99]"
sF0, sF1, sF2 = "s0", "s1", "s3"
sLT, sDT = "s82", "s83"
sWDS = "s84"
sPEND, sXO = "s85", "s86"
sKR = "s87"
sXT, sSTO = "s94", "s95"
sK0, sK1 = "s96", "s97"

vT = 2
vXO = 16
vWO = 24
vBA = 26
vAA = 34
vCS = 42
vHO = 44
vTO = 46
vSTA = 48
vU = 56
vAF = 64
vBF = 96
vPAR = 112
vFA = 118
vEP = 120
vFL = 122
vACC = 128
SC = 56
GA = 24
AST = 224
AS2 = 192
PKB = MISC
vWDV = 232


def gen(diag=False, opt=None):
    opt = opt or {}
    TOUCH = opt.get("touch", 0)
    P1 = opt.get("p1", 32)
    KCHK = opt.get("kchk", 29)
    g = G()
    e = g.e
    if opt.get('nolnst'):
        g.skip.add('lnst')
    ts_names = []
    vTAG, vL0 = vEP, vEP + 1

    def stamp(name, cyc=False, flush=False):
        if not diag:
            return
        if opt.get("dbg"):
            sel = ["x0", "x1", "par_data", "kdone", "g1_start", "g1_loop_end", "g1_epi_end", "conv_startL", "conv_endL", "g2_start", "g2_loop_end", "end", "sp_lnf", "conv_startE"]
            if name not in sel:
                return
            ts_names[:] = sel
        if name not in ts_names:
            ts_names.append(name)
        i = ts_names.index(name)
        if not g.sfree:
            g.wlg0()
        sr = g.sfree.pop(0)
        e(f"{'s_memtime' if cyc else 's_memrealtime'} s[{sr}:{sr + 1}]")
        g.pst.append((sr, i))
        if flush:
            g.wlg0()

    def interleave(fn, units, every):
        n0 = len(g.L)
        fn()
        body = g.L[n0:]
        del g.L[n0:]
        cnt = 0
        for bi, ln in enumerate(body):
            g.L.append(ln)
            cnt += 1
            nxt_ = body[bi + 1].strip() if bi + 1 < len(body) else ""
            if nxt_.startswith(("s_cselect", "s_addc", "s_cbranch")):
                continue
            if units and cnt >= every:
                u = units[0]
                if isinstance(u, tuple) and u[0] == "m0":
                    e(u[1])
                    units.pop(0)
                    cnt = every - 1
                else:
                    g.do(u)
                    units.pop(0)
                    cnt = 0 if isinstance(u, tuple) else every - 1

    def align():
        e(".p2align 3")

    def red(op, v, t, full):
        for dpp in ("quad_perm:[1,0,3,2]", "quad_perm:[2,3,0,1]", "row_half_mirror", "row_mirror"):
            g.nop(2)
            e(f"{op} v{v}, v{v}, v{v} {dpp}")
        e(f"v_mov_b32 v{t}, v{v}")
        g.nop(2)
        e(f"v_permlane16_swap_b32 v{v}, v{t}")
        g.nop(1)
        e(f"{op} v{v}, v{v}, v{t}")
        if full:
            e(f"v_mov_b32 v{t}, v{v}")
            g.nop(2)
            e(f"v_permlane32_swap_b32 v{v}, v{t}")
            g.nop(1)
            e(f"{op} v{v}, v{v}, v{t}")

    def bf16round(v):
        e(f"v_cvt_pk_bf16_f32 v{v}, v{v}, v{v}")
        e(f"v_lshlrev_b32 v{v}, 16, v{v}")

    def check4(tmp):
        return [f"v_xor_b32 v{tmp}, v{vTAG}, v{tmp}", f"v_xor_b32 v{tmp + 1}, v{vTAG}, v{tmp + 1}",
                f"v_xor_b32 v{tmp + 2}, v{vTAG}, v{tmp + 2}", f"v_xor_b32 v{tmp + 3}, v{vTAG}, v{tmp + 3}",
                f"v_or3_b32 v{tmp}, v{tmp}, v{tmp + 1}, v{tmp + 2}", f"v_or_b32 v{tmp}, v{tmp}, v{tmp + 3}",
                f"v_cmp_ne_u32 vcc, 0, v{tmp}"]

    def poll_block(addr_v, n4, sleep=opt.get('sleep', 8)):
        lp = g.newlab("Lpoll")
        dn = g.newlab("Lpd")
        tmp = vFL
        e(f"s_mov_b32 {sCNT}, 0x4000")
        g.lab(lp)
        if n4:
            e(f"buffer_load_dwordx4 {vr(tmp, 4)}, v{addr_v}, {SWS}, 0 offen sc1")
            e("s_waitcnt vmcnt(0)")
            for x in check4(tmp):
                e(x)
        else:
            e(f"buffer_load_dword v{tmp}, v{addr_v}, {SWS}, 0 offen sc1")
            e("s_waitcnt vmcnt(0)")
            e(f"v_cmp_ne_u32 vcc, v{vTAG}, v{tmp}")
        e(f"s_cbranch_vccz {dn}")
        e(f"s_sleep {sleep}")
        e(f"s_sub_u32 {sCNT}, {sCNT}, 1")
        e(f"s_cbranch_scc0 {lp}")
        g.lab(dn)

    def flag_store(soff):
        e(f"buffer_store_dword v{vTAG}, v{vL0}, {SWS}, {soff} offen sc1")

    def wd_load(phi):
        dst = ar(4 * phi, 4) if phi < 64 else vr(vWDV + 4 * (phi - 64), 4)
        pre = []
        if phi >= 65:
            if phi == 65 or phi == 68:
                pre.append(f"s_add_u32 {sT5}, {sWDS}, {(phi // 4) * 4096}")
                pre.append(f"s_cmp_lt_u32 {sW}, 2\ns_cselect_b32 {sT5}, {sT5}, {OOB}")
        elif phi % 4 == 0:
            pre.append(f"s_add_u32 {sT5}, {sWDS}, {(phi // 4) * 4096}")
        return pre + [("vm", f"buffer_load_dwordx4 {dst}, v1, {SWS}, {sT5} offen offset:{(phi % 4) * 1024} sc1", ("wd", phi))]

    def u_loads(cpreg, va):
        return [f"v_accvgpr_read_b32 v{va}, a{AS2 + 23}",
                f"s_mul_i32 {sF0}, {sW}, {64 * 10240}",
                f"s_lshl_b32 {sF1}, {cpreg}, 5",
                f"s_add_u32 {sF0}, {sF0}, {sF1}",
                f"s_add_u32 {sF0}, {sF0}, {XNT}",
                f"s_add_u32 {sF1}, {sF0}, {32 * 10240}",
                ("vm", f"buffer_load_dwordx4 {vr(vU, 4)}, v{va}, {SWS}, {sF0} offen sc1", "u"),
                ("vm", f"buffer_load_dwordx4 {vr(vU + 4, 4)}, v{va}, {SWS}, {sF1} offen sc1", "u")]

    def table_code(TB):
        def put(i, src):
            e(f"v_lshl_add_u32 v{src}, v{src}, 2, {sF2}")
            e(f"v_accvgpr_write_b32 a{AST + i}, v{src}")
        e(f"s_mul_i32 {sF2}, {sC}, {TC}")
        e(f"s_add_u32 {sF2}, {sF2}, {TB + 4}")
        e("v_lshrrev_b32 v4, 4, v0")
        e(f"s_lshl_b32 {sF1}, {sRHO}, 2")
        e(f"v_add_u32 v4, {sF1}, v4")
        e("v_and_b32 v5, 15, v0")
        DUM = 645
        e("v_cmp_eq_u32 s[54:55], 2, v4")
        e("v_cmp_eq_u32 s[56:57], 3, v4")
        e("v_cmp_eq_u32 s[58:59], 4, v4")
        e("v_cmp_lt_u32 vcc, 4, v4")
        e("v_mov_b32 v6, 8")
        e("v_cndmask_b32 v6, v6, 4, s[54:55]")
        e("v_cndmask_b32 v6, v6, 2, s[56:57]")
        e("v_cndmask_b32 v6, v6, 1, s[58:59]")
        e("v_cndmask_b32 v6, v6, 0, vcc")
        e("v_mul_u32_u24 v7, v6, v5")
        e("v_lshlrev_b32 v8, 4, v6")
        for i in range(4):
            e(f"v_lshl_add_u32 v9, v4, 2, {i}")
            for sreg, val in (("s[54:55]", 256 + i), ("s[56:57]", 384 + 64 * (i >> 1) + (i & 1)), ("s[58:59]", 512 + 32 * i), ("vcc", DUM)):
                e(f"v_mov_b32 v10, {val}")
                e(f"v_cndmask_b32 v9, v9, v10, {sreg}")
            e("v_add_u32 v9, v9, v7")
            e("v_add_u32 v11, v9, v8")
            if i == 0:
                e("v_lshl_add_u32 v6, v4, 4, v5")
                e("v_mov_b32 v10, 80")
                e("v_cmp_eq_u32 s[60:61], v10, v6")
                e("v_mov_b32 v10, 640")
                e("s_nop 0")
                e("v_cndmask_b32 v9, v9, v10, s[60:61]")
            put(i, 9)
            put(4 + i, 11)

    def gather_items(TB):
        it = [f"s_mul_i32 {sF2}, {sC}, {TC}", f"s_add_u32 {sF2}, {sF2}, {TB + 4}",
              f"s_lshl_b32 {sF1}, {sRHO}, 10", f"s_sub_u32 {sF1}, 2047, {sF1}", "v_lshlrev_b32 v12, 3, v0",
              f"v_sub_u32 v12, {sF1}, v12", f"s_movk_i32 {sF1}, 128"]
        for ch in range(2):
            for k in range(11):
                it += [f"v_subrev_u32 v2, {512 * ch + k}, v12", "v_max_i32 v3, 0, v2", "v_cvt_f32_u32 v3, v3",
                       f"v_med3_i32 v2, v2, -1, {sF1}", "v_cvt_pk_bf16_f32 v3, v3, 0", "v_subrev_u32 v3, 0x4280, v3",
                       "v_max_i32 v2, v2, v3", f"v_lshl_add_u32 v2, v2, 2, {sF2}",
                       f"v_accvgpr_write_b32 a{AST + 8 + 11 * ch + k}, v2"]
        return it

    def addr_items(XYB, TB):
        it = []
        A = it.append
        def st(i, r):
            A(f"v_accvgpr_write_b32 a{AS2 + i}, v{r}")
        A(f"s_mul_i32 {sF0}, {sC}, {XYC}")
        A(f"s_add_u32 {sF0}, {sF0}, {XYB}")
        A(f"v_lshl_add_u32 v2, v0, 3, {sF0}")
        st(0, 2)
        A("v_and_b32 v12, 15, v0")
        A("v_lshrrev_b32 v13, 4, v0")
        A(f"v_mul_u32_u24 v2, {XYP}, v12")
        A("v_lshl_add_u32 v2, v13, 4, v2")
        A(f"v_add_u32 v3, {sF0}, v2")
        st(2, 3)
        A(f"s_mul_i32 {sF1}, {sRHO}, {16 * XYP}")
        A(f"v_add_u32 v3, {sF1}, v3")
        st(1, 3)
        A(f"s_mul_i32 {sF2}, {sC}, {TC}")
        A(f"s_add_u32 {sF2}, {sF2}, {TB}")
        A(f"v_mov_b32 v2, {sF2}")
        st(6, 2)
        A("EARLY_END")
        A("v_and_b32 v12, 15, v0")
        A("v_lshrrev_b32 v13, 4, v0")
        A(f"s_mul_i32 {sF0}, {sC}, {UC}")
        A(f"s_lshl_b32 {sF1}, {sRHO}, 8")
        A(f"s_add_u32 {sF2}, {sF0}, {sF1}")
        A(f"s_add_u32 {sF2}, {sF2}, {UBASE}")
        A(f"v_add_u32 v2, {sF2}, v1")
        A(f"s_sub_u32 {sF2}, {sF0}, {sF1}")
        A(f"s_add_u32 {sF2}, {sF2}, {UBASE + 32 + 256}")
        A("v_lshlrev_b32 v14, 5, v12")
        A("v_lshl_add_u32 v3, v13, 4, v14")
        A(f"v_add_u32 v3, {sF2}, v3")
        st(8, 3)
        A("v_lshl_add_u32 v14, v13, 3, v14")
        A(f"s_lshl_b32 {sF2}, {sRHO}, 11")
        A(f"s_add_u32 {sF2}, {sF2}, {sF0}")
        A(f"s_add_u32 {sF2}, {sF2}, {UBASE + 512}")
        A(f"v_add_u32 v3, {sF2}, v14")
        st(11, 3)
        A(f"s_lshl_b32 {sF2}, {sW}, 11")
        A(f"s_add_u32 {sF2}, {sF2}, {SOB}")
        A(f"v_add_u32 v3, {sF2}, v14")
        st(12, 3)
        A(f"v_add_u32 v3, {sF2}, v1")
        st(13, 3)
        A(f"s_mul_i32 {sF0}, {sC}, {RC}")
        A(f"s_mul_i32 {sF2}, {sRHO}, {2 * RCS}")
        A(f"s_add_u32 {sF2}, {sF2}, {sF0}")
        A(f"s_add_u32 {sF2}, {sF2}, {RB + 4096}")
        A("v_bfe_u32 v3, v0, 1, 1")
        A(f"v_mul_u32_u24 v3, {RCS}, v3")
        A("v_and_b32 v15, 1, v0")
        A("v_lshl_add_u32 v3, v15, 4, v3")
        A(f"v_add_u32 v3, {sF2}, v3")
        A("v_cmp_lt_u32 vcc, 15, v0\ns_nop 1\nv_cndmask_b32 v2, v2, v3, vcc")
        st(3, 2)
        A(f"s_lshl_b32 {sF2}, {sRHO}, 11")
        A(f"s_add_u32 {sF2}, {sF2}, {sF0}")
        A(f"s_add_u32 {sF2}, {sF2}, {RB}")
        A(f"v_add_u32 v2, {sF2}, v1")
        st(4, 2)
        A("v_sub_u32 v2, 3, v12")
        A("v_and_b32 v2, 3, v2")
        A(f"v_mul_u32_u24 v2, {RCS}, v2")
        A("v_lshl_add_u32 v2, v13, 4, v2")
        A("v_and_b32 v3, 12, v12")
        A("v_lshlrev_b32 v3, 1, v3")
        A("v_sub_u32 v2, v2, v3")
        A(f"s_sub_u32 {sF2}, {sF0}, {sF1}")
        A(f"s_add_u32 {sF2}, {sF2}, {RB + 24 + 256}")
        A(f"v_add_u32 v2, {sF2}, v2")
        st(7, 2)
        A(f"v_mul_u32_u24 v2, {UC}, v15")
        A("v_lshrrev_b32 v3, 1, v0")
        A("v_lshl_add_u32 v2, v3, 4, v2")
        A(f"s_lshl_b32 {sF2}, {sW}, 10")
        A(f"s_add_u32 {sF2}, {sF2}, {UBASE + 512}")
        A(f"v_add_u32 v2, {sF2}, v2")
        st(5, 2)
        A("v_mul_u32_u24 v3, 10240, v3")
        A("v_lshl_add_u32 v3, v15, 4, v3")
        st(23, 3)
        A(f"s_lshl_b32 {sF2}, {sW}, 12")
        A(f"v_add_u32 v2, {sF2}, v1")
        st(9, 2)
        A("v_xor_b32 v2, 0x1000, v2")
        st(10, 2)
        A(f"s_mul_i32 {sF0}, {sW}, 14")
        A(f"s_cmp_eq_u32 {sW}, 3\ns_cselect_b32 {sF1}, 1, 0")
        A(f"s_sub_u32 {sF0}, {sF0}, {sF1}")
        A(f"s_mul_i32 {sF1}, {sDT}, 54")
        A(f"s_add_u32 {sF1}, {sF0}, {sF1}")
        A(f"s_mul_i32 {sF1}, {sF1}, 5120")
        A(f"s_add_u32 {sWDS}, {sF1}, {WDP}")
        for k in range(4):
            A(f"s_add_u32 {sF1}, {sW}, {k + 1}")
            A(f"s_and_b32 {sF1}, {sF1}, 3")
            if k < 3:
                A(f"s_mul_i32 {sF2}, {sF1}, 15360")
                A(f"s_add_u32 {sF2}, {sF2}, {EXB + 5120 * k}")
                A(f"v_add_u32 v2, {sF2}, v1")
                st(14 + k, 2)
            A(f"s_lshl_b32 {sF2}, {sLT}, 2")
            A(f"s_add_u32 {sF1}, {sF1}, {sF2}")
            A(f"s_mul_i32 {sF1}, {sF1}, 54")
            A(f"s_add_u32 {sF1}, {sF1}, {sF0}")
            A(f"s_lshl_b32 {sF1}, {sF1}, 10")
            A(f"s_add_u32 s{sG2 + 4 * k}, {sF1}, {HB}")
            for q in range(1, 4):
                A(f"s_add_u32 s{sG2 + 4 * k + q}, s{sG2 + 4 * k}, {4096 * q}")
        A(f"s_mov_b32 {sF0}, {0x100000000 // 10 + 1}")
        for kk in range(3):
            A(f"v_add_u32 v2, {64 * kk}, v0")
            A(f"v_mul_hi_u32 v3, v2, {sF0}")
            A("v_mul_u32_u24 v12, 10, v3")
            A("v_sub_u32 v12, v2, v12")
            A("v_mul_u32_u24 v3, 1280, v3")
            A("v_lshl_add_u32 v2, v12, 4, v3")
            st(17 + kk, 2)
        A(f"v_mov_b32 v3, {OOB}")
        A("v_cmp_lt_u32 vcc, 31, v0\ns_nop 1\nv_cndmask_b32 v2, v2, v3, vcc")
        st(20, 2)
        A(f"s_lshl_b32 {sXO}, {sLT}, 2")
        A(f"s_add_u32 {sXO}, {sXO}, {sW}")
        A(f"s_mul_i32 {sXO}, {sXO}, {16 * 1280}")
        A(f"s_mul_i32 {sF0}, {sDT}, 160")
        A(f"s_add_u32 {sXO}, {sXO}, {sF0}")
        A(f"s_mul_i32 {sXT}, {sW}, 3072")
        A(f"s_add_u32 {sXT}, {sXT}, {XTB}")
        A(f"s_mul_i32 {sSTO}, {sDT}, 80")
        A(f"s_lshl_b32 {sF0}, {sW}, 3")
        A(f"s_add_u32 {sSTO}, {sSTO}, {sF0}")
        A(f"s_lshl_b32 {sSTO}, {sSTO}, 12")
        A(f"s_lshl_b32 {sF0}, {sLT}, 7")
        A(f"s_add_u32 {sSTO}, {sSTO}, {sF0}")
        A(f"s_add_u32 {sSTO}, {sSTO}, {ST}")
        A(f"s_lshl_b32 {sF0}, {sLT}, 12")
        A(f"s_add_u32 {sF0}, {sF0}, {HF}")
        A("v_min_u32 v2, 26, v0")
        A(f"v_lshl_add_u32 v2, v2, 7, {sF0}")
        st(21, 2)
        A(f"s_mul_i32 {sF0}, {sDT}, {40 * 128}")
        A(f"s_add_u32 {sF0}, {sF0}, {SF}")
        A("v_min_u32 v2, 39, v0")
        A(f"v_lshl_add_u32 v2, v2, 7, {sF0}")
        st(22, 2)
        k_ = it.index("EARLY_END")
        return it[:k_], it[k_ + 1:]

    e("s_cmp_ge_u32 s2, 256")
    e("s_cbranch_scc1 L_end")
    if diag:
        e("s_memrealtime s[92:93]")
    if opt.get("dbg"):
        e("s_mov_b64 s[100:101], s[0:1]")
        g.sfree = [92]
    e("s_getpc_b64 s[88:89]")
    g.lab("L_pc")
    e("s_load_dwordx2 s[4:5], s[0:1], 0")
    e("s_load_dwordx2 s[16:17], s[0:1], 104")
    e("s_load_dwordx2 s[8:9], s[0:1], 64")
    e("s_load_dwordx2 s[12:13], s[0:1], 72")
    e("s_load_dwordx4 s[28:31], s[0:1], 8")
    e("s_load_dwordx4 s[32:35], s[0:1], 24")
    e("s_load_dwordx4 s[36:39], s[0:1], 40")
    NSP = opt.get("nsp", 0)
    for i in range(NSP):
        e(f"s_load_dword s{66 + i}, s[88:89], {256 + 128 * i}")
    e("v_lshrrev_b32 v2, 6, v0")
    e("v_and_b32 v3, 15, v0")
    e("s_mov_b32 s90, L_codeend - L_pc")
    e("s_mov_b32 s91, 0x20000")
    e("v_lshl_add_u32 v3, v2, 4, v3")
    e(f"v_readfirstlane_b32 {sW}, v2")
    e("v_lshlrev_b32 v3, 7, v3")
    if opt.get("cpf0", 1):
        e(f"buffer_load_dword v{vFL + 3}, v3, s[88:91], 0 offen offset:{min(256 + 128 * NSP, 4000)}")
        g.vm.append("cpf")
    e("v_and_b32 v0, 63, v0")
    e("s_mov_b32 s6, 2621440\ns_mov_b32 s7, 0x20000")
    e("v_lshrrev_b32 v2, 5, v0")
    e("v_and_b32 v3, 31, v0")
    e("v_mul_u32_u24 v2, 1280, v2")
    e(f"s_lshl_b32 {sT0}, s2, 2")
    e(f"s_add_u32 {sT0}, {sT0}, {sW}")
    e("v_lshl_add_u32 v2, v3, 3, v2")
    e(f"s_mul_i32 {sT0}, {sT0}, 2560")
    e(f"s_and_b32 {sXCD}, s2, 7")
    e(f"s_lshr_b32 {sQ}, s2, 3")
    e(f"s_and_b32 {sM}, s2, 1")
    e(f"s_lshr_b32 {sT1}, {sXCD}, 1")
    e(f"s_and_b32 {sT2}, {sQ}, 3")
    e(f"s_lshr_b32 {sDT}, {sQ}, 2")
    e(f"s_lshl_b32 {sM}, {sM}, 2")
    e(f"s_add_u32 {sM}, {sM}, {sT2}")
    e(f"s_mul_i32 {sFT}, {sT1}, 7")
    e(f"s_add_u32 {sFT}, {sFT}, {sDT}")
    e("v_lshrrev_b32 v4, 3, v0")
    e("v_and_b32 v5, 7, v0")
    e("v_lshrrev_b32 v6, 4, v0")
    e("v_mul_u32_u24 v7, 1280, v4")
    e("v_xor_b32 v8, v5, v6")
    e("v_xor_b32 v9, 4, v8")
    e(f"v_lshl_add_u32 v{vXO}, v8, 4, v7")
    e(f"v_lshl_add_u32 v{vXO + 1}, v9, 4, v7")
    e("v_mul_u32_u24 v7, 3456, v4")
    e("v_and_b32 v8, 1, v6")
    e(f"v_add_u32 v{vXO + 1}, {8 * 1280 - 1024}, v{vXO + 1}")
    e("v_lshlrev_b32 v8, 2, v8")
    e("v_xor_b32 v8, v5, v8")
    e(f"v_lshl_add_u32 v{vWO}, v8, 4, v7")
    e(f"s_lshl_b32 {sWM0}, {sW}, 11")
    e(f"s_mul_i32 {sWSO}, {sW}, {16 * 3456}")
    e(f"s_lshl_b32 {sT1}, {sFT}, 7")
    e(f"s_add_u32 {sWSO}, {sWSO}, {sT1}")
    e(f"v_add_u32 v{vWO + 1}, {8 * 3456 - 1024}, v{vWO}")
    e("s_mov_b32 s10, 2211840\ns_mov_b32 s11, 0x20000")
    e("s_mov_b32 s14, s10\ns_mov_b32 s15, 0x20000")
    e(f"s_cmp_lt_u32 {sDT}, 7")
    e(f"s_cselect_b32 {sT3}, {sFT}, 27")
    e(f"s_lshl_b32 {sXS}, {sM}, 2")
    e(f"s_add_u32 {sXS}, {sXS}, {sW}")
    e(f"s_mul_i32 {sXS}, {sXS}, {64 * 1280}")
    e(f"s_lshl_b32 {sXM0}, {sW}, 13")
    e(f"s_add_u32 {sXM0}, {sXM0}, 16384")
    e(f"s_cmp_lt_u32 {sT3}, 27")
    e(f"s_cselect_b32 {sISG1}, 1, 0")
    e(f"s_mul_i32 {sCP}, {sM}, 27")
    e(f"s_add_u32 {sCP}, {sCP}, {sFT}")
    e(f"s_min_u32 {sCP}, {sCP}, 319")
    e(f"s_lshr_b32 {sC}, {sW}, 1")
    e(f"s_lshl_b32 {sT1}, {sCP}, 1")
    e(f"s_add_u32 {sT1}, {sT1}, {sC}")
    e(f"s_lshl_b32 {sT1}, {sT1}, 8")
    e(f"v_lshl_add_u32 v12, v0, 2, {sT1}")
    e(f"s_lshl_b32 {sT1}, {sCP}, 2")
    e(f"v_mov_b32 v13, {sT1}")
    e("s_waitcnt lgkmcnt(0)")
    e(f"s_cmp_eq_u32 {sISG1}, 0")
    e("s_cbranch_scc1 L_spare")
    if diag:
        e("v_mov_b32 v127, 0")
        e("v_writelane_b32 v127, s92, 60")
    stamp("start")
    if opt.get("pt", 0):
        e("v_mov_b32 v12, s4\nv_mov_b32 v13, s5")
        e("s_add_u32 s68, s4, 0x200000\ns_addc_u32 s69, s5, 0")
        for ln, lo in ((1, 68), (2, 8), (3, 12), (4, 16)):
            e(f"v_writelane_b32 v12, s{lo}, {ln}\nv_writelane_b32 v13, s{lo + 1}, {ln}")
        g.vmem(f"global_load_dword v{vFL + 4}, v[12:13], off", "cpf")
    if diag and not opt.get("dbg"):
        e("s_memrealtime s[100:101]\ns_waitcnt lgkmcnt(0)\nv_writelane_b32 v127, s100, 55")
    APAR = 160
    for k, p in enumerate((P_LAR, P_AIM, P_CRE, P_CIM)):
        g.vmem(f"global_load_dword a{APAR + k}, v12, {p}", "par")
    g.vmem(f"global_load_dword a{APAR + 4}, v13, {P_LDT}", "par")
    g.vmem(f"global_load_dword a{APAR + 5}, v13, {P_DSK}", "par")
    LX = 232
    for q in range(5):
        g.vmem(f"buffer_load_dwordx2 {vr(LX + 2 * q, 2)}, v2, {SX}, {sT0} offen offset:{256 * q}", "ln")

    if diag and not opt.get("dbg"):
        e("s_memrealtime s[100:101]\ns_waitcnt lgkmcnt(0)\nv_writelane_b32 v127, s100, 56")

    def rest_setup():
        e("s_load_dwordx2 s[24:25], s[0:1], 80")
        e("s_load_dwordx2 s[20:21], s[0:1], 88")
        e("v_lshlrev_b32 v1, 4, v0")
        e(f"s_mov_b32 s18, {WS_END}\ns_mov_b32 s19, 0x20000")
        e(f"v_mov_b32 v{vL0}, {OOB}")
        e(f"v_writelane_b32 v{vL0}, 0, 0")
        e("s_mov_b32 s22, 2621440\ns_mov_b32 s23, 0x20000")
        e("s_mov_b32 s26, 2211840\ns_mov_b32 s27, 0x20000")
        e(f"s_lshl_b32 {sT4}, {sXCD}, 2")
        e(f"s_and_b32 {sT2}, {sQ}, 3")
        e(f"s_add_u32 {sLT}, {sT4}, {sT2}")
        e(f"s_add_u32 {sT4}, {sT4}, {sQ}")
        e(f"s_sub_u32 {sT4}, {sT4}, 28")
        e(f"s_lshl_b32 {sT5}, {sXCD}, 3")
        e(f"s_add_u32 {sT5}, {sT5}, {sQ}")
        e(f"s_sub_u32 {sT5}, {sT5}, 48")
        e(f"s_cmp_lt_u32 {sXCD}, 6\ns_cselect_b32 {sSP}, {sT4}, {sT5}")
        e(f"s_mul_i32 {sT4}, {sM}, 27")
        e(f"s_add_u32 {sT4}, {sT4}, {sFT}")
        e(f"s_add_u32 {sT5}, {sSP}, 216")
        e(f"s_cmp_lg_u32 {sISG1}, 0\ns_cselect_b32 {sCP}, {sT4}, {sT5}")
        e(f"s_cmp_lt_u32 {sSP}, 24\ns_cselect_b32 {sRND}, 3, 2")
        e(f"s_and_b32 {sRHO}, {sW}, 1")
        e(f"s_lshr_b32 {sC}, {sW}, 1")
        e("v_lshlrev_b32 v10, 21, v0")
        e(f"v_mov_b32 v{vFA}, v1")
        e(f"v_mov_b32 v{vFA + 1}, v1")
        e("v_mul_u32_u24 v54, 17280, v4")
        e("v_lshl_add_u32 v54, v5, 4, v54")
        e(f"s_lshl_b32 {sHS0}, {sM}, 1")
        e(f"s_add_u32 {sHS0}, {sHS0}, {sRHO}")
        e(f"s_mul_i32 {sHS0}, {sHS0}, {40 * 3456}")
        e(f"s_lshl_b32 {sT1}, {sFT}, 7")
        e(f"s_add_u32 {sHS0}, {sHS0}, {sT1}")
        e("s_mov_b32 s98, 2211840\ns_mov_b32 s99, 0x20000")
        e(f"s_cmp_eq_u32 {sC}, 0\ns_cselect_b32 s96, s8, s12\ns_cselect_b32 s97, s9, s13")
        e(f"s_lshl_b32 {sT1}, {sQ}, 2")
        e(f"s_add_u32 {sT1}, {sT1}, {sW}")
        e(f"s_mul_i32 {sT1}, {sT1}, 384")
        e(f"s_add_u32 {sT1}, {sT1}, {8192 + min(256 + 128 * NSP, 4000)}")
        e("v_min_u32 v11, 2, v0")
        e("v_lshlrev_b32 v11, 7, v11")

    def rest_loads():
        g.vmem(f"buffer_load_dword v{vTAG}, v{vL0}, {SWS}, 0 offen sc1", "ep")
        g.vmem(f"buffer_load_dword v{vFL + 2}, v11, s[88:91], {sT1} offen", "tlb")
        g.vmem(f"buffer_load_dword v{vFL}, v10, {SWS}, 0 offen", "tlb")
        e("s_waitcnt lgkmcnt(0)")
        g.vmem(f"buffer_load_dword v{vFL + 1}, v10, {SOUT}, 0 offen", "tlb")

    def dma_units(stage):
        sb = (stage % 3) * SLOT
        out = []
        for mat in range(2):
            out.append(("m0", f"s_add_u32 m0, {sWM0}, {sb + mat * 8192}"))
            for half in range(2):
                o = f" offset:{1024 * half}" if half else ""
                out.append(("vm", f"buffer_load_dwordx4 v{vWO + half}, {SWG if mat == 0 else SWU}, {sWSO} offen{o} lds", ("dma", stage)))
        for i in range(8):
            if i % 4 == 0:
                out.append(("m0", f"s_add_u32 m0, {sXM0}, {sb + i * 1024}"))
            o = f" offset:{1024 * (i & 3)}" if i & 3 else ""
            out.append(("vm", f"buffer_load_dwordx4 v{vXO + i}, {SX}, {sXS} offen{o} lds", ("dma", stage)))
        out.append(f"s_add_u32 {sXS}, {sXS}, 128")
        out.append(f"s_add_u32 {sWSO}, {sWSO}, {64 * 3456}")
        return out

    def dma_block(stage):
        for u in dma_units(stage):
            if isinstance(u, tuple) and u[0] == "m0":
                e(u[1])
                e("s_nop 0")
            else:
                g.do(u)

    APAR = 160
    def param_units(rnd):
        out = [f"s_add_u32 {sT2}, {sCP}, {40 * rnd}", f"s_min_u32 {sT2}, {sT2}, 319",
               f"s_lshl_b32 {sT1}, {sT2}, 1", f"s_add_u32 {sT1}, {sT1}, {sC}", f"s_lshl_b32 {sT1}, {sT1}, 8",
               f"v_lshl_add_u32 v12, v0, 2, {sT1}", f"s_lshl_b32 {sT1}, {sT2}, 2", f"v_mov_b32 v13, {sT1}"]
        for k, p in enumerate((P_LAR, P_AIM, P_CRE, P_CIM)):
            out.append(("vm", f"global_load_dword a{APAR + 8 * rnd + k}, v12, {p}", "par"))
        out.append(("vm", f"global_load_dword a{APAR + 8 * rnd + 4}, v13, {P_LDT}", "par"))
        out.append(("vm", f"global_load_dword a{APAR + 8 * rnd + 5}, v13, {P_DSK}", "par"))
        return out

    CSR = [56, 60, 112, 116, 52]
    def csl_units():
        out = []
        for j5 in range(5):
            if j5 in (2, 4):
                out.append(f"s_add_u32 {sHS0}, {sHS0}, {2 * 3456}")
            out.append(("vm", f"buffer_load_dwordx4 {vr(CSR[j5], 4)}, v54, {STW}, {sHS0} offen offset:{(j5 % 2) * 3456}", ("csl", j5)))
        return out
    def emit_units(us):
        for u in us:
            if isinstance(u, tuple) and u[0] == "m0":
                e(u[1])
                e("s_nop 0")
            else:
                g.do(u)

    def split_units(us, n):
        c = 0
        for ix, u in enumerate(us):
            if isinstance(u, tuple) and u[0] == "vm":
                c += 1
                if c == n:
                    return us[:ix + 1], us[ix + 1:]
        return us, []

    def run_items(items):
        for it in items:
            g.do(it)

    F, S, Dv, SO, UO = 140, 160, 164, 184, 188
    def ln_code(bar=False):
        for q in range(10):
            e(f"v_lshlrev_b32 v{F + 2 * q}, 16, v{LX + q}")
            e(f"v_and_b32 v{F + 2 * q + 1}, 0xffff0000, v{LX + q}")
        e(f"v_pk_add_f32 {vr(S, 2)}, {vr(F, 2)}, {vr(F + 2, 2)}")
        e(f"v_pk_add_f32 {vr(S + 2, 2)}, {vr(F + 4, 2)}, {vr(F + 6, 2)}")
        for q in range(4, 10, 2):
            e(f"v_pk_add_f32 {vr(S, 2)}, {vr(S, 2)}, {vr(F + 2 * q, 2)}")
            e(f"v_pk_add_f32 {vr(S + 2, 2)}, {vr(S + 2, 2)}, {vr(F + 2 * q + 2, 2)}")
        e(f"v_pk_add_f32 {vr(S, 2)}, {vr(S, 2)}, {vr(S + 2, 2)}")
        e(f"v_add_f32 v{S}, v{S}, v{S + 1}")
        red("v_add_f32", S, S + 1, False)
        e(f"v_mul_f32 v{S}, {hex(f2u(1.0 / 640))}, v{S}")
        for q in range(10):
            e(f"v_pk_add_f32 {vr(Dv + 2 * q, 2)}, {vr(F + 2 * q, 2)}, {vr(S, 2)} op_sel_hi:[1,0] neg_lo:[0,1] neg_hi:[0,1]")
        e(f"v_pk_mul_f32 {vr(S + 2, 2)}, {vr(Dv, 2)}, {vr(Dv, 2)}")
        e(f"v_pk_mul_f32 {vr(S + 24, 2)}, {vr(Dv + 2, 2)}, {vr(Dv + 2, 2)}")
        for q in range(2, 10):
            r = S + 2 if q % 2 == 0 else S + 24
            e(f"v_pk_fma_f32 {vr(r, 2)}, {vr(Dv + 2 * q, 2)}, {vr(Dv + 2 * q, 2)}, {vr(r, 2)}")
        e(f"v_pk_add_f32 {vr(S + 2, 2)}, {vr(S + 2, 2)}, {vr(S + 24, 2)}")
        e(f"v_add_f32 v{S + 2}, v{S + 2}, v{S + 3}")
        red("v_add_f32", S + 2, S + 3, False)
        e(f"v_mul_f32 v{S + 2}, {hex(f2u(1.0 / 640))}, v{S + 2}")
        bf16round(S + 2)
        e(f"v_add_f32 v{S + 2}, {hex(f2u(1e-5))}, v{S + 2}")
        bf16round(S + 2)
        e(f"v_sqrt_f32 v{S + 2}, v{S + 2}")
        bf16round(S)
        bf16round(S + 2)
        e(f"v_rcp_f32 v{S + 3}, v{S + 2}")
        e(f"v_sub_f32 v{SO}, 0, v{S}")
        e(f"v_mul_f32 v{SO + 3}, v{S + 2}, v{S + 2}")
        e(f"v_mul_f32 v{S + 1}, v{S + 3}, v{S + 3}")
        e(f"v_mul_f32 v{SO + 2}, {hex(f2u(C0))}, v{S + 3}")
        e(f"v_mul_f32 v{S + 1}, v{S + 1}, v{S + 3}")
        e(f"v_mul_f32 v{S + 2}, v{SO}, v{S + 3}")
        e(f"v_mul_f32 v{SO + 1}, {hex(f2u(C1))}, v{S + 1}")
        for q in range(10):
            e(f"v_pk_fma_f32 {vr(Dv + 2 * q, 2)}, {vr(F + 2 * q, 2)}, {vr(S + 2, 2)}, {vr(S + 2, 2)} op_sel:[0,1,0] op_sel_hi:[1,1,0]")
        for q in range(10):
            e(f"v_cvt_pk_f16_f32 v{UO + q}, v{Dv + 2 * q}, v{Dv + 2 * q + 1}")
        e("v_lshrrev_b32 v2, 5, v0")
        e(f"v_mul_u32_u24 v2, {LNP}, v2")
        e("v_and_b32 v3, 31, v0")
        e("v_lshl_add_u32 v2, v3, 3, v2")
        e(f"s_mul_i32 {sT1}, {sW}, {2 * LNP}")
        e(f"s_add_u32 {sT1}, {sT1}, {LNB}")
        e(f"v_add_u32 v2, {sT1}, v2")
        if bar:
            e("s_barrier")
        for q in range(5):
            g.lds(f"ds_write_b64 v2, {vr(UO + 2 * q, 2)} offset:{256 * q}", "lnw")
        e("v_lshrrev_b32 v4, 1, v0")
        e(f"v_mov_b32 v5, {OOB}")
        e("v_cmp_ne_u32 vcc, 0, v3")
        e(f"s_lshl_b32 {sT1}, s2, 2")
        e(f"s_add_u32 {sT1}, {sT1}, {sW}")
        e("v_cndmask_b32 v4, v4, v5, vcc")
        e(f"s_lshl_b32 {sT1}, {sT1}, 5")
        e(f"s_add_u32 {sT1}, {sT1}, {STATS}")
        e("v_bfe_u32 v6, v0, 2, 2")
        e(f"v_mul_u32_u24 v2, {LNP}, v6")
        e("v_lshrrev_b32 v3, 4, v0")
        e("v_lshl_add_u32 v2, v3, 5, v2")
        e("v_and_b32 v7, 3, v0")
        e("v_lshl_add_u32 v2, v7, 3, v2")
        e(f"s_lshl_b32 {sT2}, {sW}, 7")
        e(f"s_add_u32 {sT2}, {sT2}, {LNB}")
        e(f"v_add_u32 v2, {sT2}, v2")

    def ln_tail():
        g.vmem(f"buffer_store_dwordx4 {vr(SO, 4)}, v4, {SWS}, {sT1} offen sc1", "lnst")
        g.wlg0()
        e("s_barrier")
        TR = 200
        for j in range(3):
            for h in range(2):
                g.lds(f"ds_read_b64_tr_b16 {vr(TR + 4 * j + 2 * h, 2)}, v2 offset:{512 * j + 4 * LNP * h}", ("lntr", j))
        e(f"s_mul_i32 {sT1}, s2, 10240")
        e(f"s_lshl_b32 {sT2}, {sW}, 10")
        e(f"s_add_u32 {sT1}, {sT1}, {sT2}")
        e(f"s_add_u32 {sT1}, {sT1}, {XNT}")
        e(f"s_add_u32 {sT2}, {sT1}, 4096")
        e(f"s_add_u32 {sT3}, {sT1}, 8192")
        e(f"s_cmp_lt_u32 {sW}, 2")
        e(f"s_cselect_b32 {sT3}, {sT3}, {OOB}")
        for j, so in enumerate((sT1, sT2, sT3)):
            g.wlg(("lntr", j))
            g.vmem(f"buffer_store_dwordx4 {vr(TR + 4 * j, 4)}, v1, {SWS}, {so} offen sc1", "lnst")

    AK = 46
    vKA_A, vKA_B, vZ, vRW, vUW, vYS, vFB, vGB = range(AK, AK + 8)
    KA, CC, TM = 128, 152, 136
    WA = KA + 6
    SIG, OMG = KA + 2, KA + 4

    def cexp(dst, p, t):
        for m in range(2):
            e(f"v_mul_f32 v{t + m}, {hex(f2u(float(p)))}, v{SIG + m}")
            e(f"v_mul_f32 v{t + 2 + m}, {hex(f2u(float(p)))}, v{OMG + m}")
        for m in range(2):
            e(f"v_fract_f32 v{t + 2 + m}, v{t + 2 + m}")
        for m in range(2):
            e(f"v_exp_f32 v{t + m}, v{t + m}")
            e(f"v_cos_f32 v{dst + 2 * m}, v{t + 2 + m}")
            e(f"v_sin_f32 v{dst + 2 * m + 1}, v{t + 2 + m}")
        e("s_nop 0")
        align()
        for m in range(2):
            e(f"v_pk_mul_f32 {vr(dst + 2 * m, 2)}, {vr(dst + 2 * m, 2)}, {vr(t, 2)} op_sel:[0,{m}] op_sel_hi:[1,{m}]")

    def cmul(dst, P, Q, t):
        for m in range(2):
            e(f"v_pk_mul_f32 {vr(t + 2 * m, 2)}, {vr(P + 2 * m, 2)}, {vr(Q + 2 * m, 2)} op_sel_hi:[0,1]")
        for m in range(2):
            e(f"v_pk_fma_f32 {vr(dst + 2 * m, 2)}, {vr(P + 2 * m, 2)}, {vr(Q + 2 * m, 2)}, {vr(t + 2 * m, 2)} op_sel:[1,1,0] op_sel_hi:[1,0,1] neg_lo:[0,1,0]")

    prow = [0]

    def put(src, row, neg, lastrow=False):
        o = 144 + 2 * (row % 4)
        ng = "-" if neg else ""
        if src is not None:
            e(f"v_cvt_pk_f16_f32 v{o}, v{src}, {ng}v{src + 1}")
            e(f"v_cvt_pk_f16_f32 v{o + 1}, v{src + 2}, {ng}v{src + 3}")
        if row % 2 == 1:
            o0 = ((row - 1) % 4) * 68
            g.lds(f"ds_write2_b64 v{WA}, {vr(o - 2, 2)}, {vr(o, 2)} offset0:{o0} offset1:{o0 + 68}", "xy")
            if row % 4 == 3:
                e(f"v_add_u32 v{WA}, {4 * XYP}, v{WA}")
        elif lastrow:
            g.lds(f"ds_write_b64 v{WA}, {vr(o, 2)} offset:{(row % 4) * XYP}", "xy")


    def rb1():
        e(f"s_mov_b32 {sKR}, 0")
        for i in range(8):
            e(f"v_accvgpr_read_b32 v{SC + i}, a{AST + i}")
        for i in (0, 1, 5):
            e(f"v_accvgpr_read_b32 v{AK + i}, a{AS2 + 1 + i}")

    def tag_code():
        e(f"v_readfirstlane_b32 {sTAG}, v{vTAG}")
        e("s_nop 3")
        e(f"s_mul_i32 {sTAG}, {sTAG}, 1664525")
        e(f"s_add_u32 {sTAG}, {sTAG}, 1013904223")
        e(f"v_mov_b32 v{vTAG}, {sTAG}")

    def k_setup():
        for k6 in (4, 5, 0, 1, 2, 3):
            e(f"v_accvgpr_read_b32 v{vPAR + k6}, a{APAR + k6}")
        e(f"v_accvgpr_read_b32 v{WA}, a{AS2}")
        e(f"s_lshl_b32 {sT1}, {sC}, 4")
        e(f"v_lshrrev_b32 v{KA}, {sT1}, v{vPAR + 4}")
        e(f"v_lshlrev_b32 v{KA}, 16, v{KA}")
        e(f"v_mul_f32 v{KA}, {hex(f2u(LOG2E))}, v{KA}")
        e(f"v_exp_f32 v{KA}, v{KA}")
        e(f"v_lshrrev_b32 v{KA + 7}, {sT1}, v{vPAR + 5}")
        e(f"v_lshlrev_b32 v{KA + 7}, 16, v{KA + 7}")
        bf16round(KA)
        e(f"v_lshlrev_b32 v{KA + 2}, 16, v{vPAR}")
        e(f"v_and_b32 v{KA + 3}, 0xffff0000, v{vPAR}")
        e(f"v_mul_f32 v{KA + 2}, {hex(f2u(LOG2E))}, v{KA + 2}")
        e(f"v_mul_f32 v{KA + 3}, {hex(f2u(LOG2E))}, v{KA + 3}")
        e(f"v_exp_f32 v{KA + 2}, v{KA + 2}")
        e(f"v_exp_f32 v{KA + 3}, v{KA + 3}")
        e(f"v_lshlrev_b32 v{KA + 4}, 16, v{vPAR + 1}")
        e(f"v_and_b32 v{KA + 5}, 0xffff0000, v{vPAR + 1}")
        e(f"v_cvt_pk_bf16_f32 v{KA + 1}, v{KA + 2}, v{KA + 3}")
        e(f"v_lshlrev_b32 v{CC}, 16, v{vPAR + 2}")
        e(f"v_lshlrev_b32 v{CC + 1}, 16, v{vPAR + 3}")
        e(f"v_and_b32 v{CC + 2}, 0xffff0000, v{vPAR + 2}")
        e(f"v_and_b32 v{CC + 3}, 0xffff0000, v{vPAR + 3}")
        e(f"v_lshlrev_b32 v{KA + 2}, 16, v{KA + 1}")
        e(f"v_and_b32 v{KA + 3}, 0xffff0000, v{KA + 1}")
        for m in range(2):
            e(f"v_mul_f32 v{KA + 2 + m}, v{KA + 2 + m}, v{KA}")
            e(f"v_mul_f32 v{KA + 4 + m}, v{KA + 4 + m}, v{KA}")
        for m in range(2):
            e(f"v_mul_f32 v{KA + 2 + m}, {hex(f2u(-LOG2E))}, v{KA + 2 + m}")
            e(f"v_mul_f32 v{KA + 4 + m}, {hex(f2u(1.0 / (2 * math.pi)))}, v{KA + 4 + m}")

    def k_role0():
        W8, W16, T2 = 152, 156, 140
        ch = [[160, 164], [168, 172]]
        e(f"v_add_u32 v{WA}, {YR0 * XYP}, v{WA}")
        cexp(W8, 8, TM)
        e("v_mov_b32 v144, 0x3c00")
        e("v_mov_b32 v145, 0x3c00")
        cmul(W16, W8, W8, TM)
        put(W8, 33, False)
        cur = [W16, W8]
        for j in range(2, 32, 2):
            n0 = cur[0] if j == 2 else ch[0][(j // 2) & 1]
            n1 = ch[1][(j // 2) & 1]
            for m in range(2):
                if j > 2:
                    e(f"v_pk_mul_f32 {vr(TM + 2 * m, 2)}, {vr(cur[0] + 2 * m, 2)}, {vr(W16 + 2 * m, 2)} op_sel_hi:[0,1]")
                e(f"v_pk_mul_f32 {vr(T2 + 2 * m, 2)}, {vr(cur[1] + 2 * m, 2)}, {vr(W16 + 2 * m, 2)} op_sel_hi:[0,1]")
            for m in range(2):
                if j > 2:
                    e(f"v_pk_fma_f32 {vr(n0 + 2 * m, 2)}, {vr(cur[0] + 2 * m, 2)}, {vr(W16 + 2 * m, 2)}, {vr(TM + 2 * m, 2)} op_sel:[1,1,0] op_sel_hi:[1,0,1] neg_lo:[0,1,0]")
                e(f"v_pk_fma_f32 {vr(n1 + 2 * m, 2)}, {vr(cur[1] + 2 * m, 2)}, {vr(W16 + 2 * m, 2)}, {vr(T2 + 2 * m, 2)} op_sel:[1,1,0] op_sel_hi:[1,0,1] neg_lo:[0,1,0]")
            put(n0, 32 + j, False)
            put(n1, 33 + j, False)
            cur = [n0, n1]

    def k_role1():
        MX = 136
        e(f"v_max_f32 v{MX}, |v{CC}|, |v{CC + 1}|")
        e(f"v_max3_f32 v{MX}, |v{CC + 2}|, |v{CC + 3}|, v{MX}")
        red("v_max_f32", MX, MX + 1, True)
        e(f"v_frexp_exp_i32_f32 v{MX}, v{MX}")
        e(f"v_add_f32 v{KA}, v{KA}, v{KA}")
        e(f"v_ldexp_f32 v{MX + 2}, v{KA}, v{MX}")
        e(f"v_mov_b32 v{MX + 3}, v{KA + 7}")
        e(f"v_sub_u32 v{MX}, 0, v{MX}")
        for i in range(4):
            e(f"v_ldexp_f32 v{CC + i}, v{CC + i}, v{MX}")
        e(f"v_add_u32 v{MX + 1}, {sKR}, v{vYS}")
        e(f"v_mov_b32 v{MX}, 0")
        g.lds(f"ds_write_b64 v{MX + 1}, {vr(MX + 2, 2)} offset:{YSO}", "xy")
        g.lds(f"ds_write_b32 v{MX + 1}, v{MX}", "xy")
        Z, Q, Q4 = 156, 160, 164
        cexp(Z, 1, TM)
        cexp(Q, 256, TM)
        cexp(Q4, 1024, TM)
        X = [168 + 4 * i for i in range(8)]
        X[0] = CC
        put(CC, 0, True)
        for s in range(1, 8):
            cmul(X[s], X[s - 1], Z, TM)
            put(X[s], s, True)
        R8 = [200 + 4 * i for i in range(4)]
        for s in range(4):
            cmul(R8[s], X[2 * s], Q, TM)
            put(R8[s], 8 + s, True)
        R12 = [216, 220]
        for s in range(2):
            cmul(R12[s], R8[2 * s], Q, TM)
            put(R12[s], 12 + s, True)
        for s in range(2):
            cmul(X[1 + 2 * s], R12[s], Q, TM)
            put(X[1 + 2 * s], 14 + s, True)
        cmul(R8[0], CC, Q4, TM)
        put(R8[0], 16, True)
        cmul(R8[1], R8[0], Q, TM)
        put(R8[1], 17, True)
        cmul(R8[3], R8[1], Q, TM)
        put(R8[3], 18, True)
        cmul(R8[1], R8[3], Q, TM)
        put(R8[1], 19, True)
        cmul(R8[2], R8[0], Q4, TM)
        put(R8[2], 20, True, lastrow=True)

    def kgen(sfx, units, every):
        k_setup()
        e(f"s_cmp_lg_u32 {sRHO}, 0")
        e(f"s_cbranch_scc1 L_role1{sfx}")
        vm_s, lg_s = list(g.vm), list(g.lg)
        us = list(units)
        interleave(k_role0, us, every)
        emit_units(us)
        e(f"s_branch L_kbar{sfx}")
        align()
        g.lab(f"L_role1{sfx}")
        g.vm, g.lg = vm_s, lg_s
        us = list(units)
        interleave(k_role1, us, every)
        emit_units(us)
        g.lab(f"L_kbar{sfx}")
        stamp("kvalu_end")

    def kgen_mfma():
        KF = 64
        for ks in range(8):
            g.lds(f"ds_read_b128 {vr(KF + 4 * ks, 4)}, v{vKA_A} offset:{64 * ks}", ("ka", ks))
            g.lds(f"ds_read_b128 {vr(128 + 4 * ks, 4)}, v{vKA_B} offset:{YR0 * XYP + 64 * ks}", ("kb0", ks))
            g.lds(f"ds_read_b128 {vr(160 + 4 * ks, 4)}, v{vKA_B} offset:{(YR0 + 16) * XYP + 64 * ks}", ("kb1", ks))
        KD = 96
        for ks in range(8):
            g.wlg(("kb1", ks))
            e(f"v_mfma_f32_16x16x32_f16 {vr(KD, 4)}, {vr(KF + 4 * ks, 4)}, {vr(128 + 4 * ks, 4)}, {'0' if ks == 0 else vr(KD, 4)}")
            e(f"v_mfma_f32_16x16x32_f16 {vr(KD + 4, 4)}, {vr(KF + 4 * ks, 4)}, {vr(160 + 4 * ks, 4)}, {'0' if ks == 0 else vr(KD + 4, 4)}")
        g.nop(7)
        for i in range(8):
            g.lds(f"ds_write_b32 v{SC + i}, v{KD + i}", "tw")

    vm0 = ["cpf"]
    u0, u0b = split_units(dma_units(0), opt.get("nf", 4))
    def g1_early():
        for i in range(2, 8):
            d = 16 * 1280 - 1024 * ((i & 3) - ((i - 2) & 3))
            e(f"v_add_u32 v{vXO + i}, {d}, v{vXO + i - 2}")
        rest_setup()
    interleave(g1_early, u0, opt.get("pe0", 2))
    assert not u0
    e(f"s_mov_b32 {sRND}, 1")
    rest_loads()
    aE, aL = addr_items(XYB_G1, TB_G1)
    table_code(TB_G1)
    run_items(aE)
    rb1()
    if diag and not opt.get("dbg"):
        e("s_memrealtime s[100:101]\ns_waitcnt lgkmcnt(0)\nv_writelane_b32 v127, s100, 58")
    g.sfree += [88, 90]
    g.wvm("par")
    stamp("par_data")
    kgen("g", u0b + dma_units(1), opt.get("pek", 12))
    g.wlg0()
    e("s_barrier")
    kgen_mfma()
    g.wvm("ep")
    tag_code()
    stamp("kdone")
    uA = csl_units()
    interleave(lambda: ln_code(bar=True), uA, opt.get("pe1", 24))
    emit_units(uA)
    ln_tail()
    stamp("ln_done")
    e("v_and_b32 v2, 31, v0")
    e("v_lshrrev_b32 v3, 5, v0")
    e("v_bfe_u32 v4, v0, 1, 3")
    e("v_xor_b32 v4, v4, v3")
    e(f"v_lshl_add_u32 v2, v2, 7, {sXM0}")
    for ks in range(4):
        e(f"v_xor_b32 v5, {2 * ks}, v4")
        e(f"v_lshl_add_u32 v{vBA + ks}, v5, 4, v2")
        e(f"v_add_u32 v{vBA + 4 + ks}, {2 * SLOT}, v{vBA + ks}")
    e("v_bfe_u32 v6, v0, 2, 2")
    e("v_and_b32 v7, 3, v0")
    e("v_lshl_add_u32 v2, v3, 3, v6")
    e("v_lshlrev_b32 v2, 7, v2")
    e("v_bfe_u32 v4, v0, 4, 1")
    e("v_lshl_add_u32 v2, v4, 5, v2")
    e("v_lshl_add_u32 v2, v7, 3, v2")
    e("v_lshrrev_b32 v3, 1, v6")
    e(f"v_xor_b32 v3, {sRHO}, v3")
    e(f"s_lshl_b32 {sT1}, {sC}, 13")
    e("v_lshl_add_u32 v2, v3, 6, v2")
    e(f"v_add_u32 v{vAA}, {sT1}, v2")
    e(f"v_xor_b32 v{vAA + 1}, 64, v{vAA}")
    e(f"v_xor_b32 v{vAA + 2}, 0x2000, v{vAA}")
    e(f"v_xor_b32 v{vAA + 3}, 0x2000, v{vAA + 1}")
    for i in range(4):
        e(f"v_add_u32 v{vAA + 4 + i}, {2 * SLOT}, v{vAA + i}")

    def touch_setup():
        return [f"s_lshr_b32 {sF0}, {sQ}, 2", f"s_mul_i32 {sF0}, {sF0}, 10", f"v_add_u32 v2, {sF0}, v0",
                "v_min_u32 v2, 63, v2", "v_mul_u32_u24 v2, 1280, v2", f"v_mov_b32 v3, {OOB}",
                f"v_cmp_lt_u32 vcc, 9, v0\ns_nop 1\nv_cndmask_b32 v{vTO}, v2, v3, vcc",
                f"s_and_b32 {sF0}, {sQ}, 3", f"s_lshl_b32 {sF0}, {sF0}, 1", f"s_add_u32 {sF0}, {sF0}, {sRHO}",
                f"s_lshl_b32 {sF0}, {sF0}, 3", f"s_lshl_b32 {sF1}, {sW}, 4", f"s_sub_u32 {sF0}, {sF0}, {sF1}",
                f"s_add_u32 {sF0}, {sF0}, 64", f"v_add_u32 v2, {sF0}, v0", "v_mul_u32_u24 v2, 3456, v2",
                f"v_cmp_lt_u32 vcc, 7, v0\ns_nop 1\nv_cndmask_b32 v{vTO + 1}, v2, v3, vcc",
                ]

    def touch_units(ahead):
        return [f"s_add_u32 {sT4}, {sXS}, {128 * ahead}",
                ("vm", f"buffer_load_dword v{vFL + 4}, v{vTO}, {SX}, {sT4} offen", "touch"),
                f"s_add_u32 {sT4}, {sWSO}, {64 * 3456 * (ahead - 1)}" if ahead >= 1 else f"s_sub_u32 {sT4}, {sWSO}, {64 * 3456}",
                ("vm", f"buffer_load_dword v{vFL + 4}, v{vTO + 1}, {STW}, {sT4} offen", "touch")]

    def frag_reads(k):
        stage, ks = divmod(k, 4)
        sl = stage % 3
        st4 = 4 if sl == 2 else 0
        so = 0 if sl == 2 else sl * SLOT
        A = vAF + 16 * (k & 1)
        B = vBF + 8 * (k & 1)
        def bread(b):
            return ("lds", f"ds_read_b128 {vr(B + 4 * b, 4)}, v{vBA + st4 + ks} offset:{so + 4096 * b}", ("B", k, b))
        def aread(t, h):
            return ("lds", f"ds_read_b64_tr_b16 {vr(A + 4 * t + 2 * h, 2)}, v{vAA + st4 + t} offset:{so + ks * 2048 + h * 512}", ("A", k, t))
        return [bread(0), aread(0, 0), aread(0, 1), bread(1), aread(1, 0), aread(1, 1), aread(2, 0), aread(2, 1), aread(3, 0), aread(3, 1)]

    e(f"s_mov_b32 {sMASK}, 0xffff0000")
    g.wvm(("dma", 0))
    g.wlg0()
    e("s_barrier")
    stamp("g1_start")
    stamp("c_g1s", cyc=True)
    for it in frag_reads(0):
        g.do(it)

    PACE = opt.get("pace", 2)
    NG = 320
    gaps = [[] for _ in range(NG)]
    head = [[] for _ in range(NG)]
    pre = {}
    vq_big = []

    sq = []
    def add_group(units, earliest, small=False, pace=None):
        vq = sq if small else vq_big
        prel = []
        for u in units:
            if isinstance(u, tuple) and u[0] == "m0":
                prel.append(u[1])
            elif isinstance(u, tuple) or callable(u):
                vq.append([earliest, prel, u, [], pace])
                prel = []
            else:
                prel.append(u)
        if prel:
            vq[-1][3] += prel

    def Bgap(s):
        return 32 * s - 8

    PKV = 48
    pk_fill = [f"s_mov_b32 {sF0}, {0x100000000 // 20 + 1}", f"s_lshl_b32 {sF1}, {sW}, 6"]
    for i3 in range(3):
        pk_fill += [f"v_add_u32 v2, {sF1}, v0"] + ([f"v_add_u32 v2, {256 * i3}, v2"] if i3 else []) + [
            f"v_mul_hi_u32 v3, v2, {sF0}", "v_mul_u32_u24 v12, 20, v3", "v_sub_u32 v12, v2, v12",
            "v_mul_u32_u24 v3, 1280, v3", f"v_lshl_add_u32 v{PKV + i3}, v12, 4, v3"]
    pk_fill += [f"s_lshr_b32 {sHS0}, {sCP}, 2", f"s_and_b32 {sHS1}, {sCP}, 3",
                f"s_mul_i32 {sT2}, {sHS0}, 40960", f"s_mul_i32 {sF0}, {sHS1}, 320", f"s_add_u32 {sT2}, {sT2}, {sF0}",
                f"s_lshl_b32 {sT3}, {sW}, 10"]
    pk_fill2 = ["v_lshrrev_b32 v2, 5, v0", "v_bfe_u32 v3, v0, 2, 2", "v_lshl_add_u32 v2, v2, 4, v3", "v_bfe_u32 v3, v0, 4, 1",
                "v_lshl_add_u32 v2, v3, 2, v2", "v_mul_u32_u24 v2, 320, v2", "v_and_b32 v3, 3, v0", "v_lshl_add_u32 v2, v3, 3, v2",
                f"s_lshl_b32 {sF0}, {sW}, 5", f"s_add_u32 {sF0}, {sF0}, {PKB}", f"v_add_u32 v{PKV + 3}, {sF0}, v2"]
    PDR = [56, 60, 8]
    pk_dma = []
    for i3 in range(3):
        pk_dma.append(("m0", f"s_add_u32 m0, {sT3}, {PKB + 4096 * i3}"))
        if i3 == 2:
            pk_dma.append(lambda: e(f"s_cmp_lt_u32 {sW}, 2\ns_cbranch_scc0 L_nopk3\nbuffer_load_dwordx4 v{PKV + 2}, {SWD}, {sT2} offen lds\nL_nopk3:") or g.vm.append("OPT"))
        else:
            pk_dma.append(("vm", f"buffer_load_dwordx4 v{PKV + i3}, {SWD}, {sT2} offen lds", "pkd"))
    pk_st = []
    for i3 in range(3):
        pk_st += [f"s_mul_i32 {sT2}, {sHS1}, 10\ns_add_u32 {sT2}, {sT2}, {sW}\ns_add_u32 {sT2}, {sT2}, {4 * i3}",
                  f"s_mul_i32 {sT3}, {sT2}, 13108\ns_lshr_b32 {sT3}, {sT3}, 16\ns_mul_i32 {sT3}, {sT3}, 265\ns_add_u32 {sT2}, {sT2}, {sT3}",
                  f"s_mul_i32 {sT3}, {sHS0}, 5\ns_add_u32 {sT2}, {sT2}, {sT3}\ns_lshl_b32 {sT2}, {sT2}, 10\ns_add_u32 {sT2}, {sT2}, {WDP}"]
        if i3 == 2:
            pk_st.append(f"s_cmp_lt_u32 {sW}, 2\ns_cselect_b32 {sT2}, {sT2}, {OOB}")
        pk_st.append(("vm", f"buffer_store_dwordx4 {vr(PDR[i3], 4)}, v1, {SWS}, {sT2} offen sc1", "pks"))
    lnflag = [f"s_lshl_b32 {sT1}, s2, 2\ns_add_u32 {sT1}, {sT1}, {LNF}\ns_cmp_eq_u32 {sW}, 0\ns_cselect_b32 {sT1}, {sT1}, {OOB}",
              lambda: flag_store(sT1)]
    wfflag = [f"s_lshl_b32 {sT1}, {sHS1}, 6\ns_add_u32 {sT1}, {sT1}, {sHS0}\ns_lshl_b32 {sT1}, {sT1}, 2\ns_add_u32 {sT1}, {sT1}, {WF}",
              f"s_cmp_eq_u32 {sW}, 0\ns_cselect_b32 {sT1}, {sT1}, {OOB}", lambda: flag_store(sT1)]

    add_group(dma_units(2), opt.get("d2", 4))
    add_group(pk_dma, 20)
    for st_ in range(1, 8):
        if st_ == 2:
            add_group(pk_st, Bgap(2) + 6)
        add_group(dma_units(st_ + 2), Bgap(st_) + {1: opt.get("d3", 18), 2: opt.get("d4", 26), 3: opt.get("d5", 0), 4: opt.get("d6", 20)}.get(st_, 0))
    G0 = 8 * KCHK + 4
    for phi in range(P1):
        add_group(wd_load(phi), G0)
    vsched = []
    occ = set()
    def place(q, pace):
        last = -pace
        for (ear, prel, vmi, post, pc) in q:
            gq = max(ear, last + (pc or pace))
            while gq in occ:
                gq += 1
            assert gq < NG - 1, gq
            occ.add(gq)
            gaps[gq - 1] += prel
            head[gq].append(vmi)
            gaps[gq] = post + gaps[gq]
            last = gq
            vsched.append((gq, vmi[2] if isinstance(vmi, tuple) else "flag"))
    place(vq_big, PACE)
    def gap_of(tag):
        return max(gq for gq, t in vsched if t == tag)
    for st_ in range(1, 8):
        ge = gap_of(("dma", st_ + 2)) + 2
        if st_ == 1:
            add_group(lnflag, gap_of("pkd") + 3, True)
        if st_ == 2:
            add_group([f"s_lshl_b32 {sT1}, {sFT}, 1\ns_add_u32 {sT1}, {sT1}, {sC}\ns_lshl_b32 {sT1}, {sT1}, 3\ns_add_u32 {sT1}, {sT1}, {sM}",
                       f"s_lshl_b32 {sT1}, {sT1}, 1\ns_add_u32 {sT1}, {sT1}, {sRHO}\ns_lshl_b32 {sT1}, {sT1}, 8\ns_add_u32 {sT1}, {sT1}, {CSP}",
                       ("vm", f"buffer_store_dwordx2 {vr(4, 2)}, v6, {SWS}, {sT1} offen sc1", "pks")], gap_of("pks") + 1, True)
        if st_ == 4:
            add_group(wfflag, gap_of(("dma", 5)) + 1, True)
        if st_ == 5:
            add_group([("vm", f"buffer_load_dwordx4 {vr(vFL, 4)}, v{vFA}, {SWS}, 0 offen sc1", "poll"),
                       ("vm", f"buffer_load_dword v{PKV}, v{vFA + 1}, {SWS}, 0 offen sc1", "poll")], 8 * KCHK - 22, True)
        if TOUCH and st_ + TOUCH <= 9:
            if st_ == 1:
                for a in range(0, TOUCH - 3):
                    add_group(touch_units(a), ge, True)
            add_group(touch_units(TOUCH - 3), ge, True)
        if st_ == 6 and opt.get('wtouch'):
            for t3 in range(3):
                add_group([f"s_and_b32 {sT4}, {sLT}, 3\ns_mul_i32 {sT4}, {sT4}, {140 * 128}\ns_add_u32 {sT4}, {sT4}, {sWDS}" if t3 == 0 else f"s_add_u32 {sT4}, {sT4}, {48 * 128}",
                           ("vm", f"buffer_load_dword v{vFL + 4}, v{PKV + 1}, {SWS}, {sT4} offen sc1", "wtouch")], 8 * KCHK + 4 + 4 * t3, True)
    add_group([f"s_lshl_b32 {sT1}, {sFT}, 1\ns_add_u32 {sT1}, {sT1}, {sC}\ns_lshl_b32 {sT1}, {sT1}, 5\ns_add_u32 {sT1}, {sT1}, {sRHO}",
               f"s_lshl_b32 {sT1}, {sT1}, 7\ns_add_u32 {sT1}, {sT1}, {CSP}",
               ("vm", f"buffer_load_dwordx4 {vr(4, 4)}, v{vCS}, {SWS}, {sT1} offen sc1", "csp"),
               ("vm", f"buffer_load_dwordx4 {vr(8, 4)}, v{vCS}, {SWS}, {sT1} offen offset:2048 sc1", "csp")], G0, True)
    add_group([f"s_lshl_b32 {sT1}, {sM}, 2\ns_add_u32 {sT1}, {sT1}, {sW}\ns_lshl_b32 {sT1}, {sT1}, 10\ns_add_u32 {sT1}, {sT1}, {STATS}",
               ("vm", f"buffer_load_dwordx4 {vr(vSTA, 4)}, v15, {SWS}, {sT1} offen sc1", "stats"),
               ("vm", f"buffer_load_dwordx4 {vr(vSTA + 4, 4)}, v15, {SWS}, {sT1} offen offset:512 sc1", "stats")], G0, True)
    add_group(u_loads(sCP, 3), G0, True)
    place(sq, 1)
    vsched.sort()
    if opt.get("v"):
        print(vsched)
    assert all(gap_of(("dma", st_)) < Bgap(st_) - 12 for st_ in range(2, 10))
    assert gap_of("pkd") < Bgap(2) and gap_of("pks") < Bgap(4) - 16 and gap_of("poll") < 8 * KCHK - 6

    for i3 in range(3):
        for h in range(2):
            gaps[Bgap(2) + 1 + i3].append(("lds", f"ds_read_b64_tr_b16 {vr(PDR[i3] + 2 * h, 2)}, v{PKV + 3} offset:{128 * i3 + 8 * 320 * h}", "pk"))
    c4 = check4(vFL)
    gaps[8 * KCHK] += [("wvm", "poll")] + c4[0:2]
    gaps[8 * KCHK + 1] += c4[2:5]
    def chk():
        sl = g.newlab("Lslow")
        bk = g.newlab("Lback")
        e(f"v_xor_b32 v{PKV}, v{vTAG}, v{PKV}")
        e(f"v_or3_b32 v{vFL}, v{vFL}, v{vFL + 3}, v{PKV}")
        e(c4[6])
        e(f"s_cbranch_vccnz {sl}")
        g.lab(bk)
        g.slow.append((sl, bk, [(vFA, True), (vFA + 1, False)]))
    gaps[8 * KCHK + 2].insert(0, chk)

    CA = [4, 5, 6, 7, 42, 43, 44, 45]
    csum = []
    for j5 in range(5):
        csum.append(("wvm", ("csl", j5)))
        for d in range(4):
            r = CSR[j5] + d
            if j5 == 0:
                csum += [f"v_lshlrev_b32 v{CA[2 * d]}, 16, v{r}", f"v_and_b32 v{CA[2 * d + 1]}, {sMASK}, v{r}"]
            else:
                csum += [f"v_lshlrev_b32 v8, 16, v{r}", f"v_and_b32 v9, {sMASK}, v{r}",
                         f"v_add_f32 v{CA[2 * d]}, v{CA[2 * d]}, v8", f"v_add_f32 v{CA[2 * d + 1]}, v{CA[2 * d + 1]}, v9"]
    csum += ["s_nop 1"]
    csum += [f"v_permlane32_swap_b32 v{CA[c]}, v{CA[c + 4]}" for c in range(4)]
    csum += [f"v_add_f32 v{CA[c]}, v{CA[c]}, v{CA[c + 4]}" for c in range(4)]
    csum += ["s_nop 1"]
    csum += [f"v_permlane16_swap_b32 v{CA[c]}, v{CA[c + 2]}" for c in range(2)]
    csum += ["s_nop 0"]
    csum += [f"v_add_f32 v{CA[c]}, v{CA[c]}, v{CA[c + 2]}" for c in range(2)]
    csum += ["v_and_b32 v6, 7, v0", "v_lshlrev_b32 v6, 5, v6"]
    csum += [f"v_add_f32 v{CA[c]}, v{CA[c]}, v{CA[c]} row_ror:8" for c in range(2)]
    csum += ["v_lshrrev_b32 v7, 4, v0", "v_lshl_add_u32 v6, v7, 3, v6", f"v_mov_b32 v7, {OOB}",
             "v_and_b32 v8, 8, v0", "v_cmp_ne_u32 vcc, 0, v8\ns_nop 1\nv_cndmask_b32 v6, v6, v7, vcc"]
    fillq = pk_fill + (touch_setup() if TOUCH else []) + pk_fill2[:11]
    n_a = len(fillq)
    fillq += csum
    n_csum = len(fillq)
    n_early = len(pk_fill)
    fillq += pk_fill2[11:]
    n_early2 = len(fillq)
    fillq += [f"v_min_u32 v2, 53, v0", f"s_lshr_b32 {sF0}, {sDT}, 1", f"s_lshl_b32 {sF0}, {sF0}, 8",
              f"s_add_u32 {sF0}, {sF0}, {WF}", f"v_lshl_add_u32 v2, v2, 2, {sF0}",
              "v_and_b32 v3, 7, v0", "v_mul_u32_u24 v3, 27, v3", f"v_add_u32 v3, {sFT}, v3", "v_and_b32 v12, 3, v3",
              "v_lshrrev_b32 v3, 2, v3", "v_lshl_add_u32 v3, v12, 6, v3", "v_lshlrev_b32 v3, 2, v3", f"v_add_u32 v3, {WF}, v3",
              f"v_cmp_lt_u32 vcc, 55, v0\ns_nop 1\nv_cndmask_b32 v{vFA + 1}, v2, v3, vcc"]
    iw = max(i for i, x in enumerate(aL) if sWDS + "," in x)
    i0 = min(i for i, x in enumerate(aL) if f"{sF0}, {sW}, 14" in x)
    iu = max(i for i, x in enumerate(aL) if f"a{AS2 + 23}," in x)
    fillq += [f"v_add_u32 v{vFA}, {LNF}, v1"] + aL[i0:iw + 1] + ["v_lshrrev_b32 v3, 1, v0", "v_and_b32 v2, 1, v0", "v_mul_u32_u24 v3, 10240, v3", "v_lshl_add_u32 v3, v2, 4, v3",
                              f"v_accvgpr_write_b32 a{AS2 + 23}, v3"]
    n_mid = len(fillq)
    late_fill = aL[:i0] + aL[i0:i0 + 3] + aL[iw + 1:] + gather_items(TB_G1)
    late_fill = [x.replace("v12", "v10").replace("v13", "v11").replace("v14", "v46").replace("v15", "v47") for x in late_fill]
    fillq += ["v_bfe_u32 v2, v0, 4, 1", f"v_mul_u32_u24 v2, {54 * 1024}, v2", "v_lshrrev_b32 v3, 5, v0",
              "v_lshl_add_u32 v2, v3, 8, v2", "v_and_b32 v12, 15, v0", "v_lshl_add_u32 v2, v12, 4, v2",
              f"s_lshl_b32 {sF0}, {sRHO}, 10", f"v_add_u32 v{vHO}, {sF0}, v2", f"s_xor_b32 {sF0}, {sF0}, 1024",
              f"v_add_u32 v{vHO + 1}, {sF0}, v2", f"s_lshl_b32 {sF0}, {sRHO}, 7", f"s_add_u32 {sF0}, {sF0}, {CSB}",
              f"v_lshl_add_u32 v13, v3, 4, {sF0}", "v_xor_b32 v14, 128, v13",
              "v_and_b32 v2, 7, v0", "v_lshlrev_b32 v12, 4, v2", "v_lshl_add_u32 v12, v3, 3, v12", "v_bfe_u32 v3, v0, 4, 1",
              "v_lshl_add_u32 v12, v3, 2, v12", f"s_lshl_b32 {sF0}, {sW}, 7", f"s_add_u32 {sF0}, {sF0}, {CSB}",
              f"v_add_u32 v12, {sF0}, v12", "v_lshrrev_b32 v3, 3, v0", "v_lshlrev_b32 v3, 8, v3", f"v_lshl_add_u32 v{vCS}, v2, 4, v3",
              "v_and_b32 v15, 31, v0", "v_lshlrev_b32 v15, 4, v15"]
    tail_fill = [f"s_lshl_b32 {sHS0}, {sM}, 2", f"s_add_u32 {sHS0}, {sHS0}, {sW}", f"s_lshl_b32 {sPEND}, {sHS0}, 5",
                 f"s_mul_i32 {sHS0}, {sHS0}, {4 * 54}", f"s_lshl_b32 {sT2}, {sFT}, 1", f"s_add_u32 {sHS0}, {sHS0}, {sT2}",
                 f"s_lshl_b32 {sHS0}, {sHS0}, 10", f"s_add_u32 {sHS0}, {sHS0}, {HB}", f"s_add_u32 {sHS1}, {sHS0}, {2 * 54 * 1024}",
                 f"s_add_u32 {sPEND}, {sPEND}, {sFT}", f"s_lshl_b32 {sPEND}, {sPEND}, 7", f"s_add_u32 {sPEND}, {sPEND}, {HF}"]
    cs_fill = [("wvm", "csp")] + [f"v_add_f32 v{4 + c}, v{4 + c}, v{8 + c}" for c in range(4)] + ["s_nop 0",
               "v_permlane32_swap_b32 v4, v6", "v_permlane32_swap_b32 v5, v7", "s_nop 0", "v_add_f32 v4, v4, v6", "v_add_f32 v5, v5, v7",
               "s_nop 1", "v_permlane16_swap_b32 v4, v5", "s_nop 0", "v_add_f32 v4, v4, v5", "s_nop 1",
               "v_add_f32 v4, v4, v4 row_ror:8", ("lds", "ds_write_b32 v12, v4", "csw")]
    nf_total = len(fillq)

    def cost(it):
        if isinstance(it, str):
            return it.count("\n") + 1
        return 1
    CAP = opt.get("cap", 4)
    for k in range(40):
        stage, ks = divmod(k, 4)
        A = vAF + 16 * (k & 1)
        B = vBF + 8 * (k & 1)
        gk = [head[8 * k + i] + gaps[8 * k + i] for i in range(8)]
        body = [[] for _ in range(8)]
        if k + 1 < 40:
            for i, it in enumerate(frag_reads(k + 1)):
                body[i // 2].append(it)
        if k == 39:
            for j in range(4):
                body[2 + j // 2].append(("lds", f"ds_read_b128 {vr(64 + 4 * j, 4)}, v13 offset:{32 * j}", "cs0"))
            for j in range(4):
                dst = (4 + 4 * j) if j < 2 else (96 + 4 * (j - 2))
                body[4 + j // 2].append(("lds", f"ds_read_b128 {vr(dst, 4)}, v13 offset:{256 + 32 * j}", "cs0"))
        else:
            load = [sum(map(cost, gk[i])) + len(body[i]) + (1 if i in (3, 7) else 0) for i in range(8)]
            q = fillq if fillq else (tail_fill if (k >= 18 and tail_fill) else late_fill)
            if k == KCHK or (q is late_fill and (k < 10 or 29 <= k <= 34)):
                q = []
            if k == 29:
                assert not late_fill, len(late_fill)
            if k in (33, 34) and cs_fill:
                q = cs_fill
            cap = CAP + (1 if k < 9 else opt.get('capx', 1))
            for i in range(8):
                while q and load[i] + cost(q[0]) <= cap + (2 if cost(q[0]) > 1 else 0):
                    it = q.pop(0)
                    body[i].append(it)
                    load[i] += cost(it)
            if k == 2:
                assert nf_total - len(fillq) >= n_early, (nf_total - len(fillq), n_early)
            if k == 5:
                assert nf_total - len(fillq) >= n_a
            if k == 6:
                assert nf_total - len(fillq) >= n_a + 30
            if 8 * k + 8 >= gap_of("pks") - 1:
                assert nf_total - len(fillq) >= n_csum, (nf_total - len(fillq), n_csum)
            if k == 13:
                assert nf_total - len(fillq) >= n_early2
            if k == KCHK - 4:
                assert nf_total - len(fillq) >= n_mid
            if 8 * k + 8 > gap_of("stats") - 4:
                assert not fillq, (k, len(fillq))
        if ks == 3 and stage < 9:
            stamp(f"c_w{stage + 1}", cyc=True)
            g.wlg0()
            if stage == 0:
                g.wvm("lnst")
            if stage == 1:
                g.wvm("OPT")
            if stage == 3:
                g.wvm("pks")
            g.wvm(("dma", stage + 1))
            e("s_barrier")
            stamp(f"c_b{stage + 1}", cyc=True)
        for i in range(8):
            t, b = divmod(i, 2)
            if k == 0:
                g.wlg(("A", k, t))
                g.wlg(("B", k, b))
            elif i == 0:
                g.wlg(("A", k, 1))
            elif i == 4:
                g.wlg(("A", k, 3))
            D = vACC + 16 * (2 * t + b)
            Cs = "0" if k == 0 else vr(D, 16)
            e(f"v_mfma_f32_32x32x16_bf16 {vr(D, 16)}, {vr(A + 4 * t, 4)}, {vr(B + 4 * b, 4)}, {Cs}")
            for it in head[8 * k + i]:
                if isinstance(it, tuple) and it[2] == "pks":
                    g.wlg("pk")
                g.do(it)
            for it in body[i] + gaps[8 * k + i]:
                g.do(it)
    assert not tail_fill and not cs_fill and not late_fill, len(late_fill)
    stamp("c_g1e", cyc=True)
    stamp("g1_loop_end", flush=True)

    def csu0(i):
        return (4 + i) if i < 8 else (96 + i - 8)
    def csu1(i):
        return (104 + i) if i < 8 else (28 + i - 8)
    tmps = [24, 26, 36, 38]
    g.wvm("stats")
    g.wlg("cs0")
    e(f"s_cmp_lg_u32 {sC}, 0")
    e("s_cbranch_scc1 L_epiB")
    vm_save, lg_save = list(g.vm), list(g.lg)
    for variant in range(2):
        if variant == 1:
            align()
            g.lab("L_epiB")
            g.vm, g.lg = list(vm_save), list(lg_save)
        align()
        for ap in range(2):
            for b in range(2):
                gs, us = (ap, 2 + ap) if variant == 0 else (2 + ap, ap)
                Gt = vACC + 16 * (2 * gs + b)
                Ut = vACC + 16 * (2 * us + b)
                st = vSTA + 4 * b
                if ap == 0 and b == 1:
                    for j in range(4):
                        g.lds(f"ds_read_b128 {vr(80 + 4 * j, 4)}, v14 offset:{32 * j}", "cs1")
                    for j in range(4):
                        dst = (104 + 4 * j) if j < 2 else (28 + 4 * (j - 2))
                        g.lds(f"ds_read_b128 {vr(dst, 4)}, v14 offset:{256 + 32 * j}", "cs1")
                if ap == 1 and b == 0:
                    g.wlg("cs1")
                    align()
                csg = (lambda i: 64 + i) if ap == 0 else (lambda i: 80 + i)
                csu = csu0 if ap == 0 else csu1
                for c in range(2):
                    O = 16 if c == 0 else 20
                    ps = range(4 * c, 4 * c + 4)
                    for p in ps:
                        e(f"v_pk_fma_f32 {vr(Gt + 2 * p, 2)}, {vr(csg(2 * p), 2)}, {vr(st, 2)}, {vr(Gt + 2 * p, 2)} op_sel_hi:[1,0,1]")
                    for p in ps:
                        e(f"v_pk_mul_f32 {vr(tmps[p % 4], 2)}, {vr(Gt + 2 * p, 2)}, {vr(Gt + 2 * p, 2)}")
                    for p in ps:
                        t = tmps[p % 4]
                        e(f"v_pk_fma_f32 {vr(t, 2)}, {vr(t, 2)}, {vr(st, 2)}, {vr(st + 2, 2)} op_sel:[0,1,0] op_sel_hi:[1,1,0]")
                    for p in ps:
                        t = tmps[p % 4]
                        e(f"v_pk_mul_f32 {vr(t, 2)}, {vr(t, 2)}, {vr(Gt + 2 * p, 2)}")
                    for p in ps:
                        t = tmps[p % 4]
                        e(f"v_exp_f32 v{t}, v{t}")
                        e(f"v_exp_f32 v{t + 1}, v{t + 1}")
                    for p in ps:
                        e(f"v_pk_fma_f32 {vr(Ut + 2 * p, 2)}, {vr(csu(2 * p), 2)}, {vr(st, 2)}, {vr(Ut + 2 * p, 2)} op_sel_hi:[1,0,1]")
                    for p in ps:
                        t = tmps[p % 4]
                        e(f"v_pk_fma_f32 {vr(t, 2)}, {vr(t, 2)}, {vr(st + 2, 2)}, {vr(st + 2, 2)} op_sel:[0,1,1] op_sel_hi:[1,1,1]")
                    for p in ps:
                        t = tmps[p % 4]
                        e(f"v_rcp_f32 v{t}, v{t}")
                        e(f"v_rcp_f32 v{t + 1}, v{t + 1}")
                    for p in ps:
                        e(f"v_pk_mul_f32 {vr(Gt + 2 * p, 2)}, {vr(Gt + 2 * p, 2)}, {vr(Ut + 2 * p, 2)}")
                    for p in ps:
                        e(f"v_pk_mul_f32 {vr(Gt + 2 * p, 2)}, {vr(Gt + 2 * p, 2)}, {vr(tmps[p % 4], 2)}")
                    for p in ps:
                        e(f"v_cvt_pk_bf16_f32 v{O + p - 4 * c}, v{Gt + 2 * p}, v{Gt + 2 * p + 1}")
                    g.vmem(f"buffer_store_dwordx4 {vr(O, 4)}, v{vHO + ap}, {SWS}, {sHS0 if b == 0 else sHS1} offen offset:{512 * c} sc1", "hst")
        if variant == 0:
            e("s_branch L_epi_done")
    g.lab("L_epi_done")
    stamp("c_epe", cyc=True)
    stamp("g1_epi_end", flush=True)
    e(f"s_mov_b32 {sMASK}, {sPEND}")

    def rb2():
        for i in range(22):
            e(f"v_accvgpr_read_b32 v{GA + i}, a{AST + 8 + i}")
        for i in range(2, 8):
            e(f"v_accvgpr_read_b32 v{AK + i}, a{AS2 + 1 + i}")
        e("v_mov_b32 v4, 0\nv_mov_b32 v5, 0\nv_mov_b32 v6, 0\nv_mov_b32 v7, 0")
        e(f"ds_write_b128 v{vZ}, {vr(4, 4)}")
    rb2()

    Greg = [[224 + 4 * i for i in range(8)], [192 + 4 * i for i in range(8)]]
    FB = [128, 160]
    CACC = 64
    HRING = [16 + 4 * i for i in range(12)] + [104 + 4 * i for i in range(3)] + [128 + 4 * i for i in range(26)]
    NE = opt.get("ne", 8)
    P2 = opt.get("p2", 40)
    NB = len(HRING)
    YS, DK = 100, 101

    def hload(i):
        k, st = divmod(i, 14)
        r = HRING[i % NB]
        if st == 13:
            return [f"s_cmp_lt_u32 {sW}, 2\ns_cselect_b32 {sT4}, s{sG2 + 4 * k + 3}, {OOB}",
                    ("vm", f"buffer_load_dwordx4 {vr(r, 4)}, v1, {SWS}, {sT4} offen offset:1024 sc1", ("h", i))]
        return [("vm", f"buffer_load_dwordx4 {vr(r, 4)}, v1, {SWS}, s{sG2 + 4 * k + st // 4} offen offset:{(st % 4) * 1024} sc1", ("h", i))]

    def conv(last):
        tag = "L" if last else "E"
        g.lab("L_conv_last" if last else "L_conv_early")
        g.vm = ["u", "u"]
        g.lg = []
        def wd_e(phi):
            its = wd_load(phi)
            if len(its) > 1:
                its.insert(1, f"s_or_b32 {sT5}, {sT5}, {sK0}")
            return its
        if last:
            wq = [[f"s_add_u32 m0, {sXT}, {1024 * kk}", "s_nop 0",
                   ("vm", f"buffer_load_dwordx4 v{12 + kk}, {SX}, {sXO} offen lds", ("xt", 0))] for kk in range(3)]
            wq += [wd_load(phi) for phi in range(P1, 70)]
            for i7 in range(7):
                e(f"v_accvgpr_read_b32 v{9 + i7}, a{AS2 + 14 + i7}")
        else:
            wq = [wd_e(phi) for phi in range(0, P1)]
            g.vmem(f"buffer_load_dword v{vFL}, v{vFA + 1}, {SWS}, 0 offen sc1", "wfp")
        def wdl(n=1):
            for _ in range(n):
                if wq:
                    for it in wq.pop(0):
                        g.do(it)
        EG = 128
        for ch in range(2):
            for k in range(11):
                g.lds(f"ds_read_b32 v{EG + 12 * ch + k}, v{GA + 11 * ch + k}", ("eg", ch))
        g.lds(f"ds_read_b64 {vr(YS, 2)}, v{vYS} offset:{YSO}", "ysc")
        if last:
            wdl(2)
        g.wvm("u")
        g.lds(f"ds_write_b128 v{vUW}, {vr(vU, 4)}", "uw")
        g.lds(f"ds_write_b128 v{vUW}, {vr(vU + 4, 4)} offset:512", "uw")
        if last:
            e(f"s_or_b32 {sT1}, s2, {sW}")
            e(f"s_cmp_eq_u32 {sT1}, 0")
            e(f"s_cselect_b32 {sT1}, {EPOCH}, {OOB}")
            flag_store(sT1)
        EO = 64
        for ch in range(2):
            g.wlg(("eg", ch))
            align()
            for s in range(4):
                o = EO + 16 * ch + 4 * s
                for j in range(4):
                    e(f"v_cvt_pk_f16_f32 v{o + j}, v{EG + 12 * ch + s + 2 * j}, v{EG + 12 * ch + s + 2 * j + 1}")
                g.lds(f"ds_write_b128 v{vRW}, {vr(o, 4)} offset:{s * RCS + 1024 * ch}", "rw")
                if last and s % 2 == 1:
                    wdl()
            if last and ch == opt.get("hch", 0):
                e(f"s_waitcnt vmcnt({len(g.vm)})")
                flag_store(sMASK)
        if not last:
            e("s_waitcnt vmcnt(0)")
            flag_store(sMASK)
        if last:
            wdl()
        else:
            e(f"v_cmp_ne_u32 vcc, v{vTAG}, v{vFL}")
            e("s_nop 0")
            e("s_cmp_eq_u64 vcc, 0")
            e(f"s_cselect_b32 {sK0}, 0, {OOB}")
        extra = [f"v_accvgpr_read_b32 v{4 + i}, a{AS2 + 9 + i}" for i in range(5)]
        extra += [f"s_lshl_b32 {sT1}, {sCP}, 1", f"s_add_u32 {sT1}, {sT1}, {sC}", f"s_lshl_b32 {sT1}, {sT1}, 12",
                  f"s_lshl_b32 {sT3}, {sRHO}, 11", f"s_add_u32 {sT1}, {sT1}, {sT3}", f"s_add_u32 {sHS0}, {sT1}, {ST}",
                  f"s_lshl_b32 {sT2}, {sCP}, 5", f"s_add_u32 {sT2}, {sT2}, {sW}",
                  f"s_lshl_b32 {sT2}, {sT2}, 2", f"s_add_u32 {sPEND}, {sT2}, {SF}"]
        if last:
            extra += [f"v_accvgpr_read_b32 v{vFA + i}, a{AS2 + 21 + i}" for i in range(2)]
            extra += ["v_min_u32 v3, 53, v0", "v_lshlrev_b32 v3, 7, v3",
                      f"s_lshl_b32 {sT0}, {sDT}, 2", f"s_add_u32 {sT0}, {sT0}, {sW}", f"s_mul_i32 {sT0}, {sT0}, {54 * 128}",
                      f"s_mul_i32 {sHS1}, {sLT}, {4 * 54 * 1024}", f"s_add_u32 {sHS1}, {sHS1}, {sT0}", f"s_add_u32 {sHS1}, {sHS1}, {HB}"]
        g.wlg0()
        e("s_barrier")
        stamp("c_cs" + tag, cyc=True)
        stamp("conv_start" + tag)

        def cls_reads(dl):
            bf = dl & 1
            out = []
            for s in range(8):
                out.append(("lds", f"ds_read_b128 {vr(Greg[bf][s], 4)}, v{vGB} offset:{512 * s + 64 * (3 - dl)}", ("G", dl, s)))
                off = 64 * (59 - dl - 8 * s)
                out.append(("lds", f"ds_read_b64 {vr(FB[bf] + 4 * s, 2)}, v{vFB} offset:{off}", ("F", dl, s)))
                out.append(("lds", f"ds_read_b64 {vr(FB[bf] + 4 * s + 2, 2)}, v{vFB} offset:{off + 8}", ("F", dl, s)))
            return out
        for it in cls_reads(0):
            g.do(it)
        order = sorted([(s, gg) for s in range(8) for gg in range(8) if s + gg < 8], key=lambda x: (max(x), x[0] + x[1]))
        seen = set()
        hq = []
        US, UD = 2, 96
        for dl in range(4):
            bf = dl & 1
            nxt = cls_reads(dl + 1) if dl < 3 else []
            if dl == 3:
                nxt = [("lds", f"ds_read_b64 {vr(128 + 2 * tt, 2)}, v6 offset:{512 * tt}", "us") for tt in range(4)]
                nxt += [None] * 6 + [("wlg", "us")]
                for tt in range(4):
                    for i in range(4):
                        src = 128 + 2 * tt + (i >> 1)
                        nxt.append(f"v_fma_mix_f32 v{136 + 4 * tt + i}, v{src}, v{DK}, 0 op_sel:[{i & 1},0,0] op_sel_hi:[1,0,0]")
            if dl > 0:
                g.wlg(("F", dl, 7))
            for mi, (s, gg) in enumerate(order):
                t = s + gg
                if dl == 0:
                    g.wlg(("G", dl, gg))
                    g.wlg(("F", dl, s))
                Cs = "0" if t not in seen else vr(CACC + 4 * t, 4)
                seen.add(t)
                e(f"v_mfma_f32_16x16x32_f16 {vr(CACC + 4 * t, 4)}, {vr(FB[bf] + 4 * s, 4)}, {vr(Greg[bf][gg], 4)}, {Cs}")
                start = 8 if dl == 0 else 1
                if mi >= start and nxt:
                    it = nxt.pop(0)
                    if it is not None:
                        g.do(it)
                elif extra:
                    g.do(extra.pop(0))
                if mi % 2 == 1 and extra and mi >= start:
                    g.do(extra.pop(0))
                mc = 36 * dl + mi
                if mc % 4 == 2:
                    nphi = wq[0][-1][2][1] if wq else 0
                    if last and mc == opt.get("hfp", 130):
                        assert not extra
                        g.vmem(f"buffer_load_dword v{vFL}, v{vFA}, {SWS}, 0 offen sc1", "hfp")
                    elif wq and not (last and extra and nphi >= 48) and not (nphi >= 64 and dl < 3):
                        wdl()
            assert not nxt, len(nxt)
        while wq and not last:
            wdl()
        assert not wq and not extra, (len(wq), len(extra))
        def hl(n=1):
            for _ in range(n):
                if hq:
                    for it in hq.pop(0):
                        g.do(it)
        stamp("c_ce" + tag, cyc=True)
        stamp("conv_end" + tag)
        lr1 = g.newlab("Lfin1")
        lfd = g.newlab("Lfind")
        e(f"s_cmp_lg_u32 {sRHO}, 0")
        e(f"s_cbranch_scc1 {lr1}")
        lg_save, pst_save, sf_save = list(g.lg), list(g.pst), list(g.sfree)
        for rho in range(2):
            if rho == 1:
                g.lab(lr1)
                g.lg, g.pst, g.sfree = list(lg_save), list(pst_save), list(sf_save)
            own = CACC + 16 * rho
            oth = CACC + 16 * (1 - rho)
            g.nop(6)
            for tt in range(4):
                g.lds(f"ds_write_b128 v4, {vr(oth + 4 * tt, 4)} offset:{PB + 1024 * tt}", "pw")
            align()
            for tt in range(4):
                for i in range(4):
                    e(f"v_fma_f32 v{136 + 4 * tt + i}, v{own + 4 * tt + i}, v{YS}, v{136 + 4 * tt + i}")
            if rho == 0:
                e(f"s_branch {lfd}")
        g.lab(lfd)
        g.wlg0()
        e("s_barrier")
        for tt in range(4):
            g.lds(f"ds_read_b128 {vr(152 + 4 * tt, 4)}, v5 offset:{PB + 1024 * tt}", ("pr", tt))
        if last:
            g.wvm("hfp")
            e(f"v_cmp_ne_u32 vcc, v{vTAG}, v{vFL}")
            e("s_nop 0")
            e("s_cmp_eq_u64 vcc, 0")
            e(f"s_cselect_b32 {sK1}, 1, 0")
            e(f"s_cselect_b32 {sT0}, 0, {OOB}")
            hq.append([f"s_or_b32 {sT4}, {sHS1}, {sT0}", ("vm", f"buffer_load_dword v{vFL + 4}, v3, {SWS}, {sT4} offen sc1", "ht")])
            for i in range(NE):
                pre_ = [f"s_or_b32 {sT4}, s{sG2 + i // 4}, {sT0}"] if i % 4 == 0 else []
                hq.append(pre_ + [("vm", f"buffer_load_dwordx4 {vr(HRING[i], 4)}, v1, {SWS}, {sT4} offen offset:{(i % 4) * 1024} sc1", ("he", i))])
        hl(2)
        for tt in range(4):
            g.wlg(("pr", tt))
            for i in range(4):
                e(f"v_fmac_f32 v{136 + 4 * tt + i}, v{152 + 4 * tt + i}, v{YS}")
            for h in range(2):
                e(f"v_cvt_pk_bf16_f32 v{128 + 2 * tt + h}, v{136 + 4 * tt + 2 * h}, v{136 + 4 * tt + 2 * h + 1}")
            g.lds(f"ds_write_b64 v7, {vr(128 + 2 * tt, 2)} offset:{512 * tt}", "sw")
            hl(1)
        hl(1)
        g.wlg0()
        for j in range(2):
            g.lds(f"ds_read_b128 {vr(88 + 4 * j, 4)}, v8 offset:{1024 * j}", ("sr", j))
        hl(2)
        assert not hq
        if not last:
            e(f"s_add_u32 {sCP}, {sCP}, 40")
            for i in range(22):
                e(f"v_add_u32 v{GA + i}, {2 * TC}, v{GA + i}")
            e(f"v_add_u32 v{vYS}, {2 * TC}, v{vYS}")
        for j in range(2):
            g.wlg(("sr", j))
            g.vmem(f"buffer_store_dwordx4 {vr(88 + 4 * j, 4)}, v1, {SWS}, {sHS0} offen offset:{1024 * j} sc1", "sst")
        if not last:
            for it in u_loads(sCP, 2):
                g.do(it)
            e(f"s_mov_b32 {sMASK}, {sPEND}")
            e(f"s_sub_u32 {sRND}, {sRND}, 1")
            e(f"s_cmp_lg_u32 {sRND}, 1")
            e("s_cbranch_scc1 L_conv_early")

    conv(True)

    e(f"s_cmp_lg_u32 {sK1}, 0")
    e("s_cbranch_scc1 L_hready")
    poll_block(vFA, False)
    e(f"buffer_load_dword v{vFL + 4}, v3, {SWS}, {sHS1} offen sc1")
    for i in range(NE):
        for it in hload(i):
            e(it[1] if isinstance(it, tuple) else it)
    g.lab("L_hready")
    stamp("c_g2s", cyc=True)
    stamp("g2_start")
    g.vm = [("h", i) for i in range(NE)]
    AC = [64, 84]
    lateq = [hload(i) for i in range(NE, NB)]
    fq = ["v_lshrrev_b32 v8, 3, v0", "v_lshlrev_b32 v8, 12, v8", "v_and_b32 v2, 7, v0", "v_lshl_add_u32 v8, v2, 4, v8",
          f"s_mul_i32 {sT1}, {sW}, 15360", f"v_add_u32 v2, {sT1}, v1",
          "v_lshrrev_b32 v3, 2, v0", "v_lshlrev_b32 v3, 7, v3", "v_and_b32 v4, 3, v0", "v_lshl_add_u32 v3, v4, 3, v3",
          f"s_lshl_b32 {sT1}, {sW}, 5", f"s_add_u32 {sT1}, {sT1}, {STB}", f"v_add_u32 v3, {sT1}, v3",
          "v_and_b32 v4, 15, v0", "v_mul_u32_u24 v4, 160, v4", "v_lshrrev_b32 v5, 4, v0", "v_lshl_add_u32 v4, v5, 3, v4",
          f"v_add_u32 v4, {sXT}, v4", f"v_add_u32 v5, {sXT}, v1",
          f"s_lshl_b32 {sT2}, {sW}, 10", f"s_add_u32 {sHS1}, {sT2}, {STB}"]
    XR, XU = 16, 28
    SFP = opt.get("sfp", 38)
    for i in range(56):
        k, st = divmod(i, 14)
        A0 = AC[k & 1]
        g.wvm(("h", i))
        r = HRING[i % NB]
        extra = [[] for _ in range(5)]
        if st == 1 and k >= 1:
            pa = AC[(k - 1) & 1]
            for j in range(5):
                extra[j].append(("lds", f"ds_write_b128 v{9 + k - 1}, {vr(pa + 4 * j, 4)} offset:{1024 * j}", "exw"))
        for j in ((i % 4,) if i % 4 else (0, 4)):
            if lateq:
                extra[j] += lateq.pop(0)
        if i == NE:
            def sflag():
                n = sum(1 for t in g.vm if t[0] == "h" and t[1] >= NE)
                e(f"s_waitcnt vmcnt({n})")
                flag_store(sPEND)
            extra[1].append(sflag)
        if 22 <= i < 30:
            for j in (1, 3, 4):
                if fq:
                    extra[j].append(fq.pop(0))
        if i == SFP:
            extra[0].append(("vm", f"buffer_load_dwordx4 {vr(vFL, 4)}, v{vFA + 1}, {SWS}, 0 offen sc1", ("sfp",)))
        if i == SFP + 6:
            c4 = check4(vFL)
            extra[0] += [("wvm", ("sfp",))] + c4[0:2]
            extra[1] += c4[2:4]
            extra[2] += c4[4:6]
            def sfchk():
                sl = g.newlab("Lslow")
                bk = g.newlab("Lback")
                e(c4[6])
                e(f"s_cbranch_vccnz {sl}")
                g.lab(bk)
                g.slow.append((sl, bk, [(vFA + 1, True)]))
            extra[3].append(sfchk)
        if i == SFP + 7:
            extra[0] += [f"s_mov_b32 m0, {sHS1}"]
            extra[1] += [("vm", f"buffer_load_dwordx4 v8, {SWS}, {sSTO} offen sc1 lds", ("stl",)), f"s_add_u32 m0, {sHS1}, 4096"]
            extra[2] += [f"s_add_u32 {sT3}, {sSTO}, {32 * 4096}"]
            extra[3] += [("vm", f"buffer_load_dwordx4 v8, {SWS}, {sT3} offen sc1 lds", ("stl",)), f"s_add_u32 m0, {sHS1}, 8192"]
            extra[4] += [f"s_add_u32 {sT3}, {sSTO}, {64 * 4096}", f"s_cmp_lt_u32 {sW}, 2\ns_cselect_b32 {sT3}, {sT3}, {OOB}"]
        if i == SFP + 8:
            extra[0] += [("vm", f"buffer_load_dwordx4 v8, {SWS}, {sT3} offen sc1 lds", ("stl",))]
        for j in range(5):
            phi = st * 5 + j
            src = ar(4 * phi, 4) if phi < 64 else vr(vWDV + 4 * (phi - 64), 4)
            Cs = "0" if st == 0 else vr(A0 + 4 * j, 4)
            e(f"v_mfma_f32_16x16x32_bf16 {vr(A0 + 4 * j, 4)}, {src}, {vr(r, 4)}, {Cs}")
            for it in extra[j]:
                g.do(it)
        if i + NB < 56:
            lateq.append(hload(i + NB))
    assert not lateq and not fq
    stamp("c_g2e", cyc=True)
    stamp("g2_loop_end")
    g.wall()
    e("s_barrier")
    A0 = AC[1]
    for q in range(15):
        g.lds(f"ds_read_b128 {vr(128 + 4 * q, 4)}, v2 offset:{EXB + 1024 * q}", ("exr", q))
    for j in range(5):
        g.lds(f"ds_read_b64_tr_b16 {vr(192 + 2 * j, 2)}, v3 offset:{2048 * j}", ("s", j))
        g.lds(f"ds_read_b64 {vr(202 + 2 * j, 2)}, v4 offset:{32 * j}", ("x", j))
    e(f"s_mov_b32 {sT2}, {hex(f2u(-LOG2E))}")
    e(f"s_mov_b32 {sT3}, {hex(f2u(-LOG2E))}")
    e(f"s_mov_b32 {sMASK}, 0xffff0000")
    for k in range(3):
        for j in range(5):
            if j in (0, 3):
                g.wlg(("exr", 5 * k + (2 if j == 0 else 4)))
            for h in range(2):
                e(f"v_pk_add_f32 {vr(A0 + 4 * j + 2 * h, 2)}, {vr(A0 + 4 * j + 2 * h, 2)}, {vr(128 + 4 * (5 * k + j) + 2 * h, 2)}")
    E_ = 128
    align()
    for p in range(10):
        e(f"v_pk_mul_f32 {vr(E_ + 2 * p, 2)}, {vr(A0 + 2 * p, 2)}, s[56:57]")
    for p in range(20):
        e(f"v_exp_f32 v{E_ + p}, v{E_ + p}")
    g.wlg0()
    SU, XU = 152, 172
    for p in range(10):
        e(f"v_lshlrev_b32 v{SU + 2 * p}, 16, v{192 + p}")
        e(f"v_and_b32 v{SU + 2 * p + 1}, {sMASK}, v{192 + p}")
    align()
    for p in range(10):
        e(f"v_pk_add_f32 {vr(E_ + 2 * p, 2)}, {vr(E_ + 2 * p, 2)}, 1.0 op_sel_hi:[1,0]")
    for p in range(20):
        e(f"v_rcp_f32 v{E_ + p}, v{E_ + p}")
    for p in range(10):
        e(f"v_pk_mul_f32 {vr(A0 + 2 * p, 2)}, {vr(A0 + 2 * p, 2)}, {vr(SU + 2 * p, 2)}")
    for p in range(10):
        e(f"v_lshlrev_b32 v{XU + 2 * p}, 16, v{202 + p}")
        e(f"v_and_b32 v{XU + 2 * p + 1}, {sMASK}, v{202 + p}")
    for p in range(10):
        e(f"v_pk_fma_f32 {vr(A0 + 2 * p, 2)}, {vr(A0 + 2 * p, 2)}, {vr(E_ + 2 * p, 2)}, {vr(XU + 2 * p, 2)}")
    for p in range(10):
        e(f"v_cvt_pk_bf16_f32 v{192 + p}, v{A0 + 2 * p}, v{A0 + 2 * p + 1}")
    for j in range(5):
        g.lds(f"ds_write_b64 v4, {vr(192 + 2 * j, 2)} offset:{32 * j}", "ow")
    g.wlg0()
    for kk in range(3):
        g.lds(f"ds_read_b128 {vr(128 + 4 * kk, 4)}, v5 offset:{1024 * kk}", ("or", kk))
    osc = opt.get("outsc", "")
    for kk in range(3):
        g.wlg(("or", kk))
        g.vmem(f"buffer_store_dwordx4 {vr(128 + 4 * kk, 4)}, v{(12, 13, 15)[kk]}, {SOUT}, {sXO} offen{osc}", "out")
    if diag:
        g.wvm0()
        stamp("end", flush=True)
        if opt.get("dbg"):
            e("s_load_dwordx2 s[88:89], s[100:101], 96")
            e("v_readlane_b32 s92, v127, 60")
            e("s_mov_b32 s90, 64\ns_mov_b32 s91, 0x20000")
            e("v_writelane_b32 v127, s92, 1")
            e("s_not_b32 s92, s92")
            e("v_writelane_b32 v127, s92, 0")
            e("v_lshlrev_b32 v2, 2, v0")
            e("s_waitcnt lgkmcnt(0)")
            e("buffer_atomic_umax v127, v2, s[88:91], 0 offen")
            e("s_endpgm")
        e(f"s_mov_b32 s88, s16\ns_mov_b32 s89, s17\ns_mov_b32 s90, 0x1000000\ns_mov_b32 s91, 0x20000")
        e(f"s_lshl_b32 {sT1}, s2, 2\ns_add_u32 {sT1}, {sT1}, {sW}\ns_lshl_b32 {sT1}, {sT1}, 8\ns_add_u32 {sT1}, {sT1}, {TS_BASE}")
        e("v_lshlrev_b32 v2, 2, v0")
        e(f"buffer_store_dword v127, v2, s[88:91], {sT1} offen")
    g.lab("L_end")
    e("s_endpgm")
    e(".p2align 6")
    g.lab("L_spare")
    g.vm = vm0
    g.lg = []
    g.pst = []
    g.sfree = [92] if opt.get('dbg') else [92, 100]
    if diag:
        e("v_mov_b32 v127, 0")
        e("v_writelane_b32 v127, s92, 60")
    for q in range(5):
        g.vmem(f"buffer_load_dwordx2 {vr(LX + 2 * q, 2)}, v2, {SX}, {sT0} offen offset:{256 * q}", "ln")
    e("s_add_u32 s66, s88, L_spare - L_pc + 256")
    e("s_addc_u32 s67, s89, 0")
    e("s_mov_b32 s68, s66\ns_mov_b32 s69, s67\ns_mov_b32 s70, 0x2000\ns_mov_b32 s71, 0x20000")
    e("v_and_b32 v10, 15, v0")
    e(f"s_lshl_b32 {sT1}, {sW}, 11")
    e("v_lshlrev_b32 v10, 7, v10")
    g.vmem(f"buffer_load_dword v{vFL + 4}, v10, s[68:71], {sT1} offen", "cpf")
    rest_setup()
    rest_loads()
    for r3 in range(3):
        run_items(param_units(r3))
    table_code(TB)
    aE, aL2 = addr_items(XYB_SP, TB)
    run_items(aE + aL2 + gather_items(TB))
    g.wvm("ln")
    stamp("ln_data")
    ln_code()
    ln_tail()
    stamp("ln_done", flush=True)
    e(f"s_lshl_b32 {sMASK}, s2, 2")
    e(f"s_add_u32 {sMASK}, {sMASK}, {LNF}")
    e(f"s_cmp_eq_u32 {sW}, 0")
    e(f"s_cselect_b32 {sMASK}, {sMASK}, {OOB}")
    e(f"v_add_u32 v{vFA}, {LNF}, v1")
    e("v_min_u32 v2, 53, v0")
    e(f"s_lshr_b32 {sF0}, {sDT}, 1")
    e(f"s_lshl_b32 {sF0}, {sF0}, 8")
    e(f"s_add_u32 {sF0}, {sF0}, {WF}")
    e(f"v_lshl_add_u32 v{vFA + 1}, v2, 2, {sF0}")
    e(f"s_mov_b32 {sK1}, {sRND}")
    rb1()
    g.wvm("par")
    tag_code()
    g.lab("L_kgen")
    g.vm = []
    kgen("s", [], 1)
    g.wall()
    e("s_barrier")
    flag_store(sMASK)
    e(f"s_mov_b32 {sMASK}, {OOB}")
    kgen_mfma()
    e(f"s_sub_u32 {sK1}, {sK1}, 1")
    e(f"s_cmp_eq_u32 {sK1}, 0")
    e("s_cbranch_scc1 L_kdone")
    e(f"s_add_u32 {sKR}, {sKR}, {2 * TC}")
    for i in range(8):
        e(f"v_add_u32 v{SC + i}, {2 * TC}, v{SC + i}")
    for i in range(6):
        e(f"v_accvgpr_mov_b32 a{APAR + i}, a{APAR + 8 + i}")
        e(f"v_accvgpr_mov_b32 a{APAR + 8 + i}, a{APAR + 16 + i}")
    e("s_waitcnt lgkmcnt(0)")
    e("s_barrier")
    e("s_branch L_kgen")
    g.lab("L_kdone")
    stamp("kdone", flush=True)
    e(f"s_cmp_lg_u32 {sW}, 0")
    e("s_cbranch_scc1 L_sp_polled")
    poll_block(vFA, True, sleep=16)
    g.lab("L_sp_polled")
    e("s_waitcnt lgkmcnt(0)")
    e("s_barrier")
    stamp("sp_lnf", flush=True)
    run_items(u_loads(sCP, 2))
    rb2()
    conv(False)
    e(f"s_cmp_eq_u32 {sK0}, 0")
    e("s_cbranch_scc1 L_conv_last")
    poll_block(vFA + 1, False, sleep=10)
    for phi in range(P1):
        for it in wd_load(phi):
            e(it[1] if isinstance(it, tuple) else it)
    e("s_branch L_conv_last")
    for (sl, bk, lst) in g.slow:
        g.lab(sl)
        g.sfree = [88, 90]
        g.pst = []
        if diag:
            e("s_waitcnt lgkmcnt(0)")
        for pi, (av, n4) in enumerate(lst):
            stamp(f"slow{sl[-2:]}_{pi}", flush=True)
            poll_block(av, n4)
        stamp(f"slow{sl[-2:]}_x", flush=True)
        e(f"s_branch {bk}")
    g.lab("L_codeend")

    hdr = [f"; @launch grid=(256,1,1) block=(256,1,1) lds={LDS_TOTAL}",
           '.amdgcn_target "amdgcn-amd-amdhsa--gfx950"', ".text", f".globl {KNAME}", ".p2align 8",
           f".type {KNAME},@function", f"{KNAME}:"]
    ftr = ['.section .rodata,"a"', ".p2align 6", f".amdhsa_kernel {KNAME}",
           "  .amdhsa_next_free_vgpr 512", "  .amdhsa_next_free_sgpr 102", "  .amdhsa_accum_offset 256",
           "  .amdhsa_group_segment_fixed_size 0", "  .amdhsa_kernarg_size 112", "  .amdhsa_user_sgpr_count 2",
           "  .amdhsa_user_sgpr_kernarg_segment_ptr 1", "  .amdhsa_system_sgpr_workgroup_id_x 1",
           "  .amdhsa_float_denorm_mode_32 3",
           ".end_amdhsa_kernel"]
    txt = "\n".join(hdr + g.L + ftr) + "\n"
    if diag:
        txt = txt + "; STAMPS " + ",".join(ts_names) + "\n"
    return txt


if __name__ == "__main__":
    diag = "--diag" in sys.argv
    opt = {}
    for a in sys.argv[1:]:
        if a.startswith("--") and "=" in a:
            k, v = a[2:].split("=")
            opt[k] = int(v) if v.lstrip("-").isdigit() else v.replace("_", " ")
    out = [a for a in sys.argv[1:] if not a.startswith("--")]
    s = gen(diag=diag, opt=opt)
    path = out[0] if out else "recurrent_scan__ssm_conv_s4d__geglu_ffn__prompt.s"
    open(path, "w").write(s)
    print("wrote", path, len(s), "bytes", s.count("\n"), "lines")
```

```python
import sys, struct, math

KNAME = "recurrent_scan__ssm_conv_s4d__geglu_ffn__prompt_kernel"

EPOCH = 0x0
LNF = 0x1000
WF = 0x4400
STATS = 0x8000
XNT = 0x10000
ST = 0x290000
WDP = 0x510000
HB = 0x730000
CSP = 0xDF0000
HF = 0xE26000
SF = 0xE46000
WS_END = 0xE50000
TS_BASE = 0xE60000

SLOT = 49152
MISC = 147456
LNP = 1344
CSB = MISC + 10752 + 5120
XYP = 544
YR0 = 21
XYC = 53 * XYP
XYB_SP, XYB_G1 = 0, 2 * SLOT
LNB = 2 * SLOT
TB_G1 = 157696
PB = 0
UBASE = 69632
UC = 4608
RB = UBASE + 2 * UC
RCS = 4160
RC = 4 * RCS
TC = 2624
TB = MISC
YSO = 650 * 4
SOB = 16384
EXB = 24576
XTB = 112128
STB = XTB + 12288
LDS_TOTAL = 163840
OOB = 0x7fff0000

def f2u(x):
    return struct.unpack("<I", struct.pack("<f", x))[0]

LOG2E = 1.4426950408889634
C0 = -2.0 * math.sqrt(2.0 / math.pi) * LOG2E
C1 = C0 * 0.044715


class G:
    def __init__(self):
        self.L = []
        self.vm = []
        self.lg = []
        self.nlab = 0
        self.slow = []
        self.skip = set()
        self.pst = []
        self.sfree = [92, 100]

    def flush_stamps(self):
        for (sr, lane) in self.pst:
            self.e(f"v_writelane_b32 v127, s{sr}, {lane}")
            self.sfree.append(sr)
        self.pst = []

    def e(self, s):
        for ln in s.split("\n"):
            self.L.append("    " + ln)

    def lab(self, name):
        self.L.append(name + ":")

    def newlab(self, p="L"):
        self.nlab += 1
        return f"{p}_{self.nlab}"

    def vmem(self, s, tag=None):
        if tag in self.skip:
            return
        self.e(s)
        self.vm.append(tag)

    def lds(self, s, tag=None):
        self.e(s)
        self.lg.append(tag)

    def _n(self, q, tag):
        idx = max(i for i, t in enumerate(q) if t == tag)
        return idx, sum(1 for t in q[idx + 1:] if t != "OPT")

    def wvm(self, tag):
        if tag not in self.vm:
            return
        idx, n = self._n(self.vm, tag)
        self.e(f"s_waitcnt vmcnt({min(n, 63)})")
        self.vm = self.vm[idx + 1:]

    def wlg(self, tag):
        if tag not in self.lg:
            return
        idx, n = self._n(self.lg, tag)
        self.e(f"s_waitcnt lgkmcnt({min(n, 15)})")
        self.lg = self.lg[idx + 1:]

    def wvm0(self):
        self.e("s_waitcnt vmcnt(0)")
        self.vm = []

    def wlg0(self):
        self.e("s_waitcnt lgkmcnt(0)")
        self.lg = []
        self.flush_stamps()

    def wall(self):
        self.e("s_waitcnt vmcnt(0) lgkmcnt(0)")
        self.vm = []
        self.lg = []
        self.flush_stamps()

    def nop(self, n):
        while n > 0:
            k = min(n, 16)
            self.e(f"s_nop {k - 1}")
            n -= k

    def do(self, item):
        if callable(item):
            item()
        elif isinstance(item, tuple):
            kind = item[0]
            if kind == "vm":
                self.vmem(item[1], item[2])
            elif kind == "lds":
                self.lds(item[1], item[2])
            elif kind == "wvm":
                self.wvm(item[1])
            elif kind == "wlg":
                self.wlg(item[1])
            else:
                raise ValueError(kind)
        else:
            self.e(item)


def vr(a, n):
    return f"v[{a}:{a + n - 1}]"


def ar(a, n):
    return f"a[{a}:{a + n - 1}]"


SX, SWG, SWU, SWS, SOUT, SWD = "s[4:7]", "s[8:11]", "s[12:15]", "s[16:19]", "s[20:23]", "s[24:27]"
P_LAR, P_AIM, P_CRE, P_CIM, P_LDT, P_DSK = "s[28:29]", "s[30:31]", "s[32:33]", "s[34:35]", "s[36:37]", "s[38:39]"
sW, sTAG, sM, sFT, sISG1, sCP, sRND, sSP = "s40", "s41", "s42", "s43", "s44", "s45", "s46", "s47"
sXCD, sQ = "s48", "s49"
sXM0, sWM0, sXS, sWSO = "s50", "s51", "s52", "s53"
sT0, sT1, sT2, sT3, sT4, sT5 = "s54", "s55", "s56", "s57", "s58", "s59"
sMASK, sCNT = "s60", "s61"
sRHO, sC = "s62", "s63"
sHS0, sHS1 = "s64", "s65"
sG2 = 66
STW = "s[96:99]"
sF0, sF1, sF2 = "s0", "s1", "s3"
sLT, sDT = "s82", "s83"
sWDS = "s84"
sPEND, sXO = "s85", "s86"
sKR = "s87"
sXT, sSTO = "s94", "s95"
sK0, sK1 = "s96", "s97"

vT = 2
vXO = 16
vWO = 24
vBA = 26
vAA = 34
vCS = 42
vHO = 44
vTO = 46
vSTA = 48
vU = 56
vAF = 64
vBF = 96
vPAR = 112
vFA = 118
vEP = 120
vFL = 122
vACC = 128
SC = 224
GA = 24
AST = 224
AS2 = 192
PKB = MISC
vWDV = 232


def gen(diag=False, opt=None):
    opt = opt or {}
    TOUCH = opt.get("touch", 0)
    P1 = opt.get("p1", 32)
    KCHK = opt.get("kchk", 29)
    g = G()
    e = g.e
    if opt.get('nolnst'):
        g.skip.add('lnst')
    ts_names = []
    vTAG, vL0 = vEP, vEP + 1

    def stamp(name, cyc=False, flush=False):
        if not diag:
            return
        if opt.get("dbg"):
            sel = ["x0", "x1", "par_data", "kdone", "g1_start", "g1_loop_end", "g1_epi_end", "conv_startL", "conv_endL", "g2_start", "g2_loop_end", "end", "sp_lnf", "conv_startE"]
            if name not in sel:
                return
            ts_names[:] = sel
        if name not in ts_names:
            ts_names.append(name)
        i = ts_names.index(name)
        if not g.sfree:
            g.wlg0()
        sr = g.sfree.pop(0)
        e(f"{'s_memtime' if cyc else 's_memrealtime'} s[{sr}:{sr + 1}]")
        g.pst.append((sr, i))
        if flush:
            g.wlg0()

    def interleave(fn, units, every):
        n0 = len(g.L)
        fn()
        body = g.L[n0:]
        del g.L[n0:]
        cnt = 0
        for bi, ln in enumerate(body):
            g.L.append(ln)
            cnt += 1
            nxt_ = body[bi + 1].strip() if bi + 1 < len(body) else ""
            if nxt_.startswith(("s_cselect", "s_addc", "s_cbranch")):
                continue
            if units and cnt >= every:
                u = units[0]
                if isinstance(u, tuple) and u[0] == "m0":
                    e(u[1])
                    units.pop(0)
                    cnt = every - 1
                else:
                    g.do(u)
                    units.pop(0)
                    cnt = 0 if isinstance(u, tuple) else every - 1

    def align():
        e(".p2align 3")

    def red(op, v, t, full):
        for dpp in ("quad_perm:[1,0,3,2]", "quad_perm:[2,3,0,1]", "row_half_mirror", "row_mirror"):
            g.nop(2)
            e(f"{op} v{v}, v{v}, v{v} {dpp}")
        e(f"v_mov_b32 v{t}, v{v}")
        g.nop(2)
        e(f"v_permlane16_swap_b32 v{v}, v{t}")
        g.nop(1)
        e(f"{op} v{v}, v{v}, v{t}")
        if full:
            e(f"v_mov_b32 v{t}, v{v}")
            g.nop(2)
            e(f"v_permlane32_swap_b32 v{v}, v{t}")
            g.nop(1)
            e(f"{op} v{v}, v{v}, v{t}")

    def bf16round(v):
        e(f"v_cvt_pk_bf16_f32 v{v}, v{v}, v{v}")
        e(f"v_lshlrev_b32 v{v}, 16, v{v}")

    def check4(tmp):
        return [f"v_xor_b32 v{tmp}, v{vTAG}, v{tmp}", f"v_xor_b32 v{tmp + 1}, v{vTAG}, v{tmp + 1}",
                f"v_xor_b32 v{tmp + 2}, v{vTAG}, v{tmp + 2}", f"v_xor_b32 v{tmp + 3}, v{vTAG}, v{tmp + 3}",
                f"v_or3_b32 v{tmp}, v{tmp}, v{tmp + 1}, v{tmp + 2}", f"v_or_b32 v{tmp}, v{tmp}, v{tmp + 3}",
                f"v_cmp_ne_u32 vcc, 0, v{tmp}"]

    def poll_block(addr_v, n4, sleep=opt.get('sleep', 8)):
        lp = g.newlab("Lpoll")
        dn = g.newlab("Lpd")
        tmp = vFL
        e(f"s_mov_b32 {sCNT}, 0x4000")
        g.lab(lp)
        if n4:
            e(f"buffer_load_dwordx4 {vr(tmp, 4)}, v{addr_v}, {SWS}, 0 offen sc1")
            e("s_waitcnt vmcnt(0)")
            for x in check4(tmp):
                e(x)
        else:
            e(f"buffer_load_dword v{tmp}, v{addr_v}, {SWS}, 0 offen sc1")
            e("s_waitcnt vmcnt(0)")
            e(f"v_cmp_ne_u32 vcc, v{vTAG}, v{tmp}")
        e(f"s_cbranch_vccz {dn}")
        e(f"s_sleep {sleep}")
        e(f"s_sub_u32 {sCNT}, {sCNT}, 1")
        e(f"s_cbranch_scc0 {lp}")
        g.lab(dn)

    def flag_store(soff):
        e(f"buffer_store_dword v{vTAG}, v{vL0}, {SWS}, {soff} offen sc1")

    def wd_load(phi):
        dst = ar(4 * phi, 4) if phi < 64 else vr(vWDV + 4 * (phi - 64), 4)
        pre = []
        if phi >= 65:
            if phi == 65 or phi == 68:
                pre.append(f"s_add_u32 {sT5}, {sWDS}, {(phi // 4) * 4096}")
                pre.append(f"s_cmp_lt_u32 {sW}, 2\ns_cselect_b32 {sT5}, {sT5}, {OOB}")
        elif phi % 4 == 0:
            pre.append(f"s_add_u32 {sT5}, {sWDS}, {(phi // 4) * 4096}")
        return pre + [("vm", f"buffer_load_dwordx4 {dst}, v1, {SWS}, {sT5} offen offset:{(phi % 4) * 1024} sc1", ("wd", phi))]

    def u_loads(cpreg, va):
        return [f"v_accvgpr_read_b32 v{va}, a{AS2 + 23}",
                f"s_mul_i32 {sF0}, {sW}, {64 * 10240}",
                f"s_lshl_b32 {sF1}, {cpreg}, 5",
                f"s_add_u32 {sF0}, {sF0}, {sF1}",
                f"s_add_u32 {sF0}, {sF0}, {XNT}",
                f"s_add_u32 {sF1}, {sF0}, {32 * 10240}",
                ("vm", f"buffer_load_dwordx4 {vr(vU, 4)}, v{va}, {SWS}, {sF0} offen sc1", "u"),
                ("vm", f"buffer_load_dwordx4 {vr(vU + 4, 4)}, v{va}, {SWS}, {sF1} offen sc1", "u")]

    def table_code(TB):
        def put(i, src):
            e(f"v_lshl_add_u32 v{src}, v{src}, 2, {sF2}")
            e(f"v_accvgpr_write_b32 a{AST + i}, v{src}")
        e(f"s_mul_i32 {sF2}, {sC}, {TC}")
        e(f"s_add_u32 {sF2}, {sF2}, {TB + 4}")
        e("v_lshrrev_b32 v4, 4, v0")
        e(f"s_lshl_b32 {sF1}, {sRHO}, 2")
        e(f"v_add_u32 v4, {sF1}, v4")
        e("v_and_b32 v5, 15, v0")
        DUM = 645
        e("v_cmp_eq_u32 s[54:55], 2, v4")
        e("v_cmp_eq_u32 s[56:57], 3, v4")
        e("v_cmp_eq_u32 s[58:59], 4, v4")
        e("v_cmp_lt_u32 vcc, 4, v4")
        e("v_mov_b32 v6, 8")
        e("v_cndmask_b32 v6, v6, 4, s[54:55]")
        e("v_cndmask_b32 v6, v6, 2, s[56:57]")
        e("v_cndmask_b32 v6, v6, 1, s[58:59]")
        e("v_cndmask_b32 v6, v6, 0, vcc")
        e("v_mul_u32_u24 v7, v6, v5")
        e("v_lshlrev_b32 v8, 4, v6")
        for i in range(4):
            e(f"v_lshl_add_u32 v9, v4, 2, {i}")
            for sreg, val in (("s[54:55]", 256 + i), ("s[56:57]", 384 + 64 * (i >> 1) + (i & 1)), ("s[58:59]", 512 + 32 * i), ("vcc", DUM)):
                e(f"v_mov_b32 v10, {val}")
                e(f"v_cndmask_b32 v9, v9, v10, {sreg}")
            e("v_add_u32 v9, v9, v7")
            e("v_add_u32 v11, v9, v8")
            if i == 0:
                e("v_lshl_add_u32 v6, v4, 4, v5")
                e("v_mov_b32 v10, 80")
                e("v_cmp_eq_u32 s[60:61], v10, v6")
                e("v_mov_b32 v10, 640")
                e("s_nop 0")
                e("v_cndmask_b32 v9, v9, v10, s[60:61]")
            put(i, 9)
            put(4 + i, 11)

    def gather_items(TB):
        it = [f"s_mul_i32 {sF2}, {sC}, {TC}", f"s_add_u32 {sF2}, {sF2}, {TB + 4}",
              f"s_lshl_b32 {sF1}, {sRHO}, 10", f"s_sub_u32 {sF1}, 2047, {sF1}", "v_lshlrev_b32 v12, 3, v0",
              f"v_sub_u32 v12, {sF1}, v12", f"s_movk_i32 {sF1}, 128"]
        for ch in range(2):
            for k in range(11):
                it += [f"v_subrev_u32 v2, {512 * ch + k}, v12", "v_max_i32 v3, 0, v2", "v_cvt_f32_u32 v3, v3",
                       f"v_med3_i32 v2, v2, -1, {sF1}", "v_cvt_pk_bf16_f32 v3, v3, 0", "v_subrev_u32 v3, 0x4280, v3",
                       "v_max_i32 v2, v2, v3", f"v_lshl_add_u32 v2, v2, 2, {sF2}",
                       f"v_accvgpr_write_b32 a{AST + 8 + 11 * ch + k}, v2"]
        return it

    def addr_items(XYB, TB):
        it = []
        A = it.append
        def st(i, r):
            A(f"v_accvgpr_write_b32 a{AS2 + i}, v{r}")
        A(f"s_mul_i32 {sF0}, {sC}, {XYC}")
        A(f"s_add_u32 {sF0}, {sF0}, {XYB}")
        A(f"v_lshl_add_u32 v2, v0, 3, {sF0}")
        st(0, 2)
        A("v_and_b32 v12, 15, v0")
        A("v_lshrrev_b32 v13, 4, v0")
        A(f"v_mul_u32_u24 v2, {XYP}, v12")
        A("v_lshl_add_u32 v2, v13, 4, v2")
        A(f"v_add_u32 v3, {sF0}, v2")
        st(2, 3)
        A(f"s_mul_i32 {sF1}, {sRHO}, {16 * XYP}")
        A(f"v_add_u32 v3, {sF1}, v3")
        st(1, 3)
        A(f"s_mul_i32 {sF2}, {sC}, {TC}")
        A(f"s_add_u32 {sF2}, {sF2}, {TB}")
        A(f"v_mov_b32 v2, {sF2}")
        st(6, 2)
        A("EARLY_END")
        A("v_and_b32 v12, 15, v0")
        A("v_lshrrev_b32 v13, 4, v0")
        A(f"s_mul_i32 {sF0}, {sC}, {UC}")
        A(f"s_lshl_b32 {sF1}, {sRHO}, 8")
        A(f"s_add_u32 {sF2}, {sF0}, {sF1}")
        A(f"s_add_u32 {sF2}, {sF2}, {UBASE}")
        A(f"v_add_u32 v2, {sF2}, v1")
        A(f"s_sub_u32 {sF2}, {sF0}, {sF1}")
        A(f"s_add_u32 {sF2}, {sF2}, {UBASE + 32 + 256}")
        A("v_lshlrev_b32 v14, 5, v12")
        A("v_lshl_add_u32 v3, v13, 4, v14")
        A(f"v_add_u32 v3, {sF2}, v3")
        st(8, 3)
        A("v_lshl_add_u32 v14, v13, 3, v14")
        A(f"s_lshl_b32 {sF2}, {sRHO}, 11")
        A(f"s_add_u32 {sF2}, {sF2}, {sF0}")
        A(f"s_add_u32 {sF2}, {sF2}, {UBASE + 512}")
        A(f"v_add_u32 v3, {sF2}, v14")
        st(11, 3)
        A(f"s_lshl_b32 {sF2}, {sW}, 11")
        A(f"s_add_u32 {sF2}, {sF2}, {SOB}")
        A(f"v_add_u32 v3, {sF2}, v14")
        st(12, 3)
        A(f"v_add_u32 v3, {sF2}, v1")
        st(13, 3)
        A(f"s_mul_i32 {sF0}, {sC}, {RC}")
        A(f"s_mul_i32 {sF2}, {sRHO}, {2 * RCS}")
        A(f"s_add_u32 {sF2}, {sF2}, {sF0}")
        A(f"s_add_u32 {sF2}, {sF2}, {RB + 4096}")
        A("v_bfe_u32 v3, v0, 1, 1")
        A(f"v_mul_u32_u24 v3, {RCS}, v3")
        A("v_and_b32 v15, 1, v0")
        A("v_lshl_add_u32 v3, v15, 4, v3")
        A(f"v_add_u32 v3, {sF2}, v3")
        A("v_cmp_lt_u32 vcc, 15, v0\ns_nop 1\nv_cndmask_b32 v2, v2, v3, vcc")
        st(3, 2)
        A(f"s_lshl_b32 {sF2}, {sRHO}, 11")
        A(f"s_add_u32 {sF2}, {sF2}, {sF0}")
        A(f"s_add_u32 {sF2}, {sF2}, {RB}")
        A(f"v_add_u32 v2, {sF2}, v1")
        st(4, 2)
        A("v_sub_u32 v2, 3, v12")
        A("v_and_b32 v2, 3, v2")
        A(f"v_mul_u32_u24 v2, {RCS}, v2")
        A("v_lshl_add_u32 v2, v13, 4, v2")
        A("v_and_b32 v3, 12, v12")
        A("v_lshlrev_b32 v3, 1, v3")
        A("v_sub_u32 v2, v2, v3")
        A(f"s_sub_u32 {sF2}, {sF0}, {sF1}")
        A(f"s_add_u32 {sF2}, {sF2}, {RB + 24 + 256}")
        A(f"v_add_u32 v2, {sF2}, v2")
        st(7, 2)
        A(f"v_mul_u32_u24 v2, {UC}, v15")
        A("v_lshrrev_b32 v3, 1, v0")
        A("v_lshl_add_u32 v2, v3, 4, v2")
        A(f"s_lshl_b32 {sF2}, {sW}, 10")
        A(f"s_add_u32 {sF2}, {sF2}, {UBASE + 512}")
        A(f"v_add_u32 v2, {sF2}, v2")
        st(5, 2)
        A("v_mul_u32_u24 v3, 10240, v3")
        A("v_lshl_add_u32 v3, v15, 4, v3")
        st(23, 3)
        A(f"s_lshl_b32 {sF2}, {sW}, 12")
        A(f"v_add_u32 v2, {sF2}, v1")
        st(9, 2)
        A("v_xor_b32 v2, 0x1000, v2")
        st(10, 2)
        A(f"s_mul_i32 {sF0}, {sW}, 14")
        A(f"s_cmp_eq_u32 {sW}, 3\ns_cselect_b32 {sF1}, 1, 0")
        A(f"s_sub_u32 {sF0}, {sF0}, {sF1}")
        A(f"s_mul_i32 {sF1}, {sDT}, 54")
        A(f"s_add_u32 {sF1}, {sF0}, {sF1}")
        A(f"s_mul_i32 {sF1}, {sF1}, 5120")
        A(f"s_add_u32 {sWDS}, {sF1}, {WDP}")
        for k in range(4):
            A(f"s_add_u32 {sF1}, {sW}, {k + 1}")
            A(f"s_and_b32 {sF1}, {sF1}, 3")
            if k < 3:
                A(f"s_mul_i32 {sF2}, {sF1}, 15360")
                A(f"s_add_u32 {sF2}, {sF2}, {EXB + 5120 * k}")
                A(f"v_add_u32 v2, {sF2}, v1")
                st(14 + k, 2)
            A(f"s_lshl_b32 {sF2}, {sLT}, 2")
            A(f"s_add_u32 {sF1}, {sF1}, {sF2}")
            A(f"s_mul_i32 {sF1}, {sF1}, 54")
            A(f"s_add_u32 {sF1}, {sF1}, {sF0}")
            A(f"s_lshl_b32 {sF1}, {sF1}, 10")
            A(f"s_add_u32 s{sG2 + 4 * k}, {sF1}, {HB}")
            for q in range(1, 4):
                A(f"s_add_u32 s{sG2 + 4 * k + q}, s{sG2 + 4 * k}, {4096 * q}")
        A(f"s_mov_b32 {sF0}, {0x100000000 // 10 + 1}")
        for kk in range(3):
            A(f"v_add_u32 v2, {64 * kk}, v0")
            A(f"v_mul_hi_u32 v3, v2, {sF0}")
            A("v_mul_u32_u24 v12, 10, v3")
            A("v_sub_u32 v12, v2, v12")
            A("v_mul_u32_u24 v3, 1280, v3")
            A("v_lshl_add_u32 v2, v12, 4, v3")
            st(17 + kk, 2)
        A(f"v_mov_b32 v3, {OOB}")
        A("v_cmp_lt_u32 vcc, 31, v0\ns_nop 1\nv_cndmask_b32 v2, v2, v3, vcc")
        st(20, 2)
        A(f"s_lshl_b32 {sXO}, {sLT}, 2")
        A(f"s_add_u32 {sXO}, {sXO}, {sW}")
        A(f"s_mul_i32 {sXO}, {sXO}, {16 * 1280}")
        A(f"s_mul_i32 {sF0}, {sDT}, 160")
        A(f"s_add_u32 {sXO}, {sXO}, {sF0}")
        A(f"s_mul_i32 {sXT}, {sW}, 3072")
        A(f"s_add_u32 {sXT}, {sXT}, {XTB}")
        A(f"s_mul_i32 {sSTO}, {sDT}, 80")
        A(f"s_lshl_b32 {sF0}, {sW}, 3")
        A(f"s_add_u32 {sSTO}, {sSTO}, {sF0}")
        A(f"s_lshl_b32 {sSTO}, {sSTO}, 12")
        A(f"s_lshl_b32 {sF0}, {sLT}, 7")
        A(f"s_add_u32 {sSTO}, {sSTO}, {sF0}")
        A(f"s_add_u32 {sSTO}, {sSTO}, {ST}")
        A(f"s_lshl_b32 {sF0}, {sLT}, 12")
        A(f"s_add_u32 {sF0}, {sF0}, {HF}")
        A("v_min_u32 v2, 26, v0")
        A(f"v_lshl_add_u32 v2, v2, 7, {sF0}")
        st(21, 2)
        A(f"s_mul_i32 {sF0}, {sDT}, {40 * 128}")
        A(f"s_add_u32 {sF0}, {sF0}, {SF}")
        A("v_min_u32 v2, 39, v0")
        A(f"v_lshl_add_u32 v2, v2, 7, {sF0}")
        st(22, 2)
        k_ = it.index("EARLY_END")
        return it[:k_], it[k_ + 1:]

    e("s_cmp_ge_u32 s2, 256")
    e("s_cbranch_scc1 L_end")
    if diag:
        e("s_memrealtime s[92:93]")
    if opt.get("dbg"):
        e("s_mov_b64 s[100:101], s[0:1]")
        g.sfree = [92]
    e("s_getpc_b64 s[88:89]")
    g.lab("L_pc")
    e("s_load_dwordx2 s[4:5], s[0:1], 0")
    e("s_load_dwordx2 s[16:17], s[0:1], 104")
    e("s_load_dwordx2 s[8:9], s[0:1], 64")
    e("s_load_dwordx2 s[12:13], s[0:1], 72")
    e("s_load_dwordx4 s[28:31], s[0:1], 8")
    e("s_load_dwordx4 s[32:35], s[0:1], 24")
    e("s_load_dwordx4 s[36:39], s[0:1], 40")
    NSP = opt.get("nsp", 0)
    for i in range(NSP):
        e(f"s_load_dword s{66 + i}, s[88:89], {256 + 128 * i}")
    e("v_lshrrev_b32 v2, 6, v0")
    e("v_and_b32 v3, 15, v0")
    e("s_mov_b32 s90, L_codeend - L_pc")
    e("s_mov_b32 s91, 0x20000")
    e("v_lshl_add_u32 v3, v2, 4, v3")
    e(f"v_readfirstlane_b32 {sW}, v2")
    e("v_lshlrev_b32 v3, 7, v3")
    if opt.get("cpf0", 1):
        e(f"buffer_load_dword v{vFL + 3}, v3, s[88:91], 0 offen offset:{min(256 + 128 * NSP, 4000)}")
        g.vm.append("cpf")
    e("v_and_b32 v0, 63, v0")
    e("s_mov_b32 s6, 2621440\ns_mov_b32 s7, 0x20000")
    e("v_lshrrev_b32 v2, 5, v0")
    e("v_and_b32 v3, 31, v0")
    e("v_mul_u32_u24 v2, 1280, v2")
    e(f"s_lshl_b32 {sT0}, s2, 2")
    e(f"s_add_u32 {sT0}, {sT0}, {sW}")
    e("v_lshl_add_u32 v2, v3, 3, v2")
    e(f"s_mul_i32 {sT0}, {sT0}, 2560")
    e(f"s_and_b32 {sXCD}, s2, 7")
    e(f"s_lshr_b32 {sQ}, s2, 3")
    e(f"s_and_b32 {sM}, s2, 1")
    e(f"s_lshr_b32 {sT1}, {sXCD}, 1")
    e(f"s_and_b32 {sT2}, {sQ}, 3")
    e(f"s_lshr_b32 {sDT}, {sQ}, 2")
    e(f"s_lshl_b32 {sM}, {sM}, 2")
    e(f"s_add_u32 {sM}, {sM}, {sT2}")
    e(f"s_mul_i32 {sFT}, {sT1}, 7")
    e(f"s_add_u32 {sFT}, {sFT}, {sDT}")
    e("v_lshrrev_b32 v4, 3, v0")
    e("v_and_b32 v5, 7, v0")
    e("v_lshrrev_b32 v6, 4, v0")
    e("v_mul_u32_u24 v7, 1280, v4")
    e("v_xor_b32 v8, v5, v6")
    e("v_xor_b32 v9, 4, v8")
    e(f"v_lshl_add_u32 v{vXO}, v8, 4, v7")
    e(f"v_lshl_add_u32 v{vXO + 1}, v9, 4, v7")
    e("v_mul_u32_u24 v7, 3456, v4")
    e("v_and_b32 v8, 1, v6")
    e(f"v_add_u32 v{vXO + 1}, {8 * 1280 - 1024}, v{vXO + 1}")
    e("v_lshlrev_b32 v8, 2, v8")
    e("v_xor_b32 v8, v5, v8")
    e(f"v_lshl_add_u32 v{vWO}, v8, 4, v7")
    e(f"s_lshl_b32 {sWM0}, {sW}, 11")
    e(f"s_mul_i32 {sWSO}, {sW}, {16 * 3456}")
    e(f"s_lshl_b32 {sT1}, {sFT}, 7")
    e(f"s_add_u32 {sWSO}, {sWSO}, {sT1}")
    e(f"v_add_u32 v{vWO + 1}, {8 * 3456 - 1024}, v{vWO}")
    e("s_mov_b32 s10, 2211840\ns_mov_b32 s11, 0x20000")
    e("s_mov_b32 s14, s10\ns_mov_b32 s15, 0x20000")
    e(f"s_cmp_lt_u32 {sDT}, 7")
    e(f"s_cselect_b32 {sT3}, {sFT}, 27")
    e(f"s_lshl_b32 {sXS}, {sM}, 2")
    e(f"s_add_u32 {sXS}, {sXS}, {sW}")
    e(f"s_mul_i32 {sXS}, {sXS}, {64 * 1280}")
    e(f"s_lshl_b32 {sXM0}, {sW}, 13")
    e(f"s_add_u32 {sXM0}, {sXM0}, 16384")
    e(f"s_cmp_lt_u32 {sT3}, 27")
    e(f"s_cselect_b32 {sISG1}, 1, 0")
    e(f"s_mul_i32 {sCP}, {sM}, 27")
    e(f"s_add_u32 {sCP}, {sCP}, {sFT}")
    e(f"s_min_u32 {sCP}, {sCP}, 319")
    e(f"s_lshr_b32 {sC}, {sW}, 1")
    e(f"s_lshl_b32 {sT1}, {sCP}, 1")
    e(f"s_add_u32 {sT1}, {sT1}, {sC}")
    e(f"s_lshl_b32 {sT1}, {sT1}, 8")
    e(f"v_lshl_add_u32 v12, v0, 2, {sT1}")
    e(f"s_lshl_b32 {sT1}, {sCP}, 2")
    e(f"v_mov_b32 v13, {sT1}")
    e("s_waitcnt lgkmcnt(0)")
    e(f"s_cmp_eq_u32 {sISG1}, 0")
    e("s_cbranch_scc1 L_spare")
    if diag:
        e("v_mov_b32 v127, 0")
        e("v_writelane_b32 v127, s92, 60")
    stamp("start")
    if opt.get("pt", 0):
        e("v_mov_b32 v12, s4\nv_mov_b32 v13, s5")
        e("s_add_u32 s68, s4, 0x200000\ns_addc_u32 s69, s5, 0")
        for ln, lo in ((1, 68), (2, 8), (3, 12), (4, 16)):
            e(f"v_writelane_b32 v12, s{lo}, {ln}\nv_writelane_b32 v13, s{lo + 1}, {ln}")
        g.vmem(f"global_load_dword v{vFL + 4}, v[12:13], off", "cpf")
    if diag and not opt.get("dbg"):
        e("s_memrealtime s[100:101]\ns_waitcnt lgkmcnt(0)\nv_writelane_b32 v127, s100, 55")
    APAR = 160
    for k, p in enumerate((P_LAR, P_AIM, P_CRE, P_CIM)):
        g.vmem(f"global_load_dword a{APAR + k}, v12, {p}", "par")
    g.vmem(f"global_load_dword a{APAR + 4}, v13, {P_LDT}", "par")
    g.vmem(f"global_load_dword a{APAR + 5}, v13, {P_DSK}", "par")
    LX = 232
    for q in range(5):
        g.vmem(f"buffer_load_dwordx2 {vr(LX + 2 * q, 2)}, v2, {SX}, {sT0} offen offset:{256 * q}", "ln")

    if diag and not opt.get("dbg"):
        e("s_memrealtime s[100:101]\ns_waitcnt lgkmcnt(0)\nv_writelane_b32 v127, s100, 56")

    def rest_setup():
        e("s_load_dwordx2 s[24:25], s[0:1], 80")
        e("s_load_dwordx2 s[20:21], s[0:1], 88")
        e("v_lshlrev_b32 v1, 4, v0")
        e(f"s_mov_b32 s18, {WS_END}\ns_mov_b32 s19, 0x20000")
        e(f"v_mov_b32 v{vL0}, {OOB}")
        e(f"v_writelane_b32 v{vL0}, 0, 0")
        e("s_mov_b32 s22, 2621440\ns_mov_b32 s23, 0x20000")
        e("s_mov_b32 s26, 2211840\ns_mov_b32 s27, 0x20000")
        e(f"s_lshl_b32 {sT4}, {sXCD}, 2")
        e(f"s_and_b32 {sT2}, {sQ}, 3")
        e(f"s_add_u32 {sLT}, {sT4}, {sT2}")
        e(f"s_add_u32 {sT4}, {sT4}, {sQ}")
        e(f"s_sub_u32 {sT4}, {sT4}, 28")
        e(f"s_lshl_b32 {sT5}, {sXCD}, 3")
        e(f"s_add_u32 {sT5}, {sT5}, {sQ}")
        e(f"s_sub_u32 {sT5}, {sT5}, 48")
        e(f"s_cmp_lt_u32 {sXCD}, 6\ns_cselect_b32 {sSP}, {sT4}, {sT5}")
        e(f"s_mul_i32 {sT4}, {sM}, 27")
        e(f"s_add_u32 {sT4}, {sT4}, {sFT}")
        e(f"s_add_u32 {sT5}, {sSP}, 216")
        e(f"s_cmp_lg_u32 {sISG1}, 0\ns_cselect_b32 {sCP}, {sT4}, {sT5}")
        e(f"s_cmp_lt_u32 {sSP}, 24\ns_cselect_b32 {sRND}, 3, 2")
        e(f"s_and_b32 {sRHO}, {sW}, 1")
        e(f"s_lshr_b32 {sC}, {sW}, 1")
        e("v_lshlrev_b32 v10, 21, v0")
        e(f"v_mov_b32 v{vFA}, v1")
        e(f"v_mov_b32 v{vFA + 1}, v1")
        e("v_mul_u32_u24 v54, 17280, v4")
        e("v_lshl_add_u32 v54, v5, 4, v54")
        e(f"s_lshl_b32 {sHS0}, {sM}, 1")
        e(f"s_add_u32 {sHS0}, {sHS0}, {sRHO}")
        e(f"s_mul_i32 {sHS0}, {sHS0}, {40 * 3456}")
        e(f"s_lshl_b32 {sT1}, {sFT}, 7")
        e(f"s_add_u32 {sHS0}, {sHS0}, {sT1}")
        e("s_mov_b32 s98, 2211840\ns_mov_b32 s99, 0x20000")
        e(f"s_cmp_eq_u32 {sC}, 0\ns_cselect_b32 s96, s8, s12\ns_cselect_b32 s97, s9, s13")
        e(f"s_lshl_b32 {sT1}, {sQ}, 2")
        e(f"s_add_u32 {sT1}, {sT1}, {sW}")
        e(f"s_mul_i32 {sT1}, {sT1}, 384")
        e(f"s_add_u32 {sT1}, {sT1}, {8192 + min(256 + 128 * NSP, 4000)}")
        e("v_min_u32 v11, 2, v0")
        e("v_lshlrev_b32 v11, 7, v11")

    def rest_loads():
        g.vmem(f"buffer_load_dword v{vTAG}, v{vL0}, {SWS}, 0 offen sc1", "ep")
        g.vmem(f"buffer_load_dword v{vFL + 2}, v11, s[88:91], {sT1} offen", "tlb")
        g.vmem(f"buffer_load_dword v{vFL}, v10, {SWS}, 0 offen", "tlb")
        e("s_waitcnt lgkmcnt(0)")
        g.vmem(f"buffer_load_dword v{vFL + 1}, v10, {SOUT}, 0 offen", "tlb")

    def dma_units(stage):
        sb = (stage % 3) * SLOT
        out = []
        for mat in range(2):
            out.append(("m0", f"s_add_u32 m0, {sWM0}, {sb + mat * 8192}"))
            for half in range(2):
                o = f" offset:{1024 * half}" if half else ""
                out.append(("vm", f"buffer_load_dwordx4 v{vWO + half}, {SWG if mat == 0 else SWU}, {sWSO} offen{o} lds", ("dma", stage)))
        for i in range(8):
            if i % 4 == 0:
                out.append(("m0", f"s_add_u32 m0, {sXM0}, {sb + i * 1024}"))
            o = f" offset:{1024 * (i & 3)}" if i & 3 else ""
            out.append(("vm", f"buffer_load_dwordx4 v{vXO + i}, {SX}, {sXS} offen{o} lds", ("dma", stage)))
        out.append(f"s_add_u32 {sXS}, {sXS}, 128")
        out.append(f"s_add_u32 {sWSO}, {sWSO}, {64 * 3456}")
        return out

    def dma_block(stage):
        for u in dma_units(stage):
            if isinstance(u, tuple) and u[0] == "m0":
                e(u[1])
                e("s_nop 0")
            else:
                g.do(u)

    APAR = 160
    def param_units(rnd):
        out = [f"s_add_u32 {sT2}, {sCP}, {40 * rnd}", f"s_min_u32 {sT2}, {sT2}, 319",
               f"s_lshl_b32 {sT1}, {sT2}, 1", f"s_add_u32 {sT1}, {sT1}, {sC}", f"s_lshl_b32 {sT1}, {sT1}, 8",
               f"v_lshl_add_u32 v12, v0, 2, {sT1}", f"s_lshl_b32 {sT1}, {sT2}, 2", f"v_mov_b32 v13, {sT1}"]
        for k, p in enumerate((P_LAR, P_AIM, P_CRE, P_CIM)):
            out.append(("vm", f"global_load_dword a{APAR + 8 * rnd + k}, v12, {p}", "par"))
        out.append(("vm", f"global_load_dword a{APAR + 8 * rnd + 4}, v13, {P_LDT}", "par"))
        out.append(("vm", f"global_load_dword a{APAR + 8 * rnd + 5}, v13, {P_DSK}", "par"))
        return out

    CSR = [56, 60, 112, 116, 52]
    def csl_units():
        out = []
        for j5 in range(5):
            if j5 in (2, 4):
                out.append(f"s_add_u32 {sHS0}, {sHS0}, {2 * 3456}")
            out.append(("vm", f"buffer_load_dwordx4 {vr(CSR[j5], 4)}, v54, {STW}, {sHS0} offen offset:{(j5 % 2) * 3456}", ("csl", j5)))
        return out
    def emit_units(us):
        for u in us:
            if isinstance(u, tuple) and u[0] == "m0":
                e(u[1])
                e("s_nop 0")
            else:
                g.do(u)

    def split_units(us, n):
        c = 0
        for ix, u in enumerate(us):
            if isinstance(u, tuple) and u[0] == "vm":
                c += 1
                if c == n:
                    return us[:ix + 1], us[ix + 1:]
        return us, []

    def run_items(items):
        for it in items:
            g.do(it)

    F, S, Dv, SO, UO = 140, 160, 164, 184, 188
    def ln_code(bar=False):
        for q in range(10):
            e(f"v_lshlrev_b32 v{F + 2 * q}, 16, v{LX + q}")
            e(f"v_and_b32 v{F + 2 * q + 1}, 0xffff0000, v{LX + q}")
        e(f"v_pk_add_f32 {vr(S, 2)}, {vr(F, 2)}, {vr(F + 2, 2)}")
        e(f"v_pk_add_f32 {vr(S + 2, 2)}, {vr(F + 4, 2)}, {vr(F + 6, 2)}")
        for q in range(4, 10, 2):
            e(f"v_pk_add_f32 {vr(S, 2)}, {vr(S, 2)}, {vr(F + 2 * q, 2)}")
            e(f"v_pk_add_f32 {vr(S + 2, 2)}, {vr(S + 2, 2)}, {vr(F + 2 * q + 2, 2)}")
        e(f"v_pk_add_f32 {vr(S, 2)}, {vr(S, 2)}, {vr(S + 2, 2)}")
        e(f"v_add_f32 v{S}, v{S}, v{S + 1}")
        red("v_add_f32", S, S + 1, False)
        e(f"v_mul_f32 v{S}, {hex(f2u(1.0 / 640))}, v{S}")
        for q in range(10):
            e(f"v_pk_add_f32 {vr(Dv + 2 * q, 2)}, {vr(F + 2 * q, 2)}, {vr(S, 2)} op_sel_hi:[1,0] neg_lo:[0,1] neg_hi:[0,1]")
        e(f"v_pk_mul_f32 {vr(S + 2, 2)}, {vr(Dv, 2)}, {vr(Dv, 2)}")
        e(f"v_pk_mul_f32 {vr(S + 24, 2)}, {vr(Dv + 2, 2)}, {vr(Dv + 2, 2)}")
        for q in range(2, 10):
            r = S + 2 if q % 2 == 0 else S + 24
            e(f"v_pk_fma_f32 {vr(r, 2)}, {vr(Dv + 2 * q, 2)}, {vr(Dv + 2 * q, 2)}, {vr(r, 2)}")
        e(f"v_pk_add_f32 {vr(S + 2, 2)}, {vr(S + 2, 2)}, {vr(S + 24, 2)}")
        e(f"v_add_f32 v{S + 2}, v{S + 2}, v{S + 3}")
        red("v_add_f32", S + 2, S + 3, False)
        e(f"v_mul_f32 v{S + 2}, {hex(f2u(1.0 / 640))}, v{S + 2}")
        bf16round(S + 2)
        e(f"v_add_f32 v{S + 2}, {hex(f2u(1e-5))}, v{S + 2}")
        bf16round(S + 2)
        e(f"v_sqrt_f32 v{S + 2}, v{S + 2}")
        bf16round(S)
        bf16round(S + 2)
        e(f"v_rcp_f32 v{S + 3}, v{S + 2}")
        e(f"v_sub_f32 v{SO}, 0, v{S}")
        e(f"v_mul_f32 v{SO + 3}, v{S + 2}, v{S + 2}")
        e(f"v_mul_f32 v{S + 1}, v{S + 3}, v{S + 3}")
        e(f"v_mul_f32 v{SO + 2}, {hex(f2u(C0))}, v{S + 3}")
        e(f"v_mul_f32 v{S + 1}, v{S + 1}, v{S + 3}")
        e(f"v_mul_f32 v{S + 2}, v{SO}, v{S + 3}")
        e(f"v_mul_f32 v{SO + 1}, {hex(f2u(C1))}, v{S + 1}")
        for q in range(10):
            e(f"v_pk_fma_f32 {vr(Dv + 2 * q, 2)}, {vr(F + 2 * q, 2)}, {vr(S + 2, 2)}, {vr(S + 2, 2)} op_sel:[0,1,0] op_sel_hi:[1,1,0]")
        for q in range(10):
            e(f"v_cvt_pk_f16_f32 v{UO + q}, v{Dv + 2 * q}, v{Dv + 2 * q + 1}")
        e("v_lshrrev_b32 v2, 5, v0")
        e(f"v_mul_u32_u24 v2, {LNP}, v2")
        e("v_and_b32 v3, 31, v0")
        e("v_lshl_add_u32 v2, v3, 3, v2")
        e(f"s_mul_i32 {sT1}, {sW}, {2 * LNP}")
        e(f"s_add_u32 {sT1}, {sT1}, {LNB}")
        e(f"v_add_u32 v2, {sT1}, v2")
        if bar:
            e("s_barrier")
        for q in range(5):
            g.lds(f"ds_write_b64 v2, {vr(UO + 2 * q, 2)} offset:{256 * q}", "lnw")
        e("v_lshrrev_b32 v4, 1, v0")
        e(f"v_mov_b32 v5, {OOB}")
        e("v_cmp_ne_u32 vcc, 0, v3")
        e(f"s_lshl_b32 {sT1}, s2, 2")
        e(f"s_add_u32 {sT1}, {sT1}, {sW}")
        e("v_cndmask_b32 v4, v4, v5, vcc")
        e(f"s_lshl_b32 {sT1}, {sT1}, 5")
        e(f"s_add_u32 {sT1}, {sT1}, {STATS}")
        e("v_bfe_u32 v6, v0, 2, 2")
        e(f"v_mul_u32_u24 v2, {LNP}, v6")
        e("v_lshrrev_b32 v3, 4, v0")
        e("v_lshl_add_u32 v2, v3, 5, v2")
        e("v_and_b32 v7, 3, v0")
        e("v_lshl_add_u32 v2, v7, 3, v2")
        e(f"s_lshl_b32 {sT2}, {sW}, 7")
        e(f"s_add_u32 {sT2}, {sT2}, {LNB}")
        e(f"v_add_u32 v2, {sT2}, v2")

    def ln_tail():
        g.vmem(f"buffer_store_dwordx4 {vr(SO, 4)}, v4, {SWS}, {sT1} offen sc1", "lnst")
        g.wlg0()
        e("s_barrier")
        TR = 200
        for j in range(3):
            for h in range(2):
                g.lds(f"ds_read_b64_tr_b16 {vr(TR + 4 * j + 2 * h, 2)}, v2 offset:{512 * j + 4 * LNP * h}", ("lntr", j))
        e(f"s_mul_i32 {sT1}, s2, 10240")
        e(f"s_lshl_b32 {sT2}, {sW}, 10")
        e(f"s_add_u32 {sT1}, {sT1}, {sT2}")
        e(f"s_add_u32 {sT1}, {sT1}, {XNT}")
        e(f"s_add_u32 {sT2}, {sT1}, 4096")
        e(f"s_add_u32 {sT3}, {sT1}, 8192")
        e(f"s_cmp_lt_u32 {sW}, 2")
        e(f"s_cselect_b32 {sT3}, {sT3}, {OOB}")
        for j, so in enumerate((sT1, sT2, sT3)):
            g.wlg(("lntr", j))
            g.vmem(f"buffer_store_dwordx4 {vr(TR + 4 * j, 4)}, v1, {SWS}, {so} offen sc1", "lnst")

    AK = 46
    vKA_A, vKA_B, vZ, vRW, vUW, vYS, vFB, vGB = range(AK, AK + 8)
    KA, CC, TM = 128, 152, 136
    WA = KA + 6
    SIG, OMG = KA + 2, KA + 4

    def cexp(dst, p, t):
        for m in range(2):
            e(f"v_mul_f32 v{t + m}, {hex(f2u(float(p)))}, v{SIG + m}")
            e(f"v_mul_f32 v{t + 2 + m}, {hex(f2u(float(p)))}, v{OMG + m}")
        for m in range(2):
            e(f"v_fract_f32 v{t + 2 + m}, v{t + 2 + m}")
        for m in range(2):
            e(f"v_exp_f32 v{t + m}, v{t + m}")
            e(f"v_cos_f32 v{dst + 2 * m}, v{t + 2 + m}")
            e(f"v_sin_f32 v{dst + 2 * m + 1}, v{t + 2 + m}")
        e("s_nop 0")
        align()
        for m in range(2):
            e(f"v_pk_mul_f32 {vr(dst + 2 * m, 2)}, {vr(dst + 2 * m, 2)}, {vr(t, 2)} op_sel:[0,{m}] op_sel_hi:[1,{m}]")

    def cmul(dst, P, Q, t):
        for m in range(2):
            e(f"v_pk_mul_f32 {vr(t + 2 * m, 2)}, {vr(P + 2 * m, 2)}, {vr(Q + 2 * m, 2)} op_sel_hi:[0,1]")
        for m in range(2):
            e(f"v_pk_fma_f32 {vr(dst + 2 * m, 2)}, {vr(P + 2 * m, 2)}, {vr(Q + 2 * m, 2)}, {vr(t + 2 * m, 2)} op_sel:[1,1,0] op_sel_hi:[1,0,1] neg_lo:[0,1,0]")

    prow = [0]

    def put(src, row, neg, lastrow=False):
        o = 144 + 2 * (row % 4)
        ng = "-" if neg else ""
        if src is not None:
            e(f"v_cvt_pk_f16_f32 v{o}, v{src}, {ng}v{src + 1}")
            e(f"v_cvt_pk_f16_f32 v{o + 1}, v{src + 2}, {ng}v{src + 3}")
        if row % 2 == 1:
            o0 = ((row - 1) % 4) * 68
            g.lds(f"ds_write2_b64 v{WA}, {vr(o - 2, 2)}, {vr(o, 2)} offset0:{o0} offset1:{o0 + 68}", "xy")
            if row % 4 == 3:
                e(f"v_add_u32 v{WA}, {4 * XYP}, v{WA}")
        elif lastrow:
            g.lds(f"ds_write_b64 v{WA}, {vr(o, 2)} offset:{(row % 4) * XYP}", "xy")


    def rb1():
        e(f"s_mov_b32 {sKR}, 0")
        for i in range(8):
            e(f"v_accvgpr_read_b32 v{SC + i}, a{AST + i}")
        for i in (0, 1, 5):
            e(f"v_accvgpr_read_b32 v{AK + i}, a{AS2 + 1 + i}")

    def tag_code():
        e(f"v_readfirstlane_b32 {sTAG}, v{vTAG}")
        e("s_nop 3")
        e(f"s_mul_i32 {sTAG}, {sTAG}, 1664525")
        e(f"s_add_u32 {sTAG}, {sTAG}, 1013904223")
        e(f"v_mov_b32 v{vTAG}, {sTAG}")

    def k_setup():
        for k6 in (4, 5, 0, 1, 2, 3):
            e(f"v_accvgpr_read_b32 v{vPAR + k6}, a{APAR + k6}")
        e(f"v_accvgpr_read_b32 v{WA}, a{AS2}")
        e(f"s_lshl_b32 {sT1}, {sC}, 4")
        e(f"v_lshrrev_b32 v{KA}, {sT1}, v{vPAR + 4}")
        e(f"v_lshlrev_b32 v{KA}, 16, v{KA}")
        e(f"v_mul_f32 v{KA}, {hex(f2u(LOG2E))}, v{KA}")
        e(f"v_exp_f32 v{KA}, v{KA}")
        e(f"v_lshrrev_b32 v{KA + 7}, {sT1}, v{vPAR + 5}")
        e(f"v_lshlrev_b32 v{KA + 7}, 16, v{KA + 7}")
        bf16round(KA)
        e(f"v_lshlrev_b32 v{KA + 2}, 16, v{vPAR}")
        e(f"v_and_b32 v{KA + 3}, 0xffff0000, v{vPAR}")
        e(f"v_mul_f32 v{KA + 2}, {hex(f2u(LOG2E))}, v{KA + 2}")
        e(f"v_mul_f32 v{KA + 3}, {hex(f2u(LOG2E))}, v{KA + 3}")
        e(f"v_exp_f32 v{KA + 2}, v{KA + 2}")
        e(f"v_exp_f32 v{KA + 3}, v{KA + 3}")
        e(f"v_lshlrev_b32 v{KA + 4}, 16, v{vPAR + 1}")
        e(f"v_and_b32 v{KA + 5}, 0xffff0000, v{vPAR + 1}")
        e(f"v_cvt_pk_bf16_f32 v{KA + 1}, v{KA + 2}, v{KA + 3}")
        e(f"v_lshlrev_b32 v{CC}, 16, v{vPAR + 2}")
        e(f"v_lshlrev_b32 v{CC + 1}, 16, v{vPAR + 3}")
        e(f"v_and_b32 v{CC + 2}, 0xffff0000, v{vPAR + 2}")
        e(f"v_and_b32 v{CC + 3}, 0xffff0000, v{vPAR + 3}")
        e(f"v_lshlrev_b32 v{KA + 2}, 16, v{KA + 1}")
        e(f"v_and_b32 v{KA + 3}, 0xffff0000, v{KA + 1}")
        for m in range(2):
            e(f"v_mul_f32 v{KA + 2 + m}, v{KA + 2 + m}, v{KA}")
            e(f"v_mul_f32 v{KA + 4 + m}, v{KA + 4 + m}, v{KA}")
        for m in range(2):
            e(f"v_mul_f32 v{KA + 2 + m}, {hex(f2u(-LOG2E))}, v{KA + 2 + m}")
            e(f"v_mul_f32 v{KA + 4 + m}, {hex(f2u(1.0 / (2 * math.pi)))}, v{KA + 4 + m}")

    def k_role0():
        W8, W16, T2 = 152, 156, 140
        ch = [[160, 164], [168, 172]]
        e(f"v_add_u32 v{WA}, {YR0 * XYP}, v{WA}")
        cexp(W8, 8, TM)
        e("v_mov_b32 v144, 0x3c00")
        e("v_mov_b32 v145, 0x3c00")
        cmul(W16, W8, W8, TM)
        put(W8, 33, False)
        cur = [W16, W8]
        for j in range(2, 32, 2):
            n0 = cur[0] if j == 2 else ch[0][(j // 2) & 1]
            n1 = ch[1][(j // 2) & 1]
            for m in range(2):
                if j > 2:
                    e(f"v_pk_mul_f32 {vr(TM + 2 * m, 2)}, {vr(cur[0] + 2 * m, 2)}, {vr(W16 + 2 * m, 2)} op_sel_hi:[0,1]")
                e(f"v_pk_mul_f32 {vr(T2 + 2 * m, 2)}, {vr(cur[1] + 2 * m, 2)}, {vr(W16 + 2 * m, 2)} op_sel_hi:[0,1]")
            for m in range(2):
                if j > 2:
                    e(f"v_pk_fma_f32 {vr(n0 + 2 * m, 2)}, {vr(cur[0] + 2 * m, 2)}, {vr(W16 + 2 * m, 2)}, {vr(TM + 2 * m, 2)} op_sel:[1,1,0] op_sel_hi:[1,0,1] neg_lo:[0,1,0]")
                e(f"v_pk_fma_f32 {vr(n1 + 2 * m, 2)}, {vr(cur[1] + 2 * m, 2)}, {vr(W16 + 2 * m, 2)}, {vr(T2 + 2 * m, 2)} op_sel:[1,1,0] op_sel_hi:[1,0,1] neg_lo:[0,1,0]")
            put(n0, 32 + j, False)
            put(n1, 33 + j, False)
            cur = [n0, n1]

    def k_role1():
        MX = 136
        e(f"v_max_f32 v{MX}, |v{CC}|, |v{CC + 1}|")
        e(f"v_max3_f32 v{MX}, |v{CC + 2}|, |v{CC + 3}|, v{MX}")
        red("v_max_f32", MX, MX + 1, True)
        e(f"v_frexp_exp_i32_f32 v{MX}, v{MX}")
        e(f"v_add_f32 v{KA}, v{KA}, v{KA}")
        e(f"v_ldexp_f32 v{MX + 2}, v{KA}, v{MX}")
        e(f"v_mov_b32 v{MX + 3}, v{KA + 7}")
        e(f"v_sub_u32 v{MX}, 0, v{MX}")
        for i in range(4):
            e(f"v_ldexp_f32 v{CC + i}, v{CC + i}, v{MX}")
        e(f"v_add_u32 v{MX + 1}, {sKR}, v{vYS}")
        e(f"v_mov_b32 v{MX}, 0")
        g.lds(f"ds_write_b64 v{MX + 1}, {vr(MX + 2, 2)} offset:{YSO}", "xy")
        g.lds(f"ds_write_b32 v{MX + 1}, v{MX}", "xy")
        Z, Q, Q4 = 156, 160, 164
        cexp(Z, 1, TM)
        cexp(Q, 256, TM)
        cexp(Q4, 1024, TM)
        X = [168 + 4 * i for i in range(8)]
        X[0] = CC
        put(CC, 0, True)
        for s in range(1, 8):
            cmul(X[s], X[s - 1], Z, TM)
            put(X[s], s, True)
        R8 = [200 + 4 * i for i in range(4)]
        for s in range(4):
            cmul(R8[s], X[2 * s], Q, TM)
            put(R8[s], 8 + s, True)
        R12 = [216, 220]
        for s in range(2):
            cmul(R12[s], R8[2 * s], Q, TM)
            put(R12[s], 12 + s, True)
        for s in range(2):
            cmul(X[1 + 2 * s], R12[s], Q, TM)
            put(X[1 + 2 * s], 14 + s, True)
        cmul(R8[0], CC, Q4, TM)
        put(R8[0], 16, True)
        cmul(R8[1], R8[0], Q, TM)
        put(R8[1], 17, True)
        cmul(R8[3], R8[1], Q, TM)
        put(R8[3], 18, True)
        cmul(R8[1], R8[3], Q, TM)
        put(R8[1], 19, True)
        cmul(R8[2], R8[0], Q4, TM)
        put(R8[2], 20, True, lastrow=True)

    def kgen(sfx, units, every):
        k_setup()
        e(f"s_cmp_lg_u32 {sRHO}, 0")
        e(f"s_cbranch_scc1 L_role1{sfx}")
        vm_s, lg_s = list(g.vm), list(g.lg)
        us = list(units)
        interleave(k_role0, us, every)
        emit_units(us)
        e(f"s_branch L_kbar{sfx}")
        align()
        g.lab(f"L_role1{sfx}")
        g.vm, g.lg = vm_s, lg_s
        us = list(units)
        interleave(k_role1, us, every)
        emit_units(us)
        g.lab(f"L_kbar{sfx}")
        stamp("kvalu_end")

    def kgen_mfma():
        KF = 64
        for ks in range(8):
            g.lds(f"ds_read_b128 {vr(KF + 4 * ks, 4)}, v{vKA_A} offset:{64 * ks}", ("ka", ks))
            g.lds(f"ds_read_b128 {vr(128 + 4 * ks, 4)}, v{vKA_B} offset:{YR0 * XYP + 64 * ks}", ("kb0", ks))
            g.lds(f"ds_read_b128 {vr(160 + 4 * ks, 4)}, v{vKA_B} offset:{(YR0 + 16) * XYP + 64 * ks}", ("kb1", ks))
        KD = 96
        for ks in range(8):
            g.wlg(("kb1", ks))
            e(f"v_mfma_f32_16x16x32_f16 {vr(KD, 4)}, {vr(KF + 4 * ks, 4)}, {vr(128 + 4 * ks, 4)}, {'0' if ks == 0 else vr(KD, 4)}")
            e(f"v_mfma_f32_16x16x32_f16 {vr(KD + 4, 4)}, {vr(KF + 4 * ks, 4)}, {vr(160 + 4 * ks, 4)}, {'0' if ks == 0 else vr(KD + 4, 4)}")
        g.nop(7)
        for i in range(8):
            g.lds(f"ds_write_b32 v{SC + i}, v{KD + i}", "tw")

    vm0 = ["cpf"]
    u0, u0b = split_units(dma_units(0), opt.get("nf", 4))
    def g1_early():
        for i in range(2, 8):
            d = 16 * 1280 - 1024 * ((i & 3) - ((i - 2) & 3))
            e(f"v_add_u32 v{vXO + i}, {d}, v{vXO + i - 2}")
        rest_setup()
    interleave(g1_early, u0, opt.get("pe0", 2))
    assert not u0
    e(f"s_mov_b32 {sRND}, 1")
    rest_loads()
    aE, aL = addr_items(XYB_G1, TB_G1)
    table_code(TB_G1)
    run_items(aE)
    rb1()
    if diag and not opt.get("dbg"):
        e("s_memrealtime s[100:101]\ns_waitcnt lgkmcnt(0)\nv_writelane_b32 v127, s100, 58")
    g.sfree += [88, 90]
    g.wvm("ln")
    stamp("par_data")
    u0c, u0d = split_units(u0b, opt.get("nl", 4))
    interleave(ln_code, u0c, opt.get("pe1", 30))
    emit_units(u0c)
    ln_tail()
    stamp("ln_done")
    g.wvm("ep")
    tag_code()
    e(f"s_lshl_b32 {sT3}, s2, 2")
    e(f"s_add_u32 {sT3}, {sT3}, {LNF}")
    e(f"s_cmp_eq_u32 {sW}, 0")
    e(f"s_cselect_b32 {sT3}, {sT3}, {OOB}")
    e("s_barrier")
    kgen("g", u0d + dma_units(1) + csl_units(), opt.get("pek", 11))
    g.wvm("lnst")
    g.wlg0()
    e("s_barrier")
    flag_store(sT3)
    kgen_mfma()
    stamp("kdone")
    e("v_and_b32 v2, 31, v0")
    e("v_lshrrev_b32 v3, 5, v0")
    e("v_bfe_u32 v4, v0, 1, 3")
    e("v_xor_b32 v4, v4, v3")
    e(f"v_lshl_add_u32 v2, v2, 7, {sXM0}")
    for ks in range(4):
        e(f"v_xor_b32 v5, {2 * ks}, v4")
        e(f"v_lshl_add_u32 v{vBA + ks}, v5, 4, v2")
        e(f"v_add_u32 v{vBA + 4 + ks}, {2 * SLOT}, v{vBA + ks}")
    e("v_bfe_u32 v6, v0, 2, 2")
    e("v_and_b32 v7, 3, v0")
    e("v_lshl_add_u32 v2, v3, 3, v6")
    e("v_lshlrev_b32 v2, 7, v2")
    e("v_bfe_u32 v4, v0, 4, 1")
    e("v_lshl_add_u32 v2, v4, 5, v2")
    e("v_lshl_add_u32 v2, v7, 3, v2")
    e("v_lshrrev_b32 v3, 1, v6")
    e(f"v_xor_b32 v3, {sRHO}, v3")
    e(f"s_lshl_b32 {sT1}, {sC}, 13")
    e("v_lshl_add_u32 v2, v3, 6, v2")
    e(f"v_add_u32 v{vAA}, {sT1}, v2")
    e(f"v_xor_b32 v{vAA + 1}, 64, v{vAA}")
    e(f"v_xor_b32 v{vAA + 2}, 0x2000, v{vAA}")
    e(f"v_xor_b32 v{vAA + 3}, 0x2000, v{vAA + 1}")
    for i in range(4):
        e(f"v_add_u32 v{vAA + 4 + i}, {2 * SLOT}, v{vAA + i}")

    def touch_setup():
        return [f"s_lshr_b32 {sF0}, {sQ}, 2", f"s_mul_i32 {sF0}, {sF0}, 10", f"v_add_u32 v2, {sF0}, v0",
                "v_min_u32 v2, 63, v2", "v_mul_u32_u24 v2, 1280, v2", f"v_mov_b32 v3, {OOB}",
                f"v_cmp_lt_u32 vcc, 9, v0\ns_nop 1\nv_cndmask_b32 v{vTO}, v2, v3, vcc",
                f"s_and_b32 {sF0}, {sQ}, 3", f"s_lshl_b32 {sF0}, {sF0}, 1", f"s_add_u32 {sF0}, {sF0}, {sRHO}",
                f"s_lshl_b32 {sF0}, {sF0}, 3", f"s_lshl_b32 {sF1}, {sW}, 4", f"s_sub_u32 {sF0}, {sF0}, {sF1}",
                f"s_add_u32 {sF0}, {sF0}, 64", f"v_add_u32 v2, {sF0}, v0", "v_mul_u32_u24 v2, 3456, v2",
                f"v_cmp_lt_u32 vcc, 7, v0\ns_nop 1\nv_cndmask_b32 v{vTO + 1}, v2, v3, vcc",
                ]

    def touch_units(ahead):
        return [f"s_add_u32 {sT4}, {sXS}, {128 * ahead}",
                ("vm", f"buffer_load_dword v{vFL + 4}, v{vTO}, {SX}, {sT4} offen", "touch"),
                f"s_add_u32 {sT4}, {sWSO}, {64 * 3456 * (ahead - 1)}" if ahead >= 1 else f"s_sub_u32 {sT4}, {sWSO}, {64 * 3456}",
                ("vm", f"buffer_load_dword v{vFL + 4}, v{vTO + 1}, {STW}, {sT4} offen", "touch")]

    def frag_reads(k):
        stage, ks = divmod(k, 4)
        sl = stage % 3
        st4 = 4 if sl == 2 else 0
        so = 0 if sl == 2 else sl * SLOT
        A = vAF + 16 * (k & 1)
        B = vBF + 8 * (k & 1)
        def bread(b):
            return ("lds", f"ds_read_b128 {vr(B + 4 * b, 4)}, v{vBA + st4 + ks} offset:{so + 4096 * b}", ("B", k, b))
        def aread(t, h):
            return ("lds", f"ds_read_b64_tr_b16 {vr(A + 4 * t + 2 * h, 2)}, v{vAA + st4 + t} offset:{so + ks * 2048 + h * 512}", ("A", k, t))
        return [bread(0), aread(0, 0), aread(0, 1), bread(1), aread(1, 0), aread(1, 1), aread(2, 0), aread(2, 1), aread(3, 0), aread(3, 1)]

    e(f"s_mov_b32 {sMASK}, 0xffff0000")
    g.wvm(("dma", 0))
    g.wlg0()
    e("s_barrier")
    stamp("g1_start")
    stamp("c_g1s", cyc=True)
    for it in frag_reads(0):
        g.do(it)

    PACE = opt.get("pace", 2)
    NG = 320
    gaps = [[] for _ in range(NG)]
    head = [[] for _ in range(NG)]
    pre = {}
    vq_big = []

    sq = []
    def add_group(units, earliest, small=False, pace=None):
        vq = sq if small else vq_big
        prel = []
        for u in units:
            if isinstance(u, tuple) and u[0] == "m0":
                prel.append(u[1])
            elif isinstance(u, tuple) or callable(u):
                vq.append([earliest, prel, u, [], pace])
                prel = []
            else:
                prel.append(u)
        if prel:
            vq[-1][3] += prel

    def Bgap(s):
        return 32 * s - 8

    PKV = 48
    pk_fill = [f"s_mov_b32 {sF0}, {0x100000000 // 20 + 1}", f"s_lshl_b32 {sF1}, {sW}, 6"]
    for i3 in range(3):
        pk_fill += [f"v_add_u32 v2, {sF1}, v0"] + ([f"v_add_u32 v2, {256 * i3}, v2"] if i3 else []) + [
            f"v_mul_hi_u32 v3, v2, {sF0}", "v_mul_u32_u24 v12, 20, v3", "v_sub_u32 v12, v2, v12",
            "v_mul_u32_u24 v3, 1280, v3", f"v_lshl_add_u32 v{PKV + i3}, v12, 4, v3"]
    pk_fill += [f"s_lshr_b32 {sHS0}, {sCP}, 2", f"s_and_b32 {sHS1}, {sCP}, 3",
                f"s_mul_i32 {sT2}, {sHS0}, 40960", f"s_mul_i32 {sF0}, {sHS1}, 320", f"s_add_u32 {sT2}, {sT2}, {sF0}",
                f"s_lshl_b32 {sT3}, {sW}, 10"]
    pk_fill2 = ["v_lshrrev_b32 v2, 5, v0", "v_bfe_u32 v3, v0, 2, 2", "v_lshl_add_u32 v2, v2, 4, v3", "v_bfe_u32 v3, v0, 4, 1",
                "v_lshl_add_u32 v2, v3, 2, v2", "v_mul_u32_u24 v2, 320, v2", "v_and_b32 v3, 3, v0", "v_lshl_add_u32 v2, v3, 3, v2",
                f"s_lshl_b32 {sF0}, {sW}, 5", f"s_add_u32 {sF0}, {sF0}, {PKB}", f"v_add_u32 v{PKV + 3}, {sF0}, v2"]
    PDR = [56, 60, 8]
    pk_dma = []
    for i3 in range(3):
        pk_dma.append(("m0", f"s_add_u32 m0, {sT3}, {PKB + 4096 * i3}"))
        if i3 == 2:
            pk_dma.append(lambda: e(f"s_cmp_lt_u32 {sW}, 2\ns_cbranch_scc0 L_nopk3\nbuffer_load_dwordx4 v{PKV + 2}, {SWD}, {sT2} offen lds\nL_nopk3:") or g.vm.append("OPT"))
        else:
            pk_dma.append(("vm", f"buffer_load_dwordx4 v{PKV + i3}, {SWD}, {sT2} offen lds", "pkd"))
    pk_st = []
    for i3 in range(3):
        pk_st += [f"s_mul_i32 {sT2}, {sHS1}, 10\ns_add_u32 {sT2}, {sT2}, {sW}\ns_add_u32 {sT2}, {sT2}, {4 * i3}",
                  f"s_mul_i32 {sT3}, {sT2}, 13108\ns_lshr_b32 {sT3}, {sT3}, 16\ns_mul_i32 {sT3}, {sT3}, 265\ns_add_u32 {sT2}, {sT2}, {sT3}",
                  f"s_mul_i32 {sT3}, {sHS0}, 5\ns_add_u32 {sT2}, {sT2}, {sT3}\ns_lshl_b32 {sT2}, {sT2}, 10\ns_add_u32 {sT2}, {sT2}, {WDP}"]
        if i3 == 2:
            pk_st.append(f"s_cmp_lt_u32 {sW}, 2\ns_cselect_b32 {sT2}, {sT2}, {OOB}")
        pk_st.append(("vm", f"buffer_store_dwordx4 {vr(PDR[i3], 4)}, v1, {SWS}, {sT2} offen sc1", "pks"))
    lnflag = [f"s_lshl_b32 {sT1}, s2, 2\ns_add_u32 {sT1}, {sT1}, {LNF}\ns_cmp_eq_u32 {sW}, 0\ns_cselect_b32 {sT1}, {sT1}, {OOB}",
              lambda: flag_store(sT1)]
    def wff():
        g.wvm("pks")
        flag_store(sT1)
    wfflag = [f"s_lshl_b32 {sT1}, {sHS1}, 6\ns_add_u32 {sT1}, {sT1}, {sHS0}\ns_lshl_b32 {sT1}, {sT1}, 2\ns_add_u32 {sT1}, {sT1}, {sW}",
              f"s_lshl_b32 {sT1}, {sT1}, 2\ns_add_u32 {sT1}, {sT1}, {WF}", wff]

    add_group(dma_units(2), opt.get("d2", 4))
    add_group(pk_dma, 20)
    for st_ in range(1, 8):
        if st_ == 2:
            add_group(pk_st, Bgap(2) + 6)
        add_group(dma_units(st_ + 2), Bgap(st_) + {1: opt.get("d3", 10), 2: opt.get("d4", 20), 3: opt.get("d5", 20), 4: opt.get("d6", 0)}.get(st_, 0))
    G0 = 8 * KCHK + 4
    for phi in range(P1):
        add_group(wd_load(phi), G0)
    vsched = []
    occ = set()
    def place(q, pace):
        last = -pace
        for (ear, prel, vmi, post, pc) in q:
            gq = max(ear, last + (pc or pace))
            while gq in occ:
                gq += 1
            assert gq < NG - 1, gq
            occ.add(gq)
            gaps[gq - 1] += prel
            head[gq].append(vmi)
            gaps[gq] = post + gaps[gq]
            last = gq
            vsched.append((gq, vmi[2] if isinstance(vmi, tuple) else "flag"))
    place(vq_big, PACE)
    def gap_of(tag):
        return max(gq for gq, t in vsched if t == tag)
    for st_ in range(1, 8):
        ge = gap_of(("dma", st_ + 2)) + 2
        if st_ == 2:
            add_group([f"s_lshl_b32 {sT1}, {sFT}, 1\ns_add_u32 {sT1}, {sT1}, {sC}\ns_lshl_b32 {sT1}, {sT1}, 3\ns_add_u32 {sT1}, {sT1}, {sM}",
                       f"s_lshl_b32 {sT1}, {sT1}, 1\ns_add_u32 {sT1}, {sT1}, {sRHO}\ns_lshl_b32 {sT1}, {sT1}, 8\ns_add_u32 {sT1}, {sT1}, {CSP}",
                       ("vm", f"buffer_store_dwordx2 {vr(4, 2)}, v6, {SWS}, {sT1} offen sc1", "pks")], gap_of("pks") + 1, True)
        if st_ == 3:
            add_group(wfflag, gap_of(("dma", 4)) + 1, True)
        if st_ == 5:
            add_group([("vm", f"buffer_load_dwordx4 {vr(vFL, 4)}, v{vFA}, {SWS}, 0 offen sc1", "poll"),
                       ("vm", f"buffer_load_dwordx4 {vr(PKV, 4)}, v{vFA + 1}, {SWS}, 0 offen sc1", "poll")], 8 * KCHK - 22, True)
        if TOUCH and st_ + TOUCH <= 9:
            if st_ == 1:
                for a in range(0, TOUCH - 3):
                    add_group(touch_units(a), ge, True)
            add_group(touch_units(TOUCH - 3), ge, True)
        if st_ == 6 and opt.get('wtouch'):
            for t3 in range(3):
                add_group([f"s_and_b32 {sT4}, {sLT}, 3\ns_mul_i32 {sT4}, {sT4}, {140 * 128}\ns_add_u32 {sT4}, {sT4}, {sWDS}" if t3 == 0 else f"s_add_u32 {sT4}, {sT4}, {48 * 128}",
                           ("vm", f"buffer_load_dword v{vFL + 4}, v{PKV + 1}, {SWS}, {sT4} offen sc1", "wtouch")], 8 * KCHK + 4 + 4 * t3, True)
    add_group([f"s_lshl_b32 {sT1}, {sFT}, 1\ns_add_u32 {sT1}, {sT1}, {sC}\ns_lshl_b32 {sT1}, {sT1}, 5\ns_add_u32 {sT1}, {sT1}, {sRHO}",
               f"s_lshl_b32 {sT1}, {sT1}, 7\ns_add_u32 {sT1}, {sT1}, {CSP}",
               ("vm", f"buffer_load_dwordx4 {vr(4, 4)}, v{vCS}, {SWS}, {sT1} offen sc1", "csp"),
               ("vm", f"buffer_load_dwordx4 {vr(8, 4)}, v{vCS}, {SWS}, {sT1} offen offset:2048 sc1", "csp")], G0, True)
    add_group([f"s_lshl_b32 {sT1}, {sM}, 2\ns_add_u32 {sT1}, {sT1}, {sW}\ns_lshl_b32 {sT1}, {sT1}, 10\ns_add_u32 {sT1}, {sT1}, {STATS}",
               ("vm", f"buffer_load_dwordx4 {vr(vSTA, 4)}, v15, {SWS}, {sT1} offen sc1", "stats"),
               ("vm", f"buffer_load_dwordx4 {vr(vSTA + 4, 4)}, v15, {SWS}, {sT1} offen offset:512 sc1", "stats")], G0, True)
    add_group(u_loads(sCP, 3), G0, True)
    place(sq, 1)
    vsched.sort()
    if opt.get("v"):
        print(vsched)
    assert all(gap_of(("dma", st_)) < Bgap(st_) - 12 for st_ in range(2, 10))
    assert gap_of("pkd") < Bgap(2) and gap_of("pks") < gap_of(("dma", 4)) - 24 and gap_of("poll") < 8 * KCHK - 6

    for i3 in range(3):
        for h in range(2):
            gaps[Bgap(2) + 1 + i3].append(("lds", f"ds_read_b64_tr_b16 {vr(PDR[i3] + 2 * h, 2)}, v{PKV + 3} offset:{128 * i3 + 8 * 320 * h}", "pk"))
    c4 = check4(vFL)
    gaps[8 * KCHK] += [("wvm", "poll")] + c4[0:2]
    gaps[8 * KCHK + 1] += c4[2:5]
    def chk():
        sl = g.newlab("Lslow")
        bk = g.newlab("Lback")
        for x in check4(PKV)[:6]:
            e(x)
        e(f"v_or3_b32 v{vFL}, v{vFL}, v{vFL + 3}, v{PKV}")
        e(c4[6])
        e(f"s_cbranch_vccnz {sl}")
        g.lab(bk)
        g.slow.append((sl, bk, [(vFA, True), (vFA + 1, True)]))
    gaps[8 * KCHK + 2].insert(0, chk)

    CA = [4, 5, 6, 7, 42, 43, 44, 45]
    csum = []
    for j5 in range(5):
        csum.append(("wvm", ("csl", j5)))
        for d in range(4):
            r = CSR[j5] + d
            if j5 == 0:
                csum += [f"v_lshlrev_b32 v{CA[2 * d]}, 16, v{r}", f"v_and_b32 v{CA[2 * d + 1]}, {sMASK}, v{r}"]
            else:
                csum += [f"v_lshlrev_b32 v8, 16, v{r}", f"v_and_b32 v9, {sMASK}, v{r}",
                         f"v_add_f32 v{CA[2 * d]}, v{CA[2 * d]}, v8", f"v_add_f32 v{CA[2 * d + 1]}, v{CA[2 * d + 1]}, v9"]
    csum += ["s_nop 1"]
    csum += [f"v_permlane32_swap_b32 v{CA[c]}, v{CA[c + 4]}" for c in range(4)]
    csum += [f"v_add_f32 v{CA[c]}, v{CA[c]}, v{CA[c + 4]}" for c in range(4)]
    csum += ["s_nop 1"]
    csum += [f"v_permlane16_swap_b32 v{CA[c]}, v{CA[c + 2]}" for c in range(2)]
    csum += ["s_nop 0"]
    csum += [f"v_add_f32 v{CA[c]}, v{CA[c]}, v{CA[c + 2]}" for c in range(2)]
    csum += ["v_and_b32 v6, 7, v0", "v_lshlrev_b32 v6, 5, v6"]
    csum += [f"v_add_f32 v{CA[c]}, v{CA[c]}, v{CA[c]} row_ror:8" for c in range(2)]
    csum += ["v_lshrrev_b32 v7, 4, v0", "v_lshl_add_u32 v6, v7, 3, v6", f"v_mov_b32 v7, {OOB}",
             "v_and_b32 v8, 8, v0", "v_cmp_ne_u32 vcc, 0, v8\ns_nop 1\nv_cndmask_b32 v6, v6, v7, vcc"]
    fillq = pk_fill + (touch_setup() if TOUCH else []) + pk_fill2[:11]
    n_a = len(fillq)
    fillq += csum
    n_csum = len(fillq)
    n_early = len(pk_fill)
    fillq += pk_fill2[11:]
    n_early2 = len(fillq)
    fillq += [f"v_min_u32 v2, 53, v0", f"s_lshr_b32 {sF0}, {sDT}, 1", f"s_lshl_b32 {sF0}, {sF0}, 10",
              f"s_add_u32 {sF0}, {sF0}, {WF}", f"v_lshl_add_u32 v2, v2, 4, {sF0}",
              "v_and_b32 v3, 7, v0", "v_mul_u32_u24 v3, 27, v3", f"v_add_u32 v3, {sFT}, v3", "v_and_b32 v12, 3, v3",
              "v_lshrrev_b32 v3, 2, v3", "v_lshl_add_u32 v3, v12, 6, v3", "v_lshlrev_b32 v3, 4, v3", f"v_add_u32 v3, {WF}, v3",
              f"v_cmp_lt_u32 vcc, 55, v0\ns_nop 1\nv_cndmask_b32 v{vFA + 1}, v2, v3, vcc"]
    iw = max(i for i, x in enumerate(aL) if sWDS + "," in x)
    i0 = min(i for i, x in enumerate(aL) if f"{sF0}, {sW}, 14" in x)
    iu = max(i for i, x in enumerate(aL) if f"a{AS2 + 23}," in x)
    fillq += [f"v_add_u32 v{vFA}, {LNF}, v1"] + aL[i0:iw + 1] + ["v_lshrrev_b32 v3, 1, v0", "v_and_b32 v2, 1, v0", "v_mul_u32_u24 v3, 10240, v3", "v_lshl_add_u32 v3, v2, 4, v3",
                              f"v_accvgpr_write_b32 a{AS2 + 23}, v3"]
    n_mid = len(fillq)
    late_fill = aL[:i0] + aL[i0:i0 + 3] + aL[iw + 1:] + gather_items(TB_G1)
    late_fill = [x.replace("v12", "v10").replace("v13", "v11").replace("v14", "v46").replace("v15", "v47") for x in late_fill]
    fillq += ["v_bfe_u32 v2, v0, 4, 1", f"v_mul_u32_u24 v2, {54 * 1024}, v2", "v_lshrrev_b32 v3, 5, v0",
              "v_lshl_add_u32 v2, v3, 8, v2", "v_and_b32 v12, 15, v0", "v_lshl_add_u32 v2, v12, 4, v2",
              f"s_lshl_b32 {sF0}, {sRHO}, 10", f"v_add_u32 v{vHO}, {sF0}, v2", f"s_xor_b32 {sF0}, {sF0}, 1024",
              f"v_add_u32 v{vHO + 1}, {sF0}, v2", f"s_lshl_b32 {sF0}, {sRHO}, 7", f"s_add_u32 {sF0}, {sF0}, {CSB}",
              f"v_lshl_add_u32 v13, v3, 4, {sF0}", "v_xor_b32 v14, 128, v13",
              "v_and_b32 v2, 7, v0", "v_lshlrev_b32 v12, 4, v2", "v_lshl_add_u32 v12, v3, 3, v12", "v_bfe_u32 v3, v0, 4, 1",
              "v_lshl_add_u32 v12, v3, 2, v12", f"s_lshl_b32 {sF0}, {sW}, 7", f"s_add_u32 {sF0}, {sF0}, {CSB}",
              f"v_add_u32 v12, {sF0}, v12", "v_lshrrev_b32 v3, 3, v0", "v_lshlrev_b32 v3, 8, v3", f"v_lshl_add_u32 v{vCS}, v2, 4, v3",
              "v_and_b32 v15, 31, v0", "v_lshlrev_b32 v15, 4, v15"]
    tail_fill = [f"s_lshl_b32 {sHS0}, {sM}, 2", f"s_add_u32 {sHS0}, {sHS0}, {sW}", f"s_lshl_b32 {sPEND}, {sHS0}, 5",
                 f"s_mul_i32 {sHS0}, {sHS0}, {4 * 54}", f"s_lshl_b32 {sT2}, {sFT}, 1", f"s_add_u32 {sHS0}, {sHS0}, {sT2}",
                 f"s_lshl_b32 {sHS0}, {sHS0}, 10", f"s_add_u32 {sHS0}, {sHS0}, {HB}", f"s_add_u32 {sHS1}, {sHS0}, {2 * 54 * 1024}",
                 f"s_add_u32 {sPEND}, {sPEND}, {sFT}", f"s_lshl_b32 {sPEND}, {sPEND}, 7", f"s_add_u32 {sPEND}, {sPEND}, {HF}"]
    cs_fill = [("wvm", "csp")] + [f"v_add_f32 v{4 + c}, v{4 + c}, v{8 + c}" for c in range(4)] + ["s_nop 0",
               "v_permlane32_swap_b32 v4, v6", "v_permlane32_swap_b32 v5, v7", "s_nop 0", "v_add_f32 v4, v4, v6", "v_add_f32 v5, v5, v7",
               "s_nop 1", "v_permlane16_swap_b32 v4, v5", "s_nop 0", "v_add_f32 v4, v4, v5", "s_nop 1",
               "v_add_f32 v4, v4, v4 row_ror:8", ("lds", "ds_write_b32 v12, v4", "csw")]
    nf_total = len(fillq)

    def cost(it):
        if isinstance(it, str):
            return it.count("\n") + 1
        return 1
    CAP = opt.get("cap", 4)
    for k in range(40):
        stage, ks = divmod(k, 4)
        A = vAF + 16 * (k & 1)
        B = vBF + 8 * (k & 1)
        gk = [head[8 * k + i] + gaps[8 * k + i] for i in range(8)]
        body = [[] for _ in range(8)]
        if k + 1 < 40:
            for i, it in enumerate(frag_reads(k + 1)):
                body[i // 2].append(it)
        if k == 39:
            for j in range(4):
                body[2 + j // 2].append(("lds", f"ds_read_b128 {vr(64 + 4 * j, 4)}, v13 offset:{32 * j}", "cs0"))
            for j in range(4):
                dst = (4 + 4 * j) if j < 2 else (96 + 4 * (j - 2))
                body[4 + j // 2].append(("lds", f"ds_read_b128 {vr(dst, 4)}, v13 offset:{256 + 32 * j}", "cs0"))
        else:
            load = [sum(map(cost, gk[i])) + len(body[i]) + (1 if i in (3, 7) else 0) for i in range(8)]
            q = fillq if fillq else (tail_fill if (k >= 18 and tail_fill) else late_fill)
            if k == KCHK or (q is late_fill and (k < 10 or 29 <= k <= 34)):
                q = []
            if k == 29:
                assert not late_fill, len(late_fill)
            if k in (33, 34) and cs_fill:
                q = cs_fill
            cap = CAP + (1 if k < 9 else opt.get('capx', 1))
            for i in range(8):
                while q and load[i] + cost(q[0]) <= cap + (2 if cost(q[0]) > 1 else 0):
                    it = q.pop(0)
                    body[i].append(it)
                    load[i] += cost(it)
            if k == 2:
                assert nf_total - len(fillq) >= n_early, (nf_total - len(fillq), n_early)
            if k == 5:
                assert nf_total - len(fillq) >= n_a
            if k == 6:
                assert nf_total - len(fillq) >= n_a + 30
            if 8 * k + 8 >= gap_of("pks") - 1:
                assert nf_total - len(fillq) >= n_csum, (nf_total - len(fillq), n_csum)
            if k == 13:
                assert nf_total - len(fillq) >= n_early2
            if k == KCHK - 4:
                assert nf_total - len(fillq) >= n_mid
            if 8 * k + 8 > gap_of("stats") - 4:
                assert not fillq, (k, len(fillq))
        if ks == 3 and stage < 9:
            stamp(f"c_w{stage + 1}", cyc=True)
            g.wlg0()
            if stage == 1:
                g.wvm("OPT")
            g.wvm(("dma", stage + 1))
            e("s_barrier")
            stamp(f"c_b{stage + 1}", cyc=True)
        for i in range(8):
            t, b = divmod(i, 2)
            if k == 0:
                g.wlg(("A", k, t))
                g.wlg(("B", k, b))
            elif i == 0:
                g.wlg(("A", k, 1))
            elif i == 4:
                g.wlg(("A", k, 3))
            D = vACC + 16 * (2 * t + b)
            Cs = "0" if k == 0 else vr(D, 16)
            e(f"v_mfma_f32_32x32x16_bf16 {vr(D, 16)}, {vr(A + 4 * t, 4)}, {vr(B + 4 * b, 4)}, {Cs}")
            for it in head[8 * k + i]:
                if isinstance(it, tuple) and it[2] == "pks":
                    g.wlg("pk")
                g.do(it)
            for it in body[i] + gaps[8 * k + i]:
                g.do(it)
    assert not tail_fill and not cs_fill and not late_fill, len(late_fill)
    stamp("c_g1e", cyc=True)
    stamp("g1_loop_end", flush=True)

    def csu0(i):
        return (4 + i) if i < 8 else (96 + i - 8)
    def csu1(i):
        return (104 + i) if i < 8 else (28 + i - 8)
    tmps = [24, 26, 36, 38]
    g.wvm("stats")
    g.wlg("cs0")
    e(f"s_cmp_lg_u32 {sC}, 0")
    e("s_cbranch_scc1 L_epiB")
    vm_save, lg_save = list(g.vm), list(g.lg)
    for variant in range(2):
        if variant == 1:
            align()
            g.lab("L_epiB")
            g.vm, g.lg = list(vm_save), list(lg_save)
        align()
        for ap in range(2):
            for b in range(2):
                gs, us = (ap, 2 + ap) if variant == 0 else (2 + ap, ap)
                Gt = vACC + 16 * (2 * gs + b)
                Ut = vACC + 16 * (2 * us + b)
                st = vSTA + 4 * b
                if ap == 0 and b == 1:
                    for j in range(4):
                        g.lds(f"ds_read_b128 {vr(80 + 4 * j, 4)}, v14 offset:{32 * j}", "cs1")
                    for j in range(4):
                        dst = (104 + 4 * j) if j < 2 else (28 + 4 * (j - 2))
                        g.lds(f"ds_read_b128 {vr(dst, 4)}, v14 offset:{256 + 32 * j}", "cs1")
                if ap == 1 and b == 0:
                    g.wlg("cs1")
                    align()
                csg = (lambda i: 64 + i) if ap == 0 else (lambda i: 80 + i)
                csu = csu0 if ap == 0 else csu1
                for c in range(2):
                    O = 16 if c == 0 else 20
                    ps = range(4 * c, 4 * c + 4)
                    for p in ps:
                        e(f"v_pk_fma_f32 {vr(Gt + 2 * p, 2)}, {vr(csg(2 * p), 2)}, {vr(st, 2)}, {vr(Gt + 2 * p, 2)} op_sel_hi:[1,0,1]")
                    for p in ps:
                        e(f"v_pk_mul_f32 {vr(tmps[p % 4], 2)}, {vr(Gt + 2 * p, 2)}, {vr(Gt + 2 * p, 2)}")
                    for p in ps:
                        t = tmps[p % 4]
                        e(f"v_pk_fma_f32 {vr(t, 2)}, {vr(t, 2)}, {vr(st, 2)}, {vr(st + 2, 2)} op_sel:[0,1,0] op_sel_hi:[1,1,0]")
                    for p in ps:
                        t = tmps[p % 4]
                        e(f"v_pk_mul_f32 {vr(t, 2)}, {vr(t, 2)}, {vr(Gt + 2 * p, 2)}")
                    for p in ps:
                        t = tmps[p % 4]
                        e(f"v_exp_f32 v{t}, v{t}")
                        e(f"v_exp_f32 v{t + 1}, v{t + 1}")
                    for p in ps:
                        e(f"v_pk_fma_f32 {vr(Ut + 2 * p, 2)}, {vr(csu(2 * p), 2)}, {vr(st, 2)}, {vr(Ut + 2 * p, 2)} op_sel_hi:[1,0,1]")
                    for p in ps:
                        t = tmps[p % 4]
                        e(f"v_pk_fma_f32 {vr(t, 2)}, {vr(t, 2)}, {vr(st + 2, 2)}, {vr(st + 2, 2)} op_sel:[0,1,1] op_sel_hi:[1,1,1]")
                    for p in ps:
                        t = tmps[p % 4]
                        e(f"v_rcp_f32 v{t}, v{t}")
                        e(f"v_rcp_f32 v{t + 1}, v{t + 1}")
                    for p in ps:
                        e(f"v_pk_mul_f32 {vr(Gt + 2 * p, 2)}, {vr(Gt + 2 * p, 2)}, {vr(Ut + 2 * p, 2)}")
                    for p in ps:
                        e(f"v_pk_mul_f32 {vr(Gt + 2 * p, 2)}, {vr(Gt + 2 * p, 2)}, {vr(tmps[p % 4], 2)}")
                    for p in ps:
                        e(f"v_cvt_pk_bf16_f32 v{O + p - 4 * c}, v{Gt + 2 * p}, v{Gt + 2 * p + 1}")
                    g.vmem(f"buffer_store_dwordx4 {vr(O, 4)}, v{vHO + ap}, {SWS}, {sHS0 if b == 0 else sHS1} offen offset:{512 * c} sc1", "hst")
        if variant == 0:
            e("s_branch L_epi_done")
    g.lab("L_epi_done")
    stamp("c_epe", cyc=True)
    stamp("g1_epi_end", flush=True)
    e(f"s_mov_b32 {sMASK}, {sPEND}")

    def rb2():
        for i in range(22):
            e(f"v_accvgpr_read_b32 v{GA + i}, a{AST + 8 + i}")
        for i in range(2, 8):
            e(f"v_accvgpr_read_b32 v{AK + i}, a{AS2 + 1 + i}")
        e("v_mov_b32 v4, 0\nv_mov_b32 v5, 0\nv_mov_b32 v6, 0\nv_mov_b32 v7, 0")
        e(f"ds_write_b128 v{vZ}, {vr(4, 4)}")
    rb2()

    Greg = [[224 + 4 * i for i in range(8)], [192 + 4 * i for i in range(8)]]
    FB = [128, 160]
    CACC = 64
    HRING = [16 + 4 * i for i in range(12)] + [104 + 4 * i for i in range(3)] + [128 + 4 * i for i in range(26)]
    NE = opt.get("ne", 8)
    P2 = opt.get("p2", 40)
    NB = len(HRING)
    YS, DK = 100, 101

    def hload(i):
        k, st = divmod(i, 14)
        r = HRING[i % NB]
        if st == 13:
            return [f"s_cmp_lt_u32 {sW}, 2\ns_cselect_b32 {sT4}, s{sG2 + 4 * k + 3}, {OOB}",
                    ("vm", f"buffer_load_dwordx4 {vr(r, 4)}, v1, {SWS}, {sT4} offen offset:1024 sc1", ("h", i))]
        return [("vm", f"buffer_load_dwordx4 {vr(r, 4)}, v1, {SWS}, s{sG2 + 4 * k + st // 4} offen offset:{(st % 4) * 1024} sc1", ("h", i))]

    def conv(last):
        tag = "L" if last else "E"
        g.lab("L_conv_last" if last else "L_conv_early")
        g.vm = ["u", "u"]
        g.lg = []
        def wd_e(phi):
            its = wd_load(phi)
            if len(its) > 1:
                its.insert(1, f"s_or_b32 {sT5}, {sT5}, {sK0}")
            return its
        if last:
            wq = [[f"s_add_u32 m0, {sXT}, {1024 * kk}", "s_nop 0",
                   ("vm", f"buffer_load_dwordx4 v{12 + kk}, {SX}, {sXO} offen lds", ("xt", 0))] for kk in range(3)]
            wq += [wd_load(phi) for phi in range(P1, 70)]
            for i7 in range(7):
                e(f"v_accvgpr_read_b32 v{9 + i7}, a{AS2 + 14 + i7}")
        else:
            wq = [wd_e(phi) for phi in range(0, P1)]
            g.vmem(f"buffer_load_dwordx4 {vr(vFL, 4)}, v{vFA + 1}, {SWS}, 0 offen sc1", "wfp")
        def wdl(n=1):
            for _ in range(n):
                if wq:
                    for it in wq.pop(0):
                        g.do(it)
        EG = 128
        for ch in range(2):
            for k in range(11):
                g.lds(f"ds_read_b32 v{EG + 12 * ch + k}, v{GA + 11 * ch + k}", ("eg", ch))
        g.lds(f"ds_read_b64 {vr(YS, 2)}, v{vYS} offset:{YSO}", "ysc")
        if last:
            wdl(2)
        g.wvm("u")
        g.lds(f"ds_write_b128 v{vUW}, {vr(vU, 4)}", "uw")
        g.lds(f"ds_write_b128 v{vUW}, {vr(vU + 4, 4)} offset:512", "uw")
        if last:
            e(f"s_or_b32 {sT1}, s2, {sW}")
            e(f"s_cmp_eq_u32 {sT1}, 0")
            e(f"s_cselect_b32 {sT1}, {EPOCH}, {OOB}")
            flag_store(sT1)
        EO = 64
        for ch in range(2):
            g.wlg(("eg", ch))
            align()
            for s in range(4):
                o = EO + 16 * ch + 4 * s
                for j in range(4):
                    e(f"v_cvt_pk_f16_f32 v{o + j}, v{EG + 12 * ch + s + 2 * j}, v{EG + 12 * ch + s + 2 * j + 1}")
                g.lds(f"ds_write_b128 v{vRW}, {vr(o, 4)} offset:{s * RCS + 1024 * ch}", "rw")
                if last and s % 2 == 1:
                    wdl()
            if last and ch == opt.get("hch", 1):
                e(f"s_waitcnt vmcnt({len(g.vm)})")
                flag_store(sMASK)
        if not last:
            e("s_waitcnt vmcnt(0)")
            flag_store(sMASK)
        if last:
            wdl()
        else:
            for x in check4(vFL):
                e(x)
            e("s_nop 0")
            e("s_cmp_eq_u64 vcc, 0")
            e(f"s_cselect_b32 {sK0}, 0, {OOB}")
        extra = [f"v_accvgpr_read_b32 v{4 + i}, a{AS2 + 9 + i}" for i in range(5)]
        extra += [f"s_lshl_b32 {sT1}, {sCP}, 1", f"s_add_u32 {sT1}, {sT1}, {sC}", f"s_lshl_b32 {sT1}, {sT1}, 12",
                  f"s_lshl_b32 {sT3}, {sRHO}, 11", f"s_add_u32 {sT1}, {sT1}, {sT3}", f"s_add_u32 {sHS0}, {sT1}, {ST}",
                  f"s_lshl_b32 {sT2}, {sCP}, 5", f"s_add_u32 {sT2}, {sT2}, {sW}",
                  f"s_lshl_b32 {sT2}, {sT2}, 2", f"s_add_u32 {sPEND}, {sT2}, {SF}"]
        if last:
            extra += [f"v_accvgpr_read_b32 v{vFA + i}, a{AS2 + 21 + i}" for i in range(2)]
            extra += ["v_min_u32 v3, 53, v0", "v_lshlrev_b32 v3, 7, v3",
                      f"s_lshl_b32 {sT0}, {sDT}, 2", f"s_add_u32 {sT0}, {sT0}, {sW}", f"s_mul_i32 {sT0}, {sT0}, {54 * 128}",
                      f"s_mul_i32 {sHS1}, {sLT}, {4 * 54 * 1024}", f"s_add_u32 {sHS1}, {sHS1}, {sT0}", f"s_add_u32 {sHS1}, {sHS1}, {HB}"]
        g.wlg0()
        e("s_barrier")
        stamp("c_cs" + tag, cyc=True)
        stamp("conv_start" + tag)

        def cls_reads(dl):
            bf = dl & 1
            out = []
            for s in range(8):
                out.append(("lds", f"ds_read_b128 {vr(Greg[bf][s], 4)}, v{vGB} offset:{512 * s + 64 * (3 - dl)}", ("G", dl, s)))
                off = 64 * (59 - dl - 8 * s)
                out.append(("lds", f"ds_read_b64 {vr(FB[bf] + 4 * s, 2)}, v{vFB} offset:{off}", ("F", dl, s)))
                out.append(("lds", f"ds_read_b64 {vr(FB[bf] + 4 * s + 2, 2)}, v{vFB} offset:{off + 8}", ("F", dl, s)))
            return out
        for it in cls_reads(0):
            g.do(it)
        order = sorted([(s, gg) for s in range(8) for gg in range(8) if s + gg < 8], key=lambda x: (max(x), x[0] + x[1]))
        seen = set()
        hq = []
        US, UD = 2, 96
        for dl in range(4):
            bf = dl & 1
            nxt = cls_reads(dl + 1) if dl < 3 else []
            if dl == 3:
                nxt = [("lds", f"ds_read_b64 {vr(128 + 2 * tt, 2)}, v6 offset:{512 * tt}", "us") for tt in range(4)]
                nxt += [None] * 6 + [("wlg", "us")]
                for tt in range(4):
                    for i in range(4):
                        src = 128 + 2 * tt + (i >> 1)
                        nxt.append(f"v_fma_mix_f32 v{136 + 4 * tt + i}, v{src}, v{DK}, 0 op_sel:[{i & 1},0,0] op_sel_hi:[1,0,0]")
            if dl > 0:
                g.wlg(("F", dl, 7))
            for mi, (s, gg) in enumerate(order):
                t = s + gg
                if dl == 0:
                    g.wlg(("G", dl, gg))
                    g.wlg(("F", dl, s))
                Cs = "0" if t not in seen else vr(CACC + 4 * t, 4)
                seen.add(t)
                e(f"v_mfma_f32_16x16x32_f16 {vr(CACC + 4 * t, 4)}, {vr(FB[bf] + 4 * s, 4)}, {vr(Greg[bf][gg], 4)}, {Cs}")
                start = 8 if dl == 0 else 1
                if mi >= start and nxt:
                    it = nxt.pop(0)
                    if it is not None:
                        g.do(it)
                elif extra:
                    g.do(extra.pop(0))
                if mi % 2 == 1 and extra and mi >= start:
                    g.do(extra.pop(0))
                mc = 36 * dl + mi
                if mc % 4 == 2:
                    nphi = wq[0][-1][2][1] if wq else 0
                    if last and mc == opt.get("hfp", 130):
                        assert not extra
                        g.vmem(f"buffer_load_dword v{vFL}, v{vFA}, {SWS}, 0 offen sc1", "hfp")
                    elif wq and not (last and extra and nphi >= 48) and not (nphi >= 64 and dl < 3):
                        wdl()
            assert not nxt, len(nxt)
        while wq and not last:
            wdl()
        assert not wq and not extra, (len(wq), len(extra))
        def hl(n=1):
            for _ in range(n):
                if hq:
                    for it in hq.pop(0):
                        g.do(it)
        stamp("c_ce" + tag, cyc=True)
        stamp("conv_end" + tag)
        lr1 = g.newlab("Lfin1")
        lfd = g.newlab("Lfind")
        e(f"s_cmp_lg_u32 {sRHO}, 0")
        e(f"s_cbranch_scc1 {lr1}")
        lg_save, pst_save, sf_save = list(g.lg), list(g.pst), list(g.sfree)
        for rho in range(2):
            if rho == 1:
                g.lab(lr1)
                g.lg, g.pst, g.sfree = list(lg_save), list(pst_save), list(sf_save)
            own = CACC + 16 * rho
            oth = CACC + 16 * (1 - rho)
            g.nop(6)
            for tt in range(4):
                g.lds(f"ds_write_b128 v4, {vr(oth + 4 * tt, 4)} offset:{PB + 1024 * tt}", "pw")
            align()
            for tt in range(4):
                for i in range(4):
                    e(f"v_fma_f32 v{136 + 4 * tt + i}, v{own + 4 * tt + i}, v{YS}, v{136 + 4 * tt + i}")
            if rho == 0:
                e(f"s_branch {lfd}")
        g.lab(lfd)
        g.wlg0()
        e("s_barrier")
        for tt in range(4):
            g.lds(f"ds_read_b128 {vr(152 + 4 * tt, 4)}, v5 offset:{PB + 1024 * tt}", ("pr", tt))
        if last:
            g.wvm("hfp")
            e(f"v_cmp_ne_u32 vcc, v{vTAG}, v{vFL}")
            e("s_nop 0")
            e("s_cmp_eq_u64 vcc, 0")
            e(f"s_cselect_b32 {sK1}, 1, 0")
            e(f"s_cselect_b32 {sT0}, 0, {OOB}")
            hq.append([f"s_or_b32 {sT4}, {sHS1}, {sT0}", ("vm", f"buffer_load_dword v{vFL + 4}, v3, {SWS}, {sT4} offen sc1", "ht")])
            for i in range(NE):
                pre_ = [f"s_or_b32 {sT4}, s{sG2 + i // 4}, {sT0}"] if i % 4 == 0 else []
                hq.append(pre_ + [("vm", f"buffer_load_dwordx4 {vr(HRING[i], 4)}, v1, {SWS}, {sT4} offen offset:{(i % 4) * 1024} sc1", ("he", i))])
        hl(2)
        for tt in range(4):
            g.wlg(("pr", tt))
            for i in range(4):
                e(f"v_fmac_f32 v{136 + 4 * tt + i}, v{152 + 4 * tt + i}, v{YS}")
            for h in range(2):
                e(f"v_cvt_pk_bf16_f32 v{128 + 2 * tt + h}, v{136 + 4 * tt + 2 * h}, v{136 + 4 * tt + 2 * h + 1}")
            g.lds(f"ds_write_b64 v7, {vr(128 + 2 * tt, 2)} offset:{512 * tt}", "sw")
            hl(1)
        hl(1)
        g.wlg0()
        for j in range(2):
            g.lds(f"ds_read_b128 {vr(88 + 4 * j, 4)}, v8 offset:{1024 * j}", ("sr", j))
        hl(2)
        assert not hq
        if not last:
            e(f"s_add_u32 {sCP}, {sCP}, 40")
            for i in range(22):
                e(f"v_add_u32 v{GA + i}, {2 * TC}, v{GA + i}")
            e(f"v_add_u32 v{vYS}, {2 * TC}, v{vYS}")
        for j in range(2):
            g.wlg(("sr", j))
            g.vmem(f"buffer_store_dwordx4 {vr(88 + 4 * j, 4)}, v1, {SWS}, {sHS0} offen offset:{1024 * j} sc1", "sst")
        if not last:
            for it in u_loads(sCP, 2):
                g.do(it)
            e(f"s_mov_b32 {sMASK}, {sPEND}")
            e(f"s_sub_u32 {sRND}, {sRND}, 1")
            e(f"s_cmp_lg_u32 {sRND}, 1")
            e("s_cbranch_scc1 L_conv_early")

    conv(True)

    e(f"s_cmp_lg_u32 {sK1}, 0")
    e("s_cbranch_scc1 L_hready")
    poll_block(vFA, False)
    e(f"buffer_load_dword v{vFL + 4}, v3, {SWS}, {sHS1} offen sc1")
    for i in range(NE):
        for it in hload(i):
            e(it[1] if isinstance(it, tuple) else it)
    g.lab("L_hready")
    stamp("c_g2s", cyc=True)
    stamp("g2_start")
    g.vm = [("h", i) for i in range(NE)]
    AC = [64, 84]
    lateq = [hload(i) for i in range(NE, NB)]
    fq = ["v_lshrrev_b32 v8, 3, v0", "v_lshlrev_b32 v8, 12, v8", "v_and_b32 v2, 7, v0", "v_lshl_add_u32 v8, v2, 4, v8",
          f"s_mul_i32 {sT1}, {sW}, 15360", f"v_add_u32 v2, {sT1}, v1",
          "v_lshrrev_b32 v3, 2, v0", "v_lshlrev_b32 v3, 7, v3", "v_and_b32 v4, 3, v0", "v_lshl_add_u32 v3, v4, 3, v3",
          f"s_lshl_b32 {sT1}, {sW}, 5", f"s_add_u32 {sT1}, {sT1}, {STB}", f"v_add_u32 v3, {sT1}, v3",
          "v_and_b32 v4, 15, v0", "v_mul_u32_u24 v4, 160, v4", "v_lshrrev_b32 v5, 4, v0", "v_lshl_add_u32 v4, v5, 3, v4",
          f"v_add_u32 v4, {sXT}, v4", f"v_add_u32 v5, {sXT}, v1",
          f"s_lshl_b32 {sT2}, {sW}, 10", f"s_add_u32 {sHS1}, {sT2}, {STB}"]
    SFP = opt.get("sfp", 30)
    BAR = opt.get("bar", 46)
    P0, P1r, P2r, XR, XU, SR, SU = 128, 148, 168, 188, 198, 218, 148
    xq = [f"s_mov_b32 {sMASK}, 0xffff0000", f"s_mov_b32 {sT2}, {hex(f2u(-LOG2E))}"]
    xq += [("lds", f"ds_read_b64 {vr(XR + 2 * j, 2)}, v4 offset:{32 * j}", "x") for j in range(5)] + [None, None, ("wlg", "x")]
    for p in range(10):
        xq += [f"v_lshlrev_b32 v{XU + 2 * p}, 16, v{XR + p}", f"v_and_b32 v{XU + 2 * p + 1}, {sMASK}, v{XR + p}"]
    eq = [("lds", f"ds_read_b128 {vr(P0 + 4 * q, 4)}, v2 offset:{EXB + 1024 * q}", ("exr", q // 5)) for q in range(15)]
    eq += [("lds", f"ds_read_b64_tr_b16 {vr(SR + 2 * j, 2)}, v3 offset:{2048 * j}", "s") for j in range(5)]
    eq += [("wlg", ("exr", 1))] + [f"v_pk_add_f32 {vr(P0 + 2 * p, 2)}, {vr(P0 + 2 * p, 2)}, {vr(P1r + 2 * p, 2)}" for p in range(10)]
    eq += [("wlg", "s")] + [f"v_pk_add_f32 {vr(P0 + 2 * p, 2)}, {vr(P0 + 2 * p, 2)}, {vr(P2r + 2 * p, 2)}" for p in range(10)]
    for p in range(10):
        eq += [f"v_lshlrev_b32 v{SU + 2 * p}, 16, v{SR + p}", f"v_and_b32 v{SU + 2 * p + 1}, {sMASK}, v{SR + p}"]
    for i in range(56):
        k, st = divmod(i, 14)
        A0 = AC[k & 1]
        g.wvm(("h", i))
        r = HRING[i % NB]
        extra = [[] for _ in range(5)]
        if st == 1 and k >= 1:
            pa = AC[(k - 1) & 1]
            for j in range(5):
                extra[j].append(("lds", f"ds_write_b128 v{9 + k - 1}, {vr(pa + 4 * j, 4)} offset:{1024 * j}", "exw"))
        for j in ((i % 4,) if i % 4 else (0, 4)):
            if lateq:
                extra[j] += lateq.pop(0)
        if i == NE:
            def sflag():
                n = sum(1 for t in g.vm if t[0] == "h" and t[1] >= NE)
                e(f"s_waitcnt vmcnt({n})")
                flag_store(sPEND)
            extra[1].append(sflag)
        if 18 <= i < 26:
            for j in (1, 3, 4):
                if fq:
                    extra[j].append(fq.pop(0))
        if i == SFP:
            extra[0].append(("vm", f"buffer_load_dwordx4 {vr(vFL, 4)}, v{vFA + 1}, {SWS}, 0 offen sc1", ("sfp",)))
        if i == SFP + 6:
            c4 = check4(vFL)
            extra[0] += [("wvm", ("sfp",))] + c4[0:2]
            extra[1] += c4[2:4]
            extra[2] += c4[4:6]
            def sfchk():
                sl = g.newlab("Lslow")
                bk = g.newlab("Lback")
                e(c4[6])
                e(f"s_cbranch_vccnz {sl}")
                g.lab(bk)
                g.slow.append((sl, bk, [(vFA + 1, True)]))
            extra[3].append(sfchk)
        if i == SFP + 7:
            extra[0] += [f"s_mov_b32 m0, {sHS1}"]
            extra[1] += [("vm", f"buffer_load_dwordx4 v8, {SWS}, {sSTO} offen sc1 lds", ("stl",)), f"s_add_u32 m0, {sHS1}, 4096"]
            extra[2] += [f"s_add_u32 {sT3}, {sSTO}, {32 * 4096}"]
            extra[3] += [("vm", f"buffer_load_dwordx4 v8, {SWS}, {sT3} offen sc1 lds", ("stl",)), f"s_add_u32 m0, {sHS1}, 8192"]
            extra[4] += [f"s_add_u32 {sT3}, {sSTO}, {64 * 4096}", f"s_cmp_lt_u32 {sW}, 2\ns_cselect_b32 {sT3}, {sT3}, {OOB}"]
        if i == SFP + 8:
            extra[0] += [("vm", f"buffer_load_dwordx4 v8, {SWS}, {sT3} offen sc1 lds", ("stl",))]
        if 41 <= i and xq:
            for j in range(5):
                for _ in range(2 if (st != 1 and j % 2 == 0) else 1):
                    if xq:
                        it = xq.pop(0)
                        if it is not None:
                            extra[j].append(it)
        if i == BAR:
            assert not xq
            g.wvm(("stl",))
            g.wlg0()
            e("s_barrier")
        if i >= BAR:
            for j in range(5):
                for _ in range(2 if j != 4 else 1):
                    if eq:
                        extra[j].append(eq.pop(0))
        for j in range(5):
            phi = st * 5 + j
            src = ar(4 * phi, 4) if phi < 64 else vr(vWDV + 4 * (phi - 64), 4)
            Cs = "0" if st == 0 else vr(A0 + 4 * j, 4)
            e(f"v_mfma_f32_16x16x32_bf16 {vr(A0 + 4 * j, 4)}, {src}, {vr(r, 4)}, {Cs}")
            for it in extra[j]:
                g.do(it)
        if i + NB < 56:
            lateq.append(hload(i + NB))
    assert not lateq and not fq
    stamp("c_g2e", cyc=True)
    stamp("g2_loop_end")
    for it in eq:
        g.do(it)
    A0 = AC[1]
    E_ = 168
    e(f"s_mov_b32 {sT3}, {sT2}")
    g.nop(6)
    align()
    for p in range(10):
        e(f"v_pk_add_f32 {vr(A0 + 2 * p, 2)}, {vr(A0 + 2 * p, 2)}, {vr(P0 + 2 * p, 2)}")
    for p in range(10):
        e(f"v_pk_mul_f32 {vr(E_ + 2 * p, 2)}, {vr(A0 + 2 * p, 2)}, s[56:57]")
    for p in range(20):
        e(f"v_exp_f32 v{E_ + p}, v{E_ + p}")
    for p in range(10):
        e(f"v_pk_mul_f32 {vr(A0 + 2 * p, 2)}, {vr(A0 + 2 * p, 2)}, {vr(SU + 2 * p, 2)}")
    for p in range(10):
        e(f"v_pk_add_f32 {vr(E_ + 2 * p, 2)}, {vr(E_ + 2 * p, 2)}, 1.0 op_sel_hi:[1,0]")
    for p in range(20):
        e(f"v_rcp_f32 v{E_ + p}, v{E_ + p}")
    e("s_nop 0\ns_nop 0")
    for p in range(10):
        e(f"v_pk_fma_f32 {vr(A0 + 2 * p, 2)}, {vr(A0 + 2 * p, 2)}, {vr(E_ + 2 * p, 2)}, {vr(XU + 2 * p, 2)}")
    for p in range(10):
        e(f"v_cvt_pk_bf16_f32 v{188 + p}, v{A0 + 2 * p}, v{A0 + 2 * p + 1}")
        if p % 2 == 1:
            g.lds(f"ds_write_b64 v4, {vr(188 + p - 1, 2)} offset:{16 * (p - 1)}", "ow")
    g.wlg0()
    for kk in range(3):
        g.lds(f"ds_read_b128 {vr(128 + 4 * kk, 4)}, v5 offset:{1024 * kk}", ("or", kk))
    osc = opt.get("outsc", "")
    for kk in range(3):
        g.wlg(("or", kk))
        g.vmem(f"buffer_store_dwordx4 {vr(128 + 4 * kk, 4)}, v{(12, 13, 15)[kk]}, {SOUT}, {sXO} offen{osc}", "out")
    if diag:
        g.wvm0()
        stamp("end", flush=True)
        if opt.get("dbg"):
            e("s_load_dwordx2 s[88:89], s[100:101], 96")
            e("v_readlane_b32 s92, v127, 60")
            e("s_mov_b32 s90, 64\ns_mov_b32 s91, 0x20000")
            e("v_writelane_b32 v127, s92, 1")
            e("s_not_b32 s92, s92")
            e("v_writelane_b32 v127, s92, 0")
            e("v_lshlrev_b32 v2, 2, v0")
            e("s_waitcnt lgkmcnt(0)")
            e("buffer_atomic_umax v127, v2, s[88:91], 0 offen")
            e("s_endpgm")
        e(f"s_mov_b32 s88, s16\ns_mov_b32 s89, s17\ns_mov_b32 s90, 0x1000000\ns_mov_b32 s91, 0x20000")
        e(f"s_lshl_b32 {sT1}, s2, 2\ns_add_u32 {sT1}, {sT1}, {sW}\ns_lshl_b32 {sT1}, {sT1}, 8\ns_add_u32 {sT1}, {sT1}, {TS_BASE}")
        e("v_lshlrev_b32 v2, 2, v0")
        e(f"buffer_store_dword v127, v2, s[88:91], {sT1} offen")
    g.lab("L_end")
    e("s_endpgm")
    e(".p2align 6")
    g.lab("L_spare")
    g.vm = vm0
    g.lg = []
    g.pst = []
    g.sfree = [92] if opt.get('dbg') else [92, 100]
    if diag:
        e("v_mov_b32 v127, 0")
        e("v_writelane_b32 v127, s92, 60")
    for q in range(5):
        g.vmem(f"buffer_load_dwordx2 {vr(LX + 2 * q, 2)}, v2, {SX}, {sT0} offen offset:{256 * q}", "ln")
    e("s_add_u32 s66, s88, L_spare - L_pc + 256")
    e("s_addc_u32 s67, s89, 0")
    e("s_mov_b32 s68, s66\ns_mov_b32 s69, s67\ns_mov_b32 s70, 0x2000\ns_mov_b32 s71, 0x20000")
    e("v_and_b32 v10, 15, v0")
    e(f"s_lshl_b32 {sT1}, {sW}, 11")
    e("v_lshlrev_b32 v10, 7, v10")
    g.vmem(f"buffer_load_dword v{vFL + 4}, v10, s[68:71], {sT1} offen", "cpf")
    rest_setup()
    rest_loads()
    for r3 in range(3):
        run_items(param_units(r3))
    table_code(TB)
    aE, aL2 = addr_items(XYB_SP, TB)
    run_items(aE + aL2 + gather_items(TB))
    g.wvm("ln")
    stamp("ln_data")
    ln_code()
    ln_tail()
    stamp("ln_done", flush=True)
    e(f"s_lshl_b32 {sMASK}, s2, 2")
    e(f"s_add_u32 {sMASK}, {sMASK}, {LNF}")
    e(f"s_cmp_eq_u32 {sW}, 0")
    e(f"s_cselect_b32 {sMASK}, {sMASK}, {OOB}")
    e(f"v_add_u32 v{vFA}, {LNF}, v1")
    e("v_min_u32 v2, 53, v0")
    e(f"s_lshr_b32 {sF0}, {sDT}, 1")
    e(f"s_lshl_b32 {sF0}, {sF0}, 10")
    e(f"s_add_u32 {sF0}, {sF0}, {WF}")
    e(f"v_lshl_add_u32 v{vFA + 1}, v2, 4, {sF0}")
    e(f"s_mov_b32 {sK1}, {sRND}")
    rb1()
    g.wvm("par")
    tag_code()
    g.lab("L_kgen")
    g.vm = []
    kgen("s", [], 1)
    g.wall()
    e("s_barrier")
    flag_store(sMASK)
    e(f"s_mov_b32 {sMASK}, {OOB}")
    kgen_mfma()
    e(f"s_sub_u32 {sK1}, {sK1}, 1")
    e(f"s_cmp_eq_u32 {sK1}, 0")
    e("s_cbranch_scc1 L_kdone")
    e(f"s_add_u32 {sKR}, {sKR}, {2 * TC}")
    for i in range(8):
        e(f"v_add_u32 v{SC + i}, {2 * TC}, v{SC + i}")
    for i in range(6):
        e(f"v_accvgpr_mov_b32 a{APAR + i}, a{APAR + 8 + i}")
        e(f"v_accvgpr_mov_b32 a{APAR + 8 + i}, a{APAR + 16 + i}")
    e("s_waitcnt lgkmcnt(0)")
    e("s_barrier")
    e("s_branch L_kgen")
    g.lab("L_kdone")
    stamp("kdone", flush=True)
    e(f"s_cmp_lg_u32 {sW}, 0")
    e("s_cbranch_scc1 L_sp_polled")
    poll_block(vFA, True, sleep=16)
    g.lab("L_sp_polled")
    e("s_waitcnt lgkmcnt(0)")
    e("s_barrier")
    stamp("sp_lnf", flush=True)
    run_items(u_loads(sCP, 2))
    rb2()
    conv(False)
    e(f"s_cmp_eq_u32 {sK0}, 0")
    e("s_cbranch_scc1 L_conv_last")
    poll_block(vFA + 1, True, sleep=24)
    for phi in range(P1):
        for it in wd_load(phi):
            e(it[1] if isinstance(it, tuple) else it)
    e("s_branch L_conv_last")
    for (sl, bk, lst) in g.slow:
        g.lab(sl)
        g.sfree = [88, 90]
        g.pst = []
        if diag:
            e("s_waitcnt lgkmcnt(0)")
        for pi, (av, n4) in enumerate(lst):
            stamp(f"slow{sl[-2:]}_{pi}", flush=True)
            poll_block(av, n4, sleep=opt.get("ssleep", 20))
        stamp(f"slow{sl[-2:]}_x", flush=True)
        e(f"s_branch {bk}")
    g.lab("L_codeend")

    hdr = [f"; @launch grid=(256,1,1) block=(256,1,1) lds={LDS_TOTAL}",
           '.amdgcn_target "amdgcn-amd-amdhsa--gfx950"', ".text", f".globl {KNAME}", ".p2align 8",
           f".type {KNAME},@function", f"{KNAME}:"]
    ftr = ['.section .rodata,"a"', ".p2align 6", f".amdhsa_kernel {KNAME}",
           "  .amdhsa_next_free_vgpr 512", "  .amdhsa_next_free_sgpr 102", "  .amdhsa_accum_offset 256",
           "  .amdhsa_group_segment_fixed_size 0", "  .amdhsa_kernarg_size 112", "  .amdhsa_user_sgpr_count 2",
           "  .amdhsa_user_sgpr_kernarg_segment_ptr 1", "  .amdhsa_system_sgpr_workgroup_id_x 1",
           "  .amdhsa_float_denorm_mode_32 3",
           ".end_amdhsa_kernel"]
    txt = "\n".join(hdr + g.L + ftr) + "\n"
    if diag:
        txt = txt + "; STAMPS " + ",".join(ts_names) + "\n"
    return txt


if __name__ == "__main__":
    diag = "--diag" in sys.argv
    opt = {}
    for a in sys.argv[1:]:
        if a.startswith("--") and "=" in a:
            k, v = a[2:].split("=")
            opt[k] = int(v) if v.lstrip("-").isdigit() else v.replace("_", " ")
    out = [a for a in sys.argv[1:] if not a.startswith("--")]
    s = gen(diag=diag, opt=opt)
    path = out[0] if out else "recurrent_scan__ssm_conv_s4d__geglu_ffn__prompt.s"
    open(path, "w").write(s)
    print("wrote", path, len(s), "bytes", s.count("\n"), "lines")
```

```python
import sys, struct, math

KNAME = "recurrent_scan__ssm_conv_s4d__geglu_ffn__prompt_kernel"

EPOCH = 0x0
LNF = 0x1000
WF = 0x4400
STATS = 0x8000
XNT = 0x10000
ST = 0x290000
WDP = 0x510000
HB = 0x730000
CSP = 0xDF0000
HF = 0xE26000
SF = 0xE46000
WS_END = 0xE50000
TS_BASE = 0xE60000

SLOT = 49152
MISC = 147456
LNP = 1344
CSB = MISC + 10752 + 5120
XYP = 544
YR0 = 21
XYC = 53 * XYP
XYB_SP, XYB_G1 = 0, 2 * SLOT
LNB = 2 * SLOT
TB_G1 = 157696
PB = 0
UBASE = 69632
UC = 4608
RB = UBASE + 2 * UC
RCS = 4160
RC = 4 * RCS
TC = 2624
TB = MISC
YSO = 650 * 4
SOB = 16384
EXB = 24576
XTB = 112128
STB = XTB + 12288
LDS_TOTAL = 163840
OOB = 0x7fff0000

def f2u(x):
    return struct.unpack("<I", struct.pack("<f", x))[0]

LOG2E = 1.4426950408889634
C0 = -2.0 * math.sqrt(2.0 / math.pi) * LOG2E
C1 = C0 * 0.044715


class G:
    def __init__(self):
        self.L = []
        self.vm = []
        self.lg = []
        self.nlab = 0
        self.slow = []
        self.skip = set()
        self.pst = []
        self.sfree = [92, 100]

    def flush_stamps(self):
        for (sr, lane) in self.pst:
            self.e(f"v_writelane_b32 v127, s{sr}, {lane}")
            self.sfree.append(sr)
        self.pst = []

    def e(self, s):
        for ln in s.split("\n"):
            self.L.append("    " + ln)

    def lab(self, name):
        self.L.append(name + ":")

    def newlab(self, p="L"):
        self.nlab += 1
        return f"{p}_{self.nlab}"

    def vmem(self, s, tag=None):
        if tag in self.skip:
            return
        self.e(s)
        self.vm.append(tag)

    def lds(self, s, tag=None):
        self.e(s)
        self.lg.append(tag)

    def _n(self, q, tag):
        idx = max(i for i, t in enumerate(q) if t == tag)
        return idx, sum(1 for t in q[idx + 1:] if t != "OPT")

    def wvm(self, tag):
        if tag not in self.vm:
            return
        idx, n = self._n(self.vm, tag)
        self.e(f"s_waitcnt vmcnt({min(n, 63)})")
        self.vm = self.vm[idx + 1:]

    def wlg(self, tag):
        if tag not in self.lg:
            return
        idx, n = self._n(self.lg, tag)
        self.e(f"s_waitcnt lgkmcnt({min(n, 15)})")
        self.lg = self.lg[idx + 1:]

    def wvm0(self):
        self.e("s_waitcnt vmcnt(0)")
        self.vm = []

    def wlg0(self):
        self.e("s_waitcnt lgkmcnt(0)")
        self.lg = []
        self.flush_stamps()

    def wall(self):
        self.e("s_waitcnt vmcnt(0) lgkmcnt(0)")
        self.vm = []
        self.lg = []
        self.flush_stamps()

    def nop(self, n):
        while n > 0:
            k = min(n, 16)
            self.e(f"s_nop {k - 1}")
            n -= k

    def do(self, item):
        if callable(item):
            item()
        elif isinstance(item, tuple):
            kind = item[0]
            if kind == "vm":
                self.vmem(item[1], item[2])
            elif kind == "lds":
                self.lds(item[1], item[2])
            elif kind == "wvm":
                self.wvm(item[1])
            elif kind == "wlg":
                self.wlg(item[1])
            else:
                raise ValueError(kind)
        else:
            self.e(item)


def vr(a, n):
    return f"v[{a}:{a + n - 1}]"


def ar(a, n):
    return f"a[{a}:{a + n - 1}]"


SX, SWG, SWU, SWS, SOUT, SWD = "s[4:7]", "s[8:11]", "s[12:15]", "s[16:19]", "s[20:23]", "s[24:27]"
P_LAR, P_AIM, P_CRE, P_CIM, P_LDT, P_DSK = "s[28:29]", "s[30:31]", "s[32:33]", "s[34:35]", "s[36:37]", "s[38:39]"
sW, sTAG, sM, sFT, sISG1, sCP, sRND, sSP = "s40", "s41", "s42", "s43", "s44", "s45", "s46", "s47"
sXCD, sQ = "s48", "s49"
sXM0, sWM0, sXS, sWSO = "s50", "s51", "s52", "s53"
sT0, sT1, sT2, sT3, sT4, sT5 = "s54", "s55", "s56", "s57", "s58", "s59"
sMASK, sCNT = "s60", "s61"
sRHO, sC = "s62", "s63"
sHS0, sHS1 = "s64", "s65"
sG2 = 66
STW = "s[96:99]"
sF0, sF1, sF2 = "s0", "s1", "s3"
sLT, sDT = "s82", "s83"
sWDS = "s84"
sPEND, sXO = "s85", "s86"
sKR = "s87"
sXT, sSTO = "s94", "s95"
sK0, sK1 = "s96", "s97"

vT = 2
vXO = 16
vWO = 24
vBA = 26
vAA = 34
vCS = 42
vHO = 44
vTO = 46
vSTA = 48
vU = 56
vAF = 64
vBF = 96
vPAR = 112
vFA = 118
vEP = 120
vFL = 122
vACC = 128
SC = 224
GA = 24
AST = 224
AS2 = 192
PKB = MISC
vWDV = 232


def gen(diag=False, opt=None):
    opt = opt or {}
    TOUCH = opt.get("touch", 0)
    P1 = opt.get("p1", 32)
    KCHK = opt.get("kchk", 29)
    g = G()
    e = g.e
    if opt.get('nolnst'):
        g.skip.add('lnst')
    ts_names = []
    vTAG, vL0 = vEP, vEP + 1

    def stamp(name, cyc=False, flush=False):
        if not diag:
            return
        if opt.get("dbg"):
            sel = ["x0", "x1", "par_data", "kdone", "g1_start", "g1_loop_end", "g1_epi_end", "conv_startL", "conv_endL", "g2_start", "g2_loop_end", "end", "sp_lnf", "conv_startE"]
            if name not in sel:
                return
            ts_names[:] = sel
        if name not in ts_names:
            ts_names.append(name)
        i = ts_names.index(name)
        if not g.sfree:
            g.wlg0()
        sr = g.sfree.pop(0)
        e(f"{'s_memtime' if cyc else 's_memrealtime'} s[{sr}:{sr + 1}]")
        g.pst.append((sr, i))
        if flush:
            g.wlg0()

    def interleave(fn, units, every):
        n0 = len(g.L)
        fn()
        body = g.L[n0:]
        del g.L[n0:]
        cnt = 0
        for bi, ln in enumerate(body):
            g.L.append(ln)
            cnt += 1
            nxt_ = body[bi + 1].strip() if bi + 1 < len(body) else ""
            if nxt_.startswith(("s_cselect", "s_addc", "s_cbranch")):
                continue
            if units and cnt >= every:
                u = units[0]
                if isinstance(u, tuple) and u[0] == "m0":
                    e(u[1])
                    units.pop(0)
                    cnt = every - 1
                else:
                    g.do(u)
                    units.pop(0)
                    cnt = 0 if isinstance(u, tuple) else every - 1

    def align():
        e(".p2align 3")

    def red(op, v, t, full):
        for dpp in ("quad_perm:[1,0,3,2]", "quad_perm:[2,3,0,1]", "row_half_mirror", "row_mirror"):
            g.nop(2)
            e(f"{op} v{v}, v{v}, v{v} {dpp}")
        e(f"v_mov_b32 v{t}, v{v}")
        g.nop(2)
        e(f"v_permlane16_swap_b32 v{v}, v{t}")
        g.nop(1)
        e(f"{op} v{v}, v{v}, v{t}")
        if full:
            e(f"v_mov_b32 v{t}, v{v}")
            g.nop(2)
            e(f"v_permlane32_swap_b32 v{v}, v{t}")
            g.nop(1)
            e(f"{op} v{v}, v{v}, v{t}")

    def bf16round(v):
        e(f"v_cvt_pk_bf16_f32 v{v}, v{v}, v{v}")
        e(f"v_lshlrev_b32 v{v}, 16, v{v}")

    def check4(tmp):
        return [f"v_xor_b32 v{tmp}, v{vTAG}, v{tmp}", f"v_xor_b32 v{tmp + 1}, v{vTAG}, v{tmp + 1}",
                f"v_xor_b32 v{tmp + 2}, v{vTAG}, v{tmp + 2}", f"v_xor_b32 v{tmp + 3}, v{vTAG}, v{tmp + 3}",
                f"v_or3_b32 v{tmp}, v{tmp}, v{tmp + 1}, v{tmp + 2}", f"v_or_b32 v{tmp}, v{tmp}, v{tmp + 3}",
                f"v_cmp_ne_u32 vcc, 0, v{tmp}"]

    def poll_block(addr_v, n4, sleep=opt.get('sleep', 8)):
        lp = g.newlab("Lpoll")
        dn = g.newlab("Lpd")
        tmp = vFL
        e(f"s_mov_b32 {sCNT}, 0x4000")
        g.lab(lp)
        if n4:
            e(f"buffer_load_dwordx4 {vr(tmp, 4)}, v{addr_v}, {SWS}, 0 offen sc1")
            e("s_waitcnt vmcnt(0)")
            for x in check4(tmp):
                e(x)
        else:
            e(f"buffer_load_dword v{tmp}, v{addr_v}, {SWS}, 0 offen sc1")
            e("s_waitcnt vmcnt(0)")
            e(f"v_cmp_ne_u32 vcc, v{vTAG}, v{tmp}")
        e(f"s_cbranch_vccz {dn}")
        e(f"s_sleep {sleep}")
        e(f"s_sub_u32 {sCNT}, {sCNT}, 1")
        e(f"s_cbranch_scc0 {lp}")
        g.lab(dn)

    def flag_store(soff):
        e(f"buffer_store_dword v{vTAG}, v{vL0}, {SWS}, {soff} offen sc1")

    def wd_load(phi):
        dst = ar(4 * phi, 4) if phi < 64 else vr(vWDV + 4 * (phi - 64), 4)
        pre = []
        if phi >= 65:
            if phi == 65 or phi == 68:
                pre.append(f"s_add_u32 {sT5}, {sWDS}, {(phi // 4) * 4096}")
                pre.append(f"s_cmp_lt_u32 {sW}, 2\ns_cselect_b32 {sT5}, {sT5}, {OOB}")
        elif phi % 4 == 0:
            pre.append(f"s_add_u32 {sT5}, {sWDS}, {(phi // 4) * 4096}")
        return pre + [("vm", f"buffer_load_dwordx4 {dst}, v1, {SWS}, {sT5} offen offset:{(phi % 4) * 1024} sc1", ("wd", phi))]

    def u_loads(cpreg, va):
        return [f"v_accvgpr_read_b32 v{va}, a{AS2 + 23}",
                f"s_mul_i32 {sF0}, {sW}, {64 * 10240}",
                f"s_lshl_b32 {sF1}, {cpreg}, 5",
                f"s_add_u32 {sF0}, {sF0}, {sF1}",
                f"s_add_u32 {sF0}, {sF0}, {XNT}",
                f"s_add_u32 {sF1}, {sF0}, {32 * 10240}",
                ("vm", f"buffer_load_dwordx4 {vr(vU, 4)}, v{va}, {SWS}, {sF0} offen sc1", "u"),
                ("vm", f"buffer_load_dwordx4 {vr(vU + 4, 4)}, v{va}, {SWS}, {sF1} offen sc1", "u")]

    def table_code(TB):
        def put(i, src):
            e(f"v_lshl_add_u32 v{src}, v{src}, 2, {sF2}")
            e(f"v_accvgpr_write_b32 a{AST + i}, v{src}")
        e(f"s_mul_i32 {sF2}, {sC}, {TC}")
        e(f"s_add_u32 {sF2}, {sF2}, {TB + 4}")
        e("v_lshrrev_b32 v4, 4, v0")
        e(f"s_lshl_b32 {sF1}, {sRHO}, 2")
        e(f"v_add_u32 v4, {sF1}, v4")
        e("v_and_b32 v5, 15, v0")
        DUM = 645
        e("v_cmp_eq_u32 s[54:55], 2, v4")
        e("v_cmp_eq_u32 s[56:57], 3, v4")
        e("v_cmp_eq_u32 s[58:59], 4, v4")
        e("v_cmp_lt_u32 vcc, 4, v4")
        e("v_mov_b32 v6, 8")
        e("v_cndmask_b32 v6, v6, 4, s[54:55]")
        e("v_cndmask_b32 v6, v6, 2, s[56:57]")
        e("v_cndmask_b32 v6, v6, 1, s[58:59]")
        e("v_cndmask_b32 v6, v6, 0, vcc")
        e("v_mul_u32_u24 v7, v6, v5")
        e("v_lshlrev_b32 v8, 4, v6")
        for i in range(4):
            e(f"v_lshl_add_u32 v9, v4, 2, {i}")
            for sreg, val in (("s[54:55]", 256 + i), ("s[56:57]", 384 + 64 * (i >> 1) + (i & 1)), ("s[58:59]", 512 + 32 * i), ("vcc", DUM)):
                e(f"v_mov_b32 v10, {val}")
                e(f"v_cndmask_b32 v9, v9, v10, {sreg}")
            e("v_add_u32 v9, v9, v7")
            e("v_add_u32 v11, v9, v8")
            if i == 0:
                e("v_lshl_add_u32 v6, v4, 4, v5")
                e("v_mov_b32 v10, 80")
                e("v_cmp_eq_u32 s[60:61], v10, v6")
                e("v_mov_b32 v10, 640")
                e("s_nop 0")
                e("v_cndmask_b32 v9, v9, v10, s[60:61]")
            put(i, 9)
            put(4 + i, 11)

    def gather_items(TB):
        it = [f"s_mul_i32 {sF2}, {sC}, {TC}", f"s_add_u32 {sF2}, {sF2}, {TB + 4}",
              f"s_lshl_b32 {sF1}, {sRHO}, 10", f"s_sub_u32 {sF1}, 2047, {sF1}", "v_lshlrev_b32 v12, 3, v0",
              f"v_sub_u32 v12, {sF1}, v12", f"s_movk_i32 {sF1}, 128"]
        for ch in range(2):
            for k in range(11):
                it += [f"v_subrev_u32 v2, {512 * ch + k}, v12", "v_max_i32 v3, 0, v2", "v_cvt_f32_u32 v3, v3",
                       f"v_med3_i32 v2, v2, -1, {sF1}", "v_cvt_pk_bf16_f32 v3, v3, 0", "v_subrev_u32 v3, 0x4280, v3",
                       "v_max_i32 v2, v2, v3", f"v_lshl_add_u32 v2, v2, 2, {sF2}",
                       f"v_accvgpr_write_b32 a{AST + 8 + 11 * ch + k}, v2"]
        return it

    def addr_items(XYB, TB):
        it = []
        A = it.append
        def st(i, r):
            A(f"v_accvgpr_write_b32 a{AS2 + i}, v{r}")
        A(f"s_mul_i32 {sF0}, {sC}, {XYC}")
        A(f"s_add_u32 {sF0}, {sF0}, {XYB}")
        A(f"v_lshl_add_u32 v2, v0, 3, {sF0}")
        st(0, 2)
        A("v_and_b32 v12, 15, v0")
        A("v_lshrrev_b32 v13, 4, v0")
        A(f"v_mul_u32_u24 v2, {XYP}, v12")
        A("v_lshl_add_u32 v2, v13, 4, v2")
        A(f"v_add_u32 v3, {sF0}, v2")
        st(2, 3)
        A(f"s_mul_i32 {sF1}, {sRHO}, {16 * XYP}")
        A(f"v_add_u32 v3, {sF1}, v3")
        st(1, 3)
        A(f"s_mul_i32 {sF2}, {sC}, {TC}")
        A(f"s_add_u32 {sF2}, {sF2}, {TB}")
        A(f"v_mov_b32 v2, {sF2}")
        st(6, 2)
        A("EARLY_END")
        A("v_and_b32 v12, 15, v0")
        A("v_lshrrev_b32 v13, 4, v0")
        A(f"s_mul_i32 {sF0}, {sC}, {UC}")
        A(f"s_lshl_b32 {sF1}, {sRHO}, 8")
        A(f"s_add_u32 {sF2}, {sF0}, {sF1}")
        A(f"s_add_u32 {sF2}, {sF2}, {UBASE}")
        A(f"v_add_u32 v2, {sF2}, v1")
        A(f"s_sub_u32 {sF2}, {sF0}, {sF1}")
        A(f"s_add_u32 {sF2}, {sF2}, {UBASE + 32 + 256}")
        A("v_lshlrev_b32 v14, 5, v12")
        A("v_lshl_add_u32 v3, v13, 4, v14")
        A(f"v_add_u32 v3, {sF2}, v3")
        st(8, 3)
        A("v_lshl_add_u32 v14, v13, 3, v14")
        A(f"s_lshl_b32 {sF2}, {sRHO}, 11")
        A(f"s_add_u32 {sF2}, {sF2}, {sF0}")
        A(f"s_add_u32 {sF2}, {sF2}, {UBASE + 512}")
        A(f"v_add_u32 v3, {sF2}, v14")
        st(11, 3)
        A(f"s_lshl_b32 {sF2}, {sW}, 11")
        A(f"s_add_u32 {sF2}, {sF2}, {SOB}")
        A(f"v_add_u32 v3, {sF2}, v14")
        st(12, 3)
        A(f"v_add_u32 v3, {sF2}, v1")
        st(13, 3)
        A(f"s_mul_i32 {sF0}, {sC}, {RC}")
        A(f"s_mul_i32 {sF2}, {sRHO}, {2 * RCS}")
        A(f"s_add_u32 {sF2}, {sF2}, {sF0}")
        A(f"s_add_u32 {sF2}, {sF2}, {RB + 4096}")
        A("v_bfe_u32 v3, v0, 1, 1")
        A(f"v_mul_u32_u24 v3, {RCS}, v3")
        A("v_and_b32 v15, 1, v0")
        A("v_lshl_add_u32 v3, v15, 4, v3")
        A(f"v_add_u32 v3, {sF2}, v3")
        A("v_cmp_lt_u32 vcc, 15, v0\ns_nop 1\nv_cndmask_b32 v2, v2, v3, vcc")
        st(3, 2)
        A(f"s_lshl_b32 {sF2}, {sRHO}, 11")
        A(f"s_add_u32 {sF2}, {sF2}, {sF0}")
        A(f"s_add_u32 {sF2}, {sF2}, {RB}")
        A(f"v_add_u32 v2, {sF2}, v1")
        st(4, 2)
        A("v_sub_u32 v2, 3, v12")
        A("v_and_b32 v2, 3, v2")
        A(f"v_mul_u32_u24 v2, {RCS}, v2")
        A("v_lshl_add_u32 v2, v13, 4, v2")
        A("v_and_b32 v3, 12, v12")
        A("v_lshlrev_b32 v3, 1, v3")
        A("v_sub_u32 v2, v2, v3")
        A(f"s_sub_u32 {sF2}, {sF0}, {sF1}")
        A(f"s_add_u32 {sF2}, {sF2}, {RB + 24 + 256}")
        A(f"v_add_u32 v2, {sF2}, v2")
        st(7, 2)
        A(f"v_mul_u32_u24 v2, {UC}, v15")
        A("v_lshrrev_b32 v3, 1, v0")
        A("v_lshl_add_u32 v2, v3, 4, v2")
        A(f"s_lshl_b32 {sF2}, {sW}, 10")
        A(f"s_add_u32 {sF2}, {sF2}, {UBASE + 512}")
        A(f"v_add_u32 v2, {sF2}, v2")
        st(5, 2)
        A("v_mul_u32_u24 v3, 10240, v3")
        A("v_lshl_add_u32 v3, v15, 4, v3")
        st(23, 3)
        A(f"s_lshl_b32 {sF2}, {sW}, 12")
        A(f"v_add_u32 v2, {sF2}, v1")
        st(9, 2)
        A("v_xor_b32 v2, 0x1000, v2")
        st(10, 2)
        A(f"s_mul_i32 {sF0}, {sW}, 14")
        A(f"s_cmp_eq_u32 {sW}, 3\ns_cselect_b32 {sF1}, 1, 0")
        A(f"s_sub_u32 {sF0}, {sF0}, {sF1}")
        A(f"s_mul_i32 {sF1}, {sDT}, 54")
        A(f"s_add_u32 {sF1}, {sF0}, {sF1}")
        A(f"s_mul_i32 {sF1}, {sF1}, 5120")
        A(f"s_add_u32 {sWDS}, {sF1}, {WDP}")
        for k in range(4):
            A(f"s_add_u32 {sF1}, {sW}, {k + 1}")
            A(f"s_and_b32 {sF1}, {sF1}, 3")
            if k < 3:
                A(f"s_mul_i32 {sF2}, {sF1}, 15360")
                A(f"s_add_u32 {sF2}, {sF2}, {EXB + 5120 * k}")
                A(f"v_add_u32 v2, {sF2}, v1")
                st(14 + k, 2)
            A(f"s_lshl_b32 {sF2}, {sLT}, 2")
            A(f"s_add_u32 {sF1}, {sF1}, {sF2}")
            A(f"s_mul_i32 {sF1}, {sF1}, 54")
            A(f"s_add_u32 {sF1}, {sF1}, {sF0}")
            A(f"s_lshl_b32 {sF1}, {sF1}, 10")
            A(f"s_add_u32 s{sG2 + 4 * k}, {sF1}, {HB}")
            for q in range(1, 4):
                A(f"s_add_u32 s{sG2 + 4 * k + q}, s{sG2 + 4 * k}, {4096 * q}")
        A(f"s_mov_b32 {sF0}, {0x100000000 // 10 + 1}")
        for kk in range(3):
            A(f"v_add_u32 v2, {64 * kk}, v0")
            A(f"v_mul_hi_u32 v3, v2, {sF0}")
            A("v_mul_u32_u24 v12, 10, v3")
            A("v_sub_u32 v12, v2, v12")
            A("v_mul_u32_u24 v3, 1280, v3")
            A("v_lshl_add_u32 v2, v12, 4, v3")
            st(17 + kk, 2)
        A(f"v_mov_b32 v3, {OOB}")
        A("v_cmp_lt_u32 vcc, 31, v0\ns_nop 1\nv_cndmask_b32 v2, v2, v3, vcc")
        st(20, 2)
        A(f"s_lshl_b32 {sXO}, {sLT}, 2")
        A(f"s_add_u32 {sXO}, {sXO}, {sW}")
        A(f"s_mul_i32 {sXO}, {sXO}, {16 * 1280}")
        A(f"s_mul_i32 {sF0}, {sDT}, 160")
        A(f"s_add_u32 {sXO}, {sXO}, {sF0}")
        A(f"s_mul_i32 {sXT}, {sW}, 3072")
        A(f"s_add_u32 {sXT}, {sXT}, {XTB}")
        A(f"s_mul_i32 {sSTO}, {sDT}, 80")
        A(f"s_lshl_b32 {sF0}, {sW}, 3")
        A(f"s_add_u32 {sSTO}, {sSTO}, {sF0}")
        A(f"s_lshl_b32 {sSTO}, {sSTO}, 12")
        A(f"s_lshl_b32 {sF0}, {sLT}, 7")
        A(f"s_add_u32 {sSTO}, {sSTO}, {sF0}")
        A(f"s_add_u32 {sSTO}, {sSTO}, {ST}")
        A(f"s_lshl_b32 {sF0}, {sLT}, 12")
        A(f"s_add_u32 {sF0}, {sF0}, {HF}")
        A("v_min_u32 v2, 26, v0")
        A(f"v_lshl_add_u32 v2, v2, 7, {sF0}")
        st(21, 2)
        A(f"s_mul_i32 {sF0}, {sDT}, {40 * 128}")
        A(f"s_add_u32 {sF0}, {sF0}, {SF}")
        A("v_min_u32 v2, 39, v0")
        A(f"v_lshl_add_u32 v2, v2, 7, {sF0}")
        st(22, 2)
        k_ = it.index("EARLY_END")
        return it[:k_], it[k_ + 1:]

    e("s_cmp_ge_u32 s2, 256")
    e("s_cbranch_scc1 L_end")
    if diag:
        e("s_memrealtime s[92:93]")
    if opt.get("dbg"):
        e("s_mov_b64 s[100:101], s[0:1]")
        g.sfree = [92]
    e("s_getpc_b64 s[88:89]")
    g.lab("L_pc")
    e("s_load_dwordx2 s[4:5], s[0:1], 0")
    e("s_load_dwordx2 s[16:17], s[0:1], 104")
    e("s_load_dwordx2 s[8:9], s[0:1], 64")
    e("s_load_dwordx2 s[12:13], s[0:1], 72")
    e("s_load_dwordx4 s[28:31], s[0:1], 8")
    e("s_load_dwordx4 s[32:35], s[0:1], 24")
    e("s_load_dwordx4 s[36:39], s[0:1], 40")
    NSP = opt.get("nsp", 0)
    for i in range(NSP):
        e(f"s_load_dword s{66 + i}, s[88:89], {256 + 128 * i}")
    e("v_lshrrev_b32 v2, 6, v0")
    e("v_and_b32 v3, 15, v0")
    e("s_mov_b32 s90, L_codeend - L_pc")
    e("s_mov_b32 s91, 0x20000")
    e("v_lshl_add_u32 v3, v2, 4, v3")
    e(f"v_readfirstlane_b32 {sW}, v2")
    e("v_lshlrev_b32 v3, 7, v3")
    if opt.get("cpf0", 1):
        e(f"buffer_load_dword v{vFL + 3}, v3, s[88:91], 0 offen offset:{min(256 + 128 * NSP, 4000)}")
        g.vm.append("cpf")
    e("v_and_b32 v0, 63, v0")
    e("s_mov_b32 s6, 2621440\ns_mov_b32 s7, 0x20000")
    e("v_lshrrev_b32 v2, 5, v0")
    e("v_and_b32 v3, 31, v0")
    e("v_mul_u32_u24 v2, 1280, v2")
    e(f"s_lshl_b32 {sT0}, s2, 2")
    e(f"s_add_u32 {sT0}, {sT0}, {sW}")
    e("v_lshl_add_u32 v2, v3, 3, v2")
    e(f"s_mul_i32 {sT0}, {sT0}, 2560")
    e(f"s_and_b32 {sXCD}, s2, 7")
    e(f"s_lshr_b32 {sQ}, s2, 3")
    e(f"s_and_b32 {sM}, s2, 1")
    e(f"s_lshr_b32 {sT1}, {sXCD}, 1")
    e(f"s_and_b32 {sT2}, {sQ}, 3")
    e(f"s_lshr_b32 {sDT}, {sQ}, 2")
    e(f"s_lshl_b32 {sM}, {sM}, 2")
    e(f"s_add_u32 {sM}, {sM}, {sT2}")
    e(f"s_mul_i32 {sFT}, {sT1}, 7")
    e(f"s_add_u32 {sFT}, {sFT}, {sDT}")
    e("v_lshrrev_b32 v4, 3, v0")
    e("v_and_b32 v5, 7, v0")
    e("v_lshrrev_b32 v6, 4, v0")
    e("v_mul_u32_u24 v7, 1280, v4")
    e("v_xor_b32 v8, v5, v6")
    e("v_xor_b32 v9, 4, v8")
    e(f"v_lshl_add_u32 v{vXO}, v8, 4, v7")
    e(f"v_lshl_add_u32 v{vXO + 1}, v9, 4, v7")
    e("v_mul_u32_u24 v7, 3456, v4")
    e("v_and_b32 v8, 1, v6")
    e(f"v_add_u32 v{vXO + 1}, {8 * 1280 - 1024}, v{vXO + 1}")
    e("v_lshlrev_b32 v8, 2, v8")
    e("v_xor_b32 v8, v5, v8")
    e(f"v_lshl_add_u32 v{vWO}, v8, 4, v7")
    e(f"s_lshl_b32 {sWM0}, {sW}, 11")
    e(f"s_mul_i32 {sWSO}, {sW}, {16 * 3456}")
    e(f"s_lshl_b32 {sT1}, {sFT}, 7")
    e(f"s_add_u32 {sWSO}, {sWSO}, {sT1}")
    e(f"v_add_u32 v{vWO + 1}, {8 * 3456 - 1024}, v{vWO}")
    e("s_mov_b32 s10, 2211840\ns_mov_b32 s11, 0x20000")
    e("s_mov_b32 s14, s10\ns_mov_b32 s15, 0x20000")
    e(f"s_cmp_lt_u32 {sDT}, 7")
    e(f"s_cselect_b32 {sT3}, {sFT}, 27")
    e(f"s_lshl_b32 {sXS}, {sM}, 2")
    e(f"s_add_u32 {sXS}, {sXS}, {sW}")
    e(f"s_mul_i32 {sXS}, {sXS}, {64 * 1280}")
    e(f"s_lshl_b32 {sXM0}, {sW}, 13")
    e(f"s_add_u32 {sXM0}, {sXM0}, 16384")
    e(f"s_cmp_lt_u32 {sT3}, 27")
    e(f"s_cselect_b32 {sISG1}, 1, 0")
    e(f"s_mul_i32 {sCP}, {sM}, 27")
    e(f"s_add_u32 {sCP}, {sCP}, {sFT}")
    e(f"s_min_u32 {sCP}, {sCP}, 319")
    e(f"s_lshr_b32 {sC}, {sW}, 1")
    e(f"s_lshl_b32 {sT1}, {sCP}, 1")
    e(f"s_add_u32 {sT1}, {sT1}, {sC}")
    e(f"s_lshl_b32 {sT1}, {sT1}, 8")
    e(f"v_lshl_add_u32 v12, v0, 2, {sT1}")
    e(f"s_lshl_b32 {sT1}, {sCP}, 2")
    e(f"v_mov_b32 v13, {sT1}")
    e("s_waitcnt lgkmcnt(0)")
    e(f"s_cmp_eq_u32 {sISG1}, 0")
    e("s_cbranch_scc1 L_spare")
    if diag:
        e("v_mov_b32 v127, 0")
        e("v_writelane_b32 v127, s92, 60")
    stamp("start")
    if opt.get("pt", 0):
        e("v_mov_b32 v12, s4\nv_mov_b32 v13, s5")
        e("s_add_u32 s68, s4, 0x200000\ns_addc_u32 s69, s5, 0")
        for ln, lo in ((1, 68), (2, 8), (3, 12), (4, 16)):
            e(f"v_writelane_b32 v12, s{lo}, {ln}\nv_writelane_b32 v13, s{lo + 1}, {ln}")
        g.vmem(f"global_load_dword v{vFL + 4}, v[12:13], off", "cpf")
    if diag and not opt.get("dbg"):
        e("s_memrealtime s[100:101]\ns_waitcnt lgkmcnt(0)\nv_writelane_b32 v127, s100, 55")
    APAR = 160
    for k, p in enumerate((P_LAR, P_AIM, P_CRE, P_CIM)):
        g.vmem(f"global_load_dword a{APAR + k}, v12, {p}", "par")
    g.vmem(f"global_load_dword a{APAR + 4}, v13, {P_LDT}", "par")
    g.vmem(f"global_load_dword a{APAR + 5}, v13, {P_DSK}", "par")
    LX = 232
    for q in range(5):
        g.vmem(f"buffer_load_dwordx2 {vr(LX + 2 * q, 2)}, v2, {SX}, {sT0} offen offset:{256 * q}", "ln")

    if diag and not opt.get("dbg"):
        e("s_memrealtime s[100:101]\ns_waitcnt lgkmcnt(0)\nv_writelane_b32 v127, s100, 56")

    def rest_setup():
        e("s_load_dwordx2 s[24:25], s[0:1], 80")
        e("s_load_dwordx2 s[20:21], s[0:1], 88")
        e("v_lshlrev_b32 v1, 4, v0")
        e(f"s_mov_b32 s18, {WS_END}\ns_mov_b32 s19, 0x20000")
        e(f"v_mov_b32 v{vL0}, {OOB}")
        e(f"v_writelane_b32 v{vL0}, 0, 0")
        e("s_mov_b32 s22, 2621440\ns_mov_b32 s23, 0x20000")
        e("s_mov_b32 s26, 2211840\ns_mov_b32 s27, 0x20000")
        e(f"s_lshl_b32 {sT4}, {sXCD}, 2")
        e(f"s_and_b32 {sT2}, {sQ}, 3")
        e(f"s_add_u32 {sLT}, {sT4}, {sT2}")
        e(f"s_add_u32 {sT4}, {sT4}, {sQ}")
        e(f"s_sub_u32 {sT4}, {sT4}, 28")
        e(f"s_lshl_b32 {sT5}, {sXCD}, 3")
        e(f"s_add_u32 {sT5}, {sT5}, {sQ}")
        e(f"s_sub_u32 {sT5}, {sT5}, 48")
        e(f"s_cmp_lt_u32 {sXCD}, 6\ns_cselect_b32 {sSP}, {sT4}, {sT5}")
        e(f"s_mul_i32 {sT4}, {sM}, 27")
        e(f"s_add_u32 {sT4}, {sT4}, {sFT}")
        e(f"s_add_u32 {sT5}, {sSP}, 216")
        e(f"s_cmp_lg_u32 {sISG1}, 0\ns_cselect_b32 {sCP}, {sT4}, {sT5}")
        e(f"s_cmp_lt_u32 {sSP}, 24\ns_cselect_b32 {sRND}, 3, 2")
        e(f"s_and_b32 {sRHO}, {sW}, 1")
        e(f"s_lshr_b32 {sC}, {sW}, 1")
        e("v_lshlrev_b32 v10, 21, v0")
        e(f"v_mov_b32 v{vFA}, v1")
        e(f"v_mov_b32 v{vFA + 1}, v1")
        e("v_mul_u32_u24 v54, 17280, v4")
        e("v_lshl_add_u32 v54, v5, 4, v54")
        e(f"s_lshl_b32 {sHS0}, {sM}, 1")
        e(f"s_add_u32 {sHS0}, {sHS0}, {sRHO}")
        e(f"s_mul_i32 {sHS0}, {sHS0}, {40 * 3456}")
        e(f"s_lshl_b32 {sT1}, {sFT}, 7")
        e(f"s_add_u32 {sHS0}, {sHS0}, {sT1}")
        e("s_mov_b32 s98, 2211840\ns_mov_b32 s99, 0x20000")
        e(f"s_cmp_eq_u32 {sC}, 0\ns_cselect_b32 s96, s8, s12\ns_cselect_b32 s97, s9, s13")
        e(f"s_lshl_b32 {sT1}, {sQ}, 2")
        e(f"s_add_u32 {sT1}, {sT1}, {sW}")
        e(f"s_mul_i32 {sT1}, {sT1}, 384")
        e(f"s_add_u32 {sT1}, {sT1}, {8192 + min(256 + 128 * NSP, 4000)}")
        e("v_min_u32 v11, 2, v0")
        e("v_lshlrev_b32 v11, 7, v11")

    def rest_loads():
        g.vmem(f"buffer_load_dword v{vTAG}, v{vL0}, {SWS}, 0 offen sc1", "ep")
        g.vmem(f"buffer_load_dword v{vFL + 2}, v11, s[88:91], {sT1} offen", "tlb")
        g.vmem(f"buffer_load_dword v{vFL}, v10, {SWS}, 0 offen", "tlb")
        e("s_waitcnt lgkmcnt(0)")
        g.vmem(f"buffer_load_dword v{vFL + 1}, v10, {SOUT}, 0 offen", "tlb")

    def dma_units(stage):
        sb = (stage % 3) * SLOT
        out = []
        for mat in range(2):
            out.append(("m0", f"s_add_u32 m0, {sWM0}, {sb + mat * 8192}"))
            for half in range(2):
                o = f" offset:{1024 * half}" if half else ""
                out.append(("vm", f"buffer_load_dwordx4 v{vWO + half}, {SWG if mat == 0 else SWU}, {sWSO} offen{o} lds", ("dma", stage)))
        for i in range(8):
            if i % 4 == 0:
                out.append(("m0", f"s_add_u32 m0, {sXM0}, {sb + i * 1024}"))
            o = f" offset:{1024 * (i & 3)}" if i & 3 else ""
            out.append(("vm", f"buffer_load_dwordx4 v{vXO + i}, {SX}, {sXS} offen{o} lds", ("dma", stage)))
        out.append(f"s_add_u32 {sXS}, {sXS}, 128")
        out.append(f"s_add_u32 {sWSO}, {sWSO}, {64 * 3456}")
        return out

    def dma_block(stage):
        for u in dma_units(stage):
            if isinstance(u, tuple) and u[0] == "m0":
                e(u[1])
                e("s_nop 0")
            else:
                g.do(u)

    APAR = 160
    def param_units(rnd):
        out = [f"s_add_u32 {sT2}, {sCP}, {40 * rnd}", f"s_min_u32 {sT2}, {sT2}, 319",
               f"s_lshl_b32 {sT1}, {sT2}, 1", f"s_add_u32 {sT1}, {sT1}, {sC}", f"s_lshl_b32 {sT1}, {sT1}, 8",
               f"v_lshl_add_u32 v12, v0, 2, {sT1}", f"s_lshl_b32 {sT1}, {sT2}, 2", f"v_mov_b32 v13, {sT1}"]
        for k, p in enumerate((P_LAR, P_AIM, P_CRE, P_CIM)):
            out.append(("vm", f"global_load_dword a{APAR + 8 * rnd + k}, v12, {p}", "par"))
        out.append(("vm", f"global_load_dword a{APAR + 8 * rnd + 4}, v13, {P_LDT}", "par"))
        out.append(("vm", f"global_load_dword a{APAR + 8 * rnd + 5}, v13, {P_DSK}", "par"))
        return out

    CSR = [56, 60, 112, 116, 52]
    def csl_units():
        out = []
        for j5 in range(5):
            if j5 in (2, 4):
                out.append(f"s_add_u32 {sHS0}, {sHS0}, {2 * 3456}")
            out.append(("vm", f"buffer_load_dwordx4 {vr(CSR[j5], 4)}, v54, {STW}, {sHS0} offen offset:{(j5 % 2) * 3456}", ("csl", j5)))
        return out
    def emit_units(us):
        for u in us:
            if isinstance(u, tuple) and u[0] == "m0":
                e(u[1])
                e("s_nop 0")
            else:
                g.do(u)

    def split_units(us, n):
        c = 0
        for ix, u in enumerate(us):
            if isinstance(u, tuple) and u[0] == "vm":
                c += 1
                if c == n:
                    return us[:ix + 1], us[ix + 1:]
        return us, []

    def run_items(items):
        for it in items:
            g.do(it)

    F, S, Dv, SO, UO = 140, 160, 164, 184, 188
    def ln_code(bar=False):
        for q in range(10):
            e(f"v_lshlrev_b32 v{F + 2 * q}, 16, v{LX + q}")
            e(f"v_and_b32 v{F + 2 * q + 1}, 0xffff0000, v{LX + q}")
        e(f"v_pk_add_f32 {vr(S, 2)}, {vr(F, 2)}, {vr(F + 2, 2)}")
        e(f"v_pk_add_f32 {vr(S + 2, 2)}, {vr(F + 4, 2)}, {vr(F + 6, 2)}")
        for q in range(4, 10, 2):
            e(f"v_pk_add_f32 {vr(S, 2)}, {vr(S, 2)}, {vr(F + 2 * q, 2)}")
            e(f"v_pk_add_f32 {vr(S + 2, 2)}, {vr(S + 2, 2)}, {vr(F + 2 * q + 2, 2)}")
        e(f"v_pk_add_f32 {vr(S, 2)}, {vr(S, 2)}, {vr(S + 2, 2)}")
        e(f"v_add_f32 v{S}, v{S}, v{S + 1}")
        red("v_add_f32", S, S + 1, False)
        e(f"v_mul_f32 v{S}, {hex(f2u(1.0 / 640))}, v{S}")
        for q in range(10):
            e(f"v_pk_add_f32 {vr(Dv + 2 * q, 2)}, {vr(F + 2 * q, 2)}, {vr(S, 2)} op_sel_hi:[1,0] neg_lo:[0,1] neg_hi:[0,1]")
        e(f"v_pk_mul_f32 {vr(S + 2, 2)}, {vr(Dv, 2)}, {vr(Dv, 2)}")
        e(f"v_pk_mul_f32 {vr(S + 24, 2)}, {vr(Dv + 2, 2)}, {vr(Dv + 2, 2)}")
        for q in range(2, 10):
            r = S + 2 if q % 2 == 0 else S + 24
            e(f"v_pk_fma_f32 {vr(r, 2)}, {vr(Dv + 2 * q, 2)}, {vr(Dv + 2 * q, 2)}, {vr(r, 2)}")
        e(f"v_pk_add_f32 {vr(S + 2, 2)}, {vr(S + 2, 2)}, {vr(S + 24, 2)}")
        e(f"v_add_f32 v{S + 2}, v{S + 2}, v{S + 3}")
        red("v_add_f32", S + 2, S + 3, False)
        e(f"v_mul_f32 v{S + 2}, {hex(f2u(1.0 / 640))}, v{S + 2}")
        bf16round(S + 2)
        e(f"v_add_f32 v{S + 2}, {hex(f2u(1e-5))}, v{S + 2}")
        bf16round(S + 2)
        e(f"v_sqrt_f32 v{S + 2}, v{S + 2}")
        bf16round(S)
        bf16round(S + 2)
        e(f"v_rcp_f32 v{S + 3}, v{S + 2}")
        e(f"v_sub_f32 v{SO}, 0, v{S}")
        e(f"v_mul_f32 v{SO + 3}, v{S + 2}, v{S + 2}")
        e(f"v_mul_f32 v{S + 1}, v{S + 3}, v{S + 3}")
        e(f"v_mul_f32 v{SO + 2}, {hex(f2u(C0))}, v{S + 3}")
        e(f"v_mul_f32 v{S + 1}, v{S + 1}, v{S + 3}")
        e(f"v_mul_f32 v{S + 2}, v{SO}, v{S + 3}")
        e(f"v_mul_f32 v{SO + 1}, {hex(f2u(C1))}, v{S + 1}")
        for q in range(10):
            e(f"v_pk_fma_f32 {vr(Dv + 2 * q, 2)}, {vr(F + 2 * q, 2)}, {vr(S + 2, 2)}, {vr(S + 2, 2)} op_sel:[0,1,0] op_sel_hi:[1,1,0]")
        for q in range(10):
            e(f"v_cvt_pk_f16_f32 v{UO + q}, v{Dv + 2 * q}, v{Dv + 2 * q + 1}")
        e("v_lshrrev_b32 v2, 5, v0")
        e(f"v_mul_u32_u24 v2, {LNP}, v2")
        e("v_and_b32 v3, 31, v0")
        e("v_lshl_add_u32 v2, v3, 3, v2")
        e(f"s_mul_i32 {sT1}, {sW}, {2 * LNP}")
        e(f"s_add_u32 {sT1}, {sT1}, {LNB}")
        e(f"v_add_u32 v2, {sT1}, v2")
        if bar:
            e("s_barrier")
        for q in range(5):
            g.lds(f"ds_write_b64 v2, {vr(UO + 2 * q, 2)} offset:{256 * q}", "lnw")
        e("v_lshrrev_b32 v4, 1, v0")
        e(f"v_mov_b32 v5, {OOB}")
        e("v_cmp_ne_u32 vcc, 0, v3")
        e(f"s_lshl_b32 {sT1}, s2, 2")
        e(f"s_add_u32 {sT1}, {sT1}, {sW}")
        e("v_cndmask_b32 v4, v4, v5, vcc")
        e(f"s_lshl_b32 {sT1}, {sT1}, 5")
        e(f"s_add_u32 {sT1}, {sT1}, {STATS}")
        e("v_bfe_u32 v6, v0, 2, 2")
        e(f"v_mul_u32_u24 v2, {LNP}, v6")
        e("v_lshrrev_b32 v3, 4, v0")
        e("v_lshl_add_u32 v2, v3, 5, v2")
        e("v_and_b32 v7, 3, v0")
        e("v_lshl_add_u32 v2, v7, 3, v2")
        e(f"s_lshl_b32 {sT2}, {sW}, 7")
        e(f"s_add_u32 {sT2}, {sT2}, {LNB}")
        e(f"v_add_u32 v2, {sT2}, v2")

    def ln_tail():
        g.vmem(f"buffer_store_dwordx4 {vr(SO, 4)}, v4, {SWS}, {sT1} offen sc1", "lnst")
        g.wlg0()
        e("s_barrier")
        TR = 200
        for j in range(3):
            for h in range(2):
                g.lds(f"ds_read_b64_tr_b16 {vr(TR + 4 * j + 2 * h, 2)}, v2 offset:{512 * j + 4 * LNP * h}", ("lntr", j))
        e(f"s_mul_i32 {sT1}, s2, 10240")
        e(f"s_lshl_b32 {sT2}, {sW}, 10")
        e(f"s_add_u32 {sT1}, {sT1}, {sT2}")
        e(f"s_add_u32 {sT1}, {sT1}, {XNT}")
        e(f"s_add_u32 {sT2}, {sT1}, 4096")
        e(f"s_add_u32 {sT3}, {sT1}, 8192")
        e(f"s_cmp_lt_u32 {sW}, 2")
        e(f"s_cselect_b32 {sT3}, {sT3}, {OOB}")
        for j, so in enumerate((sT1, sT2, sT3)):
            g.wlg(("lntr", j))
            g.vmem(f"buffer_store_dwordx4 {vr(TR + 4 * j, 4)}, v1, {SWS}, {so} offen sc1", "lnst")

    AK = 46
    vKA_A, vKA_B, vZ, vRW, vUW, vYS, vFB, vGB = range(AK, AK + 8)
    KA, CC, TM = 128, 152, 136
    WA = KA + 6
    SIG, OMG = KA + 2, KA + 4

    def cexp(dst, p, t):
        for m in range(2):
            e(f"v_mul_f32 v{t + m}, {hex(f2u(float(p)))}, v{SIG + m}")
            e(f"v_mul_f32 v{t + 2 + m}, {hex(f2u(float(p)))}, v{OMG + m}")
        for m in range(2):
            e(f"v_fract_f32 v{t + 2 + m}, v{t + 2 + m}")
        for m in range(2):
            e(f"v_exp_f32 v{t + m}, v{t + m}")
            e(f"v_cos_f32 v{dst + 2 * m}, v{t + 2 + m}")
            e(f"v_sin_f32 v{dst + 2 * m + 1}, v{t + 2 + m}")
        e("s_nop 0")
        align()
        for m in range(2):
            e(f"v_pk_mul_f32 {vr(dst + 2 * m, 2)}, {vr(dst + 2 * m, 2)}, {vr(t, 2)} op_sel:[0,{m}] op_sel_hi:[1,{m}]")

    def cmul(dst, P, Q, t):
        for m in range(2):
            e(f"v_pk_mul_f32 {vr(t + 2 * m, 2)}, {vr(P + 2 * m, 2)}, {vr(Q + 2 * m, 2)} op_sel_hi:[0,1]")
        for m in range(2):
            e(f"v_pk_fma_f32 {vr(dst + 2 * m, 2)}, {vr(P + 2 * m, 2)}, {vr(Q + 2 * m, 2)}, {vr(t + 2 * m, 2)} op_sel:[1,1,0] op_sel_hi:[1,0,1] neg_lo:[0,1,0]")

    prow = [0]

    def put(src, row, neg, lastrow=False):
        o = 144 + 2 * (row % 4)
        ng = "-" if neg else ""
        if src is not None:
            e(f"v_cvt_pk_f16_f32 v{o}, v{src}, {ng}v{src + 1}")
            e(f"v_cvt_pk_f16_f32 v{o + 1}, v{src + 2}, {ng}v{src + 3}")
        if row % 2 == 1:
            o0 = ((row - 1) % 4) * 68
            g.lds(f"ds_write2_b64 v{WA}, {vr(o - 2, 2)}, {vr(o, 2)} offset0:{o0} offset1:{o0 + 68}", "xy")
            if row % 4 == 3:
                e(f"v_add_u32 v{WA}, {4 * XYP}, v{WA}")
        elif lastrow:
            g.lds(f"ds_write_b64 v{WA}, {vr(o, 2)} offset:{(row % 4) * XYP}", "xy")


    def rb1():
        e(f"s_mov_b32 {sKR}, 0")
        for i in range(8):
            e(f"v_accvgpr_read_b32 v{SC + i}, a{AST + i}")
        for i in (0, 1, 5):
            e(f"v_accvgpr_read_b32 v{AK + i}, a{AS2 + 1 + i}")

    def tag_code():
        e(f"v_readfirstlane_b32 {sTAG}, v{vTAG}")
        e("s_nop 3")
        e(f"s_mul_i32 {sTAG}, {sTAG}, 1664525")
        e(f"s_add_u32 {sTAG}, {sTAG}, 1013904223")
        e(f"v_mov_b32 v{vTAG}, {sTAG}")

    def k_setup():
        for k6 in (4, 5, 0, 1, 2, 3):
            e(f"v_accvgpr_read_b32 v{vPAR + k6}, a{APAR + k6}")
        e(f"v_accvgpr_read_b32 v{WA}, a{AS2}")
        e(f"s_lshl_b32 {sT1}, {sC}, 4")
        e(f"v_lshrrev_b32 v{KA}, {sT1}, v{vPAR + 4}")
        e(f"v_lshlrev_b32 v{KA}, 16, v{KA}")
        e(f"v_mul_f32 v{KA}, {hex(f2u(LOG2E))}, v{KA}")
        e(f"v_exp_f32 v{KA}, v{KA}")
        e(f"v_lshrrev_b32 v{KA + 7}, {sT1}, v{vPAR + 5}")
        e(f"v_lshlrev_b32 v{KA + 7}, 16, v{KA + 7}")
        bf16round(KA)
        e(f"v_lshlrev_b32 v{KA + 2}, 16, v{vPAR}")
        e(f"v_and_b32 v{KA + 3}, 0xffff0000, v{vPAR}")
        e(f"v_mul_f32 v{KA + 2}, {hex(f2u(LOG2E))}, v{KA + 2}")
        e(f"v_mul_f32 v{KA + 3}, {hex(f2u(LOG2E))}, v{KA + 3}")
        e(f"v_exp_f32 v{KA + 2}, v{KA + 2}")
        e(f"v_exp_f32 v{KA + 3}, v{KA + 3}")
        e(f"v_lshlrev_b32 v{KA + 4}, 16, v{vPAR + 1}")
        e(f"v_and_b32 v{KA + 5}, 0xffff0000, v{vPAR + 1}")
        e(f"v_cvt_pk_bf16_f32 v{KA + 1}, v{KA + 2}, v{KA + 3}")
        e(f"v_lshlrev_b32 v{CC}, 16, v{vPAR + 2}")
        e(f"v_lshlrev_b32 v{CC + 1}, 16, v{vPAR + 3}")
        e(f"v_and_b32 v{CC + 2}, 0xffff0000, v{vPAR + 2}")
        e(f"v_and_b32 v{CC + 3}, 0xffff0000, v{vPAR + 3}")
        e(f"v_lshlrev_b32 v{KA + 2}, 16, v{KA + 1}")
        e(f"v_and_b32 v{KA + 3}, 0xffff0000, v{KA + 1}")
        for m in range(2):
            e(f"v_mul_f32 v{KA + 2 + m}, v{KA + 2 + m}, v{KA}")
            e(f"v_mul_f32 v{KA + 4 + m}, v{KA + 4 + m}, v{KA}")
        for m in range(2):
            e(f"v_mul_f32 v{KA + 2 + m}, {hex(f2u(-LOG2E))}, v{KA + 2 + m}")
            e(f"v_mul_f32 v{KA + 4 + m}, {hex(f2u(1.0 / (2 * math.pi)))}, v{KA + 4 + m}")

    def k_role0():
        W8, W16, T2 = 152, 156, 140
        ch = [[160, 164], [168, 172]]
        e(f"v_add_u32 v{WA}, {YR0 * XYP}, v{WA}")
        cexp(W8, 8, TM)
        e("v_mov_b32 v144, 0x3c00")
        e("v_mov_b32 v145, 0x3c00")
        cmul(W16, W8, W8, TM)
        put(W8, 33, False)
        cur = [W16, W8]
        for j in range(2, 32, 2):
            n0 = cur[0] if j == 2 else ch[0][(j // 2) & 1]
            n1 = ch[1][(j // 2) & 1]
            for m in range(2):
                if j > 2:
                    e(f"v_pk_mul_f32 {vr(TM + 2 * m, 2)}, {vr(cur[0] + 2 * m, 2)}, {vr(W16 + 2 * m, 2)} op_sel_hi:[0,1]")
                e(f"v_pk_mul_f32 {vr(T2 + 2 * m, 2)}, {vr(cur[1] + 2 * m, 2)}, {vr(W16 + 2 * m, 2)} op_sel_hi:[0,1]")
            for m in range(2):
                if j > 2:
                    e(f"v_pk_fma_f32 {vr(n0 + 2 * m, 2)}, {vr(cur[0] + 2 * m, 2)}, {vr(W16 + 2 * m, 2)}, {vr(TM + 2 * m, 2)} op_sel:[1,1,0] op_sel_hi:[1,0,1] neg_lo:[0,1,0]")
                e(f"v_pk_fma_f32 {vr(n1 + 2 * m, 2)}, {vr(cur[1] + 2 * m, 2)}, {vr(W16 + 2 * m, 2)}, {vr(T2 + 2 * m, 2)} op_sel:[1,1,0] op_sel_hi:[1,0,1] neg_lo:[0,1,0]")
            put(n0, 32 + j, False)
            put(n1, 33 + j, False)
            cur = [n0, n1]

    def k_role1():
        MX = 136
        e(f"v_max_f32 v{MX}, |v{CC}|, |v{CC + 1}|")
        e(f"v_max3_f32 v{MX}, |v{CC + 2}|, |v{CC + 3}|, v{MX}")
        red("v_max_f32", MX, MX + 1, True)
        e(f"v_frexp_exp_i32_f32 v{MX}, v{MX}")
        e(f"v_add_f32 v{KA}, v{KA}, v{KA}")
        e(f"v_ldexp_f32 v{MX + 2}, v{KA}, v{MX}")
        e(f"v_mov_b32 v{MX + 3}, v{KA + 7}")
        e(f"v_sub_u32 v{MX}, 0, v{MX}")
        for i in range(4):
            e(f"v_ldexp_f32 v{CC + i}, v{CC + i}, v{MX}")
        e(f"v_add_u32 v{MX + 1}, {sKR}, v{vYS}")
        e(f"v_mov_b32 v{MX}, 0")
        g.lds(f"ds_write_b64 v{MX + 1}, {vr(MX + 2, 2)} offset:{YSO}", "xy")
        g.lds(f"ds_write_b32 v{MX + 1}, v{MX}", "xy")
        Z, Q, Q4 = 156, 160, 164
        cexp(Z, 1, TM)
        cexp(Q, 256, TM)
        cexp(Q4, 1024, TM)
        X = [168 + 4 * i for i in range(8)]
        X[0] = CC
        put(CC, 0, True)
        for s in range(1, 8):
            cmul(X[s], X[s - 1], Z, TM)
            put(X[s], s, True)
        R8 = [200 + 4 * i for i in range(4)]
        for s in range(4):
            cmul(R8[s], X[2 * s], Q, TM)
            put(R8[s], 8 + s, True)
        R12 = [216, 220]
        for s in range(2):
            cmul(R12[s], R8[2 * s], Q, TM)
            put(R12[s], 12 + s, True)
        for s in range(2):
            cmul(X[1 + 2 * s], R12[s], Q, TM)
            put(X[1 + 2 * s], 14 + s, True)
        cmul(R8[0], CC, Q4, TM)
        put(R8[0], 16, True)
        cmul(R8[1], R8[0], Q, TM)
        put(R8[1], 17, True)
        cmul(R8[3], R8[1], Q, TM)
        put(R8[3], 18, True)
        cmul(R8[1], R8[3], Q, TM)
        put(R8[1], 19, True)
        cmul(R8[2], R8[0], Q4, TM)
        put(R8[2], 20, True, lastrow=True)

    def kgen(sfx, units, every):
        k_setup()
        e(f"s_cmp_lg_u32 {sRHO}, 0")
        e(f"s_cbranch_scc1 L_role1{sfx}")
        vm_s, lg_s = list(g.vm), list(g.lg)
        us = list(units)
        interleave(k_role0, us, every)
        emit_units(us)
        e(f"s_branch L_kbar{sfx}")
        align()
        g.lab(f"L_role1{sfx}")
        g.vm, g.lg = vm_s, lg_s
        us = list(units)
        interleave(k_role1, us, every)
        emit_units(us)
        g.lab(f"L_kbar{sfx}")
        stamp("kvalu_end")

    def kgen_mfma():
        KF = 64
        for ks in range(8):
            g.lds(f"ds_read_b128 {vr(KF + 4 * ks, 4)}, v{vKA_A} offset:{64 * ks}", ("ka", ks))
            g.lds(f"ds_read_b128 {vr(128 + 4 * ks, 4)}, v{vKA_B} offset:{YR0 * XYP + 64 * ks}", ("kb0", ks))
            g.lds(f"ds_read_b128 {vr(160 + 4 * ks, 4)}, v{vKA_B} offset:{(YR0 + 16) * XYP + 64 * ks}", ("kb1", ks))
        KD = 96
        for ks in range(8):
            g.wlg(("kb1", ks))
            e(f"v_mfma_f32_16x16x32_f16 {vr(KD, 4)}, {vr(KF + 4 * ks, 4)}, {vr(128 + 4 * ks, 4)}, {'0' if ks == 0 else vr(KD, 4)}")
            e(f"v_mfma_f32_16x16x32_f16 {vr(KD + 4, 4)}, {vr(KF + 4 * ks, 4)}, {vr(160 + 4 * ks, 4)}, {'0' if ks == 0 else vr(KD + 4, 4)}")
        g.nop(7)
        for i in range(8):
            g.lds(f"ds_write_b32 v{SC + i}, v{KD + i}", "tw")

    vm0 = ["cpf"]
    u0, u0b = split_units(dma_units(0), opt.get("nf", 4))
    def g1_early():
        for i in range(2, 8):
            d = 16 * 1280 - 1024 * ((i & 3) - ((i - 2) & 3))
            e(f"v_add_u32 v{vXO + i}, {d}, v{vXO + i - 2}")
        rest_setup()
    interleave(g1_early, u0, opt.get("pe0", 2))
    assert not u0
    e(f"s_mov_b32 {sRND}, 1")
    rest_loads()
    aE, aL = addr_items(XYB_G1, TB_G1)
    table_code(TB_G1)
    run_items(aE)
    rb1()
    if diag and not opt.get("dbg"):
        e("s_memrealtime s[100:101]\ns_waitcnt lgkmcnt(0)\nv_writelane_b32 v127, s100, 58")
    g.sfree += [88, 90]
    g.wvm("ln")
    stamp("par_data")
    u0c, u0d = split_units(u0b, opt.get("nl", 4))
    interleave(ln_code, u0c, opt.get("pe1", 30))
    emit_units(u0c)
    ln_tail()
    stamp("ln_done")
    g.wvm("ep")
    tag_code()
    e(f"s_lshl_b32 {sT3}, s2, 2")
    e(f"s_add_u32 {sT3}, {sT3}, {LNF}")
    e(f"s_cmp_eq_u32 {sW}, 0")
    e(f"s_cselect_b32 {sT3}, {sT3}, {OOB}")
    e("s_barrier")
    kgen("g", u0d + dma_units(1) + csl_units(), opt.get("pek", 11))
    g.wvm("lnst")
    g.wlg0()
    e("s_barrier")
    flag_store(sT3)
    kgen_mfma()
    stamp("kdone")
    e("v_and_b32 v2, 31, v0")
    e("v_lshrrev_b32 v3, 5, v0")
    e("v_bfe_u32 v4, v0, 1, 3")
    e("v_xor_b32 v4, v4, v3")
    e(f"v_lshl_add_u32 v2, v2, 7, {sXM0}")
    for ks in range(4):
        e(f"v_xor_b32 v5, {2 * ks}, v4")
        e(f"v_lshl_add_u32 v{vBA + ks}, v5, 4, v2")
        e(f"v_add_u32 v{vBA + 4 + ks}, {2 * SLOT}, v{vBA + ks}")
    e("v_bfe_u32 v6, v0, 2, 2")
    e("v_and_b32 v7, 3, v0")
    e("v_lshl_add_u32 v2, v3, 3, v6")
    e("v_lshlrev_b32 v2, 7, v2")
    e("v_bfe_u32 v4, v0, 4, 1")
    e("v_lshl_add_u32 v2, v4, 5, v2")
    e("v_lshl_add_u32 v2, v7, 3, v2")
    e("v_lshrrev_b32 v3, 1, v6")
    e(f"v_xor_b32 v3, {sRHO}, v3")
    e(f"s_lshl_b32 {sT1}, {sC}, 13")
    e("v_lshl_add_u32 v2, v3, 6, v2")
    e(f"v_add_u32 v{vAA}, {sT1}, v2")
    e(f"v_xor_b32 v{vAA + 1}, 64, v{vAA}")
    e(f"v_xor_b32 v{vAA + 2}, 0x2000, v{vAA}")
    e(f"v_xor_b32 v{vAA + 3}, 0x2000, v{vAA + 1}")
    for i in range(4):
        e(f"v_add_u32 v{vAA + 4 + i}, {2 * SLOT}, v{vAA + i}")

    def touch_setup():
        return [f"s_lshr_b32 {sF0}, {sQ}, 2", f"s_mul_i32 {sF0}, {sF0}, 10", f"v_add_u32 v2, {sF0}, v0",
                "v_min_u32 v2, 63, v2", "v_mul_u32_u24 v2, 1280, v2", f"v_mov_b32 v3, {OOB}",
                f"v_cmp_lt_u32 vcc, 9, v0\ns_nop 1\nv_cndmask_b32 v{vTO}, v2, v3, vcc",
                f"s_and_b32 {sF0}, {sQ}, 3", f"s_lshl_b32 {sF0}, {sF0}, 1", f"s_add_u32 {sF0}, {sF0}, {sRHO}",
                f"s_lshl_b32 {sF0}, {sF0}, 3", f"s_lshl_b32 {sF1}, {sW}, 4", f"s_sub_u32 {sF0}, {sF0}, {sF1}",
                f"s_add_u32 {sF0}, {sF0}, 64", f"v_add_u32 v2, {sF0}, v0", "v_mul_u32_u24 v2, 3456, v2",
                f"v_cmp_lt_u32 vcc, 7, v0\ns_nop 1\nv_cndmask_b32 v{vTO + 1}, v2, v3, vcc",
                ]

    def touch_units(ahead):
        return [f"s_add_u32 {sT4}, {sXS}, {128 * ahead}",
                ("vm", f"buffer_load_dword v{vFL + 4}, v{vTO}, {SX}, {sT4} offen", "touch"),
                f"s_add_u32 {sT4}, {sWSO}, {64 * 3456 * (ahead - 1)}" if ahead >= 1 else f"s_sub_u32 {sT4}, {sWSO}, {64 * 3456}",
                ("vm", f"buffer_load_dword v{vFL + 4}, v{vTO + 1}, {STW}, {sT4} offen", "touch")]

    def frag_reads(k):
        stage, ks = divmod(k, 4)
        sl = stage % 3
        st4 = 4 if sl == 2 else 0
        so = 0 if sl == 2 else sl * SLOT
        A = vAF + 16 * (k & 1)
        B = vBF + 8 * (k & 1)
        def bread(b):
            return ("lds", f"ds_read_b128 {vr(B + 4 * b, 4)}, v{vBA + st4 + ks} offset:{so + 4096 * b}", ("B", k, b))
        def aread(t, h):
            return ("lds", f"ds_read_b64_tr_b16 {vr(A + 4 * t + 2 * h, 2)}, v{vAA + st4 + t} offset:{so + ks * 2048 + h * 512}", ("A", k, t))
        return [bread(0), aread(0, 0), aread(0, 1), bread(1), aread(1, 0), aread(1, 1), aread(2, 0), aread(2, 1), aread(3, 0), aread(3, 1)]

    e(f"s_mov_b32 {sMASK}, 0xffff0000")
    g.wvm(("dma", 0))
    g.wlg0()
    e("s_barrier")
    stamp("g1_start")
    stamp("c_g1s", cyc=True)
    for it in frag_reads(0):
        g.do(it)

    PACE = opt.get("pace", 2)
    NG = 320
    gaps = [[] for _ in range(NG)]
    head = [[] for _ in range(NG)]
    pre = {}
    vq_big = []

    sq = []
    def add_group(units, earliest, small=False, pace=None):
        vq = sq if small else vq_big
        prel = []
        for u in units:
            if isinstance(u, tuple) and u[0] == "m0":
                prel.append(u[1])
            elif isinstance(u, tuple) or callable(u):
                vq.append([earliest, prel, u, [], pace])
                prel = []
            else:
                prel.append(u)
        if prel:
            vq[-1][3] += prel

    def Bgap(s):
        return 32 * s - 8

    PKV = 48
    pk_fill = [f"s_mov_b32 {sF0}, {0x100000000 // 20 + 1}", f"s_lshl_b32 {sF1}, {sW}, 6"]
    for i3 in range(3):
        pk_fill += [f"v_add_u32 v2, {sF1}, v0"] + ([f"v_add_u32 v2, {256 * i3}, v2"] if i3 else []) + [
            f"v_mul_hi_u32 v3, v2, {sF0}", "v_mul_u32_u24 v12, 20, v3", "v_sub_u32 v12, v2, v12",
            "v_mul_u32_u24 v3, 1280, v3", f"v_lshl_add_u32 v{PKV + i3}, v12, 4, v3"]
    pk_fill += [f"s_lshr_b32 {sHS0}, {sCP}, 2", f"s_and_b32 {sHS1}, {sCP}, 3",
                f"s_mul_i32 {sT2}, {sHS0}, 40960", f"s_mul_i32 {sF0}, {sHS1}, 320", f"s_add_u32 {sT2}, {sT2}, {sF0}",
                f"s_lshl_b32 {sT3}, {sW}, 10"]
    pk_fill2 = ["v_lshrrev_b32 v2, 5, v0", "v_bfe_u32 v3, v0, 2, 2", "v_lshl_add_u32 v2, v2, 4, v3", "v_bfe_u32 v3, v0, 4, 1",
                "v_lshl_add_u32 v2, v3, 2, v2", "v_mul_u32_u24 v2, 320, v2", "v_and_b32 v3, 3, v0", "v_lshl_add_u32 v2, v3, 3, v2",
                f"s_lshl_b32 {sF0}, {sW}, 5", f"s_add_u32 {sF0}, {sF0}, {PKB}", f"v_add_u32 v{PKV + 3}, {sF0}, v2"]
    PDR = [56, 60, 8]
    pk_dma = []
    for i3 in range(3):
        pk_dma.append(("m0", f"s_add_u32 m0, {sT3}, {PKB + 4096 * i3}"))
        if i3 == 2:
            pk_dma.append(lambda: e(f"s_cmp_lt_u32 {sW}, 2\ns_cbranch_scc0 L_nopk3\nbuffer_load_dwordx4 v{PKV + 2}, {SWD}, {sT2} offen lds\nL_nopk3:") or g.vm.append("OPT"))
        else:
            pk_dma.append(("vm", f"buffer_load_dwordx4 v{PKV + i3}, {SWD}, {sT2} offen lds", "pkd"))
    pk_st = []
    for i3 in range(3):
        pk_st += [f"s_mul_i32 {sT2}, {sHS1}, 10\ns_add_u32 {sT2}, {sT2}, {sW}\ns_add_u32 {sT2}, {sT2}, {4 * i3}",
                  f"s_mul_i32 {sT3}, {sT2}, 13108\ns_lshr_b32 {sT3}, {sT3}, 16\ns_mul_i32 {sT3}, {sT3}, 265\ns_add_u32 {sT2}, {sT2}, {sT3}",
                  f"s_mul_i32 {sT3}, {sHS0}, 5\ns_add_u32 {sT2}, {sT2}, {sT3}\ns_lshl_b32 {sT2}, {sT2}, 10\ns_add_u32 {sT2}, {sT2}, {WDP}"]
        if i3 == 2:
            pk_st.append(f"s_cmp_lt_u32 {sW}, 2\ns_cselect_b32 {sT2}, {sT2}, {OOB}")
        pk_st.append(("vm", f"buffer_store_dwordx4 {vr(PDR[i3], 4)}, v1, {SWS}, {sT2} offen sc1", "pks"))
    lnflag = [f"s_lshl_b32 {sT1}, s2, 2\ns_add_u32 {sT1}, {sT1}, {LNF}\ns_cmp_eq_u32 {sW}, 0\ns_cselect_b32 {sT1}, {sT1}, {OOB}",
              lambda: flag_store(sT1)]
    def wff():
        g.wvm("pks")
        flag_store(sT1)
    wfflag = [f"s_lshl_b32 {sT1}, {sHS1}, 6\ns_add_u32 {sT1}, {sT1}, {sHS0}\ns_lshl_b32 {sT1}, {sT1}, 2\ns_add_u32 {sT1}, {sT1}, {sW}",
              f"s_lshl_b32 {sT1}, {sT1}, 2\ns_add_u32 {sT1}, {sT1}, {WF}", wff]

    add_group(dma_units(2), opt.get("d2", 4))
    add_group(pk_dma, 20)
    for st_ in range(1, 8):
        if st_ == 2:
            add_group(pk_st, Bgap(2) + 6)
        add_group(dma_units(st_ + 2), Bgap(st_) + {1: opt.get("d3", 10), 2: opt.get("d4", 20), 3: opt.get("d5", 20), 4: opt.get("d6", 0)}.get(st_, 0))
    G0 = 8 * KCHK + 4
    for phi in range(P1):
        add_group(wd_load(phi), G0)
    vsched = []
    occ = set()
    def place(q, pace):
        last = -pace
        for (ear, prel, vmi, post, pc) in q:
            gq = max(ear, last + (pc or pace))
            while gq in occ:
                gq += 1
            assert gq < NG - 1, gq
            occ.add(gq)
            gaps[gq - 1] += prel
            head[gq].append(vmi)
            gaps[gq] = post + gaps[gq]
            last = gq
            vsched.append((gq, vmi[2] if isinstance(vmi, tuple) else "flag"))
    place(vq_big, PACE)
    def gap_of(tag):
        return max(gq for gq, t in vsched if t == tag)
    for st_ in range(1, 8):
        ge = gap_of(("dma", st_ + 2)) + 2
        if st_ == 2:
            add_group([f"s_lshl_b32 {sT1}, {sFT}, 1\ns_add_u32 {sT1}, {sT1}, {sC}\ns_lshl_b32 {sT1}, {sT1}, 3\ns_add_u32 {sT1}, {sT1}, {sM}",
                       f"s_lshl_b32 {sT1}, {sT1}, 1\ns_add_u32 {sT1}, {sT1}, {sRHO}\ns_lshl_b32 {sT1}, {sT1}, 8\ns_add_u32 {sT1}, {sT1}, {CSP}",
                       ("vm", f"buffer_store_dwordx2 {vr(4, 2)}, v6, {SWS}, {sT1} offen sc1", "pks")], gap_of("pks") + 1, True)
        if st_ == 3:
            add_group(wfflag, gap_of(("dma", 4)) + 1, True)
        if st_ == 5:
            add_group([("vm", f"buffer_load_dwordx4 {vr(vFL, 4)}, v{vFA}, {SWS}, 0 offen sc1", "poll"),
                       ("vm", f"buffer_load_dwordx4 {vr(PKV, 4)}, v{vFA + 1}, {SWS}, 0 offen sc1", "poll")], 8 * KCHK - 22, True)
        if TOUCH and st_ + TOUCH <= 9:
            if st_ == 1:
                for a in range(0, TOUCH - 3):
                    add_group(touch_units(a), ge, True)
            add_group(touch_units(TOUCH - 3), ge, True)
        if st_ == 6 and opt.get('wtouch'):
            for t3 in range(3):
                add_group([f"s_and_b32 {sT4}, {sLT}, 3\ns_mul_i32 {sT4}, {sT4}, {140 * 128}\ns_add_u32 {sT4}, {sT4}, {sWDS}" if t3 == 0 else f"s_add_u32 {sT4}, {sT4}, {48 * 128}",
                           ("vm", f"buffer_load_dword v{vFL + 4}, v{PKV + 1}, {SWS}, {sT4} offen sc1", "wtouch")], 8 * KCHK + 4 + 4 * t3, True)
    add_group([f"s_lshl_b32 {sT1}, {sFT}, 1\ns_add_u32 {sT1}, {sT1}, {sC}\ns_lshl_b32 {sT1}, {sT1}, 5\ns_add_u32 {sT1}, {sT1}, {sRHO}",
               f"s_lshl_b32 {sT1}, {sT1}, 7\ns_add_u32 {sT1}, {sT1}, {CSP}",
               ("vm", f"buffer_load_dwordx4 {vr(4, 4)}, v{vCS}, {SWS}, {sT1} offen sc1", "csp"),
               ("vm", f"buffer_load_dwordx4 {vr(8, 4)}, v{vCS}, {SWS}, {sT1} offen offset:2048 sc1", "csp")], G0, True)
    add_group([f"s_lshl_b32 {sT1}, {sM}, 2\ns_add_u32 {sT1}, {sT1}, {sW}\ns_lshl_b32 {sT1}, {sT1}, 10\ns_add_u32 {sT1}, {sT1}, {STATS}",
               ("vm", f"buffer_load_dwordx4 {vr(vSTA, 4)}, v15, {SWS}, {sT1} offen sc1", "stats"),
               ("vm", f"buffer_load_dwordx4 {vr(vSTA + 4, 4)}, v15, {SWS}, {sT1} offen offset:512 sc1", "stats")], G0, True)
    add_group(u_loads(sCP, 3), G0, True)
    place(sq, 1)
    vsched.sort()
    if opt.get("v"):
        print(vsched)
    assert all(gap_of(("dma", st_)) < Bgap(st_) - 12 for st_ in range(2, 10))
    assert gap_of("pkd") < Bgap(2) and gap_of("pks") < gap_of(("dma", 4)) - 24 and gap_of("poll") < 8 * KCHK - 6

    for i3 in range(3):
        for h in range(2):
            gaps[Bgap(2) + 1 + i3].append(("lds", f"ds_read_b64_tr_b16 {vr(PDR[i3] + 2 * h, 2)}, v{PKV + 3} offset:{128 * i3 + 8 * 320 * h}", "pk"))
    c4 = check4(vFL)
    gaps[8 * KCHK] += [("wvm", "poll")] + c4[0:2]
    gaps[8 * KCHK + 1] += c4[2:5]
    def chk():
        sl = g.newlab("Lslow")
        bk = g.newlab("Lback")
        for x in check4(PKV)[:6]:
            e(x)
        e(f"v_or3_b32 v{vFL}, v{vFL}, v{vFL + 3}, v{PKV}")
        e(c4[6])
        e(f"s_cbranch_vccnz {sl}")
        g.lab(bk)
        g.slow.append((sl, bk, [(vFA, True), (vFA + 1, True)]))
    gaps[8 * KCHK + 2].insert(0, chk)

    CA = [4, 5, 6, 7, 42, 43, 44, 45]
    csum = []
    for j5 in range(5):
        csum.append(("wvm", ("csl", j5)))
        for d in range(4):
            r = CSR[j5] + d
            if j5 == 0:
                csum += [f"v_lshlrev_b32 v{CA[2 * d]}, 16, v{r}", f"v_and_b32 v{CA[2 * d + 1]}, {sMASK}, v{r}"]
            else:
                csum += [f"v_lshlrev_b32 v8, 16, v{r}", f"v_and_b32 v9, {sMASK}, v{r}",
                         f"v_add_f32 v{CA[2 * d]}, v{CA[2 * d]}, v8", f"v_add_f32 v{CA[2 * d + 1]}, v{CA[2 * d + 1]}, v9"]
    csum += ["s_nop 1"]
    csum += [f"v_permlane32_swap_b32 v{CA[c]}, v{CA[c + 4]}" for c in range(4)]
    csum += [f"v_add_f32 v{CA[c]}, v{CA[c]}, v{CA[c + 4]}" for c in range(4)]
    csum += ["s_nop 1"]
    csum += [f"v_permlane16_swap_b32 v{CA[c]}, v{CA[c + 2]}" for c in range(2)]
    csum += ["s_nop 0"]
    csum += [f"v_add_f32 v{CA[c]}, v{CA[c]}, v{CA[c + 2]}" for c in range(2)]
    csum += ["v_and_b32 v6, 7, v0", "v_lshlrev_b32 v6, 5, v6"]
    csum += [f"v_add_f32 v{CA[c]}, v{CA[c]}, v{CA[c]} row_ror:8" for c in range(2)]
    csum += ["v_lshrrev_b32 v7, 4, v0", "v_lshl_add_u32 v6, v7, 3, v6", f"v_mov_b32 v7, {OOB}",
             "v_and_b32 v8, 8, v0", "v_cmp_ne_u32 vcc, 0, v8\ns_nop 1\nv_cndmask_b32 v6, v6, v7, vcc"]
    fillq = pk_fill + (touch_setup() if TOUCH else []) + pk_fill2[:11]
    n_a = len(fillq)
    fillq += csum
    n_csum = len(fillq)
    n_early = len(pk_fill)
    fillq += pk_fill2[11:]
    n_early2 = len(fillq)
    fillq += [f"v_min_u32 v2, 53, v0", f"s_lshr_b32 {sF0}, {sDT}, 1", f"s_lshl_b32 {sF0}, {sF0}, 10",
              f"s_add_u32 {sF0}, {sF0}, {WF}", f"v_lshl_add_u32 v2, v2, 4, {sF0}",
              "v_and_b32 v3, 7, v0", "v_mul_u32_u24 v3, 27, v3", f"v_add_u32 v3, {sFT}, v3", "v_and_b32 v12, 3, v3",
              "v_lshrrev_b32 v3, 2, v3", "v_lshl_add_u32 v3, v12, 6, v3", "v_lshlrev_b32 v3, 4, v3", f"v_add_u32 v3, {WF}, v3",
              f"v_cmp_lt_u32 vcc, 55, v0\ns_nop 1\nv_cndmask_b32 v{vFA + 1}, v2, v3, vcc"]
    iw = max(i for i, x in enumerate(aL) if sWDS + "," in x)
    i0 = min(i for i, x in enumerate(aL) if f"{sF0}, {sW}, 14" in x)
    iu = max(i for i, x in enumerate(aL) if f"a{AS2 + 23}," in x)
    fillq += [f"v_add_u32 v{vFA}, {LNF}, v1"] + aL[i0:iw + 1] + ["v_lshrrev_b32 v3, 1, v0", "v_and_b32 v2, 1, v0", "v_mul_u32_u24 v3, 10240, v3", "v_lshl_add_u32 v3, v2, 4, v3",
                              f"v_accvgpr_write_b32 a{AS2 + 23}, v3"]
    n_mid = len(fillq)
    late_fill = aL[:i0] + aL[i0:i0 + 3] + aL[iw + 1:] + gather_items(TB_G1)
    late_fill = [x.replace("v12", "v10").replace("v13", "v11").replace("v14", "v46").replace("v15", "v47") for x in late_fill]
    fillq += ["v_bfe_u32 v2, v0, 4, 1", f"v_mul_u32_u24 v2, {54 * 1024}, v2", "v_lshrrev_b32 v3, 5, v0",
              "v_lshl_add_u32 v2, v3, 8, v2", "v_and_b32 v12, 15, v0", "v_lshl_add_u32 v2, v12, 4, v2",
              f"s_lshl_b32 {sF0}, {sRHO}, 10", f"v_add_u32 v{vHO}, {sF0}, v2", f"s_xor_b32 {sF0}, {sF0}, 1024",
              f"v_add_u32 v{vHO + 1}, {sF0}, v2", f"s_lshl_b32 {sF0}, {sRHO}, 7", f"s_add_u32 {sF0}, {sF0}, {CSB}",
              f"v_lshl_add_u32 v13, v3, 4, {sF0}", "v_xor_b32 v14, 128, v13",
              "v_and_b32 v2, 7, v0", "v_lshlrev_b32 v12, 4, v2", "v_lshl_add_u32 v12, v3, 3, v12", "v_bfe_u32 v3, v0, 4, 1",
              "v_lshl_add_u32 v12, v3, 2, v12", f"s_lshl_b32 {sF0}, {sW}, 7", f"s_add_u32 {sF0}, {sF0}, {CSB}",
              f"v_add_u32 v12, {sF0}, v12", "v_lshrrev_b32 v3, 3, v0", "v_lshlrev_b32 v3, 8, v3", f"v_lshl_add_u32 v{vCS}, v2, 4, v3",
              "v_and_b32 v15, 31, v0", "v_lshlrev_b32 v15, 4, v15"]
    tail_fill = [f"s_lshl_b32 {sHS0}, {sM}, 2", f"s_add_u32 {sHS0}, {sHS0}, {sW}", f"s_lshl_b32 {sPEND}, {sHS0}, 5",
                 f"s_mul_i32 {sHS0}, {sHS0}, {4 * 54}", f"s_lshl_b32 {sT2}, {sFT}, 1", f"s_add_u32 {sHS0}, {sHS0}, {sT2}",
                 f"s_lshl_b32 {sHS0}, {sHS0}, 10", f"s_add_u32 {sHS0}, {sHS0}, {HB}", f"s_add_u32 {sHS1}, {sHS0}, {2 * 54 * 1024}",
                 f"s_add_u32 {sPEND}, {sPEND}, {sFT}", f"s_lshl_b32 {sPEND}, {sPEND}, 7", f"s_add_u32 {sPEND}, {sPEND}, {HF}"]
    cs_fill = [("wvm", "csp")] + [f"v_add_f32 v{4 + c}, v{4 + c}, v{8 + c}" for c in range(4)] + ["s_nop 0",
               "v_permlane32_swap_b32 v4, v6", "v_permlane32_swap_b32 v5, v7", "s_nop 0", "v_add_f32 v4, v4, v6", "v_add_f32 v5, v5, v7",
               "s_nop 1", "v_permlane16_swap_b32 v4, v5", "s_nop 0", "v_add_f32 v4, v4, v5", "s_nop 1",
               "v_add_f32 v4, v4, v4 row_ror:8", ("lds", "ds_write_b32 v12, v4", "csw")]
    nf_total = len(fillq)

    def cost(it):
        if isinstance(it, str):
            return it.count("\n") + 1
        return 1
    CAP = opt.get("cap", 4)
    for k in range(40):
        stage, ks = divmod(k, 4)
        A = vAF + 16 * (k & 1)
        B = vBF + 8 * (k & 1)
        gk = [head[8 * k + i] + gaps[8 * k + i] for i in range(8)]
        body = [[] for _ in range(8)]
        if k + 1 < 40:
            for i, it in enumerate(frag_reads(k + 1)):
                body[i // 2].append(it)
        if k == 39:
            for j in range(4):
                body[2 + j // 2].append(("lds", f"ds_read_b128 {vr(64 + 4 * j, 4)}, v13 offset:{32 * j}", "cs0"))
            for j in range(4):
                dst = (4 + 4 * j) if j < 2 else (96 + 4 * (j - 2))
                body[4 + j // 2].append(("lds", f"ds_read_b128 {vr(dst, 4)}, v13 offset:{256 + 32 * j}", "cs0"))
        else:
            load = [sum(map(cost, gk[i])) + len(body[i]) + (1 if i in (3, 7) else 0) for i in range(8)]
            q = fillq if fillq else (tail_fill if (k >= 18 and tail_fill) else late_fill)
            if k == KCHK or (q is late_fill and (k < 10 or 29 <= k <= 34)):
                q = []
            if k == 29:
                assert not late_fill, len(late_fill)
            if k in (33, 34) and cs_fill:
                q = cs_fill
            cap = CAP + (1 if k < 9 else opt.get('capx', 1))
            for i in range(8):
                while q and load[i] + cost(q[0]) <= cap + (2 if cost(q[0]) > 1 else 0):
                    it = q.pop(0)
                    body[i].append(it)
                    load[i] += cost(it)
            if k == 2:
                assert nf_total - len(fillq) >= n_early, (nf_total - len(fillq), n_early)
            if k == 5:
                assert nf_total - len(fillq) >= n_a
            if k == 6:
                assert nf_total - len(fillq) >= n_a + 30
            if 8 * k + 8 >= gap_of("pks") - 1:
                assert nf_total - len(fillq) >= n_csum, (nf_total - len(fillq), n_csum)
            if k == 13:
                assert nf_total - len(fillq) >= n_early2
            if k == KCHK - 4:
                assert nf_total - len(fillq) >= n_mid
            if 8 * k + 8 > gap_of("stats") - 4:
                assert not fillq, (k, len(fillq))
        if ks == 3 and stage < 9:
            stamp(f"c_w{stage + 1}", cyc=True)
            g.wlg0()
            if stage == 1:
                g.wvm("OPT")
            g.wvm(("dma", stage + 1))
            e("s_barrier")
            stamp(f"c_b{stage + 1}", cyc=True)
        for i in range(8):
            t, b = divmod(i, 2)
            if k == 0:
                g.wlg(("A", k, t))
                g.wlg(("B", k, b))
            elif i == 0:
                g.wlg(("A", k, 1))
            elif i == 4:
                g.wlg(("A", k, 3))
            D = vACC + 16 * (2 * t + b)
            Cs = "0" if k == 0 else vr(D, 16)
            e(f"v_mfma_f32_32x32x16_bf16 {vr(D, 16)}, {vr(A + 4 * t, 4)}, {vr(B + 4 * b, 4)}, {Cs}")
            for it in head[8 * k + i]:
                if isinstance(it, tuple) and it[2] == "pks":
                    g.wlg("pk")
                g.do(it)
            for it in body[i] + gaps[8 * k + i]:
                g.do(it)
    assert not tail_fill and not cs_fill and not late_fill, len(late_fill)
    stamp("c_g1e", cyc=True)
    stamp("g1_loop_end", flush=True)

    def csu0(i):
        return (4 + i) if i < 8 else (96 + i - 8)
    def csu1(i):
        return (104 + i) if i < 8 else (28 + i - 8)
    tmps = [24, 26, 36, 38]
    g.wvm("stats")
    g.wlg("cs0")
    e(f"s_cmp_lg_u32 {sC}, 0")
    e("s_cbranch_scc1 L_epiB")
    vm_save, lg_save = list(g.vm), list(g.lg)
    for variant in range(2):
        if variant == 1:
            align()
            g.lab("L_epiB")
            g.vm, g.lg = list(vm_save), list(lg_save)
        align()
        for ap in range(2):
            for b in range(2):
                gs, us = (ap, 2 + ap) if variant == 0 else (2 + ap, ap)
                Gt = vACC + 16 * (2 * gs + b)
                Ut = vACC + 16 * (2 * us + b)
                st = vSTA + 4 * b
                if ap == 0 and b == 1:
                    for j in range(4):
                        g.lds(f"ds_read_b128 {vr(80 + 4 * j, 4)}, v14 offset:{32 * j}", "cs1")
                    for j in range(4):
                        dst = (104 + 4 * j) if j < 2 else (28 + 4 * (j - 2))
                        g.lds(f"ds_read_b128 {vr(dst, 4)}, v14 offset:{256 + 32 * j}", "cs1")
                if ap == 1 and b == 0:
                    g.wlg("cs1")
                    align()
                csg = (lambda i: 64 + i) if ap == 0 else (lambda i: 80 + i)
                csu = csu0 if ap == 0 else csu1
                for c in range(2):
                    O = 16 if c == 0 else 20
                    ps = range(4 * c, 4 * c + 4)
                    for p in ps:
                        e(f"v_pk_fma_f32 {vr(Gt + 2 * p, 2)}, {vr(csg(2 * p), 2)}, {vr(st, 2)}, {vr(Gt + 2 * p, 2)} op_sel_hi:[1,0,1]")
                    for p in ps:
                        e(f"v_pk_mul_f32 {vr(tmps[p % 4], 2)}, {vr(Gt + 2 * p, 2)}, {vr(Gt + 2 * p, 2)}")
                    for p in ps:
                        t = tmps[p % 4]
                        e(f"v_pk_fma_f32 {vr(t, 2)}, {vr(t, 2)}, {vr(st, 2)}, {vr(st + 2, 2)} op_sel:[0,1,0] op_sel_hi:[1,1,0]")
                    for p in ps:
                        t = tmps[p % 4]
                        e(f"v_pk_mul_f32 {vr(t, 2)}, {vr(t, 2)}, {vr(Gt + 2 * p, 2)}")
                    for p in ps:
                        t = tmps[p % 4]
                        e(f"v_exp_f32 v{t}, v{t}")
                        e(f"v_exp_f32 v{t + 1}, v{t + 1}")
                    for p in ps:
                        e(f"v_pk_fma_f32 {vr(Ut + 2 * p, 2)}, {vr(csu(2 * p), 2)}, {vr(st, 2)}, {vr(Ut + 2 * p, 2)} op_sel_hi:[1,0,1]")
                    for p in ps:
                        t = tmps[p % 4]
                        e(f"v_pk_fma_f32 {vr(t, 2)}, {vr(t, 2)}, {vr(st + 2, 2)}, {vr(st + 2, 2)} op_sel:[0,1,1] op_sel_hi:[1,1,1]")
                    for p in ps:
                        t = tmps[p % 4]
                        e(f"v_rcp_f32 v{t}, v{t}")
                        e(f"v_rcp_f32 v{t + 1}, v{t + 1}")
                    for p in ps:
                        e(f"v_pk_mul_f32 {vr(Gt + 2 * p, 2)}, {vr(Gt + 2 * p, 2)}, {vr(Ut + 2 * p, 2)}")
                    for p in ps:
                        e(f"v_pk_mul_f32 {vr(Gt + 2 * p, 2)}, {vr(Gt + 2 * p, 2)}, {vr(tmps[p % 4], 2)}")
                    for p in ps:
                        e(f"v_cvt_pk_bf16_f32 v{O + p - 4 * c}, v{Gt + 2 * p}, v{Gt + 2 * p + 1}")
                    g.vmem(f"buffer_store_dwordx4 {vr(O, 4)}, v{vHO + ap}, {SWS}, {sHS0 if b == 0 else sHS1} offen offset:{512 * c} sc1", "hst")
        if variant == 0:
            e("s_branch L_epi_done")
    g.lab("L_epi_done")
    stamp("c_epe", cyc=True)
    stamp("g1_epi_end", flush=True)
    e(f"s_mov_b32 {sMASK}, {sPEND}")

    def rb2():
        for i in range(22):
            e(f"v_accvgpr_read_b32 v{GA + i}, a{AST + 8 + i}")
        for i in range(2, 8):
            e(f"v_accvgpr_read_b32 v{AK + i}, a{AS2 + 1 + i}")
        e("v_mov_b32 v4, 0\nv_mov_b32 v5, 0\nv_mov_b32 v6, 0\nv_mov_b32 v7, 0")
        e(f"ds_write_b128 v{vZ}, {vr(4, 4)}")
    rb2()

    Greg = [[224 + 4 * i for i in range(8)], [192 + 4 * i for i in range(8)]]
    FB = [128, 160]
    CACC = 64
    HRING = [16 + 4 * i for i in range(12)] + [104 + 4 * i for i in range(3)] + [128 + 4 * i for i in range(26)]
    NE = opt.get("ne", 8)
    P2 = opt.get("p2", 40)
    NB = len(HRING)
    YS, DK = 100, 101

    def hload(i):
        k, st = divmod(i, 14)
        r = HRING[i % NB]
        if st == 13:
            return [f"s_cmp_lt_u32 {sW}, 2\ns_cselect_b32 {sT4}, s{sG2 + 4 * k + 3}, {OOB}",
                    ("vm", f"buffer_load_dwordx4 {vr(r, 4)}, v1, {SWS}, {sT4} offen offset:1024 sc1", ("h", i))]
        return [("vm", f"buffer_load_dwordx4 {vr(r, 4)}, v1, {SWS}, s{sG2 + 4 * k + st // 4} offen offset:{(st % 4) * 1024} sc1", ("h", i))]

    def conv(last):
        tag = "L" if last else "E"
        g.lab("L_conv_last" if last else "L_conv_early")
        g.vm = ["u", "u"]
        g.lg = []
        def wd_e(phi):
            its = wd_load(phi)
            if len(its) > 1:
                its.insert(1, f"s_or_b32 {sT5}, {sT5}, {sK0}")
            return its
        if last:
            wq = [[f"s_add_u32 m0, {sXT}, {1024 * kk}", "s_nop 0",
                   ("vm", f"buffer_load_dwordx4 v{12 + kk}, {SX}, {sXO} offen lds", ("xt", 0))] for kk in range(3)]
            wq += [wd_load(phi) for phi in range(P1, 70)]
            for i7 in range(7):
                e(f"v_accvgpr_read_b32 v{9 + i7}, a{AS2 + 14 + i7}")
        else:
            wq = [wd_e(phi) for phi in range(0, P1)]
            g.vmem(f"buffer_load_dwordx4 {vr(vFL, 4)}, v{vFA + 1}, {SWS}, 0 offen sc1", "wfp")
        def wdl(n=1):
            for _ in range(n):
                if wq:
                    for it in wq.pop(0):
                        g.do(it)
        EG = 128
        for ch in range(2):
            for k in range(11):
                g.lds(f"ds_read_b32 v{EG + 12 * ch + k}, v{GA + 11 * ch + k}", ("eg", ch))
        g.lds(f"ds_read_b64 {vr(YS, 2)}, v{vYS} offset:{YSO}", "ysc")
        if last:
            wdl(2)
        g.wvm("u")
        g.lds(f"ds_write_b128 v{vUW}, {vr(vU, 4)}", "uw")
        g.lds(f"ds_write_b128 v{vUW}, {vr(vU + 4, 4)} offset:512", "uw")
        if last:
            e(f"s_or_b32 {sT1}, s2, {sW}")
            e(f"s_cmp_eq_u32 {sT1}, 0")
            e(f"s_cselect_b32 {sT1}, {EPOCH}, {OOB}")
            flag_store(sT1)
        EO = 64
        for ch in range(2):
            g.wlg(("eg", ch))
            align()
            for s in range(4):
                o = EO + 16 * ch + 4 * s
                for j in range(4):
                    e(f"v_cvt_pk_f16_f32 v{o + j}, v{EG + 12 * ch + s + 2 * j}, v{EG + 12 * ch + s + 2 * j + 1}")
                g.lds(f"ds_write_b128 v{vRW}, {vr(o, 4)} offset:{s * RCS + 1024 * ch}", "rw")
                if last and s % 2 == 1:
                    wdl()
            if last and ch == opt.get("hch", 1):
                e(f"s_waitcnt vmcnt({len(g.vm)})")
                flag_store(sMASK)
        if not last:
            e("s_waitcnt vmcnt(0)")
            flag_store(sMASK)
        if last:
            wdl()
        else:
            for x in check4(vFL):
                e(x)
            e("s_nop 0")
            e("s_cmp_eq_u64 vcc, 0")
            e(f"s_cselect_b32 {sK0}, 0, {OOB}")
        extra = [f"v_accvgpr_read_b32 v{4 + i}, a{AS2 + 9 + i}" for i in range(5)]
        extra += [f"s_lshl_b32 {sT1}, {sCP}, 1", f"s_add_u32 {sT1}, {sT1}, {sC}", f"s_lshl_b32 {sT1}, {sT1}, 12",
                  f"s_lshl_b32 {sT3}, {sRHO}, 11", f"s_add_u32 {sT1}, {sT1}, {sT3}", f"s_add_u32 {sHS0}, {sT1}, {ST}",
                  f"s_lshl_b32 {sT2}, {sCP}, 5", f"s_add_u32 {sT2}, {sT2}, {sW}",
                  f"s_lshl_b32 {sT2}, {sT2}, 2", f"s_add_u32 {sPEND}, {sT2}, {SF}"]
        if last:
            extra += [f"v_accvgpr_read_b32 v{vFA + i}, a{AS2 + 21 + i}" for i in range(2)]
            extra += ["v_min_u32 v3, 53, v0", "v_lshlrev_b32 v3, 7, v3",
                      f"s_lshl_b32 {sT0}, {sDT}, 2", f"s_add_u32 {sT0}, {sT0}, {sW}", f"s_mul_i32 {sT0}, {sT0}, {54 * 128}",
                      f"s_mul_i32 {sHS1}, {sLT}, {4 * 54 * 1024}", f"s_add_u32 {sHS1}, {sHS1}, {sT0}", f"s_add_u32 {sHS1}, {sHS1}, {HB}"]
        g.wlg0()
        e("s_barrier")
        stamp("c_cs" + tag, cyc=True)
        stamp("conv_start" + tag)

        def cls_reads(dl):
            bf = dl & 1
            out = []
            for s in range(8):
                out.append(("lds", f"ds_read_b128 {vr(Greg[bf][s], 4)}, v{vGB} offset:{512 * s + 64 * (3 - dl)}", ("G", dl, s)))
                off = 64 * (59 - dl - 8 * s)
                out.append(("lds", f"ds_read_b64 {vr(FB[bf] + 4 * s, 2)}, v{vFB} offset:{off}", ("F", dl, s)))
                out.append(("lds", f"ds_read_b64 {vr(FB[bf] + 4 * s + 2, 2)}, v{vFB} offset:{off + 8}", ("F", dl, s)))
            return out
        for it in cls_reads(0):
            g.do(it)
        order = sorted([(s, gg) for s in range(8) for gg in range(8) if s + gg < 8], key=lambda x: (max(x), x[0] + x[1]))
        seen = set()
        hq = []
        US, UD = 2, 96
        for dl in range(4):
            bf = dl & 1
            nxt = cls_reads(dl + 1) if dl < 3 else []
            if dl == 3:
                nxt = [("lds", f"ds_read_b64 {vr(128 + 2 * tt, 2)}, v6 offset:{512 * tt}", "us") for tt in range(4)]
                nxt += [None] * 6 + [("wlg", "us")]
                for tt in range(4):
                    for i in range(4):
                        src = 128 + 2 * tt + (i >> 1)
                        nxt.append(f"v_fma_mix_f32 v{136 + 4 * tt + i}, v{src}, v{DK}, 0 op_sel:[{i & 1},0,0] op_sel_hi:[1,0,0]")
            if dl > 0:
                g.wlg(("F", dl, 7))
            for mi, (s, gg) in enumerate(order):
                t = s + gg
                if dl == 0:
                    g.wlg(("G", dl, gg))
                    g.wlg(("F", dl, s))
                Cs = "0" if t not in seen else vr(CACC + 4 * t, 4)
                seen.add(t)
                e(f"v_mfma_f32_16x16x32_f16 {vr(CACC + 4 * t, 4)}, {vr(FB[bf] + 4 * s, 4)}, {vr(Greg[bf][gg], 4)}, {Cs}")
                start = 8 if dl == 0 else 1
                if mi >= start and nxt:
                    it = nxt.pop(0)
                    if it is not None:
                        g.do(it)
                elif extra:
                    g.do(extra.pop(0))
                if mi % 2 == 1 and extra and mi >= start:
                    g.do(extra.pop(0))
                mc = 36 * dl + mi
                if mc % 4 == 2:
                    nphi = wq[0][-1][2][1] if wq else 0
                    if last and mc == opt.get("hfp", 118):
                        assert not extra
                        g.vmem(f"buffer_load_dword v{vFL}, v{vFA}, {SWS}, 0 offen sc1", "hfp")
                    elif wq and not (last and extra and nphi >= 48) and not (nphi >= 64 and dl < 3):
                        wdl()
            assert not nxt, len(nxt)
        while wq and not last:
            wdl()
        assert not wq and not extra, (len(wq), len(extra))
        def hl(n=1):
            for _ in range(n):
                if hq:
                    for it in hq.pop(0):
                        g.do(it)
        stamp("c_ce" + tag, cyc=True)
        stamp("conv_end" + tag)
        lr1 = g.newlab("Lfin1")
        lfd = g.newlab("Lfind")
        e(f"s_cmp_lg_u32 {sRHO}, 0")
        e(f"s_cbranch_scc1 {lr1}")
        lg_save, pst_save, sf_save = list(g.lg), list(g.pst), list(g.sfree)
        for rho in range(2):
            if rho == 1:
                g.lab(lr1)
                g.lg, g.pst, g.sfree = list(lg_save), list(pst_save), list(sf_save)
            own = CACC + 16 * rho
            oth = CACC + 16 * (1 - rho)
            g.nop(6)
            for tt in range(4):
                g.lds(f"ds_write_b128 v4, {vr(oth + 4 * tt, 4)} offset:{PB + 1024 * tt}", "pw")
            align()
            for tt in range(4):
                for i in range(4):
                    e(f"v_fma_f32 v{136 + 4 * tt + i}, v{own + 4 * tt + i}, v{YS}, v{136 + 4 * tt + i}")
            if rho == 0:
                e(f"s_branch {lfd}")
        g.lab(lfd)
        if last:
            g.wvm("hfp")
            e(f"v_cmp_ne_u32 vcc, v{vTAG}, v{vFL}")
            e(f"s_lshl_b32 {sT0}, {sW}, 2")
            e(f"s_add_u32 {sT0}, {sT0}, {CSB}")
            e("s_or_b32 s55, vcc_lo, vcc_hi")
            e(f"v_mov_b32 v{vFL + 1}, {sT0}")
            e(f"v_mov_b32 v{vFL}, s55")
            g.lds(f"ds_write_b32 v{vFL + 1}, v{vFL}", "rdy")
            e(f"v_mov_b32 v{vFL + 4}, {CSB}")
        g.wlg0()
        e("s_barrier")
        if last:
            g.lds(f"ds_read_b128 {vr(vFL, 4)}, v{vFL + 4}", "rdy")
        for tt in range(4):
            g.lds(f"ds_read_b128 {vr(152 + 4 * tt, 4)}, v5 offset:{PB + 1024 * tt}", ("pr", tt))
        if last:
            g.wlg("rdy")
            e(f"v_or3_b32 v{vFL}, v{vFL}, v{vFL + 1}, v{vFL + 2}")
            e(f"v_or_b32 v{vFL}, v{vFL}, v{vFL + 3}")
            e(f"v_cmp_ne_u32 vcc, 0, v{vFL}")
            e("s_nop 0")
            e("s_cmp_eq_u64 vcc, 0")
            e(f"s_cselect_b32 {sK1}, 1, 0")
            e(f"s_cselect_b32 {sT0}, 0, {OOB}")
            hq.append([f"s_or_b32 {sT4}, {sHS1}, {sT0}", ("vm", f"buffer_load_dword v{vFL + 4}, v3, {SWS}, {sT4} offen sc1", "ht")])
            for i in range(NE):
                pre_ = [f"s_or_b32 {sT4}, s{sG2 + i // 4}, {sT0}"] if i % 4 == 0 else []
                hq.append(pre_ + [("vm", f"buffer_load_dwordx4 {vr(HRING[i], 4)}, v1, {SWS}, {sT4} offen offset:{(i % 4) * 1024} sc1", ("he", i))])
        hl(2)
        for tt in range(4):
            g.wlg(("pr", tt))
            for i in range(4):
                e(f"v_fmac_f32 v{136 + 4 * tt + i}, v{152 + 4 * tt + i}, v{YS}")
            for h in range(2):
                e(f"v_cvt_pk_bf16_f32 v{128 + 2 * tt + h}, v{136 + 4 * tt + 2 * h}, v{136 + 4 * tt + 2 * h + 1}")
            g.lds(f"ds_write_b64 v7, {vr(128 + 2 * tt, 2)} offset:{512 * tt}", "sw")
            hl(1)
        hl(1)
        g.wlg0()
        for j in range(2):
            g.lds(f"ds_read_b128 {vr(88 + 4 * j, 4)}, v8 offset:{1024 * j}", ("sr", j))
        hl(2)
        assert not hq
        if not last:
            e(f"s_add_u32 {sCP}, {sCP}, 40")
            for i in range(22):
                e(f"v_add_u32 v{GA + i}, {2 * TC}, v{GA + i}")
            e(f"v_add_u32 v{vYS}, {2 * TC}, v{vYS}")
        if last:
            e(f"s_cmp_lg_u32 {sK1}, 0")
            e("s_cbranch_scc1 L_hready")
            poll_block(vFA, False, sleep=opt.get("hsleep", 4))
            e("s_barrier")
            e(f"buffer_load_dword v{vFL + 4}, v3, {SWS}, {sHS1} offen sc1")
            for i in range(NE):
                for it in hload(i):
                    e(it[1] if isinstance(it, tuple) else it)
            g.lab("L_hready")
        for j in range(2):
            g.wlg(("sr", j))
            g.vmem(f"buffer_store_dwordx4 {vr(88 + 4 * j, 4)}, v1, {SWS}, {sHS0} offen offset:{1024 * j} sc1", "sst")
        if not last:
            for it in u_loads(sCP, 2):
                g.do(it)
            e(f"s_mov_b32 {sMASK}, {sPEND}")
            e(f"s_sub_u32 {sRND}, {sRND}, 1")
            e(f"s_cmp_lg_u32 {sRND}, 1")
            e("s_cbranch_scc1 L_conv_early")

    conv(True)

    stamp("c_g2s", cyc=True)
    stamp("g2_start")
    g.vm = [("h", i) for i in range(NE)] + [("sst",), ("sst",)]
    AC = [64, 84]
    lateq = [hload(i) for i in range(NE, NB)]
    fq = ["v_lshrrev_b32 v8, 3, v0", "v_lshlrev_b32 v8, 12, v8", "v_and_b32 v2, 7, v0", "v_lshl_add_u32 v8, v2, 4, v8",
          f"s_mul_i32 {sT1}, {sW}, 15360", f"v_add_u32 v2, {sT1}, v1",
          "v_lshrrev_b32 v3, 2, v0", "v_lshlrev_b32 v3, 7, v3", "v_and_b32 v4, 3, v0", "v_lshl_add_u32 v3, v4, 3, v3",
          f"s_lshl_b32 {sT1}, {sW}, 5", f"s_add_u32 {sT1}, {sT1}, {STB}", f"v_add_u32 v3, {sT1}, v3",
          "v_and_b32 v4, 15, v0", "v_mul_u32_u24 v4, 160, v4", "v_lshrrev_b32 v5, 4, v0", "v_lshl_add_u32 v4, v5, 3, v4",
          f"v_add_u32 v4, {sXT}, v4", f"v_add_u32 v5, {sXT}, v1",
          f"s_lshl_b32 {sT2}, {sW}, 10", f"s_add_u32 {sHS1}, {sT2}, {STB}"]
    SFP = opt.get("sfp", 30)
    BAR = opt.get("bar", 46)
    P0, P1r, P2r, XR, XU, SR, SU = 128, 148, 168, 188, 198, 218, 148
    xq = [f"s_mov_b32 {sMASK}, 0xffff0000", f"s_mov_b32 {sT2}, {hex(f2u(-LOG2E))}"]
    xq += [("lds", f"ds_read_b64 {vr(XR + 2 * j, 2)}, v4 offset:{32 * j}", "x") for j in range(5)] + [None, None, ("wlg", "x")]
    for p in range(10):
        xq += [f"v_lshlrev_b32 v{XU + 2 * p}, 16, v{XR + p}", f"v_and_b32 v{XU + 2 * p + 1}, {sMASK}, v{XR + p}"]
    eq = [("lds", f"ds_read_b128 {vr(P0 + 4 * q, 4)}, v2 offset:{EXB + 1024 * q}", ("exr", q // 5)) for q in range(15)]
    eq += [("lds", f"ds_read_b64_tr_b16 {vr(SR + 2 * j, 2)}, v3 offset:{2048 * j}", "s") for j in range(5)]
    eq += [("wlg", ("exr", 1))] + [f"v_pk_add_f32 {vr(P0 + 2 * p, 2)}, {vr(P0 + 2 * p, 2)}, {vr(P1r + 2 * p, 2)}" for p in range(10)]
    eq += [("wlg", "s")] + [f"v_pk_add_f32 {vr(P0 + 2 * p, 2)}, {vr(P0 + 2 * p, 2)}, {vr(P2r + 2 * p, 2)}" for p in range(10)]
    for p in range(10):
        eq += [f"v_lshlrev_b32 v{SU + 2 * p}, 16, v{SR + p}", f"v_and_b32 v{SU + 2 * p + 1}, {sMASK}, v{SR + p}"]
    for i in range(56):
        k, st = divmod(i, 14)
        A0 = AC[k & 1]
        g.wvm(("h", i))
        r = HRING[i % NB]
        extra = [[] for _ in range(5)]
        if st == 1 and k >= 1:
            pa = AC[(k - 1) & 1]
            for j in range(5):
                extra[j].append(("lds", f"ds_write_b128 v{9 + k - 1}, {vr(pa + 4 * j, 4)} offset:{1024 * j}", "exw"))
        for j in ((i % 4,) if i % 4 else (0, 4)):
            if lateq:
                extra[j] += lateq.pop(0)
        if i == NE:
            def sflag():
                g.wvm(("sst",))
                flag_store(sPEND)
            extra[1].append(sflag)
        if 18 <= i < 26:
            for j in (1, 3, 4):
                if fq:
                    extra[j].append(fq.pop(0))
        if i == SFP:
            extra[0].append(("vm", f"buffer_load_dwordx4 {vr(vFL, 4)}, v{vFA + 1}, {SWS}, 0 offen sc1", ("sfp",)))
        if i == SFP + 6:
            c4 = check4(vFL)
            extra[0] += [("wvm", ("sfp",))] + c4[0:2]
            extra[1] += c4[2:4]
            extra[2] += c4[4:6]
            def sfchk():
                sl = g.newlab("Lslow")
                bk = g.newlab("Lback")
                e(c4[6])
                e(f"s_cbranch_vccnz {sl}")
                g.lab(bk)
                g.slow.append((sl, bk, [(vFA + 1, True)]))
            extra[3].append(sfchk)
        if i == SFP + 7:
            extra[0] += [f"s_mov_b32 m0, {sHS1}"]
            extra[1] += [("vm", f"buffer_load_dwordx4 v8, {SWS}, {sSTO} offen sc1 lds", ("stl",)), f"s_add_u32 m0, {sHS1}, 4096"]
            extra[2] += [f"s_add_u32 {sT3}, {sSTO}, {32 * 4096}"]
            extra[3] += [("vm", f"buffer_load_dwordx4 v8, {SWS}, {sT3} offen sc1 lds", ("stl",)), f"s_add_u32 m0, {sHS1}, 8192"]
            extra[4] += [f"s_add_u32 {sT3}, {sSTO}, {64 * 4096}", f"s_cmp_lt_u32 {sW}, 2\ns_cselect_b32 {sT3}, {sT3}, {OOB}"]
        if i == SFP + 8:
            extra[0] += [("vm", f"buffer_load_dwordx4 v8, {SWS}, {sT3} offen sc1 lds", ("stl",))]
        if 41 <= i and xq:
            for j in range(5):
                for _ in range(2 if (st != 1 and j % 2 == 0) else 1):
                    if xq:
                        it = xq.pop(0)
                        if it is not None:
                            extra[j].append(it)
        if i == BAR:
            assert not xq
            g.wvm(("stl",))
            g.wlg0()
            e("s_barrier")
        if i >= BAR:
            for j in range(5):
                for _ in range(2 if j != 4 else 1):
                    if eq:
                        extra[j].append(eq.pop(0))
        for j in range(5):
            phi = st * 5 + j
            src = ar(4 * phi, 4) if phi < 64 else vr(vWDV + 4 * (phi - 64), 4)
            Cs = "0" if st == 0 else vr(A0 + 4 * j, 4)
            e(f"v_mfma_f32_16x16x32_bf16 {vr(A0 + 4 * j, 4)}, {src}, {vr(r, 4)}, {Cs}")
            for it in extra[j]:
                g.do(it)
        if i + NB < 56:
            lateq.append(hload(i + NB))
    assert not lateq and not fq
    stamp("c_g2e", cyc=True)
    stamp("g2_loop_end")
    for it in eq:
        g.do(it)
    A0 = AC[1]
    E_ = 168
    e(f"s_mov_b32 {sT3}, {sT2}")
    g.nop(6)
    align()
    for p in range(10):
        e(f"v_pk_add_f32 {vr(A0 + 2 * p, 2)}, {vr(A0 + 2 * p, 2)}, {vr(P0 + 2 * p, 2)}")
    for p in range(10):
        e(f"v_pk_mul_f32 {vr(E_ + 2 * p, 2)}, {vr(A0 + 2 * p, 2)}, s[56:57]")
    for p in range(20):
        e(f"v_exp_f32 v{E_ + p}, v{E_ + p}")
    for p in range(10):
        e(f"v_pk_mul_f32 {vr(A0 + 2 * p, 2)}, {vr(A0 + 2 * p, 2)}, {vr(SU + 2 * p, 2)}")
    for p in range(10):
        e(f"v_pk_add_f32 {vr(E_ + 2 * p, 2)}, {vr(E_ + 2 * p, 2)}, 1.0 op_sel_hi:[1,0]")
    for p in range(20):
        e(f"v_rcp_f32 v{E_ + p}, v{E_ + p}")
    e("s_nop 0\ns_nop 0")
    for p in range(10):
        e(f"v_pk_fma_f32 {vr(A0 + 2 * p, 2)}, {vr(A0 + 2 * p, 2)}, {vr(E_ + 2 * p, 2)}, {vr(XU + 2 * p, 2)}")
    for p in range(10):
        e(f"v_cvt_pk_bf16_f32 v{188 + p}, v{A0 + 2 * p}, v{A0 + 2 * p + 1}")
        if p % 2 == 1:
            g.lds(f"ds_write_b64 v4, {vr(188 + p - 1, 2)} offset:{16 * (p - 1)}", "ow")
    g.wlg0()
    for kk in range(3):
        g.lds(f"ds_read_b128 {vr(128 + 4 * kk, 4)}, v5 offset:{1024 * kk}", ("or", kk))
    osc = opt.get("outsc", "")
    for kk in range(3):
        g.wlg(("or", kk))
        g.vmem(f"buffer_store_dwordx4 {vr(128 + 4 * kk, 4)}, v{(12, 13, 15)[kk]}, {SOUT}, {sXO} offen{osc}", "out")
    if diag:
        g.wvm0()
        stamp("end", flush=True)
        if opt.get("dbg"):
            e("s_load_dwordx2 s[88:89], s[100:101], 96")
            e("v_readlane_b32 s92, v127, 60")
            e("s_mov_b32 s90, 64\ns_mov_b32 s91, 0x20000")
            e("v_writelane_b32 v127, s92, 1")
            e("s_not_b32 s92, s92")
            e("v_writelane_b32 v127, s92, 0")
            e("v_lshlrev_b32 v2, 2, v0")
            e("s_waitcnt lgkmcnt(0)")
            e("buffer_atomic_umax v127, v2, s[88:91], 0 offen")
            e("s_endpgm")
        e(f"s_mov_b32 s88, s16\ns_mov_b32 s89, s17\ns_mov_b32 s90, 0x1000000\ns_mov_b32 s91, 0x20000")
        e(f"s_lshl_b32 {sT1}, s2, 2\ns_add_u32 {sT1}, {sT1}, {sW}\ns_lshl_b32 {sT1}, {sT1}, 8\ns_add_u32 {sT1}, {sT1}, {TS_BASE}")
        e("v_lshlrev_b32 v2, 2, v0")
        e(f"buffer_store_dword v127, v2, s[88:91], {sT1} offen")
    g.lab("L_end")
    e("s_endpgm")
    e(".p2align 6")
    g.lab("L_spare")
    g.vm = vm0
    g.lg = []
    g.pst = []
    g.sfree = [92] if opt.get('dbg') else [92, 100]
    if diag:
        e("v_mov_b32 v127, 0")
        e("v_writelane_b32 v127, s92, 60")
    for q in range(5):
        g.vmem(f"buffer_load_dwordx2 {vr(LX + 2 * q, 2)}, v2, {SX}, {sT0} offen offset:{256 * q}", "ln")
    e("s_add_u32 s66, s88, L_spare - L_pc + 256")
    e("s_addc_u32 s67, s89, 0")
    e("s_mov_b32 s68, s66\ns_mov_b32 s69, s67\ns_mov_b32 s70, 0x2000\ns_mov_b32 s71, 0x20000")
    e("v_and_b32 v10, 15, v0")
    e(f"s_lshl_b32 {sT1}, {sW}, 11")
    e("v_lshlrev_b32 v10, 7, v10")
    g.vmem(f"buffer_load_dword v{vFL + 4}, v10, s[68:71], {sT1} offen", "cpf")
    rest_setup()
    rest_loads()
    for r3 in range(3):
        run_items(param_units(r3))
    table_code(TB)
    aE, aL2 = addr_items(XYB_SP, TB)
    run_items(aE + aL2 + gather_items(TB))
    g.wvm("ln")
    stamp("ln_data")
    ln_code()
    ln_tail()
    stamp("ln_done", flush=True)
    e(f"s_lshl_b32 {sMASK}, s2, 2")
    e(f"s_add_u32 {sMASK}, {sMASK}, {LNF}")
    e(f"s_cmp_eq_u32 {sW}, 0")
    e(f"s_cselect_b32 {sMASK}, {sMASK}, {OOB}")
    e(f"v_add_u32 v{vFA}, {LNF}, v1")
    e("v_min_u32 v2, 53, v0")
    e(f"s_lshr_b32 {sF0}, {sDT}, 1")
    e(f"s_lshl_b32 {sF0}, {sF0}, 10")
    e(f"s_add_u32 {sF0}, {sF0}, {WF}")
    e(f"v_lshl_add_u32 v{vFA + 1}, v2, 4, {sF0}")
    e(f"s_mov_b32 {sK1}, {sRND}")
    rb1()
    g.wvm("par")
    tag_code()
    g.lab("L_kgen")
    g.vm = []
    kgen("s", [], 1)
    g.wall()
    e("s_barrier")
    flag_store(sMASK)
    e(f"s_mov_b32 {sMASK}, {OOB}")
    kgen_mfma()
    e(f"s_sub_u32 {sK1}, {sK1}, 1")
    e(f"s_cmp_eq_u32 {sK1}, 0")
    e("s_cbranch_scc1 L_kdone")
    e(f"s_add_u32 {sKR}, {sKR}, {2 * TC}")
    for i in range(8):
        e(f"v_add_u32 v{SC + i}, {2 * TC}, v{SC + i}")
    for i in range(6):
        e(f"v_accvgpr_mov_b32 a{APAR + i}, a{APAR + 8 + i}")
        e(f"v_accvgpr_mov_b32 a{APAR + 8 + i}, a{APAR + 16 + i}")
    e("s_waitcnt lgkmcnt(0)")
    e("s_barrier")
    e("s_branch L_kgen")
    g.lab("L_kdone")
    stamp("kdone", flush=True)
    e(f"s_cmp_lg_u32 {sW}, 0")
    e("s_cbranch_scc1 L_sp_polled")
    poll_block(vFA, True, sleep=16)
    g.lab("L_sp_polled")
    e("s_waitcnt lgkmcnt(0)")
    e("s_barrier")
    stamp("sp_lnf", flush=True)
    run_items(u_loads(sCP, 2))
    rb2()
    conv(False)
    e(f"s_cmp_eq_u32 {sK0}, 0")
    e("s_cbranch_scc1 L_conv_last")
    poll_block(vFA + 1, True, sleep=24)
    for phi in range(P1):
        for it in wd_load(phi):
            e(it[1] if isinstance(it, tuple) else it)
    e("s_branch L_conv_last")
    for (sl, bk, lst) in g.slow:
        g.lab(sl)
        g.sfree = [88, 90]
        g.pst = []
        if diag:
            e("s_waitcnt lgkmcnt(0)")
        for pi, (av, n4) in enumerate(lst):
            stamp(f"slow{sl[-2:]}_{pi}", flush=True)
            poll_block(av, n4, sleep=opt.get("ssleep", 20))
        stamp(f"slow{sl[-2:]}_x", flush=True)
        e(f"s_branch {bk}")
    g.lab("L_codeend")

    hdr = [f"; @launch grid=(256,1,1) block=(256,1,1) lds={LDS_TOTAL}",
           '.amdgcn_target "amdgcn-amd-amdhsa--gfx950"', ".text", f".globl {KNAME}", ".p2align 8",
           f".type {KNAME},@function", f"{KNAME}:"]
    ftr = ['.section .rodata,"a"', ".p2align 6", f".amdhsa_kernel {KNAME}",
           "  .amdhsa_next_free_vgpr 512", "  .amdhsa_next_free_sgpr 102", "  .amdhsa_accum_offset 256",
           "  .amdhsa_group_segment_fixed_size 0", "  .amdhsa_kernarg_size 112", "  .amdhsa_user_sgpr_count 2",
           "  .amdhsa_user_sgpr_kernarg_segment_ptr 1", "  .amdhsa_system_sgpr_workgroup_id_x 1",
           "  .amdhsa_float_denorm_mode_32 3",
           ".end_amdhsa_kernel"]
    txt = "\n".join(hdr + g.L + ftr) + "\n"
    if diag:
        txt = txt + "; STAMPS " + ",".join(ts_names) + "\n"
    return txt


if __name__ == "__main__":
    diag = "--diag" in sys.argv
    opt = {}
    for a in sys.argv[1:]:
        if a.startswith("--") and "=" in a:
            k, v = a[2:].split("=")
            opt[k] = int(v) if v.lstrip("-").isdigit() else v.replace("_", " ")
    out = [a for a in sys.argv[1:] if not a.startswith("--")]
    s = gen(diag=diag, opt=opt)
    path = out[0] if out else "recurrent_scan__ssm_conv_s4d__geglu_ffn__prompt.s"
    open(path, "w").write(s)
    print("wrote", path, len(s), "bytes", s.count("\n"), "lines")
```

```python
import sys, struct, math

KNAME = "recurrent_scan__ssm_conv_s4d__geglu_ffn__prompt_kernel"

EPOCH = 0x0
LNF = 0x1000
WF = 0x4400
STATS = 0x8000
XNT = 0x10000
ST = 0x290000
WDP = 0x510000
HB = 0x730000
CSP = 0xDF0000
HF = 0xE26000
SF = 0xE46000
WS_END = 0xE50000
TS_BASE = 0xE60000

SLOT = 49152
MISC = 147456
LNP = 1344
CSB = MISC + 10752 + 5120
XYP = 544
YR0 = 21
XYC = 53 * XYP
XYB_SP, XYB_G1 = 0, 2 * SLOT
LNB = 2 * SLOT
TB_G1 = 157696
PB = 0
UBASE = 69632
UC = 4608
RB = UBASE + 2 * UC
RCS = 4160
RC = 4 * RCS
TC = 2624
TB = MISC
YSO = 650 * 4
SOB = 16384
EXB = 24576
XTB = 112128
STB = XTB + 12288
LDS_TOTAL = 163840
OOB = 0x7fff0000

def f2u(x):
    return struct.unpack("<I", struct.pack("<f", x))[0]

LOG2E = 1.4426950408889634
C0 = -2.0 * math.sqrt(2.0 / math.pi) * LOG2E
C1 = C0 * 0.044715


class G:
    def __init__(self):
        self.L = []
        self.vm = []
        self.lg = []
        self.nlab = 0
        self.slow = []
        self.skip = set()
        self.pst = []
        self.sfree = [92, 100]

    def flush_stamps(self):
        for (sr, lane) in self.pst:
            self.e(f"v_writelane_b32 v127, s{sr}, {lane}")
            self.sfree.append(sr)
        self.pst = []

    def e(self, s):
        for ln in s.split("\n"):
            self.L.append("    " + ln)

    def lab(self, name):
        self.L.append(name + ":")

    def newlab(self, p="L"):
        self.nlab += 1
        return f"{p}_{self.nlab}"

    def vmem(self, s, tag=None):
        if tag in self.skip:
            return
        self.e(s)
        self.vm.append(tag)

    def lds(self, s, tag=None):
        self.e(s)
        self.lg.append(tag)

    def _n(self, q, tag):
        idx = max(i for i, t in enumerate(q) if t == tag)
        return idx, sum(1 for t in q[idx + 1:] if t != "OPT")

    def wvm(self, tag):
        if tag not in self.vm:
            return
        idx, n = self._n(self.vm, tag)
        self.e(f"s_waitcnt vmcnt({min(n, 63)})")
        self.vm = self.vm[idx + 1:]

    def wlg(self, tag):
        if tag not in self.lg:
            return
        idx, n = self._n(self.lg, tag)
        self.e(f"s_waitcnt lgkmcnt({min(n, 15)})")
        self.lg = self.lg[idx + 1:]

    def wvm0(self):
        self.e("s_waitcnt vmcnt(0)")
        self.vm = []

    def wlg0(self):
        self.e("s_waitcnt lgkmcnt(0)")
        self.lg = []
        self.flush_stamps()

    def wall(self):
        self.e("s_waitcnt vmcnt(0) lgkmcnt(0)")
        self.vm = []
        self.lg = []
        self.flush_stamps()

    def nop(self, n):
        while n > 0:
            k = min(n, 16)
            self.e(f"s_nop {k - 1}")
            n -= k

    def do(self, item):
        if callable(item):
            item()
        elif isinstance(item, tuple):
            kind = item[0]
            if kind == "vm":
                self.vmem(item[1], item[2])
            elif kind == "lds":
                self.lds(item[1], item[2])
            elif kind == "wvm":
                self.wvm(item[1])
            elif kind == "wlg":
                self.wlg(item[1])
            else:
                raise ValueError(kind)
        else:
            self.e(item)


def vr(a, n):
    return f"v[{a}:{a + n - 1}]"


def ar(a, n):
    return f"a[{a}:{a + n - 1}]"


SX, SWG, SWU, SWS, SOUT, SWD = "s[4:7]", "s[8:11]", "s[12:15]", "s[16:19]", "s[20:23]", "s[24:27]"
P_LAR, P_AIM, P_CRE, P_CIM, P_LDT, P_DSK = "s[28:29]", "s[30:31]", "s[32:33]", "s[34:35]", "s[36:37]", "s[38:39]"
sW, sTAG, sM, sFT, sISG1, sCP, sRND, sSP = "s40", "s41", "s42", "s43", "s44", "s45", "s46", "s47"
sXCD, sQ = "s48", "s49"
sXM0, sWM0, sXS, sWSO = "s50", "s51", "s52", "s53"
sT0, sT1, sT2, sT3, sT4, sT5 = "s54", "s55", "s56", "s57", "s58", "s59"
sMASK, sCNT = "s60", "s61"
sRHO, sC = "s62", "s63"
sHS0, sHS1 = "s64", "s65"
sG2 = 66
STW = "s[96:99]"
sF0, sF1, sF2 = "s0", "s1", "s3"
sLT, sDT = "s82", "s83"
sWDS = "s84"
sPEND, sXO = "s85", "s86"
sKR = "s87"
sXT, sSTO = "s94", "s95"
sK0, sK1 = "s96", "s97"

vT = 2
vXO = 16
vWO = 24
vBA = 26
vAA = 34
vCS = 42
vHO = 44
vTO = 46
vSTA = 48
vU = 56
vAF = 64
vBF = 96
vPAR = 112
vFA = 118
vEP = 120
vFL = 122
vACC = 128
SC = 224
GA = 24
AST = 224
AS2 = 192
PKB = MISC
vWDV = 232


def gen(diag=False, opt=None):
    opt = opt or {}
    TOUCH = opt.get("touch", 0)
    P1 = opt.get("p1", 32)
    KCHK = opt.get("kchk", 29)
    g = G()
    e = g.e
    if opt.get('nolnst'):
        g.skip.add('lnst')
    ts_names = []
    vTAG, vL0 = vEP, vEP + 1

    def stamp(name, cyc=False, flush=False):
        if not diag:
            return
        if opt.get("dbg"):
            sel = ["x0", "x1", "par_data", "kdone", "g1_start", "g1_loop_end", "g1_epi_end", "conv_startL", "conv_endL", "g2_start", "g2_loop_end", "end", "sp_lnf", "conv_startE"]
            if name not in sel:
                return
            ts_names[:] = sel
        if name not in ts_names:
            ts_names.append(name)
        i = ts_names.index(name)
        if not g.sfree:
            g.wlg0()
        sr = g.sfree.pop(0)
        e(f"{'s_memtime' if cyc else 's_memrealtime'} s[{sr}:{sr + 1}]")
        g.pst.append((sr, i))
        if flush:
            g.wlg0()

    def interleave(fn, units, every):
        n0 = len(g.L)
        fn()
        body = g.L[n0:]
        del g.L[n0:]
        cnt = 0
        for bi, ln in enumerate(body):
            g.L.append(ln)
            cnt += 1
            nxt_ = body[bi + 1].strip() if bi + 1 < len(body) else ""
            if nxt_.startswith(("s_cselect", "s_addc", "s_cbranch")):
                continue
            if units and cnt >= every:
                u = units[0]
                if isinstance(u, tuple) and u[0] == "m0":
                    e(u[1])
                    units.pop(0)
                    cnt = every - 1
                else:
                    g.do(u)
                    units.pop(0)
                    cnt = 0 if isinstance(u, tuple) else every - 1

    def align():
        e(".p2align 3")

    def red(op, v, t, full):
        for dpp in ("quad_perm:[1,0,3,2]", "quad_perm:[2,3,0,1]", "row_half_mirror", "row_mirror"):
            g.nop(2)
            e(f"{op} v{v}, v{v}, v{v} {dpp}")
        e(f"v_mov_b32 v{t}, v{v}")
        g.nop(2)
        e(f"v_permlane16_swap_b32 v{v}, v{t}")
        g.nop(1)
        e(f"{op} v{v}, v{v}, v{t}")
        if full:
            e(f"v_mov_b32 v{t}, v{v}")
            g.nop(2)
            e(f"v_permlane32_swap_b32 v{v}, v{t}")
            g.nop(1)
            e(f"{op} v{v}, v{v}, v{t}")

    def bf16round(v):
        e(f"v_cvt_pk_bf16_f32 v{v}, v{v}, v{v}")
        e(f"v_lshlrev_b32 v{v}, 16, v{v}")

    def check4(tmp):
        return [f"v_xor_b32 v{tmp}, v{vTAG}, v{tmp}", f"v_xor_b32 v{tmp + 1}, v{vTAG}, v{tmp + 1}",
                f"v_xor_b32 v{tmp + 2}, v{vTAG}, v{tmp + 2}", f"v_xor_b32 v{tmp + 3}, v{vTAG}, v{tmp + 3}",
                f"v_or3_b32 v{tmp}, v{tmp}, v{tmp + 1}, v{tmp + 2}", f"v_or_b32 v{tmp}, v{tmp}, v{tmp + 3}",
                f"v_cmp_ne_u32 vcc, 0, v{tmp}"]

    def poll_block(addr_v, n4, sleep=opt.get('sleep', 8)):
        lp = g.newlab("Lpoll")
        dn = g.newlab("Lpd")
        tmp = vFL
        e(f"s_mov_b32 {sCNT}, 0x4000")
        g.lab(lp)
        if n4:
            e(f"buffer_load_dwordx4 {vr(tmp, 4)}, v{addr_v}, {SWS}, 0 offen sc1")
            e("s_waitcnt vmcnt(0)")
            for x in check4(tmp):
                e(x)
        else:
            e(f"buffer_load_dword v{tmp}, v{addr_v}, {SWS}, 0 offen sc1")
            e("s_waitcnt vmcnt(0)")
            e(f"v_cmp_ne_u32 vcc, v{vTAG}, v{tmp}")
        e(f"s_cbranch_vccz {dn}")
        e(f"s_sleep {sleep}")
        e(f"s_sub_u32 {sCNT}, {sCNT}, 1")
        e(f"s_cbranch_scc0 {lp}")
        g.lab(dn)

    def flag_store(soff):
        e(f"buffer_store_dword v{vTAG}, v{vL0}, {SWS}, {soff} offen sc1")

    def wd_load(phi):
        dst = ar(4 * phi, 4) if phi < 64 else vr(vWDV + 4 * (phi - 64), 4)
        pre = []
        if phi >= 65:
            if phi == 65 or phi == 68:
                pre.append(f"s_add_u32 {sT5}, {sWDS}, {(phi // 4) * 4096}")
                pre.append(f"s_cmp_lt_u32 {sW}, 2\ns_cselect_b32 {sT5}, {sT5}, {OOB}")
        elif phi % 4 == 0:
            pre.append(f"s_add_u32 {sT5}, {sWDS}, {(phi // 4) * 4096}")
        return pre + [("vm", f"buffer_load_dwordx4 {dst}, v1, {SWS}, {sT5} offen offset:{(phi % 4) * 1024} sc1", ("wd", phi))]

    def u_loads(cpreg, va):
        return [f"v_accvgpr_read_b32 v{va}, a{AS2 + 23}",
                f"s_mul_i32 {sF0}, {sW}, {64 * 10240}",
                f"s_lshl_b32 {sF1}, {cpreg}, 5",
                f"s_add_u32 {sF0}, {sF0}, {sF1}",
                f"s_add_u32 {sF0}, {sF0}, {XNT}",
                f"s_add_u32 {sF1}, {sF0}, {32 * 10240}",
                ("vm", f"buffer_load_dwordx4 {vr(vU, 4)}, v{va}, {SWS}, {sF0} offen sc1", "u"),
                ("vm", f"buffer_load_dwordx4 {vr(vU + 4, 4)}, v{va}, {SWS}, {sF1} offen sc1", "u")]

    def table_code(TB):
        def put(i, src):
            e(f"v_lshl_add_u32 v{src}, v{src}, 2, {sF2}")
            e(f"v_accvgpr_write_b32 a{AST + i}, v{src}")
        e(f"s_mul_i32 {sF2}, {sC}, {TC}")
        e(f"s_add_u32 {sF2}, {sF2}, {TB + 4}")
        e("v_lshrrev_b32 v4, 4, v0")
        e(f"s_lshl_b32 {sF1}, {sRHO}, 2")
        e(f"v_add_u32 v4, {sF1}, v4")
        e("v_and_b32 v5, 15, v0")
        DUM = 645
        e("v_cmp_eq_u32 s[54:55], 2, v4")
        e("v_cmp_eq_u32 s[56:57], 3, v4")
        e("v_cmp_eq_u32 s[58:59], 4, v4")
        e("v_cmp_lt_u32 vcc, 4, v4")
        e("v_mov_b32 v6, 8")
        e("v_cndmask_b32 v6, v6, 4, s[54:55]")
        e("v_cndmask_b32 v6, v6, 2, s[56:57]")
        e("v_cndmask_b32 v6, v6, 1, s[58:59]")
        e("v_cndmask_b32 v6, v6, 0, vcc")
        e("v_mul_u32_u24 v7, v6, v5")
        e("v_lshlrev_b32 v8, 4, v6")
        for i in range(4):
            e(f"v_lshl_add_u32 v9, v4, 2, {i}")
            for sreg, val in (("s[54:55]", 256 + i), ("s[56:57]", 384 + 64 * (i >> 1) + (i & 1)), ("s[58:59]", 512 + 32 * i), ("vcc", DUM)):
                e(f"v_mov_b32 v10, {val}")
                e(f"v_cndmask_b32 v9, v9, v10, {sreg}")
            e("v_add_u32 v9, v9, v7")
            e("v_add_u32 v11, v9, v8")
            if i == 0:
                e("v_lshl_add_u32 v6, v4, 4, v5")
                e("v_mov_b32 v10, 80")
                e("v_cmp_eq_u32 s[60:61], v10, v6")
                e("v_mov_b32 v10, 640")
                e("s_nop 0")
                e("v_cndmask_b32 v9, v9, v10, s[60:61]")
            put(i, 9)
            put(4 + i, 11)

    def gather_items(TB):
        it = [f"s_mul_i32 {sF2}, {sC}, {TC}", f"s_add_u32 {sF2}, {sF2}, {TB + 4}",
              f"s_lshl_b32 {sF1}, {sRHO}, 10", f"s_sub_u32 {sF1}, 2047, {sF1}", "v_lshlrev_b32 v12, 3, v0",
              f"v_sub_u32 v12, {sF1}, v12", f"s_movk_i32 {sF1}, 128"]
        for ch in range(2):
            for k in range(11):
                it += [f"v_subrev_u32 v2, {512 * ch + k}, v12", "v_max_i32 v3, 0, v2", "v_cvt_f32_u32 v3, v3",
                       f"v_med3_i32 v2, v2, -1, {sF1}", "v_cvt_pk_bf16_f32 v3, v3, 0", "v_subrev_u32 v3, 0x4280, v3",
                       "v_max_i32 v2, v2, v3", f"v_lshl_add_u32 v2, v2, 2, {sF2}",
                       f"v_accvgpr_write_b32 a{AST + 8 + 11 * ch + k}, v2"]
        return it

    def addr_items(XYB, TB):
        it = []
        A = it.append
        def st(i, r):
            A(f"v_accvgpr_write_b32 a{AS2 + i}, v{r}")
        A(f"s_mul_i32 {sF0}, {sC}, {XYC}")
        A(f"s_add_u32 {sF0}, {sF0}, {XYB}")
        A(f"v_lshl_add_u32 v2, v0, 3, {sF0}")
        st(0, 2)
        A("v_and_b32 v12, 15, v0")
        A("v_lshrrev_b32 v13, 4, v0")
        A(f"v_mul_u32_u24 v2, {XYP}, v12")
        A("v_lshl_add_u32 v2, v13, 4, v2")
        A(f"v_add_u32 v3, {sF0}, v2")
        st(2, 3)
        A(f"s_mul_i32 {sF1}, {sRHO}, {16 * XYP}")
        A(f"v_add_u32 v3, {sF1}, v3")
        st(1, 3)
        A(f"s_mul_i32 {sF2}, {sC}, {TC}")
        A(f"s_add_u32 {sF2}, {sF2}, {TB}")
        A(f"v_mov_b32 v2, {sF2}")
        st(6, 2)
        A("EARLY_END")
        A("v_and_b32 v12, 15, v0")
        A("v_lshrrev_b32 v13, 4, v0")
        A(f"s_mul_i32 {sF0}, {sC}, {UC}")
        A(f"s_lshl_b32 {sF1}, {sRHO}, 8")
        A(f"s_add_u32 {sF2}, {sF0}, {sF1}")
        A(f"s_add_u32 {sF2}, {sF2}, {UBASE}")
        A(f"v_add_u32 v2, {sF2}, v1")
        A(f"s_sub_u32 {sF2}, {sF0}, {sF1}")
        A(f"s_add_u32 {sF2}, {sF2}, {UBASE + 32 + 256}")
        A("v_lshlrev_b32 v14, 5, v12")
        A("v_lshl_add_u32 v3, v13, 4, v14")
        A(f"v_add_u32 v3, {sF2}, v3")
        st(8, 3)
        A("v_lshl_add_u32 v14, v13, 3, v14")
        A(f"s_lshl_b32 {sF2}, {sRHO}, 11")
        A(f"s_add_u32 {sF2}, {sF2}, {sF0}")
        A(f"s_add_u32 {sF2}, {sF2}, {UBASE + 512}")
        A(f"v_add_u32 v3, {sF2}, v14")
        st(11, 3)
        A(f"s_lshl_b32 {sF2}, {sW}, 11")
        A(f"s_add_u32 {sF2}, {sF2}, {SOB}")
        A(f"v_add_u32 v3, {sF2}, v14")
        st(12, 3)
        A(f"v_add_u32 v3, {sF2}, v1")
        st(13, 3)
        A(f"s_mul_i32 {sF0}, {sC}, {RC}")
        A(f"s_mul_i32 {sF2}, {sRHO}, {2 * RCS}")
        A(f"s_add_u32 {sF2}, {sF2}, {sF0}")
        A(f"s_add_u32 {sF2}, {sF2}, {RB + 4096}")
        A("v_bfe_u32 v3, v0, 1, 1")
        A(f"v_mul_u32_u24 v3, {RCS}, v3")
        A("v_and_b32 v15, 1, v0")
        A("v_lshl_add_u32 v3, v15, 4, v3")
        A(f"v_add_u32 v3, {sF2}, v3")
        A("v_cmp_lt_u32 vcc, 15, v0\ns_nop 1\nv_cndmask_b32 v2, v2, v3, vcc")
        st(3, 2)
        A(f"s_lshl_b32 {sF2}, {sRHO}, 11")
        A(f"s_add_u32 {sF2}, {sF2}, {sF0}")
        A(f"s_add_u32 {sF2}, {sF2}, {RB}")
        A(f"v_add_u32 v2, {sF2}, v1")
        st(4, 2)
        A("v_sub_u32 v2, 3, v12")
        A("v_and_b32 v2, 3, v2")
        A(f"v_mul_u32_u24 v2, {RCS}, v2")
        A("v_lshl_add_u32 v2, v13, 4, v2")
        A("v_and_b32 v3, 12, v12")
        A("v_lshlrev_b32 v3, 1, v3")
        A("v_sub_u32 v2, v2, v3")
        A(f"s_sub_u32 {sF2}, {sF0}, {sF1}")
        A(f"s_add_u32 {sF2}, {sF2}, {RB + 24 + 256}")
        A(f"v_add_u32 v2, {sF2}, v2")
        st(7, 2)
        A(f"v_mul_u32_u24 v2, {UC}, v15")
        A("v_lshrrev_b32 v3, 1, v0")
        A("v_lshl_add_u32 v2, v3, 4, v2")
        A(f"s_lshl_b32 {sF2}, {sW}, 10")
        A(f"s_add_u32 {sF2}, {sF2}, {UBASE + 512}")
        A(f"v_add_u32 v2, {sF2}, v2")
        st(5, 2)
        A("v_mul_u32_u24 v3, 10240, v3")
        A("v_lshl_add_u32 v3, v15, 4, v3")
        st(23, 3)
        A(f"s_lshl_b32 {sF2}, {sW}, 12")
        A(f"v_add_u32 v2, {sF2}, v1")
        st(9, 2)
        A("v_xor_b32 v2, 0x1000, v2")
        st(10, 2)
        A(f"s_mul_i32 {sF0}, {sW}, 14")
        A(f"s_cmp_eq_u32 {sW}, 3\ns_cselect_b32 {sF1}, 1, 0")
        A(f"s_sub_u32 {sF0}, {sF0}, {sF1}")
        A(f"s_mul_i32 {sF1}, {sDT}, 54")
        A(f"s_add_u32 {sF1}, {sF0}, {sF1}")
        A(f"s_mul_i32 {sF1}, {sF1}, 5120")
        A(f"s_add_u32 {sWDS}, {sF1}, {WDP}")
        for k in range(4):
            A(f"s_add_u32 {sF1}, {sW}, {k + 1}")
            A(f"s_and_b32 {sF1}, {sF1}, 3")
            if k < 3:
                A(f"s_mul_i32 {sF2}, {sF1}, 15360")
                A(f"s_add_u32 {sF2}, {sF2}, {EXB + 5120 * k}")
                A(f"v_add_u32 v2, {sF2}, v1")
                st(14 + k, 2)
            A(f"s_lshl_b32 {sF2}, {sLT}, 2")
            A(f"s_add_u32 {sF1}, {sF1}, {sF2}")
            A(f"s_mul_i32 {sF1}, {sF1}, 54")
            A(f"s_add_u32 {sF1}, {sF1}, {sF0}")
            A(f"s_lshl_b32 {sF1}, {sF1}, 10")
            A(f"s_add_u32 s{sG2 + 4 * k}, {sF1}, {HB}")
            for q in range(1, 4):
                A(f"s_add_u32 s{sG2 + 4 * k + q}, s{sG2 + 4 * k}, {4096 * q}")
        A(f"s_mov_b32 {sF0}, {0x100000000 // 10 + 1}")
        for kk in range(3):
            A(f"v_add_u32 v2, {64 * kk}, v0")
            A(f"v_mul_hi_u32 v3, v2, {sF0}")
            A("v_mul_u32_u24 v12, 10, v3")
            A("v_sub_u32 v12, v2, v12")
            A("v_mul_u32_u24 v3, 1280, v3")
            A("v_lshl_add_u32 v2, v12, 4, v3")
            st(17 + kk, 2)
        A(f"v_mov_b32 v3, {OOB}")
        A("v_cmp_lt_u32 vcc, 31, v0\ns_nop 1\nv_cndmask_b32 v2, v2, v3, vcc")
        st(20, 2)
        A(f"s_lshl_b32 {sXO}, {sLT}, 2")
        A(f"s_add_u32 {sXO}, {sXO}, {sW}")
        A(f"s_mul_i32 {sXO}, {sXO}, {16 * 1280}")
        A(f"s_mul_i32 {sF0}, {sDT}, 160")
        A(f"s_add_u32 {sXO}, {sXO}, {sF0}")
        A(f"s_mul_i32 {sXT}, {sW}, 3072")
        A(f"s_add_u32 {sXT}, {sXT}, {XTB}")
        A(f"s_mul_i32 {sSTO}, {sDT}, 80")
        A(f"s_lshl_b32 {sSTO}, {sSTO}, 12")
        A(f"s_lshl_b32 {sF0}, {sLT}, 2")
        A(f"s_add_u32 {sF0}, {sF0}, {sW}")
        A(f"s_lshl_b32 {sF0}, {sF0}, 5")
        A(f"s_add_u32 {sSTO}, {sSTO}, {sF0}")
        A(f"s_add_u32 {sSTO}, {sSTO}, {ST}")
        A(f"s_lshl_b32 {sF0}, {sLT}, 12")
        A(f"s_add_u32 {sF0}, {sF0}, {HF}")
        A("v_min_u32 v2, 26, v0")
        A(f"v_lshl_add_u32 v2, v2, 7, {sF0}")
        st(21, 2)
        A(f"s_mul_i32 {sF0}, {sDT}, {40 * 128}")
        A(f"s_add_u32 {sF0}, {sF0}, {SF}")
        A("v_min_u32 v2, 39, v0")
        A(f"v_lshl_add_u32 v2, v2, 7, {sF0}")
        st(22, 2)
        k_ = it.index("EARLY_END")
        return it[:k_], it[k_ + 1:]

    e("s_cmp_ge_u32 s2, 256")
    e("s_cbranch_scc1 L_end")
    if diag:
        e("s_memrealtime s[92:93]")
    if opt.get("dbg"):
        e("s_mov_b64 s[100:101], s[0:1]")
        g.sfree = [92]
    e("s_getpc_b64 s[88:89]")
    g.lab("L_pc")
    e("s_load_dwordx2 s[4:5], s[0:1], 0")
    e("s_load_dwordx2 s[16:17], s[0:1], 104")
    e("s_load_dwordx2 s[8:9], s[0:1], 64")
    e("s_load_dwordx2 s[12:13], s[0:1], 72")
    e("s_load_dwordx4 s[28:31], s[0:1], 8")
    e("s_load_dwordx4 s[32:35], s[0:1], 24")
    e("s_load_dwordx4 s[36:39], s[0:1], 40")
    NSP = opt.get("nsp", 0)
    for i in range(NSP):
        e(f"s_load_dword s{66 + i}, s[88:89], {256 + 128 * i}")
    e("v_lshrrev_b32 v2, 6, v0")
    e("v_and_b32 v3, 15, v0")
    e("s_mov_b32 s90, L_codeend - L_pc")
    e("s_mov_b32 s91, 0x20000")
    e("v_lshl_add_u32 v3, v2, 4, v3")
    e(f"v_readfirstlane_b32 {sW}, v2")
    e("v_lshlrev_b32 v3, 7, v3")
    if opt.get("cpf0", 1):
        e(f"buffer_load_dword v{vFL + 3}, v3, s[88:91], 0 offen offset:{min(256 + 128 * NSP, 4000)}")
        g.vm.append("cpf")
    e("v_and_b32 v0, 63, v0")
    e("s_mov_b32 s6, 2621440\ns_mov_b32 s7, 0x20000")
    e("v_lshrrev_b32 v2, 5, v0")
    e("v_and_b32 v3, 31, v0")
    e("v_mul_u32_u24 v2, 1280, v2")
    e(f"s_lshl_b32 {sT0}, s2, 2")
    e(f"s_add_u32 {sT0}, {sT0}, {sW}")
    e("v_lshl_add_u32 v2, v3, 3, v2")
    e(f"s_mul_i32 {sT0}, {sT0}, 2560")
    e(f"s_and_b32 {sXCD}, s2, 7")
    e(f"s_lshr_b32 {sQ}, s2, 3")
    e(f"s_and_b32 {sM}, s2, 1")
    e(f"s_lshr_b32 {sT1}, {sXCD}, 1")
    e(f"s_and_b32 {sT2}, {sQ}, 3")
    e(f"s_lshr_b32 {sDT}, {sQ}, 2")
    e(f"s_lshl_b32 {sM}, {sM}, 2")
    e(f"s_add_u32 {sM}, {sM}, {sT2}")
    e(f"s_mul_i32 {sFT}, {sT1}, 7")
    e(f"s_add_u32 {sFT}, {sFT}, {sDT}")
    e("v_lshrrev_b32 v4, 3, v0")
    e("v_and_b32 v5, 7, v0")
    e("v_lshrrev_b32 v6, 4, v0")
    e("v_mul_u32_u24 v7, 1280, v4")
    e("v_xor_b32 v8, v5, v6")
    e("v_xor_b32 v9, 4, v8")
    e(f"v_lshl_add_u32 v{vXO}, v8, 4, v7")
    e(f"v_lshl_add_u32 v{vXO + 1}, v9, 4, v7")
    e("v_mul_u32_u24 v7, 3456, v4")
    e("v_and_b32 v8, 1, v6")
    e(f"v_add_u32 v{vXO + 1}, {8 * 1280 - 1024}, v{vXO + 1}")
    e("v_lshlrev_b32 v8, 2, v8")
    e("v_xor_b32 v8, v5, v8")
    e(f"v_lshl_add_u32 v{vWO}, v8, 4, v7")
    e(f"s_lshl_b32 {sWM0}, {sW}, 11")
    e(f"s_mul_i32 {sWSO}, {sW}, {16 * 3456}")
    e(f"s_lshl_b32 {sT1}, {sFT}, 7")
    e(f"s_add_u32 {sWSO}, {sWSO}, {sT1}")
    e(f"v_add_u32 v{vWO + 1}, {8 * 3456 - 1024}, v{vWO}")
    e("s_mov_b32 s10, 2211840\ns_mov_b32 s11, 0x20000")
    e("s_mov_b32 s14, s10\ns_mov_b32 s15, 0x20000")
    e(f"s_cmp_lt_u32 {sDT}, 7")
    e(f"s_cselect_b32 {sT3}, {sFT}, 27")
    e(f"s_lshl_b32 {sXS}, {sM}, 2")
    e(f"s_add_u32 {sXS}, {sXS}, {sW}")
    e(f"s_mul_i32 {sXS}, {sXS}, {64 * 1280}")
    e(f"s_lshl_b32 {sXM0}, {sW}, 13")
    e(f"s_add_u32 {sXM0}, {sXM0}, 16384")
    e(f"s_cmp_lt_u32 {sT3}, 27")
    e(f"s_cselect_b32 {sISG1}, 1, 0")
    e(f"s_mul_i32 {sCP}, {sM}, 27")
    e(f"s_add_u32 {sCP}, {sCP}, {sFT}")
    e(f"s_min_u32 {sCP}, {sCP}, 319")
    e(f"s_lshr_b32 {sC}, {sW}, 1")
    e(f"s_lshl_b32 {sT1}, {sCP}, 1")
    e(f"s_add_u32 {sT1}, {sT1}, {sC}")
    e(f"s_lshl_b32 {sT1}, {sT1}, 8")
    e(f"v_lshl_add_u32 v12, v0, 2, {sT1}")
    e(f"s_lshl_b32 {sT1}, {sCP}, 2")
    e(f"v_mov_b32 v13, {sT1}")
    e("s_waitcnt lgkmcnt(0)")
    e(f"s_cmp_eq_u32 {sISG1}, 0")
    e("s_cbranch_scc1 L_spare")
    if diag:
        e("v_mov_b32 v127, 0")
        e("v_writelane_b32 v127, s92, 60")
    stamp("start")
    if opt.get("pt", 0):
        e("v_mov_b32 v12, s4\nv_mov_b32 v13, s5")
        e("s_add_u32 s68, s4, 0x200000\ns_addc_u32 s69, s5, 0")
        for ln, lo in ((1, 68), (2, 8), (3, 12), (4, 16)):
            e(f"v_writelane_b32 v12, s{lo}, {ln}\nv_writelane_b32 v13, s{lo + 1}, {ln}")
        g.vmem(f"global_load_dword v{vFL + 4}, v[12:13], off", "cpf")
    if diag and not opt.get("dbg"):
        e("s_memrealtime s[100:101]\ns_waitcnt lgkmcnt(0)\nv_writelane_b32 v127, s100, 55")
    APAR = 160
    for k, p in enumerate((P_LAR, P_AIM, P_CRE, P_CIM)):
        g.vmem(f"global_load_dword a{APAR + k}, v12, {p}", "par")
    g.vmem(f"global_load_dword a{APAR + 4}, v13, {P_LDT}", "par")
    g.vmem(f"global_load_dword a{APAR + 5}, v13, {P_DSK}", "par")
    LX = 232
    for q in range(5):
        g.vmem(f"buffer_load_dwordx2 {vr(LX + 2 * q, 2)}, v2, {SX}, {sT0} offen offset:{256 * q}", "ln")

    if diag and not opt.get("dbg"):
        e("s_memrealtime s[100:101]\ns_waitcnt lgkmcnt(0)\nv_writelane_b32 v127, s100, 56")

    def rest_setup():
        e("s_load_dwordx2 s[24:25], s[0:1], 80")
        e("s_load_dwordx2 s[20:21], s[0:1], 88")
        e("v_lshlrev_b32 v1, 4, v0")
        e(f"s_mov_b32 s18, {WS_END}\ns_mov_b32 s19, 0x20000")
        e(f"v_mov_b32 v{vL0}, {OOB}")
        e(f"v_writelane_b32 v{vL0}, 0, 0")
        e("s_mov_b32 s22, 2621440\ns_mov_b32 s23, 0x20000")
        e("s_mov_b32 s26, 2211840\ns_mov_b32 s27, 0x20000")
        e(f"s_lshl_b32 {sT4}, {sXCD}, 2")
        e(f"s_and_b32 {sT2}, {sQ}, 3")
        e(f"s_add_u32 {sLT}, {sT4}, {sT2}")
        e(f"s_add_u32 {sT4}, {sT4}, {sQ}")
        e(f"s_sub_u32 {sT4}, {sT4}, 28")
        e(f"s_lshl_b32 {sT5}, {sXCD}, 3")
        e(f"s_add_u32 {sT5}, {sT5}, {sQ}")
        e(f"s_sub_u32 {sT5}, {sT5}, 48")
        e(f"s_cmp_lt_u32 {sXCD}, 6\ns_cselect_b32 {sSP}, {sT4}, {sT5}")
        e(f"s_mul_i32 {sT4}, {sM}, 27")
        e(f"s_add_u32 {sT4}, {sT4}, {sFT}")
        e(f"s_add_u32 {sT5}, {sSP}, 216")
        e(f"s_cmp_lg_u32 {sISG1}, 0\ns_cselect_b32 {sCP}, {sT4}, {sT5}")
        e(f"s_cmp_lt_u32 {sSP}, 24\ns_cselect_b32 {sRND}, 3, 2")
        e(f"s_and_b32 {sRHO}, {sW}, 1")
        e(f"s_lshr_b32 {sC}, {sW}, 1")
        e("v_lshlrev_b32 v10, 21, v0")
        e(f"v_mov_b32 v{vFA}, v1")
        e(f"v_mov_b32 v{vFA + 1}, v1")
        e("v_mul_u32_u24 v54, 17280, v4")
        e("v_lshl_add_u32 v54, v5, 4, v54")
        e(f"s_lshl_b32 {sHS0}, {sM}, 1")
        e(f"s_add_u32 {sHS0}, {sHS0}, {sRHO}")
        e(f"s_mul_i32 {sHS0}, {sHS0}, {40 * 3456}")
        e(f"s_lshl_b32 {sT1}, {sFT}, 7")
        e(f"s_add_u32 {sHS0}, {sHS0}, {sT1}")
        e("s_mov_b32 s98, 2211840\ns_mov_b32 s99, 0x20000")
        e(f"s_cmp_eq_u32 {sC}, 0\ns_cselect_b32 s96, s8, s12\ns_cselect_b32 s97, s9, s13")
        e(f"s_lshl_b32 {sT1}, {sQ}, 2")
        e(f"s_add_u32 {sT1}, {sT1}, {sW}")
        e(f"s_mul_i32 {sT1}, {sT1}, 384")
        e(f"s_add_u32 {sT1}, {sT1}, {8192 + min(256 + 128 * NSP, 4000)}")
        e("v_min_u32 v11, 2, v0")
        e("v_lshlrev_b32 v11, 7, v11")

    def rest_loads():
        g.vmem(f"buffer_load_dword v{vTAG}, v{vL0}, {SWS}, 0 offen sc1", "ep")
        g.vmem(f"buffer_load_dword v{vFL + 2}, v11, s[88:91], {sT1} offen", "tlb")
        g.vmem(f"buffer_load_dword v{vFL}, v10, {SWS}, 0 offen", "tlb")
        e("s_waitcnt lgkmcnt(0)")
        g.vmem(f"buffer_load_dword v{vFL + 1}, v10, {SOUT}, 0 offen", "tlb")

    def dma_units(stage):
        sb = (stage % 3) * SLOT
        out = []
        for mat in range(2):
            out.append(("m0", f"s_add_u32 m0, {sWM0}, {sb + mat * 8192}"))
            for half in range(2):
                o = f" offset:{1024 * half}" if half else ""
                out.append(("vm", f"buffer_load_dwordx4 v{vWO + half}, {SWG if mat == 0 else SWU}, {sWSO} offen{o} lds", ("dma", stage)))
        for i in range(8):
            if i % 4 == 0:
                out.append(("m0", f"s_add_u32 m0, {sXM0}, {sb + i * 1024}"))
            o = f" offset:{1024 * (i & 3)}" if i & 3 else ""
            out.append(("vm", f"buffer_load_dwordx4 v{vXO + i}, {SX}, {sXS} offen{o} lds", ("dma", stage)))
        out.append(f"s_add_u32 {sXS}, {sXS}, 128")
        out.append(f"s_add_u32 {sWSO}, {sWSO}, {64 * 3456}")
        return out

    def dma_block(stage):
        for u in dma_units(stage):
            if isinstance(u, tuple) and u[0] == "m0":
                e(u[1])
                e("s_nop 0")
            else:
                g.do(u)

    APAR = 160
    def param_units(rnd):
        out = [f"s_add_u32 {sT2}, {sCP}, {40 * rnd}", f"s_min_u32 {sT2}, {sT2}, 319",
               f"s_lshl_b32 {sT1}, {sT2}, 1", f"s_add_u32 {sT1}, {sT1}, {sC}", f"s_lshl_b32 {sT1}, {sT1}, 8",
               f"v_lshl_add_u32 v12, v0, 2, {sT1}", f"s_lshl_b32 {sT1}, {sT2}, 2", f"v_mov_b32 v13, {sT1}"]
        for k, p in enumerate((P_LAR, P_AIM, P_CRE, P_CIM)):
            out.append(("vm", f"global_load_dword a{APAR + 8 * rnd + k}, v12, {p}", "par"))
        out.append(("vm", f"global_load_dword a{APAR + 8 * rnd + 4}, v13, {P_LDT}", "par"))
        out.append(("vm", f"global_load_dword a{APAR + 8 * rnd + 5}, v13, {P_DSK}", "par"))
        return out

    CSR = [56, 60, 112, 116, 52]
    def csl_units():
        out = []
        for j5 in range(5):
            if j5 in (2, 4):
                out.append(f"s_add_u32 {sHS0}, {sHS0}, {2 * 3456}")
            out.append(("vm", f"buffer_load_dwordx4 {vr(CSR[j5], 4)}, v54, {STW}, {sHS0} offen offset:{(j5 % 2) * 3456}", ("csl", j5)))
        return out
    def emit_units(us):
        for u in us:
            if isinstance(u, tuple) and u[0] == "m0":
                e(u[1])
                e("s_nop 0")
            else:
                g.do(u)

    def split_units(us, n):
        c = 0
        for ix, u in enumerate(us):
            if isinstance(u, tuple) and u[0] == "vm":
                c += 1
                if c == n:
                    return us[:ix + 1], us[ix + 1:]
        return us, []

    def run_items(items):
        for it in items:
            g.do(it)

    F, S, Dv, SO, UO = 140, 160, 164, 184, 188
    def ln_code(bar=False):
        for q in range(10):
            e(f"v_lshlrev_b32 v{F + 2 * q}, 16, v{LX + q}")
            e(f"v_and_b32 v{F + 2 * q + 1}, 0xffff0000, v{LX + q}")
        e(f"v_pk_add_f32 {vr(S, 2)}, {vr(F, 2)}, {vr(F + 2, 2)}")
        e(f"v_pk_add_f32 {vr(S + 2, 2)}, {vr(F + 4, 2)}, {vr(F + 6, 2)}")
        for q in range(4, 10, 2):
            e(f"v_pk_add_f32 {vr(S, 2)}, {vr(S, 2)}, {vr(F + 2 * q, 2)}")
            e(f"v_pk_add_f32 {vr(S + 2, 2)}, {vr(S + 2, 2)}, {vr(F + 2 * q + 2, 2)}")
        e(f"v_pk_add_f32 {vr(S, 2)}, {vr(S, 2)}, {vr(S + 2, 2)}")
        e(f"v_add_f32 v{S}, v{S}, v{S + 1}")
        red("v_add_f32", S, S + 1, False)
        e(f"v_mul_f32 v{S}, {hex(f2u(1.0 / 640))}, v{S}")
        for q in range(10):
            e(f"v_pk_add_f32 {vr(Dv + 2 * q, 2)}, {vr(F + 2 * q, 2)}, {vr(S, 2)} op_sel_hi:[1,0] neg_lo:[0,1] neg_hi:[0,1]")
        e(f"v_pk_mul_f32 {vr(S + 2, 2)}, {vr(Dv, 2)}, {vr(Dv, 2)}")
        e(f"v_pk_mul_f32 {vr(S + 24, 2)}, {vr(Dv + 2, 2)}, {vr(Dv + 2, 2)}")
        for q in range(2, 10):
            r = S + 2 if q % 2 == 0 else S + 24
            e(f"v_pk_fma_f32 {vr(r, 2)}, {vr(Dv + 2 * q, 2)}, {vr(Dv + 2 * q, 2)}, {vr(r, 2)}")
        e(f"v_pk_add_f32 {vr(S + 2, 2)}, {vr(S + 2, 2)}, {vr(S + 24, 2)}")
        e(f"v_add_f32 v{S + 2}, v{S + 2}, v{S + 3}")
        red("v_add_f32", S + 2, S + 3, False)
        e(f"v_mul_f32 v{S + 2}, {hex(f2u(1.0 / 640))}, v{S + 2}")
        bf16round(S + 2)
        e(f"v_add_f32 v{S + 2}, {hex(f2u(1e-5))}, v{S + 2}")
        bf16round(S + 2)
        e(f"v_sqrt_f32 v{S + 2}, v{S + 2}")
        bf16round(S)
        bf16round(S + 2)
        e(f"v_rcp_f32 v{S + 3}, v{S + 2}")
        e(f"v_sub_f32 v{SO}, 0, v{S}")
        e(f"v_mul_f32 v{SO + 3}, v{S + 2}, v{S + 2}")
        e(f"v_mul_f32 v{S + 1}, v{S + 3}, v{S + 3}")
        e(f"v_mul_f32 v{SO + 2}, {hex(f2u(C0))}, v{S + 3}")
        e(f"v_mul_f32 v{S + 1}, v{S + 1}, v{S + 3}")
        e(f"v_mul_f32 v{S + 2}, v{SO}, v{S + 3}")
        e(f"v_mul_f32 v{SO + 1}, {hex(f2u(C1))}, v{S + 1}")
        for q in range(10):
            e(f"v_pk_fma_f32 {vr(Dv + 2 * q, 2)}, {vr(F + 2 * q, 2)}, {vr(S + 2, 2)}, {vr(S + 2, 2)} op_sel:[0,1,0] op_sel_hi:[1,1,0]")
        for q in range(10):
            e(f"v_cvt_pk_f16_f32 v{UO + q}, v{Dv + 2 * q}, v{Dv + 2 * q + 1}")
        e("v_lshrrev_b32 v2, 5, v0")
        e(f"v_mul_u32_u24 v2, {LNP}, v2")
        e("v_and_b32 v3, 31, v0")
        e("v_lshl_add_u32 v2, v3, 3, v2")
        e(f"s_mul_i32 {sT1}, {sW}, {2 * LNP}")
        e(f"s_add_u32 {sT1}, {sT1}, {LNB}")
        e(f"v_add_u32 v2, {sT1}, v2")
        if bar:
            e("s_barrier")
        for q in range(5):
            g.lds(f"ds_write_b64 v2, {vr(UO + 2 * q, 2)} offset:{256 * q}", "lnw")
        e("v_lshrrev_b32 v4, 1, v0")
        e(f"v_mov_b32 v5, {OOB}")
        e("v_cmp_ne_u32 vcc, 0, v3")
        e(f"s_lshl_b32 {sT1}, s2, 2")
        e(f"s_add_u32 {sT1}, {sT1}, {sW}")
        e("v_cndmask_b32 v4, v4, v5, vcc")
        e(f"s_lshl_b32 {sT1}, {sT1}, 5")
        e(f"s_add_u32 {sT1}, {sT1}, {STATS}")
        e("v_bfe_u32 v6, v0, 2, 2")
        e(f"v_mul_u32_u24 v2, {LNP}, v6")
        e("v_lshrrev_b32 v3, 4, v0")
        e("v_lshl_add_u32 v2, v3, 5, v2")
        e("v_and_b32 v7, 3, v0")
        e("v_lshl_add_u32 v2, v7, 3, v2")
        e(f"s_lshl_b32 {sT2}, {sW}, 7")
        e(f"s_add_u32 {sT2}, {sT2}, {LNB}")
        e(f"v_add_u32 v2, {sT2}, v2")

    def ln_tail():
        g.vmem(f"buffer_store_dwordx4 {vr(SO, 4)}, v4, {SWS}, {sT1} offen sc1", "lnst")
        g.wlg0()
        e("s_barrier")
        TR = 200
        for j in range(3):
            for h in range(2):
                g.lds(f"ds_read_b64_tr_b16 {vr(TR + 4 * j + 2 * h, 2)}, v2 offset:{512 * j + 4 * LNP * h}", ("lntr", j))
        e(f"s_mul_i32 {sT1}, s2, 10240")
        e(f"s_lshl_b32 {sT2}, {sW}, 10")
        e(f"s_add_u32 {sT1}, {sT1}, {sT2}")
        e(f"s_add_u32 {sT1}, {sT1}, {XNT}")
        e(f"s_add_u32 {sT2}, {sT1}, 4096")
        e(f"s_add_u32 {sT3}, {sT1}, 8192")
        e(f"s_cmp_lt_u32 {sW}, 2")
        e(f"s_cselect_b32 {sT3}, {sT3}, {OOB}")
        for j, so in enumerate((sT1, sT2, sT3)):
            g.wlg(("lntr", j))
            g.vmem(f"buffer_store_dwordx4 {vr(TR + 4 * j, 4)}, v1, {SWS}, {so} offen sc1", "lnst")

    AK = 46
    vKA_A, vKA_B, vZ, vRW, vUW, vYS, vFB, vGB = range(AK, AK + 8)
    KA, CC, TM = 128, 152, 136
    WA = KA + 6
    SIG, OMG = KA + 2, KA + 4

    def cexp(dst, p, t):
        for m in range(2):
            e(f"v_mul_f32 v{t + m}, {hex(f2u(float(p)))}, v{SIG + m}")
            e(f"v_mul_f32 v{t + 2 + m}, {hex(f2u(float(p)))}, v{OMG + m}")
        for m in range(2):
            e(f"v_fract_f32 v{t + 2 + m}, v{t + 2 + m}")
        for m in range(2):
            e(f"v_exp_f32 v{t + m}, v{t + m}")
            e(f"v_cos_f32 v{dst + 2 * m}, v{t + 2 + m}")
            e(f"v_sin_f32 v{dst + 2 * m + 1}, v{t + 2 + m}")
        e("s_nop 0")
        align()
        for m in range(2):
            e(f"v_pk_mul_f32 {vr(dst + 2 * m, 2)}, {vr(dst + 2 * m, 2)}, {vr(t, 2)} op_sel:[0,{m}] op_sel_hi:[1,{m}]")

    def cmul(dst, P, Q, t):
        for m in range(2):
            e(f"v_pk_mul_f32 {vr(t + 2 * m, 2)}, {vr(P + 2 * m, 2)}, {vr(Q + 2 * m, 2)} op_sel_hi:[0,1]")
        for m in range(2):
            e(f"v_pk_fma_f32 {vr(dst + 2 * m, 2)}, {vr(P + 2 * m, 2)}, {vr(Q + 2 * m, 2)}, {vr(t + 2 * m, 2)} op_sel:[1,1,0] op_sel_hi:[1,0,1] neg_lo:[0,1,0]")

    prow = [0]

    def put(src, row, neg, lastrow=False):
        o = 144 + 2 * (row % 4)
        ng = "-" if neg else ""
        if src is not None:
            e(f"v_cvt_pk_f16_f32 v{o}, v{src}, {ng}v{src + 1}")
            e(f"v_cvt_pk_f16_f32 v{o + 1}, v{src + 2}, {ng}v{src + 3}")
        if row % 2 == 1:
            o0 = ((row - 1) % 4) * 68
            g.lds(f"ds_write2_b64 v{WA}, {vr(o - 2, 2)}, {vr(o, 2)} offset0:{o0} offset1:{o0 + 68}", "xy")
            if row % 4 == 3:
                e(f"v_add_u32 v{WA}, {4 * XYP}, v{WA}")
        elif lastrow:
            g.lds(f"ds_write_b64 v{WA}, {vr(o, 2)} offset:{(row % 4) * XYP}", "xy")


    def rb1():
        e(f"s_mov_b32 {sKR}, 0")
        for i in range(8):
            e(f"v_accvgpr_read_b32 v{SC + i}, a{AST + i}")
        for i in (0, 1, 5):
            e(f"v_accvgpr_read_b32 v{AK + i}, a{AS2 + 1 + i}")

    def tag_code():
        e(f"v_readfirstlane_b32 {sTAG}, v{vTAG}")
        e("s_nop 3")
        e(f"s_mul_i32 {sTAG}, {sTAG}, 1664525")
        e(f"s_add_u32 {sTAG}, {sTAG}, 1013904223")
        e(f"v_mov_b32 v{vTAG}, {sTAG}")

    def k_setup():
        for k6 in (4, 5, 0, 1, 2, 3):
            e(f"v_accvgpr_read_b32 v{vPAR + k6}, a{APAR + k6}")
        e(f"v_accvgpr_read_b32 v{WA}, a{AS2}")
        e(f"s_lshl_b32 {sT1}, {sC}, 4")
        e(f"v_lshrrev_b32 v{KA}, {sT1}, v{vPAR + 4}")
        e(f"v_lshlrev_b32 v{KA}, 16, v{KA}")
        e(f"v_mul_f32 v{KA}, {hex(f2u(LOG2E))}, v{KA}")
        e(f"v_exp_f32 v{KA}, v{KA}")
        e(f"v_lshrrev_b32 v{KA + 7}, {sT1}, v{vPAR + 5}")
        e(f"v_lshlrev_b32 v{KA + 7}, 16, v{KA + 7}")
        bf16round(KA)
        e(f"v_lshlrev_b32 v{KA + 2}, 16, v{vPAR}")
        e(f"v_and_b32 v{KA + 3}, 0xffff0000, v{vPAR}")
        e(f"v_mul_f32 v{KA + 2}, {hex(f2u(LOG2E))}, v{KA + 2}")
        e(f"v_mul_f32 v{KA + 3}, {hex(f2u(LOG2E))}, v{KA + 3}")
        e(f"v_exp_f32 v{KA + 2}, v{KA + 2}")
        e(f"v_exp_f32 v{KA + 3}, v{KA + 3}")
        e(f"v_lshlrev_b32 v{KA + 4}, 16, v{vPAR + 1}")
        e(f"v_and_b32 v{KA + 5}, 0xffff0000, v{vPAR + 1}")
        e(f"v_cvt_pk_bf16_f32 v{KA + 1}, v{KA + 2}, v{KA + 3}")
        e(f"v_lshlrev_b32 v{CC}, 16, v{vPAR + 2}")
        e(f"v_lshlrev_b32 v{CC + 1}, 16, v{vPAR + 3}")
        e(f"v_and_b32 v{CC + 2}, 0xffff0000, v{vPAR + 2}")
        e(f"v_and_b32 v{CC + 3}, 0xffff0000, v{vPAR + 3}")
        e(f"v_lshlrev_b32 v{KA + 2}, 16, v{KA + 1}")
        e(f"v_and_b32 v{KA + 3}, 0xffff0000, v{KA + 1}")
        for m in range(2):
            e(f"v_mul_f32 v{KA + 2 + m}, v{KA + 2 + m}, v{KA}")
            e(f"v_mul_f32 v{KA + 4 + m}, v{KA + 4 + m}, v{KA}")
        for m in range(2):
            e(f"v_mul_f32 v{KA + 2 + m}, {hex(f2u(-LOG2E))}, v{KA + 2 + m}")
            e(f"v_mul_f32 v{KA + 4 + m}, {hex(f2u(1.0 / (2 * math.pi)))}, v{KA + 4 + m}")

    def k_role0():
        W8, W16, T2 = 152, 156, 140
        ch = [[160, 164], [168, 172]]
        e(f"v_add_u32 v{WA}, {YR0 * XYP}, v{WA}")
        cexp(W8, 8, TM)
        e("v_mov_b32 v144, 0x3c00")
        e("v_mov_b32 v145, 0x3c00")
        cmul(W16, W8, W8, TM)
        put(W8, 33, False)
        cur = [W16, W8]
        for j in range(2, 32, 2):
            n0 = cur[0] if j == 2 else ch[0][(j // 2) & 1]
            n1 = ch[1][(j // 2) & 1]
            for m in range(2):
                if j > 2:
                    e(f"v_pk_mul_f32 {vr(TM + 2 * m, 2)}, {vr(cur[0] + 2 * m, 2)}, {vr(W16 + 2 * m, 2)} op_sel_hi:[0,1]")
                e(f"v_pk_mul_f32 {vr(T2 + 2 * m, 2)}, {vr(cur[1] + 2 * m, 2)}, {vr(W16 + 2 * m, 2)} op_sel_hi:[0,1]")
            for m in range(2):
                if j > 2:
                    e(f"v_pk_fma_f32 {vr(n0 + 2 * m, 2)}, {vr(cur[0] + 2 * m, 2)}, {vr(W16 + 2 * m, 2)}, {vr(TM + 2 * m, 2)} op_sel:[1,1,0] op_sel_hi:[1,0,1] neg_lo:[0,1,0]")
                e(f"v_pk_fma_f32 {vr(n1 + 2 * m, 2)}, {vr(cur[1] + 2 * m, 2)}, {vr(W16 + 2 * m, 2)}, {vr(T2 + 2 * m, 2)} op_sel:[1,1,0] op_sel_hi:[1,0,1] neg_lo:[0,1,0]")
            put(n0, 32 + j, False)
            put(n1, 33 + j, False)
            cur = [n0, n1]

    def k_role1():
        MX = 136
        e(f"v_max_f32 v{MX}, |v{CC}|, |v{CC + 1}|")
        e(f"v_max3_f32 v{MX}, |v{CC + 2}|, |v{CC + 3}|, v{MX}")
        red("v_max_f32", MX, MX + 1, True)
        e(f"v_frexp_exp_i32_f32 v{MX}, v{MX}")
        e(f"v_add_f32 v{KA}, v{KA}, v{KA}")
        e(f"v_ldexp_f32 v{MX + 2}, v{KA}, v{MX}")
        e(f"v_mov_b32 v{MX + 3}, v{KA + 7}")
        e(f"v_sub_u32 v{MX}, 0, v{MX}")
        for i in range(4):
            e(f"v_ldexp_f32 v{CC + i}, v{CC + i}, v{MX}")
        e(f"v_add_u32 v{MX + 1}, {sKR}, v{vYS}")
        e(f"v_mov_b32 v{MX}, 0")
        g.lds(f"ds_write_b64 v{MX + 1}, {vr(MX + 2, 2)} offset:{YSO}", "xy")
        g.lds(f"ds_write_b32 v{MX + 1}, v{MX}", "xy")
        Z, Q, Q4 = 156, 160, 164
        cexp(Z, 1, TM)
        cexp(Q, 256, TM)
        cexp(Q4, 1024, TM)
        X = [168 + 4 * i for i in range(8)]
        X[0] = CC
        put(CC, 0, True)
        for s in range(1, 8):
            cmul(X[s], X[s - 1], Z, TM)
            put(X[s], s, True)
        R8 = [200 + 4 * i for i in range(4)]
        for s in range(4):
            cmul(R8[s], X[2 * s], Q, TM)
            put(R8[s], 8 + s, True)
        R12 = [216, 220]
        for s in range(2):
            cmul(R12[s], R8[2 * s], Q, TM)
            put(R12[s], 12 + s, True)
        for s in range(2):
            cmul(X[1 + 2 * s], R12[s], Q, TM)
            put(X[1 + 2 * s], 14 + s, True)
        cmul(R8[0], CC, Q4, TM)
        put(R8[0], 16, True)
        cmul(R8[1], R8[0], Q, TM)
        put(R8[1], 17, True)
        cmul(R8[3], R8[1], Q, TM)
        put(R8[3], 18, True)
        cmul(R8[1], R8[3], Q, TM)
        put(R8[1], 19, True)
        cmul(R8[2], R8[0], Q4, TM)
        put(R8[2], 20, True, lastrow=True)

    def kgen(sfx, units, every):
        k_setup()
        e(f"s_cmp_lg_u32 {sRHO}, 0")
        e(f"s_cbranch_scc1 L_role1{sfx}")
        vm_s, lg_s = list(g.vm), list(g.lg)
        us = list(units)
        interleave(k_role0, us, every)
        emit_units(us)
        e(f"s_branch L_kbar{sfx}")
        align()
        g.lab(f"L_role1{sfx}")
        g.vm, g.lg = vm_s, lg_s
        us = list(units)
        interleave(k_role1, us, every)
        emit_units(us)
        g.lab(f"L_kbar{sfx}")
        stamp("kvalu_end")

    def kgen_mfma():
        KF = 64
        for ks in range(8):
            g.lds(f"ds_read_b128 {vr(KF + 4 * ks, 4)}, v{vKA_A} offset:{64 * ks}", ("ka", ks))
            g.lds(f"ds_read_b128 {vr(128 + 4 * ks, 4)}, v{vKA_B} offset:{YR0 * XYP + 64 * ks}", ("kb0", ks))
            g.lds(f"ds_read_b128 {vr(160 + 4 * ks, 4)}, v{vKA_B} offset:{(YR0 + 16) * XYP + 64 * ks}", ("kb1", ks))
        KD = 96
        for ks in range(8):
            g.wlg(("kb1", ks))
            e(f"v_mfma_f32_16x16x32_f16 {vr(KD, 4)}, {vr(KF + 4 * ks, 4)}, {vr(128 + 4 * ks, 4)}, {'0' if ks == 0 else vr(KD, 4)}")
            e(f"v_mfma_f32_16x16x32_f16 {vr(KD + 4, 4)}, {vr(KF + 4 * ks, 4)}, {vr(160 + 4 * ks, 4)}, {'0' if ks == 0 else vr(KD + 4, 4)}")
        g.nop(7)
        for i in range(8):
            g.lds(f"ds_write_b32 v{SC + i}, v{KD + i}", "tw")

    vm0 = ["cpf"]
    u0, u0b = split_units(dma_units(0), opt.get("nf", 4))
    def g1_early():
        for i in range(2, 8):
            d = 16 * 1280 - 1024 * ((i & 3) - ((i - 2) & 3))
            e(f"v_add_u32 v{vXO + i}, {d}, v{vXO + i - 2}")
        rest_setup()
    interleave(g1_early, u0, opt.get("pe0", 2))
    assert not u0
    e(f"s_mov_b32 {sRND}, 1")
    rest_loads()
    aE, aL = addr_items(XYB_G1, TB_G1)
    table_code(TB_G1)
    run_items(aE)
    rb1()
    if diag and not opt.get("dbg"):
        e("s_memrealtime s[100:101]\ns_waitcnt lgkmcnt(0)\nv_writelane_b32 v127, s100, 58")
    g.sfree += [88, 90]
    g.wvm("ln")
    stamp("par_data")
    u0c, u0d = split_units(u0b, opt.get("nl", 4))
    interleave(ln_code, u0c, opt.get("pe1", 30))
    emit_units(u0c)
    ln_tail()
    stamp("ln_done")
    g.wvm("ep")
    tag_code()
    e(f"s_lshl_b32 {sT3}, s2, 2")
    e(f"s_add_u32 {sT3}, {sT3}, {LNF}")
    e(f"s_cmp_eq_u32 {sW}, 0")
    e(f"s_cselect_b32 {sT3}, {sT3}, {OOB}")
    e("s_barrier")
    kgen("g", u0d + dma_units(1) + csl_units(), opt.get("pek", 11))
    g.wvm("lnst")
    g.wlg0()
    e("s_barrier")
    flag_store(sT3)
    kgen_mfma()
    stamp("kdone")
    e("v_and_b32 v2, 31, v0")
    e("v_lshrrev_b32 v3, 5, v0")
    e("v_bfe_u32 v4, v0, 1, 3")
    e("v_xor_b32 v4, v4, v3")
    e(f"v_lshl_add_u32 v2, v2, 7, {sXM0}")
    for ks in range(4):
        e(f"v_xor_b32 v5, {2 * ks}, v4")
        e(f"v_lshl_add_u32 v{vBA + ks}, v5, 4, v2")
        e(f"v_add_u32 v{vBA + 4 + ks}, {2 * SLOT}, v{vBA + ks}")
    e("v_bfe_u32 v6, v0, 2, 2")
    e("v_and_b32 v7, 3, v0")
    e("v_lshl_add_u32 v2, v3, 3, v6")
    e("v_lshlrev_b32 v2, 7, v2")
    e("v_bfe_u32 v4, v0, 4, 1")
    e("v_lshl_add_u32 v2, v4, 5, v2")
    e("v_lshl_add_u32 v2, v7, 3, v2")
    e("v_lshrrev_b32 v3, 1, v6")
    e(f"v_xor_b32 v3, {sRHO}, v3")
    e(f"s_lshl_b32 {sT1}, {sC}, 13")
    e("v_lshl_add_u32 v2, v3, 6, v2")
    e(f"v_add_u32 v{vAA}, {sT1}, v2")
    e(f"v_xor_b32 v{vAA + 1}, 64, v{vAA}")
    e(f"v_xor_b32 v{vAA + 2}, 0x2000, v{vAA}")
    e(f"v_xor_b32 v{vAA + 3}, 0x2000, v{vAA + 1}")
    for i in range(4):
        e(f"v_add_u32 v{vAA + 4 + i}, {2 * SLOT}, v{vAA + i}")

    def touch_setup():
        return [f"s_lshr_b32 {sF0}, {sQ}, 2", f"s_mul_i32 {sF0}, {sF0}, 10", f"v_add_u32 v2, {sF0}, v0",
                "v_min_u32 v2, 63, v2", "v_mul_u32_u24 v2, 1280, v2", f"v_mov_b32 v3, {OOB}",
                f"v_cmp_lt_u32 vcc, 9, v0\ns_nop 1\nv_cndmask_b32 v{vTO}, v2, v3, vcc",
                f"s_and_b32 {sF0}, {sQ}, 3", f"s_lshl_b32 {sF0}, {sF0}, 1", f"s_add_u32 {sF0}, {sF0}, {sRHO}",
                f"s_lshl_b32 {sF0}, {sF0}, 3", f"s_lshl_b32 {sF1}, {sW}, 4", f"s_sub_u32 {sF0}, {sF0}, {sF1}",
                f"s_add_u32 {sF0}, {sF0}, 64", f"v_add_u32 v2, {sF0}, v0", "v_mul_u32_u24 v2, 3456, v2",
                f"v_cmp_lt_u32 vcc, 7, v0\ns_nop 1\nv_cndmask_b32 v{vTO + 1}, v2, v3, vcc",
                ]

    def touch_units(ahead):
        return [f"s_add_u32 {sT4}, {sXS}, {128 * ahead}",
                ("vm", f"buffer_load_dword v{vFL + 4}, v{vTO}, {SX}, {sT4} offen", "touch"),
                f"s_add_u32 {sT4}, {sWSO}, {64 * 3456 * (ahead - 1)}" if ahead >= 1 else f"s_sub_u32 {sT4}, {sWSO}, {64 * 3456}",
                ("vm", f"buffer_load_dword v{vFL + 4}, v{vTO + 1}, {STW}, {sT4} offen", "touch")]

    def frag_reads(k):
        stage, ks = divmod(k, 4)
        sl = stage % 3
        st4 = 4 if sl == 2 else 0
        so = 0 if sl == 2 else sl * SLOT
        A = vAF + 16 * (k & 1)
        B = vBF + 8 * (k & 1)
        def bread(b):
            return ("lds", f"ds_read_b128 {vr(B + 4 * b, 4)}, v{vBA + st4 + ks} offset:{so + 4096 * b}", ("B", k, b))
        def aread(t, h):
            return ("lds", f"ds_read_b64_tr_b16 {vr(A + 4 * t + 2 * h, 2)}, v{vAA + st4 + t} offset:{so + ks * 2048 + h * 512}", ("A", k, t))
        return [bread(0), aread(0, 0), aread(0, 1), bread(1), aread(1, 0), aread(1, 1), aread(2, 0), aread(2, 1), aread(3, 0), aread(3, 1)]

    e(f"s_mov_b32 {sMASK}, 0xffff0000")
    g.wvm(("dma", 0))
    g.wlg0()
    e("s_barrier")
    stamp("g1_start")
    stamp("c_g1s", cyc=True)
    for it in frag_reads(0):
        g.do(it)

    PACE = opt.get("pace", 2)
    NG = 320
    gaps = [[] for _ in range(NG)]
    head = [[] for _ in range(NG)]
    pre = {}
    vq_big = []

    sq = []
    def add_group(units, earliest, small=False, pace=None):
        vq = sq if small else vq_big
        prel = []
        for u in units:
            if isinstance(u, tuple) and u[0] == "m0":
                prel.append(u[1])
            elif isinstance(u, tuple) or callable(u):
                vq.append([earliest, prel, u, [], pace])
                prel = []
            else:
                prel.append(u)
        if prel:
            vq[-1][3] += prel

    def Bgap(s):
        return 32 * s - 8

    PKV = 48
    pk_fill = [f"s_mov_b32 {sF0}, {0x100000000 // 20 + 1}", f"s_lshl_b32 {sF1}, {sW}, 6"]
    for i3 in range(3):
        pk_fill += [f"v_add_u32 v2, {sF1}, v0"] + ([f"v_add_u32 v2, {256 * i3}, v2"] if i3 else []) + [
            f"v_mul_hi_u32 v3, v2, {sF0}", "v_mul_u32_u24 v12, 20, v3", "v_sub_u32 v12, v2, v12",
            "v_mul_u32_u24 v3, 1280, v3", f"v_lshl_add_u32 v{PKV + i3}, v12, 4, v3"]
    pk_fill += [f"s_lshr_b32 {sHS0}, {sCP}, 2", f"s_and_b32 {sHS1}, {sCP}, 3",
                f"s_mul_i32 {sT2}, {sHS0}, 40960", f"s_mul_i32 {sF0}, {sHS1}, 320", f"s_add_u32 {sT2}, {sT2}, {sF0}",
                f"s_lshl_b32 {sT3}, {sW}, 10"]
    pk_fill2 = ["v_lshrrev_b32 v2, 5, v0", "v_bfe_u32 v3, v0, 2, 2", "v_lshl_add_u32 v2, v2, 4, v3", "v_bfe_u32 v3, v0, 4, 1",
                "v_lshl_add_u32 v2, v3, 2, v2", "v_mul_u32_u24 v2, 320, v2", "v_and_b32 v3, 3, v0", "v_lshl_add_u32 v2, v3, 3, v2",
                f"s_lshl_b32 {sF0}, {sW}, 5", f"s_add_u32 {sF0}, {sF0}, {PKB}", f"v_add_u32 v{PKV + 3}, {sF0}, v2"]
    PDR = [56, 60, 8]
    pk_dma = []
    for i3 in range(3):
        pk_dma.append(("m0", f"s_add_u32 m0, {sT3}, {PKB + 4096 * i3}"))
        if i3 == 2:
            pk_dma.append(lambda: e(f"s_cmp_lt_u32 {sW}, 2\ns_cbranch_scc0 L_nopk3\nbuffer_load_dwordx4 v{PKV + 2}, {SWD}, {sT2} offen lds\nL_nopk3:") or g.vm.append("OPT"))
        else:
            pk_dma.append(("vm", f"buffer_load_dwordx4 v{PKV + i3}, {SWD}, {sT2} offen lds", "pkd"))
    pk_st = []
    for i3 in range(3):
        pk_st += [f"s_mul_i32 {sT2}, {sHS1}, 10\ns_add_u32 {sT2}, {sT2}, {sW}\ns_add_u32 {sT2}, {sT2}, {4 * i3}",
                  f"s_mul_i32 {sT3}, {sT2}, 13108\ns_lshr_b32 {sT3}, {sT3}, 16\ns_mul_i32 {sT3}, {sT3}, 265\ns_add_u32 {sT2}, {sT2}, {sT3}",
                  f"s_mul_i32 {sT3}, {sHS0}, 5\ns_add_u32 {sT2}, {sT2}, {sT3}\ns_lshl_b32 {sT2}, {sT2}, 10\ns_add_u32 {sT2}, {sT2}, {WDP}"]
        if i3 == 2:
            pk_st.append(f"s_cmp_lt_u32 {sW}, 2\ns_cselect_b32 {sT2}, {sT2}, {OOB}")
        pk_st.append(("vm", f"buffer_store_dwordx4 {vr(PDR[i3], 4)}, v1, {SWS}, {sT2} offen sc1", "pks"))
    lnflag = [f"s_lshl_b32 {sT1}, s2, 2\ns_add_u32 {sT1}, {sT1}, {LNF}\ns_cmp_eq_u32 {sW}, 0\ns_cselect_b32 {sT1}, {sT1}, {OOB}",
              lambda: flag_store(sT1)]
    def wff():
        g.wvm("pks")
        flag_store(sT1)
    wfflag = [f"s_lshl_b32 {sT1}, {sHS1}, 6\ns_add_u32 {sT1}, {sT1}, {sHS0}\ns_lshl_b32 {sT1}, {sT1}, 2\ns_add_u32 {sT1}, {sT1}, {sW}",
              f"s_lshl_b32 {sT1}, {sT1}, 2\ns_add_u32 {sT1}, {sT1}, {WF}", wff]

    add_group(dma_units(2), opt.get("d2", 4))
    add_group(pk_dma, 20)
    for st_ in range(1, 8):
        if st_ == 2:
            add_group(pk_st, Bgap(2) + 6)
        add_group(dma_units(st_ + 2), Bgap(st_) + {1: opt.get("d3", 10), 2: opt.get("d4", 20), 3: opt.get("d5", 20), 4: opt.get("d6", 0)}.get(st_, 0))
    G0 = 8 * KCHK + 4
    for phi in range(P1):
        add_group(wd_load(phi), G0)
    vsched = []
    occ = set()
    def place(q, pace):
        last = -pace
        for (ear, prel, vmi, post, pc) in q:
            gq = max(ear, last + (pc or pace))
            while gq in occ:
                gq += 1
            assert gq < NG - 1, gq
            occ.add(gq)
            gaps[gq - 1] += prel
            head[gq].append(vmi)
            gaps[gq] = post + gaps[gq]
            last = gq
            vsched.append((gq, vmi[2] if isinstance(vmi, tuple) else "flag"))
    place(vq_big, PACE)
    def gap_of(tag):
        return max(gq for gq, t in vsched if t == tag)
    for st_ in range(1, 8):
        ge = gap_of(("dma", st_ + 2)) + 2
        if st_ == 2:
            add_group([f"s_lshl_b32 {sT1}, {sFT}, 1\ns_add_u32 {sT1}, {sT1}, {sC}\ns_lshl_b32 {sT1}, {sT1}, 3\ns_add_u32 {sT1}, {sT1}, {sM}",
                       f"s_lshl_b32 {sT1}, {sT1}, 1\ns_add_u32 {sT1}, {sT1}, {sRHO}\ns_lshl_b32 {sT1}, {sT1}, 8\ns_add_u32 {sT1}, {sT1}, {CSP}",
                       ("vm", f"buffer_store_dwordx2 {vr(4, 2)}, v6, {SWS}, {sT1} offen sc1", "pks")], gap_of("pks") + 1, True)
        if st_ == 3:
            add_group(wfflag, gap_of(("dma", 4)) + 1, True)
        if st_ == 5:
            add_group([("vm", f"buffer_load_dwordx4 {vr(vFL, 4)}, v{vFA}, {SWS}, 0 offen sc1", "poll"),
                       ("vm", f"buffer_load_dwordx4 {vr(PKV, 4)}, v{vFA + 1}, {SWS}, 0 offen sc1", "poll")], 8 * KCHK - 22, True)
        if TOUCH and st_ + TOUCH <= 9:
            if st_ == 1:
                for a in range(0, TOUCH - 3):
                    add_group(touch_units(a), ge, True)
            add_group(touch_units(TOUCH - 3), ge, True)
        if st_ == 6 and opt.get('wtouch'):
            for t3 in range(3):
                add_group([f"s_and_b32 {sT4}, {sLT}, 3\ns_mul_i32 {sT4}, {sT4}, {140 * 128}\ns_add_u32 {sT4}, {sT4}, {sWDS}" if t3 == 0 else f"s_add_u32 {sT4}, {sT4}, {48 * 128}",
                           ("vm", f"buffer_load_dword v{vFL + 4}, v{PKV + 1}, {SWS}, {sT4} offen sc1", "wtouch")], 8 * KCHK + 4 + 4 * t3, True)
    add_group([f"s_lshl_b32 {sT1}, {sFT}, 1\ns_add_u32 {sT1}, {sT1}, {sC}\ns_lshl_b32 {sT1}, {sT1}, 5\ns_add_u32 {sT1}, {sT1}, {sRHO}",
               f"s_lshl_b32 {sT1}, {sT1}, 7\ns_add_u32 {sT1}, {sT1}, {CSP}",
               ("vm", f"buffer_load_dwordx4 {vr(4, 4)}, v{vCS}, {SWS}, {sT1} offen sc1", "csp"),
               ("vm", f"buffer_load_dwordx4 {vr(8, 4)}, v{vCS}, {SWS}, {sT1} offen offset:2048 sc1", "csp")], G0, True)
    add_group([f"s_lshl_b32 {sT1}, {sM}, 2\ns_add_u32 {sT1}, {sT1}, {sW}\ns_lshl_b32 {sT1}, {sT1}, 10\ns_add_u32 {sT1}, {sT1}, {STATS}",
               ("vm", f"buffer_load_dwordx4 {vr(vSTA, 4)}, v15, {SWS}, {sT1} offen sc1", "stats"),
               ("vm", f"buffer_load_dwordx4 {vr(vSTA + 4, 4)}, v15, {SWS}, {sT1} offen offset:512 sc1", "stats")], G0, True)
    add_group(u_loads(sCP, 3), G0, True)
    place(sq, 1)
    vsched.sort()
    if opt.get("v"):
        print(vsched)
    assert all(gap_of(("dma", st_)) < Bgap(st_) - 12 for st_ in range(2, 10))
    assert gap_of("pkd") < Bgap(2) and gap_of("pks") < gap_of(("dma", 4)) - 24 and gap_of("poll") < 8 * KCHK - 6

    for i3 in range(3):
        for h in range(2):
            gaps[Bgap(2) + 1 + i3].append(("lds", f"ds_read_b64_tr_b16 {vr(PDR[i3] + 2 * h, 2)}, v{PKV + 3} offset:{128 * i3 + 8 * 320 * h}", "pk"))
    c4 = check4(vFL)
    gaps[8 * KCHK] += [("wvm", "poll")] + c4[0:2]
    gaps[8 * KCHK + 1] += c4[2:5]
    def chk():
        sl = g.newlab("Lslow")
        bk = g.newlab("Lback")
        for x in check4(PKV)[:6]:
            e(x)
        e(f"v_or3_b32 v{vFL}, v{vFL}, v{vFL + 3}, v{PKV}")
        e(c4[6])
        e(f"s_cbranch_vccnz {sl}")
        g.lab(bk)
        g.slow.append((sl, bk, [(vFA, True), (vFA + 1, True)]))
    gaps[8 * KCHK + 2].insert(0, chk)

    CA = [4, 5, 6, 7, 42, 43, 44, 45]
    csum = []
    for j5 in range(5):
        csum.append(("wvm", ("csl", j5)))
        for d in range(4):
            r = CSR[j5] + d
            if j5 == 0:
                csum += [f"v_lshlrev_b32 v{CA[2 * d]}, 16, v{r}", f"v_and_b32 v{CA[2 * d + 1]}, {sMASK}, v{r}"]
            else:
                csum += [f"v_lshlrev_b32 v8, 16, v{r}", f"v_and_b32 v9, {sMASK}, v{r}",
                         f"v_add_f32 v{CA[2 * d]}, v{CA[2 * d]}, v8", f"v_add_f32 v{CA[2 * d + 1]}, v{CA[2 * d + 1]}, v9"]
    csum += ["s_nop 1"]
    csum += [f"v_permlane32_swap_b32 v{CA[c]}, v{CA[c + 4]}" for c in range(4)]
    csum += [f"v_add_f32 v{CA[c]}, v{CA[c]}, v{CA[c + 4]}" for c in range(4)]
    csum += ["s_nop 1"]
    csum += [f"v_permlane16_swap_b32 v{CA[c]}, v{CA[c + 2]}" for c in range(2)]
    csum += ["s_nop 0"]
    csum += [f"v_add_f32 v{CA[c]}, v{CA[c]}, v{CA[c + 2]}" for c in range(2)]
    csum += ["v_and_b32 v6, 7, v0", "v_lshlrev_b32 v6, 5, v6"]
    csum += [f"v_add_f32 v{CA[c]}, v{CA[c]}, v{CA[c]} row_ror:8" for c in range(2)]
    csum += ["v_lshrrev_b32 v7, 4, v0", "v_lshl_add_u32 v6, v7, 3, v6", f"v_mov_b32 v7, {OOB}",
             "v_and_b32 v8, 8, v0", "v_cmp_ne_u32 vcc, 0, v8\ns_nop 1\nv_cndmask_b32 v6, v6, v7, vcc"]
    fillq = pk_fill + (touch_setup() if TOUCH else []) + pk_fill2[:11]
    n_a = len(fillq)
    fillq += csum
    n_csum = len(fillq)
    n_early = len(pk_fill)
    fillq += pk_fill2[11:]
    n_early2 = len(fillq)
    fillq += [f"v_min_u32 v2, 53, v0", f"s_lshr_b32 {sF0}, {sDT}, 1", f"s_lshl_b32 {sF0}, {sF0}, 10",
              f"s_add_u32 {sF0}, {sF0}, {WF}", f"v_lshl_add_u32 v2, v2, 4, {sF0}",
              "v_and_b32 v3, 7, v0", "v_mul_u32_u24 v3, 27, v3", f"v_add_u32 v3, {sFT}, v3", "v_and_b32 v12, 3, v3",
              "v_lshrrev_b32 v3, 2, v3", "v_lshl_add_u32 v3, v12, 6, v3", "v_lshlrev_b32 v3, 4, v3", f"v_add_u32 v3, {WF}, v3",
              f"v_cmp_lt_u32 vcc, 55, v0\ns_nop 1\nv_cndmask_b32 v{vFA + 1}, v2, v3, vcc"]
    iw = max(i for i, x in enumerate(aL) if sWDS + "," in x)
    i0 = min(i for i, x in enumerate(aL) if f"{sF0}, {sW}, 14" in x)
    iu = max(i for i, x in enumerate(aL) if f"a{AS2 + 23}," in x)
    fillq += [f"v_add_u32 v{vFA}, {LNF}, v1"] + aL[i0:iw + 1] + ["v_lshrrev_b32 v3, 1, v0", "v_and_b32 v2, 1, v0", "v_mul_u32_u24 v3, 10240, v3", "v_lshl_add_u32 v3, v2, 4, v3",
                              f"v_accvgpr_write_b32 a{AS2 + 23}, v3"]
    n_mid = len(fillq)
    late_fill = aL[:i0] + aL[i0:i0 + 3] + aL[iw + 1:] + gather_items(TB_G1)
    late_fill = [x.replace("v12", "v10").replace("v13", "v11").replace("v14", "v46").replace("v15", "v47") for x in late_fill]
    fillq += ["v_bfe_u32 v2, v0, 4, 1", f"v_mul_u32_u24 v2, {54 * 1024}, v2", "v_lshrrev_b32 v3, 5, v0",
              "v_lshl_add_u32 v2, v3, 8, v2", "v_and_b32 v12, 15, v0", "v_lshl_add_u32 v2, v12, 4, v2",
              f"s_lshl_b32 {sF0}, {sRHO}, 10", f"v_add_u32 v{vHO}, {sF0}, v2", f"s_xor_b32 {sF0}, {sF0}, 1024",
              f"v_add_u32 v{vHO + 1}, {sF0}, v2", f"s_lshl_b32 {sF0}, {sRHO}, 7", f"s_add_u32 {sF0}, {sF0}, {CSB}",
              f"v_lshl_add_u32 v13, v3, 4, {sF0}", "v_xor_b32 v14, 128, v13",
              "v_and_b32 v2, 7, v0", "v_lshlrev_b32 v12, 4, v2", "v_lshl_add_u32 v12, v3, 3, v12", "v_bfe_u32 v3, v0, 4, 1",
              "v_lshl_add_u32 v12, v3, 2, v12", f"s_lshl_b32 {sF0}, {sW}, 7", f"s_add_u32 {sF0}, {sF0}, {CSB}",
              f"v_add_u32 v12, {sF0}, v12", "v_lshrrev_b32 v3, 3, v0", "v_lshlrev_b32 v3, 8, v3", f"v_lshl_add_u32 v{vCS}, v2, 4, v3",
              "v_and_b32 v15, 31, v0", "v_lshlrev_b32 v15, 4, v15"]
    tail_fill = [f"s_lshl_b32 {sHS0}, {sM}, 2", f"s_add_u32 {sHS0}, {sHS0}, {sW}", f"s_lshl_b32 {sPEND}, {sHS0}, 5",
                 f"s_mul_i32 {sHS0}, {sHS0}, {4 * 54}", f"s_lshl_b32 {sT2}, {sFT}, 1", f"s_add_u32 {sHS0}, {sHS0}, {sT2}",
                 f"s_lshl_b32 {sHS0}, {sHS0}, 10", f"s_add_u32 {sHS0}, {sHS0}, {HB}", f"s_add_u32 {sHS1}, {sHS0}, {2 * 54 * 1024}",
                 f"s_add_u32 {sPEND}, {sPEND}, {sFT}", f"s_lshl_b32 {sPEND}, {sPEND}, 7", f"s_add_u32 {sPEND}, {sPEND}, {HF}"]
    cs_fill = [("wvm", "csp")] + [f"v_add_f32 v{4 + c}, v{4 + c}, v{8 + c}" for c in range(4)] + ["s_nop 0",
               "v_permlane32_swap_b32 v4, v6", "v_permlane32_swap_b32 v5, v7", "s_nop 0", "v_add_f32 v4, v4, v6", "v_add_f32 v5, v5, v7",
               "s_nop 1", "v_permlane16_swap_b32 v4, v5", "s_nop 0", "v_add_f32 v4, v4, v5", "s_nop 1",
               "v_add_f32 v4, v4, v4 row_ror:8", ("lds", "ds_write_b32 v12, v4", "csw")]
    nf_total = len(fillq)

    def cost(it):
        if isinstance(it, str):
            return it.count("\n") + 1
        return 1
    CAP = opt.get("cap", 4)
    for k in range(40):
        stage, ks = divmod(k, 4)
        A = vAF + 16 * (k & 1)
        B = vBF + 8 * (k & 1)
        gk = [head[8 * k + i] + gaps[8 * k + i] for i in range(8)]
        body = [[] for _ in range(8)]
        if k + 1 < 40:
            for i, it in enumerate(frag_reads(k + 1)):
                body[i // 2].append(it)
        if k == 39:
            for j in range(4):
                body[2 + j // 2].append(("lds", f"ds_read_b128 {vr(64 + 4 * j, 4)}, v13 offset:{32 * j}", "cs0"))
            for j in range(4):
                dst = (4 + 4 * j) if j < 2 else (96 + 4 * (j - 2))
                body[4 + j // 2].append(("lds", f"ds_read_b128 {vr(dst, 4)}, v13 offset:{256 + 32 * j}", "cs0"))
        else:
            load = [sum(map(cost, gk[i])) + len(body[i]) + (1 if i in (3, 7) else 0) for i in range(8)]
            q = fillq if fillq else (tail_fill if (k >= 18 and tail_fill) else late_fill)
            if k == KCHK or (q is late_fill and (k < 10 or 29 <= k <= 34)):
                q = []
            if k == 29:
                assert not late_fill, len(late_fill)
            if k in (33, 34) and cs_fill:
                q = cs_fill
            cap = CAP + (1 if k < 9 else opt.get('capx', 1))
            for i in range(8):
                while q and load[i] + cost(q[0]) <= cap + (2 if cost(q[0]) > 1 else 0):
                    it = q.pop(0)
                    body[i].append(it)
                    load[i] += cost(it)
            if k == 2:
                assert nf_total - len(fillq) >= n_early, (nf_total - len(fillq), n_early)
            if k == 5:
                assert nf_total - len(fillq) >= n_a
            if k == 6:
                assert nf_total - len(fillq) >= n_a + 30
            if 8 * k + 8 >= gap_of("pks") - 1:
                assert nf_total - len(fillq) >= n_csum, (nf_total - len(fillq), n_csum)
            if k == 13:
                assert nf_total - len(fillq) >= n_early2
            if k == KCHK - 4:
                assert nf_total - len(fillq) >= n_mid
            if 8 * k + 8 > gap_of("stats") - 4:
                assert not fillq, (k, len(fillq))
        if ks == 3 and stage < 9:
            stamp(f"c_w{stage + 1}", cyc=True)
            g.wlg0()
            if stage == 1:
                g.wvm("OPT")
            g.wvm(("dma", stage + 1))
            e("s_barrier")
            stamp(f"c_b{stage + 1}", cyc=True)
        for i in range(8):
            t, b = divmod(i, 2)
            if k == 0:
                g.wlg(("A", k, t))
                g.wlg(("B", k, b))
            elif i == 0:
                g.wlg(("A", k, 1))
            elif i == 4:
                g.wlg(("A", k, 3))
            D = vACC + 16 * (2 * t + b)
            Cs = "0" if k == 0 else vr(D, 16)
            e(f"v_mfma_f32_32x32x16_bf16 {vr(D, 16)}, {vr(A + 4 * t, 4)}, {vr(B + 4 * b, 4)}, {Cs}")
            for it in head[8 * k + i]:
                if isinstance(it, tuple) and it[2] == "pks":
                    g.wlg("pk")
                g.do(it)
            for it in body[i] + gaps[8 * k + i]:
                g.do(it)
    assert not tail_fill and not cs_fill and not late_fill, len(late_fill)
    stamp("c_g1e", cyc=True)
    stamp("g1_loop_end", flush=True)

    def csu0(i):
        return (4 + i) if i < 8 else (96 + i - 8)
    def csu1(i):
        return (104 + i) if i < 8 else (28 + i - 8)
    tmps = [24, 26, 36, 38]
    g.wvm("stats")
    g.wlg("cs0")
    e(f"s_cmp_lg_u32 {sC}, 0")
    e("s_cbranch_scc1 L_epiB")
    vm_save, lg_save = list(g.vm), list(g.lg)
    for variant in range(2):
        if variant == 1:
            align()
            g.lab("L_epiB")
            g.vm, g.lg = list(vm_save), list(lg_save)
        align()
        for ap in range(2):
            for b in range(2):
                gs, us = (ap, 2 + ap) if variant == 0 else (2 + ap, ap)
                Gt = vACC + 16 * (2 * gs + b)
                Ut = vACC + 16 * (2 * us + b)
                st = vSTA + 4 * b
                if ap == 0 and b == 1:
                    for j in range(4):
                        g.lds(f"ds_read_b128 {vr(80 + 4 * j, 4)}, v14 offset:{32 * j}", "cs1")
                    for j in range(4):
                        dst = (104 + 4 * j) if j < 2 else (28 + 4 * (j - 2))
                        g.lds(f"ds_read_b128 {vr(dst, 4)}, v14 offset:{256 + 32 * j}", "cs1")
                if ap == 1 and b == 0:
                    g.wlg("cs1")
                    align()
                csg = (lambda i: 64 + i) if ap == 0 else (lambda i: 80 + i)
                csu = csu0 if ap == 0 else csu1
                for c in range(2):
                    O = 16 if c == 0 else 20
                    ps = range(4 * c, 4 * c + 4)
                    for p in ps:
                        e(f"v_pk_fma_f32 {vr(Gt + 2 * p, 2)}, {vr(csg(2 * p), 2)}, {vr(st, 2)}, {vr(Gt + 2 * p, 2)} op_sel_hi:[1,0,1]")
                    for p in ps:
                        e(f"v_pk_mul_f32 {vr(tmps[p % 4], 2)}, {vr(Gt + 2 * p, 2)}, {vr(Gt + 2 * p, 2)}")
                    for p in ps:
                        t = tmps[p % 4]
                        e(f"v_pk_fma_f32 {vr(t, 2)}, {vr(t, 2)}, {vr(st, 2)}, {vr(st + 2, 2)} op_sel:[0,1,0] op_sel_hi:[1,1,0]")
                    for p in ps:
                        t = tmps[p % 4]
                        e(f"v_pk_mul_f32 {vr(t, 2)}, {vr(t, 2)}, {vr(Gt + 2 * p, 2)}")
                    for p in ps:
                        t = tmps[p % 4]
                        e(f"v_exp_f32 v{t}, v{t}")
                        e(f"v_exp_f32 v{t + 1}, v{t + 1}")
                    for p in ps:
                        e(f"v_pk_fma_f32 {vr(Ut + 2 * p, 2)}, {vr(csu(2 * p), 2)}, {vr(st, 2)}, {vr(Ut + 2 * p, 2)} op_sel_hi:[1,0,1]")
                    for p in ps:
                        t = tmps[p % 4]
                        e(f"v_pk_fma_f32 {vr(t, 2)}, {vr(t, 2)}, {vr(st + 2, 2)}, {vr(st + 2, 2)} op_sel:[0,1,1] op_sel_hi:[1,1,1]")
                    for p in ps:
                        t = tmps[p % 4]
                        e(f"v_rcp_f32 v{t}, v{t}")
                        e(f"v_rcp_f32 v{t + 1}, v{t + 1}")
                    for p in ps:
                        e(f"v_pk_mul_f32 {vr(Gt + 2 * p, 2)}, {vr(Gt + 2 * p, 2)}, {vr(Ut + 2 * p, 2)}")
                    for p in ps:
                        e(f"v_pk_mul_f32 {vr(Gt + 2 * p, 2)}, {vr(Gt + 2 * p, 2)}, {vr(tmps[p % 4], 2)}")
                    for p in ps:
                        e(f"v_cvt_pk_bf16_f32 v{O + p - 4 * c}, v{Gt + 2 * p}, v{Gt + 2 * p + 1}")
                    g.vmem(f"buffer_store_dwordx4 {vr(O, 4)}, v{vHO + ap}, {SWS}, {sHS0 if b == 0 else sHS1} offen offset:{512 * c} sc1", "hst")
        if variant == 0:
            e("s_branch L_epi_done")
    g.lab("L_epi_done")
    stamp("c_epe", cyc=True)
    stamp("g1_epi_end", flush=True)
    e(f"s_mov_b32 {sMASK}, {sPEND}")

    def rb2():
        for i in range(22):
            e(f"v_accvgpr_read_b32 v{GA + i}, a{AST + 8 + i}")
        for i in range(2, 8):
            e(f"v_accvgpr_read_b32 v{AK + i}, a{AS2 + 1 + i}")
        e("v_mov_b32 v4, 0\nv_mov_b32 v5, 0\nv_mov_b32 v6, 0\nv_mov_b32 v7, 0")
        e(f"ds_write_b128 v{vZ}, {vr(4, 4)}")
    rb2()

    Greg = [[224 + 4 * i for i in range(8)], [192 + 4 * i for i in range(8)]]
    FB = [128, 160]
    CACC = 64
    HRING = [16 + 4 * i for i in range(12)] + [104 + 4 * i for i in range(3)] + [128 + 4 * i for i in range(26)]
    NE = opt.get("ne", 15)
    P2 = opt.get("p2", 40)
    NB = len(HRING)
    YS, DK = 100, 101

    def hload(i):
        k, st = divmod(i, 14)
        r = HRING[i % NB]
        if st == 13:
            return [f"s_cmp_lt_u32 {sW}, 2\ns_cselect_b32 {sT4}, s{sG2 + 4 * k + 3}, {OOB}",
                    ("vm", f"buffer_load_dwordx4 {vr(r, 4)}, v1, {SWS}, {sT4} offen offset:1024 sc1", ("h", i))]
        return [("vm", f"buffer_load_dwordx4 {vr(r, 4)}, v1, {SWS}, s{sG2 + 4 * k + st // 4} offen offset:{(st % 4) * 1024} sc1", ("h", i))]

    def conv(last):
        tag = "L" if last else "E"
        g.lab("L_conv_last" if last else "L_conv_early")
        g.vm = ["u", "u"]
        g.lg = []
        def wd_e(phi):
            its = wd_load(phi)
            if len(its) > 1:
                its.insert(1, f"s_or_b32 {sT5}, {sT5}, {sK0}")
            return its
        if last:
            wq = [[f"s_add_u32 m0, {sXT}, {1024 * kk}", "s_nop 0",
                   ("vm", f"buffer_load_dwordx4 v{12 + kk}, {SX}, {sXO} offen lds", ("xt", 0))] for kk in range(3)]
            wq += [wd_load(phi) for phi in range(P1, 64)]
            for i7 in range(7):
                e(f"v_accvgpr_read_b32 v{9 + i7}, a{AS2 + 14 + i7}")
        else:
            wq = [wd_e(phi) for phi in range(0, P1)]
            g.vmem(f"buffer_load_dwordx4 {vr(vFL, 4)}, v{vFA + 1}, {SWS}, 0 offen sc1", "wfp")
        def wdl(n=1):
            for _ in range(n):
                if wq:
                    for it in wq.pop(0):
                        g.do(it)
        EG = 128
        for ch in range(2):
            for k in range(11):
                g.lds(f"ds_read_b32 v{EG + 12 * ch + k}, v{GA + 11 * ch + k}", ("eg", ch))
        g.lds(f"ds_read_b64 {vr(YS, 2)}, v{vYS} offset:{YSO}", "ysc")
        if last:
            wdl(3)
        g.wvm("u")
        g.lds(f"ds_write_b128 v{vUW}, {vr(vU, 4)}", "uw")
        g.lds(f"ds_write_b128 v{vUW}, {vr(vU + 4, 4)} offset:512", "uw")
        if last:
            e(f"s_or_b32 {sT1}, s2, {sW}")
            e(f"s_cmp_eq_u32 {sT1}, 0")
            e(f"s_cselect_b32 {sT1}, {EPOCH}, {OOB}")
            flag_store(sT1)
        EO = 64
        for ch in range(2):
            g.wlg(("eg", ch))
            align()
            for s in range(4):
                o = EO + 16 * ch + 4 * s
                for j in range(4):
                    e(f"v_cvt_pk_f16_f32 v{o + j}, v{EG + 12 * ch + s + 2 * j}, v{EG + 12 * ch + s + 2 * j + 1}")
                g.lds(f"ds_write_b128 v{vRW}, {vr(o, 4)} offset:{s * RCS + 1024 * ch}", "rw")
                if last and s % 2 == 1:
                    wdl()
            if last and ch == opt.get("hch", 1):
                e(f"s_waitcnt vmcnt({len(g.vm)})")
                flag_store(sMASK)
        if not last:
            e("s_waitcnt vmcnt(0)")
            flag_store(sMASK)
        if last:
            wdl(2)
        else:
            for x in check4(vFL):
                e(x)
            e("s_nop 0")
            e("s_cmp_eq_u64 vcc, 0")
            e(f"s_cselect_b32 {sK0}, 0, {OOB}")
        extra = [f"v_accvgpr_read_b32 v{4 + i}, a{AS2 + 9 + i}" for i in range(5)]
        extra += [f"s_lshl_b32 {sT1}, {sCP}, 1", f"s_add_u32 {sT1}, {sT1}, {sC}", f"s_lshl_b32 {sT1}, {sT1}, 12",
                  f"s_lshl_b32 {sT3}, {sRHO}, 11", f"s_add_u32 {sT1}, {sT1}, {sT3}", f"s_add_u32 {sHS0}, {sT1}, {ST}",
                  f"s_lshl_b32 {sT2}, {sCP}, 5", f"s_add_u32 {sT2}, {sT2}, {sW}",
                  f"s_lshl_b32 {sT2}, {sT2}, 2", f"s_add_u32 {sPEND}, {sT2}, {SF}"]
        if last:
            extra += [f"v_accvgpr_read_b32 v{vFA + i}, a{AS2 + 21 + i}" for i in range(2)]
            extra += ["v_min_u32 v3, 53, v0", "v_lshlrev_b32 v3, 7, v3",
                      f"s_lshl_b32 {sT0}, {sDT}, 2", f"s_add_u32 {sT0}, {sT0}, {sW}", f"s_mul_i32 {sT0}, {sT0}, {54 * 128}",
                      f"s_mul_i32 {sHS1}, {sLT}, {4 * 54 * 1024}", f"s_add_u32 {sHS1}, {sHS1}, {sT0}", f"s_add_u32 {sHS1}, {sHS1}, {HB}"]
        g.wlg0()
        e("s_barrier")
        stamp("c_cs" + tag, cyc=True)
        stamp("conv_start" + tag)

        def cls_reads(dl):
            bf = dl & 1
            out = []
            for s in range(8):
                out.append(("lds", f"ds_read_b128 {vr(Greg[bf][s], 4)}, v{vGB} offset:{512 * s + 64 * (3 - dl)}", ("G", dl, s)))
                off = 64 * (59 - dl - 8 * s)
                out.append(("lds", f"ds_read_b64 {vr(FB[bf] + 4 * s, 2)}, v{vFB} offset:{off}", ("F", dl, s)))
                out.append(("lds", f"ds_read_b64 {vr(FB[bf] + 4 * s + 2, 2)}, v{vFB} offset:{off + 8}", ("F", dl, s)))
            return out
        for it in cls_reads(0):
            g.do(it)
        order = sorted([(s, gg) for s in range(8) for gg in range(8) if s + gg < 8], key=lambda x: (max(x), x[0] + x[1]))
        seen = set()
        hq = []
        US, UD = 2, 96
        for dl in range(4):
            bf = dl & 1
            nxt = cls_reads(dl + 1) if dl < 3 else []
            if dl == 3:
                nxt = [("lds", f"ds_read_b64 {vr(128 + 2 * tt, 2)}, v6 offset:{512 * tt}", "us") for tt in range(4)]
                nxt += [None] * 6 + [("wlg", "us")]
                for tt in range(4):
                    for i in range(4):
                        src = 128 + 2 * tt + (i >> 1)
                        nxt.append(f"v_fma_mix_f32 v{136 + 4 * tt + i}, v{src}, v{DK}, 0 op_sel:[{i & 1},0,0] op_sel_hi:[1,0,0]")
            if last and dl == 3:
                g.wvm("hfp")
                e(f"v_cmp_ne_u32 vcc, v{vTAG}, v{vFL}")
                e("s_nop 0")
                e("s_cmp_eq_u64 vcc, 0")
                e(f"s_cselect_b32 {sK1}, 1, 0")
                e(f"s_cselect_b32 {sT0}, 0, {OOB}")
                tch = [f"s_or_b32 {sT4}, {sHS1}, {sT0}", ("vm", f"buffer_load_dword v{vFL + 4}, v3, {SWS}, {sT4} offen sc1", "ht")]
                TP = opt.get("tp", -1)
                for i in range(NE):
                    k_, st_ = divmod(i, 14)
                    if i == TP:
                        hq.append(tch)
                    pre_ = [f"s_or_b32 {sT4}, s{sG2 + 4 * k_ + st_ // 4}, {sT0}"] if (st_ % 4 == 0 or st_ == 13 or i == TP) else []
                    if st_ == 13:
                        pre_.append(f"s_cmp_lt_u32 {sW}, 2\ns_cselect_b32 {sT4}, {sT4}, {OOB}")
                    hq.append(pre_ + [("vm", f"buffer_load_dwordx4 {vr(HRING[i], 4)}, v1, {SWS}, {sT4} offen offset:{(st_ % 4) * 1024} sc1", ("he", i))])
                if TP == NE:
                    hq.append(tch)
            if dl > 0:
                g.wlg(("F", dl, 7))
            for mi, (s, gg) in enumerate(order):
                t = s + gg
                if dl == 0:
                    g.wlg(("G", dl, gg))
                    g.wlg(("F", dl, s))
                Cs = "0" if t not in seen else vr(CACC + 4 * t, 4)
                seen.add(t)
                e(f"v_mfma_f32_16x16x32_f16 {vr(CACC + 4 * t, 4)}, {vr(FB[bf] + 4 * s, 4)}, {vr(Greg[bf][gg], 4)}, {Cs}")
                start = 8 if dl == 0 else 1
                if mi >= start and nxt:
                    it = nxt.pop(0)
                    if it is not None:
                        g.do(it)
                elif extra:
                    g.do(extra.pop(0))
                if mi % 2 == 1 and extra and mi >= start:
                    g.do(extra.pop(0))
                mc = 36 * dl + mi
                if mc % 4 == 2:
                    nphi = wq[0][-1][2][1] if wq else 0
                    if last and mc == opt.get("hfp", 86):
                        assert not extra
                        g.vmem(f"buffer_load_dword v{vFL}, v{vFA}, {SWS}, 0 offen sc1", "hfp")
                    elif hq:
                        for it in hq.pop(0):
                            g.do(it)
                    elif wq and not (last and extra and nphi >= 48):
                        wdl()
            assert not nxt, len(nxt)
        while wq and not last:
            wdl()
        assert not wq and not extra, (len(wq), len(extra))
        def hl(n=1):
            for _ in range(n):
                if hq:
                    for it in hq.pop(0):
                        g.do(it)
        stamp("c_ce" + tag, cyc=True)
        stamp("conv_end" + tag)
        lr1 = g.newlab("Lfin1")
        lfd = g.newlab("Lfind")
        e(f"s_cmp_lg_u32 {sRHO}, 0")
        e(f"s_cbranch_scc1 {lr1}")
        lg_save, pst_save, sf_save = list(g.lg), list(g.pst), list(g.sfree)
        for rho in range(2):
            if rho == 1:
                g.lab(lr1)
                g.lg, g.pst, g.sfree = list(lg_save), list(pst_save), list(sf_save)
            own = CACC + 16 * rho
            oth = CACC + 16 * (1 - rho)
            g.nop(6)
            for tt in range(4):
                g.lds(f"ds_write_b128 v4, {vr(oth + 4 * tt, 4)} offset:{PB + 1024 * tt}", "pw")
            align()
            for tt in range(4):
                for i in range(4):
                    e(f"v_fma_f32 v{136 + 4 * tt + i}, v{own + 4 * tt + i}, v{YS}, v{136 + 4 * tt + i}")
            if rho == 0:
                e(f"s_branch {lfd}")
        g.lab(lfd)
        g.wlg0()
        e("s_barrier")
        for tt in range(4):
            g.lds(f"ds_read_b128 {vr(152 + 4 * tt, 4)}, v5 offset:{PB + 1024 * tt}", ("pr", tt))
        hl(2)
        for tt in range(4):
            g.wlg(("pr", tt))
            for i in range(4):
                e(f"v_fmac_f32 v{136 + 4 * tt + i}, v{152 + 4 * tt + i}, v{YS}")
            for h in range(2):
                e(f"v_cvt_pk_bf16_f32 v{128 + 2 * tt + h}, v{136 + 4 * tt + 2 * h}, v{136 + 4 * tt + 2 * h + 1}")
            g.lds(f"ds_write_b64 v7, {vr(128 + 2 * tt, 2)} offset:{512 * tt}", "sw")
            hl(1)
        hl(1)
        g.wlg0()
        for j in range(2):
            g.lds(f"ds_read_b128 {vr(88 + 4 * j, 4)}, v8 offset:{1024 * j}", ("sr", j))
        hl(9)
        assert not hq
        if not last:
            e(f"s_add_u32 {sCP}, {sCP}, 40")
            for i in range(22):
                e(f"v_add_u32 v{GA + i}, {2 * TC}, v{GA + i}")
            e(f"v_add_u32 v{vYS}, {2 * TC}, v{vYS}")
        for j in range(2):
            g.wlg(("sr", j))
            g.vmem(f"buffer_store_dwordx4 {vr(88 + 4 * j, 4)}, v1, {SWS}, {sHS0} offen offset:{1024 * j} sc1", "sst")
        if not last:
            for it in u_loads(sCP, 2):
                g.do(it)
            e(f"s_mov_b32 {sMASK}, {sPEND}")
            e(f"s_sub_u32 {sRND}, {sRND}, 1")
            e(f"s_cmp_lg_u32 {sRND}, 1")
            e("s_cbranch_scc1 L_conv_early")

    conv(True)

    e(f"s_cmp_lg_u32 {sK1}, 0")
    e("s_cbranch_scc1 L_hready")
    poll_block(vFA, False)
    if opt.get("tp", -1) >= 0:
        e(f"buffer_load_dword v{vFL + 4}, v3, {SWS}, {sHS1} offen sc1")
    for i in range(NE):
        for it in hload(i):
            e(it[1] if isinstance(it, tuple) else it)
    g.lab("L_hready")
    stamp("c_g2s", cyc=True)
    stamp("g2_start")
    g.vm = [("h", i) for i in range(NE)]
    AC = [64, 84]
    lateq = [wd_load(64 + i) for i in range(6)] + [hload(i) for i in range(NE, NB)]
    fq = ["v_lshrrev_b32 v8, 1, v0", "v_lshlrev_b32 v8, 12, v8", "v_and_b32 v2, 1, v0", "v_lshl_add_u32 v8, v2, 4, v8",
          f"s_mul_i32 {sT1}, {sW}, 15360", f"v_add_u32 v2, {sT1}, v1",
          f"s_mul_i32 {sHS1}, {sW}, 3072", f"s_add_u32 {sHS1}, {sHS1}, {STB}", f"v_lshl_add_u32 v3, v0, 3, {sHS1}",
          "v_and_b32 v4, 15, v0", "v_mul_u32_u24 v4, 160, v4", "v_lshrrev_b32 v5, 4, v0", "v_lshl_add_u32 v4, v5, 3, v4",
          f"v_add_u32 v4, {sXT}, v4", f"v_add_u32 v5, {sXT}, v1",
          ]
    SFP = opt.get("sfp", 43)
    BAR = opt.get("bar", 46)
    P0, P1r, P2r, XR, XU, SR, SU = 160, 180, 200, 128, 138, 220, 180
    xq = [f"s_mov_b32 {sMASK}, 0xffff0000", f"s_mov_b32 {sT2}, {hex(f2u(-LOG2E))}"]
    xq += [("lds", f"ds_read_b64 {vr(XR + 2 * j, 2)}, v4 offset:{32 * j}", "x") for j in range(5)] + [None, None, ("wlg", "x")]
    for p in range(10):
        xq += [f"v_lshlrev_b32 v{XU + 2 * p}, 16, v{XR + p}", f"v_and_b32 v{XU + 2 * p + 1}, {sMASK}, v{XR + p}"]
    eq = [("lds", f"ds_read_b128 {vr(P0 + 4 * q, 4)}, v2 offset:{EXB + 1024 * q}", ("exr", q // 5)) for q in range(15)]
    eq += [("wlg", ("exr", 1))] + [f"v_pk_add_f32 {vr(P0 + 2 * p, 2)}, {vr(P0 + 2 * p, 2)}, {vr(P1r + 2 * p, 2)}" for p in range(10)]
    eq += [("wlg", ("exr", 2))] + [f"v_pk_add_f32 {vr(P0 + 2 * p, 2)}, {vr(P0 + 2 * p, 2)}, {vr(P2r + 2 * p, 2)}" for p in range(10)]

    for i in range(56):
        k, st = divmod(i, 14)
        A0 = AC[k & 1]
        g.wvm(("h", i))
        if st >= 12 and k == 0:
            g.wvm(("wd", 69 if st == 13 else 64))
        r = HRING[i % NB]
        extra = [[] for _ in range(5)]
        if st == 1 and k >= 1:
            pa = AC[(k - 1) & 1]
            for j in range(5):
                extra[j].append(("lds", f"ds_write_b128 v{9 + k - 1}, {vr(pa + 4 * j, 4)} offset:{1024 * j}", "exw"))
        for j in ((0, 3) if i < opt.get("fast", 0) else ((i % 4,) if i % 4 else (0, 4))):
            if lateq:
                extra[j] += lateq.pop(0)
        if i == opt.get('sfl', 7):
            def sflag():
                n = sum(1 for t in g.vm if t[0] == "wd" or (t[0] == "h" and t[1] >= NE))
                e(f"s_waitcnt vmcnt({n})")
                flag_store(sPEND)
            extra[1].append(sflag)
        if 18 <= i < 26:
            for j in (1, 3, 4):
                if fq:
                    extra[j].append(fq.pop(0))
        if i == SFP:
            extra[0].append(("vm", f"buffer_load_dwordx4 {vr(vFL, 4)}, v{vFA + 1}, {SWS}, 0 offen sc1", ("sfp",)))
        if i == SFP + 6:
            c4 = check4(vFL)
            extra[0] += [("wvm", ("sfp",))] + c4[0:2]
            extra[1] += c4[2:4]
            extra[2] += c4[4:6]
            def sfchk():
                sl = g.newlab("Lslow")
                bk = g.newlab("Lback")
                e(c4[6])
                e(f"s_cbranch_vccnz {sl}")
                g.lab(bk)
                g.slow.append((sl, bk, [(vFA + 1, True)]))
            extra[3].append(sfchk)
        if i == SFP + 7:
            extra[0] += [f"s_mov_b32 m0, {sHS1}"]
            extra[1] += [("vm", f"buffer_load_dwordx4 v8, {SWS}, {sSTO} offen sc1 lds", ("stl",)), f"s_add_u32 m0, {sHS1}, 1024"]
            extra[2] += [f"s_add_u32 {sT3}, {sSTO}, {32 * 4096}"]
            extra[3] += [("vm", f"buffer_load_dwordx4 v8, {SWS}, {sT3} offen sc1 lds", ("stl",)), f"s_add_u32 m0, {sHS1}, 2048"]
            extra[4] += [f"s_add_u32 {sT3}, {sSTO}, {64 * 4096}", f"v_mov_b32 v7, {OOB}", "v_cmp_lt_u32 vcc, 31, v0"]
        if i == SFP + 8:
            extra[0] += ["v_cndmask_b32 v8, v8, v7, vcc"]
            extra[1] += [("vm", f"buffer_load_dwordx4 v8, {SWS}, {sT3} offen sc1 lds", ("stl",))]
        if 30 <= i and xq and st != 1:
            for j in (1, 2, 3):
                for _ in range(1):
                    if xq:
                        it = xq.pop(0)
                        if it is not None:
                            extra[j].append(it)
        if i == BAR:
            assert not xq
            g.wlg0()
            e("s_barrier")
        if i >= BAR:
            for j in range(5):
                for _ in range(0 if i in (SFP + 6, SFP + 7) else 1):
                    if eq:
                        extra[j].append(eq.pop(0))
        for j in range(5):
            phi = st * 5 + j
            src = ar(4 * phi, 4) if phi < 64 else vr(vWDV + 4 * (phi - 64), 4)
            Cs = "0" if st == 0 else vr(A0 + 4 * j, 4)
            e(f"v_mfma_f32_16x16x32_bf16 {vr(A0 + 4 * j, 4)}, {src}, {vr(r, 4)}, {Cs}")
            for it in extra[j]:
                g.do(it)
        if i + NB < 56:
            lateq.append(hload(i + NB))
    assert not lateq and not fq
    stamp("c_g2e", cyc=True)
    stamp("g2_loop_end")
    for it in eq:
        g.do(it)
    A0 = AC[1]
    E_ = 200
    e(f"s_mov_b32 {sT3}, {sT2}")
    g.wvm(("stl",))
    for j in range(5):
        g.lds(f"ds_read_b64_tr_b16 {vr(SR + 2 * j, 2)}, v3 offset:{512 * j}", "s")
    g.nop(2)
    align()
    for p in range(10):
        e(f"v_pk_add_f32 {vr(A0 + 2 * p, 2)}, {vr(A0 + 2 * p, 2)}, {vr(P0 + 2 * p, 2)}")
    for p in range(10):
        e(f"v_pk_mul_f32 {vr(E_ + 2 * p, 2)}, {vr(A0 + 2 * p, 2)}, s[56:57]")
    for p in range(20):
        e(f"v_exp_f32 v{E_ + p}, v{E_ + p}")
    g.wlg("s")
    for p in range(10):
        e(f"v_lshlrev_b32 v{SU + 2 * p}, 16, v{SR + p}")
        e(f"v_and_b32 v{SU + 2 * p + 1}, {sMASK}, v{SR + p}")
    align()
    for p in range(10):
        e(f"v_pk_mul_f32 {vr(A0 + 2 * p, 2)}, {vr(A0 + 2 * p, 2)}, {vr(SU + 2 * p, 2)}")
    for p in range(10):
        e(f"v_pk_add_f32 {vr(E_ + 2 * p, 2)}, {vr(E_ + 2 * p, 2)}, 1.0 op_sel_hi:[1,0]")
    for p in range(20):
        e(f"v_rcp_f32 v{E_ + p}, v{E_ + p}")
    e("s_nop 0\ns_nop 0")
    for p in range(10):
        e(f"v_pk_fma_f32 {vr(A0 + 2 * p, 2)}, {vr(A0 + 2 * p, 2)}, {vr(E_ + 2 * p, 2)}, {vr(XU + 2 * p, 2)}")
    for p in range(10):
        e(f"v_cvt_pk_bf16_f32 v{160 + p}, v{A0 + 2 * p}, v{A0 + 2 * p + 1}")
        if p % 2 == 1:
            g.lds(f"ds_write_b64 v4, {vr(160 + p - 1, 2)} offset:{16 * (p - 1)}", "ow")
    g.wlg0()
    for kk in range(3):
        g.lds(f"ds_read_b128 {vr(128 + 4 * kk, 4)}, v5 offset:{1024 * kk}", ("or", kk))
    osc = opt.get("outsc", "")
    for kk in range(3):
        g.wlg(("or", kk))
        g.vmem(f"buffer_store_dwordx4 {vr(128 + 4 * kk, 4)}, v{(12, 13, 15)[kk]}, {SOUT}, {sXO} offen{osc}", "out")
    if diag:
        g.wvm0()
        stamp("end", flush=True)
        if opt.get("dbg"):
            e("s_load_dwordx2 s[88:89], s[100:101], 96")
            e("v_readlane_b32 s92, v127, 60")
            e("s_mov_b32 s90, 64\ns_mov_b32 s91, 0x20000")
            e("v_writelane_b32 v127, s92, 1")
            e("s_not_b32 s92, s92")
            e("v_writelane_b32 v127, s92, 0")
            e("v_lshlrev_b32 v2, 2, v0")
            e("s_waitcnt lgkmcnt(0)")
            e("buffer_atomic_umax v127, v2, s[88:91], 0 offen")
            e("s_endpgm")
        e(f"s_mov_b32 s88, s16\ns_mov_b32 s89, s17\ns_mov_b32 s90, 0x1000000\ns_mov_b32 s91, 0x20000")
        e(f"s_lshl_b32 {sT1}, s2, 2\ns_add_u32 {sT1}, {sT1}, {sW}\ns_lshl_b32 {sT1}, {sT1}, 8\ns_add_u32 {sT1}, {sT1}, {TS_BASE}")
        e("v_lshlrev_b32 v2, 2, v0")
        e(f"buffer_store_dword v127, v2, s[88:91], {sT1} offen")
    g.lab("L_end")
    e("s_endpgm")
    e(".p2align 6")
    g.lab("L_spare")
    g.vm = vm0
    g.lg = []
    g.pst = []
    g.sfree = [92] if opt.get('dbg') else [92, 100]
    if diag:
        e("v_mov_b32 v127, 0")
        e("v_writelane_b32 v127, s92, 60")
    for q in range(5):
        g.vmem(f"buffer_load_dwordx2 {vr(LX + 2 * q, 2)}, v2, {SX}, {sT0} offen offset:{256 * q}", "ln")
    e("s_add_u32 s66, s88, L_spare - L_pc + 256")
    e("s_addc_u32 s67, s89, 0")
    e("s_mov_b32 s68, s66\ns_mov_b32 s69, s67\ns_mov_b32 s70, 0x2000\ns_mov_b32 s71, 0x20000")
    e("v_and_b32 v10, 15, v0")
    e(f"s_lshl_b32 {sT1}, {sW}, 11")
    e("v_lshlrev_b32 v10, 7, v10")
    g.vmem(f"buffer_load_dword v{vFL + 4}, v10, s[68:71], {sT1} offen", "cpf")
    rest_setup()
    rest_loads()
    for r3 in range(3):
        run_items(param_units(r3))
    table_code(TB)
    aE, aL2 = addr_items(XYB_SP, TB)
    run_items(aE + aL2 + gather_items(TB))
    g.wvm("ln")
    stamp("ln_data")
    ln_code()
    ln_tail()
    stamp("ln_done", flush=True)
    e(f"s_lshl_b32 {sMASK}, s2, 2")
    e(f"s_add_u32 {sMASK}, {sMASK}, {LNF}")
    e(f"s_cmp_eq_u32 {sW}, 0")
    e(f"s_cselect_b32 {sMASK}, {sMASK}, {OOB}")
    e(f"v_add_u32 v{vFA}, {LNF}, v1")
    e("v_min_u32 v2, 53, v0")
    e(f"s_lshr_b32 {sF0}, {sDT}, 1")
    e(f"s_lshl_b32 {sF0}, {sF0}, 10")
    e(f"s_add_u32 {sF0}, {sF0}, {WF}")
    e(f"v_lshl_add_u32 v{vFA + 1}, v2, 4, {sF0}")
    e(f"s_mov_b32 {sK1}, {sRND}")
    rb1()
    g.wvm("par")
    tag_code()
    g.lab("L_kgen")
    g.vm = []
    kgen("s", [], 1)
    g.wall()
    e("s_barrier")
    flag_store(sMASK)
    e(f"s_mov_b32 {sMASK}, {OOB}")
    kgen_mfma()
    e(f"s_sub_u32 {sK1}, {sK1}, 1")
    e(f"s_cmp_eq_u32 {sK1}, 0")
    e("s_cbranch_scc1 L_kdone")
    e(f"s_add_u32 {sKR}, {sKR}, {2 * TC}")
    for i in range(8):
        e(f"v_add_u32 v{SC + i}, {2 * TC}, v{SC + i}")
    for i in range(6):
        e(f"v_accvgpr_mov_b32 a{APAR + i}, a{APAR + 8 + i}")
        e(f"v_accvgpr_mov_b32 a{APAR + 8 + i}, a{APAR + 16 + i}")
    e("s_waitcnt lgkmcnt(0)")
    e("s_barrier")
    e("s_branch L_kgen")
    g.lab("L_kdone")
    stamp("kdone", flush=True)
    e(f"s_cmp_lg_u32 {sW}, 0")
    e("s_cbranch_scc1 L_sp_polled")
    poll_block(vFA, True, sleep=16)
    g.lab("L_sp_polled")
    e("s_waitcnt lgkmcnt(0)")
    e("s_barrier")
    stamp("sp_lnf", flush=True)
    run_items(u_loads(sCP, 2))
    rb2()
    conv(False)
    e(f"s_cmp_eq_u32 {sK0}, 0")
    e("s_cbranch_scc1 L_conv_last")
    poll_block(vFA + 1, True, sleep=24)
    for phi in range(P1):
        for it in wd_load(phi):
            e(it[1] if isinstance(it, tuple) else it)
    e("s_branch L_conv_last")
    for (sl, bk, lst) in g.slow:
        g.lab(sl)
        g.sfree = [98]
        g.pst = []
        if diag:
            e("s_waitcnt lgkmcnt(0)")
        for pi, (av, n4) in enumerate(lst):
            stamp(f"slow{sl[-2:]}_{pi}", flush=True)
            poll_block(av, n4, sleep=opt.get("ssleep", 20))
        stamp(f"slow{sl[-2:]}_x", flush=True)
        e(f"s_branch {bk}")
    g.lab("L_codeend")

    hdr = [f"; @launch grid=(256,1,1) block=(256,1,1) lds={LDS_TOTAL}",
           '.amdgcn_target "amdgcn-amd-amdhsa--gfx950"', ".text", f".globl {KNAME}", ".p2align 8",
           f".type {KNAME},@function", f"{KNAME}:"]
    ftr = ['.section .rodata,"a"', ".p2align 6", f".amdhsa_kernel {KNAME}",
           "  .amdhsa_next_free_vgpr 512", "  .amdhsa_next_free_sgpr 102", "  .amdhsa_accum_offset 256",
           "  .amdhsa_group_segment_fixed_size 0", "  .amdhsa_kernarg_size 112", "  .amdhsa_user_sgpr_count 2",
           "  .amdhsa_user_sgpr_kernarg_segment_ptr 1", "  .amdhsa_system_sgpr_workgroup_id_x 1",
           "  .amdhsa_float_denorm_mode_32 3",
           ".end_amdhsa_kernel"]
    txt = "\n".join(hdr + g.L + ftr) + "\n"
    if diag:
        txt = txt + "; STAMPS " + ",".join(ts_names) + "\n"
    return txt


if __name__ == "__main__":
    diag = "--diag" in sys.argv
    opt = {}
    for a in sys.argv[1:]:
        if a.startswith("--") and "=" in a:
            k, v = a[2:].split("=")
            opt[k] = int(v) if v.lstrip("-").isdigit() else v.replace("_", " ")
    out = [a for a in sys.argv[1:] if not a.startswith("--")]
    s = gen(diag=diag, opt=opt)
    path = out[0] if out else "recurrent_scan__ssm_conv_s4d__geglu_ffn__prompt.s"
    open(path, "w").write(s)
    print("wrote", path, len(s), "bytes", s.count("\n"), "lines")
```

```python
import sys, struct, math

KNAME = "recurrent_scan__ssm_conv_s4d__geglu_ffn__prompt_kernel"

EPOCH = 0x0
LNF = 0x1000
WF = 0x4400
STATS = 0x8000
XNT = 0x10000
ST = 0x290000
WDP = 0x510000
HB = 0x730000
CSP = 0xDF0000
HF = 0xE26000
SF = 0xE46000
WS_END = 0xE50000
TS_BASE = 0xE60000

SLOT = 49152
MISC = 147456
LNP = 1344
CSB = MISC + 10752 + 5120
XYP = 544
YR0 = 21
XYC = 53 * XYP
XYB_SP, XYB_G1 = 0, 2 * SLOT
LNB = 2 * SLOT
TB_G1 = 157696
PB = 0
UBASE = 69632
UC = 4608
RB = UBASE + 2 * UC
RCS = 4160
RC = 4 * RCS
TC = 2624
TB = MISC
YSO = 650 * 4
SOB = 16384
EXB = 24576
XTB = 112128
STB = XTB + 12288
LDS_TOTAL = 163840
OOB = 0x7fff0000

def f2u(x):
    return struct.unpack("<I", struct.pack("<f", x))[0]

LOG2E = 1.4426950408889634
C0 = -2.0 * math.sqrt(2.0 / math.pi) * LOG2E
C1 = C0 * 0.044715


class G:
    def __init__(self):
        self.L = []
        self.vm = []
        self.lg = []
        self.nlab = 0
        self.slow = []
        self.skip = set()
        self.pst = []
        self.sfree = [92, 100]

    def flush_stamps(self):
        for (sr, lane) in self.pst:
            self.e(f"v_writelane_b32 v127, s{sr}, {lane}")
            self.sfree.append(sr)
        self.pst = []

    def e(self, s):
        for ln in s.split("\n"):
            self.L.append("    " + ln)

    def lab(self, name):
        self.L.append(name + ":")

    def newlab(self, p="L"):
        self.nlab += 1
        return f"{p}_{self.nlab}"

    def vmem(self, s, tag=None):
        if tag in self.skip:
            return
        self.e(s)
        self.vm.append(tag)

    def lds(self, s, tag=None):
        self.e(s)
        self.lg.append(tag)

    def _n(self, q, tag):
        idx = max(i for i, t in enumerate(q) if t == tag)
        return idx, sum(1 for t in q[idx + 1:] if t != "OPT")

    def wvm(self, tag):
        if tag not in self.vm:
            return
        idx, n = self._n(self.vm, tag)
        self.e(f"s_waitcnt vmcnt({min(n, 63)})")
        self.vm = self.vm[idx + 1:]

    def wlg(self, tag):
        if tag not in self.lg:
            return
        idx, n = self._n(self.lg, tag)
        self.e(f"s_waitcnt lgkmcnt({min(n, 15)})")
        self.lg = self.lg[idx + 1:]

    def wvm0(self):
        self.e("s_waitcnt vmcnt(0)")
        self.vm = []

    def wlg0(self):
        self.e("s_waitcnt lgkmcnt(0)")
        self.lg = []
        self.flush_stamps()

    def wall(self):
        self.e("s_waitcnt vmcnt(0) lgkmcnt(0)")
        self.vm = []
        self.lg = []
        self.flush_stamps()

    def nop(self, n):
        while n > 0:
            k = min(n, 16)
            self.e(f"s_nop {k - 1}")
            n -= k

    def do(self, item):
        if callable(item):
            item()
        elif isinstance(item, tuple):
            kind = item[0]
            if kind == "vm":
                self.vmem(item[1], item[2])
            elif kind == "lds":
                self.lds(item[1], item[2])
            elif kind == "wvm":
                self.wvm(item[1])
            elif kind == "wlg":
                self.wlg(item[1])
            else:
                raise ValueError(kind)
        else:
            self.e(item)


def vr(a, n):
    return f"v[{a}:{a + n - 1}]"


def ar(a, n):
    return f"a[{a}:{a + n - 1}]"


SX, SWG, SWU, SWS, SOUT, SWD = "s[4:7]", "s[8:11]", "s[12:15]", "s[16:19]", "s[20:23]", "s[24:27]"
P_LAR, P_AIM, P_CRE, P_CIM, P_LDT, P_DSK = "s[28:29]", "s[30:31]", "s[32:33]", "s[34:35]", "s[36:37]", "s[38:39]"
sW, sTAG, sM, sFT, sISG1, sCP, sRND, sSP = "s40", "s41", "s42", "s43", "s44", "s45", "s46", "s47"
sXCD, sQ = "s48", "s49"
sXM0, sWM0, sXS, sWSO = "s50", "s51", "s52", "s53"
sT0, sT1, sT2, sT3, sT4, sT5 = "s54", "s55", "s56", "s57", "s58", "s59"
sMASK, sCNT = "s60", "s61"
sRHO, sC = "s62", "s63"
sHS0, sHS1 = "s64", "s65"
sG2 = 66
STW = "s[96:99]"
sF0, sF1, sF2 = "s0", "s1", "s3"
sLT, sDT = "s82", "s83"
sWDS = "s84"
sPEND, sXO = "s85", "s86"
sKR = "s87"
sXT, sSTO = "s94", "s95"
sK0, sK1 = "s96", "s97"

vT = 2
vXO = 16
vWO = 24
vBA = 26
vAA = 34
vCS = 42
vHO = 44
vTO = 46
vSTA = 48
vU = 56
vAF = 64
vBF = 96
vPAR = 112
vFA = 118
vEP = 120
vFL = 122
vACC = 128
SC = 224
GA = 24
AST = 224
AS2 = 192
PKB = MISC
vWDV = 232


def gen(diag=False, opt=None):
    opt = opt or {}
    TOUCH = opt.get("touch", 0)
    P1 = opt.get("p1", 32)
    KCHK = opt.get("kchk", 29)
    NT = " nt" if opt.get("nt", 1) else ""
    g = G()
    e = g.e
    if opt.get('nolnst'):
        g.skip.add('lnst')
    ts_names = []
    vTAG, vL0 = vEP, vEP + 1

    def stamp(name, cyc=False, flush=False):
        if not diag:
            return
        if opt.get("dbg"):
            sel = ["x0", "x1", "par_data", "kdone", "g1_start", "g1_loop_end", "g1_epi_end", "conv_startL", "conv_endL", "g2_start", "g2_loop_end", "end", "sp_lnf", "conv_startE"]
            if name not in sel:
                return
            ts_names[:] = sel
        if name not in ts_names:
            ts_names.append(name)
        i = ts_names.index(name)
        if not g.sfree:
            g.wlg0()
        sr = g.sfree.pop(0)
        e(f"{'s_memtime' if cyc else 's_memrealtime'} s[{sr}:{sr + 1}]")
        g.pst.append((sr, i))
        if flush:
            g.wlg0()

    def interleave(fn, units, every):
        n0 = len(g.L)
        fn()
        body = g.L[n0:]
        del g.L[n0:]
        cnt = 0
        for bi, ln in enumerate(body):
            g.L.append(ln)
            cnt += 1
            nxt_ = body[bi + 1].strip() if bi + 1 < len(body) else ""
            if nxt_.startswith(("s_cselect", "s_addc", "s_cbranch")):
                continue
            if units and cnt >= every:
                u = units[0]
                if isinstance(u, tuple) and u[0] == "m0":
                    e(u[1])
                    units.pop(0)
                    cnt = every - 1
                else:
                    g.do(u)
                    units.pop(0)
                    cnt = 0 if isinstance(u, tuple) else every - 1

    def align():
        e(".p2align 3")

    def red(op, v, t, full):
        for dpp in ("quad_perm:[1,0,3,2]", "quad_perm:[2,3,0,1]", "row_half_mirror", "row_mirror"):
            g.nop(2)
            e(f"{op} v{v}, v{v}, v{v} {dpp}")
        e(f"v_mov_b32 v{t}, v{v}")
        g.nop(2)
        e(f"v_permlane16_swap_b32 v{v}, v{t}")
        g.nop(1)
        e(f"{op} v{v}, v{v}, v{t}")
        if full:
            e(f"v_mov_b32 v{t}, v{v}")
            g.nop(2)
            e(f"v_permlane32_swap_b32 v{v}, v{t}")
            g.nop(1)
            e(f"{op} v{v}, v{v}, v{t}")

    def bf16round(v):
        e(f"v_cvt_pk_bf16_f32 v{v}, v{v}, v{v}")
        e(f"v_lshlrev_b32 v{v}, 16, v{v}")

    def check4(tmp):
        return [f"v_xor_b32 v{tmp}, v{vTAG}, v{tmp}", f"v_xor_b32 v{tmp + 1}, v{vTAG}, v{tmp + 1}",
                f"v_xor_b32 v{tmp + 2}, v{vTAG}, v{tmp + 2}", f"v_xor_b32 v{tmp + 3}, v{vTAG}, v{tmp + 3}",
                f"v_or3_b32 v{tmp}, v{tmp}, v{tmp + 1}, v{tmp + 2}", f"v_or_b32 v{tmp}, v{tmp}, v{tmp + 3}",
                f"v_cmp_ne_u32 vcc, 0, v{tmp}"]

    def poll_block(addr_v, n4, sleep=opt.get('sleep', 8)):
        lp = g.newlab("Lpoll")
        dn = g.newlab("Lpd")
        tmp = vFL
        e(f"s_mov_b32 {sCNT}, 0x4000")
        g.lab(lp)
        if n4:
            e(f"buffer_load_dwordx4 {vr(tmp, 4)}, v{addr_v}, {SWS}, 0 offen sc1")
            e("s_waitcnt vmcnt(0)")
            for x in check4(tmp):
                e(x)
        else:
            e(f"buffer_load_dword v{tmp}, v{addr_v}, {SWS}, 0 offen sc1")
            e("s_waitcnt vmcnt(0)")
            e(f"v_cmp_ne_u32 vcc, v{vTAG}, v{tmp}")
        e(f"s_cbranch_vccz {dn}")
        e(f"s_sleep {sleep}")
        e(f"s_sub_u32 {sCNT}, {sCNT}, 1")
        e(f"s_cbranch_scc0 {lp}")
        g.lab(dn)

    def flag_store(soff):
        e(f"buffer_store_dword v{vTAG}, v{vL0}, {SWS}, {soff} offen sc1")

    def wd_load(phi):
        dst = ar(4 * phi, 4) if phi < 64 else vr(vWDV + 4 * (phi - 64), 4)
        pre = []
        if phi >= 65:
            if phi == 65 or phi == 68:
                pre.append(f"s_add_u32 {sT5}, {sWDS}, {(phi // 4) * 4096}")
                pre.append(f"s_cmp_lt_u32 {sW}, 2\ns_cselect_b32 {sT5}, {sT5}, {OOB}")
        elif phi % 4 == 0:
            pre.append(f"s_add_u32 {sT5}, {sWDS}, {(phi // 4) * 4096}")
        return pre + [("vm", f"buffer_load_dwordx4 {dst}, v1, {SWS}, {sT5} offen offset:{(phi % 4) * 1024} sc1", ("wd", phi))]

    def u_loads(cpreg, va):
        return [f"v_accvgpr_read_b32 v{va}, a{AS2 + 23}",
                f"s_mul_i32 {sF0}, {sW}, {64 * 10240}",
                f"s_lshl_b32 {sF1}, {cpreg}, 5",
                f"s_add_u32 {sF0}, {sF0}, {sF1}",
                f"s_add_u32 {sF0}, {sF0}, {XNT}",
                f"s_add_u32 {sF1}, {sF0}, {32 * 10240}",
                ("vm", f"buffer_load_dwordx4 {vr(vU, 4)}, v{va}, {SWS}, {sF0} offen sc1", "u"),
                ("vm", f"buffer_load_dwordx4 {vr(vU + 4, 4)}, v{va}, {SWS}, {sF1} offen sc1", "u")]

    def table_code(TB):
        def put(i, src):
            e(f"v_lshl_add_u32 v{src}, v{src}, 2, {sF2}")
            e(f"v_accvgpr_write_b32 a{AST + i}, v{src}")
        e(f"s_mul_i32 {sF2}, {sC}, {TC}")
        e(f"s_add_u32 {sF2}, {sF2}, {TB + 4}")
        e("v_lshrrev_b32 v4, 4, v0")
        e(f"s_lshl_b32 {sF1}, {sRHO}, 2")
        e(f"v_add_u32 v4, {sF1}, v4")
        e("v_and_b32 v5, 15, v0")
        DUM = 645
        e("v_cmp_eq_u32 s[54:55], 2, v4")
        e("v_cmp_eq_u32 s[56:57], 3, v4")
        e("v_cmp_eq_u32 s[58:59], 4, v4")
        e("v_cmp_lt_u32 vcc, 4, v4")
        e("v_mov_b32 v6, 8")
        e("v_cndmask_b32 v6, v6, 4, s[54:55]")
        e("v_cndmask_b32 v6, v6, 2, s[56:57]")
        e("v_cndmask_b32 v6, v6, 1, s[58:59]")
        e("v_cndmask_b32 v6, v6, 0, vcc")
        e("v_mul_u32_u24 v7, v6, v5")
        e("v_lshlrev_b32 v8, 4, v6")
        for i in range(4):
            e(f"v_lshl_add_u32 v9, v4, 2, {i}")
            for sreg, val in (("s[54:55]", 256 + i), ("s[56:57]", 384 + 64 * (i >> 1) + (i & 1)), ("s[58:59]", 512 + 32 * i), ("vcc", DUM)):
                e(f"v_mov_b32 v10, {val}")
                e(f"v_cndmask_b32 v9, v9, v10, {sreg}")
            e("v_add_u32 v9, v9, v7")
            e("v_add_u32 v11, v9, v8")
            if i == 0:
                e("v_lshl_add_u32 v6, v4, 4, v5")
                e("v_mov_b32 v10, 80")
                e("v_cmp_eq_u32 s[60:61], v10, v6")
                e("v_mov_b32 v10, 640")
                e("s_nop 0")
                e("v_cndmask_b32 v9, v9, v10, s[60:61]")
            put(i, 9)
            put(4 + i, 11)

    def gather_items(TB):
        it = [f"s_mul_i32 {sF2}, {sC}, {TC}", f"s_add_u32 {sF2}, {sF2}, {TB + 4}",
              f"s_lshl_b32 {sF1}, {sRHO}, 10", f"s_sub_u32 {sF1}, 2047, {sF1}", "v_lshlrev_b32 v12, 3, v0",
              f"v_sub_u32 v12, {sF1}, v12", f"s_movk_i32 {sF1}, 128"]
        for ch in range(2):
            for k in range(11):
                it += [f"v_subrev_u32 v2, {512 * ch + k}, v12", "v_max_i32 v3, 0, v2", "v_cvt_f32_u32 v3, v3",
                       f"v_med3_i32 v2, v2, -1, {sF1}", "v_cvt_pk_bf16_f32 v3, v3, 0", "v_subrev_u32 v3, 0x4280, v3",
                       "v_max_i32 v2, v2, v3", f"v_lshl_add_u32 v2, v2, 2, {sF2}",
                       f"v_accvgpr_write_b32 a{AST + 8 + 11 * ch + k}, v2"]
        return it

    def addr_items(XYB, TB):
        it = []
        A = it.append
        def st(i, r):
            A(f"v_accvgpr_write_b32 a{AS2 + i}, v{r}")
        A(f"s_mul_i32 {sF0}, {sC}, {XYC}")
        A(f"s_add_u32 {sF0}, {sF0}, {XYB}")
        A(f"v_lshl_add_u32 v2, v0, 3, {sF0}")
        st(0, 2)
        A("v_and_b32 v12, 15, v0")
        A("v_lshrrev_b32 v13, 4, v0")
        A(f"v_mul_u32_u24 v2, {XYP}, v12")
        A("v_lshl_add_u32 v2, v13, 4, v2")
        A(f"v_add_u32 v3, {sF0}, v2")
        st(2, 3)
        A(f"s_mul_i32 {sF1}, {sRHO}, {16 * XYP}")
        A(f"v_add_u32 v3, {sF1}, v3")
        st(1, 3)
        A(f"s_mul_i32 {sF2}, {sC}, {TC}")
        A(f"s_add_u32 {sF2}, {sF2}, {TB}")
        A(f"v_mov_b32 v2, {sF2}")
        st(6, 2)
        A("EARLY_END")
        A("v_and_b32 v12, 15, v0")
        A("v_lshrrev_b32 v13, 4, v0")
        A(f"s_mul_i32 {sF0}, {sC}, {UC}")
        A(f"s_lshl_b32 {sF1}, {sRHO}, 8")
        A(f"s_add_u32 {sF2}, {sF0}, {sF1}")
        A(f"s_add_u32 {sF2}, {sF2}, {UBASE}")
        A(f"v_add_u32 v2, {sF2}, v1")
        A(f"s_sub_u32 {sF2}, {sF0}, {sF1}")
        A(f"s_add_u32 {sF2}, {sF2}, {UBASE + 32 + 256}")
        A("v_lshlrev_b32 v14, 5, v12")
        A("v_lshl_add_u32 v3, v13, 4, v14")
        A(f"v_add_u32 v3, {sF2}, v3")
        st(8, 3)
        A("v_lshl_add_u32 v14, v13, 3, v14")
        A(f"s_lshl_b32 {sF2}, {sRHO}, 11")
        A(f"s_add_u32 {sF2}, {sF2}, {sF0}")
        A(f"s_add_u32 {sF2}, {sF2}, {UBASE + 512}")
        A(f"v_add_u32 v3, {sF2}, v14")
        st(11, 3)
        A(f"s_lshl_b32 {sF2}, {sW}, 11")
        A(f"s_add_u32 {sF2}, {sF2}, {SOB}")
        A(f"v_add_u32 v3, {sF2}, v14")
        st(12, 3)
        A(f"v_add_u32 v3, {sF2}, v1")
        st(13, 3)
        A(f"s_mul_i32 {sF0}, {sC}, {RC}")
        A(f"s_mul_i32 {sF2}, {sRHO}, {2 * RCS}")
        A(f"s_add_u32 {sF2}, {sF2}, {sF0}")
        A(f"s_add_u32 {sF2}, {sF2}, {RB + 4096}")
        A("v_bfe_u32 v3, v0, 1, 1")
        A(f"v_mul_u32_u24 v3, {RCS}, v3")
        A("v_and_b32 v15, 1, v0")
        A("v_lshl_add_u32 v3, v15, 4, v3")
        A(f"v_add_u32 v3, {sF2}, v3")
        A("v_cmp_lt_u32 vcc, 15, v0\ns_nop 1\nv_cndmask_b32 v2, v2, v3, vcc")
        st(3, 2)
        A(f"s_lshl_b32 {sF2}, {sRHO}, 11")
        A(f"s_add_u32 {sF2}, {sF2}, {sF0}")
        A(f"s_add_u32 {sF2}, {sF2}, {RB}")
        A(f"v_add_u32 v2, {sF2}, v1")
        st(4, 2)
        A("v_sub_u32 v2, 3, v12")
        A("v_and_b32 v2, 3, v2")
        A(f"v_mul_u32_u24 v2, {RCS}, v2")
        A("v_lshl_add_u32 v2, v13, 4, v2")
        A("v_and_b32 v3, 12, v12")
        A("v_lshlrev_b32 v3, 1, v3")
        A("v_sub_u32 v2, v2, v3")
        A(f"s_sub_u32 {sF2}, {sF0}, {sF1}")
        A(f"s_add_u32 {sF2}, {sF2}, {RB + 24 + 256}")
        A(f"v_add_u32 v2, {sF2}, v2")
        st(7, 2)
        A(f"v_mul_u32_u24 v2, {UC}, v15")
        A("v_lshrrev_b32 v3, 1, v0")
        A("v_lshl_add_u32 v2, v3, 4, v2")
        A(f"s_lshl_b32 {sF2}, {sW}, 10")
        A(f"s_add_u32 {sF2}, {sF2}, {UBASE + 512}")
        A(f"v_add_u32 v2, {sF2}, v2")
        st(5, 2)
        A("v_mul_u32_u24 v3, 10240, v3")
        A("v_lshl_add_u32 v3, v15, 4, v3")
        st(23, 3)
        A(f"s_lshl_b32 {sF2}, {sW}, 12")
        A(f"v_add_u32 v2, {sF2}, v1")
        st(9, 2)
        A("v_xor_b32 v2, 0x1000, v2")
        st(10, 2)
        A(f"s_mul_i32 {sF0}, {sW}, 14")
        A(f"s_cmp_eq_u32 {sW}, 3\ns_cselect_b32 {sF1}, 1, 0")
        A(f"s_sub_u32 {sF0}, {sF0}, {sF1}")
        A(f"s_mul_i32 {sF1}, {sDT}, 54")
        A(f"s_add_u32 {sF1}, {sF0}, {sF1}")
        A(f"s_mul_i32 {sF1}, {sF1}, 5120")
        A(f"s_add_u32 {sWDS}, {sF1}, {WDP}")
        for k in range(4):
            A(f"s_add_u32 {sF1}, {sW}, {k + 1}")
            A(f"s_and_b32 {sF1}, {sF1}, 3")
            if k < 3:
                A(f"s_mul_i32 {sF2}, {sF1}, 15360")
                A(f"s_add_u32 {sF2}, {sF2}, {EXB + 5120 * k}")
                A(f"v_add_u32 v2, {sF2}, v1")
                st(14 + k, 2)
            A(f"s_lshl_b32 {sF2}, {sLT}, 2")
            A(f"s_add_u32 {sF1}, {sF1}, {sF2}")
            A(f"s_mul_i32 {sF1}, {sF1}, 54")
            A(f"s_add_u32 {sF1}, {sF1}, {sF0}")
            A(f"s_lshl_b32 {sF1}, {sF1}, 10")
            A(f"s_add_u32 s{sG2 + 4 * k}, {sF1}, {HB}")
            for q in range(1, 4):
                A(f"s_add_u32 s{sG2 + 4 * k + q}, s{sG2 + 4 * k}, {4096 * q}")
        A(f"s_mov_b32 {sF0}, {0x100000000 // 10 + 1}")
        for kk in range(3):
            A(f"v_add_u32 v2, {64 * kk}, v0")
            A(f"v_mul_hi_u32 v3, v2, {sF0}")
            A("v_mul_u32_u24 v12, 10, v3")
            A("v_sub_u32 v12, v2, v12")
            A("v_mul_u32_u24 v3, 1280, v3")
            A("v_lshl_add_u32 v2, v12, 4, v3")
            st(17 + kk, 2)
        A(f"v_mov_b32 v3, {OOB}")
        A("v_cmp_lt_u32 vcc, 31, v0\ns_nop 1\nv_cndmask_b32 v2, v2, v3, vcc")
        st(20, 2)
        A(f"s_lshl_b32 {sXO}, {sLT}, 2")
        A(f"s_add_u32 {sXO}, {sXO}, {sW}")
        A(f"s_mul_i32 {sXO}, {sXO}, {16 * 1280}")
        A(f"s_mul_i32 {sF0}, {sDT}, 160")
        A(f"s_add_u32 {sXO}, {sXO}, {sF0}")
        A(f"s_mul_i32 {sXT}, {sW}, 3072")
        A(f"s_add_u32 {sXT}, {sXT}, {XTB}")
        A(f"s_mul_i32 {sSTO}, {sDT}, 80")
        A(f"s_lshl_b32 {sSTO}, {sSTO}, 12")
        A(f"s_lshl_b32 {sF0}, {sLT}, 2")
        A(f"s_add_u32 {sF0}, {sF0}, {sW}")
        A(f"s_lshl_b32 {sF0}, {sF0}, 5")
        A(f"s_add_u32 {sSTO}, {sSTO}, {sF0}")
        A(f"s_add_u32 {sSTO}, {sSTO}, {ST}")
        A(f"s_lshl_b32 {sF0}, {sLT}, 12")
        A(f"s_add_u32 {sF0}, {sF0}, {HF}")
        A("v_min_u32 v2, 26, v0")
        A(f"v_lshl_add_u32 v2, v2, 7, {sF0}")
        st(21, 2)
        A(f"s_mul_i32 {sF0}, {sDT}, {40 * 128}")
        A(f"s_add_u32 {sF0}, {sF0}, {SF}")
        A("v_min_u32 v2, 39, v0")
        A(f"v_lshl_add_u32 v2, v2, 7, {sF0}")
        st(22, 2)
        k_ = it.index("EARLY_END")
        return it[:k_], it[k_ + 1:]

    e("s_cmp_ge_u32 s2, 256")
    e("s_cbranch_scc1 L_end")
    if diag:
        e("s_memrealtime s[92:93]")
    if opt.get("dbg"):
        e("s_mov_b64 s[100:101], s[0:1]")
        g.sfree = [92]
    e("s_getpc_b64 s[88:89]")
    g.lab("L_pc")
    e("s_load_dwordx2 s[4:5], s[0:1], 0")
    e("s_load_dwordx2 s[16:17], s[0:1], 104")
    e("s_load_dwordx2 s[8:9], s[0:1], 64")
    e("s_load_dwordx2 s[12:13], s[0:1], 72")
    e("s_load_dwordx4 s[28:31], s[0:1], 8")
    e("s_load_dwordx4 s[32:35], s[0:1], 24")
    e("s_load_dwordx4 s[36:39], s[0:1], 40")
    e("s_load_dwordx4 s[64:67], s[0:1], 80")
    NSP = opt.get("nsp", 0)
    for i in range(NSP):
        e(f"s_load_dword s{66 + i}, s[88:89], {256 + 128 * i}")
    e("v_lshrrev_b32 v2, 6, v0")
    e("v_and_b32 v3, 15, v0")
    e("s_mov_b32 s90, L_codeend - L_pc")
    e("s_mov_b32 s91, 0x20000")
    e("v_lshl_add_u32 v3, v2, 4, v3")
    e(f"v_readfirstlane_b32 {sW}, v2")
    e("v_lshlrev_b32 v3, 7, v3")
    if opt.get("cpf0", 1):
        e(f"buffer_load_dword v{vFL + 3}, v3, s[88:91], 0 offen offset:{min(256 + 128 * NSP, 4000)}")
        g.vm.append("cpf")
    e("v_and_b32 v0, 63, v0")
    e("s_mov_b32 s6, 2621440\ns_mov_b32 s7, s91")
    e("v_lshrrev_b32 v2, 5, v0")
    e("v_and_b32 v3, 31, v0")
    e("v_mul_u32_u24 v2, 0x500, v2")
    e(f"s_lshl2_add_u32 {sT0}, s2, {sW}")
    e("v_lshl_add_u32 v2, v3, 3, v2")
    e(f"s_mulk_i32 {sT0}, 2560")
    e(f"s_lshr_b32 {sQ}, s2, 3")
    e(f"s_bfe_u32 {sT1}, s2, 0x20001")
    e(f"s_and_b32 {sM}, s2, 1")
    e(f"s_and_b32 {sT2}, {sQ}, 3")
    e(f"s_lshr_b32 {sDT}, {sQ}, 2")
    e(f"s_lshl2_add_u32 {sM}, {sM}, {sT2}")
    e(f"s_mul_i32 {sFT}, {sT1}, 7")
    e(f"s_add_u32 {sFT}, {sFT}, {sDT}")
    e(f"s_mul_i32 {sCP}, {sM}, 27")
    e(f"s_add_u32 {sCP}, {sCP}, {sFT}")
    e(f"s_lshr_b32 {sC}, {sW}, 1")
    e(f"s_lshl1_add_u32 {sT1}, {sCP}, {sC}")
    e(f"s_lshl_b32 {sT1}, {sT1}, 8")
    e(f"v_lshl_add_u32 v12, v0, 2, {sT1}")
    e(f"s_lshl_b32 {sT1}, {sCP}, 2")
    e(f"v_mov_b32 v13, {sT1}")
    e(f"s_cmp_lt_u32 {sDT}, 7")
    e(f"s_cselect_b32 {sT3}, {sFT}, 27")
    e(f"s_cmp_lt_u32 {sT3}, 27")
    e(f"s_cselect_b32 {sISG1}, 1, 0")
    e("s_waitcnt lgkmcnt(0)")
    for i in range(opt.get("ns2", 0)):
        e(f"s_load_dword s93, s[88:89], {opt.get('ns2o', 384) + 128 * i}")
    LX = 232
    for q in range(5):
        g.vmem(f"buffer_load_dwordx2 {vr(LX + 2 * q, 2)}, v2, {SX}, {sT0} offen offset:{256 * q}", "ln")
    e("s_cbranch_scc0 L_spare")
    if diag:
        e("v_mov_b32 v127, 0")
        e("v_writelane_b32 v127, s92, 60")
    stamp("start")
    APAR = 160
    for k, p in enumerate((P_LAR, P_AIM, P_CRE, P_CIM)):
        g.vmem(f"global_load_dword a{APAR + k}, v12, {p}{NT}", "par")
    g.vmem(f"global_load_dword a{APAR + 4}, v13, {P_LDT}", "par")
    g.vmem(f"global_load_dword a{APAR + 5}, v13, {P_DSK}", "par")
    if diag and not opt.get("dbg") and False:
        e("s_memrealtime s[100:101]\ns_waitcnt lgkmcnt(0)\nv_writelane_b32 v127, s100, 56")
    e("v_lshrrev_b32 v4, 3, v0")
    e("v_and_b32 v5, 7, v0")
    e("v_lshrrev_b32 v6, 4, v0")
    e("v_mul_u32_u24 v7, 3456, v4")
    e("v_and_b32 v8, 1, v6")
    e("v_lshlrev_b32 v8, 2, v8")
    e("v_xor_b32 v8, v5, v8")
    e(f"v_lshl_add_u32 v{vWO}, v8, 4, v7")
    e(f"s_lshl_b32 {sWM0}, {sW}, 11")
    e(f"s_mul_i32 {sWSO}, {sW}, {16 * 3456}")
    e(f"s_lshl_b32 {sT1}, {sFT}, 7")
    e(f"s_add_u32 {sWSO}, {sWSO}, {sT1}")
    e(f"v_add_u32 v{vWO + 1}, {8 * 3456 - 1024}, v{vWO}")
    e("s_mov_b32 s10, 2211840\ns_mov_b32 s11, 0x20000")
    e("s_mov_b32 s14, s10\ns_mov_b32 s15, 0x20000")

    def rest_setup():
        e(f"s_and_b32 {sXCD}, s2, 7")
        e("s_mov_b64 s[24:25], s[64:65]")
        e("s_mov_b64 s[20:21], s[66:67]")
        e("v_lshlrev_b32 v1, 4, v0")
        e(f"s_mov_b32 s18, {WS_END}\ns_mov_b32 s19, 0x20000")
        e(f"v_mov_b32 v{vL0}, {OOB}")
        e(f"v_writelane_b32 v{vL0}, 0, 0")
        e("s_mov_b32 s22, 2621440\ns_mov_b32 s23, 0x20000")
        e("s_mov_b32 s26, 2211840\ns_mov_b32 s27, 0x20000")
        e(f"s_lshl_b32 {sT4}, {sXCD}, 2")
        e(f"s_and_b32 {sT2}, {sQ}, 3")
        e(f"s_add_u32 {sLT}, {sT4}, {sT2}")
        e(f"s_add_u32 {sT4}, {sT4}, {sQ}")
        e(f"s_sub_u32 {sT4}, {sT4}, 28")
        e(f"s_lshl_b32 {sT5}, {sXCD}, 3")
        e(f"s_add_u32 {sT5}, {sT5}, {sQ}")
        e(f"s_sub_u32 {sT5}, {sT5}, 48")
        e(f"s_cmp_lt_u32 {sXCD}, 6\ns_cselect_b32 {sSP}, {sT4}, {sT5}")
        e(f"s_mul_i32 {sT4}, {sM}, 27")
        e(f"s_add_u32 {sT4}, {sT4}, {sFT}")
        e(f"s_add_u32 {sT5}, {sSP}, 216")
        e(f"s_cmp_lg_u32 {sISG1}, 0\ns_cselect_b32 {sCP}, {sT4}, {sT5}")
        e(f"s_cmp_lt_u32 {sSP}, 24\ns_cselect_b32 {sRND}, 3, 2")
        e(f"s_and_b32 {sRHO}, {sW}, 1")
        e(f"s_lshr_b32 {sC}, {sW}, 1")
        e("v_lshlrev_b32 v10, 21, v0")
        e(f"v_mov_b32 v{vFA}, v1")
        e(f"v_mov_b32 v{vFA + 1}, v1")
        e("v_mul_u32_u24 v54, 17280, v4")
        e("v_lshl_add_u32 v54, v5, 4, v54")
        e(f"s_lshl_b32 {sHS0}, {sM}, 1")
        e(f"s_add_u32 {sHS0}, {sHS0}, {sRHO}")
        e(f"s_mul_i32 {sHS0}, {sHS0}, {40 * 3456}")
        e(f"s_lshl_b32 {sT1}, {sFT}, 7")
        e(f"s_add_u32 {sHS0}, {sHS0}, {sT1}")
        e("s_mov_b32 s98, 2211840\ns_mov_b32 s99, 0x20000")
        e(f"s_cmp_eq_u32 {sC}, 0\ns_cselect_b32 s96, s8, s12\ns_cselect_b32 s97, s9, s13")
        e(f"s_lshl_b32 {sT1}, {sQ}, 2")
        e(f"s_add_u32 {sT1}, {sT1}, {sW}")
        e(f"s_mul_i32 {sT1}, {sT1}, 384")
        e(f"s_add_u32 {sT1}, {sT1}, {8192 + min(256 + 128 * NSP, 4000)}")
        e("v_min_u32 v11, 2, v0")
        e("v_lshlrev_b32 v11, 7, v11")

    def rest_loads():
        g.vmem(f"buffer_load_dword v{vTAG}, v{vL0}, {SWS}, 0 offen sc1", "ep")
        g.vmem(f"buffer_load_dword v{vFL + 2}, v11, s[88:91], {sT1} offen", "tlb")
        g.vmem(f"buffer_load_dword v{vFL}, v10, {SWS}, 0 offen", "tlb")
        g.vmem(f"buffer_load_dword v{vFL + 1}, v10, {SOUT}, 0 offen", "tlb")

    def dma_units(stage):
        sb = (stage % 3) * SLOT
        out = []
        for mat in range(2):
            out.append(("m0", f"s_add_u32 m0, {sWM0}, {sb + mat * 8192}"))
            for half in range(2):
                o = f" offset:{1024 * half}" if half else ""
                out.append(("vm", f"buffer_load_dwordx4 v{vWO + half}, {SWG if mat == 0 else SWU}, {sWSO} offen{o} lds", ("dma", stage)))
        for i in range(8):
            if i % 4 == 0:
                out.append(("m0", f"s_add_u32 m0, {sXM0}, {sb + i * 1024}"))
            o = f" offset:{1024 * (i & 3)}" if i & 3 else ""
            out.append(("vm", f"buffer_load_dwordx4 v{vXO + i}, {SX}, {sXS} offen{o} lds", ("dma", stage)))
        out.append(f"s_add_u32 {sXS}, {sXS}, 128")
        out.append(f"s_add_u32 {sWSO}, {sWSO}, {64 * 3456}")
        return out

    def dma_block(stage):
        for u in dma_units(stage):
            if isinstance(u, tuple) and u[0] == "m0":
                e(u[1])
                e("s_nop 0")
            else:
                g.do(u)

    APAR = 160
    def param_units(rnd):
        out = [f"s_add_u32 {sT2}, {sCP}, {40 * rnd}", f"s_min_u32 {sT2}, {sT2}, 319",
               f"s_lshl_b32 {sT1}, {sT2}, 1", f"s_add_u32 {sT1}, {sT1}, {sC}", f"s_lshl_b32 {sT1}, {sT1}, 8",
               f"v_lshl_add_u32 v12, v0, 2, {sT1}", f"s_lshl_b32 {sT1}, {sT2}, 2", f"v_mov_b32 v13, {sT1}"]
        for k, p in enumerate((P_LAR, P_AIM, P_CRE, P_CIM)):
            out.append(("vm", f"global_load_dword a{APAR + 8 * rnd + k}, v12, {p}{NT}", "par"))
        out.append(("vm", f"global_load_dword a{APAR + 8 * rnd + 4}, v13, {P_LDT}", "par"))
        out.append(("vm", f"global_load_dword a{APAR + 8 * rnd + 5}, v13, {P_DSK}", "par"))
        return out

    CSR = [56, 60, 112, 116, 52]
    def csl_units():
        out = []
        for j5 in range(5):
            if j5 in (2, 4):
                out.append(f"s_add_u32 {sHS0}, {sHS0}, {2 * 3456}")
            out.append(("vm", f"buffer_load_dwordx4 {vr(CSR[j5], 4)}, v54, {STW}, {sHS0} offen offset:{(j5 % 2) * 3456}", ("csl", j5)))
        return out
    def emit_units(us):
        for u in us:
            if isinstance(u, tuple) and u[0] == "m0":
                e(u[1])
                e("s_nop 0")
            else:
                g.do(u)

    def split_units(us, n):
        c = 0
        for ix, u in enumerate(us):
            if isinstance(u, tuple) and u[0] == "vm":
                c += 1
                if c == n:
                    return us[:ix + 1], us[ix + 1:]
        return us, []

    def run_items(items):
        for it in items:
            g.do(it)

    F, S, Dv, SO, UO = 140, 160, 164, 184, 188
    def ln_code(bar=False):
        for q in range(10):
            e(f"v_lshlrev_b32 v{F + 2 * q}, 16, v{LX + q}")
            e(f"v_and_b32 v{F + 2 * q + 1}, 0xffff0000, v{LX + q}")
        e(f"v_pk_add_f32 {vr(S, 2)}, {vr(F, 2)}, {vr(F + 2, 2)}")
        e(f"v_pk_add_f32 {vr(S + 2, 2)}, {vr(F + 4, 2)}, {vr(F + 6, 2)}")
        for q in range(4, 10, 2):
            e(f"v_pk_add_f32 {vr(S, 2)}, {vr(S, 2)}, {vr(F + 2 * q, 2)}")
            e(f"v_pk_add_f32 {vr(S + 2, 2)}, {vr(S + 2, 2)}, {vr(F + 2 * q + 2, 2)}")
        e(f"v_pk_add_f32 {vr(S, 2)}, {vr(S, 2)}, {vr(S + 2, 2)}")
        e(f"v_add_f32 v{S}, v{S}, v{S + 1}")
        red("v_add_f32", S, S + 1, False)
        e(f"v_mul_f32 v{S}, {hex(f2u(1.0 / 640))}, v{S}")
        for q in range(10):
            e(f"v_pk_add_f32 {vr(Dv + 2 * q, 2)}, {vr(F + 2 * q, 2)}, {vr(S, 2)} op_sel_hi:[1,0] neg_lo:[0,1] neg_hi:[0,1]")
        e(f"v_pk_mul_f32 {vr(S + 2, 2)}, {vr(Dv, 2)}, {vr(Dv, 2)}")
        e(f"v_pk_mul_f32 {vr(S + 24, 2)}, {vr(Dv + 2, 2)}, {vr(Dv + 2, 2)}")
        for q in range(2, 10):
            r = S + 2 if q % 2 == 0 else S + 24
            e(f"v_pk_fma_f32 {vr(r, 2)}, {vr(Dv + 2 * q, 2)}, {vr(Dv + 2 * q, 2)}, {vr(r, 2)}")
        e(f"v_pk_add_f32 {vr(S + 2, 2)}, {vr(S + 2, 2)}, {vr(S + 24, 2)}")
        e(f"v_add_f32 v{S + 2}, v{S + 2}, v{S + 3}")
        red("v_add_f32", S + 2, S + 3, False)
        e(f"v_mul_f32 v{S + 2}, {hex(f2u(1.0 / 640))}, v{S + 2}")
        bf16round(S + 2)
        e(f"v_add_f32 v{S + 2}, {hex(f2u(1e-5))}, v{S + 2}")
        bf16round(S + 2)
        e(f"v_sqrt_f32 v{S + 2}, v{S + 2}")
        bf16round(S)
        bf16round(S + 2)
        e(f"v_rcp_f32 v{S + 3}, v{S + 2}")
        e(f"v_sub_f32 v{SO}, 0, v{S}")
        e(f"v_mul_f32 v{SO + 3}, v{S + 2}, v{S + 2}")
        e(f"v_mul_f32 v{S + 1}, v{S + 3}, v{S + 3}")
        e(f"v_mul_f32 v{SO + 2}, {hex(f2u(C0))}, v{S + 3}")
        e(f"v_mul_f32 v{S + 1}, v{S + 1}, v{S + 3}")
        e(f"v_mul_f32 v{S + 2}, v{SO}, v{S + 3}")
        e(f"v_mul_f32 v{SO + 1}, {hex(f2u(C1))}, v{S + 1}")
        for q in range(10):
            e(f"v_pk_fma_f32 {vr(Dv + 2 * q, 2)}, {vr(F + 2 * q, 2)}, {vr(S + 2, 2)}, {vr(S + 2, 2)} op_sel:[0,1,0] op_sel_hi:[1,1,0]")
        for q in range(10):
            e(f"v_cvt_pk_f16_f32 v{UO + q}, v{Dv + 2 * q}, v{Dv + 2 * q + 1}")
        e("v_lshrrev_b32 v2, 5, v0")
        e(f"v_mul_u32_u24 v2, {LNP}, v2")
        e("v_and_b32 v3, 31, v0")
        e("v_lshl_add_u32 v2, v3, 3, v2")
        e(f"s_mul_i32 {sT1}, {sW}, {2 * LNP}")
        e(f"s_add_u32 {sT1}, {sT1}, {LNB}")
        e(f"v_add_u32 v2, {sT1}, v2")
        if bar:
            e("s_barrier")
        for q in range(5):
            g.lds(f"ds_write_b64 v2, {vr(UO + 2 * q, 2)} offset:{256 * q}", "lnw")
        e("v_lshrrev_b32 v4, 1, v0")
        e(f"v_mov_b32 v5, {OOB}")
        e("v_cmp_ne_u32 vcc, 0, v3")
        e(f"s_lshl_b32 {sT1}, s2, 2")
        e(f"s_add_u32 {sT1}, {sT1}, {sW}")
        e("v_cndmask_b32 v4, v4, v5, vcc")
        e(f"s_lshl_b32 {sT1}, {sT1}, 5")
        e(f"s_add_u32 {sT1}, {sT1}, {STATS}")
        e("v_bfe_u32 v6, v0, 2, 2")
        e(f"v_mul_u32_u24 v2, {LNP}, v6")
        e("v_lshrrev_b32 v3, 4, v0")
        e("v_lshl_add_u32 v2, v3, 5, v2")
        e("v_and_b32 v7, 3, v0")
        e("v_lshl_add_u32 v2, v7, 3, v2")
        e(f"s_lshl_b32 {sT2}, {sW}, 7")
        e(f"s_add_u32 {sT2}, {sT2}, {LNB}")
        e(f"v_add_u32 v2, {sT2}, v2")

    def ln_tail():
        g.vmem(f"buffer_store_dwordx4 {vr(SO, 4)}, v4, {SWS}, {sT1} offen sc1", "lnst")
        g.wlg0()
        e("s_barrier")
        TR = 200
        for j in range(3):
            for h in range(2):
                g.lds(f"ds_read_b64_tr_b16 {vr(TR + 4 * j + 2 * h, 2)}, v2 offset:{512 * j + 4 * LNP * h}", ("lntr", j))
        e(f"s_mul_i32 {sT1}, s2, 10240")
        e(f"s_lshl_b32 {sT2}, {sW}, 10")
        e(f"s_add_u32 {sT1}, {sT1}, {sT2}")
        e(f"s_add_u32 {sT1}, {sT1}, {XNT}")
        e(f"s_add_u32 {sT2}, {sT1}, 4096")
        e(f"s_add_u32 {sT3}, {sT1}, 8192")
        e(f"s_cmp_lt_u32 {sW}, 2")
        e(f"s_cselect_b32 {sT3}, {sT3}, {OOB}")
        for j, so in enumerate((sT1, sT2, sT3)):
            g.wlg(("lntr", j))
            g.vmem(f"buffer_store_dwordx4 {vr(TR + 4 * j, 4)}, v1, {SWS}, {so} offen sc1", "lnst")

    AK = 46
    vKA_A, vKA_B, vZ, vRW, vUW, vYS, vFB, vGB = range(AK, AK + 8)
    KA, CC, TM = 128, 152, 136
    WA = KA + 6
    SIG, OMG = KA + 2, KA + 4

    def cexp(dst, p, t):
        for m in range(2):
            e(f"v_mul_f32 v{t + m}, {hex(f2u(float(p)))}, v{SIG + m}")
            e(f"v_mul_f32 v{t + 2 + m}, {hex(f2u(float(p)))}, v{OMG + m}")
        for m in range(2):
            e(f"v_fract_f32 v{t + 2 + m}, v{t + 2 + m}")
        for m in range(2):
            e(f"v_exp_f32 v{t + m}, v{t + m}")
            e(f"v_cos_f32 v{dst + 2 * m}, v{t + 2 + m}")
            e(f"v_sin_f32 v{dst + 2 * m + 1}, v{t + 2 + m}")
        e("s_nop 0")
        align()
        for m in range(2):
            e(f"v_pk_mul_f32 {vr(dst + 2 * m, 2)}, {vr(dst + 2 * m, 2)}, {vr(t, 2)} op_sel:[0,{m}] op_sel_hi:[1,{m}]")

    def cmul(dst, P, Q, t):
        for m in range(2):
            e(f"v_pk_mul_f32 {vr(t + 2 * m, 2)}, {vr(P + 2 * m, 2)}, {vr(Q + 2 * m, 2)} op_sel_hi:[0,1]")
        for m in range(2):
            e(f"v_pk_fma_f32 {vr(dst + 2 * m, 2)}, {vr(P + 2 * m, 2)}, {vr(Q + 2 * m, 2)}, {vr(t + 2 * m, 2)} op_sel:[1,1,0] op_sel_hi:[1,0,1] neg_lo:[0,1,0]")

    prow = [0]

    def put(src, row, neg, lastrow=False):
        o = 144 + 2 * (row % 4)
        ng = "-" if neg else ""
        if src is not None:
            e(f"v_cvt_pk_f16_f32 v{o}, v{src}, {ng}v{src + 1}")
            e(f"v_cvt_pk_f16_f32 v{o + 1}, v{src + 2}, {ng}v{src + 3}")
        if row % 2 == 1:
            o0 = ((row - 1) % 4) * 68
            g.lds(f"ds_write2_b64 v{WA}, {vr(o - 2, 2)}, {vr(o, 2)} offset0:{o0} offset1:{o0 + 68}", "xy")
            if row % 4 == 3:
                e(f"v_add_u32 v{WA}, {4 * XYP}, v{WA}")
        elif lastrow:
            g.lds(f"ds_write_b64 v{WA}, {vr(o, 2)} offset:{(row % 4) * XYP}", "xy")


    def rb1():
        e(f"s_mov_b32 {sKR}, 0")
        for i in range(8):
            e(f"v_accvgpr_read_b32 v{SC + i}, a{AST + i}")
        for i in (0, 1, 5):
            e(f"v_accvgpr_read_b32 v{AK + i}, a{AS2 + 1 + i}")

    def tag_code():
        e(f"v_readfirstlane_b32 {sTAG}, v{vTAG}")
        e("s_nop 3")
        e(f"s_mul_i32 {sTAG}, {sTAG}, 1664525")
        e(f"s_add_u32 {sTAG}, {sTAG}, 1013904223")
        e(f"v_mov_b32 v{vTAG}, {sTAG}")

    def k_setup():
        for k6 in (4, 5, 0, 1, 2, 3):
            e(f"v_accvgpr_read_b32 v{vPAR + k6}, a{APAR + k6}")
        e(f"v_accvgpr_read_b32 v{WA}, a{AS2}")
        e(f"s_lshl_b32 {sT1}, {sC}, 4")
        e(f"v_lshrrev_b32 v{KA}, {sT1}, v{vPAR + 4}")
        e(f"v_lshlrev_b32 v{KA}, 16, v{KA}")
        e(f"v_mul_f32 v{KA}, {hex(f2u(LOG2E))}, v{KA}")
        e(f"v_exp_f32 v{KA}, v{KA}")
        e(f"v_lshrrev_b32 v{KA + 7}, {sT1}, v{vPAR + 5}")
        e(f"v_lshlrev_b32 v{KA + 7}, 16, v{KA + 7}")
        bf16round(KA)
        e(f"v_lshlrev_b32 v{KA + 2}, 16, v{vPAR}")
        e(f"v_and_b32 v{KA + 3}, 0xffff0000, v{vPAR}")
        e(f"v_mul_f32 v{KA + 2}, {hex(f2u(LOG2E))}, v{KA + 2}")
        e(f"v_mul_f32 v{KA + 3}, {hex(f2u(LOG2E))}, v{KA + 3}")
        e(f"v_exp_f32 v{KA + 2}, v{KA + 2}")
        e(f"v_exp_f32 v{KA + 3}, v{KA + 3}")
        e(f"v_lshlrev_b32 v{KA + 4}, 16, v{vPAR + 1}")
        e(f"v_and_b32 v{KA + 5}, 0xffff0000, v{vPAR + 1}")
        e(f"v_cvt_pk_bf16_f32 v{KA + 1}, v{KA + 2}, v{KA + 3}")
        e(f"v_lshlrev_b32 v{CC}, 16, v{vPAR + 2}")
        e(f"v_lshlrev_b32 v{CC + 1}, 16, v{vPAR + 3}")
        e(f"v_and_b32 v{CC + 2}, 0xffff0000, v{vPAR + 2}")
        e(f"v_and_b32 v{CC + 3}, 0xffff0000, v{vPAR + 3}")
        e(f"v_lshlrev_b32 v{KA + 2}, 16, v{KA + 1}")
        e(f"v_and_b32 v{KA + 3}, 0xffff0000, v{KA + 1}")
        for m in range(2):
            e(f"v_mul_f32 v{KA + 2 + m}, v{KA + 2 + m}, v{KA}")
            e(f"v_mul_f32 v{KA + 4 + m}, v{KA + 4 + m}, v{KA}")
        for m in range(2):
            e(f"v_mul_f32 v{KA + 2 + m}, {hex(f2u(-LOG2E))}, v{KA + 2 + m}")
            e(f"v_mul_f32 v{KA + 4 + m}, {hex(f2u(1.0 / (2 * math.pi)))}, v{KA + 4 + m}")

    def k_role0():
        W8, W16, T2 = 152, 156, 140
        ch = [[160, 164], [168, 172]]
        e(f"v_add_u32 v{WA}, {YR0 * XYP}, v{WA}")
        cexp(W8, 8, TM)
        e("v_mov_b32 v144, 0x3c00")
        e("v_mov_b32 v145, 0x3c00")
        cmul(W16, W8, W8, TM)
        put(W8, 33, False)
        cur = [W16, W8]
        for j in range(2, 32, 2):
            n0 = cur[0] if j == 2 else ch[0][(j // 2) & 1]
            n1 = ch[1][(j // 2) & 1]
            for m in range(2):
                if j > 2:
                    e(f"v_pk_mul_f32 {vr(TM + 2 * m, 2)}, {vr(cur[0] + 2 * m, 2)}, {vr(W16 + 2 * m, 2)} op_sel_hi:[0,1]")
                e(f"v_pk_mul_f32 {vr(T2 + 2 * m, 2)}, {vr(cur[1] + 2 * m, 2)}, {vr(W16 + 2 * m, 2)} op_sel_hi:[0,1]")
            for m in range(2):
                if j > 2:
                    e(f"v_pk_fma_f32 {vr(n0 + 2 * m, 2)}, {vr(cur[0] + 2 * m, 2)}, {vr(W16 + 2 * m, 2)}, {vr(TM + 2 * m, 2)} op_sel:[1,1,0] op_sel_hi:[1,0,1] neg_lo:[0,1,0]")
                e(f"v_pk_fma_f32 {vr(n1 + 2 * m, 2)}, {vr(cur[1] + 2 * m, 2)}, {vr(W16 + 2 * m, 2)}, {vr(T2 + 2 * m, 2)} op_sel:[1,1,0] op_sel_hi:[1,0,1] neg_lo:[0,1,0]")
            put(n0, 32 + j, False)
            put(n1, 33 + j, False)
            cur = [n0, n1]

    def k_role1():
        MX = 136
        e(f"v_max_f32 v{MX}, |v{CC}|, |v{CC + 1}|")
        e(f"v_max3_f32 v{MX}, |v{CC + 2}|, |v{CC + 3}|, v{MX}")
        red("v_max_f32", MX, MX + 1, True)
        e(f"v_frexp_exp_i32_f32 v{MX}, v{MX}")
        e(f"v_add_f32 v{KA}, v{KA}, v{KA}")
        e(f"v_ldexp_f32 v{MX + 2}, v{KA}, v{MX}")
        e(f"v_mov_b32 v{MX + 3}, v{KA + 7}")
        e(f"v_sub_u32 v{MX}, 0, v{MX}")
        for i in range(4):
            e(f"v_ldexp_f32 v{CC + i}, v{CC + i}, v{MX}")
        e(f"v_add_u32 v{MX + 1}, {sKR}, v{vYS}")
        e(f"v_mov_b32 v{MX}, 0")
        g.lds(f"ds_write_b64 v{MX + 1}, {vr(MX + 2, 2)} offset:{YSO}", "xy")
        g.lds(f"ds_write_b32 v{MX + 1}, v{MX}", "xy")
        Z, Q, Q4 = 156, 160, 164
        cexp(Z, 1, TM)
        cexp(Q, 256, TM)
        cexp(Q4, 1024, TM)
        X = [168 + 4 * i for i in range(8)]
        X[0] = CC
        put(CC, 0, True)
        for s in range(1, 8):
            cmul(X[s], X[s - 1], Z, TM)
            put(X[s], s, True)
        R8 = [200 + 4 * i for i in range(4)]
        for s in range(4):
            cmul(R8[s], X[2 * s], Q, TM)
            put(R8[s], 8 + s, True)
        R12 = [216, 220]
        for s in range(2):
            cmul(R12[s], R8[2 * s], Q, TM)
            put(R12[s], 12 + s, True)
        for s in range(2):
            cmul(X[1 + 2 * s], R12[s], Q, TM)
            put(X[1 + 2 * s], 14 + s, True)
        cmul(R8[0], CC, Q4, TM)
        put(R8[0], 16, True)
        cmul(R8[1], R8[0], Q, TM)
        put(R8[1], 17, True)
        cmul(R8[3], R8[1], Q, TM)
        put(R8[3], 18, True)
        cmul(R8[1], R8[3], Q, TM)
        put(R8[1], 19, True)
        cmul(R8[2], R8[0], Q4, TM)
        put(R8[2], 20, True, lastrow=True)

    def kgen(sfx, units, every):
        k_setup()
        e(f"s_cmp_lg_u32 {sRHO}, 0")
        e(f"s_cbranch_scc1 L_role1{sfx}")
        vm_s, lg_s = list(g.vm), list(g.lg)
        us = list(units)
        interleave(k_role0, us, every)
        emit_units(us)
        e(f"s_branch L_kbar{sfx}")
        align()
        g.lab(f"L_role1{sfx}")
        g.vm, g.lg = vm_s, lg_s
        us = list(units)
        interleave(k_role1, us, every)
        emit_units(us)
        g.lab(f"L_kbar{sfx}")
        stamp("kvalu_end")

    def kgen_mfma():
        KF = 64
        for ks in range(8):
            g.lds(f"ds_read_b128 {vr(KF + 4 * ks, 4)}, v{vKA_A} offset:{64 * ks}", ("ka", ks))
            g.lds(f"ds_read_b128 {vr(128 + 4 * ks, 4)}, v{vKA_B} offset:{YR0 * XYP + 64 * ks}", ("kb0", ks))
            g.lds(f"ds_read_b128 {vr(160 + 4 * ks, 4)}, v{vKA_B} offset:{(YR0 + 16) * XYP + 64 * ks}", ("kb1", ks))
        KD = 96
        for ks in range(8):
            g.wlg(("kb1", ks))
            e(f"v_mfma_f32_16x16x32_f16 {vr(KD, 4)}, {vr(KF + 4 * ks, 4)}, {vr(128 + 4 * ks, 4)}, {'0' if ks == 0 else vr(KD, 4)}")
            e(f"v_mfma_f32_16x16x32_f16 {vr(KD + 4, 4)}, {vr(KF + 4 * ks, 4)}, {vr(160 + 4 * ks, 4)}, {'0' if ks == 0 else vr(KD + 4, 4)}")
        g.nop(7)
        for i in range(8):
            g.lds(f"ds_write_b32 v{SC + i}, v{KD + i}", "tw")

    vm0 = ["cpf"] + ["ln"] * 5
    u0, u0b = split_units(dma_units(0), opt.get("nf", 4))
    def g1_early():
        e("v_mul_u32_u24 v7, 1280, v4")
        e("v_xor_b32 v8, v5, v6")
        e("v_xor_b32 v9, 4, v8")
        e(f"v_lshl_add_u32 v{vXO}, v8, 4, v7")
        e(f"v_lshl_add_u32 v{vXO + 1}, v9, 4, v7")
        e(f"v_add_u32 v{vXO + 1}, {8 * 1280 - 1024}, v{vXO + 1}")
        e(f"s_lshl2_add_u32 {sXS}, {sM}, {sW}")
        e(f"s_mul_i32 {sXS}, {sXS}, {64 * 1280}")
        e(f"s_lshl_b32 {sXM0}, {sW}, 13")
        e(f"s_add_u32 {sXM0}, {sXM0}, 16384")
        for i in range(2, 8):
            d = 16 * 1280 - 1024 * ((i & 3) - ((i - 2) & 3))
            e(f"v_add_u32 v{vXO + i}, {d}, v{vXO + i - 2}")
        rest_setup()
    interleave(g1_early, u0, opt.get("pe0", 1))
    assert not u0
    e(f"s_mov_b32 {sRND}, 1")
    rest_loads()
    aE, aL = addr_items(XYB_G1, TB_G1)
    table_code(TB_G1)
    run_items(aE)
    rb1()
    if diag and not opt.get("dbg"):
        e("s_memrealtime s[100:101]\ns_waitcnt lgkmcnt(0)\nv_writelane_b32 v127, s100, 58")
    g.sfree += [88, 90]
    g.wvm("ln")
    stamp("par_data")
    u0c, u0d = split_units(u0b, opt.get("nl", 4))
    interleave(ln_code, u0c, opt.get("pe1", 30))
    emit_units(u0c)
    ln_tail()
    stamp("ln_done")
    g.wvm("ep")
    tag_code()
    e(f"s_lshl_b32 {sT3}, s2, 2")
    e(f"s_add_u32 {sT3}, {sT3}, {LNF}")
    e(f"s_cmp_eq_u32 {sW}, 0")
    e(f"s_cselect_b32 {sT3}, {sT3}, {OOB}")
    e("s_barrier")
    kgen("g", u0d + dma_units(1) + csl_units(), opt.get("pek", 11))
    g.wvm("lnst")
    g.wlg0()
    e("s_barrier")
    flag_store(sT3)
    kgen_mfma()
    stamp("kdone")
    e("v_and_b32 v2, 31, v0")
    e("v_lshrrev_b32 v3, 5, v0")
    e("v_bfe_u32 v4, v0, 1, 3")
    e("v_xor_b32 v4, v4, v3")
    e(f"v_lshl_add_u32 v2, v2, 7, {sXM0}")
    for ks in range(4):
        e(f"v_xor_b32 v5, {2 * ks}, v4")
        e(f"v_lshl_add_u32 v{vBA + ks}, v5, 4, v2")
        e(f"v_add_u32 v{vBA + 4 + ks}, {2 * SLOT}, v{vBA + ks}")
    e("v_bfe_u32 v6, v0, 2, 2")
    e("v_and_b32 v7, 3, v0")
    e("v_lshl_add_u32 v2, v3, 3, v6")
    e("v_lshlrev_b32 v2, 7, v2")
    e("v_bfe_u32 v4, v0, 4, 1")
    e("v_lshl_add_u32 v2, v4, 5, v2")
    e("v_lshl_add_u32 v2, v7, 3, v2")
    e("v_lshrrev_b32 v3, 1, v6")
    e(f"v_xor_b32 v3, {sRHO}, v3")
    e(f"s_lshl_b32 {sT1}, {sC}, 13")
    e("v_lshl_add_u32 v2, v3, 6, v2")
    e(f"v_add_u32 v{vAA}, {sT1}, v2")
    e(f"v_xor_b32 v{vAA + 1}, 64, v{vAA}")
    e(f"v_xor_b32 v{vAA + 2}, 0x2000, v{vAA}")
    e(f"v_xor_b32 v{vAA + 3}, 0x2000, v{vAA + 1}")
    for i in range(4):
        e(f"v_add_u32 v{vAA + 4 + i}, {2 * SLOT}, v{vAA + i}")

    def touch_setup():
        return [f"s_lshr_b32 {sF0}, {sQ}, 2", f"s_mul_i32 {sF0}, {sF0}, 10", f"v_add_u32 v2, {sF0}, v0",
                "v_min_u32 v2, 63, v2", "v_mul_u32_u24 v2, 1280, v2", f"v_mov_b32 v3, {OOB}",
                f"v_cmp_lt_u32 vcc, 9, v0\ns_nop 1\nv_cndmask_b32 v{vTO}, v2, v3, vcc",
                f"s_and_b32 {sF0}, {sQ}, 3", f"s_lshl_b32 {sF0}, {sF0}, 1", f"s_add_u32 {sF0}, {sF0}, {sRHO}",
                f"s_lshl_b32 {sF0}, {sF0}, 3", f"s_lshl_b32 {sF1}, {sW}, 4", f"s_sub_u32 {sF0}, {sF0}, {sF1}",
                f"s_add_u32 {sF0}, {sF0}, 64", f"v_add_u32 v2, {sF0}, v0", "v_mul_u32_u24 v2, 3456, v2",
                f"v_cmp_lt_u32 vcc, 7, v0\ns_nop 1\nv_cndmask_b32 v{vTO + 1}, v2, v3, vcc",
                ]

    def touch_units(ahead):
        return [f"s_add_u32 {sT4}, {sXS}, {128 * ahead}",
                ("vm", f"buffer_load_dword v{vFL + 4}, v{vTO}, {SX}, {sT4} offen", "touch"),
                f"s_add_u32 {sT4}, {sWSO}, {64 * 3456 * (ahead - 1)}" if ahead >= 1 else f"s_sub_u32 {sT4}, {sWSO}, {64 * 3456}",
                ("vm", f"buffer_load_dword v{vFL + 4}, v{vTO + 1}, {STW}, {sT4} offen", "touch")]

    def frag_reads(k):
        stage, ks = divmod(k, 4)
        sl = stage % 3
        st4 = 4 if sl == 2 else 0
        so = 0 if sl == 2 else sl * SLOT
        A = vAF + 16 * (k & 1)
        B = vBF + 8 * (k & 1)
        def bread(b):
            return ("lds", f"ds_read_b128 {vr(B + 4 * b, 4)}, v{vBA + st4 + ks} offset:{so + 4096 * b}", ("B", k, b))
        def aread(t, h):
            return ("lds", f"ds_read_b64_tr_b16 {vr(A + 4 * t + 2 * h, 2)}, v{vAA + st4 + t} offset:{so + ks * 2048 + h * 512}", ("A", k, t))
        return [bread(0), aread(0, 0), aread(0, 1), bread(1), aread(1, 0), aread(1, 1), aread(2, 0), aread(2, 1), aread(3, 0), aread(3, 1)]

    e(f"s_mov_b32 {sMASK}, 0xffff0000")
    g.wvm(("dma", 0))
    g.wlg0()
    e("s_barrier")
    stamp("g1_start")
    stamp("c_g1s", cyc=True)
    for it in frag_reads(0):
        g.do(it)

    PACE = opt.get("pace", 2)
    NG = 320
    gaps = [[] for _ in range(NG)]
    head = [[] for _ in range(NG)]
    pre = {}
    vq_big = []

    sq = []
    def add_group(units, earliest, small=False, pace=None):
        vq = sq if small else vq_big
        prel = []
        for u in units:
            if isinstance(u, tuple) and u[0] == "m0":
                prel.append(u[1])
            elif isinstance(u, tuple) or callable(u):
                vq.append([earliest, prel, u, [], pace])
                prel = []
            else:
                prel.append(u)
        if prel:
            vq[-1][3] += prel

    def Bgap(s):
        return 32 * s - 8

    PKV = 48
    pk_fill = [f"s_mov_b32 {sF0}, {0x100000000 // 20 + 1}", f"s_lshl_b32 {sF1}, {sW}, 6"]
    for i3 in range(3):
        pk_fill += [f"v_add_u32 v2, {sF1}, v0"] + ([f"v_add_u32 v2, {256 * i3}, v2"] if i3 else []) + [
            f"v_mul_hi_u32 v3, v2, {sF0}", "v_mul_u32_u24 v12, 20, v3", "v_sub_u32 v12, v2, v12",
            "v_mul_u32_u24 v3, 1280, v3", f"v_lshl_add_u32 v{PKV + i3}, v12, 4, v3"]
    pk_fill += [f"s_lshr_b32 {sHS0}, {sCP}, 2", f"s_and_b32 {sHS1}, {sCP}, 3",
                f"s_mul_i32 {sT2}, {sHS0}, 40960", f"s_mul_i32 {sF0}, {sHS1}, 320", f"s_add_u32 {sT2}, {sT2}, {sF0}",
                f"s_lshl_b32 {sT3}, {sW}, 10"]
    pk_fill2 = ["v_lshrrev_b32 v2, 5, v0", "v_bfe_u32 v3, v0, 2, 2", "v_lshl_add_u32 v2, v2, 4, v3", "v_bfe_u32 v3, v0, 4, 1",
                "v_lshl_add_u32 v2, v3, 2, v2", "v_mul_u32_u24 v2, 320, v2", "v_and_b32 v3, 3, v0", "v_lshl_add_u32 v2, v3, 3, v2",
                f"s_lshl_b32 {sF0}, {sW}, 5", f"s_add_u32 {sF0}, {sF0}, {PKB}", f"v_add_u32 v{PKV + 3}, {sF0}, v2"]
    PDR = [56, 60, 8]
    pk_dma = []
    for i3 in range(3):
        pk_dma.append(("m0", f"s_add_u32 m0, {sT3}, {PKB + 4096 * i3}"))
        if i3 == 2:
            pk_dma.append(lambda: e(f"s_cmp_lt_u32 {sW}, 2\ns_cbranch_scc0 L_nopk3\nbuffer_load_dwordx4 v{PKV + 2}, {SWD}, {sT2} offen{NT} lds\nL_nopk3:") or g.vm.append("OPT"))
        else:
            pk_dma.append(("vm", f"buffer_load_dwordx4 v{PKV + i3}, {SWD}, {sT2} offen{NT} lds", "pkd"))
    pk_st = []
    for i3 in range(3):
        pk_st += [f"s_mul_i32 {sT2}, {sHS1}, 10\ns_add_u32 {sT2}, {sT2}, {sW}\ns_add_u32 {sT2}, {sT2}, {4 * i3}",
                  f"s_mul_i32 {sT3}, {sT2}, 13108\ns_lshr_b32 {sT3}, {sT3}, 16\ns_mul_i32 {sT3}, {sT3}, 265\ns_add_u32 {sT2}, {sT2}, {sT3}",
                  f"s_mul_i32 {sT3}, {sHS0}, 5\ns_add_u32 {sT2}, {sT2}, {sT3}\ns_lshl_b32 {sT2}, {sT2}, 10\ns_add_u32 {sT2}, {sT2}, {WDP}"]
        if i3 == 2:
            pk_st.append(f"s_cmp_lt_u32 {sW}, 2\ns_cselect_b32 {sT2}, {sT2}, {OOB}")
        pk_st.append(("vm", f"buffer_store_dwordx4 {vr(PDR[i3], 4)}, v1, {SWS}, {sT2} offen sc1", "pks"))
    lnflag = [f"s_lshl_b32 {sT1}, s2, 2\ns_add_u32 {sT1}, {sT1}, {LNF}\ns_cmp_eq_u32 {sW}, 0\ns_cselect_b32 {sT1}, {sT1}, {OOB}",
              lambda: flag_store(sT1)]
    def wff():
        g.wvm("pks")
        flag_store(sT1)
    wfflag = [f"s_lshl_b32 {sT1}, {sHS1}, 6\ns_add_u32 {sT1}, {sT1}, {sHS0}\ns_lshl_b32 {sT1}, {sT1}, 2\ns_add_u32 {sT1}, {sT1}, {sW}",
              f"s_lshl_b32 {sT1}, {sT1}, 2\ns_add_u32 {sT1}, {sT1}, {WF}", wff]

    add_group(dma_units(2), opt.get("d2", 4))
    add_group(pk_dma, opt.get("dpk", 20))
    for st_ in range(1, 8):
        if st_ == 2:
            add_group(pk_st, Bgap(2) + 6)
        add_group(dma_units(st_ + 2), Bgap(st_) + {1: opt.get("d3", 10), 2: opt.get("d4", 20), 3: opt.get("d5", 20), 4: opt.get("d6", 0)}.get(st_, 0))
    G0 = 8 * KCHK + 4
    for phi in range(P1):
        add_group(wd_load(phi), G0)
    vsched = []
    occ = set()
    def place(q, pace):
        last = -pace
        for (ear, prel, vmi, post, pc) in q:
            gq = max(ear, last + (pc or pace))
            while gq in occ:
                gq += 1
            assert gq < NG - 1, gq
            occ.add(gq)
            gaps[gq - 1] += prel
            head[gq].append(vmi)
            gaps[gq] = post + gaps[gq]
            last = gq
            vsched.append((gq, vmi[2] if isinstance(vmi, tuple) else "flag"))
    place(vq_big, PACE)
    def gap_of(tag):
        return max(gq for gq, t in vsched if t == tag)
    for st_ in range(1, 8):
        ge = gap_of(("dma", st_ + 2)) + 2
        if st_ == 2:
            add_group([f"s_lshl_b32 {sT1}, {sFT}, 1\ns_add_u32 {sT1}, {sT1}, {sC}\ns_lshl_b32 {sT1}, {sT1}, 3\ns_add_u32 {sT1}, {sT1}, {sM}",
                       f"s_lshl_b32 {sT1}, {sT1}, 1\ns_add_u32 {sT1}, {sT1}, {sRHO}\ns_lshl_b32 {sT1}, {sT1}, 8\ns_add_u32 {sT1}, {sT1}, {CSP}",
                       ("vm", f"buffer_store_dwordx2 {vr(4, 2)}, v6, {SWS}, {sT1} offen sc1", "pks")], gap_of("pks") + 1, True)
        if st_ == 3:
            add_group(wfflag, gap_of(("dma", 4)) + 1, True)
        if st_ == 5:
            add_group([("vm", f"buffer_load_dwordx4 {vr(vFL, 4)}, v{vFA}, {SWS}, 0 offen sc1", "poll"),
                       ("vm", f"buffer_load_dwordx4 {vr(PKV, 4)}, v{vFA + 1}, {SWS}, 0 offen sc1", "poll")], 8 * KCHK - 22, True)
        if TOUCH and st_ + TOUCH <= 9:
            if st_ == 1:
                for a in range(0, TOUCH - 3):
                    add_group(touch_units(a), ge, True)
            add_group(touch_units(TOUCH - 3), ge, True)
        if st_ == 6 and opt.get('wtouch'):
            for t3 in range(3):
                add_group([f"s_and_b32 {sT4}, {sLT}, 3\ns_mul_i32 {sT4}, {sT4}, {140 * 128}\ns_add_u32 {sT4}, {sT4}, {sWDS}" if t3 == 0 else f"s_add_u32 {sT4}, {sT4}, {48 * 128}",
                           ("vm", f"buffer_load_dword v{vFL + 4}, v{PKV + 1}, {SWS}, {sT4} offen sc1", "wtouch")], 8 * KCHK + 4 + 4 * t3, True)
    add_group([f"s_lshl_b32 {sT1}, {sFT}, 1\ns_add_u32 {sT1}, {sT1}, {sC}\ns_lshl_b32 {sT1}, {sT1}, 5\ns_add_u32 {sT1}, {sT1}, {sRHO}",
               f"s_lshl_b32 {sT1}, {sT1}, 7\ns_add_u32 {sT1}, {sT1}, {CSP}",
               ("vm", f"buffer_load_dwordx4 {vr(4, 4)}, v{vCS}, {SWS}, {sT1} offen sc1", "csp"),
               ("vm", f"buffer_load_dwordx4 {vr(8, 4)}, v{vCS}, {SWS}, {sT1} offen offset:2048 sc1", "csp")], G0, True)
    add_group([f"s_lshl_b32 {sT1}, {sM}, 2\ns_add_u32 {sT1}, {sT1}, {sW}\ns_lshl_b32 {sT1}, {sT1}, 10\ns_add_u32 {sT1}, {sT1}, {STATS}",
               ("vm", f"buffer_load_dwordx4 {vr(vSTA, 4)}, v15, {SWS}, {sT1} offen sc1", "stats"),
               ("vm", f"buffer_load_dwordx4 {vr(vSTA + 4, 4)}, v15, {SWS}, {sT1} offen offset:512 sc1", "stats")], G0, True)
    add_group(u_loads(sCP, 3), G0, True)
    place(sq, 1)
    vsched.sort()
    if opt.get("v"):
        print(vsched)
    assert all(gap_of(("dma", st_)) < Bgap(st_) - 12 for st_ in range(2, 10))
    assert gap_of("pkd") < Bgap(2) and gap_of("pks") < gap_of(("dma", 4)) - 24 and gap_of("poll") < 8 * KCHK - 6

    for i3 in range(3):
        for h in range(2):
            gaps[Bgap(2) + 1 + i3].append(("lds", f"ds_read_b64_tr_b16 {vr(PDR[i3] + 2 * h, 2)}, v{PKV + 3} offset:{128 * i3 + 8 * 320 * h}", "pk"))
    c4 = check4(vFL)
    gaps[8 * KCHK] += [("wvm", "poll")] + c4[0:2]
    gaps[8 * KCHK + 1] += c4[2:5]
    def chk():
        sl = g.newlab("Lslow")
        bk = g.newlab("Lback")
        for x in check4(PKV)[:6]:
            e(x)
        e(f"v_or3_b32 v{vFL}, v{vFL}, v{vFL + 3}, v{PKV}")
        e(c4[6])
        e(f"s_cbranch_vccnz {sl}")
        g.lab(bk)
        g.slow.append((sl, bk, [(vFA, True), (vFA + 1, True)]))
    gaps[8 * KCHK + 2].insert(0, chk)

    CA = [4, 5, 6, 7, 42, 43, 44, 45]
    csum = []
    for j5 in range(5):
        csum.append(("wvm", ("csl", j5)))
        for d in range(4):
            r = CSR[j5] + d
            if j5 == 0:
                csum += [f"v_lshlrev_b32 v{CA[2 * d]}, 16, v{r}", f"v_and_b32 v{CA[2 * d + 1]}, {sMASK}, v{r}"]
            else:
                csum += [f"v_lshlrev_b32 v8, 16, v{r}", f"v_and_b32 v9, {sMASK}, v{r}",
                         f"v_add_f32 v{CA[2 * d]}, v{CA[2 * d]}, v8", f"v_add_f32 v{CA[2 * d + 1]}, v{CA[2 * d + 1]}, v9"]
    csum += ["s_nop 1"]
    csum += [f"v_permlane32_swap_b32 v{CA[c]}, v{CA[c + 4]}" for c in range(4)]
    csum += [f"v_add_f32 v{CA[c]}, v{CA[c]}, v{CA[c + 4]}" for c in range(4)]
    csum += ["s_nop 1"]
    csum += [f"v_permlane16_swap_b32 v{CA[c]}, v{CA[c + 2]}" for c in range(2)]
    csum += ["s_nop 0"]
    csum += [f"v_add_f32 v{CA[c]}, v{CA[c]}, v{CA[c + 2]}" for c in range(2)]
    csum += ["v_and_b32 v6, 7, v0", "v_lshlrev_b32 v6, 5, v6"]
    csum += [f"v_add_f32 v{CA[c]}, v{CA[c]}, v{CA[c]} row_ror:8" for c in range(2)]
    csum += ["v_lshrrev_b32 v7, 4, v0", "v_lshl_add_u32 v6, v7, 3, v6", f"v_mov_b32 v7, {OOB}",
             "v_and_b32 v8, 8, v0", "v_cmp_ne_u32 vcc, 0, v8\ns_nop 1\nv_cndmask_b32 v6, v6, v7, vcc"]
    fillq = pk_fill + (touch_setup() if TOUCH else []) + pk_fill2[:11]
    n_a = len(fillq)
    fillq += csum
    n_csum = len(fillq)
    n_early = len(pk_fill)
    fillq += pk_fill2[11:]
    n_early2 = len(fillq)
    fillq += [f"v_min_u32 v2, 53, v0", f"s_lshr_b32 {sF0}, {sDT}, 1", f"s_lshl_b32 {sF0}, {sF0}, 10",
              f"s_add_u32 {sF0}, {sF0}, {WF}", f"v_lshl_add_u32 v2, v2, 4, {sF0}",
              "v_and_b32 v3, 7, v0", "v_mul_u32_u24 v3, 27, v3", f"v_add_u32 v3, {sFT}, v3", "v_and_b32 v12, 3, v3",
              "v_lshrrev_b32 v3, 2, v3", "v_lshl_add_u32 v3, v12, 6, v3", "v_lshlrev_b32 v3, 4, v3", f"v_add_u32 v3, {WF}, v3",
              f"v_cmp_lt_u32 vcc, 55, v0\ns_nop 1\nv_cndmask_b32 v{vFA + 1}, v2, v3, vcc"]
    iw = max(i for i, x in enumerate(aL) if sWDS + "," in x)
    i0 = min(i for i, x in enumerate(aL) if f"{sF0}, {sW}, 14" in x)
    iu = max(i for i, x in enumerate(aL) if f"a{AS2 + 23}," in x)
    fillq += [f"v_add_u32 v{vFA}, {LNF}, v1"] + aL[i0:iw + 1] + ["v_lshrrev_b32 v3, 1, v0", "v_and_b32 v2, 1, v0", "v_mul_u32_u24 v3, 10240, v3", "v_lshl_add_u32 v3, v2, 4, v3",
                              f"v_accvgpr_write_b32 a{AS2 + 23}, v3"]
    n_mid = len(fillq)
    late_fill = aL[:i0] + aL[i0:i0 + 3] + aL[iw + 1:] + gather_items(TB_G1)
    late_fill = [x.replace("v12", "v10").replace("v13", "v11").replace("v14", "v46").replace("v15", "v47") for x in late_fill]
    fillq += ["v_bfe_u32 v2, v0, 4, 1", f"v_mul_u32_u24 v2, {54 * 1024}, v2", "v_lshrrev_b32 v3, 5, v0",
              "v_lshl_add_u32 v2, v3, 8, v2", "v_and_b32 v12, 15, v0", "v_lshl_add_u32 v2, v12, 4, v2",
              f"s_lshl_b32 {sF0}, {sRHO}, 10", f"v_add_u32 v{vHO}, {sF0}, v2", f"s_xor_b32 {sF0}, {sF0}, 1024",
              f"v_add_u32 v{vHO + 1}, {sF0}, v2", f"s_lshl_b32 {sF0}, {sRHO}, 7", f"s_add_u32 {sF0}, {sF0}, {CSB}",
              f"v_lshl_add_u32 v13, v3, 4, {sF0}", "v_xor_b32 v14, 128, v13",
              "v_and_b32 v2, 7, v0", "v_lshlrev_b32 v12, 4, v2", "v_lshl_add_u32 v12, v3, 3, v12", "v_bfe_u32 v3, v0, 4, 1",
              "v_lshl_add_u32 v12, v3, 2, v12", f"s_lshl_b32 {sF0}, {sW}, 7", f"s_add_u32 {sF0}, {sF0}, {CSB}",
              f"v_add_u32 v12, {sF0}, v12", "v_lshrrev_b32 v3, 3, v0", "v_lshlrev_b32 v3, 8, v3", f"v_lshl_add_u32 v{vCS}, v2, 4, v3",
              "v_and_b32 v15, 31, v0", "v_lshlrev_b32 v15, 4, v15"]
    tail_fill = [f"s_lshl_b32 {sHS0}, {sM}, 2", f"s_add_u32 {sHS0}, {sHS0}, {sW}", f"s_lshl_b32 {sPEND}, {sHS0}, 5",
                 f"s_mul_i32 {sHS0}, {sHS0}, {4 * 54}", f"s_lshl_b32 {sT2}, {sFT}, 1", f"s_add_u32 {sHS0}, {sHS0}, {sT2}",
                 f"s_lshl_b32 {sHS0}, {sHS0}, 10", f"s_add_u32 {sHS0}, {sHS0}, {HB}", f"s_add_u32 {sHS1}, {sHS0}, {2 * 54 * 1024}",
                 f"s_add_u32 {sPEND}, {sPEND}, {sFT}", f"s_lshl_b32 {sPEND}, {sPEND}, 7", f"s_add_u32 {sPEND}, {sPEND}, {HF}"]
    cs_fill = [("wvm", "csp")] + [f"v_add_f32 v{4 + c}, v{4 + c}, v{8 + c}" for c in range(4)] + ["s_nop 0",
               "v_permlane32_swap_b32 v4, v6", "v_permlane32_swap_b32 v5, v7", "s_nop 0", "v_add_f32 v4, v4, v6", "v_add_f32 v5, v5, v7",
               "s_nop 1", "v_permlane16_swap_b32 v4, v5", "s_nop 0", "v_add_f32 v4, v4, v5", "s_nop 1",
               "v_add_f32 v4, v4, v4 row_ror:8", ("lds", "ds_write_b32 v12, v4", "csw")]
    nf_total = len(fillq)

    def cost(it):
        if isinstance(it, str):
            return it.count("\n") + 1
        return 1
    CAP = opt.get("cap", 4)
    for k in range(40):
        stage, ks = divmod(k, 4)
        A = vAF + 16 * (k & 1)
        B = vBF + 8 * (k & 1)
        gk = [head[8 * k + i] + gaps[8 * k + i] for i in range(8)]
        body = [[] for _ in range(8)]
        if k + 1 < 40:
            for i, it in enumerate(frag_reads(k + 1)):
                body[i // 2].append(it)
        if k == 39:
            for j in range(4):
                body[2 + j // 2].append(("lds", f"ds_read_b128 {vr(64 + 4 * j, 4)}, v13 offset:{32 * j}", "cs0"))
            for j in range(4):
                dst = (4 + 4 * j) if j < 2 else (96 + 4 * (j - 2))
                body[4 + j // 2].append(("lds", f"ds_read_b128 {vr(dst, 4)}, v13 offset:{256 + 32 * j}", "cs0"))
        else:
            load = [sum(map(cost, gk[i])) + len(body[i]) + (1 if i in (3, 7) else 0) for i in range(8)]
            q = fillq if fillq else (tail_fill if (k >= 18 and tail_fill) else late_fill)
            if k == KCHK or (q is late_fill and (k < 10 or 29 <= k <= 34)):
                q = []
            if k == 29:
                assert not late_fill, len(late_fill)
            if k in (33, 34) and cs_fill:
                q = cs_fill
            cap = CAP + (1 if k < 9 else opt.get('capx', 1))
            for i in range(8):
                while q and load[i] + cost(q[0]) <= cap + (2 if cost(q[0]) > 1 else 0):
                    it = q.pop(0)
                    body[i].append(it)
                    load[i] += cost(it)
            if k == 2:
                assert nf_total - len(fillq) >= n_early, (nf_total - len(fillq), n_early)
            if k == 5:
                assert nf_total - len(fillq) >= n_a
            if k == 6:
                assert nf_total - len(fillq) >= n_a + 30
            if 8 * k + 8 >= gap_of("pks") - 1:
                assert nf_total - len(fillq) >= n_csum, (nf_total - len(fillq), n_csum)
            if k == 13:
                assert nf_total - len(fillq) >= n_early2
            if k == KCHK - 4:
                assert nf_total - len(fillq) >= n_mid
            if 8 * k + 8 > gap_of("stats") - 4:
                assert not fillq, (k, len(fillq))
        if ks == 3 and stage < 9:
            stamp(f"c_w{stage + 1}", cyc=True)
            g.wlg0()
            if stage == 1:
                g.wvm("OPT")
            g.wvm(("dma", stage + 1))
            e("s_barrier")
            stamp(f"c_b{stage + 1}", cyc=True)
        for i in range(8):
            t, b = divmod(i, 2)
            if k == 0:
                g.wlg(("A", k, t))
                g.wlg(("B", k, b))
            elif i == 0:
                g.wlg(("A", k, 1))
            elif i == 4:
                g.wlg(("A", k, 3))
            D = vACC + 16 * (2 * t + b)
            Cs = "0" if k == 0 else vr(D, 16)
            e(f"v_mfma_f32_32x32x16_bf16 {vr(D, 16)}, {vr(A + 4 * t, 4)}, {vr(B + 4 * b, 4)}, {Cs}")
            for it in head[8 * k + i]:
                if isinstance(it, tuple) and it[2] == "pks":
                    g.wlg("pk")
                g.do(it)
            for it in body[i] + gaps[8 * k + i]:
                g.do(it)
    assert not tail_fill and not cs_fill and not late_fill, len(late_fill)
    stamp("c_g1e", cyc=True)
    stamp("g1_loop_end", flush=True)

    def csu0(i):
        return (4 + i) if i < 8 else (96 + i - 8)
    def csu1(i):
        return (104 + i) if i < 8 else (28 + i - 8)
    tmps = [24, 26, 36, 38]
    g.wvm("stats")
    g.wlg("cs0")
    e(f"s_cmp_lg_u32 {sC}, 0")
    e("s_cbranch_scc1 L_epiB")
    vm_save, lg_save = list(g.vm), list(g.lg)
    for variant in range(2):
        if variant == 1:
            align()
            g.lab("L_epiB")
            g.vm, g.lg = list(vm_save), list(lg_save)
        align()
        for ap in range(2):
            for b in range(2):
                gs, us = (ap, 2 + ap) if variant == 0 else (2 + ap, ap)
                Gt = vACC + 16 * (2 * gs + b)
                Ut = vACC + 16 * (2 * us + b)
                st = vSTA + 4 * b
                if ap == 0 and b == 1:
                    for j in range(4):
                        g.lds(f"ds_read_b128 {vr(80 + 4 * j, 4)}, v14 offset:{32 * j}", "cs1")
                    for j in range(4):
                        dst = (104 + 4 * j) if j < 2 else (28 + 4 * (j - 2))
                        g.lds(f"ds_read_b128 {vr(dst, 4)}, v14 offset:{256 + 32 * j}", "cs1")
                if ap == 1 and b == 0:
                    g.wlg("cs1")
                    align()
                csg = (lambda i: 64 + i) if ap == 0 else (lambda i: 80 + i)
                csu = csu0 if ap == 0 else csu1
                for c in range(2):
                    O = 16 if c == 0 else 20
                    ps = range(4 * c, 4 * c + 4)
                    for p in ps:
                        e(f"v_pk_fma_f32 {vr(Gt + 2 * p, 2)}, {vr(csg(2 * p), 2)}, {vr(st, 2)}, {vr(Gt + 2 * p, 2)} op_sel_hi:[1,0,1]")
                    for p in ps:
                        e(f"v_pk_mul_f32 {vr(tmps[p % 4], 2)}, {vr(Gt + 2 * p, 2)}, {vr(Gt + 2 * p, 2)}")
                    for p in ps:
                        t = tmps[p % 4]
                        e(f"v_pk_fma_f32 {vr(t, 2)}, {vr(t, 2)}, {vr(st, 2)}, {vr(st + 2, 2)} op_sel:[0,1,0] op_sel_hi:[1,1,0]")
                    for p in ps:
                        t = tmps[p % 4]
                        e(f"v_pk_mul_f32 {vr(t, 2)}, {vr(t, 2)}, {vr(Gt + 2 * p, 2)}")
                    for p in ps:
                        t = tmps[p % 4]
                        e(f"v_exp_f32 v{t}, v{t}")
                        e(f"v_exp_f32 v{t + 1}, v{t + 1}")
                    for p in ps:
                        e(f"v_pk_fma_f32 {vr(Ut + 2 * p, 2)}, {vr(csu(2 * p), 2)}, {vr(st, 2)}, {vr(Ut + 2 * p, 2)} op_sel_hi:[1,0,1]")
                    for p in ps:
                        t = tmps[p % 4]
                        e(f"v_pk_fma_f32 {vr(t, 2)}, {vr(t, 2)}, {vr(st + 2, 2)}, {vr(st + 2, 2)} op_sel:[0,1,1] op_sel_hi:[1,1,1]")
                    for p in ps:
                        t = tmps[p % 4]
                        e(f"v_rcp_f32 v{t}, v{t}")
                        e(f"v_rcp_f32 v{t + 1}, v{t + 1}")
                    for p in ps:
                        e(f"v_pk_mul_f32 {vr(Gt + 2 * p, 2)}, {vr(Gt + 2 * p, 2)}, {vr(Ut + 2 * p, 2)}")
                    for p in ps:
                        e(f"v_pk_mul_f32 {vr(Gt + 2 * p, 2)}, {vr(Gt + 2 * p, 2)}, {vr(tmps[p % 4], 2)}")
                    for p in ps:
                        e(f"v_cvt_pk_bf16_f32 v{O + p - 4 * c}, v{Gt + 2 * p}, v{Gt + 2 * p + 1}")
                    g.vmem(f"buffer_store_dwordx4 {vr(O, 4)}, v{vHO + ap}, {SWS}, {sHS0 if b == 0 else sHS1} offen offset:{512 * c} sc1", "hst")
        if variant == 0:
            e("s_branch L_epi_done")
    g.lab("L_epi_done")
    stamp("c_epe", cyc=True)
    stamp("g1_epi_end", flush=True)
    e(f"s_mov_b32 {sMASK}, {sPEND}")

    def rb2():
        for i in range(22):
            e(f"v_accvgpr_read_b32 v{GA + i}, a{AST + 8 + i}")
        for i in range(2, 8):
            e(f"v_accvgpr_read_b32 v{AK + i}, a{AS2 + 1 + i}")
        e("v_mov_b32 v4, 0\nv_mov_b32 v5, 0\nv_mov_b32 v6, 0\nv_mov_b32 v7, 0")
        e(f"ds_write_b128 v{vZ}, {vr(4, 4)}")
    rb2()

    Greg = [[224 + 4 * i for i in range(8)], [192 + 4 * i for i in range(8)]]
    FB = [128, 160]
    CACC = 64
    HRING = [16 + 4 * i for i in range(12)] + [104 + 4 * i for i in range(3)] + [128 + 4 * i for i in range(26)]
    NE = opt.get("ne", 15)
    P2 = opt.get("p2", 40)
    NB = len(HRING)
    YS, DK = 100, 101

    def hload(i):
        k, st = divmod(i, 14)
        r = HRING[i % NB]
        if st == 13:
            return [f"s_cmp_lt_u32 {sW}, 2\ns_cselect_b32 {sT4}, s{sG2 + 4 * k + 3}, {OOB}",
                    ("vm", f"buffer_load_dwordx4 {vr(r, 4)}, v1, {SWS}, {sT4} offen offset:1024 sc1", ("h", i))]
        return [("vm", f"buffer_load_dwordx4 {vr(r, 4)}, v1, {SWS}, s{sG2 + 4 * k + st // 4} offen offset:{(st % 4) * 1024} sc1", ("h", i))]

    def conv(last):
        tag = "L" if last else "E"
        g.lab("L_conv_last" if last else "L_conv_early")
        g.vm = ["u", "u"]
        g.lg = []
        def wd_e(phi):
            its = wd_load(phi)
            if len(its) > 1:
                its.insert(1, f"s_or_b32 {sT5}, {sT5}, {sK0}")
            return its
        if last:
            wq = [[f"s_add_u32 m0, {sXT}, {1024 * kk}", "s_nop 0",
                   ("vm", f"buffer_load_dwordx4 v{12 + kk}, {SX}, {sXO} offen lds", ("xt", 0))] for kk in range(3)]
            wq += [wd_load(phi) for phi in range(P1, 64)]
            for i7 in range(7):
                e(f"v_accvgpr_read_b32 v{9 + i7}, a{AS2 + 14 + i7}")
        else:
            wq = [wd_e(phi) for phi in range(0, P1)]
            g.vmem(f"buffer_load_dwordx4 {vr(vFL, 4)}, v{vFA + 1}, {SWS}, 0 offen sc1", "wfp")
        def wdl(n=1):
            for _ in range(n):
                if wq:
                    for it in wq.pop(0):
                        g.do(it)
        EG = 128
        for ch in range(2):
            for k in range(11):
                g.lds(f"ds_read_b32 v{EG + 12 * ch + k}, v{GA + 11 * ch + k}", ("eg", ch))
        g.lds(f"ds_read_b64 {vr(YS, 2)}, v{vYS} offset:{YSO}", "ysc")
        if last:
            wdl(3)
        g.wvm("u")
        g.lds(f"ds_write_b128 v{vUW}, {vr(vU, 4)}", "uw")
        g.lds(f"ds_write_b128 v{vUW}, {vr(vU + 4, 4)} offset:512", "uw")
        if last:
            e(f"s_or_b32 {sT1}, s2, {sW}")
            e(f"s_cmp_eq_u32 {sT1}, 0")
            e(f"s_cselect_b32 {sT1}, {EPOCH}, {OOB}")
            flag_store(sT1)
        EO = 64
        for ch in range(2):
            g.wlg(("eg", ch))
            align()
            for s in range(4):
                o = EO + 16 * ch + 4 * s
                for j in range(4):
                    e(f"v_cvt_pk_f16_f32 v{o + j}, v{EG + 12 * ch + s + 2 * j}, v{EG + 12 * ch + s + 2 * j + 1}")
                g.lds(f"ds_write_b128 v{vRW}, {vr(o, 4)} offset:{s * RCS + 1024 * ch}", "rw")
                if last and s % 2 == 1:
                    wdl()
            if last and ch == opt.get("hch", 1):
                e(f"s_waitcnt vmcnt({len(g.vm)})")
                flag_store(sMASK)
        if not last:
            e("s_waitcnt vmcnt(0)")
            flag_store(sMASK)
        if last:
            wdl(2)
        else:
            for x in check4(vFL):
                e(x)
            e("s_nop 0")
            e("s_cmp_eq_u64 vcc, 0")
            e(f"s_cselect_b32 {sK0}, 0, {OOB}")
        extra = [f"v_accvgpr_read_b32 v{4 + i}, a{AS2 + 9 + i}" for i in range(5)]
        extra += [f"s_lshl_b32 {sT1}, {sCP}, 1", f"s_add_u32 {sT1}, {sT1}, {sC}", f"s_lshl_b32 {sT1}, {sT1}, 12",
                  f"s_lshl_b32 {sT3}, {sRHO}, 11", f"s_add_u32 {sT1}, {sT1}, {sT3}", f"s_add_u32 {sHS0}, {sT1}, {ST}",
                  f"s_lshl_b32 {sT2}, {sCP}, 5", f"s_add_u32 {sT2}, {sT2}, {sW}",
                  f"s_lshl_b32 {sT2}, {sT2}, 2", f"s_add_u32 {sPEND}, {sT2}, {SF}"]
        if last:
            extra += [f"v_accvgpr_read_b32 v{vFA + i}, a{AS2 + 21 + i}" for i in range(2)]
            extra += ["v_min_u32 v3, 53, v0", "v_lshlrev_b32 v3, 7, v3",
                      f"s_lshl_b32 {sT0}, {sDT}, 2", f"s_add_u32 {sT0}, {sT0}, {sW}", f"s_mul_i32 {sT0}, {sT0}, {54 * 128}",
                      f"s_mul_i32 {sHS1}, {sLT}, {4 * 54 * 1024}", f"s_add_u32 {sHS1}, {sHS1}, {sT0}", f"s_add_u32 {sHS1}, {sHS1}, {HB}"]
        g.wlg0()
        e("s_barrier")
        stamp("c_cs" + tag, cyc=True)
        stamp("conv_start" + tag)

        def cls_reads(dl):
            bf = dl & 1
            out = []
            for s in range(8):
                out.append(("lds", f"ds_read_b128 {vr(Greg[bf][s], 4)}, v{vGB} offset:{512 * s + 64 * (3 - dl)}", ("G", dl, s)))
                off = 64 * (59 - dl - 8 * s)
                out.append(("lds", f"ds_read_b64 {vr(FB[bf] + 4 * s, 2)}, v{vFB} offset:{off}", ("F", dl, s)))
                out.append(("lds", f"ds_read_b64 {vr(FB[bf] + 4 * s + 2, 2)}, v{vFB} offset:{off + 8}", ("F", dl, s)))
            return out
        for it in cls_reads(0):
            g.do(it)
        order = sorted([(s, gg) for s in range(8) for gg in range(8) if s + gg < 8], key=lambda x: (max(x), x[0] + x[1]))
        seen = set()
        hq = []
        US, UD = 2, 96
        for dl in range(4):
            bf = dl & 1
            nxt = cls_reads(dl + 1) if dl < 3 else []
            if dl == 3:
                nxt = [("lds", f"ds_read_b64 {vr(128 + 2 * tt, 2)}, v6 offset:{512 * tt}", "us") for tt in range(4)]
                nxt += [None] * 6 + [("wlg", "us")]
                for tt in range(4):
                    for i in range(4):
                        src = 128 + 2 * tt + (i >> 1)
                        nxt.append(f"v_fma_mix_f32 v{136 + 4 * tt + i}, v{src}, v{DK}, 0 op_sel:[{i & 1},0,0] op_sel_hi:[1,0,0]")
            if last and dl == 3:
                g.wvm("hfp")
                e(f"v_cmp_ne_u32 vcc, v{vTAG}, v{vFL}")
                e("s_nop 0")
                e("s_cmp_eq_u64 vcc, 0")
                e(f"s_cselect_b32 {sK1}, 1, 0")
                e(f"s_cselect_b32 {sT0}, 0, {OOB}")
                tch = [f"s_or_b32 {sT4}, {sHS1}, {sT0}", ("vm", f"buffer_load_dword v{vFL + 4}, v3, {SWS}, {sT4} offen sc1", "ht")]
                TP = opt.get("tp", -1)
                for i in range(NE):
                    k_, st_ = divmod(i, 14)
                    if i == TP:
                        hq.append(tch)
                    pre_ = [f"s_or_b32 {sT4}, s{sG2 + 4 * k_ + st_ // 4}, {sT0}"] if (st_ % 4 == 0 or st_ == 13 or i == TP) else []
                    if st_ == 13:
                        pre_.append(f"s_cmp_lt_u32 {sW}, 2\ns_cselect_b32 {sT4}, {sT4}, {OOB}")
                    hq.append(pre_ + [("vm", f"buffer_load_dwordx4 {vr(HRING[i], 4)}, v1, {SWS}, {sT4} offen offset:{(st_ % 4) * 1024} sc1", ("he", i))])
                if TP == NE:
                    hq.append(tch)
            if dl > 0:
                g.wlg(("F", dl, 7))
            for mi, (s, gg) in enumerate(order):
                t = s + gg
                if dl == 0:
                    g.wlg(("G", dl, gg))
                    g.wlg(("F", dl, s))
                Cs = "0" if t not in seen else vr(CACC + 4 * t, 4)
                seen.add(t)
                e(f"v_mfma_f32_16x16x32_f16 {vr(CACC + 4 * t, 4)}, {vr(FB[bf] + 4 * s, 4)}, {vr(Greg[bf][gg], 4)}, {Cs}")
                start = 8 if dl == 0 else 1
                if mi >= start and nxt:
                    it = nxt.pop(0)
                    if it is not None:
                        g.do(it)
                elif extra:
                    g.do(extra.pop(0))
                if mi % 2 == 1 and extra and mi >= start:
                    g.do(extra.pop(0))
                mc = 36 * dl + mi
                if mc % 4 == 2:
                    nphi = wq[0][-1][2][1] if wq else 0
                    if last and mc == opt.get("hfp", 86):
                        assert not extra
                        g.vmem(f"buffer_load_dword v{vFL}, v{vFA}, {SWS}, 0 offen sc1", "hfp")
                    elif hq:
                        for it in hq.pop(0):
                            g.do(it)
                    elif wq and not (last and extra and nphi >= 48):
                        wdl()
            assert not nxt, len(nxt)
        while wq and not last:
            wdl()
        assert not wq and not extra, (len(wq), len(extra))
        def hl(n=1):
            for _ in range(n):
                if hq:
                    for it in hq.pop(0):
                        g.do(it)
        stamp("c_ce" + tag, cyc=True)
        stamp("conv_end" + tag)
        lr1 = g.newlab("Lfin1")
        lfd = g.newlab("Lfind")
        e(f"s_cmp_lg_u32 {sRHO}, 0")
        e(f"s_cbranch_scc1 {lr1}")
        lg_save, pst_save, sf_save = list(g.lg), list(g.pst), list(g.sfree)
        for rho in range(2):
            if rho == 1:
                g.lab(lr1)
                g.lg, g.pst, g.sfree = list(lg_save), list(pst_save), list(sf_save)
            own = CACC + 16 * rho
            oth = CACC + 16 * (1 - rho)
            g.nop(6)
            for tt in range(4):
                g.lds(f"ds_write_b128 v4, {vr(oth + 4 * tt, 4)} offset:{PB + 1024 * tt}", "pw")
            align()
            for tt in range(4):
                for i in range(4):
                    e(f"v_fma_f32 v{136 + 4 * tt + i}, v{own + 4 * tt + i}, v{YS}, v{136 + 4 * tt + i}")
            if rho == 0:
                e(f"s_branch {lfd}")
        g.lab(lfd)
        g.wlg0()
        e("s_barrier")
        for tt in range(4):
            g.lds(f"ds_read_b128 {vr(152 + 4 * tt, 4)}, v5 offset:{PB + 1024 * tt}", ("pr", tt))
        hl(2)
        for tt in range(4):
            g.wlg(("pr", tt))
            for i in range(4):
                e(f"v_fmac_f32 v{136 + 4 * tt + i}, v{152 + 4 * tt + i}, v{YS}")
            for h in range(2):
                e(f"v_cvt_pk_bf16_f32 v{128 + 2 * tt + h}, v{136 + 4 * tt + 2 * h}, v{136 + 4 * tt + 2 * h + 1}")
            g.lds(f"ds_write_b64 v7, {vr(128 + 2 * tt, 2)} offset:{512 * tt}", "sw")
            hl(1)
        hl(1)
        g.wlg0()
        for j in range(2):
            g.lds(f"ds_read_b128 {vr(88 + 4 * j, 4)}, v8 offset:{1024 * j}", ("sr", j))
        hl(9)
        assert not hq
        if not last:
            e(f"s_add_u32 {sCP}, {sCP}, 40")
            for i in range(22):
                e(f"v_add_u32 v{GA + i}, {2 * TC}, v{GA + i}")
            e(f"v_add_u32 v{vYS}, {2 * TC}, v{vYS}")
        for j in range(2):
            g.wlg(("sr", j))
            g.vmem(f"buffer_store_dwordx4 {vr(88 + 4 * j, 4)}, v1, {SWS}, {sHS0} offen offset:{1024 * j} sc1", "sst")
        if not last:
            for it in u_loads(sCP, 2):
                g.do(it)
            e(f"s_mov_b32 {sMASK}, {sPEND}")
            e(f"s_sub_u32 {sRND}, {sRND}, 1")
            e(f"s_cmp_lg_u32 {sRND}, 1")
            e("s_cbranch_scc1 L_conv_early")

    conv(True)

    e(f"s_cmp_lg_u32 {sK1}, 0")
    e("s_cbranch_scc1 L_hready")
    poll_block(vFA, False)
    if opt.get("tp", -1) >= 0:
        e(f"buffer_load_dword v{vFL + 4}, v3, {SWS}, {sHS1} offen sc1")
    for i in range(NE):
        for it in hload(i):
            e(it[1] if isinstance(it, tuple) else it)
    g.lab("L_hready")
    stamp("c_g2s", cyc=True)
    stamp("g2_start")
    g.vm = [("h", i) for i in range(NE)]
    AC = [64, 84]
    lateq = [wd_load(64 + i) for i in range(6)] + [hload(i) for i in range(NE, NB)]
    fq = ["v_lshrrev_b32 v8, 1, v0", "v_lshlrev_b32 v8, 12, v8", "v_and_b32 v2, 1, v0", "v_lshl_add_u32 v8, v2, 4, v8",
          f"s_mul_i32 {sT1}, {sW}, 15360", f"v_add_u32 v2, {sT1}, v1",
          f"s_mul_i32 {sHS1}, {sW}, 3072", f"s_add_u32 {sHS1}, {sHS1}, {STB}", f"v_lshl_add_u32 v3, v0, 3, {sHS1}",
          "v_and_b32 v4, 15, v0", "v_mul_u32_u24 v4, 160, v4", "v_lshrrev_b32 v5, 4, v0", "v_lshl_add_u32 v4, v5, 3, v4",
          f"v_add_u32 v4, {sXT}, v4", f"v_add_u32 v5, {sXT}, v1",
          ]
    SFP = opt.get("sfp", 43)
    BAR = opt.get("bar", 46)
    P0, P1r, P2r, XR, XU, SR, SU = 160, 180, 200, 128, 138, 220, 180
    xq = [f"s_mov_b32 {sMASK}, 0xffff0000", f"s_mov_b32 {sT2}, {hex(f2u(-LOG2E))}"]
    xq += [("lds", f"ds_read_b64 {vr(XR + 2 * j, 2)}, v4 offset:{32 * j}", "x") for j in range(5)] + [None, None, ("wlg", "x")]
    for p in range(10):
        xq += [f"v_lshlrev_b32 v{XU + 2 * p}, 16, v{XR + p}", f"v_and_b32 v{XU + 2 * p + 1}, {sMASK}, v{XR + p}"]
    eq = [("lds", f"ds_read_b128 {vr(P0 + 4 * q, 4)}, v2 offset:{EXB + 1024 * q}", ("exr", q // 5)) for q in range(15)]
    eq += [("wlg", ("exr", 1))] + [f"v_pk_add_f32 {vr(P0 + 2 * p, 2)}, {vr(P0 + 2 * p, 2)}, {vr(P1r + 2 * p, 2)}" for p in range(10)]
    eq += [("wlg", ("exr", 2))] + [f"v_pk_add_f32 {vr(P0 + 2 * p, 2)}, {vr(P0 + 2 * p, 2)}, {vr(P2r + 2 * p, 2)}" for p in range(10)]

    for i in range(56):
        k, st = divmod(i, 14)
        A0 = AC[k & 1]
        g.wvm(("h", i))
        if st >= 12 and k == 0:
            g.wvm(("wd", 69 if st == 13 else 64))
        r = HRING[i % NB]
        extra = [[] for _ in range(5)]
        if st == 1 and k >= 1:
            pa = AC[(k - 1) & 1]
            for j in range(5):
                extra[j].append(("lds", f"ds_write_b128 v{9 + k - 1}, {vr(pa + 4 * j, 4)} offset:{1024 * j}", "exw"))
        for j in ((0, 3) if i < opt.get("fast", 0) else ((i % 4,) if i % 4 else (0, 4))):
            if lateq:
                extra[j] += lateq.pop(0)
        if i == opt.get('sfl', 7):
            def sflag():
                n = sum(1 for t in g.vm if t[0] == "wd" or (t[0] == "h" and t[1] >= NE))
                e(f"s_waitcnt vmcnt({n})")
                flag_store(sPEND)
            extra[1].append(sflag)
        if 18 <= i < 26:
            for j in (1, 3, 4):
                if fq:
                    extra[j].append(fq.pop(0))
        if i == SFP:
            extra[0].append(("vm", f"buffer_load_dwordx4 {vr(vFL, 4)}, v{vFA + 1}, {SWS}, 0 offen sc1", ("sfp",)))
        if i == SFP + 6:
            c4 = check4(vFL)
            extra[0] += [("wvm", ("sfp",))] + c4[0:2]
            extra[1] += c4[2:4]
            extra[2] += c4[4:6]
            def sfchk():
                sl = g.newlab("Lslow")
                bk = g.newlab("Lback")
                e(c4[6])
                e(f"s_cbranch_vccnz {sl}")
                g.lab(bk)
                g.slow.append((sl, bk, [(vFA + 1, True)]))
            extra[3].append(sfchk)
        if i == SFP + 7:
            extra[0] += [f"s_mov_b32 m0, {sHS1}"]
            extra[1] += [("vm", f"buffer_load_dwordx4 v8, {SWS}, {sSTO} offen sc1 lds", ("stl",)), f"s_add_u32 m0, {sHS1}, 1024"]
            extra[2] += [f"s_add_u32 {sT3}, {sSTO}, {32 * 4096}"]
            extra[3] += [("vm", f"buffer_load_dwordx4 v8, {SWS}, {sT3} offen sc1 lds", ("stl",)), f"s_add_u32 m0, {sHS1}, 2048"]
            extra[4] += [f"s_add_u32 {sT3}, {sSTO}, {64 * 4096}", f"v_mov_b32 v7, {OOB}", "v_cmp_lt_u32 vcc, 31, v0"]
        if i == SFP + 8:
            extra[0] += ["v_cndmask_b32 v8, v8, v7, vcc"]
            extra[1] += [("vm", f"buffer_load_dwordx4 v8, {SWS}, {sT3} offen sc1 lds", ("stl",))]
        if 30 <= i and xq and st != 1:
            for j in (1, 2, 3):
                for _ in range(1):
                    if xq:
                        it = xq.pop(0)
                        if it is not None:
                            extra[j].append(it)
        if i == BAR:
            assert not xq
            g.wlg0()
            e("s_barrier")
        if i >= BAR:
            for j in range(5):
                for _ in range(0 if i in (SFP + 6, SFP + 7) else 1):
                    if eq:
                        extra[j].append(eq.pop(0))
        for j in range(5):
            phi = st * 5 + j
            src = ar(4 * phi, 4) if phi < 64 else vr(vWDV + 4 * (phi - 64), 4)
            Cs = "0" if st == 0 else vr(A0 + 4 * j, 4)
            e(f"v_mfma_f32_16x16x32_bf16 {vr(A0 + 4 * j, 4)}, {src}, {vr(r, 4)}, {Cs}")
            for it in extra[j]:
                g.do(it)
        if i + NB < 56:
            lateq.append(hload(i + NB))
    assert not lateq and not fq
    stamp("c_g2e", cyc=True)
    stamp("g2_loop_end")
    for it in eq:
        g.do(it)
    A0 = AC[1]
    E_ = 200
    e(f"s_mov_b32 {sT3}, {sT2}")
    g.wvm(("stl",))
    for j in range(5):
        g.lds(f"ds_read_b64_tr_b16 {vr(SR + 2 * j, 2)}, v3 offset:{512 * j}", "s")
    g.nop(2)
    align()
    for p in range(10):
        e(f"v_pk_add_f32 {vr(A0 + 2 * p, 2)}, {vr(A0 + 2 * p, 2)}, {vr(P0 + 2 * p, 2)}")
    for p in range(10):
        e(f"v_pk_mul_f32 {vr(E_ + 2 * p, 2)}, {vr(A0 + 2 * p, 2)}, s[56:57]")
    for p in range(20):
        e(f"v_exp_f32 v{E_ + p}, v{E_ + p}")
    g.wlg("s")
    for p in range(10):
        e(f"v_lshlrev_b32 v{SU + 2 * p}, 16, v{SR + p}")
        e(f"v_and_b32 v{SU + 2 * p + 1}, {sMASK}, v{SR + p}")
    align()
    for p in range(10):
        e(f"v_pk_mul_f32 {vr(A0 + 2 * p, 2)}, {vr(A0 + 2 * p, 2)}, {vr(SU + 2 * p, 2)}")
    for p in range(10):
        e(f"v_pk_add_f32 {vr(E_ + 2 * p, 2)}, {vr(E_ + 2 * p, 2)}, 1.0 op_sel_hi:[1,0]")
    for p in range(20):
        e(f"v_rcp_f32 v{E_ + p}, v{E_ + p}")
    e("s_nop 0\ns_nop 0")
    for p in range(10):
        e(f"v_pk_fma_f32 {vr(A0 + 2 * p, 2)}, {vr(A0 + 2 * p, 2)}, {vr(E_ + 2 * p, 2)}, {vr(XU + 2 * p, 2)}")
    for p in range(10):
        e(f"v_cvt_pk_bf16_f32 v{160 + p}, v{A0 + 2 * p}, v{A0 + 2 * p + 1}")
        if p % 2 == 1:
            g.lds(f"ds_write_b64 v4, {vr(160 + p - 1, 2)} offset:{16 * (p - 1)}", "ow")
    g.wlg0()
    for kk in range(3):
        g.lds(f"ds_read_b128 {vr(128 + 4 * kk, 4)}, v5 offset:{1024 * kk}", ("or", kk))
    osc = opt.get("outsc", "")
    for kk in range(3):
        g.wlg(("or", kk))
        g.vmem(f"buffer_store_dwordx4 {vr(128 + 4 * kk, 4)}, v{(12, 13, 15)[kk]}, {SOUT}, {sXO} offen{osc}", "out")
    if diag:
        g.wvm0()
        stamp("end", flush=True)
        if opt.get("dbg"):
            e("s_load_dwordx2 s[88:89], s[100:101], 96")
            e("v_readlane_b32 s92, v127, 60")
            e("s_mov_b32 s90, 64\ns_mov_b32 s91, 0x20000")
            e("v_writelane_b32 v127, s92, 1")
            e("s_not_b32 s92, s92")
            e("v_writelane_b32 v127, s92, 0")
            e("v_lshlrev_b32 v2, 2, v0")
            e("s_waitcnt lgkmcnt(0)")
            e("buffer_atomic_umax v127, v2, s[88:91], 0 offen")
            e("s_endpgm")
        e(f"s_mov_b32 s88, s16\ns_mov_b32 s89, s17\ns_mov_b32 s90, 0x1000000\ns_mov_b32 s91, 0x20000")
        e(f"s_lshl_b32 {sT1}, s2, 2\ns_add_u32 {sT1}, {sT1}, {sW}\ns_lshl_b32 {sT1}, {sT1}, 8\ns_add_u32 {sT1}, {sT1}, {TS_BASE}")
        e("v_lshlrev_b32 v2, 2, v0")
        e(f"buffer_store_dword v127, v2, s[88:91], {sT1} offen")
    g.lab("L_end")
    e("s_endpgm")
    e(".p2align 6")
    g.lab("L_spare")
    g.vm = vm0
    g.lg = []
    g.pst = []
    g.sfree = [92] if opt.get('dbg') else [92, 100]
    if diag:
        e("v_mov_b32 v127, 0")
        e("v_writelane_b32 v127, s92, 60")
    e("v_lshrrev_b32 v4, 3, v0")
    e("v_and_b32 v5, 7, v0")
    e("s_add_u32 s68, s88, L_spare - L_pc + 256")
    e("s_addc_u32 s69, s89, 0")
    e("s_mov_b32 s70, 0x2000\ns_mov_b32 s71, 0x20000")
    e("v_and_b32 v10, 15, v0")
    e(f"s_lshl_b32 {sT1}, {sW}, 11")
    e("v_lshlrev_b32 v10, 7, v10")
    g.vmem(f"buffer_load_dword v{vFL + 4}, v10, s[68:71], {sT1} offen", "cpf")
    rest_setup()
    rest_loads()
    for r3 in range(3):
        run_items(param_units(r3))
    table_code(TB)
    aE, aL2 = addr_items(XYB_SP, TB)
    run_items(aE + aL2 + gather_items(TB))
    g.wvm("ln")
    stamp("ln_data")
    ln_code()
    ln_tail()
    stamp("ln_done", flush=True)
    e(f"s_lshl_b32 {sMASK}, s2, 2")
    e(f"s_add_u32 {sMASK}, {sMASK}, {LNF}")
    e(f"s_cmp_eq_u32 {sW}, 0")
    e(f"s_cselect_b32 {sMASK}, {sMASK}, {OOB}")
    e(f"v_add_u32 v{vFA}, {LNF}, v1")
    e("v_min_u32 v2, 53, v0")
    e(f"s_lshr_b32 {sF0}, {sDT}, 1")
    e(f"s_lshl_b32 {sF0}, {sF0}, 10")
    e(f"s_add_u32 {sF0}, {sF0}, {WF}")
    e(f"v_lshl_add_u32 v{vFA + 1}, v2, 4, {sF0}")
    e(f"s_mov_b32 {sK1}, {sRND}")
    rb1()
    g.wvm("par")
    tag_code()
    g.lab("L_kgen")
    g.vm = []
    kgen("s", [], 1)
    g.wall()
    e("s_barrier")
    flag_store(sMASK)
    e(f"s_mov_b32 {sMASK}, {OOB}")
    kgen_mfma()
    e(f"s_sub_u32 {sK1}, {sK1}, 1")
    e(f"s_cmp_eq_u32 {sK1}, 0")
    e("s_cbranch_scc1 L_kdone")
    e(f"s_add_u32 {sKR}, {sKR}, {2 * TC}")
    for i in range(8):
        e(f"v_add_u32 v{SC + i}, {2 * TC}, v{SC + i}")
    for i in range(6):
        e(f"v_accvgpr_mov_b32 a{APAR + i}, a{APAR + 8 + i}")
        e(f"v_accvgpr_mov_b32 a{APAR + 8 + i}, a{APAR + 16 + i}")
    e("s_waitcnt lgkmcnt(0)")
    e("s_barrier")
    e("s_branch L_kgen")
    g.lab("L_kdone")
    stamp("kdone", flush=True)
    e(f"s_cmp_lg_u32 {sW}, 0")
    e("s_cbranch_scc1 L_sp_polled")
    poll_block(vFA, True, sleep=16)
    g.lab("L_sp_polled")
    e("s_waitcnt lgkmcnt(0)")
    e("s_barrier")
    stamp("sp_lnf", flush=True)
    run_items(u_loads(sCP, 2))
    rb2()
    conv(False)
    e(f"s_cmp_eq_u32 {sK0}, 0")
    e("s_cbranch_scc1 L_conv_last")
    poll_block(vFA + 1, True, sleep=24)
    for phi in range(P1):
        for it in wd_load(phi):
            e(it[1] if isinstance(it, tuple) else it)
    e("s_branch L_conv_last")
    for (sl, bk, lst) in g.slow:
        g.lab(sl)
        g.sfree = [98]
        g.pst = []
        if diag:
            e("s_waitcnt lgkmcnt(0)")
        for pi, (av, n4) in enumerate(lst):
            stamp(f"slow{sl[-2:]}_{pi}", flush=True)
            poll_block(av, n4, sleep=opt.get("ssleep", 20))
        stamp(f"slow{sl[-2:]}_x", flush=True)
        e(f"s_branch {bk}")
    g.lab("L_codeend")

    hdr = [f"; @launch grid=(256,1,1) block=(256,1,1) lds={LDS_TOTAL}",
           '.amdgcn_target "amdgcn-amd-amdhsa--gfx950"', ".text", f".globl {KNAME}", ".p2align 8",
           f".type {KNAME},@function", f"{KNAME}:"]
    ftr = ['.section .rodata,"a"', ".p2align 6", f".amdhsa_kernel {KNAME}",
           "  .amdhsa_next_free_vgpr 512", "  .amdhsa_next_free_sgpr 102", "  .amdhsa_accum_offset 256",
           "  .amdhsa_group_segment_fixed_size 0", "  .amdhsa_kernarg_size 112", "  .amdhsa_user_sgpr_count 2",
           "  .amdhsa_user_sgpr_kernarg_segment_ptr 1", "  .amdhsa_system_sgpr_workgroup_id_x 1",
           "  .amdhsa_float_denorm_mode_32 3",
           ".end_amdhsa_kernel"]
    txt = "\n".join(hdr + g.L + ftr) + "\n"
    if diag:
        txt = txt + "; STAMPS " + ",".join(ts_names) + "\n"
    return txt


if __name__ == "__main__":
    diag = "--diag" in sys.argv
    opt = {}
    for a in sys.argv[1:]:
        if a.startswith("--") and "=" in a:
            k, v = a[2:].split("=")
            opt[k] = int(v) if v.lstrip("-").isdigit() else v.replace("_", " ")
    out = [a for a in sys.argv[1:] if not a.startswith("--")]
    s = gen(diag=diag, opt=opt)
    path = out[0] if out else "recurrent_scan__ssm_conv_s4d__geglu_ffn__prompt.s"
    open(path, "w").write(s)
    print("wrote", path, len(s), "bytes", s.count("\n"), "lines")
```

```python
import sys, struct, math

KNAME = "recurrent_scan__ssm_conv_s4d__geglu_ffn__prompt_kernel"

EPOCH = 0x0
LNF = 0x1000
WF = 0x4400
STATS = 0x8000
XNT = 0x10000
ST = 0x290000
WDP = 0x510000
HB = 0x730000
CSP = 0xDF0000
HF = 0xE26000
SF = 0xE46000
WS_END = 0xE50000
TS_BASE = 0xE60000

SLOT = 49152
MISC = 147456
LNP = 1344
CSB = MISC + 10752 + 5120
XYP = 544
YR0 = 21
XYC = 53 * XYP
XYB_SP, XYB_G1 = 0, 2 * SLOT
LNB = 2 * SLOT
TB_G1 = 157696
PB = 0
UBASE = 69632
UC = 4608
RB = UBASE + 2 * UC
RCS = 4160
RC = 4 * RCS
TC = 2624
TB = MISC
YSO = 650 * 4
SOB = 16384
EXB = 24576
XTB = 112128
STB = XTB + 12288
LDS_TOTAL = 163840
OOB = 0x7fff0000

def f2u(x):
    return struct.unpack("<I", struct.pack("<f", x))[0]

LOG2E = 1.4426950408889634
C0 = -2.0 * math.sqrt(2.0 / math.pi) * LOG2E
C1 = C0 * 0.044715


class G:
    def __init__(self):
        self.L = []
        self.vm = []
        self.lg = []
        self.nlab = 0
        self.slow = []
        self.skip = set()
        self.pst = []
        self.sfree = [92, 100]

    def flush_stamps(self):
        for (sr, lane) in self.pst:
            self.e(f"v_writelane_b32 v127, s{sr}, {lane}")
            self.sfree.append(sr)
        self.pst = []

    def e(self, s):
        for ln in s.split("\n"):
            self.L.append("    " + ln)

    def lab(self, name):
        self.L.append(name + ":")

    def newlab(self, p="L"):
        self.nlab += 1
        return f"{p}_{self.nlab}"

    def vmem(self, s, tag=None):
        if tag in self.skip:
            return
        self.e(s)
        self.vm.append(tag)

    def lds(self, s, tag=None):
        self.e(s)
        self.lg.append(tag)

    def _n(self, q, tag):
        idx = max(i for i, t in enumerate(q) if t == tag)
        return idx, sum(1 for t in q[idx + 1:] if t != "OPT")

    def wvm(self, tag):
        if tag not in self.vm:
            return
        idx, n = self._n(self.vm, tag)
        self.e(f"s_waitcnt vmcnt({min(n, 63)})")
        self.vm = self.vm[idx + 1:]

    def wlg(self, tag):
        if tag not in self.lg:
            return
        idx, n = self._n(self.lg, tag)
        self.e(f"s_waitcnt lgkmcnt({min(n, 15)})")
        self.lg = self.lg[idx + 1:]

    def wvm0(self):
        self.e("s_waitcnt vmcnt(0)")
        self.vm = []

    def wlg0(self):
        self.e("s_waitcnt lgkmcnt(0)")
        self.lg = []
        self.flush_stamps()

    def wall(self):
        self.e("s_waitcnt vmcnt(0) lgkmcnt(0)")
        self.vm = []
        self.lg = []
        self.flush_stamps()

    def nop(self, n):
        while n > 0:
            k = min(n, 16)
            self.e(f"s_nop {k - 1}")
            n -= k

    def do(self, item):
        if callable(item):
            item()
        elif isinstance(item, tuple):
            kind = item[0]
            if kind == "vm":
                self.vmem(item[1], item[2])
            elif kind == "lds":
                self.lds(item[1], item[2])
            elif kind == "wvm":
                self.wvm(item[1])
            elif kind == "wlg":
                self.wlg(item[1])
            else:
                raise ValueError(kind)
        else:
            self.e(item)


def vr(a, n):
    return f"v[{a}:{a + n - 1}]"


def ar(a, n):
    return f"a[{a}:{a + n - 1}]"


SX, SWG, SWU, SWS, SOUT, SWD = "s[4:7]", "s[8:11]", "s[12:15]", "s[16:19]", "s[20:23]", "s[24:27]"
P_LAR, P_AIM, P_CRE, P_CIM, P_LDT, P_DSK = "s[28:29]", "s[30:31]", "s[32:33]", "s[34:35]", "s[36:37]", "s[38:39]"
sW, sTAG, sM, sFT, sISG1, sCP, sRND, sSP = "s40", "s41", "s42", "s43", "s44", "s45", "s46", "s47"
sXCD, sQ = "s48", "s49"
sXM0, sWM0, sXS, sWSO = "s50", "s51", "s52", "s53"
sT0, sT1, sT2, sT3, sT4, sT5 = "s54", "s55", "s56", "s57", "s58", "s59"
sMASK, sCNT = "s60", "s61"
sRHO, sC = "s62", "s63"
sHS0, sHS1 = "s64", "s65"
sG2 = 66
STW = "s[96:99]"
sF0, sF1, sF2 = "s0", "s1", "s3"
sLT, sDT = "s82", "s83"
sWDS = "s84"
sPEND, sXO = "s85", "s86"
sKR = "s87"
sXT, sSTO = "s94", "s95"
sK0, sK1 = "s96", "s97"

vT = 2
vXO = 16
vWO = 24
vBA = 26
vAA = 34
vCS = 42
vHO = 44
vTO = 46
vSTA = 48
vU = 56
vAF = 64
vBF = 96
vPAR = 112
vFA = 118
vEP = 120
vFL = 122
vACC = 128
SC = 224
GA = 24
AST = 224
AS2 = 192
PKB = MISC
vWDV = 232


def gen(diag=False, opt=None):
    opt = opt or {}
    TOUCH = opt.get("touch", 0)
    P1 = opt.get("p1", 32)
    KCHK = opt.get("kchk", 29)
    NT = " nt" if opt.get("nt", 1) else ""
    g = G()
    e = g.e
    if opt.get('nolnst'):
        g.skip.add('lnst')
    ts_names = []
    vTAG, vL0 = vEP, vEP + 1

    def stamp(name, cyc=False, flush=False):
        if not diag:
            return
        if opt.get("dbg"):
            sel = ["x0", "x1", "par_data", "kdone", "g1_start", "g1_loop_end", "g1_epi_end", "conv_startL", "conv_endL", "g2_start", "g2_loop_end", "end", "sp_lnf", "conv_startE"]
            if name not in sel:
                return
            ts_names[:] = sel
        if name not in ts_names:
            ts_names.append(name)
        i = ts_names.index(name)
        if not g.sfree:
            g.wlg0()
        sr = g.sfree.pop(0)
        e(f"{'s_memtime' if cyc else 's_memrealtime'} s[{sr}:{sr + 1}]")
        g.pst.append((sr, i))
        if flush:
            g.wlg0()

    def interleave(fn, units, every):
        n0 = len(g.L)
        fn()
        body = g.L[n0:]
        del g.L[n0:]
        cnt = 0
        for bi, ln in enumerate(body):
            g.L.append(ln)
            cnt += 1
            nxt_ = body[bi + 1].strip() if bi + 1 < len(body) else ""
            if nxt_.startswith(("s_cselect", "s_addc", "s_cbranch")):
                continue
            if units and cnt >= every:
                u = units[0]
                if isinstance(u, tuple) and u[0] == "m0":
                    e(u[1])
                    units.pop(0)
                    cnt = every - 1
                else:
                    g.do(u)
                    units.pop(0)
                    cnt = 0 if isinstance(u, tuple) else every - 1

    def align():
        e(".p2align 3")

    def red(op, v, t, full):
        for dpp in ("quad_perm:[1,0,3,2]", "quad_perm:[2,3,0,1]", "row_half_mirror", "row_mirror"):
            g.nop(2)
            e(f"{op} v{v}, v{v}, v{v} {dpp}")
        e(f"v_mov_b32 v{t}, v{v}")
        g.nop(2)
        e(f"v_permlane16_swap_b32 v{v}, v{t}")
        g.nop(1)
        e(f"{op} v{v}, v{v}, v{t}")
        if full:
            e(f"v_mov_b32 v{t}, v{v}")
            g.nop(2)
            e(f"v_permlane32_swap_b32 v{v}, v{t}")
            g.nop(1)
            e(f"{op} v{v}, v{v}, v{t}")

    def bf16round(v):
        e(f"v_cvt_pk_bf16_f32 v{v}, v{v}, v{v}")
        e(f"v_lshlrev_b32 v{v}, 16, v{v}")

    def check4(tmp):
        return [f"v_xor_b32 v{tmp}, v{vTAG}, v{tmp}", f"v_xor_b32 v{tmp + 1}, v{vTAG}, v{tmp + 1}",
                f"v_xor_b32 v{tmp + 2}, v{vTAG}, v{tmp + 2}", f"v_xor_b32 v{tmp + 3}, v{vTAG}, v{tmp + 3}",
                f"v_or3_b32 v{tmp}, v{tmp}, v{tmp + 1}, v{tmp + 2}", f"v_or_b32 v{tmp}, v{tmp}, v{tmp + 3}",
                f"v_cmp_ne_u32 vcc, 0, v{tmp}"]

    def poll_block(addr_v, n4, sleep=opt.get('sleep', 8)):
        lp = g.newlab("Lpoll")
        dn = g.newlab("Lpd")
        tmp = vFL
        e(f"s_mov_b32 {sCNT}, 0x4000")
        g.lab(lp)
        if n4:
            e(f"buffer_load_dwordx4 {vr(tmp, 4)}, v{addr_v}, {SWS}, 0 offen sc1")
            e("s_waitcnt vmcnt(0)")
            for x in check4(tmp):
                e(x)
        else:
            e(f"buffer_load_dword v{tmp}, v{addr_v}, {SWS}, 0 offen sc1")
            e("s_waitcnt vmcnt(0)")
            e(f"v_cmp_ne_u32 vcc, v{vTAG}, v{tmp}")
        e(f"s_cbranch_vccz {dn}")
        e(f"s_sleep {sleep}")
        e(f"s_sub_u32 {sCNT}, {sCNT}, 1")
        e(f"s_cbranch_scc0 {lp}")
        g.lab(dn)

    def flag_store(soff):
        e(f"buffer_store_dword v{vTAG}, v{vL0}, {SWS}, {soff} offen sc1")

    def wd_load(phi):
        dst = ar(4 * phi, 4) if phi < 64 else vr(vWDV + 4 * (phi - 64), 4)
        pre = []
        if phi >= 65:
            if phi == 65 or phi == 68:
                pre.append(f"s_add_u32 {sT5}, {sWDS}, {(phi // 4) * 4096}")
                pre.append(f"s_cmp_lt_u32 {sW}, 2\ns_cselect_b32 {sT5}, {sT5}, {OOB}")
        elif phi % 4 == 0:
            pre.append(f"s_add_u32 {sT5}, {sWDS}, {(phi // 4) * 4096}")
        return pre + [("vm", f"buffer_load_dwordx4 {dst}, v1, {SWS}, {sT5} offen offset:{(phi % 4) * 1024} sc1", ("wd", phi))]

    def u_loads(cpreg, va):
        return [f"v_accvgpr_read_b32 v{va}, a{AS2 + 23}",
                f"s_mul_i32 {sF0}, {sW}, {64 * 10240}",
                f"s_lshl_b32 {sF1}, {cpreg}, 5",
                f"s_add_u32 {sF0}, {sF0}, {sF1}",
                f"s_add_u32 {sF0}, {sF0}, {XNT}",
                f"s_add_u32 {sF1}, {sF0}, {32 * 10240}",
                ("vm", f"buffer_load_dwordx4 {vr(vU, 4)}, v{va}, {SWS}, {sF0} offen sc1", "u"),
                ("vm", f"buffer_load_dwordx4 {vr(vU + 4, 4)}, v{va}, {SWS}, {sF1} offen sc1", "u")]

    def table_code(TB):
        def put(i, src):
            e(f"v_lshl_add_u32 v{src}, v{src}, 2, {sF2}")
            e(f"v_accvgpr_write_b32 a{AST + i}, v{src}")
        e(f"s_mul_i32 {sF2}, {sC}, {TC}")
        e(f"s_add_u32 {sF2}, {sF2}, {TB + 4}")
        e("v_lshrrev_b32 v4, 4, v0")
        e(f"s_lshl_b32 {sF1}, {sRHO}, 2")
        e(f"v_add_u32 v4, {sF1}, v4")
        e("v_and_b32 v5, 15, v0")
        DUM = 645
        e("v_cmp_eq_u32 s[54:55], 2, v4")
        e("v_cmp_eq_u32 s[56:57], 3, v4")
        e("v_cmp_eq_u32 s[58:59], 4, v4")
        e("v_cmp_lt_u32 vcc, 4, v4")
        e("v_mov_b32 v6, 8")
        e("v_cndmask_b32 v6, v6, 4, s[54:55]")
        e("v_cndmask_b32 v6, v6, 2, s[56:57]")
        e("v_cndmask_b32 v6, v6, 1, s[58:59]")
        e("v_cndmask_b32 v6, v6, 0, vcc")
        e("v_mul_u32_u24 v7, v6, v5")
        e("v_lshlrev_b32 v8, 4, v6")
        for i in range(4):
            e(f"v_lshl_add_u32 v9, v4, 2, {i}")
            for sreg, val in (("s[54:55]", 256 + i), ("s[56:57]", 384 + 64 * (i >> 1) + (i & 1)), ("s[58:59]", 512 + 32 * i), ("vcc", DUM)):
                e(f"v_mov_b32 v10, {val}")
                e(f"v_cndmask_b32 v9, v9, v10, {sreg}")
            e("v_add_u32 v9, v9, v7")
            e("v_add_u32 v11, v9, v8")
            if i == 0:
                e("v_lshl_add_u32 v6, v4, 4, v5")
                e("v_mov_b32 v10, 80")
                e("v_cmp_eq_u32 s[60:61], v10, v6")
                e("v_mov_b32 v10, 640")
                e("s_nop 0")
                e("v_cndmask_b32 v9, v9, v10, s[60:61]")
            put(i, 9)
            put(4 + i, 11)

    def gather_items(TB):
        it = [f"s_mul_i32 {sF2}, {sC}, {TC}", f"s_add_u32 {sF2}, {sF2}, {TB + 4}",
              f"s_lshl_b32 {sF1}, {sRHO}, 10", f"s_sub_u32 {sF1}, 2047, {sF1}", "v_lshlrev_b32 v12, 3, v0",
              f"v_sub_u32 v12, {sF1}, v12", f"s_movk_i32 {sF1}, 128"]
        for ch in range(2):
            for k in range(11):
                it += [f"v_subrev_u32 v2, {512 * ch + k}, v12", "v_max_i32 v3, 0, v2", "v_cvt_f32_u32 v3, v3",
                       f"v_med3_i32 v2, v2, -1, {sF1}", "v_cvt_pk_bf16_f32 v3, v3, 0", "v_subrev_u32 v3, 0x4280, v3",
                       "v_max_i32 v2, v2, v3", f"v_lshl_add_u32 v2, v2, 2, {sF2}",
                       f"v_accvgpr_write_b32 a{AST + 8 + 11 * ch + k}, v2"]
        return it

    def addr_items(XYB, TB):
        it = []
        A = it.append
        def st(i, r):
            A(f"v_accvgpr_write_b32 a{AS2 + i}, v{r}")
        A(f"s_mul_i32 {sF0}, {sC}, {XYC}")
        A(f"s_add_u32 {sF0}, {sF0}, {XYB}")
        A(f"v_lshl_add_u32 v2, v0, 3, {sF0}")
        st(0, 2)
        A("v_and_b32 v12, 15, v0")
        A("v_lshrrev_b32 v13, 4, v0")
        A(f"v_mul_u32_u24 v2, {XYP}, v12")
        A("v_lshl_add_u32 v2, v13, 4, v2")
        A(f"v_add_u32 v3, {sF0}, v2")
        st(2, 3)
        A(f"s_mul_i32 {sF1}, {sRHO}, {16 * XYP}")
        A(f"v_add_u32 v3, {sF1}, v3")
        st(1, 3)
        A(f"s_mul_i32 {sF2}, {sC}, {TC}")
        A(f"s_add_u32 {sF2}, {sF2}, {TB}")
        A(f"v_mov_b32 v2, {sF2}")
        st(6, 2)
        A("EARLY_END")
        A("v_and_b32 v12, 15, v0")
        A("v_lshrrev_b32 v13, 4, v0")
        A(f"s_mul_i32 {sF0}, {sC}, {UC}")
        A(f"s_lshl_b32 {sF1}, {sRHO}, 8")
        A(f"s_add_u32 {sF2}, {sF0}, {sF1}")
        A(f"s_add_u32 {sF2}, {sF2}, {UBASE}")
        A(f"v_add_u32 v2, {sF2}, v1")
        A(f"s_sub_u32 {sF2}, {sF0}, {sF1}")
        A(f"s_add_u32 {sF2}, {sF2}, {UBASE + 32 + 256}")
        A("v_lshlrev_b32 v14, 5, v12")
        A("v_lshl_add_u32 v3, v13, 4, v14")
        A(f"v_add_u32 v3, {sF2}, v3")
        st(8, 3)
        A("v_lshl_add_u32 v14, v13, 3, v14")
        A(f"s_lshl_b32 {sF2}, {sRHO}, 11")
        A(f"s_add_u32 {sF2}, {sF2}, {sF0}")
        A(f"s_add_u32 {sF2}, {sF2}, {UBASE + 512}")
        A(f"v_add_u32 v3, {sF2}, v14")
        st(11, 3)
        A(f"s_lshl_b32 {sF2}, {sW}, 11")
        A(f"s_add_u32 {sF2}, {sF2}, {SOB}")
        A(f"v_add_u32 v3, {sF2}, v14")
        st(12, 3)
        A(f"v_add_u32 v3, {sF2}, v1")
        st(13, 3)
        A(f"s_mul_i32 {sF0}, {sC}, {RC}")
        A(f"s_mul_i32 {sF2}, {sRHO}, {2 * RCS}")
        A(f"s_add_u32 {sF2}, {sF2}, {sF0}")
        A(f"s_add_u32 {sF2}, {sF2}, {RB + 4096}")
        A("v_bfe_u32 v3, v0, 1, 1")
        A(f"v_mul_u32_u24 v3, {RCS}, v3")
        A("v_and_b32 v15, 1, v0")
        A("v_lshl_add_u32 v3, v15, 4, v3")
        A(f"v_add_u32 v3, {sF2}, v3")
        A("v_cmp_lt_u32 vcc, 15, v0\ns_nop 1\nv_cndmask_b32 v2, v2, v3, vcc")
        st(3, 2)
        A(f"s_lshl_b32 {sF2}, {sRHO}, 11")
        A(f"s_add_u32 {sF2}, {sF2}, {sF0}")
        A(f"s_add_u32 {sF2}, {sF2}, {RB}")
        A(f"v_add_u32 v2, {sF2}, v1")
        st(4, 2)
        A("v_sub_u32 v2, 3, v12")
        A("v_and_b32 v2, 3, v2")
        A(f"v_mul_u32_u24 v2, {RCS}, v2")
        A("v_lshl_add_u32 v2, v13, 4, v2")
        A("v_and_b32 v3, 12, v12")
        A("v_lshlrev_b32 v3, 1, v3")
        A("v_sub_u32 v2, v2, v3")
        A(f"s_sub_u32 {sF2}, {sF0}, {sF1}")
        A(f"s_add_u32 {sF2}, {sF2}, {RB + 24 + 256}")
        A(f"v_add_u32 v2, {sF2}, v2")
        st(7, 2)
        A(f"v_mul_u32_u24 v2, {UC}, v15")
        A("v_lshrrev_b32 v3, 1, v0")
        A("v_lshl_add_u32 v2, v3, 4, v2")
        A(f"s_lshl_b32 {sF2}, {sW}, 10")
        A(f"s_add_u32 {sF2}, {sF2}, {UBASE + 512}")
        A(f"v_add_u32 v2, {sF2}, v2")
        st(5, 2)
        A("v_mul_u32_u24 v3, 10240, v3")
        A("v_lshl_add_u32 v3, v15, 4, v3")
        st(23, 3)
        A(f"s_lshl_b32 {sF2}, {sW}, 12")
        A(f"v_add_u32 v2, {sF2}, v1")
        st(9, 2)
        A("v_xor_b32 v2, 0x1000, v2")
        st(10, 2)
        A(f"s_mul_i32 {sF0}, {sW}, 14")
        A(f"s_cmp_eq_u32 {sW}, 3\ns_cselect_b32 {sF1}, 1, 0")
        A(f"s_sub_u32 {sF0}, {sF0}, {sF1}")
        A(f"s_mul_i32 {sF1}, {sDT}, 54")
        A(f"s_add_u32 {sF1}, {sF0}, {sF1}")
        A(f"s_mul_i32 {sF1}, {sF1}, 5120")
        A(f"s_add_u32 {sWDS}, {sF1}, {WDP}")
        for k in range(4):
            A(f"s_add_u32 {sF1}, {sW}, {k + 1}")
            A(f"s_and_b32 {sF1}, {sF1}, 3")
            if k < 3:
                A(f"s_mul_i32 {sF2}, {sF1}, 15360")
                A(f"s_add_u32 {sF2}, {sF2}, {EXB + 5120 * k}")
                A(f"v_add_u32 v2, {sF2}, v1")
                st(14 + k, 2)
            A(f"s_lshl_b32 {sF2}, {sLT}, 2")
            A(f"s_add_u32 {sF1}, {sF1}, {sF2}")
            A(f"s_mul_i32 {sF1}, {sF1}, 54")
            A(f"s_add_u32 {sF1}, {sF1}, {sF0}")
            A(f"s_lshl_b32 {sF1}, {sF1}, 10")
            A(f"s_add_u32 s{sG2 + 4 * k}, {sF1}, {HB}")
            for q in range(1, 4):
                A(f"s_add_u32 s{sG2 + 4 * k + q}, s{sG2 + 4 * k}, {4096 * q}")
        A(f"s_mov_b32 {sF0}, {0x100000000 // 10 + 1}")
        for kk in range(3):
            A(f"v_add_u32 v2, {64 * kk}, v0")
            A(f"v_mul_hi_u32 v3, v2, {sF0}")
            A("v_mul_u32_u24 v12, 10, v3")
            A("v_sub_u32 v12, v2, v12")
            A("v_mul_u32_u24 v3, 1280, v3")
            A("v_lshl_add_u32 v2, v12, 4, v3")
            st(17 + kk, 2)
        A(f"v_mov_b32 v3, {OOB}")
        A("v_cmp_lt_u32 vcc, 31, v0\ns_nop 1\nv_cndmask_b32 v2, v2, v3, vcc")
        st(20, 2)
        A(f"s_lshl_b32 {sXO}, {sLT}, 2")
        A(f"s_add_u32 {sXO}, {sXO}, {sW}")
        A(f"s_mul_i32 {sXO}, {sXO}, {16 * 1280}")
        A(f"s_mul_i32 {sF0}, {sDT}, 160")
        A(f"s_add_u32 {sXO}, {sXO}, {sF0}")
        A(f"s_mul_i32 {sXT}, {sW}, 3072")
        A(f"s_add_u32 {sXT}, {sXT}, {XTB}")
        A(f"s_mul_i32 {sSTO}, {sDT}, 80")
        A(f"s_lshl_b32 {sSTO}, {sSTO}, 12")
        A(f"s_lshl_b32 {sF0}, {sLT}, 2")
        A(f"s_add_u32 {sF0}, {sF0}, {sW}")
        A(f"s_lshl_b32 {sF0}, {sF0}, 5")
        A(f"s_add_u32 {sSTO}, {sSTO}, {sF0}")
        A(f"s_add_u32 {sSTO}, {sSTO}, {ST}")
        A(f"s_lshl_b32 {sF0}, {sLT}, 12")
        A(f"s_add_u32 {sF0}, {sF0}, {HF}")
        A("v_min_u32 v2, 26, v0")
        A(f"v_lshl_add_u32 v2, v2, 7, {sF0}")
        st(21, 2)
        A(f"s_mul_i32 {sF0}, {sDT}, {40 * 128}")
        A(f"s_add_u32 {sF0}, {sF0}, {SF}")
        A("v_min_u32 v2, 39, v0")
        A(f"v_lshl_add_u32 v2, v2, 7, {sF0}")
        st(22, 2)
        k_ = it.index("EARLY_END")
        return it[:k_], it[k_ + 1:]

    e("s_cmp_ge_u32 s2, 256")
    e("s_cbranch_scc1 L_end")
    if diag:
        e("s_memrealtime s[92:93]")
    if opt.get("dbg"):
        e("s_mov_b64 s[100:101], s[0:1]")
        g.sfree = [92]
    e("s_getpc_b64 s[88:89]")
    g.lab("L_pc")
    e("s_load_dwordx2 s[4:5], s[0:1], 0")
    e("s_load_dwordx2 s[16:17], s[0:1], 104")
    e("s_load_dwordx2 s[8:9], s[0:1], 64")
    e("s_load_dwordx2 s[12:13], s[0:1], 72")
    e("s_load_dwordx4 s[28:31], s[0:1], 8")
    e("s_load_dwordx4 s[32:35], s[0:1], 24")
    e("s_load_dwordx4 s[36:39], s[0:1], 40")
    e("s_load_dwordx4 s[64:67], s[0:1], 80")
    NSP = opt.get("nsp", 0)
    for i in range(NSP):
        e(f"s_load_dword s{66 + i}, s[88:89], {256 + 128 * i}")
    e("v_lshrrev_b32 v2, 6, v0")
    e("v_and_b32 v3, 15, v0")
    e("s_mov_b32 s90, L_codeend - L_pc")
    e("s_mov_b32 s91, 0x20000")
    e("v_lshl_add_u32 v3, v2, 4, v3")
    e(f"v_readfirstlane_b32 {sW}, v2")
    e("v_lshlrev_b32 v3, 7, v3")
    if opt.get("cpf0", 1):
        e(f"buffer_load_dword v{vFL + 3}, v3, s[88:91], 0 offen offset:{min(256 + 128 * NSP, 4000)}")
        g.vm.append("cpf")
    e("v_and_b32 v0, 63, v0")
    e("s_mov_b32 s6, 2621440\ns_mov_b32 s7, s91")
    e("v_lshrrev_b32 v2, 5, v0")
    e("v_and_b32 v3, 31, v0")
    e("v_mul_u32_u24 v2, 0x500, v2")
    e(f"s_lshl2_add_u32 {sT0}, s2, {sW}")
    e("v_lshl_add_u32 v2, v3, 3, v2")
    e(f"s_mulk_i32 {sT0}, 2560")
    e(f"s_lshr_b32 {sQ}, s2, 3")
    e(f"s_bfe_u32 {sT1}, s2, 0x20001")
    e(f"s_and_b32 {sM}, s2, 1")
    e(f"s_and_b32 {sT2}, {sQ}, 3")
    e(f"s_lshr_b32 {sDT}, {sQ}, 2")
    e(f"s_lshl2_add_u32 {sM}, {sM}, {sT2}")
    e(f"s_mul_i32 {sFT}, {sT1}, 7")
    e(f"s_add_u32 {sFT}, {sFT}, {sDT}")
    e(f"s_mul_i32 {sCP}, {sM}, 27")
    e(f"s_add_u32 {sCP}, {sCP}, {sFT}")
    e(f"s_lshr_b32 {sC}, {sW}, 1")
    e(f"s_lshl1_add_u32 {sT1}, {sCP}, {sC}")
    e(f"s_lshl_b32 {sT1}, {sT1}, 8")
    e(f"v_lshl_add_u32 v12, v0, 2, {sT1}")
    e(f"s_lshl_b32 {sT1}, {sCP}, 2")
    e(f"v_mov_b32 v13, {sT1}")
    e(f"s_cmp_lt_u32 {sDT}, 7")
    e(f"s_cselect_b32 {sT3}, {sFT}, 27")
    e(f"s_cmp_lt_u32 {sT3}, 27")
    e(f"s_cselect_b32 {sISG1}, 1, 0")
    e("s_waitcnt lgkmcnt(0)")
    for i in range(opt.get("ns2", 0)):
        e(f"s_load_dword s93, s[88:89], {opt.get('ns2o', 384) + 128 * i}")
    LX = 232
    for q in range(5):
        g.vmem(f"buffer_load_dwordx2 {vr(LX + 2 * q, 2)}, v2, {SX}, {sT0} offen offset:{256 * q}", "ln")
    e("s_cbranch_scc0 L_spare")
    if diag:
        e("v_mov_b32 v127, 0")
        e("v_writelane_b32 v127, s92, 60")
    stamp("start")
    APAR = 160
    for k, p in enumerate((P_LAR, P_AIM, P_CRE, P_CIM)):
        g.vmem(f"global_load_dword a{APAR + k}, v12, {p}{NT}", "par")
    g.vmem(f"global_load_dword a{APAR + 4}, v13, {P_LDT}", "par")
    g.vmem(f"global_load_dword a{APAR + 5}, v13, {P_DSK}", "par")
    if diag and not opt.get("dbg") and False:
        e("s_memrealtime s[100:101]\ns_waitcnt lgkmcnt(0)\nv_writelane_b32 v127, s100, 56")
    e("v_lshrrev_b32 v4, 3, v0")
    e("v_and_b32 v5, 7, v0")
    e("v_lshrrev_b32 v6, 4, v0")
    e("v_mul_u32_u24 v7, 3456, v4")
    e("v_and_b32 v8, 1, v6")
    e("v_lshlrev_b32 v8, 2, v8")
    e("v_xor_b32 v8, v5, v8")
    e(f"v_lshl_add_u32 v{vWO}, v8, 4, v7")
    e(f"s_lshl_b32 {sWM0}, {sW}, 11")
    e(f"s_mul_i32 {sWSO}, {sW}, {16 * 3456}")
    e(f"s_lshl_b32 {sT1}, {sFT}, 7")
    e(f"s_add_u32 {sWSO}, {sWSO}, {sT1}")
    e(f"v_add_u32 v{vWO + 1}, {8 * 3456 - 1024}, v{vWO}")
    e("s_mov_b32 s10, 2211840\ns_mov_b32 s11, 0x20000")
    e("s_mov_b32 s14, s10\ns_mov_b32 s15, 0x20000")

    def rest_setup():
        e(f"s_and_b32 {sXCD}, s2, 7")
        e("s_mov_b64 s[24:25], s[64:65]")
        e("s_mov_b64 s[20:21], s[66:67]")
        e("v_lshlrev_b32 v1, 4, v0")
        e(f"s_mov_b32 s18, {WS_END}\ns_mov_b32 s19, 0x20000")
        e(f"v_mov_b32 v{vL0}, {OOB}")
        e(f"v_writelane_b32 v{vL0}, 0, 0")
        e("s_mov_b32 s22, 2621440\ns_mov_b32 s23, 0x20000")
        e("s_mov_b32 s26, 2211840\ns_mov_b32 s27, 0x20000")
        e(f"s_lshl_b32 {sT4}, {sXCD}, 2")
        e(f"s_and_b32 {sT2}, {sQ}, 3")
        e(f"s_add_u32 {sLT}, {sT4}, {sT2}")
        e(f"s_add_u32 {sT4}, {sT4}, {sQ}")
        e(f"s_sub_u32 {sT4}, {sT4}, 28")
        e(f"s_lshl_b32 {sT5}, {sXCD}, 3")
        e(f"s_add_u32 {sT5}, {sT5}, {sQ}")
        e(f"s_sub_u32 {sT5}, {sT5}, 48")
        e(f"s_cmp_lt_u32 {sXCD}, 6\ns_cselect_b32 {sSP}, {sT4}, {sT5}")
        e(f"s_mul_i32 {sT4}, {sM}, 27")
        e(f"s_add_u32 {sT4}, {sT4}, {sFT}")
        e(f"s_add_u32 {sT5}, {sSP}, 216")
        e(f"s_cmp_lg_u32 {sISG1}, 0\ns_cselect_b32 {sCP}, {sT4}, {sT5}")
        e(f"s_cmp_lt_u32 {sSP}, 24\ns_cselect_b32 {sRND}, 3, 2")
        e(f"s_and_b32 {sRHO}, {sW}, 1")
        e(f"s_lshr_b32 {sC}, {sW}, 1")
        e("v_lshlrev_b32 v10, 21, v0")
        e(f"v_mov_b32 v{vFA}, v1")
        e(f"v_mov_b32 v{vFA + 1}, v1")
        e(f"v_mul_u32_u24 v54, {3456 if opt.get('csc', 1) else 17280}, v4")
        e("v_lshl_add_u32 v54, v5, 4, v54")
        e(f"s_lshl_b32 {sHS0}, {sM}, 1")
        e(f"s_add_u32 {sHS0}, {sHS0}, {sRHO}")
        e(f"s_mul_i32 {sHS0}, {sHS0}, {40 * 3456}")
        e(f"s_lshl_b32 {sT1}, {sFT}, 7")
        e(f"s_add_u32 {sHS0}, {sHS0}, {sT1}")
        e("s_mov_b32 s98, 2211840\ns_mov_b32 s99, 0x20000")
        e(f"s_cmp_eq_u32 {sC}, 0\ns_cselect_b32 s96, s8, s12\ns_cselect_b32 s97, s9, s13")
        e(f"s_lshl_b32 {sT1}, {sQ}, 2")
        e(f"s_add_u32 {sT1}, {sT1}, {sW}")
        e(f"s_mul_i32 {sT1}, {sT1}, 384")
        e(f"s_add_u32 {sT1}, {sT1}, {8192 + min(256 + 128 * NSP, 4000)}")
        e("v_min_u32 v11, 2, v0")
        e("v_lshlrev_b32 v11, 7, v11")

    def rest_loads():
        g.vmem(f"buffer_load_dword v{vTAG}, v{vL0}, {SWS}, 0 offen sc1", "ep")
        g.vmem(f"buffer_load_dword v{vFL + 2}, v11, s[88:91], {sT1} offen", "tlb")
        if opt.get("tlb", 0):
            g.vmem(f"buffer_load_dword v{vFL}, v10, {SWS}, 0 offen", "tlb")
            g.vmem(f"buffer_load_dword v{vFL + 1}, v10, {SOUT}, 0 offen", "tlb")

    def dma_units(stage):
        sb = (stage % 3) * SLOT
        out = []
        for mat in range(2):
            out.append(("m0", f"s_add_u32 m0, {sWM0}, {sb + mat * 8192}"))
            for half in range(2):
                o = f" offset:{1024 * half}" if half else ""
                out.append(("vm", f"buffer_load_dwordx4 v{vWO + half}, {SWG if mat == 0 else SWU}, {sWSO} offen{o} lds", ("dma", stage)))
        for i in range(8):
            if i % 4 == 0:
                out.append(("m0", f"s_add_u32 m0, {sXM0}, {sb + i * 1024}"))
            o = f" offset:{1024 * (i & 3)}" if i & 3 else ""
            out.append(("vm", f"buffer_load_dwordx4 v{vXO + i}, {SX}, {sXS} offen{o} lds", ("dma", stage)))
        out.append(f"s_add_u32 {sXS}, {sXS}, 128")
        out.append(f"s_add_u32 {sWSO}, {sWSO}, {64 * 3456}")
        return out

    def dma_block(stage):
        for u in dma_units(stage):
            if isinstance(u, tuple) and u[0] == "m0":
                e(u[1])
                e("s_nop 0")
            else:
                g.do(u)

    APAR = 160
    def param_units(rnd):
        out = [f"s_add_u32 {sT2}, {sCP}, {40 * rnd}", f"s_min_u32 {sT2}, {sT2}, 319",
               f"s_lshl_b32 {sT1}, {sT2}, 1", f"s_add_u32 {sT1}, {sT1}, {sC}", f"s_lshl_b32 {sT1}, {sT1}, 8",
               f"v_lshl_add_u32 v12, v0, 2, {sT1}", f"s_lshl_b32 {sT1}, {sT2}, 2", f"v_mov_b32 v13, {sT1}"]
        for k, p in enumerate((P_LAR, P_AIM, P_CRE, P_CIM)):
            out.append(("vm", f"global_load_dword a{APAR + 8 * rnd + k}, v12, {p}{NT}", "par"))
        out.append(("vm", f"global_load_dword a{APAR + 8 * rnd + 4}, v13, {P_LDT}", "par"))
        out.append(("vm", f"global_load_dword a{APAR + 8 * rnd + 5}, v13, {P_DSK}", "par"))
        return out

    CSR = [56, 60, 112, 116, 52]
    def csl_units():
        out = []
        for j5 in range(5):
            if opt.get("csc", 1):
                if j5:
                    out.append(f"s_add_u32 {sHS0}, {sHS0}, {8 * 3456}")
                out.append(("vm", f"buffer_load_dwordx4 {vr(CSR[j5], 4)}, v54, {STW}, {sHS0} offen", ("csl", j5)))
                continue
            if j5 in (2, 4):
                out.append(f"s_add_u32 {sHS0}, {sHS0}, {2 * 3456}")
            out.append(("vm", f"buffer_load_dwordx4 {vr(CSR[j5], 4)}, v54, {STW}, {sHS0} offen offset:{(j5 % 2) * 3456}", ("csl", j5)))
        return out
    def emit_units(us):
        for u in us:
            if isinstance(u, tuple) and u[0] == "m0":
                e(u[1])
                e("s_nop 0")
            else:
                g.do(u)

    def split_units(us, n):
        c = 0
        for ix, u in enumerate(us):
            if isinstance(u, tuple) and u[0] == "vm":
                c += 1
                if c == n:
                    return us[:ix + 1], us[ix + 1:]
        return us, []

    def run_items(items):
        for it in items:
            g.do(it)

    F, S, Dv, SO, UO = 140, 160, 164, 184, 188
    def ln_code(bar=False):
        for q in range(10):
            e(f"v_lshlrev_b32 v{F + 2 * q}, 16, v{LX + q}")
            e(f"v_and_b32 v{F + 2 * q + 1}, 0xffff0000, v{LX + q}")
        e(f"v_pk_add_f32 {vr(S, 2)}, {vr(F, 2)}, {vr(F + 2, 2)}")
        e(f"v_pk_add_f32 {vr(S + 2, 2)}, {vr(F + 4, 2)}, {vr(F + 6, 2)}")
        for q in range(4, 10, 2):
            e(f"v_pk_add_f32 {vr(S, 2)}, {vr(S, 2)}, {vr(F + 2 * q, 2)}")
            e(f"v_pk_add_f32 {vr(S + 2, 2)}, {vr(S + 2, 2)}, {vr(F + 2 * q + 2, 2)}")
        e(f"v_pk_add_f32 {vr(S, 2)}, {vr(S, 2)}, {vr(S + 2, 2)}")
        e(f"v_add_f32 v{S}, v{S}, v{S + 1}")
        red("v_add_f32", S, S + 1, False)
        e(f"v_mul_f32 v{S}, {hex(f2u(1.0 / 640))}, v{S}")
        for q in range(10):
            e(f"v_pk_add_f32 {vr(Dv + 2 * q, 2)}, {vr(F + 2 * q, 2)}, {vr(S, 2)} op_sel_hi:[1,0] neg_lo:[0,1] neg_hi:[0,1]")
        e(f"v_pk_mul_f32 {vr(S + 2, 2)}, {vr(Dv, 2)}, {vr(Dv, 2)}")
        e(f"v_pk_mul_f32 {vr(S + 24, 2)}, {vr(Dv + 2, 2)}, {vr(Dv + 2, 2)}")
        for q in range(2, 10):
            r = S + 2 if q % 2 == 0 else S + 24
            e(f"v_pk_fma_f32 {vr(r, 2)}, {vr(Dv + 2 * q, 2)}, {vr(Dv + 2 * q, 2)}, {vr(r, 2)}")
        e(f"v_pk_add_f32 {vr(S + 2, 2)}, {vr(S + 2, 2)}, {vr(S + 24, 2)}")
        e(f"v_add_f32 v{S + 2}, v{S + 2}, v{S + 3}")
        red("v_add_f32", S + 2, S + 3, False)
        e(f"v_mul_f32 v{S + 2}, {hex(f2u(1.0 / 640))}, v{S + 2}")
        bf16round(S + 2)
        e(f"v_add_f32 v{S + 2}, {hex(f2u(1e-5))}, v{S + 2}")
        bf16round(S + 2)
        e(f"v_sqrt_f32 v{S + 2}, v{S + 2}")
        bf16round(S)
        bf16round(S + 2)
        e(f"v_rcp_f32 v{S + 3}, v{S + 2}")
        e(f"v_sub_f32 v{SO}, 0, v{S}")
        e(f"v_mul_f32 v{SO + 3}, v{S + 2}, v{S + 2}")
        e(f"v_mul_f32 v{S + 1}, v{S + 3}, v{S + 3}")
        e(f"v_mul_f32 v{SO + 2}, {hex(f2u(C0))}, v{S + 3}")
        e(f"v_mul_f32 v{S + 1}, v{S + 1}, v{S + 3}")
        e(f"v_mul_f32 v{S + 2}, v{SO}, v{S + 3}")
        e(f"v_mul_f32 v{SO + 1}, {hex(f2u(C1))}, v{S + 1}")
        for q in range(10):
            e(f"v_pk_fma_f32 {vr(Dv + 2 * q, 2)}, {vr(F + 2 * q, 2)}, {vr(S + 2, 2)}, {vr(S + 2, 2)} op_sel:[0,1,0] op_sel_hi:[1,1,0]")
        for q in range(10):
            e(f"v_cvt_pk_f16_f32 v{UO + q}, v{Dv + 2 * q}, v{Dv + 2 * q + 1}")
        e("v_lshrrev_b32 v2, 5, v0")
        e(f"v_mul_u32_u24 v2, {LNP}, v2")
        e("v_and_b32 v3, 31, v0")
        e("v_lshl_add_u32 v2, v3, 3, v2")
        e(f"s_mul_i32 {sT1}, {sW}, {2 * LNP}")
        e(f"s_add_u32 {sT1}, {sT1}, {LNB}")
        e(f"v_add_u32 v2, {sT1}, v2")
        if bar:
            e("s_barrier")
        for q in range(5):
            g.lds(f"ds_write_b64 v2, {vr(UO + 2 * q, 2)} offset:{256 * q}", "lnw")
        e("v_lshrrev_b32 v4, 1, v0")
        e(f"v_mov_b32 v5, {OOB}")
        e("v_cmp_ne_u32 vcc, 0, v3")
        e(f"s_lshl_b32 {sT1}, s2, 2")
        e(f"s_add_u32 {sT1}, {sT1}, {sW}")
        e("v_cndmask_b32 v4, v4, v5, vcc")
        e(f"s_lshl_b32 {sT1}, {sT1}, 5")
        e(f"s_add_u32 {sT1}, {sT1}, {STATS}")
        e("v_bfe_u32 v6, v0, 2, 2")
        e(f"v_mul_u32_u24 v2, {LNP}, v6")
        e("v_lshrrev_b32 v3, 4, v0")
        e("v_lshl_add_u32 v2, v3, 5, v2")
        e("v_and_b32 v7, 3, v0")
        e("v_lshl_add_u32 v2, v7, 3, v2")
        e(f"s_lshl_b32 {sT2}, {sW}, 7")
        e(f"s_add_u32 {sT2}, {sT2}, {LNB}")
        e(f"v_add_u32 v2, {sT2}, v2")

    def ln_tail():
        g.vmem(f"buffer_store_dwordx4 {vr(SO, 4)}, v4, {SWS}, {sT1} offen sc1", "lnst")
        g.wlg0()
        e("s_barrier")
        TR = 200
        for j in range(3):
            for h in range(2):
                g.lds(f"ds_read_b64_tr_b16 {vr(TR + 4 * j + 2 * h, 2)}, v2 offset:{512 * j + 4 * LNP * h}", ("lntr", j))
        e(f"s_mul_i32 {sT1}, s2, 10240")
        e(f"s_lshl_b32 {sT2}, {sW}, 10")
        e(f"s_add_u32 {sT1}, {sT1}, {sT2}")
        e(f"s_add_u32 {sT1}, {sT1}, {XNT}")
        e(f"s_add_u32 {sT2}, {sT1}, 4096")
        e(f"s_add_u32 {sT3}, {sT1}, 8192")
        e(f"s_cmp_lt_u32 {sW}, 2")
        e(f"s_cselect_b32 {sT3}, {sT3}, {OOB}")
        for j, so in enumerate((sT1, sT2, sT3)):
            g.wlg(("lntr", j))
            g.vmem(f"buffer_store_dwordx4 {vr(TR + 4 * j, 4)}, v1, {SWS}, {so} offen sc1", "lnst")

    AK = 46
    vKA_A, vKA_B, vZ, vRW, vUW, vYS, vFB, vGB = range(AK, AK + 8)
    KA, CC, TM = 128, 152, 136
    WA = KA + 6
    SIG, OMG = KA + 2, KA + 4

    def cexp(dst, p, t):
        for m in range(2):
            e(f"v_mul_f32 v{t + m}, {hex(f2u(float(p)))}, v{SIG + m}")
            e(f"v_mul_f32 v{t + 2 + m}, {hex(f2u(float(p)))}, v{OMG + m}")
        for m in range(2):
            e(f"v_fract_f32 v{t + 2 + m}, v{t + 2 + m}")
        for m in range(2):
            e(f"v_exp_f32 v{t + m}, v{t + m}")
            e(f"v_cos_f32 v{dst + 2 * m}, v{t + 2 + m}")
            e(f"v_sin_f32 v{dst + 2 * m + 1}, v{t + 2 + m}")
        e("s_nop 0")
        align()
        for m in range(2):
            e(f"v_pk_mul_f32 {vr(dst + 2 * m, 2)}, {vr(dst + 2 * m, 2)}, {vr(t, 2)} op_sel:[0,{m}] op_sel_hi:[1,{m}]")

    def cmul(dst, P, Q, t):
        for m in range(2):
            e(f"v_pk_mul_f32 {vr(t + 2 * m, 2)}, {vr(P + 2 * m, 2)}, {vr(Q + 2 * m, 2)} op_sel_hi:[0,1]")
        for m in range(2):
            e(f"v_pk_fma_f32 {vr(dst + 2 * m, 2)}, {vr(P + 2 * m, 2)}, {vr(Q + 2 * m, 2)}, {vr(t + 2 * m, 2)} op_sel:[1,1,0] op_sel_hi:[1,0,1] neg_lo:[0,1,0]")

    prow = [0]

    def put(src, row, neg, lastrow=False):
        o = 144 + 2 * (row % 4)
        ng = "-" if neg else ""
        if src is not None:
            e(f"v_cvt_pk_f16_f32 v{o}, v{src}, {ng}v{src + 1}")
            e(f"v_cvt_pk_f16_f32 v{o + 1}, v{src + 2}, {ng}v{src + 3}")
        if row % 2 == 1:
            o0 = ((row - 1) % 4) * 68
            g.lds(f"ds_write2_b64 v{WA}, {vr(o - 2, 2)}, {vr(o, 2)} offset0:{o0} offset1:{o0 + 68}", "xy")
            if row % 4 == 3:
                e(f"v_add_u32 v{WA}, {4 * XYP}, v{WA}")
        elif lastrow:
            g.lds(f"ds_write_b64 v{WA}, {vr(o, 2)} offset:{(row % 4) * XYP}", "xy")


    def rb1():
        e(f"s_mov_b32 {sKR}, 0")
        for i in range(8):
            e(f"v_accvgpr_read_b32 v{SC + i}, a{AST + i}")
        for i in (0, 1, 5):
            e(f"v_accvgpr_read_b32 v{AK + i}, a{AS2 + 1 + i}")

    def tag_code():
        e(f"v_readfirstlane_b32 {sTAG}, v{vTAG}")
        e("s_nop 3")
        e(f"s_mul_i32 {sTAG}, {sTAG}, 1664525")
        e(f"s_add_u32 {sTAG}, {sTAG}, 1013904223")
        e(f"v_mov_b32 v{vTAG}, {sTAG}")

    def k_setup():
        for k6 in (4, 5, 0, 1, 2, 3):
            e(f"v_accvgpr_read_b32 v{vPAR + k6}, a{APAR + k6}")
        e(f"v_accvgpr_read_b32 v{WA}, a{AS2}")
        e(f"s_lshl_b32 {sT1}, {sC}, 4")
        e(f"v_lshrrev_b32 v{KA}, {sT1}, v{vPAR + 4}")
        e(f"v_lshlrev_b32 v{KA}, 16, v{KA}")
        e(f"v_mul_f32 v{KA}, {hex(f2u(LOG2E))}, v{KA}")
        e(f"v_exp_f32 v{KA}, v{KA}")
        e(f"v_lshrrev_b32 v{KA + 7}, {sT1}, v{vPAR + 5}")
        e(f"v_lshlrev_b32 v{KA + 7}, 16, v{KA + 7}")
        bf16round(KA)
        e(f"v_lshlrev_b32 v{KA + 2}, 16, v{vPAR}")
        e(f"v_and_b32 v{KA + 3}, 0xffff0000, v{vPAR}")
        e(f"v_mul_f32 v{KA + 2}, {hex(f2u(LOG2E))}, v{KA + 2}")
        e(f"v_mul_f32 v{KA + 3}, {hex(f2u(LOG2E))}, v{KA + 3}")
        e(f"v_exp_f32 v{KA + 2}, v{KA + 2}")
        e(f"v_exp_f32 v{KA + 3}, v{KA + 3}")
        e(f"v_lshlrev_b32 v{KA + 4}, 16, v{vPAR + 1}")
        e(f"v_and_b32 v{KA + 5}, 0xffff0000, v{vPAR + 1}")
        e(f"v_cvt_pk_bf16_f32 v{KA + 1}, v{KA + 2}, v{KA + 3}")
        e(f"v_lshlrev_b32 v{CC}, 16, v{vPAR + 2}")
        e(f"v_lshlrev_b32 v{CC + 1}, 16, v{vPAR + 3}")
        e(f"v_and_b32 v{CC + 2}, 0xffff0000, v{vPAR + 2}")
        e(f"v_and_b32 v{CC + 3}, 0xffff0000, v{vPAR + 3}")
        e(f"v_lshlrev_b32 v{KA + 2}, 16, v{KA + 1}")
        e(f"v_and_b32 v{KA + 3}, 0xffff0000, v{KA + 1}")
        for m in range(2):
            e(f"v_mul_f32 v{KA + 2 + m}, v{KA + 2 + m}, v{KA}")
            e(f"v_mul_f32 v{KA + 4 + m}, v{KA + 4 + m}, v{KA}")
        for m in range(2):
            e(f"v_mul_f32 v{KA + 2 + m}, {hex(f2u(-LOG2E))}, v{KA + 2 + m}")
            e(f"v_mul_f32 v{KA + 4 + m}, {hex(f2u(1.0 / (2 * math.pi)))}, v{KA + 4 + m}")

    def k_role0():
        W8, W16, T2 = 152, 156, 140
        ch = [[160, 164], [168, 172]]
        e(f"v_add_u32 v{WA}, {YR0 * XYP}, v{WA}")
        cexp(W8, 8, TM)
        e("v_mov_b32 v144, 0x3c00")
        e("v_mov_b32 v145, 0x3c00")
        cmul(W16, W8, W8, TM)
        put(W8, 33, False)
        cur = [W16, W8]
        for j in range(2, 32, 2):
            n0 = cur[0] if j == 2 else ch[0][(j // 2) & 1]
            n1 = ch[1][(j // 2) & 1]
            for m in range(2):
                if j > 2:
                    e(f"v_pk_mul_f32 {vr(TM + 2 * m, 2)}, {vr(cur[0] + 2 * m, 2)}, {vr(W16 + 2 * m, 2)} op_sel_hi:[0,1]")
                e(f"v_pk_mul_f32 {vr(T2 + 2 * m, 2)}, {vr(cur[1] + 2 * m, 2)}, {vr(W16 + 2 * m, 2)} op_sel_hi:[0,1]")
            for m in range(2):
                if j > 2:
                    e(f"v_pk_fma_f32 {vr(n0 + 2 * m, 2)}, {vr(cur[0] + 2 * m, 2)}, {vr(W16 + 2 * m, 2)}, {vr(TM + 2 * m, 2)} op_sel:[1,1,0] op_sel_hi:[1,0,1] neg_lo:[0,1,0]")
                e(f"v_pk_fma_f32 {vr(n1 + 2 * m, 2)}, {vr(cur[1] + 2 * m, 2)}, {vr(W16 + 2 * m, 2)}, {vr(T2 + 2 * m, 2)} op_sel:[1,1,0] op_sel_hi:[1,0,1] neg_lo:[0,1,0]")
            put(n0, 32 + j, False)
            put(n1, 33 + j, False)
            cur = [n0, n1]

    def k_role1():
        MX = 136
        e(f"v_max_f32 v{MX}, |v{CC}|, |v{CC + 1}|")
        e(f"v_max3_f32 v{MX}, |v{CC + 2}|, |v{CC + 3}|, v{MX}")
        red("v_max_f32", MX, MX + 1, True)
        e(f"v_frexp_exp_i32_f32 v{MX}, v{MX}")
        e(f"v_add_f32 v{KA}, v{KA}, v{KA}")
        e(f"v_ldexp_f32 v{MX + 2}, v{KA}, v{MX}")
        e(f"v_mov_b32 v{MX + 3}, v{KA + 7}")
        e(f"v_sub_u32 v{MX}, 0, v{MX}")
        for i in range(4):
            e(f"v_ldexp_f32 v{CC + i}, v{CC + i}, v{MX}")
        e(f"v_add_u32 v{MX + 1}, {sKR}, v{vYS}")
        e(f"v_mov_b32 v{MX}, 0")
        g.lds(f"ds_write_b64 v{MX + 1}, {vr(MX + 2, 2)} offset:{YSO}", "xy")
        g.lds(f"ds_write_b32 v{MX + 1}, v{MX}", "xy")
        Z, Q, Q4 = 156, 160, 164
        cexp(Z, 1, TM)
        cexp(Q, 256, TM)
        cexp(Q4, 1024, TM)
        X = [168 + 4 * i for i in range(8)]
        X[0] = CC
        put(CC, 0, True)
        for s in range(1, 8):
            cmul(X[s], X[s - 1], Z, TM)
            put(X[s], s, True)
        R8 = [200 + 4 * i for i in range(4)]
        for s in range(4):
            cmul(R8[s], X[2 * s], Q, TM)
            put(R8[s], 8 + s, True)
        R12 = [216, 220]
        for s in range(2):
            cmul(R12[s], R8[2 * s], Q, TM)
            put(R12[s], 12 + s, True)
        for s in range(2):
            cmul(X[1 + 2 * s], R12[s], Q, TM)
            put(X[1 + 2 * s], 14 + s, True)
        cmul(R8[0], CC, Q4, TM)
        put(R8[0], 16, True)
        cmul(R8[1], R8[0], Q, TM)
        put(R8[1], 17, True)
        cmul(R8[3], R8[1], Q, TM)
        put(R8[3], 18, True)
        cmul(R8[1], R8[3], Q, TM)
        put(R8[1], 19, True)
        cmul(R8[2], R8[0], Q4, TM)
        put(R8[2], 20, True, lastrow=True)

    def kgen(sfx, units, every):
        k_setup()
        e(f"s_cmp_lg_u32 {sRHO}, 0")
        e(f"s_cbranch_scc1 L_role1{sfx}")
        vm_s, lg_s = list(g.vm), list(g.lg)
        us = list(units)
        interleave(k_role0, us, every)
        emit_units(us)
        e(f"s_branch L_kbar{sfx}")
        align()
        g.lab(f"L_role1{sfx}")
        g.vm, g.lg = vm_s, lg_s
        us = list(units)
        interleave(k_role1, us, every)
        emit_units(us)
        g.lab(f"L_kbar{sfx}")
        stamp("kvalu_end")

    def kgen_mfma():
        KF = 64
        for ks in range(8):
            g.lds(f"ds_read_b128 {vr(KF + 4 * ks, 4)}, v{vKA_A} offset:{64 * ks}", ("ka", ks))
            g.lds(f"ds_read_b128 {vr(128 + 4 * ks, 4)}, v{vKA_B} offset:{YR0 * XYP + 64 * ks}", ("kb0", ks))
            g.lds(f"ds_read_b128 {vr(160 + 4 * ks, 4)}, v{vKA_B} offset:{(YR0 + 16) * XYP + 64 * ks}", ("kb1", ks))
        KD = 96
        for ks in range(8):
            g.wlg(("kb1", ks))
            e(f"v_mfma_f32_16x16x32_f16 {vr(KD, 4)}, {vr(KF + 4 * ks, 4)}, {vr(128 + 4 * ks, 4)}, {'0' if ks == 0 else vr(KD, 4)}")
            e(f"v_mfma_f32_16x16x32_f16 {vr(KD + 4, 4)}, {vr(KF + 4 * ks, 4)}, {vr(160 + 4 * ks, 4)}, {'0' if ks == 0 else vr(KD + 4, 4)}")
        g.nop(7)
        for i in range(8):
            g.lds(f"ds_write_b32 v{SC + i}, v{KD + i}", "tw")

    vm0 = ["cpf"] + ["ln"] * 5
    u0, u0b = split_units(dma_units(0), opt.get("nf", 4))
    def g1_early():
        e("v_mul_u32_u24 v7, 1280, v4")
        e("v_xor_b32 v8, v5, v6")
        e("v_xor_b32 v9, 4, v8")
        e(f"v_lshl_add_u32 v{vXO}, v8, 4, v7")
        e(f"v_lshl_add_u32 v{vXO + 1}, v9, 4, v7")
        e(f"v_add_u32 v{vXO + 1}, {8 * 1280 - 1024}, v{vXO + 1}")
        e(f"s_lshl2_add_u32 {sXS}, {sM}, {sW}")
        e(f"s_mul_i32 {sXS}, {sXS}, {64 * 1280}")
        e(f"s_lshl_b32 {sXM0}, {sW}, 13")
        e(f"s_add_u32 {sXM0}, {sXM0}, 16384")
        for i in range(2, 8):
            d = 16 * 1280 - 1024 * ((i & 3) - ((i - 2) & 3))
            e(f"v_add_u32 v{vXO + i}, {d}, v{vXO + i - 2}")
        rest_setup()
    interleave(g1_early, u0, opt.get("pe0", 1))
    assert not u0
    e(f"s_mov_b32 {sRND}, 1")
    if not opt.get("rl2", 1):
        rest_loads()
    else:
        e(f"s_mov_b32 {sHS1}, {sT1}")
        e("v_mov_b32 v14, v10\nv_mov_b32 v15, v11")
    if diag and not opt.get("dbg"):
        e("s_memrealtime s[100:101]\ns_waitcnt lgkmcnt(0)\nv_writelane_b32 v127, s100, 57")
    aE, aL = addr_items(XYB_G1, TB_G1)
    table_code(TB_G1)
    run_items(aE)
    rb1()
    if opt.get("rl2", 1):
        e(f"s_mov_b32 {sT1}, {sHS1}")
        e("v_mov_b32 v10, v14\nv_mov_b32 v11, v15")
        rest_loads()
    if diag and not opt.get("dbg"):
        e("s_memrealtime s[100:101]\ns_waitcnt lgkmcnt(0)\nv_writelane_b32 v127, s100, 58")
    g.sfree += [88, 90]
    g.wvm("ln")
    stamp("par_data")
    u0c, u0d = split_units(u0b, opt.get("nl", 4))
    interleave(ln_code, u0c, opt.get("pe1", 30))
    emit_units(u0c)
    ln_tail()
    stamp("ln_done")
    g.wvm("ep")
    tag_code()
    e(f"s_lshl_b32 {sT3}, s2, 2")
    e(f"s_add_u32 {sT3}, {sT3}, {LNF}")
    e(f"s_cmp_eq_u32 {sW}, 0")
    e(f"s_cselect_b32 {sT3}, {sT3}, {OOB}")
    e("s_barrier")
    uK, uR = split_units((u0d + csl_units() + dma_units(1)) if opt.get('csf') else (u0d + dma_units(1) + csl_units()), opt.get("nk", 99))
    kgen("g", uK, opt.get("pek", 11))
    g.wvm("lnst")
    g.wlg0()
    e("s_barrier")
    flag_store(sT3)
    interleave(kgen_mfma, uR, opt.get("pem", 6))
    emit_units(uR)
    stamp("kdone")
    e("v_and_b32 v2, 31, v0")
    e("v_lshrrev_b32 v3, 5, v0")
    e("v_bfe_u32 v4, v0, 1, 3")
    e("v_xor_b32 v4, v4, v3")
    e(f"v_lshl_add_u32 v2, v2, 7, {sXM0}")
    for ks in range(4):
        e(f"v_xor_b32 v5, {2 * ks}, v4")
        e(f"v_lshl_add_u32 v{vBA + ks}, v5, 4, v2")
        e(f"v_add_u32 v{vBA + 4 + ks}, {2 * SLOT}, v{vBA + ks}")
    e("v_bfe_u32 v6, v0, 2, 2")
    e("v_and_b32 v7, 3, v0")
    e("v_lshl_add_u32 v2, v3, 3, v6")
    e("v_lshlrev_b32 v2, 7, v2")
    e("v_bfe_u32 v4, v0, 4, 1")
    e("v_lshl_add_u32 v2, v4, 5, v2")
    e("v_lshl_add_u32 v2, v7, 3, v2")
    e("v_lshrrev_b32 v3, 1, v6")
    e(f"v_xor_b32 v3, {sRHO}, v3")
    e(f"s_lshl_b32 {sT1}, {sC}, 13")
    e("v_lshl_add_u32 v2, v3, 6, v2")
    e(f"v_add_u32 v{vAA}, {sT1}, v2")
    e(f"v_xor_b32 v{vAA + 1}, 64, v{vAA}")
    e(f"v_xor_b32 v{vAA + 2}, 0x2000, v{vAA}")
    e(f"v_xor_b32 v{vAA + 3}, 0x2000, v{vAA + 1}")
    for i in range(4):
        e(f"v_add_u32 v{vAA + 4 + i}, {2 * SLOT}, v{vAA + i}")

    def touch_setup():
        return [f"s_lshr_b32 {sF0}, {sQ}, 2", f"s_mul_i32 {sF0}, {sF0}, 10", f"v_add_u32 v2, {sF0}, v0",
                "v_min_u32 v2, 63, v2", "v_mul_u32_u24 v2, 1280, v2", f"v_mov_b32 v3, {OOB}",
                f"v_cmp_lt_u32 vcc, 9, v0\ns_nop 1\nv_cndmask_b32 v{vTO}, v2, v3, vcc",
                f"s_and_b32 {sF0}, {sQ}, 3", f"s_lshl_b32 {sF0}, {sF0}, 1", f"s_add_u32 {sF0}, {sF0}, {sRHO}",
                f"s_lshl_b32 {sF0}, {sF0}, 3", f"s_lshl_b32 {sF1}, {sW}, 4", f"s_sub_u32 {sF0}, {sF0}, {sF1}",
                f"s_add_u32 {sF0}, {sF0}, 64", f"v_add_u32 v2, {sF0}, v0", "v_mul_u32_u24 v2, 3456, v2",
                f"v_cmp_lt_u32 vcc, 7, v0\ns_nop 1\nv_cndmask_b32 v{vTO + 1}, v2, v3, vcc",
                ]

    def touch_units(ahead):
        return [f"s_add_u32 {sT4}, {sXS}, {128 * ahead}",
                ("vm", f"buffer_load_dword v{vFL + 4}, v{vTO}, {SX}, {sT4} offen", "touch"),
                f"s_add_u32 {sT4}, {sWSO}, {64 * 3456 * (ahead - 1)}" if ahead >= 1 else f"s_sub_u32 {sT4}, {sWSO}, {64 * 3456}",
                ("vm", f"buffer_load_dword v{vFL + 4}, v{vTO + 1}, {STW}, {sT4} offen", "touch")]

    def frag_reads(k):
        stage, ks = divmod(k, 4)
        sl = stage % 3
        st4 = 4 if sl == 2 else 0
        so = 0 if sl == 2 else sl * SLOT
        A = vAF + 16 * (k & 1)
        B = vBF + 8 * (k & 1)
        def bread(b):
            return ("lds", f"ds_read_b128 {vr(B + 4 * b, 4)}, v{vBA + st4 + ks} offset:{so + 4096 * b}", ("B", k, b))
        def aread(t, h):
            return ("lds", f"ds_read_b64_tr_b16 {vr(A + 4 * t + 2 * h, 2)}, v{vAA + st4 + t} offset:{so + ks * 2048 + h * 512}", ("A", k, t))
        return [bread(0), aread(0, 0), aread(0, 1), bread(1), aread(1, 0), aread(1, 1), aread(2, 0), aread(2, 1), aread(3, 0), aread(3, 1)]

    e(f"s_mov_b32 {sMASK}, 0xffff0000")
    g.wvm(("dma", 0))
    g.wlg0()
    e("s_barrier")
    stamp("g1_start")
    stamp("c_g1s", cyc=True)
    for it in frag_reads(0):
        g.do(it)

    PACE = opt.get("pace", 2)
    NG = 320
    gaps = [[] for _ in range(NG)]
    head = [[] for _ in range(NG)]
    pre = {}
    vq_big = []

    sq = []
    def add_group(units, earliest, small=False, pace=None):
        vq = sq if small else vq_big
        prel = []
        for u in units:
            if isinstance(u, tuple) and u[0] == "m0":
                prel.append(u[1])
            elif isinstance(u, tuple) or callable(u):
                vq.append([earliest, prel, u, [], pace])
                prel = []
            else:
                prel.append(u)
        if prel:
            vq[-1][3] += prel

    def Bgap(s):
        return 32 * s - 8

    PKV = 48
    pk_fill = [f"s_mov_b32 {sF0}, {0x100000000 // 20 + 1}", f"s_lshl_b32 {sF1}, {sW}, 6"]
    for i3 in range(3):
        pk_fill += [f"v_add_u32 v2, {sF1}, v0"] + ([f"v_add_u32 v2, {256 * i3}, v2"] if i3 else []) + [
            f"v_mul_hi_u32 v3, v2, {sF0}", "v_mul_u32_u24 v12, 20, v3", "v_sub_u32 v12, v2, v12",
            "v_mul_u32_u24 v3, 1280, v3", f"v_lshl_add_u32 v{PKV + i3}, v12, 4, v3"]
    pk_fill += [f"s_lshr_b32 {sHS0}, {sCP}, 2", f"s_and_b32 {sHS1}, {sCP}, 3",
                f"s_mul_i32 {sT2}, {sHS0}, 40960", f"s_mul_i32 {sF0}, {sHS1}, 320", f"s_add_u32 {sT2}, {sT2}, {sF0}",
                f"s_lshl_b32 {sT3}, {sW}, 10"]
    pk_fill2 = ["v_lshrrev_b32 v2, 5, v0", "v_bfe_u32 v3, v0, 2, 2", "v_lshl_add_u32 v2, v2, 4, v3", "v_bfe_u32 v3, v0, 4, 1",
                "v_lshl_add_u32 v2, v3, 2, v2", "v_mul_u32_u24 v2, 320, v2", "v_and_b32 v3, 3, v0", "v_lshl_add_u32 v2, v3, 3, v2",
                f"s_lshl_b32 {sF0}, {sW}, 5", f"s_add_u32 {sF0}, {sF0}, {PKB}", f"v_add_u32 v{PKV + 3}, {sF0}, v2"]
    PDR = [56, 60, 8]
    pk_dma = []
    for i3 in range(3):
        pk_dma.append(("m0", f"s_add_u32 m0, {sT3}, {PKB + 4096 * i3}"))
        if i3 == 2:
            pk_dma.append(lambda: e(f"s_cmp_lt_u32 {sW}, 2\ns_cbranch_scc0 L_nopk3\nbuffer_load_dwordx4 v{PKV + 2}, {SWD}, {sT2} offen{NT} lds\nL_nopk3:") or g.vm.append("OPT"))
        else:
            pk_dma.append(("vm", f"buffer_load_dwordx4 v{PKV + i3}, {SWD}, {sT2} offen{NT} lds", "pkd"))
    pk_st = []
    for i3 in range(3):
        pk_st += [f"s_mul_i32 {sT2}, {sHS1}, 10\ns_add_u32 {sT2}, {sT2}, {sW}\ns_add_u32 {sT2}, {sT2}, {4 * i3}",
                  f"s_mul_i32 {sT3}, {sT2}, 13108\ns_lshr_b32 {sT3}, {sT3}, 16\ns_mul_i32 {sT3}, {sT3}, 265\ns_add_u32 {sT2}, {sT2}, {sT3}",
                  f"s_mul_i32 {sT3}, {sHS0}, 5\ns_add_u32 {sT2}, {sT2}, {sT3}\ns_lshl_b32 {sT2}, {sT2}, 10\ns_add_u32 {sT2}, {sT2}, {WDP}"]
        if i3 == 2:
            pk_st.append(f"s_cmp_lt_u32 {sW}, 2\ns_cselect_b32 {sT2}, {sT2}, {OOB}")
        pk_st.append(("vm", f"buffer_store_dwordx4 {vr(PDR[i3], 4)}, v1, {SWS}, {sT2} offen sc1", "pks"))
    lnflag = [f"s_lshl_b32 {sT1}, s2, 2\ns_add_u32 {sT1}, {sT1}, {LNF}\ns_cmp_eq_u32 {sW}, 0\ns_cselect_b32 {sT1}, {sT1}, {OOB}",
              lambda: flag_store(sT1)]
    def wff():
        g.wvm("pks")
        flag_store(sT1)
    wfflag = [f"s_lshl_b32 {sT1}, {sHS1}, 6\ns_add_u32 {sT1}, {sT1}, {sHS0}\ns_lshl_b32 {sT1}, {sT1}, 2\ns_add_u32 {sT1}, {sT1}, {sW}",
              f"s_lshl_b32 {sT1}, {sT1}, 2\ns_add_u32 {sT1}, {sT1}, {WF}", wff]

    add_group(dma_units(2), opt.get("d2", 4))
    add_group(pk_dma, opt.get("dpk", 20))
    for st_ in range(1, 8):
        if st_ == 2:
            add_group(pk_st, Bgap(2) + 6)
        add_group(dma_units(st_ + 2), Bgap(st_) + {1: opt.get("d3", 10), 2: opt.get("d4", 20), 3: opt.get("d5", 20), 4: opt.get("d6", 0)}.get(st_, 0))
    G0 = 8 * KCHK + 4
    for phi in range(P1):
        add_group(wd_load(phi), G0)
    vsched = []
    occ = set()
    def place(q, pace):
        last = -pace
        for (ear, prel, vmi, post, pc) in q:
            gq = max(ear, last + (pc or pace))
            while gq in occ:
                gq += 1
            assert gq < NG - 1, gq
            occ.add(gq)
            gaps[gq - 1] += prel
            head[gq].append(vmi)
            gaps[gq] = post + gaps[gq]
            last = gq
            vsched.append((gq, vmi[2] if isinstance(vmi, tuple) else "flag"))
    place(vq_big, PACE)
    def gap_of(tag):
        return max(gq for gq, t in vsched if t == tag)
    for st_ in range(1, 8):
        ge = gap_of(("dma", st_ + 2)) + 2
        if st_ == 2:
            add_group([f"s_lshl_b32 {sT1}, {sFT}, 1\ns_add_u32 {sT1}, {sT1}, {sC}\ns_lshl_b32 {sT1}, {sT1}, 3\ns_add_u32 {sT1}, {sT1}, {sM}",
                       f"s_lshl_b32 {sT1}, {sT1}, 1\ns_add_u32 {sT1}, {sT1}, {sRHO}\ns_lshl_b32 {sT1}, {sT1}, 8\ns_add_u32 {sT1}, {sT1}, {CSP}",
                       ("vm", f"buffer_store_dwordx2 {vr(4, 2)}, v6, {SWS}, {sT1} offen sc1", "pks")], gap_of("pks") + 1, True)
        if st_ == 3:
            add_group(wfflag, gap_of(("dma", 4)) + 1, True)
        if st_ == 5:
            add_group([("vm", f"buffer_load_dwordx4 {vr(vFL, 4)}, v{vFA}, {SWS}, 0 offen sc1", "poll"),
                       ("vm", f"buffer_load_dwordx4 {vr(PKV, 4)}, v{vFA + 1}, {SWS}, 0 offen sc1", "poll")], 8 * KCHK - 22, True)
        if TOUCH and st_ + TOUCH <= 9:
            if st_ == 1:
                for a in range(0, TOUCH - 3):
                    add_group(touch_units(a), ge, True)
            add_group(touch_units(TOUCH - 3), ge, True)
        if st_ == 6 and opt.get('wtouch'):
            for t3 in range(3):
                add_group([f"s_and_b32 {sT4}, {sLT}, 3\ns_mul_i32 {sT4}, {sT4}, {140 * 128}\ns_add_u32 {sT4}, {sT4}, {sWDS}" if t3 == 0 else f"s_add_u32 {sT4}, {sT4}, {48 * 128}",
                           ("vm", f"buffer_load_dword v{vFL + 4}, v{PKV + 1}, {SWS}, {sT4} offen sc1", "wtouch")], 8 * KCHK + 4 + 4 * t3, True)
    add_group([f"s_lshl_b32 {sT1}, {sFT}, 1\ns_add_u32 {sT1}, {sT1}, {sC}\ns_lshl_b32 {sT1}, {sT1}, 5\ns_add_u32 {sT1}, {sT1}, {sRHO}",
               f"s_lshl_b32 {sT1}, {sT1}, 7\ns_add_u32 {sT1}, {sT1}, {CSP}",
               ("vm", f"buffer_load_dwordx4 {vr(4, 4)}, v{vCS}, {SWS}, {sT1} offen sc1", "csp"),
               ("vm", f"buffer_load_dwordx4 {vr(8, 4)}, v{vCS}, {SWS}, {sT1} offen offset:2048 sc1", "csp")], G0, True)
    add_group([f"s_lshl_b32 {sT1}, {sM}, 2\ns_add_u32 {sT1}, {sT1}, {sW}\ns_lshl_b32 {sT1}, {sT1}, 10\ns_add_u32 {sT1}, {sT1}, {STATS}",
               ("vm", f"buffer_load_dwordx4 {vr(vSTA, 4)}, v15, {SWS}, {sT1} offen sc1", "stats"),
               ("vm", f"buffer_load_dwordx4 {vr(vSTA + 4, 4)}, v15, {SWS}, {sT1} offen offset:512 sc1", "stats")], G0, True)
    add_group(u_loads(sCP, 3), G0, True)
    place(sq, 1)
    vsched.sort()
    if opt.get("v"):
        print(vsched)
    assert all(gap_of(("dma", st_)) < Bgap(st_) - 12 for st_ in range(2, 10))
    assert gap_of("pkd") < Bgap(2) and gap_of("pks") < gap_of(("dma", 4)) - 24 and gap_of("poll") < 8 * KCHK - 6

    for i3 in range(3):
        for h in range(2):
            gaps[Bgap(2) + 1 + i3].append(("lds", f"ds_read_b64_tr_b16 {vr(PDR[i3] + 2 * h, 2)}, v{PKV + 3} offset:{128 * i3 + 8 * 320 * h}", "pk"))
    c4 = check4(vFL)
    gaps[8 * KCHK] += [("wvm", "poll")] + c4[0:2]
    gaps[8 * KCHK + 1] += c4[2:5]
    def chk():
        sl = g.newlab("Lslow")
        bk = g.newlab("Lback")
        for x in check4(PKV)[:6]:
            e(x)
        e(f"v_or3_b32 v{vFL}, v{vFL}, v{vFL + 3}, v{PKV}")
        e(c4[6])
        e(f"s_cbranch_vccnz {sl}")
        g.lab(bk)
        g.slow.append((sl, bk, [(vFA, True), (vFA + 1, True)]))
    gaps[8 * KCHK + 2].insert(0, chk)

    CA = [4, 5, 6, 7, 42, 43, 44, 45]
    csum = []
    for j5 in range(5):
        csum.append(("wvm", ("csl", j5)))
        for d in range(4):
            r = CSR[j5] + d
            if j5 == 0:
                csum += [f"v_lshlrev_b32 v{CA[2 * d]}, 16, v{r}", f"v_and_b32 v{CA[2 * d + 1]}, {sMASK}, v{r}"]
            else:
                csum += [f"v_lshlrev_b32 v8, 16, v{r}", f"v_and_b32 v9, {sMASK}, v{r}",
                         f"v_add_f32 v{CA[2 * d]}, v{CA[2 * d]}, v8", f"v_add_f32 v{CA[2 * d + 1]}, v{CA[2 * d + 1]}, v9"]
    csum += ["s_nop 1"]
    csum += [f"v_permlane32_swap_b32 v{CA[c]}, v{CA[c + 4]}" for c in range(4)]
    csum += [f"v_add_f32 v{CA[c]}, v{CA[c]}, v{CA[c + 4]}" for c in range(4)]
    csum += ["s_nop 1"]
    csum += [f"v_permlane16_swap_b32 v{CA[c]}, v{CA[c + 2]}" for c in range(2)]
    csum += ["s_nop 0"]
    csum += [f"v_add_f32 v{CA[c]}, v{CA[c]}, v{CA[c + 2]}" for c in range(2)]
    csum += ["v_and_b32 v6, 7, v0", "v_lshlrev_b32 v6, 5, v6"]
    csum += [f"v_add_f32 v{CA[c]}, v{CA[c]}, v{CA[c]} row_ror:8" for c in range(2)]
    csum += ["v_lshrrev_b32 v7, 4, v0", "v_lshl_add_u32 v6, v7, 3, v6", f"v_mov_b32 v7, {OOB}",
             "v_and_b32 v8, 8, v0", "v_cmp_ne_u32 vcc, 0, v8\ns_nop 1\nv_cndmask_b32 v6, v6, v7, vcc"]
    fillq = pk_fill + (touch_setup() if TOUCH else []) + pk_fill2[:11]
    n_a = len(fillq)
    fillq += csum
    n_csum = len(fillq)
    n_early = len(pk_fill)
    fillq += pk_fill2[11:]
    n_early2 = len(fillq)
    fillq += [f"v_min_u32 v2, 53, v0", f"s_lshr_b32 {sF0}, {sDT}, 1", f"s_lshl_b32 {sF0}, {sF0}, 10",
              f"s_add_u32 {sF0}, {sF0}, {WF}", f"v_lshl_add_u32 v2, v2, 4, {sF0}",
              "v_and_b32 v3, 7, v0", "v_mul_u32_u24 v3, 27, v3", f"v_add_u32 v3, {sFT}, v3", "v_and_b32 v12, 3, v3",
              "v_lshrrev_b32 v3, 2, v3", "v_lshl_add_u32 v3, v12, 6, v3", "v_lshlrev_b32 v3, 4, v3", f"v_add_u32 v3, {WF}, v3",
              f"v_cmp_lt_u32 vcc, 55, v0\ns_nop 1\nv_cndmask_b32 v{vFA + 1}, v2, v3, vcc"]
    iw = max(i for i, x in enumerate(aL) if sWDS + "," in x)
    i0 = min(i for i, x in enumerate(aL) if f"{sF0}, {sW}, 14" in x)
    iu = max(i for i, x in enumerate(aL) if f"a{AS2 + 23}," in x)
    fillq += [f"v_add_u32 v{vFA}, {LNF}, v1"] + aL[i0:iw + 1] + ["v_lshrrev_b32 v3, 1, v0", "v_and_b32 v2, 1, v0", "v_mul_u32_u24 v3, 10240, v3", "v_lshl_add_u32 v3, v2, 4, v3",
                              f"v_accvgpr_write_b32 a{AS2 + 23}, v3"]
    n_mid = len(fillq)
    late_fill = aL[:i0] + aL[i0:i0 + 3] + aL[iw + 1:] + gather_items(TB_G1)
    late_fill = [x.replace("v12", "v10").replace("v13", "v11").replace("v14", "v46").replace("v15", "v47") for x in late_fill]
    fillq += ["v_bfe_u32 v2, v0, 4, 1", f"v_mul_u32_u24 v2, {54 * 1024}, v2", "v_lshrrev_b32 v3, 5, v0",
              "v_lshl_add_u32 v2, v3, 8, v2", "v_and_b32 v12, 15, v0", "v_lshl_add_u32 v2, v12, 4, v2",
              f"s_lshl_b32 {sF0}, {sRHO}, 10", f"v_add_u32 v{vHO}, {sF0}, v2", f"s_xor_b32 {sF0}, {sF0}, 1024",
              f"v_add_u32 v{vHO + 1}, {sF0}, v2", f"s_lshl_b32 {sF0}, {sRHO}, 7", f"s_add_u32 {sF0}, {sF0}, {CSB}",
              f"v_lshl_add_u32 v13, v3, 4, {sF0}", "v_xor_b32 v14, 128, v13",
              "v_and_b32 v2, 7, v0", "v_lshlrev_b32 v12, 4, v2", "v_lshl_add_u32 v12, v3, 3, v12", "v_bfe_u32 v3, v0, 4, 1",
              "v_lshl_add_u32 v12, v3, 2, v12", f"s_lshl_b32 {sF0}, {sW}, 7", f"s_add_u32 {sF0}, {sF0}, {CSB}",
              f"v_add_u32 v12, {sF0}, v12", "v_lshrrev_b32 v3, 3, v0", "v_lshlrev_b32 v3, 8, v3", f"v_lshl_add_u32 v{vCS}, v2, 4, v3",
              "v_and_b32 v15, 31, v0", "v_lshlrev_b32 v15, 4, v15"]
    tail_fill = [f"s_lshl_b32 {sHS0}, {sM}, 2", f"s_add_u32 {sHS0}, {sHS0}, {sW}", f"s_lshl_b32 {sPEND}, {sHS0}, 5",
                 f"s_mul_i32 {sHS0}, {sHS0}, {4 * 54}", f"s_lshl_b32 {sT2}, {sFT}, 1", f"s_add_u32 {sHS0}, {sHS0}, {sT2}",
                 f"s_lshl_b32 {sHS0}, {sHS0}, 10", f"s_add_u32 {sHS0}, {sHS0}, {HB}", f"s_add_u32 {sHS1}, {sHS0}, {2 * 54 * 1024}",
                 f"s_add_u32 {sPEND}, {sPEND}, {sFT}", f"s_lshl_b32 {sPEND}, {sPEND}, 7", f"s_add_u32 {sPEND}, {sPEND}, {HF}"]
    cs_fill = [("wvm", "csp")] + [f"v_add_f32 v{4 + c}, v{4 + c}, v{8 + c}" for c in range(4)] + ["s_nop 0",
               "v_permlane32_swap_b32 v4, v6", "v_permlane32_swap_b32 v5, v7", "s_nop 0", "v_add_f32 v4, v4, v6", "v_add_f32 v5, v5, v7",
               "s_nop 1", "v_permlane16_swap_b32 v4, v5", "s_nop 0", "v_add_f32 v4, v4, v5", "s_nop 1",
               "v_add_f32 v4, v4, v4 row_ror:8", ("lds", "ds_write_b32 v12, v4", "csw")]
    nf_total = len(fillq)

    def cost(it):
        if isinstance(it, str):
            return it.count("\n") + 1
        return 1
    CAP = opt.get("cap", 4)
    for k in range(40):
        stage, ks = divmod(k, 4)
        A = vAF + 16 * (k & 1)
        B = vBF + 8 * (k & 1)
        gk = [head[8 * k + i] + gaps[8 * k + i] for i in range(8)]
        body = [[] for _ in range(8)]
        if k + 1 < 40:
            for i, it in enumerate(frag_reads(k + 1)):
                body[i // 2].append(it)
        if k == 39:
            for j in range(4):
                body[2 + j // 2].append(("lds", f"ds_read_b128 {vr(64 + 4 * j, 4)}, v13 offset:{32 * j}", "cs0"))
            for j in range(4):
                dst = (4 + 4 * j) if j < 2 else (96 + 4 * (j - 2))
                body[4 + j // 2].append(("lds", f"ds_read_b128 {vr(dst, 4)}, v13 offset:{256 + 32 * j}", "cs0"))
        else:
            load = [sum(map(cost, gk[i])) + len(body[i]) + (1 if i in (3, 7) else 0) for i in range(8)]
            q = fillq if fillq else (tail_fill if (k >= 18 and tail_fill) else late_fill)
            if k == KCHK or (q is late_fill and (k < 10 or 29 <= k <= 34)):
                q = []
            if k == 29:
                assert not late_fill, len(late_fill)
            if k in (33, 34) and cs_fill:
                q = cs_fill
            cap = CAP + (1 if k < 9 else opt.get('capx', 1))
            for i in range(8):
                while q and load[i] + cost(q[0]) <= cap + (2 if cost(q[0]) > 1 else 0):
                    it = q.pop(0)
                    body[i].append(it)
                    load[i] += cost(it)
            if k == 2:
                assert nf_total - len(fillq) >= n_early, (nf_total - len(fillq), n_early)
            if k == 5:
                assert nf_total - len(fillq) >= n_a
            if k == 6:
                assert nf_total - len(fillq) >= n_a + 30
            if 8 * k + 8 >= gap_of("pks") - 1:
                assert nf_total - len(fillq) >= n_csum, (nf_total - len(fillq), n_csum)
            if k == 13:
                assert nf_total - len(fillq) >= n_early2
            if k == KCHK - 4:
                assert nf_total - len(fillq) >= n_mid
            if 8 * k + 8 > gap_of("stats") - 4:
                assert not fillq, (k, len(fillq))
        if ks == 3 and stage < 9:
            stamp(f"c_w{stage + 1}", cyc=True)
            g.wlg0()
            if stage == 1:
                g.wvm("OPT")
            g.wvm(("dma", stage + 1))
            e("s_barrier")
            stamp(f"c_b{stage + 1}", cyc=True)
        for i in range(8):
            t, b = divmod(i, 2)
            if k == 0:
                g.wlg(("A", k, t))
                g.wlg(("B", k, b))
            elif i == 0:
                g.wlg(("A", k, 1))
            elif i == 4:
                g.wlg(("A", k, 3))
            D = vACC + 16 * (2 * t + b)
            Cs = "0" if k == 0 else vr(D, 16)
            e(f"v_mfma_f32_32x32x16_bf16 {vr(D, 16)}, {vr(A + 4 * t, 4)}, {vr(B + 4 * b, 4)}, {Cs}")
            for it in head[8 * k + i]:
                if isinstance(it, tuple) and it[2] == "pks":
                    g.wlg("pk")
                g.do(it)
            for it in body[i] + gaps[8 * k + i]:
                g.do(it)
    assert not tail_fill and not cs_fill and not late_fill, len(late_fill)
    stamp("c_g1e", cyc=True)
    stamp("g1_loop_end", flush=True)

    def csu0(i):
        return (4 + i) if i < 8 else (96 + i - 8)
    def csu1(i):
        return (104 + i) if i < 8 else (28 + i - 8)
    tmps = [24, 26, 36, 38]
    g.wvm("stats")
    g.wlg("cs0")
    e(f"s_cmp_lg_u32 {sC}, 0")
    e("s_cbranch_scc1 L_epiB")
    vm_save, lg_save = list(g.vm), list(g.lg)
    for variant in range(2):
        if variant == 1:
            align()
            g.lab("L_epiB")
            g.vm, g.lg = list(vm_save), list(lg_save)
            e("s_nop 1\ns_nop 0")
        align()
        for ap in range(2):
            for b in range(2):
                gs, us = (ap, 2 + ap) if variant == 0 else (2 + ap, ap)
                Gt = vACC + 16 * (2 * gs + b)
                Ut = vACC + 16 * (2 * us + b)
                st = vSTA + 4 * b
                if ap == 0 and b == 1:
                    for j in range(4):
                        g.lds(f"ds_read_b128 {vr(80 + 4 * j, 4)}, v14 offset:{32 * j}", "cs1")
                    for j in range(4):
                        dst = (104 + 4 * j) if j < 2 else (28 + 4 * (j - 2))
                        g.lds(f"ds_read_b128 {vr(dst, 4)}, v14 offset:{256 + 32 * j}", "cs1")
                if ap == 1 and b == 0:
                    g.wlg("cs1")
                    align()
                csg = (lambda i: 64 + i) if ap == 0 else (lambda i: 80 + i)
                csu = csu0 if ap == 0 else csu1
                for c in range(2):
                    O = 16 if c == 0 else 20
                    ps = range(4 * c, 4 * c + 4)
                    for p in ps:
                        e(f"v_pk_fma_f32 {vr(Gt + 2 * p, 2)}, {vr(csg(2 * p), 2)}, {vr(st, 2)}, {vr(Gt + 2 * p, 2)} op_sel_hi:[1,0,1]")
                    for p in ps:
                        e(f"v_pk_mul_f32 {vr(tmps[p % 4], 2)}, {vr(Gt + 2 * p, 2)}, {vr(Gt + 2 * p, 2)}")
                    for p in ps:
                        t = tmps[p % 4]
                        e(f"v_pk_fma_f32 {vr(t, 2)}, {vr(t, 2)}, {vr(st, 2)}, {vr(st + 2, 2)} op_sel:[0,1,0] op_sel_hi:[1,1,0]")
                    for p in ps:
                        t = tmps[p % 4]
                        e(f"v_pk_mul_f32 {vr(t, 2)}, {vr(t, 2)}, {vr(Gt + 2 * p, 2)}")
                    for p in ps:
                        t = tmps[p % 4]
                        e(f"v_exp_f32 v{t}, v{t}")
                        e(f"v_exp_f32 v{t + 1}, v{t + 1}")
                    for p in ps:
                        e(f"v_pk_fma_f32 {vr(Ut + 2 * p, 2)}, {vr(csu(2 * p), 2)}, {vr(st, 2)}, {vr(Ut + 2 * p, 2)} op_sel_hi:[1,0,1]")
                    for p in ps:
                        t = tmps[p % 4]
                        e(f"v_pk_fma_f32 {vr(t, 2)}, {vr(t, 2)}, {vr(st + 2, 2)}, {vr(st + 2, 2)} op_sel:[0,1,1] op_sel_hi:[1,1,1]")
                    for p in ps:
                        t = tmps[p % 4]
                        e(f"v_rcp_f32 v{t}, v{t}")
                        e(f"v_rcp_f32 v{t + 1}, v{t + 1}")
                    for p in ps:
                        e(f"v_pk_mul_f32 {vr(Gt + 2 * p, 2)}, {vr(Gt + 2 * p, 2)}, {vr(Ut + 2 * p, 2)}")
                    for p in ps:
                        e(f"v_pk_mul_f32 {vr(Gt + 2 * p, 2)}, {vr(Gt + 2 * p, 2)}, {vr(tmps[p % 4], 2)}")
                    for p in ps:
                        e(f"v_cvt_pk_bf16_f32 v{O + p - 4 * c}, v{Gt + 2 * p}, v{Gt + 2 * p + 1}")
                    g.vmem(f"buffer_store_dwordx4 {vr(O, 4)}, v{vHO + ap}, {SWS}, {sHS0 if b == 0 else sHS1} offen offset:{512 * c} sc1", "hst")
        if variant == 0:
            e("s_branch L_epi_done")
    g.lab("L_epi_done")
    stamp("c_epe", cyc=True)
    stamp("g1_epi_end", flush=True)
    e(f"s_mov_b32 {sMASK}, {sPEND}")

    def rb2():
        for i in range(22):
            e(f"v_accvgpr_read_b32 v{GA + i}, a{AST + 8 + i}")
        for i in range(2, 8):
            e(f"v_accvgpr_read_b32 v{AK + i}, a{AS2 + 1 + i}")
        e("v_mov_b32 v4, 0\nv_mov_b32 v5, 0\nv_mov_b32 v6, 0\nv_mov_b32 v7, 0")
        e(f"ds_write_b128 v{vZ}, {vr(4, 4)}")
    rb2()

    Greg = [[224 + 4 * i for i in range(8)], [192 + 4 * i for i in range(8)]]
    FB = [128, 160]
    CACC = 64
    HRING = [16 + 4 * i for i in range(12)] + [104 + 4 * i for i in range(3)] + [128 + 4 * i for i in range(26)]
    NE = opt.get("ne", 15)
    P2 = opt.get("p2", 40)
    NB = len(HRING)
    YS, DK = 100, 101

    def hload(i):
        k, st = divmod(i, 14)
        r = HRING[i % NB]
        if st == 13:
            return [f"s_cmp_lt_u32 {sW}, 2\ns_cselect_b32 {sT4}, s{sG2 + 4 * k + 3}, {OOB}",
                    ("vm", f"buffer_load_dwordx4 {vr(r, 4)}, v1, {SWS}, {sT4} offen offset:1024 sc1", ("h", i))]
        return [("vm", f"buffer_load_dwordx4 {vr(r, 4)}, v1, {SWS}, s{sG2 + 4 * k + st // 4} offen offset:{(st % 4) * 1024} sc1", ("h", i))]

    def conv(last):
        tag = "L" if last else "E"
        g.lab("L_conv_last" if last else "L_conv_early")
        g.vm = ["u", "u"]
        g.lg = []
        def wd_e(phi):
            its = wd_load(phi)
            if len(its) > 1:
                its.insert(1, f"s_or_b32 {sT5}, {sT5}, {sK0}")
            return its
        if last:
            wq = [[f"s_add_u32 m0, {sXT}, {1024 * kk}", "s_nop 0",
                   ("vm", f"buffer_load_dwordx4 v{12 + kk}, {SX}, {sXO} offen lds", ("xt", 0))] for kk in range(3)]
            wq += [wd_load(phi) for phi in range(P1, 64)]
            for i7 in range(7):
                e(f"v_accvgpr_read_b32 v{9 + i7}, a{AS2 + 14 + i7}")
        else:
            wq = [wd_e(phi) for phi in range(0, P1)]
            g.vmem(f"buffer_load_dwordx4 {vr(vFL, 4)}, v{vFA + 1}, {SWS}, 0 offen sc1", "wfp")
        def wdl(n=1):
            for _ in range(n):
                if wq:
                    for it in wq.pop(0):
                        g.do(it)
        EG = 128
        for ch in range(2):
            for k in range(11):
                g.lds(f"ds_read_b32 v{EG + 12 * ch + k}, v{GA + 11 * ch + k}", ("eg", ch))
        g.lds(f"ds_read_b64 {vr(YS, 2)}, v{vYS} offset:{YSO}", "ysc")
        if last:
            wdl(3)
        g.wvm("u")
        g.lds(f"ds_write_b128 v{vUW}, {vr(vU, 4)}", "uw")
        g.lds(f"ds_write_b128 v{vUW}, {vr(vU + 4, 4)} offset:512", "uw")
        if last:
            e(f"s_or_b32 {sT1}, s2, {sW}")
            e(f"s_cmp_eq_u32 {sT1}, 0")
            e(f"s_cselect_b32 {sT1}, {EPOCH}, {OOB}")
            flag_store(sT1)
        EO = 64
        for ch in range(2):
            g.wlg(("eg", ch))
            align()
            for s in range(4):
                o = EO + 16 * ch + 4 * s
                for j in range(4):
                    e(f"v_cvt_pk_f16_f32 v{o + j}, v{EG + 12 * ch + s + 2 * j}, v{EG + 12 * ch + s + 2 * j + 1}")
                g.lds(f"ds_write_b128 v{vRW}, {vr(o, 4)} offset:{s * RCS + 1024 * ch}", "rw")
                if last and s % 2 == 1:
                    wdl()
            if last and ch == opt.get("hch", 1):
                e(f"s_waitcnt vmcnt({len(g.vm)})")
                flag_store(sMASK)
        if not last:
            e("s_waitcnt vmcnt(0)")
            flag_store(sMASK)
        if last:
            wdl(2)
        else:
            for x in check4(vFL):
                e(x)
            e("s_nop 0")
            e("s_cmp_eq_u64 vcc, 0")
            e(f"s_cselect_b32 {sK0}, 0, {OOB}")
        extra = [f"v_accvgpr_read_b32 v{4 + i}, a{AS2 + 9 + i}" for i in range(5)]
        extra += [f"s_lshl_b32 {sT1}, {sCP}, 1", f"s_add_u32 {sT1}, {sT1}, {sC}", f"s_lshl_b32 {sT1}, {sT1}, 12",
                  f"s_lshl_b32 {sT3}, {sRHO}, 11", f"s_add_u32 {sT1}, {sT1}, {sT3}", f"s_add_u32 {sHS0}, {sT1}, {ST}",
                  f"s_lshl_b32 {sT2}, {sCP}, 5", f"s_add_u32 {sT2}, {sT2}, {sW}",
                  f"s_lshl_b32 {sT2}, {sT2}, 2", f"s_add_u32 {sPEND}, {sT2}, {SF}"]
        if last:
            extra += [f"v_accvgpr_read_b32 v{vFA + i}, a{AS2 + 21 + i}" for i in range(2)]
            extra += ["v_min_u32 v3, 53, v0", "v_lshlrev_b32 v3, 7, v3",
                      f"s_lshl_b32 {sT0}, {sDT}, 2", f"s_add_u32 {sT0}, {sT0}, {sW}", f"s_mul_i32 {sT0}, {sT0}, {54 * 128}",
                      f"s_mul_i32 {sHS1}, {sLT}, {4 * 54 * 1024}", f"s_add_u32 {sHS1}, {sHS1}, {sT0}", f"s_add_u32 {sHS1}, {sHS1}, {HB}"]
        g.wlg0()
        e("s_barrier")
        stamp("c_cs" + tag, cyc=True)
        stamp("conv_start" + tag)

        def cls_reads(dl):
            bf = dl & 1
            out = []
            for s in range(8):
                out.append(("lds", f"ds_read_b128 {vr(Greg[bf][s], 4)}, v{vGB} offset:{512 * s + 64 * (3 - dl)}", ("G", dl, s)))
                off = 64 * (59 - dl - 8 * s)
                out.append(("lds", f"ds_read_b64 {vr(FB[bf] + 4 * s, 2)}, v{vFB} offset:{off}", ("F", dl, s)))
                out.append(("lds", f"ds_read_b64 {vr(FB[bf] + 4 * s + 2, 2)}, v{vFB} offset:{off + 8}", ("F", dl, s)))
            return out
        for it in cls_reads(0):
            g.do(it)
        order = sorted([(s, gg) for s in range(8) for gg in range(8) if s + gg < 8], key=lambda x: (max(x), x[0] + x[1]))
        seen = set()
        hq = []
        US, UD = 2, 96
        for dl in range(4):
            bf = dl & 1
            nxt = cls_reads(dl + 1) if dl < 3 else []
            if dl == 3:
                nxt = [("lds", f"ds_read_b64 {vr(128 + 2 * tt, 2)}, v6 offset:{512 * tt}", "us") for tt in range(4)]
                nxt += [None] * 6 + [("wlg", "us")]
                for tt in range(4):
                    for i in range(4):
                        src = 128 + 2 * tt + (i >> 1)
                        nxt.append(f"v_fma_mix_f32 v{136 + 4 * tt + i}, v{src}, v{DK}, 0 op_sel:[{i & 1},0,0] op_sel_hi:[1,0,0]")
            if last and dl == 3:
                g.wvm("hfp")
                e(f"v_cmp_ne_u32 vcc, v{vTAG}, v{vFL}")
                e("s_nop 0")
                e("s_cmp_eq_u64 vcc, 0")
                e(f"s_cselect_b32 {sK1}, 1, 0")
                e(f"s_cselect_b32 {sT0}, 0, {OOB}")
                tch = [f"s_or_b32 {sT4}, {sHS1}, {sT0}", ("vm", f"buffer_load_dword v{vFL + 4}, v3, {SWS}, {sT4} offen sc1", "ht")]
                TP = opt.get("tp", -1)
                for i in range(NE):
                    k_, st_ = divmod(i, 14)
                    if i == TP:
                        hq.append(tch)
                    pre_ = [f"s_or_b32 {sT4}, s{sG2 + 4 * k_ + st_ // 4}, {sT0}"] if (st_ % 4 == 0 or st_ == 13 or i == TP) else []
                    if st_ == 13:
                        pre_.append(f"s_cmp_lt_u32 {sW}, 2\ns_cselect_b32 {sT4}, {sT4}, {OOB}")
                    hq.append(pre_ + [("vm", f"buffer_load_dwordx4 {vr(HRING[i], 4)}, v1, {SWS}, {sT4} offen offset:{(st_ % 4) * 1024} sc1", ("he", i))])
                if TP == NE:
                    hq.append(tch)
            if dl > 0:
                g.wlg(("F", dl, 7))
            for mi, (s, gg) in enumerate(order):
                t = s + gg
                if dl == 0:
                    g.wlg(("G", dl, gg))
                    g.wlg(("F", dl, s))
                Cs = "0" if t not in seen else vr(CACC + 4 * t, 4)
                seen.add(t)
                e(f"v_mfma_f32_16x16x32_f16 {vr(CACC + 4 * t, 4)}, {vr(FB[bf] + 4 * s, 4)}, {vr(Greg[bf][gg], 4)}, {Cs}")
                start = 8 if dl == 0 else 1
                if mi >= start and nxt:
                    it = nxt.pop(0)
                    if it is not None:
                        g.do(it)
                elif extra:
                    g.do(extra.pop(0))
                if mi % 2 == 1 and extra and mi >= start:
                    g.do(extra.pop(0))
                mc = 36 * dl + mi
                if mc % 4 == 2:
                    nphi = wq[0][-1][2][1] if wq else 0
                    if last and mc == opt.get("hfp", 86):
                        assert not extra
                        g.vmem(f"buffer_load_dword v{vFL}, v{vFA}, {SWS}, 0 offen sc1", "hfp")
                    elif hq:
                        for it in hq.pop(0):
                            g.do(it)
                    elif wq and not (last and extra and nphi >= 48):
                        wdl()
            assert not nxt, len(nxt)
        while wq and not last:
            wdl()
        assert not wq and not extra, (len(wq), len(extra))
        def hl(n=1):
            for _ in range(n):
                if hq:
                    for it in hq.pop(0):
                        g.do(it)
        stamp("c_ce" + tag, cyc=True)
        stamp("conv_end" + tag)
        lr1 = g.newlab("Lfin1")
        lfd = g.newlab("Lfind")
        e(f"s_cmp_lg_u32 {sRHO}, 0")
        e(f"s_cbranch_scc1 {lr1}")
        lg_save, pst_save, sf_save = list(g.lg), list(g.pst), list(g.sfree)
        for rho in range(2):
            if rho == 1:
                g.lab(lr1)
                g.lg, g.pst, g.sfree = list(lg_save), list(pst_save), list(sf_save)
            own = CACC + 16 * rho
            oth = CACC + 16 * (1 - rho)
            g.nop(6)
            for tt in range(4):
                g.lds(f"ds_write_b128 v4, {vr(oth + 4 * tt, 4)} offset:{PB + 1024 * tt}", "pw")
            align()
            for tt in range(4):
                for i in range(4):
                    e(f"v_fma_f32 v{136 + 4 * tt + i}, v{own + 4 * tt + i}, v{YS}, v{136 + 4 * tt + i}")
            if rho == 0:
                e(f"s_branch {lfd}")
        g.lab(lfd)
        g.wlg0()
        e("s_barrier")
        for tt in range(4):
            g.lds(f"ds_read_b128 {vr(152 + 4 * tt, 4)}, v5 offset:{PB + 1024 * tt}", ("pr", tt))
        hl(2)
        for tt in range(4):
            g.wlg(("pr", tt))
            for i in range(4):
                e(f"v_fmac_f32 v{136 + 4 * tt + i}, v{152 + 4 * tt + i}, v{YS}")
            for h in range(2):
                e(f"v_cvt_pk_bf16_f32 v{128 + 2 * tt + h}, v{136 + 4 * tt + 2 * h}, v{136 + 4 * tt + 2 * h + 1}")
            g.lds(f"ds_write_b64 v7, {vr(128 + 2 * tt, 2)} offset:{512 * tt}", "sw")
            hl(1)
        hl(1)
        g.wlg0()
        for j in range(2):
            g.lds(f"ds_read_b128 {vr(88 + 4 * j, 4)}, v8 offset:{1024 * j}", ("sr", j))
        hl(9)
        assert not hq
        if not last:
            e(f"s_add_u32 {sCP}, {sCP}, 40")
            for i in range(22):
                e(f"v_add_u32 v{GA + i}, {2 * TC}, v{GA + i}")
            e(f"v_add_u32 v{vYS}, {2 * TC}, v{vYS}")
        for j in range(2):
            g.wlg(("sr", j))
            g.vmem(f"buffer_store_dwordx4 {vr(88 + 4 * j, 4)}, v1, {SWS}, {sHS0} offen offset:{1024 * j} sc1", "sst")
        if not last:
            for it in u_loads(sCP, 2):
                g.do(it)
            e(f"s_mov_b32 {sMASK}, {sPEND}")
            e(f"s_sub_u32 {sRND}, {sRND}, 1")
            e(f"s_cmp_lg_u32 {sRND}, 1")
            e("s_cbranch_scc1 L_conv_early")

    conv(True)

    e(f"s_cmp_lg_u32 {sK1}, 0")
    e("s_cbranch_scc1 L_hready")
    poll_block(vFA, False)
    if opt.get("tp", -1) >= 0:
        e(f"buffer_load_dword v{vFL + 4}, v3, {SWS}, {sHS1} offen sc1")
    for i in range(NE):
        for it in hload(i):
            e(it[1] if isinstance(it, tuple) else it)
    g.lab("L_hready")
    stamp("c_g2s", cyc=True)
    stamp("g2_start")
    g.vm = [("h", i) for i in range(NE)]
    AC = [64, 84]
    lateq = [wd_load(64 + i) for i in range(6)] + [hload(i) for i in range(NE, NB)]
    fq = ["v_lshrrev_b32 v8, 1, v0", "v_lshlrev_b32 v8, 12, v8", "v_and_b32 v2, 1, v0", "v_lshl_add_u32 v8, v2, 4, v8",
          f"s_mul_i32 {sT1}, {sW}, 15360", f"v_add_u32 v2, {sT1}, v1",
          f"s_mul_i32 {sHS1}, {sW}, 3072", f"s_add_u32 {sHS1}, {sHS1}, {STB}", f"v_lshl_add_u32 v3, v0, 3, {sHS1}",
          "v_and_b32 v4, 15, v0", "v_mul_u32_u24 v4, 160, v4", "v_lshrrev_b32 v5, 4, v0", "v_lshl_add_u32 v4, v5, 3, v4",
          f"v_add_u32 v4, {sXT}, v4", f"v_add_u32 v5, {sXT}, v1",
          ]
    SFP = opt.get("sfp", 43)
    BAR = opt.get("bar", 46)
    P0, P1r, P2r, XR, XU, SR, SU = 160, 180, 200, 128, 138, 220, 180
    xq = [f"s_mov_b32 {sMASK}, 0xffff0000", f"s_mov_b32 {sT2}, {hex(f2u(-LOG2E))}"]
    xq += [("lds", f"ds_read_b64 {vr(XR + 2 * j, 2)}, v4 offset:{32 * j}", "x") for j in range(5)] + [None, None, ("wlg", "x")]
    for p in range(10):
        xq += [f"v_lshlrev_b32 v{XU + 2 * p}, 16, v{XR + p}", f"v_and_b32 v{XU + 2 * p + 1}, {sMASK}, v{XR + p}"]
    eq = [("lds", f"ds_read_b128 {vr(P0 + 4 * q, 4)}, v2 offset:{EXB + 1024 * q}", ("exr", q // 5)) for q in range(15)]
    eq += [("wlg", ("exr", 1))] + [f"v_pk_add_f32 {vr(P0 + 2 * p, 2)}, {vr(P0 + 2 * p, 2)}, {vr(P1r + 2 * p, 2)}" for p in range(10)]
    eq += [("wlg", ("exr", 2))] + [f"v_pk_add_f32 {vr(P0 + 2 * p, 2)}, {vr(P0 + 2 * p, 2)}, {vr(P2r + 2 * p, 2)}" for p in range(10)]

    for i in range(56):
        k, st = divmod(i, 14)
        A0 = AC[k & 1]
        g.wvm(("h", i))
        if st >= 12 and k == 0:
            g.wvm(("wd", 69 if st == 13 else 64))
        r = HRING[i % NB]
        extra = [[] for _ in range(5)]
        if st == 1 and k >= 1:
            pa = AC[(k - 1) & 1]
            for j in range(5):
                extra[j].append(("lds", f"ds_write_b128 v{9 + k - 1}, {vr(pa + 4 * j, 4)} offset:{1024 * j}", "exw"))
        for j in ((0, 3) if i < opt.get("fast", 0) else ((i % 4,) if i % 4 else (0, 4))):
            if lateq:
                extra[j] += lateq.pop(0)
        if i == opt.get('sfl', 7):
            def sflag():
                n = sum(1 for t in g.vm if t[0] == "wd" or (t[0] == "h" and t[1] >= NE))
                e(f"s_waitcnt vmcnt({n})")
                flag_store(sPEND)
            extra[1].append(sflag)
        if 18 <= i < 26:
            for j in (1, 3, 4):
                if fq:
                    extra[j].append(fq.pop(0))
        if i == SFP:
            extra[0].append(("vm", f"buffer_load_dwordx4 {vr(vFL, 4)}, v{vFA + 1}, {SWS}, 0 offen sc1", ("sfp",)))
        if i == SFP + 6:
            c4 = check4(vFL)
            extra[0] += [("wvm", ("sfp",))] + c4[0:2]
            extra[1] += c4[2:4]
            extra[2] += c4[4:6]
            def sfchk():
                sl = g.newlab("Lslow")
                bk = g.newlab("Lback")
                e(c4[6])
                e(f"s_cbranch_vccnz {sl}")
                g.lab(bk)
                g.slow.append((sl, bk, [(vFA + 1, True)]))
            extra[3].append(sfchk)
        if i == SFP + 7:
            extra[0] += [f"s_mov_b32 m0, {sHS1}"]
            extra[1] += [("vm", f"buffer_load_dwordx4 v8, {SWS}, {sSTO} offen sc1 lds", ("stl",)), f"s_add_u32 m0, {sHS1}, 1024"]
            extra[2] += [f"s_add_u32 {sT3}, {sSTO}, {32 * 4096}"]
            extra[3] += [("vm", f"buffer_load_dwordx4 v8, {SWS}, {sT3} offen sc1 lds", ("stl",)), f"s_add_u32 m0, {sHS1}, 2048"]
            extra[4] += [f"s_add_u32 {sT3}, {sSTO}, {64 * 4096}", f"v_mov_b32 v7, {OOB}", "v_cmp_lt_u32 vcc, 31, v0"]
        if i == SFP + 8:
            extra[1] += ["v_cndmask_b32 v8, v8, v7, vcc"]
            extra[2] += [("vm", f"buffer_load_dwordx4 v8, {SWS}, {sT3} offen sc1 lds", ("stl",))]
        if 30 <= i and xq and st != 1:
            for j in (1, 2, 3):
                for _ in range(1):
                    if xq:
                        it = xq.pop(0)
                        if it is not None:
                            extra[j].append(it)
        if i == BAR:
            assert not xq
            g.wlg0()
            e("s_barrier")
        if i >= BAR:
            for j in range(5):
                for _ in range(0 if i in (SFP + 6, SFP + 7) else 1):
                    if eq:
                        extra[j].append(eq.pop(0))
        for j in range(5):
            phi = st * 5 + j
            src = ar(4 * phi, 4) if phi < 64 else vr(vWDV + 4 * (phi - 64), 4)
            Cs = "0" if st == 0 else vr(A0 + 4 * j, 4)
            e(f"v_mfma_f32_16x16x32_bf16 {vr(A0 + 4 * j, 4)}, {src}, {vr(r, 4)}, {Cs}")
            for it in extra[j]:
                g.do(it)
        if i + NB < 56:
            lateq.append(hload(i + NB))
    assert not lateq and not fq
    stamp("c_g2e", cyc=True)
    stamp("g2_loop_end")
    for it in eq:
        g.do(it)
    A0 = AC[1]
    E_ = 200
    e(f"s_mov_b32 {sT3}, {sT2}")
    g.wvm(("stl",))
    for j in range(5):
        g.lds(f"ds_read_b64_tr_b16 {vr(SR + 2 * j, 2)}, v3 offset:{512 * j}", "s")
    g.nop(2)
    align()
    for p in range(10):
        e(f"v_pk_add_f32 {vr(A0 + 2 * p, 2)}, {vr(A0 + 2 * p, 2)}, {vr(P0 + 2 * p, 2)}")
    for p in range(10):
        e(f"v_pk_mul_f32 {vr(E_ + 2 * p, 2)}, {vr(A0 + 2 * p, 2)}, s[56:57]")
    for p in range(20):
        e(f"v_exp_f32 v{E_ + p}, v{E_ + p}")
    g.wlg("s")
    for p in range(10):
        e(f"v_lshlrev_b32 v{SU + 2 * p}, 16, v{SR + p}")
        e(f"v_and_b32 v{SU + 2 * p + 1}, {sMASK}, v{SR + p}")
    align()
    for p in range(10):
        e(f"v_pk_mul_f32 {vr(A0 + 2 * p, 2)}, {vr(A0 + 2 * p, 2)}, {vr(SU + 2 * p, 2)}")
    for p in range(10):
        e(f"v_pk_add_f32 {vr(E_ + 2 * p, 2)}, {vr(E_ + 2 * p, 2)}, 1.0 op_sel_hi:[1,0]")
    for p in range(20):
        e(f"v_rcp_f32 v{E_ + p}, v{E_ + p}")
    e("s_nop 0\ns_nop 0")
    for p in range(10):
        e(f"v_pk_fma_f32 {vr(A0 + 2 * p, 2)}, {vr(A0 + 2 * p, 2)}, {vr(E_ + 2 * p, 2)}, {vr(XU + 2 * p, 2)}")
    for p in range(10):
        e(f"v_cvt_pk_bf16_f32 v{160 + p}, v{A0 + 2 * p}, v{A0 + 2 * p + 1}")
        if p % 2 == 1:
            g.lds(f"ds_write_b64 v4, {vr(160 + p - 1, 2)} offset:{16 * (p - 1)}", "ow")
    g.wlg0()
    for kk in range(3):
        g.lds(f"ds_read_b128 {vr(128 + 4 * kk, 4)}, v5 offset:{1024 * kk}", ("or", kk))
    osc = opt.get("outsc", "")
    for kk in range(3):
        g.wlg(("or", kk))
        g.vmem(f"buffer_store_dwordx4 {vr(128 + 4 * kk, 4)}, v{(12, 13, 15)[kk]}, {SOUT}, {sXO} offen{osc}", "out")
    if diag:
        g.wvm0()
        stamp("end", flush=True)
        if opt.get("dbg"):
            e("s_load_dwordx2 s[88:89], s[100:101], 96")
            e("v_readlane_b32 s92, v127, 60")
            e("s_mov_b32 s90, 64\ns_mov_b32 s91, 0x20000")
            e("v_writelane_b32 v127, s92, 1")
            e("s_not_b32 s92, s92")
            e("v_writelane_b32 v127, s92, 0")
            e("v_lshlrev_b32 v2, 2, v0")
            e("s_waitcnt lgkmcnt(0)")
            e("buffer_atomic_umax v127, v2, s[88:91], 0 offen")
            e("s_endpgm")
        e(f"s_mov_b32 s88, s16\ns_mov_b32 s89, s17\ns_mov_b32 s90, 0x1000000\ns_mov_b32 s91, 0x20000")
        e(f"s_lshl_b32 {sT1}, s2, 2\ns_add_u32 {sT1}, {sT1}, {sW}\ns_lshl_b32 {sT1}, {sT1}, 8\ns_add_u32 {sT1}, {sT1}, {TS_BASE}")
        e("v_lshlrev_b32 v2, 2, v0")
        e(f"buffer_store_dword v127, v2, s[88:91], {sT1} offen")
    g.lab("L_end")
    e("s_endpgm")
    e(".p2align 6")
    g.lab("L_spare")
    g.vm = vm0
    g.lg = []
    g.pst = []
    g.sfree = [92] if opt.get('dbg') else [92, 100]
    if diag:
        e("v_mov_b32 v127, 0")
        e("v_writelane_b32 v127, s92, 60")
    e("v_lshrrev_b32 v4, 3, v0")
    e("v_and_b32 v5, 7, v0")
    e("s_add_u32 s68, s88, L_spare - L_pc + 256")
    e("s_addc_u32 s69, s89, 0")
    e("s_mov_b32 s70, 0x2000\ns_mov_b32 s71, 0x20000")
    e("v_and_b32 v10, 15, v0")
    e(f"s_lshl_b32 {sT1}, {sW}, 11")
    e("v_lshlrev_b32 v10, 7, v10")
    g.vmem(f"buffer_load_dword v{vFL + 4}, v10, s[68:71], {sT1} offen", "cpf")
    rest_setup()
    rest_loads()
    for r3 in range(3):
        run_items(param_units(r3))
    table_code(TB)
    aE, aL2 = addr_items(XYB_SP, TB)
    run_items(aE + aL2 + gather_items(TB))
    g.wvm("ln")
    stamp("ln_data")
    ln_code()
    ln_tail()
    stamp("ln_done", flush=True)
    e(f"s_lshl_b32 {sMASK}, s2, 2")
    e(f"s_add_u32 {sMASK}, {sMASK}, {LNF}")
    e(f"s_cmp_eq_u32 {sW}, 0")
    e(f"s_cselect_b32 {sMASK}, {sMASK}, {OOB}")
    e(f"v_add_u32 v{vFA}, {LNF}, v1")
    e("v_min_u32 v2, 53, v0")
    e(f"s_lshr_b32 {sF0}, {sDT}, 1")
    e(f"s_lshl_b32 {sF0}, {sF0}, 10")
    e(f"s_add_u32 {sF0}, {sF0}, {WF}")
    e(f"v_lshl_add_u32 v{vFA + 1}, v2, 4, {sF0}")
    e(f"s_mov_b32 {sK1}, {sRND}")
    rb1()
    g.wvm("par")
    tag_code()
    g.lab("L_kgen")
    g.vm = []
    kgen("s", [], 1)
    g.wall()
    e("s_barrier")
    flag_store(sMASK)
    e(f"s_mov_b32 {sMASK}, {OOB}")
    kgen_mfma()
    e(f"s_sub_u32 {sK1}, {sK1}, 1")
    e(f"s_cmp_eq_u32 {sK1}, 0")
    e("s_cbranch_scc1 L_kdone")
    e(f"s_add_u32 {sKR}, {sKR}, {2 * TC}")
    for i in range(8):
        e(f"v_add_u32 v{SC + i}, {2 * TC}, v{SC + i}")
    for i in range(6):
        e(f"v_accvgpr_mov_b32 a{APAR + i}, a{APAR + 8 + i}")
        e(f"v_accvgpr_mov_b32 a{APAR + 8 + i}, a{APAR + 16 + i}")
    e("s_waitcnt lgkmcnt(0)")
    e("s_barrier")
    e("s_branch L_kgen")
    g.lab("L_kdone")
    stamp("kdone", flush=True)
    e(f"s_cmp_lg_u32 {sW}, 0")
    e("s_cbranch_scc1 L_sp_polled")
    poll_block(vFA, True, sleep=16)
    g.lab("L_sp_polled")
    e("s_waitcnt lgkmcnt(0)")
    e("s_barrier")
    stamp("sp_lnf", flush=True)
    run_items(u_loads(sCP, 2))
    rb2()
    conv(False)
    e(f"s_cmp_eq_u32 {sK0}, 0")
    e("s_cbranch_scc1 L_conv_last")
    poll_block(vFA + 1, True, sleep=24)
    for phi in range(P1):
        for it in wd_load(phi):
            e(it[1] if isinstance(it, tuple) else it)
    e("s_branch L_conv_last")
    for (sl, bk, lst) in g.slow:
        g.lab(sl)
        g.sfree = [98]
        g.pst = []
        if diag:
            e("s_waitcnt lgkmcnt(0)")
        for pi, (av, n4) in enumerate(lst):
            stamp(f"slow{sl[-2:]}_{pi}", flush=True)
            poll_block(av, n4, sleep=opt.get("ssleep", 20))
        stamp(f"slow{sl[-2:]}_x", flush=True)
        e(f"s_branch {bk}")
    g.lab("L_codeend")

    hdr = [f"; @launch grid=(256,1,1) block=(256,1,1) lds={LDS_TOTAL}",
           '.amdgcn_target "amdgcn-amd-amdhsa--gfx950"', ".text", f".globl {KNAME}", ".p2align 8",
           f".type {KNAME},@function", f"{KNAME}:"]
    ftr = ['.section .rodata,"a"', ".p2align 6", f".amdhsa_kernel {KNAME}",
           "  .amdhsa_next_free_vgpr 512", "  .amdhsa_next_free_sgpr 102", "  .amdhsa_accum_offset 256",
           "  .amdhsa_group_segment_fixed_size 0", "  .amdhsa_kernarg_size 112", "  .amdhsa_user_sgpr_count 2",
           "  .amdhsa_user_sgpr_kernarg_segment_ptr 1", "  .amdhsa_system_sgpr_workgroup_id_x 1",
           "  .amdhsa_float_denorm_mode_32 3",
           ".end_amdhsa_kernel"]
    txt = "\n".join(hdr + g.L + ftr) + "\n"
    if diag:
        txt = txt + "; STAMPS " + ",".join(ts_names) + "\n"
    return txt


if __name__ == "__main__":
    diag = "--diag" in sys.argv
    opt = {}
    for a in sys.argv[1:]:
        if a.startswith("--") and "=" in a:
            k, v = a[2:].split("=")
            opt[k] = int(v) if v.lstrip("-").isdigit() else v.replace("_", " ")
    out = [a for a in sys.argv[1:] if not a.startswith("--")]
    s = gen(diag=diag, opt=opt)
    path = out[0] if out else "recurrent_scan__ssm_conv_s4d__geglu_ffn__prompt.s"
    open(path, "w").write(s)
    print("wrote", path, len(s), "bytes", s.count("\n"), "lines")
```

```python
import sys, struct, math

KNAME = "recurrent_scan__ssm_conv_s4d__geglu_ffn__prompt_kernel"

EPOCH = 0x0
LNF = 0x1000
WF = 0x4400
STATS = 0x8000
XNT = 0x10000
ST = 0x290000
WDP = 0x510000
HB = 0x730000
CSP = 0xDF0000
HF = 0xE26000
SF = 0xE46000
WS_END = 0xE50000
TS_BASE = 0xE60000

SLOT = 49152
MISC = 147456
LNP = 1344
CSB = MISC + 10752 + 5120
XYP = 544
YR0 = 21
XYC = 53 * XYP
XYB_SP, XYB_G1 = 0, 2 * SLOT
LNB = 2 * SLOT
TB_G1 = 157696
PB = 0
UBASE = 69632
UC = 4608
RB = UBASE + 2 * UC
RCS = 4160
RC = 4 * RCS
TC = 2624
TB = MISC
YSO = 650 * 4
SOB = 16384
EXB = 24576
XTB = 112128
STB = XTB + 12288
LDS_TOTAL = 163840
OOB = 0x7fff0000

def f2u(x):
    return struct.unpack("<I", struct.pack("<f", x))[0]

LOG2E = 1.4426950408889634
C0 = -2.0 * math.sqrt(2.0 / math.pi) * LOG2E
C1 = C0 * 0.044715


class G:
    def __init__(self):
        self.L = []
        self.vm = []
        self.lg = []
        self.nlab = 0
        self.slow = []
        self.skip = set()
        self.pst = []
        self.sfree = [92, 100]

    def flush_stamps(self):
        for (sr, lane) in self.pst:
            self.e(f"v_writelane_b32 v127, s{sr}, {lane}")
            self.sfree.append(sr)
        self.pst = []

    def e(self, s):
        for ln in s.split("\n"):
            self.L.append("    " + ln)

    def lab(self, name):
        self.L.append(name + ":")

    def newlab(self, p="L"):
        self.nlab += 1
        return f"{p}_{self.nlab}"

    def vmem(self, s, tag=None):
        if tag in self.skip:
            return
        self.e(s)
        self.vm.append(tag)

    def lds(self, s, tag=None):
        self.e(s)
        self.lg.append(tag)

    def _n(self, q, tag):
        idx = max(i for i, t in enumerate(q) if t == tag)
        return idx, sum(1 for t in q[idx + 1:] if t != "OPT")

    def wvm(self, tag):
        if tag not in self.vm:
            return
        idx, n = self._n(self.vm, tag)
        self.e(f"s_waitcnt vmcnt({min(n, 63)})")
        self.vm = self.vm[idx + 1:]

    def wlg(self, tag):
        if tag not in self.lg:
            return
        idx, n = self._n(self.lg, tag)
        self.e(f"s_waitcnt lgkmcnt({min(n, 15)})")
        self.lg = self.lg[idx + 1:]

    def wvm0(self):
        self.e("s_waitcnt vmcnt(0)")
        self.vm = []

    def wlg0(self):
        self.e("s_waitcnt lgkmcnt(0)")
        self.lg = []
        self.flush_stamps()

    def wall(self):
        self.e("s_waitcnt vmcnt(0) lgkmcnt(0)")
        self.vm = []
        self.lg = []
        self.flush_stamps()

    def nop(self, n):
        while n > 0:
            k = min(n, 16)
            self.e(f"s_nop {k - 1}")
            n -= k

    def do(self, item):
        if callable(item):
            item()
        elif isinstance(item, tuple):
            kind = item[0]
            if kind == "vm":
                self.vmem(item[1], item[2])
            elif kind == "lds":
                self.lds(item[1], item[2])
            elif kind == "wvm":
                self.wvm(item[1])
            elif kind == "wlg":
                self.wlg(item[1])
            else:
                raise ValueError(kind)
        else:
            self.e(item)


def vr(a, n):
    return f"v[{a}:{a + n - 1}]"


def ar(a, n):
    return f"a[{a}:{a + n - 1}]"


SX, SWG, SWU, SWS, SOUT, SWD = "s[4:7]", "s[8:11]", "s[12:15]", "s[16:19]", "s[20:23]", "s[24:27]"
P_LAR, P_AIM, P_CRE, P_CIM, P_LDT, P_DSK = "s[28:29]", "s[30:31]", "s[32:33]", "s[34:35]", "s[36:37]", "s[38:39]"
sW, sTAG, sM, sFT, sISG1, sCP, sRND, sSP = "s40", "s41", "s42", "s43", "s44", "s45", "s46", "s47"
sXCD, sQ = "s48", "s49"
sXM0, sWM0, sXS, sWSO = "s50", "s51", "s52", "s53"
sT0, sT1, sT2, sT3, sT4, sT5 = "s54", "s55", "s56", "s57", "s58", "s59"
sMASK, sCNT = "s60", "s61"
sRHO, sC = "s62", "s63"
sHS0, sHS1 = "s64", "s65"
sG2 = 66
STW = "s[96:99]"
sF0, sF1, sF2 = "s0", "s1", "s3"
sLT, sDT = "s82", "s83"
sWDS = "s84"
sPEND, sXO = "s85", "s86"
sKR = "s87"
sXT, sSTO = "s94", "s95"
sK0, sK1 = "s96", "s97"

vT = 2
vXO = 16
vWO = 24
vBA = 26
vAA = 30
vCS = 42
vHO = 44
vTO = 46
vSTA = 48
vU = 56
vAF = 64
vBF = 96
vPAR = 112
vFA = 118
vEP = 120
vFL = 122
vACC = 128
SC = 224
GA = 24
AST = 224
AS2 = 192
PKB = MISC
vWDV = 232


def bf16_idx(l):
    if l < 0:
        return -1
    if l < 256:
        return l
    u = f2u(float(l))
    u = (u + 0x7fff + ((u >> 16) & 1)) >> 16
    return u - 0x4280


def lane_table():
    out = []
    for w in range(4):
        c, rho = w >> 1, w & 1
        rows = []
        for ln in range(64):
            n, kg = ln & 15, ln >> 4
            E = [0] * 48
            E[3] = (UBASE + c * UC + rho * 256 + ln * 16) if ln < 16 else (RB + 4096 + c * RC + rho * 2 * RCS + ((ln >> 1) & 1) * RCS + (ln & 1) * 16)
            E[4] = RB + c * RC + rho * 2048 + ln * 16
            E[5] = UBASE + 512 + w * 1024 + (ln & 1) * UC + (ln >> 1) * 16
            E[6] = TB_G1 + c * TC
            E[7] = RB + 24 + 256 + c * RC - rho * 256 + ((3 - n) & 3) * RCS + kg * 16 - (n & 12) * 2
            E[8] = UBASE + 32 + 256 + c * UC - rho * 256 + n * 32 + kg * 16
            E[9] = w * 4096 + ln * 16
            E[10] = E[9] ^ 0x1000
            E[11] = UBASE + 512 + c * UC + rho * 2048 + n * 32 + kg * 8
            E[12] = SOB + w * 2048 + n * 32 + kg * 8
            E[13] = SOB + w * 2048 + ln * 16
            for k in range(3):
                E[14 + k] = ((w + k + 1) & 3) * 15360 + EXB + 5120 * k + ln * 16
                ix = 64 * k + ln
                E[17 + k] = (ix // 10) * 1280 + (ix % 10) * 16
            E[20] = E[19] if ln < 32 else OOB
            E[23] = (ln >> 1) * 10240 + (ln & 1) * 16
            for ch in range(2):
                for k in range(11):
                    l = 2047 - 1024 * rho - 8 * ln - 512 * ch - k
                    E[24 + 11 * ch + k] = TB_G1 + 4 + c * TC + 4 * bf16_idx(l)
            rows.append(E)
        for q in range(12):
            for ln in range(64):
                out += rows[ln][4 * q:4 * q + 4]
    return out


def gen(diag=False, opt=None):
    opt = opt or {}
    TOUCH = opt.get("touch", 0)
    P1 = opt.get("p1", 32)
    KCHK = opt.get("kchk", 29)
    NT = " nt" if opt.get("nt", 1) else ""
    g = G()
    e = g.e
    if opt.get('nolnst'):
        g.skip.add('lnst')
    ts_names = []
    vTAG, vL0 = vEP, vEP + 1

    def stamp(name, cyc=False, flush=False):
        if not diag:
            return
        if opt.get("dbg"):
            sel = ["x0", "x1", "par_data", "kdone", "g1_start", "g1_loop_end", "g1_epi_end", "conv_startL", "conv_endL", "g2_start", "g2_loop_end", "end", "sp_lnf", "conv_startE"]
            if name not in sel:
                return
            ts_names[:] = sel
        if name not in ts_names:
            ts_names.append(name)
        i = ts_names.index(name)
        if not g.sfree:
            g.wlg0()
        sr = g.sfree.pop(0)
        e(f"{'s_memtime' if cyc else 's_memrealtime'} s[{sr}:{sr + 1}]")
        g.pst.append((sr, i))
        if flush:
            g.wlg0()

    def interleave(fn, units, every):
        n0 = len(g.L)
        fn()
        body = g.L[n0:]
        del g.L[n0:]
        cnt = 0
        for bi, ln in enumerate(body):
            g.L.append(ln)
            if ln.strip().startswith(".") or ln.strip().endswith(":"):
                continue
            cnt += 1
            nxt_ = body[bi + 1].strip() if bi + 1 < len(body) else ""
            if nxt_.startswith(("s_cselect", "s_addc", "s_cbranch")):
                continue
            if units and cnt >= every:
                u = units[0]
                if isinstance(u, tuple) and u[0] == "m0":
                    e(u[1])
                    units.pop(0)
                    cnt = every - 1
                else:
                    g.do(u)
                    units.pop(0)
                    cnt = 0 if isinstance(u, tuple) else every - 1

    def align():
        e(".p2align 3")

    def red(op, v, t, full):
        for dpp in ("quad_perm:[1,0,3,2]", "quad_perm:[2,3,0,1]", "row_half_mirror", "row_mirror"):
            g.nop(2)
            e(f"{op} v{v}, v{v}, v{v} {dpp}")
        e(f"v_mov_b32 v{t}, v{v}")
        g.nop(2)
        e(f"v_permlane16_swap_b32 v{v}, v{t}")
        g.nop(1)
        e(f"{op} v{v}, v{v}, v{t}")
        if full:
            e(f"v_mov_b32 v{t}, v{v}")
            g.nop(2)
            e(f"v_permlane32_swap_b32 v{v}, v{t}")
            g.nop(1)
            e(f"{op} v{v}, v{v}, v{t}")

    def bf16round(v):
        e(f"v_cvt_pk_bf16_f32 v{v}, v{v}, v{v}")
        e(f"v_lshlrev_b32 v{v}, 16, v{v}")

    def check4(tmp):
        return [f"v_xor_b32 v{tmp}, v{vTAG}, v{tmp}", f"v_xor_b32 v{tmp + 1}, v{vTAG}, v{tmp + 1}",
                f"v_xor_b32 v{tmp + 2}, v{vTAG}, v{tmp + 2}", f"v_xor_b32 v{tmp + 3}, v{vTAG}, v{tmp + 3}",
                f"v_or3_b32 v{tmp}, v{tmp}, v{tmp + 1}, v{tmp + 2}", f"v_or_b32 v{tmp}, v{tmp}, v{tmp + 3}",
                f"v_cmp_ne_u32 vcc, 0, v{tmp}"]

    def poll_block(addr_v, n4, sleep=opt.get('sleep', 8)):
        lp = g.newlab("Lpoll")
        dn = g.newlab("Lpd")
        tmp = vFL
        e(f"s_mov_b32 {sCNT}, 0x4000")
        g.lab(lp)
        if n4:
            e(f"buffer_load_dwordx4 {vr(tmp, 4)}, v{addr_v}, {SWS}, 0 offen sc1")
            e("s_waitcnt vmcnt(0)")
            for x in check4(tmp):
                e(x)
        else:
            e(f"buffer_load_dword v{tmp}, v{addr_v}, {SWS}, 0 offen sc1")
            e("s_waitcnt vmcnt(0)")
            e(f"v_cmp_ne_u32 vcc, v{vTAG}, v{tmp}")
        e(f"s_cbranch_vccz {dn}")
        e(f"s_sleep {sleep}")
        e(f"s_sub_u32 {sCNT}, {sCNT}, 1")
        e(f"s_cbranch_scc0 {lp}")
        g.lab(dn)

    def flag_store(soff):
        e(f"buffer_store_dword v{vTAG}, v{vL0}, {SWS}, {soff} offen sc1")

    def wd_load(phi):
        dst = ar(4 * phi, 4) if phi < 64 else vr(vWDV + 4 * (phi - 64), 4)
        pre = []
        if phi >= 65:
            if phi == 65 or phi == 68:
                pre.append(f"s_add_u32 {sT5}, {sWDS}, {(phi // 4) * 4096}")
                pre.append(f"s_cmp_lt_u32 {sW}, 2\ns_cselect_b32 {sT5}, {sT5}, {OOB}")
        elif phi % 4 == 0:
            pre.append(f"s_add_u32 {sT5}, {sWDS}, {(phi // 4) * 4096}")
        return pre + [("vm", f"buffer_load_dwordx4 {dst}, v1, {SWS}, {sT5} offen offset:{(phi % 4) * 1024} sc1", ("wd", phi))]

    def u_loads(cpreg, va):
        return [f"v_accvgpr_read_b32 v{va}, a{AS2 + 23}",
                f"s_mul_i32 {sF0}, {sW}, {64 * 10240}",
                f"s_lshl_b32 {sF1}, {cpreg}, 5",
                f"s_add_u32 {sF0}, {sF0}, {sF1}",
                f"s_add_u32 {sF0}, {sF0}, {XNT}",
                f"s_add_u32 {sF1}, {sF0}, {32 * 10240}",
                ("vm", f"buffer_load_dwordx4 {vr(vU, 4)}, v{va}, {SWS}, {sF0} offen sc1", "u"),
                ("vm", f"buffer_load_dwordx4 {vr(vU + 4, 4)}, v{va}, {SWS}, {sF1} offen sc1", "u")]

    def tab_units():
        out = []
        for q in range(12):
            if q % 4 == 0:
                out.append(f"s_mul_i32 {sT4}, {sW}, 12288\ns_add_u32 {sT4}, {sT4}, L_tab - L_pc + {1024 * q}")
            dst = ar(AS2 + 4 * q, 4) if q < 6 else ar(AST + 8 + 4 * (q - 6), 4)
            out.append(("vm", f"buffer_load_dwordx4 {dst}, v1, s[88:91], {sT4} offen offset:{1024 * (q % 4)}", "tab"))
        return out

    def table_code(TB):
        def put(i, src):
            e(f"v_lshl_add_u32 v{src}, v{src}, 2, {sF2}")
            e(f"v_accvgpr_write_b32 a{AST + i}, v{src}")
        e(f"s_mul_i32 {sF2}, {sC}, {TC}")
        e(f"s_add_u32 {sF2}, {sF2}, {TB + 4}")
        e("v_lshrrev_b32 v4, 4, v0")
        e(f"s_lshl_b32 {sF1}, {sRHO}, 2")
        e(f"v_add_u32 v4, {sF1}, v4")
        e("v_and_b32 v5, 15, v0")
        DUM = 645
        e("v_cmp_eq_u32 s[54:55], 2, v4")
        e("v_cmp_eq_u32 s[56:57], 3, v4")
        e("v_cmp_eq_u32 s[58:59], 4, v4")
        e("v_cmp_lt_u32 vcc, 4, v4")
        e("v_mov_b32 v6, 8")
        e("v_cndmask_b32 v6, v6, 4, s[54:55]")
        e("v_cndmask_b32 v6, v6, 2, s[56:57]")
        e("v_cndmask_b32 v6, v6, 1, s[58:59]")
        e("v_cndmask_b32 v6, v6, 0, vcc")
        e("v_mul_u32_u24 v7, v6, v5")
        e("v_lshlrev_b32 v8, 4, v6")
        for i in range(4):
            e(f"v_lshl_add_u32 v9, v4, 2, {i}")
            for sreg, val in (("s[54:55]", 256 + i), ("s[56:57]", 384 + 64 * (i >> 1) + (i & 1)), ("s[58:59]", 512 + 32 * i), ("vcc", DUM)):
                e(f"v_mov_b32 v10, {val}")
                e(f"v_cndmask_b32 v9, v9, v10, {sreg}")
            e("v_add_u32 v9, v9, v7")
            e("v_add_u32 v11, v9, v8")
            if i == 0:
                e("v_lshl_add_u32 v6, v4, 4, v5")
                e("v_mov_b32 v10, 80")
                e("v_cmp_eq_u32 s[60:61], v10, v6")
                e("v_mov_b32 v10, 640")
                e("s_nop 0")
                e("v_cndmask_b32 v9, v9, v10, s[60:61]")
            put(i, 9)
            put(4 + i, 11)

    def gather_items(TB):
        it = [f"s_mul_i32 {sF2}, {sC}, {TC}", f"s_add_u32 {sF2}, {sF2}, {TB + 4}",
              f"s_lshl_b32 {sF1}, {sRHO}, 10", f"s_sub_u32 {sF1}, 2047, {sF1}", "v_lshlrev_b32 v12, 3, v0",
              f"v_sub_u32 v12, {sF1}, v12", f"s_movk_i32 {sF1}, 128"]
        for ch in range(2):
            for k in range(11):
                it += [f"v_subrev_u32 v2, {512 * ch + k}, v12", "v_max_i32 v3, 0, v2", "v_cvt_f32_u32 v3, v3",
                       f"v_med3_i32 v2, v2, -1, {sF1}", "v_cvt_pk_bf16_f32 v3, v3, 0", "v_subrev_u32 v3, 0x4280, v3",
                       "v_max_i32 v2, v2, v3", f"v_lshl_add_u32 v2, v2, 2, {sF2}",
                       f"v_accvgpr_write_b32 a{AST + 8 + 11 * ch + k}, v2"]
        return it

    def addr_items(XYB, TB):
        it = []
        A = it.append
        def st(i, r):
            A(f"v_accvgpr_write_b32 a{AS2 + i}, v{r}")
        A(f"s_mul_i32 {sF0}, {sC}, {XYC}")
        A(f"s_add_u32 {sF0}, {sF0}, {XYB}")
        A(f"v_lshl_add_u32 v2, v0, 3, {sF0}")
        st(0, 2)
        A("v_and_b32 v12, 15, v0")
        A("v_lshrrev_b32 v13, 4, v0")
        A(f"v_mul_u32_u24 v2, {XYP}, v12")
        A("v_lshl_add_u32 v2, v13, 4, v2")
        A(f"v_add_u32 v3, {sF0}, v2")
        st(2, 3)
        A(f"s_mul_i32 {sF1}, {sRHO}, {16 * XYP}")
        A(f"v_add_u32 v3, {sF1}, v3")
        st(1, 3)
        A(f"s_mul_i32 {sF2}, {sC}, {TC}")
        A(f"s_add_u32 {sF2}, {sF2}, {TB}")
        A(f"v_mov_b32 v2, {sF2}")
        st(6, 2)
        A("EARLY_END")
        A(f"s_mul_i32 {sF0}, {sW}, 14")
        A(f"s_cmp_eq_u32 {sW}, 3\ns_cselect_b32 {sF1}, 1, 0")
        A(f"s_sub_u32 {sF0}, {sF0}, {sF1}")
        A(f"s_mul_i32 {sF1}, {sDT}, 54")
        A(f"s_add_u32 {sF1}, {sF0}, {sF1}")
        A(f"s_mul_i32 {sF1}, {sF1}, 5120")
        A(f"s_add_u32 {sWDS}, {sF1}, {WDP}")
        for k in range(4):
            A(f"s_add_u32 {sF1}, {sW}, {k + 1}")
            A(f"s_and_b32 {sF1}, {sF1}, 3")
            A(f"s_lshl_b32 {sF2}, {sLT}, 2")
            A(f"s_add_u32 {sF1}, {sF1}, {sF2}")
            A(f"s_mul_i32 {sF1}, {sF1}, 54")
            A(f"s_add_u32 {sF1}, {sF1}, {sF0}")
            A(f"s_lshl_b32 {sF1}, {sF1}, 10")
            A(f"s_add_u32 s{sG2 + 4 * k}, {sF1}, {HB}")
            for q in range(1, 4):
                A(f"s_add_u32 s{sG2 + 4 * k + q}, s{sG2 + 4 * k}, {4096 * q}")
        A(f"s_lshl_b32 {sXO}, {sLT}, 2")
        A(f"s_add_u32 {sXO}, {sXO}, {sW}")
        A(f"s_mul_i32 {sXO}, {sXO}, {16 * 1280}")
        A(f"s_mul_i32 {sF0}, {sDT}, 160")
        A(f"s_add_u32 {sXO}, {sXO}, {sF0}")
        A(f"s_mul_i32 {sXT}, {sW}, 3072")
        A(f"s_add_u32 {sXT}, {sXT}, {XTB}")
        A(f"s_mul_i32 {sSTO}, {sDT}, 80")
        A(f"s_lshl_b32 {sSTO}, {sSTO}, 12")
        A(f"s_lshl_b32 {sF0}, {sLT}, 2")
        A(f"s_add_u32 {sF0}, {sF0}, {sW}")
        A(f"s_lshl_b32 {sF0}, {sF0}, 5")
        A(f"s_add_u32 {sSTO}, {sSTO}, {sF0}")
        A(f"s_add_u32 {sSTO}, {sSTO}, {ST}")
        A(("wvm", "tab"))
        A(f"s_lshl_b32 {sF0}, {sLT}, 12")
        A(f"s_add_u32 {sF0}, {sF0}, {HF}")
        A("v_min_u32 v2, 26, v0")
        A(f"v_lshl_add_u32 v2, v2, 7, {sF0}")
        st(21, 2)
        A(f"s_mul_i32 {sF0}, {sDT}, {40 * 128}")
        A(f"s_add_u32 {sF0}, {sF0}, {SF}")
        A("v_min_u32 v2, 39, v0")
        A(f"v_lshl_add_u32 v2, v2, 7, {sF0}")
        st(22, 2)
        k_ = it.index("EARLY_END")
        return it[:k_], it[k_ + 1:]

    e("s_cmp_ge_u32 s2, 256")
    e("s_cbranch_scc1 L_end")
    if diag:
        e("s_memrealtime s[92:93]")
    if opt.get("dbg"):
        e("s_mov_b64 s[100:101], s[0:1]")
        g.sfree = [92]
    e("s_getpc_b64 s[88:89]")
    g.lab("L_pc")
    e("s_load_dwordx2 s[4:5], s[0:1], 0")
    e("s_load_dwordx2 s[16:17], s[0:1], 104")
    e("s_load_dwordx2 s[8:9], s[0:1], 64")
    e("s_load_dwordx2 s[12:13], s[0:1], 72")
    e("s_load_dwordx4 s[28:31], s[0:1], 8")
    e("s_load_dwordx4 s[32:35], s[0:1], 24")
    e("s_load_dwordx4 s[36:39], s[0:1], 40")
    e("s_load_dwordx4 s[64:67], s[0:1], 80")
    NSP = opt.get("nsp", 0)
    for i in range(NSP):
        e(f"s_load_dword s{66 + i}, s[88:89], {256 + 128 * i}")
    e("v_lshrrev_b32 v2, 6, v0")
    e("v_and_b32 v3, 15, v0")
    e("s_mov_b32 s90, L_codeend - L_pc")
    e("s_mov_b32 s91, 0x20000")
    e("v_lshl_add_u32 v3, v2, 4, v3")
    e(f"v_readfirstlane_b32 {sW}, v2")
    e("v_lshlrev_b32 v3, 7, v3")
    if opt.get("cpf0", 1):
        e(f"buffer_load_dword v{vFL + 3}, v3, s[88:91], 0 offen offset:{min(256 + 128 * NSP, 4000)}")
        g.vm.append("cpf")
    e("v_and_b32 v0, 63, v0")
    e("s_mov_b32 s6, 2621440\ns_mov_b32 s7, s91")
    e("v_lshrrev_b32 v2, 5, v0")
    e("v_and_b32 v3, 31, v0")
    e("v_mul_u32_u24 v2, 0x500, v2")
    e(f"s_lshl2_add_u32 {sT0}, s2, {sW}")
    e("v_lshl_add_u32 v2, v3, 3, v2")
    e(f"s_mulk_i32 {sT0}, 2560")
    e(f"s_lshr_b32 {sQ}, s2, 3")
    e(f"s_bfe_u32 {sT1}, s2, 0x20001")
    e(f"s_and_b32 {sM}, s2, 1")
    e(f"s_and_b32 {sT2}, {sQ}, 3")
    e(f"s_lshr_b32 {sDT}, {sQ}, 2")
    e(f"s_lshl2_add_u32 {sM}, {sM}, {sT2}")
    e(f"s_mul_i32 {sFT}, {sT1}, 7")
    e(f"s_add_u32 {sFT}, {sFT}, {sDT}")
    e(f"s_mul_i32 {sCP}, {sM}, 27")
    e(f"s_add_u32 {sCP}, {sCP}, {sFT}")
    e(f"s_lshr_b32 {sC}, {sW}, 1")
    e(f"s_lshl1_add_u32 {sT1}, {sCP}, {sC}")
    e(f"s_lshl_b32 {sT1}, {sT1}, 8")
    e(f"v_lshl_add_u32 v12, v0, 2, {sT1}")
    e(f"s_lshl_b32 {sT1}, {sCP}, 2")
    e(f"v_mov_b32 v13, {sT1}")
    e(f"s_cmp_lt_u32 {sDT}, 7")
    e(f"s_cselect_b32 {sT3}, {sFT}, 27")
    e(f"s_cmp_lt_u32 {sT3}, 27")
    e(f"s_cselect_b32 {sISG1}, 1, 0")
    e("s_waitcnt lgkmcnt(0)")
    for i in range(opt.get("ns2", 0)):
        e(f"s_load_dword s93, s[88:89], {opt.get('ns2o', 384) + 128 * i}")
    LX = 232
    for q in range(5):
        g.vmem(f"buffer_load_dwordx2 {vr(LX + 2 * q, 2)}, v2, {SX}, {sT0} offen offset:{256 * q}", "ln")
    e("s_cbranch_scc0 L_spare")
    if diag:
        e("v_mov_b32 v127, 0")
        e("v_writelane_b32 v127, s92, 60")
    stamp("start")
    APAR = 160
    for k, p in enumerate((P_LAR, P_AIM, P_CRE, P_CIM)):
        g.vmem(f"global_load_dword a{APAR + k}, v12, {p}{NT}", "par")
    g.vmem(f"global_load_dword a{APAR + 4}, v13, {P_LDT}", "par")
    g.vmem(f"global_load_dword a{APAR + 5}, v13, {P_DSK}", "par")
    if diag and not opt.get("dbg") and False:
        e("s_memrealtime s[100:101]\ns_waitcnt lgkmcnt(0)\nv_writelane_b32 v127, s100, 56")
    if opt.get("coop", 1):
        e(f"s_mul_i32 {sT1}, {sDT}, 37")
        e(f"s_mul_i32 {sT3}, {sW}, 10")
        e(f"s_lshl_b32 {sT4}, {sM}, 8")
        e(f"s_add_u32 {sT1}, {sT1}, {sT3}")
        e(f"s_add_u32 {sT1}, {sT1}, {sT4}")
        e("v_min_u32 v4, 9, v0")
        e(f"s_mulk_i32 {sT1}, 1280")
        e("v_mul_u32_u24 v4, 0x500, v4")
        e(f"s_cmp_eq_u32 {sC}, 0\ns_cselect_b32 s96, s8, s12\ns_cselect_b32 s97, s9, s13")
        for q in range(3):
            g.vmem(f"buffer_load_dword v{vFL + 4}, v4, {SX}, {sT1} offen offset:{128 * q}", "coop")
        e(f"s_and_b32 {sT1}, {sW}, 1")
        e(f"s_lshl1_add_u32 {sT1}, {sT2}, {sT1}")
        e("v_min_u32 v5, 23, v0")
        e(f"s_mul_i32 {sT1}, {sT1}, {24 * 3456}")
        e(f"s_lshl_b32 {sT3}, {sFT}, 7")
        e("v_mul_u32_u24 v5, 3456, v5")
        e(f"s_add_u32 {sT1}, {sT1}, {sT3}")
        e("s_mov_b32 s98, 2211840\ns_mov_b32 s99, 0x20000")
        g.vmem(f"buffer_load_dword v{vFL + 4}, v5, {STW}, {sT1} offen", "coop")
    e("v_lshrrev_b32 v4, 3, v0")
    e("v_and_b32 v5, 7, v0")
    e("v_lshrrev_b32 v6, 4, v0")
    e("v_mul_u32_u24 v7, 3456, v4")
    e("v_and_b32 v8, 1, v6")
    e("v_lshlrev_b32 v8, 1, v8")
    e("v_xor_b32 v8, v5, v8")
    e(f"v_lshl_add_u32 v{vWO}, v8, 4, v7")
    e(f"s_lshl_b32 {sWM0}, {sW}, 11")
    e(f"s_mul_i32 {sWSO}, {sW}, {16 * 3456}")
    e(f"s_lshl_b32 {sT1}, {sFT}, 7")
    e(f"s_add_u32 {sWSO}, {sWSO}, {sT1}")
    e("v_xor_b32 v8, 4, v8")
    e("v_lshl_add_u32 v8, v8, 4, v7")
    e(f"v_add_u32 v{vWO + 1}, {8 * 3456 - 1024}, v8")
    e("s_mov_b32 s10, 2211840\ns_mov_b32 s11, 0x20000")
    e("s_mov_b32 s14, s10\ns_mov_b32 s15, 0x20000")

    def rest_setup():
        e(f"s_and_b32 {sXCD}, s2, 7")
        e("s_mov_b64 s[24:25], s[64:65]")
        e("s_mov_b64 s[20:21], s[66:67]")
        e("v_lshlrev_b32 v1, 4, v0")
        e(f"s_mov_b32 s18, {WS_END}\ns_mov_b32 s19, 0x20000")
        e(f"v_mov_b32 v{vL0}, {OOB}")
        e(f"v_writelane_b32 v{vL0}, 0, 0")
        e("s_mov_b32 s22, 2621440\ns_mov_b32 s23, 0x20000")
        e("s_mov_b32 s26, 2211840\ns_mov_b32 s27, 0x20000")
        e(f"s_lshl_b32 {sT4}, {sXCD}, 2")
        e(f"s_and_b32 {sT2}, {sQ}, 3")
        if opt.get("map2", 1):
            e(f"s_lshr_b32 {sLT}, {sXCD}, 1")
            e(f"s_and_b32 {sT2}, {sQ}, 7")
            e(f"s_lshl3_add_u32 {sLT}, {sLT}, {sT2}")
            e(f"s_and_b32 {sT2}, {sXCD}, 1")
            e(f"s_lshr_b32 {sDT}, {sQ}, 3")
            e(f"s_lshl2_add_u32 {sDT}, {sT2}, {sDT}")
        else:
            e(f"s_add_u32 {sLT}, {sT4}, {sT2}")
        e(f"s_add_u32 {sT4}, {sT4}, {sQ}")
        e(f"s_sub_u32 {sT4}, {sT4}, 28")
        e(f"s_lshl_b32 {sT5}, {sXCD}, 3")
        e(f"s_add_u32 {sT5}, {sT5}, {sQ}")
        e(f"s_sub_u32 {sT5}, {sT5}, 48")
        e(f"s_cmp_lt_u32 {sXCD}, 6\ns_cselect_b32 {sSP}, {sT4}, {sT5}")
        e(f"s_mul_i32 {sT4}, {sM}, 27")
        e(f"s_add_u32 {sT4}, {sT4}, {sFT}")
        e(f"s_add_u32 {sT5}, {sSP}, 216")
        e(f"s_cmp_lg_u32 {sISG1}, 0\ns_cselect_b32 {sCP}, {sT4}, {sT5}")
        e(f"s_cmp_lt_u32 {sSP}, 24\ns_cselect_b32 {sRND}, 3, 2")
        e(f"s_and_b32 {sRHO}, {sW}, 1")
        e(f"s_lshr_b32 {sC}, {sW}, 1")
        e("v_lshlrev_b32 v10, 21, v0")
        e(f"v_mov_b32 v{vFA}, v1")
        e(f"v_mov_b32 v{vFA + 1}, v1")
        e(f"v_mul_u32_u24 v54, {3456 if opt.get('csc', 1) else 17280}, v4")
        e("v_lshl_add_u32 v54, v5, 4, v54")
        e(f"s_lshl_b32 {sHS0}, {sM}, 1")
        e(f"s_add_u32 {sHS0}, {sHS0}, {sRHO}")
        e(f"s_mul_i32 {sHS0}, {sHS0}, {40 * 3456}")
        e(f"s_lshl_b32 {sT1}, {sFT}, 7")
        e(f"s_add_u32 {sHS0}, {sHS0}, {sT1}")
        e("s_mov_b32 s98, 2211840\ns_mov_b32 s99, 0x20000")
        e(f"s_cmp_eq_u32 {sC}, 0\ns_cselect_b32 s96, s8, s12\ns_cselect_b32 s97, s9, s13")
        e(f"s_lshl_b32 {sT1}, {sQ}, 2")
        e(f"s_add_u32 {sT1}, {sT1}, {sW}")
        e(f"s_mul_i32 {sT1}, {sT1}, 768")
        e(f"s_add_u32 {sT1}, {sT1}, {8192 + min(256 + 128 * NSP, 4000)}")
        e("v_min_u32 v11, 5, v0")
        e("v_lshlrev_b32 v11, 7, v11")

    def rest_loads():
        g.vmem(f"buffer_load_dword v{vTAG}, v{vL0}, {SWS}, 0 offen sc1", "ep")
        g.vmem(f"buffer_load_dword v{vFL + 2}, v11, s[88:91], {sT1} offen", "tlb")
        if opt.get("tlb", 0):
            g.vmem(f"buffer_load_dword v{vFL}, v10, {SWS}, 0 offen", "tlb")
            g.vmem(f"buffer_load_dword v{vFL + 1}, v10, {SOUT}, 0 offen", "tlb")

    def dma_units(stage):
        sb = (stage % 3) * SLOT
        out = []
        for mat in range(2):
            out.append(("m0", f"s_add_u32 m0, {sWM0}, {sb + mat * 8192}"))
            for half in range(2):
                o = f" offset:{1024 * half}" if half else ""
                out.append(("vm", f"buffer_load_dwordx4 v{vWO + half}, {SWG if mat == 0 else SWU}, {sWSO} offen{o} lds", ("dma", stage)))
        for i in range(8):
            if i % 4 == 0:
                out.append(("m0", f"s_add_u32 m0, {sXM0}, {sb + i * 1024}"))
            o = f" offset:{1024 * (i & 3)}" if i & 3 else ""
            out.append(("vm", f"buffer_load_dwordx4 v{vXO + i}, {SX}, {sXS} offen{o} lds", ("dma", stage)))
        out.append(f"s_add_u32 {sXS}, {sXS}, 128")
        out.append(f"s_add_u32 {sWSO}, {sWSO}, {64 * 3456}")
        return out

    def dma_block(stage):
        for u in dma_units(stage):
            if isinstance(u, tuple) and u[0] == "m0":
                e(u[1])
                e("s_nop 0")
            else:
                g.do(u)

    APAR = 160
    def param_units(rnd):
        out = [f"s_add_u32 {sT2}, {sCP}, {40 * rnd}", f"s_min_u32 {sT2}, {sT2}, 319",
               f"s_lshl_b32 {sT1}, {sT2}, 1", f"s_add_u32 {sT1}, {sT1}, {sC}", f"s_lshl_b32 {sT1}, {sT1}, 8",
               f"v_lshl_add_u32 v12, v0, 2, {sT1}", f"s_lshl_b32 {sT1}, {sT2}, 2", f"v_mov_b32 v13, {sT1}"]
        for k, p in enumerate((P_LAR, P_AIM, P_CRE, P_CIM)):
            out.append(("vm", f"global_load_dword a{APAR + 8 * rnd + k}, v12, {p}{NT}", "par"))
        out.append(("vm", f"global_load_dword a{APAR + 8 * rnd + 4}, v13, {P_LDT}", "par"))
        out.append(("vm", f"global_load_dword a{APAR + 8 * rnd + 5}, v13, {P_DSK}", "par"))
        return out

    CSR = [56, 60, 112, 116, 52]
    def csl_units():
        out = []
        for j5 in range(5):
            if opt.get("csc", 1):
                if j5:
                    out.append(f"s_add_u32 {sHS0}, {sHS0}, {8 * 3456}")
                out.append(("vm", f"buffer_load_dwordx4 {vr(CSR[j5], 4)}, v54, {STW}, {sHS0} offen", ("csl", j5)))
                continue
            if j5 in (2, 4):
                out.append(f"s_add_u32 {sHS0}, {sHS0}, {2 * 3456}")
            out.append(("vm", f"buffer_load_dwordx4 {vr(CSR[j5], 4)}, v54, {STW}, {sHS0} offen offset:{(j5 % 2) * 3456}", ("csl", j5)))
        return out
    def emit_units(us):
        for u in us:
            if isinstance(u, tuple) and u[0] == "m0":
                e(u[1])
                e("s_nop 0")
            else:
                g.do(u)

    def split_units(us, n):
        c = 0
        for ix, u in enumerate(us):
            if isinstance(u, tuple) and u[0] == "vm":
                c += 1
                if c == n:
                    return us[:ix + 1], us[ix + 1:]
        return us, []

    def run_items(items):
        for it in items:
            g.do(it)

    F, S, Dv, SO, UO = 140, 160, 164, 184, 188
    def ln_code(bar=False):
        for q in range(10):
            e(f"v_lshlrev_b32 v{F + 2 * q}, 16, v{LX + q}")
            e(f"v_and_b32 v{F + 2 * q + 1}, 0xffff0000, v{LX + q}")
        e(f"v_pk_add_f32 {vr(S, 2)}, {vr(F, 2)}, {vr(F + 2, 2)}")
        e(f"v_pk_add_f32 {vr(S + 2, 2)}, {vr(F + 4, 2)}, {vr(F + 6, 2)}")
        for q in range(4, 10, 2):
            e(f"v_pk_add_f32 {vr(S, 2)}, {vr(S, 2)}, {vr(F + 2 * q, 2)}")
            e(f"v_pk_add_f32 {vr(S + 2, 2)}, {vr(S + 2, 2)}, {vr(F + 2 * q + 2, 2)}")
        e(f"v_pk_add_f32 {vr(S, 2)}, {vr(S, 2)}, {vr(S + 2, 2)}")
        e(f"v_add_f32 v{S}, v{S}, v{S + 1}")
        red("v_add_f32", S, S + 1, False)
        e(f"v_mul_f32 v{S}, {hex(f2u(1.0 / 640))}, v{S}")
        for q in range(10):
            e(f"v_pk_add_f32 {vr(Dv + 2 * q, 2)}, {vr(F + 2 * q, 2)}, {vr(S, 2)} op_sel_hi:[1,0] neg_lo:[0,1] neg_hi:[0,1]")
        e(f"v_pk_mul_f32 {vr(S + 2, 2)}, {vr(Dv, 2)}, {vr(Dv, 2)}")
        e(f"v_pk_mul_f32 {vr(S + 24, 2)}, {vr(Dv + 2, 2)}, {vr(Dv + 2, 2)}")
        for q in range(2, 10):
            r = S + 2 if q % 2 == 0 else S + 24
            e(f"v_pk_fma_f32 {vr(r, 2)}, {vr(Dv + 2 * q, 2)}, {vr(Dv + 2 * q, 2)}, {vr(r, 2)}")
        e(f"v_pk_add_f32 {vr(S + 2, 2)}, {vr(S + 2, 2)}, {vr(S + 24, 2)}")
        e(f"v_add_f32 v{S + 2}, v{S + 2}, v{S + 3}")
        red("v_add_f32", S + 2, S + 3, False)
        e(f"v_mul_f32 v{S + 2}, {hex(f2u(1.0 / 640))}, v{S + 2}")
        bf16round(S + 2)
        e(f"v_add_f32 v{S + 2}, {hex(f2u(1e-5))}, v{S + 2}")
        bf16round(S + 2)
        e(f"v_sqrt_f32 v{S + 2}, v{S + 2}")
        bf16round(S)
        bf16round(S + 2)
        e(f"v_rcp_f32 v{S + 3}, v{S + 2}")
        e(f"v_sub_f32 v{SO}, 0, v{S}")
        e(f"v_mul_f32 v{SO + 3}, v{S + 2}, v{S + 2}")
        e(f"v_mul_f32 v{S + 1}, v{S + 3}, v{S + 3}")
        e(f"v_mul_f32 v{SO + 2}, {hex(f2u(C0))}, v{S + 3}")
        e(f"v_mul_f32 v{S + 1}, v{S + 1}, v{S + 3}")
        e(f"v_mul_f32 v{S + 2}, v{SO}, v{S + 3}")
        e(f"v_mul_f32 v{SO + 1}, {hex(f2u(C1))}, v{S + 1}")
        for q in range(10):
            e(f"v_pk_fma_f32 {vr(Dv + 2 * q, 2)}, {vr(F + 2 * q, 2)}, {vr(S + 2, 2)}, {vr(S + 2, 2)} op_sel:[0,1,0] op_sel_hi:[1,1,0]")
        for q in range(10):
            e(f"v_cvt_pk_f16_f32 v{UO + q}, v{Dv + 2 * q}, v{Dv + 2 * q + 1}")
        e("v_lshrrev_b32 v2, 5, v0")
        e(f"v_mul_u32_u24 v2, {LNP}, v2")
        e("v_and_b32 v3, 31, v0")
        e("v_lshl_add_u32 v2, v3, 3, v2")
        e(f"s_mul_i32 {sT1}, {sW}, {2 * LNP}")
        e(f"s_add_u32 {sT1}, {sT1}, {LNB}")
        e(f"v_add_u32 v2, {sT1}, v2")
        if bar:
            e("s_barrier")
        for q in range(5):
            g.lds(f"ds_write_b64 v2, {vr(UO + 2 * q, 2)} offset:{256 * q}", "lnw")
        e("v_lshrrev_b32 v4, 1, v0")
        e(f"v_mov_b32 v5, {OOB}")
        e("v_cmp_ne_u32 vcc, 0, v3")
        e(f"s_lshl_b32 {sT1}, s2, 2")
        e(f"s_add_u32 {sT1}, {sT1}, {sW}")
        e("v_cndmask_b32 v4, v4, v5, vcc")
        e(f"s_lshl_b32 {sT1}, {sT1}, 5")
        e(f"s_add_u32 {sT1}, {sT1}, {STATS}")
        e("v_bfe_u32 v6, v0, 2, 2")
        e(f"v_mul_u32_u24 v2, {LNP}, v6")
        e("v_lshrrev_b32 v3, 4, v0")
        e("v_lshl_add_u32 v2, v3, 5, v2")
        e("v_and_b32 v7, 3, v0")
        e("v_lshl_add_u32 v2, v7, 3, v2")
        e(f"s_lshl_b32 {sT2}, {sW}, 7")
        e(f"s_add_u32 {sT2}, {sT2}, {LNB}")
        e(f"v_add_u32 v2, {sT2}, v2")

    def ln_tail():
        g.vmem(f"buffer_store_dwordx4 {vr(SO, 4)}, v4, {SWS}, {sT1} offen sc1", "lnst")
        g.wlg0()
        e("s_barrier")
        TR = 200
        for j in range(3):
            for h in range(2):
                g.lds(f"ds_read_b64_tr_b16 {vr(TR + 4 * j + 2 * h, 2)}, v2 offset:{512 * j + 4 * LNP * h}", ("lntr", j))
        e(f"s_mul_i32 {sT1}, s2, 10240")
        e(f"s_lshl_b32 {sT2}, {sW}, 10")
        e(f"s_add_u32 {sT1}, {sT1}, {sT2}")
        e(f"s_add_u32 {sT1}, {sT1}, {XNT}")
        e(f"s_add_u32 {sT2}, {sT1}, 4096")
        e(f"s_add_u32 {sT3}, {sT1}, 8192")
        e(f"s_cmp_lt_u32 {sW}, 2")
        e(f"s_cselect_b32 {sT3}, {sT3}, {OOB}")
        for j, so in enumerate((sT1, sT2, sT3)):
            g.wlg(("lntr", j))
            g.vmem(f"buffer_store_dwordx4 {vr(TR + 4 * j, 4)}, v1, {SWS}, {so} offen sc1", "lnst")

    AK = 46
    vKA_A, vKA_B, vZ, vRW, vUW, vYS, vFB, vGB = range(AK, AK + 8)
    KA, CC, TM = 128, 152, 136
    WA = KA + 6
    SIG, OMG = KA + 2, KA + 4

    def cexp(dst, p, t):
        for m in range(2):
            e(f"v_mul_f32 v{t + m}, {hex(f2u(float(p)))}, v{SIG + m}")
            e(f"v_mul_f32 v{t + 2 + m}, {hex(f2u(float(p)))}, v{OMG + m}")
        for m in range(2):
            e(f"v_fract_f32 v{t + 2 + m}, v{t + 2 + m}")
        for m in range(2):
            e(f"v_exp_f32 v{t + m}, v{t + m}")
            e(f"v_cos_f32 v{dst + 2 * m}, v{t + 2 + m}")
            e(f"v_sin_f32 v{dst + 2 * m + 1}, v{t + 2 + m}")
        e("s_nop 0")
        align()
        for m in range(2):
            e(f"v_pk_mul_f32 {vr(dst + 2 * m, 2)}, {vr(dst + 2 * m, 2)}, {vr(t, 2)} op_sel:[0,{m}] op_sel_hi:[1,{m}]")

    def cmul(dst, P, Q, t):
        for m in range(2):
            e(f"v_pk_mul_f32 {vr(t + 2 * m, 2)}, {vr(P + 2 * m, 2)}, {vr(Q + 2 * m, 2)} op_sel_hi:[0,1]")
        for m in range(2):
            e(f"v_pk_fma_f32 {vr(dst + 2 * m, 2)}, {vr(P + 2 * m, 2)}, {vr(Q + 2 * m, 2)}, {vr(t + 2 * m, 2)} op_sel:[1,1,0] op_sel_hi:[1,0,1] neg_lo:[0,1,0]")

    prow = [0]

    def put(src, row, neg, lastrow=False):
        o = 144 + 2 * (row % 4)
        ng = "-" if neg else ""
        if src is not None:
            e(f"v_cvt_pk_f16_f32 v{o}, v{src}, {ng}v{src + 1}")
            e(f"v_cvt_pk_f16_f32 v{o + 1}, v{src + 2}, {ng}v{src + 3}")
        if row % 2 == 1:
            o0 = ((row - 1) % 4) * 68
            g.lds(f"ds_write2_b64 v{WA}, {vr(o - 2, 2)}, {vr(o, 2)} offset0:{o0} offset1:{o0 + 68}", "xy")
            if row % 4 == 3:
                e(f"v_add_u32 v{WA}, {4 * XYP}, v{WA}")
        elif lastrow:
            g.lds(f"ds_write_b64 v{WA}, {vr(o, 2)} offset:{(row % 4) * XYP}", "xy")


    def rb1():
        e(f"s_mov_b32 {sKR}, 0")
        for i in range(8):
            e(f"v_accvgpr_read_b32 v{SC + i}, a{AST + i}")
        for i in (0, 1, 5):
            e(f"v_accvgpr_read_b32 v{AK + i}, a{AS2 + 1 + i}")

    def tag_code():
        e(f"v_readfirstlane_b32 {sTAG}, v{vTAG}")
        e("s_nop 3")
        e(f"s_mul_i32 {sTAG}, {sTAG}, 1664525")
        e(f"s_add_u32 {sTAG}, {sTAG}, 1013904223")
        e(f"v_mov_b32 v{vTAG}, {sTAG}")

    def k_setup():
        for k6 in (4, 5, 0, 1, 2, 3):
            e(f"v_accvgpr_read_b32 v{vPAR + k6}, a{APAR + k6}")
        e(f"v_accvgpr_read_b32 v{WA}, a{AS2}")
        e(f"s_lshl_b32 {sT1}, {sC}, 4")
        e(f"v_lshrrev_b32 v{KA}, {sT1}, v{vPAR + 4}")
        e(f"v_lshlrev_b32 v{KA}, 16, v{KA}")
        e(f"v_mul_f32 v{KA}, {hex(f2u(LOG2E))}, v{KA}")
        e(f"v_exp_f32 v{KA}, v{KA}")
        e(f"v_lshrrev_b32 v{KA + 7}, {sT1}, v{vPAR + 5}")
        e(f"v_lshlrev_b32 v{KA + 7}, 16, v{KA + 7}")
        bf16round(KA)
        e(f"v_lshlrev_b32 v{KA + 2}, 16, v{vPAR}")
        e(f"v_and_b32 v{KA + 3}, 0xffff0000, v{vPAR}")
        e(f"v_mul_f32 v{KA + 2}, {hex(f2u(LOG2E))}, v{KA + 2}")
        e(f"v_mul_f32 v{KA + 3}, {hex(f2u(LOG2E))}, v{KA + 3}")
        e(f"v_exp_f32 v{KA + 2}, v{KA + 2}")
        e(f"v_exp_f32 v{KA + 3}, v{KA + 3}")
        e(f"v_lshlrev_b32 v{KA + 4}, 16, v{vPAR + 1}")
        e(f"v_and_b32 v{KA + 5}, 0xffff0000, v{vPAR + 1}")
        e(f"v_cvt_pk_bf16_f32 v{KA + 1}, v{KA + 2}, v{KA + 3}")
        e(f"v_lshlrev_b32 v{CC}, 16, v{vPAR + 2}")
        e(f"v_lshlrev_b32 v{CC + 1}, 16, v{vPAR + 3}")
        e(f"v_and_b32 v{CC + 2}, 0xffff0000, v{vPAR + 2}")
        e(f"v_and_b32 v{CC + 3}, 0xffff0000, v{vPAR + 3}")
        e(f"v_lshlrev_b32 v{KA + 2}, 16, v{KA + 1}")
        e(f"v_and_b32 v{KA + 3}, 0xffff0000, v{KA + 1}")
        for m in range(2):
            e(f"v_mul_f32 v{KA + 2 + m}, v{KA + 2 + m}, v{KA}")
            e(f"v_mul_f32 v{KA + 4 + m}, v{KA + 4 + m}, v{KA}")
        for m in range(2):
            e(f"v_mul_f32 v{KA + 2 + m}, {hex(f2u(-LOG2E))}, v{KA + 2 + m}")
            e(f"v_mul_f32 v{KA + 4 + m}, {hex(f2u(1.0 / (2 * math.pi)))}, v{KA + 4 + m}")

    def k_role0():
        W8, W16, T2 = 152, 156, 140
        ch = [[160, 164], [168, 172]]
        e(f"v_add_u32 v{WA}, {YR0 * XYP}, v{WA}")
        cexp(W8, 8, TM)
        e("v_mov_b32 v144, 0x3c00")
        e("v_mov_b32 v145, 0x3c00")
        cmul(W16, W8, W8, TM)
        put(W8, 33, False)
        cur = [W16, W8]
        for j in range(2, 32, 2):
            n0 = cur[0] if j == 2 else ch[0][(j // 2) & 1]
            n1 = ch[1][(j // 2) & 1]
            for m in range(2):
                if j > 2:
                    e(f"v_pk_mul_f32 {vr(TM + 2 * m, 2)}, {vr(cur[0] + 2 * m, 2)}, {vr(W16 + 2 * m, 2)} op_sel_hi:[0,1]")
                e(f"v_pk_mul_f32 {vr(T2 + 2 * m, 2)}, {vr(cur[1] + 2 * m, 2)}, {vr(W16 + 2 * m, 2)} op_sel_hi:[0,1]")
            for m in range(2):
                if j > 2:
                    e(f"v_pk_fma_f32 {vr(n0 + 2 * m, 2)}, {vr(cur[0] + 2 * m, 2)}, {vr(W16 + 2 * m, 2)}, {vr(TM + 2 * m, 2)} op_sel:[1,1,0] op_sel_hi:[1,0,1] neg_lo:[0,1,0]")
                e(f"v_pk_fma_f32 {vr(n1 + 2 * m, 2)}, {vr(cur[1] + 2 * m, 2)}, {vr(W16 + 2 * m, 2)}, {vr(T2 + 2 * m, 2)} op_sel:[1,1,0] op_sel_hi:[1,0,1] neg_lo:[0,1,0]")
            put(n0, 32 + j, False)
            put(n1, 33 + j, False)
            cur = [n0, n1]

    def k_role1():
        MX = 136
        e(f"v_max_f32 v{MX}, |v{CC}|, |v{CC + 1}|")
        e(f"v_max3_f32 v{MX}, |v{CC + 2}|, |v{CC + 3}|, v{MX}")
        red("v_max_f32", MX, MX + 1, True)
        e(f"v_frexp_exp_i32_f32 v{MX}, v{MX}")
        e(f"v_add_f32 v{KA}, v{KA}, v{KA}")
        e(f"v_ldexp_f32 v{MX + 2}, v{KA}, v{MX}")
        e(f"v_mov_b32 v{MX + 3}, v{KA + 7}")
        e(f"v_sub_u32 v{MX}, 0, v{MX}")
        for i in range(4):
            e(f"v_ldexp_f32 v{CC + i}, v{CC + i}, v{MX}")
        e(f"v_add_u32 v{MX + 1}, {sKR}, v{vYS}")
        e(f"v_mov_b32 v{MX}, 0")
        g.lds(f"ds_write_b64 v{MX + 1}, {vr(MX + 2, 2)} offset:{YSO}", "xy")
        g.lds(f"ds_write_b32 v{MX + 1}, v{MX}", "xy")
        Z, Q, Q4 = 156, 160, 164
        cexp(Z, 1, TM)
        cexp(Q, 256, TM)
        cexp(Q4, 1024, TM)
        X = [168 + 4 * i for i in range(8)]
        X[0] = CC
        put(CC, 0, True)
        for s in range(1, 8):
            cmul(X[s], X[s - 1], Z, TM)
            put(X[s], s, True)
        R8 = [200 + 4 * i for i in range(4)]
        for s in range(4):
            cmul(R8[s], X[2 * s], Q, TM)
            put(R8[s], 8 + s, True)
        R12 = [216, 220]
        for s in range(2):
            cmul(R12[s], R8[2 * s], Q, TM)
            put(R12[s], 12 + s, True)
        for s in range(2):
            cmul(X[1 + 2 * s], R12[s], Q, TM)
            put(X[1 + 2 * s], 14 + s, True)
        cmul(R8[0], CC, Q4, TM)
        put(R8[0], 16, True)
        cmul(R8[1], R8[0], Q, TM)
        put(R8[1], 17, True)
        cmul(R8[3], R8[1], Q, TM)
        put(R8[3], 18, True)
        cmul(R8[1], R8[3], Q, TM)
        put(R8[1], 19, True)
        cmul(R8[2], R8[0], Q4, TM)
        put(R8[2], 20, True, lastrow=True)

    def kgen(sfx, units, every):
        k_setup()
        e(f"s_cmp_lg_u32 {sRHO}, 0")
        e(f"s_cbranch_scc1 L_role1{sfx}")
        vm_s, lg_s = list(g.vm), list(g.lg)
        us = list(units)
        interleave(k_role0, us, every)
        emit_units(us)
        e(f"s_branch L_kbar{sfx}")
        align()
        g.lab(f"L_role1{sfx}")
        g.vm, g.lg = vm_s, lg_s
        us = list(units)
        interleave(k_role1, us, every)
        emit_units(us)
        g.lab(f"L_kbar{sfx}")
        stamp("kvalu_end")

    def kgen_mfma():
        KF = 64
        for ks in range(8):
            g.lds(f"ds_read_b128 {vr(KF + 4 * ks, 4)}, v{vKA_A} offset:{64 * ks}", ("ka", ks))
            g.lds(f"ds_read_b128 {vr(128 + 4 * ks, 4)}, v{vKA_B} offset:{YR0 * XYP + 64 * ks}", ("kb0", ks))
            g.lds(f"ds_read_b128 {vr(160 + 4 * ks, 4)}, v{vKA_B} offset:{(YR0 + 16) * XYP + 64 * ks}", ("kb1", ks))
        KD = 96
        for ks in range(8):
            g.wlg(("kb1", ks))
            e(f"v_mfma_f32_16x16x32_f16 {vr(KD, 4)}, {vr(KF + 4 * ks, 4)}, {vr(128 + 4 * ks, 4)}, {'0' if ks == 0 else vr(KD, 4)}")
            e(f"v_mfma_f32_16x16x32_f16 {vr(KD + 4, 4)}, {vr(KF + 4 * ks, 4)}, {vr(160 + 4 * ks, 4)}, {'0' if ks == 0 else vr(KD + 4, 4)}")
        g.nop(7)
        for i in range(8):
            g.lds(f"ds_write_b32 v{SC + i}, v{KD + i}", "tw")

    vm0 = ["cpf"] + ["ln"] * 5
    u0, u0b = split_units(dma_units(0), opt.get("nf", 4)) if opt.get("nf", 0) else ([], dma_units(0))
    def g1_early():
        e("v_mul_u32_u24 v7, 1280, v4")
        e("v_xor_b32 v8, v5, v6")
        e("v_xor_b32 v9, 4, v8")
        e(f"v_lshl_add_u32 v{vXO}, v8, 4, v7")
        e(f"v_lshl_add_u32 v{vXO + 1}, v9, 4, v7")
        e(f"v_add_u32 v{vXO + 1}, {8 * 1280 - 1024}, v{vXO + 1}")
        e(f"s_lshl2_add_u32 {sXS}, {sM}, {sW}")
        e(f"s_mul_i32 {sXS}, {sXS}, {64 * 1280}")
        e(f"s_lshl_b32 {sXM0}, {sW}, 13")
        e(f"s_add_u32 {sXM0}, {sXM0}, 16384")
        for i in range(2, 8):
            d = 16 * 1280 - 1024 * ((i & 3) - ((i - 2) & 3))
            e(f"v_add_u32 v{vXO + i}, {d}, v{vXO + i - 2}")
        rest_setup()
    interleave(g1_early, u0, opt.get("pe0", 1))
    assert not u0
    e(f"s_mov_b32 {sRND}, 1")
    if not opt.get("rl2", 1):
        rest_loads()
    else:
        e(f"s_mov_b32 {sHS1}, {sT1}")
        e("v_mov_b32 v14, v10\nv_mov_b32 v15, v11")
    if diag and not opt.get("dbg"):
        e("s_memrealtime s[100:101]\ns_waitcnt lgkmcnt(0)\nv_writelane_b32 v127, s100, 57")
    aE, aL = addr_items(XYB_G1, TB_G1)
    table_code(TB_G1)
    run_items(aE)
    rb1()
    if opt.get("rl2", 1):
        e(f"s_mov_b32 {sT1}, {sHS1}")
        e("v_mov_b32 v10, v14\nv_mov_b32 v11, v15")
        rest_loads()
    if diag and not opt.get("dbg"):
        e("s_memrealtime s[100:101]\ns_waitcnt lgkmcnt(0)\nv_writelane_b32 v127, s100, 58")
    g.wvm("ln")
    stamp("par_data")
    u0c, u0d = split_units(u0b, opt.get("nl", 8)) if opt.get("nl", 8) else ([], u0b)
    def ln_late():
        n0_ = len(g.L)
        ln_code()
    if opt.get("lnskip"):
        n0_ = len(g.L)
        ln_code()
        body_ = g.L[n0_:]
        del g.L[n0_:]
        g.L += body_[:opt["lnskip"]]
        interleave(lambda: g.L.extend(body_[opt["lnskip"]:]), u0c, opt.get("pe1", 16))
    else:
        interleave(ln_code, u0c, opt.get("pe1", 16))
    emit_units(u0c)
    ln_tail()
    stamp("ln_done")
    g.wvm("ep")
    tag_code()
    e(f"s_lshl_b32 {sT3}, s2, 2")
    e(f"s_add_u32 {sT3}, {sT3}, {LNF}")
    e(f"s_cmp_eq_u32 {sW}, 0")
    e(f"s_cselect_b32 {sT3}, {sT3}, {OOB}")
    e("s_barrier")
    uK, uR = split_units((u0d + csl_units() + dma_units(1)) if opt.get('csf') else (u0d + dma_units(1) + csl_units()), opt.get("nk", 99))
    kgen("g", uK, opt.get("pek", 11))
    g.wvm("lnst")
    g.wlg0()
    e("s_barrier")
    flag_store(sT3)
    interleave(kgen_mfma, uR, opt.get("pem", 6))
    emit_units(uR)
    stamp("kdone")
    e("v_and_b32 v2, 15, v0")
    e("v_lshrrev_b32 v3, 4, v0")
    e("v_bfe_u32 v4, v0, 1, 3")
    e("v_xor_b32 v4, v4, v3")
    e(f"v_lshl_add_u32 v2, v2, 7, {sXM0}")
    e(f"v_lshl_add_u32 v{vBA}, v4, 4, v2")
    e(f"v_xor_b32 v{vBA + 1}, 64, v{vBA}")
    e(f"v_add_u32 v{vBA + 2}, {2 * SLOT}, v{vBA}")
    e(f"v_add_u32 v{vBA + 3}, {2 * SLOT}, v{vBA + 1}")
    e("v_bfe_u32 v6, v0, 2, 2")
    e("v_and_b32 v7, 3, v0")
    e("v_lshl_add_u32 v2, v3, 3, v6")
    e("v_lshlrev_b32 v2, 7, v2")
    e("v_lshl_add_u32 v2, v7, 3, v2")
    e("v_lshrrev_b32 v6, 1, v6")
    e("v_and_b32 v3, 1, v3")
    e("v_lshl_add_u32 v6, v3, 1, v6")
    e(f"v_lshl_add_u32 v{vAA}, v6, 5, v2")
    for i in range(1, 4):
        e(f"v_xor_b32 v{vAA + i}, {32 * i}, v{vAA}")
    for i in range(4):
        e(f"v_add_u32 v{vAA + 4 + i}, {2 * SLOT}, v{vAA + i}")

    def touch_setup():
        return [f"s_lshr_b32 {sF0}, {sQ}, 2", f"s_mul_i32 {sF0}, {sF0}, 10", f"v_add_u32 v2, {sF0}, v0",
                "v_min_u32 v2, 63, v2", "v_mul_u32_u24 v2, 1280, v2", f"v_mov_b32 v3, {OOB}",
                f"v_cmp_lt_u32 vcc, 9, v0\ns_nop 1\nv_cndmask_b32 v{vTO}, v2, v3, vcc",
                f"s_and_b32 {sF0}, {sQ}, 3", f"s_lshl_b32 {sF0}, {sF0}, 1", f"s_add_u32 {sF0}, {sF0}, {sRHO}",
                f"s_lshl_b32 {sF0}, {sF0}, 3", f"s_lshl_b32 {sF1}, {sW}, 4", f"s_sub_u32 {sF0}, {sF0}, {sF1}",
                f"s_add_u32 {sF0}, {sF0}, 64", f"v_add_u32 v2, {sF0}, v0", "v_mul_u32_u24 v2, 3456, v2",
                f"v_cmp_lt_u32 vcc, 7, v0\ns_nop 1\nv_cndmask_b32 v{vTO + 1}, v2, v3, vcc",
                ]

    def touch_units(ahead):
        return [f"s_add_u32 {sT4}, {sXS}, {128 * ahead}",
                ("vm", f"buffer_load_dword v{vFL + 4}, v{vTO}, {SX}, {sT4} offen", "touch"),
                f"s_add_u32 {sT4}, {sWSO}, {64 * 3456 * (ahead - 1)}" if ahead >= 1 else f"s_sub_u32 {sT4}, {sWSO}, {64 * 3456}",
                ("vm", f"buffer_load_dword v{vFL + 4}, v{vTO + 1}, {STW}, {sT4} offen", "touch")]

    def Breg(K, lt):
        return vr(96 + 4 * lt, 4) if K % 2 == 0 else ar(144 + 4 * lt, 4)

    def frag_reads(k):
        stage, ks = divmod(k, 4)
        K, mat = divmod(k, 2)
        Ks = K & 1
        sl = stage % 3
        so = 0 if sl == 2 else sl * SLOT
        A = vAF + 16 * (k & 1)
        def bread(lt):
            return ("lds", f"ds_read_b128 {Breg(K, lt)}, v{vBA + (2 if sl == 2 else 0) + Ks} offset:{so + 2048 * lt}", ("B", K))
        def aread(t, h):
            return ("lds", f"ds_read_b64_tr_b16 {vr(A + 4 * t + 2 * h, 2)}, v{vAA + (4 if sl == 2 else 0) + t} offset:{so + mat * 8192 + Ks * 4096 + h * 512}", ("A", k, t))
        if mat == 0:
            return [bread(0), aread(0, 0), aread(0, 1), bread(1), bread(2), bread(3), aread(1, 0), aread(1, 1), aread(2, 0), aread(2, 1), aread(3, 0), aread(3, 1)]
        return [aread(t, h) for t in range(4) for h in range(2)]

    e(f"s_mov_b32 {sMASK}, 0xffff0000")
    g.wvm(("dma", 0))
    g.wlg0()
    e("s_barrier")
    stamp("g1_start")
    stamp("c_g1s", cyc=True)
    for it in frag_reads(0):
        g.do(it)

    PACE = opt.get("pace", 2)
    STQ = [38, 48, 52, 16]
    NG = 320
    gaps = [[] for _ in range(NG)]
    head = [[] for _ in range(NG)]
    pre = {}
    vq_big = []

    sq = []
    def add_group(units, earliest, small=False, pace=None):
        vq = sq if small else vq_big
        prel = []
        for u in units:
            if isinstance(u, tuple) and u[0] == "m0":
                prel.append(u[1])
            elif isinstance(u, tuple) or callable(u):
                vq.append([earliest, prel, u, [], pace])
                prel = []
            else:
                prel.append(u)
        if prel:
            vq[-1][3] += prel

    def Bgap(s):
        return 32 * s - 8

    PKV = 48
    pk_fill = [f"s_mov_b32 {sF0}, {0x100000000 // 20 + 1}", f"s_lshl_b32 {sF1}, {sW}, 6"]
    for i3 in range(3):
        pk_fill += [f"v_add_u32 v2, {sF1}, v0"] + ([f"v_add_u32 v2, {256 * i3}, v2"] if i3 else []) + [
            f"v_mul_hi_u32 v3, v2, {sF0}", "v_mul_u32_u24 v12, 20, v3", "v_sub_u32 v12, v2, v12",
            "v_mul_u32_u24 v3, 1280, v3", f"v_lshl_add_u32 v{PKV + i3}, v12, 4, v3"]
    pk_fill += [f"s_lshr_b32 {sHS0}, {sCP}, 2", f"s_and_b32 {sHS1}, {sCP}, 3",
                f"s_mul_i32 {sT2}, {sHS0}, 40960", f"s_mul_i32 {sF0}, {sHS1}, 320", f"s_add_u32 {sT2}, {sT2}, {sF0}",
                f"s_lshl_b32 {sT3}, {sW}, 10"]
    pk_fill2 = ["v_lshrrev_b32 v2, 2, v0", "v_mul_u32_u24 v2, 320, v2", "v_and_b32 v3, 3, v0", "v_lshl_add_u32 v2, v3, 3, v2",
                f"s_lshl_b32 {sF0}, {sW}, 5", f"s_add_u32 {sF0}, {sF0}, {PKB}", f"v_add_u32 v{PKV + 3}, {sF0}, v2"]
    PDR = [0, 4, 8]
    pk_dma = []
    for i3 in range(3):
        pk_dma.append(("m0", f"s_add_u32 m0, {sT3}, {PKB + 4096 * i3}"))
        if i3 == 2:
            pk_dma.append(lambda: e(f"s_cmp_lt_u32 {sW}, 2\ns_cbranch_scc0 L_nopk3\nbuffer_load_dwordx4 v{PKV + 2}, {SWD}, {sT2} offen{NT} lds\nL_nopk3:") or g.vm.append("OPT"))
        else:
            pk_dma.append(("vm", f"buffer_load_dwordx4 v{PKV + i3}, {SWD}, {sT2} offen{NT} lds", "pkd"))
    pk_st = []
    pk_fill3 = [f"s_mul_i32 {sF1}, {sHS1}, 10", f"s_add_u32 {sF1}, {sF1}, {sW}", f"s_mul_i32 {sF2}, {sHS0}, 5"]
    for i3 in range(3):
        d = f"s{97 + i3}"
        pk_fill3 += [f"s_add_u32 {d}, {sF1}, {4 * i3}", f"s_mul_i32 {sF0}, {d}, 13108", f"s_lshr_b32 {sF0}, {sF0}, 16",
                     f"s_mul_i32 {sF0}, {sF0}, 265", f"s_add_u32 {d}, {d}, {sF0}", f"s_add_u32 {d}, {d}, {sF2}",
                     f"s_lshl_b32 {d}, {d}, 10", f"s_add_u32 {d}, {d}, {WDP}"]
        pk_st.append(("vm", f"buffer_store_dwordx4 {ar(PDR[i3], 4)}, v1, {SWS}, {d} offen sc1", "pks"))
    pk_fill3 += [f"s_cmp_lt_u32 {sW}, 2\ns_cselect_b32 s99, s99, {OOB}"]
    lnflag = [f"s_lshl_b32 {sT1}, s2, 2\ns_add_u32 {sT1}, {sT1}, {LNF}\ns_cmp_eq_u32 {sW}, 0\ns_cselect_b32 {sT1}, {sT1}, {OOB}",
              lambda: flag_store(sT1)]
    def wff():
        g.wvm("pks")
        flag_store(sT1)
    wfflag = [f"s_lshl_b32 {sT1}, {sHS1}, 6\ns_add_u32 {sT1}, {sT1}, {sHS0}\ns_lshl_b32 {sT1}, {sT1}, 2\ns_add_u32 {sT1}, {sT1}, {sW}",
              f"s_lshl_b32 {sT1}, {sT1}, 2\ns_add_u32 {sT1}, {sT1}, {WF}", wff]

    add_group(dma_units(2), opt.get("d2", 4))
    add_group(pk_dma, opt.get("dpk", 20))
    for st_ in range(1, 8):
        if st_ == 2:
            add_group(pk_st, Bgap(2) + 6)
        add_group(dma_units(st_ + 2), Bgap(st_) + {1: opt.get("d3", 10), 2: opt.get("d4", 20), 3: opt.get("d5", 20), 4: opt.get("d6", 0)}.get(st_, 0))
        if st_ in (4, 5, 6):
            tu = tab_units()
            add_group(tu[5 * (st_ - 4):5 * (st_ - 3)], 0)
    G0 = 8 * KCHK + 4
    for phi in range(P1):
        add_group(wd_load(phi), G0)
    vsched = []
    occ = set()
    def place(q, pace):
        last = -pace
        for (ear, prel, vmi, post, pc) in q:
            gq = max(ear, last + (pc or pace))
            while gq in occ:
                gq += 1
            assert gq < NG - 1, gq
            occ.add(gq)
            gaps[gq - 1] += prel
            head[gq].append(vmi)
            gaps[gq] = post + gaps[gq]
            last = gq
            vsched.append((gq, vmi[2] if isinstance(vmi, tuple) else "flag"))
    place(vq_big, PACE)
    def gap_of(tag):
        return max(gq for gq, t in vsched if t == tag)
    for st_ in range(1, 8):
        ge = gap_of(("dma", st_ + 2)) + 2
        if st_ == 2:
            add_group([f"s_lshl_b32 {sT1}, {sFT}, 1\ns_add_u32 {sT1}, {sT1}, {sC}\ns_lshl_b32 {sT1}, {sT1}, 3\ns_add_u32 {sT1}, {sT1}, {sM}",
                       f"s_lshl_b32 {sT1}, {sT1}, 1\ns_add_u32 {sT1}, {sT1}, {sRHO}\ns_lshl_b32 {sT1}, {sT1}, 8\ns_add_u32 {sT1}, {sT1}, {CSP}",
                       ("vm", f"buffer_store_dwordx2 {vr(4, 2)}, v6, {SWS}, {sT1} offen sc1", "pks")], gap_of("pks") + 1, True)
        if st_ == 3:
            add_group(wfflag, gap_of(("dma", 4)) + 1, True)
        if st_ == 5:
            add_group([("vm", f"buffer_load_dwordx4 {vr(vFL, 4)}, v{vFA}, {SWS}, 0 offen sc1", "poll"),
                       ("vm", f"buffer_load_dwordx4 {vr(PKV, 4)}, v{vFA + 1}, {SWS}, 0 offen sc1", "poll")], 8 * KCHK - 22, True)
        if TOUCH and st_ + TOUCH <= 9:
            if st_ == 1:
                for a in range(0, TOUCH - 3):
                    add_group(touch_units(a), ge, True)
            add_group(touch_units(TOUCH - 3), ge, True)
        if st_ == 6 and opt.get('wtouch'):
            for t3 in range(3):
                add_group([f"s_and_b32 {sT4}, {sLT}, 3\ns_mul_i32 {sT4}, {sT4}, {140 * 128}\ns_add_u32 {sT4}, {sT4}, {sWDS}" if t3 == 0 else f"s_add_u32 {sT4}, {sT4}, {48 * 128}",
                           ("vm", f"buffer_load_dword v{vFL + 4}, v{PKV + 1}, {SWS}, {sT4} offen sc1", "wtouch")], 8 * KCHK + 4 + 4 * t3, True)
    add_group([f"s_lshl_b32 {sT1}, {sFT}, 1\ns_add_u32 {sT1}, {sT1}, {sC}\ns_lshl_b32 {sT1}, {sT1}, 5\ns_add_u32 {sT1}, {sT1}, {sRHO}",
               f"s_lshl_b32 {sT1}, {sT1}, 7\ns_add_u32 {sT1}, {sT1}, {CSP}",
               ("vm", f"buffer_load_dwordx4 {vr(112, 4)}, v{vCS}, {SWS}, {sT1} offen sc1", "csp"),
               ("vm", f"buffer_load_dwordx4 {vr(20, 4)}, v{vCS}, {SWS}, {sT1} offen offset:2048 sc1", "csp")], max(G0, gap_of(("dma", 9)) - 1), True)
    add_group([f"s_lshl_b32 {sT1}, {sM}, 2\ns_add_u32 {sT1}, {sT1}, {sW}\ns_lshl_b32 {sT1}, {sT1}, 10\ns_add_u32 {sT1}, {sT1}, {STATS}",
               ] + [("vm", f"buffer_load_dwordx4 {vr(STQ[lt], 4)}, v15, {SWS}, {sT1} offen offset:{256 * lt} sc1", "stats") for lt in range(4)],
              max(G0, gap_of(("dma", 9)) - 5), True)
    add_group([x.replace(sF0, sT2).replace(sF1, sT3) if isinstance(x, str) else (x[0], x[1].replace(sF0 + ' ', sT2 + ' ').replace(sF1 + ' ', sT3 + ' '), x[2]) for x in u_loads(sCP, 116)], gap_of(("wd", P1 - 1)) + 2 if opt.get("ulast", 1) else G0, True)
    place(sq, 1)
    vsched.sort()
    if opt.get("v"):
        print(vsched)
    assert all(gap_of(("dma", st_)) < Bgap(st_) - 12 for st_ in range(2, 10))
    assert gap_of("pkd") < Bgap(2) and gap_of("pks") < gap_of(("dma", 4)) - 24 and gap_of("poll") < 8 * KCHK - 6

    for i3 in range(3):
        for h in range(2):
            gaps[Bgap(2) + 1 + i3].append(("lds", f"ds_read_b64_tr_b16 {ar(PDR[i3] + 2 * h, 2)}, v{PKV + 3} offset:{128 * i3 + 16 * 320 * h}", "pk"))
    c4 = check4(vFL)
    gaps[8 * KCHK] += [("wvm", "poll")] + c4[0:2]
    gaps[8 * KCHK + 1] += c4[2:5]
    def chk():
        sl = g.newlab("Lslow")
        bk = g.newlab("Lback")
        for x in check4(PKV)[:6]:
            e(x)
        e(f"v_or3_b32 v{vFL}, v{vFL}, v{vFL + 3}, v{PKV}")
        e(c4[6])
        e(f"s_cbranch_vccnz {sl}")
        g.lab(bk)
        g.slow.append((sl, bk, [(vFA, True), (vFA + 1, True)]))
    gaps[8 * KCHK + 2].insert(0, chk)

    CA = [4, 5, 6, 7, 42, 43, 44, 45]
    csum = []
    for j5 in range(5):
        csum.append(("wvm", ("csl", j5)))
        for d in range(4):
            r = CSR[j5] + d
            if j5 == 0:
                csum += [f"v_lshlrev_b32 v{CA[2 * d]}, 16, v{r}", f"v_and_b32 v{CA[2 * d + 1]}, {sMASK}, v{r}"]
            else:
                csum += [f"v_lshlrev_b32 v8, 16, v{r}", f"v_and_b32 v9, {sMASK}, v{r}",
                         f"v_add_f32 v{CA[2 * d]}, v{CA[2 * d]}, v8", f"v_add_f32 v{CA[2 * d + 1]}, v{CA[2 * d + 1]}, v9"]
    csum += ["s_nop 1"]
    csum += [f"v_permlane32_swap_b32 v{CA[c]}, v{CA[c + 4]}" for c in range(4)]
    csum += [f"v_add_f32 v{CA[c]}, v{CA[c]}, v{CA[c + 4]}" for c in range(4)]
    csum += ["s_nop 1"]
    csum += [f"v_permlane16_swap_b32 v{CA[c]}, v{CA[c + 2]}" for c in range(2)]
    csum += ["s_nop 0"]
    csum += [f"v_add_f32 v{CA[c]}, v{CA[c]}, v{CA[c + 2]}" for c in range(2)]
    csum += ["v_and_b32 v6, 7, v0", "v_lshlrev_b32 v6, 5, v6"]
    csum += [f"v_add_f32 v{CA[c]}, v{CA[c]}, v{CA[c]} row_ror:8" for c in range(2)]
    csum += ["v_lshrrev_b32 v7, 4, v0", "v_lshl_add_u32 v6, v7, 3, v6", f"v_mov_b32 v7, {OOB}",
             "v_and_b32 v8, 8, v0", "v_cmp_ne_u32 vcc, 0, v8\ns_nop 1\nv_cndmask_b32 v6, v6, v7, vcc"]
    fillq = pk_fill + (touch_setup() if TOUCH else []) + pk_fill2[:7] + pk_fill3
    n_a = len(fillq)
    fillq += csum
    n_csum = len(fillq)
    n_early = len(pk_fill)
    fillq += pk_fill2[7:]
    n_early2 = len(fillq)
    fillq += [f"v_min_u32 v2, 53, v0", f"s_lshr_b32 {sF0}, {sDT}, 1", f"s_lshl_b32 {sF0}, {sF0}, 10",
              f"s_add_u32 {sF0}, {sF0}, {WF}", f"v_lshl_add_u32 v2, v2, 4, {sF0}",
              "v_and_b32 v3, 7, v0", "v_mul_u32_u24 v3, 27, v3", f"v_add_u32 v3, {sFT}, v3", "v_and_b32 v12, 3, v3",
              "v_lshrrev_b32 v3, 2, v3", "v_lshl_add_u32 v3, v12, 6, v3", "v_lshlrev_b32 v3, 4, v3", f"v_add_u32 v3, {WF}, v3",
              f"v_cmp_lt_u32 vcc, 55, v0\ns_nop 1\nv_cndmask_b32 v{vFA + 1}, v2, v3, vcc"]
    it_ = aL.index(("wvm", "tab"))
    fillq += [f"v_add_u32 v{vFA}, {LNF}, v1"] + aL[:it_]
    n_mid = len(fillq)
    late_fill = [("at", gap_of("tab") + 14)] + aL[it_:]
    fillq += ["v_lshrrev_b32 v3, 4, v0", "v_lshlrev_b32 v13, 4, v3", f"v_add_u32 v13, {CSB}, v13", "v_lshrrev_b32 v3, 5, v0",
              "v_and_b32 v2, 7, v0", "v_lshlrev_b32 v12, 4, v2", "v_lshl_add_u32 v12, v3, 3, v12", "v_bfe_u32 v3, v0, 4, 1",
              "v_lshl_add_u32 v12, v3, 2, v12", f"s_lshl_b32 {sF0}, {sW}, 7", f"s_add_u32 {sF0}, {sF0}, {CSB}",
              f"v_add_u32 v12, {sF0}, v12", "v_lshrrev_b32 v3, 3, v0", "v_lshlrev_b32 v3, 8, v3", f"v_lshl_add_u32 v{vCS}, v2, 4, v3",
              "v_and_b32 v15, 15, v0", "v_lshlrev_b32 v15, 4, v15"]
    tail_fill = [f"s_lshl_b32 {sHS0}, {sM}, 2", f"s_add_u32 {sHS0}, {sHS0}, {sW}", f"s_lshl_b32 {sPEND}, {sHS0}, 5",
                 f"s_mul_i32 {sHS0}, {sHS0}, {4 * 54}", f"s_lshl_b32 {sT2}, {sFT}, 1", f"s_add_u32 {sHS0}, {sHS0}, {sT2}",
                 f"s_lshl_b32 {sHS0}, {sHS0}, 10", f"s_add_u32 {sHS0}, {sHS0}, {HB}",
                 f"s_add_u32 {sPEND}, {sPEND}, {sFT}", f"s_lshl_b32 {sPEND}, {sPEND}, 7", f"s_add_u32 {sPEND}, {sPEND}, {HF}"]
    cs_fill = [("wvm", "csp")] + [f"v_add_f32 v{112 + c}, v{112 + c}, v{20 + c}" for c in range(4)] + ["s_nop 0",
               "v_permlane32_swap_b32 v112, v114", "v_permlane32_swap_b32 v113, v115", "s_nop 0", "v_add_f32 v112, v112, v114", "v_add_f32 v113, v113, v115",
               "s_nop 1", "v_permlane16_swap_b32 v112, v113", "s_nop 0", "v_add_f32 v112, v112, v113", "s_nop 1",
               "v_add_f32 v112, v112, v112 row_ror:8", ("lds", "ds_write_b32 v12, v112", "csw")]
    nf_total = len(fillq)

    def cost(it):
        if isinstance(it, str):
            return it.count("\n") + 1
        return 1
    CAP = opt.get("cap", 4)
    for k in range(40):
        stage, ks = divmod(k, 4)
        A = vAF + 16 * (k & 1)
        gk = [head[8 * k + i] + gaps[8 * k + i] for i in range(8)]
        body = [[] for _ in range(8)]
        if k + 1 < 40:
            fr = frag_reads(k + 1)
            for i, it in enumerate(fr):
                body[i // 2 if len(fr) == 12 else (3 * i) // 4].append(it)
        if k == 39:
            assert not late_fill, len(late_fill)
            for j in range(8):
                dst = (64 + 4 * j) if j < 4 else (96 + 4 * (j - 4))
                body[1 + j // 2].append(("lds", f"ds_read_b128 {vr(dst, 4)}, v13 offset:{64 * j}", "cs0"))
        else:
            load = [sum(map(cost, gk[i])) + len(body[i]) + (1 if i in (3, 7) else 0) for i in range(8)]
            q = fillq if fillq else (tail_fill if (k >= 18 and tail_fill) else late_fill)
            if k == KCHK or (q is late_fill and k < 10):
                q = []
            if k in (33, 34) and cs_fill:
                q = cs_fill
            cap = opt.get('cape', 5) if k < opt.get('kc5', 9) else (5 if k in (33, 34) else opt.get('capl', 3))
            for i in range(8):
                while q and load[i] + cost(q[0]) <= cap + (2 if cost(q[0]) > 1 else 0):
                    if isinstance(q[0], tuple) and q[0][0] == "at":
                        if 8 * k + i < q[0][1]:
                            break
                        q.pop(0)
                        continue
                    it = q.pop(0)
                    body[i].append(it)
                    load[i] += cost(it)
            if k == 2:
                assert nf_total - len(fillq) >= n_early, (nf_total - len(fillq), n_early)
            if k == 5:
                assert nf_total - len(fillq) >= n_a
            if k == 6:
                assert nf_total - len(fillq) >= n_a + 30
            if 8 * k + 8 >= gap_of("pks") - 1:
                assert nf_total - len(fillq) >= n_csum, (nf_total - len(fillq), n_csum)
            if k == 13:
                assert nf_total - len(fillq) >= n_early2
            if k == KCHK - 4:
                assert nf_total - len(fillq) >= n_mid
            if 8 * k + 8 > gap_of("stats") - 4:
                assert not fillq, (k, len(fillq))
        if ks == 3 and stage < 9:
            stamp(f"c_w{stage + 1}", cyc=True)
            g.wlg0()
            if stage == 1:
                g.wvm("OPT")
            g.wvm(("dma", stage + 1))
            e("s_barrier")
            stamp(f"c_b{stage + 1}", cyc=True)
        K, mat = divmod(k, 2)
        for i in range(8):
            items = []
            for it in head[8 * k + i]:
                if isinstance(it, tuple) and it[2] == "pks":
                    items.append(("wlg", "pk"))
                items.append(it)
            items += body[i] + gaps[8 * k + i]
            tot = sum(map(cost, items))
            acc_, sub = 0, [[], []]
            for it in items:
                sub[0 if 2 * acc_ + cost(it) <= tot + (1 if not sub[0] else 0) else 1].append(it)
                acc_ += cost(it)
            flat = sub[0] + sub[1]
            assert flat == items
            for h2 in range(2):
                m = 2 * i + h2
                t, lt = divmod(m, 4)
                if k == 0:
                    g.wlg(("A", k, t))
                    if m == 1:
                        g.wlg(("B", K))
                elif m == 0:
                    g.wlg(("A", k, 1))
                elif m == 8:
                    g.wlg(("A", k, 3))
                D = vACC + 4 * ((mat * 4 + t) * 4 + lt)
                Cs = "0" if K == 0 else vr(D, 4)
                e(f"v_mfma_f32_16x16x32_bf16 {vr(D, 4)}, {vr(A + 4 * t, 4)}, {Breg(K, lt)}, {Cs}")
                for it in sub[h2]:
                    g.do(it)
    assert not tail_fill and not cs_fill and not late_fill, len(late_fill)
    stamp("c_g1e", cyc=True)
    stamp("g1_loop_end", flush=True)

    tmps = [28, 30, 32, 34]
    g.wvm("stats")
    g.wlg("cs0")
    align()
    for lt in range(4):
        st = STQ[lt]
        if lt:
            e(f"s_add_u32 {sHS0}, {sHS0}, {54 * 1024}")
        for a in range(2):
            O = 20 + 4 * a
            ps = range(4)
            Gt = [vACC + 4 * ((2 * a + (p >> 1)) * 4 + lt) + 2 * (p & 1) for p in ps]
            Ut = [x + 64 for x in Gt]
            csg = [64 + 4 * (2 * a + (p >> 1)) + 2 * (p & 1) for p in ps]
            csu = [x + 32 for x in csg]
            for p in ps:
                e(f"v_pk_fma_f32 {vr(Gt[p], 2)}, {vr(csg[p], 2)}, {vr(st, 2)}, {vr(Gt[p], 2)} op_sel_hi:[1,0,1]")
            for p in ps:
                e(f"v_pk_mul_f32 {vr(tmps[p], 2)}, {vr(Gt[p], 2)}, {vr(Gt[p], 2)}")
            for p in ps:
                e(f"v_pk_fma_f32 {vr(tmps[p], 2)}, {vr(tmps[p], 2)}, {vr(st, 2)}, {vr(st + 2, 2)} op_sel:[0,1,0] op_sel_hi:[1,1,0]")
            for p in ps:
                e(f"v_pk_mul_f32 {vr(tmps[p], 2)}, {vr(tmps[p], 2)}, {vr(Gt[p], 2)}")
            for p in ps:
                e(f"v_exp_f32 v{tmps[p]}, v{tmps[p]}")
                e(f"v_exp_f32 v{tmps[p] + 1}, v{tmps[p] + 1}")
            for p in ps:
                e(f"v_pk_fma_f32 {vr(Ut[p], 2)}, {vr(csu[p], 2)}, {vr(st, 2)}, {vr(Ut[p], 2)} op_sel_hi:[1,0,1]")
            for p in ps:
                e(f"v_pk_fma_f32 {vr(tmps[p], 2)}, {vr(tmps[p], 2)}, {vr(st + 2, 2)}, {vr(st + 2, 2)} op_sel:[0,1,1] op_sel_hi:[1,1,1]")
            for p in ps:
                e(f"v_rcp_f32 v{tmps[p]}, v{tmps[p]}")
                e(f"v_rcp_f32 v{tmps[p] + 1}, v{tmps[p] + 1}")
            for p in ps:
                e(f"v_pk_mul_f32 {vr(Gt[p], 2)}, {vr(Gt[p], 2)}, {vr(Ut[p], 2)}")
            for p in ps:
                e(f"v_pk_mul_f32 {vr(Gt[p], 2)}, {vr(Gt[p], 2)}, {vr(tmps[p], 2)}")
            for p in ps:
                e(f"v_cvt_pk_bf16_f32 v{O + p}, v{Gt[p]}, v{Gt[p] + 1}")
            g.vmem(f"buffer_store_dwordx4 {vr(O, 4)}, v1, {SWS}, {sHS0} offen offset:{1024 * a} sc1", "hst")
    stamp("c_epe", cyc=True)
    stamp("g1_epi_end", flush=True)
    e(f"s_mov_b32 {sMASK}, {sPEND}")
    e("s_nop 0")

    def rb2(adj=0):
        for i in range(22):
            e(f"v_accvgpr_read_b32 v{GA + i}, a{AST + 8 + i}")
        if adj:
            for i in range(22):
                e(f"v_subrev_u32 v{GA + i}, {adj}, v{GA + i}")
        for i in range(2, 8):
            e(f"v_accvgpr_read_b32 v{AK + i}, a{AS2 + 1 + i}")
        e("v_mov_b32 v4, 0\nv_mov_b32 v5, 0\nv_mov_b32 v6, 0\nv_mov_b32 v7, 0")
        e(f"ds_write_b128 v{vZ}, {vr(4, 4)}")
    rb2()

    Greg = [[224 + 4 * i for i in range(8)], [192 + 4 * i for i in range(8)]]
    FB = [128, 160]
    CACC = 64
    HRING = [16 + 4 * i for i in range(12)] + [104 + 4 * i for i in range(3)] + [128 + 4 * i for i in range(26)]
    NE = opt.get("ne", 15)
    P2 = opt.get("p2", 40)
    NB = len(HRING)
    YS, DK = 100, 101

    def hload(i):
        k, st = divmod(i, 14)
        r = HRING[i % NB]
        if st == 13:
            return [f"s_cmp_lt_u32 {sW}, 2\ns_cselect_b32 {sT4}, s{sG2 + 4 * k + 3}, {OOB}",
                    ("vm", f"buffer_load_dwordx4 {vr(r, 4)}, v1, {SWS}, {sT4} offen offset:1024 sc1", ("h", i))]
        return [("vm", f"buffer_load_dwordx4 {vr(r, 4)}, v1, {SWS}, s{sG2 + 4 * k + st // 4} offen offset:{(st % 4) * 1024} sc1", ("h", i))]

    def conv(last):
        tag = "L" if last else "E"
        g.lab("L_conv_last" if last else "L_conv_early")
        g.vm = ["u", "u"]
        g.lg = []
        def wd_e(phi):
            its = wd_load(phi)
            if len(its) > 1:
                its.insert(1, f"s_or_b32 {sT5}, {sT5}, {sK0}")
            return its
        if last:
            wq = [[f"s_add_u32 m0, {sXT}, {1024 * kk}", "s_nop 0",
                   ("vm", f"buffer_load_dwordx4 v{12 + kk}, {SX}, {sXO} offen lds", ("xt", 0))] for kk in range(3)]
            wq += [wd_load(phi) for phi in range(P1, 64)]
            for i7 in range(7):
                e(f"v_accvgpr_read_b32 v{9 + i7}, a{AS2 + 14 + i7}")
        else:
            wq = [wd_e(phi) for phi in range(0, P1)]
            g.vmem(f"buffer_load_dwordx4 {vr(vFL, 4)}, v{vFA + 1}, {SWS}, 0 offen sc1", "wfp")
        def wdl(n=1):
            for _ in range(n):
                if wq:
                    for it in wq.pop(0):
                        g.do(it)
        EG = 128
        for ch in range(2):
            for k in range(11):
                g.lds(f"ds_read_b32 v{EG + 12 * ch + k}, v{GA + 11 * ch + k}", ("eg", ch))
        g.lds(f"ds_read_b64 {vr(YS, 2)}, v{vYS} offset:{YSO}", "ysc")
        if last:
            wdl(3)
        g.wvm("u")
        g.lds(f"ds_write_b128 v{vUW}, {vr(vU, 4)}", "uw")
        g.lds(f"ds_write_b128 v{vUW}, {vr(vU + 4, 4)} offset:512", "uw")
        if last:
            e(f"s_or_b32 {sT1}, s2, {sW}")
            e(f"s_cmp_eq_u32 {sT1}, 0")
            e(f"s_cselect_b32 {sT1}, {EPOCH}, {OOB}")
            flag_store(sT1)
        EO = 64
        for ch in range(2):
            g.wlg(("eg", ch))
            align()
            for s in range(4):
                o = EO + 16 * ch + 4 * s
                for j in range(4):
                    e(f"v_cvt_pk_f16_f32 v{o + j}, v{EG + 12 * ch + s + 2 * j}, v{EG + 12 * ch + s + 2 * j + 1}")
                g.lds(f"ds_write_b128 v{vRW}, {vr(o, 4)} offset:{s * RCS + 1024 * ch}", "rw")
                if last and s % 2 == 1:
                    wdl()
            if last and ch == opt.get("hch", 1):
                e(f"s_waitcnt vmcnt({len(g.vm)})")
                flag_store(sMASK)
        if not last:
            e("s_waitcnt vmcnt(0)")
            flag_store(sMASK)
        if last:
            wdl(2)
        else:
            for x in check4(vFL):
                e(x)
            e("s_nop 0")
            e("s_cmp_eq_u64 vcc, 0")
            e(f"s_cselect_b32 {sK0}, 0, {OOB}")
        extra = [f"v_accvgpr_read_b32 v{4 + i}, a{AS2 + 9 + i}" for i in range(5)]
        extra += [f"s_lshl_b32 {sT1}, {sCP}, 1", f"s_add_u32 {sT1}, {sT1}, {sC}", f"s_lshl_b32 {sT1}, {sT1}, 12",
                  f"s_lshl_b32 {sT3}, {sRHO}, 11", f"s_add_u32 {sT1}, {sT1}, {sT3}", f"s_add_u32 {sHS0}, {sT1}, {ST}",
                  f"s_lshl_b32 {sT2}, {sCP}, 5", f"s_add_u32 {sT2}, {sT2}, {sW}",
                  f"s_lshl_b32 {sT2}, {sT2}, 2", f"s_add_u32 {sPEND}, {sT2}, {SF}"]
        if last:
            extra += [f"v_accvgpr_read_b32 v{vFA + i}, a{AS2 + 21 + i}" for i in range(2)]
            extra += ["v_min_u32 v3, 53, v0", "v_lshlrev_b32 v3, 7, v3",
                      f"s_lshl_b32 {sT0}, {sDT}, 2", f"s_add_u32 {sT0}, {sT0}, {sW}", f"s_mul_i32 {sT0}, {sT0}, {54 * 128}",
                      f"s_mul_i32 {sHS1}, {sLT}, {4 * 54 * 1024}", f"s_add_u32 {sHS1}, {sHS1}, {sT0}", f"s_add_u32 {sHS1}, {sHS1}, {HB}"]
        g.wlg0()
        e("s_barrier")
        stamp("c_cs" + tag, cyc=True)
        stamp("conv_start" + tag)

        def cls_reads(dl):
            bf = dl & 1
            out = []
            for s in range(8):
                out.append(("lds", f"ds_read_b128 {vr(Greg[bf][s], 4)}, v{vGB} offset:{512 * s + 64 * (3 - dl)}", ("G", dl, s)))
                off = 64 * (59 - dl - 8 * s)
                out.append(("lds", f"ds_read_b64 {vr(FB[bf] + 4 * s, 2)}, v{vFB} offset:{off}", ("F", dl, s)))
                out.append(("lds", f"ds_read_b64 {vr(FB[bf] + 4 * s + 2, 2)}, v{vFB} offset:{off + 8}", ("F", dl, s)))
            return out
        for it in cls_reads(0):
            g.do(it)
        order = sorted([(s, gg) for s in range(8) for gg in range(8) if s + gg < 8], key=lambda x: (max(x), x[0] + x[1]))
        seen = set()
        hq = []
        US, UD = 2, 96
        for dl in range(4):
            bf = dl & 1
            nxt = cls_reads(dl + 1) if dl < 3 else []
            if dl == 3:
                nxt = [("lds", f"ds_read_b64 {vr(128 + 2 * tt, 2)}, v6 offset:{512 * tt}", "us") for tt in range(4)]
                nxt += [None] * 6 + [("wlg", "us")]
                for tt in range(4):
                    for i in range(4):
                        src = 128 + 2 * tt + (i >> 1)
                        nxt.append(f"v_fma_mix_f32 v{136 + 4 * tt + i}, v{src}, v{DK}, 0 op_sel:[{i & 1},0,0] op_sel_hi:[1,0,0]")
            if last and dl == 3:
                g.wvm("hfp")
                e(f"v_cmp_ne_u32 vcc, v{vTAG}, v{vFL}")
                e("s_nop 0")
                e("s_cmp_eq_u64 vcc, 0")
                e(f"s_cselect_b32 {sK1}, 1, 0")
                e(f"s_cselect_b32 {sT0}, 0, {OOB}")
                tch = [f"s_or_b32 {sT4}, {sHS1}, {sT0}", ("vm", f"buffer_load_dword v{vFL + 4}, v3, {SWS}, {sT4} offen sc1", "ht")]
                TP = opt.get("tp", -1)
                for i in range(NE):
                    k_, st_ = divmod(i, 14)
                    if i == TP:
                        hq.append(tch)
                    pre_ = [f"s_or_b32 {sT4}, s{sG2 + 4 * k_ + st_ // 4}, {sT0}"] if (st_ % 4 == 0 or st_ == 13 or i == TP) else []
                    if st_ == 13:
                        pre_.append(f"s_cmp_lt_u32 {sW}, 2\ns_cselect_b32 {sT4}, {sT4}, {OOB}")
                    hq.append(pre_ + [("vm", f"buffer_load_dwordx4 {vr(HRING[i], 4)}, v1, {SWS}, {sT4} offen offset:{(st_ % 4) * 1024} sc1", ("he", i))])
                if TP == NE:
                    hq.append(tch)
            if dl > 0:
                g.wlg(("F", dl, 7))
            for mi, (s, gg) in enumerate(order):
                t = s + gg
                if dl == 0:
                    g.wlg(("G", dl, gg))
                    g.wlg(("F", dl, s))
                Cs = "0" if t not in seen else vr(CACC + 4 * t, 4)
                seen.add(t)
                e(f"v_mfma_f32_16x16x32_f16 {vr(CACC + 4 * t, 4)}, {vr(FB[bf] + 4 * s, 4)}, {vr(Greg[bf][gg], 4)}, {Cs}")
                start = 8 if dl == 0 else 1
                if mi >= start and nxt:
                    it = nxt.pop(0)
                    if it is not None:
                        g.do(it)
                elif extra:
                    g.do(extra.pop(0))
                if mi % 2 == 1 and extra and mi >= start:
                    g.do(extra.pop(0))
                mc = 36 * dl + mi
                if mc % 4 == 2:
                    nphi = wq[0][-1][2][1] if wq else 0
                    if last and mc == opt.get("hfp", 86):
                        assert not extra
                        g.vmem(f"buffer_load_dword v{vFL}, v{vFA}, {SWS}, 0 offen sc1", "hfp")
                    elif hq:
                        for it in hq.pop(0):
                            g.do(it)
                    elif wq and not (last and extra and nphi >= 48):
                        wdl()
            assert not nxt, len(nxt)
        while wq and not last:
            wdl()
        assert not wq and not extra, (len(wq), len(extra))
        def hl(n=1):
            for _ in range(n):
                if hq:
                    for it in hq.pop(0):
                        g.do(it)
        stamp("c_ce" + tag, cyc=True)
        stamp("conv_end" + tag)
        lr1 = g.newlab("Lfin1")
        lfd = g.newlab("Lfind")
        e(f"s_cmp_lg_u32 {sRHO}, 0")
        e(f"s_cbranch_scc1 {lr1}")
        lg_save, pst_save, sf_save = list(g.lg), list(g.pst), list(g.sfree)
        for rho in range(2):
            if rho == 1:
                g.lab(lr1)
                g.lg, g.pst, g.sfree = list(lg_save), list(pst_save), list(sf_save)
            own = CACC + 16 * rho
            oth = CACC + 16 * (1 - rho)
            g.nop(6)
            for tt in range(4):
                g.lds(f"ds_write_b128 v4, {vr(oth + 4 * tt, 4)} offset:{PB + 1024 * tt}", "pw")
            align()
            for tt in range(4):
                for i in range(4):
                    e(f"v_fma_f32 v{136 + 4 * tt + i}, v{own + 4 * tt + i}, v{YS}, v{136 + 4 * tt + i}")
            if rho == 0:
                e(f"s_branch {lfd}")
        g.lab(lfd)
        g.wlg0()
        e("s_barrier")
        for tt in range(4):
            g.lds(f"ds_read_b128 {vr(152 + 4 * tt, 4)}, v5 offset:{PB + 1024 * tt}", ("pr", tt))
        hl(2)
        for tt in range(4):
            g.wlg(("pr", tt))
            for i in range(4):
                e(f"v_fmac_f32 v{136 + 4 * tt + i}, v{152 + 4 * tt + i}, v{YS}")
            for h in range(2):
                e(f"v_cvt_pk_bf16_f32 v{128 + 2 * tt + h}, v{136 + 4 * tt + 2 * h}, v{136 + 4 * tt + 2 * h + 1}")
            g.lds(f"ds_write_b64 v7, {vr(128 + 2 * tt, 2)} offset:{512 * tt}", "sw")
            hl(1)
        hl(1)
        g.wlg0()
        for j in range(2):
            g.lds(f"ds_read_b128 {vr(88 + 4 * j, 4)}, v8 offset:{1024 * j}", ("sr", j))
        hl(9)
        assert not hq
        if not last:
            e(f"s_add_u32 {sCP}, {sCP}, 40")
            for i in range(22):
                e(f"v_add_u32 v{GA + i}, {2 * TC}, v{GA + i}")
            e(f"v_add_u32 v{vYS}, {2 * TC}, v{vYS}")
        for j in range(2):
            g.wlg(("sr", j))
            g.vmem(f"buffer_store_dwordx4 {vr(88 + 4 * j, 4)}, v1, {SWS}, {sHS0} offen offset:{1024 * j} sc1", "sst")
        if not last:
            for it in u_loads(sCP, 2):
                g.do(it)
            e(f"s_mov_b32 {sMASK}, {sPEND}")
            e(f"s_sub_u32 {sRND}, {sRND}, 1")
            e(f"s_cmp_lg_u32 {sRND}, 1")
            e("s_cbranch_scc1 L_conv_early")

    conv(True)

    e(f"s_cmp_lg_u32 {sK1}, 0")
    e("s_cbranch_scc1 L_hready")
    poll_block(vFA, False)
    if opt.get("tp", -1) >= 0:
        e(f"buffer_load_dword v{vFL + 4}, v3, {SWS}, {sHS1} offen sc1")
    for i in range(NE):
        for it in hload(i):
            e(it[1] if isinstance(it, tuple) else it)
    g.lab("L_hready")
    stamp("c_g2s", cyc=True)
    stamp("g2_start")
    g.vm = [("h", i) for i in range(NE)]
    AC = [64, 84]
    lateq = [wd_load(64 + i) for i in range(6)] + [hload(i) for i in range(NE, NB)]
    fq = ["v_lshrrev_b32 v8, 1, v0", "v_lshlrev_b32 v8, 12, v8", "v_and_b32 v2, 1, v0", "v_lshl_add_u32 v8, v2, 4, v8",
          f"s_mul_i32 {sT1}, {sW}, 15360", f"v_add_u32 v2, {sT1}, v1",
          f"s_mul_i32 {sHS1}, {sW}, 3072", f"s_add_u32 {sHS1}, {sHS1}, {STB}", f"v_lshl_add_u32 v3, v0, 3, {sHS1}",
          "v_and_b32 v4, 15, v0", "v_mul_u32_u24 v4, 160, v4", "v_lshrrev_b32 v5, 4, v0", "v_lshl_add_u32 v4, v5, 3, v4",
          f"v_add_u32 v4, {sXT}, v4", f"v_add_u32 v5, {sXT}, v1",
          ]
    SFP = opt.get("sfp", 38)
    BAR = opt.get("bar", 46)
    P0, P1r, P2r, XR, XU, SR, SU = 160, 180, 200, 128, 138, 220, 180
    xq = [f"s_mov_b32 {sMASK}, 0xffff0000", f"s_mov_b32 {sT2}, {hex(f2u(-LOG2E))}"]
    xq += [("lds", f"ds_read_b64 {vr(XR + 2 * j, 2)}, v4 offset:{32 * j}", "x") for j in range(5)] + [None, None, ("wlg", "x")]
    for p in range(10):
        xq += [f"v_lshlrev_b32 v{XU + 2 * p}, 16, v{XR + p}", f"v_and_b32 v{XU + 2 * p + 1}, {sMASK}, v{XR + p}"]
    eq = [("lds", f"ds_read_b128 {vr(P0 + 4 * q, 4)}, v2 offset:{EXB + 1024 * q}", ("exr", q // 5)) for q in range(15)]
    eq += [("wlg", ("exr", 1))] + [f"v_pk_add_f32 {vr(P0 + 2 * p, 2)}, {vr(P0 + 2 * p, 2)}, {vr(P1r + 2 * p, 2)}" for p in range(10)]
    eq += [("wlg", ("exr", 2))] + [f"v_pk_add_f32 {vr(P0 + 2 * p, 2)}, {vr(P0 + 2 * p, 2)}, {vr(P2r + 2 * p, 2)}" for p in range(10)]

    for i in range(56):
        k, st = divmod(i, 14)
        A0 = AC[k & 1]
        g.wvm(("h", i))
        if st >= 12 and k == 0:
            g.wvm(("wd", 69 if st == 13 else 64))
        r = HRING[i % NB]
        extra = [[] for _ in range(5)]
        if st == 1 and k >= 1:
            pa = AC[(k - 1) & 1]
            for j in range(5):
                extra[j].append(("lds", f"ds_write_b128 v{9 + k - 1}, {vr(pa + 4 * j, 4)} offset:{1024 * j}", "exw"))
        for j in ((0, 3) if i < opt.get("fast", 0) else ((i % 4,) if i % 4 else (0, 4))):
            if lateq:
                extra[j] += lateq.pop(0)
        if i == opt.get('sfl', 7):
            def sflag():
                n = sum(1 for t in g.vm if t[0] == "wd" or (t[0] == "h" and t[1] >= NE))
                e(f"s_waitcnt vmcnt({n})")
                flag_store(sPEND)
            extra[1].append(sflag)
        if 18 <= i < 26:
            for j in (1, 3, 4):
                if fq:
                    extra[j].append(fq.pop(0))
        if i == SFP:
            extra[0].append(("vm", f"buffer_load_dwordx4 {vr(vFL, 4)}, v{vFA + 1}, {SWS}, 0 offen sc1", ("sfp",)))
        if i == SFP + 6:
            c4 = check4(vFL)
            extra[0] += [("wvm", ("sfp",))] + c4[0:2]
            extra[1] += c4[2:4]
            extra[2] += c4[4:6]
            def sfchk():
                sl = g.newlab("Lslow")
                bk = g.newlab("Lback")
                e(c4[6])
                e(f"s_cbranch_vccnz {sl}")
                g.lab(bk)
                g.slow.append((sl, bk, [(vFA + 1, True)]))
            extra[3].append(sfchk)
        if i == SFP + 7:
            extra[0] += [f"s_mov_b32 m0, {sHS1}"]
            extra[1] += [("vm", f"buffer_load_dwordx4 v8, {SWS}, {sSTO} offen sc1 lds", ("stl",)), f"s_add_u32 m0, {sHS1}, 1024"]
            extra[2] += [f"s_add_u32 {sT3}, {sSTO}, {32 * 4096}"]
            extra[3] += [("vm", f"buffer_load_dwordx4 v8, {SWS}, {sT3} offen sc1 lds", ("stl",)), f"s_add_u32 m0, {sHS1}, 2048"]
            extra[4] += [f"s_add_u32 {sT3}, {sSTO}, {64 * 4096}", f"v_mov_b32 v7, {OOB}", "v_cmp_lt_u32 vcc, 31, v0"]
        if i == SFP + 8:
            extra[1] += ["v_cndmask_b32 v8, v8, v7, vcc"]
            extra[2] += [("vm", f"buffer_load_dwordx4 v8, {SWS}, {sT3} offen sc1 lds", ("stl",))]
        if 30 <= i and xq and st != 1:
            for j in (1, 2, 3):
                for _ in range(1):
                    if xq:
                        it = xq.pop(0)
                        if it is not None:
                            extra[j].append(it)
        if i == BAR:
            assert not xq
            g.wlg0()
            e("s_barrier")
        if i >= BAR:
            for j in range(5):
                for _ in range(0 if i in (SFP + 6, SFP + 7) else 1):
                    if eq:
                        extra[j].append(eq.pop(0))
        for j in range(5):
            phi = st * 5 + j
            src = ar(4 * phi, 4) if phi < 64 else vr(vWDV + 4 * (phi - 64), 4)
            Cs = "0" if st == 0 else vr(A0 + 4 * j, 4)
            e(f"v_mfma_f32_16x16x32_bf16 {vr(A0 + 4 * j, 4)}, {src}, {vr(r, 4)}, {Cs}")
            for it in extra[j]:
                g.do(it)
        if i + NB < 56:
            lateq.append(hload(i + NB))
    assert not lateq and not fq
    stamp("c_g2e", cyc=True)
    stamp("g2_loop_end")
    for it in eq:
        g.do(it)
    A0 = AC[1]
    E_ = 200
    e(f"s_mov_b32 {sT3}, {sT2}")
    g.wvm(("stl",))
    for j in range(5):
        g.lds(f"ds_read_b64_tr_b16 {vr(SR + 2 * j, 2)}, v3 offset:{512 * j}", "s")
    g.nop(2)
    align()
    for p in range(10):
        e(f"v_pk_add_f32 {vr(A0 + 2 * p, 2)}, {vr(A0 + 2 * p, 2)}, {vr(P0 + 2 * p, 2)}")
    for p in range(10):
        e(f"v_pk_mul_f32 {vr(E_ + 2 * p, 2)}, {vr(A0 + 2 * p, 2)}, s[56:57]")
    for p in range(20):
        e(f"v_exp_f32 v{E_ + p}, v{E_ + p}")
    g.wlg("s")
    for p in range(10):
        e(f"v_lshlrev_b32 v{SU + 2 * p}, 16, v{SR + p}")
        e(f"v_and_b32 v{SU + 2 * p + 1}, {sMASK}, v{SR + p}")
    align()
    for p in range(10):
        e(f"v_pk_mul_f32 {vr(A0 + 2 * p, 2)}, {vr(A0 + 2 * p, 2)}, {vr(SU + 2 * p, 2)}")
    for p in range(10):
        e(f"v_pk_add_f32 {vr(E_ + 2 * p, 2)}, {vr(E_ + 2 * p, 2)}, 1.0 op_sel_hi:[1,0]")
    for p in range(20):
        e(f"v_rcp_f32 v{E_ + p}, v{E_ + p}")
    e("s_nop 0\ns_nop 0")
    for p in range(10):
        e(f"v_pk_fma_f32 {vr(A0 + 2 * p, 2)}, {vr(A0 + 2 * p, 2)}, {vr(E_ + 2 * p, 2)}, {vr(XU + 2 * p, 2)}")
    for p in range(10):
        e(f"v_cvt_pk_bf16_f32 v{160 + p}, v{A0 + 2 * p}, v{A0 + 2 * p + 1}")
        if p % 2 == 1:
            g.lds(f"ds_write_b64 v4, {vr(160 + p - 1, 2)} offset:{16 * (p - 1)}", "ow")
    g.wlg0()
    for kk in range(3):
        g.lds(f"ds_read_b128 {vr(128 + 4 * kk, 4)}, v5 offset:{1024 * kk}", ("or", kk))
    osc = opt.get("outsc", "")
    for kk in range(3):
        g.wlg(("or", kk))
        g.vmem(f"buffer_store_dwordx4 {vr(128 + 4 * kk, 4)}, v{(12, 13, 15)[kk]}, {SOUT}, {sXO} offen{osc}", "out")
    if diag:
        g.wvm0()
        stamp("end", flush=True)
        if opt.get("dbg"):
            e("s_load_dwordx2 s[88:89], s[100:101], 96")
            e("v_readlane_b32 s92, v127, 60")
            e("s_mov_b32 s90, 64\ns_mov_b32 s91, 0x20000")
            e("v_writelane_b32 v127, s92, 1")
            e("s_not_b32 s92, s92")
            e("v_writelane_b32 v127, s92, 0")
            e("v_lshlrev_b32 v2, 2, v0")
            e("s_waitcnt lgkmcnt(0)")
            e("buffer_atomic_umax v127, v2, s[88:91], 0 offen")
            e("s_endpgm")
        e(f"s_mov_b32 s88, s16\ns_mov_b32 s89, s17\ns_mov_b32 s90, 0x1000000\ns_mov_b32 s91, 0x20000")
        e(f"s_lshl_b32 {sT1}, s2, 2\ns_add_u32 {sT1}, {sT1}, {sW}\ns_lshl_b32 {sT1}, {sT1}, 8\ns_add_u32 {sT1}, {sT1}, {TS_BASE}")
        e("v_lshlrev_b32 v2, 2, v0")
        e(f"buffer_store_dword v127, v2, s[88:91], {sT1} offen")
    g.lab("L_end")
    e("s_endpgm")
    e(".p2align 6")
    g.lab("L_spare")
    g.vm = vm0
    g.lg = []
    g.pst = []
    g.sfree = [92] if opt.get('dbg') else [92, 100]
    if diag:
        e("v_mov_b32 v127, 0")
        e("v_writelane_b32 v127, s92, 60")
    e("v_lshrrev_b32 v4, 3, v0")
    e("v_and_b32 v5, 7, v0")
    e("s_add_u32 s68, s88, L_spare - L_pc + 256")
    e("s_addc_u32 s69, s89, 0")
    e("s_mov_b32 s70, 0x2000\ns_mov_b32 s71, 0x20000")
    e("v_and_b32 v10, 15, v0")
    e(f"s_lshl_b32 {sT1}, {sW}, 11")
    e("v_lshlrev_b32 v10, 7, v10")
    g.vmem(f"buffer_load_dword v{vFL + 4}, v10, s[68:71], {sT1} offen", "cpf")
    rest_setup()
    rest_loads()
    for r3 in range(3):
        run_items(param_units(r3))
    run_items(tab_units())
    table_code(TB)
    aE, aL2 = addr_items(XYB_SP, TB)
    run_items(aL2 + aE)
    g.wvm("ln")
    stamp("ln_data")
    ln_code()
    ln_tail()
    stamp("ln_done", flush=True)
    e(f"s_lshl_b32 {sMASK}, s2, 2")
    e(f"s_add_u32 {sMASK}, {sMASK}, {LNF}")
    e(f"s_cmp_eq_u32 {sW}, 0")
    e(f"s_cselect_b32 {sMASK}, {sMASK}, {OOB}")
    e(f"v_add_u32 v{vFA}, {LNF}, v1")
    e("v_min_u32 v2, 53, v0")
    e(f"s_lshr_b32 {sF0}, {sDT}, 1")
    e(f"s_lshl_b32 {sF0}, {sF0}, 10")
    e(f"s_add_u32 {sF0}, {sF0}, {WF}")
    e(f"v_lshl_add_u32 v{vFA + 1}, v2, 4, {sF0}")
    e(f"s_mov_b32 {sK1}, {sRND}")
    rb1()
    g.wvm("par")
    tag_code()
    g.lab("L_kgen")
    g.vm = []
    kgen("s", [], 1)
    g.wall()
    e("s_barrier")
    flag_store(sMASK)
    e(f"s_mov_b32 {sMASK}, {OOB}")
    kgen_mfma()
    e(f"s_sub_u32 {sK1}, {sK1}, 1")
    e(f"s_cmp_eq_u32 {sK1}, 0")
    e("s_cbranch_scc1 L_kdone")
    e(f"s_add_u32 {sKR}, {sKR}, {2 * TC}")
    for i in range(8):
        e(f"v_add_u32 v{SC + i}, {2 * TC}, v{SC + i}")
    for i in range(6):
        e(f"v_accvgpr_mov_b32 a{APAR + i}, a{APAR + 8 + i}")
        e(f"v_accvgpr_mov_b32 a{APAR + 8 + i}, a{APAR + 16 + i}")
    e("s_waitcnt lgkmcnt(0)")
    e("s_barrier")
    e("s_branch L_kgen")
    g.lab("L_kdone")
    stamp("kdone", flush=True)
    e(f"s_cmp_lg_u32 {sW}, 0")
    e("s_cbranch_scc1 L_sp_polled")
    poll_block(vFA, True, sleep=16)
    g.lab("L_sp_polled")
    e("s_waitcnt lgkmcnt(0)")
    e("s_barrier")
    stamp("sp_lnf", flush=True)
    run_items(u_loads(sCP, 2))
    rb2(TB_G1 - TB)
    conv(False)
    e(f"s_cmp_eq_u32 {sK0}, 0")
    e("s_cbranch_scc1 L_conv_last")
    poll_block(vFA + 1, True, sleep=24)
    for phi in range(P1):
        for it in wd_load(phi):
            e(it[1] if isinstance(it, tuple) else it)
    e("s_branch L_conv_last")
    for (sl, bk, lst) in g.slow:
        g.lab(sl)
        g.sfree = [98]
        g.pst = []
        if diag:
            e("s_waitcnt lgkmcnt(0)")
        for pi, (av, n4) in enumerate(lst):
            stamp(f"slow{sl[-2:]}_{pi}", flush=True)
            poll_block(av, n4, sleep=opt.get("ssleep", 20))
        stamp(f"slow{sl[-2:]}_x", flush=True)
        e(f"s_branch {bk}")
    g.L.append(".p2align 7")
    g.L.append(".type L_tab,@object")
    g.lab("L_tab")
    tb = lane_table()
    for i in range(0, len(tb), 16):
        g.L.append(".long " + ",".join(str(x) for x in tb[i:i + 16]))
    g.L.append(f".size L_tab, {4 * len(tb)}")
    g.lab("L_codeend")

    hdr = [f"; @launch grid=(256,1,1) block=(256,1,1) lds={LDS_TOTAL}",
           '.amdgcn_target "amdgcn-amd-amdhsa--gfx950"', ".text", f".globl {KNAME}", ".p2align 8",
           f".type {KNAME},@function", f"{KNAME}:"]
    ftr = ['.section .rodata,"a"', ".p2align 6", f".amdhsa_kernel {KNAME}",
           "  .amdhsa_next_free_vgpr 512", "  .amdhsa_next_free_sgpr 102", "  .amdhsa_accum_offset 256",
           "  .amdhsa_group_segment_fixed_size 0", "  .amdhsa_kernarg_size 112", "  .amdhsa_user_sgpr_count 2",
           "  .amdhsa_user_sgpr_kernarg_segment_ptr 1", "  .amdhsa_system_sgpr_workgroup_id_x 1",
           "  .amdhsa_float_denorm_mode_32 3",
           ".end_amdhsa_kernel"]
    txt = "\n".join(hdr + g.L + ftr) + "\n"
    if diag:
        txt = txt + "; STAMPS " + ",".join(ts_names) + "\n"
    return txt


if __name__ == "__main__":
    diag = "--diag" in sys.argv
    opt = {}
    for a in sys.argv[1:]:
        if a.startswith("--") and "=" in a:
            k, v = a[2:].split("=")
            opt[k] = int(v) if v.lstrip("-").isdigit() else v.replace("_", " ")
    out = [a for a in sys.argv[1:] if not a.startswith("--")]
    s = gen(diag=diag, opt=opt)
    path = out[0] if out else "recurrent_scan__ssm_conv_s4d__geglu_ffn__prompt.s"
    open(path, "w").write(s)
    print("wrote", path, len(s), "bytes", s.count("\n"), "lines")
```

```python
import sys, struct, math

KNAME = "recurrent_scan__ssm_conv_s4d__geglu_ffn__prompt_kernel"

EPOCH = 0x0
LNF = 0x1000
WF = 0x4400
STATS = 0x8000
XNT = 0x10000
ST = 0x290000
WDP = 0x510000
HB = 0x730000
CSP = 0xDF0000
HF = 0xE26000
SF = 0xE46000
WS_END = 0xE50000
TS_BASE = 0xE60000

SLOT = 49152
MISC = 147456
LNP = 1344
CSB = MISC + 10752 + 5120
XYP = 544
YR0 = 21
XYC = 53 * XYP
XYB_SP, XYB_G1 = 0, 2 * SLOT
LNB = 2 * SLOT
TB_G1 = 157696
PB = 0
UBASE = 69632
UC = 4608
RB = UBASE + 2 * UC
RCS = 4160
RC = 4 * RCS
TC = 2624
TB = MISC
YSO = 650 * 4
SOB = 16384
EXB = 24576
XTB = 112128
STB = XTB + 12288
LDS_TOTAL = 163840
OOB = 0x7fff0000

def f2u(x):
    return struct.unpack("<I", struct.pack("<f", x))[0]

LOG2E = 1.4426950408889634
C0 = -2.0 * math.sqrt(2.0 / math.pi) * LOG2E
C1 = C0 * 0.044715


class G:
    def __init__(self):
        self.L = []
        self.vm = []
        self.lg = []
        self.nlab = 0
        self.slow = []
        self.skip = set()
        self.pst = []
        self.sfree = [92, 100]

    def flush_stamps(self):
        for (sr, lane) in self.pst:
            self.e(f"v_writelane_b32 v127, s{sr}, {lane}")
            self.sfree.append(sr)
        self.pst = []

    def e(self, s):
        for ln in s.split("\n"):
            self.L.append("    " + ln)

    def lab(self, name):
        self.L.append(name + ":")

    def newlab(self, p="L"):
        self.nlab += 1
        return f"{p}_{self.nlab}"

    def vmem(self, s, tag=None):
        if tag in self.skip:
            return
        self.e(s)
        self.vm.append(tag)

    def lds(self, s, tag=None):
        self.e(s)
        self.lg.append(tag)

    def _n(self, q, tag):
        idx = max(i for i, t in enumerate(q) if t == tag)
        return idx, sum(1 for t in q[idx + 1:] if t != "OPT")

    def wvm(self, tag):
        if tag not in self.vm:
            return
        idx, n = self._n(self.vm, tag)
        self.e(f"s_waitcnt vmcnt({min(n, 63)})")
        self.vm = self.vm[idx + 1:]

    def wlg(self, tag):
        if tag not in self.lg:
            return
        idx, n = self._n(self.lg, tag)
        self.e(f"s_waitcnt lgkmcnt({min(n, 15)})")
        self.lg = self.lg[idx + 1:]

    def wvm0(self):
        self.e("s_waitcnt vmcnt(0)")
        self.vm = []

    def wlg0(self):
        self.e("s_waitcnt lgkmcnt(0)")
        self.lg = []
        self.flush_stamps()

    def wall(self):
        self.e("s_waitcnt vmcnt(0) lgkmcnt(0)")
        self.vm = []
        self.lg = []
        self.flush_stamps()

    def nop(self, n):
        while n > 0:
            k = min(n, 16)
            self.e(f"s_nop {k - 1}")
            n -= k

    def do(self, item):
        if callable(item):
            item()
        elif isinstance(item, tuple):
            kind = item[0]
            if kind == "vm":
                self.vmem(item[1], item[2])
            elif kind == "lds":
                self.lds(item[1], item[2])
            elif kind == "wvm":
                self.wvm(item[1])
            elif kind == "wlg":
                self.wlg(item[1])
            else:
                raise ValueError(kind)
        else:
            self.e(item)


def vr(a, n):
    return f"v[{a}:{a + n - 1}]"


def ar(a, n):
    return f"a[{a}:{a + n - 1}]"


SX, SWG, SWU, SWS, SOUT, SWD = "s[4:7]", "s[8:11]", "s[12:15]", "s[16:19]", "s[20:23]", "s[24:27]"
P_LAR, P_AIM, P_CRE, P_CIM, P_LDT, P_DSK = "s[28:29]", "s[30:31]", "s[32:33]", "s[34:35]", "s[36:37]", "s[38:39]"
sW, sTAG, sM, sFT, sISG1, sCP, sRND, sSP = "s40", "s41", "s42", "s43", "s44", "s45", "s46", "s47"
sXCD, sQ = "s48", "s49"
sXM0, sWM0, sXS, sWSO = "s50", "s51", "s52", "s53"
sT0, sT1, sT2, sT3, sT4, sT5 = "s54", "s55", "s56", "s57", "s58", "s59"
sMASK, sCNT = "s60", "s61"
sRHO, sC = "s62", "s63"
sHS0, sHS1 = "s64", "s65"
sG2 = 66
STW = "s[96:99]"
sF0, sF1, sF2 = "s0", "s1", "s3"
sLT, sDT = "s82", "s83"
sWDS = "s84"
sPEND, sXO = "s85", "s86"
sKR = "s87"
sXT, sSTO = "s94", "s95"
sK0, sK1 = "s96", "s97"

vT = 2
vXO = 16
vWO = 24
vBA = 26
vAA = 30
vCS = 42
vHO = 44
vTO = 46
vSTA = 48
vU = 56
vAF = 64
vBF = 96
vPAR = 112
vFA = 118
vEP = 120
vFL = 122
vACC = 128
SC = 224
GA = 24
AST = 224
AS2 = 192
PKB = MISC
vWDV = 232


def bf16_idx(l):
    if l < 0:
        return -1
    if l < 256:
        return l
    u = f2u(float(l))
    u = (u + 0x7fff + ((u >> 16) & 1)) >> 16
    return u - 0x4280


def lane_table():
    out = []
    for w in range(4):
        c, rho = w >> 1, w & 1
        rows = []
        for ln in range(64):
            n, kg = ln & 15, ln >> 4
            E = [0] * 48
            E[3] = (UBASE + c * UC + rho * 256 + ln * 16) if ln < 16 else (RB + 4096 + c * RC + rho * 2 * RCS + ((ln >> 1) & 1) * RCS + (ln & 1) * 16)
            E[4] = RB + c * RC + rho * 2048 + ln * 16
            E[5] = UBASE + 512 + w * 1024 + (ln & 1) * UC + (ln >> 1) * 16
            E[6] = TB_G1 + c * TC
            E[7] = RB + 24 + 256 + c * RC - rho * 256 + ((3 - n) & 3) * RCS + kg * 16 - (n & 12) * 2
            E[8] = UBASE + 32 + 256 + c * UC - rho * 256 + n * 32 + kg * 16
            E[9] = w * 4096 + ln * 16
            E[10] = E[9] ^ 0x1000
            E[11] = UBASE + 512 + c * UC + rho * 2048 + n * 32 + kg * 8
            E[12] = SOB + w * 2048 + n * 32 + kg * 8
            E[13] = SOB + w * 2048 + ln * 16
            for k in range(3):
                E[14 + k] = ((w + k + 1) & 3) * 15360 + EXB + 5120 * k + ln * 16
                ix = 64 * k + ln
                E[17 + k] = (ix // 10) * 1280 + (ix % 10) * 16
            E[20] = E[19] if ln < 32 else OOB
            E[23] = (ln >> 1) * 10240 + (ln & 1) * 16
            for ch in range(2):
                for k in range(11):
                    l = 2047 - 1024 * rho - 8 * ln - 512 * ch - k
                    E[24 + 11 * ch + k] = TB_G1 + 4 + c * TC + 4 * bf16_idx(l)
            rows.append(E)
        for q in range(12):
            for ln in range(64):
                out += rows[ln][4 * q:4 * q + 4]
    return out


def gen(diag=False, opt=None):
    opt = opt or {}
    TOUCH = opt.get("touch", 0)
    P1 = opt.get("p1", 32)
    KCHK = opt.get("kchk", 29)
    NT = " nt" if opt.get("nt", 1) else ""
    g = G()
    e = g.e
    if opt.get('nolnst'):
        g.skip.add('lnst')
    ts_names = []
    vTAG, vL0 = vEP, vEP + 1

    def stamp(name, cyc=False, flush=False):
        if not diag:
            return
        if opt.get("dbg"):
            sel = ["x0", "x1", "par_data", "kdone", "g1_start", "g1_loop_end", "g1_epi_end", "conv_startL", "conv_endL", "g2_start", "g2_loop_end", "end", "sp_lnf", "conv_startE"]
            if name not in sel:
                return
            ts_names[:] = sel
        if name not in ts_names:
            ts_names.append(name)
        i = ts_names.index(name)
        if not g.sfree:
            g.wlg0()
        sr = g.sfree.pop(0)
        e(f"{'s_memtime' if cyc else 's_memrealtime'} s[{sr}:{sr + 1}]")
        g.pst.append((sr, i))
        if flush:
            g.wlg0()

    def interleave(fn, units, every):
        n0 = len(g.L)
        fn()
        body = g.L[n0:]
        del g.L[n0:]
        cnt = 0
        for bi, ln in enumerate(body):
            g.L.append(ln)
            if ln.strip().startswith(".") or ln.strip().endswith(":"):
                continue
            cnt += 1
            nxt_ = body[bi + 1].strip() if bi + 1 < len(body) else ""
            if nxt_.startswith(("s_cselect", "s_addc", "s_cbranch")):
                continue
            if units and cnt >= every:
                u = units[0]
                if isinstance(u, tuple) and u[0] == "m0":
                    e(u[1])
                    units.pop(0)
                    cnt = every - 1
                else:
                    g.do(u)
                    units.pop(0)
                    cnt = 0 if isinstance(u, tuple) else every - 1

    def align():
        e(".p2align 3")

    def red(op, v, t, full):
        for dpp in ("quad_perm:[1,0,3,2]", "quad_perm:[2,3,0,1]", "row_half_mirror", "row_mirror"):
            g.nop(2)
            e(f"{op} v{v}, v{v}, v{v} {dpp}")
        e(f"v_mov_b32 v{t}, v{v}")
        g.nop(2)
        e(f"v_permlane16_swap_b32 v{v}, v{t}")
        g.nop(1)
        e(f"{op} v{v}, v{v}, v{t}")
        if full:
            e(f"v_mov_b32 v{t}, v{v}")
            g.nop(2)
            e(f"v_permlane32_swap_b32 v{v}, v{t}")
            g.nop(1)
            e(f"{op} v{v}, v{v}, v{t}")

    def bf16round(v):
        e(f"v_cvt_pk_bf16_f32 v{v}, v{v}, v{v}")
        e(f"v_lshlrev_b32 v{v}, 16, v{v}")

    def check4(tmp):
        return [f"v_xor_b32 v{tmp}, v{vTAG}, v{tmp}", f"v_xor_b32 v{tmp + 1}, v{vTAG}, v{tmp + 1}",
                f"v_xor_b32 v{tmp + 2}, v{vTAG}, v{tmp + 2}", f"v_xor_b32 v{tmp + 3}, v{vTAG}, v{tmp + 3}",
                f"v_or3_b32 v{tmp}, v{tmp}, v{tmp + 1}, v{tmp + 2}", f"v_or_b32 v{tmp}, v{tmp}, v{tmp + 3}",
                f"v_cmp_ne_u32 vcc, 0, v{tmp}"]

    def poll_block(addr_v, n4, sleep=opt.get('sleep', 8)):
        lp = g.newlab("Lpoll")
        dn = g.newlab("Lpd")
        tmp = vFL
        e(f"s_mov_b32 {sCNT}, 0x4000")
        g.lab(lp)
        if n4:
            e(f"buffer_load_dwordx4 {vr(tmp, 4)}, v{addr_v}, {SWS}, 0 offen sc1")
            e("s_waitcnt vmcnt(0)")
            for x in check4(tmp):
                e(x)
        else:
            e(f"buffer_load_dword v{tmp}, v{addr_v}, {SWS}, 0 offen sc1")
            e("s_waitcnt vmcnt(0)")
            e(f"v_cmp_ne_u32 vcc, v{vTAG}, v{tmp}")
        e(f"s_cbranch_vccz {dn}")
        e(f"s_sleep {sleep}")
        e(f"s_sub_u32 {sCNT}, {sCNT}, 1")
        e(f"s_cbranch_scc0 {lp}")
        g.lab(dn)

    def flag_store(soff):
        e(f"buffer_store_dword v{vTAG}, v{vL0}, {SWS}, {soff} offen sc1")

    def wd_load(phi):
        dst = ar(4 * phi, 4) if phi < 64 else vr(vWDV + 4 * (phi - 64), 4)
        pre = []
        if phi >= 65:
            if phi == 65 or phi == 68:
                pre.append(f"s_add_u32 {sT5}, {sWDS}, {(phi // 4) * 4096}")
                pre.append(f"s_cmp_lt_u32 {sW}, 2\ns_cselect_b32 {sT5}, {sT5}, {OOB}")
        elif phi % 4 == 0:
            pre.append(f"s_add_u32 {sT5}, {sWDS}, {(phi // 4) * 4096}")
        return pre + [("vm", f"buffer_load_dwordx4 {dst}, v1, {SWS}, {sT5} offen offset:{(phi % 4) * 1024} sc1", ("wd", phi))]

    def u_loads(cpreg, va):
        return [f"v_accvgpr_read_b32 v{va}, a{AS2 + 23}",
                f"s_mul_i32 {sF0}, {sW}, {64 * 10240}",
                f"s_lshl_b32 {sF1}, {cpreg}, 5",
                f"s_add_u32 {sF0}, {sF0}, {sF1}",
                f"s_add_u32 {sF0}, {sF0}, {XNT}",
                f"s_add_u32 {sF1}, {sF0}, {32 * 10240}",
                ("vm", f"buffer_load_dwordx4 {vr(vU, 4)}, v{va}, {SWS}, {sF0} offen sc1", "u"),
                ("vm", f"buffer_load_dwordx4 {vr(vU + 4, 4)}, v{va}, {SWS}, {sF1} offen sc1", "u")]

    def tab_units():
        out = []
        for q in range(12):
            if q % 4 == 0:
                out.append(f"s_mul_i32 {sT4}, {sW}, 12288\ns_add_u32 {sT4}, {sT4}, L_tab - L_pc + {1024 * q}")
            dst = ar(AS2 + 4 * q, 4) if q < 6 else ar(AST + 8 + 4 * (q - 6), 4)
            out.append(("vm", f"buffer_load_dwordx4 {dst}, v1, s[88:91], {sT4} offen offset:{1024 * (q % 4)}", "tab"))
        return out

    def table_code(TB):
        def put(i, src):
            e(f"v_lshl_add_u32 v{src}, v{src}, 2, {sF2}")
            e(f"v_accvgpr_write_b32 a{AST + i}, v{src}")
        e(f"s_mul_i32 {sF2}, {sC}, {TC}")
        e(f"s_add_u32 {sF2}, {sF2}, {TB + 4}")
        e("v_lshrrev_b32 v4, 4, v0")
        e(f"s_lshl_b32 {sF1}, {sRHO}, 2")
        e(f"v_add_u32 v4, {sF1}, v4")
        e("v_and_b32 v5, 15, v0")
        DUM = 645
        e("v_cmp_eq_u32 s[54:55], 2, v4")
        e("v_cmp_eq_u32 s[56:57], 3, v4")
        e("v_cmp_eq_u32 s[58:59], 4, v4")
        e("v_cmp_lt_u32 vcc, 4, v4")
        e("v_mov_b32 v6, 8")
        e("v_cndmask_b32 v6, v6, 4, s[54:55]")
        e("v_cndmask_b32 v6, v6, 2, s[56:57]")
        e("v_cndmask_b32 v6, v6, 1, s[58:59]")
        e("v_cndmask_b32 v6, v6, 0, vcc")
        e("v_mul_u32_u24 v7, v6, v5")
        e("v_lshlrev_b32 v8, 4, v6")
        for i in range(4):
            e(f"v_lshl_add_u32 v9, v4, 2, {i}")
            for sreg, val in (("s[54:55]", 256 + i), ("s[56:57]", 384 + 64 * (i >> 1) + (i & 1)), ("s[58:59]", 512 + 32 * i), ("vcc", DUM)):
                e(f"v_mov_b32 v10, {val}")
                e(f"v_cndmask_b32 v9, v9, v10, {sreg}")
            e("v_add_u32 v9, v9, v7")
            e("v_add_u32 v11, v9, v8")
            if i == 0:
                e("v_lshl_add_u32 v6, v4, 4, v5")
                e("v_mov_b32 v10, 80")
                e("v_cmp_eq_u32 s[60:61], v10, v6")
                e("v_mov_b32 v10, 640")
                e("s_nop 0")
                e("v_cndmask_b32 v9, v9, v10, s[60:61]")
            put(i, 9)
            put(4 + i, 11)

    def gather_items(TB):
        it = [f"s_mul_i32 {sF2}, {sC}, {TC}", f"s_add_u32 {sF2}, {sF2}, {TB + 4}",
              f"s_lshl_b32 {sF1}, {sRHO}, 10", f"s_sub_u32 {sF1}, 2047, {sF1}", "v_lshlrev_b32 v12, 3, v0",
              f"v_sub_u32 v12, {sF1}, v12", f"s_movk_i32 {sF1}, 128"]
        for ch in range(2):
            for k in range(11):
                it += [f"v_subrev_u32 v2, {512 * ch + k}, v12", "v_max_i32 v3, 0, v2", "v_cvt_f32_u32 v3, v3",
                       f"v_med3_i32 v2, v2, -1, {sF1}", "v_cvt_pk_bf16_f32 v3, v3, 0", "v_subrev_u32 v3, 0x4280, v3",
                       "v_max_i32 v2, v2, v3", f"v_lshl_add_u32 v2, v2, 2, {sF2}",
                       f"v_accvgpr_write_b32 a{AST + 8 + 11 * ch + k}, v2"]
        return it

    def addr_items(XYB, TB):
        it = []
        A = it.append
        def st(i, r):
            A(f"v_accvgpr_write_b32 a{AS2 + i}, v{r}")
        A(f"s_mul_i32 {sF0}, {sC}, {XYC}")
        A(f"s_add_u32 {sF0}, {sF0}, {XYB}")
        A(f"v_lshl_add_u32 v2, v0, 3, {sF0}")
        st(0, 2)
        A("v_and_b32 v12, 15, v0")
        A("v_lshrrev_b32 v13, 4, v0")
        A(f"v_mul_u32_u24 v2, {XYP}, v12")
        A("v_lshl_add_u32 v2, v13, 4, v2")
        A(f"v_add_u32 v3, {sF0}, v2")
        st(2, 3)
        A(f"s_mul_i32 {sF1}, {sRHO}, {16 * XYP}")
        A(f"v_add_u32 v3, {sF1}, v3")
        st(1, 3)
        A(f"s_mul_i32 {sF2}, {sC}, {TC}")
        A(f"s_add_u32 {sF2}, {sF2}, {TB}")
        A(f"v_mov_b32 v2, {sF2}")
        st(6, 2)
        A("EARLY_END")
        A(f"s_mul_i32 {sF0}, {sW}, 14")
        A(f"s_cmp_eq_u32 {sW}, 3\ns_cselect_b32 {sF1}, 1, 0")
        A(f"s_sub_u32 {sF0}, {sF0}, {sF1}")
        A(f"s_mul_i32 {sF1}, {sDT}, 54")
        A(f"s_add_u32 {sF1}, {sF0}, {sF1}")
        A(f"s_mul_i32 {sF1}, {sF1}, 5120")
        A(f"s_add_u32 {sWDS}, {sF1}, {WDP}")
        for k in range(4):
            A(f"s_add_u32 {sF1}, {sW}, {k + 1}")
            A(f"s_and_b32 {sF1}, {sF1}, 3")
            A(f"s_lshl_b32 {sF2}, {sLT}, 2")
            A(f"s_add_u32 {sF1}, {sF1}, {sF2}")
            A(f"s_mul_i32 {sF1}, {sF1}, 54")
            A(f"s_add_u32 {sF1}, {sF1}, {sF0}")
            A(f"s_lshl_b32 {sF1}, {sF1}, 10")
            A(f"s_add_u32 s{sG2 + 4 * k}, {sF1}, {HB}")
            for q in range(1, 4):
                A(f"s_add_u32 s{sG2 + 4 * k + q}, s{sG2 + 4 * k}, {4096 * q}")
        A(f"s_lshl_b32 {sXO}, {sLT}, 2")
        A(f"s_add_u32 {sXO}, {sXO}, {sW}")
        A(f"s_mul_i32 {sXO}, {sXO}, {16 * 1280}")
        A(f"s_mul_i32 {sF0}, {sDT}, 160")
        A(f"s_add_u32 {sXO}, {sXO}, {sF0}")
        A(f"s_mul_i32 {sXT}, {sW}, 3072")
        A(f"s_add_u32 {sXT}, {sXT}, {XTB}")
        A(f"s_mul_i32 {sSTO}, {sDT}, 80")
        A(f"s_lshl_b32 {sSTO}, {sSTO}, 12")
        A(f"s_lshl_b32 {sF0}, {sLT}, 2")
        A(f"s_add_u32 {sF0}, {sF0}, {sW}")
        A(f"s_lshl_b32 {sF0}, {sF0}, 5")
        A(f"s_add_u32 {sSTO}, {sSTO}, {sF0}")
        A(f"s_add_u32 {sSTO}, {sSTO}, {ST}")
        A(("wvm", "tab"))
        A(f"s_lshl_b32 {sF0}, {sLT}, 12")
        A(f"s_add_u32 {sF0}, {sF0}, {HF}")
        A("v_min_u32 v2, 26, v0")
        A(f"v_lshl_add_u32 v2, v2, 7, {sF0}")
        st(21, 2)
        A(f"s_mul_i32 {sF0}, {sDT}, {40 * 128}")
        A(f"s_add_u32 {sF0}, {sF0}, {SF}")
        A("v_min_u32 v2, 39, v0")
        A(f"v_lshl_add_u32 v2, v2, 7, {sF0}")
        st(22, 2)
        k_ = it.index("EARLY_END")
        return it[:k_], it[k_ + 1:]

    e("s_cmp_ge_u32 s2, 256")
    e("s_cbranch_scc1 L_end")
    if diag:
        e("s_memrealtime s[92:93]")
    if opt.get("dbg"):
        e("s_mov_b64 s[100:101], s[0:1]")
        g.sfree = [92]
    e("s_getpc_b64 s[88:89]")
    g.lab("L_pc")
    e("s_load_dwordx2 s[4:5], s[0:1], 0")
    e("s_load_dwordx2 s[16:17], s[0:1], 104")
    e("s_load_dwordx2 s[8:9], s[0:1], 64")
    e("s_load_dwordx2 s[12:13], s[0:1], 72")
    e("s_load_dwordx4 s[28:31], s[0:1], 8")
    e("s_load_dwordx4 s[32:35], s[0:1], 24")
    e("s_load_dwordx4 s[36:39], s[0:1], 40")
    e("s_load_dwordx4 s[64:67], s[0:1], 80")
    NSP = opt.get("nsp", 0)
    for i in range(NSP):
        e(f"s_load_dword s{66 + i}, s[88:89], {256 + 128 * i}")
    e("v_lshrrev_b32 v2, 6, v0")
    e("v_and_b32 v3, 15, v0")
    e("s_mov_b32 s90, L_codeend - L_pc")
    e("s_mov_b32 s91, 0x20000")
    e("v_lshl_add_u32 v3, v2, 4, v3")
    e(f"v_readfirstlane_b32 {sW}, v2")
    e("v_lshlrev_b32 v3, 7, v3")
    if opt.get("cpf0", 1):
        e(f"buffer_load_dword v{vFL + 3}, v3, s[88:91], 0 offen offset:{min(256 + 128 * NSP, 4000)}")
        g.vm.append("cpf")
    e("v_and_b32 v0, 63, v0")
    e("s_mov_b32 s6, 2621440\ns_mov_b32 s7, s91")
    e("v_lshrrev_b32 v2, 5, v0")
    e("v_and_b32 v3, 31, v0")
    e("v_mul_u32_u24 v2, 0x500, v2")
    e(f"s_lshl2_add_u32 {sT0}, s2, {sW}")
    e("v_lshl_add_u32 v2, v3, 3, v2")
    e(f"s_mulk_i32 {sT0}, 2560")
    e(f"s_lshr_b32 {sQ}, s2, 3")
    e(f"s_bfe_u32 {sT1}, s2, 0x20001")
    e(f"s_and_b32 {sM}, s2, 1")
    e(f"s_and_b32 {sT2}, {sQ}, 3")
    e(f"s_lshr_b32 {sDT}, {sQ}, 2")
    e(f"s_lshl2_add_u32 {sM}, {sM}, {sT2}")
    e(f"s_mul_i32 {sFT}, {sT1}, 7")
    e(f"s_add_u32 {sFT}, {sFT}, {sDT}")
    e(f"s_mul_i32 {sCP}, {sM}, 27")
    e(f"s_add_u32 {sCP}, {sCP}, {sFT}")
    e(f"s_lshr_b32 {sC}, {sW}, 1")
    e(f"s_lshl1_add_u32 {sT1}, {sCP}, {sC}")
    e(f"s_lshl_b32 {sT1}, {sT1}, 8")
    e(f"v_lshl_add_u32 v12, v0, 2, {sT1}")
    e(f"s_lshl_b32 {sT1}, {sCP}, 2")
    e(f"v_mov_b32 v13, {sT1}")
    e(f"s_cmp_lt_u32 {sDT}, 7")
    e(f"s_cselect_b32 {sT3}, {sFT}, 27")
    e(f"s_cmp_lt_u32 {sT3}, 27")
    e(f"s_cselect_b32 {sISG1}, 1, 0")
    e("s_waitcnt lgkmcnt(0)")
    for i in range(opt.get("ns2", 0)):
        e(f"s_load_dword s93, s[88:89], {opt.get('ns2o', 384) + 128 * i}")
    LX = 232
    for q in range(5):
        g.vmem(f"buffer_load_dwordx2 {vr(LX + 2 * q, 2)}, v2, {SX}, {sT0} offen offset:{256 * q}", "ln")
    e("s_cbranch_scc0 L_spare")
    if diag:
        e("v_mov_b32 v127, 0")
        e("v_writelane_b32 v127, s92, 60")
    stamp("start")
    APAR = 160
    for k, p in enumerate((P_LAR, P_AIM, P_CRE, P_CIM)):
        g.vmem(f"global_load_dword a{APAR + k}, v12, {p}{NT}", "par")
    g.vmem(f"global_load_dword a{APAR + 4}, v13, {P_LDT}", "par")
    g.vmem(f"global_load_dword a{APAR + 5}, v13, {P_DSK}", "par")
    if diag and not opt.get("dbg") and False:
        e("s_memrealtime s[100:101]\ns_waitcnt lgkmcnt(0)\nv_writelane_b32 v127, s100, 56")
    if opt.get("coop", 1):
        e(f"s_mul_i32 {sT1}, {sDT}, 37")
        e(f"s_mul_i32 {sT3}, {sW}, 10")
        e(f"s_lshl_b32 {sT4}, {sM}, 8")
        e(f"s_add_u32 {sT1}, {sT1}, {sT3}")
        e(f"s_add_u32 {sT1}, {sT1}, {sT4}")
        e("v_min_u32 v4, 9, v0")
        e(f"s_mulk_i32 {sT1}, 1280")
        e("v_mul_u32_u24 v4, 0x500, v4")
        e(f"s_cmp_eq_u32 {sC}, 0\ns_cselect_b32 s96, s8, s12\ns_cselect_b32 s97, s9, s13")
        for q in range(3):
            g.vmem(f"buffer_load_dword v{vFL + 4}, v4, {SX}, {sT1} offen offset:{128 * q}", "coop")
        e(f"s_and_b32 {sT1}, {sW}, 1")
        e(f"s_lshl1_add_u32 {sT1}, {sT2}, {sT1}")
        e("v_min_u32 v5, 23, v0")
        e(f"s_mul_i32 {sT1}, {sT1}, {24 * 3456}")
        e(f"s_lshl_b32 {sT3}, {sFT}, 7")
        e("v_mul_u32_u24 v5, 3456, v5")
        e(f"s_add_u32 {sT1}, {sT1}, {sT3}")
        e("s_mov_b32 s98, 2211840\ns_mov_b32 s99, 0x20000")
        g.vmem(f"buffer_load_dword v{vFL + 4}, v5, {STW}, {sT1} offen", "coop")
    e("v_lshrrev_b32 v4, 3, v0")
    e("v_and_b32 v5, 7, v0")
    e("v_lshrrev_b32 v6, 4, v0")
    e("v_mul_u32_u24 v7, 3456, v4")
    e("v_and_b32 v8, 1, v6")
    e("v_lshlrev_b32 v8, 1, v8")
    e("v_xor_b32 v8, v5, v8")
    e(f"v_lshl_add_u32 v{vWO}, v8, 4, v7")
    e(f"s_lshl_b32 {sWM0}, {sW}, 11")
    e(f"s_mul_i32 {sWSO}, {sW}, {16 * 3456}")
    e(f"s_lshl_b32 {sT1}, {sFT}, 7")
    e(f"s_add_u32 {sWSO}, {sWSO}, {sT1}")
    e("v_xor_b32 v8, 4, v8")
    e("v_lshl_add_u32 v8, v8, 4, v7")
    e(f"v_add_u32 v{vWO + 1}, {8 * 3456 - 1024}, v8")
    e("s_mov_b32 s10, 2211840\ns_mov_b32 s11, 0x20000")
    e("s_mov_b32 s14, s10\ns_mov_b32 s15, 0x20000")

    def rest_setup():
        e(f"s_and_b32 {sXCD}, s2, 7")
        e("s_mov_b64 s[24:25], s[64:65]")
        e("s_mov_b64 s[20:21], s[66:67]")
        e("v_lshlrev_b32 v1, 4, v0")
        e(f"s_mov_b32 s18, {WS_END}\ns_mov_b32 s19, 0x20000")
        e(f"v_mov_b32 v{vL0}, {OOB}")
        e(f"v_writelane_b32 v{vL0}, 0, 0")
        e("s_mov_b32 s22, 2621440\ns_mov_b32 s23, 0x20000")
        e("s_mov_b32 s26, 2211840\ns_mov_b32 s27, 0x20000")
        e(f"s_lshl_b32 {sT4}, {sXCD}, 2")
        e(f"s_and_b32 {sT2}, {sQ}, 3")
        if opt.get("map2", 1):
            e(f"s_lshr_b32 {sLT}, {sXCD}, 1")
            e(f"s_and_b32 {sT2}, {sQ}, 7")
            e(f"s_lshl3_add_u32 {sLT}, {sLT}, {sT2}")
            e(f"s_and_b32 {sT2}, {sXCD}, 1")
            e(f"s_lshr_b32 {sDT}, {sQ}, 3")
            e(f"s_lshl2_add_u32 {sDT}, {sT2}, {sDT}")
        else:
            e(f"s_add_u32 {sLT}, {sT4}, {sT2}")
        e(f"s_add_u32 {sT4}, {sT4}, {sQ}")
        e(f"s_sub_u32 {sT4}, {sT4}, 28")
        e(f"s_lshl_b32 {sT5}, {sXCD}, 3")
        e(f"s_add_u32 {sT5}, {sT5}, {sQ}")
        e(f"s_sub_u32 {sT5}, {sT5}, 48")
        e(f"s_cmp_lt_u32 {sXCD}, 6\ns_cselect_b32 {sSP}, {sT4}, {sT5}")
        e(f"s_mul_i32 {sT4}, {sM}, 27")
        e(f"s_add_u32 {sT4}, {sT4}, {sFT}")
        e(f"s_add_u32 {sT5}, {sSP}, 216")
        e(f"s_cmp_lg_u32 {sISG1}, 0\ns_cselect_b32 {sCP}, {sT4}, {sT5}")
        e(f"s_cmp_lt_u32 {sSP}, 24\ns_cselect_b32 {sRND}, 3, 2")
        e(f"s_and_b32 {sRHO}, {sW}, 1")
        e(f"s_lshr_b32 {sC}, {sW}, 1")
        e("v_lshlrev_b32 v10, 21, v0")
        e(f"v_mov_b32 v{vFA}, v1")
        e(f"v_mov_b32 v{vFA + 1}, v1")
        e(f"v_mul_u32_u24 v54, {3456 if opt.get('csc', 1) else 17280}, v4")
        e("v_lshl_add_u32 v54, v5, 4, v54")
        e(f"s_lshl_b32 {sHS0}, {sM}, 1")
        e(f"s_add_u32 {sHS0}, {sHS0}, {sRHO}")
        e(f"s_mul_i32 {sHS0}, {sHS0}, {40 * 3456}")
        e(f"s_lshl_b32 {sT1}, {sFT}, 7")
        e(f"s_add_u32 {sHS0}, {sHS0}, {sT1}")
        e("s_mov_b32 s98, 2211840\ns_mov_b32 s99, 0x20000")
        e(f"s_cmp_eq_u32 {sC}, 0\ns_cselect_b32 s96, s8, s12\ns_cselect_b32 s97, s9, s13")
        e(f"s_lshl_b32 {sT1}, {sQ}, 2")
        e(f"s_add_u32 {sT1}, {sT1}, {sW}")
        e(f"s_mul_i32 {sT1}, {sT1}, 768")
        e(f"s_add_u32 {sT1}, {sT1}, {8192 + min(256 + 128 * NSP, 4000)}")
        e("v_min_u32 v11, 5, v0")
        e("v_lshlrev_b32 v11, 7, v11")

    def rest_loads():
        g.vmem(f"buffer_load_dword v{vTAG}, v{vL0}, {SWS}, 0 offen sc1", "ep")
        g.vmem(f"buffer_load_dword v{vFL + 2}, v11, s[88:91], {sT1} offen", "tlb")
        if opt.get("tlb", 0):
            g.vmem(f"buffer_load_dword v{vFL}, v10, {SWS}, 0 offen", "tlb")
            g.vmem(f"buffer_load_dword v{vFL + 1}, v10, {SOUT}, 0 offen", "tlb")

    def dma_units(stage):
        sb = (stage % 3) * SLOT
        out = []
        for mat in range(2):
            out.append(("m0", f"s_add_u32 m0, {sWM0}, {sb + mat * 8192}"))
            for half in range(2):
                o = f" offset:{1024 * half}" if half else ""
                out.append(("vm", f"buffer_load_dwordx4 v{vWO + half}, {SWG if mat == 0 else SWU}, {sWSO} offen{o} lds", ("dma", stage)))
        for i in range(8):
            if i % 4 == 0:
                out.append(("m0", f"s_add_u32 m0, {sXM0}, {sb + i * 1024}"))
            o = f" offset:{1024 * (i & 3)}" if i & 3 else ""
            out.append(("vm", f"buffer_load_dwordx4 v{vXO + i}, {SX}, {sXS} offen{o} lds", ("dma", stage)))
        out.append(f"s_add_u32 {sXS}, {sXS}, 128")
        out.append(f"s_add_u32 {sWSO}, {sWSO}, {64 * 3456}")
        return out

    def dma_block(stage):
        for u in dma_units(stage):
            if isinstance(u, tuple) and u[0] == "m0":
                e(u[1])
                e("s_nop 0")
            else:
                g.do(u)

    APAR = 160
    def param_units(rnd):
        out = [f"s_add_u32 {sT2}, {sCP}, {40 * rnd}", f"s_min_u32 {sT2}, {sT2}, 319",
               f"s_lshl_b32 {sT1}, {sT2}, 1", f"s_add_u32 {sT1}, {sT1}, {sC}", f"s_lshl_b32 {sT1}, {sT1}, 8",
               f"v_lshl_add_u32 v12, v0, 2, {sT1}", f"s_lshl_b32 {sT1}, {sT2}, 2", f"v_mov_b32 v13, {sT1}"]
        for k, p in enumerate((P_LAR, P_AIM, P_CRE, P_CIM)):
            out.append(("vm", f"global_load_dword a{APAR + 8 * rnd + k}, v12, {p}{NT}", "par"))
        out.append(("vm", f"global_load_dword a{APAR + 8 * rnd + 4}, v13, {P_LDT}", "par"))
        out.append(("vm", f"global_load_dword a{APAR + 8 * rnd + 5}, v13, {P_DSK}", "par"))
        return out

    CSR = [56, 60, 112, 116, 52]
    def csl_units():
        out = []
        for j5 in range(5):
            if opt.get("csc", 1):
                if j5:
                    out.append(f"s_add_u32 {sHS0}, {sHS0}, {8 * 3456}")
                out.append(("vm", f"buffer_load_dwordx4 {vr(CSR[j5], 4)}, v54, {STW}, {sHS0} offen", ("csl", j5)))
                continue
            if j5 in (2, 4):
                out.append(f"s_add_u32 {sHS0}, {sHS0}, {2 * 3456}")
            out.append(("vm", f"buffer_load_dwordx4 {vr(CSR[j5], 4)}, v54, {STW}, {sHS0} offen offset:{(j5 % 2) * 3456}", ("csl", j5)))
        return out
    def emit_units(us):
        for u in us:
            if isinstance(u, tuple) and u[0] == "m0":
                e(u[1])
                e("s_nop 0")
            else:
                g.do(u)

    def split_units(us, n):
        c = 0
        for ix, u in enumerate(us):
            if isinstance(u, tuple) and u[0] == "vm":
                c += 1
                if c == n:
                    return us[:ix + 1], us[ix + 1:]
        return us, []

    def run_items(items):
        for it in items:
            g.do(it)

    F, S, Dv, SO, UO = 140, 160, 164, 184, 188
    def ln_code(bar=False):
        for q in range(10):
            e(f"v_lshlrev_b32 v{F + 2 * q}, 16, v{LX + q}")
            e(f"v_and_b32 v{F + 2 * q + 1}, 0xffff0000, v{LX + q}")
        e(f"v_pk_add_f32 {vr(S, 2)}, {vr(F, 2)}, {vr(F + 2, 2)}")
        e(f"v_pk_add_f32 {vr(S + 2, 2)}, {vr(F + 4, 2)}, {vr(F + 6, 2)}")
        for q in range(4, 10, 2):
            e(f"v_pk_add_f32 {vr(S, 2)}, {vr(S, 2)}, {vr(F + 2 * q, 2)}")
            e(f"v_pk_add_f32 {vr(S + 2, 2)}, {vr(S + 2, 2)}, {vr(F + 2 * q + 2, 2)}")
        e(f"v_pk_add_f32 {vr(S, 2)}, {vr(S, 2)}, {vr(S + 2, 2)}")
        e(f"v_add_f32 v{S}, v{S}, v{S + 1}")
        red("v_add_f32", S, S + 1, False)
        e(f"v_mul_f32 v{S}, {hex(f2u(1.0 / 640))}, v{S}")
        for q in range(10):
            e(f"v_pk_add_f32 {vr(Dv + 2 * q, 2)}, {vr(F + 2 * q, 2)}, {vr(S, 2)} op_sel_hi:[1,0] neg_lo:[0,1] neg_hi:[0,1]")
        e(f"v_pk_mul_f32 {vr(S + 2, 2)}, {vr(Dv, 2)}, {vr(Dv, 2)}")
        e(f"v_pk_mul_f32 {vr(S + 24, 2)}, {vr(Dv + 2, 2)}, {vr(Dv + 2, 2)}")
        for q in range(2, 10):
            r = S + 2 if q % 2 == 0 else S + 24
            e(f"v_pk_fma_f32 {vr(r, 2)}, {vr(Dv + 2 * q, 2)}, {vr(Dv + 2 * q, 2)}, {vr(r, 2)}")
        e(f"v_pk_add_f32 {vr(S + 2, 2)}, {vr(S + 2, 2)}, {vr(S + 24, 2)}")
        e(f"v_add_f32 v{S + 2}, v{S + 2}, v{S + 3}")
        red("v_add_f32", S + 2, S + 3, False)
        e(f"v_mul_f32 v{S + 2}, {hex(f2u(1.0 / 640))}, v{S + 2}")
        bf16round(S + 2)
        e(f"v_add_f32 v{S + 2}, {hex(f2u(1e-5))}, v{S + 2}")
        bf16round(S + 2)
        e(f"v_sqrt_f32 v{S + 2}, v{S + 2}")
        bf16round(S)
        bf16round(S + 2)
        e(f"v_rcp_f32 v{S + 3}, v{S + 2}")
        e(f"v_sub_f32 v{SO}, 0, v{S}")
        e(f"v_mul_f32 v{SO + 3}, v{S + 2}, v{S + 2}")
        e(f"v_mul_f32 v{S + 1}, v{S + 3}, v{S + 3}")
        e(f"v_mul_f32 v{SO + 2}, {hex(f2u(C0))}, v{S + 3}")
        e(f"v_mul_f32 v{S + 1}, v{S + 1}, v{S + 3}")
        e(f"v_mul_f32 v{S + 2}, v{SO}, v{S + 3}")
        e(f"v_mul_f32 v{SO + 1}, {hex(f2u(C1))}, v{S + 1}")
        for q in range(10):
            e(f"v_pk_fma_f32 {vr(Dv + 2 * q, 2)}, {vr(F + 2 * q, 2)}, {vr(S + 2, 2)}, {vr(S + 2, 2)} op_sel:[0,1,0] op_sel_hi:[1,1,0]")
        for q in range(10):
            e(f"v_cvt_pk_f16_f32 v{UO + q}, v{Dv + 2 * q}, v{Dv + 2 * q + 1}")
        e("v_lshrrev_b32 v2, 5, v0")
        e(f"v_mul_u32_u24 v2, {LNP}, v2")
        e("v_and_b32 v3, 31, v0")
        e("v_lshl_add_u32 v2, v3, 3, v2")
        e(f"s_mul_i32 {sT1}, {sW}, {2 * LNP}")
        e(f"s_add_u32 {sT1}, {sT1}, {LNB}")
        e(f"v_add_u32 v2, {sT1}, v2")
        if bar:
            e("s_barrier")
        for q in range(5):
            g.lds(f"ds_write_b64 v2, {vr(UO + 2 * q, 2)} offset:{256 * q}", "lnw")
        e("v_lshrrev_b32 v4, 1, v0")
        e(f"v_mov_b32 v5, {OOB}")
        e("v_cmp_ne_u32 vcc, 0, v3")
        e(f"s_lshl_b32 {sT1}, s2, 2")
        e(f"s_add_u32 {sT1}, {sT1}, {sW}")
        e("v_cndmask_b32 v4, v4, v5, vcc")
        e(f"s_lshl_b32 {sT1}, {sT1}, 5")
        e(f"s_add_u32 {sT1}, {sT1}, {STATS}")
        e("v_bfe_u32 v6, v0, 2, 2")
        e(f"v_mul_u32_u24 v2, {LNP}, v6")
        e("v_lshrrev_b32 v3, 4, v0")
        e("v_lshl_add_u32 v2, v3, 5, v2")
        e("v_and_b32 v7, 3, v0")
        e("v_lshl_add_u32 v2, v7, 3, v2")
        e(f"s_lshl_b32 {sT2}, {sW}, 7")
        e(f"s_add_u32 {sT2}, {sT2}, {LNB}")
        e(f"v_add_u32 v2, {sT2}, v2")

    def ln_tail():
        g.vmem(f"buffer_store_dwordx4 {vr(SO, 4)}, v4, {SWS}, {sT1} offen sc1", "lnst")
        g.wlg0()
        e("s_barrier")
        TR = 200
        for j in range(3):
            for h in range(2):
                g.lds(f"ds_read_b64_tr_b16 {vr(TR + 4 * j + 2 * h, 2)}, v2 offset:{512 * j + 4 * LNP * h}", ("lntr", j))
        e(f"s_mul_i32 {sT1}, s2, 10240")
        e(f"s_lshl_b32 {sT2}, {sW}, 10")
        e(f"s_add_u32 {sT1}, {sT1}, {sT2}")
        e(f"s_add_u32 {sT1}, {sT1}, {XNT}")
        e(f"s_add_u32 {sT2}, {sT1}, 4096")
        e(f"s_add_u32 {sT3}, {sT1}, 8192")
        e(f"s_cmp_lt_u32 {sW}, 2")
        e(f"s_cselect_b32 {sT3}, {sT3}, {OOB}")
        for j, so in enumerate((sT1, sT2, sT3)):
            g.wlg(("lntr", j))
            g.vmem(f"buffer_store_dwordx4 {vr(TR + 4 * j, 4)}, v1, {SWS}, {so} offen sc1", "lnst")

    AK = 46
    vKA_A, vKA_B, vZ, vRW, vUW, vYS, vFB, vGB = range(AK, AK + 8)
    KA, CC, TM = 128, 152, 136
    WA = KA + 6
    SIG, OMG = KA + 2, KA + 4

    def cexp(dst, p, t):
        for m in range(2):
            e(f"v_mul_f32 v{t + m}, {hex(f2u(float(p)))}, v{SIG + m}")
            e(f"v_mul_f32 v{t + 2 + m}, {hex(f2u(float(p)))}, v{OMG + m}")
        for m in range(2):
            e(f"v_fract_f32 v{t + 2 + m}, v{t + 2 + m}")
        for m in range(2):
            e(f"v_exp_f32 v{t + m}, v{t + m}")
            e(f"v_cos_f32 v{dst + 2 * m}, v{t + 2 + m}")
            e(f"v_sin_f32 v{dst + 2 * m + 1}, v{t + 2 + m}")
        e("s_nop 0")
        align()
        for m in range(2):
            e(f"v_pk_mul_f32 {vr(dst + 2 * m, 2)}, {vr(dst + 2 * m, 2)}, {vr(t, 2)} op_sel:[0,{m}] op_sel_hi:[1,{m}]")

    def cmul(dst, P, Q, t):
        for m in range(2):
            e(f"v_pk_mul_f32 {vr(t + 2 * m, 2)}, {vr(P + 2 * m, 2)}, {vr(Q + 2 * m, 2)} op_sel_hi:[0,1]")
        for m in range(2):
            e(f"v_pk_fma_f32 {vr(dst + 2 * m, 2)}, {vr(P + 2 * m, 2)}, {vr(Q + 2 * m, 2)}, {vr(t + 2 * m, 2)} op_sel:[1,1,0] op_sel_hi:[1,0,1] neg_lo:[0,1,0]")

    prow = [0]

    def put(src, row, neg, lastrow=False):
        o = 144 + 2 * (row % 4)
        ng = "-" if neg else ""
        if src is not None:
            e(f"v_cvt_pk_f16_f32 v{o}, v{src}, {ng}v{src + 1}")
            e(f"v_cvt_pk_f16_f32 v{o + 1}, v{src + 2}, {ng}v{src + 3}")
        if row % 2 == 1:
            o0 = ((row - 1) % 4) * 68
            g.lds(f"ds_write2_b64 v{WA}, {vr(o - 2, 2)}, {vr(o, 2)} offset0:{o0} offset1:{o0 + 68}", "xy")
            if row % 4 == 3:
                e(f"v_add_u32 v{WA}, {4 * XYP}, v{WA}")
        elif lastrow:
            g.lds(f"ds_write_b64 v{WA}, {vr(o, 2)} offset:{(row % 4) * XYP}", "xy")


    def rb1():
        e(f"s_mov_b32 {sKR}, 0")
        for i in range(8):
            e(f"v_accvgpr_read_b32 v{SC + i}, a{AST + i}")
        for i in (0, 1, 5):
            e(f"v_accvgpr_read_b32 v{AK + i}, a{AS2 + 1 + i}")

    def tag_code():
        e(f"v_readfirstlane_b32 {sTAG}, v{vTAG}")
        e("s_nop 3")
        e(f"s_mul_i32 {sTAG}, {sTAG}, 1664525")
        e(f"s_add_u32 {sTAG}, {sTAG}, 1013904223")
        e(f"v_mov_b32 v{vTAG}, {sTAG}")

    def k_setup():
        for k6 in (4, 5, 0, 1, 2, 3):
            e(f"v_accvgpr_read_b32 v{vPAR + k6}, a{APAR + k6}")
        e(f"v_accvgpr_read_b32 v{WA}, a{AS2}")
        e(f"s_lshl_b32 {sT1}, {sC}, 4")
        e(f"v_lshrrev_b32 v{KA}, {sT1}, v{vPAR + 4}")
        e(f"v_lshlrev_b32 v{KA}, 16, v{KA}")
        e(f"v_mul_f32 v{KA}, {hex(f2u(LOG2E))}, v{KA}")
        e(f"v_exp_f32 v{KA}, v{KA}")
        e(f"v_lshrrev_b32 v{KA + 7}, {sT1}, v{vPAR + 5}")
        e(f"v_lshlrev_b32 v{KA + 7}, 16, v{KA + 7}")
        bf16round(KA)
        e(f"v_lshlrev_b32 v{KA + 2}, 16, v{vPAR}")
        e(f"v_and_b32 v{KA + 3}, 0xffff0000, v{vPAR}")
        e(f"v_mul_f32 v{KA + 2}, {hex(f2u(LOG2E))}, v{KA + 2}")
        e(f"v_mul_f32 v{KA + 3}, {hex(f2u(LOG2E))}, v{KA + 3}")
        e(f"v_exp_f32 v{KA + 2}, v{KA + 2}")
        e(f"v_exp_f32 v{KA + 3}, v{KA + 3}")
        e(f"v_lshlrev_b32 v{KA + 4}, 16, v{vPAR + 1}")
        e(f"v_and_b32 v{KA + 5}, 0xffff0000, v{vPAR + 1}")
        e(f"v_cvt_pk_bf16_f32 v{KA + 1}, v{KA + 2}, v{KA + 3}")
        e(f"v_lshlrev_b32 v{CC}, 16, v{vPAR + 2}")
        e(f"v_lshlrev_b32 v{CC + 1}, 16, v{vPAR + 3}")
        e(f"v_and_b32 v{CC + 2}, 0xffff0000, v{vPAR + 2}")
        e(f"v_and_b32 v{CC + 3}, 0xffff0000, v{vPAR + 3}")
        e(f"v_lshlrev_b32 v{KA + 2}, 16, v{KA + 1}")
        e(f"v_and_b32 v{KA + 3}, 0xffff0000, v{KA + 1}")
        for m in range(2):
            e(f"v_mul_f32 v{KA + 2 + m}, v{KA + 2 + m}, v{KA}")
            e(f"v_mul_f32 v{KA + 4 + m}, v{KA + 4 + m}, v{KA}")
        for m in range(2):
            e(f"v_mul_f32 v{KA + 2 + m}, {hex(f2u(-LOG2E))}, v{KA + 2 + m}")
            e(f"v_mul_f32 v{KA + 4 + m}, {hex(f2u(1.0 / (2 * math.pi)))}, v{KA + 4 + m}")

    def k_role0():
        W8, W16, T2 = 152, 156, 140
        ch = [[160, 164], [168, 172]]
        e(f"v_add_u32 v{WA}, {YR0 * XYP}, v{WA}")
        cexp(W8, 8, TM)
        e("v_mov_b32 v144, 0x3c00")
        e("v_mov_b32 v145, 0x3c00")
        cmul(W16, W8, W8, TM)
        put(W8, 33, False)
        cur = [W16, W8]
        for j in range(2, 32, 2):
            n0 = cur[0] if j == 2 else ch[0][(j // 2) & 1]
            n1 = ch[1][(j // 2) & 1]
            for m in range(2):
                if j > 2:
                    e(f"v_pk_mul_f32 {vr(TM + 2 * m, 2)}, {vr(cur[0] + 2 * m, 2)}, {vr(W16 + 2 * m, 2)} op_sel_hi:[0,1]")
                e(f"v_pk_mul_f32 {vr(T2 + 2 * m, 2)}, {vr(cur[1] + 2 * m, 2)}, {vr(W16 + 2 * m, 2)} op_sel_hi:[0,1]")
            for m in range(2):
                if j > 2:
                    e(f"v_pk_fma_f32 {vr(n0 + 2 * m, 2)}, {vr(cur[0] + 2 * m, 2)}, {vr(W16 + 2 * m, 2)}, {vr(TM + 2 * m, 2)} op_sel:[1,1,0] op_sel_hi:[1,0,1] neg_lo:[0,1,0]")
                e(f"v_pk_fma_f32 {vr(n1 + 2 * m, 2)}, {vr(cur[1] + 2 * m, 2)}, {vr(W16 + 2 * m, 2)}, {vr(T2 + 2 * m, 2)} op_sel:[1,1,0] op_sel_hi:[1,0,1] neg_lo:[0,1,0]")
            put(n0, 32 + j, False)
            put(n1, 33 + j, False)
            cur = [n0, n1]

    def k_role1():
        MX = 136
        e(f"v_max_f32 v{MX}, |v{CC}|, |v{CC + 1}|")
        e(f"v_max3_f32 v{MX}, |v{CC + 2}|, |v{CC + 3}|, v{MX}")
        red("v_max_f32", MX, MX + 1, True)
        e(f"v_frexp_exp_i32_f32 v{MX}, v{MX}")
        e(f"v_add_f32 v{KA}, v{KA}, v{KA}")
        e(f"v_ldexp_f32 v{MX + 2}, v{KA}, v{MX}")
        e(f"v_mov_b32 v{MX + 3}, v{KA + 7}")
        e(f"v_sub_u32 v{MX}, 0, v{MX}")
        for i in range(4):
            e(f"v_ldexp_f32 v{CC + i}, v{CC + i}, v{MX}")
        e(f"v_add_u32 v{MX + 1}, {sKR}, v{vYS}")
        e(f"v_mov_b32 v{MX}, 0")
        g.lds(f"ds_write_b64 v{MX + 1}, {vr(MX + 2, 2)} offset:{YSO}", "xy")
        g.lds(f"ds_write_b32 v{MX + 1}, v{MX}", "xy")
        Z, Q, Q4 = 156, 160, 164
        cexp(Z, 1, TM)
        cexp(Q, 256, TM)
        cexp(Q4, 1024, TM)
        X = [168 + 4 * i for i in range(8)]
        X[0] = CC
        put(CC, 0, True)
        for s in range(1, 8):
            cmul(X[s], X[s - 1], Z, TM)
            put(X[s], s, True)
        R8 = [200 + 4 * i for i in range(4)]
        for s in range(4):
            cmul(R8[s], X[2 * s], Q, TM)
            put(R8[s], 8 + s, True)
        R12 = [216, 220]
        for s in range(2):
            cmul(R12[s], R8[2 * s], Q, TM)
            put(R12[s], 12 + s, True)
        for s in range(2):
            cmul(X[1 + 2 * s], R12[s], Q, TM)
            put(X[1 + 2 * s], 14 + s, True)
        cmul(R8[0], CC, Q4, TM)
        put(R8[0], 16, True)
        cmul(R8[1], R8[0], Q, TM)
        put(R8[1], 17, True)
        cmul(R8[3], R8[1], Q, TM)
        put(R8[3], 18, True)
        cmul(R8[1], R8[3], Q, TM)
        put(R8[1], 19, True)
        cmul(R8[2], R8[0], Q4, TM)
        put(R8[2], 20, True, lastrow=True)

    def kgen(sfx, units, every):
        k_setup()
        e(f"s_cmp_lg_u32 {sRHO}, 0")
        e(f"s_cbranch_scc1 L_role1{sfx}")
        vm_s, lg_s = list(g.vm), list(g.lg)
        us = list(units)
        interleave(k_role0, us, every)
        emit_units(us)
        e(f"s_branch L_kbar{sfx}")
        align()
        g.lab(f"L_role1{sfx}")
        g.vm, g.lg = vm_s, lg_s
        us = list(units)
        interleave(k_role1, us, every)
        emit_units(us)
        g.lab(f"L_kbar{sfx}")
        stamp("kvalu_end")

    def kgen_mfma():
        KF = 64
        for ks in range(8):
            g.lds(f"ds_read_b128 {vr(KF + 4 * ks, 4)}, v{vKA_A} offset:{64 * ks}", ("ka", ks))
            g.lds(f"ds_read_b128 {vr(128 + 4 * ks, 4)}, v{vKA_B} offset:{YR0 * XYP + 64 * ks}", ("kb0", ks))
            g.lds(f"ds_read_b128 {vr(160 + 4 * ks, 4)}, v{vKA_B} offset:{(YR0 + 16) * XYP + 64 * ks}", ("kb1", ks))
        KD = 96
        for ks in range(8):
            g.wlg(("kb1", ks))
            e(f"v_mfma_f32_16x16x32_f16 {vr(KD, 4)}, {vr(KF + 4 * ks, 4)}, {vr(128 + 4 * ks, 4)}, {'0' if ks == 0 else vr(KD, 4)}")
            e(f"v_mfma_f32_16x16x32_f16 {vr(KD + 4, 4)}, {vr(KF + 4 * ks, 4)}, {vr(160 + 4 * ks, 4)}, {'0' if ks == 0 else vr(KD + 4, 4)}")
        g.nop(7)
        for i in range(8):
            g.lds(f"ds_write_b32 v{SC + i}, v{KD + i}", "tw")

    vm0 = ["cpf"] + ["ln"] * 5
    u0, u0b = split_units(dma_units(0), opt.get("nf", 4)) if opt.get("nf", 0) else ([], dma_units(0))
    def g1_early():
        e("v_mul_u32_u24 v7, 1280, v4")
        e("v_xor_b32 v8, v5, v6")
        e("v_xor_b32 v9, 4, v8")
        e(f"v_lshl_add_u32 v{vXO}, v8, 4, v7")
        e(f"v_lshl_add_u32 v{vXO + 1}, v9, 4, v7")
        e(f"v_add_u32 v{vXO + 1}, {8 * 1280 - 1024}, v{vXO + 1}")
        e(f"s_lshl2_add_u32 {sXS}, {sM}, {sW}")
        e(f"s_mul_i32 {sXS}, {sXS}, {64 * 1280}")
        e(f"s_lshl_b32 {sXM0}, {sW}, 13")
        e(f"s_add_u32 {sXM0}, {sXM0}, 16384")
        for i in range(2, 8):
            d = 16 * 1280 - 1024 * ((i & 3) - ((i - 2) & 3))
            e(f"v_add_u32 v{vXO + i}, {d}, v{vXO + i - 2}")
        rest_setup()
    interleave(g1_early, u0, opt.get("pe0", 1))
    assert not u0
    e(f"s_mov_b32 {sRND}, 1")
    if not opt.get("rl2", 1):
        rest_loads()
    else:
        e(f"s_mov_b32 {sHS1}, {sT1}")
        e("v_mov_b32 v14, v10\nv_mov_b32 v15, v11")
    if diag and not opt.get("dbg"):
        e("s_memrealtime s[100:101]\ns_waitcnt lgkmcnt(0)\nv_writelane_b32 v127, s100, 57")
    aE, aL = addr_items(XYB_G1, TB_G1)
    table_code(TB_G1)
    run_items(aE)
    rb1()
    if opt.get("rl2", 1):
        e(f"s_mov_b32 {sT1}, {sHS1}")
        e("v_mov_b32 v10, v14\nv_mov_b32 v11, v15")
        rest_loads()
    if diag and not opt.get("dbg"):
        e("s_memrealtime s[100:101]\ns_waitcnt lgkmcnt(0)\nv_writelane_b32 v127, s100, 58")
    g.wvm("ln")
    stamp("par_data")
    u0c, u0d = split_units(u0b, opt.get("nl", 8)) if opt.get("nl", 8) else ([], u0b)
    def ln_late():
        n0_ = len(g.L)
        ln_code()
    if opt.get("lnskip"):
        n0_ = len(g.L)
        ln_code()
        body_ = g.L[n0_:]
        del g.L[n0_:]
        g.L += body_[:opt["lnskip"]]
        interleave(lambda: g.L.extend(body_[opt["lnskip"]:]), u0c, opt.get("pe1", 16))
    else:
        interleave(ln_code, u0c, opt.get("pe1", 16))
    emit_units(u0c)
    ln_tail()
    stamp("ln_done")
    g.wvm("ep")
    tag_code()
    e(f"s_lshl_b32 {sT3}, s2, 2")
    e(f"s_add_u32 {sT3}, {sT3}, {LNF}")
    e(f"s_cmp_eq_u32 {sW}, 0")
    e(f"s_cselect_b32 {sT3}, {sT3}, {OOB}")
    e("s_barrier")
    uK, uR = split_units((u0d + csl_units() + dma_units(1)) if opt.get('csf') else (u0d + dma_units(1) + csl_units()), opt.get("nk", 99))
    kgen("g", uK, opt.get("pek", 11))
    g.wvm("lnst")
    g.wlg0()
    e("s_barrier")
    flag_store(sT3)
    interleave(kgen_mfma, uR, opt.get("pem", 6))
    emit_units(uR)
    stamp("kdone")
    e("v_and_b32 v2, 15, v0")
    e("v_lshrrev_b32 v3, 4, v0")
    e("v_bfe_u32 v4, v0, 1, 3")
    e("v_xor_b32 v4, v4, v3")
    e(f"v_lshl_add_u32 v2, v2, 7, {sXM0}")
    e(f"v_lshl_add_u32 v{vBA}, v4, 4, v2")
    e(f"v_xor_b32 v{vBA + 1}, 64, v{vBA}")
    e(f"v_add_u32 v{vBA + 2}, {2 * SLOT}, v{vBA}")
    e(f"v_add_u32 v{vBA + 3}, {2 * SLOT}, v{vBA + 1}")
    e("v_bfe_u32 v6, v0, 2, 2")
    e("v_and_b32 v7, 3, v0")
    e("v_lshl_add_u32 v2, v3, 3, v6")
    e("v_lshlrev_b32 v2, 7, v2")
    e("v_lshl_add_u32 v2, v7, 3, v2")
    e("v_lshrrev_b32 v6, 1, v6")
    e("v_and_b32 v3, 1, v3")
    e("v_lshl_add_u32 v6, v3, 1, v6")
    e(f"v_lshl_add_u32 v{vAA}, v6, 5, v2")
    for i in range(1, 4):
        e(f"v_xor_b32 v{vAA + i}, {32 * i}, v{vAA}")
    for i in range(4):
        e(f"v_add_u32 v{vAA + 4 + i}, {2 * SLOT}, v{vAA + i}")

    def touch_setup():
        return [f"s_lshr_b32 {sF0}, {sQ}, 2", f"s_mul_i32 {sF0}, {sF0}, 10", f"v_add_u32 v2, {sF0}, v0",
                "v_min_u32 v2, 63, v2", "v_mul_u32_u24 v2, 1280, v2", f"v_mov_b32 v3, {OOB}",
                f"v_cmp_lt_u32 vcc, 9, v0\ns_nop 1\nv_cndmask_b32 v{vTO}, v2, v3, vcc",
                f"s_and_b32 {sF0}, {sQ}, 3", f"s_lshl_b32 {sF0}, {sF0}, 1", f"s_add_u32 {sF0}, {sF0}, {sRHO}",
                f"s_lshl_b32 {sF0}, {sF0}, 3", f"s_lshl_b32 {sF1}, {sW}, 4", f"s_sub_u32 {sF0}, {sF0}, {sF1}",
                f"s_add_u32 {sF0}, {sF0}, 64", f"v_add_u32 v2, {sF0}, v0", "v_mul_u32_u24 v2, 3456, v2",
                f"v_cmp_lt_u32 vcc, 7, v0\ns_nop 1\nv_cndmask_b32 v{vTO + 1}, v2, v3, vcc",
                ]

    def touch_units(ahead):
        return [f"s_add_u32 {sT4}, {sXS}, {128 * ahead}",
                ("vm", f"buffer_load_dword v{vFL + 4}, v{vTO}, {SX}, {sT4} offen", "touch"),
                f"s_add_u32 {sT4}, {sWSO}, {64 * 3456 * (ahead - 1)}" if ahead >= 1 else f"s_sub_u32 {sT4}, {sWSO}, {64 * 3456}",
                ("vm", f"buffer_load_dword v{vFL + 4}, v{vTO + 1}, {STW}, {sT4} offen", "touch")]

    def Breg(K, lt):
        return vr(96 + 4 * lt, 4) if K % 2 == 0 else ar(144 + 4 * lt, 4)

    def frag_reads(k):
        stage, ks = divmod(k, 4)
        K, mat = divmod(k, 2)
        Ks = K & 1
        sl = stage % 3
        so = 0 if sl == 2 else sl * SLOT
        A = vAF + 16 * (k & 1)
        def bread(lt):
            return ("lds", f"ds_read_b128 {Breg(K, lt)}, v{vBA + (2 if sl == 2 else 0) + Ks} offset:{so + 2048 * lt}", ("B", K))
        def aread(t, h):
            return ("lds", f"ds_read_b64_tr_b16 {vr(A + 4 * t + 2 * h, 2)}, v{vAA + (4 if sl == 2 else 0) + t} offset:{so + mat * 8192 + Ks * 4096 + h * 512}", ("A", k, t))
        if mat == 0:
            return [bread(0), aread(0, 0), aread(0, 1), bread(1), bread(2), bread(3), aread(1, 0), aread(1, 1), aread(2, 0), aread(2, 1), aread(3, 0), aread(3, 1)]
        return [aread(t, h) for t in range(4) for h in range(2)]

    e(f"s_mov_b32 {sMASK}, 0xffff0000")
    g.wvm(("dma", 0))
    g.wlg0()
    e("s_barrier")
    stamp("g1_start")
    stamp("c_g1s", cyc=True)
    for it in frag_reads(0):
        g.do(it)

    PACE = opt.get("pace", 2)
    STQ = [38, 48, 52, 16]
    NG = 320
    gaps = [[] for _ in range(NG)]
    head = [[] for _ in range(NG)]
    pre = {}
    vq_big = []

    sq = []
    def add_group(units, earliest, small=False, pace=None):
        vq = sq if small else vq_big
        prel = []
        for u in units:
            if isinstance(u, tuple) and u[0] == "m0":
                prel.append(u[1])
            elif isinstance(u, tuple) or callable(u):
                vq.append([earliest, prel, u, [], pace])
                prel = []
            else:
                prel.append(u)
        if prel:
            vq[-1][3] += prel

    def Bgap(s):
        return 32 * s - 8

    PKV = 48
    pk_fill = [f"s_mov_b32 {sF0}, {0x100000000 // 20 + 1}", f"s_lshl_b32 {sF1}, {sW}, 6"]
    for i3 in range(3):
        pk_fill += [f"v_add_u32 v2, {sF1}, v0"] + ([f"v_add_u32 v2, {256 * i3}, v2"] if i3 else []) + [
            f"v_mul_hi_u32 v3, v2, {sF0}", "v_mul_u32_u24 v12, 20, v3", "v_sub_u32 v12, v2, v12",
            "v_mul_u32_u24 v3, 1280, v3", f"v_lshl_add_u32 v{PKV + i3}, v12, 4, v3"]
    pk_fill += [f"s_lshr_b32 {sHS0}, {sCP}, 2", f"s_and_b32 {sHS1}, {sCP}, 3",
                f"s_mul_i32 {sT2}, {sHS0}, 40960", f"s_mul_i32 {sF0}, {sHS1}, 320", f"s_add_u32 {sT2}, {sT2}, {sF0}",
                f"s_lshl_b32 {sT3}, {sW}, 10"]
    pk_fill2 = ["v_lshrrev_b32 v2, 2, v0", "v_mul_u32_u24 v2, 320, v2", "v_and_b32 v3, 3, v0", "v_lshl_add_u32 v2, v3, 3, v2",
                f"s_lshl_b32 {sF0}, {sW}, 5", f"s_add_u32 {sF0}, {sF0}, {PKB}", f"v_add_u32 v{PKV + 3}, {sF0}, v2"]
    PDR = [0, 4, 8]
    pk_dma = []
    for i3 in range(3):
        pk_dma.append(("m0", f"s_add_u32 m0, {sT3}, {PKB + 4096 * i3}"))
        if i3 == 2:
            pk_dma.append(lambda: e(f"s_cmp_lt_u32 {sW}, 2\ns_cbranch_scc0 L_nopk3\nbuffer_load_dwordx4 v{PKV + 2}, {SWD}, {sT2} offen{NT} lds\nL_nopk3:") or g.vm.append("OPT"))
        else:
            pk_dma.append(("vm", f"buffer_load_dwordx4 v{PKV + i3}, {SWD}, {sT2} offen{NT} lds", "pkd"))
    pk_st = []
    pk_fill3 = [f"s_mul_i32 {sF1}, {sHS1}, 10", f"s_add_u32 {sF1}, {sF1}, {sW}", f"s_mul_i32 {sF2}, {sHS0}, 5"]
    for i3 in range(3):
        d = f"s{97 + i3}"
        pk_fill3 += [f"s_add_u32 {d}, {sF1}, {4 * i3}", f"s_mul_i32 {sF0}, {d}, 13108", f"s_lshr_b32 {sF0}, {sF0}, 16",
                     f"s_mul_i32 {sF0}, {sF0}, 265", f"s_add_u32 {d}, {d}, {sF0}", f"s_add_u32 {d}, {d}, {sF2}",
                     f"s_lshl_b32 {d}, {d}, 10", f"s_add_u32 {d}, {d}, {WDP}"]
        pk_st.append(("vm", f"buffer_store_dwordx4 {ar(PDR[i3], 4)}, v1, {SWS}, {d} offen sc1", "pks"))
    pk_fill3 += [f"s_cmp_lt_u32 {sW}, 2\ns_cselect_b32 s99, s99, {OOB}"]
    lnflag = [f"s_lshl_b32 {sT1}, s2, 2\ns_add_u32 {sT1}, {sT1}, {LNF}\ns_cmp_eq_u32 {sW}, 0\ns_cselect_b32 {sT1}, {sT1}, {OOB}",
              lambda: flag_store(sT1)]
    def wff():
        g.wvm("pks")
        flag_store(sT1)
    wfflag = [f"s_lshl_b32 {sT1}, {sHS1}, 6\ns_add_u32 {sT1}, {sT1}, {sHS0}\ns_lshl_b32 {sT1}, {sT1}, 2\ns_add_u32 {sT1}, {sT1}, {sW}",
              f"s_lshl_b32 {sT1}, {sT1}, 2\ns_add_u32 {sT1}, {sT1}, {WF}", wff]

    add_group(dma_units(2), opt.get("d2", 4))
    add_group(pk_dma, opt.get("dpk", 20))
    for st_ in range(1, 8):
        if st_ == 2:
            add_group(pk_st, Bgap(2) + 6)
        add_group(dma_units(st_ + 2), Bgap(st_) + {1: opt.get("d3", 10), 2: opt.get("d4", 20), 3: opt.get("d5", 20), 4: opt.get("d6", 0)}.get(st_, 0))
        if st_ in (4, 5, 6):
            tu = tab_units()
            add_group(tu[5 * (st_ - 4):5 * (st_ - 3)], 0)
    G0 = 8 * KCHK + 4
    for phi in range(P1):
        add_group(wd_load(phi), G0)
    vsched = []
    occ = set()
    def place(q, pace):
        last = -pace
        for (ear, prel, vmi, post, pc) in q:
            gq = max(ear, last + (pc or pace))
            while gq in occ:
                gq += 1
            assert gq < NG - 1, gq
            occ.add(gq)
            gaps[gq - 1] += prel
            head[gq].append(vmi)
            gaps[gq] = post + gaps[gq]
            last = gq
            vsched.append((gq, vmi[2] if isinstance(vmi, tuple) else "flag"))
    place(vq_big, PACE)
    def gap_of(tag):
        return max(gq for gq, t in vsched if t == tag)
    for st_ in range(1, 8):
        ge = gap_of(("dma", st_ + 2)) + 2
        if st_ == 2:
            add_group([f"s_lshl_b32 {sT1}, {sFT}, 1\ns_add_u32 {sT1}, {sT1}, {sC}\ns_lshl_b32 {sT1}, {sT1}, 3\ns_add_u32 {sT1}, {sT1}, {sM}",
                       f"s_lshl_b32 {sT1}, {sT1}, 1\ns_add_u32 {sT1}, {sT1}, {sRHO}\ns_lshl_b32 {sT1}, {sT1}, 8\ns_add_u32 {sT1}, {sT1}, {CSP}",
                       ("vm", f"buffer_store_dwordx2 {vr(4, 2)}, v6, {SWS}, {sT1} offen sc1", "pks")], gap_of("pks") + 1, True)
        if st_ == 3:
            add_group(wfflag, gap_of(("dma", 4)) + 1, True)
        if st_ == 5:
            add_group([("vm", f"buffer_load_dwordx4 {vr(vFL, 4)}, v{vFA}, {SWS}, 0 offen sc1", "poll"),
                       ("vm", f"buffer_load_dwordx4 {vr(PKV, 4)}, v{vFA + 1}, {SWS}, 0 offen sc1", "poll")], 8 * KCHK - 22, True)
        if TOUCH and st_ + TOUCH <= 9:
            if st_ == 1:
                for a in range(0, TOUCH - 3):
                    add_group(touch_units(a), ge, True)
            add_group(touch_units(TOUCH - 3), ge, True)
        if st_ == 6 and opt.get('wtouch'):
            for t3 in range(3):
                add_group([f"s_and_b32 {sT4}, {sLT}, 3\ns_mul_i32 {sT4}, {sT4}, {140 * 128}\ns_add_u32 {sT4}, {sT4}, {sWDS}" if t3 == 0 else f"s_add_u32 {sT4}, {sT4}, {48 * 128}",
                           ("vm", f"buffer_load_dword v{vFL + 4}, v{PKV + 1}, {SWS}, {sT4} offen sc1", "wtouch")], 8 * KCHK + 4 + 4 * t3, True)
    add_group([f"s_lshl_b32 {sT1}, {sFT}, 1\ns_add_u32 {sT1}, {sT1}, {sC}\ns_lshl_b32 {sT1}, {sT1}, 5\ns_add_u32 {sT1}, {sT1}, {sRHO}",
               f"s_lshl_b32 {sT1}, {sT1}, 7\ns_add_u32 {sT1}, {sT1}, {CSP}",
               ("vm", f"buffer_load_dwordx4 {vr(112, 4)}, v{vCS}, {SWS}, {sT1} offen sc1", "csp"),
               ("vm", f"buffer_load_dwordx4 {vr(20, 4)}, v{vCS}, {SWS}, {sT1} offen offset:2048 sc1", "csp")], max(G0, gap_of(("dma", 9)) - 1), True)
    add_group([f"s_lshl_b32 {sT1}, {sM}, 2\ns_add_u32 {sT1}, {sT1}, {sW}\ns_lshl_b32 {sT1}, {sT1}, 10\ns_add_u32 {sT1}, {sT1}, {STATS}",
               ] + [("vm", f"buffer_load_dwordx4 {vr(STQ[lt], 4)}, v15, {SWS}, {sT1} offen offset:{256 * lt} sc1", "stats") for lt in range(4)],
              max(G0, gap_of(("dma", 9)) - 5), True)
    add_group([x.replace(sF0, sT2).replace(sF1, sT3) if isinstance(x, str) else (x[0], x[1].replace(sF0 + ' ', sT2 + ' ').replace(sF1 + ' ', sT3 + ' '), x[2]) for x in u_loads(sCP, 116)], gap_of(("wd", P1 - 1)) + 2 if opt.get("ulast", 1) else G0, True)
    place(sq, 1)
    vsched.sort()
    if opt.get("v"):
        print(vsched)
    assert all(gap_of(("dma", st_)) < Bgap(st_) - 12 for st_ in range(2, 10))
    assert gap_of("pkd") < Bgap(2) and gap_of("pks") < gap_of(("dma", 4)) - 24 and gap_of("poll") < 8 * KCHK - 6

    for i3 in range(3):
        for h in range(2):
            gaps[Bgap(2) + 1 + i3].append(("lds", f"ds_read_b64_tr_b16 {ar(PDR[i3] + 2 * h, 2)}, v{PKV + 3} offset:{128 * i3 + 16 * 320 * h}", "pk"))
    c4 = check4(vFL)
    gaps[8 * KCHK] += [("wvm", "poll")] + c4[0:2]
    gaps[8 * KCHK + 1] += c4[2:5]
    def chk():
        sl = g.newlab("Lslow")
        bk = g.newlab("Lback")
        for x in check4(PKV)[:6]:
            e(x)
        e(f"v_or3_b32 v{vFL}, v{vFL}, v{vFL + 3}, v{PKV}")
        e(c4[6])
        e(f"s_cbranch_vccnz {sl}")
        g.lab(bk)
        g.slow.append((sl, bk, [(vFA, True), (vFA + 1, True)]))
    gaps[8 * KCHK + 2].insert(0, chk)

    CA = [4, 5, 6, 7, 42, 43, 44, 45]
    csum = []
    for j5 in range(5):
        csum.append(("wvm", ("csl", j5)))
        for d in range(4):
            r = CSR[j5] + d
            if j5 == 0:
                csum += [f"v_lshlrev_b32 v{CA[2 * d]}, 16, v{r}", f"v_and_b32 v{CA[2 * d + 1]}, {sMASK}, v{r}"]
            else:
                csum += [f"v_lshlrev_b32 v8, 16, v{r}", f"v_and_b32 v9, {sMASK}, v{r}",
                         f"v_add_f32 v{CA[2 * d]}, v{CA[2 * d]}, v8", f"v_add_f32 v{CA[2 * d + 1]}, v{CA[2 * d + 1]}, v9"]
    csum += ["s_nop 1"]
    csum += [f"v_permlane32_swap_b32 v{CA[c]}, v{CA[c + 4]}" for c in range(4)]
    csum += [f"v_add_f32 v{CA[c]}, v{CA[c]}, v{CA[c + 4]}" for c in range(4)]
    csum += ["s_nop 1"]
    csum += [f"v_permlane16_swap_b32 v{CA[c]}, v{CA[c + 2]}" for c in range(2)]
    csum += ["s_nop 0"]
    csum += [f"v_add_f32 v{CA[c]}, v{CA[c]}, v{CA[c + 2]}" for c in range(2)]
    csum += ["v_and_b32 v6, 7, v0", "v_lshlrev_b32 v6, 5, v6"]
    csum += [f"v_add_f32 v{CA[c]}, v{CA[c]}, v{CA[c]} row_ror:8" for c in range(2)]
    csum += ["v_lshrrev_b32 v7, 4, v0", "v_lshl_add_u32 v6, v7, 3, v6", f"v_mov_b32 v7, {OOB}",
             "v_and_b32 v8, 8, v0", "v_cmp_ne_u32 vcc, 0, v8\ns_nop 1\nv_cndmask_b32 v6, v6, v7, vcc"]
    fillq = pk_fill + (touch_setup() if TOUCH else []) + pk_fill2[:7] + pk_fill3
    n_a = len(fillq)
    fillq += csum
    n_csum = len(fillq)
    n_early = len(pk_fill)
    fillq += pk_fill2[7:]
    n_early2 = len(fillq)
    fillq += [f"v_min_u32 v2, 53, v0", f"s_lshr_b32 {sF0}, {sDT}, 1", f"s_lshl_b32 {sF0}, {sF0}, 10",
              f"s_add_u32 {sF0}, {sF0}, {WF}", f"v_lshl_add_u32 v2, v2, 4, {sF0}",
              "v_and_b32 v3, 7, v0", "v_mul_u32_u24 v3, 27, v3", f"v_add_u32 v3, {sFT}, v3", "v_and_b32 v12, 3, v3",
              "v_lshrrev_b32 v3, 2, v3", "v_lshl_add_u32 v3, v12, 6, v3", "v_lshlrev_b32 v3, 4, v3", f"v_add_u32 v3, {WF}, v3",
              f"v_cmp_lt_u32 vcc, 55, v0\ns_nop 1\nv_cndmask_b32 v{vFA + 1}, v2, v3, vcc"]
    it_ = aL.index(("wvm", "tab"))
    fillq += [f"v_add_u32 v{vFA}, {LNF}, v1"] + aL[:it_]
    n_mid = len(fillq)
    late_fill = [("at", gap_of("tab") + 14)] + aL[it_:]
    fillq += ["v_lshrrev_b32 v3, 4, v0", "v_lshlrev_b32 v13, 4, v3", f"v_add_u32 v13, {CSB}, v13", "v_lshrrev_b32 v3, 5, v0",
              "v_and_b32 v2, 7, v0", "v_lshlrev_b32 v12, 4, v2", "v_lshl_add_u32 v12, v3, 3, v12", "v_bfe_u32 v3, v0, 4, 1",
              "v_lshl_add_u32 v12, v3, 2, v12", f"s_lshl_b32 {sF0}, {sW}, 7", f"s_add_u32 {sF0}, {sF0}, {CSB}",
              f"v_add_u32 v12, {sF0}, v12", "v_lshrrev_b32 v3, 3, v0", "v_lshlrev_b32 v3, 8, v3", f"v_lshl_add_u32 v{vCS}, v2, 4, v3",
              "v_and_b32 v15, 15, v0", "v_lshlrev_b32 v15, 4, v15"]
    tail_fill = [f"s_lshl_b32 {sHS0}, {sM}, 2", f"s_add_u32 {sHS0}, {sHS0}, {sW}", f"s_lshl_b32 {sPEND}, {sHS0}, 5",
                 f"s_mul_i32 {sHS0}, {sHS0}, {4 * 54}", f"s_lshl_b32 {sT2}, {sFT}, 1", f"s_add_u32 {sHS0}, {sHS0}, {sT2}",
                 f"s_lshl_b32 {sHS0}, {sHS0}, 10", f"s_add_u32 {sHS0}, {sHS0}, {HB}",
                 f"s_add_u32 {sPEND}, {sPEND}, {sFT}", f"s_lshl_b32 {sPEND}, {sPEND}, 7", f"s_add_u32 {sPEND}, {sPEND}, {HF}"]
    cs_fill = [("wvm", "csp")] + [f"v_add_f32 v{112 + c}, v{112 + c}, v{20 + c}" for c in range(4)] + ["s_nop 0",
               "v_permlane32_swap_b32 v112, v114", "v_permlane32_swap_b32 v113, v115", "s_nop 0", "v_add_f32 v112, v112, v114", "v_add_f32 v113, v113, v115",
               "s_nop 1", "v_permlane16_swap_b32 v112, v113", "s_nop 0", "v_add_f32 v112, v112, v113", "s_nop 1",
               "v_add_f32 v112, v112, v112 row_ror:8", ("lds", "ds_write_b32 v12, v112", "csw")]
    nf_total = len(fillq)

    def cost(it):
        if isinstance(it, str):
            return it.count("\n") + 1
        return 1
    CAP = opt.get("cap", 4)
    for k in range(40):
        stage, ks = divmod(k, 4)
        A = vAF + 16 * (k & 1)
        gk = [head[8 * k + i] + gaps[8 * k + i] for i in range(8)]
        body = [[] for _ in range(8)]
        if k + 1 < 40:
            fr = frag_reads(k + 1)
            for i, it in enumerate(fr):
                body[i // 2 if len(fr) == 12 else (3 * i) // 4].append(it)
        if k == 39:
            assert not late_fill, len(late_fill)
            for j in range(8):
                dst = (64 + 4 * j) if j < 4 else (96 + 4 * (j - 4))
                body[1 + j // 2].append(("lds", f"ds_read_b128 {vr(dst, 4)}, v13 offset:{64 * j}", "cs0"))
        else:
            load = [sum(map(cost, gk[i])) + len(body[i]) + (1 if i in (3, 7) else 0) for i in range(8)]
            q = fillq if fillq else (tail_fill if (k >= 18 and tail_fill) else late_fill)
            if k == KCHK or (q is late_fill and k < 10):
                q = []
            if k in (33, 34) and cs_fill:
                q = cs_fill
            cap = opt.get('cape', 5) if k < opt.get('kc5', 9) else (5 if k in (33, 34) else opt.get('capl', 3))
            for i in range(8):
                while q and load[i] + cost(q[0]) <= cap + (2 if cost(q[0]) > 1 else 0):
                    if isinstance(q[0], tuple) and q[0][0] == "at":
                        if 8 * k + i < q[0][1]:
                            break
                        q.pop(0)
                        continue
                    it = q.pop(0)
                    body[i].append(it)
                    load[i] += cost(it)
            if k == 2:
                assert nf_total - len(fillq) >= n_early, (nf_total - len(fillq), n_early)
            if k == 5:
                assert nf_total - len(fillq) >= n_a
            if k == 6:
                assert nf_total - len(fillq) >= n_a + 30
            if 8 * k + 8 >= gap_of("pks") - 1:
                assert nf_total - len(fillq) >= n_csum, (nf_total - len(fillq), n_csum)
            if k == 13:
                assert nf_total - len(fillq) >= n_early2
            if k == KCHK - 4:
                assert nf_total - len(fillq) >= n_mid
            if 8 * k + 8 > gap_of("stats") - 4:
                assert not fillq, (k, len(fillq))
        if ks == 3 and stage < 9:
            stamp(f"c_w{stage + 1}", cyc=True)
            g.wlg0()
            if stage == 1:
                g.wvm("OPT")
            g.wvm(("dma", stage + 1))
            e("s_barrier")
            stamp(f"c_b{stage + 1}", cyc=True)
        K, mat = divmod(k, 2)
        for i in range(8):
            items = []
            for it in head[8 * k + i]:
                if isinstance(it, tuple) and it[2] == "pks":
                    items.append(("wlg", "pk"))
                items.append(it)
            items += body[i] + gaps[8 * k + i]
            tot = sum(map(cost, items))
            acc_, sub = 0, [[], []]
            for it in items:
                sub[0 if 2 * acc_ + cost(it) <= tot + (1 if not sub[0] else 0) else 1].append(it)
                acc_ += cost(it)
            flat = sub[0] + sub[1]
            assert flat == items
            for h2 in range(2):
                m = 2 * i + h2
                t, lt = divmod(m, 4)
                if k == 0:
                    g.wlg(("A", k, t))
                    if m == 1:
                        g.wlg(("B", K))
                elif m == 0:
                    g.wlg(("A", k, 1))
                elif m == 8:
                    g.wlg(("A", k, 3))
                D = vACC + 4 * ((mat * 4 + t) * 4 + lt)
                Cs = "0" if K == 0 else vr(D, 4)
                e(f"v_mfma_f32_16x16x32_bf16 {vr(D, 4)}, {vr(A + 4 * t, 4)}, {Breg(K, lt)}, {Cs}")
                for it in sub[h2]:
                    g.do(it)
    assert not tail_fill and not cs_fill and not late_fill, len(late_fill)
    stamp("c_g1e", cyc=True)
    stamp("g1_loop_end", flush=True)

    tmps = [28, 30, 32, 34]
    g.wvm("stats")
    g.wlg("cs0")
    align()
    for lt in range(4):
        st = STQ[lt]
        if lt:
            e(f"s_add_u32 {sHS0}, {sHS0}, {54 * 1024}")
        for a in range(2):
            O = 20 + 4 * a
            ps = range(4)
            Gt = [vACC + 4 * ((2 * a + (p >> 1)) * 4 + lt) + 2 * (p & 1) for p in ps]
            Ut = [x + 64 for x in Gt]
            csg = [64 + 4 * (2 * a + (p >> 1)) + 2 * (p & 1) for p in ps]
            csu = [x + 32 for x in csg]
            for p in ps:
                e(f"v_pk_fma_f32 {vr(Gt[p], 2)}, {vr(csg[p], 2)}, {vr(st, 2)}, {vr(Gt[p], 2)} op_sel_hi:[1,0,1]")
            for p in ps:
                e(f"v_pk_mul_f32 {vr(tmps[p], 2)}, {vr(Gt[p], 2)}, {vr(Gt[p], 2)}")
            for p in ps:
                e(f"v_pk_fma_f32 {vr(tmps[p], 2)}, {vr(tmps[p], 2)}, {vr(st, 2)}, {vr(st + 2, 2)} op_sel:[0,1,0] op_sel_hi:[1,1,0]")
            for p in ps:
                e(f"v_pk_mul_f32 {vr(tmps[p], 2)}, {vr(tmps[p], 2)}, {vr(Gt[p], 2)}")
            for p in ps:
                e(f"v_exp_f32 v{tmps[p]}, v{tmps[p]}")
                e(f"v_exp_f32 v{tmps[p] + 1}, v{tmps[p] + 1}")
            for p in ps:
                e(f"v_pk_fma_f32 {vr(Ut[p], 2)}, {vr(csu[p], 2)}, {vr(st, 2)}, {vr(Ut[p], 2)} op_sel_hi:[1,0,1]")
            for p in ps:
                e(f"v_pk_fma_f32 {vr(tmps[p], 2)}, {vr(tmps[p], 2)}, {vr(st + 2, 2)}, {vr(st + 2, 2)} op_sel:[0,1,1] op_sel_hi:[1,1,1]")
            for p in ps:
                e(f"v_rcp_f32 v{tmps[p]}, v{tmps[p]}")
                e(f"v_rcp_f32 v{tmps[p] + 1}, v{tmps[p] + 1}")
            for p in ps:
                e(f"v_pk_mul_f32 {vr(Gt[p], 2)}, {vr(Gt[p], 2)}, {vr(Ut[p], 2)}")
            for p in ps:
                e(f"v_pk_mul_f32 {vr(Gt[p], 2)}, {vr(Gt[p], 2)}, {vr(tmps[p], 2)}")
            for p in ps:
                e(f"v_cvt_pk_bf16_f32 v{O + p}, v{Gt[p]}, v{Gt[p] + 1}")
            g.vmem(f"buffer_store_dwordx4 {vr(O, 4)}, v1, {SWS}, {sHS0} offen offset:{1024 * a} sc1", "hst")
    stamp("c_epe", cyc=True)
    stamp("g1_epi_end", flush=True)
    e(f"s_mov_b32 {sMASK}, {sPEND}")
    e("s_nop 0")

    def rb2(adj=0):
        for i in range(22):
            e(f"v_accvgpr_read_b32 v{GA + i}, a{AST + 8 + i}")
        if adj:
            for i in range(22):
                e(f"v_subrev_u32 v{GA + i}, {adj}, v{GA + i}")
        for i in range(2, 8):
            e(f"v_accvgpr_read_b32 v{AK + i}, a{AS2 + 1 + i}")
        e("v_mov_b32 v4, 0\nv_mov_b32 v5, 0\nv_mov_b32 v6, 0\nv_mov_b32 v7, 0")
        e(f"ds_write_b128 v{vZ}, {vr(4, 4)}")
    rb2()

    Greg = [[224 + 4 * i for i in range(8)], [192 + 4 * i for i in range(8)]]
    FB = [128, 160]
    CACC = 64
    HRING = [16 + 4 * i for i in range(12)] + [104 + 4 * i for i in range(3)] + [128 + 4 * i for i in range(26)]
    NE = opt.get("ne", 15)
    P2 = opt.get("p2", 40)
    NB = len(HRING)
    YS, DK = 100, 101

    def hload(i):
        k, st = divmod(i, 14)
        r = HRING[i % NB]
        if st == 13:
            return [f"s_cmp_lt_u32 {sW}, 2\ns_cselect_b32 {sT4}, s{sG2 + 4 * k + 3}, {OOB}",
                    ("vm", f"buffer_load_dwordx4 {vr(r, 4)}, v1, {SWS}, {sT4} offen offset:1024 sc1", ("h", i))]
        return [("vm", f"buffer_load_dwordx4 {vr(r, 4)}, v1, {SWS}, s{sG2 + 4 * k + st // 4} offen offset:{(st % 4) * 1024} sc1", ("h", i))]

    def conv(last):
        tag = "L" if last else "E"
        g.lab("L_conv_last" if last else "L_conv_early")
        g.vm = ["u", "u"]
        g.lg = []
        def wd_e(phi):
            its = wd_load(phi)
            if len(its) > 1:
                its.insert(1, f"s_or_b32 {sT5}, {sT5}, {sK0}")
            return its
        if last:
            wq = [[f"s_add_u32 m0, {sXT}, {1024 * kk}", "s_nop 0",
                   ("vm", f"buffer_load_dwordx4 v{12 + kk}, {SX}, {sXO} offen lds", ("xt", 0))] for kk in range(3)]
            wq += [wd_load(phi) for phi in range(P1, 64)]
            for i7 in range(7):
                e(f"v_accvgpr_read_b32 v{9 + i7}, a{AS2 + 14 + i7}")
        else:
            wq = [wd_e(phi) for phi in range(0, P1)]
            g.vmem(f"buffer_load_dwordx4 {vr(vFL, 4)}, v{vFA + 1}, {SWS}, 0 offen sc1", "wfp")
        def wdl(n=1):
            for _ in range(n):
                if wq:
                    for it in wq.pop(0):
                        g.do(it)
        EG = 128
        for ch in range(2):
            for k in range(11):
                g.lds(f"ds_read_b32 v{EG + 12 * ch + k}, v{GA + 11 * ch + k}", ("eg", ch))
        g.lds(f"ds_read_b64 {vr(YS, 2)}, v{vYS} offset:{YSO}", "ysc")
        if last:
            wdl(3)
        g.wvm("u")
        g.lds(f"ds_write_b128 v{vUW}, {vr(vU, 4)}", "uw")
        g.lds(f"ds_write_b128 v{vUW}, {vr(vU + 4, 4)} offset:512", "uw")
        if last:
            e(f"s_or_b32 {sT1}, s2, {sW}")
            e(f"s_cmp_eq_u32 {sT1}, 0")
            e(f"s_cselect_b32 {sT1}, {EPOCH}, {OOB}")
            flag_store(sT1)
        EO = 64
        for ch in range(2):
            g.wlg(("eg", ch))
            align()
            for s in range(4):
                o = EO + 16 * ch + 4 * s
                for j in range(4):
                    e(f"v_cvt_pk_f16_f32 v{o + j}, v{EG + 12 * ch + s + 2 * j}, v{EG + 12 * ch + s + 2 * j + 1}")
                g.lds(f"ds_write_b128 v{vRW}, {vr(o, 4)} offset:{s * RCS + 1024 * ch}", "rw")
                if last and s % 2 == 1:
                    wdl()
            if last and ch == opt.get("hch", 1):
                e(f"s_waitcnt vmcnt({len(g.vm)})")
                flag_store(sMASK)
        if not last:
            e("s_waitcnt vmcnt(0)")
            flag_store(sMASK)
        if last:
            wdl(2)
        else:
            for x in check4(vFL):
                e(x)
            e("s_nop 0")
            e("s_cmp_eq_u64 vcc, 0")
            e(f"s_cselect_b32 {sK0}, 0, {OOB}")
        extra = [f"v_accvgpr_read_b32 v{4 + i}, a{AS2 + 9 + i}" for i in range(5)]
        extra += [f"s_lshl_b32 {sT1}, {sCP}, 1", f"s_add_u32 {sT1}, {sT1}, {sC}", f"s_lshl_b32 {sT1}, {sT1}, 12",
                  f"s_lshl_b32 {sT3}, {sRHO}, 11", f"s_add_u32 {sT1}, {sT1}, {sT3}", f"s_add_u32 {sHS0}, {sT1}, {ST}",
                  f"s_lshl_b32 {sT2}, {sCP}, 5", f"s_add_u32 {sT2}, {sT2}, {sW}",
                  f"s_lshl_b32 {sT2}, {sT2}, 2", f"s_add_u32 {sPEND}, {sT2}, {SF}"]
        if last:
            extra += [f"v_accvgpr_read_b32 v{vFA + i}, a{AS2 + 21 + i}" for i in range(2)]
            extra += ["v_min_u32 v3, 53, v0", "v_lshlrev_b32 v3, 7, v3",
                      f"s_lshl_b32 {sT0}, {sDT}, 2", f"s_add_u32 {sT0}, {sT0}, {sW}", f"s_mul_i32 {sT0}, {sT0}, {54 * 128}",
                      f"s_mul_i32 {sHS1}, {sLT}, {4 * 54 * 1024}", f"s_add_u32 {sHS1}, {sHS1}, {sT0}", f"s_add_u32 {sHS1}, {sHS1}, {HB}"]
        g.wlg0()
        e("s_barrier")
        stamp("c_cs" + tag, cyc=True)
        stamp("conv_start" + tag)

        def cls_reads(dl):
            bf = dl & 1
            out = []
            for s in range(8):
                out.append(("lds", f"ds_read_b128 {vr(Greg[bf][s], 4)}, v{vGB} offset:{512 * s + 64 * (3 - dl)}", ("G", dl, s)))
                off = 64 * (59 - dl - 8 * s)
                out.append(("lds", f"ds_read_b64 {vr(FB[bf] + 4 * s, 2)}, v{vFB} offset:{off}", ("F", dl, s)))
                out.append(("lds", f"ds_read_b64 {vr(FB[bf] + 4 * s + 2, 2)}, v{vFB} offset:{off + 8}", ("F", dl, s)))
            return out
        for it in cls_reads(0):
            g.do(it)
        order = sorted([(s, gg) for s in range(8) for gg in range(8) if s + gg < 8], key=lambda x: (max(x), x[0] + x[1]))
        seen = set()
        hq = []
        NA = 8
        def early(rng_, msk):
            out = []
            for n_, i in enumerate(rng_):
                k_, st_ = divmod(i, 14)
                pre_ = [f"s_or_b32 {sT4}, s{sG2 + 4 * k_ + st_ // 4}, {msk}"] if (st_ % 4 == 0 or st_ == 13 or n_ == 0) else []
                if st_ == 13:
                    pre_.append(f"s_cmp_lt_u32 {sW}, 2\ns_cselect_b32 {sT4}, {sT4}, {OOB}")
                out.append(pre_ + [("vm", f"buffer_load_dwordx4 {vr(HRING[i], 4)}, v1, {SWS}, {sT4} offen offset:{(st_ % 4) * 1024} sc1", ("he", i))])
            return out
        US, UD = 2, 96
        for dl in range(4):
            bf = dl & 1
            nxt = cls_reads(dl + 1) if dl < 3 else []
            if dl == 3:
                nxt = [("lds", f"ds_read_b64 {vr(128 + 2 * tt, 2)}, v6 offset:{512 * tt}", "us") for tt in range(4)]
                nxt += [None] * 6 + [("wlg", "us")]
                for tt in range(4):
                    for i in range(4):
                        src = 128 + 2 * tt + (i >> 1)
                        nxt.append(f"v_fma_mix_f32 v{136 + 4 * tt + i}, v{src}, v{DK}, 0 op_sel:[{i & 1},0,0] op_sel_hi:[1,0,0]")
            if last and dl == 3:
                g.wvm("hfp")
                e(f"v_cmp_ne_u32 vcc, v{vTAG}, v{vFL}")
                e("s_nop 0")
                e("s_cmp_eq_u64 vcc, 0")
                e(f"s_cselect_b32 {sK1}, 1, 0")
                e(f"s_cselect_b32 {sT0}, 0, {OOB}")
                hq += early(range(NA), sT0)
            if dl > 0:
                g.wlg(("F", dl, 7))
            for mi, (s, gg) in enumerate(order):
                t = s + gg
                if dl == 0:
                    g.wlg(("G", dl, gg))
                    g.wlg(("F", dl, s))
                Cs = "0" if t not in seen else vr(CACC + 4 * t, 4)
                seen.add(t)
                e(f"v_mfma_f32_16x16x32_f16 {vr(CACC + 4 * t, 4)}, {vr(FB[bf] + 4 * s, 4)}, {vr(Greg[bf][gg], 4)}, {Cs}")
                start = 8 if dl == 0 else 1
                if mi >= start and nxt:
                    it = nxt.pop(0)
                    if it is not None:
                        g.do(it)
                elif extra:
                    g.do(extra.pop(0))
                if mi % 2 == 1 and extra and mi >= start:
                    g.do(extra.pop(0))
                mc = 36 * dl + mi
                if mc % 4 == 2:
                    nphi = wq[0][-1][2][1] if wq else 0
                    if last and mc == opt.get("hfp", 86):
                        assert not extra
                        g.vmem(f"buffer_load_dword v{vFL}, v{vFA}, {SWS}, 0 offen sc1", "hfp")
                    elif last and mc == 142:
                        assert not hq
                        g.vmem(f"buffer_load_dword v{vFL}, v{vFA}, {SWS}, 0 offen sc1", "hfp2")
                    elif hq:
                        for it in hq.pop(0):
                            g.do(it)
                    elif wq and not (last and extra and nphi >= 48):
                        wdl()
            assert not nxt, len(nxt)
        while wq and not last:
            wdl()
        assert not wq and not extra, (len(wq), len(extra))
        def hl(n=1):
            for _ in range(n):
                if hq:
                    for it in hq.pop(0):
                        g.do(it)
        stamp("c_ce" + tag, cyc=True)
        stamp("conv_end" + tag)
        lr1 = g.newlab("Lfin1")
        lfd = g.newlab("Lfind")
        e(f"s_cmp_lg_u32 {sRHO}, 0")
        e(f"s_cbranch_scc1 {lr1}")
        lg_save, pst_save, sf_save = list(g.lg), list(g.pst), list(g.sfree)
        for rho in range(2):
            if rho == 1:
                g.lab(lr1)
                g.lg, g.pst, g.sfree = list(lg_save), list(pst_save), list(sf_save)
            own = CACC + 16 * rho
            oth = CACC + 16 * (1 - rho)
            g.nop(6)
            for tt in range(4):
                g.lds(f"ds_write_b128 v4, {vr(oth + 4 * tt, 4)} offset:{PB + 1024 * tt}", "pw")
            align()
            for tt in range(4):
                for i in range(4):
                    e(f"v_fma_f32 v{136 + 4 * tt + i}, v{own + 4 * tt + i}, v{YS}, v{136 + 4 * tt + i}")
            if rho == 0:
                e(f"s_branch {lfd}")
        g.lab(lfd)
        g.wlg0()
        e("s_barrier")
        for tt in range(4):
            g.lds(f"ds_read_b128 {vr(152 + 4 * tt, 4)}, v5 offset:{PB + 1024 * tt}", ("pr", tt))
        if last:
            g.wvm("hfp2")
            e(f"v_cmp_ne_u32 vcc, v{vTAG}, v{vFL}")
            e(f"s_mov_b32 {sT1}, {sK1}")
            e("s_cmp_eq_u64 vcc, 0")
            e(f"s_cselect_b32 {sK1}, 1, {sK1}")
            e(f"s_cmp_lg_u32 {sK1}, 0")
            e(f"s_cselect_b32 {sT0}, 0, {OOB}")
            e(f"s_cmp_lg_u32 {sK1}, {sT1}")
            lb_ = g.newlab("Lnoa")
            e(f"s_cbranch_scc0 {lb_}")
            for grp in early(range(NA), sT0):
                for it in grp:
                    e(it[1] if isinstance(it, tuple) else it)
            g.lab(lb_)
            hq += early(range(NA, NE), sT0)
        hl(1)
        for tt in range(4):
            g.wlg(("pr", tt))
            for i in range(4):
                e(f"v_fmac_f32 v{136 + 4 * tt + i}, v{152 + 4 * tt + i}, v{YS}")
            for h in range(2):
                e(f"v_cvt_pk_bf16_f32 v{128 + 2 * tt + h}, v{136 + 4 * tt + 2 * h}, v{136 + 4 * tt + 2 * h + 1}")
            g.lds(f"ds_write_b64 v7, {vr(128 + 2 * tt, 2)} offset:{512 * tt}", "sw")
            hl(1)
        hl(1)
        g.wlg0()
        for j in range(2):
            g.lds(f"ds_read_b128 {vr(88 + 4 * j, 4)}, v8 offset:{1024 * j}", ("sr", j))
        hl(9)
        assert not hq
        if not last:
            e(f"s_add_u32 {sCP}, {sCP}, 40")
            for i in range(22):
                e(f"v_add_u32 v{GA + i}, {2 * TC}, v{GA + i}")
            e(f"v_add_u32 v{vYS}, {2 * TC}, v{vYS}")
        for j in range(2):
            g.wlg(("sr", j))
            g.vmem(f"buffer_store_dwordx4 {vr(88 + 4 * j, 4)}, v1, {SWS}, {sHS0} offen offset:{1024 * j} sc1", "sst")
        if not last:
            for it in u_loads(sCP, 2):
                g.do(it)
            e(f"s_mov_b32 {sMASK}, {sPEND}")
            e(f"s_sub_u32 {sRND}, {sRND}, 1")
            e(f"s_cmp_lg_u32 {sRND}, 1")
            e("s_cbranch_scc1 L_conv_early")

    conv(True)

    e(f"s_cmp_lg_u32 {sK1}, 0")
    e("s_cbranch_scc1 L_hready")
    poll_block(vFA, False)
    if opt.get("tp", -1) >= 0:
        e(f"buffer_load_dword v{vFL + 4}, v3, {SWS}, {sHS1} offen sc1")
    for i in range(NE):
        for it in hload(i):
            e(it[1] if isinstance(it, tuple) else it)
    g.lab("L_hready")
    stamp("c_g2s", cyc=True)
    stamp("g2_start")
    g.vm = [("h", i) for i in range(NE)]
    AC = [64, 84]
    lateq = [wd_load(64 + i) for i in range(6)] + [hload(i) for i in range(NE, NB)]
    fq = ["v_lshrrev_b32 v8, 1, v0", "v_lshlrev_b32 v8, 12, v8", "v_and_b32 v2, 1, v0", "v_lshl_add_u32 v8, v2, 4, v8",
          f"s_mul_i32 {sT1}, {sW}, 15360", f"v_add_u32 v2, {sT1}, v1",
          f"s_mul_i32 {sHS1}, {sW}, 3072", f"s_add_u32 {sHS1}, {sHS1}, {STB}", f"v_lshl_add_u32 v3, v0, 3, {sHS1}",
          "v_and_b32 v4, 15, v0", "v_mul_u32_u24 v4, 160, v4", "v_lshrrev_b32 v5, 4, v0", "v_lshl_add_u32 v4, v5, 3, v4",
          f"v_add_u32 v4, {sXT}, v4", f"v_add_u32 v5, {sXT}, v1",
          ]
    SFP = opt.get("sfp", 38)
    BAR = opt.get("bar", 46)
    P0, P1r, P2r, XR, XU, SR, SU = 160, 180, 200, 128, 138, 220, 180
    xq = [f"s_mov_b32 {sMASK}, 0xffff0000", f"s_mov_b32 {sT2}, {hex(f2u(-LOG2E))}"]
    xq += [("lds", f"ds_read_b64 {vr(XR + 2 * j, 2)}, v4 offset:{32 * j}", "x") for j in range(5)] + [None, None, ("wlg", "x")]
    for p in range(10):
        xq += [f"v_lshlrev_b32 v{XU + 2 * p}, 16, v{XR + p}", f"v_and_b32 v{XU + 2 * p + 1}, {sMASK}, v{XR + p}"]
    eq = [("lds", f"ds_read_b128 {vr(P0 + 4 * q, 4)}, v2 offset:{EXB + 1024 * q}", ("exr", q // 5)) for q in range(15)]
    eq += [("wlg", ("exr", 1))] + [f"v_pk_add_f32 {vr(P0 + 2 * p, 2)}, {vr(P0 + 2 * p, 2)}, {vr(P1r + 2 * p, 2)}" for p in range(10)]
    eq += [("wlg", ("exr", 2))] + [f"v_pk_add_f32 {vr(P0 + 2 * p, 2)}, {vr(P0 + 2 * p, 2)}, {vr(P2r + 2 * p, 2)}" for p in range(10)]

    for i in range(56):
        k, st = divmod(i, 14)
        A0 = AC[k & 1]
        g.wvm(("h", i))
        if st >= 12 and k == 0:
            g.wvm(("wd", 69 if st == 13 else 64))
        r = HRING[i % NB]
        extra = [[] for _ in range(5)]
        if st == 1 and k >= 1:
            pa = AC[(k - 1) & 1]
            for j in range(5):
                extra[j].append(("lds", f"ds_write_b128 v{9 + k - 1}, {vr(pa + 4 * j, 4)} offset:{1024 * j}", "exw"))
        for j in ((0, 3) if i < opt.get("fast", 0) else ((i % 4,) if i % 4 else (0, 4))):
            if lateq:
                extra[j] += lateq.pop(0)
        if i == opt.get('sfl', 7):
            def sflag():
                n = sum(1 for t in g.vm if t[0] == "wd" or (t[0] == "h" and t[1] >= NE))
                e(f"s_waitcnt vmcnt({n})")
                flag_store(sPEND)
            extra[1].append(sflag)
        if 18 <= i < 26:
            for j in (1, 3, 4):
                if fq:
                    extra[j].append(fq.pop(0))
        if i == SFP:
            extra[0].append(("vm", f"buffer_load_dwordx4 {vr(vFL, 4)}, v{vFA + 1}, {SWS}, 0 offen sc1", ("sfp",)))
        if i == SFP + 6:
            c4 = check4(vFL)
            extra[0] += [("wvm", ("sfp",))] + c4[0:2]
            extra[1] += c4[2:4]
            extra[2] += c4[4:6]
            def sfchk():
                sl = g.newlab("Lslow")
                bk = g.newlab("Lback")
                e(c4[6])
                e(f"s_cbranch_vccnz {sl}")
                g.lab(bk)
                g.slow.append((sl, bk, [(vFA + 1, True)]))
            extra[3].append(sfchk)
        if i == SFP + 7:
            extra[0] += [f"s_mov_b32 m0, {sHS1}"]
            extra[1] += [("vm", f"buffer_load_dwordx4 v8, {SWS}, {sSTO} offen sc1 lds", ("stl",)), f"s_add_u32 m0, {sHS1}, 1024"]
            extra[2] += [f"s_add_u32 {sT3}, {sSTO}, {32 * 4096}"]
            extra[3] += [("vm", f"buffer_load_dwordx4 v8, {SWS}, {sT3} offen sc1 lds", ("stl",)), f"s_add_u32 m0, {sHS1}, 2048"]
            extra[4] += [f"s_add_u32 {sT3}, {sSTO}, {64 * 4096}", f"v_mov_b32 v7, {OOB}", "v_cmp_lt_u32 vcc, 31, v0"]
        if i == SFP + 8:
            extra[1] += ["v_cndmask_b32 v8, v8, v7, vcc"]
            extra[2] += [("vm", f"buffer_load_dwordx4 v8, {SWS}, {sT3} offen sc1 lds", ("stl",))]
        if 30 <= i and xq and st != 1:
            for j in (1, 2, 3):
                for _ in range(1):
                    if xq:
                        it = xq.pop(0)
                        if it is not None:
                            extra[j].append(it)
        if i == BAR:
            assert not xq
            g.wlg0()
            e("s_barrier")
        if i >= BAR:
            for j in range(5):
                for _ in range(0 if i in (SFP + 6, SFP + 7) else 1):
                    if eq:
                        extra[j].append(eq.pop(0))
        for j in range(5):
            phi = st * 5 + j
            src = ar(4 * phi, 4) if phi < 64 else vr(vWDV + 4 * (phi - 64), 4)
            Cs = "0" if st == 0 else vr(A0 + 4 * j, 4)
            e(f"v_mfma_f32_16x16x32_bf16 {vr(A0 + 4 * j, 4)}, {src}, {vr(r, 4)}, {Cs}")
            for it in extra[j]:
                g.do(it)
        if i + NB < 56:
            lateq.append(hload(i + NB))
    assert not lateq and not fq
    stamp("c_g2e", cyc=True)
    stamp("g2_loop_end")
    for it in eq:
        g.do(it)
    A0 = AC[1]
    E_ = 200
    e(f"s_mov_b32 {sT3}, {sT2}")
    g.wvm(("stl",))
    for j in range(5):
        g.lds(f"ds_read_b64_tr_b16 {vr(SR + 2 * j, 2)}, v3 offset:{512 * j}", "s")
    g.nop(2)
    align()
    for p in range(10):
        e(f"v_pk_add_f32 {vr(A0 + 2 * p, 2)}, {vr(A0 + 2 * p, 2)}, {vr(P0 + 2 * p, 2)}")
    for p in range(10):
        e(f"v_pk_mul_f32 {vr(E_ + 2 * p, 2)}, {vr(A0 + 2 * p, 2)}, s[56:57]")
    for p in range(20):
        e(f"v_exp_f32 v{E_ + p}, v{E_ + p}")
    g.wlg("s")
    for p in range(10):
        e(f"v_lshlrev_b32 v{SU + 2 * p}, 16, v{SR + p}")
        e(f"v_and_b32 v{SU + 2 * p + 1}, {sMASK}, v{SR + p}")
    align()
    for p in range(10):
        e(f"v_pk_mul_f32 {vr(A0 + 2 * p, 2)}, {vr(A0 + 2 * p, 2)}, {vr(SU + 2 * p, 2)}")
    for p in range(10):
        e(f"v_pk_add_f32 {vr(E_ + 2 * p, 2)}, {vr(E_ + 2 * p, 2)}, 1.0 op_sel_hi:[1,0]")
    for p in range(20):
        e(f"v_rcp_f32 v{E_ + p}, v{E_ + p}")
    e("s_nop 0\ns_nop 0")
    for p in range(10):
        e(f"v_pk_fma_f32 {vr(A0 + 2 * p, 2)}, {vr(A0 + 2 * p, 2)}, {vr(E_ + 2 * p, 2)}, {vr(XU + 2 * p, 2)}")
    for p in range(10):
        e(f"v_cvt_pk_bf16_f32 v{160 + p}, v{A0 + 2 * p}, v{A0 + 2 * p + 1}")
        if p % 2 == 1:
            g.lds(f"ds_write_b64 v4, {vr(160 + p - 1, 2)} offset:{16 * (p - 1)}", "ow")
    g.wlg0()
    for kk in range(3):
        g.lds(f"ds_read_b128 {vr(128 + 4 * kk, 4)}, v5 offset:{1024 * kk}", ("or", kk))
    osc = opt.get("outsc", "")
    for kk in range(3):
        g.wlg(("or", kk))
        g.vmem(f"buffer_store_dwordx4 {vr(128 + 4 * kk, 4)}, v{(12, 13, 15)[kk]}, {SOUT}, {sXO} offen{osc}", "out")
    if diag:
        g.wvm0()
        stamp("end", flush=True)
        if opt.get("dbg"):
            e("s_load_dwordx2 s[88:89], s[100:101], 96")
            e("v_readlane_b32 s92, v127, 60")
            e("s_mov_b32 s90, 64\ns_mov_b32 s91, 0x20000")
            e("v_writelane_b32 v127, s92, 1")
            e("s_not_b32 s92, s92")
            e("v_writelane_b32 v127, s92, 0")
            e("v_lshlrev_b32 v2, 2, v0")
            e("s_waitcnt lgkmcnt(0)")
            e("buffer_atomic_umax v127, v2, s[88:91], 0 offen")
            e("s_endpgm")
        e(f"s_mov_b32 s88, s16\ns_mov_b32 s89, s17\ns_mov_b32 s90, 0x1000000\ns_mov_b32 s91, 0x20000")
        e(f"s_lshl_b32 {sT1}, s2, 2\ns_add_u32 {sT1}, {sT1}, {sW}\ns_lshl_b32 {sT1}, {sT1}, 8\ns_add_u32 {sT1}, {sT1}, {TS_BASE}")
        e("v_lshlrev_b32 v2, 2, v0")
        e(f"buffer_store_dword v127, v2, s[88:91], {sT1} offen")
    g.lab("L_end")
    e("s_endpgm")
    e(".p2align 6")
    g.lab("L_spare")
    g.vm = vm0
    g.lg = []
    g.pst = []
    g.sfree = [92] if opt.get('dbg') else [92, 100]
    if diag:
        e("v_mov_b32 v127, 0")
        e("v_writelane_b32 v127, s92, 60")
    e("v_lshrrev_b32 v4, 3, v0")
    e("v_and_b32 v5, 7, v0")
    e("s_add_u32 s68, s88, L_spare - L_pc + 256")
    e("s_addc_u32 s69, s89, 0")
    e("s_mov_b32 s70, 0x2000\ns_mov_b32 s71, 0x20000")
    e("v_and_b32 v10, 15, v0")
    e(f"s_lshl_b32 {sT1}, {sW}, 11")
    e("v_lshlrev_b32 v10, 7, v10")
    g.vmem(f"buffer_load_dword v{vFL + 4}, v10, s[68:71], {sT1} offen", "cpf")
    rest_setup()
    rest_loads()
    for r3 in range(3):
        run_items(param_units(r3))
    run_items(tab_units())
    table_code(TB)
    aE, aL2 = addr_items(XYB_SP, TB)
    run_items(aL2 + aE)
    g.wvm("ln")
    stamp("ln_data")
    ln_code()
    ln_tail()
    stamp("ln_done", flush=True)
    e(f"s_lshl_b32 {sMASK}, s2, 2")
    e(f"s_add_u32 {sMASK}, {sMASK}, {LNF}")
    e(f"s_cmp_eq_u32 {sW}, 0")
    e(f"s_cselect_b32 {sMASK}, {sMASK}, {OOB}")
    e(f"v_add_u32 v{vFA}, {LNF}, v1")
    e("v_min_u32 v2, 53, v0")
    e(f"s_lshr_b32 {sF0}, {sDT}, 1")
    e(f"s_lshl_b32 {sF0}, {sF0}, 10")
    e(f"s_add_u32 {sF0}, {sF0}, {WF}")
    e(f"v_lshl_add_u32 v{vFA + 1}, v2, 4, {sF0}")
    e(f"s_mov_b32 {sK1}, {sRND}")
    rb1()
    g.wvm("par")
    tag_code()
    g.lab("L_kgen")
    g.vm = []
    kgen("s", [], 1)
    g.wall()
    e("s_barrier")
    flag_store(sMASK)
    e(f"s_mov_b32 {sMASK}, {OOB}")
    kgen_mfma()
    e(f"s_sub_u32 {sK1}, {sK1}, 1")
    e(f"s_cmp_eq_u32 {sK1}, 0")
    e("s_cbranch_scc1 L_kdone")
    e(f"s_add_u32 {sKR}, {sKR}, {2 * TC}")
    for i in range(8):
        e(f"v_add_u32 v{SC + i}, {2 * TC}, v{SC + i}")
    for i in range(6):
        e(f"v_accvgpr_mov_b32 a{APAR + i}, a{APAR + 8 + i}")
        e(f"v_accvgpr_mov_b32 a{APAR + 8 + i}, a{APAR + 16 + i}")
    e("s_waitcnt lgkmcnt(0)")
    e("s_barrier")
    e("s_branch L_kgen")
    g.lab("L_kdone")
    stamp("kdone", flush=True)
    e(f"s_cmp_lg_u32 {sW}, 0")
    e("s_cbranch_scc1 L_sp_polled")
    poll_block(vFA, True, sleep=16)
    g.lab("L_sp_polled")
    e("s_waitcnt lgkmcnt(0)")
    e("s_barrier")
    stamp("sp_lnf", flush=True)
    run_items(u_loads(sCP, 2))
    rb2(TB_G1 - TB)
    conv(False)
    e(f"s_cmp_eq_u32 {sK0}, 0")
    e("s_cbranch_scc1 L_conv_last")
    poll_block(vFA + 1, True, sleep=24)
    for phi in range(P1):
        for it in wd_load(phi):
            e(it[1] if isinstance(it, tuple) else it)
    e("s_branch L_conv_last")
    for (sl, bk, lst) in g.slow:
        g.lab(sl)
        g.sfree = [98]
        g.pst = []
        if diag:
            e("s_waitcnt lgkmcnt(0)")
        for pi, (av, n4) in enumerate(lst):
            stamp(f"slow{sl[-2:]}_{pi}", flush=True)
            poll_block(av, n4, sleep=opt.get("ssleep", 20))
        stamp(f"slow{sl[-2:]}_x", flush=True)
        e(f"s_branch {bk}")
    g.L.append(".p2align 7")
    g.L.append(".type L_tab,@object")
    g.lab("L_tab")
    tb = lane_table()
    for i in range(0, len(tb), 16):
        g.L.append(".long " + ",".join(str(x) for x in tb[i:i + 16]))
    g.L.append(f".size L_tab, {4 * len(tb)}")
    g.lab("L_codeend")

    hdr = [f"; @launch grid=(256,1,1) block=(256,1,1) lds={LDS_TOTAL}",
           '.amdgcn_target "amdgcn-amd-amdhsa--gfx950"', ".text", f".globl {KNAME}", ".p2align 8",
           f".type {KNAME},@function", f"{KNAME}:"]
    ftr = ['.section .rodata,"a"', ".p2align 6", f".amdhsa_kernel {KNAME}",
           "  .amdhsa_next_free_vgpr 512", "  .amdhsa_next_free_sgpr 102", "  .amdhsa_accum_offset 256",
           "  .amdhsa_group_segment_fixed_size 0", "  .amdhsa_kernarg_size 112", "  .amdhsa_user_sgpr_count 2",
           "  .amdhsa_user_sgpr_kernarg_segment_ptr 1", "  .amdhsa_system_sgpr_workgroup_id_x 1",
           "  .amdhsa_float_denorm_mode_32 3",
           ".end_amdhsa_kernel"]
    txt = "\n".join(hdr + g.L + ftr) + "\n"
    if diag:
        txt = txt + "; STAMPS " + ",".join(ts_names) + "\n"
    return txt


if __name__ == "__main__":
    diag = "--diag" in sys.argv
    opt = {}
    for a in sys.argv[1:]:
        if a.startswith("--") and "=" in a:
            k, v = a[2:].split("=")
            opt[k] = int(v) if v.lstrip("-").isdigit() else v.replace("_", " ")
    out = [a for a in sys.argv[1:] if not a.startswith("--")]
    s = gen(diag=diag, opt=opt)
    path = out[0] if out else "recurrent_scan__ssm_conv_s4d__geglu_ffn__prompt.s"
    open(path, "w").write(s)
    print("wrote", path, len(s), "bytes", s.count("\n"), "lines")
```

```python
import sys, struct, math

KNAME = "recurrent_scan__ssm_conv_s4d__geglu_ffn__prompt_kernel"

EPOCH = 0x0
LNF = 0x1000
WF = 0x4400
STATS = 0x8000
XNT = 0x10000
ST = 0x290000
WDP = 0x510000
HB = 0x730000
CSP = 0xDF0000
HF = 0xE26000
SF = 0xE46000
WS_END = 0xE50000
TS_BASE = 0xE60000

SLOT = 49152
MISC = 147456
LNP = 1344
CSB = MISC + 10752 + 5120
XYP = 544
YR0 = 21
XYC = 53 * XYP
XYB_SP, XYB_G1 = 0, 2 * SLOT
LNB = 2 * SLOT
TB_G1 = 157696
PB = 0
UBASE = 69632
UC = 4608
RB = UBASE + 2 * UC
RCS = 4160
RC = 4 * RCS
TC = 2624
TB = MISC
YSO = 650 * 4
SOB = 16384
EXB = 24576
XTB = 112128
STB = XTB + 12288
LDS_TOTAL = 163840
OOB = 0x7fff0000

def f2u(x):
    return struct.unpack("<I", struct.pack("<f", x))[0]

LOG2E = 1.4426950408889634
C0 = -2.0 * math.sqrt(2.0 / math.pi) * LOG2E
C1 = C0 * 0.044715


class G:
    def __init__(self):
        self.L = []
        self.vm = []
        self.lg = []
        self.nlab = 0
        self.slow = []
        self.skip = set()
        self.pst = []
        self.sfree = [92, 100]

    def flush_stamps(self):
        for (sr, lane) in self.pst:
            self.e(f"v_writelane_b32 v127, s{sr}, {lane}")
            self.sfree.append(sr)
        self.pst = []

    def e(self, s):
        for ln in s.split("\n"):
            self.L.append("    " + ln)

    def lab(self, name):
        self.L.append(name + ":")

    def newlab(self, p="L"):
        self.nlab += 1
        return f"{p}_{self.nlab}"

    def vmem(self, s, tag=None):
        if tag in self.skip:
            return
        self.e(s)
        self.vm.append(tag)

    def lds(self, s, tag=None):
        self.e(s)
        self.lg.append(tag)

    def _n(self, q, tag):
        idx = max(i for i, t in enumerate(q) if t == tag)
        return idx, sum(1 for t in q[idx + 1:] if t != "OPT")

    def wvm(self, tag):
        if tag not in self.vm:
            return
        idx, n = self._n(self.vm, tag)
        self.e(f"s_waitcnt vmcnt({min(n, 63)})")
        self.vm = self.vm[idx + 1:]

    def wlg(self, tag):
        if tag not in self.lg:
            return
        idx, n = self._n(self.lg, tag)
        self.e(f"s_waitcnt lgkmcnt({min(n, 15)})")
        self.lg = self.lg[idx + 1:]

    def wvm0(self):
        self.e("s_waitcnt vmcnt(0)")
        self.vm = []

    def wlg0(self):
        self.e("s_waitcnt lgkmcnt(0)")
        self.lg = []
        self.flush_stamps()

    def wall(self):
        self.e("s_waitcnt vmcnt(0) lgkmcnt(0)")
        self.vm = []
        self.lg = []
        self.flush_stamps()

    def nop(self, n):
        while n > 0:
            k = min(n, 16)
            self.e(f"s_nop {k - 1}")
            n -= k

    def do(self, item):
        if callable(item):
            item()
        elif isinstance(item, tuple):
            kind = item[0]
            if kind == "vm":
                self.vmem(item[1], item[2])
            elif kind == "lds":
                self.lds(item[1], item[2])
            elif kind == "wvm":
                self.wvm(item[1])
            elif kind == "wlg":
                self.wlg(item[1])
            else:
                raise ValueError(kind)
        else:
            self.e(item)


def vr(a, n):
    return f"v[{a}:{a + n - 1}]"


def ar(a, n):
    return f"a[{a}:{a + n - 1}]"


SX, SWG, SWU, SWS, SOUT, SWD = "s[4:7]", "s[8:11]", "s[12:15]", "s[16:19]", "s[20:23]", "s[24:27]"
P_LAR, P_AIM, P_CRE, P_CIM, P_LDT, P_DSK = "s[28:29]", "s[30:31]", "s[32:33]", "s[34:35]", "s[36:37]", "s[38:39]"
sW, sTAG, sM, sFT, sISG1, sCP, sRND, sSP = "s40", "s41", "s42", "s43", "s44", "s45", "s46", "s47"
sXCD, sQ = "s48", "s49"
sXM0, sWM0, sXS, sWSO = "s50", "s51", "s52", "s53"
sT0, sT1, sT2, sT3, sT4, sT5 = "s54", "s55", "s56", "s57", "s58", "s59"
sMASK, sCNT = "s60", "s61"
sRHO, sC = "s62", "s63"
sHS0, sHS1 = "s64", "s65"
sG2 = 66
STW = "s[96:99]"
sF0, sF1, sF2 = "s0", "s1", "s3"
sLT, sDT = "s82", "s83"
sWDS = "s84"
sPEND, sXO = "s85", "s86"
sKR = "s87"
sXT, sSTO = "s94", "s95"
sK0, sK1 = "s96", "s97"

vT = 2
vXO = 16
vWO = 24
vBA = 26
vAA = 30
vCS = 42
vHO = 44
vTO = 46
vSTA = 48
vU = 56
vAF = 64
vBF = 96
vPAR = 112
vFA = 118
vEP = 120
vFL = 122
vACC = 128
SC = 224
GA = 24
AST = 224
AS2 = 192
PKB = MISC
vWDV = 232


def bf16_idx(l):
    if l < 0:
        return -1
    if l < 256:
        return l
    u = f2u(float(l))
    u = (u + 0x7fff + ((u >> 16) & 1)) >> 16
    return u - 0x4280


def lane_table():
    out = []
    for w in range(4):
        c, rho = w >> 1, w & 1
        rows = []
        for ln in range(64):
            n, kg = ln & 15, ln >> 4
            E = [0] * 48
            E[3] = (UBASE + c * UC + rho * 256 + ln * 16) if ln < 16 else (RB + 4096 + c * RC + rho * 2 * RCS + ((ln >> 1) & 1) * RCS + (ln & 1) * 16)
            E[4] = RB + c * RC + rho * 2048 + ln * 16
            E[5] = UBASE + 512 + w * 1024 + (ln & 1) * UC + (ln >> 1) * 16
            E[6] = TB_G1 + c * TC
            E[7] = RB + 24 + 256 + c * RC - rho * 256 + ((3 - n) & 3) * RCS + kg * 16 - (n & 12) * 2
            E[8] = UBASE + 32 + 256 + c * UC - rho * 256 + n * 32 + kg * 16
            E[9] = w * 4096 + ln * 16
            E[10] = E[9] ^ 0x1000
            E[11] = UBASE + 512 + c * UC + rho * 2048 + n * 32 + kg * 8
            E[12] = SOB + w * 2048 + n * 32 + kg * 8
            E[13] = SOB + w * 2048 + ln * 16
            for k in range(3):
                E[14 + k] = ((w + k + 1) & 3) * 15360 + EXB + 5120 * k + ln * 16
                ix = 64 * k + ln
                E[17 + k] = (ix // 10) * 1280 + (ix % 10) * 16
            E[20] = E[19] if ln < 32 else OOB
            E[23] = (ln >> 1) * 10240 + (ln & 1) * 16
            for ch in range(2):
                for k in range(11):
                    l = 2047 - 1024 * rho - 8 * ln - 512 * ch - k
                    E[24 + 11 * ch + k] = TB_G1 + 4 + c * TC + 4 * bf16_idx(l)
            rows.append(E)
        for q in range(12):
            for ln in range(64):
                out += rows[ln][4 * q:4 * q + 4]
    return out


def gen(diag=False, opt=None):
    opt = opt or {}
    TOUCH = opt.get("touch", 0)
    P1 = opt.get("p1", 32)
    KCHK = opt.get("kchk", 29)
    NT = " nt" if opt.get("nt", 1) else ""
    g = G()
    e = g.e
    if opt.get('nolnst'):
        g.skip.add('lnst')
    ts_names = []
    vTAG, vL0 = vEP, vEP + 1

    def stamp(name, cyc=False, flush=False):
        if not diag:
            return
        if opt.get("dbg"):
            sel = ["x0", "x1", "par_data", "kdone", "g1_start", "g1_loop_end", "g1_epi_end", "conv_startL", "conv_endL", "g2_start", "g2_loop_end", "end", "sp_lnf", "conv_startE"]
            if name not in sel:
                return
            ts_names[:] = sel
        if name not in ts_names:
            ts_names.append(name)
        i = ts_names.index(name)
        if not g.sfree:
            g.wlg0()
        sr = g.sfree.pop(0)
        e(f"{'s_memtime' if cyc else 's_memrealtime'} s[{sr}:{sr + 1}]")
        g.pst.append((sr, i))
        if flush:
            g.wlg0()

    def interleave(fn, units, every):
        n0 = len(g.L)
        fn()
        body = g.L[n0:]
        del g.L[n0:]
        cnt = 0
        for bi, ln in enumerate(body):
            g.L.append(ln)
            if ln.strip().startswith(".") or ln.strip().endswith(":"):
                continue
            cnt += 1
            nxt_ = body[bi + 1].strip() if bi + 1 < len(body) else ""
            if nxt_.startswith(("s_cselect", "s_addc", "s_cbranch")):
                continue
            if units and cnt >= every:
                u = units[0]
                if isinstance(u, tuple) and u[0] == "m0":
                    e(u[1])
                    units.pop(0)
                    cnt = every - 1
                else:
                    g.do(u)
                    units.pop(0)
                    cnt = 0 if isinstance(u, tuple) else every - 1

    def align():
        e(".p2align 3")

    def red(op, v, t, full):
        for dpp in ("quad_perm:[1,0,3,2]", "quad_perm:[2,3,0,1]", "row_half_mirror", "row_mirror"):
            g.nop(2)
            e(f"{op} v{v}, v{v}, v{v} {dpp}")
        e(f"v_mov_b32 v{t}, v{v}")
        g.nop(2)
        e(f"v_permlane16_swap_b32 v{v}, v{t}")
        g.nop(1)
        e(f"{op} v{v}, v{v}, v{t}")
        if full:
            e(f"v_mov_b32 v{t}, v{v}")
            g.nop(2)
            e(f"v_permlane32_swap_b32 v{v}, v{t}")
            g.nop(1)
            e(f"{op} v{v}, v{v}, v{t}")

    def bf16round(v):
        e(f"v_cvt_pk_bf16_f32 v{v}, v{v}, v{v}")
        e(f"v_lshlrev_b32 v{v}, 16, v{v}")

    def check4(tmp):
        return [f"v_xor_b32 v{tmp}, v{vTAG}, v{tmp}", f"v_xor_b32 v{tmp + 1}, v{vTAG}, v{tmp + 1}",
                f"v_xor_b32 v{tmp + 2}, v{vTAG}, v{tmp + 2}", f"v_xor_b32 v{tmp + 3}, v{vTAG}, v{tmp + 3}",
                f"v_or3_b32 v{tmp}, v{tmp}, v{tmp + 1}, v{tmp + 2}", f"v_or_b32 v{tmp}, v{tmp}, v{tmp + 3}",
                f"v_cmp_ne_u32 vcc, 0, v{tmp}"]

    def poll_block(addr_v, n4, sleep=opt.get('sleep', 8)):
        lp = g.newlab("Lpoll")
        dn = g.newlab("Lpd")
        tmp = vFL
        e(f"s_mov_b32 {sCNT}, 0x20000")
        g.lab(lp)
        if n4:
            e(f"buffer_load_dwordx4 {vr(tmp, 4)}, v{addr_v}, {SWS}, 0 offen sc1")
            e("s_waitcnt vmcnt(0)")
            for x in check4(tmp):
                e(x)
        else:
            e(f"buffer_load_dword v{tmp}, v{addr_v}, {SWS}, 0 offen sc1")
            e("s_waitcnt vmcnt(0)")
            e(f"v_cmp_ne_u32 vcc, v{vTAG}, v{tmp}")
        e(f"s_cbranch_vccz {dn}")
        e(f"s_sleep {sleep}")
        e(f"s_sub_u32 {sCNT}, {sCNT}, 1")
        e(f"s_cbranch_scc0 {lp}")
        g.lab(dn)

    def flag_store(soff):
        e(f"buffer_store_dword v{vTAG}, v{vL0}, {SWS}, {soff} offen sc1")

    def wd_load(phi):
        dst = ar(4 * phi, 4) if phi < 64 else vr(vWDV + 4 * (phi - 64), 4)
        pre = []
        if phi >= 65:
            if phi == 65 or phi == 68:
                pre.append(f"s_add_u32 {sT5}, {sWDS}, {(phi // 4) * 4096}")
                pre.append(f"s_cmp_lt_u32 {sW}, 2\ns_cselect_b32 {sT5}, {sT5}, {OOB}")
        elif phi % 4 == 0:
            pre.append(f"s_add_u32 {sT5}, {sWDS}, {(phi // 4) * 4096}")
        return pre + [("vm", f"buffer_load_dwordx4 {dst}, v1, {SWS}, {sT5} offen offset:{(phi % 4) * 1024} sc1", ("wd", phi))]

    def u_loads(cpreg, va):
        return [f"v_accvgpr_read_b32 v{va}, a{AS2 + 23}",
                f"s_mul_i32 {sF0}, {sW}, {64 * 10240}",
                f"s_lshl_b32 {sF1}, {cpreg}, 5",
                f"s_add_u32 {sF0}, {sF0}, {sF1}",
                f"s_add_u32 {sF0}, {sF0}, {XNT}",
                f"s_add_u32 {sF1}, {sF0}, {32 * 10240}",
                ("vm", f"buffer_load_dwordx4 {vr(vU, 4)}, v{va}, {SWS}, {sF0} offen sc1", "u"),
                ("vm", f"buffer_load_dwordx4 {vr(vU + 4, 4)}, v{va}, {SWS}, {sF1} offen sc1", "u")]

    def tab_units():
        out = []
        for q in range(12):
            if q % 4 == 0:
                out.append(f"s_mul_i32 {sT4}, {sW}, 12288\ns_add_u32 {sT4}, {sT4}, L_tab - L_pc + {1024 * q}")
            dst = ar(AS2 + 4 * q, 4) if q < 6 else ar(AST + 8 + 4 * (q - 6), 4)
            out.append(("vm", f"buffer_load_dwordx4 {dst}, v1, s[88:91], {sT4} offen offset:{1024 * (q % 4)}", "tab"))
        return out

    def table_code(TB):
        def put(i, src):
            e(f"v_lshl_add_u32 v{src}, v{src}, 2, {sF2}")
            e(f"v_accvgpr_write_b32 a{AST + i}, v{src}")
        e(f"s_mul_i32 {sF2}, {sC}, {TC}")
        e(f"s_add_u32 {sF2}, {sF2}, {TB + 4}")
        e("v_lshrrev_b32 v4, 4, v0")
        e(f"s_lshl_b32 {sF1}, {sRHO}, 2")
        e(f"v_add_u32 v4, {sF1}, v4")
        e("v_and_b32 v5, 15, v0")
        DUM = 645
        e("v_cmp_eq_u32 s[54:55], 2, v4")
        e("v_cmp_eq_u32 s[56:57], 3, v4")
        e("v_cmp_eq_u32 s[58:59], 4, v4")
        e("v_cmp_lt_u32 vcc, 4, v4")
        e("v_mov_b32 v6, 8")
        e("v_cndmask_b32 v6, v6, 4, s[54:55]")
        e("v_cndmask_b32 v6, v6, 2, s[56:57]")
        e("v_cndmask_b32 v6, v6, 1, s[58:59]")
        e("v_cndmask_b32 v6, v6, 0, vcc")
        e("v_mul_u32_u24 v7, v6, v5")
        e("v_lshlrev_b32 v8, 4, v6")
        for i in range(4):
            e(f"v_lshl_add_u32 v9, v4, 2, {i}")
            for sreg, val in (("s[54:55]", 256 + i), ("s[56:57]", 384 + 64 * (i >> 1) + (i & 1)), ("s[58:59]", 512 + 32 * i), ("vcc", DUM)):
                e(f"v_mov_b32 v10, {val}")
                e(f"v_cndmask_b32 v9, v9, v10, {sreg}")
            e("v_add_u32 v9, v9, v7")
            e("v_add_u32 v11, v9, v8")
            if i == 0:
                e("v_lshl_add_u32 v6, v4, 4, v5")
                e("v_mov_b32 v10, 80")
                e("v_cmp_eq_u32 s[60:61], v10, v6")
                e("v_mov_b32 v10, 640")
                e("s_nop 0")
                e("v_cndmask_b32 v9, v9, v10, s[60:61]")
            put(i, 9)
            put(4 + i, 11)

    def gather_items(TB):
        it = [f"s_mul_i32 {sF2}, {sC}, {TC}", f"s_add_u32 {sF2}, {sF2}, {TB + 4}",
              f"s_lshl_b32 {sF1}, {sRHO}, 10", f"s_sub_u32 {sF1}, 2047, {sF1}", "v_lshlrev_b32 v12, 3, v0",
              f"v_sub_u32 v12, {sF1}, v12", f"s_movk_i32 {sF1}, 128"]
        for ch in range(2):
            for k in range(11):
                it += [f"v_subrev_u32 v2, {512 * ch + k}, v12", "v_max_i32 v3, 0, v2", "v_cvt_f32_u32 v3, v3",
                       f"v_med3_i32 v2, v2, -1, {sF1}", "v_cvt_pk_bf16_f32 v3, v3, 0", "v_subrev_u32 v3, 0x4280, v3",
                       "v_max_i32 v2, v2, v3", f"v_lshl_add_u32 v2, v2, 2, {sF2}",
                       f"v_accvgpr_write_b32 a{AST + 8 + 11 * ch + k}, v2"]
        return it

    def addr_items(XYB, TB):
        it = []
        A = it.append
        def st(i, r):
            A(f"v_accvgpr_write_b32 a{AS2 + i}, v{r}")
        A(f"s_mul_i32 {sF0}, {sC}, {XYC}")
        A(f"s_add_u32 {sF0}, {sF0}, {XYB}")
        A(f"v_lshl_add_u32 v2, v0, 3, {sF0}")
        st(0, 2)
        A("v_and_b32 v12, 15, v0")
        A("v_lshrrev_b32 v13, 4, v0")
        A(f"v_mul_u32_u24 v2, {XYP}, v12")
        A("v_lshl_add_u32 v2, v13, 4, v2")
        A(f"v_add_u32 v3, {sF0}, v2")
        st(2, 3)
        A(f"s_mul_i32 {sF1}, {sRHO}, {16 * XYP}")
        A(f"v_add_u32 v3, {sF1}, v3")
        st(1, 3)
        A(f"s_mul_i32 {sF2}, {sC}, {TC}")
        A(f"s_add_u32 {sF2}, {sF2}, {TB}")
        A(f"v_mov_b32 v2, {sF2}")
        st(6, 2)
        A("EARLY_END")
        A(f"s_mul_i32 {sF0}, {sW}, 14")
        A(f"s_cmp_eq_u32 {sW}, 3\ns_cselect_b32 {sF1}, 1, 0")
        A(f"s_sub_u32 {sF0}, {sF0}, {sF1}")
        A(f"s_mul_i32 {sF1}, {sDT}, 54")
        A(f"s_add_u32 {sF1}, {sF0}, {sF1}")
        A(f"s_mul_i32 {sF1}, {sF1}, 5120")
        A(f"s_add_u32 {sWDS}, {sF1}, {WDP}")
        for k in range(4):
            A(f"s_add_u32 {sF1}, {sW}, {k + 1}")
            A(f"s_and_b32 {sF1}, {sF1}, 3")
            A(f"s_lshl_b32 {sF2}, {sLT}, 2")
            A(f"s_add_u32 {sF1}, {sF1}, {sF2}")
            A(f"s_mul_i32 {sF1}, {sF1}, 54")
            A(f"s_add_u32 {sF1}, {sF1}, {sF0}")
            A(f"s_lshl_b32 {sF1}, {sF1}, 10")
            A(f"s_add_u32 s{sG2 + 4 * k}, {sF1}, {HB}")
            for q in range(1, 4):
                A(f"s_add_u32 s{sG2 + 4 * k + q}, s{sG2 + 4 * k}, {4096 * q}")
        A(f"s_lshl_b32 {sXO}, {sLT}, 2")
        A(f"s_add_u32 {sXO}, {sXO}, {sW}")
        A(f"s_mul_i32 {sXO}, {sXO}, {16 * 1280}")
        A(f"s_mul_i32 {sF0}, {sDT}, 160")
        A(f"s_add_u32 {sXO}, {sXO}, {sF0}")
        A(f"s_mul_i32 {sXT}, {sW}, 3072")
        A(f"s_add_u32 {sXT}, {sXT}, {XTB}")
        A(f"s_mul_i32 {sSTO}, {sDT}, 80")
        A(f"s_lshl_b32 {sSTO}, {sSTO}, 12")
        A(f"s_lshl_b32 {sF0}, {sLT}, 2")
        A(f"s_add_u32 {sF0}, {sF0}, {sW}")
        A(f"s_lshl_b32 {sF0}, {sF0}, 5")
        A(f"s_add_u32 {sSTO}, {sSTO}, {sF0}")
        A(f"s_add_u32 {sSTO}, {sSTO}, {ST}")
        A(("wvm", "tab"))
        A(f"s_lshl_b32 {sF0}, {sLT}, 12")
        A(f"s_add_u32 {sF0}, {sF0}, {HF}")
        A("v_min_u32 v2, 26, v0")
        A(f"v_lshl_add_u32 v2, v2, 7, {sF0}")
        st(21, 2)
        A(f"s_mul_i32 {sF0}, {sDT}, {40 * 128}")
        A(f"s_add_u32 {sF0}, {sF0}, {SF}")
        A("v_min_u32 v2, 39, v0")
        A(f"v_lshl_add_u32 v2, v2, 7, {sF0}")
        st(22, 2)
        k_ = it.index("EARLY_END")
        return it[:k_], it[k_ + 1:]

    e("s_cmp_ge_u32 s2, 256")
    e("s_cbranch_scc1 L_end")
    if diag:
        e("s_memrealtime s[92:93]")
    if opt.get("dbg"):
        e("s_mov_b64 s[100:101], s[0:1]")
        g.sfree = [92]
    e("s_getpc_b64 s[88:89]")
    g.lab("L_pc")
    e("s_load_dwordx2 s[4:5], s[0:1], 0")
    e("s_load_dwordx2 s[16:17], s[0:1], 104")
    e("s_load_dwordx2 s[8:9], s[0:1], 64")
    e("s_load_dwordx2 s[12:13], s[0:1], 72")
    e("s_load_dwordx4 s[28:31], s[0:1], 8")
    e("s_load_dwordx4 s[32:35], s[0:1], 24")
    e("s_load_dwordx4 s[36:39], s[0:1], 40")
    e("s_load_dwordx4 s[64:67], s[0:1], 80")
    NSP = opt.get("nsp", 0)
    for i in range(NSP):
        e(f"s_load_dword s{66 + i}, s[88:89], {256 + 128 * i}")
    e("v_lshrrev_b32 v2, 6, v0")
    e("v_and_b32 v3, 15, v0")
    e("s_mov_b32 s90, L_codeend - L_pc")
    e("s_mov_b32 s91, 0x20000")
    e("v_lshl_add_u32 v3, v2, 4, v3")
    e(f"v_readfirstlane_b32 {sW}, v2")
    e("v_lshlrev_b32 v3, 7, v3")
    if opt.get("cpf0", 1):
        e(f"buffer_load_dword v{vFL + 3}, v3, s[88:91], 0 offen offset:{min(256 + 128 * NSP, 4000)}")
        g.vm.append("cpf")
    e("v_and_b32 v0, 63, v0")
    e("s_mov_b32 s6, 2621440\ns_mov_b32 s7, s91")
    e("v_lshrrev_b32 v2, 5, v0")
    e("v_and_b32 v3, 31, v0")
    e("v_mul_u32_u24 v2, 0x500, v2")
    e(f"s_lshl2_add_u32 {sT0}, s2, {sW}")
    e("v_lshl_add_u32 v2, v3, 3, v2")
    e(f"s_mulk_i32 {sT0}, 2560")
    e(f"s_lshr_b32 {sQ}, s2, 3")
    e(f"s_bfe_u32 {sT1}, s2, 0x20001")
    e(f"s_and_b32 {sM}, s2, 1")
    e(f"s_and_b32 {sT2}, {sQ}, 3")
    e(f"s_lshr_b32 {sDT}, {sQ}, 2")
    e(f"s_lshl2_add_u32 {sM}, {sM}, {sT2}")
    e(f"s_mul_i32 {sFT}, {sT1}, 7")
    e(f"s_add_u32 {sFT}, {sFT}, {sDT}")
    e(f"s_mul_i32 {sCP}, {sM}, 27")
    e(f"s_add_u32 {sCP}, {sCP}, {sFT}")
    e(f"s_lshr_b32 {sC}, {sW}, 1")
    e(f"s_lshl1_add_u32 {sT1}, {sCP}, {sC}")
    e(f"s_lshl_b32 {sT1}, {sT1}, 8")
    e(f"v_lshl_add_u32 v12, v0, 2, {sT1}")
    e(f"s_lshl_b32 {sT1}, {sCP}, 2")
    e(f"v_mov_b32 v13, {sT1}")
    e(f"s_cmp_lt_u32 {sDT}, 7")
    e(f"s_cselect_b32 {sT3}, {sFT}, 27")
    e(f"s_cmp_lt_u32 {sT3}, 27")
    e(f"s_cselect_b32 {sISG1}, 1, 0")
    e("s_waitcnt lgkmcnt(0)")
    for i in range(opt.get("ns2", 0)):
        e(f"s_load_dword s93, s[88:89], {opt.get('ns2o', 384) + 128 * i}")
    LX = 232
    for q in range(5):
        g.vmem(f"buffer_load_dwordx2 {vr(LX + 2 * q, 2)}, v2, {SX}, {sT0} offen offset:{256 * q}", "ln")
    e("s_cbranch_scc0 L_spare")
    if diag:
        e("v_mov_b32 v127, 0")
        e("v_writelane_b32 v127, s92, 60")
    stamp("start")
    APAR = 160
    for k, p in enumerate((P_LAR, P_AIM, P_CRE, P_CIM)):
        g.vmem(f"global_load_dword a{APAR + k}, v12, {p}{NT}", "par")
    g.vmem(f"global_load_dword a{APAR + 4}, v13, {P_LDT}", "par")
    g.vmem(f"global_load_dword a{APAR + 5}, v13, {P_DSK}", "par")
    if diag and not opt.get("dbg") and False:
        e("s_memrealtime s[100:101]\ns_waitcnt lgkmcnt(0)\nv_writelane_b32 v127, s100, 56")
    if opt.get("coop", 1):
        e(f"s_mul_i32 {sT1}, {sDT}, 37")
        e(f"s_mul_i32 {sT3}, {sW}, 10")
        e(f"s_lshl_b32 {sT4}, {sM}, 8")
        e(f"s_add_u32 {sT1}, {sT1}, {sT3}")
        e(f"s_add_u32 {sT1}, {sT1}, {sT4}")
        e("v_min_u32 v4, 9, v0")
        e(f"s_mulk_i32 {sT1}, 1280")
        e("v_mul_u32_u24 v4, 0x500, v4")
        e(f"s_cmp_eq_u32 {sC}, 0\ns_cselect_b32 s96, s8, s12\ns_cselect_b32 s97, s9, s13")
        for q in range(3):
            g.vmem(f"buffer_load_dword v{vFL + 4}, v4, {SX}, {sT1} offen offset:{128 * q}", "coop")
        e(f"s_and_b32 {sT1}, {sW}, 1")
        e(f"s_lshl1_add_u32 {sT1}, {sT2}, {sT1}")
        e("v_min_u32 v5, 23, v0")
        e(f"s_mul_i32 {sT1}, {sT1}, {24 * 3456}")
        e(f"s_lshl_b32 {sT3}, {sFT}, 7")
        e("v_mul_u32_u24 v5, 3456, v5")
        e(f"s_add_u32 {sT1}, {sT1}, {sT3}")
        e("s_mov_b32 s98, 2211840\ns_mov_b32 s99, 0x20000")
        g.vmem(f"buffer_load_dword v{vFL + 4}, v5, {STW}, {sT1} offen", "coop")
    e("v_lshrrev_b32 v4, 3, v0")
    e("v_and_b32 v5, 7, v0")
    e("v_lshrrev_b32 v6, 4, v0")
    e("v_mul_u32_u24 v7, 3456, v4")
    e("v_and_b32 v8, 1, v6")
    e("v_lshlrev_b32 v8, 1, v8")
    e("v_xor_b32 v8, v5, v8")
    e(f"v_lshl_add_u32 v{vWO}, v8, 4, v7")
    e(f"s_lshl_b32 {sWM0}, {sW}, 11")
    e(f"s_mul_i32 {sWSO}, {sW}, {16 * 3456}")
    e(f"s_lshl_b32 {sT1}, {sFT}, 7")
    e(f"s_add_u32 {sWSO}, {sWSO}, {sT1}")
    e("v_xor_b32 v8, 4, v8")
    e("v_lshl_add_u32 v8, v8, 4, v7")
    e(f"v_add_u32 v{vWO + 1}, {8 * 3456 - 1024}, v8")
    e("s_mov_b32 s10, 2211840\ns_mov_b32 s11, 0x20000")
    e("s_mov_b32 s14, s10\ns_mov_b32 s15, 0x20000")

    def rest_setup():
        e(f"s_and_b32 {sXCD}, s2, 7")
        e("s_mov_b64 s[24:25], s[64:65]")
        e("s_mov_b64 s[20:21], s[66:67]")
        e("v_lshlrev_b32 v1, 4, v0")
        e(f"s_mov_b32 s18, {WS_END}\ns_mov_b32 s19, 0x20000")
        e(f"v_mov_b32 v{vL0}, {OOB}")
        e(f"v_writelane_b32 v{vL0}, 0, 0")
        e("s_mov_b32 s22, 2621440\ns_mov_b32 s23, 0x20000")
        e("s_mov_b32 s26, 2211840\ns_mov_b32 s27, 0x20000")
        e(f"s_lshl_b32 {sT4}, {sXCD}, 2")
        e(f"s_and_b32 {sT2}, {sQ}, 3")
        if opt.get("map2", 1):
            e(f"s_lshr_b32 {sLT}, {sXCD}, 1")
            e(f"s_and_b32 {sT2}, {sQ}, 7")
            e(f"s_lshl3_add_u32 {sLT}, {sLT}, {sT2}")
            e(f"s_and_b32 {sT2}, {sXCD}, 1")
            e(f"s_lshr_b32 {sDT}, {sQ}, 3")
            e(f"s_lshl2_add_u32 {sDT}, {sT2}, {sDT}")
        else:
            e(f"s_add_u32 {sLT}, {sT4}, {sT2}")
        e(f"s_add_u32 {sT4}, {sT4}, {sQ}")
        e(f"s_sub_u32 {sT4}, {sT4}, 28")
        e(f"s_lshl_b32 {sT5}, {sXCD}, 3")
        e(f"s_add_u32 {sT5}, {sT5}, {sQ}")
        e(f"s_sub_u32 {sT5}, {sT5}, 48")
        e(f"s_cmp_lt_u32 {sXCD}, 6\ns_cselect_b32 {sSP}, {sT4}, {sT5}")
        e(f"s_mul_i32 {sT4}, {sM}, 27")
        e(f"s_add_u32 {sT4}, {sT4}, {sFT}")
        e(f"s_add_u32 {sT5}, {sSP}, 216")
        e(f"s_cmp_lg_u32 {sISG1}, 0\ns_cselect_b32 {sCP}, {sT4}, {sT5}")
        e(f"s_cmp_lt_u32 {sSP}, 24\ns_cselect_b32 {sRND}, 3, 2")
        e(f"s_and_b32 {sRHO}, {sW}, 1")
        e(f"s_lshr_b32 {sC}, {sW}, 1")
        e("v_lshlrev_b32 v10, 21, v0")
        e(f"v_mov_b32 v{vFA}, v1")
        e(f"v_mov_b32 v{vFA + 1}, v1")
        e(f"v_mul_u32_u24 v54, {3456 if opt.get('csc', 1) else 17280}, v4")
        e("v_lshl_add_u32 v54, v5, 4, v54")
        e(f"s_lshl_b32 {sHS0}, {sM}, 1")
        e(f"s_add_u32 {sHS0}, {sHS0}, {sRHO}")
        e(f"s_mul_i32 {sHS0}, {sHS0}, {40 * 3456}")
        e(f"s_lshl_b32 {sT1}, {sFT}, 7")
        e(f"s_add_u32 {sHS0}, {sHS0}, {sT1}")
        e("s_mov_b32 s98, 2211840\ns_mov_b32 s99, 0x20000")
        e(f"s_cmp_eq_u32 {sC}, 0\ns_cselect_b32 s96, s8, s12\ns_cselect_b32 s97, s9, s13")
        e(f"s_lshl_b32 {sT1}, {sQ}, 2")
        e(f"s_add_u32 {sT1}, {sT1}, {sW}")
        e(f"s_mul_i32 {sT1}, {sT1}, 768")
        e(f"s_add_u32 {sT1}, {sT1}, {8192 + min(256 + 128 * NSP, 4000)}")
        e("v_min_u32 v11, 5, v0")
        e("v_lshlrev_b32 v11, 7, v11")

    def rest_loads():
        g.vmem(f"buffer_load_dword v{vTAG}, v{vL0}, {SWS}, 0 offen sc1", "ep")
        g.vmem(f"buffer_load_dword v{vFL + 2}, v11, s[88:91], {sT1} offen", "tlb")
        if opt.get("tlb", 0):
            g.vmem(f"buffer_load_dword v{vFL}, v10, {SWS}, 0 offen", "tlb")
            g.vmem(f"buffer_load_dword v{vFL + 1}, v10, {SOUT}, 0 offen", "tlb")

    def dma_units(stage):
        sb = (stage % 3) * SLOT
        out = []
        for mat in range(2):
            out.append(("m0", f"s_add_u32 m0, {sWM0}, {sb + mat * 8192}"))
            for half in range(2):
                o = f" offset:{1024 * half}" if half else ""
                out.append(("vm", f"buffer_load_dwordx4 v{vWO + half}, {SWG if mat == 0 else SWU}, {sWSO} offen{o} lds", ("dma", stage)))
        for i in range(8):
            if i % 4 == 0:
                out.append(("m0", f"s_add_u32 m0, {sXM0}, {sb + i * 1024}"))
            o = f" offset:{1024 * (i & 3)}" if i & 3 else ""
            out.append(("vm", f"buffer_load_dwordx4 v{vXO + i}, {SX}, {sXS} offen{o} lds", ("dma", stage)))
        out.append(f"s_add_u32 {sXS}, {sXS}, 128")
        out.append(f"s_add_u32 {sWSO}, {sWSO}, {64 * 3456}")
        return out

    def dma_block(stage):
        for u in dma_units(stage):
            if isinstance(u, tuple) and u[0] == "m0":
                e(u[1])
                e("s_nop 0")
            else:
                g.do(u)

    APAR = 160
    def param_units(rnd):
        out = [f"s_add_u32 {sT2}, {sCP}, {40 * rnd}", f"s_min_u32 {sT2}, {sT2}, 319",
               f"s_lshl_b32 {sT1}, {sT2}, 1", f"s_add_u32 {sT1}, {sT1}, {sC}", f"s_lshl_b32 {sT1}, {sT1}, 8",
               f"v_lshl_add_u32 v12, v0, 2, {sT1}", f"s_lshl_b32 {sT1}, {sT2}, 2", f"v_mov_b32 v13, {sT1}"]
        for k, p in enumerate((P_LAR, P_AIM, P_CRE, P_CIM)):
            out.append(("vm", f"global_load_dword a{APAR + 8 * rnd + k}, v12, {p}{NT}", "par"))
        out.append(("vm", f"global_load_dword a{APAR + 8 * rnd + 4}, v13, {P_LDT}", "par"))
        out.append(("vm", f"global_load_dword a{APAR + 8 * rnd + 5}, v13, {P_DSK}", "par"))
        return out

    CSR = [56, 60, 112, 116, 52]
    def csl_units():
        out = []
        for j5 in range(5):
            if opt.get("csc", 1):
                if j5:
                    out.append(f"s_add_u32 {sHS0}, {sHS0}, {8 * 3456}")
                out.append(("vm", f"buffer_load_dwordx4 {vr(CSR[j5], 4)}, v54, {STW}, {sHS0} offen", ("csl", j5)))
                continue
            if j5 in (2, 4):
                out.append(f"s_add_u32 {sHS0}, {sHS0}, {2 * 3456}")
            out.append(("vm", f"buffer_load_dwordx4 {vr(CSR[j5], 4)}, v54, {STW}, {sHS0} offen offset:{(j5 % 2) * 3456}", ("csl", j5)))
        return out
    def emit_units(us):
        for u in us:
            if isinstance(u, tuple) and u[0] == "m0":
                e(u[1])
                e("s_nop 0")
            else:
                g.do(u)

    def split_units(us, n):
        c = 0
        for ix, u in enumerate(us):
            if isinstance(u, tuple) and u[0] == "vm":
                c += 1
                if c == n:
                    return us[:ix + 1], us[ix + 1:]
        return us, []

    def run_items(items):
        for it in items:
            g.do(it)

    F, S, Dv, SO, UO = 140, 160, 164, 184, 188
    def ln_code(bar=False):
        for q in range(10):
            e(f"v_lshlrev_b32 v{F + 2 * q}, 16, v{LX + q}")
            e(f"v_and_b32 v{F + 2 * q + 1}, 0xffff0000, v{LX + q}")
        e(f"v_pk_add_f32 {vr(S, 2)}, {vr(F, 2)}, {vr(F + 2, 2)}")
        e(f"v_pk_add_f32 {vr(S + 2, 2)}, {vr(F + 4, 2)}, {vr(F + 6, 2)}")
        for q in range(4, 10, 2):
            e(f"v_pk_add_f32 {vr(S, 2)}, {vr(S, 2)}, {vr(F + 2 * q, 2)}")
            e(f"v_pk_add_f32 {vr(S + 2, 2)}, {vr(S + 2, 2)}, {vr(F + 2 * q + 2, 2)}")
        e(f"v_pk_add_f32 {vr(S, 2)}, {vr(S, 2)}, {vr(S + 2, 2)}")
        e(f"v_add_f32 v{S}, v{S}, v{S + 1}")
        red("v_add_f32", S, S + 1, False)
        e(f"v_mul_f32 v{S}, {hex(f2u(1.0 / 640))}, v{S}")
        for q in range(10):
            e(f"v_pk_add_f32 {vr(Dv + 2 * q, 2)}, {vr(F + 2 * q, 2)}, {vr(S, 2)} op_sel_hi:[1,0] neg_lo:[0,1] neg_hi:[0,1]")
        e(f"v_pk_mul_f32 {vr(S + 2, 2)}, {vr(Dv, 2)}, {vr(Dv, 2)}")
        e(f"v_pk_mul_f32 {vr(S + 24, 2)}, {vr(Dv + 2, 2)}, {vr(Dv + 2, 2)}")
        for q in range(2, 10):
            r = S + 2 if q % 2 == 0 else S + 24
            e(f"v_pk_fma_f32 {vr(r, 2)}, {vr(Dv + 2 * q, 2)}, {vr(Dv + 2 * q, 2)}, {vr(r, 2)}")
        e(f"v_pk_add_f32 {vr(S + 2, 2)}, {vr(S + 2, 2)}, {vr(S + 24, 2)}")
        e(f"v_add_f32 v{S + 2}, v{S + 2}, v{S + 3}")
        red("v_add_f32", S + 2, S + 3, False)
        e(f"v_mul_f32 v{S + 2}, {hex(f2u(1.0 / 640))}, v{S + 2}")
        bf16round(S + 2)
        e(f"v_add_f32 v{S + 2}, {hex(f2u(1e-5))}, v{S + 2}")
        bf16round(S + 2)
        e(f"v_sqrt_f32 v{S + 2}, v{S + 2}")
        bf16round(S)
        bf16round(S + 2)
        e(f"v_rcp_f32 v{S + 3}, v{S + 2}")
        e(f"v_sub_f32 v{SO}, 0, v{S}")
        e(f"v_mul_f32 v{SO + 3}, v{S + 2}, v{S + 2}")
        e(f"v_mul_f32 v{S + 1}, v{S + 3}, v{S + 3}")
        e(f"v_mul_f32 v{SO + 2}, {hex(f2u(C0))}, v{S + 3}")
        e(f"v_mul_f32 v{S + 1}, v{S + 1}, v{S + 3}")
        e(f"v_mul_f32 v{S + 2}, v{SO}, v{S + 3}")
        e(f"v_mul_f32 v{SO + 1}, {hex(f2u(C1))}, v{S + 1}")
        for q in range(10):
            e(f"v_pk_fma_f32 {vr(Dv + 2 * q, 2)}, {vr(F + 2 * q, 2)}, {vr(S + 2, 2)}, {vr(S + 2, 2)} op_sel:[0,1,0] op_sel_hi:[1,1,0]")
        for q in range(10):
            e(f"v_cvt_pk_f16_f32 v{UO + q}, v{Dv + 2 * q}, v{Dv + 2 * q + 1}")
        e("v_lshrrev_b32 v2, 5, v0")
        e(f"v_mul_u32_u24 v2, {LNP}, v2")
        e("v_and_b32 v3, 31, v0")
        e("v_lshl_add_u32 v2, v3, 3, v2")
        e(f"s_mul_i32 {sT1}, {sW}, {2 * LNP}")
        e(f"s_add_u32 {sT1}, {sT1}, {LNB}")
        e(f"v_add_u32 v2, {sT1}, v2")
        if bar:
            e("s_barrier")
        for q in range(5):
            g.lds(f"ds_write_b64 v2, {vr(UO + 2 * q, 2)} offset:{256 * q}", "lnw")
        e("v_lshrrev_b32 v4, 1, v0")
        e(f"v_mov_b32 v5, {OOB}")
        e("v_cmp_ne_u32 vcc, 0, v3")
        e(f"s_lshl_b32 {sT1}, s2, 2")
        e(f"s_add_u32 {sT1}, {sT1}, {sW}")
        e("v_cndmask_b32 v4, v4, v5, vcc")
        e(f"s_lshl_b32 {sT1}, {sT1}, 5")
        e(f"s_add_u32 {sT1}, {sT1}, {STATS}")
        e("v_bfe_u32 v6, v0, 2, 2")
        e(f"v_mul_u32_u24 v2, {LNP}, v6")
        e("v_lshrrev_b32 v3, 4, v0")
        e("v_lshl_add_u32 v2, v3, 5, v2")
        e("v_and_b32 v7, 3, v0")
        e("v_lshl_add_u32 v2, v7, 3, v2")
        e(f"s_lshl_b32 {sT2}, {sW}, 7")
        e(f"s_add_u32 {sT2}, {sT2}, {LNB}")
        e(f"v_add_u32 v2, {sT2}, v2")

    def ln_tail():
        g.vmem(f"buffer_store_dwordx4 {vr(SO, 4)}, v4, {SWS}, {sT1} offen sc1", "lnst")
        g.wlg0()
        e("s_barrier")
        TR = 200
        for j in range(3):
            for h in range(2):
                g.lds(f"ds_read_b64_tr_b16 {vr(TR + 4 * j + 2 * h, 2)}, v2 offset:{512 * j + 4 * LNP * h}", ("lntr", j))
        e(f"s_mul_i32 {sT1}, s2, 10240")
        e(f"s_lshl_b32 {sT2}, {sW}, 10")
        e(f"s_add_u32 {sT1}, {sT1}, {sT2}")
        e(f"s_add_u32 {sT1}, {sT1}, {XNT}")
        e(f"s_add_u32 {sT2}, {sT1}, 4096")
        e(f"s_add_u32 {sT3}, {sT1}, 8192")
        e(f"s_cmp_lt_u32 {sW}, 2")
        e(f"s_cselect_b32 {sT3}, {sT3}, {OOB}")
        for j, so in enumerate((sT1, sT2, sT3)):
            g.wlg(("lntr", j))
            g.vmem(f"buffer_store_dwordx4 {vr(TR + 4 * j, 4)}, v1, {SWS}, {so} offen sc1", "lnst")

    AK = 46
    vKA_A, vKA_B, vZ, vRW, vUW, vYS, vFB, vGB = range(AK, AK + 8)
    KA, CC, TM = 128, 152, 136
    WA = KA + 6
    SIG, OMG = KA + 2, KA + 4

    def cexp(dst, p, t):
        for m in range(2):
            e(f"v_mul_f32 v{t + m}, {hex(f2u(float(p)))}, v{SIG + m}")
            e(f"v_mul_f32 v{t + 2 + m}, {hex(f2u(float(p)))}, v{OMG + m}")
        for m in range(2):
            e(f"v_fract_f32 v{t + 2 + m}, v{t + 2 + m}")
        for m in range(2):
            e(f"v_exp_f32 v{t + m}, v{t + m}")
            e(f"v_cos_f32 v{dst + 2 * m}, v{t + 2 + m}")
            e(f"v_sin_f32 v{dst + 2 * m + 1}, v{t + 2 + m}")
        e("s_nop 0")
        align()
        for m in range(2):
            e(f"v_pk_mul_f32 {vr(dst + 2 * m, 2)}, {vr(dst + 2 * m, 2)}, {vr(t, 2)} op_sel:[0,{m}] op_sel_hi:[1,{m}]")

    def cmul(dst, P, Q, t):
        for m in range(2):
            e(f"v_pk_mul_f32 {vr(t + 2 * m, 2)}, {vr(P + 2 * m, 2)}, {vr(Q + 2 * m, 2)} op_sel_hi:[0,1]")
        for m in range(2):
            e(f"v_pk_fma_f32 {vr(dst + 2 * m, 2)}, {vr(P + 2 * m, 2)}, {vr(Q + 2 * m, 2)}, {vr(t + 2 * m, 2)} op_sel:[1,1,0] op_sel_hi:[1,0,1] neg_lo:[0,1,0]")

    prow = [0]

    def put(src, row, neg, lastrow=False):
        o = 144 + 2 * (row % 4)
        ng = "-" if neg else ""
        if src is not None:
            e(f"v_cvt_pk_f16_f32 v{o}, v{src}, {ng}v{src + 1}")
            e(f"v_cvt_pk_f16_f32 v{o + 1}, v{src + 2}, {ng}v{src + 3}")
        if row % 2 == 1:
            o0 = ((row - 1) % 4) * 68
            g.lds(f"ds_write2_b64 v{WA}, {vr(o - 2, 2)}, {vr(o, 2)} offset0:{o0} offset1:{o0 + 68}", "xy")
            if row % 4 == 3:
                e(f"v_add_u32 v{WA}, {4 * XYP}, v{WA}")
        elif lastrow:
            g.lds(f"ds_write_b64 v{WA}, {vr(o, 2)} offset:{(row % 4) * XYP}", "xy")


    def rb1():
        e(f"s_mov_b32 {sKR}, 0")
        for i in range(8):
            e(f"v_accvgpr_read_b32 v{SC + i}, a{AST + i}")
        for i in (0, 1, 5):
            e(f"v_accvgpr_read_b32 v{AK + i}, a{AS2 + 1 + i}")

    def tag_code():
        e(f"v_readfirstlane_b32 {sTAG}, v{vTAG}")
        e("s_nop 3")
        e(f"s_mul_i32 {sTAG}, {sTAG}, 1664525")
        e(f"s_add_u32 {sTAG}, {sTAG}, 1013904223")
        e(f"v_mov_b32 v{vTAG}, {sTAG}")

    def k_setup():
        for k6 in (4, 5, 0, 1, 2, 3):
            e(f"v_accvgpr_read_b32 v{vPAR + k6}, a{APAR + k6}")
        e(f"v_accvgpr_read_b32 v{WA}, a{AS2}")
        e(f"s_lshl_b32 {sT1}, {sC}, 4")
        e(f"v_lshrrev_b32 v{KA}, {sT1}, v{vPAR + 4}")
        e(f"v_lshlrev_b32 v{KA}, 16, v{KA}")
        e(f"v_mul_f32 v{KA}, {hex(f2u(LOG2E))}, v{KA}")
        e(f"v_exp_f32 v{KA}, v{KA}")
        e(f"v_lshrrev_b32 v{KA + 7}, {sT1}, v{vPAR + 5}")
        e(f"v_lshlrev_b32 v{KA + 7}, 16, v{KA + 7}")
        bf16round(KA)
        e(f"v_lshlrev_b32 v{KA + 2}, 16, v{vPAR}")
        e(f"v_and_b32 v{KA + 3}, 0xffff0000, v{vPAR}")
        e(f"v_mul_f32 v{KA + 2}, {hex(f2u(LOG2E))}, v{KA + 2}")
        e(f"v_mul_f32 v{KA + 3}, {hex(f2u(LOG2E))}, v{KA + 3}")
        e(f"v_exp_f32 v{KA + 2}, v{KA + 2}")
        e(f"v_exp_f32 v{KA + 3}, v{KA + 3}")
        e(f"v_lshlrev_b32 v{KA + 4}, 16, v{vPAR + 1}")
        e(f"v_and_b32 v{KA + 5}, 0xffff0000, v{vPAR + 1}")
        e(f"v_cvt_pk_bf16_f32 v{KA + 1}, v{KA + 2}, v{KA + 3}")
        e(f"v_lshlrev_b32 v{CC}, 16, v{vPAR + 2}")
        e(f"v_lshlrev_b32 v{CC + 1}, 16, v{vPAR + 3}")
        e(f"v_and_b32 v{CC + 2}, 0xffff0000, v{vPAR + 2}")
        e(f"v_and_b32 v{CC + 3}, 0xffff0000, v{vPAR + 3}")
        e(f"v_lshlrev_b32 v{KA + 2}, 16, v{KA + 1}")
        e(f"v_and_b32 v{KA + 3}, 0xffff0000, v{KA + 1}")
        for m in range(2):
            e(f"v_mul_f32 v{KA + 2 + m}, v{KA + 2 + m}, v{KA}")
            e(f"v_mul_f32 v{KA + 4 + m}, v{KA + 4 + m}, v{KA}")
        for m in range(2):
            e(f"v_mul_f32 v{KA + 2 + m}, {hex(f2u(-LOG2E))}, v{KA + 2 + m}")
            e(f"v_mul_f32 v{KA + 4 + m}, {hex(f2u(1.0 / (2 * math.pi)))}, v{KA + 4 + m}")

    def k_role0():
        W8, W16, T2 = 152, 156, 140
        ch = [[160, 164], [168, 172]]
        e(f"v_add_u32 v{WA}, {YR0 * XYP}, v{WA}")
        cexp(W8, 8, TM)
        e("v_mov_b32 v144, 0x3c00")
        e("v_mov_b32 v145, 0x3c00")
        cmul(W16, W8, W8, TM)
        put(W8, 33, False)
        cur = [W16, W8]
        for j in range(2, 32, 2):
            n0 = cur[0] if j == 2 else ch[0][(j // 2) & 1]
            n1 = ch[1][(j // 2) & 1]
            for m in range(2):
                if j > 2:
                    e(f"v_pk_mul_f32 {vr(TM + 2 * m, 2)}, {vr(cur[0] + 2 * m, 2)}, {vr(W16 + 2 * m, 2)} op_sel_hi:[0,1]")
                e(f"v_pk_mul_f32 {vr(T2 + 2 * m, 2)}, {vr(cur[1] + 2 * m, 2)}, {vr(W16 + 2 * m, 2)} op_sel_hi:[0,1]")
            for m in range(2):
                if j > 2:
                    e(f"v_pk_fma_f32 {vr(n0 + 2 * m, 2)}, {vr(cur[0] + 2 * m, 2)}, {vr(W16 + 2 * m, 2)}, {vr(TM + 2 * m, 2)} op_sel:[1,1,0] op_sel_hi:[1,0,1] neg_lo:[0,1,0]")
                e(f"v_pk_fma_f32 {vr(n1 + 2 * m, 2)}, {vr(cur[1] + 2 * m, 2)}, {vr(W16 + 2 * m, 2)}, {vr(T2 + 2 * m, 2)} op_sel:[1,1,0] op_sel_hi:[1,0,1] neg_lo:[0,1,0]")
            put(n0, 32 + j, False)
            put(n1, 33 + j, False)
            cur = [n0, n1]

    def k_role1():
        MX = 136
        e(f"v_max_f32 v{MX}, |v{CC}|, |v{CC + 1}|")
        e(f"v_max3_f32 v{MX}, |v{CC + 2}|, |v{CC + 3}|, v{MX}")
        red("v_max_f32", MX, MX + 1, True)
        e(f"v_frexp_exp_i32_f32 v{MX}, v{MX}")
        e(f"v_add_f32 v{KA}, v{KA}, v{KA}")
        e(f"v_ldexp_f32 v{MX + 2}, v{KA}, v{MX}")
        e(f"v_mov_b32 v{MX + 3}, v{KA + 7}")
        e(f"v_sub_u32 v{MX}, 0, v{MX}")
        for i in range(4):
            e(f"v_ldexp_f32 v{CC + i}, v{CC + i}, v{MX}")
        e(f"v_add_u32 v{MX + 1}, {sKR}, v{vYS}")
        e(f"v_mov_b32 v{MX}, 0")
        g.lds(f"ds_write_b64 v{MX + 1}, {vr(MX + 2, 2)} offset:{YSO}", "xy")
        g.lds(f"ds_write_b32 v{MX + 1}, v{MX}", "xy")
        Z, Q, Q4 = 156, 160, 164
        cexp(Z, 1, TM)
        cexp(Q, 256, TM)
        cexp(Q4, 1024, TM)
        X = [168 + 4 * i for i in range(8)]
        X[0] = CC
        put(CC, 0, True)
        for s in range(1, 8):
            cmul(X[s], X[s - 1], Z, TM)
            put(X[s], s, True)
        R8 = [200 + 4 * i for i in range(4)]
        for s in range(4):
            cmul(R8[s], X[2 * s], Q, TM)
            put(R8[s], 8 + s, True)
        R12 = [216, 220]
        for s in range(2):
            cmul(R12[s], R8[2 * s], Q, TM)
            put(R12[s], 12 + s, True)
        for s in range(2):
            cmul(X[1 + 2 * s], R12[s], Q, TM)
            put(X[1 + 2 * s], 14 + s, True)
        cmul(R8[0], CC, Q4, TM)
        put(R8[0], 16, True)
        cmul(R8[1], R8[0], Q, TM)
        put(R8[1], 17, True)
        cmul(R8[3], R8[1], Q, TM)
        put(R8[3], 18, True)
        cmul(R8[1], R8[3], Q, TM)
        put(R8[1], 19, True)
        cmul(R8[2], R8[0], Q4, TM)
        put(R8[2], 20, True, lastrow=True)

    def kgen(sfx, units, every):
        k_setup()
        e(f"s_cmp_lg_u32 {sRHO}, 0")
        e(f"s_cbranch_scc1 L_role1{sfx}")
        vm_s, lg_s = list(g.vm), list(g.lg)
        us = list(units)
        interleave(k_role0, us, every)
        emit_units(us)
        e(f"s_branch L_kbar{sfx}")
        align()
        g.lab(f"L_role1{sfx}")
        g.vm, g.lg = vm_s, lg_s
        us = list(units)
        interleave(k_role1, us, every)
        emit_units(us)
        g.lab(f"L_kbar{sfx}")
        stamp("kvalu_end")

    def kgen_mfma():
        KF = 64
        for ks in range(8):
            g.lds(f"ds_read_b128 {vr(KF + 4 * ks, 4)}, v{vKA_A} offset:{64 * ks}", ("ka", ks))
            g.lds(f"ds_read_b128 {vr(128 + 4 * ks, 4)}, v{vKA_B} offset:{YR0 * XYP + 64 * ks}", ("kb0", ks))
            g.lds(f"ds_read_b128 {vr(160 + 4 * ks, 4)}, v{vKA_B} offset:{(YR0 + 16) * XYP + 64 * ks}", ("kb1", ks))
        KD = 96
        for ks in range(8):
            g.wlg(("kb1", ks))
            e(f"v_mfma_f32_16x16x32_f16 {vr(KD, 4)}, {vr(KF + 4 * ks, 4)}, {vr(128 + 4 * ks, 4)}, {'0' if ks == 0 else vr(KD, 4)}")
            e(f"v_mfma_f32_16x16x32_f16 {vr(KD + 4, 4)}, {vr(KF + 4 * ks, 4)}, {vr(160 + 4 * ks, 4)}, {'0' if ks == 0 else vr(KD + 4, 4)}")
        g.nop(7)
        for i in range(8):
            g.lds(f"ds_write_b32 v{SC + i}, v{KD + i}", "tw")

    vm0 = ["cpf"] + ["ln"] * 5
    u0, u0b = split_units(dma_units(0), opt.get("nf", 4)) if opt.get("nf", 0) else ([], dma_units(0))
    def g1_early():
        e("v_mul_u32_u24 v7, 1280, v4")
        e("v_xor_b32 v8, v5, v6")
        e("v_xor_b32 v9, 4, v8")
        e(f"v_lshl_add_u32 v{vXO}, v8, 4, v7")
        e(f"v_lshl_add_u32 v{vXO + 1}, v9, 4, v7")
        e(f"v_add_u32 v{vXO + 1}, {8 * 1280 - 1024}, v{vXO + 1}")
        e(f"s_lshl2_add_u32 {sXS}, {sM}, {sW}")
        e(f"s_mul_i32 {sXS}, {sXS}, {64 * 1280}")
        e(f"s_lshl_b32 {sXM0}, {sW}, 13")
        e(f"s_add_u32 {sXM0}, {sXM0}, 16384")
        for i in range(2, 8):
            d = 16 * 1280 - 1024 * ((i & 3) - ((i - 2) & 3))
            e(f"v_add_u32 v{vXO + i}, {d}, v{vXO + i - 2}")
        rest_setup()
    interleave(g1_early, u0, opt.get("pe0", 1))
    assert not u0
    e(f"s_mov_b32 {sRND}, 1")
    if not opt.get("rl2", 1):
        rest_loads()
    else:
        e(f"s_mov_b32 {sHS1}, {sT1}")
        e("v_mov_b32 v14, v10\nv_mov_b32 v15, v11")
    if diag and not opt.get("dbg"):
        e("s_memrealtime s[100:101]\ns_waitcnt lgkmcnt(0)\nv_writelane_b32 v127, s100, 57")
    aE, aL = addr_items(XYB_G1, TB_G1)
    table_code(TB_G1)
    run_items(aE)
    rb1()
    if opt.get("rl2", 1):
        e(f"s_mov_b32 {sT1}, {sHS1}")
        e("v_mov_b32 v10, v14\nv_mov_b32 v11, v15")
        rest_loads()
    if diag and not opt.get("dbg"):
        e("s_memrealtime s[100:101]\ns_waitcnt lgkmcnt(0)\nv_writelane_b32 v127, s100, 58")
    g.wvm("ln")
    stamp("par_data")
    u0c, u0d = split_units(u0b, opt.get("nl", 8)) if opt.get("nl", 8) else ([], u0b)
    def ln_late():
        n0_ = len(g.L)
        ln_code()
    if opt.get("lnskip"):
        n0_ = len(g.L)
        ln_code()
        body_ = g.L[n0_:]
        del g.L[n0_:]
        g.L += body_[:opt["lnskip"]]
        interleave(lambda: g.L.extend(body_[opt["lnskip"]:]), u0c, opt.get("pe1", 16))
    else:
        interleave(ln_code, u0c, opt.get("pe1", 16))
    emit_units(u0c)
    ln_tail()
    stamp("ln_done")
    g.wvm("ep")
    tag_code()
    e(f"s_lshl_b32 {sT3}, s2, 2")
    e(f"s_add_u32 {sT3}, {sT3}, {LNF}")
    e(f"s_cmp_eq_u32 {sW}, 0")
    e(f"s_cselect_b32 {sT3}, {sT3}, {OOB}")
    e("s_barrier")
    uK, uR = split_units((u0d + csl_units() + dma_units(1)) if opt.get('csf') else (u0d + dma_units(1) + csl_units()), opt.get("nk", 99))
    kgen("g", uK, opt.get("pek", 11))
    g.wvm("lnst")
    g.wlg0()
    e("s_barrier")
    flag_store(sT3)
    interleave(kgen_mfma, uR, opt.get("pem", 6))
    emit_units(uR)
    stamp("kdone")
    e("v_and_b32 v2, 15, v0")
    e("v_lshrrev_b32 v3, 4, v0")
    e("v_bfe_u32 v4, v0, 1, 3")
    e("v_xor_b32 v4, v4, v3")
    e(f"v_lshl_add_u32 v2, v2, 7, {sXM0}")
    e(f"v_lshl_add_u32 v{vBA}, v4, 4, v2")
    e(f"v_xor_b32 v{vBA + 1}, 64, v{vBA}")
    e(f"v_add_u32 v{vBA + 2}, {2 * SLOT}, v{vBA}")
    e(f"v_add_u32 v{vBA + 3}, {2 * SLOT}, v{vBA + 1}")
    e("v_bfe_u32 v6, v0, 2, 2")
    e("v_and_b32 v7, 3, v0")
    e("v_lshl_add_u32 v2, v3, 3, v6")
    e("v_lshlrev_b32 v2, 7, v2")
    e("v_lshl_add_u32 v2, v7, 3, v2")
    e("v_lshrrev_b32 v6, 1, v6")
    e("v_and_b32 v3, 1, v3")
    e("v_lshl_add_u32 v6, v3, 1, v6")
    e(f"v_lshl_add_u32 v{vAA}, v6, 5, v2")
    for i in range(1, 4):
        e(f"v_xor_b32 v{vAA + i}, {32 * i}, v{vAA}")
    for i in range(4):
        e(f"v_add_u32 v{vAA + 4 + i}, {2 * SLOT}, v{vAA + i}")

    def touch_setup():
        return [f"s_lshr_b32 {sF0}, {sQ}, 2", f"s_mul_i32 {sF0}, {sF0}, 10", f"v_add_u32 v2, {sF0}, v0",
                "v_min_u32 v2, 63, v2", "v_mul_u32_u24 v2, 1280, v2", f"v_mov_b32 v3, {OOB}",
                f"v_cmp_lt_u32 vcc, 9, v0\ns_nop 1\nv_cndmask_b32 v{vTO}, v2, v3, vcc",
                f"s_and_b32 {sF0}, {sQ}, 3", f"s_lshl_b32 {sF0}, {sF0}, 1", f"s_add_u32 {sF0}, {sF0}, {sRHO}",
                f"s_lshl_b32 {sF0}, {sF0}, 3", f"s_lshl_b32 {sF1}, {sW}, 4", f"s_sub_u32 {sF0}, {sF0}, {sF1}",
                f"s_add_u32 {sF0}, {sF0}, 64", f"v_add_u32 v2, {sF0}, v0", "v_mul_u32_u24 v2, 3456, v2",
                f"v_cmp_lt_u32 vcc, 7, v0\ns_nop 1\nv_cndmask_b32 v{vTO + 1}, v2, v3, vcc",
                ]

    def touch_units(ahead):
        return [f"s_add_u32 {sT4}, {sXS}, {128 * ahead}",
                ("vm", f"buffer_load_dword v{vFL + 4}, v{vTO}, {SX}, {sT4} offen", "touch"),
                f"s_add_u32 {sT4}, {sWSO}, {64 * 3456 * (ahead - 1)}" if ahead >= 1 else f"s_sub_u32 {sT4}, {sWSO}, {64 * 3456}",
                ("vm", f"buffer_load_dword v{vFL + 4}, v{vTO + 1}, {STW}, {sT4} offen", "touch")]

    def Breg(K, lt):
        return vr(96 + 4 * lt, 4) if K % 2 == 0 else ar(144 + 4 * lt, 4)

    def frag_reads(k):
        stage, ks = divmod(k, 4)
        K, mat = divmod(k, 2)
        Ks = K & 1
        sl = stage % 3
        so = 0 if sl == 2 else sl * SLOT
        A = vAF + 16 * (k & 1)
        def bread(lt):
            return ("lds", f"ds_read_b128 {Breg(K, lt)}, v{vBA + (2 if sl == 2 else 0) + Ks} offset:{so + 2048 * lt}", ("B", K))
        def aread(t, h):
            return ("lds", f"ds_read_b64_tr_b16 {vr(A + 4 * t + 2 * h, 2)}, v{vAA + (4 if sl == 2 else 0) + t} offset:{so + mat * 8192 + Ks * 4096 + h * 512}", ("A", k, t))
        if mat == 0:
            return [bread(0), aread(0, 0), aread(0, 1), bread(1), bread(2), bread(3), aread(1, 0), aread(1, 1), aread(2, 0), aread(2, 1), aread(3, 0), aread(3, 1)]
        return [aread(t, h) for t in range(4) for h in range(2)]

    e(f"s_mov_b32 {sMASK}, 0xffff0000")
    g.wvm(("dma", 0))
    g.wlg0()
    e("s_barrier")
    stamp("g1_start")
    stamp("c_g1s", cyc=True)
    for it in frag_reads(0):
        g.do(it)

    PACE = opt.get("pace", 2)
    STQ = [38, 48, 52, 16]
    NG = 320
    gaps = [[] for _ in range(NG)]
    head = [[] for _ in range(NG)]
    pre = {}
    vq_big = []

    sq = []
    def add_group(units, earliest, small=False, pace=None):
        vq = sq if small else vq_big
        prel = []
        for u in units:
            if isinstance(u, tuple) and u[0] == "m0":
                prel.append(u[1])
            elif isinstance(u, tuple) or callable(u):
                vq.append([earliest, prel, u, [], pace])
                prel = []
            else:
                prel.append(u)
        if prel:
            vq[-1][3] += prel

    def Bgap(s):
        return 32 * s - 8

    PKV = 48
    pk_fill = [f"s_mov_b32 {sF0}, {0x100000000 // 20 + 1}", f"s_lshl_b32 {sF1}, {sW}, 6"]
    for i3 in range(3):
        pk_fill += [f"v_add_u32 v2, {sF1}, v0"] + ([f"v_add_u32 v2, {256 * i3}, v2"] if i3 else []) + [
            f"v_mul_hi_u32 v3, v2, {sF0}", "v_mul_u32_u24 v12, 20, v3", "v_sub_u32 v12, v2, v12",
            "v_mul_u32_u24 v3, 1280, v3", f"v_lshl_add_u32 v{PKV + i3}, v12, 4, v3"]
    pk_fill += [f"s_lshr_b32 {sHS0}, {sCP}, 2", f"s_and_b32 {sHS1}, {sCP}, 3",
                f"s_mul_i32 {sT2}, {sHS0}, 40960", f"s_mul_i32 {sF0}, {sHS1}, 320", f"s_add_u32 {sT2}, {sT2}, {sF0}",
                f"s_lshl_b32 {sT3}, {sW}, 10"]
    pk_fill2 = ["v_lshrrev_b32 v2, 2, v0", "v_mul_u32_u24 v2, 320, v2", "v_and_b32 v3, 3, v0", "v_lshl_add_u32 v2, v3, 3, v2",
                f"s_lshl_b32 {sF0}, {sW}, 5", f"s_add_u32 {sF0}, {sF0}, {PKB}", f"v_add_u32 v{PKV + 3}, {sF0}, v2"]
    PDR = [0, 4, 8]
    pk_dma = []
    for i3 in range(3):
        pk_dma.append(("m0", f"s_add_u32 m0, {sT3}, {PKB + 4096 * i3}"))
        if i3 == 2:
            pk_dma.append(lambda: e(f"s_cmp_lt_u32 {sW}, 2\ns_cbranch_scc0 L_nopk3\nbuffer_load_dwordx4 v{PKV + 2}, {SWD}, {sT2} offen{NT} lds\nL_nopk3:") or g.vm.append("OPT"))
        else:
            pk_dma.append(("vm", f"buffer_load_dwordx4 v{PKV + i3}, {SWD}, {sT2} offen{NT} lds", "pkd"))
    pk_st = []
    pk_fill3 = [f"s_mul_i32 {sF1}, {sHS1}, 10", f"s_add_u32 {sF1}, {sF1}, {sW}", f"s_mul_i32 {sF2}, {sHS0}, 5"]
    for i3 in range(3):
        d = f"s{97 + i3}"
        pk_fill3 += [f"s_add_u32 {d}, {sF1}, {4 * i3}", f"s_mul_i32 {sF0}, {d}, 13108", f"s_lshr_b32 {sF0}, {sF0}, 16",
                     f"s_mul_i32 {sF0}, {sF0}, 265", f"s_add_u32 {d}, {d}, {sF0}", f"s_add_u32 {d}, {d}, {sF2}",
                     f"s_lshl_b32 {d}, {d}, 10", f"s_add_u32 {d}, {d}, {WDP}"]
        pk_st.append(("vm", f"buffer_store_dwordx4 {ar(PDR[i3], 4)}, v1, {SWS}, {d} offen sc1", "pks"))
    pk_fill3 += [f"s_cmp_lt_u32 {sW}, 2\ns_cselect_b32 s99, s99, {OOB}"]
    lnflag = [f"s_lshl_b32 {sT1}, s2, 2\ns_add_u32 {sT1}, {sT1}, {LNF}\ns_cmp_eq_u32 {sW}, 0\ns_cselect_b32 {sT1}, {sT1}, {OOB}",
              lambda: flag_store(sT1)]
    def wff():
        g.wvm("pks")
        flag_store(sT1)
    wfflag = [f"s_lshl_b32 {sT1}, {sHS1}, 6\ns_add_u32 {sT1}, {sT1}, {sHS0}\ns_lshl_b32 {sT1}, {sT1}, 2\ns_add_u32 {sT1}, {sT1}, {sW}",
              f"s_lshl_b32 {sT1}, {sT1}, 2\ns_add_u32 {sT1}, {sT1}, {WF}", wff]

    add_group(dma_units(2), opt.get("d2", 4))
    add_group(pk_dma, opt.get("dpk", 20))
    for st_ in range(1, 8):
        if st_ == 2:
            add_group(pk_st, Bgap(2) + 6)
        add_group(dma_units(st_ + 2), Bgap(st_) + {1: opt.get("d3", 10), 2: opt.get("d4", 20), 3: opt.get("d5", 20), 4: opt.get("d6", 0)}.get(st_, 0))
        if st_ in (4, 5, 6):
            tu = tab_units()
            add_group(tu[5 * (st_ - 4):5 * (st_ - 3)], 0)
    G0 = 8 * KCHK + 4
    for phi in range(P1):
        add_group(wd_load(phi), G0)
    vsched = []
    occ = set()
    def place(q, pace):
        last = -pace
        for (ear, prel, vmi, post, pc) in q:
            gq = max(ear, last + (pc or pace))
            while gq in occ:
                gq += 1
            assert gq < NG - 1, gq
            occ.add(gq)
            gaps[gq - 1] += prel
            head[gq].append(vmi)
            gaps[gq] = post + gaps[gq]
            last = gq
            vsched.append((gq, vmi[2] if isinstance(vmi, tuple) else "flag"))
    place(vq_big, PACE)
    def gap_of(tag):
        return max(gq for gq, t in vsched if t == tag)
    for st_ in range(1, 8):
        ge = gap_of(("dma", st_ + 2)) + 2
        if st_ == 2:
            add_group([f"s_lshl_b32 {sT1}, {sFT}, 1\ns_add_u32 {sT1}, {sT1}, {sC}\ns_lshl_b32 {sT1}, {sT1}, 3\ns_add_u32 {sT1}, {sT1}, {sM}",
                       f"s_lshl_b32 {sT1}, {sT1}, 1\ns_add_u32 {sT1}, {sT1}, {sRHO}\ns_lshl_b32 {sT1}, {sT1}, 8\ns_add_u32 {sT1}, {sT1}, {CSP}",
                       ("vm", f"buffer_store_dwordx2 {vr(4, 2)}, v6, {SWS}, {sT1} offen sc1", "pks")], gap_of("pks") + 1, True)
        if st_ == 3:
            add_group(wfflag, gap_of(("dma", 4)) + 1, True)
        if st_ == 5:
            add_group([("vm", f"buffer_load_dwordx4 {vr(vFL, 4)}, v{vFA}, {SWS}, 0 offen sc1", "poll"),
                       ("vm", f"buffer_load_dwordx4 {vr(PKV, 4)}, v{vFA + 1}, {SWS}, 0 offen sc1", "poll")], 8 * KCHK - 22, True)
        if TOUCH and st_ + TOUCH <= 9:
            if st_ == 1:
                for a in range(0, TOUCH - 3):
                    add_group(touch_units(a), ge, True)
            add_group(touch_units(TOUCH - 3), ge, True)
        if st_ == 6 and opt.get('wtouch'):
            for t3 in range(3):
                add_group([f"s_and_b32 {sT4}, {sLT}, 3\ns_mul_i32 {sT4}, {sT4}, {140 * 128}\ns_add_u32 {sT4}, {sT4}, {sWDS}" if t3 == 0 else f"s_add_u32 {sT4}, {sT4}, {48 * 128}",
                           ("vm", f"buffer_load_dword v{vFL + 4}, v{PKV + 1}, {SWS}, {sT4} offen sc1", "wtouch")], 8 * KCHK + 4 + 4 * t3, True)
    add_group([f"s_lshl_b32 {sT1}, {sFT}, 1\ns_add_u32 {sT1}, {sT1}, {sC}\ns_lshl_b32 {sT1}, {sT1}, 5\ns_add_u32 {sT1}, {sT1}, {sRHO}",
               f"s_lshl_b32 {sT1}, {sT1}, 7\ns_add_u32 {sT1}, {sT1}, {CSP}",
               ("vm", f"buffer_load_dwordx4 {vr(112, 4)}, v{vCS}, {SWS}, {sT1} offen sc1", "csp"),
               ("vm", f"buffer_load_dwordx4 {vr(20, 4)}, v{vCS}, {SWS}, {sT1} offen offset:2048 sc1", "csp")], max(G0, gap_of(("dma", 9)) - 1), True)
    add_group([f"s_lshl_b32 {sT1}, {sM}, 2\ns_add_u32 {sT1}, {sT1}, {sW}\ns_lshl_b32 {sT1}, {sT1}, 10\ns_add_u32 {sT1}, {sT1}, {STATS}",
               ] + [("vm", f"buffer_load_dwordx4 {vr(STQ[lt], 4)}, v15, {SWS}, {sT1} offen offset:{256 * lt} sc1", "stats") for lt in range(4)],
              max(G0, gap_of(("dma", 9)) - 5), True)
    add_group([x.replace(sF0, sT2).replace(sF1, sT3) if isinstance(x, str) else (x[0], x[1].replace(sF0 + ' ', sT2 + ' ').replace(sF1 + ' ', sT3 + ' '), x[2]) for x in u_loads(sCP, 116)], gap_of(("wd", P1 - 1)) + 2 if opt.get("ulast", 1) else G0, True)
    place(sq, 1)
    vsched.sort()
    if opt.get("v"):
        print(vsched)
    assert all(gap_of(("dma", st_)) < Bgap(st_) - 12 for st_ in range(2, 10))
    assert gap_of("pkd") < Bgap(2) and gap_of("pks") < gap_of(("dma", 4)) - 24 and gap_of("poll") < 8 * KCHK - 6

    for i3 in range(3):
        for h in range(2):
            gaps[Bgap(2) + 1 + i3].append(("lds", f"ds_read_b64_tr_b16 {ar(PDR[i3] + 2 * h, 2)}, v{PKV + 3} offset:{128 * i3 + 16 * 320 * h}", "pk"))
    c4 = check4(vFL)
    gaps[8 * KCHK] += [("wvm", "poll")] + c4[0:2]
    gaps[8 * KCHK + 1] += c4[2:5]
    def chk():
        sl = g.newlab("Lslow")
        bk = g.newlab("Lback")
        for x in check4(PKV)[:6]:
            e(x)
        e(f"v_or3_b32 v{vFL}, v{vFL}, v{vFL + 3}, v{PKV}")
        e(c4[6])
        e(f"s_cbranch_vccnz {sl}")
        g.lab(bk)
        g.slow.append((sl, bk, [(vFA, True), (vFA + 1, True)]))
    gaps[8 * KCHK + 2].insert(0, chk)

    CA = [4, 5, 6, 7, 42, 43, 44, 45]
    csum = []
    for j5 in range(5):
        csum.append(("wvm", ("csl", j5)))
        for d in range(4):
            r = CSR[j5] + d
            if j5 == 0:
                csum += [f"v_lshlrev_b32 v{CA[2 * d]}, 16, v{r}", f"v_and_b32 v{CA[2 * d + 1]}, {sMASK}, v{r}"]
            else:
                csum += [f"v_lshlrev_b32 v8, 16, v{r}", f"v_and_b32 v9, {sMASK}, v{r}",
                         f"v_add_f32 v{CA[2 * d]}, v{CA[2 * d]}, v8", f"v_add_f32 v{CA[2 * d + 1]}, v{CA[2 * d + 1]}, v9"]
    csum += ["s_nop 1"]
    csum += [f"v_permlane32_swap_b32 v{CA[c]}, v{CA[c + 4]}" for c in range(4)]
    csum += [f"v_add_f32 v{CA[c]}, v{CA[c]}, v{CA[c + 4]}" for c in range(4)]
    csum += ["s_nop 1"]
    csum += [f"v_permlane16_swap_b32 v{CA[c]}, v{CA[c + 2]}" for c in range(2)]
    csum += ["s_nop 0"]
    csum += [f"v_add_f32 v{CA[c]}, v{CA[c]}, v{CA[c + 2]}" for c in range(2)]
    csum += ["v_and_b32 v6, 7, v0", "v_lshlrev_b32 v6, 5, v6"]
    csum += [f"v_add_f32 v{CA[c]}, v{CA[c]}, v{CA[c]} row_ror:8" for c in range(2)]
    csum += ["v_lshrrev_b32 v7, 4, v0", "v_lshl_add_u32 v6, v7, 3, v6", f"v_mov_b32 v7, {OOB}",
             "v_and_b32 v8, 8, v0", "v_cmp_ne_u32 vcc, 0, v8\ns_nop 1\nv_cndmask_b32 v6, v6, v7, vcc"]
    fillq = pk_fill + (touch_setup() if TOUCH else []) + pk_fill2[:7] + pk_fill3
    n_a = len(fillq)
    fillq += csum
    n_csum = len(fillq)
    n_early = len(pk_fill)
    fillq += pk_fill2[7:]
    n_early2 = len(fillq)
    fillq += [f"v_min_u32 v2, 53, v0", f"s_lshr_b32 {sF0}, {sDT}, 1", f"s_lshl_b32 {sF0}, {sF0}, 10",
              f"s_add_u32 {sF0}, {sF0}, {WF}", f"v_lshl_add_u32 v2, v2, 4, {sF0}",
              "v_and_b32 v3, 7, v0", "v_mul_u32_u24 v3, 27, v3", f"v_add_u32 v3, {sFT}, v3", "v_and_b32 v12, 3, v3",
              "v_lshrrev_b32 v3, 2, v3", "v_lshl_add_u32 v3, v12, 6, v3", "v_lshlrev_b32 v3, 4, v3", f"v_add_u32 v3, {WF}, v3",
              f"v_cmp_lt_u32 vcc, 55, v0\ns_nop 1\nv_cndmask_b32 v{vFA + 1}, v2, v3, vcc"]
    it_ = aL.index(("wvm", "tab"))
    fillq += [f"v_add_u32 v{vFA}, {LNF}, v1"] + aL[:it_]
    n_mid = len(fillq)
    late_fill = [("at", gap_of("tab") + 14)] + aL[it_:]
    fillq += ["v_lshrrev_b32 v3, 4, v0", "v_lshlrev_b32 v13, 4, v3", f"v_add_u32 v13, {CSB}, v13", "v_lshrrev_b32 v3, 5, v0",
              "v_and_b32 v2, 7, v0", "v_lshlrev_b32 v12, 4, v2", "v_lshl_add_u32 v12, v3, 3, v12", "v_bfe_u32 v3, v0, 4, 1",
              "v_lshl_add_u32 v12, v3, 2, v12", f"s_lshl_b32 {sF0}, {sW}, 7", f"s_add_u32 {sF0}, {sF0}, {CSB}",
              f"v_add_u32 v12, {sF0}, v12", "v_lshrrev_b32 v3, 3, v0", "v_lshlrev_b32 v3, 8, v3", f"v_lshl_add_u32 v{vCS}, v2, 4, v3",
              "v_and_b32 v15, 15, v0", "v_lshlrev_b32 v15, 4, v15"]
    tail_fill = [f"s_lshl_b32 {sHS0}, {sM}, 2", f"s_add_u32 {sHS0}, {sHS0}, {sW}", f"s_lshl_b32 {sPEND}, {sHS0}, 5",
                 f"s_mul_i32 {sHS0}, {sHS0}, {4 * 54}", f"s_lshl_b32 {sT2}, {sFT}, 1", f"s_add_u32 {sHS0}, {sHS0}, {sT2}",
                 f"s_lshl_b32 {sHS0}, {sHS0}, 10", f"s_add_u32 {sHS0}, {sHS0}, {HB}",
                 f"s_add_u32 {sPEND}, {sPEND}, {sFT}", f"s_lshl_b32 {sPEND}, {sPEND}, 7", f"s_add_u32 {sPEND}, {sPEND}, {HF}"]
    cs_fill = [("wvm", "csp")] + [f"v_add_f32 v{112 + c}, v{112 + c}, v{20 + c}" for c in range(4)] + ["s_nop 0",
               "v_permlane32_swap_b32 v112, v114", "v_permlane32_swap_b32 v113, v115", "s_nop 0", "v_add_f32 v112, v112, v114", "v_add_f32 v113, v113, v115",
               "s_nop 1", "v_permlane16_swap_b32 v112, v113", "s_nop 0", "v_add_f32 v112, v112, v113", "s_nop 1",
               "v_add_f32 v112, v112, v112 row_ror:8", ("lds", "ds_write_b32 v12, v112", "csw")]
    nf_total = len(fillq)

    def cost(it):
        if isinstance(it, str):
            return it.count("\n") + 1
        return 1
    CAP = opt.get("cap", 4)
    for k in range(40):
        stage, ks = divmod(k, 4)
        A = vAF + 16 * (k & 1)
        gk = [head[8 * k + i] + gaps[8 * k + i] for i in range(8)]
        body = [[] for _ in range(8)]
        if k + 1 < 40:
            fr = frag_reads(k + 1)
            for i, it in enumerate(fr):
                body[i // 2 if len(fr) == 12 else (3 * i) // 4].append(it)
        if k == 39:
            assert not late_fill, len(late_fill)
            for j in range(8):
                dst = (64 + 4 * j) if j < 4 else (96 + 4 * (j - 4))
                body[1 + j // 2].append(("lds", f"ds_read_b128 {vr(dst, 4)}, v13 offset:{64 * j}", "cs0"))
        else:
            load = [sum(map(cost, gk[i])) + len(body[i]) + (1 if i in (3, 7) else 0) for i in range(8)]
            q = fillq if fillq else (tail_fill if (k >= 18 and tail_fill) else late_fill)
            if k == KCHK or (q is late_fill and k < 10):
                q = []
            if k in (33, 34) and cs_fill:
                q = cs_fill
            cap = opt.get('cape', 5) if k < opt.get('kc5', 9) else (5 if k in (33, 34) else opt.get('capl', 3))
            for i in range(8):
                while q and load[i] + cost(q[0]) <= cap + (2 if cost(q[0]) > 1 else 0):
                    if isinstance(q[0], tuple) and q[0][0] == "at":
                        if 8 * k + i < q[0][1]:
                            break
                        q.pop(0)
                        continue
                    it = q.pop(0)
                    body[i].append(it)
                    load[i] += cost(it)
            if k == 2:
                assert nf_total - len(fillq) >= n_early, (nf_total - len(fillq), n_early)
            if k == 5:
                assert nf_total - len(fillq) >= n_a
            if k == 6:
                assert nf_total - len(fillq) >= n_a + 30
            if 8 * k + 8 >= gap_of("pks") - 1:
                assert nf_total - len(fillq) >= n_csum, (nf_total - len(fillq), n_csum)
            if k == 13:
                assert nf_total - len(fillq) >= n_early2
            if k == KCHK - 4:
                assert nf_total - len(fillq) >= n_mid
            if 8 * k + 8 > gap_of("stats") - 4:
                assert not fillq, (k, len(fillq))
        if ks == 3 and stage < 9:
            stamp(f"c_w{stage + 1}", cyc=True)
            g.wlg0()
            if stage == 1:
                g.wvm("OPT")
            g.wvm(("dma", stage + 1))
            e("s_barrier")
            stamp(f"c_b{stage + 1}", cyc=True)
        K, mat = divmod(k, 2)
        for i in range(8):
            items = []
            for it in head[8 * k + i]:
                if isinstance(it, tuple) and it[2] == "pks":
                    items.append(("wlg", "pk"))
                items.append(it)
            items += body[i] + gaps[8 * k + i]
            tot = sum(map(cost, items))
            acc_, sub = 0, [[], []]
            for it in items:
                sub[0 if 2 * acc_ + cost(it) <= tot + (1 if not sub[0] else 0) else 1].append(it)
                acc_ += cost(it)
            flat = sub[0] + sub[1]
            assert flat == items
            for h2 in range(2):
                m = 2 * i + h2
                t, lt = divmod(m, 4)
                if k == 0:
                    g.wlg(("A", k, t))
                    if m == 1:
                        g.wlg(("B", K))
                elif m == 0:
                    g.wlg(("A", k, 1))
                elif m == 8:
                    g.wlg(("A", k, 3))
                D = vACC + 4 * ((mat * 4 + t) * 4 + lt)
                Cs = "0" if K == 0 else vr(D, 4)
                e(f"v_mfma_f32_16x16x32_bf16 {vr(D, 4)}, {vr(A + 4 * t, 4)}, {Breg(K, lt)}, {Cs}")
                for it in sub[h2]:
                    g.do(it)
    assert not tail_fill and not cs_fill and not late_fill, len(late_fill)
    stamp("c_g1e", cyc=True)
    stamp("g1_loop_end", flush=True)

    tmps = [28, 30, 32, 34]
    g.wvm("stats")
    g.wlg("cs0")
    align()
    for lt in range(4):
        st = STQ[lt]
        if lt:
            e(f"s_add_u32 {sHS0}, {sHS0}, {54 * 1024}")
        for a in range(2):
            O = 20 + 4 * a
            ps = range(4)
            Gt = [vACC + 4 * ((2 * a + (p >> 1)) * 4 + lt) + 2 * (p & 1) for p in ps]
            Ut = [x + 64 for x in Gt]
            csg = [64 + 4 * (2 * a + (p >> 1)) + 2 * (p & 1) for p in ps]
            csu = [x + 32 for x in csg]
            for p in ps:
                e(f"v_pk_fma_f32 {vr(Gt[p], 2)}, {vr(csg[p], 2)}, {vr(st, 2)}, {vr(Gt[p], 2)} op_sel_hi:[1,0,1]")
            for p in ps:
                e(f"v_pk_mul_f32 {vr(tmps[p], 2)}, {vr(Gt[p], 2)}, {vr(Gt[p], 2)}")
            for p in ps:
                e(f"v_pk_fma_f32 {vr(tmps[p], 2)}, {vr(tmps[p], 2)}, {vr(st, 2)}, {vr(st + 2, 2)} op_sel:[0,1,0] op_sel_hi:[1,1,0]")
            for p in ps:
                e(f"v_pk_mul_f32 {vr(tmps[p], 2)}, {vr(tmps[p], 2)}, {vr(Gt[p], 2)}")
            for p in ps:
                e(f"v_exp_f32 v{tmps[p]}, v{tmps[p]}")
                e(f"v_exp_f32 v{tmps[p] + 1}, v{tmps[p] + 1}")
            for p in ps:
                e(f"v_pk_fma_f32 {vr(Ut[p], 2)}, {vr(csu[p], 2)}, {vr(st, 2)}, {vr(Ut[p], 2)} op_sel_hi:[1,0,1]")
            for p in ps:
                e(f"v_pk_fma_f32 {vr(tmps[p], 2)}, {vr(tmps[p], 2)}, {vr(st + 2, 2)}, {vr(st + 2, 2)} op_sel:[0,1,1] op_sel_hi:[1,1,1]")
            for p in ps:
                e(f"v_rcp_f32 v{tmps[p]}, v{tmps[p]}")
                e(f"v_rcp_f32 v{tmps[p] + 1}, v{tmps[p] + 1}")
            for p in ps:
                e(f"v_pk_mul_f32 {vr(Gt[p], 2)}, {vr(Gt[p], 2)}, {vr(Ut[p], 2)}")
            for p in ps:
                e(f"v_pk_mul_f32 {vr(Gt[p], 2)}, {vr(Gt[p], 2)}, {vr(tmps[p], 2)}")
            for p in ps:
                e(f"v_cvt_pk_bf16_f32 v{O + p}, v{Gt[p]}, v{Gt[p] + 1}")
            g.vmem(f"buffer_store_dwordx4 {vr(O, 4)}, v1, {SWS}, {sHS0} offen offset:{1024 * a} sc1", "hst")
    stamp("c_epe", cyc=True)
    stamp("g1_epi_end", flush=True)
    e(f"s_mov_b32 {sMASK}, {sPEND}")
    e("s_nop 0")

    def rb2(adj=0):
        for i in range(22):
            e(f"v_accvgpr_read_b32 v{GA + i}, a{AST + 8 + i}")
        if adj:
            for i in range(22):
                e(f"v_subrev_u32 v{GA + i}, {adj}, v{GA + i}")
        for i in range(2, 8):
            e(f"v_accvgpr_read_b32 v{AK + i}, a{AS2 + 1 + i}")
        e("v_mov_b32 v4, 0\nv_mov_b32 v5, 0\nv_mov_b32 v6, 0\nv_mov_b32 v7, 0")
        e(f"ds_write_b128 v{vZ}, {vr(4, 4)}")
    rb2()

    Greg = [[224 + 4 * i for i in range(8)], [192 + 4 * i for i in range(8)]]
    FB = [128, 160]
    CACC = 64
    HRING = [16 + 4 * i for i in range(12)] + [104 + 4 * i for i in range(3)] + [128 + 4 * i for i in range(26)]
    NE = opt.get("ne", 15)
    P2 = opt.get("p2", 40)
    NB = len(HRING)
    YS, DK = 100, 101

    def hload(i):
        k, st = divmod(i, 14)
        r = HRING[i % NB]
        if st == 13:
            return [f"s_cmp_lt_u32 {sW}, 2\ns_cselect_b32 {sT4}, s{sG2 + 4 * k + 3}, {OOB}",
                    ("vm", f"buffer_load_dwordx4 {vr(r, 4)}, v1, {SWS}, {sT4} offen offset:1024 sc1", ("h", i))]
        return [("vm", f"buffer_load_dwordx4 {vr(r, 4)}, v1, {SWS}, s{sG2 + 4 * k + st // 4} offen offset:{(st % 4) * 1024} sc1", ("h", i))]

    def conv(last):
        tag = "L" if last else "E"
        g.lab("L_conv_last" if last else "L_conv_early")
        g.vm = ["u", "u"]
        g.lg = []
        def wd_e(phi):
            its = wd_load(phi)
            if len(its) > 1:
                its.insert(1, f"s_or_b32 {sT5}, {sT5}, {sK0}")
            return its
        if last:
            wq = [[f"s_add_u32 m0, {sXT}, {1024 * kk}", "s_nop 0",
                   ("vm", f"buffer_load_dwordx4 v{12 + kk}, {SX}, {sXO} offen lds", ("xt", 0))] for kk in range(3)]
            wq += [wd_load(phi) for phi in range(P1, 64)]
            for i7 in range(7):
                e(f"v_accvgpr_read_b32 v{9 + i7}, a{AS2 + 14 + i7}")
        else:
            wq = [wd_e(phi) for phi in range(0, P1)]
            g.vmem(f"buffer_load_dwordx4 {vr(vFL, 4)}, v{vFA + 1}, {SWS}, 0 offen sc1", "wfp")
        def wdl(n=1):
            for _ in range(n):
                if wq:
                    for it in wq.pop(0):
                        g.do(it)
        EG = 128
        for ch in range(2):
            for k in range(11):
                g.lds(f"ds_read_b32 v{EG + 12 * ch + k}, v{GA + 11 * ch + k}", ("eg", ch))
        g.lds(f"ds_read_b64 {vr(YS, 2)}, v{vYS} offset:{YSO}", "ysc")
        if last:
            wdl(3)
        g.wvm("u")
        g.lds(f"ds_write_b128 v{vUW}, {vr(vU, 4)}", "uw")
        g.lds(f"ds_write_b128 v{vUW}, {vr(vU + 4, 4)} offset:512", "uw")
        if last:
            e(f"s_or_b32 {sT1}, s2, {sW}")
            e(f"s_cmp_eq_u32 {sT1}, 0")
            e(f"s_cselect_b32 {sT1}, {EPOCH}, {OOB}")
            flag_store(sT1)
        EO = 64
        for ch in range(2):
            g.wlg(("eg", ch))
            align()
            for s in range(4):
                o = EO + 16 * ch + 4 * s
                for j in range(4):
                    e(f"v_cvt_pk_f16_f32 v{o + j}, v{EG + 12 * ch + s + 2 * j}, v{EG + 12 * ch + s + 2 * j + 1}")
                g.lds(f"ds_write_b128 v{vRW}, {vr(o, 4)} offset:{s * RCS + 1024 * ch}", "rw")
                if last and s % 2 == 1:
                    wdl()
            if last and ch == opt.get("hch", 1):
                e(f"s_waitcnt vmcnt({len(g.vm)})")
                flag_store(sMASK)
        if not last:
            e("s_waitcnt vmcnt(0)")
            flag_store(sMASK)
        if last:
            wdl(2)
        else:
            for x in check4(vFL):
                e(x)
            e("s_nop 0")
            e("s_cmp_eq_u64 vcc, 0")
            e(f"s_cselect_b32 {sK0}, 0, {OOB}")
        extra = [f"v_accvgpr_read_b32 v{4 + i}, a{AS2 + 9 + i}" for i in range(5)]
        extra += [f"s_lshl_b32 {sT1}, {sCP}, 1", f"s_add_u32 {sT1}, {sT1}, {sC}", f"s_lshl_b32 {sT1}, {sT1}, 12",
                  f"s_lshl_b32 {sT3}, {sRHO}, 11", f"s_add_u32 {sT1}, {sT1}, {sT3}", f"s_add_u32 {sHS0}, {sT1}, {ST}",
                  f"s_lshl_b32 {sT2}, {sCP}, 5", f"s_add_u32 {sT2}, {sT2}, {sW}",
                  f"s_lshl_b32 {sT2}, {sT2}, 2", f"s_add_u32 {sPEND}, {sT2}, {SF}"]
        if last:
            extra += [f"v_accvgpr_read_b32 v{vFA + i}, a{AS2 + 21 + i}" for i in range(2)]
            extra += ["v_min_u32 v3, 53, v0", "v_lshlrev_b32 v3, 7, v3",
                      f"s_lshl_b32 {sT0}, {sDT}, 2", f"s_add_u32 {sT0}, {sT0}, {sW}", f"s_mul_i32 {sT0}, {sT0}, {54 * 128}",
                      f"s_mul_i32 {sHS1}, {sLT}, {4 * 54 * 1024}", f"s_add_u32 {sHS1}, {sHS1}, {sT0}", f"s_add_u32 {sHS1}, {sHS1}, {HB}"]
        g.wlg0()
        e("s_barrier")
        stamp("c_cs" + tag, cyc=True)
        stamp("conv_start" + tag)

        def cls_reads(dl):
            bf = dl & 1
            out = []
            for s in range(8):
                out.append(("lds", f"ds_read_b128 {vr(Greg[bf][s], 4)}, v{vGB} offset:{512 * s + 64 * (3 - dl)}", ("G", dl, s)))
                off = 64 * (59 - dl - 8 * s)
                out.append(("lds", f"ds_read_b64 {vr(FB[bf] + 4 * s, 2)}, v{vFB} offset:{off}", ("F", dl, s)))
                out.append(("lds", f"ds_read_b64 {vr(FB[bf] + 4 * s + 2, 2)}, v{vFB} offset:{off + 8}", ("F", dl, s)))
            return out
        for it in cls_reads(0):
            g.do(it)
        order = sorted([(s, gg) for s in range(8) for gg in range(8) if s + gg < 8], key=lambda x: (max(x), x[0] + x[1]))
        seen = set()
        hq = []
        US, UD = 2, 96
        for dl in range(4):
            bf = dl & 1
            nxt = cls_reads(dl + 1) if dl < 3 else []
            if dl == 3:
                nxt = [("lds", f"ds_read_b64 {vr(128 + 2 * tt, 2)}, v6 offset:{512 * tt}", "us") for tt in range(4)]
                nxt += [None] * 6 + [("wlg", "us")]
                for tt in range(4):
                    for i in range(4):
                        src = 128 + 2 * tt + (i >> 1)
                        nxt.append(f"v_fma_mix_f32 v{136 + 4 * tt + i}, v{src}, v{DK}, 0 op_sel:[{i & 1},0,0] op_sel_hi:[1,0,0]")
            if last and dl == 3:
                g.wvm("hfp")
                e(f"v_cmp_ne_u32 vcc, v{vTAG}, v{vFL}")
                e("s_nop 0")
                e("s_cmp_eq_u64 vcc, 0")
                e(f"s_cselect_b32 {sK1}, 1, 0")
                e(f"s_cselect_b32 {sT0}, 0, {OOB}")
                tch = [f"s_or_b32 {sT4}, {sHS1}, {sT0}", ("vm", f"buffer_load_dword v{vFL + 4}, v3, {SWS}, {sT4} offen sc1", "ht")]
                TP = opt.get("tp", -1)
                for i in range(NE):
                    k_, st_ = divmod(i, 14)
                    if i == TP:
                        hq.append(tch)
                    pre_ = [f"s_or_b32 {sT4}, s{sG2 + 4 * k_ + st_ // 4}, {sT0}"] if (st_ % 4 == 0 or st_ == 13 or i == TP) else []
                    if st_ == 13:
                        pre_.append(f"s_cmp_lt_u32 {sW}, 2\ns_cselect_b32 {sT4}, {sT4}, {OOB}")
                    hq.append(pre_ + [("vm", f"buffer_load_dwordx4 {vr(HRING[i], 4)}, v1, {SWS}, {sT4} offen offset:{(st_ % 4) * 1024} sc1", ("he", i))])
                if TP == NE:
                    hq.append(tch)
            if dl > 0:
                g.wlg(("F", dl, 7))
            for mi, (s, gg) in enumerate(order):
                t = s + gg
                if dl == 0:
                    g.wlg(("G", dl, gg))
                    g.wlg(("F", dl, s))
                Cs = "0" if t not in seen else vr(CACC + 4 * t, 4)
                seen.add(t)
                e(f"v_mfma_f32_16x16x32_f16 {vr(CACC + 4 * t, 4)}, {vr(FB[bf] + 4 * s, 4)}, {vr(Greg[bf][gg], 4)}, {Cs}")
                start = 8 if dl == 0 else 1
                if mi >= start and nxt:
                    it = nxt.pop(0)
                    if it is not None:
                        g.do(it)
                elif extra:
                    g.do(extra.pop(0))
                if mi % 2 == 1 and extra and mi >= start:
                    g.do(extra.pop(0))
                mc = 36 * dl + mi
                if mc % 4 == 2:
                    nphi = wq[0][-1][2][1] if wq else 0
                    if last and mc == opt.get("hfp", 86):
                        assert not extra
                        g.vmem(f"buffer_load_dword v{vFL}, v{vFA}, {SWS}, 0 offen sc1", "hfp")
                    elif hq:
                        for it in hq.pop(0):
                            g.do(it)
                    elif wq and not (last and extra and nphi >= 48):
                        wdl()
            assert not nxt, len(nxt)
        while wq and not last:
            wdl()
        assert not wq and not extra, (len(wq), len(extra))
        def hl(n=1):
            for _ in range(n):
                if hq:
                    for it in hq.pop(0):
                        g.do(it)
        stamp("c_ce" + tag, cyc=True)
        stamp("conv_end" + tag)
        lr1 = g.newlab("Lfin1")
        lfd = g.newlab("Lfind")
        e(f"s_cmp_lg_u32 {sRHO}, 0")
        e(f"s_cbranch_scc1 {lr1}")
        lg_save, pst_save, sf_save = list(g.lg), list(g.pst), list(g.sfree)
        for rho in range(2):
            if rho == 1:
                g.lab(lr1)
                g.lg, g.pst, g.sfree = list(lg_save), list(pst_save), list(sf_save)
            own = CACC + 16 * rho
            oth = CACC + 16 * (1 - rho)
            g.nop(6)
            for tt in range(4):
                g.lds(f"ds_write_b128 v4, {vr(oth + 4 * tt, 4)} offset:{PB + 1024 * tt}", "pw")
            align()
            for tt in range(4):
                for i in range(4):
                    e(f"v_fma_f32 v{136 + 4 * tt + i}, v{own + 4 * tt + i}, v{YS}, v{136 + 4 * tt + i}")
            if rho == 0:
                e(f"s_branch {lfd}")
        g.lab(lfd)
        g.wlg0()
        e("s_barrier")
        for tt in range(4):
            g.lds(f"ds_read_b128 {vr(152 + 4 * tt, 4)}, v5 offset:{PB + 1024 * tt}", ("pr", tt))
        hl(2)
        for tt in range(4):
            g.wlg(("pr", tt))
            for i in range(4):
                e(f"v_fmac_f32 v{136 + 4 * tt + i}, v{152 + 4 * tt + i}, v{YS}")
            for h in range(2):
                e(f"v_cvt_pk_bf16_f32 v{128 + 2 * tt + h}, v{136 + 4 * tt + 2 * h}, v{136 + 4 * tt + 2 * h + 1}")
            g.lds(f"ds_write_b64 v7, {vr(128 + 2 * tt, 2)} offset:{512 * tt}", "sw")
            hl(1)
        hl(1)
        g.wlg0()
        for j in range(2):
            g.lds(f"ds_read_b128 {vr(88 + 4 * j, 4)}, v8 offset:{1024 * j}", ("sr", j))
        hl(9)
        assert not hq
        if not last:
            e(f"s_add_u32 {sCP}, {sCP}, 40")
            for i in range(22):
                e(f"v_add_u32 v{GA + i}, {2 * TC}, v{GA + i}")
            e(f"v_add_u32 v{vYS}, {2 * TC}, v{vYS}")
        for j in range(2):
            g.wlg(("sr", j))
            g.vmem(f"buffer_store_dwordx4 {vr(88 + 4 * j, 4)}, v1, {SWS}, {sHS0} offen offset:{1024 * j} sc1", "sst")
        if not last:
            for it in u_loads(sCP, 2):
                g.do(it)
            e(f"s_mov_b32 {sMASK}, {sPEND}")
            e(f"s_sub_u32 {sRND}, {sRND}, 1")
            e(f"s_cmp_lg_u32 {sRND}, 1")
            e("s_cbranch_scc1 L_conv_early")

    conv(True)

    e(f"s_cmp_lg_u32 {sK1}, 0")
    e("s_cbranch_scc1 L_hready")
    poll_block(vFA, False)
    if opt.get("tp", -1) >= 0:
        e(f"buffer_load_dword v{vFL + 4}, v3, {SWS}, {sHS1} offen sc1")
    for i in range(NE):
        for it in hload(i):
            e(it[1] if isinstance(it, tuple) else it)
    g.lab("L_hready")
    stamp("c_g2s", cyc=True)
    stamp("g2_start")
    g.vm = [("h", i) for i in range(NE)]
    AC = [64, 84]
    lateq = [wd_load(64 + i) for i in range(6)] + [hload(i) for i in range(NE, NB)]
    fq = ["v_lshrrev_b32 v8, 1, v0", "v_lshlrev_b32 v8, 12, v8", "v_and_b32 v2, 1, v0", "v_lshl_add_u32 v8, v2, 4, v8",
          f"s_mul_i32 {sT1}, {sW}, 15360", f"v_add_u32 v2, {sT1}, v1",
          f"s_mul_i32 {sHS1}, {sW}, 3072", f"s_add_u32 {sHS1}, {sHS1}, {STB}", f"v_lshl_add_u32 v3, v0, 3, {sHS1}",
          "v_and_b32 v4, 15, v0", "v_mul_u32_u24 v4, 160, v4", "v_lshrrev_b32 v5, 4, v0", "v_lshl_add_u32 v4, v5, 3, v4",
          f"v_add_u32 v4, {sXT}, v4", f"v_add_u32 v5, {sXT}, v1",
          ]
    SFP = opt.get("sfp", 38)
    BAR = opt.get("bar", 46)
    P0, P1r, P2r, XR, XU, SR, SU = 160, 180, 200, 128, 138, 220, 180
    xq = [f"s_mov_b32 {sMASK}, 0xffff0000", f"s_mov_b32 {sT2}, {hex(f2u(-LOG2E))}"]
    xq += [("lds", f"ds_read_b64 {vr(XR + 2 * j, 2)}, v4 offset:{32 * j}", "x") for j in range(5)] + [None, None, ("wlg", "x")]
    for p in range(10):
        xq += [f"v_lshlrev_b32 v{XU + 2 * p}, 16, v{XR + p}", f"v_and_b32 v{XU + 2 * p + 1}, {sMASK}, v{XR + p}"]
    eq = [("lds", f"ds_read_b128 {vr(P0 + 4 * q, 4)}, v2 offset:{EXB + 1024 * q}", ("exr", q // 5)) for q in range(15)]
    eq += [("wlg", ("exr", 1))] + [f"v_pk_add_f32 {vr(P0 + 2 * p, 2)}, {vr(P0 + 2 * p, 2)}, {vr(P1r + 2 * p, 2)}" for p in range(10)]
    eq += [("wlg", ("exr", 2))] + [f"v_pk_add_f32 {vr(P0 + 2 * p, 2)}, {vr(P0 + 2 * p, 2)}, {vr(P2r + 2 * p, 2)}" for p in range(10)]

    for i in range(56):
        k, st = divmod(i, 14)
        A0 = AC[k & 1]
        g.wvm(("h", i))
        if st >= 12 and k == 0:
            g.wvm(("wd", 69 if st == 13 else 64))
        r = HRING[i % NB]
        extra = [[] for _ in range(5)]
        if st == 1 and k >= 1:
            pa = AC[(k - 1) & 1]
            for j in range(5):
                extra[j].append(("lds", f"ds_write_b128 v{9 + k - 1}, {vr(pa + 4 * j, 4)} offset:{1024 * j}", "exw"))
        for j in ((0, 3) if i < opt.get("fast", 0) else ((i % 4,) if i % 4 else (0, 4))):
            if lateq:
                extra[j] += lateq.pop(0)
        if i == opt.get('sfl', 7):
            def sflag():
                n = sum(1 for t in g.vm if t[0] == "wd" or (t[0] == "h" and t[1] >= NE))
                e(f"s_waitcnt vmcnt({n})")
                flag_store(sPEND)
            extra[1].append(sflag)
        if 18 <= i < 26:
            for j in (1, 3, 4):
                if fq:
                    extra[j].append(fq.pop(0))
        if i == SFP:
            extra[0].append(("vm", f"buffer_load_dwordx4 {vr(vFL, 4)}, v{vFA + 1}, {SWS}, 0 offen sc1", ("sfp",)))
        if i == SFP + 6:
            c4 = check4(vFL)
            extra[0] += [("wvm", ("sfp",))] + c4[0:2]
            extra[1] += c4[2:4]
            extra[2] += c4[4:6]
            def sfchk():
                sl = g.newlab("Lslow")
                bk = g.newlab("Lback")
                e(c4[6])
                e(f"s_cbranch_vccnz {sl}")
                g.lab(bk)
                g.slow.append((sl, bk, [(vFA + 1, True)]))
            extra[3].append(sfchk)
        if i == SFP + 7:
            extra[0] += [f"s_mov_b32 m0, {sHS1}"]
            extra[1] += [("vm", f"buffer_load_dwordx4 v8, {SWS}, {sSTO} offen sc1 lds", ("stl",)), f"s_add_u32 m0, {sHS1}, 1024"]
            extra[2] += [f"s_add_u32 {sT3}, {sSTO}, {32 * 4096}"]
            extra[3] += [("vm", f"buffer_load_dwordx4 v8, {SWS}, {sT3} offen sc1 lds", ("stl",)), f"s_add_u32 m0, {sHS1}, 2048"]
            extra[4] += [f"s_add_u32 {sT3}, {sSTO}, {64 * 4096}", f"v_mov_b32 v7, {OOB}", "v_cmp_lt_u32 vcc, 31, v0"]
        if i == SFP + 8:
            extra[1] += ["v_cndmask_b32 v8, v8, v7, vcc"]
            extra[2] += [("vm", f"buffer_load_dwordx4 v8, {SWS}, {sT3} offen sc1 lds", ("stl",))]
        if 30 <= i and xq and st != 1:
            for j in (1, 2, 3):
                for _ in range(1):
                    if xq:
                        it = xq.pop(0)
                        if it is not None:
                            extra[j].append(it)
        if i == BAR:
            assert not xq
            g.wlg0()
            e("s_barrier")
        if i >= BAR:
            for j in range(5):
                for _ in range(0 if i in (SFP + 6, SFP + 7) else 1):
                    if eq:
                        extra[j].append(eq.pop(0))
        for j in range(5):
            phi = st * 5 + j
            src = ar(4 * phi, 4) if phi < 64 else vr(vWDV + 4 * (phi - 64), 4)
            Cs = "0" if st == 0 else vr(A0 + 4 * j, 4)
            e(f"v_mfma_f32_16x16x32_bf16 {vr(A0 + 4 * j, 4)}, {src}, {vr(r, 4)}, {Cs}")
            for it in extra[j]:
                g.do(it)
        if i + NB < 56:
            lateq.append(hload(i + NB))
    assert not lateq and not fq
    stamp("c_g2e", cyc=True)
    stamp("g2_loop_end")
    for it in eq:
        g.do(it)
    A0 = AC[1]
    E_ = 200
    e(f"s_mov_b32 {sT3}, {sT2}")
    g.wvm(("stl",))
    for j in range(5):
        g.lds(f"ds_read_b64_tr_b16 {vr(SR + 2 * j, 2)}, v3 offset:{512 * j}", "s")
    g.nop(2)
    align()
    for p in range(10):
        e(f"v_pk_add_f32 {vr(A0 + 2 * p, 2)}, {vr(A0 + 2 * p, 2)}, {vr(P0 + 2 * p, 2)}")
    for p in range(10):
        e(f"v_pk_mul_f32 {vr(E_ + 2 * p, 2)}, {vr(A0 + 2 * p, 2)}, s[56:57]")
    for p in range(20):
        e(f"v_exp_f32 v{E_ + p}, v{E_ + p}")
    g.wlg("s")
    for p in range(10):
        e(f"v_lshlrev_b32 v{SU + 2 * p}, 16, v{SR + p}")
        e(f"v_and_b32 v{SU + 2 * p + 1}, {sMASK}, v{SR + p}")
    align()
    for p in range(10):
        e(f"v_pk_mul_f32 {vr(A0 + 2 * p, 2)}, {vr(A0 + 2 * p, 2)}, {vr(SU + 2 * p, 2)}")
    for p in range(10):
        e(f"v_pk_add_f32 {vr(E_ + 2 * p, 2)}, {vr(E_ + 2 * p, 2)}, 1.0 op_sel_hi:[1,0]")
    for p in range(20):
        e(f"v_rcp_f32 v{E_ + p}, v{E_ + p}")
    e("s_nop 0\ns_nop 0")
    for p in range(10):
        e(f"v_pk_fma_f32 {vr(A0 + 2 * p, 2)}, {vr(A0 + 2 * p, 2)}, {vr(E_ + 2 * p, 2)}, {vr(XU + 2 * p, 2)}")
    for p in range(10):
        e(f"v_cvt_pk_bf16_f32 v{160 + p}, v{A0 + 2 * p}, v{A0 + 2 * p + 1}")
        if p % 2 == 1:
            g.lds(f"ds_write_b64 v4, {vr(160 + p - 1, 2)} offset:{16 * (p - 1)}", "ow")
    g.wlg0()
    for kk in range(3):
        g.lds(f"ds_read_b128 {vr(128 + 4 * kk, 4)}, v5 offset:{1024 * kk}", ("or", kk))
    osc = opt.get("outsc", "")
    for kk in range(3):
        g.wlg(("or", kk))
        g.vmem(f"buffer_store_dwordx4 {vr(128 + 4 * kk, 4)}, v{(12, 13, 15)[kk]}, {SOUT}, {sXO} offen{osc}", "out")
    if diag:
        g.wvm0()
        stamp("end", flush=True)
        if opt.get("dbg"):
            e("s_load_dwordx2 s[88:89], s[100:101], 96")
            e("v_readlane_b32 s92, v127, 60")
            e("s_mov_b32 s90, 64\ns_mov_b32 s91, 0x20000")
            e("v_writelane_b32 v127, s92, 1")
            e("s_not_b32 s92, s92")
            e("v_writelane_b32 v127, s92, 0")
            e("v_lshlrev_b32 v2, 2, v0")
            e("s_waitcnt lgkmcnt(0)")
            e("buffer_atomic_umax v127, v2, s[88:91], 0 offen")
            e("s_endpgm")
        e(f"s_mov_b32 s88, s16\ns_mov_b32 s89, s17\ns_mov_b32 s90, 0x1000000\ns_mov_b32 s91, 0x20000")
        e(f"s_lshl_b32 {sT1}, s2, 2\ns_add_u32 {sT1}, {sT1}, {sW}\ns_lshl_b32 {sT1}, {sT1}, 8\ns_add_u32 {sT1}, {sT1}, {TS_BASE}")
        e("v_lshlrev_b32 v2, 2, v0")
        e(f"buffer_store_dword v127, v2, s[88:91], {sT1} offen")
    g.lab("L_end")
    e("s_endpgm")
    e(".p2align 6")
    g.lab("L_spare")
    g.vm = vm0
    g.lg = []
    g.pst = []
    g.sfree = [92] if opt.get('dbg') else [92, 100]
    if diag:
        e("v_mov_b32 v127, 0")
        e("v_writelane_b32 v127, s92, 60")
    e("v_lshrrev_b32 v4, 3, v0")
    e("v_and_b32 v5, 7, v0")
    e("s_add_u32 s68, s88, L_spare - L_pc + 256")
    e("s_addc_u32 s69, s89, 0")
    e("s_mov_b32 s70, 0x2000\ns_mov_b32 s71, 0x20000")
    e("v_and_b32 v10, 15, v0")
    e(f"s_lshl_b32 {sT1}, {sW}, 11")
    e("v_lshlrev_b32 v10, 7, v10")
    g.vmem(f"buffer_load_dword v{vFL + 4}, v10, s[68:71], {sT1} offen", "cpf")
    rest_setup()
    rest_loads()
    for r3 in range(3):
        run_items(param_units(r3))
    run_items(tab_units())
    table_code(TB)
    aE, aL2 = addr_items(XYB_SP, TB)
    run_items(aL2 + aE)
    g.wvm("ln")
    stamp("ln_data")
    ln_code()
    ln_tail()
    stamp("ln_done", flush=True)
    e(f"s_lshl_b32 {sMASK}, s2, 2")
    e(f"s_add_u32 {sMASK}, {sMASK}, {LNF}")
    e(f"s_cmp_eq_u32 {sW}, 0")
    e(f"s_cselect_b32 {sMASK}, {sMASK}, {OOB}")
    e(f"v_add_u32 v{vFA}, {LNF}, v1")
    e("v_min_u32 v2, 53, v0")
    e(f"s_lshr_b32 {sF0}, {sDT}, 1")
    e(f"s_lshl_b32 {sF0}, {sF0}, 10")
    e(f"s_add_u32 {sF0}, {sF0}, {WF}")
    e(f"v_lshl_add_u32 v{vFA + 1}, v2, 4, {sF0}")
    e(f"s_mov_b32 {sK1}, {sRND}")
    rb1()
    g.wvm("par")
    tag_code()
    g.lab("L_kgen")
    g.vm = []
    kgen("s", [], 1)
    g.wall()
    e("s_barrier")
    flag_store(sMASK)
    e(f"s_mov_b32 {sMASK}, {OOB}")
    kgen_mfma()
    e(f"s_sub_u32 {sK1}, {sK1}, 1")
    e(f"s_cmp_eq_u32 {sK1}, 0")
    e("s_cbranch_scc1 L_kdone")
    e(f"s_add_u32 {sKR}, {sKR}, {2 * TC}")
    for i in range(8):
        e(f"v_add_u32 v{SC + i}, {2 * TC}, v{SC + i}")
    for i in range(6):
        e(f"v_accvgpr_mov_b32 a{APAR + i}, a{APAR + 8 + i}")
        e(f"v_accvgpr_mov_b32 a{APAR + 8 + i}, a{APAR + 16 + i}")
    e("s_waitcnt lgkmcnt(0)")
    e("s_barrier")
    e("s_branch L_kgen")
    g.lab("L_kdone")
    stamp("kdone", flush=True)
    e(f"s_cmp_lg_u32 {sW}, 0")
    e("s_cbranch_scc1 L_sp_polled")
    poll_block(vFA, True, sleep=16)
    g.lab("L_sp_polled")
    e("s_waitcnt lgkmcnt(0)")
    e("s_barrier")
    stamp("sp_lnf", flush=True)
    run_items(u_loads(sCP, 2))
    rb2(TB_G1 - TB)
    conv(False)
    e(f"s_cmp_eq_u32 {sK0}, 0")
    e("s_cbranch_scc1 L_conv_last")
    poll_block(vFA + 1, True, sleep=24)
    for phi in range(P1):
        for it in wd_load(phi):
            e(it[1] if isinstance(it, tuple) else it)
    e("s_branch L_conv_last")
    for (sl, bk, lst) in g.slow:
        g.lab(sl)
        g.sfree = [98]
        g.pst = []
        if diag:
            e("s_waitcnt lgkmcnt(0)")
        for pi, (av, n4) in enumerate(lst):
            stamp(f"slow{sl[-2:]}_{pi}", flush=True)
            poll_block(av, n4, sleep=opt.get("ssleep", 20))
        stamp(f"slow{sl[-2:]}_x", flush=True)
        e(f"s_branch {bk}")
    g.L.append(".p2align 7")
    g.L.append(".type L_tab,@object")
    g.lab("L_tab")
    tb = lane_table()
    for i in range(0, len(tb), 16):
        g.L.append(".long " + ",".join(str(x) for x in tb[i:i + 16]))
    g.L.append(f".size L_tab, {4 * len(tb)}")
    g.lab("L_codeend")

    doc = """; Fused LayerNorm + S4D long convolution + GEGLU FFN + SiLU gate, one persistent launch (1 workgroup per CU).
; kernarg: 0 u | 8 log_A_real | 16 A_imag | 24 C_real | 32 C_imag | 40 log_dt | 48 D_skip | 56 x (unused) |
;          64 w_gate | 72 w_up | 80 w_down | 88 out | 96 debug | 104 ws
; 216 workgroups: LN of 8 rows, SSM kernel table of 2 channels, GEMM1 tile 256 x (64 gate + 64 up) on raw u with the
; LayerNorm applied algebraically in the GEGLU epilogue, Toeplitz convolution of their 2 channels, GEMM2 tile 64 x 80.
; 40 workgroups: LN, the remaining 208 channels of the convolution, GEMM2 tile.
; Hand-offs go through ws with write-through stores + per-launch tagged flags (tag derived from an epoch word in ws).
; Generated by a script of the author (straight-line schedule, counted waits).""".split("\n")
    hdr = doc + [f"; @launch grid=(256,1,1) block=(256,1,1) lds={LDS_TOTAL}",
           '.amdgcn_target "amdgcn-amd-amdhsa--gfx950"', ".text", f".globl {KNAME}", ".p2align 8",
           f".type {KNAME},@function", f"{KNAME}:"]
    ftr = ['.section .rodata,"a"', ".p2align 6", f".amdhsa_kernel {KNAME}",
           "  .amdhsa_next_free_vgpr 512", "  .amdhsa_next_free_sgpr 102", "  .amdhsa_accum_offset 256",
           "  .amdhsa_group_segment_fixed_size 0", "  .amdhsa_kernarg_size 112", "  .amdhsa_user_sgpr_count 2",
           "  .amdhsa_user_sgpr_kernarg_segment_ptr 1", "  .amdhsa_system_sgpr_workgroup_id_x 1",
           "  .amdhsa_float_denorm_mode_32 3",
           ".end_amdhsa_kernel"]
    txt = "\n".join(hdr + g.L + ftr) + "\n"
    if diag:
        txt = txt + "; STAMPS " + ",".join(ts_names) + "\n"
    return txt


if __name__ == "__main__":
    diag = "--diag" in sys.argv
    opt = {}
    for a in sys.argv[1:]:
        if a.startswith("--") and "=" in a:
            k, v = a[2:].split("=")
            opt[k] = int(v) if v.lstrip("-").isdigit() else v.replace("_", " ")
    out = [a for a in sys.argv[1:] if not a.startswith("--")]
    s = gen(diag=diag, opt=opt)
    path = out[0] if out else "recurrent_scan__ssm_conv_s4d__geglu_ffn__prompt.s"
    open(path, "w").write(s)
    print("wrote", path, len(s), "bytes", s.count("\n"), "lines")
```

```python
import sys, struct, math

KNAME = "recurrent_scan__ssm_conv_s4d__geglu_ffn__prompt_kernel"

EPOCH = 0x0
LNF = 0x1000
WF = 0x4400
STATS = 0x8000
XNT = 0x10000
ST = 0x290000
WDP = 0x510000
HB = 0x730000
CSP = 0xDF0000
HF = 0xE26000
SF = 0xE46000
WS_END = 0xE50000
TS_BASE = 0xE60000

SLOT = 49152
MISC = 147456
LNP = 1344
CSB = MISC + 10752 + 5120
XYP = 544
YR0 = 21
XYC = 53 * XYP
XYB_SP, XYB_G1 = 0, 2 * SLOT
LNB = 2 * SLOT
TB_G1 = 157696
PB = 0
UBASE = 69632
UC = 4608
RB = UBASE + 2 * UC
RCS = 4160
RC = 4 * RCS
TC = 2624
TB = MISC
YSO = 650 * 4
SOB = 16384
EXB = 24576
XTB = 112128
STB = XTB + 12288
LDS_TOTAL = 163840
OOB = 0x7fff0000

def f2u(x):
    return struct.unpack("<I", struct.pack("<f", x))[0]

LOG2E = 1.4426950408889634
C0 = -2.0 * math.sqrt(2.0 / math.pi) * LOG2E
C1 = C0 * 0.044715


class G:
    def __init__(self):
        self.L = []
        self.vm = []
        self.lg = []
        self.nlab = 0
        self.slow = []
        self.skip = set()
        self.pst = []
        self.sfree = [92, 100]

    def flush_stamps(self):
        for (sr, lane) in self.pst:
            self.e(f"v_writelane_b32 v127, s{sr}, {lane}")
            self.sfree.append(sr)
        self.pst = []

    def e(self, s):
        for ln in s.split("\n"):
            self.L.append("    " + ln)

    def lab(self, name):
        self.L.append(name + ":")

    def newlab(self, p="L"):
        self.nlab += 1
        return f"{p}_{self.nlab}"

    def vmem(self, s, tag=None):
        if tag in self.skip:
            return
        self.e(s)
        self.vm.append(tag)

    def lds(self, s, tag=None):
        self.e(s)
        self.lg.append(tag)

    def _n(self, q, tag):
        idx = max(i for i, t in enumerate(q) if t == tag)
        return idx, sum(1 for t in q[idx + 1:] if t != "OPT")

    def wvm(self, tag):
        if tag not in self.vm:
            return
        idx, n = self._n(self.vm, tag)
        self.e(f"s_waitcnt vmcnt({min(n, 63)})")
        self.vm = self.vm[idx + 1:]

    def wlg(self, tag):
        if tag not in self.lg:
            return
        idx, n = self._n(self.lg, tag)
        self.e(f"s_waitcnt lgkmcnt({min(n, 15)})")
        self.lg = self.lg[idx + 1:]

    def wvm0(self):
        self.e("s_waitcnt vmcnt(0)")
        self.vm = []

    def wlg0(self):
        self.e("s_waitcnt lgkmcnt(0)")
        self.lg = []
        self.flush_stamps()

    def wall(self):
        self.e("s_waitcnt vmcnt(0) lgkmcnt(0)")
        self.vm = []
        self.lg = []
        self.flush_stamps()

    def nop(self, n):
        while n > 0:
            k = min(n, 16)
            self.e(f"s_nop {k - 1}")
            n -= k

    def do(self, item):
        if callable(item):
            item()
        elif isinstance(item, tuple):
            kind = item[0]
            if kind == "vm":
                self.vmem(item[1], item[2])
            elif kind == "lds":
                self.lds(item[1], item[2])
            elif kind == "wvm":
                self.wvm(item[1])
            elif kind == "wlg":
                self.wlg(item[1])
            else:
                raise ValueError(kind)
        else:
            self.e(item)


def vr(a, n):
    return f"v[{a}:{a + n - 1}]"


def ar(a, n):
    return f"a[{a}:{a + n - 1}]"


SX, SWG, SWU, SWS, SOUT, SWD = "s[4:7]", "s[8:11]", "s[12:15]", "s[16:19]", "s[20:23]", "s[24:27]"
P_LAR, P_AIM, P_CRE, P_CIM, P_LDT, P_DSK = "s[28:29]", "s[30:31]", "s[32:33]", "s[34:35]", "s[36:37]", "s[38:39]"
sW, sTAG, sM, sFT, sISG1, sCP, sRND, sSP = "s40", "s41", "s42", "s43", "s44", "s45", "s46", "s47"
sXCD, sQ = "s48", "s49"
sXM0, sWM0, sXS, sWSO = "s50", "s51", "s52", "s53"
sT0, sT1, sT2, sT3, sT4, sT5 = "s54", "s55", "s56", "s57", "s58", "s59"
sMASK, sCNT = "s60", "s61"
sRHO, sC = "s62", "s63"
sHS0, sHS1 = "s64", "s65"
sG2 = 66
STW = "s[96:99]"
sF0, sF1, sF2 = "s0", "s1", "s3"
sLT, sDT = "s82", "s83"
sWDS = "s84"
sPEND, sXO = "s85", "s86"
sKR = "s87"
sXT, sSTO = "s94", "s95"
sK0, sK1 = "s96", "s97"

vT = 2
vXO = 16
vWO = 24
vBA = 26
vAA = 30
vCS = 42
vHO = 44
vTO = 46
vSTA = 48
vU = 56
vAF = 64
vBF = 96
vPAR = 112
vFA = 118
vEP = 120
vFL = 122
vACC = 128
SC = 224
GA = 24
AST = 224
AS2 = 192
PKB = MISC
vWDV = 232


def bf16_idx(l):
    if l < 0:
        return -1
    if l < 256:
        return l
    u = f2u(float(l))
    u = (u + 0x7fff + ((u >> 16) & 1)) >> 16
    return u - 0x4280


def lane_table():
    out = []
    for w in range(4):
        c, rho = w >> 1, w & 1
        rows = []
        for ln in range(64):
            n, kg = ln & 15, ln >> 4
            E = [0] * 48
            E[3] = (UBASE + c * UC + rho * 256 + ln * 16) if ln < 16 else (RB + 4096 + c * RC + rho * 2 * RCS + ((ln >> 1) & 1) * RCS + (ln & 1) * 16)
            E[4] = RB + c * RC + rho * 2048 + ln * 16
            E[5] = UBASE + 512 + w * 1024 + (ln & 1) * UC + (ln >> 1) * 16
            E[6] = TB_G1 + c * TC
            E[7] = RB + 24 + 256 + c * RC - rho * 256 + ((3 - n) & 3) * RCS + kg * 16 - (n & 12) * 2
            E[8] = UBASE + 32 + 256 + c * UC - rho * 256 + n * 32 + kg * 16
            E[9] = w * 4096 + ln * 16
            E[10] = E[9] ^ 0x1000
            E[11] = UBASE + 512 + c * UC + rho * 2048 + n * 32 + kg * 8
            E[12] = SOB + w * 2048 + n * 32 + kg * 8
            E[13] = SOB + w * 2048 + ln * 16
            for k in range(3):
                E[14 + k] = ((w + k + 1) & 3) * 15360 + EXB + 5120 * k + ln * 16
                ix = 64 * k + ln
                E[17 + k] = (ix // 10) * 1280 + (ix % 10) * 16
            E[20] = E[19] if ln < 32 else OOB
            E[23] = (ln >> 1) * 10240 + (ln & 1) * 16
            for ch in range(2):
                for k in range(11):
                    l = 2047 - 1024 * rho - 8 * ln - 512 * ch - k
                    E[24 + 11 * ch + k] = TB_G1 + 4 + c * TC + 4 * bf16_idx(l)
            rows.append(E)
        for q in range(12):
            for ln in range(64):
                out += rows[ln][4 * q:4 * q + 4]
    return out


def gen(diag=False, opt=None):
    opt = opt or {}
    TOUCH = opt.get("touch", 0)
    P0N = opt.get("p0", 32)
    P1 = P0N + opt.get("pe", 0)
    KCHK = opt.get("kchk", 29)
    NT = " nt" if opt.get("nt", 1) else ""
    g = G()
    e = g.e
    if opt.get('nolnst'):
        g.skip.add('lnst')
    ts_names = []
    vTAG, vL0 = vEP, vEP + 1

    def stamp(name, cyc=False, flush=False):
        if not diag:
            return
        if opt.get("dbg"):
            sel = ["x0", "x1", "par_data", "kdone", "g1_start", "g1_loop_end", "g1_epi_end", "conv_startL", "conv_endL", "g2_start", "g2_loop_end", "end", "sp_lnf", "conv_startE"]
            if name not in sel:
                return
            ts_names[:] = sel
        if name not in ts_names:
            ts_names.append(name)
        i = ts_names.index(name)
        if not g.sfree:
            g.wlg0()
        sr = g.sfree.pop(0)
        e(f"{'s_memtime' if cyc else 's_memrealtime'} s[{sr}:{sr + 1}]")
        g.pst.append((sr, i))
        if flush:
            g.wlg0()

    def interleave(fn, units, every):
        n0 = len(g.L)
        fn()
        body = g.L[n0:]
        del g.L[n0:]
        cnt = 0
        for bi, ln in enumerate(body):
            g.L.append(ln)
            if ln.strip().startswith(".") or ln.strip().endswith(":"):
                continue
            cnt += 1
            nxt_ = body[bi + 1].strip() if bi + 1 < len(body) else ""
            if nxt_.startswith(("s_cselect", "s_addc", "s_cbranch")):
                continue
            if units and cnt >= every:
                u = units[0]
                if isinstance(u, tuple) and u[0] == "m0":
                    e(u[1])
                    units.pop(0)
                    cnt = every - 1
                else:
                    g.do(u)
                    units.pop(0)
                    cnt = 0 if isinstance(u, tuple) else every - 1

    def align():
        e(".p2align 3")

    def red(op, v, t, full):
        for dpp in ("quad_perm:[1,0,3,2]", "quad_perm:[2,3,0,1]", "row_half_mirror", "row_mirror"):
            g.nop(2)
            e(f"{op} v{v}, v{v}, v{v} {dpp}")
        e(f"v_mov_b32 v{t}, v{v}")
        g.nop(2)
        e(f"v_permlane16_swap_b32 v{v}, v{t}")
        g.nop(1)
        e(f"{op} v{v}, v{v}, v{t}")
        if full:
            e(f"v_mov_b32 v{t}, v{v}")
            g.nop(2)
            e(f"v_permlane32_swap_b32 v{v}, v{t}")
            g.nop(1)
            e(f"{op} v{v}, v{v}, v{t}")

    def bf16round(v):
        e(f"v_cvt_pk_bf16_f32 v{v}, v{v}, v{v}")
        e(f"v_lshlrev_b32 v{v}, 16, v{v}")

    def check4(tmp):
        return [f"v_xor_b32 v{tmp}, v{vTAG}, v{tmp}", f"v_xor_b32 v{tmp + 1}, v{vTAG}, v{tmp + 1}",
                f"v_xor_b32 v{tmp + 2}, v{vTAG}, v{tmp + 2}", f"v_xor_b32 v{tmp + 3}, v{vTAG}, v{tmp + 3}",
                f"v_or3_b32 v{tmp}, v{tmp}, v{tmp + 1}, v{tmp + 2}", f"v_or_b32 v{tmp}, v{tmp}, v{tmp + 3}",
                f"v_cmp_ne_u32 vcc, 0, v{tmp}"]

    def poll_block(addr_v, n4, sleep=opt.get('sleep', 8)):
        lp = g.newlab("Lpoll")
        dn = g.newlab("Lpd")
        tmp = vFL
        e(f"s_mov_b32 {sCNT}, 0x20000")
        g.lab(lp)
        if n4:
            e(f"buffer_load_dwordx4 {vr(tmp, 4)}, v{addr_v}, {SWS}, 0 offen sc1")
            e("s_waitcnt vmcnt(0)")
            for x in check4(tmp):
                e(x)
        else:
            e(f"buffer_load_dword v{tmp}, v{addr_v}, {SWS}, 0 offen sc1")
            e("s_waitcnt vmcnt(0)")
            e(f"v_cmp_ne_u32 vcc, v{vTAG}, v{tmp}")
        e(f"s_cbranch_vccz {dn}")
        e(f"s_sleep {sleep}")
        e(f"s_sub_u32 {sCNT}, {sCNT}, 1")
        e(f"s_cbranch_scc0 {lp}")
        g.lab(dn)

    def flag_store(soff):
        e(f"buffer_store_dword v{vTAG}, v{vL0}, {SWS}, {soff} offen sc1")

    def wd_load(phi):
        dst = ar(4 * phi, 4) if phi < 64 else vr(vWDV + 4 * (phi - 64), 4)
        pre = []
        if phi >= 65:
            if phi == 65 or phi == 68:
                pre.append(f"s_add_u32 {sT5}, {sWDS}, {(phi // 4) * 4096}")
                pre.append(f"s_cmp_lt_u32 {sW}, 2\ns_cselect_b32 {sT5}, {sT5}, {OOB}")
        elif phi % 4 == 0:
            pre.append(f"s_add_u32 {sT5}, {sWDS}, {(phi // 4) * 4096}")
        return pre + [("vm", f"buffer_load_dwordx4 {dst}, v1, {SWS}, {sT5} offen offset:{(phi % 4) * 1024} sc1", ("wd", phi))]

    def u_loads(cpreg, va):
        return [f"v_accvgpr_read_b32 v{va}, a{AS2 + 23}",
                f"s_mul_i32 {sF0}, {sW}, {64 * 10240}",
                f"s_lshl_b32 {sF1}, {cpreg}, 5",
                f"s_add_u32 {sF0}, {sF0}, {sF1}",
                f"s_add_u32 {sF0}, {sF0}, {XNT}",
                f"s_add_u32 {sF1}, {sF0}, {32 * 10240}",
                ("vm", f"buffer_load_dwordx4 {vr(vU, 4)}, v{va}, {SWS}, {sF0} offen sc1", "u"),
                ("vm", f"buffer_load_dwordx4 {vr(vU + 4, 4)}, v{va}, {SWS}, {sF1} offen sc1", "u")]

    def tab_units():
        out = []
        for q in range(12):
            if q % 4 == 0:
                out.append(f"s_mul_i32 {sT4}, {sW}, 12288\ns_add_u32 {sT4}, {sT4}, L_tab - L_pc + {1024 * q}")
            dst = ar(AS2 + 4 * q, 4) if q < 6 else ar(AST + 8 + 4 * (q - 6), 4)
            out.append(("vm", f"buffer_load_dwordx4 {dst}, v1, s[88:91], {sT4} offen offset:{1024 * (q % 4)}", "tab"))
        return out

    def table_code(TB):
        def put(i, src):
            e(f"v_lshl_add_u32 v{src}, v{src}, 2, {sF2}")
            e(f"v_accvgpr_write_b32 a{AST + i}, v{src}")
        e(f"s_mul_i32 {sF2}, {sC}, {TC}")
        e(f"s_add_u32 {sF2}, {sF2}, {TB + 4}")
        e("v_lshrrev_b32 v4, 4, v0")
        e(f"s_lshl_b32 {sF1}, {sRHO}, 2")
        e(f"v_add_u32 v4, {sF1}, v4")
        e("v_and_b32 v5, 15, v0")
        DUM = 645
        e("v_cmp_eq_u32 s[54:55], 2, v4")
        e("v_cmp_eq_u32 s[56:57], 3, v4")
        e("v_cmp_eq_u32 s[58:59], 4, v4")
        e("v_cmp_lt_u32 vcc, 4, v4")
        e("v_mov_b32 v6, 8")
        e("v_cndmask_b32 v6, v6, 4, s[54:55]")
        e("v_cndmask_b32 v6, v6, 2, s[56:57]")
        e("v_cndmask_b32 v6, v6, 1, s[58:59]")
        e("v_cndmask_b32 v6, v6, 0, vcc")
        e("v_mul_u32_u24 v7, v6, v5")
        e("v_lshlrev_b32 v8, 4, v6")
        for i in range(4):
            e(f"v_lshl_add_u32 v9, v4, 2, {i}")
            for sreg, val in (("s[54:55]", 256 + i), ("s[56:57]", 384 + 64 * (i >> 1) + (i & 1)), ("s[58:59]", 512 + 32 * i), ("vcc", DUM)):
                e(f"v_mov_b32 v10, {val}")
                e(f"v_cndmask_b32 v9, v9, v10, {sreg}")
            e("v_add_u32 v9, v9, v7")
            e("v_add_u32 v11, v9, v8")
            if i == 0:
                e("v_lshl_add_u32 v6, v4, 4, v5")
                e("v_mov_b32 v10, 80")
                e("v_cmp_eq_u32 s[60:61], v10, v6")
                e("v_mov_b32 v10, 640")
                e("s_nop 0")
                e("v_cndmask_b32 v9, v9, v10, s[60:61]")
            put(i, 9)
            put(4 + i, 11)

    def gather_items(TB):
        it = [f"s_mul_i32 {sF2}, {sC}, {TC}", f"s_add_u32 {sF2}, {sF2}, {TB + 4}",
              f"s_lshl_b32 {sF1}, {sRHO}, 10", f"s_sub_u32 {sF1}, 2047, {sF1}", "v_lshlrev_b32 v12, 3, v0",
              f"v_sub_u32 v12, {sF1}, v12", f"s_movk_i32 {sF1}, 128"]
        for ch in range(2):
            for k in range(11):
                it += [f"v_subrev_u32 v2, {512 * ch + k}, v12", "v_max_i32 v3, 0, v2", "v_cvt_f32_u32 v3, v3",
                       f"v_med3_i32 v2, v2, -1, {sF1}", "v_cvt_pk_bf16_f32 v3, v3, 0", "v_subrev_u32 v3, 0x4280, v3",
                       "v_max_i32 v2, v2, v3", f"v_lshl_add_u32 v2, v2, 2, {sF2}",
                       f"v_accvgpr_write_b32 a{AST + 8 + 11 * ch + k}, v2"]
        return it

    def addr_items(XYB, TB):
        it = []
        A = it.append
        def st(i, r):
            A(f"v_accvgpr_write_b32 a{AS2 + i}, v{r}")
        A(f"s_mul_i32 {sF0}, {sC}, {XYC}")
        A(f"s_add_u32 {sF0}, {sF0}, {XYB}")
        A(f"v_lshl_add_u32 v2, v0, 3, {sF0}")
        st(0, 2)
        A("v_and_b32 v12, 15, v0")
        A("v_lshrrev_b32 v13, 4, v0")
        A(f"v_mul_u32_u24 v2, {XYP}, v12")
        A("v_lshl_add_u32 v2, v13, 4, v2")
        A(f"v_add_u32 v3, {sF0}, v2")
        st(2, 3)
        A(f"s_mul_i32 {sF1}, {sRHO}, {16 * XYP}")
        A(f"v_add_u32 v3, {sF1}, v3")
        st(1, 3)
        A(f"s_mul_i32 {sF2}, {sC}, {TC}")
        A(f"s_add_u32 {sF2}, {sF2}, {TB}")
        A(f"v_mov_b32 v2, {sF2}")
        st(6, 2)
        A("EARLY_END")
        A(f"s_mul_i32 {sF0}, {sW}, 14")
        A(f"s_cmp_eq_u32 {sW}, 3\ns_cselect_b32 {sF1}, 1, 0")
        A(f"s_sub_u32 {sF0}, {sF0}, {sF1}")
        A(f"s_mul_i32 {sF1}, {sDT}, 54")
        A(f"s_add_u32 {sF1}, {sF0}, {sF1}")
        A(f"s_mul_i32 {sF1}, {sF1}, 5120")
        A(f"s_add_u32 {sWDS}, {sF1}, {WDP}")
        for k in range(4):
            A(f"s_add_u32 {sF1}, {sW}, {k + 1}")
            A(f"s_and_b32 {sF1}, {sF1}, 3")
            A(f"s_lshl_b32 {sF2}, {sLT}, 2")
            A(f"s_add_u32 {sF1}, {sF1}, {sF2}")
            A(f"s_mul_i32 {sF1}, {sF1}, 54")
            A(f"s_add_u32 {sF1}, {sF1}, {sF0}")
            A(f"s_lshl_b32 {sF1}, {sF1}, 10")
            A(f"s_add_u32 s{sG2 + 4 * k}, {sF1}, {HB}")
            for q in range(1, 4):
                A(f"s_add_u32 s{sG2 + 4 * k + q}, s{sG2 + 4 * k}, {4096 * q}")
        A(f"s_lshl_b32 {sXO}, {sLT}, 2")
        A(f"s_add_u32 {sXO}, {sXO}, {sW}")
        A(f"s_mul_i32 {sXO}, {sXO}, {16 * 1280}")
        A(f"s_mul_i32 {sF0}, {sDT}, 160")
        A(f"s_add_u32 {sXO}, {sXO}, {sF0}")
        A(f"s_mul_i32 {sXT}, {sW}, 3072")
        A(f"s_add_u32 {sXT}, {sXT}, {XTB}")
        A(f"s_mul_i32 {sSTO}, {sDT}, 80")
        A(f"s_lshl_b32 {sSTO}, {sSTO}, 12")
        A(f"s_lshl_b32 {sF0}, {sLT}, 2")
        A(f"s_add_u32 {sF0}, {sF0}, {sW}")
        A(f"s_lshl_b32 {sF0}, {sF0}, 5")
        A(f"s_add_u32 {sSTO}, {sSTO}, {sF0}")
        A(f"s_add_u32 {sSTO}, {sSTO}, {ST}")
        A(("wvm", "tab"))
        A(f"s_lshl_b32 {sF0}, {sLT}, 12")
        A(f"s_add_u32 {sF0}, {sF0}, {HF}")
        A("v_min_u32 v2, 26, v0")
        A(f"v_lshl_add_u32 v2, v2, 7, {sF0}")
        st(21, 2)
        A(f"s_mul_i32 {sF0}, {sDT}, {40 * 128}")
        A(f"s_add_u32 {sF0}, {sF0}, {SF}")
        A("v_min_u32 v2, 39, v0")
        A(f"v_lshl_add_u32 v2, v2, 7, {sF0}")
        st(22, 2)
        k_ = it.index("EARLY_END")
        return it[:k_], it[k_ + 1:]

    e("s_cmp_ge_u32 s2, 256")
    e("s_cbranch_scc1 L_end")
    if diag:
        e("s_memrealtime s[92:93]")
    if opt.get("dbg"):
        e("s_mov_b64 s[100:101], s[0:1]")
        g.sfree = [92]
    e("s_getpc_b64 s[88:89]")
    g.lab("L_pc")
    e("s_load_dwordx2 s[4:5], s[0:1], 0")
    e("s_load_dwordx2 s[16:17], s[0:1], 104")
    e("s_load_dwordx2 s[8:9], s[0:1], 64")
    e("s_load_dwordx2 s[12:13], s[0:1], 72")
    e("s_load_dwordx4 s[28:31], s[0:1], 8")
    e("s_load_dwordx4 s[32:35], s[0:1], 24")
    e("s_load_dwordx4 s[36:39], s[0:1], 40")
    e("s_load_dwordx4 s[64:67], s[0:1], 80")
    NSP = opt.get("nsp", 0)
    for i in range(NSP):
        e(f"s_load_dword s{66 + i}, s[88:89], {256 + 128 * i}")
    e("v_lshrrev_b32 v2, 6, v0")
    e("v_and_b32 v3, 15, v0")
    e("s_mov_b32 s90, L_codeend - L_pc")
    e("s_mov_b32 s91, 0x20000")
    e("v_lshl_add_u32 v3, v2, 4, v3")
    e(f"v_readfirstlane_b32 {sW}, v2")
    e("v_lshlrev_b32 v3, 7, v3")
    if opt.get("cpf0", 1):
        e(f"buffer_load_dword v{vFL + 3}, v3, s[88:91], 0 offen offset:{min(256 + 128 * NSP, 4000)}")
        g.vm.append("cpf")
    e("v_and_b32 v0, 63, v0")
    e("s_mov_b32 s6, 2621440\ns_mov_b32 s7, s91")
    e("v_lshrrev_b32 v2, 5, v0")
    e("v_and_b32 v3, 31, v0")
    e("v_mul_u32_u24 v2, 0x500, v2")
    e(f"s_lshl2_add_u32 {sT0}, s2, {sW}")
    e("v_lshl_add_u32 v2, v3, 3, v2")
    e(f"s_mulk_i32 {sT0}, 2560")
    e(f"s_lshr_b32 {sQ}, s2, 3")
    e(f"s_bfe_u32 {sT1}, s2, 0x20001")
    e(f"s_and_b32 {sM}, s2, 1")
    e(f"s_and_b32 {sT2}, {sQ}, 3")
    e(f"s_lshr_b32 {sDT}, {sQ}, 2")
    e(f"s_lshl2_add_u32 {sM}, {sM}, {sT2}")
    e(f"s_mul_i32 {sFT}, {sT1}, 7")
    e(f"s_add_u32 {sFT}, {sFT}, {sDT}")
    e(f"s_mul_i32 {sCP}, {sM}, 27")
    e(f"s_add_u32 {sCP}, {sCP}, {sFT}")
    e(f"s_lshr_b32 {sC}, {sW}, 1")
    e(f"s_lshl1_add_u32 {sT1}, {sCP}, {sC}")
    e(f"s_lshl_b32 {sT1}, {sT1}, 8")
    e(f"v_lshl_add_u32 v12, v0, 2, {sT1}")
    e(f"s_lshl_b32 {sT1}, {sCP}, 2")
    e(f"v_mov_b32 v13, {sT1}")
    e(f"s_cmp_lt_u32 {sDT}, 7")
    e(f"s_cselect_b32 {sT3}, {sFT}, 27")
    e(f"s_cmp_lt_u32 {sT3}, 27")
    e(f"s_cselect_b32 {sISG1}, 1, 0")
    e("s_waitcnt lgkmcnt(0)")
    for i in range(opt.get("ns2", 0)):
        e(f"s_load_dword s93, s[88:89], {opt.get('ns2o', 384) + 128 * i}")
    LX = 232
    for q in range(5):
        g.vmem(f"buffer_load_dwordx2 {vr(LX + 2 * q, 2)}, v2, {SX}, {sT0} offen offset:{256 * q}", "ln")
    e("s_cbranch_scc0 L_spare")
    if diag:
        e("v_mov_b32 v127, 0")
        e("v_writelane_b32 v127, s92, 60")
    stamp("start")
    APAR = 160
    for k, p in enumerate((P_LAR, P_AIM, P_CRE, P_CIM)):
        g.vmem(f"global_load_dword a{APAR + k}, v12, {p}{NT}", "par")
    g.vmem(f"global_load_dword a{APAR + 4}, v13, {P_LDT}", "par")
    g.vmem(f"global_load_dword a{APAR + 5}, v13, {P_DSK}", "par")
    if diag and not opt.get("dbg") and False:
        e("s_memrealtime s[100:101]\ns_waitcnt lgkmcnt(0)\nv_writelane_b32 v127, s100, 56")
    if opt.get("coop", 1):
        e(f"s_mul_i32 {sT1}, {sDT}, 37")
        e(f"s_mul_i32 {sT3}, {sW}, 10")
        e(f"s_lshl_b32 {sT4}, {sM}, 8")
        e(f"s_add_u32 {sT1}, {sT1}, {sT3}")
        e(f"s_add_u32 {sT1}, {sT1}, {sT4}")
        e("v_min_u32 v4, 9, v0")
        e(f"s_mulk_i32 {sT1}, 1280")
        e("v_mul_u32_u24 v4, 0x500, v4")
        e(f"s_cmp_eq_u32 {sC}, 0\ns_cselect_b32 s96, s8, s12\ns_cselect_b32 s97, s9, s13")
        for q in range(3):
            g.vmem(f"buffer_load_dword v{vFL + 4}, v4, {SX}, {sT1} offen offset:{128 * q}", "coop")
        e(f"s_and_b32 {sT1}, {sW}, 1")
        e(f"s_lshl1_add_u32 {sT1}, {sT2}, {sT1}")
        e("v_min_u32 v5, 23, v0")
        e(f"s_mul_i32 {sT1}, {sT1}, {24 * 3456}")
        e(f"s_lshl_b32 {sT3}, {sFT}, 7")
        e("v_mul_u32_u24 v5, 3456, v5")
        e(f"s_add_u32 {sT1}, {sT1}, {sT3}")
        e("s_mov_b32 s98, 2211840\ns_mov_b32 s99, 0x20000")
        g.vmem(f"buffer_load_dword v{vFL + 4}, v5, {STW}, {sT1} offen", "coop")
    e("v_lshrrev_b32 v4, 3, v0")
    e("v_and_b32 v5, 7, v0")
    e("v_lshrrev_b32 v6, 4, v0")
    e("v_mul_u32_u24 v7, 3456, v4")
    e("v_and_b32 v8, 1, v6")
    e("v_lshlrev_b32 v8, 1, v8")
    e("v_xor_b32 v8, v5, v8")
    e(f"v_lshl_add_u32 v{vWO}, v8, 4, v7")
    e(f"s_lshl_b32 {sWM0}, {sW}, 11")
    e(f"s_mul_i32 {sWSO}, {sW}, {16 * 3456}")
    e(f"s_lshl_b32 {sT1}, {sFT}, 7")
    e(f"s_add_u32 {sWSO}, {sWSO}, {sT1}")
    e("v_xor_b32 v8, 4, v8")
    e("v_lshl_add_u32 v8, v8, 4, v7")
    e(f"v_add_u32 v{vWO + 1}, {8 * 3456 - 1024}, v8")
    e("s_mov_b32 s10, 2211840\ns_mov_b32 s11, 0x20000")
    e("s_mov_b32 s14, s10\ns_mov_b32 s15, 0x20000")

    def rest_setup():
        e(f"s_and_b32 {sXCD}, s2, 7")
        e("s_mov_b64 s[24:25], s[64:65]")
        e("s_mov_b64 s[20:21], s[66:67]")
        e("v_lshlrev_b32 v1, 4, v0")
        e(f"s_mov_b32 s18, {WS_END}\ns_mov_b32 s19, 0x20000")
        e(f"v_mov_b32 v{vL0}, {OOB}")
        e(f"v_writelane_b32 v{vL0}, 0, 0")
        e("s_mov_b32 s22, 2621440\ns_mov_b32 s23, 0x20000")
        e("s_mov_b32 s26, 2211840\ns_mov_b32 s27, 0x20000")
        e(f"s_lshl_b32 {sT4}, {sXCD}, 2")
        e(f"s_and_b32 {sT2}, {sQ}, 3")
        if opt.get("map2", 1):
            e(f"s_lshr_b32 {sLT}, {sXCD}, 1")
            e(f"s_and_b32 {sT2}, {sQ}, 7")
            e(f"s_lshl3_add_u32 {sLT}, {sLT}, {sT2}")
            e(f"s_and_b32 {sT2}, {sXCD}, 1")
            e(f"s_lshr_b32 {sDT}, {sQ}, 3")
            e(f"s_lshl2_add_u32 {sDT}, {sT2}, {sDT}")
        else:
            e(f"s_add_u32 {sLT}, {sT4}, {sT2}")
        e(f"s_add_u32 {sT4}, {sT4}, {sQ}")
        e(f"s_sub_u32 {sT4}, {sT4}, 28")
        e(f"s_lshl_b32 {sT5}, {sXCD}, 3")
        e(f"s_add_u32 {sT5}, {sT5}, {sQ}")
        e(f"s_sub_u32 {sT5}, {sT5}, 48")
        e(f"s_cmp_lt_u32 {sXCD}, 6\ns_cselect_b32 {sSP}, {sT4}, {sT5}")
        e(f"s_mul_i32 {sT4}, {sM}, 27")
        e(f"s_add_u32 {sT4}, {sT4}, {sFT}")
        e(f"s_add_u32 {sT5}, {sSP}, 216")
        e(f"s_cmp_lg_u32 {sISG1}, 0\ns_cselect_b32 {sCP}, {sT4}, {sT5}")
        e(f"s_cmp_lt_u32 {sSP}, 24\ns_cselect_b32 {sRND}, 3, 2")
        e(f"s_and_b32 {sRHO}, {sW}, 1")
        e(f"s_lshr_b32 {sC}, {sW}, 1")
        e("v_lshlrev_b32 v10, 21, v0")
        e(f"v_mov_b32 v{vFA}, v1")
        e(f"v_mov_b32 v{vFA + 1}, v1")
        e(f"v_mul_u32_u24 v54, {3456 if opt.get('csc', 1) else 17280}, v4")
        e("v_lshl_add_u32 v54, v5, 4, v54")
        e(f"s_lshl_b32 {sHS0}, {sM}, 1")
        e(f"s_add_u32 {sHS0}, {sHS0}, {sRHO}")
        e(f"s_mul_i32 {sHS0}, {sHS0}, {40 * 3456}")
        e(f"s_lshl_b32 {sT1}, {sFT}, 7")
        e(f"s_add_u32 {sHS0}, {sHS0}, {sT1}")
        e("s_mov_b32 s98, 2211840\ns_mov_b32 s99, 0x20000")
        e(f"s_cmp_eq_u32 {sC}, 0\ns_cselect_b32 s96, s8, s12\ns_cselect_b32 s97, s9, s13")
        e(f"s_lshl_b32 {sT1}, {sQ}, 2")
        e(f"s_add_u32 {sT1}, {sT1}, {sW}")
        e(f"s_mul_i32 {sT1}, {sT1}, 768")
        e(f"s_add_u32 {sT1}, {sT1}, {8192 + min(256 + 128 * NSP, 4000)}")
        e("v_min_u32 v11, 5, v0")
        e("v_lshlrev_b32 v11, 7, v11")

    def rest_loads():
        g.vmem(f"buffer_load_dword v{vTAG}, v{vL0}, {SWS}, 0 offen sc1", "ep")
        g.vmem(f"buffer_load_dword v{vFL + 2}, v11, s[88:91], {sT1} offen", "tlb")
        if opt.get("tlb", 0):
            g.vmem(f"buffer_load_dword v{vFL}, v10, {SWS}, 0 offen", "tlb")
            g.vmem(f"buffer_load_dword v{vFL + 1}, v10, {SOUT}, 0 offen", "tlb")

    def dma_units(stage):
        sb = (stage % 3) * SLOT
        out = []
        for mat in range(2):
            out.append(("m0", f"s_add_u32 m0, {sWM0}, {sb + mat * 8192}"))
            for half in range(2):
                o = f" offset:{1024 * half}" if half else ""
                out.append(("vm", f"buffer_load_dwordx4 v{vWO + half}, {SWG if mat == 0 else SWU}, {sWSO} offen{o} lds", ("dma", stage)))
        for i in range(8):
            if i % 4 == 0:
                out.append(("m0", f"s_add_u32 m0, {sXM0}, {sb + i * 1024}"))
            o = f" offset:{1024 * (i & 3)}" if i & 3 else ""
            out.append(("vm", f"buffer_load_dwordx4 v{vXO + i}, {SX}, {sXS} offen{o} lds", ("dma", stage)))
        out.append(f"s_add_u32 {sXS}, {sXS}, 128")
        out.append(f"s_add_u32 {sWSO}, {sWSO}, {64 * 3456}")
        return out

    def dma_block(stage):
        for u in dma_units(stage):
            if isinstance(u, tuple) and u[0] == "m0":
                e(u[1])
                e("s_nop 0")
            else:
                g.do(u)

    APAR = 160
    def param_units(rnd):
        out = [f"s_add_u32 {sT2}, {sCP}, {40 * rnd}", f"s_min_u32 {sT2}, {sT2}, 319",
               f"s_lshl_b32 {sT1}, {sT2}, 1", f"s_add_u32 {sT1}, {sT1}, {sC}", f"s_lshl_b32 {sT1}, {sT1}, 8",
               f"v_lshl_add_u32 v12, v0, 2, {sT1}", f"s_lshl_b32 {sT1}, {sT2}, 2", f"v_mov_b32 v13, {sT1}"]
        for k, p in enumerate((P_LAR, P_AIM, P_CRE, P_CIM)):
            out.append(("vm", f"global_load_dword a{APAR + 8 * rnd + k}, v12, {p}{NT}", "par"))
        out.append(("vm", f"global_load_dword a{APAR + 8 * rnd + 4}, v13, {P_LDT}", "par"))
        out.append(("vm", f"global_load_dword a{APAR + 8 * rnd + 5}, v13, {P_DSK}", "par"))
        return out

    CSR = [56, 60, 112, 116, 52]
    def csl_units():
        out = []
        for j5 in range(5):
            if opt.get("csc", 1):
                if j5:
                    out.append(f"s_add_u32 {sHS0}, {sHS0}, {8 * 3456}")
                out.append(("vm", f"buffer_load_dwordx4 {vr(CSR[j5], 4)}, v54, {STW}, {sHS0} offen", ("csl", j5)))
                continue
            if j5 in (2, 4):
                out.append(f"s_add_u32 {sHS0}, {sHS0}, {2 * 3456}")
            out.append(("vm", f"buffer_load_dwordx4 {vr(CSR[j5], 4)}, v54, {STW}, {sHS0} offen offset:{(j5 % 2) * 3456}", ("csl", j5)))
        return out
    def emit_units(us):
        for u in us:
            if isinstance(u, tuple) and u[0] == "m0":
                e(u[1])
                e("s_nop 0")
            else:
                g.do(u)

    def split_units(us, n):
        c = 0
        for ix, u in enumerate(us):
            if isinstance(u, tuple) and u[0] == "vm":
                c += 1
                if c == n:
                    return us[:ix + 1], us[ix + 1:]
        return us, []

    def run_items(items):
        for it in items:
            g.do(it)

    F, S, Dv, SO, UO = 140, 160, 164, 184, 188
    def ln_code(bar=False):
        for q in range(10):
            e(f"v_lshlrev_b32 v{F + 2 * q}, 16, v{LX + q}")
            e(f"v_and_b32 v{F + 2 * q + 1}, 0xffff0000, v{LX + q}")
        e(f"v_pk_add_f32 {vr(S, 2)}, {vr(F, 2)}, {vr(F + 2, 2)}")
        e(f"v_pk_add_f32 {vr(S + 2, 2)}, {vr(F + 4, 2)}, {vr(F + 6, 2)}")
        for q in range(4, 10, 2):
            e(f"v_pk_add_f32 {vr(S, 2)}, {vr(S, 2)}, {vr(F + 2 * q, 2)}")
            e(f"v_pk_add_f32 {vr(S + 2, 2)}, {vr(S + 2, 2)}, {vr(F + 2 * q + 2, 2)}")
        e(f"v_pk_add_f32 {vr(S, 2)}, {vr(S, 2)}, {vr(S + 2, 2)}")
        e(f"v_add_f32 v{S}, v{S}, v{S + 1}")
        red("v_add_f32", S, S + 1, False)
        e(f"v_mul_f32 v{S}, {hex(f2u(1.0 / 640))}, v{S}")
        for q in range(10):
            e(f"v_pk_add_f32 {vr(Dv + 2 * q, 2)}, {vr(F + 2 * q, 2)}, {vr(S, 2)} op_sel_hi:[1,0] neg_lo:[0,1] neg_hi:[0,1]")
        e(f"v_pk_mul_f32 {vr(S + 2, 2)}, {vr(Dv, 2)}, {vr(Dv, 2)}")
        e(f"v_pk_mul_f32 {vr(S + 24, 2)}, {vr(Dv + 2, 2)}, {vr(Dv + 2, 2)}")
        for q in range(2, 10):
            r = S + 2 if q % 2 == 0 else S + 24
            e(f"v_pk_fma_f32 {vr(r, 2)}, {vr(Dv + 2 * q, 2)}, {vr(Dv + 2 * q, 2)}, {vr(r, 2)}")
        e(f"v_pk_add_f32 {vr(S + 2, 2)}, {vr(S + 2, 2)}, {vr(S + 24, 2)}")
        e(f"v_add_f32 v{S + 2}, v{S + 2}, v{S + 3}")
        red("v_add_f32", S + 2, S + 3, False)
        e(f"v_mul_f32 v{S + 2}, {hex(f2u(1.0 / 640))}, v{S + 2}")
        bf16round(S + 2)
        e(f"v_add_f32 v{S + 2}, {hex(f2u(1e-5))}, v{S + 2}")
        bf16round(S + 2)
        e(f"v_sqrt_f32 v{S + 2}, v{S + 2}")
        bf16round(S)
        bf16round(S + 2)
        e(f"v_rcp_f32 v{S + 3}, v{S + 2}")
        e(f"v_sub_f32 v{SO}, 0, v{S}")
        e(f"v_mul_f32 v{SO + 3}, v{S + 2}, v{S + 2}")
        e(f"v_mul_f32 v{S + 1}, v{S + 3}, v{S + 3}")
        e(f"v_mul_f32 v{SO + 2}, {hex(f2u(C0))}, v{S + 3}")
        e(f"v_mul_f32 v{S + 1}, v{S + 1}, v{S + 3}")
        e(f"v_mul_f32 v{S + 2}, v{SO}, v{S + 3}")
        e(f"v_mul_f32 v{SO + 1}, {hex(f2u(C1))}, v{S + 1}")
        for q in range(10):
            e(f"v_pk_fma_f32 {vr(Dv + 2 * q, 2)}, {vr(F + 2 * q, 2)}, {vr(S + 2, 2)}, {vr(S + 2, 2)} op_sel:[0,1,0] op_sel_hi:[1,1,0]")
        for q in range(10):
            e(f"v_cvt_pk_f16_f32 v{UO + q}, v{Dv + 2 * q}, v{Dv + 2 * q + 1}")
        e("v_lshrrev_b32 v2, 5, v0")
        e(f"v_mul_u32_u24 v2, {LNP}, v2")
        e("v_and_b32 v3, 31, v0")
        e("v_lshl_add_u32 v2, v3, 3, v2")
        e(f"s_mul_i32 {sT1}, {sW}, {2 * LNP}")
        e(f"s_add_u32 {sT1}, {sT1}, {LNB}")
        e(f"v_add_u32 v2, {sT1}, v2")
        if bar:
            e("s_barrier")
        for q in range(5):
            g.lds(f"ds_write_b64 v2, {vr(UO + 2 * q, 2)} offset:{256 * q}", "lnw")
        e("v_lshrrev_b32 v4, 1, v0")
        e(f"v_mov_b32 v5, {OOB}")
        e("v_cmp_ne_u32 vcc, 0, v3")
        e(f"s_lshl_b32 {sT1}, s2, 2")
        e(f"s_add_u32 {sT1}, {sT1}, {sW}")
        e("v_cndmask_b32 v4, v4, v5, vcc")
        e(f"s_lshl_b32 {sT1}, {sT1}, 5")
        e(f"s_add_u32 {sT1}, {sT1}, {STATS}")
        e("v_bfe_u32 v6, v0, 2, 2")
        e(f"v_mul_u32_u24 v2, {LNP}, v6")
        e("v_lshrrev_b32 v3, 4, v0")
        e("v_lshl_add_u32 v2, v3, 5, v2")
        e("v_and_b32 v7, 3, v0")
        e("v_lshl_add_u32 v2, v7, 3, v2")
        e(f"s_lshl_b32 {sT2}, {sW}, 7")
        e(f"s_add_u32 {sT2}, {sT2}, {LNB}")
        e(f"v_add_u32 v2, {sT2}, v2")

    def ln_tail():
        g.vmem(f"buffer_store_dwordx4 {vr(SO, 4)}, v4, {SWS}, {sT1} offen sc1", "lnst")
        g.wlg0()
        e("s_barrier")
        TR = 200
        for j in range(3):
            for h in range(2):
                g.lds(f"ds_read_b64_tr_b16 {vr(TR + 4 * j + 2 * h, 2)}, v2 offset:{512 * j + 4 * LNP * h}", ("lntr", j))
        e(f"s_mul_i32 {sT1}, s2, 10240")
        e(f"s_lshl_b32 {sT2}, {sW}, 10")
        e(f"s_add_u32 {sT1}, {sT1}, {sT2}")
        e(f"s_add_u32 {sT1}, {sT1}, {XNT}")
        e(f"s_add_u32 {sT2}, {sT1}, 4096")
        e(f"s_add_u32 {sT3}, {sT1}, 8192")
        e(f"s_cmp_lt_u32 {sW}, 2")
        e(f"s_cselect_b32 {sT3}, {sT3}, {OOB}")
        for j, so in enumerate((sT1, sT2, sT3)):
            g.wlg(("lntr", j))
            g.vmem(f"buffer_store_dwordx4 {vr(TR + 4 * j, 4)}, v1, {SWS}, {so} offen sc1", "lnst")

    AK = 46
    vKA_A, vKA_B, vZ, vRW, vUW, vYS, vFB, vGB = range(AK, AK + 8)
    KA, CC, TM = 128, 152, 136
    WA = KA + 6
    SIG, OMG = KA + 2, KA + 4

    def cexp(dst, p, t):
        for m in range(2):
            e(f"v_mul_f32 v{t + m}, {hex(f2u(float(p)))}, v{SIG + m}")
            e(f"v_mul_f32 v{t + 2 + m}, {hex(f2u(float(p)))}, v{OMG + m}")
        for m in range(2):
            e(f"v_fract_f32 v{t + 2 + m}, v{t + 2 + m}")
        for m in range(2):
            e(f"v_exp_f32 v{t + m}, v{t + m}")
            e(f"v_cos_f32 v{dst + 2 * m}, v{t + 2 + m}")
            e(f"v_sin_f32 v{dst + 2 * m + 1}, v{t + 2 + m}")
        e("s_nop 0")
        align()
        for m in range(2):
            e(f"v_pk_mul_f32 {vr(dst + 2 * m, 2)}, {vr(dst + 2 * m, 2)}, {vr(t, 2)} op_sel:[0,{m}] op_sel_hi:[1,{m}]")

    def cmul(dst, P, Q, t):
        for m in range(2):
            e(f"v_pk_mul_f32 {vr(t + 2 * m, 2)}, {vr(P + 2 * m, 2)}, {vr(Q + 2 * m, 2)} op_sel_hi:[0,1]")
        for m in range(2):
            e(f"v_pk_fma_f32 {vr(dst + 2 * m, 2)}, {vr(P + 2 * m, 2)}, {vr(Q + 2 * m, 2)}, {vr(t + 2 * m, 2)} op_sel:[1,1,0] op_sel_hi:[1,0,1] neg_lo:[0,1,0]")

    prow = [0]

    def put(src, row, neg, lastrow=False):
        o = 144 + 2 * (row % 4)
        ng = "-" if neg else ""
        if src is not None:
            e(f"v_cvt_pk_f16_f32 v{o}, v{src}, {ng}v{src + 1}")
            e(f"v_cvt_pk_f16_f32 v{o + 1}, v{src + 2}, {ng}v{src + 3}")
        if row % 2 == 1:
            o0 = ((row - 1) % 4) * 68
            g.lds(f"ds_write2_b64 v{WA}, {vr(o - 2, 2)}, {vr(o, 2)} offset0:{o0} offset1:{o0 + 68}", "xy")
            if row % 4 == 3:
                e(f"v_add_u32 v{WA}, {4 * XYP}, v{WA}")
        elif lastrow:
            g.lds(f"ds_write_b64 v{WA}, {vr(o, 2)} offset:{(row % 4) * XYP}", "xy")


    def rb1():
        e(f"s_mov_b32 {sKR}, 0")
        for i in range(8):
            e(f"v_accvgpr_read_b32 v{SC + i}, a{AST + i}")
        for i in (0, 1, 5):
            e(f"v_accvgpr_read_b32 v{AK + i}, a{AS2 + 1 + i}")

    def tag_code():
        e(f"v_readfirstlane_b32 {sTAG}, v{vTAG}")
        e("s_nop 3")
        e(f"s_mul_i32 {sTAG}, {sTAG}, 1664525")
        e(f"s_add_u32 {sTAG}, {sTAG}, 1013904223")
        e(f"v_mov_b32 v{vTAG}, {sTAG}")

    def k_setup():
        for k6 in (4, 5, 0, 1, 2, 3):
            e(f"v_accvgpr_read_b32 v{vPAR + k6}, a{APAR + k6}")
        e(f"v_accvgpr_read_b32 v{WA}, a{AS2}")
        e(f"s_lshl_b32 {sT1}, {sC}, 4")
        e(f"v_lshrrev_b32 v{KA}, {sT1}, v{vPAR + 4}")
        e(f"v_lshlrev_b32 v{KA}, 16, v{KA}")
        e(f"v_mul_f32 v{KA}, {hex(f2u(LOG2E))}, v{KA}")
        e(f"v_exp_f32 v{KA}, v{KA}")
        e(f"v_lshrrev_b32 v{KA + 7}, {sT1}, v{vPAR + 5}")
        e(f"v_lshlrev_b32 v{KA + 7}, 16, v{KA + 7}")
        bf16round(KA)
        e(f"v_lshlrev_b32 v{KA + 2}, 16, v{vPAR}")
        e(f"v_and_b32 v{KA + 3}, 0xffff0000, v{vPAR}")
        e(f"v_mul_f32 v{KA + 2}, {hex(f2u(LOG2E))}, v{KA + 2}")
        e(f"v_mul_f32 v{KA + 3}, {hex(f2u(LOG2E))}, v{KA + 3}")
        e(f"v_exp_f32 v{KA + 2}, v{KA + 2}")
        e(f"v_exp_f32 v{KA + 3}, v{KA + 3}")
        e(f"v_lshlrev_b32 v{KA + 4}, 16, v{vPAR + 1}")
        e(f"v_and_b32 v{KA + 5}, 0xffff0000, v{vPAR + 1}")
        e(f"v_cvt_pk_bf16_f32 v{KA + 1}, v{KA + 2}, v{KA + 3}")
        e(f"v_lshlrev_b32 v{CC}, 16, v{vPAR + 2}")
        e(f"v_lshlrev_b32 v{CC + 1}, 16, v{vPAR + 3}")
        e(f"v_and_b32 v{CC + 2}, 0xffff0000, v{vPAR + 2}")
        e(f"v_and_b32 v{CC + 3}, 0xffff0000, v{vPAR + 3}")
        e(f"v_lshlrev_b32 v{KA + 2}, 16, v{KA + 1}")
        e(f"v_and_b32 v{KA + 3}, 0xffff0000, v{KA + 1}")
        for m in range(2):
            e(f"v_mul_f32 v{KA + 2 + m}, v{KA + 2 + m}, v{KA}")
            e(f"v_mul_f32 v{KA + 4 + m}, v{KA + 4 + m}, v{KA}")
        for m in range(2):
            e(f"v_mul_f32 v{KA + 2 + m}, {hex(f2u(-LOG2E))}, v{KA + 2 + m}")
            e(f"v_mul_f32 v{KA + 4 + m}, {hex(f2u(1.0 / (2 * math.pi)))}, v{KA + 4 + m}")

    def k_role0():
        W8, W16, T2 = 152, 156, 140
        ch = [[160, 164], [168, 172]]
        e(f"v_add_u32 v{WA}, {YR0 * XYP}, v{WA}")
        cexp(W8, 8, TM)
        e("v_mov_b32 v144, 0x3c00")
        e("v_mov_b32 v145, 0x3c00")
        cmul(W16, W8, W8, TM)
        put(W8, 33, False)
        cur = [W16, W8]
        for j in range(2, 32, 2):
            n0 = cur[0] if j == 2 else ch[0][(j // 2) & 1]
            n1 = ch[1][(j // 2) & 1]
            for m in range(2):
                if j > 2:
                    e(f"v_pk_mul_f32 {vr(TM + 2 * m, 2)}, {vr(cur[0] + 2 * m, 2)}, {vr(W16 + 2 * m, 2)} op_sel_hi:[0,1]")
                e(f"v_pk_mul_f32 {vr(T2 + 2 * m, 2)}, {vr(cur[1] + 2 * m, 2)}, {vr(W16 + 2 * m, 2)} op_sel_hi:[0,1]")
            for m in range(2):
                if j > 2:
                    e(f"v_pk_fma_f32 {vr(n0 + 2 * m, 2)}, {vr(cur[0] + 2 * m, 2)}, {vr(W16 + 2 * m, 2)}, {vr(TM + 2 * m, 2)} op_sel:[1,1,0] op_sel_hi:[1,0,1] neg_lo:[0,1,0]")
                e(f"v_pk_fma_f32 {vr(n1 + 2 * m, 2)}, {vr(cur[1] + 2 * m, 2)}, {vr(W16 + 2 * m, 2)}, {vr(T2 + 2 * m, 2)} op_sel:[1,1,0] op_sel_hi:[1,0,1] neg_lo:[0,1,0]")
            put(n0, 32 + j, False)
            put(n1, 33 + j, False)
            cur = [n0, n1]

    def k_role1():
        MX = 136
        e(f"v_max_f32 v{MX}, |v{CC}|, |v{CC + 1}|")
        e(f"v_max3_f32 v{MX}, |v{CC + 2}|, |v{CC + 3}|, v{MX}")
        red("v_max_f32", MX, MX + 1, True)
        e(f"v_frexp_exp_i32_f32 v{MX}, v{MX}")
        e(f"v_add_f32 v{KA}, v{KA}, v{KA}")
        e(f"v_ldexp_f32 v{MX + 2}, v{KA}, v{MX}")
        e(f"v_mov_b32 v{MX + 3}, v{KA + 7}")
        e(f"v_sub_u32 v{MX}, 0, v{MX}")
        for i in range(4):
            e(f"v_ldexp_f32 v{CC + i}, v{CC + i}, v{MX}")
        e(f"v_add_u32 v{MX + 1}, {sKR}, v{vYS}")
        e(f"v_mov_b32 v{MX}, 0")
        g.lds(f"ds_write_b64 v{MX + 1}, {vr(MX + 2, 2)} offset:{YSO}", "xy")
        g.lds(f"ds_write_b32 v{MX + 1}, v{MX}", "xy")
        Z, Q, Q4 = 156, 160, 164
        cexp(Z, 1, TM)
        cexp(Q, 256, TM)
        cexp(Q4, 1024, TM)
        X = [168 + 4 * i for i in range(8)]
        X[0] = CC
        put(CC, 0, True)
        for s in range(1, 8):
            cmul(X[s], X[s - 1], Z, TM)
            put(X[s], s, True)
        R8 = [200 + 4 * i for i in range(4)]
        for s in range(4):
            cmul(R8[s], X[2 * s], Q, TM)
            put(R8[s], 8 + s, True)
        R12 = [216, 220]
        for s in range(2):
            cmul(R12[s], R8[2 * s], Q, TM)
            put(R12[s], 12 + s, True)
        for s in range(2):
            cmul(X[1 + 2 * s], R12[s], Q, TM)
            put(X[1 + 2 * s], 14 + s, True)
        cmul(R8[0], CC, Q4, TM)
        put(R8[0], 16, True)
        cmul(R8[1], R8[0], Q, TM)
        put(R8[1], 17, True)
        cmul(R8[3], R8[1], Q, TM)
        put(R8[3], 18, True)
        cmul(R8[1], R8[3], Q, TM)
        put(R8[1], 19, True)
        cmul(R8[2], R8[0], Q4, TM)
        put(R8[2], 20, True, lastrow=True)

    def kgen(sfx, units, every):
        k_setup()
        e(f"s_cmp_lg_u32 {sRHO}, 0")
        e(f"s_cbranch_scc1 L_role1{sfx}")
        vm_s, lg_s = list(g.vm), list(g.lg)
        us = list(units)
        interleave(k_role0, us, every)
        emit_units(us)
        e(f"s_branch L_kbar{sfx}")
        align()
        g.lab(f"L_role1{sfx}")
        g.vm, g.lg = vm_s, lg_s
        us = list(units)
        interleave(k_role1, us, every)
        emit_units(us)
        g.lab(f"L_kbar{sfx}")
        stamp("kvalu_end")

    def kgen_mfma():
        KF = 64
        for ks in range(8):
            g.lds(f"ds_read_b128 {vr(KF + 4 * ks, 4)}, v{vKA_A} offset:{64 * ks}", ("ka", ks))
            g.lds(f"ds_read_b128 {vr(128 + 4 * ks, 4)}, v{vKA_B} offset:{YR0 * XYP + 64 * ks}", ("kb0", ks))
            g.lds(f"ds_read_b128 {vr(160 + 4 * ks, 4)}, v{vKA_B} offset:{(YR0 + 16) * XYP + 64 * ks}", ("kb1", ks))
        KD = 96
        for ks in range(8):
            g.wlg(("kb1", ks))
            e(f"v_mfma_f32_16x16x32_f16 {vr(KD, 4)}, {vr(KF + 4 * ks, 4)}, {vr(128 + 4 * ks, 4)}, {'0' if ks == 0 else vr(KD, 4)}")
            e(f"v_mfma_f32_16x16x32_f16 {vr(KD + 4, 4)}, {vr(KF + 4 * ks, 4)}, {vr(160 + 4 * ks, 4)}, {'0' if ks == 0 else vr(KD + 4, 4)}")
        g.nop(7)
        for i in range(8):
            g.lds(f"ds_write_b32 v{SC + i}, v{KD + i}", "tw")

    vm0 = ["cpf"] + ["ln"] * 5
    u0, u0b = split_units(dma_units(0), opt.get("nf", 4)) if opt.get("nf", 0) else ([], dma_units(0))
    def g1_early():
        e("v_mul_u32_u24 v7, 1280, v4")
        e("v_xor_b32 v8, v5, v6")
        e("v_xor_b32 v9, 4, v8")
        e(f"v_lshl_add_u32 v{vXO}, v8, 4, v7")
        e(f"v_lshl_add_u32 v{vXO + 1}, v9, 4, v7")
        e(f"v_add_u32 v{vXO + 1}, {8 * 1280 - 1024}, v{vXO + 1}")
        e(f"s_lshl2_add_u32 {sXS}, {sM}, {sW}")
        e(f"s_mul_i32 {sXS}, {sXS}, {64 * 1280}")
        e(f"s_lshl_b32 {sXM0}, {sW}, 13")
        e(f"s_add_u32 {sXM0}, {sXM0}, 16384")
        for i in range(2, 8):
            d = 16 * 1280 - 1024 * ((i & 3) - ((i - 2) & 3))
            e(f"v_add_u32 v{vXO + i}, {d}, v{vXO + i - 2}")
        rest_setup()
    interleave(g1_early, u0, opt.get("pe0", 1))
    assert not u0
    e(f"s_mov_b32 {sRND}, 1")
    if not opt.get("rl2", 1):
        rest_loads()
    else:
        e(f"s_mov_b32 {sHS1}, {sT1}")
        e("v_mov_b32 v14, v10\nv_mov_b32 v15, v11")
    if diag and not opt.get("dbg"):
        e("s_memrealtime s[100:101]\ns_waitcnt lgkmcnt(0)\nv_writelane_b32 v127, s100, 57")
    aE, aL = addr_items(XYB_G1, TB_G1)
    table_code(TB_G1)
    run_items(aE)
    rb1()
    if opt.get("rl2", 1):
        e(f"s_mov_b32 {sT1}, {sHS1}")
        e("v_mov_b32 v10, v14\nv_mov_b32 v11, v15")
        rest_loads()
    if diag and not opt.get("dbg"):
        e("s_memrealtime s[100:101]\ns_waitcnt lgkmcnt(0)\nv_writelane_b32 v127, s100, 58")
    g.wvm("ln")
    stamp("par_data")
    u0c, u0d = split_units(u0b, opt.get("nl", 8)) if opt.get("nl", 8) else ([], u0b)
    def ln_late():
        n0_ = len(g.L)
        ln_code()
    if opt.get("lnskip"):
        n0_ = len(g.L)
        ln_code()
        body_ = g.L[n0_:]
        del g.L[n0_:]
        g.L += body_[:opt["lnskip"]]
        interleave(lambda: g.L.extend(body_[opt["lnskip"]:]), u0c, opt.get("pe1", 16))
    else:
        interleave(ln_code, u0c, opt.get("pe1", 16))
    emit_units(u0c)
    ln_tail()
    stamp("ln_done")
    g.wvm("ep")
    tag_code()
    e(f"s_lshl_b32 {sT3}, s2, 2")
    e(f"s_add_u32 {sT3}, {sT3}, {LNF}")
    e(f"s_cmp_eq_u32 {sW}, 0")
    e(f"s_cselect_b32 {sT3}, {sT3}, {OOB}")
    e("s_barrier")
    uK, uR = split_units((u0d + csl_units() + dma_units(1)) if opt.get('csf') else (u0d + dma_units(1) + csl_units()), opt.get("nk", 99))
    kgen("g", uK, opt.get("pek", 11))
    g.wvm("lnst")
    g.wlg0()
    e("s_barrier")
    flag_store(sT3)
    interleave(kgen_mfma, uR, opt.get("pem", 6))
    emit_units(uR)
    stamp("kdone")
    e("v_and_b32 v2, 15, v0")
    e("v_lshrrev_b32 v3, 4, v0")
    e("v_bfe_u32 v4, v0, 1, 3")
    e("v_xor_b32 v4, v4, v3")
    e(f"v_lshl_add_u32 v2, v2, 7, {sXM0}")
    e(f"v_lshl_add_u32 v{vBA}, v4, 4, v2")
    e(f"v_xor_b32 v{vBA + 1}, 64, v{vBA}")
    e(f"v_add_u32 v{vBA + 2}, {2 * SLOT}, v{vBA}")
    e(f"v_add_u32 v{vBA + 3}, {2 * SLOT}, v{vBA + 1}")
    e("v_bfe_u32 v6, v0, 2, 2")
    e("v_and_b32 v7, 3, v0")
    e("v_lshl_add_u32 v2, v3, 3, v6")
    e("v_lshlrev_b32 v2, 7, v2")
    e("v_lshl_add_u32 v2, v7, 3, v2")
    e("v_lshrrev_b32 v6, 1, v6")
    e("v_and_b32 v3, 1, v3")
    e("v_lshl_add_u32 v6, v3, 1, v6")
    e(f"v_lshl_add_u32 v{vAA}, v6, 5, v2")
    for i in range(1, 4):
        e(f"v_xor_b32 v{vAA + i}, {32 * i}, v{vAA}")
    for i in range(4):
        e(f"v_add_u32 v{vAA + 4 + i}, {2 * SLOT}, v{vAA + i}")

    def touch_setup():
        return [f"s_lshr_b32 {sF0}, {sQ}, 2", f"s_mul_i32 {sF0}, {sF0}, 10", f"v_add_u32 v2, {sF0}, v0",
                "v_min_u32 v2, 63, v2", "v_mul_u32_u24 v2, 1280, v2", f"v_mov_b32 v3, {OOB}",
                f"v_cmp_lt_u32 vcc, 9, v0\ns_nop 1\nv_cndmask_b32 v{vTO}, v2, v3, vcc",
                f"s_and_b32 {sF0}, {sQ}, 3", f"s_lshl_b32 {sF0}, {sF0}, 1", f"s_add_u32 {sF0}, {sF0}, {sRHO}",
                f"s_lshl_b32 {sF0}, {sF0}, 3", f"s_lshl_b32 {sF1}, {sW}, 4", f"s_sub_u32 {sF0}, {sF0}, {sF1}",
                f"s_add_u32 {sF0}, {sF0}, 64", f"v_add_u32 v2, {sF0}, v0", "v_mul_u32_u24 v2, 3456, v2",
                f"v_cmp_lt_u32 vcc, 7, v0\ns_nop 1\nv_cndmask_b32 v{vTO + 1}, v2, v3, vcc",
                ]

    def touch_units(ahead):
        return [f"s_add_u32 {sT4}, {sXS}, {128 * ahead}",
                ("vm", f"buffer_load_dword v{vFL + 4}, v{vTO}, {SX}, {sT4} offen", "touch"),
                f"s_add_u32 {sT4}, {sWSO}, {64 * 3456 * (ahead - 1)}" if ahead >= 1 else f"s_sub_u32 {sT4}, {sWSO}, {64 * 3456}",
                ("vm", f"buffer_load_dword v{vFL + 4}, v{vTO + 1}, {STW}, {sT4} offen", "touch")]

    def Breg(K, lt):
        return vr(96 + 4 * lt, 4) if K % 2 == 0 else ar(144 + 4 * lt, 4)

    def frag_reads(k):
        stage, ks = divmod(k, 4)
        K, mat = divmod(k, 2)
        Ks = K & 1
        sl = stage % 3
        so = 0 if sl == 2 else sl * SLOT
        A = vAF + 16 * (k & 1)
        def bread(lt):
            return ("lds", f"ds_read_b128 {Breg(K, lt)}, v{vBA + (2 if sl == 2 else 0) + Ks} offset:{so + 2048 * lt}", ("B", K))
        def aread(t, h):
            return ("lds", f"ds_read_b64_tr_b16 {vr(A + 4 * t + 2 * h, 2)}, v{vAA + (4 if sl == 2 else 0) + t} offset:{so + mat * 8192 + Ks * 4096 + h * 512}", ("A", k, t))
        if mat == 0:
            return [bread(0), aread(0, 0), aread(0, 1), bread(1), bread(2), bread(3), aread(1, 0), aread(1, 1), aread(2, 0), aread(2, 1), aread(3, 0), aread(3, 1)]
        return [aread(t, h) for t in range(4) for h in range(2)]

    e(f"s_mov_b32 {sMASK}, 0xffff0000")
    g.wvm(("dma", 0))
    g.wlg0()
    e("s_barrier")
    stamp("g1_start")
    stamp("c_g1s", cyc=True)
    for it in frag_reads(0):
        g.do(it)

    PACE = opt.get("pace", 2)
    STQ = [38, 48, 52, 16]
    NG = 320
    gaps = [[] for _ in range(NG)]
    head = [[] for _ in range(NG)]
    pre = {}
    vq_big = []

    sq = []
    def add_group(units, earliest, small=False, pace=None):
        vq = sq if small else vq_big
        prel = []
        for u in units:
            if isinstance(u, tuple) and u[0] == "m0":
                prel.append(u[1])
            elif isinstance(u, tuple) or callable(u):
                vq.append([earliest, prel, u, [], pace])
                prel = []
            else:
                prel.append(u)
        if prel:
            vq[-1][3] += prel

    def Bgap(s):
        return 32 * s - 8

    PKV = 48
    pk_fill = [f"s_mov_b32 {sF0}, {0x100000000 // 20 + 1}", f"s_lshl_b32 {sF1}, {sW}, 6"]
    for i3 in range(3):
        pk_fill += [f"v_add_u32 v2, {sF1}, v0"] + ([f"v_add_u32 v2, {256 * i3}, v2"] if i3 else []) + [
            f"v_mul_hi_u32 v3, v2, {sF0}", "v_mul_u32_u24 v12, 20, v3", "v_sub_u32 v12, v2, v12",
            "v_mul_u32_u24 v3, 1280, v3", f"v_lshl_add_u32 v{PKV + i3}, v12, 4, v3"]
    pk_fill += [f"s_lshr_b32 {sHS0}, {sCP}, 2", f"s_and_b32 {sHS1}, {sCP}, 3",
                f"s_mul_i32 {sT2}, {sHS0}, 40960", f"s_mul_i32 {sF0}, {sHS1}, 320", f"s_add_u32 {sT2}, {sT2}, {sF0}",
                f"s_lshl_b32 {sT3}, {sW}, 10"]
    pk_fill2 = ["v_lshrrev_b32 v2, 2, v0", "v_mul_u32_u24 v2, 320, v2", "v_and_b32 v3, 3, v0", "v_lshl_add_u32 v2, v3, 3, v2",
                f"s_lshl_b32 {sF0}, {sW}, 5", f"s_add_u32 {sF0}, {sF0}, {PKB}", f"v_add_u32 v{PKV + 3}, {sF0}, v2"]
    PDR = [0, 4, 8]
    pk_dma = []
    for i3 in range(3):
        pk_dma.append(("m0", f"s_add_u32 m0, {sT3}, {PKB + 4096 * i3}"))
        if i3 == 2:
            pk_dma.append(lambda: e(f"s_cmp_lt_u32 {sW}, 2\ns_cbranch_scc0 L_nopk3\nbuffer_load_dwordx4 v{PKV + 2}, {SWD}, {sT2} offen{NT} lds\nL_nopk3:") or g.vm.append("OPT"))
        else:
            pk_dma.append(("vm", f"buffer_load_dwordx4 v{PKV + i3}, {SWD}, {sT2} offen{NT} lds", "pkd"))
    pk_st = []
    pk_fill3 = [f"s_mul_i32 {sF1}, {sHS1}, 10", f"s_add_u32 {sF1}, {sF1}, {sW}", f"s_mul_i32 {sF2}, {sHS0}, 5"]
    for i3 in range(3):
        d = f"s{97 + i3}"
        pk_fill3 += [f"s_add_u32 {d}, {sF1}, {4 * i3}", f"s_mul_i32 {sF0}, {d}, 13108", f"s_lshr_b32 {sF0}, {sF0}, 16",
                     f"s_mul_i32 {sF0}, {sF0}, 265", f"s_add_u32 {d}, {d}, {sF0}", f"s_add_u32 {d}, {d}, {sF2}",
                     f"s_lshl_b32 {d}, {d}, 10", f"s_add_u32 {d}, {d}, {WDP}"]
        pk_st.append(("vm", f"buffer_store_dwordx4 {ar(PDR[i3], 4)}, v1, {SWS}, {d} offen sc1", "pks"))
    pk_fill3 += [f"s_cmp_lt_u32 {sW}, 2\ns_cselect_b32 s99, s99, {OOB}"]
    lnflag = [f"s_lshl_b32 {sT1}, s2, 2\ns_add_u32 {sT1}, {sT1}, {LNF}\ns_cmp_eq_u32 {sW}, 0\ns_cselect_b32 {sT1}, {sT1}, {OOB}",
              lambda: flag_store(sT1)]
    def wff():
        g.wvm("css")
        flag_store(sT1)
    wfflag = [f"s_lshl_b32 {sT1}, {sHS1}, 6\ns_add_u32 {sT1}, {sT1}, {sHS0}\ns_lshl_b32 {sT1}, {sT1}, 2\ns_add_u32 {sT1}, {sT1}, {sW}",
              f"s_lshl_b32 {sT1}, {sT1}, 2\ns_add_u32 {sT1}, {sT1}, {WF}", wff]

    add_group(dma_units(2), opt.get("d2", 4))
    add_group(pk_dma, opt.get("dpk", 20))
    for st_ in range(1, 8):
        if st_ == 2:
            add_group(pk_st, Bgap(2) + 6)
        add_group(dma_units(st_ + 2), Bgap(st_) + {1: opt.get("d3", 10), 2: opt.get("d4", 20), 3: opt.get("d5", 20), 4: opt.get("d6", 0)}.get(st_, 0))
        if st_ in (4, 5, 6):
            tu = tab_units()
            add_group(tu[5 * (st_ - 4):5 * (st_ - 3)], 0)
    G0 = 8 * KCHK + 4
    for phi in range(P0N):
        add_group(wd_load(phi), G0, pace=opt.get("tpace", 2))
    vsched = []
    occ = set()
    def place(q, pace):
        last = -pace
        for (ear, prel, vmi, post, pc) in q:
            gq = max(ear, last + (pc or pace))
            while gq in occ:
                gq += 1
            assert gq < NG - 1, gq
            occ.add(gq)
            gaps[gq - 1] += prel
            head[gq].append(vmi)
            gaps[gq] = post + gaps[gq]
            last = gq
            vsched.append((gq, vmi[2] if isinstance(vmi, tuple) else "flag"))
    place(vq_big, PACE)
    def gap_of(tag):
        return max(gq for gq, t in vsched if t == tag)
    for st_ in range(1, 8):
        ge = gap_of(("dma", st_ + 2)) + 2
        if st_ == 2:
            add_group([f"s_lshl_b32 {sT1}, {sFT}, 1\ns_add_u32 {sT1}, {sT1}, {sC}\ns_lshl_b32 {sT1}, {sT1}, 3\ns_add_u32 {sT1}, {sT1}, {sM}",
                       f"s_lshl_b32 {sT1}, {sT1}, 1\ns_add_u32 {sT1}, {sT1}, {sRHO}\ns_lshl_b32 {sT1}, {sT1}, 8\ns_add_u32 {sT1}, {sT1}, {CSP}",
                       ("vm", f"buffer_store_dwordx2 {vr(4, 2)}, v6, {SWS}, {sT1} offen sc1", "css")], (gap_of(("dma", opt["csg"])) + 1) if opt.get("csg") else gap_of("pks") + 1, True)
        if st_ == 3:
            add_group(wfflag, gap_of(("dma", opt.get("csg", 3) + 1)) + 1, True)
        if st_ == 5:
            add_group([("vm", f"buffer_load_dwordx4 {vr(vFL, 4)}, v{vFA}, {SWS}, 0 offen sc1", "poll"),
                       ("vm", f"buffer_load_dwordx4 {vr(PKV, 4)}, v{vFA + 1}, {SWS}, 0 offen sc1", "poll")], 8 * KCHK - 22, True)
        if TOUCH and st_ + TOUCH <= 9:
            if st_ == 1:
                for a in range(0, TOUCH - 3):
                    add_group(touch_units(a), ge, True)
            add_group(touch_units(TOUCH - 3), ge, True)
        if st_ == 6 and opt.get('wtouch'):
            for t3 in range(3):
                add_group([f"s_and_b32 {sT4}, {sLT}, 3\ns_mul_i32 {sT4}, {sT4}, {140 * 128}\ns_add_u32 {sT4}, {sT4}, {sWDS}" if t3 == 0 else f"s_add_u32 {sT4}, {sT4}, {48 * 128}",
                           ("vm", f"buffer_load_dword v{vFL + 4}, v{PKV + 1}, {SWS}, {sT4} offen sc1", "wtouch")], 8 * KCHK + 4 + 4 * t3, True)
    add_group([f"s_lshl_b32 {sT1}, {sFT}, 1\ns_add_u32 {sT1}, {sT1}, {sC}\ns_lshl_b32 {sT1}, {sT1}, 5\ns_add_u32 {sT1}, {sT1}, {sRHO}",
               f"s_lshl_b32 {sT1}, {sT1}, 7\ns_add_u32 {sT1}, {sT1}, {CSP}",
               ("vm", f"buffer_load_dwordx4 {vr(112, 4)}, v{vCS}, {SWS}, {sT1} offen sc1", "csp"),
               ("vm", f"buffer_load_dwordx4 {vr(20, 4)}, v{vCS}, {SWS}, {sT1} offen offset:2048 sc1", "csp")], max(G0, gap_of(("dma", 9)) - 1), True)
    add_group([f"s_lshl_b32 {sT1}, {sM}, 2\ns_add_u32 {sT1}, {sT1}, {sW}\ns_lshl_b32 {sT1}, {sT1}, 10\ns_add_u32 {sT1}, {sT1}, {STATS}",
               ] + [("vm", f"buffer_load_dwordx4 {vr(STQ[lt], 4)}, v15, {SWS}, {sT1} offen offset:{256 * lt} sc1", "stats") for lt in range(4)],
              max(G0, gap_of(("dma", 9)) - 5), True)
    add_group([x.replace(sF0, sT2).replace(sF1, sT3) if isinstance(x, str) else (x[0], x[1].replace(sF0 + ' ', sT2 + ' ').replace(sF1 + ' ', sT3 + ' '), x[2]) for x in u_loads(sCP, 116)], gap_of(("wd", P0N - 1)) + 2 if opt.get("ulast", 1) else G0, True)
    place(sq, 1)
    vsched.sort()
    if opt.get("v"):
        print(vsched)
    assert all(gap_of(("dma", st_)) < Bgap(st_) - 12 for st_ in range(2, 10))
    assert gap_of("pkd") < Bgap(2) and gap_of("pks") < gap_of(("dma", 4)) - 24 and gap_of("poll") < 8 * KCHK - 6

    for i3 in range(3):
        for h in range(2):
            gaps[Bgap(2) + 1 + i3].append(("lds", f"ds_read_b64_tr_b16 {ar(PDR[i3] + 2 * h, 2)}, v{PKV + 3} offset:{128 * i3 + 16 * 320 * h}", "pk"))
    c4 = check4(vFL)
    gaps[8 * KCHK] += [("wvm", "poll")] + c4[0:2]
    gaps[8 * KCHK + 1] += c4[2:5]
    def chk():
        sl = g.newlab("Lslow")
        bk = g.newlab("Lback")
        for x in check4(PKV)[:6]:
            e(x)
        e(f"v_or3_b32 v{vFL}, v{vFL}, v{vFL + 3}, v{PKV}")
        e(c4[6])
        e(f"s_cbranch_vccnz {sl}")
        g.lab(bk)
        g.slow.append((sl, bk, [(vFA, True), (vFA + 1, True)]))
    gaps[8 * KCHK + 2].insert(0, chk)

    CA = [4, 5, 6, 7, 42, 43, 44, 45]
    csum = []
    for j5 in range(5):
        csum.append(("wvm", ("csl", j5)))
        for d in range(4):
            r = CSR[j5] + d
            if j5 == 0:
                csum += [f"v_lshlrev_b32 v{CA[2 * d]}, 16, v{r}", f"v_and_b32 v{CA[2 * d + 1]}, {sMASK}, v{r}"]
            else:
                csum += [f"v_lshlrev_b32 v8, 16, v{r}", f"v_and_b32 v9, {sMASK}, v{r}",
                         f"v_add_f32 v{CA[2 * d]}, v{CA[2 * d]}, v8", f"v_add_f32 v{CA[2 * d + 1]}, v{CA[2 * d + 1]}, v9"]
    csum += ["s_nop 1"]
    csum += [f"v_permlane32_swap_b32 v{CA[c]}, v{CA[c + 4]}" for c in range(4)]
    csum += [f"v_add_f32 v{CA[c]}, v{CA[c]}, v{CA[c + 4]}" for c in range(4)]
    csum += ["s_nop 1"]
    csum += [f"v_permlane16_swap_b32 v{CA[c]}, v{CA[c + 2]}" for c in range(2)]
    csum += ["s_nop 0"]
    csum += [f"v_add_f32 v{CA[c]}, v{CA[c]}, v{CA[c + 2]}" for c in range(2)]
    csum += ["v_and_b32 v6, 7, v0", "v_lshlrev_b32 v6, 5, v6"]
    csum += [f"v_add_f32 v{CA[c]}, v{CA[c]}, v{CA[c]} row_ror:8" for c in range(2)]
    csum += ["v_lshrrev_b32 v7, 4, v0", "v_lshl_add_u32 v6, v7, 3, v6", f"v_mov_b32 v7, {OOB}",
             "v_and_b32 v8, 8, v0", "v_cmp_ne_u32 vcc, 0, v8\ns_nop 1\nv_cndmask_b32 v6, v6, v7, vcc"]
    fillq = pk_fill + (touch_setup() if TOUCH else []) + pk_fill2[:7] + pk_fill3
    n_a = len(fillq)
    fillq += csum
    n_csum = len(fillq)
    n_early = len(pk_fill)
    fillq += pk_fill2[7:]
    n_early2 = len(fillq)
    fillq += [f"v_min_u32 v2, 53, v0", f"s_lshr_b32 {sF0}, {sDT}, 1", f"s_lshl_b32 {sF0}, {sF0}, 10",
              f"s_add_u32 {sF0}, {sF0}, {WF}", f"v_lshl_add_u32 v2, v2, 4, {sF0}",
              "v_and_b32 v3, 7, v0", "v_mul_u32_u24 v3, 27, v3", f"v_add_u32 v3, {sFT}, v3", "v_and_b32 v12, 3, v3",
              "v_lshrrev_b32 v3, 2, v3", "v_lshl_add_u32 v3, v12, 6, v3", "v_lshlrev_b32 v3, 4, v3", f"v_add_u32 v3, {WF}, v3",
              f"v_cmp_lt_u32 vcc, 55, v0\ns_nop 1\nv_cndmask_b32 v{vFA + 1}, v2, v3, vcc"]
    it_ = aL.index(("wvm", "tab"))
    fillq += [f"v_add_u32 v{vFA}, {LNF}, v1"] + aL[:it_]
    n_mid = len(fillq)
    late_fill = [("at", gap_of("tab") + 14)] + aL[it_:]
    fillq += ["v_lshrrev_b32 v3, 4, v0", "v_lshlrev_b32 v13, 4, v3", f"v_add_u32 v13, {CSB}, v13", "v_lshrrev_b32 v3, 5, v0",
              "v_and_b32 v2, 7, v0", "v_lshlrev_b32 v12, 4, v2", "v_lshl_add_u32 v12, v3, 3, v12", "v_bfe_u32 v3, v0, 4, 1",
              "v_lshl_add_u32 v12, v3, 2, v12", f"s_lshl_b32 {sF0}, {sW}, 7", f"s_add_u32 {sF0}, {sF0}, {CSB}",
              f"v_add_u32 v12, {sF0}, v12", "v_lshrrev_b32 v3, 3, v0", "v_lshlrev_b32 v3, 8, v3", f"v_lshl_add_u32 v{vCS}, v2, 4, v3",
              "v_and_b32 v15, 15, v0", "v_lshlrev_b32 v15, 4, v15"]
    tail_fill = [f"s_lshl_b32 {sHS0}, {sM}, 2", f"s_add_u32 {sHS0}, {sHS0}, {sW}", f"s_lshl_b32 {sPEND}, {sHS0}, 5",
                 f"s_mul_i32 {sHS0}, {sHS0}, {4 * 54}", f"s_lshl_b32 {sT2}, {sFT}, 1", f"s_add_u32 {sHS0}, {sHS0}, {sT2}",
                 f"s_lshl_b32 {sHS0}, {sHS0}, 10", f"s_add_u32 {sHS0}, {sHS0}, {HB}",
                 f"s_add_u32 {sPEND}, {sPEND}, {sFT}", f"s_lshl_b32 {sPEND}, {sPEND}, 7", f"s_add_u32 {sPEND}, {sPEND}, {HF}"]
    cs_fill = [("wvm", "csp")] + [f"v_add_f32 v{112 + c}, v{112 + c}, v{20 + c}" for c in range(4)] + ["s_nop 0",
               "v_permlane32_swap_b32 v112, v114", "v_permlane32_swap_b32 v113, v115", "s_nop 0", "v_add_f32 v112, v112, v114", "v_add_f32 v113, v113, v115",
               "s_nop 1", "v_permlane16_swap_b32 v112, v113", "s_nop 0", "v_add_f32 v112, v112, v113", "s_nop 1",
               "v_add_f32 v112, v112, v112 row_ror:8", ("lds", "ds_write_b32 v12, v112", "csw")]
    nf_total = len(fillq)

    def cost(it):
        if isinstance(it, str):
            return it.count("\n") + 1
        return 1
    CAP = opt.get("cap", 4)
    for k in range(40):
        stage, ks = divmod(k, 4)
        A = vAF + 16 * (k & 1)
        gk = [head[8 * k + i] + gaps[8 * k + i] for i in range(8)]
        body = [[] for _ in range(8)]
        if k + 1 < 40:
            fr = frag_reads(k + 1)
            for i, it in enumerate(fr):
                body[i // 2 if len(fr) == 12 else (3 * i) // 4].append(it)
        if k == 39:
            assert not late_fill, len(late_fill)
            for j in range(8):
                dst = (64 + 4 * j) if j < 4 else (96 + 4 * (j - 4))
                body[1 + j // 2].append(("lds", f"ds_read_b128 {vr(dst, 4)}, v13 offset:{64 * j}", "cs0"))
        else:
            load = [sum(map(cost, gk[i])) + len(body[i]) + (1 if i in (3, 7) else 0) for i in range(8)]
            q = fillq if fillq else (tail_fill if (k >= 22 and tail_fill) else late_fill)
            if k == KCHK or (q is late_fill and k < 10):
                q = []
            if k in (33, 34) and cs_fill:
                q = cs_fill
            cap = opt.get('cape', 5) if k < opt.get('kc5', 9) else (5 if k in (33, 34) else opt.get('capl', 3))
            for i in range(8):
                while q and load[i] + cost(q[0]) <= cap + (2 if cost(q[0]) > 1 else 0):
                    if isinstance(q[0], tuple) and q[0][0] == "at":
                        if 8 * k + i < q[0][1]:
                            break
                        q.pop(0)
                        continue
                    it = q.pop(0)
                    body[i].append(it)
                    load[i] += cost(it)
            if k == 2:
                assert nf_total - len(fillq) >= n_early, (nf_total - len(fillq), n_early)
            if k == 5:
                assert nf_total - len(fillq) >= n_a
            if 8 * k + 8 >= gap_of("css") - 1:
                assert nf_total - len(fillq) >= n_csum, (nf_total - len(fillq), n_csum)
            if k == KCHK - 4:
                assert nf_total - len(fillq) >= n_mid
            if 8 * k + 8 > gap_of("stats") - 4:
                assert not fillq, (k, len(fillq))
        if ks == 3 and stage < 9:
            stamp(f"c_w{stage + 1}", cyc=True)
            g.wlg0()
            if stage == 1:
                g.wvm("OPT")
            g.wvm(("dma", stage + 1))
            e("s_barrier")
            stamp(f"c_b{stage + 1}", cyc=True)
        K, mat = divmod(k, 2)
        for i in range(8):
            items = []
            for it in head[8 * k + i]:
                if isinstance(it, tuple) and it[2] == "pks":
                    items.append(("wlg", "pk"))
                items.append(it)
            items += body[i] + gaps[8 * k + i]
            tot = sum(map(cost, items))
            acc_, sub = 0, [[], []]
            for it in items:
                sub[0 if 2 * acc_ + cost(it) <= tot + (1 if not sub[0] else 0) else 1].append(it)
                acc_ += cost(it)
            flat = sub[0] + sub[1]
            assert flat == items
            for h2 in range(2):
                m = 2 * i + h2
                t, lt = divmod(m, 4)
                if k == 0:
                    g.wlg(("A", k, t))
                    if m == 1:
                        g.wlg(("B", K))
                elif m == 0:
                    g.wlg(("A", k, 1))
                elif m == 8:
                    g.wlg(("A", k, 3))
                D = vACC + 4 * ((mat * 4 + t) * 4 + lt)
                Cs = "0" if K == 0 else vr(D, 4)
                e(f"v_mfma_f32_16x16x32_bf16 {vr(D, 4)}, {vr(A + 4 * t, 4)}, {Breg(K, lt)}, {Cs}")
                for it in sub[h2]:
                    g.do(it)
    assert not tail_fill and not cs_fill and not late_fill, len(late_fill)
    stamp("c_g1e", cyc=True)
    stamp("g1_loop_end", flush=True)

    tmps = [28, 30, 32, 34]
    g.wvm("stats")
    g.wlg("cs0")
    align()
    ewq = [wd_load(phi) for phi in range(P0N, P1)]
    def ewl():
        if ewq:
            for it in ewq.pop(0):
                g.do(it)
    for lt in range(4):
        st = STQ[lt]
        if lt:
            e(f"s_add_u32 {sHS0}, {sHS0}, {54 * 1024}")
        for a in range(2):
            O = 20 + 4 * a
            ps = range(4)
            Gt = [vACC + 4 * ((2 * a + (p >> 1)) * 4 + lt) + 2 * (p & 1) for p in ps]
            Ut = [x + 64 for x in Gt]
            csg = [64 + 4 * (2 * a + (p >> 1)) + 2 * (p & 1) for p in ps]
            csu = [x + 32 for x in csg]
            for p in ps:
                e(f"v_pk_fma_f32 {vr(Gt[p], 2)}, {vr(csg[p], 2)}, {vr(st, 2)}, {vr(Gt[p], 2)} op_sel_hi:[1,0,1]")
            for p in ps:
                e(f"v_pk_mul_f32 {vr(tmps[p], 2)}, {vr(Gt[p], 2)}, {vr(Gt[p], 2)}")
            for p in ps:
                e(f"v_pk_fma_f32 {vr(tmps[p], 2)}, {vr(tmps[p], 2)}, {vr(st, 2)}, {vr(st + 2, 2)} op_sel:[0,1,0] op_sel_hi:[1,1,0]")
            for p in ps:
                e(f"v_pk_mul_f32 {vr(tmps[p], 2)}, {vr(tmps[p], 2)}, {vr(Gt[p], 2)}")
            for p in ps:
                e(f"v_exp_f32 v{tmps[p]}, v{tmps[p]}")
                e(f"v_exp_f32 v{tmps[p] + 1}, v{tmps[p] + 1}")
            ewl()
            for p in ps:
                e(f"v_pk_fma_f32 {vr(Ut[p], 2)}, {vr(csu[p], 2)}, {vr(st, 2)}, {vr(Ut[p], 2)} op_sel_hi:[1,0,1]")
            for p in ps:
                e(f"v_pk_fma_f32 {vr(tmps[p], 2)}, {vr(tmps[p], 2)}, {vr(st + 2, 2)}, {vr(st + 2, 2)} op_sel:[0,1,1] op_sel_hi:[1,1,1]")
            for p in ps:
                e(f"v_rcp_f32 v{tmps[p]}, v{tmps[p]}")
                e(f"v_rcp_f32 v{tmps[p] + 1}, v{tmps[p] + 1}")
            ewl()
            for p in ps:
                e(f"v_pk_mul_f32 {vr(Gt[p], 2)}, {vr(Gt[p], 2)}, {vr(Ut[p], 2)}")
            for p in ps:
                e(f"v_pk_mul_f32 {vr(Gt[p], 2)}, {vr(Gt[p], 2)}, {vr(tmps[p], 2)}")
            for p in ps:
                e(f"v_cvt_pk_bf16_f32 v{O + p}, v{Gt[p]}, v{Gt[p] + 1}")
            g.vmem(f"buffer_store_dwordx4 {vr(O, 4)}, v1, {SWS}, {sHS0} offen offset:{1024 * a} sc1", "hst")
    assert not ewq and P1 <= 36
    stamp("c_epe", cyc=True)
    stamp("g1_epi_end", flush=True)
    e(f"s_mov_b32 {sMASK}, {sPEND}")
    e("s_nop 0")

    def rb2(adj=0):
        for i in range(22):
            e(f"v_accvgpr_read_b32 v{GA + i}, a{AST + 8 + i}")
        if adj:
            for i in range(22):
                e(f"v_subrev_u32 v{GA + i}, {adj}, v{GA + i}")
        for i in range(2, 8):
            e(f"v_accvgpr_read_b32 v{AK + i}, a{AS2 + 1 + i}")
        e("v_mov_b32 v4, 0\nv_mov_b32 v5, 0\nv_mov_b32 v6, 0\nv_mov_b32 v7, 0")
        e(f"ds_write_b128 v{vZ}, {vr(4, 4)}")
    rb2()

    Greg = [[224 + 4 * i for i in range(8)], [192 + 4 * i for i in range(8)]]
    FB = [128, 160]
    CACC = 64
    HRING = [16 + 4 * i for i in range(12)] + [104 + 4 * i for i in range(3)] + [128 + 4 * i for i in range(26)]
    NE = opt.get("ne", 15)
    P2 = opt.get("p2", 40)
    NB = len(HRING)
    YS, DK = 100, 101

    def hload(i):
        k, st = divmod(i, 14)
        r = HRING[i % NB]
        if st == 13:
            return [f"s_cmp_lt_u32 {sW}, 2\ns_cselect_b32 {sT4}, s{sG2 + 4 * k + 3}, {OOB}",
                    ("vm", f"buffer_load_dwordx4 {vr(r, 4)}, v1, {SWS}, {sT4} offen offset:1024 sc1", ("h", i))]
        return [("vm", f"buffer_load_dwordx4 {vr(r, 4)}, v1, {SWS}, s{sG2 + 4 * k + st // 4} offen offset:{(st % 4) * 1024} sc1", ("h", i))]

    def conv(last):
        tag = "L" if last else "E"
        g.lab("L_conv_last" if last else "L_conv_early")
        g.vm = ["u", "u"]
        g.lg = []
        def wd_e(phi):
            its = wd_load(phi)
            if len(its) > 1:
                its.insert(1, f"s_or_b32 {sT5}, {sT5}, {sK0}")
            return its
        if last:
            wq = [[f"s_add_u32 m0, {sXT}, {1024 * kk}", "s_nop 0",
                   ("vm", f"buffer_load_dwordx4 v{12 + kk}, {SX}, {sXO} offen lds", ("xt", 0))] for kk in range(3)]
            wq += [wd_load(phi) for phi in range(P1, 64)]
            for i7 in range(7):
                e(f"v_accvgpr_read_b32 v{9 + i7}, a{AS2 + 14 + i7}")
        else:
            wq = [wd_e(phi) for phi in range(0, P1)]
            g.vmem(f"buffer_load_dwordx4 {vr(vFL, 4)}, v{vFA + 1}, {SWS}, 0 offen sc1", "wfp")
        def wdl(n=1):
            for _ in range(n):
                if wq:
                    for it in wq.pop(0):
                        g.do(it)
        EG = 128
        for ch in range(2):
            for k in range(11):
                g.lds(f"ds_read_b32 v{EG + 12 * ch + k}, v{GA + 11 * ch + k}", ("eg", ch))
        g.lds(f"ds_read_b64 {vr(YS, 2)}, v{vYS} offset:{YSO}", "ysc")
        if last:
            wdl(3)
        g.wvm("u")
        g.lds(f"ds_write_b128 v{vUW}, {vr(vU, 4)}", "uw")
        g.lds(f"ds_write_b128 v{vUW}, {vr(vU + 4, 4)} offset:512", "uw")
        if last:
            e(f"s_or_b32 {sT1}, s2, {sW}")
            e(f"s_cmp_eq_u32 {sT1}, 0")
            e(f"s_cselect_b32 {sT1}, {EPOCH}, {OOB}")
            flag_store(sT1)
        EO = 64
        for ch in range(2):
            g.wlg(("eg", ch))
            align()
            for s in range(4):
                o = EO + 16 * ch + 4 * s
                for j in range(4):
                    e(f"v_cvt_pk_f16_f32 v{o + j}, v{EG + 12 * ch + s + 2 * j}, v{EG + 12 * ch + s + 2 * j + 1}")
                g.lds(f"ds_write_b128 v{vRW}, {vr(o, 4)} offset:{s * RCS + 1024 * ch}", "rw")
                if last and s % 2 == 1:
                    wdl()
            if last and ch == opt.get("hch", 1):
                e(f"s_waitcnt vmcnt({len(g.vm)})")
                flag_store(sMASK)
        if not last:
            e("s_waitcnt vmcnt(0)")
            flag_store(sMASK)
        if last:
            wdl(2)
        else:
            for x in check4(vFL):
                e(x)
            e("s_nop 0")
            e("s_cmp_eq_u64 vcc, 0")
            e(f"s_cselect_b32 {sK0}, 0, {OOB}")
        extra = [f"v_accvgpr_read_b32 v{4 + i}, a{AS2 + 9 + i}" for i in range(5)]
        extra += [f"s_lshl_b32 {sT1}, {sCP}, 1", f"s_add_u32 {sT1}, {sT1}, {sC}", f"s_lshl_b32 {sT1}, {sT1}, 12",
                  f"s_lshl_b32 {sT3}, {sRHO}, 11", f"s_add_u32 {sT1}, {sT1}, {sT3}", f"s_add_u32 {sHS0}, {sT1}, {ST}",
                  f"s_lshl_b32 {sT2}, {sCP}, 5", f"s_add_u32 {sT2}, {sT2}, {sW}",
                  f"s_lshl_b32 {sT2}, {sT2}, 2", f"s_add_u32 {sPEND}, {sT2}, {SF}"]
        if last:
            extra += [f"v_accvgpr_read_b32 v{vFA + i}, a{AS2 + 21 + i}" for i in range(2)]
            extra += ["v_min_u32 v3, 53, v0", "v_lshlrev_b32 v3, 7, v3",
                      f"s_lshl_b32 {sT0}, {sDT}, 2", f"s_add_u32 {sT0}, {sT0}, {sW}", f"s_mul_i32 {sT0}, {sT0}, {54 * 128}",
                      f"s_mul_i32 {sHS1}, {sLT}, {4 * 54 * 1024}", f"s_add_u32 {sHS1}, {sHS1}, {sT0}", f"s_add_u32 {sHS1}, {sHS1}, {HB}"]
        g.wlg0()
        e("s_barrier")
        stamp("c_cs" + tag, cyc=True)
        stamp("conv_start" + tag)

        def cls_reads(dl):
            bf = dl & 1
            out = []
            for s in range(8):
                out.append(("lds", f"ds_read_b128 {vr(Greg[bf][s], 4)}, v{vGB} offset:{512 * s + 64 * (3 - dl)}", ("G", dl, s)))
                off = 64 * (59 - dl - 8 * s)
                out.append(("lds", f"ds_read_b64 {vr(FB[bf] + 4 * s, 2)}, v{vFB} offset:{off}", ("F", dl, s)))
                out.append(("lds", f"ds_read_b64 {vr(FB[bf] + 4 * s + 2, 2)}, v{vFB} offset:{off + 8}", ("F", dl, s)))
            return out
        for it in cls_reads(0):
            g.do(it)
        order = sorted([(s, gg) for s in range(8) for gg in range(8) if s + gg < 8], key=lambda x: (max(x), x[0] + x[1]))
        seen = set()
        hq = []
        US, UD = 2, 96
        for dl in range(4):
            bf = dl & 1
            nxt = cls_reads(dl + 1) if dl < 3 else []
            if dl == 3:
                nxt = [("lds", f"ds_read_b64 {vr(128 + 2 * tt, 2)}, v6 offset:{512 * tt}", "us") for tt in range(4)]
                nxt += [None] * 6 + [("wlg", "us")]
                for tt in range(4):
                    for i in range(4):
                        src = 128 + 2 * tt + (i >> 1)
                        nxt.append(f"v_fma_mix_f32 v{136 + 4 * tt + i}, v{src}, v{DK}, 0 op_sel:[{i & 1},0,0] op_sel_hi:[1,0,0]")
            if last and dl == 3:
                g.wvm("hfp")
                e(f"v_cmp_ne_u32 vcc, v{vTAG}, v{vFL}")
                e("s_nop 0")
                e("s_cmp_eq_u64 vcc, 0")
                e(f"s_cselect_b32 {sK1}, 1, 0")
                e(f"s_cselect_b32 {sT0}, 0, {OOB}")
                tch = [f"s_or_b32 {sT4}, {sHS1}, {sT0}", ("vm", f"buffer_load_dword v{vFL + 4}, v3, {SWS}, {sT4} offen sc1", "ht")]
                TP = opt.get("tp", -1)
                for i in range(NE):
                    k_, st_ = divmod(i, 14)
                    if i == TP:
                        hq.append(tch)
                    pre_ = [f"s_or_b32 {sT4}, s{sG2 + 4 * k_ + st_ // 4}, {sT0}"] if (st_ % 4 == 0 or st_ == 13 or i == TP) else []
                    if st_ == 13:
                        pre_.append(f"s_cmp_lt_u32 {sW}, 2\ns_cselect_b32 {sT4}, {sT4}, {OOB}")
                    hq.append(pre_ + [("vm", f"buffer_load_dwordx4 {vr(HRING[i], 4)}, v1, {SWS}, {sT4} offen offset:{(st_ % 4) * 1024} sc1", ("he", i))])
                if TP == NE:
                    hq.append(tch)
            if dl > 0:
                g.wlg(("F", dl, 7))
            for mi, (s, gg) in enumerate(order):
                t = s + gg
                if dl == 0:
                    g.wlg(("G", dl, gg))
                    g.wlg(("F", dl, s))
                Cs = "0" if t not in seen else vr(CACC + 4 * t, 4)
                seen.add(t)
                e(f"v_mfma_f32_16x16x32_f16 {vr(CACC + 4 * t, 4)}, {vr(FB[bf] + 4 * s, 4)}, {vr(Greg[bf][gg], 4)}, {Cs}")
                start = 8 if dl == 0 else 1
                if mi >= start and nxt:
                    it = nxt.pop(0)
                    if it is not None:
                        g.do(it)
                elif extra:
                    g.do(extra.pop(0))
                if mi % 2 == 1 and extra and mi >= start:
                    g.do(extra.pop(0))
                mc = 36 * dl + mi
                if mc % 4 == 2:
                    nphi = wq[0][-1][2][1] if wq else 0
                    if last and mc == opt.get("hfp", 86):
                        assert not extra
                        g.vmem(f"buffer_load_dword v{vFL}, v{vFA}, {SWS}, 0 offen sc1", "hfp")
                    elif hq:
                        for it in hq.pop(0):
                            g.do(it)
                    elif wq and not (last and extra and nphi >= 48):
                        wdl()
            assert not nxt, len(nxt)
        while wq and not last:
            wdl()
        assert not wq and not extra, (len(wq), len(extra))
        def hl(n=1):
            for _ in range(n):
                if hq:
                    for it in hq.pop(0):
                        g.do(it)
        stamp("c_ce" + tag, cyc=True)
        stamp("conv_end" + tag)
        lr1 = g.newlab("Lfin1")
        lfd = g.newlab("Lfind")
        e(f"s_cmp_lg_u32 {sRHO}, 0")
        e(f"s_cbranch_scc1 {lr1}")
        lg_save, pst_save, sf_save = list(g.lg), list(g.pst), list(g.sfree)
        for rho in range(2):
            if rho == 1:
                g.lab(lr1)
                g.lg, g.pst, g.sfree = list(lg_save), list(pst_save), list(sf_save)
            own = CACC + 16 * rho
            oth = CACC + 16 * (1 - rho)
            g.nop(6)
            for tt in range(4):
                g.lds(f"ds_write_b128 v4, {vr(oth + 4 * tt, 4)} offset:{PB + 1024 * tt}", "pw")
            align()
            for tt in range(4):
                for i in range(4):
                    e(f"v_fma_f32 v{136 + 4 * tt + i}, v{own + 4 * tt + i}, v{YS}, v{136 + 4 * tt + i}")
            if rho == 0:
                e(f"s_branch {lfd}")
        g.lab(lfd)
        g.wlg0()
        e("s_barrier")
        for tt in range(4):
            g.lds(f"ds_read_b128 {vr(152 + 4 * tt, 4)}, v5 offset:{PB + 1024 * tt}", ("pr", tt))
        hl(2)
        for tt in range(4):
            g.wlg(("pr", tt))
            for i in range(4):
                e(f"v_fmac_f32 v{136 + 4 * tt + i}, v{152 + 4 * tt + i}, v{YS}")
            for h in range(2):
                e(f"v_cvt_pk_bf16_f32 v{128 + 2 * tt + h}, v{136 + 4 * tt + 2 * h}, v{136 + 4 * tt + 2 * h + 1}")
            g.lds(f"ds_write_b64 v7, {vr(128 + 2 * tt, 2)} offset:{512 * tt}", "sw")
            hl(1)
        hl(1)
        g.wlg0()
        for j in range(2):
            g.lds(f"ds_read_b128 {vr(88 + 4 * j, 4)}, v8 offset:{1024 * j}", ("sr", j))
        hl(9)
        assert not hq
        if not last:
            e(f"s_add_u32 {sCP}, {sCP}, 40")
            for i in range(22):
                e(f"v_add_u32 v{GA + i}, {2 * TC}, v{GA + i}")
            e(f"v_add_u32 v{vYS}, {2 * TC}, v{vYS}")
        for j in range(2):
            g.wlg(("sr", j))
            g.vmem(f"buffer_store_dwordx4 {vr(88 + 4 * j, 4)}, v1, {SWS}, {sHS0} offen offset:{1024 * j} sc1", "sst")
        if not last:
            for it in u_loads(sCP, 2):
                g.do(it)
            e(f"s_mov_b32 {sMASK}, {sPEND}")
            e(f"s_sub_u32 {sRND}, {sRND}, 1")
            e(f"s_cmp_lg_u32 {sRND}, 1")
            e("s_cbranch_scc1 L_conv_early")

    conv(True)

    e(f"s_cmp_lg_u32 {sK1}, 0")
    e("s_cbranch_scc1 L_hready")
    poll_block(vFA, False)
    if opt.get("tp", -1) >= 0:
        e(f"buffer_load_dword v{vFL + 4}, v3, {SWS}, {sHS1} offen sc1")
    for i in range(NE):
        for it in hload(i):
            e(it[1] if isinstance(it, tuple) else it)
    g.lab("L_hready")
    stamp("c_g2s", cyc=True)
    stamp("g2_start")
    g.vm = [("h", i) for i in range(NE)]
    AC = [64, 84]
    lateq = [wd_load(64 + i) for i in range(6)] + [hload(i) for i in range(NE, NB)]
    fq = ["v_lshrrev_b32 v8, 1, v0", "v_lshlrev_b32 v8, 12, v8", "v_and_b32 v2, 1, v0", "v_lshl_add_u32 v8, v2, 4, v8",
          f"s_mul_i32 {sT1}, {sW}, 15360", f"v_add_u32 v2, {sT1}, v1",
          f"s_mul_i32 {sHS1}, {sW}, 3072", f"s_add_u32 {sHS1}, {sHS1}, {STB}", f"v_lshl_add_u32 v3, v0, 3, {sHS1}",
          "v_and_b32 v4, 15, v0", "v_mul_u32_u24 v4, 160, v4", "v_lshrrev_b32 v5, 4, v0", "v_lshl_add_u32 v4, v5, 3, v4",
          f"v_add_u32 v4, {sXT}, v4", f"v_add_u32 v5, {sXT}, v1",
          ]
    SFP = opt.get("sfp", 38)
    BAR = opt.get("bar", 46)
    P0, P1r, P2r, XR, XU, SR, SU = 160, 180, 200, 128, 138, 220, 180
    xq = [f"s_mov_b32 {sMASK}, 0xffff0000", f"s_mov_b32 {sT2}, {hex(f2u(-LOG2E))}"]
    xq += [("lds", f"ds_read_b64 {vr(XR + 2 * j, 2)}, v4 offset:{32 * j}", "x") for j in range(5)] + [None, None, ("wlg", "x")]
    for p in range(10):
        xq += [f"v_lshlrev_b32 v{XU + 2 * p}, 16, v{XR + p}", f"v_and_b32 v{XU + 2 * p + 1}, {sMASK}, v{XR + p}"]
    eq = [("lds", f"ds_read_b128 {vr(P0 + 4 * q, 4)}, v2 offset:{EXB + 1024 * q}", ("exr", q // 5)) for q in range(15)]
    eq += [("wlg", ("exr", 1))] + [f"v_pk_add_f32 {vr(P0 + 2 * p, 2)}, {vr(P0 + 2 * p, 2)}, {vr(P1r + 2 * p, 2)}" for p in range(10)]
    eq += [("wlg", ("exr", 2))] + [f"v_pk_add_f32 {vr(P0 + 2 * p, 2)}, {vr(P0 + 2 * p, 2)}, {vr(P2r + 2 * p, 2)}" for p in range(10)]

    for i in range(56):
        k, st = divmod(i, 14)
        A0 = AC[k & 1]
        g.wvm(("h", i))
        if st >= 12 and k == 0:
            g.wvm(("wd", 69 if st == 13 else 64))
        r = HRING[i % NB]
        extra = [[] for _ in range(5)]
        if st == 1 and k >= 1:
            pa = AC[(k - 1) & 1]
            for j in range(5):
                extra[j].append(("lds", f"ds_write_b128 v{9 + k - 1}, {vr(pa + 4 * j, 4)} offset:{1024 * j}", "exw"))
        for j in ((0, 3) if i < opt.get("fast", 0) else ((i % 4,) if i % 4 else (0, 4))):
            if lateq:
                extra[j] += lateq.pop(0)
        if i == opt.get('sfl', 7):
            def sflag():
                n = sum(1 for t in g.vm if t[0] == "wd" or (t[0] == "h" and t[1] >= NE))
                e(f"s_waitcnt vmcnt({n})")
                flag_store(sPEND)
            extra[1].append(sflag)
        if 18 <= i < 26:
            for j in (1, 3, 4):
                if fq:
                    extra[j].append(fq.pop(0))
        if i == SFP:
            extra[0].append(("vm", f"buffer_load_dwordx4 {vr(vFL, 4)}, v{vFA + 1}, {SWS}, 0 offen sc1", ("sfp",)))
        if i == SFP + 6:
            c4 = check4(vFL)
            extra[0] += [("wvm", ("sfp",))] + c4[0:2]
            extra[1] += c4[2:4]
            extra[2] += c4[4:6]
            def sfchk():
                sl = g.newlab("Lslow")
                bk = g.newlab("Lback")
                e(c4[6])
                e(f"s_cbranch_vccnz {sl}")
                g.lab(bk)
                g.slow.append((sl, bk, [(vFA + 1, True)]))
            extra[3].append(sfchk)
        if i == SFP + 7:
            extra[0] += [f"s_mov_b32 m0, {sHS1}"]
            extra[1] += [("vm", f"buffer_load_dwordx4 v8, {SWS}, {sSTO} offen sc1 lds", ("stl",)), f"s_add_u32 m0, {sHS1}, 1024"]
            extra[2] += [f"s_add_u32 {sT3}, {sSTO}, {32 * 4096}"]
            extra[3] += [("vm", f"buffer_load_dwordx4 v8, {SWS}, {sT3} offen sc1 lds", ("stl",)), f"s_add_u32 m0, {sHS1}, 2048"]
            extra[4] += [f"s_add_u32 {sT3}, {sSTO}, {64 * 4096}", f"v_mov_b32 v7, {OOB}", "v_cmp_lt_u32 vcc, 31, v0"]
        if i == SFP + 8:
            extra[1] += ["v_cndmask_b32 v8, v8, v7, vcc"]
            extra[2] += [("vm", f"buffer_load_dwordx4 v8, {SWS}, {sT3} offen sc1 lds", ("stl",))]
        if 30 <= i and xq and st != 1:
            for j in (1, 2, 3):
                for _ in range(1):
                    if xq:
                        it = xq.pop(0)
                        if it is not None:
                            extra[j].append(it)
        if i == BAR:
            assert not xq
            g.wlg0()
            e("s_barrier")
        if i >= BAR:
            for j in range(5):
                for _ in range(0 if i in (SFP + 6, SFP + 7) else 1):
                    if eq:
                        extra[j].append(eq.pop(0))
        for j in range(5):
            phi = st * 5 + j
            src = ar(4 * phi, 4) if phi < 64 else vr(vWDV + 4 * (phi - 64), 4)
            Cs = "0" if st == 0 else vr(A0 + 4 * j, 4)
            e(f"v_mfma_f32_16x16x32_bf16 {vr(A0 + 4 * j, 4)}, {src}, {vr(r, 4)}, {Cs}")
            for it in extra[j]:
                g.do(it)
        if i + NB < 56:
            lateq.append(hload(i + NB))
    assert not lateq and not fq
    stamp("c_g2e", cyc=True)
    stamp("g2_loop_end")
    for it in eq:
        g.do(it)
    A0 = AC[1]
    E_ = 200
    e(f"s_mov_b32 {sT3}, {sT2}")
    g.wvm(("stl",))
    for j in range(5):
        g.lds(f"ds_read_b64_tr_b16 {vr(SR + 2 * j, 2)}, v3 offset:{512 * j}", "s")
    g.nop(2)
    align()
    for p in range(10):
        e(f"v_pk_add_f32 {vr(A0 + 2 * p, 2)}, {vr(A0 + 2 * p, 2)}, {vr(P0 + 2 * p, 2)}")
    for p in range(10):
        e(f"v_pk_mul_f32 {vr(E_ + 2 * p, 2)}, {vr(A0 + 2 * p, 2)}, s[56:57]")
    for p in range(20):
        e(f"v_exp_f32 v{E_ + p}, v{E_ + p}")
    g.wlg("s")
    for p in range(10):
        e(f"v_lshlrev_b32 v{SU + 2 * p}, 16, v{SR + p}")
        e(f"v_and_b32 v{SU + 2 * p + 1}, {sMASK}, v{SR + p}")
    align()
    for p in range(10):
        e(f"v_pk_mul_f32 {vr(A0 + 2 * p, 2)}, {vr(A0 + 2 * p, 2)}, {vr(SU + 2 * p, 2)}")
    for p in range(10):
        e(f"v_pk_add_f32 {vr(E_ + 2 * p, 2)}, {vr(E_ + 2 * p, 2)}, 1.0 op_sel_hi:[1,0]")
    for p in range(20):
        e(f"v_rcp_f32 v{E_ + p}, v{E_ + p}")
    e("s_nop 0\ns_nop 0")
    for p in range(10):
        e(f"v_pk_fma_f32 {vr(A0 + 2 * p, 2)}, {vr(A0 + 2 * p, 2)}, {vr(E_ + 2 * p, 2)}, {vr(XU + 2 * p, 2)}")
    for p in range(10):
        e(f"v_cvt_pk_bf16_f32 v{160 + p}, v{A0 + 2 * p}, v{A0 + 2 * p + 1}")
        if p % 2 == 1:
            g.lds(f"ds_write_b64 v4, {vr(160 + p - 1, 2)} offset:{16 * (p - 1)}", "ow")
    g.wlg0()
    for kk in range(3):
        g.lds(f"ds_read_b128 {vr(128 + 4 * kk, 4)}, v5 offset:{1024 * kk}", ("or", kk))
    osc = opt.get("outsc", "")
    for kk in range(3):
        g.wlg(("or", kk))
        g.vmem(f"buffer_store_dwordx4 {vr(128 + 4 * kk, 4)}, v{(12, 13, 15)[kk]}, {SOUT}, {sXO} offen{osc}", "out")
    if diag:
        g.wvm0()
        stamp("end", flush=True)
        if opt.get("dbg"):
            e("s_load_dwordx2 s[88:89], s[100:101], 96")
            e("v_readlane_b32 s92, v127, 60")
            e("s_mov_b32 s90, 64\ns_mov_b32 s91, 0x20000")
            e("v_writelane_b32 v127, s92, 1")
            e("s_not_b32 s92, s92")
            e("v_writelane_b32 v127, s92, 0")
            e("v_lshlrev_b32 v2, 2, v0")
            e("s_waitcnt lgkmcnt(0)")
            e("buffer_atomic_umax v127, v2, s[88:91], 0 offen")
            e("s_endpgm")
        e(f"s_mov_b32 s88, s16\ns_mov_b32 s89, s17\ns_mov_b32 s90, 0x1000000\ns_mov_b32 s91, 0x20000")
        e(f"s_lshl_b32 {sT1}, s2, 2\ns_add_u32 {sT1}, {sT1}, {sW}\ns_lshl_b32 {sT1}, {sT1}, 8\ns_add_u32 {sT1}, {sT1}, {TS_BASE}")
        e("v_lshlrev_b32 v2, 2, v0")
        e(f"buffer_store_dword v127, v2, s[88:91], {sT1} offen")
    g.lab("L_end")
    e("s_endpgm")
    e(".p2align 6")
    g.lab("L_spare")
    g.vm = vm0
    g.lg = []
    g.pst = []
    g.sfree = [92] if opt.get('dbg') else [92, 100]
    if diag:
        e("v_mov_b32 v127, 0")
        e("v_writelane_b32 v127, s92, 60")
    e("v_lshrrev_b32 v4, 3, v0")
    e("v_and_b32 v5, 7, v0")
    e("s_add_u32 s68, s88, L_spare - L_pc + 256")
    e("s_addc_u32 s69, s89, 0")
    e("s_mov_b32 s70, 0x2000\ns_mov_b32 s71, 0x20000")
    e("v_and_b32 v10, 15, v0")
    e(f"s_lshl_b32 {sT1}, {sW}, 11")
    e("v_lshlrev_b32 v10, 7, v10")
    g.vmem(f"buffer_load_dword v{vFL + 4}, v10, s[68:71], {sT1} offen", "cpf")
    rest_setup()
    rest_loads()
    for r3 in range(3):
        run_items(param_units(r3))
    run_items(tab_units())
    table_code(TB)
    aE, aL2 = addr_items(XYB_SP, TB)
    run_items(aL2 + aE)
    g.wvm("ln")
    stamp("ln_data")
    ln_code()
    ln_tail()
    stamp("ln_done", flush=True)
    e(f"s_lshl_b32 {sMASK}, s2, 2")
    e(f"s_add_u32 {sMASK}, {sMASK}, {LNF}")
    e(f"s_cmp_eq_u32 {sW}, 0")
    e(f"s_cselect_b32 {sMASK}, {sMASK}, {OOB}")
    e(f"v_add_u32 v{vFA}, {LNF}, v1")
    e("v_min_u32 v2, 53, v0")
    e(f"s_lshr_b32 {sF0}, {sDT}, 1")
    e(f"s_lshl_b32 {sF0}, {sF0}, 10")
    e(f"s_add_u32 {sF0}, {sF0}, {WF}")
    e(f"v_lshl_add_u32 v{vFA + 1}, v2, 4, {sF0}")
    e(f"s_mov_b32 {sK1}, {sRND}")
    rb1()
    g.wvm("par")
    tag_code()
    g.lab("L_kgen")
    g.vm = []
    kgen("s", [], 1)
    g.wall()
    e("s_barrier")
    flag_store(sMASK)
    e(f"s_mov_b32 {sMASK}, {OOB}")
    kgen_mfma()
    e(f"s_sub_u32 {sK1}, {sK1}, 1")
    e(f"s_cmp_eq_u32 {sK1}, 0")
    e("s_cbranch_scc1 L_kdone")
    e(f"s_add_u32 {sKR}, {sKR}, {2 * TC}")
    for i in range(8):
        e(f"v_add_u32 v{SC + i}, {2 * TC}, v{SC + i}")
    for i in range(6):
        e(f"v_accvgpr_mov_b32 a{APAR + i}, a{APAR + 8 + i}")
        e(f"v_accvgpr_mov_b32 a{APAR + 8 + i}, a{APAR + 16 + i}")
    e("s_waitcnt lgkmcnt(0)")
    e("s_barrier")
    e("s_branch L_kgen")
    g.lab("L_kdone")
    stamp("kdone", flush=True)
    e(f"s_cmp_lg_u32 {sW}, 0")
    e("s_cbranch_scc1 L_sp_polled")
    poll_block(vFA, True, sleep=16)
    g.lab("L_sp_polled")
    e("s_waitcnt lgkmcnt(0)")
    e("s_barrier")
    stamp("sp_lnf", flush=True)
    run_items(u_loads(sCP, 2))
    rb2(TB_G1 - TB)
    conv(False)
    e(f"s_cmp_eq_u32 {sK0}, 0")
    e("s_cbranch_scc1 L_conv_last")
    poll_block(vFA + 1, True, sleep=24)
    for phi in range(P1):
        for it in wd_load(phi):
            e(it[1] if isinstance(it, tuple) else it)
    e("s_branch L_conv_last")
    for (sl, bk, lst) in g.slow:
        g.lab(sl)
        g.sfree = [98]
        g.pst = []
        if diag:
            e("s_waitcnt lgkmcnt(0)")
        for pi, (av, n4) in enumerate(lst):
            stamp(f"slow{sl[-2:]}_{pi}", flush=True)
            poll_block(av, n4, sleep=opt.get("ssleep", 20))
        stamp(f"slow{sl[-2:]}_x", flush=True)
        e(f"s_branch {bk}")
    g.L.append(".p2align 7")
    g.L.append(".type L_tab,@object")
    g.lab("L_tab")
    tb = lane_table()
    for i in range(0, len(tb), 16):
        g.L.append(".long " + ",".join(str(x) for x in tb[i:i + 16]))
    g.L.append(f".size L_tab, {4 * len(tb)}")
    g.lab("L_codeend")

    doc = """; Fused LayerNorm + S4D long convolution + GEGLU FFN + SiLU gate, one persistent launch (1 workgroup per CU).
; kernarg: 0 u | 8 log_A_real | 16 A_imag | 24 C_real | 32 C_imag | 40 log_dt | 48 D_skip | 56 x (unused) |
;          64 w_gate | 72 w_up | 80 w_down | 88 out | 96 debug | 104 ws
; 216 workgroups: LN of 8 rows, SSM kernel table of 2 channels, GEMM1 tile 256 x (64 gate + 64 up) on raw u with the
; LayerNorm applied algebraically in the GEGLU epilogue, Toeplitz convolution of their 2 channels, GEMM2 tile 64 x 80.
; 40 workgroups: LN, the remaining 208 channels of the convolution, GEMM2 tile.
; Hand-offs go through ws with write-through stores + per-launch tagged flags (tag derived from an epoch word in ws).
; Generated by a script of the author (straight-line schedule, counted waits).""".split("\n")
    hdr = doc + [f"; @launch kernel={KNAME} grid=(256,1,1) block=(256,1,1) lds={LDS_TOTAL}",
           '.amdgcn_target "amdgcn-amd-amdhsa--gfx950"', ".text", f".globl {KNAME}", ".p2align 8",
           f".type {KNAME},@function", f"{KNAME}:"]
    ftr = ['.section .rodata,"a"', ".p2align 6", f".amdhsa_kernel {KNAME}",
           "  .amdhsa_next_free_vgpr 512", "  .amdhsa_next_free_sgpr 102", "  .amdhsa_accum_offset 256",
           "  .amdhsa_group_segment_fixed_size 0", "  .amdhsa_kernarg_size 112", "  .amdhsa_user_sgpr_count 2",
           "  .amdhsa_user_sgpr_kernarg_segment_ptr 1", "  .amdhsa_system_sgpr_workgroup_id_x 1",
           "  .amdhsa_float_denorm_mode_32 3",
           ".end_amdhsa_kernel"]
    txt = "\n".join(hdr + g.L + ftr) + "\n"
    if diag:
        txt = txt + "; STAMPS " + ",".join(ts_names) + "\n"
    return txt


if __name__ == "__main__":
    diag = "--diag" in sys.argv
    opt = {}
    for a in sys.argv[1:]:
        if a.startswith("--") and "=" in a:
            k, v = a[2:].split("=")
            opt[k] = int(v) if v.lstrip("-").isdigit() else v.replace("_", " ")
    out = [a for a in sys.argv[1:] if not a.startswith("--")]
    s = gen(diag=diag, opt=opt)
    path = out[0] if out else "recurrent_scan__ssm_conv_s4d__geglu_ffn__prompt.s"
    open(path, "w").write(s)
    print("wrote", path, len(s), "bytes", s.count("\n"), "lines")
```
